```python
import torch

def _softmax(x, axis=-1):
    return torch.softmax(x, dim=axis)
def _gelu(x):
    return torch.nn.functional.gelu(x, approximate="tanh")
def _silu(x):
    return torch.nn.functional.silu(x)
def _sigmoid(x):
    return torch.sigmoid(x)
def _layernorm(x, axis=-1, eps=1e-5):
    m = x.mean(dim=axis, keepdim=True)
    v = x.var(dim=axis, keepdim=True, unbiased=False)
    return (x - m) / torch.sqrt(v + eps)
def _scatter_add(tgt, idx, src, axis=0):
    return tgt.clone().index_add_(axis, idx, src)
def _segment_sum(src, seg, n):
    out = torch.zeros((n,) + src.shape[1:], dtype=src.dtype)
    return out.index_add_(0, seg, src)
def _pad(x, pw):
    flat = tuple(v for pair in reversed(pw) for v in pair)
    return torch.nn.functional.pad(x, flat)

kernel_name = 'interleave_layers__linear_attn_block__dense_activation_silu__prompt'

def setup_inputs():

    _w = (lambda a: (lambda t: t.to(torch.bfloat16) if t.is_floating_point() else t)(torch.as_tensor(a)))
    def _A_setup():
        B, S, D = 1, 2048, 448
        return {
            "x": _w((lambda *s: torch.randn(*s, dtype=torch.bfloat16) * 0.05)(B, S, D)),
            "wqkv": _w((lambda *s: torch.randn(*s, dtype=torch.bfloat16) * 0.1)(D, 3 * D)),
            "wo": _w((lambda *s: torch.randn(*s, dtype=torch.bfloat16) * 0.05)(D, D)),
        }
    _A_in = _A_setup()

    def _B_setup():
        B, S, D, F = 1, 2048, 448, 1792
        return {
            "x": _w((lambda *s: torch.randn(*s, dtype=torch.bfloat16) * 0.05)(B, S, D)),
            "w1": _w((lambda *s: torch.randn(*s, dtype=torch.bfloat16) * 3.2)(D, F) * (D ** -0.5)),
            "w2": _w((lambda *s: torch.randn(*s, dtype=torch.bfloat16) * 0.8)(F, D) * (F ** -0.5)),
        }
    _B_in = _B_setup()

    return {
        "A_x": _A_in["x"],
        "A_wqkv": _A_in["wqkv"],
        "A_wo": _A_in["wo"],
        "B_x": _B_in["x"],
        "B_w1": _B_in["w1"],
        "B_w2": _B_in["w2"],
    }

def reference(A_x, A_wqkv, A_wo, B_x, B_w1, B_w2):
    def _A_ref(x, wqkv, wo):
        B, S, D = x.shape
        H = 16; Dh = D // H
        qkv = (lambda x, *d: x.permute(*d))((x @ wqkv).reshape(B, S, 3, H, Dh), 2, 0, 3, 1, 4)
        q, k, v = qkv[0], qkv[1], qkv[2]
        phi = lambda t: torch.where(t > 0, t + 1, torch.exp(t)) + 1e-6
        pq, pk = phi(q), phi(k)
        kv = torch.einsum("bhsd,bhse->bhde", pk, v)
        z = torch.einsum("bhsd->bhd", pk)
        num = torch.einsum("bhqd,bhde->bhqe", pq, kv)
        den = torch.einsum("bhqd,bhd->bhq", pq, z)[..., None] + 1e-6
        o = num / den
        return (lambda x, *d: x.permute(*d))(o, 0, 2, 1, 3).reshape(B, S, D) @ wo

    def _B_ref(x, w1, w2):
        h = torch.einsum("bsd,df->bsf", x, w1)
        h = _silu(h)
        out = torch.einsum("bsf,fd->bsd", h, w2)
        return out

    x = A_x
    x = x + _A_ref(_layernorm(x, axis=-1), A_wqkv, A_wo)
    x = x + _B_ref(_layernorm(x, axis=-1), B_w1, B_w2)
    x = x + _A_ref(_layernorm(x, axis=-1), A_wqkv, A_wo)
    x = x + _B_ref(_layernorm(x, axis=-1), B_w1, B_w2)
    return x
```

```python
import re

REG_RE = re.compile(r"^(-|\|)?([vas])(\d+)\|?$")
RNG_RE = re.compile(r"^(-|\|)?([vas])\[(\d+):(\d+)\]\|?$")
TRANS = ("v_exp_f32", "v_log_f32", "v_rcp_f32", "v_rsq_f32", "v_sqrt_f32", "v_sin_f32", "v_cos_f32")


def regs_of(tok):
    tok = tok.strip()
    m = REG_RE.match(tok)
    if m:
        return [m.group(2) + m.group(3)]
    m = RNG_RE.match(tok)
    if m:
        return [m.group(2) + str(i) for i in range(int(m.group(3)), int(m.group(4)) + 1)]
    if tok in ("vcc", "exec", "m0", "scc"):
        return [tok]
    if tok in ("vcc_lo", "vcc_hi"):
        return ["vcc"]
    if tok in ("exec_lo", "exec_hi"):
        return ["exec"]
    return []


def split_ops(s):
    out, depth, cur = [], 0, ""
    for ch in s:
        if ch in "[(":
            depth += 1
        if ch in "])":
            depth -= 1
        if ch == "," and depth == 0:
            out.append(cur.strip())
            cur = ""
        else:
            cur += ch
    if cur.strip():
        out.append(cur.strip())
    return out


class Ins:
    __slots__ = ("text", "op", "kind", "rd", "wr", "tag", "srcc", "ab", "data", "passes", "arg")

    def __init__(self, text, tag=None):
        self.text = text
        self.tag = tag
        self.srcc = set()
        self.ab = set()
        self.data = set()
        self.passes = 0
        self.arg = None
        t = text.strip()
        if t.endswith(":"):
            self.op, self.kind, self.rd, self.wr = t, "label", set(), set()
            return
        if t.startswith(";") or t.startswith("."):
            self.op, self.kind, self.rd, self.wr = t, "comment", set(), set()
            return
        parts = t.split(None, 1)
        op = parts[0]
        self.op = op
        ops = split_ops(parts[1]) if len(parts) > 1 else []
        mods = ""
        if ops:
            last = ops[-1].split(None, 1)
            ops[-1] = last[0]
            mods = last[1] if len(last) > 1 else ""
        R = [regs_of(o) for o in ops]
        flat = lambda xs: set(r for x in xs for r in x)
        rd, wr = set(), set()
        if op.startswith("v_mfma"):
            self.kind = "mfma"
            wr = set(R[0])
            self.ab = set(R[1]) | set(R[2])
            self.srcc = set(R[3])
            rd = self.ab | self.srcc
            self.passes = 8 if "32x32x16" in op else 4
            rd.add("exec")
        elif op.startswith("buffer_") or op.startswith("global_"):
            if "load" in op:
                if " lds" in " " + mods:
                    self.kind = "dma"
                    rd = flat(R) | {"m0"}
                else:
                    self.kind = "vload"
                    wr = set(R[0])
                    rd = flat(R[1:])
            elif "store" in op:
                self.kind = "vstore"
                rd = flat(R)
                self.data = set(R[0]) if op.startswith("buffer_") else set(R[1])
            else:
                raise ValueError(text)
            rd.add("exec")
        elif op.startswith("ds_"):
            if "read" in op or "bpermute" in op or "swizzle" in op:
                self.kind = "dsread"
                wr = set(R[0])
                rd = flat(R[1:])
            else:
                self.kind = "dswrite"
                rd = flat(R)
            rd.add("exec")
        elif op.startswith("s_load") or op in ("s_memtime", "s_memrealtime"):
            self.kind = "smem"
            wr = set(R[0])
            rd = flat(R[1:])
        elif op == "s_waitcnt":
            self.kind = "wait"
        elif op == "s_nop":
            self.kind = "nop"
            self.arg = int(ops[0])
        elif op == "s_barrier":
            self.kind = "barrier"
        elif op.startswith("s_cbranch") or op in ("s_branch", "s_endpgm", "s_setpc_b64"):
            self.kind = "branch"
            if "scc" in op:
                rd = {"scc"}
            if "vcc" in op:
                rd = {"vcc"}
            if "exec" in op:
                rd = {"exec"}
        elif op.startswith("s_"):
            self.kind = "salu"
            if op.startswith("s_cmp") or op.startswith("s_bitcmp"):
                rd = flat(R)
                wr = {"scc"}
            elif op in ("s_sleep", "s_setprio"):
                pass
            else:
                wr = set(R[0]) | {"scc"}
                rd = flat(R[1:])
                if op.startswith("s_mov") or op.startswith("s_mul") or op.startswith("s_cselect") or op.startswith("s_getreg") or op.startswith("s_getpc"):
                    wr.discard("scc")
                if op.startswith("s_cselect") or op.startswith("s_addc") or op.startswith("s_subb"):
                    rd.add("scc")
                if "saveexec" in op:
                    wr.add("exec")
                    rd.add("exec")
        elif op.startswith("v_"):
            base = op.replace("_e32", "").replace("_e64", "")
            self.kind = "trans" if base in TRANS else "valu"
            rd.add("exec")
            if op.startswith("v_nop"):
                pass
            elif op.startswith("v_permlane"):
                wr = set(R[0]) | set(R[1])
                rd |= wr
            elif op.startswith("v_cmp"):
                wr = set(R[0])
                rd |= flat(R[1:])
            elif "_co_" in op:
                wr = set(R[0]) | set(R[1])
                rd |= flat(R[2:])
            else:
                wr = set(R[0])
                rd |= flat(R[1:])
                if base.startswith("v_fmac") or base.startswith("v_dot2c") or "dpp" in op or base.startswith("v_writelane"):
                    rd |= set(R[0])
        else:
            raise ValueError("cannot parse: " + text)
        self.rd, self.wr = rd, wr


class Pseudo:
    def __init__(self, what, tag=None):
        self.kind = "pseudo"
        self.what = what
        self.tag = tag
        self.rd = set()
        self.wr = set()
        self.text = f"; {what} {tag}"


class Prog:
    def __init__(self):
        self.ins = []
        self.nlabel = 0

    def __call__(self, text, tag=None):
        for line in text.split("\n"):
            line = line.strip()
            if line:
                self.ins.append(Ins(line, tag))

    def add(self, items):
        self.ins.extend(items)

    def wait_vm(self, tag):
        self.ins.append(Pseudo("wait_vm", tag))

    def wait_ds(self, tag=None):
        self.ins.append(Pseudo("wait_ds", tag))

    def vm_drained(self):
        self.ins.append(Pseudo("vm_drained"))

    def alt_begin(self):
        self.ins.append(Pseudo("alt_begin"))

    def alt_else(self):
        self.ins.append(Pseudo("alt_else"))

    def alt_end(self):
        self.ins.append(Pseudo("alt_end"))

    def label(self, stem):
        self.nlabel += 1
        return f"L_{stem}_{self.nlabel}"


def sub():
    return Prog()


WAIT_RE = re.compile(r"(vmcnt|lgkmcnt)\((\d+)\)")


def insert_waits(ins):
    out = []
    vm = []
    ds = []
    saved = None

    def need(lst, pred):
        last = -1
        for i, e in enumerate(lst):
            if pred(e):
                last = i
        return last

    def emit_wait(vi, di):
        nonlocal vm, ds
        parts = []
        if vi >= 0:
            n = min(len(vm) - 1 - vi, 63)
            parts.append(f"vmcnt({n})")
            vm = vm[len(vm) - n:] if n else []
        if di >= 0:
            if any(e[2] for e in ds):
                n = 0
            else:
                n = min(len(ds) - 1 - di, 15)
            parts.append(f"lgkmcnt({n})")
            ds = ds[len(ds) - n:] if n else []
        if parts:
            out.append(Ins("s_waitcnt " + " ".join(parts)))

    for x in ins:
        if x.kind == "pseudo":
            if x.what == "wait_vm":
                tags = x.tag if isinstance(x.tag, (list, tuple, set)) else [x.tag]
                emit_wait(need(vm, lambda e: x.tag is None or e[1] in tags), -1)
            elif x.what == "wait_ds":
                tags = x.tag if isinstance(x.tag, (list, tuple, set)) else [x.tag]
                emit_wait(-1, need(ds, lambda e: x.tag is None or e[1] in tags))
            elif x.what == "vm_drained":
                vm = []
            elif x.what == "alt_begin":
                saved = ("begin", list(vm), list(ds))
            elif x.what == "alt_else":
                after_a = (list(vm), list(ds))
                vm, ds = list(saved[1]), list(saved[2])
                saved = ("else", after_a)
            elif x.what == "alt_end":
                a_vm, a_ds = saved[1]
                assert len(a_vm) == len(vm) and len(a_ds) == len(ds), "alt arms differ in outstanding ops"
                saved = None
            if x.what.startswith("alt_"):
                out.append(x)
            continue
        if x.kind == "wait":
            for name, n in WAIT_RE.findall(x.text):
                n = int(n)
                if name == "vmcnt":
                    vm = vm[len(vm) - n:] if 0 < n < len(vm) else ([] if n == 0 else vm)
                else:
                    if n == 0:
                        ds = []
                    elif not any(e[2] for e in ds) and n < len(ds):
                        ds = ds[len(ds) - n:]
            out.append(x)
            continue
        touched = x.rd | x.wr
        vi = need(vm, lambda e: e[0] & touched)
        di = need(ds, lambda e: e[0] & touched)
        if x.kind == "dsread" and di >= 0 and not (x.rd & set().union(*[e[0] for e in ds])) and not any(e[2] for e in ds):
            di = -1
        if x.kind == "vload" and vi >= 0 and not (x.rd & set().union(*[e[0] for e in vm])):
            vi = -1
        emit_wait(vi, di)
        out.append(x)
        if x.kind == "vload":
            vm.append((set(x.wr), x.tag))
        elif x.kind in ("vstore", "dma"):
            vm.append((set(), x.tag))
        elif x.kind == "dsread":
            ds.append((set(x.wr), x.tag, False))
        elif x.kind == "dswrite":
            ds.append((set(), x.tag, False))
        elif x.kind == "smem":
            ds.append((set(x.wr), x.tag, True))
    return out


def states(x):
    if x.kind in ("label", "comment", "pseudo"):
        return 0
    if x.kind == "nop":
        return x.arg + 1
    return 1


VALU_KINDS = ("valu", "trans")
MEM_KINDS = ("vload", "vstore", "dma", "dsread", "dswrite")


def required(p, c):
    n = 0
    pv = p.kind in VALU_KINDS
    cv = c.kind in VALU_KINDS
    if pv:
        vw = {r for r in p.wr if r[0] in "va" and r != "vcc"}
        sw = {r for r in p.wr if r[0] == "s" and r != "scc" or r == "vcc"}
        if c.kind == "mfma" and vw & c.rd:
            n = max(n, 2)
        if cv and c.op.startswith("v_permlane") and vw & c.rd:
            n = max(n, 2)
        if cv and "dpp" in c.op and vw & c.rd:
            n = max(n, 2)
        if cv and (c.op.startswith("v_readfirstlane") or c.op.startswith("v_readlane")) and vw & c.rd:
            n = max(n, 1)
        if p.kind == "trans" and cv and c.kind != "trans" and vw & c.rd:
            n = max(n, 1)
        if "sdwa" in p.op and cv and vw & (c.rd | c.wr):
            n = max(n, 1)
        if sw & c.rd:
            if c.kind in ("vload", "vstore", "dma"):
                n = max(n, 5)
            elif cv:
                n = max(n, 4 if (c.op.startswith("v_readlane") or c.op.startswith("v_writelane")) else 2)
            elif c.kind in ("salu", "smem"):
                n = max(n, 1)
        if p.op.startswith("v_dot2") and vw & (c.rd | c.wr) and (cv or c.kind == "mfma" or c.kind in MEM_KINDS):
            same = c.op == p.op
            if not (same and not (vw & (c.rd - c.wr))):
                n = max(n, 3)
        if "exec" in p.wr:
            n = max(n, 5)
    if p.kind == "salu" and "m0" in p.wr and "m0" in c.rd and c.kind == "dma":
        n = max(n, 1)
    if p.kind == "vstore" and len(p.data) >= 3 and p.data & c.wr:
        n = max(n, 2)
    if p.kind == "mfma":
        big = {4: 8, 8: 12}[p.passes]
        if c.kind == "mfma":
            if p.wr & c.ab:
                n = max(n, big)
            if p.wr & c.srcc:
                if not (p.wr == c.srcc and p.passes == c.passes):
                    n = max(n, {4: 6, 8: 10}[p.passes])
            elif p.wr & c.wr:
                n = max(n, {4: 6, 8: 10}[p.passes])
        elif cv or c.kind in MEM_KINDS:
            if p.wr & (c.rd | c.wr):
                n = max(n, big)
            if p.srcc & c.wr:
                n = max(n, {4: 3, 8: 7}[p.passes])
    return n


def insert_nops(ins):
    out = []
    hist = []
    saved = None
    LOOK = 14
    for x in ins:
        if x.kind == "pseudo":
            if x.what == "alt_begin":
                saved = list(hist[-2 * LOOK:])
            elif x.what == "alt_else":
                hist = list(saved)
            continue
        if x.kind in ("label", "comment"):
            out.append(x)
            continue
        dist = 0
        pad = 0
        for p in reversed(hist):
            if dist >= LOOK:
                break
            if p.kind in ("label", "comment", "pseudo"):
                continue
            r = required(p, x)
            if r > dist:
                pad = max(pad, r - dist)
            dist += states(p)
        while pad > 0:
            k = min(pad, 16)
            out.append(Ins(f"s_nop {k - 1}"))
            hist.append(out[-1])
            pad -= k
        out.append(x)
        hist.append(x)
    return out


def finalize(ins):
    ins = insert_waits(ins)
    ins = insert_nops(ins)
    lines = []
    for x in ins:
        if x.kind == "label":
            lines.append(x.text.strip())
        elif x.kind == "pseudo":
            continue
        else:
            lines.append("    " + x.text.strip())
    return lines


def weave(main, fill, per_gap, start=0):
    out = []
    k = 0
    acc = 0.0
    for i, g in enumerate(main):
        out.extend(g)
        if i >= start:
            acc += per_gap
            while acc >= 1.0 - 1e-9 and k < len(fill):
                f = fill[k]
                out.extend(f if isinstance(f, list) else [f])
                k += 1
                acc -= 1.0
    while k < len(fill):
        f = fill[k]
        out.extend(f if isinstance(f, list) else [f])
        k += 1
    return out
```

```python
import sys, os
sys.path.insert(0, os.path.dirname(os.path.abspath(__file__)))
from asmlib import *

NAME = "interleave_layers__linear_attn_block__dense_activation_silu__prompt"
KB = 1024

WS_EPOCH = 0
WS_XC = 0x1000
WS_DIAG = 0x20000
WS_KV = 0x100000
WS_G = 0x300000
G_STRIDE = 0x128000
G_H = 0
G_X = 8 * 112 * KB
G_ST = G_X + 8 * 28 * KB
G_FX = G_ST + 8 * 7 * KB
G_FO = G_FX + 1024
G_FH = G_FO + 1024
G_END = G_FH + 2048
assert G_END <= G_STRIDE
WS_BYTES = WS_G + 8 * G_STRIDE

L_WK, L_WV, L_WQ, L_WO, L_S = 0, 28 * KB, 56 * KB, 84 * KB, 112 * KB
L_XST = 48 * KB
S_KVP, S_KVS = 0, 16 * KB
S_CS = 18 * KB
S_STAT, S_TR = 42 * KB, 44 * KB
LDS_BYTES = 160 * KB

SX, SQ, SO, S1, S2, SOUT, SWS, SG = ("s[8:11]", "s[12:15]", "s[16:19]", "s[20:23]", "s[24:27]", "s[28:31]",
                                     "s[32:35]", "s[36:39]")
sE, sg, sh, srh, sw, sfast, srq, scb, stb, sxs, slim = ("s56", "s57", "s58", "s59", "s60", "s61", "s62", "s63",
                                                        "s64", "s65", "s66")
sT0, sT1, sT2, sT3, sT4, sT5 = "s40", "s41", "s42", "s43", "s44", "s45"
sCnt, sNeed = "s46", "s47"
sONES, sLOG2E, sEPS6, sHI = "s48", "s49", "s50", "s51"
sM28 = "s[52:53]"
sMPAD = "s[54:55]"
sHB, sXB, sSTB = "s67", "s68", "s69"
STAMP0 = 70

vLane, vL16, vTrA, vTrB = "v0", "v1", "v2", "v3"
vCS1 = 4
vCSQ = 6
vS16 = "v12"
vT0, vT1, vT2 = "v13", "v14", "v15"


def V(n, k=4):
    return f"v[{n}:{n + k - 1}]" if k > 1 else f"v{n}"


def A(n, k=4):
    return f"a[{n}:{n + k - 1}]" if k > 1 else f"a{n}"


def w1reg(s, lo=0, k=4):
    return A(224 + 4 * s + lo, k) if s < 8 else V(176 + 4 * (s - 8) + lo, k)


def w2reg(j, ch, lo=0, k=4):
    return A(8 * j + 4 * ch + lo, k)


MFMA = "v_mfma_f32_32x32x16_bf16"


class Gen:
    def __init__(self, diag=False, force_slow=False, stop_after=None):
        self.p = Prog()
        self.diag = diag
        self.force_slow = force_slow
        self.stop_after = stop_after
        self.nstamp = 0
        self.stamp_names = []
        self.pending = False

    def stamp(self, name, op="s_memtime"):
        if not self.diag:
            return
        self.stamp_flush()
        assert STAMP0 + self.nstamp < 100, "too many stamps"
        self.p(f"{op} s[100:101]")
        self.stamp_names.append(name)
        self.nstamp += 1
        self.pending = True

    def stamp_flush(self):
        if self.diag and self.pending:
            self.p(f"s_mov_b32 s{STAMP0 + self.nstamp - 1}, s100")
            self.pending = False

    def publish(self, stores, tag="pub"):
        p = self.p
        ls, le = p.label("slow"), p.label("pub")
        p(f"s_cmp_eq_u32 {sfast}, 0")
        p(f"s_cbranch_scc1 {ls}")
        p.alt_begin()
        for s in stores:
            p(s, tag)
        p(f"s_branch {le}")
        p.alt_else()
        p(f"{ls}:")
        for s in stores:
            p(s + (" sc1" if s.startswith("buffer_") else ""), tag)
        p.alt_end()
        p(f"{le}:")

    def flag(self, vaddr_off, val, n=1):
        p = self.p
        p(f"s_add_u32 {sT5}, {sE}, {val}")
        p(f"v_mov_b32 {vT1}, {sT5}")
        p(f"v_mov_b32 {vT2}, {sT5}")
        p(f"v_mov_b32 {vT0}, 0")
        op = "buffer_store_dword v14" if n == 1 else "buffer_store_dwordx2 v[14:15]"
        self.publish(["s_mov_b64 exec, 1", f"{op}, {vT0}, {SG}, {vaddr_off} offen", "s_mov_b64 exec, -1"], "flag")

    def poll(self, vaddr, srd, soff, need, n=1, tmp=14):
        p = self.p
        lp, ld = p.label("poll"), p.label("polled")
        p(f"s_add_u32 {sNeed}, {sE}, {need}")
        p(f"s_mov_b32 {sCnt}, {slim}")
        p(f"{lp}:")
        if n == 1:
            p(f"buffer_load_dword v{tmp}, {vaddr}, {srd}, {soff} offen sc1")
        else:
            p(f"buffer_load_dwordx2 v[{tmp}:{tmp + 1}], {vaddr}, {srd}, {soff} offen sc1")
        p("s_waitcnt vmcnt(0)")
        p(f"v_subrev_u32 v{tmp}, {sNeed}, v{tmp}")
        if n == 2:
            p(f"v_subrev_u32 v{tmp + 1}, {sNeed}, v{tmp + 1}")
            p(f"v_or_b32 v{tmp}, v{tmp}, v{tmp + 1}")
        p(f"v_cmp_lt_u32 vcc, 31, v{tmp}")
        p(f"s_cbranch_vccz {ld}")
        p(f"s_sub_u32 {sCnt}, {sCnt}, 1")
        p(f"s_cmp_lg_u32 {sCnt}, 0")
        p(f"s_cbranch_scc1 {lp}")
        p(f"s_mov_b32 {slim}, 1")
        p(f"{ld}:")

    def trread(self, dst_lo, dst_hi, vaddr, off, second=512):
        return [Ins(f"ds_read_b64_tr_b16 {dst_lo}, {vaddr} offset:{off}"),
                Ins(f"ds_read_b64_tr_b16 {dst_hi}, {vaddr} offset:{off + second}")]

    def transpose_block(self, reg):
        return [Ins(f"ds_write_b128 v16, {reg(0, 4)}"),
                Ins(f"ds_read_b64_tr_b16 {reg(0, 2)}, v17"),
                Ins(f"ds_read_b64_tr_b16 {reg(2, 2)}, v17 offset:512")]

    def tr_addrs(self):
        p = self.p
        p(f"s_lshl_b32 {sT0}, {sw}, 10")
        p(f"s_add_u32 {sT0}, {sT0}, {L_S + S_TR}")
        p(f"v_add_u32 v16, {sT0}, {vL16}")
        p(f"v_add_u32 v17, {sT0}, {vTrA}")

    def both_halves(self, s, q, tmp):
        p = self.p
        p(f"v_permlane32_swap_b32 {s}, {q}")
        p(f"v_add_f32 {s}, {s}, {q}")

    def stats_finish(self, t, u, mean, var):
        p = self.p
        p(f"v_mov_b32 {u}, {t}")
        p(f"v_permlane32_swap_b32 {t}, {u}")
        p(f"v_mul_f32 {mean}, 0x3b124925, {t}")
        p(f"v_mul_f32 {var}, 0x3b124925, {u}")
        p(f"v_fma_f32 {var}, -{mean}, {mean}, {var}")
        p(f"v_max_f32 {var}, 0, {var}")
        p(f"v_add_f32 {var}, 0x3727c5ac, {var}")

    def split_words(self, x, w0, w1, t, neg, xside):
        p = self.p
        s = "-" if neg else ""
        p(f"v_cvt_pk_bf16_f32 {w0}, {s}{x}, {s}{x}")
        p(f"v_and_b32 {t}, {sHI}, {w0}")
        p(f"v_sub_f32 {t}, {s}{x}, {t}" if not neg else f"v_sub_f32_e64 {t}, -{x}, {t}")
        if xside:
            p(f"v_and_b32 {w1}, 0xffff, {w0}")
            p(f"v_cvt_pk_bf16_f32 {t}, {t}, {t}")
            p(f"v_and_or_b32 {w0}, {t}, {sHI}, {w1}")
        else:
            p(f"v_cvt_pk_bf16_f32 {w1}, {t}, 0")

    def prologue(self):
        p = self.p
        p("s_cmp_lt_u32 s2, 256")
        p("s_cbranch_scc1 L_start")
        p("s_endpgm")
        p("L_start:")
        p("s_load_dwordx4 s[40:43], s[0:1], 0")
        p("s_load_dwordx2 s[44:45], s[0:1], 16")
        p("s_load_dwordx4 s[48:51], s[0:1], 32")
        p("s_load_dwordx2 s[46:47], s[0:1], 48")
        p("s_load_dwordx2 s[52:53], s[0:1], 64")
        self.stamp("realtime", "s_memrealtime")
        p("v_lshrrev_b32 v13, 6, v0")
        p(f"v_and_b32 {vLane}, 63, v0")
        p(f"v_readfirstlane_b32 {sw}, v13")
        p(f"s_and_b32 {sg}, s2, 7")
        p(f"s_lshr_b32 s3, s2, 3")
        p(f"s_and_b32 {sh}, s3, 15")
        p(f"s_lshr_b32 {srh}, s3, 4")
        p(f"s_cmp_ge_u32 {sh}, 7")
        p(f"s_cselect_b32 s4, 1, 0")
        p(f"s_cselect_b32 s5, 7, 0")
        p(f"s_lshl_b32 {srq}, {srh}, 1")
        p(f"s_add_u32 {srq}, {srq}, s4")
        p(f"s_sub_u32 {scb}, {sh}, s5")
        p(f"s_lshl_b32 {stb}, {srh}, 2")
        p(f"s_and_b32 s4, {sw}, 1")
        p(f"s_lshl_b32 s4, s4, 1")
        p(f"s_lshr_b32 s5, {sw}, 1")
        p(f"s_or_b32 s4, s4, s5")
        p(f"s_add_u32 {sxs}, {stb}, s4")
        p(f"s_add_u32 {stb}, {stb}, {sw}")
        p(f"s_mul_i32 {sHB}, {stb}, {112 * KB}")
        p(f"s_mul_i32 {sXB}, {sxs}, {28 * KB}")
        p(f"s_add_u32 {sXB}, {sXB}, {G_X}")
        p(f"s_mul_i32 {sSTB}, {stb}, {7 * KB}")
        p(f"s_add_u32 {sSTB}, {sSTB}, {G_ST}")
        p(f"s_mov_b32 {slim}, 40000")
        p(f"v_lshlrev_b32 {vL16}, 4, {vLane}")
        p(f"v_add_u32 {vS16}, {L_S}, {vL16}")
        p(f"v_and_b32 v13, 3, {vLane}")
        p("v_lshlrev_b32 v13, 3, v13")
        p(f"v_bfe_u32 v14, {vLane}, 4, 1")
        p("v_lshl_add_u32 v13, v14, 5, v13")
        p(f"v_bfe_u32 v14, {vLane}, 2, 2")
        p("v_lshl_add_u32 v13, v14, 6, v13")
        p(f"v_lshrrev_b32 v14, 5, {vLane}")
        p(f"v_lshl_add_u32 {vTrA}, v14, 8, v13")
        p(f"v_add_u32 {vTrB}, {L_WQ}, {vTrA}")
        p("v_lshl_add_u32 v62, v14, 9, v13")
        p(f"v_add_u32 v63, {L_WQ}, v62")
        p("s_waitcnt lgkmcnt(0)")
        self.stamp("start")
        p(f"s_cmp_lt_u32 {sh}, 14")
        p(f"s_cselect_b32 s18, {448 * 448 * 2}, 0")
        p(f"s_cselect_b32 s22, {448 * 1792 * 2}, 0")
        p(f"s_cselect_b32 s26, {448 * 1792 * 2}, 0")
        for base, src, size in ((8, 40, 2048 * 896), (12, 42, 448 * 2688), (16, 44, None), (20, 48, None),
                                (24, 50, None), (28, 46, 2048 * 896), (32, 52, WS_BYTES)):
            p(f"s_mov_b32 s{base}, s{src}")
            p(f"s_mov_b32 s{base + 1}, s{src + 1}")
            if size is not None:
                p(f"s_mov_b32 s{base + 2}, {size}")
            p(f"s_mov_b32 s{base + 3}, 0x00020000")
        p(f"s_load_dword {sE}, s[52:53], {WS_EPOCH}")
        p(f"s_mul_i32 s4, {sg}, {G_STRIDE}")
        p(f"s_add_u32 s4, s4, {WS_G}")
        p("s_add_u32 s36, s52, s4")
        p("s_addc_u32 s37, s53, 0")
        p(f"s_mov_b32 s38, {G_STRIDE}")
        p("s_mov_b32 s39, 0x00020000")

    def consts(self):
        p = self.p
        p(f"s_mov_b32 {sONES}, 0x3f803f80")
        p(f"s_mov_b32 {sLOG2E}, 0x3fb8aa3b")
        p(f"s_mov_b32 {sEPS6}, 0x358637bd")
        p(f"s_mov_b32 {sHI}, 0xffff0000")
        p("s_mov_b32 s52, 0x10000000")
        p("s_mov_b32 s53, 0x10000000")
        p("s_mov_b32 s54, 0")
        p("s_mov_b32 s55, -1")

    def startup(self):
        p = self.p
        p(f"v_lshrrev_b32 v13, 3, {vLane}")
        p("v_mul_u32_u24 v14, 896, v13")
        p("v_lshrrev_b32 v13, 1, v13")
        p(f"v_and_b32 v15, 7, {vLane}")
        p("v_xor_b32 v13, v13, v15")
        p("v_lshl_add_u32 v16, v13, 4, v14")
        p("v_xor_b32 v13, 4, v13")
        p("v_lshl_add_u32 v17, v13, 4, v14")
        p(f"v_lshrrev_b32 v13, 2, {vLane}")
        p(f"v_and_b32 v15, 3, {vLane}")
        p("v_lshlrev_b32 v15, 4, v15")
        p("v_mul_u32_u24 v14, 2688, v13")
        p("v_add_u32 v18, v14, v15")
        p("v_mul_u32_u24 v14, 896, v13")
        p("v_add_u32 v60, v14, v15")
        p("v_mul_u32_u24 v14, 3584, v13")
        p("v_add_u32 v61, v14, v15")
        p(f"s_lshl_b32 {sT0}, {sg}, 3")
        p(f"s_add_u32 {sT0}, {sT0}, {stb}")
        p(f"s_mul_i32 {sT0}, {sT0}, {32 * 896}")
        p(f"s_mul_i32 {sT1}, {sw}, {28 * KB}")
        p(f"s_add_u32 {sT1}, {sT1}, {L_XST}")
        p(f"s_cmp_ge_u32 {sh}, 14")
        p(f"s_cselect_b32 {sT2}, 7, 0")
        p(f"s_sub_u32 {sT2}, {scb}, {sT2}")
        for j in range(7):
            p(f"s_lshl_b32 {sT3}, {sT2}, 7")
            p(f"s_add_u32 {sT3}, {sT3}, {sT0}")
            p(f"s_lshl_b32 {sT4}, {sT2}, 12")
            p(f"s_add_u32 {sT4}, {sT4}, {sT1}")
            for b in range(4):
                p(f"s_add_u32 m0, {sT4}, {b * KB}")
                p(f"s_add_u32 {sT5}, {sT3}, {b * 8 * 896}")
                p(f"buffer_load_dwordx4 v{16 + (b & 1)}, {SX}, {sT5} offen lds", "x")
            if j < 6:
                p(f"s_add_u32 {sT2}, {sT2}, 1")
                p(f"s_cmp_eq_u32 {sT2}, 7")
                p(f"s_cselect_b32 {sT2}, 0, {sT2}")
        p(f"s_mul_i32 s4, {sh}, 56")
        p(f"s_mul_i32 s5, {sw}, {16 * 2688}")
        p("s_add_u32 s4, s4, s5")
        p(f"s_lshl_b32 s5, {sw}, 10")

        def wqkv(m, lbase, u, tag):
            p(f"s_add_u32 m0, s5, {lbase + 4 * u * KB}")
            p(f"s_add_u32 {sT5}, s4, {896 * m + 64 * u * 2688}")
            p(f"buffer_load_dwordx4 v18, {SQ}, {sT5} offen lds", tag)
        for u in range(7):
            wqkv(1, L_WK, u, "wk")
        for u in range(5):
            wqkv(2, L_WV, u, "wv")
        p("s_waitcnt lgkmcnt(0)")
        self.consts()
        p(f"s_getreg_b32 {sfast}, hwreg(HW_REG_XCC_ID, 0, 4)")
        p(f"s_add_u32 {sT5}, {sE}, {sfast}")
        p(f"s_add_u32 {sT5}, {sT5}, 1")
        p(f"v_mov_b32 v14, {sT5}")
        p(f"s_lshl_b32 {sT2}, {sg}, 5")
        p(f"s_add_u32 {sT2}, {sT2}, s3")
        p(f"s_lshl_b32 {sT2}, {sT2}, 2")
        p(f"s_add_u32 {sT2}, {sT2}, {WS_XC}")
        p("v_mov_b32 v13, 0")
        p("s_mov_b64 exec, 1")
        p(f"buffer_store_dword v14, v13, {SWS}, {sT2} offen sc1", "xc")
        p("s_mov_b64 exec, -1")
        p(f"v_and_b32 v13, 31, {vLane}")
        p("v_lshrrev_b32 v14, 3, v13")
        p("v_lshlrev_b32 v14, 10, v14")
        p("v_and_b32 v15, 7, v13")
        p("v_lshl_add_u32 v14, v15, 7, v14")
        p(f"v_add_u32 v14, {sT1}, v14")
        p("v_bfe_u32 v13, v13, 1, 3")
        p(f"v_lshrrev_b32 v15, 5, {vLane}")
        p("v_xor_b32 v13, v13, v15")
        for q in range(4):
            p(f"v_xor_b32 v15, {2 * q}, v13")
            p(f"v_lshl_add_u32 v{20 + q}, v15, 4, v14")
        p.wait_vm("x")
        self.stamp("x_landed")
        for s in range(28):
            p(f"ds_read_b128 {V(64 + 4 * s)}, v{20 + (s & 3)} offset:{(s >> 2) * 4096}")
        p.wait_ds()
        p("s_barrier")
        late = sub()
        q = late
        for u in (5, 6):
            q(f"s_add_u32 m0, s5, {L_WV + 4 * u * KB}\ns_add_u32 {sT5}, s4, {896 * 2 + 64 * u * 2688}")
            q(f"buffer_load_dwordx4 v18, {SQ}, {sT5} offen lds", "wv")
        for u in range(7):
            q(f"s_add_u32 m0, s5, {L_WQ + 4 * u * KB}\ns_add_u32 {sT5}, s4, {64 * u * 2688}")
            q(f"buffer_load_dwordx4 v18, {SQ}, {sT5} offen lds", "wq")
        p.add(late.ins)
        p(f"s_lshl_b32 s6, {sh}, 6")
        p(f"s_mul_i32 s7, {sw}, {16 * 896}")
        p("s_add_u32 s6, s6, s7")
        for u in range(7):
            p(f"s_add_u32 m0, s5, {L_WO + 4 * u * KB}\ns_add_u32 {sT5}, s6, {64 * u * 896}")
            p(f"buffer_load_dwordx4 v60, {SO}, {sT5} offen lds", "wo")
        for r in range(24, 28):
            p(f"v_mov_b32 v{r}, 0")
        for i in range(112):
            p(f"v_dot2c_f32_bf16 v{24 + (i & 1)}, {sONES}, v{64 + i}")
            p(f"v_dot2c_f32_bf16 v{26 + (i & 1)}, v{64 + i}, v{64 + i}")
        p(f"s_lshl_b32 s6, {sh}, 8")
        p(f"s_lshl_b32 s7, {sw}, 6")
        p("s_add_u32 s6, s6, s7")
        for s in range(28):
            p(f"s_add_u32 {sT5}, s6, {16 * s * 3584}")
            p(f"buffer_load_dwordx4 {w1reg(s)}, v61, {S1}, {sT5} offen", "w1")
        p("v_add_f32 v24, v24, v25")
        p("v_add_f32 v26, v26, v27")
        self.both_halves("v24", "v26", None)
        self.stats_finish("v24", "v25", "v28", "v30")
        p("v_rsq_f32 v30, v30")
        p("v_mul_f32_e64 v28, -v28, v30")
        p("v_mov_b32 v31, v30")
        p("v_mov_b32 v29, v28")
        for i in range(112):
            t = 32 + 2 * (i & 3)
            p(f"v_lshlrev_b32 v{t}, 16, v{64 + i}")
            p(f"v_and_b32 v{t + 1}, {sHI}, v{64 + i}")
            p(f"v_pk_fma_f32 {V(t, 2)}, {V(t, 2)}, v[30:31], v[28:29]")
            p(f"v_cvt_pk_bf16_f32 v{64 + i}, v{t}, v{t + 1}")
        self.stamp("ln_done")
        p.wait_vm(["wk", "wv"])
        p("s_barrier")
        self.stamp("wkv_landed")

    def phi(self, acc, out, tmp, scale=None):
        p = self.p
        for r in range(16):
            a = f"v{acc + r}"
            t = f"v{tmp + (r & 3)}"
            if scale is None:
                p(f"v_add_f32 {a}, {sEPS6}, {a}")
            else:
                p(f"v_fma_f32 {a}, {a}, {scale(r)}, {sEPS6}")
            p(f"v_mul_f32 {t}, {sLOG2E}, {a}")
            p(f"v_exp_f32 {t}, {t} clamp")
            p(f"v_max_f32 {a}, {sEPS6}, {a}")
            p(f"v_add_f32 {a}, {a}, {t}")
            if r & 1:
                p(f"v_cvt_pk_bf16_f32 v{out + (r >> 1)}, v{acc + r - 1}, {a}")

    def kv_publish(self, layer, kvacc):
        p = self.p
        p(f"{MFMA} {kvacc(0, 16)}, {V(16)}, {V(32)}, 0")
        p(f"{MFMA} {kvacc(0, 16)}, {V(20)}, {V(36)}, {kvacc(0, 16)}")
        p(f"s_lshl_b32 {sT0}, {sw}, 10")
        p(f"v_add_u32 v24, {sT0}, {vS16}")
        p(f"s_lshl_b32 {sT0}, {sw}, 12")
        p(f"v_add_u32 v25, {sT0}, {vS16}")
        for q in range(4):
            p(f"ds_write_b128 v24, {kvacc(4 * q, 4)} offset:{S_KVP + q * 4096}")
        p(f"s_lshl_b32 {sT0}, {sh}, 16")
        p(f"s_lshl_b32 {sT1}, {sw}, 10")
        p(f"s_add_u32 {sT0}, {sT0}, {sT1}")
        p(f"s_add_u32 s6, {sT0}, {WS_KV + layer * 0x100000}")
        p(f"s_lshl_b32 {sT1}, {sg}, 1")
        p(f"s_add_u32 {sT1}, {sT1}, {srh}")
        p(f"s_lshl_b32 {sT1}, {sT1}, 12")
        p(f"s_add_u32 {sT1}, {sT1}, s6")
        p(f"s_add_u32 s7, {sE}, {1 + layer}")
        p.wait_ds()
        p("s_barrier")
        for u in range(4):
            p(f"ds_read_b128 {V(32 + 4 * u)}, v25 offset:{S_KVP + u * 1024}")
        p("v_mov_b32 v29, s7")
        p("v_mov_b32 v31, s7")
        for r in range(4):
            p(f"v_add_f32 v{32 + r}, v{32 + r}, v{36 + r}")
            p(f"v_add_f32 v{40 + r}, v{40 + r}, v{44 + r}")
        for r in range(4):
            p(f"v_add_f32 v{32 + r}, v{32 + r}, v{40 + r}")
        p("v_cvt_pk_bf16_f32 v28, v32, v33")
        p("v_cvt_pk_bf16_f32 v30, v34, v35")
        p(f"buffer_store_dwordx4 v[28:31], {vL16}, {SWS}, {sT1} offen sc1", "kvpub")

    def kv_gather_o(self, layer, G):
        p = self.p
        lp, ld = p.label("kvpoll"), p.label("kvdone")
        p(f"s_mov_b32 {sCnt}, {slim}")
        p(f"{lp}:")
        for u in range(16):
            p(f"s_add_u32 {sT5}, s6, {u * 4096}")
            p(f"buffer_load_dwordx4 {V(G + 4 * u)}, {vL16}, {SWS}, {sT5} offen sc1")
        p("v_mov_b32 v16, 0")
        for u in range(16):
            p(f"v_xor_b32 v{G + 4 * u + 1}, s7, v{G + 4 * u + 1}")
            p(f"v_xor_b32 v{G + 4 * u + 3}, s7, v{G + 4 * u + 3}")
            p(f"v_or3_b32 v16, v16, v{G + 4 * u + 1}, v{G + 4 * u + 3}")
        p("v_cmp_ne_u32 vcc, 0, v16")
        p(f"s_cbranch_vccz {ld}")
        p(f"s_sub_u32 {sCnt}, {sCnt}, 1")
        p(f"s_cmp_lg_u32 {sCnt}, 0")
        p(f"s_cbranch_scc1 {lp}")
        p(f"s_mov_b32 {slim}, 1")
        p(f"{ld}:")
        self.stamp(f"kv_seen{layer}")
        for u in range(16):
            for k in range(2):
                src = f"v{G + 4 * u + 2 * k}"
                if u == 0:
                    p(f"v_lshlrev_b32 v{16 + 2 * k}, 16, {src}")
                    p(f"v_and_b32 v{17 + 2 * k}, {sHI}, {src}")
                else:
                    t = 20 + 2 * k
                    p(f"v_lshlrev_b32 v{t}, 16, {src}")
                    p(f"v_and_b32 v{t + 1}, {sHI}, {src}")
                    p(f"v_pk_add_f32 {V(16 + 2 * k, 2)}, {V(16 + 2 * k, 2)}, {V(t, 2)}")
        p("v_cvt_pk_bf16_f32 v20, v16, v17")
        p("v_cvt_pk_bf16_f32 v21, v18, v19")
        p(f"s_lshr_b32 {sT0}, {sw}, 1")
        p(f"s_lshl_b32 {sT0}, {sT0}, 10")
        p(f"s_and_b32 {sT1}, {sw}, 1")
        p(f"s_lshl_b32 {sT1}, {sT1}, 3")
        p(f"s_add_u32 {sT0}, {sT0}, {sT1}")
        p(f"v_add_u32 v22, {sT0}, {vS16}")
        p(f"ds_write_b64 v22, v[20:21] offset:{S_KVS}")
        p.wait_ds()
        p("s_barrier")
        p(f"ds_read_b128 {V(24)}, {vS16} offset:{S_KVS}")
        p(f"ds_read_b128 {V(28)}, {vS16} offset:{S_KVS + 1024}")
        p(f"s_mul_i32 {sT0}, {sh}, 7")
        p(f"v_lshrrev_b32 v16, 5, {vLane}")
        p(f"v_add_u32 v16, {sT0}, v16")
        p(f"v_and_b32 v17, 31, {vLane}")
        p("v_lshlrev_b32 v17, 4, v17")
        p("v_and_b32 v18, 1, v16")
        p("v_lshl_add_u32 v17, v18, 9, v17")
        p("v_lshrrev_b32 v16, 1, v16")
        for j in range(4):
            p(f"v_add_u32 v18, {j}, v16")
            p("v_and_b32 v19, 1, v18")
            p("v_lshrrev_b32 v18, 1, v18")
            p("v_lshl_add_u32 v18, v18, 10, v17")
            p(f"v_lshl_add_u32 v{56 + j}, v19, 3, v18")
        p(f"{MFMA} {V(32, 16)}, {V(24)}, {V(48)}, 0")
        p(f"{MFMA} {V(32, 16)}, {V(28)}, {V(52)}, {V(32, 16)}")
        p("v_mov_b32 v16, v44")
        p("v_mov_b32 v17, v44")
        p("v_permlane32_swap_b32 v16, v17")
        p(f"v_add_f32 v17, {sEPS6}, v17")
        p("v_rcp_f32 v17, v17")
        for r in range(16):
            p(f"v_mul_f32 v{32 + r}, v{32 + r}, v17")
            if r & 1:
                p(f"v_cvt_pk_bf16_f32 v{20 + (r >> 1)}, v{31 + r}, v{32 + r}")
        st = [f"buffer_store_dwordx2 {V(20 + 2 * j, 2)}, v{56 + j}, {SG}, {sHB} offen" for j in range(3)]
        st += ["s_mov_b32 exec_hi, 0", f"buffer_store_dwordx2 {V(26, 2)}, v59, {SG}, {sHB} offen",
               "s_mov_b64 exec, -1"]
        self.publish(st)
        p(f"s_lshl_b32 {sT0}, {stb}, 7")
        p(f"s_lshl_b32 {sT1}, {sh}, 2")
        p(f"s_add_u32 {sT0}, {sT0}, {sT1}")
        p(f"s_add_u32 {sT0}, {sT0}, {G_FO}")
        p.wait_vm("pub")
        self.flag(sT0, 1 + layer)
        self.stamp(f"o_pub{layer}")

    def decide_fast(self):
        p = self.p
        p(f"v_and_b32 v13, 31, {vLane}")
        p("v_lshlrev_b32 v13, 2, v13")
        p(f"s_lshl_b32 {sT2}, {sg}, 7")
        p(f"s_add_u32 {sT2}, {sT2}, {WS_XC}")
        self.poll("v13", SWS, sT2, 1)
        p(f"v_cmp_ne_u32 vcc, {sfast}, v14")
        p("s_cmp_eq_u64 vcc, 0")
        p(f"s_cselect_b32 {sfast}, {0 if self.force_slow else 1}, 0")

    def qkv0(self):
        p = self.p
        seq = []
        for s in range(28):
            f = (s % 3) * 8
            seq.append(self.trread(A(f, 2), A(f + 2, 2), "v62", L_WK + s * KB, 256) +
                       self.trread(A(f + 4, 2), A(f + 6, 2), "v62", L_WV + s * KB, 256))
        p.add(seq[0] + seq[1])
        for s in range(28):
            f = (s % 3) * 8
            if s + 2 < 28:
                p.add(seq[s + 2])
            c0 = V(16, 16) if s else "0"
            c1 = V(32, 16) if s else "0"
            p(f"{MFMA} {V(16, 16)}, {V(64 + 4 * s)}, {A(f)}, {c0}")
            p(f"{MFMA} {V(32, 16)}, {V(64 + 4 * s)}, {A(f + 4)}, {c1}")
        self.stamp("kv_gemm0")
        self.phi(16, 16, 48)
        p(f"v_mov_b32 v48, {sONES}")
        for r in range(8):
            p(f"v_cvt_pk_bf16_f32 v{32 + r}, v{32 + 2 * r}, v{33 + 2 * r}")
        for r in range(8):
            p(f"v_cndmask_b32 v{32 + r}, v{32 + r}, v48, {sM28}")
        p.wait_vm(["wq", "wo"])
        self.kv_publish(0, lambda lo, k: A(24 + lo, k))
        self.stamp("kv_pub0")
        p("v_mov_b32 v13, v63")
        seq = [self.trread(A((s % 4) * 4, 2), A((s % 4) * 4 + 2, 2), "v13", s * KB, 256) for s in range(28)]
        p.add(seq[0] + seq[1] + seq[2])
        for s in range(28):
            if s + 3 < 28:
                p.add(seq[s + 3])
            c = V(48, 16) if s else "0"
            p(f"{MFMA} {V(48, 16)}, {A((s % 4) * 4)}, {V(64 + 4 * s)}, {c}")
        self.phi(48, 48, 16)
        p(f"v_cndmask_b32 v54, v54, 0, {sMPAD}")
        p(f"v_cndmask_b32 v55, v55, 0, {sMPAD}")
        self.stamp("q_done0")

    def colsums_qkv(self):
        p = self.p
        p(f"s_min_u32 {sT0}, {sw}, 2")
        p(f"s_mul_i32 {sT1}, {sT0}, {28 * KB}")
        p(f"v_add_u32 v18, {sT1}, {vTrA}")
        for r in range(20, 24):
            p(f"v_mov_b32 v{r}, {sONES}")
        for s in range(28):
            f = 24 + (s % 2) * 4
            p.add(self.trread(V(f, 2), V(f + 2, 2), "v18", s * KB))
            p(f"{MFMA} {V(32, 16)}, {V(20)}, {V(f)}, {V(32, 16) if s else 0}")
        self.split_words("v32", "v24", "v25", "v26", False, False)
        p(f"v_cndmask_b32 v24, v24, 0, {sMPAD}")
        p(f"v_cndmask_b32 v25, v25, 0, {sMPAD}")
        p(f"s_lshl_b32 {sT0}, {sw}, 9")
        p(f"v_lshlrev_b32 v18, 3, {vLane}")
        p(f"v_add_u32 v18, {L_S + S_CS}, v18")
        p(f"v_add_u32 v19, {sT0}, v18")
        p("ds_write_b64 v19, v[24:25]")
        p.wait_ds()
        p("s_barrier")
        p(f"ds_read_b64 {V(vCSQ + 2, 2)}, v18")
        p(f"ds_read_b64 {V(vCSQ + 4, 2)}, v18 offset:512")
        p(f"ds_read_b64 {V(vCSQ, 2)}, v18 offset:1024")
        p.wait_ds()

    def qkv1(self):
        p = self.p
        p(f"v_min_u32 v13, 27, {vLane}")
        p("v_lshlrev_b32 v13, 2, v13")
        p(f"s_lshl_b32 {sT0}, {stb}, 7")
        p(f"s_add_u32 {sT0}, {sT0}, {G_FX}")
        self.poll("v13", SG, sT0, 2)
        self.stamp("x2_seen")
        RING, NR = 96, 16

        def ld(s):
            q = sub()
            if s % 4 == 0:
                q(f"s_add_u32 s4, {sXB}, {s * KB}")
            q(f"buffer_load_dwordx4 {V(RING + 4 * (s % NR))}, {vL16}, {SG}, s4 offen offset:{(s % 4) * KB} sc1")
            return q.ins
        for u in range(7):
            if u % 4 == 0:
                p(f"s_add_u32 {sT5}, {sSTB}, {u * KB}")
            p(f"buffer_load_dwordx4 {V(16 + 4 * u)}, {vL16}, {SG}, {sT5} offen offset:{(u % 4) * KB} sc1")
        for s in range(NR):
            p.add(ld(s))
        for i in range(1, 14):
            p(f"v_pk_add_f32 v[16:17], v[16:17], {V(16 + 2 * i, 2)}")
        p("v_add_f32 v16, v16, v17")
        self.stats_finish("v16", "v17", "v18", "v19")
        p("v_rsq_f32 v92, v19")
        self.split_words("v18", "v88", "v89", "v17", True, True)
        p("v_mov_b32 v90, 0")
        p("v_mov_b32 v91, 0")
        p("v_cvt_pk_bf16_f32 v20, v92, v92")
        p(f"v_and_b32 v16, {sHI}, v20")
        p("v_sub_f32 v16, v92, v16")
        p("v_cvt_pk_bf16_f32 v21, v16, v16")
        p(f"v_and_b32 v17, {sHI}, v21")
        p("v_sub_f32 v17, v16, v17")
        p("v_and_b32 v20, 0xffff, v20")
        p(f"v_and_or_b32 v20, v21, {sHI}, v20")
        p("v_cvt_pk_bf16_f32 v21, v17, 0")
        p("v_mov_b32 v22, 0")
        p("v_mov_b32 v23, 0")
        p(f"v_mov_b32 v24, {sONES}")
        p(f"v_cndmask_b32 v24, v24, 0, {sMPAD}")
        p("v_mov_b32 v25, v24")
        p("v_mov_b32 v26, 0")
        p("v_mov_b32 v27, 0")
        p(f"{MFMA} {V(64, 16)}, {V(20)}, {V(24)}, 0")
        WF = [160, 164, 168, 172, 80, 84]

        def wf(s):
            o = 3 * (s % 2)
            return (self.trread(V(WF[o], 2), V(WF[o] + 2, 2), vTrA, L_WK + s * KB) +
                    self.trread(V(WF[o + 1], 2), V(WF[o + 1] + 2, 2), vTrA, L_WV + s * KB) +
                    self.trread(V(WF[o + 2], 2), V(WF[o + 2] + 2, 2), vTrB, s * KB))
        p.add(wf(0))
        for s in range(28):
            o = 3 * (s % 2)
            a = V(RING + 4 * (s % NR))
            if s + 1 < 28:
                p.add(wf(s + 1))
            p(f"{MFMA} {V(16, 16)}, {a}, {V(WF[o])}, {V(16, 16) if s else 0}")
            p(f"{MFMA} {V(32, 16)}, {a}, {V(WF[o + 1])}, {V(32, 16) if s else 0}")
            p(f"{MFMA} {V(48, 16)}, {V(WF[o + 2])}, {a}, {V(48, 16) if s else 0}")
            if s + NR < 28:
                p.add(ld(s + NR))
        for m, dst in ((1, 160), (2, 164), (0, 168)):
            p(f"v_mov_b32 v{dst}, v{vCSQ + 2 * m}")
            p(f"v_mov_b32 v{dst + 1}, v{vCSQ + 2 * m + 1}")
            p(f"v_mov_b32 v{dst + 2}, 0")
            p(f"v_mov_b32 v{dst + 3}, 0")
        p(f"{MFMA} {V(16, 16)}, {V(88)}, {V(160)}, {V(16, 16)}")
        p(f"{MFMA} {V(32, 16)}, {V(88)}, {V(164)}, {V(32, 16)}")
        p(f"{MFMA} {V(48, 16)}, {V(168)}, {V(88)}, {V(48, 16)}")
        self.stamp("kv_gemm1")
        self.phi(16, 16, 80, lambda r: f"v{64 + r}")
        p(f"v_mov_b32 v80, {sONES}")
        for r in range(16):
            p(f"v_mul_f32 v{32 + r}, v{32 + r}, v{64 + r}")
        for r in range(8):
            p(f"v_cvt_pk_bf16_f32 v{32 + r}, v{32 + 2 * r}, v{33 + 2 * r}")
        for r in range(8):
            p(f"v_cndmask_b32 v{32 + r}, v{32 + r}, v80, {sM28}")
        self.kv_publish(1, lambda lo, k: V(64 + lo, k))
        self.stamp("kv_pub1")
        self.phi(48, 48, 16, lambda r: "v92")
        p(f"v_cndmask_b32 v54, v54, 0, {sMPAD}")
        p(f"v_cndmask_b32 v55, v55, 0, {sMPAD}")

    def wo_phase(self, layer):
        p = self.p
        if layer == 0:
            p(f"v_and_b32 v13, 31, {vLane}")
            p("v_mul_u32_u24 v13, 896, v13")
            p(f"v_lshrrev_b32 v14, 5, {vLane}")
            p("v_lshl_add_u32 v13, v14, 3, v13")
            p(f"s_lshl_b32 {sT0}, {sg}, 3")
            p(f"s_add_u32 {sT0}, {sT0}, {stb}")
            p(f"s_mul_i32 {sT0}, {sT0}, {32 * 896}")
            p(f"s_lshl_b32 {sT1}, {sh}, 6")
            p(f"s_add_u32 {sT0}, {sT0}, {sT1}")
            for a in range(4):
                p(f"buffer_load_dwordx2 {V(32 + 2 * a, 2)}, v13, {SX}, {sT0} offen offset:{16 * a}")
        else:
            p(f"s_lshl_b32 {sT0}, {sh}, 11")
            p(f"s_add_u32 {sT0}, {sT0}, {sXB}")
            p(f"buffer_load_dwordx4 {V(32)}, {vL16}, {SG}, {sT0} offen sc1")
            p(f"buffer_load_dwordx4 {V(36)}, {vL16}, {SG}, {sT0} offen offset:1024 sc1")
        p(f"v_and_b32 v13, 15, {vLane}")
        p("v_lshlrev_b32 v13, 2, v13")
        p(f"s_lshl_b32 {sT0}, {stb}, 7")
        p(f"s_add_u32 {sT0}, {sT0}, {G_FO}")
        self.poll("v13", SG, sT0, 1 + layer)
        self.stamp(f"o_seen{layer}")
        RING, NR = 64, 28
        for s in range(28):
            if s % 4 == 0:
                p(f"s_add_u32 s4, {sHB}, {s * KB}")
            p(f"buffer_load_dwordx4 {V(RING + 4 * s)}, {vL16}, {SG}, s4 offen offset:{(s % 4) * KB} sc1")
        for r in range(8):
            p(f"v_lshlrev_b32 v{16 + 2 * r}, 16, v{32 + r}")
            p(f"v_and_b32 v{17 + 2 * r}, {sHI}, v{32 + r}")
        seq = [self.trread(V(48 + (s % 4) * 4, 2), V(50 + (s % 4) * 4, 2), vTrB, (L_WO - L_WQ) + s * KB)
               for s in range(28)]
        p.add(seq[0] + seq[1] + seq[2])
        for s in range(28):
            if s + 3 < 28:
                p.add(seq[s + 3])
            p(f"{MFMA} {V(16, 16)}, {V(48 + (s % 4) * 4)}, {V(RING + 4 * s)}, {V(16, 16)}")
        self.stamp(f"wo_gemm{layer}")
        for r in range(8):
            p(f"v_cvt_pk_bf16_f32 v{32 + r}, v{16 + 2 * r}, v{17 + 2 * r}")
        p("v_add_f32 v40, v16, v17")
        p("v_mul_f32 v42, v16, v16")
        p("v_fmac_f32 v42, v17, v17")
        for r in range(2, 16):
            p(f"v_add_f32 v40, v40, v{16 + r}")
            p(f"v_fmac_f32 v42, v{16 + r}, v{16 + r}")
        p("v_mov_b32 v41, 0")
        self.both_halves("v40", "v42", None)
        p(f"s_lshl_b32 {sT0}, {sh}, 11")
        p(f"s_add_u32 {sT0}, {sT0}, {sXB}")
        p(f"s_lshr_b32 {sT1}, {sh}, 1")
        p(f"s_lshl_b32 {sT1}, {sT1}, 10")
        p(f"s_and_b32 {sT2}, {sh}, 1")
        p(f"s_lshl_b32 {sT2}, {sT2}, 3")
        p(f"s_add_u32 {sT1}, {sT1}, {sT2}")
        p(f"s_add_u32 {sT1}, {sT1}, {sSTB}")
        self.publish([f"buffer_store_dwordx4 {V(32)}, {vL16}, {SG}, {sT0} offen",
                      f"buffer_store_dwordx4 {V(36)}, {vL16}, {SG}, {sT0} offen offset:1024",
                      f"buffer_store_dwordx2 v[40:41], {vL16}, {SG}, {sT1} offen"])
        p(f"s_lshl_b32 {sT0}, {stb}, 7")
        p(f"s_lshl_b32 {sT1}, {sh}, 3")
        p(f"s_add_u32 {sT0}, {sT0}, {sT1}")
        p(f"s_add_u32 {sT0}, {sT0}, {G_FX}")
        p.wait_vm("pub")
        self.flag(sT0, 1 + 2 * layer, 2)
        self.stamp(f"x1_pub{layer}")

    def w2_loads(self):
        p = self.p
        p(f"v_lshrrev_b32 v13, 2, {vLane}")
        p(f"v_and_b32 v15, 3, {vLane}")
        p("v_lshlrev_b32 v15, 4, v15")
        p("v_mul_u32_u24 v14, 896, v13")
        p("v_add_u32 v13, v14, v15")
        p(f"s_lshl_b32 {sT0}, {scb}, 7")
        p(f"s_mul_i32 {sT1}, {sw}, {32 * 896}")
        p(f"s_add_u32 s4, {sT0}, {sT1}")
        for j in range(28):
            p(f"s_add_u32 {sT5}, s4, {(128 * (j >> 1) + 16 * (j & 1)) * 896}")
            p(f"buffer_load_dwordx4 {w2reg(j, 0)}, v13, {S2}, {sT5} offen", "w2")
            p(f"buffer_load_dwordx4 {w2reg(j, 1)}, v13, {S2}, {sT5} offen offset:64", "w2")

    def w1_prepare(self):
        p = self.p
        self.tr_addrs()
        for s in range(28):
            p.add(self.transpose_block(lambda lo, k, s=s: w1reg(s, lo, k)))
        for r in range(20, 24):
            p(f"v_mov_b32 v{r}, {sONES}")
        for s in range(28):
            p(f"{MFMA} {V(32, 16)}, {V(20)}, {w1reg(s)}, {V(32, 16) if s else 0}")
        self.split_words("v32", f"v{vCS1}", f"v{vCS1 + 1}", "v26", False, False)
        p(f"v_cndmask_b32 v{vCS1}, v{vCS1}, 0, {sMPAD}")
        p(f"v_cndmask_b32 v{vCS1 + 1}, v{vCS1 + 1}, 0, {sMPAD}")

    def w2_prepare(self):
        p = self.p
        self.tr_addrs()
        for j in range(28):
            for ch in range(2):
                p.add(self.transpose_block(lambda lo, k, j=j, ch=ch: w2reg(j, ch, lo, k)))

    def ffn1(self, layer):
        p = self.p
        p(f"v_and_b32 v13, 15, {vLane}")
        p("v_min_u32 v13, 13, v13")
        p("v_lshlrev_b32 v13, 3, v13")
        p(f"v_lshrrev_b32 v14, 4, {vLane}")
        p("v_lshl_add_u32 v13, v14, 7, v13")
        p(f"s_lshl_b32 {sT0}, {srh}, 9")
        p(f"s_add_u32 {sT0}, {sT0}, {G_FX}")
        self.poll("v13", SG, sT0, 1 + 2 * layer, 2)
        self.stamp(f"x1_seen{layer}")
        p("s_barrier")
        p(f"s_mul_i32 {sT0}, {srh}, {112 * KB}")
        p(f"s_add_u32 {sT0}, {sT0}, {G_X}")
        p(f"s_mul_i32 {sT1}, {sw}, {3 * KB}")
        p(f"s_add_u32 s4, {sT0}, {sT1}")
        p(f"s_add_u32 s5, {sT1}, {L_S}")
        p(f"s_lshl_b32 {sT1}, {sw}, 9")
        p(f"s_add_u32 {sT1}, {sT1}, {12 * KB}")
        p(f"s_add_u32 s6, {sT0}, {sT1}")
        p(f"s_add_u32 s7, {sT1}, {L_S}")

        def chunk(j):
            q = sub()
            q(f"s_add_u32 m0, s5, {(j % 3) * 14 * KB}")
            q(f"s_add_u32 {sT5}, s4, {j * 14 * KB}")
            for u in range(3):
                q(f"buffer_load_dwordx4 {vL16}, {SG}, {sT5} offen offset:{u * KB} sc1 lds", f"c{j}")
            q(f"s_add_u32 m0, s7, {(j % 3) * 14 * KB}")
            q(f"s_add_u32 {sT5}, s6, {j * 14 * KB}")
            q("s_mov_b32 exec_hi, 0")
            q(f"buffer_load_dwordx4 {vL16}, {SG}, {sT5} offen sc1 lds", f"c{j}")
            q("s_mov_b64 exec, -1")
            return q.ins
        p.add(chunk(0))
        for u in range(7):
            if u % 4 == 0:
                p(f"s_add_u32 {sT5}, {sSTB}, {u * KB}")
            p(f"buffer_load_dwordx4 {V(16 + 4 * u)}, {vL16}, {SG}, {sT5} offen offset:{(u % 4) * KB} sc1")
        p.add(chunk(1))
        p.add(chunk(2))
        for i in range(1, 14):
            p(f"v_pk_add_f32 v[16:17], v[16:17], {V(16 + 2 * i, 2)}")
        p("v_add_f32 v16, v16, v17")
        self.stats_finish("v16", "v17", "v18", "v19")
        self.split_words("v18", "v20", "v21", "v17", True, True)
        p("v_rsq_f32 v22, v19")
        p("v_sqrt_f32 v23, v19")
        p(f"v_mul_f32_e64 v22, -v22, {sLOG2E}")
        p(f"v_and_b32 v13, 31, {vLane}")
        p("v_lshlrev_b32 v13, 4, v13")
        p(f"v_add_u32 v13, {L_S + S_STAT}, v13")
        p(f"s_and_b32 {sT0}, {sxs}, 3")
        p(f"s_lshl_b32 {sT0}, {sT0}, 9")
        p(f"v_add_u32 v14, {sT0}, v13")
        p("ds_write_b128 v14, v[20:23]")
        p(f"v_mov_b32 v84, v{vCS1}")
        p(f"v_mov_b32 v85, v{vCS1 + 1}")
        p("v_mov_b32 v86, 0")
        p("v_mov_b32 v87, 0")
        p("v_mov_b32 v90, 0")
        p("v_mov_b32 v91, 0")
        p(f"s_lshl_b32 {sT0}, {sh}, 13")
        p(f"s_lshl_b32 {sT1}, {sw}, 11")
        p(f"s_add_u32 s3, {sT0}, {sT1}")
        p(f"s_mul_i32 {sT0}, {srh}, {4 * 112 * KB}")
        p(f"s_add_u32 s3, s3, {sT0}")
        p(f"s_lshl_b32 {sT0}, {srh}, 10")
        p(f"s_lshl_b32 {sT1}, {sw}, 6")
        p(f"s_add_u32 {sT0}, {sT0}, {sT1}")
        p(f"s_lshl_b32 {sT1}, {sh}, 2")
        p(f"s_add_u32 {sT0}, {sT0}, {sT1}")
        p(f"s_add_u32 s2, {sT0}, {G_FH}")
        XF, NX = 48, 4
        for o in range(4):
            tb = ((o & 1) << 1) | (o >> 1)
            acc = 16
            for half in range(2):
                j = 2 * o + half
                p.wait_vm(f"c{j}")
                p.wait_ds()
                p("s_barrier")
                if j == 0:
                    for k in range(4):
                        p(f"ds_read_b128 {V(64 + 4 * k)}, v13 offset:{k * 512}")
                if j >= 1 and j + 2 < 8:
                    p.add(chunk(j + 2))
                rd = [Ins(f"ds_read_b128 {V(XF + 4 * (u % NX))}, {vS16} offset:{((j % 3) * 14 + u) * KB}")
                      for u in range(14)]
                p.add(rd[:3])
                for u in range(14):
                    s = 14 * half + u
                    if u + 3 < 14:
                        p.add([rd[u + 3]])
                    p(f"{MFMA} {V(acc, 16)}, {w1reg(s)}, {V(XF + 4 * (u % NX))}, {V(acc, 16) if s else 0}")
            p(f"v_mov_b32 v88, v{64 + 4 * o}")
            p(f"v_mov_b32 v89, v{65 + 4 * o}")
            p(f"{MFMA} {V(acc, 16)}, {V(84)}, {V(88)}, {V(acc, 16)}")
            c1, sd = f"v{66 + 4 * o}", f"v{67 + 4 * o}"
            for r in range(16):
                t = f"v{40 + (r & 3)}"
                a = f"v{acc + r}"
                p(f"v_mul_f32 {t}, {a}, {c1}")
                p(f"v_exp_f32 {t}, {t}")
                p(f"v_fma_f32 {t}, {t}, {sd}, {sd}")
                p(f"v_rcp_f32 {t}, {t}")
                p(f"v_mul_f32 {a}, {a}, {t}")
                if r & 1:
                    p(f"v_cvt_pk_bf16_f32 v{32 + (r >> 1)}, v{acc + r - 1}, {a}")
            p(f"s_add_u32 {sT0}, s3, {tb * 112 * KB}")
            self.publish([f"buffer_store_dwordx4 {V(32)}, {vL16}, {SG}, {sT0} offen",
                          f"buffer_store_dwordx4 {V(36)}, {vL16}, {SG}, {sT0} offen offset:1024"])
            p(f"s_add_u32 {sT0}, s2, {tb * 256}")
            p.wait_vm("pub")
            self.flag(sT0, 1 + layer)
        p("s_barrier")
        self.stamp(f"ffn1_done{layer}")

    def ffn2(self, layer):
        p = self.p
        RING, NR = 80, 24
        p(f"s_mul_i32 s4, {srq}, {2 * 112 * KB}")
        p(f"s_lshl_b32 {sT0}, {sw}, 11")
        p(f"s_add_u32 s4, s4, {sT0}")
        p(f"s_lshl_b32 s5, {srq}, 9")
        p(f"s_lshl_b32 {sT0}, {sw}, 6")
        p(f"s_add_u32 s5, s5, {sT0}")
        p(f"s_add_u32 s5, s5, {G_FH}")
        p(f"s_lshr_b32 {sT0}, {srq}, 1")
        p(f"s_lshl_b32 {sT0}, {sT0}, 2")
        p(f"s_and_b32 {sT1}, {srq}, 1")
        p(f"s_add_u32 {sT0}, {sT0}, {sT1}")
        p(f"s_mul_i32 s6, {sT0}, {28 * KB}")
        p(f"s_lshl_b32 {sT0}, {scb}, 12")
        p(f"s_lshl_b32 {sT1}, {sw}, 10")
        p(f"s_add_u32 {sT0}, {sT0}, {sT1}")
        p(f"s_add_u32 s6, s6, {sT0}")
        p(f"s_add_u32 s6, s6, {G_X}")
        p(f"s_mul_i32 s7, {srq}, {14 * KB}")
        p(f"s_lshl_b32 {sT0}, {scb}, 10")
        p(f"s_lshl_b32 {sT1}, {sw}, 2")
        p(f"s_add_u32 {sT0}, {sT0}, {sT1}")
        p(f"s_add_u32 s7, s7, {sT0}")
        p(f"s_add_u32 s7, s7, {G_ST}")
        for th in range(2):
            p(f"v_min_u32 v13, 13, {vLane}")
            p("v_lshlrev_b32 v13, 2, v13")
            p(f"s_add_u32 {sT0}, s5, {th * 256}")
            self.poll("v13", SG, sT0, 1 + layer)
            if th == 0:
                self.stamp(f"h_seen{layer}")

            def ld(j):
                q = sub()
                if j % 2 == 0:
                    q(f"s_add_u32 s3, s4, {th * 112 * KB + (j >> 1) * 8 * KB}")
                q(f"buffer_load_dwordx4 {V(RING + 4 * (j % NR))}, {vL16}, {SG}, s3 offen offset:{(j % 2) * KB} sc1")
                return q.ins
            for j in range(NR):
                p.add(ld(j))
            p(f"s_add_u32 {sT4}, s6, {th * 2 * 28 * KB}")
            p(f"buffer_load_dwordx4 {V(76)}, {vL16}, {SG}, {sT4} offen sc1")
            for j in range(28):
                b = V(RING + 4 * (j % NR))
                p(f"{MFMA} {V(16, 16)}, {w2reg(j, 0)}, {b}, {V(16, 16) if j else 0}")
                p(f"{MFMA} {V(32, 16)}, {w2reg(j, 1)}, {b}, {V(32, 16) if j else 0}")
                if j + NR < 28:
                    p.add(ld(j + NR))
            area = th * 24 * KB
            for d in range(4):
                ls = p.label("own")
                p(f"s_cmp_eq_u32 {sw}, {d}")
                p(f"s_cbranch_scc1 {ls}")
                p(f"s_sub_u32 {sT0}, {sw}, {d + 1}")
                p(f"s_and_b32 {sT0}, {sT0}, 3")
                p(f"s_lshl_b32 {sT0}, {sT0}, 11")
                p(f"v_add_u32 v13, {sT0}, {vS16}")
                p(f"ds_write_b128 v13, {V(16 + 8 * d)} offset:{area + d * 6 * KB}")
                p(f"ds_write_b128 v13, {V(20 + 8 * d)} offset:{area + d * 6 * KB + KB}")
                le = p.label("ownend")
                p(f"s_branch {le}")
                p(f"{ls}:")
                p("s_nop 7\ns_nop 3")
                for r in range(8):
                    p(f"v_mov_b32 v{48 + r}, v{16 + 8 * d + r}")
                p(f"{le}:")
            p(f"s_mul_i32 {sT0}, {sw}, {6 * KB}")
            p(f"v_add_u32 v13, {sT0}, {vS16}")
            p("s_waitcnt lgkmcnt(0)")
            p("s_barrier")
            for u in range(6):
                p(f"ds_read_b128 {V(16 + 4 * u)}, v13 offset:{area + u * KB}")
            for r in range(4):
                p(f"v_lshlrev_b32 v{56 + 2 * r}, 16, v{76 + r}")
                p(f"v_and_b32 v{57 + 2 * r}, {sHI}, v{76 + r}")
            for r in range(0, 8, 2):
                p(f"v_pk_add_f32 {V(48 + r, 2)}, {V(48 + r, 2)}, {V(56 + r, 2)}")
            for u in range(3):
                for r in range(0, 8, 2):
                    p(f"v_pk_add_f32 {V(48 + r, 2)}, {V(48 + r, 2)}, {V(16 + 8 * u + r, 2)}")
            for r in range(4):
                p(f"v_cvt_pk_bf16_f32 v{56 + r}, v{48 + 2 * r}, v{49 + 2 * r}")
            if layer == 0:
                p("v_add_f32 v60, v48, v49")
                p("v_mul_f32 v61, v48, v48")
                p("v_fmac_f32 v61, v49, v49")
                for r in range(2, 8):
                    p(f"v_add_f32 v60, v60, v{48 + r}")
                    p(f"v_fmac_f32 v61, v{48 + r}, v{48 + r}")
                self.both_halves("v60", "v61", None)
                p(f"s_add_u32 {sT3}, s7, {th * 7 * KB}")
                self.publish([f"buffer_store_dwordx4 {V(56)}, {vL16}, {SG}, {sT4} offen",
                              f"buffer_store_dword v60, {vL16}, {SG}, {sT3} offen"])
                p(f"s_lshl_b32 {sT0}, {srq}, 8")
                p(f"s_lshl_b32 {sT1}, {scb}, 4")
                p(f"s_add_u32 {sT0}, {sT0}, {sT1}")
                p(f"s_lshl_b32 {sT1}, {sw}, 2")
                p(f"s_add_u32 {sT0}, {sT0}, {sT1}")
                p(f"s_add_u32 {sT0}, {sT0}, {G_FX + th * 128}")
                p.wait_vm("pub")
                self.flag(sT0, 2)
            else:
                p("v_permlane32_swap_b32 v56, v58")
                p("v_permlane32_swap_b32 v57, v59")
                p(f"v_and_b32 v13, 31, {vLane}")
                p("v_mul_u32_u24 v13, 896, v13")
                p(f"v_lshrrev_b32 v14, 5, {vLane}")
                p("v_lshl_add_u32 v13, v14, 4, v13")
                p(f"s_lshl_b32 {sT0}, {sg}, 2")
                p(f"s_add_u32 {sT0}, {sT0}, {srq}")
                p(f"s_mul_i32 {sT0}, {sT0}, {64 * 896}")
                p(f"s_lshl_b32 {sT1}, {scb}, 7")
                p(f"s_add_u32 {sT0}, {sT0}, {sT1}")
                p(f"s_lshl_b32 {sT1}, {sw}, 5")
                p(f"s_add_u32 {sT0}, {sT0}, {sT1}")
                p(f"s_add_u32 {sT0}, {sT0}, {th * 32 * 896}")
                p(f"buffer_store_dwordx4 {V(56)}, v13, {SOUT}, {sT0} offen")
        self.stamp(f"ffn2_done{layer}")

    def finish(self):
        p = self.p
        p(f"s_or_b32 {sT0}, {sg}, {sh}")
        p(f"s_or_b32 {sT0}, {sT0}, {srh}")
        p(f"s_or_b32 {sT0}, {sT0}, {sw}")
        p(f"s_cmp_lg_u32 {sT0}, 0")
        p("s_cbranch_scc1 L_fin")
        p(f"s_add_u32 {sT0}, {sE}, 64")
        p(f"v_mov_b32 v14, {sT0}")
        p("v_mov_b32 v13, 0")
        p("s_mov_b64 exec, 1")
        p(f"buffer_store_dword v14, v13, {SWS}, 0 offen sc1")
        p("s_mov_b64 exec, -1")
        p("L_fin:")
        if self.diag:
            self.stamp_flush()
            p(f"s_lshl_b32 {sT0}, {srh}, 4")
            p(f"s_add_u32 {sT0}, {sT0}, {sh}")
            p(f"s_lshl_b32 {sT0}, {sT0}, 3")
            p(f"s_add_u32 {sT0}, {sT0}, {sg}")
            p(f"s_lshl_b32 {sT0}, {sT0}, 2")
            p(f"s_add_u32 {sT0}, {sT0}, {sw}")
            p(f"s_lshl_b32 {sT0}, {sT0}, 7")
            p(f"s_add_u32 {sT0}, {sT0}, {WS_DIAG}")
            p("v_mov_b32 v13, 0")
            p("s_mov_b64 exec, 1")
            for i in range(self.nstamp):
                p(f"v_mov_b32 v14, s{STAMP0 + i}")
                p(f"buffer_store_dword v14, v13, {SWS}, {sT0} offen offset:{4 * i}")
            p(f"v_mov_b32 v14, {sfast}")
            p(f"buffer_store_dword v14, v13, {SWS}, {sT0} offen offset:120")
            p(f"v_mov_b32 v14, {slim}")
            p(f"buffer_store_dword v14, v13, {SWS}, {sT0} offen offset:124")
            p("s_mov_b64 exec, -1")
        p("s_waitcnt vmcnt(0)")
        p("s_endpgm")

    def build(self):
        p = self.p
        self.prologue()
        self.startup()
        self.qkv0()
        self.decide_fast()
        self.kv_gather_o(0, 64)
        self.colsums_qkv()
        self.stamp_flush()
        p(f"s_cmp_ge_u32 {sh}, 14")
        p("s_cbranch_scc1 L_layer1")
        self.w2_loads()
        self.w1_prepare()
        self.wo_phase(0)
        self.w2_prepare()
        self.ffn1(0)
        self.ffn2(0)
        p("L_layer1:")
        p("s_waitcnt vmcnt(0) lgkmcnt(0)")
        self.qkv1()
        self.kv_gather_o(1, 96)
        p(f"s_cmp_ge_u32 {sh}, 14")
        p("s_cbranch_scc1 L_fin")
        self.wo_phase(1)
        self.ffn1(1)
        self.ffn2(1)
        self.finish()
        return finalize(p.ins)


HEADER = f"""; Two layers of (LayerNorm, linear attention, output projection, LayerNorm, SiLU FFN) in one persistent launch.
; @launch grid=(256,1,1) block=(256,1,1) lds={LDS_BYTES}
.amdgcn_target "amdgcn-amd-amdhsa--gfx950"
.text
.globl {NAME}_kernel
.p2align 8
.type {NAME}_kernel,@function
{NAME}_kernel:
"""
FOOTER = f"""
.section .rodata,"a"
.p2align 6
.amdhsa_kernel {NAME}_kernel
  .amdhsa_next_free_vgpr 512
  .amdhsa_next_free_sgpr 102
  .amdhsa_accum_offset 256
  .amdhsa_group_segment_fixed_size 0
  .amdhsa_kernarg_size 72
  .amdhsa_user_sgpr_count 2
  .amdhsa_user_sgpr_kernarg_segment_ptr 1
  .amdhsa_system_sgpr_workgroup_id_x 1
.end_amdhsa_kernel
"""


def generate(**kw):
    g = Gen(**kw)
    lines = g.build()
    return HEADER + "\n".join(lines) + FOOTER, g


if __name__ == "__main__":
    out = sys.argv[1] if len(sys.argv) > 1 else f"cdna_kernels/{NAME}.s"
    text, g = generate(diag="diag" in sys.argv, force_slow="slow" in sys.argv)
    open(out, "w").write(text)
    print("wrote", out, len(text), "bytes;", text.count("\n"), "lines")
```

```python
import sys, os
sys.path.insert(0, os.path.dirname(os.path.abspath(__file__)))
from asmlib import *

NAME = "interleave_layers__linear_attn_block__dense_activation_silu__prompt"
KB = 1024

WS_EPOCH = 0
WS_XC = 0x1000
WS_DIAG = 0x20000
WS_KV = 0x100000
WS_G = 0x300000
G_STRIDE = 0x128000
G_H = 0
G_X = 8 * 112 * KB
G_ST = G_X + 8 * 28 * KB
G_FX = G_ST + 8 * 7 * KB
G_FO = G_FX + 1024
G_FH = G_FO + 1024
G_END = G_FH + 2048
assert G_END <= G_STRIDE
WS_BYTES = WS_G + 8 * G_STRIDE

L_WK, L_WV, L_WQ, L_WO, L_S = 0, 28 * KB, 56 * KB, 84 * KB, 112 * KB
L_XST = 48 * KB
S_KVP, S_KVS = 0, 16 * KB
S_CS = 18 * KB
S_STAT, S_TR = 42 * KB, 44 * KB
LDS_BYTES = 160 * KB

SX, SQ, SO, S1, S2, SOUT, SWS, SG = ("s[8:11]", "s[12:15]", "s[16:19]", "s[20:23]", "s[24:27]", "s[28:31]",
                                     "s[32:35]", "s[36:39]")
sE, sg, sh, srh, sw, sfast, srq, scb, stb, sxs, slim = ("s56", "s57", "s58", "s59", "s60", "s61", "s62", "s63",
                                                        "s64", "s65", "s66")
sT0, sT1, sT2, sT3, sT4, sT5 = "s40", "s41", "s42", "s43", "s44", "s45"
sCnt, sNeed = "s46", "s47"
sONES, sLOG2E, sEPS6, sHI = "s48", "s49", "s50", "s51"
sM28 = "s[52:53]"
sMPAD = "s[54:55]"
sHB, sXB, sSTB = "s67", "s68", "s69"
STAMP0 = 70

vLane, vL16, vTrA, vTrB = "v0", "v1", "v2", "v3"
vCS1 = 4
vCSQ = 6
vS16 = "v12"
vT0, vT1, vT2 = "v13", "v14", "v15"


def V(n, k=4):
    return f"v[{n}:{n + k - 1}]" if k > 1 else f"v{n}"


def A(n, k=4):
    return f"a[{n}:{n + k - 1}]" if k > 1 else f"a{n}"


def w1reg(s, lo=0, k=4):
    return A(224 + 4 * s + lo, k) if s < 8 else V(176 + 4 * (s - 8) + lo, k)


def w2reg(j, ch, lo=0, k=4):
    return A(8 * j + 4 * ch + lo, k)


MFMA = "v_mfma_f32_32x32x16_bf16"


class Gen:
    def __init__(self, diag=False, force_slow=False, stop_after=None, pad=0):
        self.pad = pad
        self.p = Prog()
        self.diag = diag
        self.force_slow = force_slow
        self.stop_after = stop_after
        self.nstamp = 0
        self.stamp_names = []
        self.pending = False

    def stamp(self, name, op="s_memtime"):
        if not self.diag:
            return
        self.stamp_flush()
        assert STAMP0 + self.nstamp < 100, "too many stamps"
        self.p(f"{op} s[100:101]")
        self.stamp_names.append(name)
        self.nstamp += 1
        self.pending = True

    def stamp_flush(self):
        if self.diag and self.pending:
            self.p(f"s_mov_b32 s{STAMP0 + self.nstamp - 1}, s100")
            self.pending = False

    def publish(self, stores, tag="pub"):
        p = self.p
        ls, le = p.label("slow"), p.label("pub")
        p(f"s_cmp_eq_u32 {sfast}, 0")
        p(f"s_cbranch_scc1 {ls}")
        p.alt_begin()
        for s in stores:
            p(s, tag)
        p(f"s_branch {le}")
        p.alt_else()
        p(f"{ls}:")
        for s in stores:
            p(s + (" sc1" if s.startswith("buffer_") else ""), tag)
        p.alt_end()
        p(f"{le}:")

    def flag(self, vaddr_off, val, n=1):
        p = self.p
        p(f"s_add_u32 {sT5}, {sE}, {val}")
        p(f"v_mov_b32 {vT1}, {sT5}")
        p(f"v_mov_b32 {vT2}, {sT5}")
        p(f"v_mov_b32 {vT0}, 0")
        op = "buffer_store_dword v14" if n == 1 else "buffer_store_dwordx2 v[14:15]"
        self.publish(["s_mov_b64 exec, 1", f"{op}, {vT0}, {SG}, {vaddr_off} offen", "s_mov_b64 exec, -1"], "flag")

    def poll(self, vaddr, srd, soff, need, n=1, tmp=14):
        p = self.p
        lp, ld = p.label("poll"), p.label("polled")
        p(f"s_add_u32 {sNeed}, {sE}, {need}")
        p(f"s_mov_b32 {sCnt}, {slim}")
        p(f"{lp}:")
        if n == 1:
            p(f"buffer_load_dword v{tmp}, {vaddr}, {srd}, {soff} offen sc1")
        else:
            p(f"buffer_load_dwordx2 v[{tmp}:{tmp + 1}], {vaddr}, {srd}, {soff} offen sc1")
        p("s_waitcnt vmcnt(0)")
        p(f"v_subrev_u32 v{tmp}, {sNeed}, v{tmp}")
        if n == 2:
            p(f"v_subrev_u32 v{tmp + 1}, {sNeed}, v{tmp + 1}")
            p(f"v_or_b32 v{tmp}, v{tmp}, v{tmp + 1}")
        p(f"v_cmp_lt_u32 vcc, 31, v{tmp}")
        p(f"s_cbranch_vccz {ld}")
        p(f"s_sub_u32 {sCnt}, {sCnt}, 1")
        p(f"s_cmp_lg_u32 {sCnt}, 0")
        p(f"s_cbranch_scc1 {lp}")
        p(f"s_mov_b32 {slim}, 1")
        p(f"{ld}:")

    def trread(self, dst_lo, dst_hi, vaddr, off, second=512):
        return [Ins(f"ds_read_b64_tr_b16 {dst_lo}, {vaddr} offset:{off}"),
                Ins(f"ds_read_b64_tr_b16 {dst_hi}, {vaddr} offset:{off + second}")]

    def transpose_block(self, reg):
        return [Ins(f"ds_write_b128 v16, {reg(0, 4)}"),
                Ins(f"ds_read_b64_tr_b16 {reg(0, 2)}, v17"),
                Ins(f"ds_read_b64_tr_b16 {reg(2, 2)}, v17 offset:512")]

    def tr_addrs(self):
        p = self.p
        p(f"s_lshl_b32 {sT0}, {sw}, 10")
        p(f"s_add_u32 {sT0}, {sT0}, {L_S + S_TR}")
        p(f"v_add_u32 v16, {sT0}, {vL16}")
        p(f"v_add_u32 v17, {sT0}, {vTrA}")

    def both_halves(self, s, q, tmp):
        p = self.p
        p(f"v_permlane32_swap_b32 {s}, {q}")
        p(f"v_add_f32 {s}, {s}, {q}")

    def stats_finish(self, t, u, mean, var):
        p = self.p
        p(f"v_mov_b32 {u}, {t}")
        p(f"v_permlane32_swap_b32 {t}, {u}")
        p(f"v_mul_f32 {mean}, 0x3b124925, {t}")
        p(f"v_mul_f32 {var}, 0x3b124925, {u}")
        p(f"v_fma_f32 {var}, -{mean}, {mean}, {var}")
        p(f"v_max_f32 {var}, 0, {var}")
        p(f"v_add_f32 {var}, 0x3727c5ac, {var}")

    def split_words(self, x, w0, w1, t, neg, xside):
        p = self.p
        s = "-" if neg else ""
        p(f"v_cvt_pk_bf16_f32 {w0}, {s}{x}, {s}{x}")
        p(f"v_and_b32 {t}, {sHI}, {w0}")
        p(f"v_sub_f32 {t}, {s}{x}, {t}" if not neg else f"v_sub_f32_e64 {t}, -{x}, {t}")
        if xside:
            p(f"v_and_b32 {w1}, 0xffff, {w0}")
            p(f"v_cvt_pk_bf16_f32 {t}, {t}, {t}")
            p(f"v_and_or_b32 {w0}, {t}, {sHI}, {w1}")
        else:
            p(f"v_cvt_pk_bf16_f32 {w1}, {t}, 0")

    def prologue(self):
        p = self.p
        p("s_cmp_lt_u32 s2, 256")
        p("s_cbranch_scc1 L_start")
        p("s_endpgm")
        p("L_start:")
        p("s_load_dwordx4 s[40:43], s[0:1], 0")
        p("s_load_dwordx2 s[44:45], s[0:1], 16")
        p("s_load_dwordx4 s[48:51], s[0:1], 32")
        p("s_load_dwordx2 s[46:47], s[0:1], 48")
        p("s_load_dwordx2 s[52:53], s[0:1], 64")
        self.stamp("realtime", "s_memrealtime")
        if self.pad:
            p("s_memrealtime s[96:97]")
        p("v_lshrrev_b32 v13, 6, v0")
        p(f"v_and_b32 {vLane}, 63, v0")
        p(f"v_readfirstlane_b32 {sw}, v13")
        p(f"s_and_b32 {sg}, s2, 7")
        p(f"s_lshr_b32 s3, s2, 3")
        p(f"s_and_b32 {sh}, s3, 15")
        p(f"s_lshr_b32 {srh}, s3, 4")
        p(f"s_cmp_ge_u32 {sh}, 7")
        p(f"s_cselect_b32 s4, 1, 0")
        p(f"s_cselect_b32 s5, 7, 0")
        p(f"s_lshl_b32 {srq}, {srh}, 1")
        p(f"s_add_u32 {srq}, {srq}, s4")
        p(f"s_sub_u32 {scb}, {sh}, s5")
        p(f"s_lshl_b32 {stb}, {srh}, 2")
        p(f"s_and_b32 s4, {sw}, 1")
        p(f"s_lshl_b32 s4, s4, 1")
        p(f"s_lshr_b32 s5, {sw}, 1")
        p(f"s_or_b32 s4, s4, s5")
        p(f"s_add_u32 {sxs}, {stb}, s4")
        p(f"s_add_u32 {stb}, {stb}, {sw}")
        p(f"s_mul_i32 {sHB}, {stb}, {112 * KB}")
        p(f"s_mul_i32 {sXB}, {sxs}, {28 * KB}")
        p(f"s_add_u32 {sXB}, {sXB}, {G_X}")
        p(f"s_mul_i32 {sSTB}, {stb}, {7 * KB}")
        p(f"s_add_u32 {sSTB}, {sSTB}, {G_ST}")
        p(f"s_mov_b32 {slim}, 40000")
        p(f"v_lshlrev_b32 {vL16}, 4, {vLane}")
        p(f"v_add_u32 {vS16}, {L_S}, {vL16}")
        p(f"v_and_b32 v13, 3, {vLane}")
        p("v_lshlrev_b32 v13, 3, v13")
        p(f"v_bfe_u32 v14, {vLane}, 4, 1")
        p("v_lshl_add_u32 v13, v14, 5, v13")
        p(f"v_bfe_u32 v14, {vLane}, 2, 2")
        p("v_lshl_add_u32 v13, v14, 6, v13")
        p(f"v_lshrrev_b32 v14, 5, {vLane}")
        p(f"v_lshl_add_u32 {vTrA}, v14, 8, v13")
        p(f"v_add_u32 {vTrB}, {L_WQ}, {vTrA}")
        p("v_lshl_add_u32 v62, v14, 9, v13")
        p(f"v_add_u32 v63, {L_WQ}, v62")
        p("s_waitcnt lgkmcnt(0)")
        self.stamp("start")
        p(f"s_cmp_lt_u32 {sh}, 14")
        p(f"s_cselect_b32 s18, {448 * 448 * 2}, 0")
        p(f"s_cselect_b32 s22, {448 * 1792 * 2}, 0")
        p(f"s_cselect_b32 s26, {448 * 1792 * 2}, 0")
        for base, src, size in ((8, 40, 2048 * 896), (12, 42, 448 * 2688), (16, 44, None), (20, 48, None),
                                (24, 50, None), (28, 46, 2048 * 896), (32, 52, WS_BYTES)):
            p(f"s_mov_b32 s{base}, s{src}")
            p(f"s_mov_b32 s{base + 1}, s{src + 1}")
            if size is not None:
                p(f"s_mov_b32 s{base + 2}, {size}")
            p(f"s_mov_b32 s{base + 3}, 0x00020000")
        p(f"s_load_dword {sE}, s[52:53], {WS_EPOCH}")
        p(f"s_mul_i32 s4, {sg}, {G_STRIDE}")
        p(f"s_add_u32 s4, s4, {WS_G}")
        p("s_add_u32 s36, s52, s4")
        p("s_addc_u32 s37, s53, 0")
        p(f"s_mov_b32 s38, {G_STRIDE}")
        p("s_mov_b32 s39, 0x00020000")

    def consts(self):
        p = self.p
        p(f"s_mov_b32 {sONES}, 0x3f803f80")
        p(f"s_mov_b32 {sLOG2E}, 0x3fb8aa3b")
        p(f"s_mov_b32 {sEPS6}, 0x358637bd")
        p(f"s_mov_b32 {sHI}, 0xffff0000")
        p("s_mov_b32 s52, 0x10000000")
        p("s_mov_b32 s53, 0x10000000")
        p("s_mov_b32 s54, 0")
        p("s_mov_b32 s55, -1")

    def startup(self):
        p = self.p
        p(f"v_lshrrev_b32 v13, 3, {vLane}")
        p("v_mul_u32_u24 v14, 896, v13")
        p("v_lshrrev_b32 v13, 1, v13")
        p(f"v_and_b32 v15, 7, {vLane}")
        p("v_xor_b32 v13, v13, v15")
        p("v_lshl_add_u32 v16, v13, 4, v14")
        p("v_xor_b32 v13, 4, v13")
        p("v_lshl_add_u32 v17, v13, 4, v14")
        p(f"v_lshrrev_b32 v13, 2, {vLane}")
        p(f"v_and_b32 v15, 3, {vLane}")
        p("v_lshlrev_b32 v15, 4, v15")
        p("v_mul_u32_u24 v14, 2688, v13")
        p("v_add_u32 v18, v14, v15")
        p("v_mul_u32_u24 v14, 896, v13")
        p("v_add_u32 v60, v14, v15")
        p("v_mul_u32_u24 v14, 3584, v13")
        p("v_add_u32 v61, v14, v15")
        p(f"s_lshl_b32 {sT0}, {sg}, 3")
        p(f"s_add_u32 {sT0}, {sT0}, {stb}")
        p(f"s_mul_i32 {sT0}, {sT0}, {32 * 896}")
        p(f"s_mul_i32 {sT1}, {sw}, {28 * KB}")
        p(f"s_add_u32 {sT1}, {sT1}, {L_XST}")
        p(f"s_cmp_ge_u32 {sh}, 14")
        p(f"s_cselect_b32 {sT2}, 7, 0")
        p(f"s_sub_u32 {sT2}, {scb}, {sT2}")
        for j in range(7):
            p(f"s_lshl_b32 {sT3}, {sT2}, 7")
            p(f"s_add_u32 {sT3}, {sT3}, {sT0}")
            p(f"s_lshl_b32 {sT4}, {sT2}, 12")
            p(f"s_add_u32 {sT4}, {sT4}, {sT1}")
            for b in range(4):
                p(f"s_add_u32 m0, {sT4}, {b * KB}")
                p(f"s_add_u32 {sT5}, {sT3}, {b * 8 * 896}")
                p(f"buffer_load_dwordx4 v{16 + (b & 1)}, {SX}, {sT5} offen lds", "x")
            if j < 6:
                p(f"s_add_u32 {sT2}, {sT2}, 1")
                p(f"s_cmp_eq_u32 {sT2}, 7")
                p(f"s_cselect_b32 {sT2}, 0, {sT2}")
        p(f"s_mul_i32 s4, {sh}, 56")
        p(f"s_mul_i32 s5, {sw}, {16 * 2688}")
        p("s_add_u32 s4, s4, s5")
        p(f"s_lshl_b32 s5, {sw}, 10")

        def wqkv(m, lbase, u, tag):
            p(f"s_add_u32 m0, s5, {lbase + 4 * u * KB}")
            p(f"s_add_u32 {sT5}, s4, {896 * m + 64 * u * 2688}")
            p(f"buffer_load_dwordx4 v18, {SQ}, {sT5} offen lds", tag)
        for u in range(7):
            wqkv(1, L_WK, u, "wk")
        for u in range(5):
            wqkv(2, L_WV, u, "wv")
        p("s_waitcnt lgkmcnt(0)")
        self.consts()
        p(f"s_getreg_b32 {sfast}, hwreg(HW_REG_XCC_ID, 0, 4)")
        p(f"s_add_u32 {sT5}, {sE}, {sfast}")
        p(f"s_add_u32 {sT5}, {sT5}, 1")
        p(f"v_mov_b32 v14, {sT5}")
        p(f"s_lshl_b32 {sT2}, {sg}, 5")
        p(f"s_add_u32 {sT2}, {sT2}, s3")
        p(f"s_lshl_b32 {sT2}, {sT2}, 2")
        p(f"s_add_u32 {sT2}, {sT2}, {WS_XC}")
        p("v_mov_b32 v13, 0")
        p("s_mov_b64 exec, 1")
        p(f"buffer_store_dword v14, v13, {SWS}, {sT2} offen sc1", "xc")
        p("s_mov_b64 exec, -1")
        p(f"v_and_b32 v13, 31, {vLane}")
        p("v_lshrrev_b32 v14, 3, v13")
        p("v_lshlrev_b32 v14, 10, v14")
        p("v_and_b32 v15, 7, v13")
        p("v_lshl_add_u32 v14, v15, 7, v14")
        p(f"v_add_u32 v14, {sT1}, v14")
        p("v_bfe_u32 v13, v13, 1, 3")
        p(f"v_lshrrev_b32 v15, 5, {vLane}")
        p("v_xor_b32 v13, v13, v15")
        for q in range(4):
            p(f"v_xor_b32 v15, {2 * q}, v13")
            p(f"v_lshl_add_u32 v{20 + q}, v15, 4, v14")
        p.wait_vm("x")
        self.stamp("x_landed")
        for s in range(28):
            p(f"ds_read_b128 {V(64 + 4 * s)}, v{20 + (s & 3)} offset:{(s >> 2) * 4096}")
        p.wait_ds()
        p("s_barrier")
        late = sub()
        q = late
        for u in (5, 6):
            q(f"s_add_u32 m0, s5, {L_WV + 4 * u * KB}\ns_add_u32 {sT5}, s4, {896 * 2 + 64 * u * 2688}")
            q(f"buffer_load_dwordx4 v18, {SQ}, {sT5} offen lds", "wv")
        for u in range(7):
            q(f"s_add_u32 m0, s5, {L_WQ + 4 * u * KB}\ns_add_u32 {sT5}, s4, {64 * u * 2688}")
            q(f"buffer_load_dwordx4 v18, {SQ}, {sT5} offen lds", "wq")
        p.add(late.ins)
        p(f"s_lshl_b32 s6, {sh}, 6")
        p(f"s_mul_i32 s7, {sw}, {16 * 896}")
        p("s_add_u32 s6, s6, s7")
        for u in range(7):
            p(f"s_add_u32 m0, s5, {L_WO + 4 * u * KB}\ns_add_u32 {sT5}, s6, {64 * u * 896}")
            p(f"buffer_load_dwordx4 v60, {SO}, {sT5} offen lds", "wo")
        for r in range(24, 28):
            p(f"v_mov_b32 v{r}, 0")
        for i in range(112):
            p(f"v_dot2c_f32_bf16 v{24 + (i & 1)}, {sONES}, v{64 + i}")
            p(f"v_dot2c_f32_bf16 v{26 + (i & 1)}, v{64 + i}, v{64 + i}")
        p(f"s_lshl_b32 s6, {sh}, 8")
        p(f"s_lshl_b32 s7, {sw}, 6")
        p("s_add_u32 s6, s6, s7")
        for s in range(28):
            p(f"s_add_u32 {sT5}, s6, {16 * s * 3584}")
            p(f"buffer_load_dwordx4 {w1reg(s)}, v61, {S1}, {sT5} offen", "w1")
        p("v_add_f32 v24, v24, v25")
        p("v_add_f32 v26, v26, v27")
        self.both_halves("v24", "v26", None)
        self.stats_finish("v24", "v25", "v28", "v30")
        p("v_rsq_f32 v30, v30")
        p("v_mul_f32_e64 v28, -v28, v30")
        p("v_mov_b32 v31, v30")
        p("v_mov_b32 v29, v28")
        for i in range(112):
            t = 32 + 2 * (i & 3)
            p(f"v_lshlrev_b32 v{t}, 16, v{64 + i}")
            p(f"v_and_b32 v{t + 1}, {sHI}, v{64 + i}")
            p(f"v_pk_fma_f32 {V(t, 2)}, {V(t, 2)}, v[30:31], v[28:29]")
            p(f"v_cvt_pk_bf16_f32 v{64 + i}, v{t}, v{t + 1}")
        self.stamp("ln_done")
        p.wait_vm(["wk", "wv"])
        p("s_barrier")
        self.stamp("wkv_landed")

    def phi(self, acc, out, tmp, scale=None):
        p = self.p
        for r in range(16):
            a = f"v{acc + r}"
            t = f"v{tmp + (r & 3)}"
            if scale is None:
                p(f"v_add_f32 {a}, {sEPS6}, {a}")
            else:
                p(f"v_fma_f32 {a}, {a}, {scale(r)}, {sEPS6}")
            p(f"v_mul_f32 {t}, {sLOG2E}, {a}")
            p(f"v_exp_f32 {t}, {t} clamp")
            p(f"v_max_f32 {a}, {sEPS6}, {a}")
            p(f"v_add_f32 {a}, {a}, {t}")
            if r & 1:
                p(f"v_cvt_pk_bf16_f32 v{out + (r >> 1)}, v{acc + r - 1}, {a}")

    def kv_publish(self, layer, kvacc):
        p = self.p
        p(f"{MFMA} {kvacc(0, 16)}, {V(16)}, {V(32)}, 0")
        p(f"{MFMA} {kvacc(0, 16)}, {V(20)}, {V(36)}, {kvacc(0, 16)}")
        p(f"s_lshl_b32 {sT0}, {sw}, 10")
        p(f"v_add_u32 v24, {sT0}, {vS16}")
        p(f"s_lshl_b32 {sT0}, {sw}, 12")
        p(f"v_add_u32 v25, {sT0}, {vS16}")
        for q in range(4):
            p(f"ds_write_b128 v24, {kvacc(4 * q, 4)} offset:{S_KVP + q * 4096}")
        p(f"s_lshl_b32 {sT0}, {sh}, 16")
        p(f"s_lshl_b32 {sT1}, {sw}, 10")
        p(f"s_add_u32 {sT0}, {sT0}, {sT1}")
        p(f"s_add_u32 s6, {sT0}, {WS_KV + layer * 0x100000}")
        p(f"s_lshl_b32 {sT1}, {sg}, 1")
        p(f"s_add_u32 {sT1}, {sT1}, {srh}")
        p(f"s_lshl_b32 {sT1}, {sT1}, 12")
        p(f"s_add_u32 {sT1}, {sT1}, s6")
        p(f"s_add_u32 s7, {sE}, {1 + layer}")
        p.wait_ds()
        p("s_barrier")
        for u in range(4):
            p(f"ds_read_b128 {V(32 + 4 * u)}, v25 offset:{S_KVP + u * 1024}")
        p("v_mov_b32 v29, s7")
        p("v_mov_b32 v31, s7")
        for r in range(4):
            p(f"v_add_f32 v{32 + r}, v{32 + r}, v{36 + r}")
            p(f"v_add_f32 v{40 + r}, v{40 + r}, v{44 + r}")
        for r in range(4):
            p(f"v_add_f32 v{32 + r}, v{32 + r}, v{40 + r}")
        p("v_cvt_pk_bf16_f32 v28, v32, v33")
        p("v_cvt_pk_bf16_f32 v30, v34, v35")
        p(f"buffer_store_dwordx4 v[28:31], {vL16}, {SWS}, {sT1} offen sc1", "kvpub")

    def kv_gather_o(self, layer, G):
        p = self.p
        lp, ld = p.label("kvpoll"), p.label("kvdone")
        p(f"s_mov_b32 {sCnt}, {slim}")
        p(f"{lp}:")
        for u in range(16):
            p(f"s_add_u32 {sT5}, s6, {u * 4096}")
            p(f"buffer_load_dwordx4 {V(G + 4 * u)}, {vL16}, {SWS}, {sT5} offen sc1")
        p("v_mov_b32 v16, 0")
        for u in range(16):
            p(f"v_xor_b32 v{G + 4 * u + 1}, s7, v{G + 4 * u + 1}")
            p(f"v_xor_b32 v{G + 4 * u + 3}, s7, v{G + 4 * u + 3}")
            p(f"v_or3_b32 v16, v16, v{G + 4 * u + 1}, v{G + 4 * u + 3}")
        p("v_cmp_ne_u32 vcc, 0, v16")
        p(f"s_cbranch_vccz {ld}")
        p(f"s_sub_u32 {sCnt}, {sCnt}, 1")
        p(f"s_cmp_lg_u32 {sCnt}, 0")
        p(f"s_cbranch_scc1 {lp}")
        p(f"s_mov_b32 {slim}, 1")
        p(f"{ld}:")
        self.stamp(f"kv_seen{layer}")
        for u in range(16):
            for k in range(2):
                src = f"v{G + 4 * u + 2 * k}"
                if u == 0:
                    p(f"v_lshlrev_b32 v{16 + 2 * k}, 16, {src}")
                    p(f"v_and_b32 v{17 + 2 * k}, {sHI}, {src}")
                else:
                    t = 20 + 2 * k
                    p(f"v_lshlrev_b32 v{t}, 16, {src}")
                    p(f"v_and_b32 v{t + 1}, {sHI}, {src}")
                    p(f"v_pk_add_f32 {V(16 + 2 * k, 2)}, {V(16 + 2 * k, 2)}, {V(t, 2)}")
        p("v_cvt_pk_bf16_f32 v20, v16, v17")
        p("v_cvt_pk_bf16_f32 v21, v18, v19")
        p(f"s_lshr_b32 {sT0}, {sw}, 1")
        p(f"s_lshl_b32 {sT0}, {sT0}, 10")
        p(f"s_and_b32 {sT1}, {sw}, 1")
        p(f"s_lshl_b32 {sT1}, {sT1}, 3")
        p(f"s_add_u32 {sT0}, {sT0}, {sT1}")
        p(f"v_add_u32 v22, {sT0}, {vS16}")
        p(f"ds_write_b64 v22, v[20:21] offset:{S_KVS}")
        p.wait_ds()
        p("s_barrier")
        p(f"ds_read_b128 {V(24)}, {vS16} offset:{S_KVS}")
        p(f"ds_read_b128 {V(28)}, {vS16} offset:{S_KVS + 1024}")
        p(f"s_mul_i32 {sT0}, {sh}, 7")
        p(f"v_lshrrev_b32 v16, 5, {vLane}")
        p(f"v_add_u32 v16, {sT0}, v16")
        p(f"v_and_b32 v17, 31, {vLane}")
        p("v_lshlrev_b32 v17, 4, v17")
        p("v_and_b32 v18, 1, v16")
        p("v_lshl_add_u32 v17, v18, 9, v17")
        p("v_lshrrev_b32 v16, 1, v16")
        for j in range(4):
            p(f"v_add_u32 v18, {j}, v16")
            p("v_and_b32 v19, 1, v18")
            p("v_lshrrev_b32 v18, 1, v18")
            p("v_lshl_add_u32 v18, v18, 10, v17")
            p(f"v_lshl_add_u32 v{56 + j}, v19, 3, v18")
        p(f"{MFMA} {V(32, 16)}, {V(24)}, {V(48)}, 0")
        p(f"{MFMA} {V(32, 16)}, {V(28)}, {V(52)}, {V(32, 16)}")
        p("v_mov_b32 v16, v44")
        p("v_mov_b32 v17, v44")
        p("v_permlane32_swap_b32 v16, v17")
        p(f"v_add_f32 v17, {sEPS6}, v17")
        p("v_rcp_f32 v17, v17")
        for r in range(16):
            p(f"v_mul_f32 v{32 + r}, v{32 + r}, v17")
            if r & 1:
                p(f"v_cvt_pk_bf16_f32 v{20 + (r >> 1)}, v{31 + r}, v{32 + r}")
        st = [f"buffer_store_dwordx2 {V(20 + 2 * j, 2)}, v{56 + j}, {SG}, {sHB} offen" for j in range(3)]
        st += ["s_mov_b32 exec_hi, 0", f"buffer_store_dwordx2 {V(26, 2)}, v59, {SG}, {sHB} offen",
               "s_mov_b64 exec, -1"]
        self.publish(st)
        p(f"s_lshl_b32 {sT0}, {stb}, 7")
        p(f"s_lshl_b32 {sT1}, {sh}, 2")
        p(f"s_add_u32 {sT0}, {sT0}, {sT1}")
        p(f"s_add_u32 {sT0}, {sT0}, {G_FO}")
        p.wait_vm("pub")
        self.flag(sT0, 1 + layer)
        self.stamp(f"o_pub{layer}")

    def decide_fast(self):
        p = self.p
        p(f"v_and_b32 v13, 31, {vLane}")
        p("v_lshlrev_b32 v13, 2, v13")
        p(f"s_lshl_b32 {sT2}, {sg}, 7")
        p(f"s_add_u32 {sT2}, {sT2}, {WS_XC}")
        self.poll("v13", SWS, sT2, 1)
        p(f"v_cmp_ne_u32 vcc, {sfast}, v14")
        p("s_cmp_eq_u64 vcc, 0")
        p(f"s_cselect_b32 {sfast}, {0 if self.force_slow else 1}, 0")

    def qkv0(self):
        p = self.p
        seq = []
        for s in range(28):
            f = (s % 3) * 8
            seq.append(self.trread(A(f, 2), A(f + 2, 2), "v62", L_WK + s * KB, 256) +
                       self.trread(A(f + 4, 2), A(f + 6, 2), "v62", L_WV + s * KB, 256))
        p.add(seq[0] + seq[1])
        for s in range(28):
            f = (s % 3) * 8
            if s + 2 < 28:
                p.add(seq[s + 2])
            c0 = V(16, 16) if s else "0"
            c1 = V(32, 16) if s else "0"
            p(f"{MFMA} {V(16, 16)}, {V(64 + 4 * s)}, {A(f)}, {c0}")
            p(f"{MFMA} {V(32, 16)}, {V(64 + 4 * s)}, {A(f + 4)}, {c1}")
        self.stamp("kv_gemm0")
        self.phi(16, 16, 48)
        p(f"v_mov_b32 v48, {sONES}")
        for r in range(8):
            p(f"v_cvt_pk_bf16_f32 v{32 + r}, v{32 + 2 * r}, v{33 + 2 * r}")
        for r in range(8):
            p(f"v_cndmask_b32 v{32 + r}, v{32 + r}, v48, {sM28}")
        p.wait_vm(["wq", "wo"])
        self.kv_publish(0, lambda lo, k: A(24 + lo, k))
        self.stamp("kv_pub0")
        p("v_mov_b32 v13, v63")
        seq = [self.trread(A((s % 4) * 4, 2), A((s % 4) * 4 + 2, 2), "v13", s * KB, 256) for s in range(28)]
        p.add(seq[0] + seq[1] + seq[2])
        for s in range(28):
            if s + 3 < 28:
                p.add(seq[s + 3])
            c = V(48, 16) if s else "0"
            p(f"{MFMA} {V(48, 16)}, {A((s % 4) * 4)}, {V(64 + 4 * s)}, {c}")
        self.phi(48, 48, 16)
        p(f"v_cndmask_b32 v54, v54, 0, {sMPAD}")
        p(f"v_cndmask_b32 v55, v55, 0, {sMPAD}")
        self.stamp("q_done0")

    def colsums_qkv(self):
        p = self.p
        p(f"s_min_u32 {sT0}, {sw}, 2")
        p(f"s_mul_i32 {sT1}, {sT0}, {28 * KB}")
        p(f"v_add_u32 v18, {sT1}, {vTrA}")
        for r in range(20, 24):
            p(f"v_mov_b32 v{r}, {sONES}")
        for s in range(28):
            f = 24 + (s % 2) * 4
            p.add(self.trread(V(f, 2), V(f + 2, 2), "v18", s * KB))
            p(f"{MFMA} {V(32, 16)}, {V(20)}, {V(f)}, {V(32, 16) if s else 0}")
        self.split_words("v32", "v24", "v25", "v26", False, False)
        p(f"v_cndmask_b32 v24, v24, 0, {sMPAD}")
        p(f"v_cndmask_b32 v25, v25, 0, {sMPAD}")
        p(f"s_lshl_b32 {sT0}, {sw}, 9")
        p(f"v_lshlrev_b32 v18, 3, {vLane}")
        p(f"v_add_u32 v18, {L_S + S_CS}, v18")
        p(f"v_add_u32 v19, {sT0}, v18")
        p("ds_write_b64 v19, v[24:25]")
        p.wait_ds()
        p("s_barrier")
        p(f"ds_read_b64 {V(vCSQ + 2, 2)}, v18")
        p(f"ds_read_b64 {V(vCSQ + 4, 2)}, v18 offset:512")
        p(f"ds_read_b64 {V(vCSQ, 2)}, v18 offset:1024")
        p.wait_ds()

    def qkv1(self):
        p = self.p
        p(f"v_min_u32 v13, 27, {vLane}")
        p("v_lshlrev_b32 v13, 2, v13")
        p(f"s_lshl_b32 {sT0}, {stb}, 7")
        p(f"s_add_u32 {sT0}, {sT0}, {G_FX}")
        self.poll("v13", SG, sT0, 2)
        self.stamp("x2_seen")
        RING, NR = 96, 16

        def ld(s):
            q = sub()
            if s % 4 == 0:
                q(f"s_add_u32 s4, {sXB}, {s * KB}")
            q(f"buffer_load_dwordx4 {V(RING + 4 * (s % NR))}, {vL16}, {SG}, s4 offen offset:{(s % 4) * KB} sc1")
            return q.ins
        for u in range(7):
            if u % 4 == 0:
                p(f"s_add_u32 {sT5}, {sSTB}, {u * KB}")
            p(f"buffer_load_dwordx4 {V(16 + 4 * u)}, {vL16}, {SG}, {sT5} offen offset:{(u % 4) * KB} sc1")
        for s in range(NR):
            p.add(ld(s))
        for i in range(1, 14):
            p(f"v_pk_add_f32 v[16:17], v[16:17], {V(16 + 2 * i, 2)}")
        p("v_add_f32 v16, v16, v17")
        self.stats_finish("v16", "v17", "v18", "v19")
        p("v_rsq_f32 v92, v19")
        self.split_words("v18", "v88", "v89", "v17", True, True)
        p("v_mov_b32 v90, 0")
        p("v_mov_b32 v91, 0")
        p("v_cvt_pk_bf16_f32 v20, v92, v92")
        p(f"v_and_b32 v16, {sHI}, v20")
        p("v_sub_f32 v16, v92, v16")
        p("v_cvt_pk_bf16_f32 v21, v16, v16")
        p(f"v_and_b32 v17, {sHI}, v21")
        p("v_sub_f32 v17, v16, v17")
        p("v_and_b32 v20, 0xffff, v20")
        p(f"v_and_or_b32 v20, v21, {sHI}, v20")
        p("v_cvt_pk_bf16_f32 v21, v17, 0")
        p("v_mov_b32 v22, 0")
        p("v_mov_b32 v23, 0")
        p(f"v_mov_b32 v24, {sONES}")
        p(f"v_cndmask_b32 v24, v24, 0, {sMPAD}")
        p("v_mov_b32 v25, v24")
        p("v_mov_b32 v26, 0")
        p("v_mov_b32 v27, 0")
        p(f"{MFMA} {V(64, 16)}, {V(20)}, {V(24)}, 0")
        WF = [160, 164, 168, 172, 80, 84]

        def wf(s):
            o = 3 * (s % 2)
            return (self.trread(V(WF[o], 2), V(WF[o] + 2, 2), vTrA, L_WK + s * KB) +
                    self.trread(V(WF[o + 1], 2), V(WF[o + 1] + 2, 2), vTrA, L_WV + s * KB) +
                    self.trread(V(WF[o + 2], 2), V(WF[o + 2] + 2, 2), vTrB, s * KB))
        p.add(wf(0))
        for s in range(28):
            o = 3 * (s % 2)
            a = V(RING + 4 * (s % NR))
            if s + 1 < 28:
                p.add(wf(s + 1))
            p(f"{MFMA} {V(16, 16)}, {a}, {V(WF[o])}, {V(16, 16) if s else 0}")
            p(f"{MFMA} {V(32, 16)}, {a}, {V(WF[o + 1])}, {V(32, 16) if s else 0}")
            p(f"{MFMA} {V(48, 16)}, {V(WF[o + 2])}, {a}, {V(48, 16) if s else 0}")
            if s + NR < 28:
                p.add(ld(s + NR))
        for m, dst in ((1, 160), (2, 164), (0, 168)):
            p(f"v_mov_b32 v{dst}, v{vCSQ + 2 * m}")
            p(f"v_mov_b32 v{dst + 1}, v{vCSQ + 2 * m + 1}")
            p(f"v_mov_b32 v{dst + 2}, 0")
            p(f"v_mov_b32 v{dst + 3}, 0")
        p(f"{MFMA} {V(16, 16)}, {V(88)}, {V(160)}, {V(16, 16)}")
        p(f"{MFMA} {V(32, 16)}, {V(88)}, {V(164)}, {V(32, 16)}")
        p(f"{MFMA} {V(48, 16)}, {V(168)}, {V(88)}, {V(48, 16)}")
        self.stamp("kv_gemm1")
        self.phi(16, 16, 80, lambda r: f"v{64 + r}")
        p(f"v_mov_b32 v80, {sONES}")
        for r in range(16):
            p(f"v_mul_f32 v{32 + r}, v{32 + r}, v{64 + r}")
        for r in range(8):
            p(f"v_cvt_pk_bf16_f32 v{32 + r}, v{32 + 2 * r}, v{33 + 2 * r}")
        for r in range(8):
            p(f"v_cndmask_b32 v{32 + r}, v{32 + r}, v80, {sM28}")
        self.kv_publish(1, lambda lo, k: V(64 + lo, k))
        self.stamp("kv_pub1")
        self.phi(48, 48, 16, lambda r: "v92")
        p(f"v_cndmask_b32 v54, v54, 0, {sMPAD}")
        p(f"v_cndmask_b32 v55, v55, 0, {sMPAD}")

    def wo_phase(self, layer):
        p = self.p
        if layer == 0:
            p(f"v_and_b32 v13, 31, {vLane}")
            p("v_mul_u32_u24 v13, 896, v13")
            p(f"v_lshrrev_b32 v14, 5, {vLane}")
            p("v_lshl_add_u32 v13, v14, 3, v13")
            p(f"s_lshl_b32 {sT0}, {sg}, 3")
            p(f"s_add_u32 {sT0}, {sT0}, {stb}")
            p(f"s_mul_i32 {sT0}, {sT0}, {32 * 896}")
            p(f"s_lshl_b32 {sT1}, {sh}, 6")
            p(f"s_add_u32 {sT0}, {sT0}, {sT1}")
            for a in range(4):
                p(f"buffer_load_dwordx2 {V(32 + 2 * a, 2)}, v13, {SX}, {sT0} offen offset:{16 * a}")
        else:
            p(f"s_lshl_b32 {sT0}, {sh}, 11")
            p(f"s_add_u32 {sT0}, {sT0}, {sXB}")
            p(f"buffer_load_dwordx4 {V(32)}, {vL16}, {SG}, {sT0} offen sc1")
            p(f"buffer_load_dwordx4 {V(36)}, {vL16}, {SG}, {sT0} offen offset:1024 sc1")
        p(f"v_and_b32 v13, 15, {vLane}")
        p("v_lshlrev_b32 v13, 2, v13")
        p(f"s_lshl_b32 {sT0}, {stb}, 7")
        p(f"s_add_u32 {sT0}, {sT0}, {G_FO}")
        self.poll("v13", SG, sT0, 1 + layer)
        self.stamp(f"o_seen{layer}")
        RING, NR = 64, 28
        for s in range(28):
            if s % 4 == 0:
                p(f"s_add_u32 s4, {sHB}, {s * KB}")
            p(f"buffer_load_dwordx4 {V(RING + 4 * s)}, {vL16}, {SG}, s4 offen offset:{(s % 4) * KB} sc1")
        for r in range(8):
            p(f"v_lshlrev_b32 v{16 + 2 * r}, 16, v{32 + r}")
            p(f"v_and_b32 v{17 + 2 * r}, {sHI}, v{32 + r}")
        seq = [self.trread(V(48 + (s % 4) * 4, 2), V(50 + (s % 4) * 4, 2), vTrB, (L_WO - L_WQ) + s * KB)
               for s in range(28)]
        p.add(seq[0] + seq[1] + seq[2])
        for s in range(28):
            if s + 3 < 28:
                p.add(seq[s + 3])
            p(f"{MFMA} {V(16, 16)}, {V(48 + (s % 4) * 4)}, {V(RING + 4 * s)}, {V(16, 16)}")
        self.stamp(f"wo_gemm{layer}")
        for r in range(8):
            p(f"v_cvt_pk_bf16_f32 v{32 + r}, v{16 + 2 * r}, v{17 + 2 * r}")
        p("v_add_f32 v40, v16, v17")
        p("v_mul_f32 v42, v16, v16")
        p("v_fmac_f32 v42, v17, v17")
        for r in range(2, 16):
            p(f"v_add_f32 v40, v40, v{16 + r}")
            p(f"v_fmac_f32 v42, v{16 + r}, v{16 + r}")
        p("v_mov_b32 v41, 0")
        self.both_halves("v40", "v42", None)
        p(f"s_lshl_b32 {sT0}, {sh}, 11")
        p(f"s_add_u32 {sT0}, {sT0}, {sXB}")
        p(f"s_lshr_b32 {sT1}, {sh}, 1")
        p(f"s_lshl_b32 {sT1}, {sT1}, 10")
        p(f"s_and_b32 {sT2}, {sh}, 1")
        p(f"s_lshl_b32 {sT2}, {sT2}, 3")
        p(f"s_add_u32 {sT1}, {sT1}, {sT2}")
        p(f"s_add_u32 {sT1}, {sT1}, {sSTB}")
        self.publish([f"buffer_store_dwordx4 {V(32)}, {vL16}, {SG}, {sT0} offen",
                      f"buffer_store_dwordx4 {V(36)}, {vL16}, {SG}, {sT0} offen offset:1024",
                      f"buffer_store_dwordx2 v[40:41], {vL16}, {SG}, {sT1} offen"])
        p(f"s_lshl_b32 {sT0}, {stb}, 7")
        p(f"s_lshl_b32 {sT1}, {sh}, 3")
        p(f"s_add_u32 {sT0}, {sT0}, {sT1}")
        p(f"s_add_u32 {sT0}, {sT0}, {G_FX}")
        p.wait_vm("pub")
        self.flag(sT0, 1 + 2 * layer, 2)
        self.stamp(f"x1_pub{layer}")

    def w2_loads(self):
        p = self.p
        p(f"v_lshrrev_b32 v13, 2, {vLane}")
        p(f"v_and_b32 v15, 3, {vLane}")
        p("v_lshlrev_b32 v15, 4, v15")
        p("v_mul_u32_u24 v14, 896, v13")
        p("v_add_u32 v13, v14, v15")
        p(f"s_lshl_b32 {sT0}, {scb}, 7")
        p(f"s_mul_i32 {sT1}, {sw}, {32 * 896}")
        p(f"s_add_u32 s4, {sT0}, {sT1}")
        for j in range(28):
            p(f"s_add_u32 {sT5}, s4, {(128 * (j >> 1) + 16 * (j & 1)) * 896}")
            p(f"buffer_load_dwordx4 {w2reg(j, 0)}, v13, {S2}, {sT5} offen", "w2")
            p(f"buffer_load_dwordx4 {w2reg(j, 1)}, v13, {S2}, {sT5} offen offset:64", "w2")

    def w1_prepare(self):
        p = self.p
        self.tr_addrs()
        for s in range(28):
            p.add(self.transpose_block(lambda lo, k, s=s: w1reg(s, lo, k)))
        for r in range(20, 24):
            p(f"v_mov_b32 v{r}, {sONES}")
        for s in range(28):
            p(f"{MFMA} {V(32, 16)}, {V(20)}, {w1reg(s)}, {V(32, 16) if s else 0}")
        self.split_words("v32", f"v{vCS1}", f"v{vCS1 + 1}", "v26", False, False)
        p(f"v_cndmask_b32 v{vCS1}, v{vCS1}, 0, {sMPAD}")
        p(f"v_cndmask_b32 v{vCS1 + 1}, v{vCS1 + 1}, 0, {sMPAD}")

    def w2_prepare(self):
        p = self.p
        self.tr_addrs()
        for j in range(28):
            for ch in range(2):
                p.add(self.transpose_block(lambda lo, k, j=j, ch=ch: w2reg(j, ch, lo, k)))

    def ffn1(self, layer):
        p = self.p
        p(f"v_and_b32 v13, 15, {vLane}")
        p("v_min_u32 v13, 13, v13")
        p("v_lshlrev_b32 v13, 3, v13")
        p(f"v_lshrrev_b32 v14, 4, {vLane}")
        p("v_lshl_add_u32 v13, v14, 7, v13")
        p(f"s_lshl_b32 {sT0}, {srh}, 9")
        p(f"s_add_u32 {sT0}, {sT0}, {G_FX}")
        self.poll("v13", SG, sT0, 1 + 2 * layer, 2)
        self.stamp(f"x1_seen{layer}")
        p("s_barrier")
        p(f"s_mul_i32 {sT0}, {srh}, {112 * KB}")
        p(f"s_add_u32 {sT0}, {sT0}, {G_X}")
        p(f"s_mul_i32 {sT1}, {sw}, {3 * KB}")
        p(f"s_add_u32 s4, {sT0}, {sT1}")
        p(f"s_add_u32 s5, {sT1}, {L_S}")
        p(f"s_lshl_b32 {sT1}, {sw}, 9")
        p(f"s_add_u32 {sT1}, {sT1}, {12 * KB}")
        p(f"s_add_u32 s6, {sT0}, {sT1}")
        p(f"s_add_u32 s7, {sT1}, {L_S}")

        def chunk(j):
            q = sub()
            q(f"s_add_u32 m0, s5, {(j % 3) * 14 * KB}")
            q(f"s_add_u32 {sT5}, s4, {j * 14 * KB}")
            for u in range(3):
                q(f"buffer_load_dwordx4 {vL16}, {SG}, {sT5} offen offset:{u * KB} sc1 lds", f"c{j}")
            q(f"s_add_u32 m0, s7, {(j % 3) * 14 * KB}")
            q(f"s_add_u32 {sT5}, s6, {j * 14 * KB}")
            q("s_mov_b32 exec_hi, 0")
            q(f"buffer_load_dwordx4 {vL16}, {SG}, {sT5} offen sc1 lds", f"c{j}")
            q("s_mov_b64 exec, -1")
            return q.ins
        p.add(chunk(0))
        for u in range(7):
            if u % 4 == 0:
                p(f"s_add_u32 {sT5}, {sSTB}, {u * KB}")
            p(f"buffer_load_dwordx4 {V(16 + 4 * u)}, {vL16}, {SG}, {sT5} offen offset:{(u % 4) * KB} sc1")
        p.add(chunk(1))
        p.add(chunk(2))
        for i in range(1, 14):
            p(f"v_pk_add_f32 v[16:17], v[16:17], {V(16 + 2 * i, 2)}")
        p("v_add_f32 v16, v16, v17")
        self.stats_finish("v16", "v17", "v18", "v19")
        self.split_words("v18", "v20", "v21", "v17", True, True)
        p("v_rsq_f32 v22, v19")
        p("v_sqrt_f32 v23, v19")
        p(f"v_mul_f32_e64 v22, -v22, {sLOG2E}")
        p(f"v_and_b32 v13, 31, {vLane}")
        p("v_lshlrev_b32 v13, 4, v13")
        p(f"v_add_u32 v13, {L_S + S_STAT}, v13")
        p(f"s_and_b32 {sT0}, {sxs}, 3")
        p(f"s_lshl_b32 {sT0}, {sT0}, 9")
        p(f"v_add_u32 v14, {sT0}, v13")
        p("ds_write_b128 v14, v[20:23]")
        p(f"v_mov_b32 v84, v{vCS1}")
        p(f"v_mov_b32 v85, v{vCS1 + 1}")
        p("v_mov_b32 v86, 0")
        p("v_mov_b32 v87, 0")
        p("v_mov_b32 v90, 0")
        p("v_mov_b32 v91, 0")
        p(f"s_lshl_b32 {sT0}, {sh}, 13")
        p(f"s_lshl_b32 {sT1}, {sw}, 11")
        p(f"s_add_u32 s3, {sT0}, {sT1}")
        p(f"s_mul_i32 {sT0}, {srh}, {4 * 112 * KB}")
        p(f"s_add_u32 s3, s3, {sT0}")
        p(f"s_lshl_b32 {sT0}, {srh}, 10")
        p(f"s_lshl_b32 {sT1}, {sw}, 6")
        p(f"s_add_u32 {sT0}, {sT0}, {sT1}")
        p(f"s_lshl_b32 {sT1}, {sh}, 2")
        p(f"s_add_u32 {sT0}, {sT0}, {sT1}")
        p(f"s_add_u32 s2, {sT0}, {G_FH}")
        XF, NX = 48, 4
        for o in range(4):
            tb = ((o & 1) << 1) | (o >> 1)
            acc = 16
            for half in range(2):
                j = 2 * o + half
                p.wait_vm(f"c{j}")
                p.wait_ds()
                p("s_barrier")
                if j == 0:
                    for k in range(4):
                        p(f"ds_read_b128 {V(64 + 4 * k)}, v13 offset:{k * 512}")
                if j >= 1 and j + 2 < 8:
                    p.add(chunk(j + 2))
                rd = [Ins(f"ds_read_b128 {V(XF + 4 * (u % NX))}, {vS16} offset:{((j % 3) * 14 + u) * KB}")
                      for u in range(14)]
                p.add(rd[:3])
                for u in range(14):
                    s = 14 * half + u
                    if u + 3 < 14:
                        p.add([rd[u + 3]])
                    p(f"{MFMA} {V(acc, 16)}, {w1reg(s)}, {V(XF + 4 * (u % NX))}, {V(acc, 16) if s else 0}")
            p(f"v_mov_b32 v88, v{64 + 4 * o}")
            p(f"v_mov_b32 v89, v{65 + 4 * o}")
            p(f"{MFMA} {V(acc, 16)}, {V(84)}, {V(88)}, {V(acc, 16)}")
            c1, sd = f"v{66 + 4 * o}", f"v{67 + 4 * o}"
            for r in range(16):
                t = f"v{40 + (r & 3)}"
                a = f"v{acc + r}"
                p(f"v_mul_f32 {t}, {a}, {c1}")
                p(f"v_exp_f32 {t}, {t}")
                p(f"v_fma_f32 {t}, {t}, {sd}, {sd}")
                p(f"v_rcp_f32 {t}, {t}")
                p(f"v_mul_f32 {a}, {a}, {t}")
                if r & 1:
                    p(f"v_cvt_pk_bf16_f32 v{32 + (r >> 1)}, v{acc + r - 1}, {a}")
            p(f"s_add_u32 {sT0}, s3, {tb * 112 * KB}")
            self.publish([f"buffer_store_dwordx4 {V(32)}, {vL16}, {SG}, {sT0} offen",
                          f"buffer_store_dwordx4 {V(36)}, {vL16}, {SG}, {sT0} offen offset:1024"])
            p(f"s_add_u32 {sT0}, s2, {tb * 256}")
            p.wait_vm("pub")
            self.flag(sT0, 1 + layer)
        p("s_barrier")
        self.stamp(f"ffn1_done{layer}")

    def ffn2(self, layer):
        p = self.p
        RING, NR = 80, 24
        p(f"s_mul_i32 s4, {srq}, {2 * 112 * KB}")
        p(f"s_lshl_b32 {sT0}, {sw}, 11")
        p(f"s_add_u32 s4, s4, {sT0}")
        p(f"s_lshl_b32 s5, {srq}, 9")
        p(f"s_lshl_b32 {sT0}, {sw}, 6")
        p(f"s_add_u32 s5, s5, {sT0}")
        p(f"s_add_u32 s5, s5, {G_FH}")
        p(f"s_lshr_b32 {sT0}, {srq}, 1")
        p(f"s_lshl_b32 {sT0}, {sT0}, 2")
        p(f"s_and_b32 {sT1}, {srq}, 1")
        p(f"s_add_u32 {sT0}, {sT0}, {sT1}")
        p(f"s_mul_i32 s6, {sT0}, {28 * KB}")
        p(f"s_lshl_b32 {sT0}, {scb}, 12")
        p(f"s_lshl_b32 {sT1}, {sw}, 10")
        p(f"s_add_u32 {sT0}, {sT0}, {sT1}")
        p(f"s_add_u32 s6, s6, {sT0}")
        p(f"s_add_u32 s6, s6, {G_X}")
        p(f"s_mul_i32 s7, {srq}, {14 * KB}")
        p(f"s_lshl_b32 {sT0}, {scb}, 10")
        p(f"s_lshl_b32 {sT1}, {sw}, 2")
        p(f"s_add_u32 {sT0}, {sT0}, {sT1}")
        p(f"s_add_u32 s7, s7, {sT0}")
        p(f"s_add_u32 s7, s7, {G_ST}")
        for th in range(2):
            p(f"v_min_u32 v13, 13, {vLane}")
            p("v_lshlrev_b32 v13, 2, v13")
            p(f"s_add_u32 {sT0}, s5, {th * 256}")
            self.poll("v13", SG, sT0, 1 + layer)
            if th == 0:
                self.stamp(f"h_seen{layer}")

            def ld(j):
                q = sub()
                if j % 2 == 0:
                    q(f"s_add_u32 s3, s4, {th * 112 * KB + (j >> 1) * 8 * KB}")
                q(f"buffer_load_dwordx4 {V(RING + 4 * (j % NR))}, {vL16}, {SG}, s3 offen offset:{(j % 2) * KB} sc1")
                return q.ins
            for j in range(NR):
                p.add(ld(j))
            p(f"s_add_u32 {sT4}, s6, {th * 2 * 28 * KB}")
            p(f"buffer_load_dwordx4 {V(76)}, {vL16}, {SG}, {sT4} offen sc1")
            for j in range(28):
                b = V(RING + 4 * (j % NR))
                p(f"{MFMA} {V(16, 16)}, {w2reg(j, 0)}, {b}, {V(16, 16) if j else 0}")
                p(f"{MFMA} {V(32, 16)}, {w2reg(j, 1)}, {b}, {V(32, 16) if j else 0}")
                if j + NR < 28:
                    p.add(ld(j + NR))
            area = th * 24 * KB
            for d in range(4):
                ls = p.label("own")
                p(f"s_cmp_eq_u32 {sw}, {d}")
                p(f"s_cbranch_scc1 {ls}")
                p(f"s_sub_u32 {sT0}, {sw}, {d + 1}")
                p(f"s_and_b32 {sT0}, {sT0}, 3")
                p(f"s_lshl_b32 {sT0}, {sT0}, 11")
                p(f"v_add_u32 v13, {sT0}, {vS16}")
                p(f"ds_write_b128 v13, {V(16 + 8 * d)} offset:{area + d * 6 * KB}")
                p(f"ds_write_b128 v13, {V(20 + 8 * d)} offset:{area + d * 6 * KB + KB}")
                le = p.label("ownend")
                p(f"s_branch {le}")
                p(f"{ls}:")
                p("s_nop 7\ns_nop 3")
                for r in range(8):
                    p(f"v_mov_b32 v{48 + r}, v{16 + 8 * d + r}")
                p(f"{le}:")
            p(f"s_mul_i32 {sT0}, {sw}, {6 * KB}")
            p(f"v_add_u32 v13, {sT0}, {vS16}")
            p("s_waitcnt lgkmcnt(0)")
            p("s_barrier")
            for u in range(6):
                p(f"ds_read_b128 {V(16 + 4 * u)}, v13 offset:{area + u * KB}")
            for r in range(4):
                p(f"v_lshlrev_b32 v{56 + 2 * r}, 16, v{76 + r}")
                p(f"v_and_b32 v{57 + 2 * r}, {sHI}, v{76 + r}")
            for r in range(0, 8, 2):
                p(f"v_pk_add_f32 {V(48 + r, 2)}, {V(48 + r, 2)}, {V(56 + r, 2)}")
            for u in range(3):
                for r in range(0, 8, 2):
                    p(f"v_pk_add_f32 {V(48 + r, 2)}, {V(48 + r, 2)}, {V(16 + 8 * u + r, 2)}")
            for r in range(4):
                p(f"v_cvt_pk_bf16_f32 v{56 + r}, v{48 + 2 * r}, v{49 + 2 * r}")
            if layer == 0:
                p("v_add_f32 v60, v48, v49")
                p("v_mul_f32 v61, v48, v48")
                p("v_fmac_f32 v61, v49, v49")
                for r in range(2, 8):
                    p(f"v_add_f32 v60, v60, v{48 + r}")
                    p(f"v_fmac_f32 v61, v{48 + r}, v{48 + r}")
                self.both_halves("v60", "v61", None)
                p(f"s_add_u32 {sT3}, s7, {th * 7 * KB}")
                self.publish([f"buffer_store_dwordx4 {V(56)}, {vL16}, {SG}, {sT4} offen",
                              f"buffer_store_dword v60, {vL16}, {SG}, {sT3} offen"])
                p(f"s_lshl_b32 {sT0}, {srq}, 8")
                p(f"s_lshl_b32 {sT1}, {scb}, 4")
                p(f"s_add_u32 {sT0}, {sT0}, {sT1}")
                p(f"s_lshl_b32 {sT1}, {sw}, 2")
                p(f"s_add_u32 {sT0}, {sT0}, {sT1}")
                p(f"s_add_u32 {sT0}, {sT0}, {G_FX + th * 128}")
                p.wait_vm("pub")
                self.flag(sT0, 2)
            else:
                p("v_permlane32_swap_b32 v56, v58")
                p("v_permlane32_swap_b32 v57, v59")
                p(f"v_and_b32 v13, 31, {vLane}")
                p("v_mul_u32_u24 v13, 896, v13")
                p(f"v_lshrrev_b32 v14, 5, {vLane}")
                p("v_lshl_add_u32 v13, v14, 4, v13")
                p(f"s_lshl_b32 {sT0}, {sg}, 2")
                p(f"s_add_u32 {sT0}, {sT0}, {srq}")
                p(f"s_mul_i32 {sT0}, {sT0}, {64 * 896}")
                p(f"s_lshl_b32 {sT1}, {scb}, 7")
                p(f"s_add_u32 {sT0}, {sT0}, {sT1}")
                p(f"s_lshl_b32 {sT1}, {sw}, 5")
                p(f"s_add_u32 {sT0}, {sT0}, {sT1}")
                p(f"s_add_u32 {sT0}, {sT0}, {th * 32 * 896}")
                p(f"buffer_store_dwordx4 {V(56)}, v13, {SOUT}, {sT0} offen")
        self.stamp(f"ffn2_done{layer}")

    def finish(self):
        p = self.p
        p(f"s_or_b32 {sT0}, {sg}, {sh}")
        p(f"s_or_b32 {sT0}, {sT0}, {srh}")
        p(f"s_or_b32 {sT0}, {sT0}, {sw}")
        p(f"s_cmp_lg_u32 {sT0}, 0")
        p("s_cbranch_scc1 L_fin")
        p(f"s_add_u32 {sT0}, {sE}, 64")
        p(f"v_mov_b32 v14, {sT0}")
        p("v_mov_b32 v13, 0")
        p("s_mov_b64 exec, 1")
        p(f"buffer_store_dword v14, v13, {SWS}, 0 offen sc1")
        p("s_mov_b64 exec, -1")
        p("L_fin:")
        if self.pad:
            p("L_pad:")
            p("s_memrealtime s[98:99]")
            p("s_waitcnt lgkmcnt(0)")
            p("s_sub_u32 s98, s98, s96")
            p(f"s_cmp_lt_u32 s98, {self.pad}")
            p("s_cbranch_scc1 L_pad")
        if self.diag:
            self.stamp_flush()
            p(f"s_lshl_b32 {sT0}, {srh}, 4")
            p(f"s_add_u32 {sT0}, {sT0}, {sh}")
            p(f"s_lshl_b32 {sT0}, {sT0}, 3")
            p(f"s_add_u32 {sT0}, {sT0}, {sg}")
            p(f"s_lshl_b32 {sT0}, {sT0}, 2")
            p(f"s_add_u32 {sT0}, {sT0}, {sw}")
            p(f"s_lshl_b32 {sT0}, {sT0}, 7")
            p(f"s_add_u32 {sT0}, {sT0}, {WS_DIAG}")
            p("v_mov_b32 v13, 0")
            p("s_mov_b64 exec, 1")
            for i in range(self.nstamp):
                p(f"v_mov_b32 v14, s{STAMP0 + i}")
                p(f"buffer_store_dword v14, v13, {SWS}, {sT0} offen offset:{4 * i}")
            p(f"v_mov_b32 v14, {sfast}")
            p(f"buffer_store_dword v14, v13, {SWS}, {sT0} offen offset:120")
            p(f"v_mov_b32 v14, {slim}")
            p(f"buffer_store_dword v14, v13, {SWS}, {sT0} offen offset:124")
            p("s_mov_b64 exec, -1")
        p("s_waitcnt vmcnt(0)")
        p("s_endpgm")

    def build(self):
        p = self.p
        self.prologue()
        self.startup()
        self.qkv0()
        self.decide_fast()
        self.kv_gather_o(0, 64)
        self.colsums_qkv()
        self.stamp_flush()
        p(f"s_cmp_ge_u32 {sh}, 14")
        p("s_cbranch_scc1 L_layer1")
        self.w2_loads()
        self.w1_prepare()
        self.wo_phase(0)
        self.w2_prepare()
        self.ffn1(0)
        self.ffn2(0)
        p("L_layer1:")
        p("s_waitcnt vmcnt(0) lgkmcnt(0)")
        self.qkv1()
        self.kv_gather_o(1, 96)
        p(f"s_cmp_ge_u32 {sh}, 14")
        p("s_cbranch_scc1 L_fin")
        self.wo_phase(1)
        self.ffn1(1)
        self.ffn2(1)
        self.finish()
        return finalize(p.ins)


HEADER = f"""; Two layers of (LayerNorm, linear attention, output projection, LayerNorm, SiLU FFN) in one persistent launch.
; @launch grid=(256,1,1) block=(256,1,1) lds={LDS_BYTES}
.amdgcn_target "amdgcn-amd-amdhsa--gfx950"
.text
.globl {NAME}_kernel
.p2align 8
.type {NAME}_kernel,@function
{NAME}_kernel:
"""
FOOTER = f"""
.section .rodata,"a"
.p2align 6
.amdhsa_kernel {NAME}_kernel
  .amdhsa_next_free_vgpr 512
  .amdhsa_next_free_sgpr 102
  .amdhsa_accum_offset 256
  .amdhsa_group_segment_fixed_size 0
  .amdhsa_kernarg_size 72
  .amdhsa_user_sgpr_count 2
  .amdhsa_user_sgpr_kernarg_segment_ptr 1
  .amdhsa_system_sgpr_workgroup_id_x 1
.end_amdhsa_kernel
"""


def generate(**kw):
    g = Gen(**kw)
    lines = g.build()
    return HEADER + "\n".join(lines) + FOOTER, g


if __name__ == "__main__":
    out = sys.argv[1] if len(sys.argv) > 1 else f"cdna_kernels/{NAME}.s"
    text, g = generate(diag="diag" in sys.argv, force_slow="slow" in sys.argv, pad=8000 if "pad" in sys.argv else 0)
    open(out, "w").write(text)
    print("wrote", out, len(text), "bytes;", text.count("\n"), "lines")
```

```python
import sys, os
sys.path.insert(0, os.path.dirname(os.path.abspath(__file__)))
from asmlib import *

NAME = "interleave_layers__linear_attn_block__dense_activation_silu__prompt"
KB = 1024

WS_EPOCH = 0
WS_XC = 0x1000
WS_DIAG = 0x20000
WS_KV = 0x100000
WS_G = 0x300000
G_STRIDE = 0x128000
G_H = 0
G_X = 8 * 112 * KB
G_ST = G_X + 8 * 28 * KB
G_FX = G_ST + 8 * 7 * KB
G_FO = G_FX + 1024
G_FH = G_FO + 1024
G_END = G_FH + 2048
assert G_END <= G_STRIDE
WS_BYTES = WS_G + 8 * G_STRIDE

L_WK, L_WV, L_WQ, L_WO, L_S = 0, 28 * KB, 56 * KB, 84 * KB, 112 * KB
L_XST = 48 * KB
S_KVP, S_KVS = 0, 16 * KB
S_CS = 18 * KB
S_STAT, S_TR = 42 * KB, 44 * KB
LDS_BYTES = 160 * KB

SX, SQ, SO, S1, S2, SOUT, SWS, SG = ("s[8:11]", "s[12:15]", "s[16:19]", "s[20:23]", "s[24:27]", "s[28:31]",
                                     "s[32:35]", "s[36:39]")
sE, sg, sh, srh, sw, sfast, srq, scb, stb, sxs, slim = ("s56", "s57", "s58", "s59", "s60", "s61", "s62", "s63",
                                                        "s64", "s65", "s66")
sT0, sT1, sT2, sT3, sT4, sT5 = "s40", "s41", "s42", "s43", "s44", "s45"
sCnt, sNeed = "s46", "s47"
sONES, sLOG2E, sEPS6, sHI = "s48", "s49", "s50", "s51"
sM28 = "s[52:53]"
sMPAD = "s[54:55]"
sHB, sXB, sSTB = "s67", "s68", "s69"
STAMP0 = 70

vLane, vL16, vTrA, vTrB = "v0", "v1", "v2", "v3"
vCS1 = 4
vCSQ = 6
vS16 = "v12"
vT0, vT1, vT2 = "v13", "v14", "v15"


def V(n, k=4):
    return f"v[{n}:{n + k - 1}]" if k > 1 else f"v{n}"


def A(n, k=4):
    return f"a[{n}:{n + k - 1}]" if k > 1 else f"a{n}"


def w1reg(s, lo=0, k=4):
    return A(224 + 4 * s + lo, k) if s < 8 else V(176 + 4 * (s - 8) + lo, k)


def w2reg(j, ch, lo=0, k=4):
    return A(8 * j + 4 * ch + lo, k)


MFMA = "v_mfma_f32_32x32x16_bf16"


class Gen:
    def __init__(self, diag=False, force_slow=False, stop_after=None, pad=0):
        self.pad = pad
        self.p = Prog()
        self.diag = diag
        self.force_slow = force_slow
        self.stop_after = stop_after
        self.nstamp = 0
        self.stamp_names = []
        self.pending = False

    def stamp(self, name, op="s_memtime"):
        if not self.diag:
            return
        self.stamp_flush()
        assert STAMP0 + self.nstamp < 100, "too many stamps"
        self.p(f"{op} s[100:101]")
        self.stamp_names.append(name)
        self.nstamp += 1
        self.pending = True

    def stamp_flush(self):
        if self.diag and self.pending:
            self.p(f"s_mov_b32 s{STAMP0 + self.nstamp - 1}, s100")
            self.pending = False

    def publish(self, stores, tag="pub"):
        p = self.p
        ls, le = p.label("slow"), p.label("pub")
        p(f"s_cmp_eq_u32 {sfast}, 0")
        p(f"s_cbranch_scc1 {ls}")
        p.alt_begin()
        for s in stores:
            p(s, tag)
        p(f"s_branch {le}")
        p.alt_else()
        p(f"{ls}:")
        for s in stores:
            p(s + (" sc1" if s.startswith("buffer_") else ""), tag)
        p.alt_end()
        p(f"{le}:")

    def flag(self, vaddr_off, val, n=1):
        p = self.p
        p(f"s_add_u32 {sT5}, {sE}, {val}")
        p(f"v_mov_b32 {vT1}, {sT5}")
        p(f"v_mov_b32 {vT2}, {sT5}")
        p(f"v_mov_b32 {vT0}, 0")
        op = "buffer_store_dword v14" if n == 1 else "buffer_store_dwordx2 v[14:15]"
        self.publish(["s_mov_b64 exec, 1", f"{op}, {vT0}, {SG}, {vaddr_off} offen", "s_mov_b64 exec, -1"], "flag")

    def poll(self, vaddr, srd, soff, need, n=1, tmp=14):
        p = self.p
        lp, ld = p.label("poll"), p.label("polled")
        p(f"s_add_u32 {sNeed}, {sE}, {need}")
        p(f"s_mov_b32 {sCnt}, {slim}")
        p(f"{lp}:")
        if n == 1:
            p(f"buffer_load_dword v{tmp}, {vaddr}, {srd}, {soff} offen sc1")
        else:
            p(f"buffer_load_dwordx2 v[{tmp}:{tmp + 1}], {vaddr}, {srd}, {soff} offen sc1")
        p("s_waitcnt vmcnt(0)")
        p(f"v_subrev_u32 v{tmp}, {sNeed}, v{tmp}")
        if n == 2:
            p(f"v_subrev_u32 v{tmp + 1}, {sNeed}, v{tmp + 1}")
            p(f"v_or_b32 v{tmp}, v{tmp}, v{tmp + 1}")
        p(f"v_cmp_lt_u32 vcc, 31, v{tmp}")
        p(f"s_cbranch_vccz {ld}")
        p(f"s_sub_u32 {sCnt}, {sCnt}, 1")
        p(f"s_cmp_lg_u32 {sCnt}, 0")
        p(f"s_cbranch_scc1 {lp}")
        p(f"s_mov_b32 {slim}, 1")
        p(f"{ld}:")

    def trread(self, dst_lo, dst_hi, vaddr, off, second=512):
        return [Ins(f"ds_read_b64_tr_b16 {dst_lo}, {vaddr} offset:{off}"),
                Ins(f"ds_read_b64_tr_b16 {dst_hi}, {vaddr} offset:{off + second}")]

    def transpose_block(self, reg):
        return [Ins(f"ds_write_b128 v16, {reg(0, 4)}"),
                Ins(f"ds_read_b64_tr_b16 {reg(0, 2)}, v17"),
                Ins(f"ds_read_b64_tr_b16 {reg(2, 2)}, v17 offset:512")]

    def tr_addrs(self):
        p = self.p
        p(f"s_lshl_b32 {sT0}, {sw}, 10")
        p(f"s_add_u32 {sT0}, {sT0}, {L_S + S_TR}")
        p(f"v_add_u32 v16, {sT0}, {vL16}")
        p(f"v_add_u32 v17, {sT0}, {vTrA}")

    def both_halves(self, s, q, tmp):
        p = self.p
        p(f"v_permlane32_swap_b32 {s}, {q}")
        p(f"v_add_f32 {s}, {s}, {q}")

    def stats_finish(self, t, u, mean, var):
        p = self.p
        p(f"v_mov_b32 {u}, {t}")
        p(f"v_permlane32_swap_b32 {t}, {u}")
        p(f"v_mul_f32 {mean}, 0x3b124925, {t}")
        p(f"v_mul_f32 {var}, 0x3b124925, {u}")
        p(f"v_fma_f32 {var}, -{mean}, {mean}, {var}")
        p(f"v_max_f32 {var}, 0, {var}")
        p(f"v_add_f32 {var}, 0x3727c5ac, {var}")

    def split_words(self, x, w0, w1, t, neg, xside):
        p = self.p
        s = "-" if neg else ""
        p(f"v_cvt_pk_bf16_f32 {w0}, {s}{x}, {s}{x}")
        p(f"v_and_b32 {t}, {sHI}, {w0}")
        p(f"v_sub_f32 {t}, {s}{x}, {t}" if not neg else f"v_sub_f32_e64 {t}, -{x}, {t}")
        if xside:
            p(f"v_and_b32 {w1}, 0xffff, {w0}")
            p(f"v_cvt_pk_bf16_f32 {t}, {t}, {t}")
            p(f"v_and_or_b32 {w0}, {t}, {sHI}, {w1}")
        else:
            p(f"v_cvt_pk_bf16_f32 {w1}, {t}, 0")

    def prologue(self):
        p = self.p
        p("s_cmp_lt_u32 s2, 256")
        p("s_cbranch_scc1 L_start")
        p("s_endpgm")
        p("L_start:")
        p("s_load_dwordx4 s[40:43], s[0:1], 0")
        p("s_load_dwordx2 s[44:45], s[0:1], 16")
        p("s_load_dwordx4 s[48:51], s[0:1], 32")
        p("s_load_dwordx2 s[46:47], s[0:1], 48")
        p("s_load_dwordx2 s[52:53], s[0:1], 64")
        self.stamp("realtime", "s_memrealtime")
        if self.pad:
            p("s_memrealtime s[96:97]")
        p("v_lshrrev_b32 v13, 6, v0")
        p(f"v_and_b32 {vLane}, 63, v0")
        p(f"v_readfirstlane_b32 {sw}, v13")
        p(f"s_and_b32 {sg}, s2, 7")
        p(f"s_lshr_b32 s3, s2, 3")
        p(f"s_and_b32 {sh}, s3, 15")
        p(f"s_lshr_b32 {srh}, s3, 4")
        p(f"s_cmp_ge_u32 {sh}, 7")
        p(f"s_cselect_b32 s4, 1, 0")
        p(f"s_cselect_b32 s5, 7, 0")
        p(f"s_lshl_b32 {srq}, {srh}, 1")
        p(f"s_add_u32 {srq}, {srq}, s4")
        p(f"s_sub_u32 {scb}, {sh}, s5")
        p(f"s_lshl_b32 {stb}, {srh}, 2")
        p(f"s_and_b32 s4, {sw}, 1")
        p(f"s_lshl_b32 s4, s4, 1")
        p(f"s_lshr_b32 s5, {sw}, 1")
        p(f"s_or_b32 s4, s4, s5")
        p(f"s_add_u32 {sxs}, {stb}, s4")
        p(f"s_add_u32 {stb}, {stb}, {sw}")
        p(f"s_mul_i32 {sHB}, {stb}, {112 * KB}")
        p(f"s_mul_i32 {sXB}, {sxs}, {28 * KB}")
        p(f"s_add_u32 {sXB}, {sXB}, {G_X}")
        p(f"s_mul_i32 {sSTB}, {stb}, {7 * KB}")
        p(f"s_add_u32 {sSTB}, {sSTB}, {G_ST}")
        p(f"s_mov_b32 {slim}, 40000")
        p(f"v_lshlrev_b32 {vL16}, 4, {vLane}")
        p(f"v_add_u32 {vS16}, {L_S}, {vL16}")
        p(f"v_and_b32 v13, 3, {vLane}")
        p("v_lshlrev_b32 v13, 3, v13")
        p(f"v_bfe_u32 v14, {vLane}, 4, 1")
        p("v_lshl_add_u32 v13, v14, 5, v13")
        p(f"v_bfe_u32 v14, {vLane}, 2, 2")
        p("v_lshl_add_u32 v13, v14, 6, v13")
        p(f"v_lshrrev_b32 v14, 5, {vLane}")
        p(f"v_lshl_add_u32 {vTrA}, v14, 8, v13")
        p(f"v_add_u32 {vTrB}, {L_WQ}, {vTrA}")
        p("v_lshl_add_u32 v62, v14, 9, v13")
        p(f"v_add_u32 v63, {L_WQ}, v62")
        p("s_waitcnt lgkmcnt(0)")
        self.stamp("start")
        p(f"s_cmp_lt_u32 {sh}, 14")
        p(f"s_cselect_b32 s18, {448 * 448 * 2}, 0")
        p(f"s_cselect_b32 s22, {448 * 1792 * 2}, 0")
        p(f"s_cselect_b32 s26, {448 * 1792 * 2}, 0")
        for base, src, size in ((8, 40, 2048 * 896), (12, 42, 448 * 2688), (16, 44, None), (20, 48, None),
                                (24, 50, None), (28, 46, 2048 * 896), (32, 52, WS_BYTES)):
            p(f"s_mov_b32 s{base}, s{src}")
            p(f"s_mov_b32 s{base + 1}, s{src + 1}")
            if size is not None:
                p(f"s_mov_b32 s{base + 2}, {size}")
            p(f"s_mov_b32 s{base + 3}, 0x00020000")
        p(f"s_load_dword {sE}, s[52:53], {WS_EPOCH}")
        p(f"s_mul_i32 s4, {sg}, {G_STRIDE}")
        p(f"s_add_u32 s4, s4, {WS_G}")
        p("s_add_u32 s36, s52, s4")
        p("s_addc_u32 s37, s53, 0")
        p(f"s_mov_b32 s38, {G_STRIDE}")
        p("s_mov_b32 s39, 0x00020000")

    def consts(self):
        p = self.p
        p(f"s_mov_b32 {sONES}, 0x3f803f80")
        p(f"s_mov_b32 {sLOG2E}, 0x3fb8aa3b")
        p(f"s_mov_b32 {sEPS6}, 0x358637bd")
        p(f"s_mov_b32 {sHI}, 0xffff0000")
        p("s_mov_b32 s52, 0x10000000")
        p("s_mov_b32 s53, 0x10000000")
        p("s_mov_b32 s54, 0")
        p("s_mov_b32 s55, -1")

    def startup(self):
        p = self.p
        p(f"v_lshrrev_b32 v13, 3, {vLane}")
        p("v_mul_u32_u24 v14, 896, v13")
        p("v_lshrrev_b32 v13, 1, v13")
        p(f"v_and_b32 v15, 7, {vLane}")
        p("v_xor_b32 v13, v13, v15")
        p("v_lshl_add_u32 v16, v13, 4, v14")
        p("v_xor_b32 v13, 4, v13")
        p("v_lshl_add_u32 v17, v13, 4, v14")
        p(f"v_lshrrev_b32 v13, 2, {vLane}")
        p(f"v_and_b32 v15, 3, {vLane}")
        p("v_lshlrev_b32 v15, 4, v15")
        p("v_mul_u32_u24 v14, 2688, v13")
        p("v_add_u32 v18, v14, v15")
        p("v_mul_u32_u24 v14, 896, v13")
        p("v_add_u32 v60, v14, v15")
        p("v_mul_u32_u24 v14, 3584, v13")
        p("v_add_u32 v61, v14, v15")
        p(f"s_lshl_b32 {sT0}, {sg}, 3")
        p(f"s_add_u32 {sT0}, {sT0}, {stb}")
        p(f"s_mul_i32 {sT0}, {sT0}, {32 * 896}")
        p(f"s_mul_i32 {sT1}, {sw}, {28 * KB}")
        p(f"s_add_u32 {sT1}, {sT1}, {L_XST}")
        p(f"s_cmp_ge_u32 {sh}, 14")
        p(f"s_cselect_b32 {sT2}, 7, 0")
        p(f"s_sub_u32 {sT2}, {scb}, {sT2}")
        for j in range(7):
            p(f"s_lshl_b32 {sT3}, {sT2}, 7")
            p(f"s_add_u32 {sT3}, {sT3}, {sT0}")
            p(f"s_lshl_b32 {sT4}, {sT2}, 12")
            p(f"s_add_u32 {sT4}, {sT4}, {sT1}")
            for b in range(4):
                p(f"s_add_u32 m0, {sT4}, {b * KB}")
                p(f"s_add_u32 {sT5}, {sT3}, {b * 8 * 896}")
                p(f"buffer_load_dwordx4 v{16 + (b & 1)}, {SX}, {sT5} offen lds", "x")
            if j < 6:
                p(f"s_add_u32 {sT2}, {sT2}, 1")
                p(f"s_cmp_eq_u32 {sT2}, 7")
                p(f"s_cselect_b32 {sT2}, 0, {sT2}")
        p(f"s_mul_i32 s4, {sh}, 56")
        p(f"s_mul_i32 s5, {sw}, {16 * 2688}")
        p("s_add_u32 s4, s4, s5")
        p(f"s_lshl_b32 s5, {sw}, 10")

        def wqkv(m, lbase, u, tag):
            p(f"s_add_u32 m0, s5, {lbase + 4 * u * KB}")
            p(f"s_add_u32 {sT5}, s4, {896 * m + 64 * u * 2688}")
            p(f"buffer_load_dwordx4 v18, {SQ}, {sT5} offen lds", tag)
        for u in range(7):
            wqkv(1, L_WK, u, "wk")
        for u in range(5):
            wqkv(2, L_WV, u, "wv")
        p("s_waitcnt lgkmcnt(0)")
        self.consts()
        p(f"s_getreg_b32 {sfast}, hwreg(HW_REG_XCC_ID, 0, 4)")
        p(f"s_add_u32 {sT5}, {sE}, {sfast}")
        p(f"s_add_u32 {sT5}, {sT5}, 1")
        p(f"v_mov_b32 v14, {sT5}")
        p(f"s_lshl_b32 {sT2}, {sg}, 5")
        p(f"s_add_u32 {sT2}, {sT2}, s3")
        p(f"s_lshl_b32 {sT2}, {sT2}, 2")
        p(f"s_add_u32 {sT2}, {sT2}, {WS_XC}")
        p("v_mov_b32 v13, 0")
        p("s_mov_b64 exec, 1")
        p(f"buffer_store_dword v14, v13, {SWS}, {sT2} offen sc1", "xc")
        p("s_mov_b64 exec, -1")
        p(f"v_and_b32 v13, 31, {vLane}")
        p("v_lshrrev_b32 v14, 3, v13")
        p("v_lshlrev_b32 v14, 10, v14")
        p("v_and_b32 v15, 7, v13")
        p("v_lshl_add_u32 v14, v15, 7, v14")
        p(f"v_add_u32 v14, {sT1}, v14")
        p("v_bfe_u32 v13, v13, 1, 3")
        p(f"v_lshrrev_b32 v15, 5, {vLane}")
        p("v_xor_b32 v13, v13, v15")
        for q in range(4):
            p(f"v_xor_b32 v15, {2 * q}, v13")
            p(f"v_lshl_add_u32 v{20 + q}, v15, 4, v14")
        p.wait_vm("x")
        self.stamp("x_landed")
        for s in range(28):
            p(f"ds_read_b128 {V(64 + 4 * s)}, v{20 + (s & 3)} offset:{(s >> 2) * 4096}")
        p.wait_ds()
        p("s_barrier")
        late = sub()
        q = late
        for u in (5, 6):
            q(f"s_add_u32 m0, s5, {L_WV + 4 * u * KB}\ns_add_u32 {sT5}, s4, {896 * 2 + 64 * u * 2688}")
            q(f"buffer_load_dwordx4 v18, {SQ}, {sT5} offen lds", "wv")
        for u in range(7):
            q(f"s_add_u32 m0, s5, {L_WQ + 4 * u * KB}\ns_add_u32 {sT5}, s4, {64 * u * 2688}")
            q(f"buffer_load_dwordx4 v18, {SQ}, {sT5} offen lds", "wq")
        p.add(late.ins)
        p(f"s_lshl_b32 s6, {sh}, 6")
        p(f"s_mul_i32 s7, {sw}, {16 * 896}")
        p("s_add_u32 s6, s6, s7")
        for u in range(7):
            p(f"s_add_u32 m0, s5, {L_WO + 4 * u * KB}\ns_add_u32 {sT5}, s6, {64 * u * 896}")
            p(f"buffer_load_dwordx4 v60, {SO}, {sT5} offen lds", "wo")
        for r in range(24, 28):
            p(f"v_mov_b32 v{r}, 0")
        for i in range(112):
            p(f"v_dot2c_f32_bf16 v{24 + (i & 1)}, {sONES}, v{64 + i}")
            p(f"v_dot2c_f32_bf16 v{26 + (i & 1)}, v{64 + i}, v{64 + i}")
        p(f"s_lshl_b32 s6, {sh}, 8")
        p(f"s_lshl_b32 s7, {sw}, 6")
        p("s_add_u32 s6, s6, s7")
        for s in range(28):
            p(f"s_add_u32 {sT5}, s6, {16 * s * 3584}")
            p(f"buffer_load_dwordx4 {w1reg(s)}, v61, {S1}, {sT5} offen", "w1")
        p("v_add_f32 v24, v24, v25")
        p("v_add_f32 v26, v26, v27")
        self.both_halves("v24", "v26", None)
        self.stats_finish("v24", "v25", "v28", "v30")
        p("v_rsq_f32 v30, v30")
        p("v_mul_f32_e64 v28, -v28, v30")
        p("v_mov_b32 v31, v30")
        p("v_mov_b32 v29, v28")
        for i in range(112):
            t = 32 + 2 * (i & 3)
            p(f"v_lshlrev_b32 v{t}, 16, v{64 + i}")
            p(f"v_and_b32 v{t + 1}, {sHI}, v{64 + i}")
            p(f"v_pk_fma_f32 {V(t, 2)}, {V(t, 2)}, v[30:31], v[28:29]")
            p(f"v_cvt_pk_bf16_f32 v{64 + i}, v{t}, v{t + 1}")
        self.stamp("ln_done")
        p.wait_vm(["wk", "wv"])
        p("s_barrier")
        self.stamp("wkv_landed")

    def phi(self, acc, out, tmp, scale=None):
        p = self.p
        for r in range(16):
            a = f"v{acc + r}"
            t = f"v{tmp + (r & 3)}"
            if scale is None:
                p(f"v_add_f32 {a}, {sEPS6}, {a}")
            else:
                p(f"v_fma_f32 {a}, {a}, {scale(r)}, {sEPS6}")
            p(f"v_mul_f32 {t}, {sLOG2E}, {a}")
            p(f"v_exp_f32 {t}, {t} clamp")
            p(f"v_max_f32 {a}, {sEPS6}, {a}")
            p(f"v_add_f32 {a}, {a}, {t}")
            if r & 1:
                p(f"v_cvt_pk_bf16_f32 v{out + (r >> 1)}, v{acc + r - 1}, {a}")

    def kv_publish(self, layer, kvacc):
        p = self.p
        p(f"{MFMA} {kvacc(0, 16)}, {V(16)}, {V(32)}, 0")
        p(f"{MFMA} {kvacc(0, 16)}, {V(20)}, {V(36)}, {kvacc(0, 16)}")
        p(f"s_lshl_b32 {sT0}, {sw}, 10")
        p(f"v_add_u32 v24, {sT0}, {vS16}")
        p(f"s_lshl_b32 {sT0}, {sw}, 12")
        p(f"v_add_u32 v25, {sT0}, {vS16}")
        for q in range(4):
            p(f"ds_write_b128 v24, {kvacc(4 * q, 4)} offset:{S_KVP + q * 4096}")
        p(f"s_lshl_b32 {sT0}, {sh}, 16")
        p(f"s_lshl_b32 {sT1}, {sw}, 10")
        p(f"s_add_u32 {sT0}, {sT0}, {sT1}")
        p(f"s_add_u32 s6, {sT0}, {WS_KV + layer * 0x100000}")
        p(f"s_lshl_b32 {sT1}, {sg}, 1")
        p(f"s_add_u32 {sT1}, {sT1}, {srh}")
        p(f"s_lshl_b32 {sT1}, {sT1}, 12")
        p(f"s_add_u32 {sT1}, {sT1}, s6")
        p(f"s_add_u32 s7, {sE}, {1 + layer}")
        p.wait_ds()
        p("s_barrier")
        for u in range(4):
            p(f"ds_read_b128 {V(32 + 4 * u)}, v25 offset:{S_KVP + u * 1024}")
        p("v_mov_b32 v29, s7")
        p("v_mov_b32 v31, s7")
        for r in range(4):
            p(f"v_add_f32 v{32 + r}, v{32 + r}, v{36 + r}")
            p(f"v_add_f32 v{40 + r}, v{40 + r}, v{44 + r}")
        for r in range(4):
            p(f"v_add_f32 v{32 + r}, v{32 + r}, v{40 + r}")
        p("v_cvt_pk_bf16_f32 v28, v32, v33")
        p("v_cvt_pk_bf16_f32 v30, v34, v35")
        p(f"buffer_store_dwordx4 v[28:31], {vL16}, {SWS}, {sT1} offen sc1", "kvpub")

    def kv_gather_o(self, layer, G):
        p = self.p
        lp, ld = p.label("kvpoll"), p.label("kvdone")
        p(f"s_mov_b32 {sCnt}, {slim}")
        p(f"{lp}:")
        for u in range(16):
            p(f"s_add_u32 {sT5}, s6, {u * 4096}")
            p(f"buffer_load_dwordx4 {V(G + 4 * u)}, {vL16}, {SWS}, {sT5} offen sc1")
        p("v_mov_b32 v16, 0")
        for u in range(16):
            p(f"v_xor_b32 v{G + 4 * u + 1}, s7, v{G + 4 * u + 1}")
            p(f"v_xor_b32 v{G + 4 * u + 3}, s7, v{G + 4 * u + 3}")
            p(f"v_or3_b32 v16, v16, v{G + 4 * u + 1}, v{G + 4 * u + 3}")
        p("v_cmp_ne_u32 vcc, 0, v16")
        p(f"s_cbranch_vccz {ld}")
        p(f"s_sub_u32 {sCnt}, {sCnt}, 1")
        p(f"s_cmp_lg_u32 {sCnt}, 0")
        p(f"s_cbranch_scc1 {lp}")
        p(f"s_mov_b32 {slim}, 1")
        p(f"{ld}:")
        self.stamp(f"kv_seen{layer}")
        for u in range(16):
            for k in range(2):
                src = f"v{G + 4 * u + 2 * k}"
                if u == 0:
                    p(f"v_lshlrev_b32 v{16 + 2 * k}, 16, {src}")
                    p(f"v_and_b32 v{17 + 2 * k}, {sHI}, {src}")
                else:
                    t = 20 + 2 * k
                    p(f"v_lshlrev_b32 v{t}, 16, {src}")
                    p(f"v_and_b32 v{t + 1}, {sHI}, {src}")
                    p(f"v_pk_add_f32 {V(16 + 2 * k, 2)}, {V(16 + 2 * k, 2)}, {V(t, 2)}")
        p("v_cvt_pk_bf16_f32 v20, v16, v17")
        p("v_cvt_pk_bf16_f32 v21, v18, v19")
        p(f"s_lshr_b32 {sT0}, {sw}, 1")
        p(f"s_lshl_b32 {sT0}, {sT0}, 10")
        p(f"s_and_b32 {sT1}, {sw}, 1")
        p(f"s_lshl_b32 {sT1}, {sT1}, 3")
        p(f"s_add_u32 {sT0}, {sT0}, {sT1}")
        p(f"v_add_u32 v22, {sT0}, {vS16}")
        p(f"ds_write_b64 v22, v[20:21] offset:{S_KVS}")
        p.wait_ds()
        p("s_barrier")
        p(f"ds_read_b128 {V(24)}, {vS16} offset:{S_KVS}")
        p(f"ds_read_b128 {V(28)}, {vS16} offset:{S_KVS + 1024}")
        p(f"s_mul_i32 {sT0}, {sh}, 7")
        p(f"v_lshrrev_b32 v16, 5, {vLane}")
        p(f"v_add_u32 v16, {sT0}, v16")
        p(f"v_and_b32 v17, 31, {vLane}")
        p("v_lshlrev_b32 v17, 4, v17")
        p("v_and_b32 v18, 1, v16")
        p("v_lshl_add_u32 v17, v18, 9, v17")
        p("v_lshrrev_b32 v16, 1, v16")
        for j in range(4):
            p(f"v_add_u32 v18, {j}, v16")
            p("v_and_b32 v19, 1, v18")
            p("v_lshrrev_b32 v18, 1, v18")
            p("v_lshl_add_u32 v18, v18, 10, v17")
            p(f"v_lshl_add_u32 v{56 + j}, v19, 3, v18")
        p(f"{MFMA} {V(32, 16)}, {V(24)}, {V(48)}, 0")
        p(f"{MFMA} {V(32, 16)}, {V(28)}, {V(52)}, {V(32, 16)}")
        p("v_mov_b32 v16, v44")
        p("v_mov_b32 v17, v44")
        p("v_permlane32_swap_b32 v16, v17")
        p(f"v_add_f32 v17, {sEPS6}, v17")
        p("v_rcp_f32 v17, v17")
        for r in range(16):
            p(f"v_mul_f32 v{32 + r}, v{32 + r}, v17")
            if r & 1:
                p(f"v_cvt_pk_bf16_f32 v{20 + (r >> 1)}, v{31 + r}, v{32 + r}")
        st = [f"buffer_store_dwordx2 {V(20 + 2 * j, 2)}, v{56 + j}, {SG}, {sHB} offen" for j in range(3)]
        st += ["s_mov_b32 exec_hi, 0", f"buffer_store_dwordx2 {V(26, 2)}, v59, {SG}, {sHB} offen",
               "s_mov_b64 exec, -1"]
        self.publish(st)
        p(f"s_lshl_b32 {sT0}, {stb}, 7")
        p(f"s_lshl_b32 {sT1}, {sh}, 2")
        p(f"s_add_u32 {sT0}, {sT0}, {sT1}")
        p(f"s_add_u32 {sT0}, {sT0}, {G_FO}")
        p.wait_vm("pub")
        self.flag(sT0, 1 + layer)
        self.stamp(f"o_pub{layer}")

    def decide_fast(self):
        p = self.p
        p(f"v_and_b32 v13, 31, {vLane}")
        p("v_lshlrev_b32 v13, 2, v13")
        p(f"s_lshl_b32 {sT2}, {sg}, 7")
        p(f"s_add_u32 {sT2}, {sT2}, {WS_XC}")
        self.poll("v13", SWS, sT2, 1)
        p(f"v_cmp_ne_u32 vcc, {sfast}, v14")
        p("s_cmp_eq_u64 vcc, 0")
        p(f"s_cselect_b32 {sfast}, {0 if self.force_slow else 1}, 0")

    def qkv0(self):
        p = self.p
        seq = []
        for s in range(28):
            f = (s % 3) * 8
            seq.append(self.trread(A(f, 2), A(f + 2, 2), "v62", L_WK + s * KB, 256) +
                       self.trread(A(f + 4, 2), A(f + 6, 2), "v62", L_WV + s * KB, 256))
        p.add(seq[0] + seq[1])
        for s in range(28):
            f = (s % 3) * 8
            if s + 2 < 28:
                p.add(seq[s + 2])
            c0 = V(16, 16) if s else "0"
            c1 = V(32, 16) if s else "0"
            p(f"{MFMA} {V(16, 16)}, {V(64 + 4 * s)}, {A(f)}, {c0}")
            p(f"{MFMA} {V(32, 16)}, {V(64 + 4 * s)}, {A(f + 4)}, {c1}")
        self.stamp("kv_gemm0")
        self.phi(16, 16, 48)
        p(f"v_mov_b32 v48, {sONES}")
        for r in range(8):
            p(f"v_cvt_pk_bf16_f32 v{32 + r}, v{32 + 2 * r}, v{33 + 2 * r}")
        for r in range(8):
            p(f"v_cndmask_b32 v{32 + r}, v{32 + r}, v48, {sM28}")
        p.wait_vm(["wq", "wo"])
        self.kv_publish(0, lambda lo, k: A(24 + lo, k))
        self.stamp("kv_pub0")
        p("v_mov_b32 v13, v63")
        seq = [self.trread(A((s % 4) * 4, 2), A((s % 4) * 4 + 2, 2), "v13", s * KB, 256) for s in range(28)]
        p.add(seq[0] + seq[1] + seq[2])
        for s in range(28):
            if s + 3 < 28:
                p.add(seq[s + 3])
            c = V(48, 16) if s else "0"
            p(f"{MFMA} {V(48, 16)}, {A((s % 4) * 4)}, {V(64 + 4 * s)}, {c}")
        self.phi(48, 48, 16)
        p(f"v_cndmask_b32 v54, v54, 0, {sMPAD}")
        p(f"v_cndmask_b32 v55, v55, 0, {sMPAD}")
        self.stamp("q_done0")

    def colsums_qkv(self):
        p = self.p
        p(f"s_min_u32 {sT0}, {sw}, 2")
        p(f"s_mul_i32 {sT1}, {sT0}, {28 * KB}")
        p(f"v_add_u32 v18, {sT1}, {vTrA}")
        for r in range(20, 24):
            p(f"v_mov_b32 v{r}, {sONES}")
        for s in range(28):
            f = 24 + (s % 2) * 4
            p.add(self.trread(V(f, 2), V(f + 2, 2), "v18", s * KB))
            p(f"{MFMA} {V(32, 16)}, {V(20)}, {V(f)}, {V(32, 16) if s else 0}")
        self.split_words("v32", "v24", "v25", "v26", False, False)
        p(f"v_cndmask_b32 v24, v24, 0, {sMPAD}")
        p(f"v_cndmask_b32 v25, v25, 0, {sMPAD}")
        p(f"s_lshl_b32 {sT0}, {sw}, 9")
        p(f"v_lshlrev_b32 v18, 3, {vLane}")
        p(f"v_add_u32 v18, {L_S + S_CS}, v18")
        p(f"v_add_u32 v19, {sT0}, v18")
        p("ds_write_b64 v19, v[24:25]")
        p.wait_ds()
        p("s_barrier")
        p(f"ds_read_b64 {V(vCSQ + 2, 2)}, v18")
        p(f"ds_read_b64 {V(vCSQ + 4, 2)}, v18 offset:512")
        p(f"ds_read_b64 {V(vCSQ, 2)}, v18 offset:1024")
        p.wait_ds()

    def qkv1(self):
        p = self.p
        p(f"v_min_u32 v13, 27, {vLane}")
        p("v_lshlrev_b32 v13, 2, v13")
        p(f"s_lshl_b32 {sT0}, {stb}, 7")
        p(f"s_add_u32 {sT0}, {sT0}, {G_FX}")
        self.poll("v13", SG, sT0, 2)
        self.stamp("x2_seen")
        RING, NR = 96, 16

        def ld(s):
            q = sub()
            if s % 4 == 0:
                q(f"s_add_u32 s4, {sXB}, {s * KB}")
            q(f"buffer_load_dwordx4 {V(RING + 4 * (s % NR))}, {vL16}, {SG}, s4 offen offset:{(s % 4) * KB} sc1")
            return q.ins
        for u in range(7):
            if u % 4 == 0:
                p(f"s_add_u32 {sT5}, {sSTB}, {u * KB}")
            p(f"buffer_load_dwordx4 {V(16 + 4 * u)}, {vL16}, {SG}, {sT5} offen offset:{(u % 4) * KB} sc1")
        for s in range(NR):
            p.add(ld(s))
        for i in range(1, 14):
            p(f"v_pk_add_f32 v[16:17], v[16:17], {V(16 + 2 * i, 2)}")
        p("v_add_f32 v16, v16, v17")
        self.stats_finish("v16", "v17", "v18", "v19")
        p("v_rsq_f32 v92, v19")
        self.split_words("v18", "v88", "v89", "v17", True, True)
        p("v_mov_b32 v90, 0")
        p("v_mov_b32 v91, 0")
        p("v_cvt_pk_bf16_f32 v20, v92, v92")
        p(f"v_and_b32 v16, {sHI}, v20")
        p("v_sub_f32 v16, v92, v16")
        p("v_cvt_pk_bf16_f32 v21, v16, v16")
        p(f"v_and_b32 v17, {sHI}, v21")
        p("v_sub_f32 v17, v16, v17")
        p("v_and_b32 v20, 0xffff, v20")
        p(f"v_and_or_b32 v20, v21, {sHI}, v20")
        p("v_cvt_pk_bf16_f32 v21, v17, 0")
        p("v_mov_b32 v22, 0")
        p("v_mov_b32 v23, 0")
        p(f"v_mov_b32 v24, {sONES}")
        p(f"v_cndmask_b32 v24, v24, 0, {sMPAD}")
        p("v_mov_b32 v25, v24")
        p("v_mov_b32 v26, 0")
        p("v_mov_b32 v27, 0")
        p(f"{MFMA} {V(64, 16)}, {V(20)}, {V(24)}, 0")
        WF = [160, 164, 168, 172, 80, 84]

        def wf(s):
            o = 3 * (s % 2)
            return (self.trread(V(WF[o], 2), V(WF[o] + 2, 2), vTrA, L_WK + s * KB) +
                    self.trread(V(WF[o + 1], 2), V(WF[o + 1] + 2, 2), vTrA, L_WV + s * KB) +
                    self.trread(V(WF[o + 2], 2), V(WF[o + 2] + 2, 2), vTrB, s * KB))
        p.add(wf(0))
        for s in range(28):
            o = 3 * (s % 2)
            a = V(RING + 4 * (s % NR))
            if s + 1 < 28:
                p.add(wf(s + 1))
            p(f"{MFMA} {V(16, 16)}, {a}, {V(WF[o])}, {V(16, 16) if s else 0}")
            p(f"{MFMA} {V(32, 16)}, {a}, {V(WF[o + 1])}, {V(32, 16) if s else 0}")
            p(f"{MFMA} {V(48, 16)}, {V(WF[o + 2])}, {a}, {V(48, 16) if s else 0}")
            if s + NR < 28:
                p.add(ld(s + NR))
        for m, dst in ((1, 160), (2, 164), (0, 168)):
            p(f"v_mov_b32 v{dst}, v{vCSQ + 2 * m}")
            p(f"v_mov_b32 v{dst + 1}, v{vCSQ + 2 * m + 1}")
            p(f"v_mov_b32 v{dst + 2}, 0")
            p(f"v_mov_b32 v{dst + 3}, 0")
        p(f"{MFMA} {V(16, 16)}, {V(88)}, {V(160)}, {V(16, 16)}")
        p(f"{MFMA} {V(32, 16)}, {V(88)}, {V(164)}, {V(32, 16)}")
        p(f"{MFMA} {V(48, 16)}, {V(168)}, {V(88)}, {V(48, 16)}")
        self.stamp("kv_gemm1")
        self.phi(16, 16, 80, lambda r: f"v{64 + r}")
        p(f"v_mov_b32 v80, {sONES}")
        for r in range(16):
            p(f"v_mul_f32 v{32 + r}, v{32 + r}, v{64 + r}")
        for r in range(8):
            p(f"v_cvt_pk_bf16_f32 v{32 + r}, v{32 + 2 * r}, v{33 + 2 * r}")
        for r in range(8):
            p(f"v_cndmask_b32 v{32 + r}, v{32 + r}, v80, {sM28}")
        self.kv_publish(1, lambda lo, k: V(64 + lo, k))
        self.stamp("kv_pub1")
        self.phi(48, 48, 16, lambda r: "v92")
        p(f"v_cndmask_b32 v54, v54, 0, {sMPAD}")
        p(f"v_cndmask_b32 v55, v55, 0, {sMPAD}")

    def wo_phase(self, layer):
        p = self.p
        if layer == 0:
            p(f"v_and_b32 v13, 31, {vLane}")
            p("v_mul_u32_u24 v13, 896, v13")
            p(f"v_lshrrev_b32 v14, 5, {vLane}")
            p("v_lshl_add_u32 v13, v14, 3, v13")
            p(f"s_lshl_b32 {sT0}, {sg}, 3")
            p(f"s_add_u32 {sT0}, {sT0}, {stb}")
            p(f"s_mul_i32 {sT0}, {sT0}, {32 * 896}")
            p(f"s_lshl_b32 {sT1}, {sh}, 6")
            p(f"s_add_u32 {sT0}, {sT0}, {sT1}")
            for a in range(4):
                p(f"buffer_load_dwordx2 {V(32 + 2 * a, 2)}, v13, {SX}, {sT0} offen offset:{16 * a}")
        else:
            p(f"s_lshl_b32 {sT0}, {sh}, 11")
            p(f"s_add_u32 {sT0}, {sT0}, {sXB}")
            p(f"buffer_load_dwordx4 {V(32)}, {vL16}, {SG}, {sT0} offen sc1")
            p(f"buffer_load_dwordx4 {V(36)}, {vL16}, {SG}, {sT0} offen offset:1024 sc1")
        p(f"v_and_b32 v13, 15, {vLane}")
        p("v_lshlrev_b32 v13, 2, v13")
        p(f"s_lshl_b32 {sT0}, {stb}, 7")
        p(f"s_add_u32 {sT0}, {sT0}, {G_FO}")
        self.poll("v13", SG, sT0, 1 + layer)
        self.stamp(f"o_seen{layer}")
        RING, NR = 64, 28
        for s in range(28):
            if s % 4 == 0:
                p(f"s_add_u32 s4, {sHB}, {s * KB}")
            p(f"buffer_load_dwordx4 {V(RING + 4 * s)}, {vL16}, {SG}, s4 offen offset:{(s % 4) * KB} sc1")
        for r in range(8):
            p(f"v_lshlrev_b32 v{16 + 2 * r}, 16, v{32 + r}")
            p(f"v_and_b32 v{17 + 2 * r}, {sHI}, v{32 + r}")
        seq = [self.trread(V(48 + (s % 4) * 4, 2), V(50 + (s % 4) * 4, 2), vTrB, (L_WO - L_WQ) + s * KB)
               for s in range(28)]
        p.add(seq[0] + seq[1] + seq[2])
        for s in range(28):
            if s + 3 < 28:
                p.add(seq[s + 3])
            p(f"{MFMA} {V(16, 16)}, {V(48 + (s % 4) * 4)}, {V(RING + 4 * s)}, {V(16, 16)}")
        self.stamp(f"wo_gemm{layer}")
        for r in range(8):
            p(f"v_cvt_pk_bf16_f32 v{32 + r}, v{16 + 2 * r}, v{17 + 2 * r}")
        p("v_add_f32 v40, v16, v17")
        p("v_mul_f32 v42, v16, v16")
        p("v_fmac_f32 v42, v17, v17")
        for r in range(2, 16):
            p(f"v_add_f32 v40, v40, v{16 + r}")
            p(f"v_fmac_f32 v42, v{16 + r}, v{16 + r}")
        p("v_mov_b32 v41, 0")
        self.both_halves("v40", "v42", None)
        p(f"s_lshl_b32 {sT0}, {sh}, 11")
        p(f"s_add_u32 {sT0}, {sT0}, {sXB}")
        p(f"s_lshr_b32 {sT1}, {sh}, 1")
        p(f"s_lshl_b32 {sT1}, {sT1}, 10")
        p(f"s_and_b32 {sT2}, {sh}, 1")
        p(f"s_lshl_b32 {sT2}, {sT2}, 3")
        p(f"s_add_u32 {sT1}, {sT1}, {sT2}")
        p(f"s_add_u32 {sT1}, {sT1}, {sSTB}")
        self.publish([f"buffer_store_dwordx4 {V(32)}, {vL16}, {SG}, {sT0} offen",
                      f"buffer_store_dwordx4 {V(36)}, {vL16}, {SG}, {sT0} offen offset:1024",
                      f"buffer_store_dwordx2 v[40:41], {vL16}, {SG}, {sT1} offen"])
        p(f"s_lshl_b32 {sT0}, {stb}, 7")
        p(f"s_lshl_b32 {sT1}, {sh}, 3")
        p(f"s_add_u32 {sT0}, {sT0}, {sT1}")
        p(f"s_add_u32 {sT0}, {sT0}, {G_FX}")
        p.wait_vm("pub")
        self.flag(sT0, 1 + 2 * layer, 2)
        self.stamp(f"x1_pub{layer}")

    def w2_loads(self):
        p = self.p
        p(f"v_lshrrev_b32 v13, 2, {vLane}")
        p(f"v_and_b32 v15, 3, {vLane}")
        p("v_lshlrev_b32 v15, 4, v15")
        p("v_mul_u32_u24 v14, 896, v13")
        p("v_add_u32 v13, v14, v15")
        p(f"s_lshl_b32 {sT0}, {scb}, 7")
        p(f"s_mul_i32 {sT1}, {sw}, {32 * 896}")
        p(f"s_add_u32 s4, {sT0}, {sT1}")
        for j in range(28):
            p(f"s_add_u32 {sT5}, s4, {(128 * (j >> 1) + 16 * (j & 1)) * 896}")
            p(f"buffer_load_dwordx4 {w2reg(j, 0)}, v13, {S2}, {sT5} offen", "w2")
            p(f"buffer_load_dwordx4 {w2reg(j, 1)}, v13, {S2}, {sT5} offen offset:64", "w2")

    def w1_prepare(self):
        p = self.p
        self.tr_addrs()
        for s in range(28):
            p.add(self.transpose_block(lambda lo, k, s=s: w1reg(s, lo, k)))
        for r in range(20, 24):
            p(f"v_mov_b32 v{r}, {sONES}")
        for s in range(28):
            p(f"{MFMA} {V(32, 16)}, {V(20)}, {w1reg(s)}, {V(32, 16) if s else 0}")
        self.split_words("v32", f"v{vCS1}", f"v{vCS1 + 1}", "v26", False, False)
        p(f"v_cndmask_b32 v{vCS1}, v{vCS1}, 0, {sMPAD}")
        p(f"v_cndmask_b32 v{vCS1 + 1}, v{vCS1 + 1}, 0, {sMPAD}")

    def w2_prepare(self):
        p = self.p
        self.tr_addrs()
        for j in range(28):
            for ch in range(2):
                p.add(self.transpose_block(lambda lo, k, j=j, ch=ch: w2reg(j, ch, lo, k)))

    def ffn1(self, layer):
        p = self.p
        p(f"v_and_b32 v13, 15, {vLane}")
        p("v_min_u32 v13, 13, v13")
        p("v_lshlrev_b32 v13, 3, v13")
        p(f"v_lshrrev_b32 v14, 4, {vLane}")
        p("v_lshl_add_u32 v13, v14, 7, v13")
        p(f"s_lshl_b32 {sT0}, {srh}, 9")
        p(f"s_add_u32 {sT0}, {sT0}, {G_FX}")
        self.poll("v13", SG, sT0, 1 + 2 * layer, 2)
        self.stamp(f"x1_seen{layer}")
        p("s_barrier")
        p(f"s_mul_i32 {sT0}, {srh}, {112 * KB}")
        p(f"s_add_u32 {sT0}, {sT0}, {G_X}")
        p(f"s_mul_i32 {sT1}, {sw}, {3 * KB}")
        p(f"s_add_u32 s4, {sT0}, {sT1}")
        p(f"s_add_u32 s5, {sT1}, {L_S}")
        p(f"s_lshl_b32 {sT1}, {sw}, 9")
        p(f"s_add_u32 {sT1}, {sT1}, {12 * KB}")
        p(f"s_add_u32 s6, {sT0}, {sT1}")
        p(f"s_add_u32 s7, {sT1}, {L_S}")

        def chunk(j):
            q = sub()
            q(f"s_add_u32 m0, s5, {(j % 3) * 14 * KB}")
            q(f"s_add_u32 {sT5}, s4, {j * 14 * KB}")
            for u in range(3):
                q(f"buffer_load_dwordx4 {vL16}, {SG}, {sT5} offen offset:{u * KB} sc1 lds", f"c{j}")
            q(f"s_add_u32 m0, s7, {(j % 3) * 14 * KB}")
            q(f"s_add_u32 {sT5}, s6, {j * 14 * KB}")
            q("s_mov_b32 exec_hi, 0")
            q(f"buffer_load_dwordx4 {vL16}, {SG}, {sT5} offen sc1 lds", f"c{j}")
            q("s_mov_b64 exec, -1")
            return q.ins
        p.add(chunk(0))
        for u in range(7):
            if u % 4 == 0:
                p(f"s_add_u32 {sT5}, {sSTB}, {u * KB}")
            p(f"buffer_load_dwordx4 {V(16 + 4 * u)}, {vL16}, {SG}, {sT5} offen offset:{(u % 4) * KB} sc1")
        p.add(chunk(1))
        p.add(chunk(2))
        for i in range(1, 14):
            p(f"v_pk_add_f32 v[16:17], v[16:17], {V(16 + 2 * i, 2)}")
        p("v_add_f32 v16, v16, v17")
        self.stats_finish("v16", "v17", "v18", "v19")
        self.split_words("v18", "v20", "v21", "v17", True, True)
        p("v_rsq_f32 v22, v19")
        p("v_sqrt_f32 v23, v19")
        p(f"v_mul_f32_e64 v22, -v22, {sLOG2E}")
        p(f"v_and_b32 v13, 31, {vLane}")
        p("v_lshlrev_b32 v13, 4, v13")
        p(f"v_add_u32 v13, {L_S + S_STAT}, v13")
        p(f"s_and_b32 {sT0}, {sxs}, 3")
        p(f"s_lshl_b32 {sT0}, {sT0}, 9")
        p(f"v_add_u32 v14, {sT0}, v13")
        p("ds_write_b128 v14, v[20:23]")
        p(f"v_mov_b32 v84, v{vCS1}")
        p(f"v_mov_b32 v85, v{vCS1 + 1}")
        p("v_mov_b32 v86, 0")
        p("v_mov_b32 v87, 0")
        p("v_mov_b32 v90, 0")
        p("v_mov_b32 v91, 0")
        p(f"s_lshl_b32 {sT0}, {sh}, 13")
        p(f"s_lshl_b32 {sT1}, {sw}, 11")
        p(f"s_add_u32 s3, {sT0}, {sT1}")
        p(f"s_mul_i32 {sT0}, {srh}, {4 * 112 * KB}")
        p(f"s_add_u32 s3, s3, {sT0}")
        p(f"s_lshl_b32 {sT0}, {srh}, 10")
        p(f"s_lshl_b32 {sT1}, {sw}, 6")
        p(f"s_add_u32 {sT0}, {sT0}, {sT1}")
        p(f"s_lshl_b32 {sT1}, {sh}, 2")
        p(f"s_add_u32 {sT0}, {sT0}, {sT1}")
        p(f"s_add_u32 s2, {sT0}, {G_FH}")
        XF, NX = 48, 4
        for o in range(4):
            tb = ((o & 1) << 1) | (o >> 1)
            acc = 16
            for half in range(2):
                j = 2 * o + half
                p.wait_vm(f"c{j}")
                p.wait_ds()
                p("s_barrier")
                if j == 0:
                    for k in range(4):
                        p(f"ds_read_b128 {V(64 + 4 * k)}, v13 offset:{k * 512}")
                if j >= 1 and j + 2 < 8:
                    p.add(chunk(j + 2))
                rd = [Ins(f"ds_read_b128 {V(XF + 4 * (u % NX))}, {vS16} offset:{((j % 3) * 14 + u) * KB}")
                      for u in range(14)]
                p.add(rd[:3])
                for u in range(14):
                    s = 14 * half + u
                    if u + 3 < 14:
                        p.add([rd[u + 3]])
                    p(f"{MFMA} {V(acc, 16)}, {w1reg(s)}, {V(XF + 4 * (u % NX))}, {V(acc, 16) if s else 0}")
            p(f"v_mov_b32 v88, v{64 + 4 * o}")
            p(f"v_mov_b32 v89, v{65 + 4 * o}")
            p(f"{MFMA} {V(acc, 16)}, {V(84)}, {V(88)}, {V(acc, 16)}")
            c1, sd = f"v{66 + 4 * o}", f"v{67 + 4 * o}"
            for r in range(16):
                t = f"v{40 + (r & 3)}"
                a = f"v{acc + r}"
                p(f"v_mul_f32 {t}, {a}, {c1}")
                p(f"v_exp_f32 {t}, {t}")
                p(f"v_fma_f32 {t}, {t}, {sd}, {sd}")
                p(f"v_rcp_f32 {t}, {t}")
                p(f"v_mul_f32 {a}, {a}, {t}")
                if r & 1:
                    p(f"v_cvt_pk_bf16_f32 v{32 + (r >> 1)}, v{acc + r - 1}, {a}")
            p(f"s_add_u32 {sT0}, s3, {tb * 112 * KB}")
            self.publish([f"buffer_store_dwordx4 {V(32)}, {vL16}, {SG}, {sT0} offen",
                          f"buffer_store_dwordx4 {V(36)}, {vL16}, {SG}, {sT0} offen offset:1024"])
            p(f"s_add_u32 {sT0}, s2, {tb * 256}")
            p.wait_vm("pub")
            self.flag(sT0, 1 + layer)
        p("s_barrier")
        self.stamp(f"ffn1_done{layer}")

    def ffn2(self, layer):
        p = self.p
        RING, NR = 80, 24
        p(f"s_mul_i32 s4, {srq}, {2 * 112 * KB}")
        p(f"s_lshl_b32 {sT0}, {sw}, 11")
        p(f"s_add_u32 s4, s4, {sT0}")
        p(f"s_lshl_b32 s5, {srq}, 9")
        p(f"s_lshl_b32 {sT0}, {sw}, 6")
        p(f"s_add_u32 s5, s5, {sT0}")
        p(f"s_add_u32 s5, s5, {G_FH}")
        p(f"s_lshr_b32 {sT0}, {srq}, 1")
        p(f"s_lshl_b32 {sT0}, {sT0}, 2")
        p(f"s_and_b32 {sT1}, {srq}, 1")
        p(f"s_add_u32 {sT0}, {sT0}, {sT1}")
        p(f"s_mul_i32 s6, {sT0}, {28 * KB}")
        p(f"s_lshl_b32 {sT0}, {scb}, 12")
        p(f"s_lshl_b32 {sT1}, {sw}, 10")
        p(f"s_add_u32 {sT0}, {sT0}, {sT1}")
        p(f"s_add_u32 s6, s6, {sT0}")
        p(f"s_add_u32 s6, s6, {G_X}")
        p(f"s_mul_i32 s7, {srq}, {14 * KB}")
        p(f"s_lshl_b32 {sT0}, {scb}, 10")
        p(f"s_lshl_b32 {sT1}, {sw}, 2")
        p(f"s_add_u32 {sT0}, {sT0}, {sT1}")
        p(f"s_add_u32 s7, s7, {sT0}")
        p(f"s_add_u32 s7, s7, {G_ST}")
        for th in range(2):
            p(f"v_min_u32 v13, 13, {vLane}")
            p("v_lshlrev_b32 v13, 2, v13")
            p(f"s_add_u32 {sT0}, s5, {th * 256}")
            self.poll("v13", SG, sT0, 1 + layer)
            if th == 0:
                self.stamp(f"h_seen{layer}")

            def ld(j):
                q = sub()
                if j % 2 == 0:
                    q(f"s_add_u32 s3, s4, {th * 112 * KB + (j >> 1) * 8 * KB}")
                q(f"buffer_load_dwordx4 {V(RING + 4 * (j % NR))}, {vL16}, {SG}, s3 offen offset:{(j % 2) * KB} sc1")
                return q.ins
            for j in range(NR):
                p.add(ld(j))
            p(f"s_add_u32 {sT4}, s6, {th * 2 * 28 * KB}")
            p(f"buffer_load_dwordx4 {V(76)}, {vL16}, {SG}, {sT4} offen sc1")
            for j in range(28):
                b = V(RING + 4 * (j % NR))
                p(f"{MFMA} {V(16, 16)}, {w2reg(j, 0)}, {b}, {V(16, 16) if j else 0}")
                p(f"{MFMA} {V(32, 16)}, {w2reg(j, 1)}, {b}, {V(32, 16) if j else 0}")
                if j + NR < 28:
                    p.add(ld(j + NR))
            area = th * 24 * KB
            for d in range(4):
                ls = p.label("own")
                p(f"s_cmp_eq_u32 {sw}, {d}")
                p(f"s_cbranch_scc1 {ls}")
                p(f"s_sub_u32 {sT0}, {sw}, {d + 1}")
                p(f"s_and_b32 {sT0}, {sT0}, 3")
                p(f"s_lshl_b32 {sT0}, {sT0}, 11")
                p(f"v_add_u32 v13, {sT0}, {vS16}")
                p(f"ds_write_b128 v13, {V(16 + 8 * d)} offset:{area + d * 6 * KB}")
                p(f"ds_write_b128 v13, {V(20 + 8 * d)} offset:{area + d * 6 * KB + KB}")
                le = p.label("ownend")
                p(f"s_branch {le}")
                p(f"{ls}:")
                p("s_nop 7\ns_nop 3")
                for r in range(8):
                    p(f"v_mov_b32 v{48 + r}, v{16 + 8 * d + r}")
                p(f"{le}:")
            p(f"s_mul_i32 {sT0}, {sw}, {6 * KB}")
            p(f"v_add_u32 v13, {sT0}, {vS16}")
            p("s_waitcnt lgkmcnt(0)")
            p("s_barrier")
            for u in range(6):
                p(f"ds_read_b128 {V(16 + 4 * u)}, v13 offset:{area + u * KB}")
            for r in range(4):
                p(f"v_lshlrev_b32 v{56 + 2 * r}, 16, v{76 + r}")
                p(f"v_and_b32 v{57 + 2 * r}, {sHI}, v{76 + r}")
            for r in range(0, 8, 2):
                p(f"v_pk_add_f32 {V(48 + r, 2)}, {V(48 + r, 2)}, {V(56 + r, 2)}")
            for u in range(3):
                for r in range(0, 8, 2):
                    p(f"v_pk_add_f32 {V(48 + r, 2)}, {V(48 + r, 2)}, {V(16 + 8 * u + r, 2)}")
            for r in range(4):
                p(f"v_cvt_pk_bf16_f32 v{56 + r}, v{48 + 2 * r}, v{49 + 2 * r}")
            if layer == 0:
                p("v_add_f32 v60, v48, v49")
                p("v_mul_f32 v61, v48, v48")
                p("v_fmac_f32 v61, v49, v49")
                for r in range(2, 8):
                    p(f"v_add_f32 v60, v60, v{48 + r}")
                    p(f"v_fmac_f32 v61, v{48 + r}, v{48 + r}")
                self.both_halves("v60", "v61", None)
                p(f"s_add_u32 {sT3}, s7, {th * 7 * KB}")
                self.publish([f"buffer_store_dwordx4 {V(56)}, {vL16}, {SG}, {sT4} offen",
                              f"buffer_store_dword v60, {vL16}, {SG}, {sT3} offen"])
                p(f"s_lshl_b32 {sT0}, {srq}, 8")
                p(f"s_lshl_b32 {sT1}, {scb}, 4")
                p(f"s_add_u32 {sT0}, {sT0}, {sT1}")
                p(f"s_lshl_b32 {sT1}, {sw}, 2")
                p(f"s_add_u32 {sT0}, {sT0}, {sT1}")
                p(f"s_add_u32 {sT0}, {sT0}, {G_FX + th * 128}")
                p.wait_vm("pub")
                self.flag(sT0, 2)
            else:
                p("v_permlane32_swap_b32 v56, v58")
                p("v_permlane32_swap_b32 v57, v59")
                p(f"v_and_b32 v13, 31, {vLane}")
                p("v_mul_u32_u24 v13, 896, v13")
                p(f"v_lshrrev_b32 v14, 5, {vLane}")
                p("v_lshl_add_u32 v13, v14, 4, v13")
                p(f"s_lshl_b32 {sT0}, {sg}, 2")
                p(f"s_add_u32 {sT0}, {sT0}, {srq}")
                p(f"s_mul_i32 {sT0}, {sT0}, {64 * 896}")
                p(f"s_lshl_b32 {sT1}, {scb}, 7")
                p(f"s_add_u32 {sT0}, {sT0}, {sT1}")
                p(f"s_lshl_b32 {sT1}, {sw}, 5")
                p(f"s_add_u32 {sT0}, {sT0}, {sT1}")
                p(f"s_add_u32 {sT0}, {sT0}, {th * 32 * 896}")
                p(f"buffer_store_dwordx4 {V(56)}, v13, {SOUT}, {sT0} offen")
        self.stamp(f"ffn2_done{layer}")

    def finish(self):
        p = self.p
        p(f"s_or_b32 {sT0}, {sg}, {sh}")
        p(f"s_or_b32 {sT0}, {sT0}, {srh}")
        p(f"s_or_b32 {sT0}, {sT0}, {sw}")
        p(f"s_cmp_lg_u32 {sT0}, 0")
        p("s_cbranch_scc1 L_fin")
        p(f"s_add_u32 {sT0}, {sE}, 64")
        p(f"v_mov_b32 v14, {sT0}")
        p("v_mov_b32 v13, 0")
        p("s_mov_b64 exec, 1")
        p(f"buffer_store_dword v14, v13, {SWS}, 0 offen sc1")
        p("s_mov_b64 exec, -1")
        p("L_fin:")
        if self.pad:
            if self.stop_after == "wb":
                p("s_waitcnt vmcnt(0)")
                p(".long 0xE0A08000, 0x00000000")
                p("s_waitcnt vmcnt(0)")
            p("L_pad:")
            p("s_memrealtime s[98:99]")
            p("s_waitcnt lgkmcnt(0)")
            p("s_sub_u32 s98, s98, s96")
            p(f"s_cmp_lt_u32 s98, {self.pad}")
            p("s_cbranch_scc1 L_pad")
        if self.diag:
            self.stamp_flush()
            p(f"s_lshl_b32 {sT0}, {srh}, 4")
            p(f"s_add_u32 {sT0}, {sT0}, {sh}")
            p(f"s_lshl_b32 {sT0}, {sT0}, 3")
            p(f"s_add_u32 {sT0}, {sT0}, {sg}")
            p(f"s_lshl_b32 {sT0}, {sT0}, 2")
            p(f"s_add_u32 {sT0}, {sT0}, {sw}")
            p(f"s_lshl_b32 {sT0}, {sT0}, 7")
            p(f"s_add_u32 {sT0}, {sT0}, {WS_DIAG}")
            p("v_mov_b32 v13, 0")
            p("s_mov_b64 exec, 1")
            for i in range(self.nstamp):
                p(f"v_mov_b32 v14, s{STAMP0 + i}")
                p(f"buffer_store_dword v14, v13, {SWS}, {sT0} offen offset:{4 * i}")
            p(f"v_mov_b32 v14, {sfast}")
            p(f"buffer_store_dword v14, v13, {SWS}, {sT0} offen offset:120")
            p(f"v_mov_b32 v14, {slim}")
            p(f"buffer_store_dword v14, v13, {SWS}, {sT0} offen offset:124")
            p("s_mov_b64 exec, -1")
        p("s_waitcnt vmcnt(0)")
        p("s_endpgm")

    def build(self):
        p = self.p
        self.prologue()
        self.startup()
        self.qkv0()
        self.decide_fast()
        self.kv_gather_o(0, 64)
        self.colsums_qkv()
        self.stamp_flush()
        p(f"s_cmp_ge_u32 {sh}, 14")
        p("s_cbranch_scc1 L_layer1")
        self.w2_loads()
        self.w1_prepare()
        self.wo_phase(0)
        self.w2_prepare()
        self.ffn1(0)
        self.ffn2(0)
        p("L_layer1:")
        p("s_waitcnt vmcnt(0) lgkmcnt(0)")
        self.qkv1()
        self.kv_gather_o(1, 96)
        p(f"s_cmp_ge_u32 {sh}, 14")
        p("s_cbranch_scc1 L_fin")
        self.wo_phase(1)
        self.ffn1(1)
        self.ffn2(1)
        self.finish()
        return finalize(p.ins)


HEADER = f"""; Two layers of (LayerNorm, linear attention, output projection, LayerNorm, SiLU FFN) in one persistent launch.
; @launch grid=(256,1,1) block=(256,1,1) lds={LDS_BYTES}
.amdgcn_target "amdgcn-amd-amdhsa--gfx950"
.text
.globl {NAME}_kernel
.p2align 8
.type {NAME}_kernel,@function
{NAME}_kernel:
"""
FOOTER = f"""
.section .rodata,"a"
.p2align 6
.amdhsa_kernel {NAME}_kernel
  .amdhsa_next_free_vgpr 512
  .amdhsa_next_free_sgpr 102
  .amdhsa_accum_offset 256
  .amdhsa_group_segment_fixed_size 0
  .amdhsa_kernarg_size 72
  .amdhsa_user_sgpr_count 2
  .amdhsa_user_sgpr_kernarg_segment_ptr 1
  .amdhsa_system_sgpr_workgroup_id_x 1
.end_amdhsa_kernel
"""


def generate(**kw):
    g = Gen(**kw)
    lines = g.build()
    return HEADER + "\n".join(lines) + FOOTER, g


if __name__ == "__main__":
    out = sys.argv[1] if len(sys.argv) > 1 else f"cdna_kernels/{NAME}.s"
    text, g = generate(diag="diag" in sys.argv, force_slow="slow" in sys.argv, pad=8000 if "pad" in sys.argv else 0, stop_after="wb" if "wb" in sys.argv else None)
    open(out, "w").write(text)
    print("wrote", out, len(text), "bytes;", text.count("\n"), "lines")
```

```python
import re

REG_RE = re.compile(r"^(-|\|)?([vas])(\d+)\|?$")
RNG_RE = re.compile(r"^(-|\|)?([vas])\[(\d+):(\d+)\]\|?$")
TRANS = ("v_exp_f32", "v_log_f32", "v_rcp_f32", "v_rsq_f32", "v_sqrt_f32", "v_sin_f32", "v_cos_f32")


def regs_of(tok):
    tok = tok.strip()
    m = REG_RE.match(tok)
    if m:
        return [m.group(2) + m.group(3)]
    m = RNG_RE.match(tok)
    if m:
        return [m.group(2) + str(i) for i in range(int(m.group(3)), int(m.group(4)) + 1)]
    if tok in ("vcc", "exec", "m0", "scc"):
        return [tok]
    if tok in ("vcc_lo", "vcc_hi"):
        return ["vcc"]
    if tok in ("exec_lo", "exec_hi"):
        return ["exec"]
    return []


def split_ops(s):
    out, depth, cur = [], 0, ""
    for ch in s:
        if ch in "[(":
            depth += 1
        if ch in "])":
            depth -= 1
        if ch == "," and depth == 0:
            out.append(cur.strip())
            cur = ""
        else:
            cur += ch
    if cur.strip():
        out.append(cur.strip())
    return out


class Ins:
    __slots__ = ("text", "op", "kind", "rd", "wr", "tag", "srcc", "ab", "data", "passes", "arg")

    def __init__(self, text, tag=None):
        self.text = text
        self.tag = tag
        self.srcc = set()
        self.ab = set()
        self.data = set()
        self.passes = 0
        self.arg = None
        t = text.strip()
        if t.endswith(":"):
            self.op, self.kind, self.rd, self.wr = t, "label", set(), set()
            return
        if t.startswith(";") or t.startswith("."):
            self.op, self.kind, self.rd, self.wr = t, "comment", set(), set()
            return
        parts = t.split(None, 1)
        op = parts[0]
        self.op = op
        ops = split_ops(parts[1]) if len(parts) > 1 else []
        mods = ""
        if ops:
            last = ops[-1].split(None, 1)
            ops[-1] = last[0]
            mods = last[1] if len(last) > 1 else ""
        R = [regs_of(o) for o in ops]
        flat = lambda xs: set(r for x in xs for r in x)
        rd, wr = set(), set()
        if op.startswith("v_mfma"):
            self.kind = "mfma"
            wr = set(R[0])
            self.ab = set(R[1]) | set(R[2])
            self.srcc = set(R[3])
            rd = self.ab | self.srcc
            self.passes = 8 if "32x32x16" in op else 4
            rd.add("exec")
        elif op in ("buffer_wbl2", "buffer_inv"):
            self.kind = "vstore"
        elif op.startswith("buffer_") or op.startswith("global_"):
            if "load" in op:
                if " lds" in " " + mods:
                    self.kind = "dma"
                    rd = flat(R) | {"m0"}
                else:
                    self.kind = "vload"
                    wr = set(R[0])
                    rd = flat(R[1:])
            elif "store" in op:
                self.kind = "vstore"
                rd = flat(R)
                self.data = set(R[0]) if op.startswith("buffer_") else set(R[1])
            else:
                raise ValueError(text)
            rd.add("exec")
        elif op.startswith("ds_"):
            if "read" in op or "bpermute" in op or "swizzle" in op:
                self.kind = "dsread"
                wr = set(R[0])
                rd = flat(R[1:])
            else:
                self.kind = "dswrite"
                rd = flat(R)
            rd.add("exec")
        elif op.startswith("s_load") or op in ("s_memtime", "s_memrealtime"):
            self.kind = "smem"
            wr = set(R[0])
            rd = flat(R[1:])
        elif op == "s_waitcnt":
            self.kind = "wait"
        elif op == "s_nop":
            self.kind = "nop"
            self.arg = int(ops[0])
        elif op == "s_barrier":
            self.kind = "barrier"
        elif op.startswith("s_cbranch") or op in ("s_branch", "s_endpgm", "s_setpc_b64"):
            self.kind = "branch"
            if "scc" in op:
                rd = {"scc"}
            if "vcc" in op:
                rd = {"vcc"}
            if "exec" in op:
                rd = {"exec"}
        elif op.startswith("s_"):
            self.kind = "salu"
            if op.startswith("s_cmp") or op.startswith("s_bitcmp"):
                rd = flat(R)
                wr = {"scc"}
            elif op in ("s_sleep", "s_setprio"):
                pass
            else:
                wr = set(R[0]) | {"scc"}
                rd = flat(R[1:])
                if op.startswith("s_mov") or op.startswith("s_mul") or op.startswith("s_cselect") or op.startswith("s_getreg") or op.startswith("s_getpc"):
                    wr.discard("scc")
                if op.startswith("s_cselect") or op.startswith("s_addc") or op.startswith("s_subb"):
                    rd.add("scc")
                if "saveexec" in op:
                    wr.add("exec")
                    rd.add("exec")
        elif op.startswith("v_"):
            base = op.replace("_e32", "").replace("_e64", "")
            self.kind = "trans" if base in TRANS else "valu"
            rd.add("exec")
            if op.startswith("v_nop"):
                pass
            elif op.startswith("v_permlane"):
                wr = set(R[0]) | set(R[1])
                rd |= wr
            elif op.startswith("v_cmp"):
                wr = set(R[0])
                rd |= flat(R[1:])
            elif "_co_" in op:
                wr = set(R[0]) | set(R[1])
                rd |= flat(R[2:])
            else:
                wr = set(R[0])
                rd |= flat(R[1:])
                if base.startswith("v_fmac") or base.startswith("v_dot2c") or "dpp" in op or base.startswith("v_writelane"):
                    rd |= set(R[0])
        else:
            raise ValueError("cannot parse: " + text)
        self.rd, self.wr = rd, wr


class Pseudo:
    def __init__(self, what, tag=None):
        self.kind = "pseudo"
        self.what = what
        self.tag = tag
        self.rd = set()
        self.wr = set()
        self.text = f"; {what} {tag}"


class Prog:
    def __init__(self):
        self.ins = []
        self.nlabel = 0

    def __call__(self, text, tag=None):
        for line in text.split("\n"):
            line = line.strip()
            if line:
                self.ins.append(Ins(line, tag))

    def add(self, items):
        self.ins.extend(items)

    def wait_vm(self, tag):
        self.ins.append(Pseudo("wait_vm", tag))

    def wait_ds(self, tag=None):
        self.ins.append(Pseudo("wait_ds", tag))

    def vm_drained(self):
        self.ins.append(Pseudo("vm_drained"))

    def alt_begin(self):
        self.ins.append(Pseudo("alt_begin"))

    def alt_else(self):
        self.ins.append(Pseudo("alt_else"))

    def alt_end(self):
        self.ins.append(Pseudo("alt_end"))

    def label(self, stem):
        self.nlabel += 1
        return f"L_{stem}_{self.nlabel}"


def sub():
    return Prog()


WAIT_RE = re.compile(r"(vmcnt|lgkmcnt)\((\d+)\)")


def insert_waits(ins):
    out = []
    vm = []
    ds = []
    saved = None

    def need(lst, pred):
        last = -1
        for i, e in enumerate(lst):
            if pred(e):
                last = i
        return last

    def emit_wait(vi, di):
        nonlocal vm, ds
        parts = []
        if vi >= 0:
            n = min(len(vm) - 1 - vi, 63)
            parts.append(f"vmcnt({n})")
            vm = vm[len(vm) - n:] if n else []
        if di >= 0:
            if any(e[2] for e in ds):
                n = 0
            else:
                n = min(len(ds) - 1 - di, 15)
            parts.append(f"lgkmcnt({n})")
            ds = ds[len(ds) - n:] if n else []
        if parts:
            out.append(Ins("s_waitcnt " + " ".join(parts)))

    for x in ins:
        if x.kind == "pseudo":
            if x.what == "wait_vm":
                tags = x.tag if isinstance(x.tag, (list, tuple, set)) else [x.tag]
                emit_wait(need(vm, lambda e: x.tag is None or e[1] in tags), -1)
            elif x.what == "wait_ds":
                tags = x.tag if isinstance(x.tag, (list, tuple, set)) else [x.tag]
                emit_wait(-1, need(ds, lambda e: x.tag is None or e[1] in tags))
            elif x.what == "vm_drained":
                vm = []
            elif x.what == "alt_begin":
                saved = ("begin", list(vm), list(ds))
            elif x.what == "alt_else":
                after_a = (list(vm), list(ds))
                vm, ds = list(saved[1]), list(saved[2])
                saved = ("else", after_a)
            elif x.what == "alt_end":
                a_vm, a_ds = saved[1]
                assert len(a_vm) == len(vm) and len(a_ds) == len(ds), "alt arms differ in outstanding ops"
                saved = None
            if x.what.startswith("alt_"):
                out.append(x)
            continue
        if x.kind == "wait":
            for name, n in WAIT_RE.findall(x.text):
                n = int(n)
                if name == "vmcnt":
                    vm = vm[len(vm) - n:] if 0 < n < len(vm) else ([] if n == 0 else vm)
                else:
                    if n == 0:
                        ds = []
                    elif not any(e[2] for e in ds) and n < len(ds):
                        ds = ds[len(ds) - n:]
            out.append(x)
            continue
        touched = x.rd | x.wr
        vi = need(vm, lambda e: e[0] & touched)
        di = need(ds, lambda e: e[0] & touched)
        if x.kind == "dsread" and di >= 0 and not (x.rd & set().union(*[e[0] for e in ds])) and not any(e[2] for e in ds):
            di = -1
        if x.kind == "vload" and vi >= 0 and not (x.rd & set().union(*[e[0] for e in vm])):
            vi = -1
        emit_wait(vi, di)
        out.append(x)
        if x.kind == "vload":
            vm.append((set(x.wr), x.tag))
        elif x.kind in ("vstore", "dma"):
            vm.append((set(), x.tag))
        elif x.kind == "dsread":
            ds.append((set(x.wr), x.tag, False))
        elif x.kind == "dswrite":
            ds.append((set(), x.tag, False))
        elif x.kind == "smem":
            ds.append((set(x.wr), x.tag, True))
    return out


def states(x):
    if x.kind in ("label", "comment", "pseudo"):
        return 0
    if x.kind == "nop":
        return x.arg + 1
    return 1


VALU_KINDS = ("valu", "trans")
MEM_KINDS = ("vload", "vstore", "dma", "dsread", "dswrite")


def required(p, c):
    n = 0
    pv = p.kind in VALU_KINDS
    cv = c.kind in VALU_KINDS
    if pv:
        vw = {r for r in p.wr if r[0] in "va" and r != "vcc"}
        sw = {r for r in p.wr if r[0] == "s" and r != "scc" or r == "vcc"}
        if c.kind == "mfma" and vw & c.rd:
            n = max(n, 2)
        if cv and c.op.startswith("v_permlane") and vw & c.rd:
            n = max(n, 2)
        if cv and "dpp" in c.op and vw & c.rd:
            n = max(n, 2)
        if cv and (c.op.startswith("v_readfirstlane") or c.op.startswith("v_readlane")) and vw & c.rd:
            n = max(n, 1)
        if p.kind == "trans" and cv and c.kind != "trans" and vw & c.rd:
            n = max(n, 1)
        if "sdwa" in p.op and cv and vw & (c.rd | c.wr):
            n = max(n, 1)
        if sw & c.rd:
            if c.kind in ("vload", "vstore", "dma"):
                n = max(n, 5)
            elif cv:
                n = max(n, 4 if (c.op.startswith("v_readlane") or c.op.startswith("v_writelane")) else 2)
            elif c.kind in ("salu", "smem"):
                n = max(n, 1)
        if p.op.startswith("v_dot2") and vw & (c.rd | c.wr) and (cv or c.kind == "mfma" or c.kind in MEM_KINDS):
            same = c.op == p.op
            if not (same and not (vw & (c.rd - c.wr))):
                n = max(n, 3)
        if "exec" in p.wr:
            n = max(n, 5)
    if p.kind == "salu" and "m0" in p.wr and "m0" in c.rd and c.kind == "dma":
        n = max(n, 1)
    if p.kind == "vstore" and len(p.data) >= 3 and p.data & c.wr:
        n = max(n, 2)
    if p.kind == "mfma":
        big = {4: 8, 8: 12}[p.passes]
        if c.kind == "mfma":
            if p.wr & c.ab:
                n = max(n, big)
            if p.wr & c.srcc:
                if not (p.wr == c.srcc and p.passes == c.passes):
                    n = max(n, {4: 6, 8: 10}[p.passes])
            elif p.wr & c.wr:
                n = max(n, {4: 6, 8: 10}[p.passes])
        elif cv or c.kind in MEM_KINDS:
            if p.wr & (c.rd | c.wr):
                n = max(n, big)
            if p.srcc & c.wr:
                n = max(n, {4: 3, 8: 7}[p.passes])
    return n


def insert_nops(ins):
    out = []
    hist = []
    saved = None
    LOOK = 14
    for x in ins:
        if x.kind == "pseudo":
            if x.what == "alt_begin":
                saved = list(hist[-2 * LOOK:])
            elif x.what == "alt_else":
                hist = list(saved)
            continue
        if x.kind in ("label", "comment"):
            out.append(x)
            continue
        dist = 0
        pad = 0
        for p in reversed(hist):
            if dist >= LOOK:
                break
            if p.kind in ("label", "comment", "pseudo"):
                continue
            r = required(p, x)
            if r > dist:
                pad = max(pad, r - dist)
            dist += states(p)
        while pad > 0:
            k = min(pad, 16)
            out.append(Ins(f"s_nop {k - 1}"))
            hist.append(out[-1])
            pad -= k
        out.append(x)
        hist.append(x)
    return out


def finalize(ins):
    ins = insert_waits(ins)
    ins = insert_nops(ins)
    lines = []
    for x in ins:
        if x.kind == "label":
            lines.append(x.text.strip())
        elif x.kind == "pseudo":
            continue
        else:
            lines.append("    " + x.text.strip())
    return lines


def weave(main, fill, per_gap, start=0):
    out = []
    k = 0
    acc = 0.0
    for i, g in enumerate(main):
        out.extend(g)
        if i >= start:
            acc += per_gap
            while acc >= 1.0 - 1e-9 and k < len(fill):
                f = fill[k]
                out.extend(f if isinstance(f, list) else [f])
                k += 1
                acc -= 1.0
    while k < len(fill):
        f = fill[k]
        out.extend(f if isinstance(f, list) else [f])
        k += 1
    return out


def spread(main, streams):
    n = len(main)
    slots = [[] for _ in range(n)]
    for items, a, b in streams:
        b = min(b, n - 1)
        span = b - a + 1
        m = len(items)
        for k, it in enumerate(items):
            g = a + (k * span) // max(m, 1)
            slots[g].append(it)
    out = []
    for i, g in enumerate(main):
        out.extend(g)
        for it in slots[i]:
            out.extend(it if isinstance(it, list) else [it])
    return out


def groups(ins, n=1):
    out, cur, k = [], [], 0
    for x in ins:
        cur.append(x)
        if x.kind not in ("label", "comment", "pseudo"):
            k += 1
            if k == n:
                out.append(cur)
                cur, k = [], 0
    if cur:
        if out:
            out[-1].extend(cur)
        else:
            out.append(cur)
    return out
```

```python
import sys, os
sys.path.insert(0, os.path.dirname(os.path.abspath(__file__)))
from asmlib import *

NAME = "interleave_layers__linear_attn_block__dense_activation_silu__prompt"
KB = 1024

WS_EPOCH = 0
WS_XC = 0x1000
WS_DIAG = 0x20000
WS_KV = 0x100000
WS_G = 0x300000
G_STRIDE = 0x160000
G_H = 0
G_O = 8 * 112 * KB
G_X = G_O + 8 * 28 * KB
G_ST = G_X + 8 * 28 * KB
G_FX = G_ST + 8 * 7 * KB
G_FO = G_FX + 1024
G_FH = G_FO + 1024
G_END = G_FH + 2048
assert G_END <= G_STRIDE
WS_BYTES = WS_G + 8 * G_STRIDE

L_WK, L_WV, L_WQ, L_WO, L_S = 0, 28 * KB, 56 * KB, 84 * KB, 112 * KB
L_XST = 48 * KB
S_KVP, S_KVS = 0, 16 * KB
S_CS = 18 * KB
S_STAT, S_TR = 42 * KB, 44 * KB
LDS_BYTES = 160 * KB

SX, SQ, SO, S1, S2, SOUT, SWS, SG = ("s[8:11]", "s[12:15]", "s[16:19]", "s[20:23]", "s[24:27]", "s[28:31]",
                                     "s[32:35]", "s[36:39]")
sE, sg, sh, srh, sw, sfast, srq, scb, stb, sxs, slim = ("s56", "s57", "s58", "s59", "s60", "s61", "s62", "s63",
                                                        "s64", "s65", "s66")
sT0, sT1, sT2, sT3, sT4, sT5 = "s40", "s41", "s42", "s43", "s44", "s45"
sCnt, sNeed = "s46", "s47"
sONES, sLOG2E, sEPS6, sHI = "s48", "s49", "s50", "s51"
sM28 = "s[52:53]"
sMPAD = "s[54:55]"
sHB, sXB, sSTB = "s67", "s68", "s69"
STAMP0 = 80
sU = [f"s{70 + i}" for i in range(10)]
STCH = SOUT

vLane, vL16, vTrA, vTrB = "v0", "v1", "v2", "v3"
vCS1 = 4
vCSQ = 6
vS16 = "v12"
vT0, vT1, vT2 = "v13", "v14", "v15"


def V(n, k=4):
    return f"v[{n}:{n + k - 1}]" if k > 1 else f"v{n}"


def A(n, k=4):
    return f"a[{n}:{n + k - 1}]" if k > 1 else f"a{n}"


def w1reg(s, lo=0, k=4):
    return A(224 + 4 * s + lo, k) if s < 8 else V(176 + 4 * (s - 8) + lo, k)


def w2reg(j, ch, lo=0, k=4):
    return A(8 * j + 4 * ch + lo, k)


MFMA = "v_mfma_f32_32x32x16_bf16"


class Capture:
    def __init__(self, g):
        self.g = g

    def __enter__(self):
        self.saved = self.g.p.ins
        self.g.p.ins = []
        self.ins = self.g.p.ins
        return self

    def __exit__(self, *a):
        self.g.p.ins = self.saved


class Gen:
    def __init__(self, diag=False, force_slow=False, pad=0, part=0, **opt):
        self.p = Prog()
        self.diag = diag
        self.force_slow = force_slow
        self.pad = pad
        self.part = part
        self.opt = opt
        self.nstamp = 0
        self.seen = 0
        self.stamp_names = []
        self.pending = False
        self.tail = []

    def cap(self):
        return Capture(self)

    def stamp(self, name, op="s_memtime"):
        if not self.diag:
            return
        self.seen += 1
        if self.seen > 2 and not (18 * self.part <= self.seen - 3 < 18 * (self.part + 1)):
            return
        self.stamp_flush()
        assert STAMP0 + self.nstamp < 100, "too many stamps"
        self.p(f"{op} s[100:101]")
        self.stamp_names.append(name)
        self.nstamp += 1
        self.pending = True

    def stamp_flush(self):
        if self.diag and self.pending:
            self.p(f"s_mov_b32 s{STAMP0 + self.nstamp - 1}, s100")
            self.pending = False

    def publish(self, stores, tag="pub", always_sc1=False):
        p = self.p
        if always_sc1:
            for s in stores:
                p(s + (" sc1" if s.startswith("buffer_") else ""), tag)
            return
        ls, le = p.label("slow"), p.label("pub")
        p(f"s_cmp_eq_u32 {sfast}, 0")
        p(f"s_cbranch_scc1 {ls}")
        p.alt_begin()
        for s in stores:
            p(s, tag)
        p(f"s_branch {le}")
        p.alt_else()
        p(f"{ls}:")
        for s in stores:
            p(s + (" sc1" if s.startswith("buffer_") else ""), tag)
        p.alt_end()
        p(f"{le}:")

    def flag(self, soff, val, n=1, wait="pub", tmp=14, st=sT5):
        p = self.p
        p(f"s_add_u32 {st}, {sE}, {val}")
        p(f"v_mov_b32 v{tmp}, {st}")
        if n == 2:
            p(f"v_mov_b32 v{tmp + 1}, {st}")
        op = f"buffer_store_dword v{tmp}" if n == 1 else f"buffer_store_dwordx2 v[{tmp}:{tmp + 1}]"
        p.wait_vm(wait)
        self.publish(["s_mov_b64 exec, 1", f"{op}, {vL16}, {SG}, {soff} offen", "s_mov_b64 exec, -1"], "flag")

    def poll_load(self, vaddr, srd, soff, n, tmp):
        if n == 1:
            self.p(f"buffer_load_dword v{tmp}, {vaddr}, {srd}, {soff} offen sc1")
        else:
            self.p(f"buffer_load_dwordx2 v[{tmp}:{tmp + 1}], {vaddr}, {srd}, {soff} offen sc1")

    def poll_test(self, n, tmp, need):
        p = self.p
        p(f"v_subrev_u32 v{tmp}, {need}, v{tmp}")
        if n == 2:
            p(f"v_subrev_u32 v{tmp + 1}, {need}, v{tmp + 1}")
            p(f"v_or_b32 v{tmp}, v{tmp}, v{tmp + 1}")
        p(f"v_cmp_lt_u32 vcc, 31, v{tmp}")

    def spin(self, vaddr, srd, soff, n, tmp, need, done):
        p = self.p
        lp = p.label("poll")
        p(f"s_mov_b32 {sCnt}, {slim}")
        p(f"{lp}:")
        self.poll_load(vaddr, srd, soff, n, tmp)
        p("s_waitcnt vmcnt(0)")
        self.poll_test(n, tmp, need)
        p(f"s_cbranch_vccz {done}")
        p(f"s_sub_u32 {sCnt}, {sCnt}, 1")
        p(f"s_cmp_lg_u32 {sCnt}, 0")
        p(f"s_cbranch_scc1 {lp}")
        p(f"s_mov_b32 {slim}, 1")

    def poll(self, vaddr, srd, soff, need, n=1, tmp=14):
        p = self.p
        ld = p.label("polled")
        p(f"s_add_u32 {sNeed}, {sE}, {need}")
        self.spin(vaddr, srd, soff, n, tmp, sNeed, ld)
        p(f"{ld}:")

    def apoll_end(self, vaddr, srd, soff, need, n=1, tmp=14):
        p = self.p
        lo, lb = p.label("aspin"), p.label("aback")
        p(f"s_add_u32 {sNeed}, {sE}, {need}")
        self.poll_test(n, tmp, sNeed)
        p(f"s_cbranch_vccnz {lo}")
        p(f"{lb}:")
        with self.cap() as c:
            p(f"{lo}:")
            p("s_nop 4")
            self.spin(vaddr, srd, soff, n, tmp, sNeed, lb)
            p(f"s_branch {lb}")
        self.tail.extend(c.ins)

    def trread(self, dst_lo, dst_hi, vaddr, off, second=512):
        return [Ins(f"ds_read_b64_tr_b16 {dst_lo}, {vaddr} offset:{off}"),
                Ins(f"ds_read_b64_tr_b16 {dst_hi}, {vaddr} offset:{off + second}")]

    def transpose_block(self, reg, aw, ar):
        return [Ins(f"ds_write_b128 {aw}, {reg(0, 4)}"),
                Ins(f"ds_read_b64_tr_b16 {reg(0, 2)}, {ar}"),
                Ins(f"ds_read_b64_tr_b16 {reg(2, 2)}, {ar} offset:512")]

    def tr_addrs(self, aw, ar):
        p = self.p
        p(f"s_lshl_b32 {sT0}, {sw}, 10")
        p(f"s_add_u32 {sT0}, {sT0}, {L_S + S_TR}")
        p(f"v_add_u32 {aw}, {sT0}, {vL16}")
        p(f"v_add_u32 {ar}, {sT0}, {vTrA}")

    def both_halves(self, s, q, tmp):
        p = self.p
        p(f"v_permlane32_swap_b32 {s}, {q}")
        p(f"v_add_f32 {s}, {s}, {q}")

    def stats_finish(self, t, u, mean, var):
        p = self.p
        p(f"v_mov_b32 {u}, {t}")
        p(f"v_permlane32_swap_b32 {t}, {u}")
        p(f"v_mul_f32 {mean}, 0x3b124925, {t}")
        p(f"v_mul_f32 {var}, 0x3b124925, {u}")
        p(f"v_fma_f32 {var}, -{mean}, {mean}, {var}")
        p(f"v_max_f32 {var}, 0, {var}")
        p(f"v_add_f32 {var}, 0x3727c5ac, {var}")

    def split_words(self, x, w0, w1, t, neg, xside):
        p = self.p
        s = "-" if neg else ""
        p(f"v_cvt_pk_bf16_f32 {w0}, {s}{x}, {s}{x}")
        p(f"v_and_b32 {t}, {sHI}, {w0}")
        p(f"v_sub_f32 {t}, {s}{x}, {t}" if not neg else f"v_sub_f32_e64 {t}, -{x}, {t}")
        if xside:
            p(f"v_and_b32 {w1}, 0xffff, {w0}")
            p(f"v_cvt_pk_bf16_f32 {t}, {t}, {t}")
            p(f"v_and_or_b32 {w0}, {t}, {sHI}, {w1}")
        else:
            p(f"v_cvt_pk_bf16_f32 {w1}, {t}, 0")

    def prologue(self):
        p = self.p
        p("s_cmp_lt_u32 s2, 256")
        p("s_cbranch_scc1 L_start")
        p("s_endpgm")
        p("L_start:")
        p("s_load_dwordx4 s[40:43], s[0:1], 0")
        p("s_load_dwordx2 s[44:45], s[0:1], 16")
        p("s_load_dwordx4 s[48:51], s[0:1], 32")
        p("s_load_dwordx2 s[46:47], s[0:1], 48")
        p("s_load_dwordx2 s[52:53], s[0:1], 64")
        self.stamp("realtime", "s_memrealtime")
        if self.pad:
            p("s_memrealtime s[96:97]")
        p("s_getpc_b64 s[6:7]")
        p("L_pc:")
        p("v_lshrrev_b32 v13, 6, v0")
        p(f"v_and_b32 {vLane}, 63, v0")
        p(f"v_readfirstlane_b32 {sw}, v13")
        p(f"s_and_b32 {sg}, s2, 7")
        p(f"s_lshr_b32 s3, s2, 3")
        p(f"s_lshl_b32 s4, s3, 2")
        p(f"s_add_u32 s4, s4, {sw}")
        p(f"s_lshl_b32 s4, s4, 10")
        p(f"v_lshlrev_b32 v9, 7, {vLane}")
        p("v_add_u32 v13, s4, v9")
        p("v_min_u32 v13, L_codeend-L_pc-4, v13")
        p("s_mov_b64 exec, 0xff")
        p("global_load_dword v10, v13, s[6:7]")
        p("s_mov_b64 exec, -1")
        p(f"s_and_b32 {sh}, s3, 15")
        p(f"s_lshr_b32 {srh}, s3, 4")
        p(f"s_cmp_ge_u32 {sh}, 7")
        p(f"s_cselect_b32 s4, 1, 0")
        p(f"s_cselect_b32 s5, 7, 0")
        p(f"s_lshl_b32 {srq}, {srh}, 1")
        p(f"s_add_u32 {srq}, {srq}, s4")
        p(f"s_sub_u32 {scb}, {sh}, s5")
        p(f"s_lshl_b32 {stb}, {srh}, 2")
        p(f"s_and_b32 s4, {sw}, 1")
        p(f"s_lshl_b32 s4, s4, 1")
        p(f"s_lshr_b32 s5, {sw}, 1")
        p(f"s_or_b32 s4, s4, s5")
        p(f"s_add_u32 {sxs}, {stb}, s4")
        p(f"s_add_u32 {stb}, {stb}, {sw}")
        p(f"v_lshlrev_b32 {vL16}, 4, {vLane}")
        p(f"v_lshrrev_b32 v13, 3, {vLane}")
        p("v_mul_u32_u24 v14, 896, v13")
        p("v_lshrrev_b32 v13, 1, v13")
        p(f"v_and_b32 v15, 7, {vLane}")
        p("v_xor_b32 v13, v13, v15")
        p("v_lshl_add_u32 v16, v13, 4, v14")
        p("v_xor_b32 v13, 4, v13")
        p("v_lshl_add_u32 v17, v13, 4, v14")
        p(f"s_lshl_b32 {sU[0]}, {sg}, 3")
        p(f"s_add_u32 {sU[0]}, {sU[0]}, {stb}")
        p(f"s_mul_i32 {sU[0]}, {sU[0]}, {32 * 896}")
        p(f"s_mul_i32 {sU[1]}, {sw}, {28 * KB}")
        p(f"s_add_u32 {sU[1]}, {sU[1]}, {L_XST}")
        p(f"s_cmp_ge_u32 {sh}, 14")
        p(f"s_cselect_b32 {sU[2]}, 7, 0")
        p(f"s_sub_u32 {sU[2]}, {scb}, {sU[2]}")
        p("s_waitcnt lgkmcnt(0)")
        self.stamp("start")
        p("s_mov_b32 s8, s40\ns_mov_b32 s9, s41")
        p(f"s_mov_b32 s10, {2048 * 896}\ns_mov_b32 s11, 0x00020000")
        p(f"s_load_dword {sE}, s[52:53], {WS_EPOCH}")
        for j in range(7):
            p(f"s_lshl_b32 {sU[3]}, {sU[2]}, 7")
            p(f"s_add_u32 {sU[3]}, {sU[3]}, {sU[0]}")
            p(f"s_lshl_b32 {sU[4]}, {sU[2]}, 12")
            p(f"s_add_u32 {sU[4]}, {sU[4]}, {sU[1]}")
            for b in range(4):
                p(f"s_add_u32 m0, {sU[4]}, {b * KB}")
                p(f"s_add_u32 {sU[5]}, {sU[3]}, {b * 8 * 896}")
                p(f"buffer_load_dwordx4 v{16 + (b & 1)}, {SX}, {sU[5]} offen lds", "x")
            if j < 6:
                p(f"s_add_u32 {sU[2]}, {sU[2]}, 1")
                p(f"s_cmp_eq_u32 {sU[2]}, 7")
                p(f"s_cselect_b32 {sU[2]}, 0, {sU[2]}")
            if j == 1:
                self.prologue2()

    def prologue2(self):
        p = self.p
        p(f"s_mul_i32 {sHB}, {stb}, {28 * KB}")
        p(f"s_add_u32 {sHB}, {sHB}, {G_O}")
        p(f"s_mul_i32 {sXB}, {sxs}, {28 * KB}")
        p(f"s_add_u32 {sXB}, {sXB}, {G_X}")
        p(f"s_mul_i32 {sSTB}, {stb}, {7 * KB}")
        p(f"s_add_u32 {sSTB}, {sSTB}, {G_ST}")
        p(f"s_mov_b32 {slim}, 40000")
        p(f"v_add_u32 {vS16}, {L_S}, {vL16}")
        p(f"v_and_b32 v13, 3, {vLane}")
        p("v_lshlrev_b32 v13, 3, v13")
        p(f"v_bfe_u32 v14, {vLane}, 4, 1")
        p("v_lshl_add_u32 v13, v14, 5, v13")
        p(f"v_bfe_u32 v14, {vLane}, 2, 2")
        p("v_lshl_add_u32 v13, v14, 6, v13")
        p(f"v_lshrrev_b32 v14, 5, {vLane}")
        p(f"v_lshl_add_u32 {vTrA}, v14, 8, v13")
        p(f"v_add_u32 {vTrB}, {L_WQ}, {vTrA}")
        p("v_lshl_add_u32 v62, v14, 9, v13")
        p(f"v_add_u32 v63, {L_WQ}, v62")
        p(f"v_lshrrev_b32 v13, 2, {vLane}")
        p(f"v_and_b32 v15, 3, {vLane}")
        p("v_lshlrev_b32 v15, 4, v15")
        p("v_mul_u32_u24 v14, 2688, v13")
        p("v_add_u32 v6, v14, v15")
        p("v_mul_u32_u24 v14, 896, v13")
        p("v_add_u32 v7, v14, v15")
        p("v_mul_u32_u24 v14, 3584, v13")
        p("v_add_u32 v8, v14, v15")
        p(f"v_and_b32 v13, 31, {vLane}")
        p("v_lshrrev_b32 v14, 3, v13")
        p("v_lshlrev_b32 v14, 10, v14")
        p("v_and_b32 v15, 7, v13")
        p("v_lshl_add_u32 v14, v15, 7, v14")
        p(f"v_add_u32 v14, {sU[1]}, v14")
        p("v_bfe_u32 v13, v13, 1, 3")
        p(f"v_lshrrev_b32 v15, 5, {vLane}")
        p("v_xor_b32 v13, v13, v15")
        for q in range(4):
            p(f"v_xor_b32 v15, {2 * q}, v13")
            p(f"v_lshl_add_u32 v{20 + q}, v15, 4, v14")
        p(f"s_cmp_lt_u32 {sh}, 14")
        p(f"s_cselect_b32 s18, {448 * 448 * 2}, 0")
        p(f"s_cselect_b32 s22, {448 * 1792 * 2}, 0")
        p(f"s_cselect_b32 s26, {448 * 1792 * 2}, 0")
        for base, src, size in ((12, 42, 448 * 2688), (16, 44, None), (20, 48, None), (24, 50, None),
                                (32, 52, WS_BYTES)):
            p(f"s_mov_b32 s{base}, s{src}")
            p(f"s_mov_b32 s{base + 1}, s{src + 1}")
            if size is not None:
                p(f"s_mov_b32 s{base + 2}, {size}")
            p(f"s_mov_b32 s{base + 3}, 0x00020000")
        p(f"s_mul_i32 s4, {sg}, {G_STRIDE}")
        p(f"s_add_u32 s4, s4, {WS_G}")
        p("s_add_u32 s36, s52, s4")
        p("s_addc_u32 s37, s53, 0")
        p(f"s_mov_b32 s38, {G_STRIDE}")
        p("s_mov_b32 s39, 0x00020000")
        p(f"s_mov_b32 s28, s46\ns_mov_b32 s29, s47\ns_mov_b32 s30, {2048 * 896}\ns_mov_b32 s31, 0x00020000")
        p(f"s_mul_i32 s4, {sh}, 56")
        p(f"s_mul_i32 s5, {sw}, {16 * 2688}")
        p("s_add_u32 s4, s4, s5")
        p(f"s_lshl_b32 s5, {sw}, 10")
        p(f"s_lshl_b32 {sU[6]}, {sg}, 1")
        p(f"s_add_u32 {sU[6]}, {sU[6]}, {srh}")
        p(f"s_mul_i32 {sU[7]}, {sU[6]}, 37")
        p(f"s_lshr_b32 {sU[7]}, {sU[7]}, 8")
        p(f"s_mul_i32 {sU[7]}, {sU[7]}, 7")
        p(f"s_sub_u32 {sU[6]}, {sU[6]}, {sU[7]}")

    def consts(self):
        p = self.p
        p(f"s_mov_b32 {sONES}, 0x3f803f80")
        p(f"s_mov_b32 {sLOG2E}, 0x3fb8aa3b")
        p(f"s_mov_b32 {sEPS6}, 0x358637bd")
        p(f"s_mov_b32 {sHI}, 0xffff0000")
        p("s_mov_b32 s52, 0x10000000")
        p("s_mov_b32 s53, 0x10000000")
        p("s_mov_b32 s54, 0")
        p("s_mov_b32 s55, -1")

    def wqkv_item(self, m, lbase, tag):
        p = self.p
        with self.cap() as c:
            p(f"s_lshl_b32 {sU[7]}, {sU[6]}, 12")
            p(f"s_add_u32 {sU[7]}, {sU[7]}, s5")
            p(f"s_add_u32 m0, {sU[7]}, {lbase}")
            p(f"s_mul_i32 {sU[7]}, {sU[6]}, {64 * 2688}")
            p(f"s_add_u32 {sU[7]}, {sU[7]}, s4")
            p(f"buffer_load_dwordx4 v6, {SQ}, {sU[7]} offen offset:0 lds" if m == 0 else
              f"s_add_u32 {sU[7]}, {sU[7]}, {896 * m}\nbuffer_load_dwordx4 v6, {SQ}, {sU[7]} offen lds", tag)
            p(f"s_add_u32 {sU[6]}, {sU[6]}, 1")
            p(f"s_cmp_eq_u32 {sU[6]}, 7")
            p(f"s_cselect_b32 {sU[6]}, 0, {sU[6]}")
        return c.ins

    def wo_items(self):
        p = self.p
        items = []
        for u in range(7):
            with self.cap() as c:
                if u == 0:
                    p(f"s_lshl_b32 {sU[8]}, {sh}, 6")
                    p(f"s_mul_i32 {sU[7]}, {sw}, {16 * 896}")
                    p(f"s_add_u32 {sU[8]}, {sU[8]}, {sU[7]}")
                p(f"s_add_u32 m0, s5, {L_WO + 4 * u * KB}")
                p(f"s_add_u32 {sU[7]}, {sU[8]}, {64 * u * 896}")
                p(f"buffer_load_dwordx4 v7, {SO}, {sU[7]} offen lds", "wo")
            items.append(c.ins)
        return items

    def w1_items(self):
        p = self.p
        items = []
        for s in range(28):
            with self.cap() as c:
                if s == 0:
                    p(f"s_lshl_b32 {sU[9]}, {sh}, 8")
                    p(f"s_lshl_b32 {sU[7]}, {sw}, 6")
                    p(f"s_add_u32 {sU[9]}, {sU[9]}, {sU[7]}")
                p(f"s_add_u32 {sU[7]}, {sU[9]}, {16 * s * 3584}")
                p(f"buffer_load_dwordx4 {w1reg(s)}, v8, {S1}, {sU[7]} offen", "w1")
            items.append(c.ins)
        return items

    def mall_items(self):
        p = self.p
        items = []
        with self.cap() as c:
            p(f"s_mul_i32 {sU[8]}, {srh}, 14")
            p(f"s_add_u32 {sU[8]}, {sU[8]}, {sh}")
            p(f"s_lshl_b32 {sU[8]}, {sU[8]}, 3")
            p(f"s_add_u32 {sU[8]}, {sU[8]}, {sg}")
            p(f"s_lshl_b32 {sU[8]}, {sU[8]}, 2")
            p(f"s_add_u32 {sU[8]}, {sU[8]}, {sw}")
            p(f"s_mul_i32 {sU[7]}, {sU[8]}, {14 * 128}")
            p("s_mov_b64 exec, 0x3fff")
            p(f"buffer_load_dword v10, v9, {S1}, {sU[7]} offen", "touch")
            p(f"buffer_load_dword v10, v9, {S2}, {sU[7]} offen", "touch")
            p(f"s_mul_i32 {sU[7]}, {sU[8]}, {7 * 64}")
            p("s_mov_b64 exec, 0xf")
            p(f"buffer_load_dword v10, v9, {SO}, {sU[7]} offen", "touch")
            p("s_mov_b64 exec, -1")
        items.append(c.ins)
        return items

    def touch_items(self, base, lines, per=16):
        p = self.p
        with self.cap() as c:
            p(f"s_mul_i32 {sU[7]}, {srh}, {per}")
            p(f"s_add_u32 {sU[7]}, {sU[7]}, {sh}")
            p(f"s_lshl_b32 {sU[7]}, {sU[7]}, 2")
            p(f"s_add_u32 {sU[7]}, {sU[7]}, {sw}")
            p(f"s_mul_i32 {sU[7]}, {sU[7]}, {lines * 128}")
            p(f"s_add_u32 {sU[7]}, {sU[7]}, {base}")
            if lines <= 32:
                p("s_mov_b32 exec_hi, 0")
            elif lines < 64:
                p(f"s_mov_b32 exec_hi, {(1 << (lines - 32)) - 1}")
            p(f"buffer_load_dword v10, v9, {SG}, {sU[7]} offen", "touch")
            p("s_mov_b32 exec_hi, -1")
        return [c.ins]

    def startup(self):
        p = self.p
        for u in range(2):
            p.add(self.wqkv_item(1, L_WK, "wk"))
        p("s_waitcnt lgkmcnt(0)")
        self.consts()
        p(f"s_getreg_b32 {sfast}, hwreg(HW_REG_XCC_ID, 0, 4)")
        p(f"s_add_u32 {sT5}, {sE}, {sfast}")
        p(f"s_add_u32 {sT5}, {sT5}, 1")
        p(f"v_mov_b32 v14, {sT5}")
        p(f"s_lshl_b32 {sT2}, {sg}, 5")
        p(f"s_add_u32 {sT2}, {sT2}, s3")
        p(f"s_lshl_b32 {sT2}, {sT2}, 2")
        p(f"s_add_u32 {sT2}, {sT2}, {WS_XC}")
        p("s_mov_b64 exec, 1")
        p(f"buffer_store_dword v14, {vL16}, {SWS}, {sT2} offen sc1", "xc")
        p("s_mov_b64 exec, -1")
        p.wait_vm("x")
        self.stamp("x_landed")
        for s in range(28):
            p(f"ds_read_b128 {V(64 + 4 * s)}, v{20 + (s & 3)} offset:{(s >> 2) * 4096}")
        for r in range(24, 28):
            p(f"v_mov_b32 v{r}, 0")
        p.add(self.wqkv_item(1, L_WK, "wk"))
        p.wait_ds()
        p("s_barrier")
        with self.cap() as c:
            for i in range(112):
                p(f"v_dot2c_f32_bf16 v{24 + (i & 1)}, {sONES}, v{64 + i}")
                p(f"v_dot2c_f32_bf16 v{26 + (i & 1)}, v{64 + i}, v{64 + i}")
            p("v_add_f32 v24, v24, v25")
            p("v_add_f32 v26, v26, v27")
            self.both_halves("v24", "v26", None)
            self.stats_finish("v24", "v25", "v28", "v30")
            p("v_rsq_f32 v30, v30")
            p("v_mul_f32_e64 v28, -v28, v30")
            p("v_mov_b32 v31, v30")
            p("v_mov_b32 v29, v28")
            for i in range(0, 112, 2):
                t = 32 + 4 * ((i >> 1) & 1)
                for k in range(2):
                    p(f"v_lshlrev_b32 v{t + 2 * k}, 16, v{64 + i + k}")
                    p(f"v_and_b32 v{t + 2 * k + 1}, {sHI}, v{64 + i + k}")
                for k in range(2):
                    p(f"v_pk_fma_f32 {V(t + 2 * k, 2)}, {V(t + 2 * k, 2)}, v[30:31], v[28:29]")
                for k in range(2):
                    p(f"v_cvt_pk_bf16_f32 v{64 + i + k}, v{t + 2 * k}, v{t + 2 * k + 1}")
        main = groups(c.ins, 4)
        items = [self.wqkv_item(1, L_WK, "wk") for u in range(4)] + [self.wqkv_item(2, L_WV, "wv") for u in range(7)]
        with self.cap() as c2:
            p(f"v_and_b32 v47, 31, {vLane}")
            p("v_lshlrev_b32 v47, 2, v47")
            p(f"s_lshl_b32 {sT2}, {sg}, 7")
            p(f"s_add_u32 {sT2}, {sT2}, {WS_XC}")
            self.poll_load("v47", SWS, sT2, 1, 46)
        items.insert(9, c2.ins)
        if self.opt.get("touch", 1) == 2:
            items += self.touch_items(G_O, 32)
        if self.opt.get("mall", 1):
            items += self.mall_items()
        n = len(main)
        p.add(spread(main, [(items, 0, int(n * self.opt.get("lnspan", 90) / 100))]))
        self.stamp("ln_done")
        self.apoll_end("v47", SWS, sT2, 1, 1, 46)
        p(f"v_cmp_ne_u32 vcc, {sfast}, v46")
        p("s_cmp_eq_u64 vcc, 0")
        p(f"s_cselect_b32 {sfast}, {0 if self.force_slow else 1}, 0")
        p.wait_vm(["wk", "wv"])
        p("s_barrier")
        self.stamp("wkv_landed")

    def phi(self, acc, out, tmp, scale=None):
        p = self.p
        for r0 in range(0, 16, 2):
            rr = (r0, r0 + 1)
            a = {r: f"v{acc + r}" for r in rr}
            t = {r: f"v{tmp + (r & 3)}" for r in rr}
            for r in rr:
                if scale is None:
                    p(f"v_add_f32 {a[r]}, {sEPS6}, {a[r]}")
                else:
                    p(f"v_fma_f32 {a[r]}, {a[r]}, {scale(r)}, {sEPS6}")
            for r in rr:
                p(f"v_mul_f32 {t[r]}, {sLOG2E}, {a[r]}")
            for r in rr:
                p(f"v_exp_f32 {t[r]}, {t[r]} clamp")
            for r in rr:
                p(f"v_max_f32 {a[r]}, {sEPS6}, {a[r]}")
            for r in rr:
                p(f"v_add_f32 {a[r]}, {a[r]}, {t[r]}")
            p(f"v_cvt_pk_bf16_f32 v{out + (r0 >> 1)}, {a[r0]}, {a[r0 + 1]}")

    def kv_addrs(self, layer, a0, a1):
        p = self.p
        p(f"s_lshl_b32 {sT0}, {sw}, 10")
        p(f"v_add_u32 {a0}, {sT0}, {vS16}")
        p(f"s_lshl_b32 {sT0}, {sw}, 12")
        p(f"v_add_u32 {a1}, {sT0}, {vS16}")
        p(f"s_lshl_b32 {sT0}, {sh}, 16")
        p(f"s_lshl_b32 {sT1}, {sw}, 10")
        p(f"s_add_u32 {sT0}, {sT0}, {sT1}")
        p(f"s_add_u32 s6, {sT0}, {WS_KV + layer * 0x100000}")
        p(f"s_lshl_b32 {sT1}, {sg}, 1")
        p(f"s_add_u32 {sT1}, {sT1}, {srh}")
        p(f"s_lshl_b32 {sT1}, {sT1}, 12")
        p(f"s_add_u32 s2, {sT1}, s6")
        p(f"s_add_u32 s7, {sE}, {1 + layer}")

    def kv_publish(self, kvacc, a0, a1):
        p = self.p
        p(f"{MFMA} {kvacc(0, 16)}, {V(16)}, {V(32)}, 0")
        p(f"{MFMA} {kvacc(0, 16)}, {V(20)}, {V(36)}, {kvacc(0, 16)}")
        p("v_mov_b32 v29, s7")
        p("v_mov_b32 v31, s7")
        for q in range(4):
            p(f"ds_write_b128 {a0}, {kvacc(4 * q, 4)} offset:{S_KVP + q * 4096}")
        p.wait_ds()
        p("s_barrier")
        for u in range(4):
            p(f"ds_read_b128 {V(32 + 4 * u)}, {a1} offset:{S_KVP + u * 1024}")
        for r in (0, 2):
            p(f"v_pk_add_f32 {V(32 + r, 2)}, {V(32 + r, 2)}, {V(36 + r, 2)}")
        for r in (0, 2):
            p(f"v_pk_add_f32 {V(40 + r, 2)}, {V(40 + r, 2)}, {V(44 + r, 2)}")
        for r in (0, 2):
            p(f"v_pk_add_f32 {V(32 + r, 2)}, {V(32 + r, 2)}, {V(40 + r, 2)}")
        p("v_cvt_pk_bf16_f32 v28, v32, v33")
        p("v_cvt_pk_bf16_f32 v30, v34, v35")
        p(f"buffer_store_dwordx4 v[28:31], {vL16}, {SWS}, s2 offen sc1", "kvpub")

    def o_addrs(self):
        p = self.p
        p(f"s_mul_i32 {sT0}, {sh}, 7")
        p(f"v_lshrrev_b32 v16, 5, {vLane}")
        p(f"v_add_u32 v16, {sT0}, v16")
        p(f"v_and_b32 v17, 31, {vLane}")
        p("v_lshlrev_b32 v17, 4, v17")
        p("v_and_b32 v18, 1, v16")
        p("v_lshl_add_u32 v17, v18, 9, v17")
        p("v_lshrrev_b32 v16, 1, v16")
        for j in range(4):
            p(f"v_add_u32 v18, {j}, v16")
            p("v_and_b32 v19, 1, v18")
            p("v_lshrrev_b32 v18, 1, v18")
            p("v_lshl_add_u32 v18, v18, 10, v17")
            p(f"v_lshl_add_u32 v{56 + j}, v19, 3, v18")
        p(f"s_lshr_b32 {sT0}, {sw}, 1")
        p(f"s_lshl_b32 {sT0}, {sT0}, 10")
        p(f"s_and_b32 {sT1}, {sw}, 1")
        p(f"s_lshl_b32 {sT1}, {sT1}, 3")
        p(f"s_add_u32 {sT0}, {sT0}, {sT1}")
        p(f"v_add_u32 v60, {sT0}, {vS16}")
        p(f"s_lshl_b32 {sT0}, {stb}, 7")
        p(f"s_lshl_b32 {sT1}, {sh}, 2")
        p(f"s_add_u32 {sT0}, {sT0}, {sT1}")
        p(f"s_add_u32 s3, {sT0}, {G_FO}")

    def kv_gather_o(self, layer, G, shadow=None):
        p = self.p

        def loads():
            for u in range(16):
                p(f"s_add_u32 {sT5}, s6, {u * 4096}")
                p(f"buffer_load_dwordx4 {V(G + 4 * u)}, {vL16}, {SWS}, {sT5} offen sc1")

        def test():
            for u in range(16):
                p(f"v_xor_b32 v{G + 4 * u + 1}, s7, v{G + 4 * u + 1}")
                p(f"v_xor_b32 v{G + 4 * u + 3}, s7, v{G + 4 * u + 3}")
                if u == 0:
                    p(f"v_or_b32 v16, v{G + 1}, v{G + 3}")
                else:
                    p(f"v_or3_b32 v16, v16, v{G + 4 * u + 1}, v{G + 4 * u + 3}")
            p("v_cmp_ne_u32 vcc, 0, v16")
        loads()
        if shadow:
            shadow()
        self.o_addrs()
        lo, lb, lp = p.label("kvspin"), p.label("kvback"), p.label("kvloop")
        test()
        p(f"s_cbranch_vccnz {lo}")
        p(f"{lb}:")
        with self.cap() as c:
            p(f"{lo}:")
            p(f"s_mov_b32 {sCnt}, {slim}")
            p(f"{lp}:")
            loads()
            p("s_waitcnt vmcnt(0)")
            test()
            p(f"s_cbranch_vccz {lb}")
            p(f"s_sub_u32 {sCnt}, {sCnt}, 1")
            p(f"s_cmp_lg_u32 {sCnt}, 0")
            p(f"s_cbranch_scc1 {lp}")
            p(f"s_mov_b32 {slim}, 1")
            p(f"s_branch {lb}")
        self.tail.extend(c.ins)
        self.stamp(f"kv_seen{layer}")
        for u in range(16):
            for k in range(2):
                src = f"v{G + 4 * u + 2 * k}"
                if u == 0:
                    p(f"v_lshlrev_b32 v{16 + 2 * k}, 16, {src}")
                    p(f"v_and_b32 v{17 + 2 * k}, {sHI}, {src}")
                else:
                    t = 20 + 2 * k
                    p(f"v_lshlrev_b32 v{t}, 16, {src}")
                    p(f"v_and_b32 v{t + 1}, {sHI}, {src}")
                    p(f"v_pk_add_f32 {V(16 + 2 * k, 2)}, {V(16 + 2 * k, 2)}, {V(t, 2)}")
        p("v_cvt_pk_bf16_f32 v20, v16, v17")
        p("v_cvt_pk_bf16_f32 v21, v18, v19")
        p(f"ds_write_b64 v60, v[20:21] offset:{S_KVS}")
        p.wait_ds()
        p("s_barrier")
        p(f"ds_read_b128 {V(24)}, {vS16} offset:{S_KVS}")
        p(f"ds_read_b128 {V(28)}, {vS16} offset:{S_KVS + 1024}")
        p(f"{MFMA} {V(32, 16)}, {V(24)}, {V(48)}, 0")
        p(f"{MFMA} {V(32, 16)}, {V(28)}, {V(52)}, {V(32, 16)}")
        p("v_mov_b32 v16, v44")
        p("v_mov_b32 v17, v44")
        p("v_permlane32_swap_b32 v16, v17")
        p(f"v_add_f32 v16, {sEPS6}, v17")
        p("v_rcp_f32 v16, v16")
        for r in range(0, 16, 2):
            p(f"v_pk_mul_f32 {V(32 + r, 2)}, {V(32 + r, 2)}, v[16:17] op_sel_hi:[1,0]")
        for r in range(8):
            p(f"v_cvt_pk_bf16_f32 v{20 + r}, v{32 + 2 * r}, v{33 + 2 * r}")
        st = [f"buffer_store_dwordx2 {V(20 + 2 * j, 2)}, v{56 + j}, {SG}, {sHB} offen" for j in range(3)]
        st += ["s_mov_b32 exec_hi, 0", f"buffer_store_dwordx2 {V(26, 2)}, v59, {SG}, {sHB} offen",
               "s_mov_b64 exec, -1"]
        self.publish(st)
        self.flag("s3", 1 + layer)
        self.stamp(f"o_pub{layer}")

    def qkv0(self):
        p = self.p
        rd = []
        for s in range(28):
            f = (s % 3) * 8
            rd.append((self.trread(A(f, 2), A(f + 2, 2), "v62", L_WK + s * KB, 256),
                       self.trread(A(f + 4, 2), A(f + 6, 2), "v62", L_WV + s * KB, 256)))
        p.add(rd[0][0] + rd[0][1] + rd[1][0] + rd[1][1])
        main = []
        for s in range(28):
            f = (s % 3) * 8
            for k in range(2):
                acc = V(16 + 16 * k, 16)
                g = [Ins(f"{MFMA} {acc}, {V(64 + 4 * s)}, {A(f + 4 * k)}, {acc if s else 0}")]
                if s + 2 < 28:
                    g += rd[s + 2][k]
                main.append(g)
        with self.cap() as c:
            self.kv_addrs(0, "v60", "v61")
        items = [self.wqkv_item(0, L_WQ, "wq") for u in range(7)]
        p.add(spread(main, [(items, 0, 50), (groups(c.ins), 20, 50)]))
        self.stamp("kv_gemm0")
        with self.cap() as c:
            self.phi(16, 16, 48)
            p(f"v_mov_b32 v48, {sONES}")
            for r in range(8):
                p(f"v_cvt_pk_bf16_f32 v{32 + r}, v{32 + 2 * r}, v{33 + 2 * r}")
            for r in range(8):
                p(f"v_cndmask_b32 v{32 + r}, v{32 + r}, v48, {sM28}")
        p.add(c.ins)
        self.kv_publish(lambda lo, k: A(24 + lo, k), "v60", "v61")
        self.stamp("kv_pub0")
        p("v_mov_b32 v13, v63")
        p.wait_vm("wq")
        p("s_barrier")
        rd = [self.trread(A((s % 4) * 4, 2), A((s % 4) * 4 + 2, 2), "v13", s * KB, 256) for s in range(28)]
        p.add(rd[0] + rd[1] + rd[2])
        main = []
        for s in range(28):
            g = [Ins(f"{MFMA} {V(48, 16)}, {A((s % 4) * 4)}, {V(64 + 4 * s)}, {V(48, 16) if s else 0}")]
            if s + 3 < 28:
                g += rd[s + 3]
            main.append(g)
        with self.cap() as c:
            self.phi(48, 48, 16)
            p(f"v_cndmask_b32 v54, v54, 0, {sMPAD}")
            p(f"v_cndmask_b32 v55, v55, 0, {sMPAD}")
        main += groups(c.ins, 6)
        self.w1 = self.w1_items()
        n1 = self.opt.get("w1early", 14)
        touch = self.touch_items(G_O, 32) if self.opt.get("touch", 1) == 1 else []
        items = touch + self.wo_items() + self.w1[:n1]
        self.w1 = self.w1[n1:]
        p.add(spread(main, [(items, 0, len(main) - 1)]))
        self.stamp("q_done0")

    def colsum_qkv_items(self):
        p = self.p
        items = []
        with self.cap() as c:
            p(f"s_min_u32 {sU[0]}, {sw}, 2")
            p(f"s_mul_i32 {sU[0]}, {sU[0]}, {28 * KB}")
            p(f"v_add_u32 v60, {sU[0]}, {vTrA}")
            p.add(self.trread(V(40, 2), V(42, 2), "v60", 0))
        items.append(c.ins)
        for s in range(28):
            f = 40 + (s % 2) * 4
            g = []
            if s + 1 < 28:
                f2 = 40 + ((s + 1) % 2) * 4
                g += self.trread(V(f2, 2), V(f2 + 2, 2), "v60", (s + 1) * KB)
            g.append(Ins(f"{MFMA} {A(0, 16)}, {self.ones}, {V(f)}, {A(0, 16) if s else 0}"))
            items.append(g)
        with self.cap() as c:
            p("v_accvgpr_read_b32 v40, a0")
            self.split_words("v40", "v42", "v43", "v41", False, False)
            p(f"v_cndmask_b32 v42, v42, 0, {sMPAD}")
            p(f"v_cndmask_b32 v43, v43, 0, {sMPAD}")
            p(f"s_lshl_b32 {sU[0]}, {sw}, 9")
            p(f"v_lshlrev_b32 v60, 3, {vLane}")
            p(f"v_add_u32 v60, {L_S + S_STAT}, v60")
            p(f"v_add_u32 v61, {sU[0]}, v60")
            p("ds_write_b64 v61, v[42:43]")
        items.append(c.ins)
        return items

    def colsum_qkv_fetch(self):
        p = self.p
        p(f"v_lshlrev_b32 v13, 3, {vLane}")
        p(f"v_add_u32 v13, {L_S + S_STAT}, v13")
        p(f"ds_read_b64 {V(vCSQ + 2, 2)}, v13")
        p(f"ds_read_b64 {V(vCSQ + 4, 2)}, v13 offset:512")
        p(f"ds_read_b64 {V(vCSQ, 2)}, v13 offset:1024")

    def colsum_w1_items(self):
        p = self.p
        items = [[Ins(f"{MFMA} {A(16, 16)}, {self.ones}, {w1reg(s)}, {A(16, 16) if s else 0}")] for s in range(28)]
        with self.cap() as c:
            p("v_accvgpr_read_b32 v62, a16")
            self.split_words("v62", f"v{vCS1}", f"v{vCS1 + 1}", "v63", False, False)
            p(f"v_cndmask_b32 v{vCS1}, v{vCS1}, 0, {sMPAD}")
            p(f"v_cndmask_b32 v{vCS1 + 1}, v{vCS1 + 1}, 0, {sMPAD}")
        items.append(c.ins)
        return items

    def make_ones(self):
        p = self.p
        p(f"v_mov_b32 v15, {sONES}")
        for r in range(4):
            p(f"v_accvgpr_write_b32 a{32 + r}, v15")
        self.ones = A(32)

    def qkv1(self):
        p = self.p
        p(f"v_min_u32 v13, 27, {vLane}")
        p("v_lshlrev_b32 v13, 2, v13")
        p(f"s_lshl_b32 {sT0}, {stb}, 7")
        p(f"s_add_u32 {sT0}, {sT0}, {G_FX}")
        WF = [152, 156, 160, 164, 168, 172]

        def wf(s, k):
            r = WF[3 * (s % 2) + k]
            if k == 2:
                return self.trread(V(r, 2), V(r + 2, 2), vTrB, s * KB)
            return self.trread(V(r, 2), V(r + 2, 2), vTrA, (L_WK, L_WV)[k] + s * KB)
        p.add(wf(0, 0) + wf(0, 1) + wf(0, 2))
        self.poll("v13", SG, sT0, 2)
        self.stamp("x2_seen")
        RING, NR = 96, 14

        def ld(s):
            q = sub()
            if s % 4 == 0:
                q(f"s_add_u32 s4, {sXB}, {s * KB}")
            q(f"buffer_load_dwordx4 {V(RING + 4 * (s % NR))}, {vL16}, {SG}, s4 offen offset:{(s % 4) * KB} sc1")
            return q.ins
        LEAD = self.opt.get("lead", 6)
        for s in range(LEAD):
            p.add(ld(s))
        stl = []
        for u in range(7):
            with self.cap() as c:
                if u % 4 == 0:
                    p(f"s_add_u32 {sT5}, {sSTB}, {u * KB}")
                p(f"buffer_load_dwordx4 {V(64 + 4 * u)}, {vL16}, {SG}, {sT5} offen offset:{(u % 4) * KB} sc1")
            stl.append(c.ins)
        with self.cap() as st:
            for i in range(1, 28):
                p(f"v_add_f32 v{64 + (i & 1)}, v{64 + (i & 1)}, v{64 + i}" if i > 1 else "v_nop")
            p("v_add_f32 v64, v64, v65")
            self.stats_finish("v64", "v65", "v66", "v67")
            p("v_rsq_f32 v88, v67")
            self.split_words("v66", "v92", "v93", "v65", True, True)
            p("v_mov_b32 v94, 0")
            p("v_mov_b32 v95, 0")
            p("v_cvt_pk_bf16_f32 v80, v88, v88")
            p(f"v_and_b32 v64, {sHI}, v80")
            p("v_sub_f32 v64, v88, v64")
            p("v_cvt_pk_bf16_f32 v81, v64, v64")
            p(f"v_and_b32 v65, {sHI}, v81")
            p("v_sub_f32 v65, v64, v65")
            p("v_and_b32 v80, 0xffff, v80")
            p(f"v_and_or_b32 v80, v81, {sHI}, v80")
            p("v_cvt_pk_bf16_f32 v81, v65, 0")
            p("v_mov_b32 v82, 0")
            p("v_mov_b32 v83, 0")
            p(f"v_mov_b32 v84, {sONES}")
            p(f"v_cndmask_b32 v84, v84, 0, {sMPAD}")
            p("v_mov_b32 v85, v84")
            p("v_mov_b32 v86, 0")
            p("v_mov_b32 v87, 0")
            p(f"{MFMA} {V(64, 16)}, {V(80)}, {V(84)}, 0")
            self.kv_addrs(1, "v89", "v90")
            for m, dst in ((1, 80), (2, 84)):
                p(f"v_mov_b32 v{dst}, v{vCSQ + 2 * m}")
                p(f"v_mov_b32 v{dst + 1}, v{vCSQ + 2 * m + 1}")
        main = []
        for s in range(28):
            o = 3 * (s % 2)
            a = V(RING + 4 * (s % NR))
            nk = 3 if s < NR else 2
            nk2 = 3 if s + 1 < NR else 2
            for k in range(nk):
                acc = V(16 + 16 * k, 16)
                c = acc if s else 0
                g = [Ins(f"{MFMA} {acc}, {a}, {V(WF[o + k])}, {c}" if k < 2 else f"{MFMA} {acc}, {V(WF[o + k])}, {a}, {c}")]
                if s + 1 < 28 and k < nk2:
                    g += wf(s + 1, k)
                main.append(g)
        seq = [ld(s) for s in range(LEAD, 14)] + stl + [ld(s) for s in range(14, 28)]
        slots = []
        gpos = 0
        for i, it in enumerate(seq):
            s = i + LEAD - 7
            if s >= 14:
                gpos = max(gpos, 3 * (s - 14) + 2)
            slots.append(([it], gpos, gpos))
            gpos += 2
        p.add(spread(main, slots + [(groups(st.ins), 40, len(main) - 2)]))
        p(f"{MFMA} {V(16, 16)}, {V(92)}, {V(80)}, {V(16, 16)}")
        p(f"{MFMA} {V(32, 16)}, {V(92)}, {V(84)}, {V(32, 16)}")
        self.stamp("kv_gemm1")
        QF = [152, 156, 160, 164]
        qrd = lambda s: self.trread(V(QF[s % 4], 2), V(QF[s % 4] + 2, 2), vTrB, s * KB)
        p.add(qrd(14) + qrd(15) + qrd(16))
        main = []
        for s in range(NR, 28):
            g = [Ins(f"{MFMA} {V(48, 16)}, {V(QF[s % 4])}, {V(RING + 4 * (s % NR))}, {V(48, 16)}")]
            if s + 3 < 28:
                g += qrd(s + 3)
            main.append(g)
        with self.cap() as c:
            self.phi(16, 16, 168, lambda r: f"v{64 + r}")
            p(f"v_mov_b32 v168, {sONES}")
            for r in range(16):
                p(f"v_mul_f32 v{32 + r}, v{32 + r}, v{64 + r}")
            for r in range(8):
                p(f"v_cvt_pk_bf16_f32 v{32 + r}, v{32 + 2 * r}, v{33 + 2 * r}")
            for r in range(8):
                p(f"v_cndmask_b32 v{32 + r}, v{32 + r}, v168, {sM28}")
            p(f"v_mov_b32 v80, v{vCSQ}")
            p(f"v_mov_b32 v81, v{vCSQ + 1}")
        p.add(spread(main, [(groups(c.ins), 1, len(main) - 1)]))
        self.kv_publish(lambda lo, k: V(64 + lo, k), "v89", "v90")
        p(f"{MFMA} {V(48, 16)}, {V(80)}, {V(92)}, {V(48, 16)}")
        self.stamp("kv_pub1")

    def q1_epilogue(self):
        p = self.p
        self.phi(48, 48, 168, lambda r: "v88")
        p(f"v_cndmask_b32 v54, v54, 0, {sMPAD}")
        p(f"v_cndmask_b32 v55, v55, 0, {sMPAD}")

    def wo_phase(self, layer, pre=None, streams=()):
        p = self.p
        if layer == 0:
            p(f"v_and_b32 v13, 31, {vLane}")
            p("v_mul_u32_u24 v13, 896, v13")
            p(f"v_lshrrev_b32 v14, 5, {vLane}")
            p("v_lshl_add_u32 v13, v14, 3, v13")
            p(f"s_lshl_b32 {sT0}, {sg}, 3")
            p(f"s_add_u32 {sT0}, {sT0}, {stb}")
            p(f"s_mul_i32 {sT0}, {sT0}, {32 * 896}")
            p(f"s_lshl_b32 {sT1}, {sh}, 6")
            p(f"s_add_u32 {sT0}, {sT0}, {sT1}")
            for a in range(4):
                p(f"buffer_load_dwordx2 {V(32 + 2 * a, 2)}, v13, {SX}, {sT0} offen offset:{16 * a}")
        p(f"s_lshl_b32 s5, {sh}, 11")
        p(f"s_add_u32 s5, s5, {sXB}")
        if layer == 1:
            p(f"buffer_load_dwordx4 {V(32)}, {vL16}, {SG}, s5 offen sc1")
            p(f"buffer_load_dwordx4 {V(36)}, {vL16}, {SG}, s5 offen offset:1024 sc1")
        p(f"s_lshr_b32 {sT1}, {sh}, 1")
        p(f"s_lshl_b32 {sT1}, {sT1}, 10")
        p(f"s_and_b32 {sT2}, {sh}, 1")
        p(f"s_lshl_b32 {sT2}, {sT2}, 3")
        p(f"s_add_u32 {sT1}, {sT1}, {sT2}")
        p(f"s_add_u32 s6, {sT1}, {sSTB}")
        p(f"s_lshl_b32 {sT0}, {stb}, 7")
        p(f"s_lshl_b32 {sT1}, {sh}, 3")
        p(f"s_add_u32 {sT1}, {sT0}, {sT1}")
        p(f"s_add_u32 s7, {sT1}, {G_FX}")
        p(f"s_add_u32 {sT0}, {sT0}, {G_FO}")
        p(f"v_and_b32 v13, 15, {vLane}")
        p("v_lshlrev_b32 v13, 2, v13")
        rd = [self.trread(V(48 + (s % 3) * 4, 2), V(50 + (s % 3) * 4, 2), vTrB, (L_WO - L_WQ) + s * KB)
              for s in range(28)]
        p.add(rd[0] + rd[1])
        if pre:
            pre()
        self.poll("v13", SG, sT0, 1 + layer)
        self.stamp(f"o_seen{layer}")
        RING = 64
        LEAD = self.opt.get("leadwo", 8)

        def ld(s):
            q = sub()
            if s % 4 == 0:
                q(f"s_add_u32 s4, {sHB}, {s * KB}")
            q(f"buffer_load_dwordx4 {V(RING + 4 * s)}, {vL16}, {SG}, s4 offen offset:{(s % 4) * KB} sc1")
            return q.ins
        for s in range(LEAD):
            p.add(ld(s))
            p(f"v_lshlrev_b32 v{16 + 2 * s}, 16, v{32 + s}" if s < 8 else "; -")
            p(f"v_and_b32 v{17 + 2 * s}, {sHI}, v{32 + s}" if s < 8 else "; -")
        assert LEAD >= 8
        main = []
        for s in range(28):
            g = [Ins(f"{MFMA} {V(16, 16)}, {V(48 + (s % 3) * 4)}, {V(RING + 4 * s)}, {V(16, 16)}")]
            if s + LEAD < 28:
                g += ld(s + LEAD)
            if s + 2 < 28:
                g += rd[s + 2]
            main.append(g)
        p.add(spread(main, list(streams)))
        self.stamp(f"wo_gemm{layer}")
        for r in range(8):
            p(f"v_cvt_pk_bf16_f32 v{32 + r}, v{16 + 2 * r}, v{17 + 2 * r}")
        self.publish([f"buffer_store_dwordx4 {V(32)}, {vL16}, {SG}, s5 offen",
                      f"buffer_store_dwordx4 {V(36)}, {vL16}, {SG}, s5 offen offset:1024"])
        p("v_pk_mul_f32 v[42:43], v[16:17], v[16:17]")
        for r in range(2, 16, 2):
            p(f"v_pk_fma_f32 v[42:43], {V(16 + r, 2)}, {V(16 + r, 2)}, v[42:43]")
            p(f"v_pk_add_f32 v[16:17], v[16:17], {V(16 + r, 2)}")
        p("v_add_f32 v40, v16, v17")
        p("v_add_f32 v42, v42, v43")
        p("v_mov_b32 v41, 0")
        self.both_halves("v40", "v42", None)
        self.publish([f"buffer_store_dwordx2 v[40:41], {vL16}, {SG}, s6 offen"])
        self.flag("s7", 1 + 2 * layer, 2)
        self.stamp(f"x1_pub{layer}")

    def w2_setup(self, va, vb):
        p = self.p
        p(f"v_lshrrev_b32 v13, 2, {vLane}")
        p(f"v_and_b32 v15, 3, {vLane}")
        p("v_lshlrev_b32 v15, 4, v15")
        p("v_mul_u32_u24 v14, 896, v13")
        p("v_add_u32 v13, v14, v15")
        p(f"s_lshl_b32 {sU[0]}, {sw}, 5")
        p(f"v_xor_b32 {va}, {sU[0]}, v13")
        p(f"v_xor_b32 {vb}, 64, {va}")
        p(f"s_lshl_b32 {sU[0]}, {scb}, 7")
        p(f"s_mul_i32 {sU[1]}, {sw}, {32 * 896}")
        p(f"s_add_u32 {sU[0]}, {sU[0]}, {sU[1]}")
        p(f"s_lshl_b32 {sU[1]}, {scb}, 1")

    def w2_items(self, va, vb):
        p = self.p
        items = []
        for j in range(28):
            with self.cap() as c:
                if j % 2 == 0:
                    p(f"s_mul_i32 {sU[2]}, {sU[1]}, {128 * 896}")
                    p(f"s_add_u32 {sU[2]}, {sU[2]}, {sU[0]}")
                else:
                    p(f"s_add_u32 {sU[2]}, {sU[2]}, {16 * 896}")
                    p(f"s_add_u32 {sU[1]}, {sU[1]}, 1")
                    p(f"s_cmp_eq_u32 {sU[1]}, 14")
                    p(f"s_cselect_b32 {sU[1]}, 0, {sU[1]}")
                p(f"buffer_load_dwordx4 {w2reg(j, 0)}, {va}, {S2}, {sU[2]} offen", "w2")
                p(f"buffer_load_dwordx4 {w2reg(j, 1)}, {vb}, {S2}, {sU[2]} offen", "w2")
            items.append(c.ins)
        return items

    def ffn(self, layer, pre=None, extra=None):
        p = self.p
        p(f"v_and_b32 v13, 15, {vLane}")
        p("v_min_u32 v13, 13, v13")
        p("v_lshlrev_b32 v13, 3, v13")
        p(f"v_lshrrev_b32 v14, 4, {vLane}")
        p("v_lshl_add_u32 v107, v14, 7, v13")
        p(f"s_mul_i32 {sT0}, {srh}, {112 * KB}")
        p(f"s_add_u32 {sT0}, {sT0}, {G_X - L_S}")
        p(f"v_add_u32 v110, {sT0}, {vL16}")
        p(f"s_lshl_b32 s5, {sw}, 10")
        p(f"s_add_u32 s5, s5, {L_S}")
        p(f"s_lshl_b32 {sT0}, {sh}, 13")
        p(f"s_lshl_b32 {sT1}, {sw}, 11")
        p(f"s_add_u32 s3, {sT0}, {sT1}")
        p(f"s_mul_i32 {sT0}, {srh}, {4 * 112 * KB}")
        p(f"s_add_u32 s3, s3, {sT0}")
        p(f"s_lshl_b32 {sT0}, {srh}, 10")
        p(f"s_lshl_b32 {sT1}, {sw}, 6")
        p(f"s_add_u32 {sT0}, {sT0}, {sT1}")
        p(f"s_lshl_b32 {sT1}, {sh}, 2")
        p(f"s_add_u32 {sT0}, {sT0}, {sT1}")
        p(f"s_add_u32 s2, {sT0}, {G_FH}")
        p(f"v_mov_b32 v84, v{vCS1}")
        p(f"v_mov_b32 v85, v{vCS1 + 1}")
        for r in (86, 87, 90, 91):
            p(f"v_mov_b32 v{r}, 0")
        p(f"v_and_b32 v108, 31, {vLane}")
        p("v_lshlrev_b32 v108, 4, v108")
        p(f"v_add_u32 v108, {L_S + S_STAT}, v108")
        p(f"s_and_b32 {sT0}, {sxs}, 3")
        p(f"s_lshl_b32 {sT0}, {sT0}, 9")
        p(f"v_add_u32 v109, {sT0}, v108")
        p.wait_ds()
        p("s_barrier")
        if pre:
            pre()
        p(f"s_lshl_b32 {sT0}, {srh}, 9")
        p(f"s_add_u32 {sT0}, {sT0}, {G_FX}")
        self.poll("v107", SG, sT0, 1 + 2 * layer, 2)
        self.stamp(f"x1_seen{layer}")

        Q, P = 10, 2

        def quad(k):
            q = sub()
            if k % Q == 0:
                q("s_mov_b32 m0, s5")
                if k:
                    q(f"v_add_u32 v110, {Q * 4 * KB}, v110")
            else:
                q(f"s_add_u32 m0, m0, {4 * KB}")
            q(f"buffer_load_dwordx4 v110, {SG}, m0 offen sc1 lds", f"c{k // P}")
            return q.ins
        for k in range(4):
            p.add(quad(k))
        stl = []
        for u in range(7):
            with self.cap() as c:
                if u % 4 == 0:
                    p(f"s_add_u32 {sT5}, {sSTB}, {u * KB}")
                p(f"buffer_load_dwordx4 {V(112 + 4 * u)}, {vL16}, {SG}, {sT5} offen offset:{(u % 4) * KB} sc1")
            stl.append(c.ins)
        with self.cap() as st:
            for i in range(2, 28):
                p(f"v_add_f32 v{112 + (i & 1)}, v{112 + (i & 1)}, v{112 + i}")
            p("v_add_f32 v112, v112, v113")
            self.stats_finish("v112", "v113", "v114", "v115")
            self.split_words("v114", "v116", "v117", "v113", True, True)
            p("v_rsq_f32 v118, v115")
            p("v_sqrt_f32 v119, v115")
            p(f"v_mul_f32_e64 v118, -v118, {sLOG2E}")
            p("ds_write_b128 v109, v[116:119]", "stw")
        XF, NX, D = 48, 5, 4
        rdx = lambda n: Ins(f"ds_read_b128 {V(XF + 4 * (n % NX))}, {vS16} offset:{(n % (4 * Q)) * KB}", f"x{n}")

        def boundary(j):
            q = sub()
            q.wait_vm(f"c{j}")
            if j == 3:
                q.wait_ds("stw")
            q("s_barrier")
            return q.ins
        p.add(quad(4))
        p.add(quad(5))
        p.add(boundary(0))
        p.add([rdx(n) for n in range(D)])
        main = []
        pos = {}
        for n in range(112):
            o, s = divmod(n, 28)
            acc = V(16 + 16 * (o & 1), 16)
            g = []
            if n % 2 == 0:
                g.append(Pseudo("wait_ds", f"x{n + 1}"))
            g.append(Ins(f"{MFMA} {acc}, {w1reg(s)}, {V(XF + 4 * (n % NX))}, {acc if s else 0}"))
            m = n + D
            if m < 112:
                if m % 8 == 0:
                    g += boundary(m // 8)
                g.append(rdx(m))
                if m == 24:
                    g += [Ins(f"ds_read_b128 {V(68 + 4 * k)}, v108 offset:{k * 512}") for k in range(4)]
                if m % 4 == 1 and m >= 8:
                    k = m // 4 + 6
                    if k < 28:
                        g += quad(k)
            if s == 24:
                g += [Ins(f"v_mov_b32 v88, v{68 + 4 * o}"), Ins(f"v_mov_b32 v89, v{69 + 4 * o}")]
            pos[n] = len(main)
            main.append(g)
            if s == 27:
                main.append([Ins(f"{MFMA} {acc}, {V(84)}, {V(88)}, {acc}")])

        hsc1 = self.opt.get("h0sc1", 1) if layer == 0 else self.opt.get("h1sc1", 0)

        def epilogue(o):
            tb = ((o & 1) << 1) | (o >> 1)
            acc = 16 + 16 * (o & 1)
            c1, sd = f"v{70 + 4 * o}", f"v{71 + 4 * o}"
            with self.cap() as c:
                for r0 in range(0, 16, 2):
                    rr = (r0, r0 + 1)
                    t = {r: f"v{92 + (r & 3)}" for r in rr}
                    a = {r: f"v{acc + r}" for r in rr}
                    for r in rr:
                        p(f"v_mul_f32 {t[r]}, {a[r]}, {c1}")
                    for r in rr:
                        p(f"v_exp_f32 {t[r]}, {t[r]}")
                    for r in rr:
                        p(f"v_fma_f32 {t[r]}, {t[r]}, {sd}, {sd}")
                    for r in rr:
                        p(f"v_rcp_f32 {t[r]}, {t[r]}")
                    for r in rr:
                        p(f"v_mul_f32 {a[r]}, {a[r]}, {t[r]}")
                    p(f"v_cvt_pk_bf16_f32 v{96 + (r0 >> 1)}, {a[r0]}, {a[r0 + 1]}")
            items = groups(c.ins)
            with self.cap() as c:
                p(f"s_add_u32 {sT0}, s3, {tb * 112 * KB}")
                self.publish([f"buffer_store_dwordx4 {V(96)}, {vL16}, {SG}, {sT0} offen",
                              f"buffer_store_dwordx4 {V(100)}, {vL16}, {SG}, {sT0} offen offset:1024"], f"h{o}",
                             always_sc1=hsc1)
            items.append(c.ins)
            with self.cap() as c:
                p(f"s_add_u32 {sT1}, s2, {tb * 256}")
                self.flag(sT1, 1 + layer, wait=f"h{o}", st=sT2)
            return items, c.ins
        streams = [([quad(6), quad(7)], 0, 1), (stl, 2, 9), (groups(st.ins), 12, 19)]
        eps = [epilogue(o) for o in range(4)]
        late = 24 if hsc1 else 12
        for o in range(3):
            streams.append((eps[o][0], pos[28 * (o + 1)] + 2, pos[28 * (o + 1) + 27]))
        for o in range(2):
            g = pos[28 * (o + 2) + late]
            streams.append(([eps[o][1]], g, g))
        with self.cap() as c:
            self.ffn2_setup(layer)
        streams.append((groups(c.ins), pos[84 + 2], pos[84 + 20]))
        with self.cap() as c:
            self.poll_load("v107", SG, sU[4], 1, 109)
        streams.insert(0, ([c.ins], pos[84 + 26], pos[84 + 26]))
        if extra:
            streams += extra(pos)
        if self.opt.get("fine"):
            self.stamp(f"f1_first{layer}")
            woven = spread(main, streams)
            k = 0
            for x in woven:
                p.add([x])
                if x.kind == "mfma":
                    k += 1
                    if k % 29 == 0 and k < 116:
                        self.stamp(f"f1_o{k // 29 - 1}_{layer}")
        else:
            p.add(spread(main, streams))
        self.stamp(f"ffn1_mfma{layer}")
        self.ffn2(layer, eps[3][0], eps[2][1], eps[3][1])

    def ffn2_setup(self, layer):
        p = self.p
        p(f"s_mul_i32 {sU[3]}, {srq}, {2 * 112 * KB}")
        p(f"s_lshl_b32 {sT3}, {sw}, 11")
        p(f"s_add_u32 {sU[3]}, {sU[3]}, {sT3}")
        p(f"s_lshl_b32 {sU[4]}, {srq}, 9")
        p(f"s_lshl_b32 {sT3}, {sw}, 6")
        p(f"s_add_u32 {sU[4]}, {sU[4]}, {sT3}")
        p(f"s_add_u32 {sU[4]}, {sU[4]}, {G_FH}")
        p(f"v_min_u32 v107, 13, {vLane}")
        p("v_lshlrev_b32 v107, 2, v107")
        p(f"s_lshr_b32 {sT3}, {srq}, 1")
        p(f"s_lshl_b32 {sT3}, {sT3}, 2")
        p(f"s_and_b32 {sT4}, {srq}, 1")
        p(f"s_add_u32 {sT3}, {sT3}, {sT4}")
        p(f"s_mul_i32 {sU[5]}, {sT3}, {28 * KB}")
        p(f"s_lshl_b32 {sT3}, {scb}, 12")
        p(f"s_lshl_b32 {sT4}, {sw}, 10")
        p(f"s_add_u32 {sT3}, {sT3}, {sT4}")
        p(f"s_add_u32 {sU[5]}, {sU[5]}, {sT3}")
        p(f"s_add_u32 {sU[5]}, {sU[5]}, {G_X}")
        p(f"s_mul_i32 {sU[6]}, {srq}, {14 * KB}")
        p(f"s_lshl_b32 {sT3}, {scb}, 10")
        p(f"s_lshl_b32 {sT4}, {sw}, {2 if layer == 0 else 8}")
        p(f"s_add_u32 {sT3}, {sT3}, {sT4}")
        p(f"s_add_u32 {sU[6]}, {sU[6]}, {sT3}")
        p(f"s_add_u32 {sU[6]}, {sU[6]}, {G_ST}")
        if layer == 0:
            p(f"s_lshl_b32 {sT3}, {srq}, 8")
            p(f"s_lshl_b32 {sT4}, {scb}, 4")
            p(f"s_add_u32 {sT3}, {sT3}, {sT4}")
            p(f"s_lshl_b32 {sT4}, {sw}, 2")
            p(f"s_add_u32 {sT3}, {sT3}, {sT4}")
            p(f"s_add_u32 {sU[7]}, {sT3}, {G_FX}")
        else:
            p(f"s_lshl_b32 {sT3}, {sg}, 2")
            p(f"s_add_u32 {sT3}, {sT3}, {srq}")
            p(f"s_mul_i32 {sT3}, {sT3}, {64 * 896}")
            p(f"s_lshl_b32 {sT4}, {scb}, 7")
            p(f"s_add_u32 {sT3}, {sT3}, {sT4}")
            p(f"s_lshl_b32 {sT4}, {sw}, 5")
            p(f"s_add_u32 {sU[7]}, {sT3}, {sT4}")
            p(f"v_and_b32 v13, 31, {vLane}")
            p("v_mul_u32_u24 v13, 896, v13")
            p(f"v_lshrrev_b32 v111, 5, {vLane}")
            p("v_lshl_add_u32 v111, v111, 4, v13")
        p(f"s_lshl_b32 {sU[8]}, {scb}, 1")

    def ffn2(self, layer, ep3, flag2, flag3):
        p = self.p
        RING, NR = 112, 16
        ACC = ((16, 48), (32, 64))
        clean = layer == 1 and self.opt.get("clean", 0)

        def hreg(n):
            return V(92 + 4 * (n - 24)) if (clean and 24 <= n < 28) else V(RING + 4 * (n % NR))

        def cleanst(n):
            th, j = divmod(n, 28)
            return [Ins(f"buffer_store_dwordx4 {hreg(n)}, {vL16}, {SG}, s{4 + 2 * th + (j - 24) // 2} offen "
                        f"offset:{(j % 2) * KB} sc1")]

        def ld(n):
            th, j = divmod(n, 28)
            q = sub()
            if j % 2 == 0:
                q(f"s_lshl_b32 {sU[9]}, {sU[8]}, 13")
                q(f"s_add_u32 {sU[9]}, {sU[9]}, {sU[3]}")
                if th:
                    q(f"s_add_u32 {sU[9]}, {sU[9]}, {112 * KB}")
                if clean and j >= 24:
                    q(f"s_mov_b32 s{4 + 2 * th + (j - 24) // 2}, {sU[9]}")
                q(f"s_add_u32 {sU[8]}, {sU[8]}, 1")
                q(f"s_cmp_eq_u32 {sU[8]}, 14")
                q(f"s_cselect_b32 {sU[8]}, 0, {sU[8]}")
            q(f"buffer_load_dwordx4 {hreg(n)}, {vL16}, {SG}, {sU[9]} offen offset:{(j % 2) * KB} sc1")
            return q.ins
        self.apoll_end("v107", SG, sU[4], 1 + layer, 1, 109)
        self.stamp(f"h_seen{layer}")
        lds = [ld(n) for n in range(56)]
        LEAD = self.opt.get("leadh", 9)
        p.add(spread(ep3, [(lds[:LEAD], 0, len(ep3) - 4), ([flag2], 70, 70)]))
        p("s_barrier")
        p(f"buffer_load_dwordx4 {V(88)}, {vL16}, {SG}, {sU[5]} offen sc1")
        self.stamp(f"ep3_done{layer}")
        for dd in range(1, 4):
            p(f"s_xor_b32 {sT3}, {sw}, {dd}")
            p(f"s_mul_i32 {sT3}, {sT3}, {6 * KB}")
            p(f"v_add_u32 v{12 + dd}, {sT3}, {vS16}")
        p(f"s_mul_i32 {sT3}, {sw}, {6 * KB}")
        p(f"v_add_u32 v108, {sT3}, {vS16}")
        p("v_mov_b32 v110, v107")

        def mm(th):
            main = []
            for j in range(28):
                n = 28 * th + j
                b = hreg(n)
                for ch in range(2):
                    acc = V(ACC[th][ch], 16)
                    g = [Ins(f"{MFMA} {acc}, {w2reg(j, ch)}, {b}, {acc if j else 0}")]
                    if ch == 1:
                        if n + LEAD < 56 and not (th == 0 and 28 <= n + LEAD < 28 + HOLD):
                            g += lds[n + LEAD]
                    main.append(g)
            return main

        def reduce(th):
            area = th * 24 * KB
            a0, a1 = ACC[th]
            chunkreg = lambda dd: (a0, a0 + 8, a1, a1 + 8)[dd]
            res = (88, 84)[th] if layer == 1 else 88
            inc = (a0 + 8, a0 + 12, a1, a1 + 4, a1 + 8, a1 + 12)
            items = []
            with self.cap() as c:
                for dd in range(1, 4):
                    for k in range(2):
                        p(f"ds_write_b128 v{12 + dd}, {V(chunkreg(dd) + 4 * k)} offset:{area + (dd - 1) * 2 * KB + k * KB}")
                for r in range(4):
                    p(f"v_lshlrev_b32 v{a1 + 8 + 2 * r}, 16, v{res + r}")
                    p(f"v_and_b32 v{a1 + 9 + 2 * r}, {sHI}, v{res + r}")
                for r in range(8):
                    p(f"v_add_f32 v{a0 + r}, v{a0 + r}, v{a1 + 8 + r}")
            items += groups(c.ins)
            with self.cap() as c:
                if th == 0:
                    p(f"s_add_u32 {sT3}, {sU[5]}, {2 * 28 * KB}")
                    p(f"buffer_load_dwordx4 {V(84 if layer == 1 else 88)}, {vL16}, {SG}, {sT3} offen sc1")
                p.wait_ds()
                p("s_barrier")
                for u in range(6):
                    p(f"ds_read_b128 {V(inc[u])}, v108 offset:{area + u * KB}")
            items.append(c.ins)
            with self.cap() as c:
                for u in range(3):
                    for r in range(8):
                        p(f"v_add_f32 v{a0 + r}, v{a0 + r}, v{inc[2 * u] + r}")
                for r in range(4):
                    p(f"v_cvt_pk_bf16_f32 v{80 + r}, v{a0 + 2 * r}, v{a0 + 2 * r + 1}")
            items += groups(c.ins)
            o = 80
            if layer == 0:
                with self.cap() as c:
                    p(f"s_add_u32 {sT4}, {sU[5]}, {th * 2 * 28 * KB}")
                    self.publish([f"buffer_store_dwordx4 {V(o)}, {vL16}, {SG}, {sT4} offen"], f"x{th}")
                items.append(c.ins)
                with self.cap() as c:
                    p(f"v_add_f32 v84, v{a0}, v{a0 + 1}")
                    p(f"v_mul_f32 v85, v{a0}, v{a0}")
                    p(f"v_fmac_f32 v85, v{a0 + 1}, v{a0 + 1}")
                    for r in range(2, 8):
                        p(f"v_add_f32 v84, v84, v{a0 + r}")
                        p(f"v_fmac_f32 v85, v{a0 + r}, v{a0 + r}")
                    self.both_halves("v84", "v85", None)
                items += groups(c.ins)
                with self.cap() as c:
                    p(f"s_add_u32 {sT3}, {sU[6]}, {th * 7 * KB}")
                    self.publish([f"buffer_store_dword v84, {vL16}, {SG}, {sT3} offen"], f"x{th}")
                items.append(c.ins)
                with self.cap() as c:
                    p(f"s_add_u32 {sT3}, {sU[7]}, {th * 128}")
                    self.flag(sT3, 2, wait=f"x{th}", tmp=86, st=sT4)
                return items, c.ins
            with self.cap() as c:
                p(f"v_permlane32_swap_b32 v{o}, v{o + 2}")
                p(f"v_permlane32_swap_b32 v{o + 1}, v{o + 3}")
                p(f"s_add_u32 {sT3}, {sU[7]}, {th * 32 * 896}")
                p(f"buffer_store_dwordx4 {V(o)}, v111, {SOUT}, {sT3} offen sc1")
            items.append(c.ins)
            return items, []
        GP = self.opt.get("gp", 36)
        HOLD = max(0, GP // 2 - (28 - LEAD) + 1)
        with self.cap() as c1:
            p(f"s_add_u32 {sT0}, {sU[4]}, 256")
            self.poll_load("v110", SG, sT0, 1, 109)
        with self.cap() as c2:
            self.apoll_end("v110", SG, sT0, 1 + layer, 1, 109)
            for n in range(28, 28 + HOLD):
                p.add(lds[n])
        fl3 = [Ins(x.text.replace("v14", "v109"), x.tag) if isinstance(x, Ins) else x for x in flag3]
        p.add(spread(mm(0), [([fl3], 14, 14), ([c1.ins], GP - 10, GP - 10), ([c2.ins], GP + 1, GP + 1)]))
        self.stamp(f"th0_done{layer}")
        r0, f0 = reduce(0)
        streams = [(r0, 1, 40)]
        if f0:
            streams.append(([f0], 52, 52))
        if clean:
            cl = [cleanst(n) for n in (24, 25, 26, 27)]
            for th in range(2):
                with self.cap() as c:
                    p(f"s_add_u32 {sT0}, {sU[5]}, {th * 2 * 28 * KB}")
                    p(f"buffer_store_dwordx4 {V((88, 84)[th])}, {vL16}, {SG}, {sT0} offen sc1")
                    p(f"s_add_u32 {sT0}, {sU[6]}, {th * 7 * KB}")
                    p("s_mov_b64 exec, 0xffff")
                    p(f"buffer_store_dwordx4 {V((88, 84)[th])}, {vL16}, {SG}, {sT0} offen sc1")
                    p("s_mov_b64 exec, -1")
                cl.append(c.ins)
            cl += [cleanst(n) for n in (52, 53, 54, 55)]
            streams.append((cl, 2 * (28 - LEAD), 55))
        p.add(spread(mm(1), streams))
        self.stamp(f"th1_done{layer}")
        r1, f1 = reduce(1)
        for it in r1:
            p.add(it)
        p.add(f1)
        self.stamp(f"ffn2_done{layer}")

    def spare0(self):
        p = self.p
        p(f"s_mov_b32 s26, {448 * 1792 * 2}")
        p(f"s_and_b32 {sT0}, {sh}, 1")
        p(f"s_lshl_b32 {sT0}, {sT0}, 3")
        p(f"s_add_u32 {sT0}, {sT0}, {stb}")
        p(f"s_mul_i32 {sT0}, {sT0}, {98 * KB}")
        p(f"v_lshlrev_b32 v64, 7, {vLane}")
        if self.opt.get("w2pre", 1):
            for k in range(13):
                p(f"s_add_u32 {sT1}, {sT0}, {min(k * 8, 90) * KB}")
                p(f"buffer_load_dword v65, v64, {S2}, {sT1} offen")
        self.make_ones()
        for it in self.colsum_qkv_items():
            p.add(it)
        p.wait_ds()
        p("s_barrier")
        self.colsum_qkv_fetch()
        p("s_waitcnt vmcnt(0) lgkmcnt(0)")
        p("s_barrier")

    def spare1(self):
        p = self.p
        wb = self.opt.get("wb", 0)
        if not wb:
            return
        p(f"s_and_b32 {sT0}, {sh}, 1")
        p(f"s_or_b32 {sT0}, {sT0}, {srh}")
        p(f"s_or_b32 {sT0}, {sT0}, {sw}")
        p(f"s_cmp_lg_u32 {sT0}, 0")
        p("s_cbranch_scc1 L_fin")
        p(f"v_and_b32 v13, 15, {vLane}")
        p("v_min_u32 v13, 13, v13")
        p("v_lshlrev_b32 v13, 3, v13")
        p(f"v_lshrrev_b32 v14, 4, {vLane}")
        p("v_lshl_add_u32 v16, v14, 7, v13")
        p(f"s_mov_b32 {sT0}, {G_FX}")
        self.poll("v16", SG, sT0, 3, 2)
        p(f"s_mov_b32 {sT0}, {G_FX + 512}")
        self.poll("v16", SG, sT0, 3, 2)
        p("buffer_wbl2 sc1")
        p("s_waitcnt vmcnt(0)")
        if wb >= 2:
            p(f"v_and_b32 v13, 15, {vLane}")
            p("v_min_u32 v13, 13, v13")
            p("v_lshlrev_b32 v13, 2, v13")
            p(f"v_lshrrev_b32 v14, 4, {vLane}")
            p("v_lshl_add_u32 v16, v14, 6, v13")
            for tb in ((2, 3) if wb == 2 else (0, 2, 1, 3)):
                for half in range(2):
                    p(f"s_mov_b32 {sT0}, {G_FH + (4 * half + tb) * 256}")
                    self.poll("v16", SG, sT0, 2)
                p("buffer_wbl2 sc1")
                p("s_waitcnt vmcnt(0)")

    def finish(self):
        p = self.p
        p(f"s_or_b32 {sT0}, {sg}, {sh}")
        p(f"s_or_b32 {sT0}, {sT0}, {srh}")
        p(f"s_or_b32 {sT0}, {sT0}, {sw}")
        p(f"s_cmp_lg_u32 {sT0}, 0")
        p("s_cbranch_scc1 L_fin")
        p(f"s_add_u32 {sT0}, {sE}, 64")
        p(f"v_mov_b32 v14, {sT0}")
        p("s_mov_b64 exec, 1")
        p(f"buffer_store_dword v14, {vL16}, {SWS}, 0 offen sc1")
        p("s_mov_b64 exec, -1")
        p("L_fin:")
        if self.pad:
            p("L_pad:")
            p("s_memrealtime s[98:99]")
            p("s_waitcnt lgkmcnt(0)")
            p("s_sub_u32 s98, s98, s96")
            p(f"s_cmp_lt_u32 s98, {self.pad}")
            p("s_cbranch_scc1 L_pad")
        if self.diag:
            p("s_waitcnt vmcnt(0)")
            self.stamp("end")
            self.stamp_flush()
            p(f"s_lshl_b32 {sT0}, {srh}, 4")
            p(f"s_add_u32 {sT0}, {sT0}, {sh}")
            p(f"s_lshl_b32 {sT0}, {sT0}, 3")
            p(f"s_add_u32 {sT0}, {sT0}, {sg}")
            p(f"s_lshl_b32 {sT0}, {sT0}, 2")
            p(f"s_add_u32 {sT0}, {sT0}, {sw}")
            p(f"s_lshl_b32 {sT0}, {sT0}, 7")
            p(f"s_add_u32 {sT0}, {sT0}, {WS_DIAG}")
            p("s_mov_b64 exec, 1")
            for i in range(self.nstamp):
                p(f"v_mov_b32 v14, s{STAMP0 + i}")
                p(f"buffer_store_dword v14, {vL16}, {SWS}, {sT0} offen offset:{4 * i}")
            p(f"v_mov_b32 v14, {sfast}")
            p(f"buffer_store_dword v14, {vL16}, {SWS}, {sT0} offen offset:120")
            p(f"v_mov_b32 v14, {slim}")
            p(f"buffer_store_dword v14, {vL16}, {SWS}, {sT0} offen offset:124")
            p("s_mov_b64 exec, -1")
        p("s_waitcnt vmcnt(0)")
        p("s_endpgm")

    def build(self):
        p = self.p
        self.prologue()
        self.startup()
        self.qkv0()
        n1 = 28 - len(self.w1)

        def shadow0():
            self.tr_addrs("v62", "v63")
            for s in range(n1):
                p.add(self.transpose_block(lambda lo, k, s=s: w1reg(s, lo, k), "v62", "v63"))
        self.kv_gather_o(0, 64, shadow0)
        self.stamp_flush()
        p(f"s_cmp_ge_u32 {sh}, 14")
        p("s_cbranch_scc1 L_spare0")

        def pre_wo0():
            for it in self.w1:
                p.add(it)
            if not self.opt.get("h0sc1", 1):
                p.add(self.touch_items(G_H, 64, 14)[0])
            self.make_ones()
        tr1 = [self.transpose_block(lambda lo, k, s=s: w1reg(s, lo, k), "v62", "v63") for s in range(n1, 28)]
        self.ones = A(32)
        self.wo_phase(0, pre_wo0, [(tr1, 0, 10), (self.colsum_qkv_items(), 0, 24), (self.colsum_w1_items(), 12, 26)])

        def pre_ffn0():
            self.colsum_qkv_fetch()
            self.tr_addrs("v104", "v105")
            self.w2_setup("v106", "v111")
            p.wait_ds()
            p("s_barrier")

        def extra0(pos):
            ld = self.w2_items("v106", "v111")
            tr = [self.transpose_block(lambda lo, k, j=j, ch=ch: w2reg(j, ch, lo, k), "v104", "v105")
                  for j in range(28) for ch in range(2)]
            return [(ld, 0, pos[80]), (tr, pos[30], pos[111])]
        self.ffn(0, pre_ffn0, extra0)
        p("L_layer1:")
        p("s_waitcnt lgkmcnt(0)")
        self.qkv1()
        self.q1_epilogue()
        self.kv_gather_o(1, 96)
        p(f"s_cmp_ge_u32 {sh}, 14")
        p("s_cbranch_scc1 L_spare1")
        self.wo_phase(1)
        self.ffn(1)
        self.finish()
        p("L_spare0:")
        p("s_waitcnt vmcnt(0) lgkmcnt(0)")
        self.spare0()
        p("s_branch L_layer1")
        p("L_spare1:")
        p("s_waitcnt vmcnt(0) lgkmcnt(0)")
        self.spare1()
        p("s_branch L_fin")
        p.add(self.tail)
        p("L_codeend:")
        return finalize(p.ins)


HEADER = f"""; Two layers of (LayerNorm, linear attention, output projection, LayerNorm, SiLU FFN) in one persistent launch.
; @launch grid=(256,1,1) block=(256,1,1) lds={LDS_BYTES}
.amdgcn_target "amdgcn-amd-amdhsa--gfx950"
.text
.globl {NAME}_kernel
.p2align 8
.type {NAME}_kernel,@function
{NAME}_kernel:
"""
FOOTER = f"""
.section .rodata,"a"
.p2align 6
.amdhsa_kernel {NAME}_kernel
  .amdhsa_next_free_vgpr 512
  .amdhsa_next_free_sgpr 102
  .amdhsa_accum_offset 256
  .amdhsa_group_segment_fixed_size 0
  .amdhsa_kernarg_size 72
  .amdhsa_user_sgpr_count 2
  .amdhsa_user_sgpr_kernarg_segment_ptr 1
  .amdhsa_system_sgpr_workgroup_id_x 1
.end_amdhsa_kernel
"""


def generate(**kw):
    g = Gen(**kw)
    lines = g.build()
    return HEADER + "\n".join(lines) + FOOTER, g


if __name__ == "__main__":
    out = sys.argv[1] if len(sys.argv) > 1 else f"cdna_kernels/{NAME}.s"
    kw = {}
    for a in sys.argv[2:]:
        k, _, v = a.partition("=")
        kw[k] = int(v) if v else True
    text, g = generate(**kw)
    open(out, "w").write(text)
    print("wrote", out, len(text), "bytes;", text.count("\n"), "lines")
```

```python
import sys, os
sys.path.insert(0, os.path.dirname(os.path.abspath(__file__)))
from asmlib import *

NAME = "interleave_layers__linear_attn_block__dense_activation_silu__prompt"
KB = 1024

WS_EPOCH = 0
WS_XC = 0x1000
WS_DIAG = 0x20000
WS_KV = 0x100000
WS_G = 0x300000
G_STRIDE = 0x160000
G_H = 0
G_O = 8 * 112 * KB
G_X = G_O + 8 * 28 * KB
G_ST = G_X + 8 * 28 * KB
G_FX = G_ST + 8 * 7 * KB
G_FO = G_FX + 1024
G_FH = G_FO + 1024
G_END = G_FH + 2048
assert G_END <= G_STRIDE
WS_BYTES = WS_G + 8 * G_STRIDE

L_WK, L_WV, L_WQ, L_WO, L_S = 0, 28 * KB, 56 * KB, 84 * KB, 112 * KB
L_XST = 48 * KB
S_KVP, S_KVS = 0, 16 * KB
S_CS = 18 * KB
S_STAT, S_TR = 42 * KB, 44 * KB
LDS_BYTES = 160 * KB

SX, SQ, SO, S1, S2, SOUT, SWS, SG = ("s[8:11]", "s[12:15]", "s[16:19]", "s[20:23]", "s[24:27]", "s[28:31]",
                                     "s[32:35]", "s[36:39]")
sE, sg, sh, srh, sw, sfast, srq, scb, stb, sxs, slim = ("s56", "s57", "s58", "s59", "s60", "s61", "s62", "s63",
                                                        "s64", "s65", "s66")
sT0, sT1, sT2, sT3, sT4, sT5 = "s40", "s41", "s42", "s43", "s44", "s45"
sCnt, sNeed = "s46", "s47"
sONES, sLOG2E, sEPS6, sHI = "s48", "s49", "s50", "s51"
sM28 = "s[52:53]"
sMPAD = "s[54:55]"
sHB, sXB, sSTB = "s67", "s68", "s69"
STAMP0 = 80
sU = [f"s{70 + i}" for i in range(10)]
STCH = SOUT

vLane, vL16, vTrA, vTrB = "v0", "v1", "v2", "v3"
vCS1 = 4
vCSQ = 6
vS16 = "v12"
vT0, vT1, vT2 = "v13", "v14", "v15"


def V(n, k=4):
    return f"v[{n}:{n + k - 1}]" if k > 1 else f"v{n}"


def A(n, k=4):
    return f"a[{n}:{n + k - 1}]" if k > 1 else f"a{n}"


def w1reg(s, lo=0, k=4):
    return A(224 + 4 * s + lo, k) if s < 8 else V(176 + 4 * (s - 8) + lo, k)


def w2reg(j, ch, lo=0, k=4):
    return A(8 * j + 4 * ch + lo, k)


MFMA = "v_mfma_f32_32x32x16_bf16"


class Capture:
    def __init__(self, g):
        self.g = g

    def __enter__(self):
        self.saved = self.g.p.ins
        self.g.p.ins = []
        self.ins = self.g.p.ins
        return self

    def __exit__(self, *a):
        self.g.p.ins = self.saved


class Gen:
    def __init__(self, diag=False, force_slow=False, pad=0, part=0, **opt):
        self.p = Prog()
        self.diag = diag
        self.force_slow = force_slow
        self.pad = pad
        self.part = part
        self.opt = opt
        self.nstamp = 0
        self.seen = 0
        self.stamp_names = []
        self.pending = False
        self.tail = []

    def cap(self):
        return Capture(self)

    def stamp(self, name, op="s_memtime"):
        if self.opt.get("amp") == name:
            self.p("s_memrealtime s[94:95]")
        if not self.diag:
            return
        self.seen += 1
        if self.seen > 2 and not (18 * self.part <= self.seen - 3 < 18 * (self.part + 1)):
            return
        self.stamp_flush()
        assert STAMP0 + self.nstamp < 100, "too many stamps"
        self.p(f"{op} s[100:101]")
        self.stamp_names.append(name)
        self.nstamp += 1
        self.pending = True

    def stamp_flush(self):
        if self.diag and self.pending:
            self.p(f"s_mov_b32 s{STAMP0 + self.nstamp - 1}, s100")
            self.pending = False

    def publish(self, stores, tag="pub", always_sc1=False):
        p = self.p
        if always_sc1:
            for s in stores:
                p(s + (" sc1" if s.startswith("buffer_") else ""), tag)
            return
        ls, le = p.label("slow"), p.label("pub")
        p(f"s_cmp_eq_u32 {sfast}, 0")
        p(f"s_cbranch_scc1 {ls}")
        p.alt_begin()
        for s in stores:
            p(s, tag)
        p(f"s_branch {le}")
        p.alt_else()
        p(f"{ls}:")
        for s in stores:
            p(s + (" sc1" if s.startswith("buffer_") else ""), tag)
        p.alt_end()
        p(f"{le}:")

    def flag(self, soff, val, n=1, wait="pub", tmp=14, st=sT5):
        p = self.p
        p(f"s_add_u32 {st}, {sE}, {val}")
        p(f"v_mov_b32 v{tmp}, {st}")
        if n == 2:
            p(f"v_mov_b32 v{tmp + 1}, {st}")
        op = f"buffer_store_dword v{tmp}" if n == 1 else f"buffer_store_dwordx2 v[{tmp}:{tmp + 1}]"
        p.wait_vm(wait)
        self.publish(["s_mov_b64 exec, 1", f"{op}, {vL16}, {SG}, {soff} offen", "s_mov_b64 exec, -1"], "flag")

    def poll_load(self, vaddr, srd, soff, n, tmp):
        if n == 1:
            self.p(f"buffer_load_dword v{tmp}, {vaddr}, {srd}, {soff} offen sc1")
        else:
            self.p(f"buffer_load_dwordx2 v[{tmp}:{tmp + 1}], {vaddr}, {srd}, {soff} offen sc1")

    def poll_test(self, n, tmp, need):
        p = self.p
        p(f"v_subrev_u32 v{tmp}, {need}, v{tmp}")
        if n == 2:
            p(f"v_subrev_u32 v{tmp + 1}, {need}, v{tmp + 1}")
            p(f"v_or_b32 v{tmp}, v{tmp}, v{tmp + 1}")
        p(f"v_cmp_lt_u32 vcc, 31, v{tmp}")

    def spin(self, vaddr, srd, soff, n, tmp, need, done):
        p = self.p
        lp = p.label("poll")
        p(f"s_mov_b32 {sCnt}, {slim}")
        p(f"{lp}:")
        self.poll_load(vaddr, srd, soff, n, tmp)
        p("s_waitcnt vmcnt(0)")
        self.poll_test(n, tmp, need)
        p(f"s_cbranch_vccz {done}")
        p(f"s_sub_u32 {sCnt}, {sCnt}, 1")
        p(f"s_cmp_lg_u32 {sCnt}, 0")
        p(f"s_cbranch_scc1 {lp}")
        p(f"s_mov_b32 {slim}, 1")

    def poll(self, vaddr, srd, soff, need, n=1, tmp=14):
        p = self.p
        ld = p.label("polled")
        p(f"s_add_u32 {sNeed}, {sE}, {need}")
        self.spin(vaddr, srd, soff, n, tmp, sNeed, ld)
        p(f"{ld}:")

    def apoll_end(self, vaddr, srd, soff, need, n=1, tmp=14):
        p = self.p
        lo, lb = p.label("aspin"), p.label("aback")
        p(f"s_add_u32 {sNeed}, {sE}, {need}")
        self.poll_test(n, tmp, sNeed)
        p(f"s_cbranch_vccnz {lo}")
        p(f"{lb}:")
        with self.cap() as c:
            p(f"{lo}:")
            p("s_nop 4")
            self.spin(vaddr, srd, soff, n, tmp, sNeed, lb)
            p(f"s_branch {lb}")
        self.tail.extend(c.ins)

    def trread(self, dst_lo, dst_hi, vaddr, off, second=512):
        return [Ins(f"ds_read_b64_tr_b16 {dst_lo}, {vaddr} offset:{off}"),
                Ins(f"ds_read_b64_tr_b16 {dst_hi}, {vaddr} offset:{off + second}")]

    def transpose_block(self, reg, aw, ar):
        return [Ins(f"ds_write_b128 {aw}, {reg(0, 4)}"),
                Ins(f"ds_read_b64_tr_b16 {reg(0, 2)}, {ar}"),
                Ins(f"ds_read_b64_tr_b16 {reg(2, 2)}, {ar} offset:512")]

    def tr_addrs(self, aw, ar):
        p = self.p
        p(f"s_lshl_b32 {sT0}, {sw}, 10")
        p(f"s_add_u32 {sT0}, {sT0}, {L_S + S_TR}")
        p(f"v_add_u32 {aw}, {sT0}, {vL16}")
        p(f"v_add_u32 {ar}, {sT0}, {vTrA}")

    def both_halves(self, s, q, tmp):
        p = self.p
        p(f"v_permlane32_swap_b32 {s}, {q}")
        p(f"v_add_f32 {s}, {s}, {q}")

    def stats_finish(self, t, u, mean, var):
        p = self.p
        p(f"v_mov_b32 {u}, {t}")
        p(f"v_permlane32_swap_b32 {t}, {u}")
        p(f"v_mul_f32 {mean}, 0x3b124925, {t}")
        p(f"v_mul_f32 {var}, 0x3b124925, {u}")
        p(f"v_fma_f32 {var}, -{mean}, {mean}, {var}")
        p(f"v_max_f32 {var}, 0, {var}")
        p(f"v_add_f32 {var}, 0x3727c5ac, {var}")

    def split_words(self, x, w0, w1, t, neg, xside):
        p = self.p
        s = "-" if neg else ""
        p(f"v_cvt_pk_bf16_f32 {w0}, {s}{x}, {s}{x}")
        p(f"v_and_b32 {t}, {sHI}, {w0}")
        p(f"v_sub_f32 {t}, {s}{x}, {t}" if not neg else f"v_sub_f32_e64 {t}, -{x}, {t}")
        if xside:
            p(f"v_and_b32 {w1}, 0xffff, {w0}")
            p(f"v_cvt_pk_bf16_f32 {t}, {t}, {t}")
            p(f"v_and_or_b32 {w0}, {t}, {sHI}, {w1}")
        else:
            p(f"v_cvt_pk_bf16_f32 {w1}, {t}, 0")

    def prologue(self):
        p = self.p
        p("s_cmp_lt_u32 s2, 256")
        p("s_cbranch_scc1 L_start")
        p("s_endpgm")
        p("L_start:")
        p("s_load_dwordx4 s[40:43], s[0:1], 0")
        p("s_load_dwordx2 s[44:45], s[0:1], 16")
        p("s_load_dwordx4 s[48:51], s[0:1], 32")
        p("s_load_dwordx2 s[46:47], s[0:1], 48")
        p("s_load_dwordx2 s[52:53], s[0:1], 64")
        self.stamp("realtime", "s_memrealtime")
        if self.pad:
            p("s_memrealtime s[96:97]")
            p("s_memrealtime s[94:95]")
        p("s_getpc_b64 s[6:7]")
        p("L_pc:")
        p("v_lshrrev_b32 v13, 6, v0")
        p(f"v_and_b32 {vLane}, 63, v0")
        p(f"v_readfirstlane_b32 {sw}, v13")
        p(f"s_and_b32 {sg}, s2, 7")
        p(f"s_lshr_b32 s3, s2, 3")
        p(f"s_lshl_b32 s4, s3, 2")
        p(f"s_add_u32 s4, s4, {sw}")
        p(f"s_lshl_b32 s4, s4, 10")
        p(f"v_lshlrev_b32 v9, 7, {vLane}")
        p("v_add_u32 v13, s4, v9")
        p("v_min_u32 v13, L_codeend-L_pc-4, v13")
        p("s_mov_b64 exec, 0xff")
        p("global_load_dword v10, v13, s[6:7]")
        p("s_mov_b64 exec, -1")
        p(f"s_and_b32 {sh}, s3, 15")
        p(f"s_lshr_b32 {srh}, s3, 4")
        p(f"s_cmp_ge_u32 {sh}, 7")
        p(f"s_cselect_b32 s4, 1, 0")
        p(f"s_cselect_b32 s5, 7, 0")
        p(f"s_lshl_b32 {srq}, {srh}, 1")
        p(f"s_add_u32 {srq}, {srq}, s4")
        p(f"s_sub_u32 {scb}, {sh}, s5")
        p(f"s_lshl_b32 {stb}, {srh}, 2")
        p(f"s_and_b32 s4, {sw}, 1")
        p(f"s_lshl_b32 s4, s4, 1")
        p(f"s_lshr_b32 s5, {sw}, 1")
        p(f"s_or_b32 s4, s4, s5")
        p(f"s_add_u32 {sxs}, {stb}, s4")
        p(f"s_add_u32 {stb}, {stb}, {sw}")
        p(f"v_lshlrev_b32 {vL16}, 4, {vLane}")
        p(f"v_lshrrev_b32 v13, 3, {vLane}")
        p("v_mul_u32_u24 v14, 896, v13")
        p("v_lshrrev_b32 v13, 1, v13")
        p(f"v_and_b32 v15, 7, {vLane}")
        p("v_xor_b32 v13, v13, v15")
        p("v_lshl_add_u32 v16, v13, 4, v14")
        p("v_xor_b32 v13, 4, v13")
        p("v_lshl_add_u32 v17, v13, 4, v14")
        p(f"s_lshl_b32 {sU[0]}, {sg}, 3")
        p(f"s_add_u32 {sU[0]}, {sU[0]}, {stb}")
        p(f"s_mul_i32 {sU[0]}, {sU[0]}, {32 * 896}")
        p(f"s_mul_i32 {sU[1]}, {sw}, {28 * KB}")
        p(f"s_add_u32 {sU[1]}, {sU[1]}, {L_XST}")
        p(f"s_cmp_ge_u32 {sh}, 14")
        p(f"s_cselect_b32 {sU[2]}, 7, 0")
        p(f"s_sub_u32 {sU[2]}, {scb}, {sU[2]}")
        p("s_waitcnt lgkmcnt(0)")
        self.stamp("start")
        p("s_mov_b32 s8, s40\ns_mov_b32 s9, s41")
        p(f"s_mov_b32 s10, {2048 * 896}\ns_mov_b32 s11, 0x00020000")
        p(f"s_load_dword {sE}, s[52:53], {WS_EPOCH}")
        for j in range(7):
            p(f"s_lshl_b32 {sU[3]}, {sU[2]}, 7")
            p(f"s_add_u32 {sU[3]}, {sU[3]}, {sU[0]}")
            p(f"s_lshl_b32 {sU[4]}, {sU[2]}, 12")
            p(f"s_add_u32 {sU[4]}, {sU[4]}, {sU[1]}")
            for b in range(4):
                p(f"s_add_u32 m0, {sU[4]}, {b * KB}")
                p(f"s_add_u32 {sU[5]}, {sU[3]}, {b * 8 * 896}")
                p(f"buffer_load_dwordx4 v{16 + (b & 1)}, {SX}, {sU[5]} offen lds", "x")
            if j < 6:
                p(f"s_add_u32 {sU[2]}, {sU[2]}, 1")
                p(f"s_cmp_eq_u32 {sU[2]}, 7")
                p(f"s_cselect_b32 {sU[2]}, 0, {sU[2]}")
            if j == 1:
                self.prologue2()

    def prologue2(self):
        p = self.p
        p(f"s_mul_i32 {sHB}, {stb}, {28 * KB}")
        p(f"s_add_u32 {sHB}, {sHB}, {G_O}")
        p(f"s_mul_i32 {sXB}, {sxs}, {28 * KB}")
        p(f"s_add_u32 {sXB}, {sXB}, {G_X}")
        p(f"s_mul_i32 {sSTB}, {stb}, {7 * KB}")
        p(f"s_add_u32 {sSTB}, {sSTB}, {G_ST}")
        p(f"s_mov_b32 {slim}, 40000")
        p(f"v_add_u32 {vS16}, {L_S}, {vL16}")
        p(f"v_and_b32 v13, 3, {vLane}")
        p("v_lshlrev_b32 v13, 3, v13")
        p(f"v_bfe_u32 v14, {vLane}, 4, 1")
        p("v_lshl_add_u32 v13, v14, 5, v13")
        p(f"v_bfe_u32 v14, {vLane}, 2, 2")
        p("v_lshl_add_u32 v13, v14, 6, v13")
        p(f"v_lshrrev_b32 v14, 5, {vLane}")
        p(f"v_lshl_add_u32 {vTrA}, v14, 8, v13")
        p(f"v_add_u32 {vTrB}, {L_WQ}, {vTrA}")
        p("v_lshl_add_u32 v62, v14, 9, v13")
        p(f"v_add_u32 v63, {L_WQ}, v62")
        p(f"v_lshrrev_b32 v13, 2, {vLane}")
        p(f"v_and_b32 v15, 3, {vLane}")
        p("v_lshlrev_b32 v15, 4, v15")
        p("v_mul_u32_u24 v14, 2688, v13")
        p("v_add_u32 v6, v14, v15")
        p("v_mul_u32_u24 v14, 896, v13")
        p("v_add_u32 v7, v14, v15")
        p("v_mul_u32_u24 v14, 3584, v13")
        p("v_add_u32 v8, v14, v15")
        p(f"v_and_b32 v13, 31, {vLane}")
        p("v_lshrrev_b32 v14, 3, v13")
        p("v_lshlrev_b32 v14, 10, v14")
        p("v_and_b32 v15, 7, v13")
        p("v_lshl_add_u32 v14, v15, 7, v14")
        p(f"v_add_u32 v14, {sU[1]}, v14")
        p("v_bfe_u32 v13, v13, 1, 3")
        p(f"v_lshrrev_b32 v15, 5, {vLane}")
        p("v_xor_b32 v13, v13, v15")
        for q in range(4):
            p(f"v_xor_b32 v15, {2 * q}, v13")
            p(f"v_lshl_add_u32 v{20 + q}, v15, 4, v14")
        p(f"s_cmp_lt_u32 {sh}, 14")
        p(f"s_cselect_b32 s18, {448 * 448 * 2}, 0")
        p(f"s_cselect_b32 s22, {448 * 1792 * 2}, 0")
        p(f"s_cselect_b32 s26, {448 * 1792 * 2}, 0")
        for base, src, size in ((12, 42, 448 * 2688), (16, 44, None), (20, 48, None), (24, 50, None),
                                (32, 52, WS_BYTES)):
            p(f"s_mov_b32 s{base}, s{src}")
            p(f"s_mov_b32 s{base + 1}, s{src + 1}")
            if size is not None:
                p(f"s_mov_b32 s{base + 2}, {size}")
            p(f"s_mov_b32 s{base + 3}, 0x00020000")
        p(f"s_mul_i32 s4, {sg}, {G_STRIDE}")
        p(f"s_add_u32 s4, s4, {WS_G}")
        p("s_add_u32 s36, s52, s4")
        p("s_addc_u32 s37, s53, 0")
        p(f"s_mov_b32 s38, {G_STRIDE}")
        p("s_mov_b32 s39, 0x00020000")
        p(f"s_mov_b32 s28, s46\ns_mov_b32 s29, s47\ns_mov_b32 s30, {2048 * 896}\ns_mov_b32 s31, 0x00020000")
        p(f"s_mul_i32 s4, {sh}, 56")
        p(f"s_mul_i32 s5, {sw}, {16 * 2688}")
        p("s_add_u32 s4, s4, s5")
        p(f"s_lshl_b32 s5, {sw}, 10")
        p(f"s_lshl_b32 {sU[6]}, {sg}, 1")
        p(f"s_add_u32 {sU[6]}, {sU[6]}, {srh}")
        p(f"s_mul_i32 {sU[7]}, {sU[6]}, 37")
        p(f"s_lshr_b32 {sU[7]}, {sU[7]}, 8")
        p(f"s_mul_i32 {sU[7]}, {sU[7]}, 7")
        p(f"s_sub_u32 {sU[6]}, {sU[6]}, {sU[7]}")

    def consts(self):
        p = self.p
        p(f"s_mov_b32 {sONES}, 0x3f803f80")
        p(f"s_mov_b32 {sLOG2E}, 0x3fb8aa3b")
        p(f"s_mov_b32 {sEPS6}, 0x358637bd")
        p(f"s_mov_b32 {sHI}, 0xffff0000")
        p("s_mov_b32 s52, 0x10000000")
        p("s_mov_b32 s53, 0x10000000")
        p("s_mov_b32 s54, 0")
        p("s_mov_b32 s55, -1")

    def wqkv_item(self, m, lbase, tag):
        p = self.p
        with self.cap() as c:
            p(f"s_lshl_b32 {sU[7]}, {sU[6]}, 12")
            p(f"s_add_u32 {sU[7]}, {sU[7]}, s5")
            p(f"s_add_u32 m0, {sU[7]}, {lbase}")
            p(f"s_mul_i32 {sU[7]}, {sU[6]}, {64 * 2688}")
            p(f"s_add_u32 {sU[7]}, {sU[7]}, s4")
            p(f"buffer_load_dwordx4 v6, {SQ}, {sU[7]} offen offset:0 lds" if m == 0 else
              f"s_add_u32 {sU[7]}, {sU[7]}, {896 * m}\nbuffer_load_dwordx4 v6, {SQ}, {sU[7]} offen lds", tag)
            p(f"s_add_u32 {sU[6]}, {sU[6]}, 1")
            p(f"s_cmp_eq_u32 {sU[6]}, 7")
            p(f"s_cselect_b32 {sU[6]}, 0, {sU[6]}")
        return c.ins

    def wo_items(self):
        p = self.p
        items = []
        for u in range(7):
            with self.cap() as c:
                if u == 0:
                    p(f"s_lshl_b32 {sU[8]}, {sh}, 6")
                    p(f"s_mul_i32 {sU[7]}, {sw}, {16 * 896}")
                    p(f"s_add_u32 {sU[8]}, {sU[8]}, {sU[7]}")
                p(f"s_add_u32 m0, s5, {L_WO + 4 * u * KB}")
                p(f"s_add_u32 {sU[7]}, {sU[8]}, {64 * u * 896}")
                p(f"buffer_load_dwordx4 v7, {SO}, {sU[7]} offen lds", "wo")
            items.append(c.ins)
        return items

    def w1_items(self):
        p = self.p
        items = []
        for s in range(28):
            with self.cap() as c:
                if s == 0:
                    p(f"s_lshl_b32 {sU[9]}, {sh}, 8")
                    p(f"s_lshl_b32 {sU[7]}, {sw}, 6")
                    p(f"s_add_u32 {sU[9]}, {sU[9]}, {sU[7]}")
                p(f"s_add_u32 {sU[7]}, {sU[9]}, {16 * s * 3584}")
                p(f"buffer_load_dwordx4 {w1reg(s)}, v8, {S1}, {sU[7]} offen", "w1")
            items.append(c.ins)
        return items

    def mall_items(self):
        p = self.p
        items = []
        with self.cap() as c:
            p(f"s_mul_i32 {sU[8]}, {srh}, 14")
            p(f"s_add_u32 {sU[8]}, {sU[8]}, {sh}")
            p(f"s_lshl_b32 {sU[8]}, {sU[8]}, 3")
            p(f"s_add_u32 {sU[8]}, {sU[8]}, {sg}")
            p(f"s_lshl_b32 {sU[8]}, {sU[8]}, 2")
            p(f"s_add_u32 {sU[8]}, {sU[8]}, {sw}")
            p(f"s_mul_i32 {sU[7]}, {sU[8]}, {14 * 128}")
            p("s_mov_b64 exec, 0x3fff")
            p(f"buffer_load_dword v10, v9, {S1}, {sU[7]} offen", "touch")
            p(f"buffer_load_dword v10, v9, {S2}, {sU[7]} offen", "touch")
            p(f"s_mul_i32 {sU[7]}, {sU[8]}, {7 * 64}")
            p("s_mov_b64 exec, 0xf")
            p(f"buffer_load_dword v10, v9, {SO}, {sU[7]} offen", "touch")
            p("s_mov_b64 exec, -1")
        items.append(c.ins)
        return items

    def touch_items(self, base, lines, per=16):
        p = self.p
        with self.cap() as c:
            p(f"s_mul_i32 {sU[7]}, {srh}, {per}")
            p(f"s_add_u32 {sU[7]}, {sU[7]}, {sh}")
            p(f"s_lshl_b32 {sU[7]}, {sU[7]}, 2")
            p(f"s_add_u32 {sU[7]}, {sU[7]}, {sw}")
            p(f"s_mul_i32 {sU[7]}, {sU[7]}, {lines * 128}")
            p(f"s_add_u32 {sU[7]}, {sU[7]}, {base}")
            if lines <= 32:
                p("s_mov_b32 exec_hi, 0")
            elif lines < 64:
                p(f"s_mov_b32 exec_hi, {(1 << (lines - 32)) - 1}")
            p(f"buffer_load_dword v10, v9, {SG}, {sU[7]} offen", "touch")
            p("s_mov_b32 exec_hi, -1")
        return [c.ins]

    def startup(self):
        p = self.p
        for u in range(2):
            p.add(self.wqkv_item(1, L_WK, "wk"))
        p("s_waitcnt lgkmcnt(0)")
        self.consts()
        p(f"s_getreg_b32 {sfast}, hwreg(HW_REG_XCC_ID, 0, 4)")
        p(f"s_add_u32 {sT5}, {sE}, {sfast}")
        p(f"s_add_u32 {sT5}, {sT5}, 1")
        p(f"v_mov_b32 v14, {sT5}")
        p(f"s_lshl_b32 {sT2}, {sg}, 5")
        p(f"s_add_u32 {sT2}, {sT2}, s3")
        p(f"s_lshl_b32 {sT2}, {sT2}, 2")
        p(f"s_add_u32 {sT2}, {sT2}, {WS_XC}")
        p("s_mov_b64 exec, 1")
        p(f"buffer_store_dword v14, {vL16}, {SWS}, {sT2} offen sc1", "xc")
        p("s_mov_b64 exec, -1")
        p.wait_vm("x")
        self.stamp("x_landed")
        for s in range(28):
            p(f"ds_read_b128 {V(64 + 4 * s)}, v{20 + (s & 3)} offset:{(s >> 2) * 4096}")
        for r in range(24, 28):
            p(f"v_mov_b32 v{r}, 0")
        p.add(self.wqkv_item(1, L_WK, "wk"))
        p.wait_ds()
        p("s_barrier")
        with self.cap() as c:
            for i in range(112):
                p(f"v_dot2c_f32_bf16 v{24 + (i & 1)}, {sONES}, v{64 + i}")
                p(f"v_dot2c_f32_bf16 v{26 + (i & 1)}, v{64 + i}, v{64 + i}")
            p("v_add_f32 v24, v24, v25")
            p("v_add_f32 v26, v26, v27")
            self.both_halves("v24", "v26", None)
            self.stats_finish("v24", "v25", "v28", "v30")
            p("v_rsq_f32 v30, v30")
            p("v_mul_f32_e64 v28, -v28, v30")
            p("v_mov_b32 v31, v30")
            p("v_mov_b32 v29, v28")
            for i in range(0, 112, 2):
                t = 32 + 4 * ((i >> 1) & 1)
                for k in range(2):
                    p(f"v_lshlrev_b32 v{t + 2 * k}, 16, v{64 + i + k}")
                    p(f"v_and_b32 v{t + 2 * k + 1}, {sHI}, v{64 + i + k}")
                for k in range(2):
                    p(f"v_pk_fma_f32 {V(t + 2 * k, 2)}, {V(t + 2 * k, 2)}, v[30:31], v[28:29]")
                for k in range(2):
                    p(f"v_cvt_pk_bf16_f32 v{64 + i + k}, v{t + 2 * k}, v{t + 2 * k + 1}")
        main = groups(c.ins, 4)
        items = [self.wqkv_item(1, L_WK, "wk") for u in range(4)] + [self.wqkv_item(2, L_WV, "wv") for u in range(7)]
        with self.cap() as c2:
            p(f"v_and_b32 v47, 31, {vLane}")
            p("v_lshlrev_b32 v47, 2, v47")
            p(f"s_lshl_b32 {sT2}, {sg}, 7")
            p(f"s_add_u32 {sT2}, {sT2}, {WS_XC}")
            self.poll_load("v47", SWS, sT2, 1, 46)
        items.insert(9, c2.ins)
        if self.opt.get("touch", 1) == 2:
            items += self.touch_items(G_O, 32)
        if self.opt.get("mall", 1):
            items += self.mall_items()
        n = len(main)
        p.add(spread(main, [(items, 0, int(n * self.opt.get("lnspan", 90) / 100))]))
        self.stamp("ln_done")
        self.apoll_end("v47", SWS, sT2, 1, 1, 46)
        p(f"v_cmp_ne_u32 vcc, {sfast}, v46")
        p("s_cmp_eq_u64 vcc, 0")
        p(f"s_cselect_b32 {sfast}, {0 if self.force_slow else 1}, 0")
        p.wait_vm(["wk", "wv"])
        p("s_barrier")
        self.stamp("wkv_landed")

    def phi(self, acc, out, tmp, scale=None):
        p = self.p
        for r0 in range(0, 16, 2):
            rr = (r0, r0 + 1)
            a = {r: f"v{acc + r}" for r in rr}
            t = {r: f"v{tmp + (r & 3)}" for r in rr}
            for r in rr:
                if scale is None:
                    p(f"v_add_f32 {a[r]}, {sEPS6}, {a[r]}")
                else:
                    p(f"v_fma_f32 {a[r]}, {a[r]}, {scale(r)}, {sEPS6}")
            for r in rr:
                p(f"v_mul_f32 {t[r]}, {sLOG2E}, {a[r]}")
            for r in rr:
                p(f"v_exp_f32 {t[r]}, {t[r]} clamp")
            for r in rr:
                p(f"v_max_f32 {a[r]}, {sEPS6}, {a[r]}")
            for r in rr:
                p(f"v_add_f32 {a[r]}, {a[r]}, {t[r]}")
            p(f"v_cvt_pk_bf16_f32 v{out + (r0 >> 1)}, {a[r0]}, {a[r0 + 1]}")

    def kv_addrs(self, layer, a0, a1):
        p = self.p
        p(f"s_lshl_b32 {sT0}, {sw}, 10")
        p(f"v_add_u32 {a0}, {sT0}, {vS16}")
        p(f"s_lshl_b32 {sT0}, {sw}, 12")
        p(f"v_add_u32 {a1}, {sT0}, {vS16}")
        p(f"s_lshl_b32 {sT0}, {sh}, 16")
        p(f"s_lshl_b32 {sT1}, {sw}, 10")
        p(f"s_add_u32 {sT0}, {sT0}, {sT1}")
        p(f"s_add_u32 s6, {sT0}, {WS_KV + layer * 0x100000}")
        p(f"s_lshl_b32 {sT1}, {sg}, 1")
        p(f"s_add_u32 {sT1}, {sT1}, {srh}")
        p(f"s_lshl_b32 {sT1}, {sT1}, 12")
        p(f"s_add_u32 s2, {sT1}, s6")
        p(f"s_add_u32 s7, {sE}, {1 + layer}")

    def kv_publish(self, kvacc, a0, a1):
        p = self.p
        p(f"{MFMA} {kvacc(0, 16)}, {V(16)}, {V(32)}, 0")
        p(f"{MFMA} {kvacc(0, 16)}, {V(20)}, {V(36)}, {kvacc(0, 16)}")
        p("v_mov_b32 v29, s7")
        p("v_mov_b32 v31, s7")
        for q in range(4):
            p(f"ds_write_b128 {a0}, {kvacc(4 * q, 4)} offset:{S_KVP + q * 4096}")
        p.wait_ds()
        p("s_barrier")
        for u in range(4):
            p(f"ds_read_b128 {V(32 + 4 * u)}, {a1} offset:{S_KVP + u * 1024}")
        for r in (0, 2):
            p(f"v_pk_add_f32 {V(32 + r, 2)}, {V(32 + r, 2)}, {V(36 + r, 2)}")
        for r in (0, 2):
            p(f"v_pk_add_f32 {V(40 + r, 2)}, {V(40 + r, 2)}, {V(44 + r, 2)}")
        for r in (0, 2):
            p(f"v_pk_add_f32 {V(32 + r, 2)}, {V(32 + r, 2)}, {V(40 + r, 2)}")
        p("v_cvt_pk_bf16_f32 v28, v32, v33")
        p("v_cvt_pk_bf16_f32 v30, v34, v35")
        p(f"buffer_store_dwordx4 v[28:31], {vL16}, {SWS}, s2 offen sc1", "kvpub")

    def o_addrs(self):
        p = self.p
        p(f"s_mul_i32 {sT0}, {sh}, 7")
        p(f"v_lshrrev_b32 v16, 5, {vLane}")
        p(f"v_add_u32 v16, {sT0}, v16")
        p(f"v_and_b32 v17, 31, {vLane}")
        p("v_lshlrev_b32 v17, 4, v17")
        p("v_and_b32 v18, 1, v16")
        p("v_lshl_add_u32 v17, v18, 9, v17")
        p("v_lshrrev_b32 v16, 1, v16")
        for j in range(4):
            p(f"v_add_u32 v18, {j}, v16")
            p("v_and_b32 v19, 1, v18")
            p("v_lshrrev_b32 v18, 1, v18")
            p("v_lshl_add_u32 v18, v18, 10, v17")
            p(f"v_lshl_add_u32 v{56 + j}, v19, 3, v18")
        p(f"s_lshr_b32 {sT0}, {sw}, 1")
        p(f"s_lshl_b32 {sT0}, {sT0}, 10")
        p(f"s_and_b32 {sT1}, {sw}, 1")
        p(f"s_lshl_b32 {sT1}, {sT1}, 3")
        p(f"s_add_u32 {sT0}, {sT0}, {sT1}")
        p(f"v_add_u32 v60, {sT0}, {vS16}")
        p(f"s_lshl_b32 {sT0}, {stb}, 7")
        p(f"s_lshl_b32 {sT1}, {sh}, 2")
        p(f"s_add_u32 {sT0}, {sT0}, {sT1}")
        p(f"s_add_u32 s3, {sT0}, {G_FO}")

    def kv_gather_o(self, layer, G, shadow=None):
        p = self.p

        def loads():
            for u in range(16):
                p(f"s_add_u32 {sT5}, s6, {u * 4096}")
                p(f"buffer_load_dwordx4 {V(G + 4 * u)}, {vL16}, {SWS}, {sT5} offen sc1")

        def test():
            for u in range(16):
                p(f"v_xor_b32 v{G + 4 * u + 1}, s7, v{G + 4 * u + 1}")
                p(f"v_xor_b32 v{G + 4 * u + 3}, s7, v{G + 4 * u + 3}")
                if u == 0:
                    p(f"v_or_b32 v16, v{G + 1}, v{G + 3}")
                else:
                    p(f"v_or3_b32 v16, v16, v{G + 4 * u + 1}, v{G + 4 * u + 3}")
            p("v_cmp_ne_u32 vcc, 0, v16")
        loads()
        if shadow:
            shadow()
        self.o_addrs()
        lo, lb, lp = p.label("kvspin"), p.label("kvback"), p.label("kvloop")
        test()
        p(f"s_cbranch_vccnz {lo}")
        p(f"{lb}:")
        with self.cap() as c:
            p(f"{lo}:")
            p(f"s_mov_b32 {sCnt}, {slim}")
            p(f"{lp}:")
            loads()
            p("s_waitcnt vmcnt(0)")
            test()
            p(f"s_cbranch_vccz {lb}")
            p(f"s_sub_u32 {sCnt}, {sCnt}, 1")
            p(f"s_cmp_lg_u32 {sCnt}, 0")
            p(f"s_cbranch_scc1 {lp}")
            p(f"s_mov_b32 {slim}, 1")
            p(f"s_branch {lb}")
        self.tail.extend(c.ins)
        self.stamp(f"kv_seen{layer}")
        for u in range(16):
            for k in range(2):
                src = f"v{G + 4 * u + 2 * k}"
                if u == 0:
                    p(f"v_lshlrev_b32 v{16 + 2 * k}, 16, {src}")
                    p(f"v_and_b32 v{17 + 2 * k}, {sHI}, {src}")
                else:
                    t = 20 + 2 * k
                    p(f"v_lshlrev_b32 v{t}, 16, {src}")
                    p(f"v_and_b32 v{t + 1}, {sHI}, {src}")
                    p(f"v_pk_add_f32 {V(16 + 2 * k, 2)}, {V(16 + 2 * k, 2)}, {V(t, 2)}")
        p("v_cvt_pk_bf16_f32 v20, v16, v17")
        p("v_cvt_pk_bf16_f32 v21, v18, v19")
        p(f"ds_write_b64 v60, v[20:21] offset:{S_KVS}")
        p.wait_ds()
        p("s_barrier")
        p(f"ds_read_b128 {V(24)}, {vS16} offset:{S_KVS}")
        p(f"ds_read_b128 {V(28)}, {vS16} offset:{S_KVS + 1024}")
        p(f"{MFMA} {V(32, 16)}, {V(24)}, {V(48)}, 0")
        p(f"{MFMA} {V(32, 16)}, {V(28)}, {V(52)}, {V(32, 16)}")
        p("v_mov_b32 v16, v44")
        p("v_mov_b32 v17, v44")
        p("v_permlane32_swap_b32 v16, v17")
        p(f"v_add_f32 v16, {sEPS6}, v17")
        p("v_rcp_f32 v16, v16")
        for r in range(0, 16, 2):
            p(f"v_pk_mul_f32 {V(32 + r, 2)}, {V(32 + r, 2)}, v[16:17] op_sel_hi:[1,0]")
        for r in range(8):
            p(f"v_cvt_pk_bf16_f32 v{20 + r}, v{32 + 2 * r}, v{33 + 2 * r}")
        st = [f"buffer_store_dwordx2 {V(20 + 2 * j, 2)}, v{56 + j}, {SG}, {sHB} offen" for j in range(3)]
        st += ["s_mov_b32 exec_hi, 0", f"buffer_store_dwordx2 {V(26, 2)}, v59, {SG}, {sHB} offen",
               "s_mov_b64 exec, -1"]
        self.publish(st)
        self.flag("s3", 1 + layer)
        self.stamp(f"o_pub{layer}")

    def qkv0(self):
        p = self.p
        rd = []
        for s in range(28):
            f = (s % 3) * 8
            rd.append((self.trread(A(f, 2), A(f + 2, 2), "v62", L_WK + s * KB, 256),
                       self.trread(A(f + 4, 2), A(f + 6, 2), "v62", L_WV + s * KB, 256)))
        p.add(rd[0][0] + rd[0][1] + rd[1][0] + rd[1][1])
        main = []
        for s in range(28):
            f = (s % 3) * 8
            for k in range(2):
                acc = V(16 + 16 * k, 16)
                g = [Ins(f"{MFMA} {acc}, {V(64 + 4 * s)}, {A(f + 4 * k)}, {acc if s else 0}")]
                if s + 2 < 28:
                    g += rd[s + 2][k]
                main.append(g)
        with self.cap() as c:
            self.kv_addrs(0, "v60", "v61")
        items = [self.wqkv_item(0, L_WQ, "wq") for u in range(7)]
        p.add(spread(main, [(items, 0, 50), (groups(c.ins), 20, 50)]))
        self.stamp("kv_gemm0")
        with self.cap() as c:
            self.phi(16, 16, 48)
            p(f"v_mov_b32 v48, {sONES}")
            for r in range(8):
                p(f"v_cvt_pk_bf16_f32 v{32 + r}, v{32 + 2 * r}, v{33 + 2 * r}")
            for r in range(8):
                p(f"v_cndmask_b32 v{32 + r}, v{32 + r}, v48, {sM28}")
        p.add(c.ins)
        self.kv_publish(lambda lo, k: A(24 + lo, k), "v60", "v61")
        self.stamp("kv_pub0")
        p("v_mov_b32 v13, v63")
        p.wait_vm("wq")
        p("s_barrier")
        rd = [self.trread(A((s % 4) * 4, 2), A((s % 4) * 4 + 2, 2), "v13", s * KB, 256) for s in range(28)]
        p.add(rd[0] + rd[1] + rd[2])
        main = []
        for s in range(28):
            g = [Ins(f"{MFMA} {V(48, 16)}, {A((s % 4) * 4)}, {V(64 + 4 * s)}, {V(48, 16) if s else 0}")]
            if s + 3 < 28:
                g += rd[s + 3]
            main.append(g)
        with self.cap() as c:
            self.phi(48, 48, 16)
            p(f"v_cndmask_b32 v54, v54, 0, {sMPAD}")
            p(f"v_cndmask_b32 v55, v55, 0, {sMPAD}")
        main += groups(c.ins, 6)
        self.w1 = self.w1_items()
        n1 = self.opt.get("w1early", 14)
        touch = self.touch_items(G_O, 32) if self.opt.get("touch", 1) == 1 else []
        items = touch + self.wo_items() + self.w1[:n1]
        self.w1 = self.w1[n1:]
        p.add(spread(main, [(items, 0, len(main) - 1)]))
        self.stamp("q_done0")

    def colsum_qkv_items(self):
        p = self.p
        items = []
        with self.cap() as c:
            p(f"s_min_u32 {sU[0]}, {sw}, 2")
            p(f"s_mul_i32 {sU[0]}, {sU[0]}, {28 * KB}")
            p(f"v_add_u32 v60, {sU[0]}, {vTrA}")
            p.add(self.trread(V(40, 2), V(42, 2), "v60", 0))
        items.append(c.ins)
        for s in range(28):
            f = 40 + (s % 2) * 4
            g = []
            if s + 1 < 28:
                f2 = 40 + ((s + 1) % 2) * 4
                g += self.trread(V(f2, 2), V(f2 + 2, 2), "v60", (s + 1) * KB)
            g.append(Ins(f"{MFMA} {A(0, 16)}, {self.ones}, {V(f)}, {A(0, 16) if s else 0}"))
            items.append(g)
        with self.cap() as c:
            p("v_accvgpr_read_b32 v40, a0")
            self.split_words("v40", "v42", "v43", "v41", False, False)
            p(f"v_cndmask_b32 v42, v42, 0, {sMPAD}")
            p(f"v_cndmask_b32 v43, v43, 0, {sMPAD}")
            p(f"s_lshl_b32 {sU[0]}, {sw}, 9")
            p(f"v_lshlrev_b32 v60, 3, {vLane}")
            p(f"v_add_u32 v60, {L_S + S_STAT}, v60")
            p(f"v_add_u32 v61, {sU[0]}, v60")
            p("ds_write_b64 v61, v[42:43]")
        items.append(c.ins)
        return items

    def colsum_qkv_fetch(self):
        p = self.p
        p(f"v_lshlrev_b32 v13, 3, {vLane}")
        p(f"v_add_u32 v13, {L_S + S_STAT}, v13")
        p(f"ds_read_b64 {V(vCSQ + 2, 2)}, v13")
        p(f"ds_read_b64 {V(vCSQ + 4, 2)}, v13 offset:512")
        p(f"ds_read_b64 {V(vCSQ, 2)}, v13 offset:1024")

    def colsum_w1_items(self):
        p = self.p
        items = [[Ins(f"{MFMA} {A(16, 16)}, {self.ones}, {w1reg(s)}, {A(16, 16) if s else 0}")] for s in range(28)]
        with self.cap() as c:
            p("v_accvgpr_read_b32 v62, a16")
            self.split_words("v62", f"v{vCS1}", f"v{vCS1 + 1}", "v63", False, False)
            p(f"v_cndmask_b32 v{vCS1}, v{vCS1}, 0, {sMPAD}")
            p(f"v_cndmask_b32 v{vCS1 + 1}, v{vCS1 + 1}, 0, {sMPAD}")
        items.append(c.ins)
        return items

    def make_ones(self):
        p = self.p
        p(f"v_mov_b32 v15, {sONES}")
        for r in range(4):
            p(f"v_accvgpr_write_b32 a{32 + r}, v15")
        self.ones = A(32)

    def qkv1(self):
        p = self.p
        p(f"v_min_u32 v13, 27, {vLane}")
        p("v_lshlrev_b32 v13, 2, v13")
        p(f"s_lshl_b32 {sT0}, {stb}, 7")
        p(f"s_add_u32 {sT0}, {sT0}, {G_FX}")
        WF = [152, 156, 160, 164, 168, 172]

        def wf(s, k):
            r = WF[3 * (s % 2) + k]
            if k == 2:
                return self.trread(V(r, 2), V(r + 2, 2), vTrB, s * KB)
            return self.trread(V(r, 2), V(r + 2, 2), vTrA, (L_WK, L_WV)[k] + s * KB)
        p.add(wf(0, 0) + wf(0, 1) + wf(0, 2))
        self.poll("v13", SG, sT0, 2)
        self.stamp("x2_seen")
        RING, NR = 96, 14

        def ld(s):
            q = sub()
            if s % 4 == 0:
                q(f"s_add_u32 s4, {sXB}, {s * KB}")
            q(f"buffer_load_dwordx4 {V(RING + 4 * (s % NR))}, {vL16}, {SG}, s4 offen offset:{(s % 4) * KB} sc1")
            return q.ins
        LEAD = self.opt.get("lead", 6)
        for s in range(LEAD):
            p.add(ld(s))
        stl = []
        for u in range(7):
            with self.cap() as c:
                if u % 4 == 0:
                    p(f"s_add_u32 {sT5}, {sSTB}, {u * KB}")
                p(f"buffer_load_dwordx4 {V(64 + 4 * u)}, {vL16}, {SG}, {sT5} offen offset:{(u % 4) * KB} sc1")
            stl.append(c.ins)
        with self.cap() as st:
            for i in range(1, 28):
                p(f"v_add_f32 v{64 + (i & 1)}, v{64 + (i & 1)}, v{64 + i}" if i > 1 else "v_nop")
            p("v_add_f32 v64, v64, v65")
            self.stats_finish("v64", "v65", "v66", "v67")
            p("v_rsq_f32 v88, v67")
            self.split_words("v66", "v92", "v93", "v65", True, True)
            p("v_mov_b32 v94, 0")
            p("v_mov_b32 v95, 0")
            p("v_cvt_pk_bf16_f32 v80, v88, v88")
            p(f"v_and_b32 v64, {sHI}, v80")
            p("v_sub_f32 v64, v88, v64")
            p("v_cvt_pk_bf16_f32 v81, v64, v64")
            p(f"v_and_b32 v65, {sHI}, v81")
            p("v_sub_f32 v65, v64, v65")
            p("v_and_b32 v80, 0xffff, v80")
            p(f"v_and_or_b32 v80, v81, {sHI}, v80")
            p("v_cvt_pk_bf16_f32 v81, v65, 0")
            p("v_mov_b32 v82, 0")
            p("v_mov_b32 v83, 0")
            p(f"v_mov_b32 v84, {sONES}")
            p(f"v_cndmask_b32 v84, v84, 0, {sMPAD}")
            p("v_mov_b32 v85, v84")
            p("v_mov_b32 v86, 0")
            p("v_mov_b32 v87, 0")
            p(f"{MFMA} {V(64, 16)}, {V(80)}, {V(84)}, 0")
            self.kv_addrs(1, "v89", "v90")
            for m, dst in ((1, 80), (2, 84)):
                p(f"v_mov_b32 v{dst}, v{vCSQ + 2 * m}")
                p(f"v_mov_b32 v{dst + 1}, v{vCSQ + 2 * m + 1}")
        main = []
        for s in range(28):
            o = 3 * (s % 2)
            a = V(RING + 4 * (s % NR))
            nk = 3 if s < NR else 2
            nk2 = 3 if s + 1 < NR else 2
            for k in range(nk):
                acc = V(16 + 16 * k, 16)
                c = acc if s else 0
                g = [Ins(f"{MFMA} {acc}, {a}, {V(WF[o + k])}, {c}" if k < 2 else f"{MFMA} {acc}, {V(WF[o + k])}, {a}, {c}")]
                if s + 1 < 28 and k < nk2:
                    g += wf(s + 1, k)
                main.append(g)
        seq = [ld(s) for s in range(LEAD, 14)] + stl + [ld(s) for s in range(14, 28)]
        slots = []
        gpos = 0
        for i, it in enumerate(seq):
            s = i + LEAD - 7
            if s >= 14:
                gpos = max(gpos, 3 * (s - 14) + 2)
            slots.append(([it], gpos, gpos))
            gpos += 2
        p.add(spread(main, slots + [(groups(st.ins), 40, len(main) - 2)]))
        p(f"{MFMA} {V(16, 16)}, {V(92)}, {V(80)}, {V(16, 16)}")
        p(f"{MFMA} {V(32, 16)}, {V(92)}, {V(84)}, {V(32, 16)}")
        self.stamp("kv_gemm1")
        QF = [152, 156, 160, 164]
        qrd = lambda s: self.trread(V(QF[s % 4], 2), V(QF[s % 4] + 2, 2), vTrB, s * KB)
        p.add(qrd(14) + qrd(15) + qrd(16))
        main = []
        for s in range(NR, 28):
            g = [Ins(f"{MFMA} {V(48, 16)}, {V(QF[s % 4])}, {V(RING + 4 * (s % NR))}, {V(48, 16)}")]
            if s + 3 < 28:
                g += qrd(s + 3)
            main.append(g)
        with self.cap() as c:
            self.phi(16, 16, 168, lambda r: f"v{64 + r}")
            p(f"v_mov_b32 v168, {sONES}")
            for r in range(16):
                p(f"v_mul_f32 v{32 + r}, v{32 + r}, v{64 + r}")
            for r in range(8):
                p(f"v_cvt_pk_bf16_f32 v{32 + r}, v{32 + 2 * r}, v{33 + 2 * r}")
            for r in range(8):
                p(f"v_cndmask_b32 v{32 + r}, v{32 + r}, v168, {sM28}")
            p(f"v_mov_b32 v80, v{vCSQ}")
            p(f"v_mov_b32 v81, v{vCSQ + 1}")
        p.add(spread(main, [(groups(c.ins), 1, len(main) - 1)]))
        self.kv_publish(lambda lo, k: V(64 + lo, k), "v89", "v90")
        p(f"{MFMA} {V(48, 16)}, {V(80)}, {V(92)}, {V(48, 16)}")
        self.stamp("kv_pub1")

    def q1_epilogue(self):
        p = self.p
        self.phi(48, 48, 168, lambda r: "v88")
        p(f"v_cndmask_b32 v54, v54, 0, {sMPAD}")
        p(f"v_cndmask_b32 v55, v55, 0, {sMPAD}")

    def wo_phase(self, layer, pre=None, streams=()):
        p = self.p
        if layer == 0:
            p(f"v_and_b32 v13, 31, {vLane}")
            p("v_mul_u32_u24 v13, 896, v13")
            p(f"v_lshrrev_b32 v14, 5, {vLane}")
            p("v_lshl_add_u32 v13, v14, 3, v13")
            p(f"s_lshl_b32 {sT0}, {sg}, 3")
            p(f"s_add_u32 {sT0}, {sT0}, {stb}")
            p(f"s_mul_i32 {sT0}, {sT0}, {32 * 896}")
            p(f"s_lshl_b32 {sT1}, {sh}, 6")
            p(f"s_add_u32 {sT0}, {sT0}, {sT1}")
            for a in range(4):
                p(f"buffer_load_dwordx2 {V(32 + 2 * a, 2)}, v13, {SX}, {sT0} offen offset:{16 * a}")
        p(f"s_lshl_b32 s5, {sh}, 11")
        p(f"s_add_u32 s5, s5, {sXB}")
        if layer == 1:
            p(f"buffer_load_dwordx4 {V(32)}, {vL16}, {SG}, s5 offen sc1")
            p(f"buffer_load_dwordx4 {V(36)}, {vL16}, {SG}, s5 offen offset:1024 sc1")
        p(f"s_lshr_b32 {sT1}, {sh}, 1")
        p(f"s_lshl_b32 {sT1}, {sT1}, 10")
        p(f"s_and_b32 {sT2}, {sh}, 1")
        p(f"s_lshl_b32 {sT2}, {sT2}, 3")
        p(f"s_add_u32 {sT1}, {sT1}, {sT2}")
        p(f"s_add_u32 s6, {sT1}, {sSTB}")
        p(f"s_lshl_b32 {sT0}, {stb}, 7")
        p(f"s_lshl_b32 {sT1}, {sh}, 3")
        p(f"s_add_u32 {sT1}, {sT0}, {sT1}")
        p(f"s_add_u32 s7, {sT1}, {G_FX}")
        p(f"s_add_u32 {sT0}, {sT0}, {G_FO}")
        p(f"v_and_b32 v13, 15, {vLane}")
        p("v_lshlrev_b32 v13, 2, v13")
        rd = [self.trread(V(48 + (s % 3) * 4, 2), V(50 + (s % 3) * 4, 2), vTrB, (L_WO - L_WQ) + s * KB)
              for s in range(28)]
        p.add(rd[0] + rd[1])
        if pre:
            pre()
        self.poll("v13", SG, sT0, 1 + layer)
        self.stamp(f"o_seen{layer}")
        RING = 64
        LEAD = self.opt.get("leadwo", 8)

        def ld(s):
            q = sub()
            if s % 4 == 0:
                q(f"s_add_u32 s4, {sHB}, {s * KB}")
            q(f"buffer_load_dwordx4 {V(RING + 4 * s)}, {vL16}, {SG}, s4 offen offset:{(s % 4) * KB} sc1")
            return q.ins
        for s in range(LEAD):
            p.add(ld(s))
            p(f"v_lshlrev_b32 v{16 + 2 * s}, 16, v{32 + s}" if s < 8 else "; -")
            p(f"v_and_b32 v{17 + 2 * s}, {sHI}, v{32 + s}" if s < 8 else "; -")
        assert LEAD >= 8
        main = []
        for s in range(28):
            g = [Ins(f"{MFMA} {V(16, 16)}, {V(48 + (s % 3) * 4)}, {V(RING + 4 * s)}, {V(16, 16)}")]
            if s + LEAD < 28:
                g += ld(s + LEAD)
            if s + 2 < 28:
                g += rd[s + 2]
            main.append(g)
        p.add(spread(main, list(streams)))
        self.stamp(f"wo_gemm{layer}")
        for r in range(8):
            p(f"v_cvt_pk_bf16_f32 v{32 + r}, v{16 + 2 * r}, v{17 + 2 * r}")
        self.publish([f"buffer_store_dwordx4 {V(32)}, {vL16}, {SG}, s5 offen",
                      f"buffer_store_dwordx4 {V(36)}, {vL16}, {SG}, s5 offen offset:1024"])
        p("v_pk_mul_f32 v[42:43], v[16:17], v[16:17]")
        for r in range(2, 16, 2):
            p(f"v_pk_fma_f32 v[42:43], {V(16 + r, 2)}, {V(16 + r, 2)}, v[42:43]")
            p(f"v_pk_add_f32 v[16:17], v[16:17], {V(16 + r, 2)}")
        p("v_add_f32 v40, v16, v17")
        p("v_add_f32 v42, v42, v43")
        p("v_mov_b32 v41, 0")
        self.both_halves("v40", "v42", None)
        self.publish([f"buffer_store_dwordx2 v[40:41], {vL16}, {SG}, s6 offen"])
        self.flag("s7", 1 + 2 * layer, 2)
        self.stamp(f"x1_pub{layer}")

    def w2_setup(self, va, vb):
        p = self.p
        p(f"v_lshrrev_b32 v13, 2, {vLane}")
        p(f"v_and_b32 v15, 3, {vLane}")
        p("v_lshlrev_b32 v15, 4, v15")
        p("v_mul_u32_u24 v14, 896, v13")
        p("v_add_u32 v13, v14, v15")
        p(f"s_lshl_b32 {sU[0]}, {sw}, 5")
        p(f"v_xor_b32 {va}, {sU[0]}, v13")
        p(f"v_xor_b32 {vb}, 64, {va}")
        p(f"s_lshl_b32 {sU[0]}, {scb}, 7")
        p(f"s_mul_i32 {sU[1]}, {sw}, {32 * 896}")
        p(f"s_add_u32 {sU[0]}, {sU[0]}, {sU[1]}")
        p(f"s_lshl_b32 {sU[1]}, {scb}, 1")

    def w2_items(self, va, vb):
        p = self.p
        items = []
        for j in range(28):
            with self.cap() as c:
                if j % 2 == 0:
                    p(f"s_mul_i32 {sU[2]}, {sU[1]}, {128 * 896}")
                    p(f"s_add_u32 {sU[2]}, {sU[2]}, {sU[0]}")
                else:
                    p(f"s_add_u32 {sU[2]}, {sU[2]}, {16 * 896}")
                    p(f"s_add_u32 {sU[1]}, {sU[1]}, 1")
                    p(f"s_cmp_eq_u32 {sU[1]}, 14")
                    p(f"s_cselect_b32 {sU[1]}, 0, {sU[1]}")
                p(f"buffer_load_dwordx4 {w2reg(j, 0)}, {va}, {S2}, {sU[2]} offen", "w2")
                p(f"buffer_load_dwordx4 {w2reg(j, 1)}, {vb}, {S2}, {sU[2]} offen", "w2")
            items.append(c.ins)
        return items

    def ffn(self, layer, pre=None, extra=None):
        p = self.p
        p(f"v_and_b32 v13, 15, {vLane}")
        p("v_min_u32 v13, 13, v13")
        p("v_lshlrev_b32 v13, 3, v13")
        p(f"v_lshrrev_b32 v14, 4, {vLane}")
        p("v_lshl_add_u32 v107, v14, 7, v13")
        p(f"s_mul_i32 {sT0}, {srh}, {112 * KB}")
        p(f"s_add_u32 {sT0}, {sT0}, {G_X - L_S}")
        p(f"v_add_u32 v110, {sT0}, {vL16}")
        p(f"s_lshl_b32 s5, {sw}, 10")
        p(f"s_add_u32 s5, s5, {L_S}")
        p(f"s_lshl_b32 {sT0}, {sh}, 13")
        p(f"s_lshl_b32 {sT1}, {sw}, 11")
        p(f"s_add_u32 s3, {sT0}, {sT1}")
        p(f"s_mul_i32 {sT0}, {srh}, {4 * 112 * KB}")
        p(f"s_add_u32 s3, s3, {sT0}")
        p(f"s_lshl_b32 {sT0}, {srh}, 10")
        p(f"s_lshl_b32 {sT1}, {sw}, 6")
        p(f"s_add_u32 {sT0}, {sT0}, {sT1}")
        p(f"s_lshl_b32 {sT1}, {sh}, 2")
        p(f"s_add_u32 {sT0}, {sT0}, {sT1}")
        p(f"s_add_u32 s2, {sT0}, {G_FH}")
        p(f"v_mov_b32 v84, v{vCS1}")
        p(f"v_mov_b32 v85, v{vCS1 + 1}")
        for r in (86, 87, 90, 91):
            p(f"v_mov_b32 v{r}, 0")
        p(f"v_and_b32 v108, 31, {vLane}")
        p("v_lshlrev_b32 v108, 4, v108")
        p(f"v_add_u32 v108, {L_S + S_STAT}, v108")
        p(f"s_and_b32 {sT0}, {sxs}, 3")
        p(f"s_lshl_b32 {sT0}, {sT0}, 9")
        p(f"v_add_u32 v109, {sT0}, v108")
        p.wait_ds()
        p("s_barrier")
        if pre:
            pre()
        p(f"s_lshl_b32 {sT0}, {srh}, 9")
        p(f"s_add_u32 {sT0}, {sT0}, {G_FX}")
        self.poll("v107", SG, sT0, 1 + 2 * layer, 2)
        self.stamp(f"x1_seen{layer}")

        Q, P = 10, 2

        def quad(k):
            q = sub()
            if k % Q == 0:
                q("s_mov_b32 m0, s5")
                if k:
                    q(f"v_add_u32 v110, {Q * 4 * KB}, v110")
            else:
                q(f"s_add_u32 m0, m0, {4 * KB}")
            q(f"buffer_load_dwordx4 v110, {SG}, m0 offen sc1 lds", f"c{k // P}")
            return q.ins
        for k in range(4):
            p.add(quad(k))
        stl = []
        for u in range(7):
            with self.cap() as c:
                if u % 4 == 0:
                    p(f"s_add_u32 {sT5}, {sSTB}, {u * KB}")
                p(f"buffer_load_dwordx4 {V(112 + 4 * u)}, {vL16}, {SG}, {sT5} offen offset:{(u % 4) * KB} sc1")
            stl.append(c.ins)
        with self.cap() as st:
            for i in range(2, 28):
                p(f"v_add_f32 v{112 + (i & 1)}, v{112 + (i & 1)}, v{112 + i}")
            p("v_add_f32 v112, v112, v113")
            self.stats_finish("v112", "v113", "v114", "v115")
            self.split_words("v114", "v116", "v117", "v113", True, True)
            p("v_rsq_f32 v118, v115")
            p("v_sqrt_f32 v119, v115")
            p(f"v_mul_f32_e64 v118, -v118, {sLOG2E}")
            p("ds_write_b128 v109, v[116:119]", "stw")
        XF, NX, D = 48, 5, 4
        rdx = lambda n: Ins(f"ds_read_b128 {V(XF + 4 * (n % NX))}, {vS16} offset:{(n % (4 * Q)) * KB}", f"x{n}")

        def boundary(j):
            q = sub()
            q.wait_vm(f"c{j}")
            if j == 3:
                q.wait_ds("stw")
            q("s_barrier")
            return q.ins
        p.add(quad(4))
        p.add(quad(5))
        p.add(boundary(0))
        p.add([rdx(n) for n in range(D)])
        main = []
        pos = {}
        for n in range(112):
            o, s = divmod(n, 28)
            acc = V(16 + 16 * (o & 1), 16)
            g = []
            if n % 2 == 0:
                g.append(Pseudo("wait_ds", f"x{n + 1}"))
            g.append(Ins(f"{MFMA} {acc}, {w1reg(s)}, {V(XF + 4 * (n % NX))}, {acc if s else 0}"))
            m = n + D
            if m < 112:
                if m % 8 == 0:
                    g += boundary(m // 8)
                g.append(rdx(m))
                if m == 24:
                    g += [Ins(f"ds_read_b128 {V(68 + 4 * k)}, v108 offset:{k * 512}") for k in range(4)]
                if m % 4 == 1 and m >= 8:
                    k = m // 4 + 6
                    if k < 28:
                        g += quad(k)
            if s == 24:
                g += [Ins(f"v_mov_b32 v88, v{68 + 4 * o}"), Ins(f"v_mov_b32 v89, v{69 + 4 * o}")]
            pos[n] = len(main)
            main.append(g)
            if s == 27:
                main.append([Ins(f"{MFMA} {acc}, {V(84)}, {V(88)}, {acc}")])

        hsc1 = self.opt.get("h0sc1", 1) if layer == 0 else self.opt.get("h1sc1", 0)

        def epilogue(o):
            tb = ((o & 1) << 1) | (o >> 1)
            acc = 16 + 16 * (o & 1)
            c1, sd = f"v{70 + 4 * o}", f"v{71 + 4 * o}"
            with self.cap() as c:
                for r0 in range(0, 16, 2):
                    rr = (r0, r0 + 1)
                    t = {r: f"v{92 + (r & 3)}" for r in rr}
                    a = {r: f"v{acc + r}" for r in rr}
                    for r in rr:
                        p(f"v_mul_f32 {t[r]}, {a[r]}, {c1}")
                    for r in rr:
                        p(f"v_exp_f32 {t[r]}, {t[r]}")
                    for r in rr:
                        p(f"v_fma_f32 {t[r]}, {t[r]}, {sd}, {sd}")
                    for r in rr:
                        p(f"v_rcp_f32 {t[r]}, {t[r]}")
                    for r in rr:
                        p(f"v_mul_f32 {a[r]}, {a[r]}, {t[r]}")
                    p(f"v_cvt_pk_bf16_f32 v{96 + (r0 >> 1)}, {a[r0]}, {a[r0 + 1]}")
            items = groups(c.ins)
            with self.cap() as c:
                p(f"s_add_u32 {sT0}, s3, {tb * 112 * KB}")
                self.publish([f"buffer_store_dwordx4 {V(96)}, {vL16}, {SG}, {sT0} offen",
                              f"buffer_store_dwordx4 {V(100)}, {vL16}, {SG}, {sT0} offen offset:1024"], f"h{o}",
                             always_sc1=hsc1)
            items.append(c.ins)
            with self.cap() as c:
                p(f"s_add_u32 {sT1}, s2, {tb * 256}")
                self.flag(sT1, 1 + layer, wait=f"h{o}", st=sT2)
            return items, c.ins
        streams = [([quad(6), quad(7)], 0, 1), (stl, 2, 9), (groups(st.ins), 12, 19)]
        eps = [epilogue(o) for o in range(4)]
        late = 24 if hsc1 else 12
        for o in range(3):
            streams.append((eps[o][0], pos[28 * (o + 1)] + 2, pos[28 * (o + 1) + 27]))
        for o in range(2):
            g = pos[28 * (o + 2) + late]
            streams.append(([eps[o][1]], g, g))
        with self.cap() as c:
            self.ffn2_setup(layer)
        streams.append((groups(c.ins), pos[84 + 2], pos[84 + 20]))
        with self.cap() as c:
            self.poll_load("v107", SG, sU[4], 1, 109)
        streams.insert(0, ([c.ins], pos[84 + 26], pos[84 + 26]))
        if extra:
            streams += extra(pos)
        if self.opt.get("fine"):
            self.stamp(f"f1_first{layer}")
            woven = spread(main, streams)
            k = 0
            for x in woven:
                p.add([x])
                if x.kind == "mfma":
                    k += 1
                    if k % 29 == 0 and k < 116:
                        self.stamp(f"f1_o{k // 29 - 1}_{layer}")
        else:
            p.add(spread(main, streams))
        self.stamp(f"ffn1_mfma{layer}")
        self.ffn2(layer, eps[3][0], eps[2][1], eps[3][1])

    def ffn2_setup(self, layer):
        p = self.p
        p(f"s_mul_i32 {sU[3]}, {srq}, {2 * 112 * KB}")
        p(f"s_lshl_b32 {sT3}, {sw}, 11")
        p(f"s_add_u32 {sU[3]}, {sU[3]}, {sT3}")
        p(f"s_lshl_b32 {sU[4]}, {srq}, 9")
        p(f"s_lshl_b32 {sT3}, {sw}, 6")
        p(f"s_add_u32 {sU[4]}, {sU[4]}, {sT3}")
        p(f"s_add_u32 {sU[4]}, {sU[4]}, {G_FH}")
        p(f"v_min_u32 v107, 13, {vLane}")
        p("v_lshlrev_b32 v107, 2, v107")
        p(f"s_lshr_b32 {sT3}, {srq}, 1")
        p(f"s_lshl_b32 {sT3}, {sT3}, 2")
        p(f"s_and_b32 {sT4}, {srq}, 1")
        p(f"s_add_u32 {sT3}, {sT3}, {sT4}")
        p(f"s_mul_i32 {sU[5]}, {sT3}, {28 * KB}")
        p(f"s_lshl_b32 {sT3}, {scb}, 12")
        p(f"s_lshl_b32 {sT4}, {sw}, 10")
        p(f"s_add_u32 {sT3}, {sT3}, {sT4}")
        p(f"s_add_u32 {sU[5]}, {sU[5]}, {sT3}")
        p(f"s_add_u32 {sU[5]}, {sU[5]}, {G_X}")
        p(f"s_mul_i32 {sU[6]}, {srq}, {14 * KB}")
        p(f"s_lshl_b32 {sT3}, {scb}, 10")
        p(f"s_lshl_b32 {sT4}, {sw}, {2 if layer == 0 else 8}")
        p(f"s_add_u32 {sT3}, {sT3}, {sT4}")
        p(f"s_add_u32 {sU[6]}, {sU[6]}, {sT3}")
        p(f"s_add_u32 {sU[6]}, {sU[6]}, {G_ST}")
        if layer == 0:
            p(f"s_lshl_b32 {sT3}, {srq}, 8")
            p(f"s_lshl_b32 {sT4}, {scb}, 4")
            p(f"s_add_u32 {sT3}, {sT3}, {sT4}")
            p(f"s_lshl_b32 {sT4}, {sw}, 2")
            p(f"s_add_u32 {sT3}, {sT3}, {sT4}")
            p(f"s_add_u32 {sU[7]}, {sT3}, {G_FX}")
        else:
            p(f"s_lshl_b32 {sT3}, {sg}, 2")
            p(f"s_add_u32 {sT3}, {sT3}, {srq}")
            p(f"s_mul_i32 {sT3}, {sT3}, {64 * 896}")
            p(f"s_lshl_b32 {sT4}, {scb}, 7")
            p(f"s_add_u32 {sT3}, {sT3}, {sT4}")
            p(f"s_lshl_b32 {sT4}, {sw}, 5")
            p(f"s_add_u32 {sU[7]}, {sT3}, {sT4}")
            p(f"v_and_b32 v13, 31, {vLane}")
            p("v_mul_u32_u24 v13, 896, v13")
            p(f"v_lshrrev_b32 v111, 5, {vLane}")
            p("v_lshl_add_u32 v111, v111, 4, v13")
        p(f"s_lshl_b32 {sU[8]}, {scb}, 1")

    def ffn2(self, layer, ep3, flag2, flag3):
        p = self.p
        RING, NR = 112, 16
        ACC = ((16, 48), (32, 64))
        clean = layer == 1 and self.opt.get("clean", 0)

        def hreg(n):
            return V(92 + 4 * (n - 24)) if (clean and 24 <= n < 28) else V(RING + 4 * (n % NR))

        def cleanst(n):
            th, j = divmod(n, 28)
            return [Ins(f"buffer_store_dwordx4 {hreg(n)}, {vL16}, {SG}, s{4 + 2 * th + (j - 24) // 2} offen "
                        f"offset:{(j % 2) * KB} sc1")]

        def ld(n):
            th, j = divmod(n, 28)
            q = sub()
            if j % 2 == 0:
                q(f"s_lshl_b32 {sU[9]}, {sU[8]}, 13")
                q(f"s_add_u32 {sU[9]}, {sU[9]}, {sU[3]}")
                if th:
                    q(f"s_add_u32 {sU[9]}, {sU[9]}, {112 * KB}")
                if clean and j >= 24:
                    q(f"s_mov_b32 s{4 + 2 * th + (j - 24) // 2}, {sU[9]}")
                q(f"s_add_u32 {sU[8]}, {sU[8]}, 1")
                q(f"s_cmp_eq_u32 {sU[8]}, 14")
                q(f"s_cselect_b32 {sU[8]}, 0, {sU[8]}")
            q(f"buffer_load_dwordx4 {hreg(n)}, {vL16}, {SG}, {sU[9]} offen offset:{(j % 2) * KB} sc1")
            return q.ins
        self.apoll_end("v107", SG, sU[4], 1 + layer, 1, 109)
        self.stamp(f"h_seen{layer}")
        lds = [ld(n) for n in range(56)]
        LEAD = self.opt.get("leadh", 9)
        p.add(spread(ep3, [(lds[:LEAD], 0, len(ep3) - 4), ([flag2], 70, 70)]))
        p("s_barrier")
        p(f"buffer_load_dwordx4 {V(88)}, {vL16}, {SG}, {sU[5]} offen sc1")
        self.stamp(f"ep3_done{layer}")
        for dd in range(1, 4):
            p(f"s_xor_b32 {sT3}, {sw}, {dd}")
            p(f"s_mul_i32 {sT3}, {sT3}, {6 * KB}")
            p(f"v_add_u32 v{12 + dd}, {sT3}, {vS16}")
        p(f"s_mul_i32 {sT3}, {sw}, {6 * KB}")
        p(f"v_add_u32 v108, {sT3}, {vS16}")
        p("v_mov_b32 v110, v107")

        def mm(th):
            main = []
            for j in range(28):
                n = 28 * th + j
                b = hreg(n)
                for ch in range(2):
                    acc = V(ACC[th][ch], 16)
                    g = [Ins(f"{MFMA} {acc}, {w2reg(j, ch)}, {b}, {acc if j else 0}")]
                    if ch == 1:
                        if n + LEAD < 56 and not (th == 0 and 28 <= n + LEAD < 28 + HOLD):
                            g += lds[n + LEAD]
                    main.append(g)
            return main

        def reduce(th):
            area = th * 24 * KB
            a0, a1 = ACC[th]
            chunkreg = lambda dd: (a0, a0 + 8, a1, a1 + 8)[dd]
            res = (88, 84)[th] if layer == 1 else 88
            inc = (a0 + 8, a0 + 12, a1, a1 + 4, a1 + 8, a1 + 12)
            items = []
            with self.cap() as c:
                for dd in range(1, 4):
                    for k in range(2):
                        p(f"ds_write_b128 v{12 + dd}, {V(chunkreg(dd) + 4 * k)} offset:{area + (dd - 1) * 2 * KB + k * KB}")
                for r in range(4):
                    p(f"v_lshlrev_b32 v{a1 + 8 + 2 * r}, 16, v{res + r}")
                    p(f"v_and_b32 v{a1 + 9 + 2 * r}, {sHI}, v{res + r}")
                for r in range(8):
                    p(f"v_add_f32 v{a0 + r}, v{a0 + r}, v{a1 + 8 + r}")
            items += groups(c.ins)
            with self.cap() as c:
                if th == 0:
                    p(f"s_add_u32 {sT3}, {sU[5]}, {2 * 28 * KB}")
                    p(f"buffer_load_dwordx4 {V(84 if layer == 1 else 88)}, {vL16}, {SG}, {sT3} offen sc1")
                p.wait_ds()
                p("s_barrier")
                for u in range(6):
                    p(f"ds_read_b128 {V(inc[u])}, v108 offset:{area + u * KB}")
            items.append(c.ins)
            with self.cap() as c:
                for u in range(3):
                    for r in range(8):
                        p(f"v_add_f32 v{a0 + r}, v{a0 + r}, v{inc[2 * u] + r}")
                for r in range(4):
                    p(f"v_cvt_pk_bf16_f32 v{80 + r}, v{a0 + 2 * r}, v{a0 + 2 * r + 1}")
            items += groups(c.ins)
            o = 80
            if layer == 0:
                with self.cap() as c:
                    p(f"s_add_u32 {sT4}, {sU[5]}, {th * 2 * 28 * KB}")
                    self.publish([f"buffer_store_dwordx4 {V(o)}, {vL16}, {SG}, {sT4} offen"], f"x{th}")
                items.append(c.ins)
                with self.cap() as c:
                    p(f"v_add_f32 v84, v{a0}, v{a0 + 1}")
                    p(f"v_mul_f32 v85, v{a0}, v{a0}")
                    p(f"v_fmac_f32 v85, v{a0 + 1}, v{a0 + 1}")
                    for r in range(2, 8):
                        p(f"v_add_f32 v84, v84, v{a0 + r}")
                        p(f"v_fmac_f32 v85, v{a0 + r}, v{a0 + r}")
                    self.both_halves("v84", "v85", None)
                items += groups(c.ins)
                with self.cap() as c:
                    p(f"s_add_u32 {sT3}, {sU[6]}, {th * 7 * KB}")
                    self.publish([f"buffer_store_dword v84, {vL16}, {SG}, {sT3} offen"], f"x{th}")
                items.append(c.ins)
                with self.cap() as c:
                    p(f"s_add_u32 {sT3}, {sU[7]}, {th * 128}")
                    self.flag(sT3, 2, wait=f"x{th}", tmp=86, st=sT4)
                return items, c.ins
            with self.cap() as c:
                p(f"v_permlane32_swap_b32 v{o}, v{o + 2}")
                p(f"v_permlane32_swap_b32 v{o + 1}, v{o + 3}")
                p(f"s_add_u32 {sT3}, {sU[7]}, {th * 32 * 896}")
                p(f"buffer_store_dwordx4 {V(o)}, v111, {SOUT}, {sT3} offen sc1")
            items.append(c.ins)
            return items, []
        GP = self.opt.get("gp", 36)
        HOLD = max(0, GP // 2 - (28 - LEAD) + 1)
        with self.cap() as c1:
            p(f"s_add_u32 {sT0}, {sU[4]}, 256")
            self.poll_load("v110", SG, sT0, 1, 109)
        with self.cap() as c2:
            self.apoll_end("v110", SG, sT0, 1 + layer, 1, 109)
            for n in range(28, 28 + HOLD):
                p.add(lds[n])
        fl3 = [Ins(x.text.replace("v14", "v109"), x.tag) if isinstance(x, Ins) else x for x in flag3]
        p.add(spread(mm(0), [([fl3], 14, 14), ([c1.ins], GP - 10, GP - 10), ([c2.ins], GP + 1, GP + 1)]))
        self.stamp(f"th0_done{layer}")
        r0, f0 = reduce(0)
        streams = [(r0, 1, 40)]
        if f0:
            streams.append(([f0], 52, 52))
        if clean:
            cl = [cleanst(n) for n in (24, 25, 26, 27)]
            for th in range(2):
                with self.cap() as c:
                    p(f"s_add_u32 {sT0}, {sU[5]}, {th * 2 * 28 * KB}")
                    p(f"buffer_store_dwordx4 {V((88, 84)[th])}, {vL16}, {SG}, {sT0} offen sc1")
                    p(f"s_add_u32 {sT0}, {sU[6]}, {th * 7 * KB}")
                    p("s_mov_b64 exec, 0xffff")
                    p(f"buffer_store_dwordx4 {V((88, 84)[th])}, {vL16}, {SG}, {sT0} offen sc1")
                    p("s_mov_b64 exec, -1")
                cl.append(c.ins)
            cl += [cleanst(n) for n in (52, 53, 54, 55)]
            streams.append((cl, 2 * (28 - LEAD), 55))
        p.add(spread(mm(1), streams))
        self.stamp(f"th1_done{layer}")
        r1, f1 = reduce(1)
        for it in r1:
            p.add(it)
        p.add(f1)
        self.stamp(f"ffn2_done{layer}")

    def spare0(self):
        p = self.p
        p(f"s_mov_b32 s26, {448 * 1792 * 2}")
        p(f"s_and_b32 {sT0}, {sh}, 1")
        p(f"s_lshl_b32 {sT0}, {sT0}, 3")
        p(f"s_add_u32 {sT0}, {sT0}, {stb}")
        p(f"s_mul_i32 {sT0}, {sT0}, {98 * KB}")
        p(f"v_lshlrev_b32 v64, 7, {vLane}")
        if self.opt.get("w2pre", 1):
            for k in range(13):
                p(f"s_add_u32 {sT1}, {sT0}, {min(k * 8, 90) * KB}")
                p(f"buffer_load_dword v65, v64, {S2}, {sT1} offen")
        self.make_ones()
        for it in self.colsum_qkv_items():
            p.add(it)
        p.wait_ds()
        p("s_barrier")
        self.colsum_qkv_fetch()
        p("s_waitcnt vmcnt(0) lgkmcnt(0)")
        p("s_barrier")

    def spare1(self):
        p = self.p
        wb = self.opt.get("wb", 0)
        if not wb:
            return
        p(f"s_and_b32 {sT0}, {sh}, 1")
        p(f"s_or_b32 {sT0}, {sT0}, {srh}")
        p(f"s_or_b32 {sT0}, {sT0}, {sw}")
        p(f"s_cmp_lg_u32 {sT0}, 0")
        p("s_cbranch_scc1 L_fin")
        p(f"v_and_b32 v13, 15, {vLane}")
        p("v_min_u32 v13, 13, v13")
        p("v_lshlrev_b32 v13, 3, v13")
        p(f"v_lshrrev_b32 v14, 4, {vLane}")
        p("v_lshl_add_u32 v16, v14, 7, v13")
        p(f"s_mov_b32 {sT0}, {G_FX}")
        self.poll("v16", SG, sT0, 3, 2)
        p(f"s_mov_b32 {sT0}, {G_FX + 512}")
        self.poll("v16", SG, sT0, 3, 2)
        p("buffer_wbl2 sc1")
        p("s_waitcnt vmcnt(0)")
        if wb >= 2:
            p(f"v_and_b32 v13, 15, {vLane}")
            p("v_min_u32 v13, 13, v13")
            p("v_lshlrev_b32 v13, 2, v13")
            p(f"v_lshrrev_b32 v14, 4, {vLane}")
            p("v_lshl_add_u32 v16, v14, 6, v13")
            for tb in ((2, 3) if wb == 2 else (0, 2, 1, 3)):
                for half in range(2):
                    p(f"s_mov_b32 {sT0}, {G_FH + (4 * half + tb) * 256}")
                    self.poll("v16", SG, sT0, 2)
                p("buffer_wbl2 sc1")
                p("s_waitcnt vmcnt(0)")

    def finish(self):
        p = self.p
        p(f"s_or_b32 {sT0}, {sg}, {sh}")
        p(f"s_or_b32 {sT0}, {sT0}, {srh}")
        p(f"s_or_b32 {sT0}, {sT0}, {sw}")
        p(f"s_cmp_lg_u32 {sT0}, 0")
        p("s_cbranch_scc1 L_fin")
        p(f"s_add_u32 {sT0}, {sE}, 64")
        p(f"v_mov_b32 v14, {sT0}")
        p("s_mov_b64 exec, 1")
        p(f"buffer_store_dword v14, {vL16}, {SWS}, 0 offen sc1")
        p("s_mov_b64 exec, -1")
        p("L_fin:")
        if self.pad:
            p("s_waitcnt vmcnt(0)")
            if self.opt.get("amp") == "end":
                p("s_memrealtime s[94:95]")
            p("s_waitcnt lgkmcnt(0)")
            p("s_sub_u32 s94, s94, s96")
            p("s_mul_i32 s94, s94, 2")
            p("s_min_u32 s94, s94, 20000")
            p(f"s_add_u32 s94, s94, {self.pad}")
            p("L_pad:")
            p("s_memrealtime s[98:99]")
            p("s_waitcnt lgkmcnt(0)")
            p("s_sub_u32 s98, s98, s96")
            p(f"s_cmp_lt_u32 s98, s94")
            p("s_cbranch_scc1 L_pad")
        if self.diag:
            p("s_waitcnt vmcnt(0)")
            self.stamp("end")
            self.stamp_flush()
            p(f"s_lshl_b32 {sT0}, {srh}, 4")
            p(f"s_add_u32 {sT0}, {sT0}, {sh}")
            p(f"s_lshl_b32 {sT0}, {sT0}, 3")
            p(f"s_add_u32 {sT0}, {sT0}, {sg}")
            p(f"s_lshl_b32 {sT0}, {sT0}, 2")
            p(f"s_add_u32 {sT0}, {sT0}, {sw}")
            p(f"s_lshl_b32 {sT0}, {sT0}, 7")
            p(f"s_add_u32 {sT0}, {sT0}, {WS_DIAG}")
            p("s_mov_b64 exec, 1")
            for i in range(self.nstamp):
                p(f"v_mov_b32 v14, s{STAMP0 + i}")
                p(f"buffer_store_dword v14, {vL16}, {SWS}, {sT0} offen offset:{4 * i}")
            p(f"v_mov_b32 v14, {sfast}")
            p(f"buffer_store_dword v14, {vL16}, {SWS}, {sT0} offen offset:120")
            p(f"v_mov_b32 v14, {slim}")
            p(f"buffer_store_dword v14, {vL16}, {SWS}, {sT0} offen offset:124")
            p("s_mov_b64 exec, -1")
        p("s_waitcnt vmcnt(0)")
        p("s_endpgm")

    def build(self):
        p = self.p
        self.prologue()
        self.startup()
        self.qkv0()
        n1 = 28 - len(self.w1)

        def shadow0():
            self.tr_addrs("v62", "v63")
            for s in range(n1):
                p.add(self.transpose_block(lambda lo, k, s=s: w1reg(s, lo, k), "v62", "v63"))
        self.kv_gather_o(0, 64, shadow0)
        self.stamp_flush()
        p(f"s_cmp_ge_u32 {sh}, 14")
        p("s_cbranch_scc1 L_spare0")

        def pre_wo0():
            for it in self.w1:
                p.add(it)
            if not self.opt.get("h0sc1", 1):
                p.add(self.touch_items(G_H, 64, 14)[0])
            self.make_ones()
        tr1 = [self.transpose_block(lambda lo, k, s=s: w1reg(s, lo, k), "v62", "v63") for s in range(n1, 28)]
        self.ones = A(32)
        self.wo_phase(0, pre_wo0, [(tr1, 0, 10), (self.colsum_qkv_items(), 0, 24), (self.colsum_w1_items(), 12, 26)])

        def pre_ffn0():
            self.colsum_qkv_fetch()
            self.tr_addrs("v104", "v105")
            self.w2_setup("v106", "v111")
            p.wait_ds()
            p("s_barrier")

        def extra0(pos):
            ld = self.w2_items("v106", "v111")
            tr = [self.transpose_block(lambda lo, k, j=j, ch=ch: w2reg(j, ch, lo, k), "v104", "v105")
                  for j in range(28) for ch in range(2)]
            return [(ld, 0, pos[80]), (tr, pos[30], pos[111])]
        self.ffn(0, pre_ffn0, extra0)
        p("L_layer1:")
        p("s_waitcnt lgkmcnt(0)")
        self.qkv1()
        self.q1_epilogue()
        self.kv_gather_o(1, 96)
        p(f"s_cmp_ge_u32 {sh}, 14")
        p("s_cbranch_scc1 L_spare1")
        self.wo_phase(1)
        self.ffn(1)
        self.finish()
        p("L_spare0:")
        p("s_waitcnt vmcnt(0) lgkmcnt(0)")
        self.spare0()
        p("s_branch L_layer1")
        p("L_spare1:")
        p("s_waitcnt vmcnt(0) lgkmcnt(0)")
        self.spare1()
        p("s_branch L_fin")
        p.add(self.tail)
        p("L_codeend:")
        return finalize(p.ins)


HEADER = f"""; Two layers of (LayerNorm, linear attention, output projection, LayerNorm, SiLU FFN) in one persistent launch.
; @launch grid=(256,1,1) block=(256,1,1) lds={LDS_BYTES}
.amdgcn_target "amdgcn-amd-amdhsa--gfx950"
.text
.globl {NAME}_kernel
.p2align 8
.type {NAME}_kernel,@function
{NAME}_kernel:
"""
FOOTER = f"""
.section .rodata,"a"
.p2align 6
.amdhsa_kernel {NAME}_kernel
  .amdhsa_next_free_vgpr 512
  .amdhsa_next_free_sgpr 102
  .amdhsa_accum_offset 256
  .amdhsa_group_segment_fixed_size 0
  .amdhsa_kernarg_size 72
  .amdhsa_user_sgpr_count 2
  .amdhsa_user_sgpr_kernarg_segment_ptr 1
  .amdhsa_system_sgpr_workgroup_id_x 1
.end_amdhsa_kernel
"""


def generate(**kw):
    g = Gen(**kw)
    lines = g.build()
    return HEADER + "\n".join(lines) + FOOTER, g


if __name__ == "__main__":
    out = sys.argv[1] if len(sys.argv) > 1 else f"cdna_kernels/{NAME}.s"
    kw = {}
    for a in sys.argv[2:]:
        k, _, v = a.partition("=")
        kw[k] = (int(v) if v.lstrip('-').isdigit() else v) if v else True
    text, g = generate(**kw)
    open(out, "w").write(text)
    print("wrote", out, len(text), "bytes;", text.count("\n"), "lines")
```

```python
import sys, os
sys.path.insert(0, os.path.dirname(os.path.abspath(__file__)))
from asmlib import *

NAME = "interleave_layers__linear_attn_block__dense_activation_silu__prompt"
KB = 1024

WS_EPOCH = 0
WS_RA = 0x8000
WS_RB = 0x10000
WS_DIAG = 0x20000
WS_KV = 0x80000
KV_L = 0x80000
WS_PQ = 0x180000
WS_PO = WS_PQ + 16 * 84 * KB
WS_P1 = WS_PO + 14 * 28 * KB
WS_P2 = WS_P1 + 14 * 112 * KB
WS_G = 0x680000
assert WS_P2 + 7 * 224 * KB <= WS_G
OOB = 0x40000000
G_STRIDE = 0x160000
G_H = 0
G_O = 8 * 112 * KB
G_X = G_O + 8 * 28 * KB
G_ST = G_X + 8 * 28 * KB
G_FX = G_ST + 8 * 7 * KB
G_FO = G_FX + 1024
G_FH = G_FO + 1024
G_END = G_FH + 2048
assert G_END <= G_STRIDE
WS_BYTES = WS_G + 8 * G_STRIDE

L_WK, L_WV, L_WQ, L_WO, L_S = 0, 28 * KB, 56 * KB, 84 * KB, 112 * KB
L_XST = 48 * KB
S_KVP, S_KVS = 0, 16 * KB
S_CS = 18 * KB
S_STAT, S_TR = 42 * KB, 44 * KB
LDS_BYTES = 160 * KB

SX, SQ, SO, S1, S2, SOUT, SWS, SG = ("s[8:11]", "s[12:15]", "s[16:19]", "s[20:23]", "s[24:27]", "s[28:31]",
                                     "s[32:35]", "s[36:39]")
sE, sg, sh, srh, sw, sfast, srq, scb, stb, sxs, slim = ("s56", "s57", "s58", "s59", "s60", "s61", "s62", "s63",
                                                        "s64", "s65", "s66")
sT0, sT1, sT2, sT3, sT4, sT5 = "s40", "s41", "s42", "s43", "s44", "s45"
sCnt, sNeed = "s46", "s47"
sONES, sLOG2E, sEPS6, sHI = "s48", "s49", "s50", "s51"
sM28 = "s[52:53]"
sMPAD = "s[54:55]"
sHB, sXB, sSTB = "s67", "s68", "s69"
STAMP0 = 80
sU = [f"s{70 + i}" for i in range(10)]
SPK = "s[20:23]"

vLane, vL16, vTrA, vTrB = "v0", "v1", "v2", "v3"
vCS1 = 4
vCSQ = 6
vS16 = "v12"
vT0, vT1, vT2 = "v13", "v14", "v15"


def V(n, k=4):
    return f"v[{n}:{n + k - 1}]" if k > 1 else f"v{n}"


def A(n, k=4):
    return f"a[{n}:{n + k - 1}]" if k > 1 else f"a{n}"


def w1reg(s, lo=0, k=4):
    return A(224 + 4 * s + lo, k) if s < 8 else V(176 + 4 * (s - 8) + lo, k)


def w2reg(j, ch, lo=0, k=4):
    return A(8 * j + 4 * ch + lo, k)


MFMA = "v_mfma_f32_32x32x16_bf16"


class Capture:
    def __init__(self, g):
        self.g = g

    def __enter__(self):
        self.saved = self.g.p.ins
        self.g.p.ins = []
        self.ins = self.g.p.ins
        return self

    def __exit__(self, *a):
        self.g.p.ins = self.saved


class Gen:
    def __init__(self, diag=False, force_slow=False, pad=0, part=0, **opt):
        self.p = Prog()
        self.diag = diag
        self.force_slow = force_slow
        self.pad = pad
        self.part = part
        self.opt = opt
        self.nstamp = 0
        self.seen = 0
        self.stamp_names = []
        self.pending = False
        self.tail = []
        self.fast = True
        self.sfx = ""

    def cap(self):
        return Capture(self)

    def stamp(self, name, op="s_memrealtime"):
        if self.opt.get("amp") == name and self.fast:
            self.p("s_memrealtime s[94:95]")
        if not self.diag or not self.fast:
            return
        self.seen += 1
        lo = self.opt.get("from", 18 * self.part)
        if self.seen > 2 and not (lo <= self.seen - 3 < lo + 18):
            return
        self.stamp_flush()
        assert STAMP0 + self.nstamp < 100, "too many stamps"
        self.p(f"{op} s[100:101]")
        self.stamp_names.append(name)
        self.nstamp += 1
        self.pending = True

    def stamp_flush(self):
        if self.diag and self.pending:
            self.p(f"s_mov_b32 s{STAMP0 + self.nstamp - 1}, s100")
            self.pending = False

    def publish(self, stores, tag="pub", always_sc1=False):
        for s in stores:
            self.p(s + (" sc1" if s.startswith("buffer_") and (always_sc1 or not self.fast) else ""), tag)

    def flag(self, soff, val, n=1, wait="pub", tmp=14, st=sT5):
        p = self.p
        p(f"s_add_u32 {st}, {sE}, {val}")
        p(f"v_mov_b32 v{tmp}, {st}")
        if n == 2:
            p(f"v_mov_b32 v{tmp + 1}, {st}")
        op = f"buffer_store_dword v{tmp}" if n == 1 else f"buffer_store_dwordx2 v[{tmp}:{tmp + 1}]"
        p.wait_vm(wait)
        self.publish(["s_mov_b64 exec, 1", f"{op}, {vL16}, {SG}, {soff} offen", "s_mov_b64 exec, -1"], "flag")

    def poll_load(self, vaddr, srd, soff, n, tmp):
        if n == 1:
            self.p(f"buffer_load_dword v{tmp}, {vaddr}, {srd}, {soff} offen sc1")
        else:
            self.p(f"buffer_load_dwordx2 v[{tmp}:{tmp + 1}], {vaddr}, {srd}, {soff} offen sc1")

    def poll_test(self, n, tmp, need):
        p = self.p
        p(f"v_subrev_u32 v{tmp}, {need}, v{tmp}")
        if n == 2:
            p(f"v_subrev_u32 v{tmp + 1}, {need}, v{tmp + 1}")
            p(f"v_or_b32 v{tmp}, v{tmp}, v{tmp + 1}")
        p(f"v_cmp_lt_u32 vcc, 31, v{tmp}")

    def spin(self, vaddr, srd, soff, n, tmp, need, done):
        p = self.p
        lp = p.label("poll")
        p(f"s_mov_b32 {sCnt}, {slim}")
        p(f"{lp}:")
        self.poll_load(vaddr, srd, soff, n, tmp)
        p("s_waitcnt vmcnt(0)")
        self.poll_test(n, tmp, need)
        p(f"s_cbranch_vccz {done}")
        p(f"s_sub_u32 {sCnt}, {sCnt}, 1")
        p(f"s_cmp_lg_u32 {sCnt}, 0")
        p(f"s_cbranch_scc1 {lp}")
        p(f"s_mov_b32 {slim}, 1")

    def poll(self, vaddr, srd, soff, need, n=1, tmp=14):
        p = self.p
        ld = p.label("polled")
        p(f"s_add_u32 {sNeed}, {sE}, {need}")
        self.spin(vaddr, srd, soff, n, tmp, sNeed, ld)
        p(f"{ld}:")

    def apoll_end(self, vaddr, srd, soff, need, n=1, tmp=14):
        p = self.p
        lo, lb = p.label("aspin"), p.label("aback")
        p(f"s_add_u32 {sNeed}, {sE}, {need}")
        self.poll_test(n, tmp, sNeed)
        p(f"s_cbranch_vccnz {lo}")
        p(f"{lb}:")
        with self.cap() as c:
            p(f"{lo}:")
            p("s_nop 4")
            self.spin(vaddr, srd, soff, n, tmp, sNeed, lb)
            p(f"s_branch {lb}")
        self.tail.extend(c.ins)

    def trread(self, dst_lo, dst_hi, vaddr, off, second=512):
        return [Ins(f"ds_read_b64_tr_b16 {dst_lo}, {vaddr} offset:{off}"),
                Ins(f"ds_read_b64_tr_b16 {dst_hi}, {vaddr} offset:{off + second}")]

    def transpose_block(self, reg, aw, ar):
        return [Ins(f"ds_write_b128 {aw}, {reg(0, 4)}"),
                Ins(f"ds_read_b64_tr_b16 {reg(0, 2)}, {ar}"),
                Ins(f"ds_read_b64_tr_b16 {reg(2, 2)}, {ar} offset:512")]

    def tr_addrs(self, aw, ar):
        p = self.p
        p(f"s_lshl_b32 {sT0}, {sw}, 10")
        p(f"s_add_u32 {sT0}, {sT0}, {L_S + S_TR}")
        p(f"v_add_u32 {aw}, {sT0}, {vL16}")
        p(f"v_add_u32 {ar}, {sT0}, {vTrA}")

    def both_halves(self, s, q, tmp):
        p = self.p
        p(f"v_permlane32_swap_b32 {s}, {q}")
        p(f"v_add_f32 {s}, {s}, {q}")

    def stats_finish(self, t, u, mean, var):
        p = self.p
        p(f"v_mov_b32 {u}, {t}")
        p(f"v_permlane32_swap_b32 {t}, {u}")
        p(f"v_mul_f32 {mean}, 0x3b124925, {t}")
        p(f"v_mul_f32 {var}, 0x3b124925, {u}")
        p(f"v_fma_f32 {var}, -{mean}, {mean}, {var}")
        p(f"v_max_f32 {var}, 0, {var}")
        p(f"v_add_f32 {var}, 0x3727c5ac, {var}")

    def split_words(self, x, w0, w1, t, neg, xside):
        p = self.p
        s = "-" if neg else ""
        p(f"v_cvt_pk_bf16_f32 {w0}, {s}{x}, {s}{x}")
        p(f"v_and_b32 {t}, {sHI}, {w0}")
        p(f"v_sub_f32 {t}, {s}{x}, {t}" if not neg else f"v_sub_f32_e64 {t}, -{x}, {t}")
        if xside:
            p(f"v_and_b32 {w1}, 0xffff, {w0}")
            p(f"v_cvt_pk_bf16_f32 {t}, {t}, {t}")
            p(f"v_and_or_b32 {w0}, {t}, {sHI}, {w1}")
        else:
            p(f"v_cvt_pk_bf16_f32 {w1}, {t}, 0")

    def prologue(self):
        p = self.p
        p("s_cmp_lt_u32 s2, 256")
        p("s_cbranch_scc1 L_start")
        p("s_endpgm")
        p("L_start:")
        p("s_load_dwordx4 s[40:43], s[0:1], 0")
        p("s_load_dwordx2 s[52:53], s[0:1], 64")
        p("s_load_dwordx2 s[44:45], s[0:1], 16")
        p("s_load_dwordx4 s[48:51], s[0:1], 32")
        p("s_load_dwordx2 s[46:47], s[0:1], 48")
        self.stamp("realtime", "s_memrealtime")
        if self.pad:
            p("s_memrealtime s[96:97]")
            p("s_memrealtime s[94:95]")
        p("s_getpc_b64 s[6:7]")
        p("L_pc:")
        p("v_lshrrev_b32 v13, 6, v0")
        p(f"v_and_b32 {vLane}, 63, v0")
        p(f"v_readfirstlane_b32 {sw}, v13")
        p(f"s_and_b32 {sg}, s2, 7")
        p(f"s_lshr_b32 s3, s2, 3")
        p(f"s_lshl_b32 s4, s3, 2")
        p(f"s_add_u32 s4, s4, {sw}")
        p(f"s_lshl_b32 s4, s4, 9")
        p(f"v_lshlrev_b32 v9, 7, {vLane}")
        p("v_add_u32 v13, s4, v9")
        p("v_min_u32 v13, L_fastend-L_pc-4, v13")
        p("s_mov_b64 exec, 0xf")
        p("global_load_dword v10, v13, s[6:7]")
        p("s_mov_b64 exec, -1")
        p(f"s_and_b32 {sh}, s3, 15")
        p(f"s_lshr_b32 {srh}, s3, 4")
        p(f"s_lshl_b32 s2, {sg}, 1")
        p(f"s_add_u32 s2, s2, {srh}")
        p("s_lshl_b32 s3, s2, 2")
        p(f"s_add_u32 s3, s3, {sw}")
        p("s_min_u32 s5, s3, 55")
        p("s_cmp_ge_u32 s5, 28")
        p("s_cselect_b32 s4, 1, 0")
        p("s_cselect_b32 s6, 28, 0")
        p("s_sub_u32 s5, s5, s6")
        p(f"v_lshrrev_b32 v13, 2, {vLane}")
        p(f"v_and_b32 v15, 3, {vLane}")
        p("v_lshlrev_b32 v15, 4, v15")
        p("v_mul_u32_u24 v14, 2688, v13")
        p("v_add_u32 v6, v14, v15")
        p("v_mul_u32_u24 v14, 896, v13")
        p("v_add_u32 v7, v14, v15")
        p("v_mul_u32_u24 v14, 3584, v13")
        p("v_add_u32 v8, v14, v15")
        p(f"s_lshl_b32 {sU[7]}, {srh}, 4")
        p(f"s_add_u32 {sU[7]}, {sU[7]}, {sh}")
        p(f"s_lshl_b32 {sU[7]}, {sU[7]}, 2")
        p(f"s_add_u32 {sU[7]}, {sU[7]}, {sw}")
        p(f"s_mul_i32 {sU[8]}, {sU[7]}, 49")
        p(f"v_min_u32 v13, 48, {vLane}")
        p(f"v_add_u32 v13, {sU[8]}, v13")
        p("v_mul_u32_u24 v14, 9363, v13")
        p("v_lshrrev_b32 v14, 17, v14")
        p("v_mul_u32_u24 v15, 896, v14")
        p("v_lshl_add_u32 v18, v13, 7, v15")
        p(f"s_lshl_b32 {sU[8]}, {sg}, 7")
        p(f"s_add_u32 {sU[8]}, {sU[8]}, {sU[7]}")
        p(f"s_mul_i32 {sU[8]}, {sU[8]}, 1792")
        p(f"s_cmp_ge_u32 {sh}, 7")
        p(f"s_cselect_b32 s6, 1, 0")
        p(f"s_cselect_b32 s7, 7, 0")
        p(f"s_lshl_b32 {srq}, {srh}, 1")
        p(f"s_add_u32 {srq}, {srq}, s6")
        p(f"s_sub_u32 {scb}, {sh}, s7")
        p(f"s_lshl_b32 {stb}, {srh}, 2")
        p(f"s_and_b32 s6, {sw}, 1")
        p(f"s_lshl_b32 s6, s6, 1")
        p(f"s_lshr_b32 s7, {sw}, 1")
        p(f"s_or_b32 s6, s6, s7")
        p(f"s_add_u32 {sxs}, {stb}, s6")
        p(f"s_add_u32 {stb}, {stb}, {sw}")
        p(f"v_lshlrev_b32 {vL16}, 4, {vLane}")
        p(f"v_lshrrev_b32 v13, 3, {vLane}")
        p("v_mul_u32_u24 v14, 896, v13")
        p("v_lshrrev_b32 v13, 1, v13")
        p(f"v_and_b32 v15, 7, {vLane}")
        p("v_xor_b32 v13, v13, v15")
        p("v_lshl_add_u32 v16, v13, 4, v14")
        p("v_xor_b32 v13, 4, v13")
        p("v_lshl_add_u32 v17, v13, 4, v14")
        p(f"s_lshl_b32 {sU[0]}, {sg}, 3")
        p(f"s_add_u32 {sU[0]}, {sU[0]}, {stb}")
        p(f"s_mul_i32 {sU[0]}, {sU[0]}, {32 * 896}")
        p(f"s_mul_i32 {sU[1]}, {sw}, {28 * KB}")
        p(f"s_add_u32 {sU[1]}, {sU[1]}, {L_XST}")
        p(f"s_cmp_ge_u32 {sh}, 14")
        p(f"s_cselect_b32 {sU[2]}, 7, 0")
        p(f"s_sub_u32 {sU[2]}, {scb}, {sU[2]}")
        p(f"s_mov_b32 s10, {2048 * 896}\ns_mov_b32 s11, 0x00020000")
        p(f"s_mov_b32 s14, {448 * 2688}\ns_mov_b32 s15, 0x00020000")
        p("s_waitcnt lgkmcnt(0)")
        self.stamp("start")
        p("s_mov_b32 s12, s42\ns_mov_b32 s13, s43")
        p("s_mov_b32 s8, s40\ns_mov_b32 s9, s41")
        if self.opt.get("tx", 0):
            p("s_mov_b64 exec, 0x3fff")
            p(f"buffer_load_dword v10, v9, {SX}, {sU[8]} offen")
            p("s_mov_b64 exec, -1")
        if self.opt.get("tw", 0) == 1:
            p(f"buffer_load_dword v10, v18, {SQ}, 0 offen offset:896")
        p(f"s_load_dword {sE}, s[52:53], {WS_EPOCH}")
        for j in range(7):
            p(f"s_lshl_b32 {sU[3]}, {sU[2]}, 7")
            p(f"s_add_u32 {sU[3]}, {sU[3]}, {sU[0]}")
            p(f"s_lshl_b32 {sU[4]}, {sU[2]}, 12")
            p(f"s_add_u32 {sU[4]}, {sU[4]}, {sU[1]}")
            for b in range(4):
                p(f"s_add_u32 m0, {sU[4]}, {b * KB}")
                p(f"s_add_u32 {sU[5]}, {sU[3]}, {b * 8 * 896}")
                p(f"buffer_load_dwordx4 v{16 + (b & 1)}, {SX}, {sU[5]} offen lds", "x")
                if 4 * j + b + 1 == self.opt.get("xa", 4):
                    self.prologue2()
                    if self.opt.get("tw", 0) == 2:
                        p(f"buffer_load_dword v10, v18, {SQ}, 0 offen offset:896")
            if j < 6:
                p(f"s_add_u32 {sU[2]}, {sU[2]}, 1")
                p(f"s_cmp_eq_u32 {sU[2]}, 7")
                p(f"s_cselect_b32 {sU[2]}, 0, {sU[2]}")

    def prologue2(self):
        p = self.p
        p(f"s_mul_i32 {sHB}, {stb}, {28 * KB}")
        p(f"s_add_u32 {sHB}, {sHB}, {G_O}")
        p(f"s_mul_i32 {sXB}, {sxs}, {28 * KB}")
        p(f"s_add_u32 {sXB}, {sXB}, {G_X}")
        p(f"s_mul_i32 {sSTB}, {stb}, {7 * KB}")
        p(f"s_add_u32 {sSTB}, {sSTB}, {G_ST}")
        p(f"s_mov_b32 {slim}, 40000")
        p(f"v_add_u32 {vS16}, {L_S}, {vL16}")
        p(f"v_and_b32 v13, 3, {vLane}")
        p("v_lshlrev_b32 v13, 3, v13")
        p(f"v_bfe_u32 v14, {vLane}, 4, 1")
        p("v_lshl_add_u32 v13, v14, 5, v13")
        p(f"v_bfe_u32 v14, {vLane}, 2, 2")
        p("v_lshl_add_u32 v13, v14, 6, v13")
        p(f"v_lshrrev_b32 v14, 5, {vLane}")
        p(f"v_lshl_add_u32 {vTrA}, v14, 8, v13")
        p(f"v_add_u32 {vTrB}, {L_WQ}, {vTrA}")
        p("v_lshl_add_u32 v62, v14, 9, v13")
        p(f"v_add_u32 v63, {L_WQ}, v62")
        p(f"v_and_b32 v13, 31, {vLane}")
        p("v_lshrrev_b32 v14, 3, v13")
        p("v_lshlrev_b32 v14, 10, v14")
        p("v_and_b32 v15, 7, v13")
        p("v_lshl_add_u32 v14, v15, 7, v14")
        p(f"v_add_u32 v14, {sU[1]}, v14")
        p("v_bfe_u32 v13, v13, 1, 3")
        p(f"v_lshrrev_b32 v15, 5, {vLane}")
        p("v_xor_b32 v13, v13, v15")
        for q in range(4):
            p(f"v_xor_b32 v15, {2 * q}, v13")
            p(f"v_lshl_add_u32 v{20 + q}, v15, 4, v14")
        p(f"s_cmp_lt_u32 {sh}, 14")
        p(f"s_cselect_b32 s18, {448 * 448 * 2}, 0")
        p(f"s_cselect_b32 s22, {448 * 1792 * 2}, 0")
        p(f"s_cselect_b32 s26, {448 * 1792 * 2}, 0")
        for base, src, size in ((16, 44, None), (20, 48, None), (24, 50, None), (28, 46, 2048 * 896),
                                (32, 52, WS_BYTES)):
            p(f"s_mov_b32 s{base}, s{src}")
            p(f"s_mov_b32 s{base + 1}, s{src + 1}")
            if size is not None:
                p(f"s_mov_b32 s{base + 2}, {size}")
            p(f"s_mov_b32 s{base + 3}, 0x00020000")
        p(f"s_mul_i32 s6, {sg}, {G_STRIDE}")
        p(f"s_add_u32 s6, s6, {WS_G}")
        p("s_add_u32 s36, s52, s6")
        p("s_addc_u32 s37, s53, 0")
        p(f"s_mov_b32 s38, {G_STRIDE}")
        p("s_mov_b32 s39, 0x00020000")
        if self.opt.get("tlb", 0):
            p(f"v_lshlrev_b32 v13, 20, {vLane}")
            p("s_mov_b64 exec, 0x7f")
            p(f"buffer_load_dword v10, v13, {SWS}, 0 offen offset:256")
            p("s_mov_b64 exec, 0x3")
            p(f"buffer_load_dword v10, v13, {SG}, 0 offen")
            p(f"buffer_load_dword v10, v13, {SOUT}, 0 offen")
            p("s_mov_b64 exec, -1")

    def kv_clear(self):
        p = self.p
        p(f"s_lshl_b32 {sU[8]}, {sh}, 15")
        p(f"s_lshl_b32 {sU[9]}, s3, 9")
        p(f"s_add_u32 {sU[8]}, {sU[8]}, {sU[9]}")
        p(f"s_add_u32 {sU[8]}, {sU[8]}, {WS_KV}")
        p(f"s_add_u32 {sU[9]}, {sU[8]}, {KV_L}")
        p("v_mov_b32 v32, -1\nv_mov_b32 v33, -1")
        p(f"v_lshlrev_b32 v11, 3, {vLane}")
        p(f"buffer_store_dwordx2 v[32:33], v11, {SWS}, {sU[8]} offen sc1", "pb")
        p(f"buffer_store_dwordx2 v[32:33], v11, {SWS}, {sU[9]} offen sc1", "pb")

    def wqkv_setup(self):
        p = self.p
        p(f"s_mul_i32 s0, {sh}, 56")
        p(f"s_mul_i32 s1, {sw}, {16 * 2688}")
        p("s_add_u32 s0, s0, s1")
        p(f"s_lshl_b32 s1, {sw}, 10")
        p(f"s_mul_i32 {sU[7]}, s2, 37")
        p(f"s_lshr_b32 {sU[7]}, {sU[7]}, 8")
        p(f"s_mul_i32 {sU[7]}, {sU[7]}, 7")
        p(f"s_sub_u32 {sU[6]}, s2, {sU[7]}")

    def wqkv_item(self, m, lbase, tag):
        p = self.p
        with self.cap() as c:
            p(f"s_lshl_b32 {sU[7]}, {sU[6]}, 12")
            p(f"s_add_u32 {sU[7]}, {sU[7]}, s1")
            p(f"s_add_u32 m0, {sU[7]}, {lbase}")
            p(f"s_mul_i32 {sU[7]}, {sU[6]}, {64 * 2688}")
            p(f"s_add_u32 {sU[7]}, {sU[7]}, s0")
            if m:
                p(f"s_add_u32 {sU[7]}, {sU[7]}, {896 * m}")
            p(f"buffer_load_dwordx4 v6, {SQ}, {sU[7]} offen lds", tag)
            p(f"s_add_u32 {sU[6]}, {sU[6]}, 1")
            p(f"s_cmp_eq_u32 {sU[6]}, 7")
            p(f"s_cselect_b32 {sU[6]}, 0, {sU[6]}")
        return c.ins

    def wo_items(self):
        p = self.p
        items = []
        for u in range(7):
            with self.cap() as c:
                if u == 0:
                    p(f"s_lshl_b32 {sU[8]}, {sh}, 6")
                    p(f"s_mul_i32 {sU[7]}, {sw}, {16 * 896}")
                    p(f"s_add_u32 {sU[8]}, {sU[8]}, {sU[7]}")
                p(f"s_add_u32 m0, s1, {L_WO + 4 * u * KB}")
                p(f"s_add_u32 {sU[7]}, {sU[8]}, {64 * u * 896}")
                p(f"buffer_load_dwordx4 v7, {SO}, {sU[7]} offen lds", "wo")
            items.append(c.ins)
        return items

    def consts(self):
        p = self.p
        p(f"s_mov_b32 {sONES}, 0x3f803f80")
        p(f"s_mov_b32 {sLOG2E}, 0x3fb8aa3b")
        p(f"s_mov_b32 {sEPS6}, 0x358637bd")
        p(f"s_mov_b32 {sHI}, 0xffff0000")
        p("s_mov_b32 s52, 0x10000000")
        p("s_mov_b32 s53, 0x10000000")
        p("s_mov_b32 s54, 0")
        p("s_mov_b32 s55, -1")

    def ready(self, base):
        p = self.p
        p(f"s_lshl_b32 {sT2}, {sh}, 4")
        p(f"s_add_u32 {sT2}, {sT2}, s2")
        p(f"s_lshl_b32 {sT2}, {sT2}, 7")
        p(f"s_add_u32 {sT2}, {sT2}, {base}")
        p(f"s_cmp_eq_u32 {sw}, 0")
        p(f"s_cselect_b32 {sT2}, {sT2}, {OOB}")
        p(f"s_add_u32 {sT5}, {sE}, {sfast}")
        p(f"s_add_u32 {sT5}, {sT5}, 1")
        p(f"v_mov_b32 v14, {sT5}")
        p("s_mov_b64 exec, 1")
        p(f"buffer_store_dword v14, {vL16}, {SWS}, {sT2} offen sc1")
        p("s_mov_b64 exec, -1")

    def pack_b_loads(self):
        p = self.p
        p(f"s_mul_i32 {sT0}, s5, {16 * 3584}")
        p(f"s_lshl_b32 {sT1}, {sh}, 8")
        p(f"s_add_u32 {sT0}, {sT0}, {sT1}")
        p(f"s_lshl_b32 {sT1}, s4, 7")
        p(f"s_add_u32 {sT0}, {sT0}, {sT1}")
        p(f"buffer_load_dwordx4 a[40:43], v8, {S1}, {sT0} offen")
        p(f"buffer_load_dwordx4 a[44:47], v8, {S1}, {sT0} offen offset:64")
        p(f"s_mul_i32 {sU[1]}, {sh}, 112")
        p(f"s_mul_i32 {sT1}, s4, 56")
        p(f"s_add_u32 {sU[1]}, {sU[1]}, {sT1}")
        p(f"s_add_u32 {sU[1]}, {sU[1]}, s5")
        p(f"s_lshl_b32 {sU[1]}, {sU[1]}, 10")
        p(f"s_add_u32 {sU[1]}, {sU[1]}, {WS_P1}")
        p(f"s_cmp_lt_u32 {sh}, 14")
        p(f"s_cselect_b32 s22, {WS_BYTES}, 0")
        p("s_mov_b32 s20, s32\ns_mov_b32 s21, s33")
        self.tr_addrs("v4", "v5")

    def pack_c_loads(self):
        p = self.p
        p(f"s_and_b32 {sU[5]}, {srq}, 1")
        p(f"s_lshl_b32 {sU[5]}, {sU[5]}, 6")
        p(f"s_add_u32 {sU[5]}, {sU[5]}, s3")
        p(f"s_mul_i32 {sU[0]}, {sU[5]}, {16 * 896}")
        p(f"s_lshl_b32 {sU[2]}, {scb}, 7")
        p(f"s_add_u32 {sU[0]}, {sU[0]}, {sU[2]}")
        p(f"s_mul_i32 {sU[2]}, {scb}, 112")
        p(f"s_add_u32 {sU[2]}, {sU[2]}, {sU[5]}")
        p(f"s_lshl_b32 {sU[2]}, {sU[2]}, 11")
        p(f"s_add_u32 {sU[2]}, {sU[2]}, {WS_P2}")
        p(f"s_cmp_lt_u32 {sU[5]}, 112")
        p(f"s_cselect_b32 {sU[0]}, {sU[0]}, {OOB}")
        p(f"s_cselect_b32 {sU[2]}, {sU[2]}, {OOB}")
        p(f"buffer_load_dwordx4 a[48:51], v7, {S2}, {sU[0]} offen")
        p(f"buffer_load_dwordx4 a[52:55], v7, {S2}, {sU[0]} offen offset:64")

    def pack_b_items(self):
        items = [self.transpose_block(lambda lo, k, r=r: A(r + lo, k), "v4", "v5") for r in (40, 44)]
        items.append([Ins(f"buffer_store_dwordx4 a[40:43], {vL16}, {SPK}, {sU[1]} offen sc1", "pb"),
                      Ins(f"s_add_u32 {sU[1]}, {sU[1]}, {28 * KB}")])
        items.append([Ins(f"buffer_store_dwordx4 a[44:47], {vL16}, {SPK}, {sU[1]} offen sc1", "pb")])
        return items

    def pack_c_items(self):
        items = [self.transpose_block(lambda lo, k, r=r: A(r + lo, k), "v4", "v5") for r in (48, 52)]
        items.append([Ins(f"buffer_store_dwordx4 a[48:51], {vL16}, {SPK}, {sU[2]} offen sc1", "pc")])
        items.append([Ins(f"buffer_store_dwordx4 a[52:55], {vL16}, {SPK}, {sU[2]} offen offset:1024 sc1", "pc")])
        return items

    def dma_items(self, vaddr, srd, first, count, tag, stm):
        p = self.p
        items = []
        for u in range(count):
            with self.cap() as c:
                if u == 0:
                    p(f"s_mul_i32 {stm}, {sw}, {count * KB}")
                if u % 4 == 0:
                    p(f"s_add_u32 m0, {stm}, {(first + u) * KB}")
                p(f"buffer_load_dwordx4 {vaddr}, {srd}, m0 offen offset:{(u % 4) * KB} sc1 lds", tag)
            items.append(c.ins)
        return items

    def w1_items(self):
        p = self.p
        items = []
        for s in range(28):
            with self.cap() as c:
                if s == 0:
                    p(f"s_lshl_b32 s24, {sh}, 2")
                    p(f"s_add_u32 s24, s24, {sw}")
                    p(f"s_mul_i32 s24, s24, {28 * KB}")
                    p(f"s_add_u32 s24, s24, {WS_P1}")
                elif s % 4 == 0:
                    p(f"s_add_u32 s24, s24, {4 * KB}")
                p(f"buffer_load_dwordx4 {w1reg(s)}, {vL16}, {SPK}, s24 offen offset:{(s % 4) * KB} sc1", "w1")
            items.append(c.ins)
        return items

    def mall_items(self):
        p = self.p
        with self.cap() as c:
            p(f"s_lshl_b32 {sU[8]}, {sh}, 6")
            p(f"s_add_u32 {sU[8]}, {sU[8]}, s3")
            p(f"s_lshr_b32 {sU[7]}, {sU[8]}, 1")
            p(f"s_mul_i32 {sU[7]}, {sU[7]}, 2688")
            p(f"s_and_b32 {sU[9]}, {sU[8]}, 1")
            p(f"s_mul_i32 {sU[9]}, {sU[9]}, 384")
            p(f"s_add_u32 {sU[7]}, {sU[7]}, {sU[9]}")
            p("s_mov_b64 exec, 0xf")
            p(f"buffer_load_dword v10, v9, {SQ}, {sU[7]} offen", "touch")
            p(f"s_mul_i32 {sU[7]}, {sU[8]}, 448")
            p(f"buffer_load_dword v10, v9, {SO}, {sU[7]} offen", "touch")
            p("s_mov_b64 exec, -1")
        return [c.ins]

    def touch_items(self, base, lines, per=16):
        p = self.p
        with self.cap() as c:
            p(f"s_mul_i32 {sU[7]}, {srh}, {per}")
            p(f"s_add_u32 {sU[7]}, {sU[7]}, {sh}")
            p(f"s_lshl_b32 {sU[7]}, {sU[7]}, 2")
            p(f"s_add_u32 {sU[7]}, {sU[7]}, {sw}")
            p(f"s_mul_i32 {sU[7]}, {sU[7]}, {lines * 128}")
            p(f"s_add_u32 {sU[7]}, {sU[7]}, {base}")
            assert lines < 32
            p(f"s_mov_b64 exec, {(1 << lines) - 1}")
            p(f"buffer_load_dword v10, v9, {SG}, {sU[7]} offen", "touch")
            p("s_mov_b64 exec, -1")
        return [c.ins]

    def startup(self):
        p = self.p
        p("s_waitcnt lgkmcnt(0)")
        self.consts()
        p(f"s_getreg_b32 {sfast}, hwreg(HW_REG_XCC_ID, 0, 4)")
        self.wqkv_setup()
        self.pack_b_loads()
        cearly = self.opt.get("cearly", 0)
        if cearly:
            self.pack_c_loads()
        if self.opt.get("mall", 1) == 1:
            p.add(self.mall_items()[0])
        if self.opt.get("to", 4) == 3:
            p.add(self.touch_items(G_O, 14)[0])
        nk0 = self.opt.get("nk0", 2)
        for u in range(nk0):
            p.add(self.wqkv_item(1, L_WK, "wkv"))
        p.wait_vm("x")
        self.stamp("x_landed")
        for s in range(28):
            p(f"ds_read_b128 {V(64 + 4 * s)}, v{20 + (s & 3)} offset:{(s >> 2) * 4096}")
        for r in range(52, 56):
            p(f"v_mov_b32 v{r}, 0")
        p.wait_ds()
        p("s_barrier")
        with self.cap() as c:
            for i in range(112):
                p(f"v_dot2c_f32_bf16 v{52 + (i & 1)}, {sONES}, v{64 + i}")
                p(f"v_dot2c_f32_bf16 v{54 + (i & 1)}, v{64 + i}, v{64 + i}")
            p("v_add_f32 v52, v52, v53")
            p("v_add_f32 v54, v54, v55")
            self.both_halves("v52", "v54", None)
            self.stats_finish("v52", "v53", "v56", "v58")
            p("v_rsq_f32 v58, v58")
            p("v_mul_f32_e64 v56, -v56, v58")
            p("v_mov_b32 v59, v58")
            p("v_mov_b32 v57, v56")
            for i in range(0, 112 if not self.opt.get("noln") else 8, 2):
                t = 16 + 4 * ((i >> 1) & 1)
                for k in range(2):
                    p(f"v_lshlrev_b32 v{t + 2 * k}, 16, v{64 + i + k}")
                    p(f"v_and_b32 v{t + 2 * k + 1}, {sHI}, v{64 + i + k}")
                for k in range(2):
                    p(f"v_pk_fma_f32 {V(t + 2 * k, 2)}, {V(t + 2 * k, 2)}, v[58:59], v[56:57]")
                for k in range(2):
                    p(f"v_cvt_pk_bf16_f32 v{64 + i + k}, v{t + 2 * k}, v{t + 2 * k + 1}")
        main = groups(c.ins, 4)
        n = len(main)
        kv = [self.wqkv_item(1, L_WK, "wkv") for u in range(nk0, 7)] + [self.wqkv_item(2, L_WV, "wkv") for u in range(7)]
        gk = n * self.opt.get("gk", 60) // 100
        with self.cap() as c1:
            self.kv_clear()
        wq = [self.wqkv_item(0, L_WQ, "wq") for u in range(7)]
        nq = self.opt.get("nq", 0)
        self.wq = wq[nq:]
        p.add(spread(main, [(kv, 0, gk), ([c1.ins] + self.pack_b_items() + (self.pack_c_items() if cearly == 1 else []) + wq[:nq], gk + 2, n - 2)]))
        self.stamp("ln_done")
        p.wait_vm(["wkv"])
        p("s_barrier")
        self.stamp("wkv_landed")

    def phi(self, acc, out, tmp, scale=None):
        p = self.p
        for r0 in range(0, 16, 2):
            rr = (r0, r0 + 1)
            a = {r: f"v{acc + r}" for r in rr}
            t = {r: f"v{tmp + (r & 3)}" for r in rr}
            for r in rr:
                if scale is None:
                    p(f"v_add_f32 {a[r]}, {sEPS6}, {a[r]}")
                else:
                    p(f"v_fma_f32 {a[r]}, {a[r]}, {scale(r)}, {sEPS6}")
            for r in rr:
                p(f"v_mul_f32 {t[r]}, {sLOG2E}, {a[r]}")
            for r in rr:
                p(f"v_exp_f32 {t[r]}, {t[r]} clamp")
            for r in rr:
                p(f"v_max_f32 {a[r]}, {sEPS6}, {a[r]}")
            for r in rr:
                p(f"v_add_f32 {a[r]}, {a[r]}, {t[r]}")
            p(f"v_cvt_pk_bf16_f32 v{out + (r0 >> 1)}, {a[r0]}, {a[r0 + 1]}")

    def kv_addrs(self, layer, a0, a1, a2):
        p = self.p
        p(f"s_lshl_b32 {sT0}, {sw}, 10")
        p(f"v_add_u32 {a0}, {sT0}, {vS16}")
        p(f"s_lshl_b32 {sT0}, {sw}, 12")
        p(f"v_add_u32 {a1}, {sT0}, {vS16}")
        p(f"v_lshlrev_b32 {a2}, 3, {vLane}")
        p(f"s_lshl_b32 {sT0}, {sh}, 15")
        p(f"s_lshl_b32 {sT1}, {sw}, 9")
        p(f"s_add_u32 {sT0}, {sT0}, {sT1}")
        p(f"s_add_u32 s6, {sT0}, {WS_KV + layer * KV_L}")
        p(f"s_lshl_b32 {sT1}, {sg}, 1")
        p(f"s_add_u32 {sT1}, {sT1}, {srh}")
        p(f"s_lshl_b32 {sT1}, {sT1}, 11")
        p(f"s_add_u32 s7, {sT1}, s6")

    def kv_publish(self, kvacc, a0, a1, a2):
        p = self.p
        p(f"{MFMA} {kvacc(0, 16)}, {V(16)}, {V(32)}, 0")
        p(f"{MFMA} {kvacc(0, 16)}, {V(20)}, {V(36)}, {kvacc(0, 16)}")
        for q in range(4):
            p(f"ds_write_b128 {a0}, {kvacc(4 * q, 4)} offset:{S_KVP + q * 4096}")
        p.wait_ds()
        p("s_barrier")
        for u in range(4):
            p(f"ds_read_b128 {V(32 + 4 * u)}, {a1} offset:{S_KVP + u * 1024}")
        for r in (0, 2):
            p(f"v_pk_add_f32 {V(32 + r, 2)}, {V(32 + r, 2)}, {V(36 + r, 2)}")
        for r in (0, 2):
            p(f"v_pk_add_f32 {V(40 + r, 2)}, {V(40 + r, 2)}, {V(44 + r, 2)}")
        for r in (0, 2):
            p(f"v_pk_add_f32 {V(32 + r, 2)}, {V(32 + r, 2)}, {V(40 + r, 2)}")
        p("v_cvt_pk_bf16_f32 v28, v32, v33")
        p("v_cvt_pk_bf16_f32 v29, v34, v35")
        p(f"buffer_store_dwordx2 v[28:29], {a2}, {SWS}, s7 offen sc1", "kvpub")

    def o_addrs(self):
        p = self.p
        p(f"s_mul_i32 {sT0}, {sh}, 7")
        p(f"v_lshrrev_b32 v16, 5, {vLane}")
        p(f"v_add_u32 v16, {sT0}, v16")
        p(f"v_and_b32 v17, 31, {vLane}")
        p("v_lshlrev_b32 v17, 4, v17")
        p("v_and_b32 v18, 1, v16")
        p("v_lshl_add_u32 v17, v18, 9, v17")
        p("v_lshrrev_b32 v16, 1, v16")
        for j in range(4):
            p(f"v_add_u32 v18, {j}, v16")
            p("v_and_b32 v19, 1, v18")
            p("v_lshrrev_b32 v18, 1, v18")
            p("v_lshl_add_u32 v18, v18, 10, v17")
            p(f"v_lshl_add_u32 v{56 + j}, v19, 3, v18")
        p(f"s_lshr_b32 {sT0}, {sw}, 1")
        p(f"s_lshl_b32 {sT0}, {sT0}, 10")
        p(f"s_and_b32 {sT1}, {sw}, 1")
        p(f"s_lshl_b32 {sT1}, {sT1}, 3")
        p(f"s_add_u32 {sT0}, {sT0}, {sT1}")
        p(f"v_add_u32 v60, {sT0}, {vS16}")
        p(f"s_lshl_b32 {sT0}, {stb}, 7")
        p(f"s_lshl_b32 {sT1}, {sh}, 2")
        p(f"s_add_u32 {sT0}, {sT0}, {sT1}")
        p(f"s_add_u32 s3, {sT0}, {G_FO}")

    def kv_gather_o(self, layer, G, a2, shadow=None):
        p = self.p

        def loads():
            for u in range(0, 16, 2):
                p(f"s_add_u32 {sT5}, {sg}, {u // 2}")
                p(f"s_and_b32 {sT5}, {sT5}, 7")
                p(f"s_lshl_b32 {sT5}, {sT5}, 12")
                p(f"s_add_u32 {sT5}, {sT5}, s6")
                p(f"buffer_load_dwordx2 {V(G + 2 * u, 2)}, {a2}, {SWS}, {sT5} offen sc1")
                p(f"buffer_load_dwordx2 {V(G + 2 * u + 2, 2)}, {a2}, {SWS}, {sT5} offen offset:2048 sc1")

        def test():
            p(f"v_max_u32 v16, v{G}, v{G + 1}")
            for u in range(1, 16):
                p(f"v_max3_u32 v16, v16, v{G + 2 * u}, v{G + 2 * u + 1}")
            p("v_cmp_eq_u32 vcc, -1, v16")
        loads()
        if shadow:
            shadow()
        self.o_addrs()
        lo, lb, lp = p.label("kvspin"), p.label("kvback"), p.label("kvloop")
        test()
        p(f"s_cbranch_vccnz {lo}")
        p(f"{lb}:")
        with self.cap() as c:
            p(f"{lo}:")
            p(f"s_mov_b32 {sCnt}, {slim}")
            p(f"{lp}:")
            loads()
            p("s_waitcnt vmcnt(0)")
            test()
            p(f"s_cbranch_vccz {lb}")
            p(f"s_sub_u32 {sCnt}, {sCnt}, 1")
            p(f"s_cmp_lg_u32 {sCnt}, 0")
            p(f"s_cbranch_scc1 {lp}")
            p(f"s_mov_b32 {slim}, 1")
            p(f"s_branch {lb}")
        self.tail.extend(c.ins)
        self.stamp(f"kv_seen{layer}")
        for u in range(16):
            for k in range(2):
                src = f"v{G + 2 * u + k}"
                if u == 0:
                    p(f"v_lshlrev_b32 v{16 + 2 * k}, 16, {src}")
                    p(f"v_and_b32 v{17 + 2 * k}, {sHI}, {src}")
                else:
                    t = 20 + 2 * k
                    p(f"v_lshlrev_b32 v{t}, 16, {src}")
                    p(f"v_and_b32 v{t + 1}, {sHI}, {src}")
                    p(f"v_pk_add_f32 {V(16 + 2 * k, 2)}, {V(16 + 2 * k, 2)}, {V(t, 2)}")
        p("v_cvt_pk_bf16_f32 v20, v16, v17")
        p("v_cvt_pk_bf16_f32 v21, v18, v19")
        p(f"ds_write_b64 v60, v[20:21] offset:{S_KVS}")
        p.wait_ds()
        p("s_barrier")
        p(f"ds_read_b128 {V(24)}, {vS16} offset:{S_KVS}")
        p(f"ds_read_b128 {V(28)}, {vS16} offset:{S_KVS + 1024}")
        p(f"{MFMA} {V(32, 16)}, {V(24)}, {V(48)}, 0")
        p(f"{MFMA} {V(32, 16)}, {V(28)}, {V(52)}, {V(32, 16)}")
        p("v_mov_b32 v16, v44")
        p("v_mov_b32 v17, v44")
        p("v_permlane32_swap_b32 v16, v17")
        p(f"v_add_f32 v16, {sEPS6}, v17")
        p("v_rcp_f32 v16, v16")
        for r in range(0, 16, 2):
            p(f"v_pk_mul_f32 {V(32 + r, 2)}, {V(32 + r, 2)}, v[16:17] op_sel_hi:[1,0]")
        for r in range(8):
            p(f"v_cvt_pk_bf16_f32 v{20 + r}, v{32 + 2 * r}, v{33 + 2 * r}")
        st = [f"buffer_store_dwordx2 {V(20 + 2 * j, 2)}, v{56 + j}, {SG}, {sHB} offen" for j in range(3)]
        st += ["s_mov_b32 exec_hi, 0", f"buffer_store_dwordx2 {V(26, 2)}, v59, {SG}, {sHB} offen",
               "s_mov_b64 exec, -1"]
        self.publish(st, always_sc1=(layer == 0 and self.opt.get("o0sc1", 0)))
        self.flag("s3", 1 + layer)
        if layer == 0:
            self.ready(WS_RA)
        self.stamp(f"o_pub{layer}")

    def qkv0(self):
        p = self.p
        rd = []
        for s in range(28):
            f = (s % 3) * 8
            rd.append((self.trread(A(f, 2), A(f + 2, 2), "v62", L_WK + s * KB, 256),
                       self.trread(A(f + 4, 2), A(f + 6, 2), "v62", L_WV + s * KB, 256)))
        p.add(rd[0][0] + rd[0][1] + rd[1][0] + rd[1][1])
        main = []
        for s in range(28):
            f = (s % 3) * 8
            for k in range(2):
                acc = V(16 + 16 * k, 16)
                g = [Ins(f"{MFMA} {acc}, {V(64 + 4 * s)}, {A(f + 4 * k)}, {acc if s else 0}")]
                if s + 2 < 28:
                    g += rd[s + 2][k]
                main.append(g)
        with self.cap() as c:
            self.kv_addrs(0, "v60", "v61", "v11")
            p(f"s_lshl_b32 {sT3}, {sh}, 11")
            p(f"v_and_b32 v56, 15, {vLane}")
            p(f"v_bfe_u32 v57, {vLane}, 4, 1")
            p("v_lshlrev_b32 v58, 7, v56")
            p(f"v_add_u32 v58, {sT3}, v58")
            p(f"s_lshl_b32 {sT2}, {sg}, 8")
            p("v_lshlrev_b32 v56, 11, v56")
            p("v_lshl_add_u32 v56, v57, 7, v56")
            p(f"v_add_u32 v56, {sT2}, v56")
            p(f"v_cndmask_b32 v58, v58, v56, {sMPAD}")
            p(f"s_mov_b32 {sU[3]}, {WS_RB}")
        setup = groups(c.ins)
        with self.cap() as c1:
            self.poll_load("v58", SWS, sU[3], 1, 59)
        with self.cap() as c2:
            p.wait_vm("pb")
            p("s_barrier")
            self.ready(WS_RB)
        gr = self.opt.get("gr", 4)
        with self.cap() as c3:
            self.pack_c_loads()
        late = [c3.ins] if not self.opt.get("cearly", 0) else []
        if self.opt.get("to", 4) == 1:
            late += self.touch_items(G_O, 14)
        if self.opt.get("wopos", 1) == 0:
            late += self.wo_items()
        if self.opt.get("wqlate", 1):
            p.add(spread(main, [([c2.ins], gr, gr), (self.wq + late, gr + 1, 50), (setup, gr + 2, 50)]))
        else:
            p.add(spread(main, [(self.wq, 0, gr - 2), ([c2.ins], gr, gr), (late, gr + 1, 44), (setup, gr + 2, 50)]))
        self.pollb = c1.ins
        self.stamp("kv_gemm0")
        with self.cap() as c:
            self.phi(16, 16, 48)
            p(f"v_mov_b32 v48, {sONES}")
            for r in range(8):
                p(f"v_cvt_pk_bf16_f32 v{32 + r}, v{32 + 2 * r}, v{33 + 2 * r}")
            for r in range(8):
                p(f"v_cndmask_b32 v{32 + r}, v{32 + r}, v48, {sM28}")
        main = groups(c.ins, 4)
        p.add(spread(main, [([self.pollb], 0, 0),
                            (self.wo_items() if self.opt.get("wopos", 1) == 2 else [], 2, len(main) - 1)]))
        p.wait_vm("wq")
        self.kv_publish(lambda lo, k: A(24 + lo, k), "v60", "v61", "v11")
        self.stamp("kv_pub0")
        p("v_mov_b32 v13, v63")
        self.apoll_end("v58", SWS, sU[3], 1, 1, 59)
        p(f"v_cmp_ne_u32 vcc, {sfast}, v59")
        p("s_cmp_eq_u32 vcc_hi, 0")
        self.stamp_flush()
        p("s_cbranch_scc1 L_slow" if self.force_slow else "s_cbranch_scc0 L_slow")

    def q0(self):
        p = self.p
        rd = [self.trread(A((s % 4) * 4, 2), A((s % 4) * 4 + 2, 2), "v13", s * KB, 256) for s in range(28)]
        p.add(rd[0] + rd[1] + rd[2])
        main = []
        for s in range(28):
            g = [Ins(f"{MFMA} {V(48, 16)}, {A((s % 4) * 4)}, {V(64 + 4 * s)}, {V(48, 16) if s else 0}")]
            if s + 3 < 28:
                g += rd[s + 3]
            main.append(g)
        with self.cap() as c:
            self.phi(48, 48, 16)
            p(f"v_cndmask_b32 v54, v54, 0, {sMPAD}")
            p(f"v_cndmask_b32 v55, v55, 0, {sMPAD}")
        main += groups(c.ins, 6)
        self.w1 = self.w1_items()
        n1 = self.opt.get("w1early", 6)
        items = (self.pack_c_items() if self.opt.get("cearly", 0) != 1 else []) + (self.wo_items() if self.opt.get("wopos", 1) == 1 else []) + self.w1[:n1]
        if self.opt.get("to", 4) == 2:
            items = self.touch_items(G_O, 14) + items
        if self.opt.get("txs", 2) == 1:
            items += self.touch_items(G_X, 18)
        self.w1 = self.w1[n1:]
        p.add(spread(main, [(items, 0, len(main) - 1)]))
        self.stamp("q_done0")

    def colsum_qkv_items(self):
        p = self.p
        items = []
        with self.cap() as c:
            p(f"s_min_u32 {sU[0]}, {sw}, 2")
            p(f"s_mul_i32 {sU[0]}, {sU[0]}, {28 * KB}")
            p(f"v_add_u32 v60, {sU[0]}, {vTrA}")
            p.add(self.trread(V(40, 2), V(42, 2), "v60", 0))
        items.append(c.ins)
        for s in range(28):
            f = 40 + (s % 2) * 4
            g = []
            if s + 1 < 28:
                f2 = 40 + ((s + 1) % 2) * 4
                g += self.trread(V(f2, 2), V(f2 + 2, 2), "v60", (s + 1) * KB)
            g.append(Ins(f"{MFMA} {A(0, 16)}, {self.ones}, {V(f)}, {A(0, 16) if s else 0}"))
            items.append(g)
        with self.cap() as c:
            p("v_accvgpr_read_b32 v40, a0")
            self.split_words("v40", "v42", "v43", "v41", False, False)
            p(f"v_cndmask_b32 v42, v42, 0, {sMPAD}")
            p(f"v_cndmask_b32 v43, v43, 0, {sMPAD}")
            p(f"s_lshl_b32 {sU[0]}, {sw}, 9")
            p(f"v_lshlrev_b32 v60, 3, {vLane}")
            p(f"v_add_u32 v60, {L_S + S_STAT}, v60")
            p(f"v_add_u32 v61, {sU[0]}, v60")
            p("ds_write_b64 v61, v[42:43]")
        items.append(c.ins)
        return items

    def colsum_qkv_fetch(self):
        p = self.p
        p(f"v_lshlrev_b32 v13, 3, {vLane}")
        p(f"v_add_u32 v13, {L_S + S_STAT}, v13")
        p(f"ds_read_b64 {V(vCSQ + 2, 2)}, v13")
        p(f"ds_read_b64 {V(vCSQ + 4, 2)}, v13 offset:512")
        p(f"ds_read_b64 {V(vCSQ, 2)}, v13 offset:1024")

    def colsum_w1_items(self):
        p = self.p
        items = [[Ins(f"{MFMA} {A(16, 16)}, {self.ones}, {w1reg(s)}, {A(16, 16) if s else 0}")] for s in range(28)]
        with self.cap() as c:
            p("v_accvgpr_read_b32 v62, a16")
            self.split_words("v62", f"v{vCS1}", f"v{vCS1 + 1}", "v63", False, False)
            p(f"v_cndmask_b32 v{vCS1}, v{vCS1}, 0, {sMPAD}")
            p(f"v_cndmask_b32 v{vCS1 + 1}, v{vCS1 + 1}, 0, {sMPAD}")
        items.append(c.ins)
        return items

    def make_ones(self):
        p = self.p
        p(f"v_mov_b32 v15, {sONES}")
        for r in range(4):
            p(f"v_accvgpr_write_b32 a{32 + r}, v15")
        self.ones = A(32)

    def qkv1(self):
        p = self.p
        p(f"v_min_u32 v13, 27, {vLane}")
        p("v_lshlrev_b32 v13, 2, v13")
        p(f"s_lshl_b32 {sT0}, {stb}, 7")
        p(f"s_add_u32 {sT0}, {sT0}, {G_FX}")
        WF = [152, 156, 160, 164, 168, 172]

        def wf(s, k):
            r = WF[3 * (s % 2) + k]
            if k == 2:
                return self.trread(V(r, 2), V(r + 2, 2), vTrB, s * KB)
            return self.trread(V(r, 2), V(r + 2, 2), vTrA, (L_WK, L_WV)[k] + s * KB)
        p.add(wf(0, 0) + wf(0, 1) + wf(0, 2))
        self.poll("v13", SG, sT0, 2)
        self.stamp("x2_seen")
        RING, NR = 96, 14

        def ld(s):
            q = sub()
            if s % 4 == 0:
                q(f"s_add_u32 s4, {sXB}, {s * KB}")
            q(f"buffer_load_dwordx4 {V(RING + 4 * (s % NR))}, {vL16}, {SG}, s4 offen offset:{(s % 4) * KB} sc1")
            return q.ins
        LEAD = self.opt.get("lead", 6)
        for s in range(LEAD):
            p.add(ld(s))
        stl = []
        for u in range(7):
            with self.cap() as c:
                if u % 4 == 0:
                    p(f"s_add_u32 {sT5}, {sSTB}, {u * KB}")
                p(f"buffer_load_dwordx4 {V(64 + 4 * u)}, {vL16}, {SG}, {sT5} offen offset:{(u % 4) * KB} sc1")
            stl.append(c.ins)
        with self.cap() as st:
            for i in range(1, 28):
                p(f"v_add_f32 v{64 + (i & 1)}, v{64 + (i & 1)}, v{64 + i}" if i > 1 else "v_nop")
            p("v_add_f32 v64, v64, v65")
            self.stats_finish("v64", "v65", "v66", "v67")
            p("v_rsq_f32 v88, v67")
            self.split_words("v66", "v92", "v93", "v65", True, True)
            p("v_mov_b32 v94, 0")
            p("v_mov_b32 v95, 0")
            p("v_cvt_pk_bf16_f32 v80, v88, v88")
            p(f"v_and_b32 v64, {sHI}, v80")
            p("v_sub_f32 v64, v88, v64")
            p("v_cvt_pk_bf16_f32 v81, v64, v64")
            p(f"v_and_b32 v65, {sHI}, v81")
            p("v_sub_f32 v65, v64, v65")
            p("v_and_b32 v80, 0xffff, v80")
            p(f"v_and_or_b32 v80, v81, {sHI}, v80")
            p("v_cvt_pk_bf16_f32 v81, v65, 0")
            p("v_mov_b32 v82, 0")
            p("v_mov_b32 v83, 0")
            p(f"v_mov_b32 v84, {sONES}")
            p(f"v_cndmask_b32 v84, v84, 0, {sMPAD}")
            p("v_mov_b32 v85, v84")
            p("v_mov_b32 v86, 0")
            p("v_mov_b32 v87, 0")
            p(f"{MFMA} {V(64, 16)}, {V(80)}, {V(84)}, 0")
            self.kv_addrs(1, "v89", "v90", "v91")
            for m, dst in ((1, 80), (2, 84)):
                p(f"v_mov_b32 v{dst}, v{vCSQ + 2 * m}")
                p(f"v_mov_b32 v{dst + 1}, v{vCSQ + 2 * m + 1}")
        main = []
        for s in range(28):
            o = 3 * (s % 2)
            a = V(RING + 4 * (s % NR))
            nk = 3 if s < NR else 2
            nk2 = 3 if s + 1 < NR else 2
            for k in range(nk):
                acc = V(16 + 16 * k, 16)
                c = acc if s else 0
                g = [Ins(f"{MFMA} {acc}, {a}, {V(WF[o + k])}, {c}" if k < 2 else f"{MFMA} {acc}, {V(WF[o + k])}, {a}, {c}")]
                if s + 1 < 28 and k < nk2:
                    g += wf(s + 1, k)
                main.append(g)
        seq = [ld(s) for s in range(LEAD, 14)] + stl + [ld(s) for s in range(14, 28)]
        slots = []
        gpos = 0
        for i, it in enumerate(seq):
            s = i + LEAD - 7
            if s >= 14:
                gpos = max(gpos, 3 * (s - 14) + 2)
            slots.append(([it], gpos, gpos))
            gpos += 2
        p.add(spread(main, slots + [(groups(st.ins), 40, len(main) - 2)]))
        p(f"{MFMA} {V(16, 16)}, {V(92)}, {V(80)}, {V(16, 16)}")
        p(f"{MFMA} {V(32, 16)}, {V(92)}, {V(84)}, {V(32, 16)}")
        self.stamp("kv_gemm1")
        QF = [152, 156, 160, 164]
        qrd = lambda s: self.trread(V(QF[s % 4], 2), V(QF[s % 4] + 2, 2), vTrB, s * KB)
        p.add(qrd(14) + qrd(15) + qrd(16))
        main = []
        for s in range(NR, 28):
            g = [Ins(f"{MFMA} {V(48, 16)}, {V(QF[s % 4])}, {V(RING + 4 * (s % NR))}, {V(48, 16)}")]
            if s + 3 < 28:
                g += qrd(s + 3)
            main.append(g)
        with self.cap() as c:
            self.phi(16, 16, 168, lambda r: f"v{64 + r}")
            p(f"v_mov_b32 v168, {sONES}")
            for r in range(16):
                p(f"v_mul_f32 v{32 + r}, v{32 + r}, v{64 + r}")
            for r in range(8):
                p(f"v_cvt_pk_bf16_f32 v{32 + r}, v{32 + 2 * r}, v{33 + 2 * r}")
            for r in range(8):
                p(f"v_cndmask_b32 v{32 + r}, v{32 + r}, v168, {sM28}")
            p(f"v_mov_b32 v80, v{vCSQ}")
            p(f"v_mov_b32 v81, v{vCSQ + 1}")
        p.add(spread(main, [(groups(c.ins), 1, len(main) - 1)]))
        self.kv_publish(lambda lo, k: V(64 + lo, k), "v89", "v90", "v91")
        p(f"{MFMA} {V(48, 16)}, {V(80)}, {V(92)}, {V(48, 16)}")
        self.stamp("kv_pub1")

    def q1_epilogue(self):
        p = self.p
        self.phi(48, 48, 168, lambda r: "v88")
        p(f"v_cndmask_b32 v54, v54, 0, {sMPAD}")
        p(f"v_cndmask_b32 v55, v55, 0, {sMPAD}")

    def residual0(self):
        p = self.p
        p(f"v_and_b32 v13, 31, {vLane}")
        p("v_mul_u32_u24 v13, 896, v13")
        p(f"v_lshrrev_b32 v14, 5, {vLane}")
        p("v_lshl_add_u32 v13, v14, 3, v13")
        p(f"s_lshl_b32 {sT0}, {sg}, 3")
        p(f"s_add_u32 {sT0}, {sT0}, {stb}")
        p(f"s_mul_i32 {sT0}, {sT0}, {32 * 896}")
        p(f"s_min_u32 {sT1}, {sh}, 13")
        p(f"s_lshl_b32 {sT1}, {sT1}, 6")
        p(f"s_add_u32 {sT0}, {sT0}, {sT1}")
        for a in range(4):
            p(f"buffer_load_dwordx2 {V(104 + 2 * a, 2)}, v13, {SX}, {sT0} offen offset:{16 * a}")

    def wo_phase(self, layer, pre=None, streams=()):
        p = self.p
        first = layer == 0 and self.opt.get("x0sc1", 0)
        RES = 104 if layer == 0 else 32
        p(f"s_lshl_b32 s5, {sh}, 11")
        p(f"s_add_u32 s5, s5, {sXB}")
        if layer == 1:
            p(f"buffer_load_dwordx4 {V(32)}, {vL16}, {SG}, s5 offen sc1")
            p(f"buffer_load_dwordx4 {V(36)}, {vL16}, {SG}, s5 offen offset:1024 sc1")
        p(f"s_lshr_b32 {sT1}, {sh}, 2")
        p(f"s_lshl_b32 {sT1}, {sT1}, 10")
        p(f"s_and_b32 {sT2}, {sh}, 3")
        p(f"s_lshl_b32 {sT2}, {sT2}, 2")
        p(f"s_add_u32 {sT1}, {sT1}, {sT2}")
        p(f"s_add_u32 s6, {sT1}, {sSTB}")
        p(f"s_lshl_b32 {sT0}, {stb}, 7")
        p(f"s_lshl_b32 {sT1}, {sh}, 3")
        p(f"s_add_u32 {sT1}, {sT0}, {sT1}")
        p(f"s_add_u32 s7, {sT1}, {G_FX}")
        p(f"s_add_u32 {sT0}, {sT0}, {G_FO}")
        p(f"v_and_b32 v13, 15, {vLane}")
        p("v_lshlrev_b32 v13, 2, v13")
        rd = [self.trread(V(48 + (s % 3) * 4, 2), V(50 + (s % 3) * 4, 2), vTrB, (L_WO - L_WQ) + s * KB)
              for s in range(28)]
        p.add(rd[0] + rd[1])
        if pre:
            pre()
        self.poll("v13", SG, sT0, 1 + layer)
        self.stamp(f"o_seen{layer}")
        RING = 64
        LEAD = self.opt.get("leadwo", 8)

        def ld(s):
            q = sub()
            if s % 4 == 0:
                q(f"s_add_u32 s4, {sHB}, {s * KB}")
            q(f"buffer_load_dwordx4 {V(RING + 4 * s)}, {vL16}, {SG}, s4 offen offset:{(s % 4) * KB} sc1")
            return q.ins
        for s in range(LEAD):
            p.add(ld(s))
            p(f"v_lshlrev_b32 v{16 + 2 * s}, 16, v{RES + s}" if s < 8 else "; -")
            p(f"v_and_b32 v{17 + 2 * s}, {sHI}, v{RES + s}" if s < 8 else "; -")
        assert LEAD >= 8
        main = []
        for s in range(28):
            g = [Ins(f"{MFMA} {V(16, 16)}, {V(48 + (s % 3) * 4)}, {V(RING + 4 * s)}, {V(16, 16)}")]
            if s + LEAD < 28:
                g += ld(s + LEAD)
            if s + 2 < 28:
                g += rd[s + 2]
            main.append(g)
        p.add(spread(main, list(streams)))
        self.stamp(f"wo_gemm{layer}")
        for r in range(8):
            p(f"v_cvt_pk_bf16_f32 v{32 + r}, v{16 + 2 * r}, v{17 + 2 * r}")
        self.publish([f"buffer_store_dwordx4 {V(32)}, {vL16}, {SG}, s5 offen",
                      f"buffer_store_dwordx4 {V(36)}, {vL16}, {SG}, s5 offen offset:1024"], always_sc1=first)
        p("v_pk_mul_f32 v[42:43], v[16:17], v[16:17]")
        for r in range(2, 16, 2):
            p(f"v_pk_fma_f32 v[42:43], {V(16 + r, 2)}, {V(16 + r, 2)}, v[42:43]")
            p(f"v_pk_add_f32 v[16:17], v[16:17], {V(16 + r, 2)}")
        p("v_add_f32 v40, v16, v17")
        p("v_add_f32 v42, v42, v43")
        self.both_halves("v40", "v42", None)
        self.publish([f"buffer_store_dword v40, {vL16}, {SG}, s6 offen"], always_sc1=first)
        self.flag("s7", 1 + 2 * layer, 2)
        self.stamp(f"x1_pub{layer}")

    def w2_setup(self, va, vb):
        p = self.p
        p(f"s_and_b32 s25, {sw}, 1")
        p(f"s_lshl_b32 s25, s25, 8")
        p(f"s_lshr_b32 s26, {sw}, 1")
        p(f"s_lshl_b32 s26, s26, 10")
        p(f"s_add_u32 s25, s25, s26")
        p(f"v_xor_b32 {va}, s25, {vL16}")
        p(f"v_xor_b32 {vb}, 0x400, {va}")
        p(f"s_mul_i32 s25, {scb}, {224 * KB}")
        p(f"s_lshl_b32 s26, {sw}, 12")
        p(f"s_add_u32 s25, s25, s26")
        p(f"s_add_u32 s25, s25, {WS_P2}")

    def w2_items(self, va, vb):
        p = self.p
        items = []
        for j in range(28):
            for ch in range(2):
                with self.cap() as c:
                    if j % 2 == 0 and j and ch == 0:
                        p(f"s_add_u32 s25, s25, {16 * KB}")
                    p(f"buffer_load_dwordx4 {w2reg(j, ch)}, {(va, vb)[ch]}, {SWS}, s25 offen offset:{(j & 1) * 2048} sc1",
                      "w2")
                items.append(c.ins)
        return items

    def ffn(self, layer, pre=None, extra=None):
        p = self.p
        p(f"v_and_b32 v13, 15, {vLane}")
        p("v_min_u32 v13, 13, v13")
        p("v_lshlrev_b32 v13, 3, v13")
        p(f"v_lshrrev_b32 v14, 4, {vLane}")
        p("v_lshl_add_u32 v107, v14, 7, v13")
        p(f"s_mul_i32 {sT0}, {srh}, {112 * KB}")
        p(f"s_add_u32 {sT0}, {sT0}, {G_X - L_S}")
        p(f"v_add_u32 v110, {sT0}, {vL16}")
        p(f"s_lshl_b32 s5, {sw}, 10")
        p(f"s_add_u32 s5, s5, {L_S}")
        p(f"s_lshl_b32 {sT0}, {sh}, 13")
        p(f"s_lshl_b32 {sT1}, {sw}, 11")
        p(f"s_add_u32 s3, {sT0}, {sT1}")
        p(f"s_mul_i32 {sT0}, {srh}, {4 * 112 * KB}")
        p(f"s_add_u32 s3, s3, {sT0}")
        p(f"s_lshl_b32 {sT0}, {srh}, 10")
        p(f"s_lshl_b32 {sT1}, {sw}, 6")
        p(f"s_add_u32 {sT0}, {sT0}, {sT1}")
        p(f"s_lshl_b32 {sT1}, {sh}, 2")
        p(f"s_add_u32 {sT0}, {sT0}, {sT1}")
        p(f"s_add_u32 s2, {sT0}, {G_FH}")
        p(f"v_mov_b32 v84, v{vCS1}")
        p(f"v_mov_b32 v85, v{vCS1 + 1}")
        for r in (86, 87, 90, 91):
            p(f"v_mov_b32 v{r}, 0")
        p(f"v_and_b32 v108, 31, {vLane}")
        p("v_lshlrev_b32 v108, 4, v108")
        p(f"v_add_u32 v108, {L_S + S_STAT}, v108")
        p(f"s_and_b32 {sT0}, {sxs}, 3")
        p(f"s_lshl_b32 {sT0}, {sT0}, 9")
        p(f"v_add_u32 v109, {sT0}, v108")
        p.wait_ds()
        p("s_barrier")
        if pre:
            pre()
        p(f"s_lshl_b32 {sT0}, {srh}, 9")
        p(f"s_add_u32 {sT0}, {sT0}, {G_FX}")
        self.poll("v107", SG, sT0, 1 + 2 * layer, 2)
        self.stamp(f"x1_seen{layer}")

        Q, P = 10, 2

        def quad(k):
            q = sub()
            if k % Q == 0:
                q("s_mov_b32 m0, s5")
                if k:
                    q(f"v_add_u32 v110, {Q * 4 * KB}, v110")
            else:
                q(f"s_add_u32 m0, m0, {4 * KB}")
            q(f"buffer_load_dwordx4 v110, {SG}, m0 offen sc1 lds", f"c{k // P}")
            return q.ins
        for k in range(4):
            p.add(quad(k))
        stl = [[Ins(f"buffer_load_dwordx4 {V(112 + 4 * u)}, {vL16}, {SG}, {sSTB} offen offset:{u * KB} sc1")]
               for u in range(4)]
        with self.cap() as st:
            for i in range(2, 14):
                p(f"v_add_f32 v{112 + (i & 1)}, v{112 + (i & 1)}, v{112 + i}")
            p("v_add_f32 v112, v112, v113")
            self.stats_finish("v112", "v113", "v114", "v115")
            self.split_words("v114", "v116", "v117", "v113", True, True)
            p("v_rsq_f32 v118, v115")
            p("v_sqrt_f32 v119, v115")
            p(f"v_mul_f32_e64 v118, -v118, {sLOG2E}")
            p("ds_write_b128 v109, v[116:119]", "stw")
        XF, NX, D = 48, 5, 4
        rdx = lambda n: Ins(f"ds_read_b128 {V(XF + 4 * (n % NX))}, {vS16} offset:{(n % (4 * Q)) * KB}", f"x{n}")

        def boundary(j):
            q = sub()
            q.wait_vm(f"c{j}")
            if j == 3:
                q.wait_ds("stw")
            q("s_barrier")
            return q.ins
        p.add(quad(4))
        p.add(quad(5))
        p.add(boundary(0))
        p.add([rdx(n) for n in range(D)])
        main = []
        pos = {}
        for n in range(112):
            o, s = divmod(n, 28)
            acc = V(16 + 16 * (o & 1), 16)
            g = []
            if n % 2 == 0:
                g.append(Pseudo("wait_ds", f"x{n + 1}"))
            g.append(Ins(f"{MFMA} {acc}, {w1reg(s)}, {V(XF + 4 * (n % NX))}, {acc if s else 0}"))
            m = n + D
            if m < 112:
                if m % 8 == 0:
                    g += boundary(m // 8)
                g.append(rdx(m))
                if m == 24:
                    g += [Ins(f"ds_read_b128 {V(68 + 4 * k)}, v108 offset:{k * 512}") for k in range(4)]
                if m % 4 == 1 and m >= 8:
                    k = m // 4 + 6
                    if k < 28:
                        g += quad(k)
            if s == 24:
                g += [Ins(f"v_mov_b32 v88, v{68 + 4 * o}"), Ins(f"v_mov_b32 v89, v{69 + 4 * o}")]
            pos[n] = len(main)
            main.append(g)
            if s == 27:
                main.append([Ins(f"{MFMA} {acc}, {V(84)}, {V(88)}, {acc}")])

        hsc1 = self.opt.get("h0sc1", 1) if layer == 0 else self.opt.get("h1sc1", 0)

        def epilogue(o):
            tb = ((o & 1) << 1) | (o >> 1)
            acc = 16 + 16 * (o & 1)
            c1, sd = f"v{70 + 4 * o}", f"v{71 + 4 * o}"
            with self.cap() as c:
                for r0 in range(0, 16, 2):
                    rr = (r0, r0 + 1)
                    t = {r: f"v{92 + (r & 3)}" for r in rr}
                    a = {r: f"v{acc + r}" for r in rr}
                    for r in rr:
                        p(f"v_mul_f32 {t[r]}, {a[r]}, {c1}")
                    for r in rr:
                        p(f"v_exp_f32 {t[r]}, {t[r]}")
                    for r in rr:
                        p(f"v_fma_f32 {t[r]}, {t[r]}, {sd}, {sd}")
                    for r in rr:
                        p(f"v_rcp_f32 {t[r]}, {t[r]}")
                    for r in rr:
                        p(f"v_mul_f32 {a[r]}, {a[r]}, {t[r]}")
                    p(f"v_cvt_pk_bf16_f32 v{96 + (r0 >> 1)}, {a[r0]}, {a[r0 + 1]}")
            items = groups(c.ins)
            with self.cap() as c:
                p(f"s_add_u32 {sT0}, s3, {tb * 112 * KB}")
                self.publish([f"buffer_store_dwordx4 {V(96)}, {vL16}, {SG}, {sT0} offen",
                              f"buffer_store_dwordx4 {V(100)}, {vL16}, {SG}, {sT0} offen offset:1024"], f"h{o}",
                             always_sc1=hsc1)
            items.append(c.ins)
            with self.cap() as c:
                p(f"s_add_u32 {sT1}, s2, {tb * 256}")
                self.flag(sT1, 1 + layer, wait=f"h{o}", st=sT2)
            return items, c.ins
        streams = [([quad(6), quad(7)], 0, 3), (stl[:2], 1, 4), (stl[2:], 6, 8), (groups(st.ins), 13, 19)]
        eps = [epilogue(o) for o in range(4)]
        late = 24 if hsc1 else 12
        for o in range(3):
            streams.append((eps[o][0], pos[28 * (o + 1)] + 2, pos[28 * (o + 1) + 27]))
        for o in range(2):
            g = pos[28 * (o + 2) + late]
            streams.append(([eps[o][1]], g, g))
        with self.cap() as c:
            self.ffn2_setup(layer)
        streams.append((groups(c.ins), pos[84 + 2], pos[84 + 20]))
        with self.cap() as c:
            self.poll_load("v107", SG, sU[4], 1, 109)
        streams.insert(0, ([c.ins], pos[84 + 26], pos[84 + 26]))
        if extra:
            streams += extra(pos)
        if self.opt.get("fine"):
            self.stamp(f"f1_first{layer}")
            woven = spread(main, streams)
            k = 0
            for x in woven:
                p.add([x])
                if x.kind == "mfma":
                    k += 1
                    if k % 29 == 0 and k < 116:
                        self.stamp(f"f1_o{k // 29 - 1}_{layer}")
        else:
            p.add(spread(main, streams))
        self.stamp(f"ffn1_mfma{layer}")
        self.ffn2(layer, eps[3][0], eps[2][1], eps[3][1])

    def ffn2_setup(self, layer):
        p = self.p
        p(f"s_mul_i32 {sU[3]}, {srq}, {2 * 112 * KB}")
        p(f"s_lshl_b32 {sT3}, {sw}, 11")
        p(f"s_add_u32 {sU[3]}, {sU[3]}, {sT3}")
        p(f"s_lshl_b32 {sU[4]}, {srq}, 9")
        p(f"s_lshl_b32 {sT3}, {sw}, 6")
        p(f"s_add_u32 {sU[4]}, {sU[4]}, {sT3}")
        p(f"s_add_u32 {sU[4]}, {sU[4]}, {G_FH}")
        p(f"v_min_u32 v107, 13, {vLane}")
        p("v_lshlrev_b32 v107, 2, v107")
        p(f"s_lshr_b32 {sT3}, {srq}, 1")
        p(f"s_lshl_b32 {sT3}, {sT3}, 2")
        p(f"s_and_b32 {sT4}, {srq}, 1")
        p(f"s_add_u32 {sT3}, {sT3}, {sT4}")
        p(f"s_mul_i32 {sU[5]}, {sT3}, {28 * KB}")
        p(f"s_lshl_b32 {sT3}, {scb}, 12")
        p(f"s_lshl_b32 {sT4}, {sw}, 10")
        p(f"s_add_u32 {sT3}, {sT3}, {sT4}")
        p(f"s_add_u32 {sU[5]}, {sU[5]}, {sT3}")
        p(f"s_add_u32 {sU[5]}, {sU[5]}, {G_X}")
        p(f"s_mul_i32 {sU[6]}, {srq}, {14 * KB}")
        p(f"s_lshl_b32 {sT3}, {scb}, 10")
        p(f"s_lshl_b32 {sT4}, {sw}, {2 if layer == 0 else 8}")
        p(f"s_add_u32 {sT3}, {sT3}, {sT4}")
        p(f"s_add_u32 {sU[6]}, {sU[6]}, {sT3}")
        p(f"s_add_u32 {sU[6]}, {sU[6]}, {G_ST}")
        if layer == 0:
            p(f"s_lshl_b32 {sT3}, {srq}, 8")
            p(f"s_lshl_b32 {sT4}, {scb}, 4")
            p(f"s_add_u32 {sT3}, {sT3}, {sT4}")
            p(f"s_lshl_b32 {sT4}, {sw}, 2")
            p(f"s_add_u32 {sT3}, {sT3}, {sT4}")
            p(f"s_add_u32 {sU[7]}, {sT3}, {G_FX}")
        else:
            p(f"s_lshl_b32 {sT3}, {sg}, 2")
            p(f"s_add_u32 {sT3}, {sT3}, {srq}")
            p(f"s_mul_i32 {sT3}, {sT3}, {64 * 896}")
            p(f"s_lshl_b32 {sT4}, {scb}, 7")
            p(f"s_add_u32 {sT3}, {sT3}, {sT4}")
            p(f"s_lshl_b32 {sT4}, {sw}, 5")
            p(f"s_add_u32 {sU[7]}, {sT3}, {sT4}")
            p(f"v_and_b32 v13, 31, {vLane}")
            p("v_mul_u32_u24 v13, 896, v13")
            p(f"v_lshrrev_b32 v111, 5, {vLane}")
            p("v_lshl_add_u32 v111, v111, 4, v13")

    def ffn2(self, layer, ep3, flag2, flag3):
        p = self.p
        RING, NR = 112, 16
        ACC = ((16, 48), (32, 64))

        def hreg(n):
            return V(RING + 4 * (n % NR))

        def ld(n):
            th, j = divmod(n, 28)
            q = sub()
            if j % 2 == 0:
                q(f"s_add_u32 {sU[9]}, {sU[3]}, {th * 112 * KB + (j >> 1) * 8 * KB}")
            q(f"buffer_load_dwordx4 {hreg(n)}, {vL16}, {SG}, {sU[9]} offen offset:{(j % 2) * KB} sc1")
            return q.ins
        self.apoll_end("v107", SG, sU[4], 1 + layer, 1, 109)
        self.stamp(f"h_seen{layer}")
        lds = [ld(n) for n in range(56)]
        LEAD = self.opt.get("leadh", 9)
        p.add(spread(ep3, [(lds[:LEAD], 0, len(ep3) - 4), ([flag2], 70, 70)]))
        p("s_barrier")
        p(f"buffer_load_dwordx4 {V(88)}, {vL16}, {SG}, {sU[5]} offen sc1")
        self.stamp(f"ep3_done{layer}")
        for dd in range(1, 4):
            p(f"s_xor_b32 {sT3}, {sw}, {dd}")
            p(f"s_mul_i32 {sT3}, {sT3}, {6 * KB}")
            p(f"v_add_u32 v{12 + dd}, {sT3}, {vS16}")
        p(f"s_mul_i32 {sT3}, {sw}, {6 * KB}")
        p(f"v_add_u32 v108, {sT3}, {vS16}")
        p("v_mov_b32 v110, v107")

        def mm(th):
            main = []
            for j in range(28):
                n = 28 * th + j
                b = hreg(n)
                for ch in range(2):
                    acc = V(ACC[th][ch], 16)
                    g = [Ins(f"{MFMA} {acc}, {w2reg(j, ch)}, {b}, {acc if j else 0}")]
                    if ch == 1:
                        if n + LEAD < 56 and not (th == 0 and 28 <= n + LEAD < 28 + HOLD):
                            g += lds[n + LEAD]
                    main.append(g)
            return main

        def reduce(th):
            area = th * 24 * KB
            a0, a1 = ACC[th]
            chunkreg = lambda dd: (a0, a0 + 8, a1, a1 + 8)[dd]
            res = (88, 84)[th] if layer == 1 else 88
            inc = (a0 + 8, a0 + 12, a1, a1 + 4, a1 + 8, a1 + 12)
            items = []
            with self.cap() as c:
                for dd in range(1, 4):
                    for k in range(2):
                        p(f"ds_write_b128 v{12 + dd}, {V(chunkreg(dd) + 4 * k)} offset:{area + (dd - 1) * 2 * KB + k * KB}")
                for r in range(4):
                    p(f"v_lshlrev_b32 v{a1 + 8 + 2 * r}, 16, v{res + r}")
                    p(f"v_and_b32 v{a1 + 9 + 2 * r}, {sHI}, v{res + r}")
                for r in range(8):
                    p(f"v_add_f32 v{a0 + r}, v{a0 + r}, v{a1 + 8 + r}")
            items += groups(c.ins)
            with self.cap() as c:
                if th == 0:
                    p(f"s_add_u32 {sT3}, {sU[5]}, {2 * 28 * KB}")
                    p(f"buffer_load_dwordx4 {V(84 if layer == 1 else 88)}, {vL16}, {SG}, {sT3} offen sc1")
                p.wait_ds()
                p("s_barrier")
                for u in range(6):
                    p(f"ds_read_b128 {V(inc[u])}, v108 offset:{area + u * KB}")
            items.append(c.ins)
            with self.cap() as c:
                for u in range(3):
                    for r in range(8):
                        p(f"v_add_f32 v{a0 + r}, v{a0 + r}, v{inc[2 * u] + r}")
                for r in range(4):
                    p(f"v_cvt_pk_bf16_f32 v{80 + r}, v{a0 + 2 * r}, v{a0 + 2 * r + 1}")
            items += groups(c.ins)
            o = 80
            if layer == 0:
                with self.cap() as c:
                    p(f"s_add_u32 {sT4}, {sU[5]}, {th * 2 * 28 * KB}")
                    self.publish([f"buffer_store_dwordx4 {V(o)}, {vL16}, {SG}, {sT4} offen"], f"x{th}")
                items.append(c.ins)
                with self.cap() as c:
                    p(f"v_add_f32 v84, v{a0}, v{a0 + 1}")
                    p(f"v_mul_f32 v85, v{a0}, v{a0}")
                    p(f"v_fmac_f32 v85, v{a0 + 1}, v{a0 + 1}")
                    for r in range(2, 8):
                        p(f"v_add_f32 v84, v84, v{a0 + r}")
                        p(f"v_fmac_f32 v85, v{a0 + r}, v{a0 + r}")
                    self.both_halves("v84", "v85", None)
                items += groups(c.ins)
                with self.cap() as c:
                    p(f"s_add_u32 {sT3}, {sU[6]}, {th * 7 * KB}")
                    self.publish([f"buffer_store_dword v84, {vL16}, {SG}, {sT3} offen"], f"x{th}")
                items.append(c.ins)
                with self.cap() as c:
                    p(f"s_add_u32 {sT3}, {sU[7]}, {th * 128}")
                    self.flag(sT3, 2, wait=f"x{th}", tmp=86, st=sT4)
                return items, c.ins
            with self.cap() as c:
                p(f"v_permlane32_swap_b32 v{o}, v{o + 2}")
                p(f"v_permlane32_swap_b32 v{o + 1}, v{o + 3}")
                p(f"s_add_u32 {sT3}, {sU[7]}, {th * 32 * 896}")
                p(f"buffer_store_dwordx4 {V(o)}, v111, {SOUT}, {sT3} offen sc1")
            items.append(c.ins)
            return items, []
        GP = self.opt.get("gp", 36)
        HOLD = max(0, GP // 2 - (28 - LEAD) + 1)
        with self.cap() as c1:
            p(f"s_add_u32 {sT0}, {sU[4]}, 256")
            self.poll_load("v110", SG, sT0, 1, 109)
        with self.cap() as c2:
            self.apoll_end("v110", SG, sT0, 1 + layer, 1, 109)
            for n in range(28, 28 + HOLD):
                p.add(lds[n])
        fl3 = [Ins(x.text.replace("v14", "v109"), x.tag) if isinstance(x, Ins) else x for x in flag3]
        p.add(spread(mm(0), [([fl3], 14, 14), ([c1.ins], GP - 10, GP - 10), ([c2.ins], GP + 1, GP + 1)]))
        self.stamp(f"th0_done{layer}")
        r0, f0 = reduce(0)
        streams = [(r0, 1, 40)]
        if f0:
            streams.append(([f0], 52, 52))
        p.add(spread(mm(1), streams))
        self.stamp(f"th1_done{layer}")
        r1, f1 = reduce(1)
        for it in r1:
            p.add(it)
        p.add(f1)
        self.stamp(f"ffn2_done{layer}")

    def spare0(self):
        p = self.p
        p(f"s_and_b32 {sT0}, {sh}, 1")
        p(f"s_lshl_b32 {sT0}, {sT0}, 3")
        p(f"s_add_u32 {sT0}, {sT0}, {stb}")
        p(f"s_mul_i32 {sT0}, {sT0}, {98 * KB}")
        p(f"s_add_u32 {sT0}, {sT0}, {WS_P2}")
        p(f"v_lshlrev_b32 v64, 7, {vLane}")
        if self.opt.get("w2pre", 0):
            for k in range(13):
                p(f"s_add_u32 {sT1}, {sT0}, {min(k * 8, 90) * KB}")
                p(f"buffer_load_dword v65, v64, {SWS}, {sT1} offen sc1")
        self.colsum_qkv_fetch()
        p("s_waitcnt vmcnt(0) lgkmcnt(0)")

    def spare1(self):
        p = self.p
        wb = self.opt.get("wb", 0)
        if not wb:
            return
        p(f"s_and_b32 {sT0}, {sh}, 1")
        p(f"s_or_b32 {sT0}, {sT0}, {srh}")
        p(f"s_or_b32 {sT0}, {sT0}, {sw}")
        p(f"s_cmp_lg_u32 {sT0}, 0")
        p(f"s_cbranch_scc1 L_fin{self.sfx}")
        p(f"v_and_b32 v13, 15, {vLane}")
        p("v_min_u32 v13, 13, v13")
        p("v_lshlrev_b32 v13, 3, v13")
        p(f"v_lshrrev_b32 v14, 4, {vLane}")
        p("v_lshl_add_u32 v16, v14, 7, v13")
        p(f"s_mov_b32 {sT0}, {G_FX}")
        self.poll("v16", SG, sT0, 3, 2)
        p(f"s_mov_b32 {sT0}, {G_FX + 512}")
        self.poll("v16", SG, sT0, 3, 2)
        p("buffer_wbl2 sc1")
        p("s_waitcnt vmcnt(0)")
        if wb >= 2:
            p(f"v_and_b32 v13, 15, {vLane}")
            p("v_min_u32 v13, 13, v13")
            p("v_lshlrev_b32 v13, 2, v13")
            p(f"v_lshrrev_b32 v14, 4, {vLane}")
            p("v_lshl_add_u32 v16, v14, 6, v13")
            for tb in ((2, 3) if wb == 2 else (0, 2, 1, 3)):
                for half in range(2):
                    p(f"s_mov_b32 {sT0}, {G_FH + (4 * half + tb) * 256}")
                    self.poll("v16", SG, sT0, 2)
                p("buffer_wbl2 sc1")
                p("s_waitcnt vmcnt(0)")

    def finish(self):
        p = self.p
        p(f"s_or_b32 {sT0}, {sg}, {sh}")
        p(f"s_or_b32 {sT0}, {sT0}, {srh}")
        p(f"s_or_b32 {sT0}, {sT0}, {sw}")
        p(f"s_cmp_lg_u32 {sT0}, 0")
        p(f"s_cbranch_scc1 L_fin{self.sfx}")
        p(f"s_add_u32 {sT0}, {sE}, 64")
        p(f"v_mov_b32 v14, {sT0}")
        p("s_mov_b64 exec, 1")
        p(f"buffer_store_dword v14, {vL16}, {SWS}, 0 offen sc1")
        p("s_mov_b64 exec, -1")
        p(f"L_fin{self.sfx}:")
        if self.pad:
            p("s_waitcnt vmcnt(0)")
            if self.opt.get("amp") == "end":
                p("s_memrealtime s[94:95]")
            p("s_waitcnt lgkmcnt(0)")
            p("s_sub_u32 s94, s94, s96")
            p("s_mul_i32 s94, s94, 2")
            p("s_min_u32 s94, s94, 20000")
            p(f"s_add_u32 s94, s94, {self.pad}")
            p(f"L_pad{self.sfx}:")
            p("s_memrealtime s[98:99]")
            p("s_waitcnt lgkmcnt(0)")
            p("s_sub_u32 s98, s98, s96")
            p(f"s_cmp_lt_u32 s98, s94")
            p(f"s_cbranch_scc1 L_pad{self.sfx}")
        if self.diag:
            p("s_waitcnt vmcnt(0)")
            self.stamp("end")
            self.stamp_flush()
            p(f"s_lshl_b32 {sT0}, {srh}, 4")
            p(f"s_add_u32 {sT0}, {sT0}, {sh}")
            p(f"s_lshl_b32 {sT0}, {sT0}, 3")
            p(f"s_add_u32 {sT0}, {sT0}, {sg}")
            p(f"s_lshl_b32 {sT0}, {sT0}, 2")
            p(f"s_add_u32 {sT0}, {sT0}, {sw}")
            p(f"s_lshl_b32 {sT0}, {sT0}, 7")
            p(f"s_add_u32 {sT0}, {sT0}, {WS_DIAG}")
            p("s_mov_b64 exec, 1")
            for i in range(self.nstamp):
                p(f"v_mov_b32 v14, s{STAMP0 + i}")
                p(f"buffer_store_dword v14, {vL16}, {SWS}, {sT0} offen offset:{4 * i}")
            p(f"v_mov_b32 v14, {1 if self.fast else 0}")
            p(f"buffer_store_dword v14, {vL16}, {SWS}, {sT0} offen offset:120")
            p(f"v_mov_b32 v14, {slim}")
            p(f"buffer_store_dword v14, {vL16}, {SWS}, {sT0} offen offset:124")
            p("s_mov_b64 exec, -1")
        p("s_waitcnt vmcnt(0)")
        p("s_endpgm")

    def body(self):
        p = self.p
        x = self.sfx
        self.q0()

        def take(n):
            out, self.w1 = self.w1[:n], self.w1[n:]
            return out

        def shadow0():
            self.make_ones()
            cs = self.colsum_qkv_items()
            extra = self.touch_items(G_O, 14) if self.opt.get("to", 4) == 4 else []
            extra += self.touch_items(G_X, 18) if self.opt.get("txs", 2) == 2 else []
            if self.opt.get("res", 1) == 0:
                with self.cap() as c:
                    self.residual0()
                extra.append(c.ins)
            p.add(spread(cs, [(extra + take(self.opt.get("w1b", 10)), 0, len(cs) - 1)]))
        self.kv_gather_o(0, 64, "v11", shadow0)
        self.stamp_flush()
        p(f"s_cmp_ge_u32 {sh}, 14")
        p(f"s_cbranch_scc1 L_spare0{x}")

        def pre_wo0():
            if self.opt.get("res", 1) == 1:
                p("v_mov_b32 v15, v13")
                p(f"s_mov_b32 {sT3}, {sT0}")
                self.residual0()
                p("v_mov_b32 v13, v15")
                p(f"s_mov_b32 {sT0}, {sT3}")
            for it in take(self.opt.get("w1c", 0)):
                p.add(it)
        w1d = None
        n_before = 28 - len(self.w1) + self.opt.get("w1c", 0)
        cs1 = self.colsum_w1_items()
        late = [self.w1[i] for i in range(self.opt.get("w1c", 0), len(self.w1))]
        self.wo_phase(0, pre_wo0, [(cs1[:n_before], 0, 26), (late, 20, 27)])

        def pre_ffn0():
            self.colsum_qkv_fetch()
            self.w2_setup("v106", "v111")
            p(f"s_lshl_b32 {sT2}, {scb}, 11")
            p(f"s_add_u32 {sT2}, {sT2}, {WS_RA}")
            p(f"v_and_b32 v13, 15, {vLane}")
            p(f"v_bfe_u32 v14, {vLane}, 4, 1")
            p(f"v_mul_u32_u24 v14, {7 * 2048}, v14")
            p("v_lshl_add_u32 v104, v13, 7, v14")
            self.poll_load("v104", SWS, sT2, 1, 105)
            for it in cs1[n_before:]:
                p.add(it)
            p(f"v_mov_b32 v84, v{vCS1}")
            p(f"v_mov_b32 v85, v{vCS1 + 1}")
            self.apoll_end("v104", SWS, sT2, 1, 1, 105)
            p.wait_ds()
            p("s_barrier")

        def extra0(pos):
            if self.opt.get("now2"):
                return []
            return [(self.w2_items("v106", "v111"), self.opt.get("w2beg", 10), pos[self.opt.get("w2end", 108)])]
        self.ffn(0, pre_ffn0, extra0)
        p(f"L_layer1{x}:")
        p("s_waitcnt lgkmcnt(0)")
        self.qkv1()
        self.q1_epilogue()
        self.kv_gather_o(1, 96, "v91")
        p(f"s_cmp_ge_u32 {sh}, 14")
        p(f"s_cbranch_scc1 L_spare1{x}")
        self.wo_phase(1)
        self.ffn(1)
        self.finish()
        p(f"L_spare0{x}:")
        p("s_waitcnt vmcnt(0) lgkmcnt(0)")
        self.spare0()
        p(f"s_branch L_layer1{x}")
        p(f"L_spare1{x}:")
        p("s_waitcnt vmcnt(0) lgkmcnt(0)")
        self.spare1()
        p(f"s_branch L_fin{x}")
        p.add(self.tail)
        self.tail = []

    def build(self):
        p = self.p
        self.prologue()
        self.startup()
        self.qkv0()
        self.body()
        p("L_fastend:")
        p("L_slow:")
        p("s_waitcnt vmcnt(0) lgkmcnt(0)")
        p("s_nop 7")
        self.fast = False
        self.sfx = "_s"
        self.body()
        return finalize(p.ins)


HEADER = f"""; Two layers of (LayerNorm, linear attention, output projection, LayerNorm, SiLU FFN) in one persistent launch.
; @launch grid=(256,1,1) block=(256,1,1) lds={LDS_BYTES}
.amdgcn_target "amdgcn-amd-amdhsa--gfx950"
.text
.globl {NAME}_kernel
.p2align 8
.type {NAME}_kernel,@function
{NAME}_kernel:
"""
FOOTER = f"""
.section .rodata,"a"
.p2align 6
.amdhsa_kernel {NAME}_kernel
  .amdhsa_next_free_vgpr 512
  .amdhsa_next_free_sgpr 102
  .amdhsa_accum_offset 256
  .amdhsa_group_segment_fixed_size 0
  .amdhsa_kernarg_size 72
  .amdhsa_user_sgpr_count 2
  .amdhsa_user_sgpr_kernarg_segment_ptr 1
  .amdhsa_system_sgpr_workgroup_id_x 1
.end_amdhsa_kernel
"""


def generate(**kw):
    g = Gen(**kw)
    lines = g.build()
    return HEADER + "\n".join(lines) + FOOTER, g


if __name__ == "__main__":
    out = sys.argv[1] if len(sys.argv) > 1 else f"cdna_kernels/{NAME}.s"
    kw = {}
    for a in sys.argv[2:]:
        k, _, v = a.partition("=")
        kw[k] = (int(v) if v.lstrip('-').isdigit() else v) if v else True
    text, g = generate(**kw)
    open(out, "w").write(text)
    print("wrote", out, len(text), "bytes;", text.count("\n"), "lines")
```

```python
import sys, os
sys.path.insert(0, os.path.dirname(os.path.abspath(__file__)))
from asmlib import *

NAME = "interleave_layers__linear_attn_block__dense_activation_silu__prompt"
KB = 1024

WS_EPOCH = 0
WS_RA = 0x8000
WS_RB = 0x10000
WS_DIAG = 0x20000
WS_KV = 0x80000
KV_L = 0x80000
WS_PQ = 0x180000
WS_PO = WS_PQ + 16 * 84 * KB
WS_P1 = WS_PO + 14 * 28 * KB
WS_P2 = WS_P1 + 14 * 112 * KB
WS_G = 0x680000
assert WS_P2 + 7 * 224 * KB <= WS_G
OOB = 0x40000000
G_STRIDE = 0x160000
G_H = 0
G_O = 8 * 112 * KB
G_X = G_O + 8 * 28 * KB
G_ST = G_X + 8 * 28 * KB
G_FX = G_ST + 8 * 7 * KB
G_FO = G_FX + 1024
G_FH = G_FO + 1024
G_END = G_FH + 2048
assert G_END <= G_STRIDE
WS_BYTES = WS_G + 8 * G_STRIDE

L_WK, L_WV, L_WQ, L_WO, L_S = 0, 28 * KB, 56 * KB, 84 * KB, 112 * KB
L_XST = 48 * KB
S_KVP, S_KVS = 0, 16 * KB
S_CS = 18 * KB
S_STAT, S_TR = 42 * KB, 44 * KB
LDS_BYTES = 160 * KB

SX, SQ, SO, S1, S2, SOUT, SWS, SG = ("s[8:11]", "s[12:15]", "s[16:19]", "s[20:23]", "s[24:27]", "s[28:31]",
                                     "s[32:35]", "s[36:39]")
sE, sg, sh, srh, sw, sfast, srq, scb, stb, sxs, slim = ("s56", "s57", "s58", "s59", "s60", "s61", "s62", "s63",
                                                        "s64", "s65", "s66")
sT0, sT1, sT2, sT3, sT4, sT5 = "s40", "s41", "s42", "s43", "s44", "s45"
sCnt, sNeed = "s46", "s47"
sONES, sLOG2E, sEPS6, sHI = "s48", "s49", "s50", "s51"
sM28 = "s[52:53]"
sMPAD = "s[54:55]"
sHB, sXB, sSTB = "s67", "s68", "s69"
STAMP0 = 80
sU = [f"s{70 + i}" for i in range(10)]
SPK = "s[20:23]"

vLane, vL16, vTrA, vTrB = "v0", "v1", "v2", "v3"
vCS1 = 4
vCSQ = 6
vS16 = "v12"
vT0, vT1, vT2 = "v13", "v14", "v15"


def V(n, k=4):
    return f"v[{n}:{n + k - 1}]" if k > 1 else f"v{n}"


def A(n, k=4):
    return f"a[{n}:{n + k - 1}]" if k > 1 else f"a{n}"


def w1reg(s, lo=0, k=4):
    return A(224 + 4 * s + lo, k) if s < 8 else V(176 + 4 * (s - 8) + lo, k)


def w2reg(j, ch, lo=0, k=4):
    return A(8 * j + 4 * ch + lo, k)


MFMA = "v_mfma_f32_32x32x16_bf16"


class Capture:
    def __init__(self, g):
        self.g = g

    def __enter__(self):
        self.saved = self.g.p.ins
        self.g.p.ins = []
        self.ins = self.g.p.ins
        return self

    def __exit__(self, *a):
        self.g.p.ins = self.saved


class Gen:
    def __init__(self, diag=False, force_slow=False, pad=0, part=0, **opt):
        self.p = Prog()
        self.diag = diag
        self.force_slow = force_slow
        self.pad = pad
        self.part = part
        self.opt = opt
        self.nstamp = 0
        self.seen = 0
        self.stamp_names = []
        self.pending = False
        self.tail = []
        self.fast = True
        self.sfx = ""

    def cap(self):
        return Capture(self)

    def stamp(self, name, op="s_memrealtime"):
        if self.opt.get("amp") == name and self.fast:
            self.p("s_memrealtime s[94:95]")
        if not self.diag or not self.fast:
            return
        self.seen += 1
        lo = self.opt.get("from", 18 * self.part)
        if self.seen > 2 and not (lo <= self.seen - 3 < lo + 18):
            return
        self.stamp_flush()
        assert STAMP0 + self.nstamp < 100, "too many stamps"
        self.p(f"{op} s[100:101]")
        self.stamp_names.append(name)
        self.nstamp += 1
        self.pending = True

    def stamp_flush(self):
        if self.diag and self.pending:
            self.p(f"s_mov_b32 s{STAMP0 + self.nstamp - 1}, s100")
            self.pending = False

    def publish(self, stores, tag="pub", always_sc1=False):
        for s in stores:
            self.p(s + (" sc1" if s.startswith("buffer_") and (always_sc1 or not self.fast) else ""), tag)

    def flag(self, soff, val, n=1, wait="pub", tmp=14, st=sT5):
        p = self.p
        p(f"s_add_u32 {st}, {sE}, {val}")
        p(f"v_mov_b32 v{tmp}, {st}")
        if n == 2:
            p(f"v_mov_b32 v{tmp + 1}, {st}")
        op = f"buffer_store_dword v{tmp}" if n == 1 else f"buffer_store_dwordx2 v[{tmp}:{tmp + 1}]"
        p.wait_vm(wait)
        self.publish(["s_mov_b64 exec, 1", f"{op}, {vL16}, {SG}, {soff} offen", "s_mov_b64 exec, -1"], "flag")

    def poll_load(self, vaddr, srd, soff, n, tmp):
        if n == 1:
            self.p(f"buffer_load_dword v{tmp}, {vaddr}, {srd}, {soff} offen sc1")
        else:
            self.p(f"buffer_load_dwordx2 v[{tmp}:{tmp + 1}], {vaddr}, {srd}, {soff} offen sc1")

    def poll_test(self, n, tmp, need):
        p = self.p
        p(f"v_subrev_u32 v{tmp}, {need}, v{tmp}")
        if n == 2:
            p(f"v_subrev_u32 v{tmp + 1}, {need}, v{tmp + 1}")
            p(f"v_or_b32 v{tmp}, v{tmp}, v{tmp + 1}")
        p(f"v_cmp_lt_u32 vcc, 31, v{tmp}")

    def spin(self, vaddr, srd, soff, n, tmp, need, done):
        p = self.p
        lp = p.label("poll")
        p(f"s_mov_b32 {sCnt}, {slim}")
        p(f"{lp}:")
        self.poll_load(vaddr, srd, soff, n, tmp)
        p("s_waitcnt vmcnt(0)")
        self.poll_test(n, tmp, need)
        p(f"s_cbranch_vccz {done}")
        p(f"s_sub_u32 {sCnt}, {sCnt}, 1")
        p(f"s_cmp_lg_u32 {sCnt}, 0")
        p(f"s_cbranch_scc1 {lp}")
        p(f"s_mov_b32 {slim}, 1")

    def poll(self, vaddr, srd, soff, need, n=1, tmp=14):
        p = self.p
        ld = p.label("polled")
        p(f"s_add_u32 {sNeed}, {sE}, {need}")
        self.spin(vaddr, srd, soff, n, tmp, sNeed, ld)
        p(f"{ld}:")

    def apoll_end(self, vaddr, srd, soff, need, n=1, tmp=14):
        p = self.p
        lo, lb = p.label("aspin"), p.label("aback")
        p(f"s_add_u32 {sNeed}, {sE}, {need}")
        self.poll_test(n, tmp, sNeed)
        p(f"s_cbranch_vccnz {lo}")
        p(f"{lb}:")
        with self.cap() as c:
            p(f"{lo}:")
            p("s_nop 4")
            self.spin(vaddr, srd, soff, n, tmp, sNeed, lb)
            p(f"s_branch {lb}")
        self.tail.extend(c.ins)

    def trread(self, dst_lo, dst_hi, vaddr, off, second=512):
        return [Ins(f"ds_read_b64_tr_b16 {dst_lo}, {vaddr} offset:{off}"),
                Ins(f"ds_read_b64_tr_b16 {dst_hi}, {vaddr} offset:{off + second}")]

    def transpose_block(self, reg, aw, ar):
        return [Ins(f"ds_write_b128 {aw}, {reg(0, 4)}"),
                Ins(f"ds_read_b64_tr_b16 {reg(0, 2)}, {ar}"),
                Ins(f"ds_read_b64_tr_b16 {reg(2, 2)}, {ar} offset:512")]

    def tr_addrs(self, aw, ar):
        p = self.p
        p(f"s_lshl_b32 {sT0}, {sw}, 10")
        p(f"s_add_u32 {sT0}, {sT0}, {L_S + S_TR}")
        p(f"v_add_u32 {aw}, {sT0}, {vL16}")
        p(f"v_add_u32 {ar}, {sT0}, {vTrA}")

    def both_halves(self, s, q, tmp):
        p = self.p
        p(f"v_permlane32_swap_b32 {s}, {q}")
        p(f"v_add_f32 {s}, {s}, {q}")

    def stats_finish(self, t, u, mean, var):
        p = self.p
        p(f"v_mov_b32 {u}, {t}")
        p(f"v_permlane32_swap_b32 {t}, {u}")
        p(f"v_mul_f32 {mean}, 0x3b124925, {t}")
        p(f"v_mul_f32 {var}, 0x3b124925, {u}")
        p(f"v_fma_f32 {var}, -{mean}, {mean}, {var}")
        p(f"v_max_f32 {var}, 0, {var}")
        p(f"v_add_f32 {var}, 0x3727c5ac, {var}")

    def split_words(self, x, w0, w1, t, neg, xside):
        p = self.p
        s = "-" if neg else ""
        p(f"v_cvt_pk_bf16_f32 {w0}, {s}{x}, {s}{x}")
        p(f"v_and_b32 {t}, {sHI}, {w0}")
        p(f"v_sub_f32 {t}, {s}{x}, {t}" if not neg else f"v_sub_f32_e64 {t}, -{x}, {t}")
        if xside:
            p(f"v_and_b32 {w1}, 0xffff, {w0}")
            p(f"v_cvt_pk_bf16_f32 {t}, {t}, {t}")
            p(f"v_and_or_b32 {w0}, {t}, {sHI}, {w1}")
        else:
            p(f"v_cvt_pk_bf16_f32 {w1}, {t}, 0")

    def prologue(self):
        p = self.p
        p("s_cmp_lt_u32 s2, 256")
        p("s_cbranch_scc1 L_start")
        p("s_endpgm")
        p("L_start:")
        p("s_load_dwordx4 s[40:43], s[0:1], 0")
        p("s_load_dwordx2 s[52:53], s[0:1], 64")
        p("s_load_dwordx2 s[44:45], s[0:1], 16")
        p("s_load_dwordx4 s[48:51], s[0:1], 32")
        p("s_load_dwordx2 s[46:47], s[0:1], 48")
        self.stamp("realtime", "s_memrealtime")
        if self.pad:
            p("s_memrealtime s[96:97]")
            p("s_memrealtime s[94:95]")
        p("s_getpc_b64 s[6:7]")
        p("L_pc:")
        p("v_lshrrev_b32 v13, 6, v0")
        p(f"v_and_b32 {vLane}, 63, v0")
        p(f"v_readfirstlane_b32 {sw}, v13")
        p(f"s_and_b32 {sg}, s2, 7")
        p(f"s_lshr_b32 s3, s2, 3")
        p(f"s_lshl_b32 s4, s3, 2")
        p(f"s_add_u32 s4, s4, {sw}")
        p(f"s_lshl_b32 s4, s4, 9")
        p(f"v_lshlrev_b32 v9, 7, {vLane}")
        p("v_add_u32 v13, s4, v9")
        p("v_min_u32 v13, L_fastend-L_pc-4, v13")
        p("s_mov_b64 exec, 0xf")
        p("global_load_dword v10, v13, s[6:7]")
        p("s_mov_b64 exec, -1")
        p(f"s_and_b32 {sh}, s3, 15")
        p(f"s_lshr_b32 {srh}, s3, 4")
        p(f"s_lshl_b32 s2, {sg}, 1")
        p(f"s_add_u32 s2, s2, {srh}")
        p("s_lshl_b32 s3, s2, 2")
        p(f"s_add_u32 s3, s3, {sw}")
        p("s_min_u32 s5, s3, 55")
        p("s_cmp_ge_u32 s5, 28")
        p("s_cselect_b32 s4, 1, 0")
        p("s_cselect_b32 s6, 28, 0")
        p("s_sub_u32 s5, s5, s6")
        p(f"v_lshrrev_b32 v13, 2, {vLane}")
        p(f"v_and_b32 v15, 3, {vLane}")
        p("v_lshlrev_b32 v15, 4, v15")
        p("v_mul_u32_u24 v14, 2688, v13")
        p("v_add_u32 v6, v14, v15")
        p("v_mul_u32_u24 v14, 896, v13")
        p("v_add_u32 v7, v14, v15")
        p("v_mul_u32_u24 v14, 3584, v13")
        p("v_add_u32 v8, v14, v15")
        p(f"s_lshl_b32 {sU[7]}, {srh}, 4")
        p(f"s_add_u32 {sU[7]}, {sU[7]}, {sh}")
        p(f"s_lshl_b32 {sU[7]}, {sU[7]}, 2")
        p(f"s_add_u32 {sU[7]}, {sU[7]}, {sw}")
        p(f"s_mul_i32 {sU[8]}, {sU[7]}, 49")
        p(f"v_min_u32 v13, 48, {vLane}")
        p(f"v_add_u32 v13, {sU[8]}, v13")
        p("v_mul_u32_u24 v14, 9363, v13")
        p("v_lshrrev_b32 v14, 17, v14")
        p("v_mul_u32_u24 v15, 896, v14")
        p("v_lshl_add_u32 v18, v13, 7, v15")
        p(f"s_lshl_b32 {sU[8]}, {sg}, 7")
        p(f"s_add_u32 {sU[8]}, {sU[8]}, {sU[7]}")
        p(f"s_mul_i32 {sU[8]}, {sU[8]}, 1792")
        p(f"s_cmp_ge_u32 {sh}, 7")
        p(f"s_cselect_b32 s6, 1, 0")
        p(f"s_cselect_b32 s7, 7, 0")
        p(f"s_lshl_b32 {srq}, {srh}, 1")
        p(f"s_add_u32 {srq}, {srq}, s6")
        p(f"s_sub_u32 {scb}, {sh}, s7")
        p(f"s_lshl_b32 {stb}, {srh}, 2")
        p(f"s_and_b32 s6, {sw}, 1")
        p(f"s_lshl_b32 s6, s6, 1")
        p(f"s_lshr_b32 s7, {sw}, 1")
        p(f"s_or_b32 s6, s6, s7")
        p(f"s_add_u32 {sxs}, {stb}, s6")
        p(f"s_add_u32 {stb}, {stb}, {sw}")
        p(f"v_lshlrev_b32 {vL16}, 4, {vLane}")
        p(f"v_lshrrev_b32 v13, 3, {vLane}")
        p("v_mul_u32_u24 v14, 896, v13")
        p("v_lshrrev_b32 v13, 1, v13")
        p(f"v_and_b32 v15, 7, {vLane}")
        p("v_xor_b32 v13, v13, v15")
        p("v_lshl_add_u32 v16, v13, 4, v14")
        p("v_xor_b32 v13, 4, v13")
        p("v_lshl_add_u32 v17, v13, 4, v14")
        p(f"s_lshl_b32 {sU[0]}, {sg}, 3")
        p(f"s_add_u32 {sU[0]}, {sU[0]}, {stb}")
        p(f"s_mul_i32 {sU[0]}, {sU[0]}, {32 * 896}")
        p(f"s_mul_i32 {sU[1]}, {sw}, {28 * KB}")
        p(f"s_add_u32 {sU[1]}, {sU[1]}, {L_XST}")
        p(f"s_cmp_ge_u32 {sh}, 14")
        p(f"s_cselect_b32 {sU[2]}, 7, 0")
        p(f"s_sub_u32 {sU[2]}, {scb}, {sU[2]}")
        p(f"s_mov_b32 s10, {2048 * 896}\ns_mov_b32 s11, 0x00020000")
        p(f"s_mov_b32 s14, {448 * 2688}\ns_mov_b32 s15, 0x00020000")
        p("s_waitcnt lgkmcnt(0)")
        self.stamp("start")
        p("s_mov_b32 s12, s42\ns_mov_b32 s13, s43")
        p("s_mov_b32 s8, s40\ns_mov_b32 s9, s41")
        if self.opt.get("tx", 0):
            p("s_mov_b64 exec, 0x3fff")
            p(f"buffer_load_dword v10, v9, {SX}, {sU[8]} offen")
            p("s_mov_b64 exec, -1")
        if self.opt.get("tw", 0) == 1:
            p(f"buffer_load_dword v10, v18, {SQ}, 0 offen offset:896")
        p(f"s_load_dword {sE}, s[52:53], {WS_EPOCH}")
        for j in range(7):
            p(f"s_lshl_b32 {sU[3]}, {sU[2]}, 7")
            p(f"s_add_u32 {sU[3]}, {sU[3]}, {sU[0]}")
            p(f"s_lshl_b32 {sU[4]}, {sU[2]}, 12")
            p(f"s_add_u32 {sU[4]}, {sU[4]}, {sU[1]}")
            for b in range(4):
                p(f"s_add_u32 m0, {sU[4]}, {b * KB}")
                p(f"s_add_u32 {sU[5]}, {sU[3]}, {b * 8 * 896}")
                p(f"buffer_load_dwordx4 v{16 + (b & 1)}, {SX}, {sU[5]} offen lds", "x")
                if 4 * j + b + 1 == self.opt.get("xa", 4):
                    self.prologue2()
                    if self.opt.get("tw", 0) == 2:
                        p(f"buffer_load_dword v10, v18, {SQ}, 0 offen offset:896")
            if j < 6:
                p(f"s_add_u32 {sU[2]}, {sU[2]}, 1")
                p(f"s_cmp_eq_u32 {sU[2]}, 7")
                p(f"s_cselect_b32 {sU[2]}, 0, {sU[2]}")

    def prologue2(self):
        p = self.p
        p(f"s_mul_i32 {sHB}, {stb}, {28 * KB}")
        p(f"s_add_u32 {sHB}, {sHB}, {G_O}")
        p(f"s_mul_i32 {sXB}, {sxs}, {28 * KB}")
        p(f"s_add_u32 {sXB}, {sXB}, {G_X}")
        p(f"s_mul_i32 {sSTB}, {stb}, {7 * KB}")
        p(f"s_add_u32 {sSTB}, {sSTB}, {G_ST}")
        p(f"s_mov_b32 {slim}, 40000")
        p(f"v_add_u32 {vS16}, {L_S}, {vL16}")
        p(f"v_and_b32 v13, 3, {vLane}")
        p("v_lshlrev_b32 v13, 3, v13")
        p(f"v_bfe_u32 v14, {vLane}, 4, 1")
        p("v_lshl_add_u32 v13, v14, 5, v13")
        p(f"v_bfe_u32 v14, {vLane}, 2, 2")
        p("v_lshl_add_u32 v13, v14, 6, v13")
        p(f"v_lshrrev_b32 v14, 5, {vLane}")
        p(f"v_lshl_add_u32 {vTrA}, v14, 8, v13")
        p(f"v_add_u32 {vTrB}, {L_WQ}, {vTrA}")
        p("v_lshl_add_u32 v62, v14, 9, v13")
        p(f"v_add_u32 v63, {L_WQ}, v62")
        p(f"v_and_b32 v13, 31, {vLane}")
        p("v_lshrrev_b32 v14, 3, v13")
        p("v_lshlrev_b32 v14, 10, v14")
        p("v_and_b32 v15, 7, v13")
        p("v_lshl_add_u32 v14, v15, 7, v14")
        p(f"v_add_u32 v14, {sU[1]}, v14")
        p("v_bfe_u32 v13, v13, 1, 3")
        p(f"v_lshrrev_b32 v15, 5, {vLane}")
        p("v_xor_b32 v13, v13, v15")
        for q in range(4):
            p(f"v_xor_b32 v15, {2 * q}, v13")
            p(f"v_lshl_add_u32 v{20 + q}, v15, 4, v14")
        p(f"s_cmp_lt_u32 {sh}, 14")
        p(f"s_cselect_b32 s18, {448 * 448 * 2}, 0")
        p(f"s_cselect_b32 s22, {448 * 1792 * 2}, 0")
        p(f"s_cselect_b32 s26, {448 * 1792 * 2}, 0")
        for base, src, size in ((16, 44, None), (20, 48, None), (24, 50, None), (28, 46, 2048 * 896),
                                (32, 52, WS_BYTES)):
            p(f"s_mov_b32 s{base}, s{src}")
            p(f"s_mov_b32 s{base + 1}, s{src + 1}")
            if size is not None:
                p(f"s_mov_b32 s{base + 2}, {size}")
            p(f"s_mov_b32 s{base + 3}, 0x00020000")
        p(f"s_mul_i32 s6, {sg}, {G_STRIDE}")
        p(f"s_add_u32 s6, s6, {WS_G}")
        p("s_add_u32 s36, s52, s6")
        p("s_addc_u32 s37, s53, 0")
        p(f"s_mov_b32 s38, {G_STRIDE}")
        p("s_mov_b32 s39, 0x00020000")
        if self.opt.get("tlb", 0):
            p(f"v_lshlrev_b32 v13, 20, {vLane}")
            p("s_mov_b64 exec, 0x7f")
            p(f"buffer_load_dword v10, v13, {SWS}, 0 offen offset:256")
            p("s_mov_b64 exec, 0x3")
            p(f"buffer_load_dword v10, v13, {SG}, 0 offen")
            p(f"buffer_load_dword v10, v13, {SOUT}, 0 offen")
            p("s_mov_b64 exec, -1")

    def kv_clear(self):
        p = self.p
        p(f"s_lshl_b32 {sU[8]}, {sh}, 15")
        p(f"s_lshl_b32 {sU[9]}, s3, 9")
        p(f"s_add_u32 {sU[8]}, {sU[8]}, {sU[9]}")
        p(f"s_add_u32 {sU[8]}, {sU[8]}, {WS_KV}")
        p(f"s_add_u32 {sU[9]}, {sU[8]}, {KV_L}")
        p("v_mov_b32 v32, -1\nv_mov_b32 v33, -1")
        p(f"v_lshlrev_b32 v11, 3, {vLane}")
        p(f"buffer_store_dwordx2 v[32:33], v11, {SWS}, {sU[8]} offen sc1", "pb")
        p(f"buffer_store_dwordx2 v[32:33], v11, {SWS}, {sU[9]} offen sc1", "pb")

    def wqkv_setup(self):
        p = self.p
        p(f"s_mul_i32 s0, {sh}, 56")
        p(f"s_mul_i32 s1, {sw}, {16 * 2688}")
        p("s_add_u32 s0, s0, s1")
        p(f"s_lshl_b32 s1, {sw}, 10")
        p(f"s_mul_i32 {sU[7]}, s2, 37")
        p(f"s_lshr_b32 {sU[7]}, {sU[7]}, 8")
        p(f"s_mul_i32 {sU[7]}, {sU[7]}, 7")
        p(f"s_sub_u32 {sU[6]}, s2, {sU[7]}")

    def wqkv_item(self, m, lbase, tag):
        p = self.p
        with self.cap() as c:
            p(f"s_lshl_b32 {sU[7]}, {sU[6]}, 12")
            p(f"s_add_u32 {sU[7]}, {sU[7]}, s1")
            p(f"s_add_u32 m0, {sU[7]}, {lbase}")
            p(f"s_mul_i32 {sU[7]}, {sU[6]}, {64 * 2688}")
            p(f"s_add_u32 {sU[7]}, {sU[7]}, s0")
            if m:
                p(f"s_add_u32 {sU[7]}, {sU[7]}, {896 * m}")
            p(f"buffer_load_dwordx4 v6, {SQ}, {sU[7]} offen lds", tag)
            p(f"s_add_u32 {sU[6]}, {sU[6]}, 1")
            p(f"s_cmp_eq_u32 {sU[6]}, 7")
            p(f"s_cselect_b32 {sU[6]}, 0, {sU[6]}")
        return c.ins

    def wo_items(self):
        p = self.p
        items = []
        for u in range(7):
            with self.cap() as c:
                if u == 0:
                    p(f"s_lshl_b32 {sU[8]}, {sh}, 6")
                    p(f"s_mul_i32 {sU[7]}, {sw}, {16 * 896}")
                    p(f"s_add_u32 {sU[8]}, {sU[8]}, {sU[7]}")
                p(f"s_add_u32 m0, s1, {L_WO + 4 * u * KB}")
                p(f"s_add_u32 {sU[7]}, {sU[8]}, {64 * u * 896}")
                p(f"buffer_load_dwordx4 v7, {SO}, {sU[7]} offen lds", "wo")
            items.append(c.ins)
        return items

    def consts(self):
        p = self.p
        p(f"s_mov_b32 {sONES}, 0x3f803f80")
        p(f"s_mov_b32 {sLOG2E}, 0x3fb8aa3b")
        p(f"s_mov_b32 {sEPS6}, 0x358637bd")
        p(f"s_mov_b32 {sHI}, 0xffff0000")
        p("s_mov_b32 s52, 0x10000000")
        p("s_mov_b32 s53, 0x10000000")
        p("s_mov_b32 s54, 0")
        p("s_mov_b32 s55, -1")

    def ready(self, base):
        p = self.p
        p(f"s_lshl_b32 {sT2}, {sh}, 4")
        p(f"s_add_u32 {sT2}, {sT2}, s2")
        p(f"s_lshl_b32 {sT2}, {sT2}, 7")
        p(f"s_add_u32 {sT2}, {sT2}, {base}")
        p(f"s_cmp_eq_u32 {sw}, 0")
        p(f"s_cselect_b32 {sT2}, {sT2}, {OOB}")
        p(f"s_add_u32 {sT5}, {sE}, {sfast}")
        p(f"s_add_u32 {sT5}, {sT5}, 1")
        p(f"v_mov_b32 v14, {sT5}")
        p("s_mov_b64 exec, 1")
        p(f"buffer_store_dword v14, {vL16}, {SWS}, {sT2} offen sc1")
        p("s_mov_b64 exec, -1")

    def pack_b_loads(self):
        p = self.p
        p(f"s_mul_i32 {sT0}, s5, {16 * 3584}")
        p(f"s_lshl_b32 {sT1}, {sh}, 8")
        p(f"s_add_u32 {sT0}, {sT0}, {sT1}")
        p(f"s_lshl_b32 {sT1}, s4, 7")
        p(f"s_add_u32 {sT0}, {sT0}, {sT1}")
        p(f"buffer_load_dwordx4 a[40:43], v8, {S1}, {sT0} offen")
        p(f"buffer_load_dwordx4 a[44:47], v8, {S1}, {sT0} offen offset:64")
        p(f"s_mul_i32 {sU[1]}, {sh}, 112")
        p(f"s_mul_i32 {sT1}, s4, 56")
        p(f"s_add_u32 {sU[1]}, {sU[1]}, {sT1}")
        p(f"s_add_u32 {sU[1]}, {sU[1]}, s5")
        p(f"s_lshl_b32 {sU[1]}, {sU[1]}, 10")
        p(f"s_add_u32 {sU[1]}, {sU[1]}, {WS_P1}")
        p(f"s_cmp_lt_u32 {sh}, 14")
        p(f"s_cselect_b32 s22, {WS_BYTES}, 0")
        p("s_mov_b32 s20, s32\ns_mov_b32 s21, s33")
        self.tr_addrs("v4", "v5")

    def pack_c_loads(self):
        p = self.p
        p(f"s_and_b32 {sU[5]}, {srq}, 1")
        p(f"s_lshl_b32 {sU[5]}, {sU[5]}, 6")
        p(f"s_add_u32 {sU[5]}, {sU[5]}, s3")
        p(f"s_mul_i32 {sU[0]}, {sU[5]}, {16 * 896}")
        p(f"s_lshl_b32 {sU[2]}, {scb}, 7")
        p(f"s_add_u32 {sU[0]}, {sU[0]}, {sU[2]}")
        p(f"s_mul_i32 {sU[2]}, {scb}, 112")
        p(f"s_add_u32 {sU[2]}, {sU[2]}, {sU[5]}")
        p(f"s_lshl_b32 {sU[2]}, {sU[2]}, 11")
        p(f"s_add_u32 {sU[2]}, {sU[2]}, {WS_P2}")
        p(f"s_cmp_lt_u32 {sU[5]}, 112")
        p(f"s_cselect_b32 {sU[0]}, {sU[0]}, {OOB}")
        p(f"s_cselect_b32 {sU[2]}, {sU[2]}, {OOB}")
        p(f"buffer_load_dwordx4 a[48:51], v7, {S2}, {sU[0]} offen")
        p(f"buffer_load_dwordx4 a[52:55], v7, {S2}, {sU[0]} offen offset:64")

    def pack_b_items(self):
        items = [self.transpose_block(lambda lo, k, r=r: A(r + lo, k), "v4", "v5") for r in (40, 44)]
        items.append([Ins(f"buffer_store_dwordx4 a[40:43], {vL16}, {SPK}, {sU[1]} offen sc1", "pb"),
                      Ins(f"s_add_u32 {sU[1]}, {sU[1]}, {28 * KB}")])
        items.append([Ins(f"buffer_store_dwordx4 a[44:47], {vL16}, {SPK}, {sU[1]} offen sc1", "pb")])
        return items

    def pack_c_items(self):
        items = [self.transpose_block(lambda lo, k, r=r: A(r + lo, k), "v4", "v5") for r in (48, 52)]
        items.append([Ins(f"buffer_store_dwordx4 a[48:51], {vL16}, {SPK}, {sU[2]} offen sc1", "pc")])
        items.append([Ins(f"buffer_store_dwordx4 a[52:55], {vL16}, {SPK}, {sU[2]} offen offset:1024 sc1", "pc")])
        return items

    def dma_items(self, vaddr, srd, first, count, tag, stm):
        p = self.p
        items = []
        for u in range(count):
            with self.cap() as c:
                if u == 0:
                    p(f"s_mul_i32 {stm}, {sw}, {count * KB}")
                if u % 4 == 0:
                    p(f"s_add_u32 m0, {stm}, {(first + u) * KB}")
                p(f"buffer_load_dwordx4 {vaddr}, {srd}, m0 offen offset:{(u % 4) * KB} sc1 lds", tag)
            items.append(c.ins)
        return items

    def w1_items(self):
        p = self.p
        items = []
        for s in range(28):
            with self.cap() as c:
                if s == 0:
                    p(f"s_lshl_b32 s24, {sh}, 2")
                    p(f"s_add_u32 s24, s24, {sw}")
                    p(f"s_mul_i32 s24, s24, {28 * KB}")
                    p(f"s_add_u32 s24, s24, {WS_P1}")
                elif s % 4 == 0:
                    p(f"s_add_u32 s24, s24, {4 * KB}")
                p(f"buffer_load_dwordx4 {w1reg(s)}, {vL16}, {SPK}, s24 offen offset:{(s % 4) * KB} sc1", "w1")
            items.append(c.ins)
        return items

    def mall_items(self):
        p = self.p
        with self.cap() as c:
            p(f"s_lshl_b32 {sU[8]}, {sh}, 6")
            p(f"s_add_u32 {sU[8]}, {sU[8]}, s3")
            p(f"s_lshr_b32 {sU[7]}, {sU[8]}, 1")
            p(f"s_mul_i32 {sU[7]}, {sU[7]}, 2688")
            p(f"s_and_b32 {sU[9]}, {sU[8]}, 1")
            p(f"s_mul_i32 {sU[9]}, {sU[9]}, 384")
            p(f"s_add_u32 {sU[7]}, {sU[7]}, {sU[9]}")
            p("s_mov_b64 exec, 0xf")
            p(f"buffer_load_dword v10, v9, {SQ}, {sU[7]} offen", "touch")
            p(f"s_mul_i32 {sU[7]}, {sU[8]}, 448")
            p(f"buffer_load_dword v10, v9, {SO}, {sU[7]} offen", "touch")
            p("s_mov_b64 exec, -1")
        return [c.ins]

    def touch_items(self, base, lines, per=16):
        p = self.p
        with self.cap() as c:
            p(f"s_mul_i32 {sU[7]}, {srh}, {per}")
            p(f"s_add_u32 {sU[7]}, {sU[7]}, {sh}")
            p(f"s_lshl_b32 {sU[7]}, {sU[7]}, 2")
            p(f"s_add_u32 {sU[7]}, {sU[7]}, {sw}")
            p(f"s_mul_i32 {sU[7]}, {sU[7]}, {lines * 128}")
            p(f"s_add_u32 {sU[7]}, {sU[7]}, {base}")
            assert lines < 32
            p(f"s_mov_b64 exec, {(1 << lines) - 1}")
            p(f"buffer_load_dword v10, v9, {SG}, {sU[7]} offen", "touch")
            p("s_mov_b64 exec, -1")
        return [c.ins]

    def startup(self):
        p = self.p
        p("s_waitcnt lgkmcnt(0)")
        self.consts()
        p(f"s_getreg_b32 {sfast}, hwreg(HW_REG_XCC_ID, 0, 4)")
        self.wqkv_setup()
        self.pack_b_loads()
        cearly = self.opt.get("cearly", 1)
        if cearly:
            self.pack_c_loads()
        if self.opt.get("mall", 1) == 1:
            p.add(self.mall_items()[0])
        if self.opt.get("to", 4) == 3:
            p.add(self.touch_items(G_O, 14)[0])
        nk0 = self.opt.get("nk0", 2)
        for u in range(nk0):
            p.add(self.wqkv_item(1, L_WK, "wkv"))
        p.wait_vm("x")
        self.stamp("x_landed")
        for s in range(28):
            p(f"ds_read_b128 {V(64 + 4 * s)}, v{20 + (s & 3)} offset:{(s >> 2) * 4096}")
        for r in range(52, 56):
            p(f"v_mov_b32 v{r}, 0")
        p.wait_ds()
        p("s_barrier")
        with self.cap() as c:
            for i in range(112):
                p(f"v_dot2c_f32_bf16 v{52 + (i & 1)}, {sONES}, v{64 + i}")
                p(f"v_dot2c_f32_bf16 v{54 + (i & 1)}, v{64 + i}, v{64 + i}")
            p("v_add_f32 v52, v52, v53")
            p("v_add_f32 v54, v54, v55")
            self.both_halves("v52", "v54", None)
            self.stats_finish("v52", "v53", "v56", "v58")
            p("v_rsq_f32 v58, v58")
            p("v_mul_f32_e64 v56, -v56, v58")
            p("v_mov_b32 v59, v58")
            p("v_mov_b32 v57, v56")
            for i in range(0, 112 if not self.opt.get("noln") else 8, 2):
                t = 16 + 4 * ((i >> 1) & 1)
                for k in range(2):
                    p(f"v_lshlrev_b32 v{t + 2 * k}, 16, v{64 + i + k}")
                    p(f"v_and_b32 v{t + 2 * k + 1}, {sHI}, v{64 + i + k}")
                for k in range(2):
                    p(f"v_pk_fma_f32 {V(t + 2 * k, 2)}, {V(t + 2 * k, 2)}, v[58:59], v[56:57]")
                for k in range(2):
                    p(f"v_cvt_pk_bf16_f32 v{64 + i + k}, v{t + 2 * k}, v{t + 2 * k + 1}")
        main = groups(c.ins, 4)
        n = len(main)
        kv = [self.wqkv_item(1, L_WK, "wkv") for u in range(nk0, 7)] + [self.wqkv_item(2, L_WV, "wkv") for u in range(7)]
        gk = n * self.opt.get("gk", 60) // 100
        with self.cap() as c1:
            self.kv_clear()
        wq = [self.wqkv_item(0, L_WQ, "wq") for u in range(7)]
        nq = self.opt.get("nq", 0)
        self.wq = wq[nq:]
        p.add(spread(main, [(kv, 0, gk), ([c1.ins] + self.pack_b_items() + (self.pack_c_items() if cearly == 1 else []) + wq[:nq], gk + 2, n - 2)]))
        self.stamp("ln_done")
        p.wait_vm(["wkv"])
        p("s_barrier")
        self.stamp("wkv_landed")

    def phi(self, acc, out, tmp, scale=None):
        p = self.p
        for r0 in range(0, 16, 2):
            rr = (r0, r0 + 1)
            a = {r: f"v{acc + r}" for r in rr}
            t = {r: f"v{tmp + (r & 3)}" for r in rr}
            for r in rr:
                if scale is None:
                    p(f"v_add_f32 {a[r]}, {sEPS6}, {a[r]}")
                else:
                    p(f"v_fma_f32 {a[r]}, {a[r]}, {scale(r)}, {sEPS6}")
            for r in rr:
                p(f"v_mul_f32 {t[r]}, {sLOG2E}, {a[r]}")
            for r in rr:
                p(f"v_exp_f32 {t[r]}, {t[r]} clamp")
            for r in rr:
                p(f"v_max_f32 {a[r]}, {sEPS6}, {a[r]}")
            for r in rr:
                p(f"v_add_f32 {a[r]}, {a[r]}, {t[r]}")
            p(f"v_cvt_pk_bf16_f32 v{out + (r0 >> 1)}, {a[r0]}, {a[r0 + 1]}")

    def kv_addrs(self, layer, a0, a1, a2):
        p = self.p
        p(f"s_lshl_b32 {sT0}, {sw}, 10")
        p(f"v_add_u32 {a0}, {sT0}, {vS16}")
        p(f"s_lshl_b32 {sT0}, {sw}, 12")
        p(f"v_add_u32 {a1}, {sT0}, {vS16}")
        p(f"v_lshlrev_b32 {a2}, 3, {vLane}")
        p(f"s_lshl_b32 {sT0}, {sh}, 15")
        p(f"s_lshl_b32 {sT1}, {sw}, 9")
        p(f"s_add_u32 {sT0}, {sT0}, {sT1}")
        p(f"s_add_u32 s6, {sT0}, {WS_KV + layer * KV_L}")
        p(f"s_lshl_b32 {sT1}, {sg}, 1")
        p(f"s_add_u32 {sT1}, {sT1}, {srh}")
        p(f"s_lshl_b32 {sT1}, {sT1}, 11")
        p(f"s_add_u32 s7, {sT1}, s6")

    def kv_publish(self, kvacc, a0, a1, a2):
        p = self.p
        p(f"{MFMA} {kvacc(0, 16)}, {V(16)}, {V(32)}, 0")
        p(f"{MFMA} {kvacc(0, 16)}, {V(20)}, {V(36)}, {kvacc(0, 16)}")
        for q in range(4):
            p(f"ds_write_b128 {a0}, {kvacc(4 * q, 4)} offset:{S_KVP + q * 4096}")
        p.wait_ds()
        p("s_barrier")
        for u in range(4):
            p(f"ds_read_b128 {V(32 + 4 * u)}, {a1} offset:{S_KVP + u * 1024}")
        for r in (0, 2):
            p(f"v_pk_add_f32 {V(32 + r, 2)}, {V(32 + r, 2)}, {V(36 + r, 2)}")
        for r in (0, 2):
            p(f"v_pk_add_f32 {V(40 + r, 2)}, {V(40 + r, 2)}, {V(44 + r, 2)}")
        for r in (0, 2):
            p(f"v_pk_add_f32 {V(32 + r, 2)}, {V(32 + r, 2)}, {V(40 + r, 2)}")
        p("v_cvt_pk_bf16_f32 v28, v32, v33")
        p("v_cvt_pk_bf16_f32 v29, v34, v35")
        p(f"buffer_store_dwordx2 v[28:29], {a2}, {SWS}, s7 offen sc1", "kvpub")

    def o_addrs(self):
        p = self.p
        p(f"s_mul_i32 {sT0}, {sh}, 7")
        p(f"v_lshrrev_b32 v16, 5, {vLane}")
        p(f"v_add_u32 v16, {sT0}, v16")
        p(f"v_and_b32 v17, 31, {vLane}")
        p("v_lshlrev_b32 v17, 4, v17")
        p("v_and_b32 v18, 1, v16")
        p("v_lshl_add_u32 v17, v18, 9, v17")
        p("v_lshrrev_b32 v16, 1, v16")
        for j in range(4):
            p(f"v_add_u32 v18, {j}, v16")
            p("v_and_b32 v19, 1, v18")
            p("v_lshrrev_b32 v18, 1, v18")
            p("v_lshl_add_u32 v18, v18, 10, v17")
            p(f"v_lshl_add_u32 v{56 + j}, v19, 3, v18")
        p(f"s_lshr_b32 {sT0}, {sw}, 1")
        p(f"s_lshl_b32 {sT0}, {sT0}, 10")
        p(f"s_and_b32 {sT1}, {sw}, 1")
        p(f"s_lshl_b32 {sT1}, {sT1}, 3")
        p(f"s_add_u32 {sT0}, {sT0}, {sT1}")
        p(f"v_add_u32 v60, {sT0}, {vS16}")
        p(f"s_lshl_b32 {sT0}, {stb}, 7")
        p(f"s_lshl_b32 {sT1}, {sh}, 2")
        p(f"s_add_u32 {sT0}, {sT0}, {sT1}")
        p(f"s_add_u32 s3, {sT0}, {G_FO}")

    def kv_gather_o(self, layer, G, a2, shadow=None):
        p = self.p

        def loads():
            for u in range(0, 16, 2):
                p(f"s_add_u32 {sT5}, {sg}, {u // 2}")
                p(f"s_and_b32 {sT5}, {sT5}, 7")
                p(f"s_lshl_b32 {sT5}, {sT5}, 12")
                p(f"s_add_u32 {sT5}, {sT5}, s6")
                p(f"buffer_load_dwordx2 {V(G + 2 * u, 2)}, {a2}, {SWS}, {sT5} offen sc1")
                p(f"buffer_load_dwordx2 {V(G + 2 * u + 2, 2)}, {a2}, {SWS}, {sT5} offen offset:2048 sc1")

        def test():
            p(f"v_max_u32 v16, v{G}, v{G + 1}")
            for u in range(1, 16):
                p(f"v_max3_u32 v16, v16, v{G + 2 * u}, v{G + 2 * u + 1}")
            p("v_cmp_eq_u32 vcc, -1, v16")
        loads()
        if shadow:
            shadow()
        self.o_addrs()
        lo, lb, lp = p.label("kvspin"), p.label("kvback"), p.label("kvloop")
        test()
        p(f"s_cbranch_vccnz {lo}")
        p(f"{lb}:")
        with self.cap() as c:
            p(f"{lo}:")
            p(f"s_mov_b32 {sCnt}, {slim}")
            p(f"{lp}:")
            loads()
            p("s_waitcnt vmcnt(0)")
            test()
            p(f"s_cbranch_vccz {lb}")
            p(f"s_sub_u32 {sCnt}, {sCnt}, 1")
            p(f"s_cmp_lg_u32 {sCnt}, 0")
            p(f"s_cbranch_scc1 {lp}")
            p(f"s_mov_b32 {slim}, 1")
            p(f"s_branch {lb}")
        self.tail.extend(c.ins)
        self.stamp(f"kv_seen{layer}")
        for u in range(16):
            for k in range(2):
                src = f"v{G + 2 * u + k}"
                if u == 0:
                    p(f"v_lshlrev_b32 v{16 + 2 * k}, 16, {src}")
                    p(f"v_and_b32 v{17 + 2 * k}, {sHI}, {src}")
                else:
                    t = 20 + 2 * k
                    p(f"v_lshlrev_b32 v{t}, 16, {src}")
                    p(f"v_and_b32 v{t + 1}, {sHI}, {src}")
                    p(f"v_pk_add_f32 {V(16 + 2 * k, 2)}, {V(16 + 2 * k, 2)}, {V(t, 2)}")
        p("v_cvt_pk_bf16_f32 v20, v16, v17")
        p("v_cvt_pk_bf16_f32 v21, v18, v19")
        p(f"ds_write_b64 v60, v[20:21] offset:{S_KVS}")
        p.wait_ds()
        p("s_barrier")
        p(f"ds_read_b128 {V(24)}, {vS16} offset:{S_KVS}")
        p(f"ds_read_b128 {V(28)}, {vS16} offset:{S_KVS + 1024}")
        p(f"{MFMA} {V(32, 16)}, {V(24)}, {V(48)}, 0")
        p(f"{MFMA} {V(32, 16)}, {V(28)}, {V(52)}, {V(32, 16)}")
        p("v_mov_b32 v16, v44")
        p("v_mov_b32 v17, v44")
        p("v_permlane32_swap_b32 v16, v17")
        p(f"v_add_f32 v16, {sEPS6}, v17")
        p("v_rcp_f32 v16, v16")
        for r in range(0, 16, 2):
            p(f"v_pk_mul_f32 {V(32 + r, 2)}, {V(32 + r, 2)}, v[16:17] op_sel_hi:[1,0]")
        for r in range(8):
            p(f"v_cvt_pk_bf16_f32 v{20 + r}, v{32 + 2 * r}, v{33 + 2 * r}")
        st = [f"buffer_store_dwordx2 {V(20 + 2 * j, 2)}, v{56 + j}, {SG}, {sHB} offen" for j in range(3)]
        st += ["s_mov_b32 exec_hi, 0", f"buffer_store_dwordx2 {V(26, 2)}, v59, {SG}, {sHB} offen",
               "s_mov_b64 exec, -1"]
        self.publish(st, always_sc1=(layer == 0 and self.opt.get("o0sc1", 0)))
        self.flag("s3", 1 + layer)
        if layer == 0:
            self.ready(WS_RA)
        self.stamp(f"o_pub{layer}")

    def qkv0(self):
        p = self.p
        rd = []
        for s in range(28):
            f = (s % 3) * 8
            rd.append((self.trread(A(f, 2), A(f + 2, 2), "v62", L_WK + s * KB, 256),
                       self.trread(A(f + 4, 2), A(f + 6, 2), "v62", L_WV + s * KB, 256)))
        p.add(rd[0][0] + rd[0][1] + rd[1][0] + rd[1][1])
        main = []
        for s in range(28):
            f = (s % 3) * 8
            for k in range(2):
                acc = V(16 + 16 * k, 16)
                g = [Ins(f"{MFMA} {acc}, {V(64 + 4 * s)}, {A(f + 4 * k)}, {acc if s else 0}")]
                if s + 2 < 28:
                    g += rd[s + 2][k]
                main.append(g)
        with self.cap() as c:
            self.kv_addrs(0, "v60", "v61", "v11")
            p(f"s_lshl_b32 {sT3}, {sh}, 11")
            p(f"v_and_b32 v56, 15, {vLane}")
            p(f"v_bfe_u32 v57, {vLane}, 4, 1")
            p("v_lshlrev_b32 v58, 7, v56")
            p(f"v_add_u32 v58, {sT3}, v58")
            p(f"s_lshl_b32 {sT2}, {sg}, 8")
            p("v_lshlrev_b32 v56, 11, v56")
            p("v_lshl_add_u32 v56, v57, 7, v56")
            p(f"v_add_u32 v56, {sT2}, v56")
            p(f"v_cndmask_b32 v58, v58, v56, {sMPAD}")
            p(f"s_mov_b32 {sU[3]}, {WS_RB}")
        setup = groups(c.ins)
        with self.cap() as c1:
            self.poll_load("v58", SWS, sU[3], 1, 59)
        with self.cap() as c2:
            p.wait_vm("pb")
            p("s_barrier")
            self.ready(WS_RB)
        gr = self.opt.get("gr", 4)
        with self.cap() as c3:
            self.pack_c_loads()
        late = [c3.ins] if not self.opt.get("cearly", 1) else []
        if self.opt.get("to", 4) == 1:
            late += self.touch_items(G_O, 14)
        if self.opt.get("wopos", 1) == 0:
            late += self.wo_items()
        if self.opt.get("wqlate", 1):
            p.add(spread(main, [([c2.ins], gr, gr), (self.wq + late, gr + 1, 50), (setup, gr + 2, 50)]))
        else:
            p.add(spread(main, [(self.wq, 0, gr - 2), ([c2.ins], gr, gr), (late, gr + 1, 44), (setup, gr + 2, 50)]))
        self.pollb = c1.ins
        self.stamp("kv_gemm0")
        with self.cap() as c:
            self.phi(16, 16, 48)
            p(f"v_mov_b32 v48, {sONES}")
            for r in range(8):
                p(f"v_cvt_pk_bf16_f32 v{32 + r}, v{32 + 2 * r}, v{33 + 2 * r}")
            for r in range(8):
                p(f"v_cndmask_b32 v{32 + r}, v{32 + r}, v48, {sM28}")
        main = groups(c.ins, 4)
        p.add(spread(main, [([self.pollb], 0, 0),
                            (self.wo_items() if self.opt.get("wopos", 1) == 2 else [], 2, len(main) - 1)]))
        p.wait_vm("wq")
        self.kv_publish(lambda lo, k: A(24 + lo, k), "v60", "v61", "v11")
        self.stamp("kv_pub0")
        p("v_mov_b32 v13, v63")
        self.apoll_end("v58", SWS, sU[3], 1, 1, 59)
        p(f"v_cmp_ne_u32 vcc, {sfast}, v59")
        p("s_cmp_eq_u32 vcc_hi, 0")
        self.stamp_flush()
        p("s_cbranch_scc1 L_slow" if self.force_slow else "s_cbranch_scc0 L_slow")

    def q0(self):
        p = self.p
        rd = [self.trread(A((s % 4) * 4, 2), A((s % 4) * 4 + 2, 2), "v13", s * KB, 256) for s in range(28)]
        p.add(rd[0] + rd[1] + rd[2])
        main = []
        for s in range(28):
            g = [Ins(f"{MFMA} {V(48, 16)}, {A((s % 4) * 4)}, {V(64 + 4 * s)}, {V(48, 16) if s else 0}")]
            if s + 3 < 28:
                g += rd[s + 3]
            main.append(g)
        with self.cap() as c:
            self.phi(48, 48, 16)
            p(f"v_cndmask_b32 v54, v54, 0, {sMPAD}")
            p(f"v_cndmask_b32 v55, v55, 0, {sMPAD}")
        main += groups(c.ins, 6)
        self.w1 = self.w1_items()
        n1 = self.opt.get("w1early", 6)
        items = (self.pack_c_items() if self.opt.get("cearly", 1) != 1 else []) + (self.wo_items() if self.opt.get("wopos", 1) == 1 else []) + self.w1[:n1]
        if self.opt.get("to", 4) == 2:
            items = self.touch_items(G_O, 14) + items
        if self.opt.get("txs", 2) == 1:
            items += self.touch_items(G_X, 18)
        self.w1 = self.w1[n1:]
        p.add(spread(main, [(items, 0, len(main) - 1)]))
        self.stamp("q_done0")

    def colsum_qkv_items(self):
        p = self.p
        items = []
        with self.cap() as c:
            p(f"s_min_u32 {sU[0]}, {sw}, 2")
            p(f"s_mul_i32 {sU[0]}, {sU[0]}, {28 * KB}")
            p(f"v_add_u32 v60, {sU[0]}, {vTrA}")
            p.add(self.trread(V(40, 2), V(42, 2), "v60", 0))
        items.append(c.ins)
        for s in range(28):
            f = 40 + (s % 2) * 4
            g = []
            if s + 1 < 28:
                f2 = 40 + ((s + 1) % 2) * 4
                g += self.trread(V(f2, 2), V(f2 + 2, 2), "v60", (s + 1) * KB)
            g.append(Ins(f"{MFMA} {A(0, 16)}, {self.ones}, {V(f)}, {A(0, 16) if s else 0}"))
            items.append(g)
        with self.cap() as c:
            p("v_accvgpr_read_b32 v40, a0")
            self.split_words("v40", "v42", "v43", "v41", False, False)
            p(f"v_cndmask_b32 v42, v42, 0, {sMPAD}")
            p(f"v_cndmask_b32 v43, v43, 0, {sMPAD}")
            p(f"s_lshl_b32 {sU[0]}, {sw}, 9")
            p(f"v_lshlrev_b32 v60, 3, {vLane}")
            p(f"v_add_u32 v60, {L_S + S_STAT}, v60")
            p(f"v_add_u32 v61, {sU[0]}, v60")
            p("ds_write_b64 v61, v[42:43]")
        items.append(c.ins)
        return items

    def colsum_qkv_fetch(self):
        p = self.p
        p(f"v_lshlrev_b32 v13, 3, {vLane}")
        p(f"v_add_u32 v13, {L_S + S_STAT}, v13")
        p(f"ds_read_b64 {V(vCSQ + 2, 2)}, v13")
        p(f"ds_read_b64 {V(vCSQ + 4, 2)}, v13 offset:512")
        p(f"ds_read_b64 {V(vCSQ, 2)}, v13 offset:1024")

    def colsum_w1_items(self):
        p = self.p
        items = [[Ins(f"{MFMA} {A(16, 16)}, {self.ones}, {w1reg(s)}, {A(16, 16) if s else 0}")] for s in range(28)]
        with self.cap() as c:
            p("v_accvgpr_read_b32 v62, a16")
            self.split_words("v62", f"v{vCS1}", f"v{vCS1 + 1}", "v63", False, False)
            p(f"v_cndmask_b32 v{vCS1}, v{vCS1}, 0, {sMPAD}")
            p(f"v_cndmask_b32 v{vCS1 + 1}, v{vCS1 + 1}, 0, {sMPAD}")
        items.append(c.ins)
        return items

    def make_ones(self):
        p = self.p
        p(f"v_mov_b32 v15, {sONES}")
        for r in range(4):
            p(f"v_accvgpr_write_b32 a{32 + r}, v15")
        self.ones = A(32)

    def qkv1(self):
        p = self.p
        p(f"v_min_u32 v13, 27, {vLane}")
        p("v_lshlrev_b32 v13, 2, v13")
        p(f"s_lshl_b32 {sT0}, {stb}, 7")
        p(f"s_add_u32 {sT0}, {sT0}, {G_FX}")
        WF = [152, 156, 160, 164, 168, 172]

        def wf(s, k):
            r = WF[3 * (s % 2) + k]
            if k == 2:
                return self.trread(V(r, 2), V(r + 2, 2), vTrB, s * KB)
            return self.trread(V(r, 2), V(r + 2, 2), vTrA, (L_WK, L_WV)[k] + s * KB)
        p.add(wf(0, 0) + wf(0, 1) + wf(0, 2))
        self.poll("v13", SG, sT0, 2)
        self.stamp("x2_seen")
        RING, NR = 96, 14

        def ld(s):
            q = sub()
            if s % 4 == 0:
                q(f"s_add_u32 s4, {sXB}, {s * KB}")
            q(f"buffer_load_dwordx4 {V(RING + 4 * (s % NR))}, {vL16}, {SG}, s4 offen offset:{(s % 4) * KB} sc1")
            return q.ins
        LEAD = self.opt.get("lead", 6)
        for s in range(LEAD):
            p.add(ld(s))
        stl = []
        for u in range(7):
            with self.cap() as c:
                if u % 4 == 0:
                    p(f"s_add_u32 {sT5}, {sSTB}, {u * KB}")
                p(f"buffer_load_dwordx4 {V(64 + 4 * u)}, {vL16}, {SG}, {sT5} offen offset:{(u % 4) * KB} sc1")
            stl.append(c.ins)
        with self.cap() as st:
            for i in range(1, 28):
                p(f"v_add_f32 v{64 + (i & 1)}, v{64 + (i & 1)}, v{64 + i}" if i > 1 else "v_nop")
            p("v_add_f32 v64, v64, v65")
            self.stats_finish("v64", "v65", "v66", "v67")
            p("v_rsq_f32 v88, v67")
            self.split_words("v66", "v92", "v93", "v65", True, True)
            p("v_mov_b32 v94, 0")
            p("v_mov_b32 v95, 0")
            p("v_cvt_pk_bf16_f32 v80, v88, v88")
            p(f"v_and_b32 v64, {sHI}, v80")
            p("v_sub_f32 v64, v88, v64")
            p("v_cvt_pk_bf16_f32 v81, v64, v64")
            p(f"v_and_b32 v65, {sHI}, v81")
            p("v_sub_f32 v65, v64, v65")
            p("v_and_b32 v80, 0xffff, v80")
            p(f"v_and_or_b32 v80, v81, {sHI}, v80")
            p("v_cvt_pk_bf16_f32 v81, v65, 0")
            p("v_mov_b32 v82, 0")
            p("v_mov_b32 v83, 0")
            p(f"v_mov_b32 v84, {sONES}")
            p(f"v_cndmask_b32 v84, v84, 0, {sMPAD}")
            p("v_mov_b32 v85, v84")
            p("v_mov_b32 v86, 0")
            p("v_mov_b32 v87, 0")
            p(f"{MFMA} {V(64, 16)}, {V(80)}, {V(84)}, 0")
            self.kv_addrs(1, "v89", "v90", "v91")
            for m, dst in ((1, 80), (2, 84)):
                p(f"v_mov_b32 v{dst}, v{vCSQ + 2 * m}")
                p(f"v_mov_b32 v{dst + 1}, v{vCSQ + 2 * m + 1}")
        main = []
        for s in range(28):
            o = 3 * (s % 2)
            a = V(RING + 4 * (s % NR))
            nk = 3 if s < NR else 2
            nk2 = 3 if s + 1 < NR else 2
            for k in range(nk):
                acc = V(16 + 16 * k, 16)
                c = acc if s else 0
                g = [Ins(f"{MFMA} {acc}, {a}, {V(WF[o + k])}, {c}" if k < 2 else f"{MFMA} {acc}, {V(WF[o + k])}, {a}, {c}")]
                if s + 1 < 28 and k < nk2:
                    g += wf(s + 1, k)
                main.append(g)
        seq = [ld(s) for s in range(LEAD, 14)] + stl + [ld(s) for s in range(14, 28)]
        slots = []
        gpos = 0
        for i, it in enumerate(seq):
            s = i + LEAD - 7
            if s >= 14:
                gpos = max(gpos, 3 * (s - 14) + 2)
            slots.append(([it], gpos, gpos))
            gpos += 2
        p.add(spread(main, slots + [(groups(st.ins), 40, len(main) - 2)]))
        p(f"{MFMA} {V(16, 16)}, {V(92)}, {V(80)}, {V(16, 16)}")
        p(f"{MFMA} {V(32, 16)}, {V(92)}, {V(84)}, {V(32, 16)}")
        self.stamp("kv_gemm1")
        QF = [152, 156, 160, 164]
        qrd = lambda s: self.trread(V(QF[s % 4], 2), V(QF[s % 4] + 2, 2), vTrB, s * KB)
        p.add(qrd(14) + qrd(15) + qrd(16))
        main = []
        for s in range(NR, 28):
            g = [Ins(f"{MFMA} {V(48, 16)}, {V(QF[s % 4])}, {V(RING + 4 * (s % NR))}, {V(48, 16)}")]
            if s + 3 < 28:
                g += qrd(s + 3)
            main.append(g)
        with self.cap() as c:
            self.phi(16, 16, 168, lambda r: f"v{64 + r}")
            p(f"v_mov_b32 v168, {sONES}")
            for r in range(16):
                p(f"v_mul_f32 v{32 + r}, v{32 + r}, v{64 + r}")
            for r in range(8):
                p(f"v_cvt_pk_bf16_f32 v{32 + r}, v{32 + 2 * r}, v{33 + 2 * r}")
            for r in range(8):
                p(f"v_cndmask_b32 v{32 + r}, v{32 + r}, v168, {sM28}")
            p(f"v_mov_b32 v80, v{vCSQ}")
            p(f"v_mov_b32 v81, v{vCSQ + 1}")
        p.add(spread(main, [(groups(c.ins), 1, len(main) - 1)]))
        self.kv_publish(lambda lo, k: V(64 + lo, k), "v89", "v90", "v91")
        p(f"{MFMA} {V(48, 16)}, {V(80)}, {V(92)}, {V(48, 16)}")
        self.stamp("kv_pub1")

    def q1_epilogue(self):
        p = self.p
        self.phi(48, 48, 168, lambda r: "v88")
        p(f"v_cndmask_b32 v54, v54, 0, {sMPAD}")
        p(f"v_cndmask_b32 v55, v55, 0, {sMPAD}")

    def residual0(self):
        p = self.p
        p(f"v_and_b32 v13, 31, {vLane}")
        p("v_mul_u32_u24 v13, 896, v13")
        p(f"v_lshrrev_b32 v14, 5, {vLane}")
        p("v_lshl_add_u32 v13, v14, 3, v13")
        p(f"s_lshl_b32 {sT0}, {sg}, 3")
        p(f"s_add_u32 {sT0}, {sT0}, {stb}")
        p(f"s_mul_i32 {sT0}, {sT0}, {32 * 896}")
        p(f"s_min_u32 {sT1}, {sh}, 13")
        p(f"s_lshl_b32 {sT1}, {sT1}, 6")
        p(f"s_add_u32 {sT0}, {sT0}, {sT1}")
        for a in range(4):
            p(f"buffer_load_dwordx2 {V(104 + 2 * a, 2)}, v13, {SX}, {sT0} offen offset:{16 * a}")

    def wo_phase(self, layer, pre=None, streams=()):
        p = self.p
        first = layer == 0 and self.opt.get("x0sc1", 0)
        RES = 104 if layer == 0 else 32
        p(f"s_lshl_b32 s5, {sh}, 11")
        p(f"s_add_u32 s5, s5, {sXB}")
        if layer == 1:
            p(f"buffer_load_dwordx4 {V(32)}, {vL16}, {SG}, s5 offen sc1")
            p(f"buffer_load_dwordx4 {V(36)}, {vL16}, {SG}, s5 offen offset:1024 sc1")
        p(f"s_lshr_b32 {sT1}, {sh}, 2")
        p(f"s_lshl_b32 {sT1}, {sT1}, 10")
        p(f"s_and_b32 {sT2}, {sh}, 3")
        p(f"s_lshl_b32 {sT2}, {sT2}, 2")
        p(f"s_add_u32 {sT1}, {sT1}, {sT2}")
        p(f"s_add_u32 s6, {sT1}, {sSTB}")
        p(f"s_lshl_b32 {sT0}, {stb}, 7")
        p(f"s_lshl_b32 {sT1}, {sh}, 3")
        p(f"s_add_u32 {sT1}, {sT0}, {sT1}")
        p(f"s_add_u32 s7, {sT1}, {G_FX}")
        p(f"s_add_u32 {sT0}, {sT0}, {G_FO}")
        p(f"v_and_b32 v13, 15, {vLane}")
        p("v_lshlrev_b32 v13, 2, v13")
        rd = [self.trread(V(48 + (s % 3) * 4, 2), V(50 + (s % 3) * 4, 2), vTrB, (L_WO - L_WQ) + s * KB)
              for s in range(28)]
        p.add(rd[0] + rd[1])
        if pre:
            pre()
        self.poll("v13", SG, sT0, 1 + layer)
        self.stamp(f"o_seen{layer}")
        RING = 64
        LEAD = self.opt.get("leadwo", 8)

        def ld(s):
            q = sub()
            if s % 4 == 0:
                q(f"s_add_u32 s4, {sHB}, {s * KB}")
            q(f"buffer_load_dwordx4 {V(RING + 4 * s)}, {vL16}, {SG}, s4 offen offset:{(s % 4) * KB} sc1")
            return q.ins
        for s in range(LEAD):
            p.add(ld(s))
            p(f"v_lshlrev_b32 v{16 + 2 * s}, 16, v{RES + s}" if s < 8 else "; -")
            p(f"v_and_b32 v{17 + 2 * s}, {sHI}, v{RES + s}" if s < 8 else "; -")
        assert LEAD >= 8
        main = []
        for s in range(28):
            g = [Ins(f"{MFMA} {V(16, 16)}, {V(48 + (s % 3) * 4)}, {V(RING + 4 * s)}, {V(16, 16)}")]
            if s + LEAD < 28:
                g += ld(s + LEAD)
            if s + 2 < 28:
                g += rd[s + 2]
            main.append(g)
        p.add(spread(main, list(streams)))
        self.stamp(f"wo_gemm{layer}")
        for r in range(8):
            p(f"v_cvt_pk_bf16_f32 v{32 + r}, v{16 + 2 * r}, v{17 + 2 * r}")
        self.publish([f"buffer_store_dwordx4 {V(32)}, {vL16}, {SG}, s5 offen",
                      f"buffer_store_dwordx4 {V(36)}, {vL16}, {SG}, s5 offen offset:1024"], always_sc1=first)
        p("v_pk_mul_f32 v[42:43], v[16:17], v[16:17]")
        for r in range(2, 16, 2):
            p(f"v_pk_fma_f32 v[42:43], {V(16 + r, 2)}, {V(16 + r, 2)}, v[42:43]")
            p(f"v_pk_add_f32 v[16:17], v[16:17], {V(16 + r, 2)}")
        p("v_add_f32 v40, v16, v17")
        p("v_add_f32 v42, v42, v43")
        self.both_halves("v40", "v42", None)
        self.publish([f"buffer_store_dword v40, {vL16}, {SG}, s6 offen"], always_sc1=first)
        self.flag("s7", 1 + 2 * layer, 2)
        self.stamp(f"x1_pub{layer}")

    def w2_setup(self, va, vb):
        p = self.p
        p(f"s_and_b32 s25, {sw}, 1")
        p(f"s_lshl_b32 s25, s25, 8")
        p(f"s_lshr_b32 s26, {sw}, 1")
        p(f"s_lshl_b32 s26, s26, 10")
        p(f"s_add_u32 s25, s25, s26")
        p(f"v_xor_b32 {va}, s25, {vL16}")
        p(f"v_xor_b32 {vb}, 0x400, {va}")
        p(f"s_mul_i32 s25, {scb}, {224 * KB}")
        p(f"s_lshl_b32 s26, {sw}, 12")
        p(f"s_add_u32 s25, s25, s26")
        p(f"s_add_u32 s25, s25, {WS_P2}")

    def w2_items(self, va, vb):
        p = self.p
        items = []
        for j in range(28):
            for ch in range(2):
                with self.cap() as c:
                    if j % 2 == 0 and j and ch == 0:
                        p(f"s_add_u32 s25, s25, {16 * KB}")
                    p(f"buffer_load_dwordx4 {w2reg(j, ch)}, {(va, vb)[ch]}, {SWS}, s25 offen offset:{(j & 1) * 2048} sc1",
                      "w2")
                items.append(c.ins)
        return items

    def ffn(self, layer, pre=None, extra=None):
        p = self.p
        p(f"v_and_b32 v13, 15, {vLane}")
        p("v_min_u32 v13, 13, v13")
        p("v_lshlrev_b32 v13, 3, v13")
        p(f"v_lshrrev_b32 v14, 4, {vLane}")
        p("v_lshl_add_u32 v107, v14, 7, v13")
        p(f"s_mul_i32 {sT0}, {srh}, {112 * KB}")
        p(f"s_add_u32 {sT0}, {sT0}, {G_X - L_S}")
        p(f"v_add_u32 v110, {sT0}, {vL16}")
        p(f"s_lshl_b32 s5, {sw}, 10")
        p(f"s_add_u32 s5, s5, {L_S}")
        p(f"s_lshl_b32 {sT0}, {sh}, 13")
        p(f"s_lshl_b32 {sT1}, {sw}, 11")
        p(f"s_add_u32 s3, {sT0}, {sT1}")
        p(f"s_mul_i32 {sT0}, {srh}, {4 * 112 * KB}")
        p(f"s_add_u32 s3, s3, {sT0}")
        p(f"s_lshl_b32 {sT0}, {srh}, 10")
        p(f"s_lshl_b32 {sT1}, {sw}, 6")
        p(f"s_add_u32 {sT0}, {sT0}, {sT1}")
        p(f"s_lshl_b32 {sT1}, {sh}, 2")
        p(f"s_add_u32 {sT0}, {sT0}, {sT1}")
        p(f"s_add_u32 s2, {sT0}, {G_FH}")
        p(f"v_mov_b32 v84, v{vCS1}")
        p(f"v_mov_b32 v85, v{vCS1 + 1}")
        for r in (86, 87, 90, 91):
            p(f"v_mov_b32 v{r}, 0")
        p(f"v_and_b32 v108, 31, {vLane}")
        p("v_lshlrev_b32 v108, 4, v108")
        p(f"v_add_u32 v108, {L_S + S_STAT}, v108")
        p(f"s_and_b32 {sT0}, {sxs}, 3")
        p(f"s_lshl_b32 {sT0}, {sT0}, 9")
        p(f"v_add_u32 v109, {sT0}, v108")
        p.wait_ds()
        p("s_barrier")
        if pre:
            pre()
        p(f"s_lshl_b32 {sT0}, {srh}, 9")
        p(f"s_add_u32 {sT0}, {sT0}, {G_FX}")
        self.poll("v107", SG, sT0, 1 + 2 * layer, 2)
        self.stamp(f"x1_seen{layer}")

        Q, P = 10, 2

        def quad(k):
            q = sub()
            if k % Q == 0:
                q("s_mov_b32 m0, s5")
                if k:
                    q(f"v_add_u32 v110, {Q * 4 * KB}, v110")
            else:
                q(f"s_add_u32 m0, m0, {4 * KB}")
            q(f"buffer_load_dwordx4 v110, {SG}, m0 offen sc1 lds", f"c{k // P}")
            return q.ins
        for k in range(4):
            p.add(quad(k))
        stl = [[Ins(f"buffer_load_dwordx4 {V(112 + 4 * u)}, {vL16}, {SG}, {sSTB} offen offset:{u * KB} sc1")]
               for u in range(4)]
        with self.cap() as st:
            for i in range(2, 14):
                p(f"v_add_f32 v{112 + (i & 1)}, v{112 + (i & 1)}, v{112 + i}")
            p("v_add_f32 v112, v112, v113")
            self.stats_finish("v112", "v113", "v114", "v115")
            self.split_words("v114", "v116", "v117", "v113", True, True)
            p("v_rsq_f32 v118, v115")
            p("v_sqrt_f32 v119, v115")
            p(f"v_mul_f32_e64 v118, -v118, {sLOG2E}")
            p("ds_write_b128 v109, v[116:119]", "stw")
        XF, NX, D = 48, 5, 4
        rdx = lambda n: Ins(f"ds_read_b128 {V(XF + 4 * (n % NX))}, {vS16} offset:{(n % (4 * Q)) * KB}", f"x{n}")

        def boundary(j):
            q = sub()
            q.wait_vm(f"c{j}")
            if j == 3:
                q.wait_ds("stw")
            q("s_barrier")
            return q.ins
        p.add(quad(4))
        p.add(quad(5))
        p.add(boundary(0))
        p.add([rdx(n) for n in range(D)])
        main = []
        pos = {}
        for n in range(112):
            o, s = divmod(n, 28)
            acc = V(16 + 16 * (o & 1), 16)
            g = []
            if n % 2 == 0:
                g.append(Pseudo("wait_ds", f"x{n + 1}"))
            g.append(Ins(f"{MFMA} {acc}, {w1reg(s)}, {V(XF + 4 * (n % NX))}, {acc if s else 0}"))
            m = n + D
            if m < 112:
                if m % 8 == 0:
                    g += boundary(m // 8)
                g.append(rdx(m))
                if m == 24:
                    g += [Ins(f"ds_read_b128 {V(68 + 4 * k)}, v108 offset:{k * 512}") for k in range(4)]
                if m % 4 == 1 and m >= 8:
                    k = m // 4 + 6
                    if k < 28:
                        g += quad(k)
            if s == 24:
                g += [Ins(f"v_mov_b32 v88, v{68 + 4 * o}"), Ins(f"v_mov_b32 v89, v{69 + 4 * o}")]
            pos[n] = len(main)
            main.append(g)
            if s == 27:
                main.append([Ins(f"{MFMA} {acc}, {V(84)}, {V(88)}, {acc}")])

        hsc1 = self.opt.get("h0sc1", 1) if layer == 0 else self.opt.get("h1sc1", 1)

        def epilogue(o):
            tb = ((o & 1) << 1) | (o >> 1)
            acc = 16 + 16 * (o & 1)
            c1, sd = f"v{70 + 4 * o}", f"v{71 + 4 * o}"
            with self.cap() as c:
                for r0 in range(0, 16, 2):
                    rr = (r0, r0 + 1)
                    t = {r: f"v{92 + (r & 3)}" for r in rr}
                    a = {r: f"v{acc + r}" for r in rr}
                    for r in rr:
                        p(f"v_mul_f32 {t[r]}, {a[r]}, {c1}")
                    for r in rr:
                        p(f"v_exp_f32 {t[r]}, {t[r]}")
                    for r in rr:
                        p(f"v_fma_f32 {t[r]}, {t[r]}, {sd}, {sd}")
                    for r in rr:
                        p(f"v_rcp_f32 {t[r]}, {t[r]}")
                    for r in rr:
                        p(f"v_mul_f32 {a[r]}, {a[r]}, {t[r]}")
                    p(f"v_cvt_pk_bf16_f32 v{96 + (r0 >> 1)}, {a[r0]}, {a[r0 + 1]}")
            items = groups(c.ins)
            with self.cap() as c:
                p(f"s_add_u32 {sT0}, s3, {tb * 112 * KB}")
                self.publish([f"buffer_store_dwordx4 {V(96)}, {vL16}, {SG}, {sT0} offen",
                              f"buffer_store_dwordx4 {V(100)}, {vL16}, {SG}, {sT0} offen offset:1024"], f"h{o}",
                             always_sc1=hsc1)
            items.append(c.ins)
            with self.cap() as c:
                p(f"s_add_u32 {sT1}, s2, {tb * 256}")
                self.flag(sT1, 1 + layer, wait=f"h{o}", st=sT2)
            return items, c.ins
        streams = [([quad(6), quad(7)], 0, 3), (stl[:2], 1, 4), (stl[2:], 6, 8), (groups(st.ins), 13, 19)]
        eps = [epilogue(o) for o in range(4)]
        late = 24 if hsc1 else 12
        for o in range(3):
            streams.append((eps[o][0], pos[28 * (o + 1)] + 2, pos[28 * (o + 1) + 27]))
        for o in range(2):
            g = pos[28 * (o + 2) + late]
            streams.append(([eps[o][1]], g, g))
        with self.cap() as c:
            self.ffn2_setup(layer)
        streams.append((groups(c.ins), pos[84 + 2], pos[84 + 20]))
        with self.cap() as c:
            self.poll_load("v107", SG, sU[4], 1, 109)
        streams.insert(0, ([c.ins], pos[84 + 26], pos[84 + 26]))
        if extra:
            streams += extra(pos)
        if self.opt.get("fine"):
            self.stamp(f"f1_first{layer}")
            woven = spread(main, streams)
            k = 0
            for x in woven:
                p.add([x])
                if x.kind == "mfma":
                    k += 1
                    if k % 29 == 0 and k < 116:
                        self.stamp(f"f1_o{k // 29 - 1}_{layer}")
        else:
            p.add(spread(main, streams))
        self.stamp(f"ffn1_mfma{layer}")
        self.ffn2(layer, eps[3][0], eps[2][1], eps[3][1])

    def ffn2_setup(self, layer):
        p = self.p
        p(f"s_mul_i32 {sU[3]}, {srq}, {2 * 112 * KB}")
        p(f"s_lshl_b32 {sT3}, {sw}, 11")
        p(f"s_add_u32 {sU[3]}, {sU[3]}, {sT3}")
        p(f"s_lshl_b32 {sU[4]}, {srq}, 9")
        p(f"s_lshl_b32 {sT3}, {sw}, 6")
        p(f"s_add_u32 {sU[4]}, {sU[4]}, {sT3}")
        p(f"s_add_u32 {sU[4]}, {sU[4]}, {G_FH}")
        p(f"v_min_u32 v107, 13, {vLane}")
        p("v_lshlrev_b32 v107, 2, v107")
        p(f"s_lshr_b32 {sT3}, {srq}, 1")
        p(f"s_lshl_b32 {sT3}, {sT3}, 2")
        p(f"s_and_b32 {sT4}, {srq}, 1")
        p(f"s_add_u32 {sT3}, {sT3}, {sT4}")
        p(f"s_mul_i32 {sU[5]}, {sT3}, {28 * KB}")
        p(f"s_lshl_b32 {sT3}, {scb}, 12")
        p(f"s_lshl_b32 {sT4}, {sw}, 10")
        p(f"s_add_u32 {sT3}, {sT3}, {sT4}")
        p(f"s_add_u32 {sU[5]}, {sU[5]}, {sT3}")
        p(f"s_add_u32 {sU[5]}, {sU[5]}, {G_X}")
        p(f"s_mul_i32 {sU[6]}, {srq}, {14 * KB}")
        p(f"s_lshl_b32 {sT3}, {scb}, 10")
        p(f"s_lshl_b32 {sT4}, {sw}, {2 if layer == 0 else 8}")
        p(f"s_add_u32 {sT3}, {sT3}, {sT4}")
        p(f"s_add_u32 {sU[6]}, {sU[6]}, {sT3}")
        p(f"s_add_u32 {sU[6]}, {sU[6]}, {G_ST}")
        if layer == 0:
            p(f"s_lshl_b32 {sT3}, {srq}, 8")
            p(f"s_lshl_b32 {sT4}, {scb}, 4")
            p(f"s_add_u32 {sT3}, {sT3}, {sT4}")
            p(f"s_lshl_b32 {sT4}, {sw}, 2")
            p(f"s_add_u32 {sT3}, {sT3}, {sT4}")
            p(f"s_add_u32 {sU[7]}, {sT3}, {G_FX}")
        else:
            p(f"s_lshl_b32 {sT3}, {sg}, 2")
            p(f"s_add_u32 {sT3}, {sT3}, {srq}")
            p(f"s_mul_i32 {sT3}, {sT3}, {64 * 896}")
            p(f"s_lshl_b32 {sT4}, {scb}, 7")
            p(f"s_add_u32 {sT3}, {sT3}, {sT4}")
            p(f"s_lshl_b32 {sT4}, {sw}, 5")
            p(f"s_add_u32 {sU[7]}, {sT3}, {sT4}")
            p(f"v_and_b32 v13, 31, {vLane}")
            p("v_mul_u32_u24 v13, 896, v13")
            p(f"v_lshrrev_b32 v111, 5, {vLane}")
            p("v_lshl_add_u32 v111, v111, 4, v13")

    def ffn2(self, layer, ep3, flag2, flag3):
        p = self.p
        RING, NR = 112, 16
        ACC = ((16, 48), (32, 64))

        def hreg(n):
            return V(RING + 4 * (n % NR))

        def ld(n):
            th, j = divmod(n, 28)
            q = sub()
            if j % 2 == 0:
                q(f"s_add_u32 {sU[9]}, {sU[3]}, {th * 112 * KB + (j >> 1) * 8 * KB}")
            q(f"buffer_load_dwordx4 {hreg(n)}, {vL16}, {SG}, {sU[9]} offen offset:{(j % 2) * KB} sc1")
            return q.ins
        self.apoll_end("v107", SG, sU[4], 1 + layer, 1, 109)
        self.stamp(f"h_seen{layer}")
        lds = [ld(n) for n in range(56)]
        LEAD = self.opt.get("leadh", 9)
        p.add(spread(ep3, [(lds[:LEAD], 0, len(ep3) - 4), ([flag2], 70, 70)]))
        p("s_barrier")
        p(f"buffer_load_dwordx4 {V(88)}, {vL16}, {SG}, {sU[5]} offen sc1")
        self.stamp(f"ep3_done{layer}")
        for dd in range(1, 4):
            p(f"s_xor_b32 {sT3}, {sw}, {dd}")
            p(f"s_mul_i32 {sT3}, {sT3}, {6 * KB}")
            p(f"v_add_u32 v{12 + dd}, {sT3}, {vS16}")
        p(f"s_mul_i32 {sT3}, {sw}, {6 * KB}")
        p(f"v_add_u32 v108, {sT3}, {vS16}")
        p("v_mov_b32 v110, v107")

        def mm(th):
            main = []
            for j in range(28):
                n = 28 * th + j
                b = hreg(n)
                for ch in range(2):
                    acc = V(ACC[th][ch], 16)
                    g = [Ins(f"{MFMA} {acc}, {w2reg(j, ch)}, {b}, {acc if j else 0}")]
                    if ch == 1:
                        if n + LEAD < 56 and not (th == 0 and 28 <= n + LEAD < 28 + HOLD):
                            g += lds[n + LEAD]
                    main.append(g)
            return main

        def reduce(th):
            area = th * 24 * KB
            a0, a1 = ACC[th]
            chunkreg = lambda dd: (a0, a0 + 8, a1, a1 + 8)[dd]
            res = (88, 84)[th] if layer == 1 else 88
            inc = (a0 + 8, a0 + 12, a1, a1 + 4, a1 + 8, a1 + 12)
            items = []
            with self.cap() as c:
                for dd in range(1, 4):
                    for k in range(2):
                        p(f"ds_write_b128 v{12 + dd}, {V(chunkreg(dd) + 4 * k)} offset:{area + (dd - 1) * 2 * KB + k * KB}")
                for r in range(4):
                    p(f"v_lshlrev_b32 v{a1 + 8 + 2 * r}, 16, v{res + r}")
                    p(f"v_and_b32 v{a1 + 9 + 2 * r}, {sHI}, v{res + r}")
                for r in range(8):
                    p(f"v_add_f32 v{a0 + r}, v{a0 + r}, v{a1 + 8 + r}")
            items += groups(c.ins)
            with self.cap() as c:
                if th == 0:
                    p(f"s_add_u32 {sT3}, {sU[5]}, {2 * 28 * KB}")
                    p(f"buffer_load_dwordx4 {V(84 if layer == 1 else 88)}, {vL16}, {SG}, {sT3} offen sc1")
                p.wait_ds()
                p("s_barrier")
                for u in range(6):
                    p(f"ds_read_b128 {V(inc[u])}, v108 offset:{area + u * KB}")
            items.append(c.ins)
            with self.cap() as c:
                for u in range(3):
                    for r in range(8):
                        p(f"v_add_f32 v{a0 + r}, v{a0 + r}, v{inc[2 * u] + r}")
                for r in range(4):
                    p(f"v_cvt_pk_bf16_f32 v{80 + r}, v{a0 + 2 * r}, v{a0 + 2 * r + 1}")
            items += groups(c.ins)
            o = 80
            if layer == 0:
                with self.cap() as c:
                    p(f"s_add_u32 {sT4}, {sU[5]}, {th * 2 * 28 * KB}")
                    self.publish([f"buffer_store_dwordx4 {V(o)}, {vL16}, {SG}, {sT4} offen"], f"x{th}")
                items.append(c.ins)
                with self.cap() as c:
                    p(f"v_add_f32 v84, v{a0}, v{a0 + 1}")
                    p(f"v_mul_f32 v85, v{a0}, v{a0}")
                    p(f"v_fmac_f32 v85, v{a0 + 1}, v{a0 + 1}")
                    for r in range(2, 8):
                        p(f"v_add_f32 v84, v84, v{a0 + r}")
                        p(f"v_fmac_f32 v85, v{a0 + r}, v{a0 + r}")
                    self.both_halves("v84", "v85", None)
                items += groups(c.ins)
                with self.cap() as c:
                    p(f"s_add_u32 {sT3}, {sU[6]}, {th * 7 * KB}")
                    self.publish([f"buffer_store_dword v84, {vL16}, {SG}, {sT3} offen"], f"x{th}")
                items.append(c.ins)
                with self.cap() as c:
                    p(f"s_add_u32 {sT3}, {sU[7]}, {th * 128}")
                    self.flag(sT3, 2, wait=f"x{th}", tmp=86, st=sT4)
                return items, c.ins
            with self.cap() as c:
                p(f"v_permlane32_swap_b32 v{o}, v{o + 2}")
                p(f"v_permlane32_swap_b32 v{o + 1}, v{o + 3}")
                p(f"s_add_u32 {sT3}, {sU[7]}, {th * 32 * 896}")
                p(f"buffer_store_dwordx4 {V(o)}, v111, {SOUT}, {sT3} offen sc1")
            items.append(c.ins)
            return items, []
        GP = self.opt.get("gp", 36)
        HOLD = max(0, GP // 2 - (28 - LEAD) + 1)
        with self.cap() as c1:
            p(f"s_add_u32 {sT0}, {sU[4]}, 256")
            self.poll_load("v110", SG, sT0, 1, 109)
        with self.cap() as c2:
            self.apoll_end("v110", SG, sT0, 1 + layer, 1, 109)
            for n in range(28, 28 + HOLD):
                p.add(lds[n])
        fl3 = [Ins(x.text.replace("v14", "v109"), x.tag) if isinstance(x, Ins) else x for x in flag3]
        p.add(spread(mm(0), [([fl3], 14, 14), ([c1.ins], GP - 10, GP - 10), ([c2.ins], GP + 1, GP + 1)]))
        self.stamp(f"th0_done{layer}")
        r0, f0 = reduce(0)
        streams = [(r0, 1, 40)]
        if f0:
            streams.append(([f0], 52, 52))
        p.add(spread(mm(1), streams))
        self.stamp(f"th1_done{layer}")
        r1, f1 = reduce(1)
        for it in r1:
            p.add(it)
        p.add(f1)
        self.stamp(f"ffn2_done{layer}")

    def spare0(self):
        p = self.p
        p(f"s_and_b32 {sT0}, {sh}, 1")
        p(f"s_lshl_b32 {sT0}, {sT0}, 3")
        p(f"s_add_u32 {sT0}, {sT0}, {stb}")
        p(f"s_mul_i32 {sT0}, {sT0}, {98 * KB}")
        p(f"s_add_u32 {sT0}, {sT0}, {WS_P2}")
        p(f"v_lshlrev_b32 v64, 7, {vLane}")
        if self.opt.get("w2pre", 0):
            for k in range(13):
                p(f"s_add_u32 {sT1}, {sT0}, {min(k * 8, 90) * KB}")
                p(f"buffer_load_dword v65, v64, {SWS}, {sT1} offen sc1")
        self.colsum_qkv_fetch()
        p("s_waitcnt vmcnt(0) lgkmcnt(0)")

    def spare1(self):
        p = self.p
        wb = self.opt.get("wb", 1)
        if not wb:
            return
        p(f"s_and_b32 {sT0}, {sh}, 1")
        p(f"s_or_b32 {sT0}, {sT0}, {srh}")
        p(f"s_or_b32 {sT0}, {sT0}, {sw}")
        p(f"s_cmp_lg_u32 {sT0}, 0")
        p(f"s_cbranch_scc1 L_fin{self.sfx}")
        p(f"v_and_b32 v13, 15, {vLane}")
        p("v_min_u32 v13, 13, v13")
        p("v_lshlrev_b32 v13, 3, v13")
        p(f"v_lshrrev_b32 v14, 4, {vLane}")
        p("v_lshl_add_u32 v16, v14, 7, v13")
        p(f"s_mov_b32 {sT0}, {G_FX}")
        self.poll("v16", SG, sT0, 3, 2)
        p(f"s_mov_b32 {sT0}, {G_FX + 512}")
        self.poll("v16", SG, sT0, 3, 2)
        p("buffer_wbl2 sc1")
        p("s_waitcnt vmcnt(0)")
        if wb >= 2:
            p(f"v_and_b32 v13, 15, {vLane}")
            p("v_min_u32 v13, 13, v13")
            p("v_lshlrev_b32 v13, 2, v13")
            p(f"v_lshrrev_b32 v14, 4, {vLane}")
            p("v_lshl_add_u32 v16, v14, 6, v13")
            for tb in ((2, 3) if wb == 2 else (0, 2, 1, 3)):
                for half in range(2):
                    p(f"s_mov_b32 {sT0}, {G_FH + (4 * half + tb) * 256}")
                    self.poll("v16", SG, sT0, 2)
                p("buffer_wbl2 sc1")
                p("s_waitcnt vmcnt(0)")

    def finish(self):
        p = self.p
        p(f"s_or_b32 {sT0}, {sg}, {sh}")
        p(f"s_or_b32 {sT0}, {sT0}, {srh}")
        p(f"s_or_b32 {sT0}, {sT0}, {sw}")
        p(f"s_cmp_lg_u32 {sT0}, 0")
        p(f"s_cbranch_scc1 L_fin{self.sfx}")
        p(f"s_add_u32 {sT0}, {sE}, 64")
        p(f"v_mov_b32 v14, {sT0}")
        p("s_mov_b64 exec, 1")
        p(f"buffer_store_dword v14, {vL16}, {SWS}, 0 offen sc1")
        p("s_mov_b64 exec, -1")
        p(f"L_fin{self.sfx}:")
        if self.pad:
            p("s_waitcnt vmcnt(0)")
            if self.opt.get("amp") == "end":
                p("s_memrealtime s[94:95]")
            p("s_waitcnt lgkmcnt(0)")
            p("s_sub_u32 s94, s94, s96")
            p("s_mul_i32 s94, s94, 4")
            p("s_min_u32 s94, s94, 20000")
            p(f"s_add_u32 s94, s94, {self.pad}")
            p(f"L_pad{self.sfx}:")
            p("s_memrealtime s[98:99]")
            p("s_waitcnt lgkmcnt(0)")
            p("s_sub_u32 s98, s98, s96")
            p(f"s_cmp_lt_u32 s98, s94")
            p(f"s_cbranch_scc1 L_pad{self.sfx}")
        if self.diag:
            p("s_waitcnt vmcnt(0)")
            self.stamp("end")
            self.stamp_flush()
            p(f"s_lshl_b32 {sT0}, {srh}, 4")
            p(f"s_add_u32 {sT0}, {sT0}, {sh}")
            p(f"s_lshl_b32 {sT0}, {sT0}, 3")
            p(f"s_add_u32 {sT0}, {sT0}, {sg}")
            p(f"s_lshl_b32 {sT0}, {sT0}, 2")
            p(f"s_add_u32 {sT0}, {sT0}, {sw}")
            p(f"s_lshl_b32 {sT0}, {sT0}, 7")
            p(f"s_add_u32 {sT0}, {sT0}, {WS_DIAG}")
            p("s_mov_b64 exec, 1")
            for i in range(self.nstamp):
                p(f"v_mov_b32 v14, s{STAMP0 + i}")
                p(f"buffer_store_dword v14, {vL16}, {SWS}, {sT0} offen offset:{4 * i}")
            p(f"v_mov_b32 v14, {1 if self.fast else 0}")
            p(f"buffer_store_dword v14, {vL16}, {SWS}, {sT0} offen offset:120")
            p(f"v_mov_b32 v14, {slim}")
            p(f"buffer_store_dword v14, {vL16}, {SWS}, {sT0} offen offset:124")
            p("s_mov_b64 exec, -1")
        p("s_waitcnt vmcnt(0)")
        p("s_endpgm")

    def body(self):
        p = self.p
        x = self.sfx
        self.q0()

        def take(n):
            out, self.w1 = self.w1[:n], self.w1[n:]
            return out

        def shadow0():
            self.make_ones()
            cs = self.colsum_qkv_items()
            extra = self.touch_items(G_O, 14) if self.opt.get("to", 4) == 4 else []
            extra += self.touch_items(G_X, 18) if self.opt.get("txs", 2) == 2 else []
            if self.opt.get("res", 1) == 0:
                with self.cap() as c:
                    self.residual0()
                extra.append(c.ins)
            p.add(spread(cs, [(extra + take(self.opt.get("w1b", 10)), 0, len(cs) - 1)]))
        self.kv_gather_o(0, 64, "v11", shadow0)
        self.stamp_flush()
        p(f"s_cmp_ge_u32 {sh}, 14")
        p(f"s_cbranch_scc1 L_spare0{x}")

        def pre_wo0():
            if self.opt.get("res", 1) == 1:
                p("v_mov_b32 v15, v13")
                p(f"s_mov_b32 {sT3}, {sT0}")
                self.residual0()
                p("v_mov_b32 v13, v15")
                p(f"s_mov_b32 {sT0}, {sT3}")
            for it in take(self.opt.get("w1c", 0)):
                p.add(it)
        w1d = None
        n_before = 28 - len(self.w1) + self.opt.get("w1c", 0)
        cs1 = self.colsum_w1_items()
        late = [self.w1[i] for i in range(self.opt.get("w1c", 0), len(self.w1))]
        self.wo_phase(0, pre_wo0, [(cs1[:n_before], 0, 26), (late, 20, 27)])

        def pre_ffn0():
            self.colsum_qkv_fetch()
            self.w2_setup("v106", "v111")
            p(f"s_lshl_b32 {sT2}, {scb}, 11")
            p(f"s_add_u32 {sT2}, {sT2}, {WS_RA}")
            p(f"v_and_b32 v13, 15, {vLane}")
            p(f"v_bfe_u32 v14, {vLane}, 4, 1")
            p(f"v_mul_u32_u24 v14, {7 * 2048}, v14")
            p("v_lshl_add_u32 v104, v13, 7, v14")
            self.poll_load("v104", SWS, sT2, 1, 105)
            for it in cs1[n_before:]:
                p.add(it)
            p(f"v_mov_b32 v84, v{vCS1}")
            p(f"v_mov_b32 v85, v{vCS1 + 1}")
            self.apoll_end("v104", SWS, sT2, 1, 1, 105)
            p.wait_ds()
            p("s_barrier")

        def extra0(pos):
            if self.opt.get("now2"):
                return []
            return [(self.w2_items("v106", "v111"), self.opt.get("w2beg", 10), pos[self.opt.get("w2end", 108)])]
        self.ffn(0, pre_ffn0, extra0)
        p(f"L_layer1{x}:")
        p("s_waitcnt lgkmcnt(0)")
        self.qkv1()
        self.q1_epilogue()
        self.kv_gather_o(1, 96, "v91")
        p(f"s_cmp_ge_u32 {sh}, 14")
        p(f"s_cbranch_scc1 L_spare1{x}")
        self.wo_phase(1)
        self.ffn(1)
        self.finish()
        p(f"L_spare0{x}:")
        p("s_waitcnt vmcnt(0) lgkmcnt(0)")
        self.spare0()
        p(f"s_branch L_layer1{x}")
        p(f"L_spare1{x}:")
        p("s_waitcnt vmcnt(0) lgkmcnt(0)")
        self.spare1()
        p(f"s_branch L_fin{x}")
        p.add(self.tail)
        self.tail = []

    def build(self):
        p = self.p
        self.prologue()
        self.startup()
        self.qkv0()
        self.body()
        p("L_fastend:")
        p("L_slow:")
        p("s_waitcnt vmcnt(0) lgkmcnt(0)")
        p("s_nop 7")
        self.fast = False
        self.sfx = "_s"
        self.body()
        return finalize(p.ins)


HEADER = f"""; Two layers of (LayerNorm, linear attention, output projection, LayerNorm, SiLU FFN) in one persistent launch.
; @launch grid=(256,1,1) block=(256,1,1) lds={LDS_BYTES}
.amdgcn_target "amdgcn-amd-amdhsa--gfx950"
.text
.globl {NAME}_kernel
.p2align 8
.type {NAME}_kernel,@function
{NAME}_kernel:
"""
FOOTER = f"""
.section .rodata,"a"
.p2align 6
.amdhsa_kernel {NAME}_kernel
  .amdhsa_next_free_vgpr 512
  .amdhsa_next_free_sgpr 102
  .amdhsa_accum_offset 256
  .amdhsa_group_segment_fixed_size 0
  .amdhsa_kernarg_size 72
  .amdhsa_user_sgpr_count 2
  .amdhsa_user_sgpr_kernarg_segment_ptr 1
  .amdhsa_system_sgpr_workgroup_id_x 1
.end_amdhsa_kernel
"""


def generate(**kw):
    g = Gen(**kw)
    lines = g.build()
    return HEADER + "\n".join(lines) + FOOTER, g


if __name__ == "__main__":
    out = sys.argv[1] if len(sys.argv) > 1 else f"cdna_kernels/{NAME}.s"
    kw = {}
    for a in sys.argv[2:]:
        k, _, v = a.partition("=")
        kw[k] = (int(v) if v.lstrip('-').isdigit() else v) if v else True
    text, g = generate(**kw)
    open(out, "w").write(text)
    print("wrote", out, len(text), "bytes;", text.count("\n"), "lines")
```

```python
import sys, os
sys.path.insert(0, os.path.dirname(os.path.abspath(__file__)))
from asmlib import *

NAME = "interleave_layers__linear_attn_block__dense_activation_silu__prompt"
KB = 1024

WS_EPOCH = 0
WS_RA = 0x8000
WS_RB = 0x10000
WS_DIAG = 0x20000
WS_KV = 0x80000
KV_L = 0x80000
WS_PQ = 0x180000
WS_PO = WS_PQ + 16 * 28 * KB
WS_P1 = WS_PO + 14 * 28 * KB
WS_P2 = WS_P1 + 14 * 112 * KB
WS_G = 0x680000
assert WS_P2 + 7 * 224 * KB <= WS_G
OOB = 0x40000000
G_STRIDE = 0x160000
G_H = 0
G_O = 8 * 112 * KB
G_X = G_O + 8 * 28 * KB
G_ST = G_X + 8 * 28 * KB
G_FX = G_ST + 8 * 7 * KB
G_FO = G_FX + 1024
G_FH = G_FO + 1024
G_END = G_FH + 2048
assert G_END <= G_STRIDE
WS_BYTES = WS_G + 8 * G_STRIDE

L_WK, L_WV, L_WQ, L_WO, L_S = 0, 28 * KB, 56 * KB, 84 * KB, 112 * KB
L_XST = 48 * KB
S_KVP, S_KVS = 0, 16 * KB
S_CS = 18 * KB
S_STAT, S_TR = 42 * KB, 44 * KB
LDS_BYTES = 160 * KB

SX, SQ, SO, S1, S2, SOUT, SWS, SG = ("s[8:11]", "s[12:15]", "s[16:19]", "s[20:23]", "s[24:27]", "s[28:31]",
                                     "s[32:35]", "s[36:39]")
sE, sg, sh, srh, sw, sfast, srq, scb, stb, sxs, slim = ("s56", "s57", "s58", "s59", "s60", "s61", "s62", "s63",
                                                        "s64", "s65", "s66")
sT0, sT1, sT2, sT3, sT4, sT5 = "s40", "s41", "s42", "s43", "s44", "s45"
sCnt, sNeed = "s46", "s47"
sONES, sLOG2E, sEPS6, sHI = "s48", "s49", "s50", "s51"
sM28 = "s[52:53]"
sMPAD = "s[54:55]"
sHB, sXB, sSTB = "s67", "s68", "s69"
STAMP0 = 80
sU = [f"s{70 + i}" for i in range(10)]
SPK = "s[20:23]"

vLane, vL16, vTrA, vTrB = "v0", "v1", "v2", "v3"
vCS1 = 4
vCSQ = 6
vS16 = "v12"
vT0, vT1, vT2 = "v13", "v14", "v15"


def V(n, k=4):
    return f"v[{n}:{n + k - 1}]" if k > 1 else f"v{n}"


def A(n, k=4):
    return f"a[{n}:{n + k - 1}]" if k > 1 else f"a{n}"


def w1reg(s, lo=0, k=4):
    return A(224 + 4 * s + lo, k) if s < 8 else V(176 + 4 * (s - 8) + lo, k)


def w2reg(j, ch, lo=0, k=4):
    return A(8 * j + 4 * ch + lo, k)


MFMA = "v_mfma_f32_32x32x16_bf16"
MFMA16 = "v_mfma_f32_16x16x32_bf16"


class Capture:
    def __init__(self, g):
        self.g = g

    def __enter__(self):
        self.saved = self.g.p.ins
        self.g.p.ins = []
        self.ins = self.g.p.ins
        return self

    def __exit__(self, *a):
        self.g.p.ins = self.saved


class Gen:
    def __init__(self, diag=False, force_slow=False, pad=0, part=0, **opt):
        self.p = Prog()
        self.diag = diag
        self.force_slow = force_slow
        self.pad = pad
        self.part = part
        self.opt = opt
        self.nstamp = 0
        self.seen = 0
        self.stamp_names = []
        self.pending = False
        self.tail = []
        self.fast = True
        self.sfx = ""

    def cap(self):
        return Capture(self)

    def stamp(self, name, op="s_memrealtime"):
        if self.opt.get("amp") == name and self.fast:
            self.p("s_memrealtime s[94:95]")
        if not self.diag or not self.fast:
            return
        self.seen += 1
        lo = self.opt.get("from", 18 * self.part)
        if self.seen > 2 and not (lo <= self.seen - 3 < lo + 18):
            return
        self.stamp_flush()
        assert STAMP0 + self.nstamp < 100, "too many stamps"
        self.p(f"{op} s[100:101]")
        self.stamp_names.append(name)
        self.nstamp += 1
        self.pending = True

    def stamp_flush(self):
        if self.diag and self.pending:
            self.p(f"s_mov_b32 s{STAMP0 + self.nstamp - 1}, s100")
            self.pending = False

    def publish(self, stores, tag="pub", always_sc1=False):
        for s in stores:
            self.p(s + (" sc1" if s.startswith("buffer_") and (always_sc1 or not self.fast) else ""), tag)

    def flag(self, soff, val, n=1, wait="pub", tmp=14, st=sT5):
        p = self.p
        p(f"s_add_u32 {st}, {sE}, {val}")
        p(f"v_mov_b32 v{tmp}, {st}")
        if n == 2:
            p(f"v_mov_b32 v{tmp + 1}, {st}")
        op = f"buffer_store_dword v{tmp}" if n == 1 else f"buffer_store_dwordx2 v[{tmp}:{tmp + 1}]"
        p.wait_vm(wait)
        self.publish(["s_mov_b64 exec, 1", f"{op}, {vL16}, {SG}, {soff} offen", "s_mov_b64 exec, -1"], "flag")

    def poll_load(self, vaddr, srd, soff, n, tmp):
        if n == 1:
            self.p(f"buffer_load_dword v{tmp}, {vaddr}, {srd}, {soff} offen sc1")
        else:
            self.p(f"buffer_load_dwordx2 v[{tmp}:{tmp + 1}], {vaddr}, {srd}, {soff} offen sc1")

    def poll_test(self, n, tmp, need):
        p = self.p
        p(f"v_subrev_u32 v{tmp}, {need}, v{tmp}")
        if n == 2:
            p(f"v_subrev_u32 v{tmp + 1}, {need}, v{tmp + 1}")
            p(f"v_or_b32 v{tmp}, v{tmp}, v{tmp + 1}")
        p(f"v_cmp_lt_u32 vcc, 31, v{tmp}")

    def spin(self, vaddr, srd, soff, n, tmp, need, done):
        p = self.p
        lp = p.label("poll")
        p(f"s_mov_b32 {sCnt}, {slim}")
        p(f"{lp}:")
        self.poll_load(vaddr, srd, soff, n, tmp)
        p("s_waitcnt vmcnt(0)")
        self.poll_test(n, tmp, need)
        p(f"s_cbranch_vccz {done}")
        p(f"s_sub_u32 {sCnt}, {sCnt}, 1")
        p(f"s_cmp_lg_u32 {sCnt}, 0")
        p(f"s_cbranch_scc1 {lp}")
        p(f"s_mov_b32 {slim}, 1")

    def poll(self, vaddr, srd, soff, need, n=1, tmp=14):
        p = self.p
        ld = p.label("polled")
        p(f"s_add_u32 {sNeed}, {sE}, {need}")
        self.spin(vaddr, srd, soff, n, tmp, sNeed, ld)
        p(f"{ld}:")

    def apoll_end(self, vaddr, srd, soff, need, n=1, tmp=14):
        p = self.p
        lo, lb = p.label("aspin"), p.label("aback")
        p(f"s_add_u32 {sNeed}, {sE}, {need}")
        self.poll_test(n, tmp, sNeed)
        p(f"s_cbranch_vccnz {lo}")
        p(f"{lb}:")
        with self.cap() as c:
            p(f"{lo}:")
            p("s_nop 4")
            self.spin(vaddr, srd, soff, n, tmp, sNeed, lb)
            p(f"s_branch {lb}")
        self.tail.extend(c.ins)

    def trread(self, dst_lo, dst_hi, vaddr, off, second=512):
        return [Ins(f"ds_read_b64_tr_b16 {dst_lo}, {vaddr} offset:{off}"),
                Ins(f"ds_read_b64_tr_b16 {dst_hi}, {vaddr} offset:{off + second}")]

    def transpose_block(self, reg, aw, ar):
        return [Ins(f"ds_write_b128 {aw}, {reg(0, 4)}"),
                Ins(f"ds_read_b64_tr_b16 {reg(0, 2)}, {ar}"),
                Ins(f"ds_read_b64_tr_b16 {reg(2, 2)}, {ar} offset:512")]

    def tr_addrs(self, aw, ar):
        p = self.p
        p(f"s_lshl_b32 {sT0}, {sw}, 10")
        p(f"s_add_u32 {sT0}, {sT0}, {L_S + S_TR}")
        p(f"v_add_u32 {aw}, {sT0}, {vL16}")
        p(f"v_add_u32 {ar}, {sT0}, {vTrA}")

    def both_halves(self, s, q, tmp):
        p = self.p
        p(f"v_permlane32_swap_b32 {s}, {q}")
        p(f"v_add_f32 {s}, {s}, {q}")

    def stats_finish(self, t, u, mean, var):
        p = self.p
        p(f"v_mov_b32 {u}, {t}")
        p(f"v_permlane32_swap_b32 {t}, {u}")
        p(f"v_mul_f32 {mean}, 0x3b124925, {t}")
        p(f"v_mul_f32 {var}, 0x3b124925, {u}")
        p(f"v_fma_f32 {var}, -{mean}, {mean}, {var}")
        p(f"v_max_f32 {var}, 0, {var}")
        p(f"v_add_f32 {var}, 0x3727c5ac, {var}")

    def split_words(self, x, w0, w1, t, neg, xside):
        p = self.p
        s = "-" if neg else ""
        p(f"v_cvt_pk_bf16_f32 {w0}, {s}{x}, {s}{x}")
        p(f"v_and_b32 {t}, {sHI}, {w0}")
        p(f"v_sub_f32 {t}, {s}{x}, {t}" if not neg else f"v_sub_f32_e64 {t}, -{x}, {t}")
        if xside:
            p(f"v_and_b32 {w1}, 0xffff, {w0}")
            p(f"v_cvt_pk_bf16_f32 {t}, {t}, {t}")
            p(f"v_and_or_b32 {w0}, {t}, {sHI}, {w1}")
        else:
            p(f"v_cvt_pk_bf16_f32 {w1}, {t}, 0")

    def prologue(self):
        p = self.p
        p("s_cmp_lt_u32 s2, 256")
        p("s_cbranch_scc1 L_start")
        p("s_endpgm")
        p("L_start:")
        p("s_load_dwordx4 s[40:43], s[0:1], 0")
        p("s_load_dwordx2 s[52:53], s[0:1], 64")
        p("s_load_dwordx2 s[44:45], s[0:1], 16")
        p("s_load_dwordx4 s[48:51], s[0:1], 32")
        p("s_load_dwordx2 s[46:47], s[0:1], 48")
        self.stamp("realtime", "s_memrealtime")
        if self.pad:
            p("s_memrealtime s[96:97]")
            p("s_memrealtime s[94:95]")
        p("s_getpc_b64 s[6:7]")
        p("L_pc:")
        p("v_lshrrev_b32 v13, 6, v0")
        p(f"v_and_b32 {vLane}, 63, v0")
        p(f"v_readfirstlane_b32 {sw}, v13")
        p(f"s_and_b32 {sg}, s2, 7")
        p(f"s_lshr_b32 s3, s2, 3")
        p(f"s_lshl_b32 s4, s3, 2")
        p(f"s_add_u32 s4, s4, {sw}")
        p(f"s_lshl_b32 s4, s4, 9")
        p(f"v_lshlrev_b32 v9, 7, {vLane}")
        p("v_add_u32 v13, s4, v9")
        p("v_min_u32 v13, L_fastend-L_pc-4, v13")
        p("s_mov_b64 exec, 0xf")
        p("global_load_dword v10, v13, s[6:7]")
        p("s_mov_b64 exec, -1")
        p(f"s_and_b32 {sh}, s3, 15")
        p(f"s_lshr_b32 {srh}, s3, 4")
        p(f"s_lshl_b32 s2, {sg}, 1")
        p(f"s_add_u32 s2, s2, {srh}")
        p("s_lshl_b32 s3, s2, 2")
        p(f"s_add_u32 s3, s3, {sw}")
        p("s_min_u32 s5, s3, 55")
        p("s_cmp_ge_u32 s5, 28")
        p("s_cselect_b32 s4, 1, 0")
        p("s_cselect_b32 s6, 28, 0")
        p("s_sub_u32 s5, s5, s6")
        p(f"v_lshrrev_b32 v13, 2, {vLane}")
        p(f"v_and_b32 v15, 3, {vLane}")
        p("v_lshlrev_b32 v15, 4, v15")
        p("v_mul_u32_u24 v14, 2688, v13")
        p("v_add_u32 v6, v14, v15")
        p("v_mul_u32_u24 v14, 896, v13")
        p("v_add_u32 v7, v14, v15")
        p("v_mul_u32_u24 v14, 3584, v13")
        p("v_add_u32 v8, v14, v15")
        p(f"s_cmp_ge_u32 {sh}, 7")
        p(f"s_cselect_b32 s6, 1, 0")
        p(f"s_cselect_b32 s7, 7, 0")
        p(f"s_lshl_b32 {srq}, {srh}, 1")
        p(f"s_add_u32 {srq}, {srq}, s6")
        p(f"s_sub_u32 {scb}, {sh}, s7")
        p(f"s_lshl_b32 {stb}, {srh}, 2")
        p(f"s_and_b32 s6, {sw}, 1")
        p(f"s_lshl_b32 s6, s6, 1")
        p(f"s_lshr_b32 s7, {sw}, 1")
        p(f"s_or_b32 s6, s6, s7")
        p(f"s_add_u32 {sxs}, {stb}, s6")
        p(f"s_add_u32 {stb}, {stb}, {sw}")
        p(f"v_lshlrev_b32 {vL16}, 4, {vLane}")
        p(f"v_lshrrev_b32 v13, 3, {vLane}")
        p("v_mul_u32_u24 v14, 896, v13")
        p("v_lshrrev_b32 v13, 1, v13")
        p(f"v_and_b32 v15, 7, {vLane}")
        p("v_xor_b32 v13, v13, v15")
        p("v_lshl_add_u32 v16, v13, 4, v14")
        p("v_xor_b32 v13, 4, v13")
        p("v_lshl_add_u32 v17, v13, 4, v14")
        p(f"s_lshl_b32 {sU[0]}, {sg}, 3")
        p(f"s_add_u32 {sU[0]}, {sU[0]}, {stb}")
        p(f"s_mul_i32 {sU[0]}, {sU[0]}, {32 * 896}")
        p(f"s_mul_i32 {sU[1]}, {sw}, {28 * KB}")
        p(f"s_add_u32 {sU[1]}, {sU[1]}, {L_XST}")
        p(f"s_cmp_ge_u32 {sh}, 14")
        p(f"s_cselect_b32 {sU[2]}, 7, 0")
        p(f"s_sub_u32 {sU[2]}, {scb}, {sU[2]}")
        p(f"s_mov_b32 s10, {2048 * 896}\ns_mov_b32 s11, 0x00020000")
        p(f"s_mov_b32 s14, {448 * 2688}\ns_mov_b32 s15, 0x00020000")
        p("s_waitcnt lgkmcnt(0)")
        self.stamp("start")
        p("s_mov_b32 s12, s42\ns_mov_b32 s13, s43")
        p("s_mov_b32 s8, s40\ns_mov_b32 s9, s41")
        p(f"s_load_dword {sE}, s[52:53], {WS_EPOCH}")
        for j in range(7):
            p(f"s_lshl_b32 {sU[3]}, {sU[2]}, 7")
            p(f"s_add_u32 {sU[3]}, {sU[3]}, {sU[0]}")
            p(f"s_lshl_b32 {sU[4]}, {sU[2]}, 12")
            p(f"s_add_u32 {sU[4]}, {sU[4]}, {sU[1]}")
            for b in range(4):
                p(f"s_add_u32 m0, {sU[4]}, {b * KB}")
                p(f"s_add_u32 {sU[5]}, {sU[3]}, {b * 8 * 896}")
                p(f"buffer_load_dwordx4 v{16 + (b & 1)}, {SX}, {sU[5]} offen lds", "x")
                if 4 * j + b + 1 == self.opt.get("xa", 4):
                    self.prologue2()
                if 4 * j + b + 1 == self.opt.get("xs", 8) and self.opt.get("st", 0):
                    self.scalar_touch()
            if j < 6:
                p(f"s_add_u32 {sU[2]}, {sU[2]}, 1")
                p(f"s_cmp_eq_u32 {sU[2]}, 7")
                p(f"s_cselect_b32 {sU[2]}, 0, {sU[2]}")

    def scalar_touch(self):
        p = self.p
        p(f"s_lshl_b32 s6, {srh}, 4")
        p(f"s_add_u32 s6, s6, {sh}")
        p("s_lshl_b32 s6, s6, 2")
        p(f"s_add_u32 s6, s6, {sw}")
        p("s_mul_i32 s6, s6, 7")
        p("s_lshr_b32 s6, s6, 1")
        p("s_min_u32 s6, s6, 444")
        p("s_mul_i32 s6, s6, 2688")
        p("s_add_u32 s6, s42, s6")
        p("s_addc_u32 s7, s43, 0")
        n = self.opt.get("st")
        k = 0
        for c in range(14):
            for r in range(4):
                if k < n:
                    p(f"s_load_dword s55, s[6:7], {r * 2688 + 896 + c * 128}")
                k += 1

    def prologue2(self):
        p = self.p
        p(f"s_mul_i32 {sHB}, {stb}, {28 * KB}")
        p(f"s_add_u32 {sHB}, {sHB}, {G_O}")
        p(f"s_mul_i32 {sXB}, {sxs}, {28 * KB}")
        p(f"s_add_u32 {sXB}, {sXB}, {G_X}")
        p(f"s_mul_i32 {sSTB}, {stb}, {7 * KB}")
        p(f"s_add_u32 {sSTB}, {sSTB}, {G_ST}")
        p(f"s_mov_b32 {slim}, 40000")
        p(f"v_add_u32 {vS16}, {L_S}, {vL16}")
        p(f"v_and_b32 v13, 3, {vLane}")
        p("v_lshlrev_b32 v13, 3, v13")
        p(f"v_bfe_u32 v14, {vLane}, 4, 1")
        p("v_lshl_add_u32 v13, v14, 5, v13")
        p(f"v_bfe_u32 v14, {vLane}, 2, 2")
        p("v_lshl_add_u32 v13, v14, 6, v13")
        p(f"v_lshrrev_b32 v14, 5, {vLane}")
        p(f"v_lshl_add_u32 {vTrA}, v14, 8, v13")
        p(f"v_add_u32 {vTrB}, {L_WQ}, {vTrA}")
        p("v_lshl_add_u32 v62, v14, 9, v13")
        p(f"v_add_u32 v63, {L_WQ}, v62")
        p(f"v_and_b32 v13, 31, {vLane}")
        p("v_lshrrev_b32 v14, 3, v13")
        p("v_lshlrev_b32 v14, 10, v14")
        p("v_and_b32 v15, 7, v13")
        p("v_lshl_add_u32 v14, v15, 7, v14")
        p(f"v_add_u32 v14, {sU[1]}, v14")
        p("v_bfe_u32 v13, v13, 1, 3")
        p(f"v_lshrrev_b32 v15, 5, {vLane}")
        p("v_xor_b32 v13, v13, v15")
        for q in range(4):
            p(f"v_xor_b32 v15, {2 * q}, v13")
            p(f"v_lshl_add_u32 v{20 + q}, v15, 4, v14")
        p(f"v_lshrrev_b32 v15, 5, {vLane}")
        p("v_xor_b32 v13, v13, v15")
        p("v_lshl_add_u32 v14, v15, 3, v14")
        p(f"s_min_u32 s6, {sh}, 13")
        p("s_lshr_b32 s7, s6, 1")
        p("s_lshl_b32 s7, s7, 12")
        p("v_add_u32 v14, s7, v14")
        p("s_and_b32 s6, s6, 1")
        p("s_lshl_b32 s6, s6, 2")
        p("v_xor_b32 v13, s6, v13")
        for a in range(4):
            p(f"v_xor_b32 v15, {a}, v13")
            p(f"v_lshl_add_u32 v{24 + a}, v15, 4, v14")
        p(f"s_cmp_lt_u32 {sh}, 14")
        p(f"s_cselect_b32 s18, {448 * 448 * 2}, 0")
        p(f"s_cselect_b32 s22, {448 * 1792 * 2}, 0")
        p(f"s_cselect_b32 s26, {448 * 1792 * 2}, 0")
        for base, src, size in ((16, 44, None), (20, 48, None), (24, 50, None), (28, 46, 2048 * 896),
                                (32, 52, WS_BYTES)):
            p(f"s_mov_b32 s{base}, s{src}")
            p(f"s_mov_b32 s{base + 1}, s{src + 1}")
            if size is not None:
                p(f"s_mov_b32 s{base + 2}, {size}")
            p(f"s_mov_b32 s{base + 3}, 0x00020000")
        p(f"s_mul_i32 s6, {sg}, {G_STRIDE}")
        p(f"s_add_u32 s6, s6, {WS_G}")
        p("s_add_u32 s36, s52, s6")
        p("s_addc_u32 s37, s53, 0")
        p(f"s_mov_b32 s38, {G_STRIDE}")
        p("s_mov_b32 s39, 0x00020000")

    def kv_clear(self):
        p = self.p
        p(f"s_lshl_b32 {sT0}, {sh}, 15")
        p(f"s_lshl_b32 {sT1}, s3, 9")
        p(f"s_add_u32 {sT0}, {sT0}, {sT1}")
        p(f"s_add_u32 {sT0}, {sT0}, {WS_KV}")
        p(f"s_add_u32 {sT1}, {sT0}, {KV_L}")
        p("v_mov_b32 v36, -1\nv_mov_b32 v37, -1")
        p(f"v_lshlrev_b32 v11, 3, {vLane}")
        p(f"buffer_store_dwordx2 v[36:37], v11, {SWS}, {sT0} offen sc1", "pb")
        p(f"buffer_store_dwordx2 v[36:37], v11, {SWS}, {sT1} offen sc1", "pb")

    def wqkv_setup(self):
        p = self.p
        p(f"s_mul_i32 s0, {sh}, 56")
        p(f"s_mul_i32 s1, {sw}, {16 * 2688}")
        p("s_add_u32 s0, s0, s1")
        p(f"s_lshl_b32 s1, {sw}, 10")
        p(f"s_mul_i32 {sU[7]}, s2, 37")
        p(f"s_lshr_b32 {sU[7]}, {sU[7]}, 8")
        p(f"s_mul_i32 {sU[7]}, {sU[7]}, 7")
        p(f"s_sub_u32 {sU[6]}, s2, {sU[7]}")

    def wqkv_item(self, m, lbase, tag):
        p = self.p
        with self.cap() as c:
            p(f"s_lshl_b32 {sU[7]}, {sU[6]}, 12")
            p(f"s_add_u32 {sU[7]}, {sU[7]}, s1")
            p(f"s_add_u32 m0, {sU[7]}, {lbase}")
            p(f"s_mul_i32 {sU[7]}, {sU[6]}, {64 * 2688}")
            p(f"s_add_u32 {sU[7]}, {sU[7]}, s0")
            if m:
                p(f"s_add_u32 {sU[7]}, {sU[7]}, {896 * m}")
            p(f"buffer_load_dwordx4 v6, {SQ}, {sU[7]} offen lds", tag)
            p(f"s_add_u32 {sU[6]}, {sU[6]}, 1")
            p(f"s_cmp_eq_u32 {sU[6]}, 7")
            p(f"s_cselect_b32 {sU[6]}, 0, {sU[6]}")
        return c.ins

    def wo_items(self):
        p = self.p
        items = []
        for u in range(7):
            with self.cap() as c:
                if u == 0:
                    p(f"s_lshl_b32 {sU[8]}, {sh}, 6")
                    p(f"s_mul_i32 {sU[7]}, {sw}, {16 * 896}")
                    p(f"s_add_u32 {sU[8]}, {sU[8]}, {sU[7]}")
                p(f"s_add_u32 m0, s1, {L_WO + 4 * u * KB}")
                p(f"s_add_u32 {sU[7]}, {sU[8]}, {64 * u * 896}")
                p(f"buffer_load_dwordx4 v7, {SO}, {sU[7]} offen lds", "wo")
            items.append(c.ins)
        return items

    def consts(self):
        p = self.p
        p(f"s_mov_b32 {sONES}, 0x3f803f80")
        p(f"s_mov_b32 {sLOG2E}, 0x3fb8aa3b")
        p(f"s_mov_b32 {sEPS6}, 0x358637bd")
        p(f"s_mov_b32 {sHI}, 0xffff0000")
        p("s_mov_b32 s52, 0x10000000")
        p("s_mov_b32 s53, 0x10000000")
        p("s_mov_b32 s54, 0")
        p("s_mov_b32 s55, -1")

    def ready(self, base):
        p = self.p
        p(f"s_lshl_b32 {sT2}, {sh}, 4")
        p(f"s_add_u32 {sT2}, {sT2}, s2")
        p(f"s_lshl_b32 {sT2}, {sT2}, 7")
        p(f"s_add_u32 {sT2}, {sT2}, {base}")
        p(f"s_cmp_eq_u32 {sw}, 0")
        p(f"s_cselect_b32 {sT2}, {sT2}, {OOB}")
        p(f"s_add_u32 {sT5}, {sE}, {sfast}")
        p(f"s_add_u32 {sT5}, {sT5}, 1")
        p(f"v_mov_b32 v14, {sT5}")
        p("s_mov_b64 exec, 1")
        p(f"buffer_store_dword v14, {vL16}, {SWS}, {sT2} offen sc1")
        p("s_mov_b64 exec, -1")

    def pack_b_loads(self):
        p = self.p
        p(f"s_mul_i32 {sT0}, s5, {16 * 3584}")
        p(f"s_lshl_b32 {sT1}, {sh}, 8")
        p(f"s_add_u32 {sT0}, {sT0}, {sT1}")
        p(f"s_lshl_b32 {sT1}, s4, 7")
        p(f"s_add_u32 {sT0}, {sT0}, {sT1}")
        p(f"buffer_load_dwordx4 a[40:43], v8, {S1}, {sT0} offen")
        p(f"buffer_load_dwordx4 a[44:47], v8, {S1}, {sT0} offen offset:64")
        p(f"s_mul_i32 {sU[1]}, {sh}, 112")
        p(f"s_mul_i32 {sT1}, s4, 56")
        p(f"s_add_u32 {sU[1]}, {sU[1]}, {sT1}")
        p(f"s_add_u32 {sU[1]}, {sU[1]}, s5")
        p(f"s_lshl_b32 {sU[1]}, {sU[1]}, 10")
        p(f"s_add_u32 {sU[1]}, {sU[1]}, {WS_P1}")
        p(f"s_cmp_lt_u32 {sh}, 14")
        p(f"s_cselect_b32 s22, {WS_BYTES}, 0")
        p("s_mov_b32 s20, s32\ns_mov_b32 s21, s33")
        self.tr_addrs("v4", "v5")

    def pack_c_loads(self):
        p = self.p
        p(f"s_and_b32 {sU[5]}, {srq}, 1")
        p(f"s_lshl_b32 {sU[5]}, {sU[5]}, 6")
        p(f"s_add_u32 {sU[5]}, {sU[5]}, s3")
        p(f"s_mul_i32 {sU[0]}, {sU[5]}, {16 * 896}")
        p(f"s_lshl_b32 {sU[2]}, {scb}, 7")
        p(f"s_add_u32 {sU[0]}, {sU[0]}, {sU[2]}")
        p(f"s_mul_i32 {sU[2]}, {scb}, 112")
        p(f"s_add_u32 {sU[2]}, {sU[2]}, {sU[5]}")
        p(f"s_lshl_b32 {sU[2]}, {sU[2]}, 11")
        p(f"s_add_u32 {sU[2]}, {sU[2]}, {WS_P2}")
        p(f"s_cmp_lt_u32 {sU[5]}, 112")
        p(f"s_cselect_b32 {sU[0]}, {sU[0]}, {OOB}")
        p(f"s_cselect_b32 {sU[2]}, {sU[2]}, {OOB}")
        p(f"buffer_load_dwordx4 a[48:51], v7, {S2}, {sU[0]} offen")
        p(f"buffer_load_dwordx4 a[52:55], v7, {S2}, {sU[0]} offen offset:64")

    def pack_b_items(self):
        items = [self.transpose_block(lambda lo, k, r=r: A(r + lo, k), "v4", "v5") for r in (40, 44)]
        items.append([Ins(f"buffer_store_dwordx4 a[40:43], {vL16}, {SPK}, {sU[1]} offen sc1", "pb"),
                      Ins(f"s_add_u32 {sU[1]}, {sU[1]}, {28 * KB}")])
        items.append([Ins(f"buffer_store_dwordx4 a[44:47], {vL16}, {SPK}, {sU[1]} offen sc1", "pb")])
        return items

    def pack_c_items(self):
        items = [self.transpose_block(lambda lo, k, r=r: A(r + lo, k), "v4", "v5") for r in (48, 52)]
        items.append([Ins(f"buffer_store_dwordx4 a[48:51], {vL16}, {SPK}, {sU[2]} offen sc1", "pb")])
        items.append([Ins(f"buffer_store_dwordx4 a[52:55], {vL16}, {SPK}, {sU[2]} offen offset:1024 sc1", "pb")])
        return items

    def dma_items(self, vaddr, srd, first, count, tag, stm):
        p = self.p
        items = []
        for u in range(count):
            with self.cap() as c:
                if u == 0:
                    p(f"s_mul_i32 {stm}, {sw}, {count * KB}")
                if u % 4 == 0:
                    p(f"s_add_u32 m0, {stm}, {(first + u) * KB}")
                p(f"buffer_load_dwordx4 {vaddr}, {srd}, m0 offen offset:{(u % 4) * KB} sc1 lds", tag)
            items.append(c.ins)
        return items

    def w1_items(self):
        p = self.p
        items = []
        for s in range(28):
            with self.cap() as c:
                if s == 0:
                    p(f"s_lshl_b32 s24, {sh}, 2")
                    p(f"s_add_u32 s24, s24, {sw}")
                    p(f"s_mul_i32 s24, s24, {28 * KB}")
                    p(f"s_add_u32 s24, s24, {WS_P1}")
                elif s % 4 == 0:
                    p(f"s_add_u32 s24, s24, {4 * KB}")
                p(f"buffer_load_dwordx4 {w1reg(s)}, {vL16}, {SPK}, s24 offen offset:{(s % 4) * KB} sc1", "w1")
            items.append(c.ins)
        return items

    def pack_d_loads(self):
        p = self.p
        p(f"s_mul_i32 {sT2}, s5, {16 * 896}")
        p(f"s_lshl_b32 {sT1}, {sh}, 6")
        p(f"s_add_u32 {sT2}, {sT2}, {sT1}")
        p(f"s_mul_i32 {sT1}, {sh}, 28")
        p(f"s_add_u32 {sT1}, {sT1}, s5")
        p(f"s_lshl_b32 {sT1}, {sT1}, 10")
        p(f"s_add_u32 {sU[9]}, {sT1}, {WS_PO}")
        p("s_cmp_eq_u32 s4, 0")
        p(f"s_cselect_b32 {sT2}, {OOB}, {sT2}")
        p(f"s_cselect_b32 {sU[9]}, {OOB}, {sU[9]}")
        p(f"buffer_load_dwordx4 v[32:35], v7, {SO}, {sT2} offen")
        if self.opt.get("mall", 1):
            p(f"s_lshl_b32 {sT0}, {sh}, 6")
            p(f"s_add_u32 {sT0}, {sT0}, s3")
            p(f"s_lshr_b32 {sT1}, {sT0}, 1")
            p(f"s_mul_i32 {sT1}, {sT1}, 2688")
            p(f"s_and_b32 {sT0}, {sT0}, 1")
            p(f"s_mul_i32 {sT0}, {sT0}, 384")
            p(f"s_add_u32 {sT0}, {sT0}, {sT1}")
            p("s_mov_b64 exec, 0xf")
            p(f"buffer_load_dword v10, v9, {SQ}, {sT0} offen", "touch")
            p("s_mov_b64 exec, -1")

    def pack_d_items(self):
        return [[Ins(f"buffer_store_dwordx4 v[32:35], {vL16}, {SPK}, {sU[9]} offen sc1", "pb")]]

    def touch_items(self, base, lines, per=16):
        p = self.p
        with self.cap() as c:
            p(f"s_mul_i32 {sU[7]}, {srh}, {per}")
            p(f"s_add_u32 {sU[7]}, {sU[7]}, {sh}")
            p(f"s_lshl_b32 {sU[7]}, {sU[7]}, 2")
            p(f"s_add_u32 {sU[7]}, {sU[7]}, {sw}")
            p(f"s_mul_i32 {sU[7]}, {sU[7]}, {lines * 128}")
            p(f"s_add_u32 {sU[7]}, {sU[7]}, {base}")
            assert lines < 32
            p(f"s_mov_b64 exec, {(1 << lines) - 1}")
            p(f"buffer_load_dword v10, v9, {SG}, {sU[7]} offen", "touch")
            p("s_mov_b64 exec, -1")
        return [c.ins]

    def startup(self):
        p = self.p
        p(f"s_getreg_b32 {sfast}, hwreg(HW_REG_XCC_ID, 0, 4)")
        self.wqkv_setup()
        self.pack_b_loads()
        self.pack_c_loads()
        self.pack_d_loads()
        nk0 = self.opt.get("nk0", 2)
        for u in range(nk0):
            p.add(self.wqkv_item(1, L_WK, "wk"))
        p.wait_vm("x")
        p("s_waitcnt lgkmcnt(0)")
        self.consts()
        self.stamp("x_landed")
        for s in range(28):
            p(f"ds_read_b128 {V(64 + 4 * s)}, v{20 + (s & 3)} offset:{(s >> 2) * 4096}")
        for a in range(4):
            p(f"ds_read_b64 {A(56 + 2 * a, 2)}, v{24 + a}")
        for r in range(52, 56):
            p(f"v_mov_b32 v{r}, 0")
        p.wait_ds()
        p("s_barrier")
        with self.cap() as c:
            for i in range(112):
                p(f"v_dot2c_f32_bf16 v{52 + (i & 1)}, {sONES}, v{64 + i}")
                p(f"v_dot2c_f32_bf16 v{54 + (i & 1)}, v{64 + i}, v{64 + i}")
            p("v_add_f32 v52, v52, v53")
            p("v_add_f32 v54, v54, v55")
            self.both_halves("v52", "v54", None)
            self.stats_finish("v52", "v53", "v56", "v58")
            p("v_rsq_f32 v58, v58")
            p("v_mul_f32_e64 v56, -v56, v58")
            p("v_mov_b32 v59, v58")
            p("v_mov_b32 v57, v56")
            for i in range(0, 112 if not self.opt.get("noln") else 8, 2):
                t = 16 + 4 * ((i >> 1) & 1)
                for k in range(2):
                    p(f"v_lshlrev_b32 v{t + 2 * k}, 16, v{64 + i + k}")
                    p(f"v_and_b32 v{t + 2 * k + 1}, {sHI}, v{64 + i + k}")
                for k in range(2):
                    p(f"v_pk_fma_f32 {V(t + 2 * k, 2)}, {V(t + 2 * k, 2)}, v[58:59], v[56:57]")
                for k in range(2):
                    p(f"v_cvt_pk_bf16_f32 v{64 + i + k}, v{t + 2 * k}, v{t + 2 * k + 1}")
        main = groups(c.ins, 4)
        n = len(main)
        wk = [self.wqkv_item(1, L_WK, "wk") for u in range(nk0, 7)]
        wv = [self.wqkv_item(2, L_WV, "wv") for u in range(7)]
        gk = n * self.opt.get("gk", 60) // 100
        with self.cap() as c1:
            self.kv_clear()
        packs = [c1.ins] + self.pack_d_items() + self.pack_b_items() + self.pack_c_items()
        with self.cap() as c2:
            p(f"s_mul_i32 {sT0}, {sh}, {28 * KB}")
            p(f"s_add_u32 {sT1}, {sT0}, {WS_PO - L_WO}")
            p(f"v_add_u32 v8, {sT1}, {vL16}")
        p.add(spread(main, [(wk + wv, 0, gk), (packs + [c2.ins], gk + 2, n - 2)]))
        self.stamp("ln_done")
        p.wait_vm(["wk", "wv"])
        p("s_barrier")
        self.stamp("wkv_landed")

    def phi(self, acc, out, tmp, scale=None, pk=None):
        p = self.p
        for r0 in range(0, 16, 2):
            rr = (r0, r0 + 1)
            a = {r: f"v{acc + r}" for r in rr}
            t = {r: f"v{tmp + (r & 3)}" for r in rr}
            a2, t2 = V(acc + r0, 2), V(tmp + (r0 & 3), 2)
            if pk is not None:
                k2 = V(pk, 2)
                if scale is None:
                    p(f"v_pk_add_f32 {a2}, {a2}, {k2} op_sel_hi:[1,0]")
                else:
                    sc, hi = scale(r0)
                    p(f"v_pk_fma_f32 {a2}, {a2}, {sc}, {k2} op_sel_hi:[1,{hi},0]")
                p(f"v_pk_mul_f32 {t2}, {a2}, {k2} op_sel:[0,1] op_sel_hi:[1,1]")
            else:
                for r in rr:
                    if scale is None:
                        p(f"v_add_f32 {a[r]}, {sEPS6}, {a[r]}")
                    else:
                        p(f"v_fma_f32 {a[r]}, {a[r]}, {scale(r)}, {sEPS6}")
                for r in rr:
                    p(f"v_mul_f32 {t[r]}, {sLOG2E}, {a[r]}")
            for r in rr:
                p(f"v_exp_f32 {t[r]}, {t[r]} clamp")
            for r in rr:
                p(f"v_max_f32 {a[r]}, {sEPS6}, {a[r]}")
            if pk is not None:
                p(f"v_pk_add_f32 {a2}, {a2}, {t2}")
            else:
                for r in rr:
                    p(f"v_add_f32 {a[r]}, {a[r]}, {t[r]}")
            p(f"v_cvt_pk_bf16_f32 v{out + (r0 >> 1)}, {a[r0]}, {a[r0 + 1]}")

    def v_pack(self):
        p = self.p
        for r in range(8):
            p(f"v_cvt_pk_bf16_f32 v{32 + r}, v{32 + 2 * r}, v{33 + 2 * r}")
        p(f"s_mov_b64 exec, {sM28}")
        for r in range(8):
            p(f"v_mov_b32 v{32 + r}, {sONES}")
        p("s_mov_b64 exec, -1")

    def kv_addrs(self, layer, a0, a1, a2):
        p = self.p
        p(f"s_lshl_b32 {sT0}, {sw}, 10")
        p(f"v_add_u32 {a0}, {sT0}, {vS16}")
        p(f"s_lshl_b32 {sT0}, {sw}, 12")
        p(f"v_add_u32 {a1}, {sT0}, {vS16}")
        p(f"v_lshlrev_b32 {a2}, 3, {vLane}")
        p(f"s_lshl_b32 {sT0}, {sh}, 15")
        p(f"s_lshl_b32 {sT1}, {sw}, 9")
        p(f"s_add_u32 {sT0}, {sT0}, {sT1}")
        p(f"s_add_u32 s6, {sT0}, {WS_KV + layer * KV_L}")
        p(f"s_lshl_b32 {sT1}, {sg}, 1")
        p(f"s_add_u32 {sT1}, {sT1}, {srh}")
        p(f"s_lshl_b32 {sT1}, {sT1}, 11")
        p(f"s_add_u32 s7, {sT1}, s6")

    def kv_publish(self, kvacc, a0, a1, a2):
        p = self.p
        p(f"{MFMA} {kvacc(0, 16)}, {V(16)}, {V(32)}, 0")
        p(f"{MFMA} {kvacc(0, 16)}, {V(20)}, {V(36)}, {kvacc(0, 16)}")
        for q in range(4):
            p(f"ds_write_b128 {a0}, {kvacc(4 * q, 4)} offset:{S_KVP + q * 4096}")
        p.wait_ds()
        p("s_barrier")
        for u in range(4):
            p(f"ds_read_b128 {V(32 + 4 * u)}, {a1} offset:{S_KVP + u * 1024}")
        for r in (0, 2):
            p(f"v_pk_add_f32 {V(32 + r, 2)}, {V(32 + r, 2)}, {V(36 + r, 2)}")
        for r in (0, 2):
            p(f"v_pk_add_f32 {V(40 + r, 2)}, {V(40 + r, 2)}, {V(44 + r, 2)}")
        for r in (0, 2):
            p(f"v_pk_add_f32 {V(32 + r, 2)}, {V(32 + r, 2)}, {V(40 + r, 2)}")
        p("v_cvt_pk_bf16_f32 v28, v32, v33")
        p("v_cvt_pk_bf16_f32 v29, v34, v35")
        p(f"buffer_store_dwordx2 v[28:29], {a2}, {SWS}, s7 offen sc1", "kvpub")

    def o_addrs(self):
        p = self.p
        p(f"s_mul_i32 {sT0}, {sh}, 7")
        p(f"v_lshrrev_b32 v16, 5, {vLane}")
        p(f"v_add_u32 v16, {sT0}, v16")
        p(f"v_and_b32 v17, 31, {vLane}")
        p("v_lshlrev_b32 v17, 4, v17")
        p("v_and_b32 v18, 1, v16")
        p("v_lshl_add_u32 v17, v18, 9, v17")
        p("v_lshrrev_b32 v16, 1, v16")
        for j in range(4):
            p(f"v_add_u32 v18, {j}, v16")
            p("v_and_b32 v19, 1, v18")
            p("v_lshrrev_b32 v18, 1, v18")
            p("v_lshl_add_u32 v18, v18, 10, v17")
            p(f"v_lshl_add_u32 v{56 + j}, v19, 3, v18")
        p(f"s_lshr_b32 {sT0}, {sw}, 1")
        p(f"s_lshl_b32 {sT0}, {sT0}, 10")
        p(f"s_and_b32 {sT1}, {sw}, 1")
        p(f"s_lshl_b32 {sT1}, {sT1}, 3")
        p(f"s_add_u32 {sT0}, {sT0}, {sT1}")
        p(f"v_add_u32 v60, {sT0}, {vS16}")
        p(f"s_lshl_b32 {sT0}, {stb}, 7")
        p(f"s_lshl_b32 {sT1}, {sh}, 2")
        p(f"s_add_u32 {sT0}, {sT0}, {sT1}")
        p(f"s_add_u32 s3, {sT0}, {G_FO}")

    def gather_items(self, G, a2):
        p = self.p
        items = []
        for u in range(0, 16, 2):
            with self.cap() as c:
                p(f"s_add_u32 {sT5}, {sg}, {u // 2}")
                p(f"s_and_b32 {sT5}, {sT5}, 7")
                p(f"s_lshl_b32 {sT5}, {sT5}, 12")
                p(f"s_add_u32 {sT5}, {sT5}, s6")
                p(f"buffer_load_dwordx2 {V(G + 2 * u, 2)}, {a2}, {SWS}, {sT5} offen sc1")
                p(f"buffer_load_dwordx2 {V(G + 2 * u + 2, 2)}, {a2}, {SWS}, {sT5} offen offset:2048 sc1")
            items.append(c.ins)
        return items

    def kv_finish(self, layer, G, a2):
        p = self.p

        def sums():
            for r in range(16, 21):
                p(f"v_mov_b32 v{r}, 0")
            for u in range(16):
                for k in range(2):
                    p(f"v_dot2c_f32_bf16 v{16 + 2 * k}, {sT3}, v{G + 2 * u + k}")
                    p(f"v_dot2c_f32_bf16 v{17 + 2 * k}, {sT4}, v{G + 2 * u + k}")
                p(f"v_max3_u32 v20, v20, v{G + 2 * u}, v{G + 2 * u + 1}")
            p("v_cmp_eq_u32 vcc, -1, v20")
        p(f"s_mov_b32 {sT3}, 0x3f80")
        p(f"s_mov_b32 {sT4}, 0x3f800000")
        lo, lb, lp = p.label("kvspin"), p.label("kvback"), p.label("kvloop")
        sums()
        p(f"s_cbranch_vccnz {lo}")
        p(f"{lb}:")
        with self.cap() as c:
            p(f"{lo}:")
            p(f"s_mov_b32 {sCnt}, {slim}")
            p(f"{lp}:")
            for it in self.gather_items(G, a2):
                p.add(it)
            p("s_waitcnt vmcnt(0)")
            sums()
            p(f"s_cbranch_vccz {lb}")
            p(f"s_sub_u32 {sCnt}, {sCnt}, 1")
            p(f"s_cmp_lg_u32 {sCnt}, 0")
            p(f"s_cbranch_scc1 {lp}")
            p(f"s_mov_b32 {slim}, 1")
            p(f"s_branch {lb}")
        self.tail.extend(c.ins)
        self.stamp(f"kv_seen{layer}")
        p("v_cvt_pk_bf16_f32 v20, v16, v17")
        p("v_cvt_pk_bf16_f32 v21, v18, v19")
        p(f"ds_write_b64 v60, v[20:21] offset:{S_KVS}")
        p.wait_vm("wo")
        p.wait_ds()
        p("s_barrier")
        p(f"ds_read_b128 {V(24)}, {vS16} offset:{S_KVS}")
        p(f"ds_read_b128 {V(28)}, {vS16} offset:{S_KVS + 1024}")
        p(f"{MFMA} {V(32, 16)}, {V(24)}, {V(48)}, 0")
        p(f"{MFMA} {V(32, 16)}, {V(28)}, {V(52)}, {V(32, 16)}")
        p("v_mov_b32 v16, v44")
        p("v_mov_b32 v17, v44")
        p("v_permlane32_swap_b32 v16, v17")
        p(f"v_add_f32 v16, {sEPS6}, v17")
        p("v_rcp_f32 v16, v16")
        for r in range(0, 16, 2):
            p(f"v_pk_mul_f32 {V(32 + r, 2)}, {V(32 + r, 2)}, v[16:17] op_sel_hi:[1,0]")
        for r in range(8):
            p(f"v_cvt_pk_bf16_f32 v{20 + r}, v{32 + 2 * r}, v{33 + 2 * r}")
        st = [f"buffer_store_dwordx2 {V(20 + 2 * j, 2)}, v{56 + j}, {SG}, {sHB} offen" for j in range(3)]
        st += ["s_mov_b32 exec_hi, 0", f"buffer_store_dwordx2 {V(26, 2)}, v59, {SG}, {sHB} offen",
               "s_mov_b64 exec, -1"]
        self.publish(st)
        self.flag("s3", 1 + layer)
        self.stamp(f"o_pub{layer}")

    def single_pass(self, acc, frag, nfrag, vaddr, off, second, areg, first, last, transposed, zero):
        rd = lambda s: self.trread(frag(s % nfrag, 0), frag(s % nfrag, 2), vaddr, off + s * KB, second)
        head = []
        for s in range(first, first + nfrag - 1):
            head += rd(s)
        main = []
        for s in range(first, last):
            w, a = frag(s % nfrag, None), areg(s)
            c = 0 if (zero and s == first) else acc
            g = [Ins(f"{MFMA} {acc}, {w}, {a}, {c}" if transposed else f"{MFMA} {acc}, {a}, {w}, {c}")]
            if s + nfrag - 1 < last:
                g += rd(s + nfrag - 1)
            main.append(g)
        return head, main

    def qkv0(self):
        p = self.p
        rd = []
        for s in range(28):
            f = (s % 3) * 8
            rd.append((self.trread(A(f, 2), A(f + 2, 2), "v62", L_WK + s * KB, 256),
                       self.trread(A(f + 4, 2), A(f + 6, 2), "v62", L_WV + s * KB, 256)))
        head = rd[0][0] + rd[0][1] + rd[1][0] + rd[1][1]
        main = []
        for s in range(28):
            f = (s % 3) * 8
            for k in range(2):
                acc = V(16 + 16 * k, 16)
                g = [Ins(f"{MFMA} {acc}, {V(64 + 4 * s)}, {A(f + 4 * k)}, {acc if s else 0}")]
                if s + 2 < 28:
                    g += rd[s + 2][k]
                main.append(g)
        with self.cap() as c:
            self.kv_addrs(0, "v60", "v61", "v11")
            p(f"s_cmp_ge_u32 {sh}, 14")
            p(f"s_cselect_b32 {sT2}, {sh}, {scb}")
            p(f"s_cselect_b32 {sT3}, 0, {7 * 2048}")
            p(f"s_lshl_b32 {sT2}, {sT2}, 11")
            p(f"v_and_b32 v56, 15, {vLane}")
            p(f"v_bfe_u32 v57, {vLane}, 4, 1")
            p(f"v_mul_u32_u24 v58, {sT3}, v57")
            p("v_lshl_add_u32 v58, v56, 7, v58")
            p(f"v_add_u32 v58, {sT2}, v58")
            p(f"s_lshl_b32 {sT2}, {sg}, 8")
            p("v_lshlrev_b32 v56, 11, v56")
            p("v_lshl_add_u32 v56, v57, 7, v56")
            p(f"v_add_u32 v56, {sT2}, v56")
            p(f"v_cndmask_b32 v58, v58, v56, {sMPAD}")
            p(f"s_mov_b32 {sU[3]}, {WS_RB}")
        setup = groups(c.ins[:13]) + [c.ins[13:16]] + groups(c.ins[16:])
        with self.cap() as c1:
            self.poll_load("v58", SWS, sU[3], 1, 59)
        with self.cap() as c2:
            p.wait_vm("pb")
            p("s_barrier")
            self.ready(WS_RB)
        gr = self.opt.get("gr", 4)
        self.touch = {0: [], 1: [], 2: [], 3: [], 4: []}
        self.touch[self.opt.get("to", 3)] += self.touch_items(G_O, 14)
        self.touch[self.opt.get("tx", 3)] += self.touch_items(G_X, 18)
        wq = [self.wqkv_item(0, L_WQ, "wq") for u in range(7)]
        p.add(head)
        p.add(spread(main, [([c2.ins], gr, gr), (wq + self.touch[1], gr + 1, 50), (setup, gr + 2, 50)]))
        self.stamp("kv_gemm0")
        p.add(c1.ins)
        p(f"v_mov_b32 v52, {sEPS6}")
        p(f"v_mov_b32 v53, {sLOG2E}")
        self.phi(16, 16, 48, pk=52)
        self.v_pack()
        p.wait_vm("wq")
        self.kv_publish(lambda lo, k: A(24 + lo, k), "v60", "v61", "v11")
        self.stamp("kv_pub0")
        p("v_mov_b32 v13, v63")
        self.apoll_end("v58", SWS, sU[3], 1, 1, 59)
        p(f"v_cmp_ne_u32 vcc, {sfast}, v59")
        p("s_cmp_eq_u32 vcc_hi, 0")
        self.stamp_flush()
        p("s_cbranch_scc1 L_slow" if self.force_slow else "s_cbranch_scc0 L_slow")

    def take(self, n):
        out, self.bulk = self.bulk[:n], self.bulk[n:]
        return out

    def q0(self):
        p = self.p
        afrag = lambda i, lo: A(4 * i) if lo is None else A(4 * i + lo, 2)
        head, main = self.single_pass(V(48, 16), afrag, 4, "v13", 0, 256, lambda s: V(64 + 4 * s), 0, 28, True, True)
        with self.cap() as c:
            p(f"v_mov_b32 v32, {sEPS6}")
            p(f"v_mov_b32 v33, {sLOG2E}")
            self.phi(48, 48, 36, pk=32)
            p(f"v_cndmask_b32 v54, v54, 0, {sMPAD}")
            p(f"v_cndmask_b32 v55, v55, 0, {sMPAD}")
            self.o_addrs()
        tail = groups(c.ins, 6)
        gg = self.opt.get("gg", 34)
        self.bulk = self.dma_items("v8", SPK, 84, 7, "wo", sU[5]) + self.w1_items() + self.w2_items()
        p.add(head)
        p.add(spread(main + tail, [(self.touch[2] + self.take(self.opt.get("bq", 13)), 0, gg - 1),
                                   (self.gather_items(64, "v11"), gg, gg + 8)]))
        for it in self.touch[3] + self.take(self.opt.get("b1", 8)):
            p.add(it)
        self.stamp("q_done0")

    def make_selector(self):
        p = self.p
        p("v_mov_b32 v15, 0")
        p("s_mov_b32 exec_lo, 0x00100001")
        p("s_mov_b32 exec_hi, 0x00100001")
        p(f"v_mov_b32 v15, {sONES}")
        p("s_mov_b64 exec, -1")
        for r in range(4):
            p(f"v_accvgpr_write_b32 a{32 + r}, v15")

    def colsum_qkv(self):
        p = self.p
        p(f"s_min_u32 {sU[0]}, {sw}, 2")
        p(f"s_mul_i32 {sU[0]}, {sU[0]}, {28 * KB}")
        p(f"v_add_u32 v60, {sU[0]}, {vTrA}")
        rd = lambda s: self.trread(V(32 + 4 * (s % 4), 2), V(34 + 4 * (s % 4), 2), "v60", s * KB)
        p.add(rd(0) + rd(1) + rd(2))
        self.make_selector()
        for s in range(28):
            p(f"{MFMA16} {A(36)}, {A(32)}, {V(32 + 4 * (s % 4))}, {A(36) if s else 0}")
            if s + 3 < 28:
                p.add(rd(s + 3))
        p(f"s_lshl_b32 {sU[0]}, {sw}, 9")
        p(f"v_lshlrev_b32 v60, 3, {vLane}")
        p(f"v_add_u32 v60, {L_S + S_STAT}, v60")
        p(f"v_add_u32 v61, {sU[0]}, v60")
        p("v_accvgpr_read_b32 v40, a36")
        self.split_words("v40", "v42", "v43", "v41", False, False)
        p("ds_write_b64 v61, v[42:43]")

    def colsum_qkv_fetch(self):
        p = self.p
        p(f"v_lshlrev_b32 v13, 3, {vLane}")
        p(f"v_add_u32 v13, {L_S + S_STAT}, v13")
        p(f"ds_read_b64 {V(vCSQ + 2, 2)}, v13")
        p(f"ds_read_b64 {V(vCSQ + 4, 2)}, v13 offset:512")
        p(f"ds_read_b64 {V(vCSQ, 2)}, v13 offset:1024")

    def colsum_w1_items(self):
        p = self.p
        items = [[Ins(f"{MFMA16} {A(36)}, {A(32)}, {w1reg(s)}, {A(36) if s else 0}")] for s in range(28)]
        with self.cap() as c:
            p("v_accvgpr_read_b32 v62, a36")
            self.split_words("v62", f"v{vCS1}", f"v{vCS1 + 1}", "v63", False, False)
        items.append(c.ins)
        return items

    def qkv1(self):
        p = self.p
        p(f"v_min_u32 v13, 27, {vLane}")
        p("v_lshlrev_b32 v13, 2, v13")
        p(f"s_lshl_b32 {sT0}, {stb}, 7")
        p(f"s_add_u32 {sT0}, {sT0}, {G_FX}")
        WF = [152, 156, 160, 164, 168, 172]

        def wf(s, k):
            r = WF[3 * (s % 2) + k]
            if k == 2:
                return self.trread(V(r, 2), V(r + 2, 2), vTrB, s * KB)
            return self.trread(V(r, 2), V(r + 2, 2), vTrA, (L_WK, L_WV)[k] + s * KB)
        p.add(wf(0, 0) + wf(0, 1) + wf(0, 2))
        self.poll("v13", SG, sT0, 2)
        self.stamp("x2_seen")
        RING, NR = 96, 14

        def ld(s):
            q = sub()
            if s % 4 == 0:
                q(f"s_add_u32 s4, {sXB}, {s * KB}")
            q(f"buffer_load_dwordx4 {V(RING + 4 * (s % NR))}, {vL16}, {SG}, s4 offen offset:{(s % 4) * KB} sc1")
            return q.ins
        LEAD = self.opt.get("lead", 6)
        for s in range(LEAD):
            p.add(ld(s))
        stl = [[Ins(f"buffer_load_dwordx4 {V(64 + 4 * u)}, {vL16}, {SG}, {sSTB} offen offset:{u * KB} sc1")]
               for u in range(2)]
        with self.cap() as st:
            for i in range(2, 7):
                p(f"v_add_f32 v{64 + (i & 1)}, v{64 + (i & 1)}, v{64 + i}")
            p("v_add_f32 v64, v64, v65")
            self.stats_finish("v64", "v65", "v66", "v67")
            p("v_rsq_f32 v88, v67")
            self.split_words("v66", "v92", "v93", "v65", True, True)
            p("v_mov_b32 v94, 0")
            p("v_mov_b32 v95, 0")
            p("v_cvt_pk_bf16_f32 v80, v88, v88")
            p(f"v_and_b32 v64, {sHI}, v80")
            p("v_sub_f32 v64, v88, v64")
            p("v_cvt_pk_bf16_f32 v81, v64, v64")
            p(f"v_and_b32 v65, {sHI}, v81")
            p("v_sub_f32 v65, v64, v65")
            p("v_and_b32 v80, 0xffff, v80")
            p(f"v_and_or_b32 v80, v81, {sHI}, v80")
            p("v_cvt_pk_bf16_f32 v81, v65, 0")
            p("v_mov_b32 v82, 0")
            p("v_mov_b32 v83, 0")
            p(f"v_mov_b32 v84, {sONES}")
            p(f"v_cndmask_b32 v84, v84, 0, {sMPAD}")
            p("v_mov_b32 v85, v84")
            p("v_mov_b32 v86, 0")
            p("v_mov_b32 v87, 0")
            p(f"{MFMA} {V(64, 16)}, {V(80)}, {V(84)}, 0")
            self.kv_addrs(1, "v89", "v90", "v91")
            for m, dst in ((1, 80), (2, 84)):
                p(f"v_mov_b32 v{dst}, v{vCSQ + 2 * m}")
                p(f"v_mov_b32 v{dst + 1}, v{vCSQ + 2 * m + 1}")
        main = []
        for s in range(28):
            o = 3 * (s % 2)
            a = V(RING + 4 * (s % NR))
            nk = 3 if s < NR else 2
            nk2 = 3 if s + 1 < NR else 2
            for k in range(nk):
                acc = V(16 + 16 * k, 16)
                c = acc if s else 0
                g = [Ins(f"{MFMA} {acc}, {a}, {V(WF[o + k])}, {c}" if k < 2 else f"{MFMA} {acc}, {V(WF[o + k])}, {a}, {c}")]
                if s + 1 < 28 and k < nk2:
                    g += wf(s + 1, k)
                main.append(g)
        seq = [ld(s) for s in range(LEAD, 14)] + stl + [ld(s) for s in range(14, 28)]
        slots = []
        gpos = 0
        for i, it in enumerate(seq):
            s = i + LEAD - 2
            if s >= 14:
                gpos = max(gpos, 3 * (s - 14) + 2)
            slots.append(([it], gpos, gpos))
            gpos += 2
        p.add(spread(main, slots + [(groups(st.ins), 30, len(main) - 2)]))
        p(f"{MFMA} {V(16, 16)}, {V(92)}, {V(80)}, {V(16, 16)}")
        p(f"{MFMA} {V(32, 16)}, {V(92)}, {V(84)}, {V(32, 16)}")
        self.stamp("kv_gemm1")
        vfrag = lambda i, lo: V(152 + 4 * i) if lo is None else V(152 + 4 * i + lo, 2)
        head, main = self.single_pass(V(48, 16), vfrag, 4, vTrB, 0, 512, lambda s: V(RING + 4 * (s % NR)),
                                      NR, 28, True, False)
        p.add(head)
        p(f"v_mov_b32 v172, {sEPS6}")
        p(f"v_mov_b32 v173, {sLOG2E}")
        p(f"v_mov_b32 v80, v{vCSQ}")
        p(f"v_mov_b32 v81, v{vCSQ + 1}")
        self.phi(16, 16, 168, lambda r: (V(64 + r, 2), 1), pk=172)
        for r in range(0, 16, 2):
            p(f"v_pk_mul_f32 {V(32 + r, 2)}, {V(32 + r, 2)}, {V(64 + r, 2)}")
        self.v_pack()
        self.kv_publish(lambda lo, k: V(64 + lo, k), "v89", "v90", "v91")
        self.stamp("kv_pub1")
        main.append([Ins(f"{MFMA} {V(48, 16)}, {V(80)}, {V(92)}, {V(48, 16)}")])
        with self.cap() as c:
            self.phi(48, 48, 168, lambda r: (V(88, 2), 0), pk=172)
            p(f"v_cndmask_b32 v54, v54, 0, {sMPAD}")
            p(f"v_cndmask_b32 v55, v55, 0, {sMPAD}")
            self.o_addrs()
        tail = groups(c.ins, 6)
        gg = self.opt.get("gg1", 12)
        p.add(spread(main + tail, [(self.gather_items(96, "v91"), gg, gg + 8)]))
        self.stamp("q_done1")

    def wo_phase(self, layer, pre=None, streams=()):
        p = self.p
        RES = 104
        p(f"s_lshl_b32 s5, {sh}, 11")
        p(f"s_add_u32 s5, s5, {sXB}")
        if layer == 1:
            p(f"buffer_load_dwordx4 {V(RES)}, {vL16}, {SG}, s5 offen sc1")
            p(f"buffer_load_dwordx4 {V(RES + 4)}, {vL16}, {SG}, s5 offen offset:1024 sc1")
        else:
            for r in range(8):
                p(f"v_accvgpr_read_b32 v{RES + r}, a{56 + r}")
        p(f"s_lshr_b32 {sT1}, {sh}, 2")
        p(f"s_lshl_b32 {sT1}, {sT1}, 10")
        p(f"s_and_b32 {sT2}, {sh}, 3")
        p(f"s_lshl_b32 {sT2}, {sT2}, 2")
        p(f"s_add_u32 {sT1}, {sT1}, {sT2}")
        p(f"s_add_u32 s6, {sT1}, {sSTB}")
        p(f"s_lshl_b32 {sT0}, {stb}, 7")
        p(f"s_lshl_b32 {sT1}, {sh}, 3")
        p(f"s_add_u32 {sT1}, {sT0}, {sT1}")
        p(f"s_add_u32 s7, {sT1}, {G_FX}")
        p(f"s_add_u32 {sT0}, {sT0}, {G_FO}")
        p(f"v_and_b32 v13, 15, {vLane}")
        p("v_lshlrev_b32 v13, 2, v13")
        rd = [self.trread(V(48 + (s % 3) * 4, 2), V(50 + (s % 3) * 4, 2), vTrB, (L_WO - L_WQ) + s * KB)
              for s in range(28)]
        p.add(rd[0] + rd[1])
        if pre:
            pre()
        self.poll("v13", SG, sT0, 1 + layer)
        self.stamp(f"o_seen{layer}")
        RING = 64
        LEAD = self.opt.get("leadwo", 8)

        def ld(s):
            q = sub()
            if s % 4 == 0:
                q(f"s_add_u32 s4, {sHB}, {s * KB}")
            q(f"buffer_load_dwordx4 {V(RING + 4 * s)}, {vL16}, {SG}, s4 offen offset:{(s % 4) * KB} sc1")
            return q.ins
        for s in range(LEAD):
            p.add(ld(s))
            p(f"v_lshlrev_b32 v{16 + 2 * s}, 16, v{RES + s}" if s < 8 else "; -")
            p(f"v_and_b32 v{17 + 2 * s}, {sHI}, v{RES + s}" if s < 8 else "; -")
        assert LEAD >= 8
        main = []
        for s in range(28):
            g = [Ins(f"{MFMA} {V(16, 16)}, {V(48 + (s % 3) * 4)}, {V(RING + 4 * s)}, {V(16, 16)}")]
            if s + LEAD < 28:
                g += ld(s + LEAD)
            if s + 2 < 28:
                g += rd[s + 2]
            main.append(g)
        p.add(spread(main, list(streams)))
        self.stamp(f"wo_gemm{layer}")
        for r in range(8):
            p(f"v_cvt_pk_bf16_f32 v{32 + r}, v{16 + 2 * r}, v{17 + 2 * r}")
        self.publish([f"buffer_store_dwordx4 {V(32)}, {vL16}, {SG}, s5 offen",
                      f"buffer_store_dwordx4 {V(36)}, {vL16}, {SG}, s5 offen offset:1024"])
        p("v_pk_mul_f32 v[42:43], v[16:17], v[16:17]")
        for r in range(2, 16, 2):
            p(f"v_pk_fma_f32 v[42:43], {V(16 + r, 2)}, {V(16 + r, 2)}, v[42:43]")
            p(f"v_pk_add_f32 v[16:17], v[16:17], {V(16 + r, 2)}")
        p("v_add_f32 v40, v16, v17")
        p("v_add_f32 v42, v42, v43")
        self.both_halves("v40", "v42", None)
        self.publish([f"buffer_store_dword v40, {vL16}, {SG}, s6 offen"])
        self.flag("s7", 1 + 2 * layer, 2)
        self.stamp(f"x1_pub{layer}")

    def w2_items(self):
        p = self.p
        items = []
        order = list(range(8, 28)) + list(range(8))
        for i, j in enumerate(order):
            for ch in range(2):
                with self.cap() as c:
                    if i == 0 and ch == 0:
                        p(f"s_mul_i32 s25, {scb}, {224 * KB}")
                        p(f"s_lshl_b32 s26, {sw}, 12")
                        p(f"s_add_u32 s25, s25, s26")
                        p(f"s_add_u32 s25, s25, {WS_P2}")
                    if j % 2 == 0 and ch == 0:
                        p(f"s_add_u32 s26, s25, {(j >> 1) * 16 * KB}")
                    p(f"buffer_load_dwordx4 {w2reg(j, ch)}, {vL16}, {SPK}, s26 offen offset:{(j & 1) * 2048 + ch * 1024} sc1",
                      "w2")
                items.append(c.ins)
        return items

    def ffn(self, layer, pre=None, extra=None):
        p = self.p
        p(f"v_and_b32 v13, 15, {vLane}")
        p("v_min_u32 v13, 13, v13")
        p("v_lshlrev_b32 v13, 3, v13")
        p(f"v_lshrrev_b32 v14, 4, {vLane}")
        p("v_lshl_add_u32 v107, v14, 7, v13")
        p(f"s_mul_i32 {sT0}, {srh}, {112 * KB}")
        p(f"s_add_u32 {sT0}, {sT0}, {G_X - L_S}")
        p(f"v_add_u32 v110, {sT0}, {vL16}")
        p(f"s_lshl_b32 s5, {sw}, 10")
        p(f"s_add_u32 s5, s5, {L_S}")
        p(f"s_lshl_b32 {sT0}, {sh}, 13")
        p(f"s_lshl_b32 {sT1}, {sw}, 11")
        p(f"s_add_u32 s3, {sT0}, {sT1}")
        p(f"s_mul_i32 {sT0}, {srh}, {4 * 112 * KB}")
        p(f"s_add_u32 s3, s3, {sT0}")
        p(f"s_lshl_b32 {sT0}, {srh}, 10")
        p(f"s_lshl_b32 {sT1}, {sw}, 6")
        p(f"s_add_u32 {sT0}, {sT0}, {sT1}")
        p(f"s_lshl_b32 {sT1}, {sh}, 2")
        p(f"s_add_u32 {sT0}, {sT0}, {sT1}")
        p(f"s_add_u32 s2, {sT0}, {G_FH}")
        p(f"v_mov_b32 v84, v{vCS1}")
        p(f"v_mov_b32 v85, v{vCS1 + 1}")
        for r in (86, 87, 90, 91):
            p(f"v_mov_b32 v{r}, 0")
        p(f"v_and_b32 v108, 31, {vLane}")
        p("v_lshlrev_b32 v108, 4, v108")
        p(f"v_add_u32 v108, {L_S + S_STAT}, v108")
        p(f"s_and_b32 {sT0}, {sxs}, 3")
        p(f"s_lshl_b32 {sT0}, {sT0}, 9")
        p(f"v_add_u32 v109, {sT0}, v108")
        self.ffn2_setup(layer)
        p.wait_ds()
        p("s_barrier")
        if pre:
            pre()
        p(f"s_lshl_b32 {sT0}, {srh}, 9")
        p(f"s_add_u32 {sT0}, {sT0}, {G_FX}")
        self.poll("v107", SG, sT0, 1 + 2 * layer, 2)
        self.stamp(f"x1_seen{layer}")

        Q, P = 10, 2

        def quad(k):
            q = sub()
            if k % Q == 0:
                q("s_mov_b32 m0, s5")
                if k:
                    q(f"v_add_u32 v110, {Q * 4 * KB}, v110")
            else:
                q(f"s_add_u32 m0, m0, {4 * KB}")
            q(f"buffer_load_dwordx4 v110, {SG}, m0 offen sc1 lds", f"c{k // P}")
            return q.ins
        for k in range(4):
            p.add(quad(k))
        stl = [[Ins(f"buffer_load_dwordx4 {V(112 + 4 * u)}, {vL16}, {SG}, {sSTB} offen offset:{u * KB} sc1")]
               for u in range(4)]
        with self.cap() as st:
            for i in range(2, 14):
                p(f"v_add_f32 v{112 + (i & 1)}, v{112 + (i & 1)}, v{112 + i}")
            p("v_add_f32 v112, v112, v113")
            self.stats_finish("v112", "v113", "v114", "v115")
            self.split_words("v114", "v116", "v117", "v113", True, True)
            p("v_rsq_f32 v118, v115")
            p("v_sqrt_f32 v119, v115")
            p(f"v_mul_f32_e64 v118, -v118, {sLOG2E}")
            p("ds_write_b128 v109, v[116:119]", "stw")
        XF, NX, D = 48, 5, 4
        rdx = lambda n: Ins(f"ds_read_b128 {V(XF + 4 * (n % NX))}, {vS16} offset:{(n % (4 * Q)) * KB}", f"x{n}")

        def boundary(j):
            q = sub()
            q.wait_vm(f"c{j}")
            if j == 3:
                q.wait_ds("stw")
            q("s_barrier")
            return q.ins
        p.add(quad(4))
        p.add(quad(5))
        p.add(boundary(0))
        p.add([rdx(n) for n in range(D)])
        main = []
        pos = {}
        for n in range(112):
            o, s = divmod(n, 28)
            acc = V(16 + 16 * (o & 1), 16)
            g = []
            if n % 2 == 0:
                g.append(Pseudo("wait_ds", f"x{n + 1}"))
            g.append(Ins(f"{MFMA} {acc}, {w1reg(s)}, {V(XF + 4 * (n % NX))}, {acc if s else 0}"))
            m = n + D
            if m < 112:
                if m % 8 == 0:
                    g += boundary(m // 8)
                g.append(rdx(m))
                if m == 24:
                    g += [Ins(f"ds_read_b128 {V(68 + 4 * k)}, v108 offset:{k * 512}") for k in range(4)]
                if m % 4 == 1 and m >= 8:
                    k = m // 4 + 6
                    if k < 28:
                        g += quad(k)
            if s == 24:
                g += [Ins(f"v_mov_b32 v88, v{68 + 4 * o}"), Ins(f"v_mov_b32 v89, v{69 + 4 * o}")]
            pos[n] = len(main)
            main.append(g)
            if s == 27:
                main.append([Ins(f"{MFMA} {acc}, {V(84)}, {V(88)}, {acc}")])

        hsc1 = self.opt.get("h0sc1", 1) if layer == 0 else self.opt.get("h1sc1", 1)

        def epilogue(o):
            tb = ((o & 1) << 1) | (o >> 1)
            acc = 16 + 16 * (o & 1)
            c1, sd = f"v{70 + 4 * o}", f"v{71 + 4 * o}"
            with self.cap() as c:
                for r0 in range(0, 16, 2):
                    rr = (r0, r0 + 1)
                    t = {r: f"v{92 + (r & 3)}" for r in rr}
                    a = {r: f"v{acc + r}" for r in rr}
                    for r in rr:
                        p(f"v_mul_f32 {t[r]}, {a[r]}, {c1}")
                    for r in rr:
                        p(f"v_exp_f32 {t[r]}, {t[r]}")
                    for r in rr:
                        p(f"v_fma_f32 {t[r]}, {t[r]}, {sd}, {sd}")
                    for r in rr:
                        p(f"v_rcp_f32 {t[r]}, {t[r]}")
                    for r in rr:
                        p(f"v_mul_f32 {a[r]}, {a[r]}, {t[r]}")
                    p(f"v_cvt_pk_bf16_f32 v{96 + (r0 >> 1)}, {a[r0]}, {a[r0 + 1]}")
            items = groups(c.ins)
            with self.cap() as c:
                p(f"s_add_u32 {sT0}, s3, {tb * 112 * KB}")
                self.publish([f"buffer_store_dwordx4 {V(96)}, {vL16}, {SG}, {sT0} offen",
                              f"buffer_store_dwordx4 {V(100)}, {vL16}, {SG}, {sT0} offen offset:1024"], f"h{o}",
                             always_sc1=hsc1)
            items.append(c.ins)
            with self.cap() as c:
                p(f"s_add_u32 {sT1}, s2, {tb * 256}")
                self.flag(sT1, 1 + layer, wait=f"h{o}", st=sT2)
            return items, c.ins
        streams = [([quad(6), quad(7)], 0, 3), (stl[:2], 1, 4), (stl[2:], 6, 8), (groups(st.ins), 13, 19)]
        eps = [epilogue(o) for o in range(4)]
        E = self.opt.get("epend", 23)
        F = self.opt.get("fsc1", 18) if hsc1 else self.opt.get("fpl", 6)
        for o in range(3):
            streams.append((eps[o][0], pos[28 * (o + 1)] + 2, pos[28 * (o + 1) + E]))
        for o in range(2):
            g = pos[28 * (o + 2) + F]
            streams.append(([eps[o][1]], g, g))
        self.hl = self.h_loads()
        G1 = min(F + self.opt.get("fd", 9), 21)
        with self.cap() as c1:
            self.poll_load("v104", SG, sU[4], 1, 109)
        with self.cap() as c2:
            self.apoll_end("v104", SG, sU[4], 1 + layer, 1, 109)
            self.stamp(f"h_seen{layer}")
        streams.insert(0, ([c1.ins], pos[84 + G1], pos[84 + G1]))
        streams.append(([c2.ins], pos[84 + G1 + 5], pos[84 + G1 + 5]))
        n0 = (27 - (G1 + 5)) // 2 + 1
        streams.append((self.hl[:n0], pos[84 + G1 + 6], pos[84 + 27] + 1))
        self.n0 = n0
        if extra:
            streams += extra(pos)
        if self.opt.get("fine"):
            self.stamp(f"f1_first{layer}")
            woven = spread(main, streams)
            k = 0
            for x in woven:
                p.add([x])
                if x.kind == "mfma":
                    k += 1
                    if k % 29 == 0 and k < 116:
                        self.stamp(f"f1_o{k // 29 - 1}_{layer}")
        else:
            p.add(spread(main, streams))
        self.stamp(f"ffn1_mfma{layer}")
        self.ffn2(layer, eps[3][0], eps[2][1], eps[3][1], F)

    def ffn2_setup(self, layer):
        p = self.p
        p(f"s_mul_i32 {sU[3]}, {srq}, {2 * 112 * KB}")
        p(f"s_lshl_b32 {sT3}, {sw}, 11")
        p(f"s_add_u32 {sU[3]}, {sU[3]}, {sT3}")
        p(f"s_lshl_b32 {sU[4]}, {srq}, 9")
        p(f"s_lshl_b32 {sT3}, {sw}, 6")
        p(f"s_add_u32 {sU[4]}, {sU[4]}, {sT3}")
        p(f"s_add_u32 {sU[4]}, {sU[4]}, {G_FH}")
        p(f"v_min_u32 v104, 13, {vLane}")
        p("v_lshlrev_b32 v104, 2, v104")
        p(f"s_lshr_b32 {sT3}, {srq}, 1")
        p(f"s_lshl_b32 {sT3}, {sT3}, 2")
        p(f"s_and_b32 {sT4}, {srq}, 1")
        p(f"s_add_u32 {sT3}, {sT3}, {sT4}")
        p(f"s_mul_i32 {sU[5]}, {sT3}, {28 * KB}")
        p(f"s_lshl_b32 {sT3}, {scb}, 12")
        p(f"s_lshl_b32 {sT4}, {sw}, 7")
        p(f"s_add_u32 {sT3}, {sT3}, {sT4}")
        p(f"s_add_u32 {sU[5]}, {sU[5]}, {sT3}")
        p(f"s_add_u32 {sU[5]}, {sU[5]}, {G_X}")
        if layer == 0:
            p(f"s_mul_i32 {sU[6]}, {srq}, {14 * KB}")
            p(f"s_lshr_b32 {sT3}, {scb}, 2")
            p(f"s_lshl_b32 {sT3}, {sT3}, 10")
            p(f"s_add_u32 {sU[6]}, {sU[6]}, {sT3}")
            p(f"s_and_b32 {sT3}, {scb}, 3")
            p(f"s_lshl_b32 {sT3}, {sT3}, 2")
            p(f"s_add_u32 {sT3}, {sT3}, {sT4}")
            p(f"s_add_u32 {sU[6]}, {sU[6]}, {sT3}")
            p(f"s_add_u32 {sU[6]}, {sU[6]}, {G_ST}")
            p(f"s_lshl_b32 {sT3}, {srq}, 8")
            p(f"s_lshl_b32 {sT4}, {scb}, 4")
            p(f"s_add_u32 {sT3}, {sT3}, {sT4}")
            p(f"s_lshl_b32 {sT4}, {sw}, 2")
            p(f"s_add_u32 {sT3}, {sT3}, {sT4}")
            p(f"s_add_u32 {sU[7]}, {sT3}, {G_FX}")
        else:
            p(f"s_lshl_b32 {sT3}, {sg}, 2")
            p(f"s_add_u32 {sT3}, {sT3}, {srq}")
            p(f"s_lshl_b32 {sT3}, {sT3}, 3")
            p(f"s_add_u32 {sT3}, {sT3}, {sw}")
            p(f"s_mul_i32 {sT3}, {sT3}, {8 * 896}")
            p(f"s_lshl_b32 {sT4}, {scb}, 7")
            p(f"s_add_u32 {sU[7]}, {sT3}, {sT4}")
        p(f"s_lshl_b32 {sT3}, {sw}, 13")
        p(f"v_add_u32 v105, {sT3}, {vS16}")
        if layer == 0:
            p(f"v_lshrrev_b32 v14, 5, {vLane}")
            p("v_lshlrev_b32 v14, 7, v14")
            p("v_xor_b32 v105, v105, v14")
            p("v_mov_b32 v106, v105")
        else:
            p("v_xor_b32 v106, 0x80, v105")
        p(f"v_and_b32 v13, 7, {vLane}")
        p("v_lshlrev_b32 v13, 4, v13")
        p(f"s_lshl_b32 {sT3}, {sw}, 7")
        p(f"v_add_u32 v13, {sT3}, v13")
        p(f"v_bfe_u32 v14, {vLane}, 3, 1")
        p("v_lshlrev_b32 v15, 7, v14")
        p("v_xor_b32 v13, v13, v15")
        p(f"v_lshl_add_u32 v13, v14, {9 if layer == 0 else 10}, v13")
        p(f"v_lshrrev_b32 v14, 4, {vLane}")
        p("v_lshl_add_u32 v13, v14, 11, v13")
        p(f"v_add_u32 v111, {L_S}, v13")

    def h_loads(self):
        out = []
        for n in range(56):
            th, j = divmod(n, 28)
            q = sub()
            if j % 2 == 0:
                q(f"s_add_u32 {sU[9]}, {sU[3]}, {th * 112 * KB + (j >> 1) * 8 * KB}")
            q(f"buffer_load_dwordx4 {V(112 + 4 * (n % 16))}, {vL16}, {SG}, {sU[9]} offen offset:{(j % 2) * KB} sc1")
            out.append(q.ins)
        return out

    def ffn2(self, layer, ep3, flag2, flag3, F):
        p = self.p
        ACC = ((16, 48), (32, 64))
        lds = self.hl
        LEAD = self.opt.get("leadh", 8)
        k0 = min(len(ep3) - 1, 9 * max(0, LEAD - self.n0))
        if k0:
            p.add(spread(ep3[:k0], [(lds[self.n0:LEAD], 0, k0 - 6)]))
            ep3 = ep3[k0:]
        LEAD = max(LEAD, self.n0)
        RES = (88, 84)

        with self.cap() as su:
            p(f"v_and_b32 v107, 7, {vLane}")
            p(f"v_bfe_u32 v110, {vLane}, 3, 1")
            if layer == 0:
                p(f"v_lshrrev_b32 v108, 4, {vLane}")
                p("v_lshlrev_b32 v108, 9, v108")
                p("v_lshl_add_u32 v108, v107, 4, v108")
                p("v_lshlrev_b32 v107, 4, v107")
                p("v_lshl_add_u32 v107, v110, 9, v107")
            else:
                p("v_mul_u32_u24 v108, 896, v107")
                p("v_lshlrev_b32 v107, 4, v107")
                p("v_lshl_add_u32 v107, v110, 3, v107")
                p(f"v_lshrrev_b32 v110, 3, {vLane}")
                p("v_lshl_add_u32 v108, v110, 4, v108")
            p(f"v_lshrrev_b32 v110, 4, {vLane}")
            p("v_lshl_add_u32 v107, v110, 10, v107")

        def resid(th):
            q = sub()
            q(f"s_add_u32 {sT3}, {sU[5]}, {th * 2 * 28 * KB}")
            if layer == 0:
                q(f"buffer_load_dwordx4 {V(RES[th])}, v107, {SG}, {sT3} offen sc1")
            else:
                q(f"buffer_load_dwordx2 {V(RES[th], 2)}, v107, {SG}, {sT3} offen sc1")
                q(f"buffer_load_dwordx2 {V(RES[th] + 2, 2)}, v107, {SG}, {sT3} offen offset:512 sc1")
            return q.ins

        def mm(th):
            main = []
            for j in range(28):
                n = 28 * th + j
                b = V(112 + 4 * (n % 16))
                for ch in range(2):
                    acc = V(ACC[th][ch], 16)
                    g = [Ins(f"{MFMA} {acc}, {w2reg(j, ch)}, {b}, {acc if j else 0}")]
                    if ch == 1:
                        if n + LEAD < 56 and not (th == 0 and 28 <= n + LEAD < 28 + HOLD):
                            g += lds[n + LEAD]
                    main.append(g)
            return main

        def reduce(th, woven):
            area = th * 16 * KB
            a0, a1 = ACC[th]
            quad = [a0, a0 + 4, a0 + 8, a0 + 12, a1, a1 + 4, a1 + 8, a1 + 12]
            T = 92
            items = []
            with self.cap() as c:
                for k in range(8):
                    p(f"ds_write_b128 v{105 + (k & 1)}, {V(quad[k])} offset:{area + k * KB}")
                for r in range(4):
                    p(f"v_lshlrev_b32 v{T + 2 * r}, 16, v{RES[th] + r}")
                    p(f"v_and_b32 v{T + 2 * r + 1}, {sHI}, v{RES[th] + r}")
            items += groups(c.ins)
            with self.cap() as c:
                p.wait_ds()
                p("s_barrier")
                for u in range(4):
                    for k in range(2):
                        p(f"ds_read_b128 {V(quad[2 * u + k])}, v111 offset:{area + u * 8 * KB + k * (KB if layer == 0 else 512)}")
            items.append(c.ins)
            with self.cap() as c:
                for u in range(4):
                    for k in range(2):
                        if woven:
                            for r in range(4):
                                p(f"v_add_f32 v{T + 4 * k + r}, v{T + 4 * k + r}, v{quad[2 * u + k] + r}")
                        else:
                            for r in (0, 2):
                                p(f"v_pk_add_f32 {V(T + 4 * k + r, 2)}, {V(T + 4 * k + r, 2)}, {V(quad[2 * u + k] + r, 2)}")
                for r in range(4):
                    p(f"v_cvt_pk_bf16_f32 v{80 + r}, v{T + 2 * r}, v{T + 2 * r + 1}")
            items += groups(c.ins)
            if layer == 1:
                with self.cap() as c:
                    p(f"s_add_u32 {sT3}, {sU[7]}, {th * 32 * 896}")
                    p(f"buffer_store_dwordx4 {V(80)}, v108, {SOUT}, {sT3} offen {'sc1' if self.opt.get('outsc1', 1) else ''}")
                items.append(c.ins)
                return items, []
            with self.cap() as c:
                p(f"s_add_u32 {sT4}, {sU[5]}, {th * 2 * 28 * KB}")
                self.publish([f"buffer_store_dwordx4 {V(80)}, v107, {SG}, {sT4} offen"], f"x{th}")
            items.append(c.ins)
            with self.cap() as c:
                p(f"v_add_f32 v100, v{T}, v{T + 1}")
                p(f"v_mul_f32 v101, v{T}, v{T}")
                p(f"v_fmac_f32 v101, v{T + 1}, v{T + 1}")
                for r in range(2, 8):
                    p(f"v_add_f32 v100, v100, v{T + r}")
                    p(f"v_fmac_f32 v101, v{T + r}, v{T + r}")
                p("v_add_f32_dpp v100, v100, v100 row_ror:8 row_mask:0xf bank_mask:0xf")
                p("v_add_f32_dpp v101, v101, v101 row_ror:8 row_mask:0xf bank_mask:0xf")
                p("v_permlane16_swap_b32 v100, v101")
                p("v_add_f32 v100, v100, v101")
                p("v_mov_b32 v101, v100")
                p("v_permlane32_swap_b32 v100, v101")
                p("v_add_f32 v100, v100, v101")
            items += groups(c.ins)
            with self.cap() as c:
                p(f"s_add_u32 {sT3}, {sU[6]}, {th * 7 * KB}")
                self.publish(["s_mov_b64 exec, 0x00ff00ff", f"buffer_store_dword v100, v108, {SG}, {sT3} offen",
                              "s_mov_b64 exec, -1"], f"x{th}")
            items.append(c.ins)
            with self.cap() as c:
                p(f"s_add_u32 {sT3}, {sU[7]}, {th * 128}")
                self.flag(sT3, 2, wait=f"x{th}", tmp=102, st=sT4)
            return items, c.ins
        E3 = max(4, len(ep3) * self.opt.get("e3", 20) // 89)
        F3 = E3 + (F + 6 if F > 10 else 12)
        GP = min(max(self.opt.get("gp", 36), F3 + 14), 52)
        GP -= GP % 2
        HOLD = max(0, GP // 2 - (28 - LEAD) + 1)
        with self.cap() as c1:
            p(f"s_add_u32 {sT0}, {sU[4]}, 256")
            self.poll_load("v104", SG, sT0, 1, 109)
        with self.cap() as c2:
            self.apoll_end("v104", SG, sT0, 1 + layer, 1, 109)
            for n in range(28, 28 + HOLD):
                p.add(lds[n])
        bar = [Ins("s_barrier")]
        p.add(spread(mm(0), [([bar], 0, 0), (ep3, 1, E3), ([flag2], min(F + 2, E3 - 1), min(F + 2, E3 - 1)),
                             ([flag3], F3, F3), (groups(su.ins) + [resid(0)], E3 + 1, GP - 8),
                             ([c1.ins], GP - 6, GP - 6), ([c2.ins], GP + 1, GP + 1)]))
        self.stamp(f"th0_done{layer}")
        r0, f0 = reduce(0, True)
        streams = [([resid(1)], 0, 0), (r0, 1, 40), ([bar], 46, 46)]
        if f0:
            streams.append(([f0], 52, 52))
        if layer == 1 and self.opt.get("wb", 0) == 4:
            with self.cap() as c:
                p(f"s_lshl_b32 {sT0}, {srh}, 5")
                p(f"s_add_u32 {sT0}, {sT0}, {sh}")
                p(f"s_lshl_b32 {sT0}, {sT0}, 2")
                p(f"s_add_u32 {sT0}, {sT0}, {G_FO + 64}")
                p(f"s_cmp_eq_u32 {sw}, 0")
                p(f"s_cselect_b32 {sT0}, {sT0}, {OOB}")
                self.flag(sT0, 9, wait="none", tmp=102, st=sT4)
            g = self.opt.get("wbg", 30)
            streams.append(([c.ins], g, g))
        p.add(spread(mm(1), streams))
        self.stamp(f"th1_done{layer}")
        r1, f1 = reduce(1, False)
        for it in r1:
            p.add(it)
        p.add(f1)
        self.stamp(f"ffn2_done{layer}")

    def spare0(self):
        p = self.p
        if not self.opt.get("h0sc1", 1):
            p(f"s_and_b32 {sT0}, {sh}, 1")
            p(f"s_lshl_b32 {sT0}, {sT0}, 2")
            p(f"s_add_u32 {sT0}, {sT0}, {sw}")
            p(f"s_mul_i32 {sT0}, {sT0}, {14 * KB}")
            p(f"s_mul_i32 {sT1}, {srh}, {4 * 112 * KB}")
            p(f"s_add_u32 {sT0}, {sT0}, {sT1}")
            p(f"v_lshlrev_b32 v64, 7, {vLane}")
            for tb in (0, 2, 1, 3):
                for off in (0, 6 * KB):
                    p(f"s_add_u32 {sT1}, {sT0}, {G_H + tb * 112 * KB + off}")
                    p(f"buffer_load_dword v65, v64, {SG}, {sT1} offen sc1")
        self.colsum_qkv()
        p.wait_ds()
        p("s_barrier")
        self.colsum_qkv_fetch()
        p("s_waitcnt vmcnt(0) lgkmcnt(0)")

    def spare1(self):
        p = self.p
        wb = self.opt.get("wb", 0)
        if not wb:
            return
        p(f"s_and_b32 {sT0}, {sh}, 1")
        p(f"s_or_b32 {sT0}, {sT0}, {srh}")
        p(f"s_or_b32 {sT0}, {sT0}, {sw}")
        p(f"s_cmp_lg_u32 {sT0}, 0")
        p(f"s_cbranch_scc1 L_fin{self.sfx}")
        if wb == 4:
            p(f"v_and_b32 v13, 15, {vLane}")
            p("v_min_u32 v13, 13, v13")
            p(f"v_bfe_u32 v14, {vLane}, 4, 1")
            p("v_lshl_add_u32 v13, v14, 5, v13")
            p("v_lshlrev_b32 v16, 2, v13")
            p(f"s_mov_b32 {sT0}, {G_FO + 64}")
            self.poll("v16", SG, sT0, 9)
            p("buffer_wbl2 sc1")
            p("s_waitcnt vmcnt(0)")
            return
        p(f"v_and_b32 v13, 15, {vLane}")
        p("v_min_u32 v13, 13, v13")
        p("v_lshlrev_b32 v13, 3, v13")
        p(f"v_lshrrev_b32 v14, 4, {vLane}")
        p("v_lshl_add_u32 v16, v14, 7, v13")
        p(f"s_mov_b32 {sT0}, {G_FX}")
        self.poll("v16", SG, sT0, 3, 2)
        p(f"s_mov_b32 {sT0}, {G_FX + 512}")
        self.poll("v16", SG, sT0, 3, 2)
        p("buffer_wbl2 sc1")
        p("s_waitcnt vmcnt(0)")
        if wb >= 2:
            p(f"v_and_b32 v13, 15, {vLane}")
            p("v_min_u32 v13, 13, v13")
            p("v_lshlrev_b32 v13, 2, v13")
            p(f"v_lshrrev_b32 v14, 4, {vLane}")
            p("v_lshl_add_u32 v16, v14, 6, v13")
            for tb in ((2, 3) if wb == 2 else (0, 2, 1, 3)):
                for half in range(2):
                    p(f"s_mov_b32 {sT0}, {G_FH + (4 * half + tb) * 256}")
                    self.poll("v16", SG, sT0, 2)
                p("buffer_wbl2 sc1")
                p("s_waitcnt vmcnt(0)")

    def finish(self):
        p = self.p
        p(f"s_or_b32 {sT0}, {sg}, {sh}")
        p(f"s_or_b32 {sT0}, {sT0}, {srh}")
        p(f"s_or_b32 {sT0}, {sT0}, {sw}")
        p(f"s_cmp_lg_u32 {sT0}, 0")
        p(f"s_cbranch_scc1 L_fin{self.sfx}")
        p(f"s_add_u32 {sT0}, {sE}, 64")
        p(f"v_mov_b32 v14, {sT0}")
        p("s_mov_b64 exec, 1")
        p(f"buffer_store_dword v14, {vL16}, {SWS}, 0 offen sc1")
        p("s_mov_b64 exec, -1")
        p(f"L_fin{self.sfx}:")
        if self.pad:
            p("s_waitcnt vmcnt(0)")
            if self.opt.get("amp") == "end":
                p("s_memrealtime s[94:95]")
            p("s_waitcnt lgkmcnt(0)")
            p("s_sub_u32 s94, s94, s96")
            p("s_mul_i32 s94, s94, 4")
            p("s_min_u32 s94, s94, 20000")
            p(f"s_add_u32 s94, s94, {self.pad}")
            p(f"L_pad{self.sfx}:")
            p("s_memrealtime s[98:99]")
            p("s_waitcnt lgkmcnt(0)")
            p("s_sub_u32 s98, s98, s96")
            p(f"s_cmp_lt_u32 s98, s94")
            p(f"s_cbranch_scc1 L_pad{self.sfx}")
        if self.diag:
            p("s_waitcnt vmcnt(0)")
            self.stamp("end")
            self.stamp_flush()
            p(f"s_lshl_b32 {sT0}, {srh}, 4")
            p(f"s_add_u32 {sT0}, {sT0}, {sh}")
            p(f"s_lshl_b32 {sT0}, {sT0}, 3")
            p(f"s_add_u32 {sT0}, {sT0}, {sg}")
            p(f"s_lshl_b32 {sT0}, {sT0}, 2")
            p(f"s_add_u32 {sT0}, {sT0}, {sw}")
            p(f"s_lshl_b32 {sT0}, {sT0}, 7")
            p(f"s_add_u32 {sT0}, {sT0}, {WS_DIAG}")
            p("s_mov_b64 exec, 1")
            for i in range(self.nstamp):
                p(f"v_mov_b32 v14, s{STAMP0 + i}")
                p(f"buffer_store_dword v14, {vL16}, {SWS}, {sT0} offen offset:{4 * i}")
            p(f"v_mov_b32 v14, {1 if self.fast else 0}")
            p(f"buffer_store_dword v14, {vL16}, {SWS}, {sT0} offen offset:120")
            p(f"v_mov_b32 v14, {slim}")
            p(f"buffer_store_dword v14, {vL16}, {SWS}, {sT0} offen offset:124")
            p("s_mov_b64 exec, -1")
        p("s_waitcnt vmcnt(0)")
        p("s_endpgm")

    def body(self):
        p = self.p
        x = self.sfx
        self.q0()

        self.kv_finish(0, 64, "v11")
        self.stamp_flush()
        p(f"s_cmp_ge_u32 {sh}, 14")
        p(f"s_cbranch_scc1 L_spare0{x}")
        assert len(self.bulk) <= 84
        b2 = self.touch[4] + self.take(self.opt.get("b2", 8))

        def pre_wo0():
            for it in b2:
                p.add(it)
            self.colsum_qkv()
        n_before = min(28, 28 + 56 - len(self.bulk))
        cs1 = self.colsum_w1_items()
        b3 = self.take(self.opt.get("b3", 10))
        self.wo_phase(0, pre_wo0, [(cs1[:n_before], 0, 26), (b3, 20, 27)])
        b4 = self.take(max(self.opt.get("b4", 0), len(self.bulk) - 56))

        def pre_ffn0():
            self.colsum_qkv_fetch()
            for it in b4:
                p.add(it)
            for it in cs1[n_before:]:
                p.add(it)
            p(f"v_mov_b32 v84, v{vCS1}")
            p(f"v_mov_b32 v85, v{vCS1 + 1}")
            p.wait_ds()
            p("s_barrier")

        def extra0(pos):
            return [(self.take(100), self.opt.get("w2beg", 10), pos[self.opt.get("w2end", 100)])]
        self.ffn(0, pre_ffn0, extra0)
        p(f"L_layer1{x}:")
        p("s_waitcnt lgkmcnt(0)")
        self.qkv1()
        self.kv_finish(1, 96, "v91")
        p(f"s_cmp_ge_u32 {sh}, 14")
        p(f"s_cbranch_scc1 L_spare1{x}")
        self.wo_phase(1)
        self.ffn(1)
        self.finish()
        p(f"L_spare0{x}:")
        p("s_waitcnt vmcnt(0) lgkmcnt(0)")
        self.spare0()
        p(f"s_branch L_layer1{x}")
        p(f"L_spare1{x}:")
        p("s_waitcnt vmcnt(0) lgkmcnt(0)")
        self.spare1()
        p(f"s_branch L_fin{x}")
        p.add(self.tail)
        self.tail = []

    def build(self):
        p = self.p
        self.prologue()
        self.startup()
        self.qkv0()
        self.body()
        p("L_fastend:")
        p("L_slow:")
        p("s_waitcnt vmcnt(0) lgkmcnt(0)")
        p("s_nop 7")
        self.fast = False
        self.sfx = "_s"
        self.body()
        return finalize(p.ins)


HEADER = f"""; Two layers of (LayerNorm, linear attention, output projection, LayerNorm, SiLU FFN) in one persistent launch.
; @launch grid=(256,1,1) block=(256,1,1) lds={LDS_BYTES}
.amdgcn_target "amdgcn-amd-amdhsa--gfx950"
.text
.globl {NAME}_kernel
.p2align 8
.type {NAME}_kernel,@function
{NAME}_kernel:
"""
FOOTER = f"""
.section .rodata,"a"
.p2align 6
.amdhsa_kernel {NAME}_kernel
  .amdhsa_next_free_vgpr 512
  .amdhsa_next_free_sgpr 102
  .amdhsa_accum_offset 256
  .amdhsa_group_segment_fixed_size 0
  .amdhsa_kernarg_size 72
  .amdhsa_user_sgpr_count 2
  .amdhsa_user_sgpr_kernarg_segment_ptr 1
  .amdhsa_system_sgpr_workgroup_id_x 1
.end_amdhsa_kernel
"""


def generate(**kw):
    g = Gen(**kw)
    lines = g.build()
    return HEADER + "\n".join(lines) + FOOTER, g


if __name__ == "__main__":
    out = sys.argv[1] if len(sys.argv) > 1 else f"cdna_kernels/{NAME}.s"
    kw = {}
    for a in sys.argv[2:]:
        k, _, v = a.partition("=")
        kw[k] = (int(v) if v.lstrip('-').isdigit() else v) if v else True
    text, g = generate(**kw)
    open(out, "w").write(text)
    print("wrote", out, len(text), "bytes;", text.count("\n"), "lines")
```

```python
import sys, os
sys.path.insert(0, os.path.dirname(os.path.abspath(__file__)))
from asmlib import *

NAME = "interleave_layers__linear_attn_block__dense_activation_silu__prompt"
KB = 1024

WS_EPOCH = 0
WS_RA = 0x8000
WS_RB = 0x10000
WS_DIAG = 0x20000
WS_KV = 0x80000
KV_L = 0x80000
WS_PQ = 0x180000
WS_PO = WS_PQ + 16 * 28 * KB
WS_P1 = WS_PO + 14 * 28 * KB
WS_P2 = WS_P1 + 14 * 112 * KB
WS_G = 0x680000
assert WS_P2 + 7 * 224 * KB <= WS_G
OOB = 0x40000000
G_STRIDE = 0x160000
G_H = 0
G_O = 8 * 112 * KB
G_X = G_O + 8 * 28 * KB
G_ST = G_X + 8 * 28 * KB
G_FX = G_ST + 8 * 7 * KB
G_FO = G_FX + 1024
G_FH = G_FO + 1024
G_END = G_FH + 2048
assert G_END <= G_STRIDE
WS_BYTES = WS_G + 8 * G_STRIDE

L_WK, L_WV, L_WQ, L_WO, L_S = 0, 28 * KB, 56 * KB, 84 * KB, 112 * KB
L_XST = 48 * KB
S_KVP, S_KVS = 0, 16 * KB
S_CS = 18 * KB
S_STAT, S_TR = 42 * KB, 44 * KB
LDS_BYTES = 160 * KB

SX, SQ, SO, S1, S2, SOUT, SWS, SG = ("s[8:11]", "s[12:15]", "s[16:19]", "s[20:23]", "s[24:27]", "s[28:31]",
                                     "s[32:35]", "s[36:39]")
sE, sg, sh, srh, sw, sfast, srq, scb, stb, sxs, slim = ("s56", "s57", "s58", "s59", "s60", "s61", "s62", "s63",
                                                        "s64", "s65", "s66")
sT0, sT1, sT2, sT3, sT4, sT5 = "s40", "s41", "s42", "s43", "s44", "s45"
sCnt, sNeed = "s46", "s47"
sONES, sLOG2E, sEPS6, sHI = "s48", "s49", "s50", "s51"
sM28 = "s[52:53]"
sMPAD = "s[54:55]"
sHB, sXB, sSTB = "s67", "s68", "s69"
STAMP0 = 80
sU = [f"s{70 + i}" for i in range(10)]
SPK = "s[20:23]"

vLane, vL16, vTrA, vTrB = "v0", "v1", "v2", "v3"
vCS1 = 4
vCSQ = 6
vS16 = "v12"
vT0, vT1, vT2 = "v13", "v14", "v15"


def V(n, k=4):
    return f"v[{n}:{n + k - 1}]" if k > 1 else f"v{n}"


def A(n, k=4):
    return f"a[{n}:{n + k - 1}]" if k > 1 else f"a{n}"


def w1reg(s, lo=0, k=4):
    return A(224 + 4 * s + lo, k) if s < 8 else V(176 + 4 * (s - 8) + lo, k)


def w2reg(j, ch, lo=0, k=4):
    return A(8 * j + 4 * ch + lo, k)


MFMA = "v_mfma_f32_32x32x16_bf16"
MFMA16 = "v_mfma_f32_16x16x32_bf16"


class Capture:
    def __init__(self, g):
        self.g = g

    def __enter__(self):
        self.saved = self.g.p.ins
        self.g.p.ins = []
        self.ins = self.g.p.ins
        return self

    def __exit__(self, *a):
        self.g.p.ins = self.saved


class Gen:
    def __init__(self, diag=False, force_slow=False, pad=0, part=0, **opt):
        self.p = Prog()
        self.diag = diag
        self.force_slow = force_slow
        self.pad = pad
        self.part = part
        self.opt = opt
        self.nstamp = 0
        self.seen = 0
        self.stamp_names = []
        self.pending = False
        self.tail = []
        self.fast = True
        self.sfx = ""

    def cap(self):
        return Capture(self)

    def stamp(self, name, op="s_memrealtime"):
        if self.opt.get("amp") == name and self.fast:
            self.p("s_memrealtime s[94:95]")
        if not self.diag or not self.fast:
            return
        self.seen += 1
        lo = self.opt.get("from", 18 * self.part)
        if self.seen > 2 and not (lo <= self.seen - 3 < lo + 18):
            return
        self.stamp_flush()
        assert STAMP0 + self.nstamp < 100, "too many stamps"
        if self.opt.get("clk") and self.seen > 1:
            op = "s_memtime"
        self.p(f"{op} s[100:101]")
        self.stamp_names.append(name)
        self.nstamp += 1
        self.pending = True

    def stamp_flush(self):
        if self.diag and self.pending:
            self.p(f"s_mov_b32 s{STAMP0 + self.nstamp - 1}, s100")
            self.pending = False

    def publish(self, stores, tag="pub", always_sc1=False):
        for s in stores:
            self.p(s + (" sc1" if s.startswith("buffer_") and (always_sc1 or not self.fast) else ""), tag)

    def flag(self, soff, val, n=1, wait="pub", tmp=14, st=sT5):
        p = self.p
        p(f"s_add_u32 {st}, {sE}, {val}")
        p(f"v_mov_b32 v{tmp}, {st}")
        if n == 2:
            p(f"v_mov_b32 v{tmp + 1}, {st}")
        op = f"buffer_store_dword v{tmp}" if n == 1 else f"buffer_store_dwordx2 v[{tmp}:{tmp + 1}]"
        p.wait_vm(wait)
        self.publish(["s_mov_b64 exec, 1", f"{op}, {vL16}, {SG}, {soff} offen", "s_mov_b64 exec, -1"], "flag")

    def poll_load(self, vaddr, srd, soff, n, tmp):
        if n == 1:
            self.p(f"buffer_load_dword v{tmp}, {vaddr}, {srd}, {soff} offen sc1")
        else:
            self.p(f"buffer_load_dwordx2 v[{tmp}:{tmp + 1}], {vaddr}, {srd}, {soff} offen sc1")

    def poll_test(self, n, tmp, need, win=3):
        p = self.p
        p(f"v_subrev_u32 v{tmp}, {need}, v{tmp}")
        if n == 2:
            p(f"v_subrev_u32 v{tmp + 1}, {need}, v{tmp + 1}")
            p(f"v_or_b32 v{tmp}, v{tmp}, v{tmp + 1}")
        p(f"v_cmp_lt_u32 vcc, {win}, v{tmp}")

    def spin(self, vaddr, srd, soff, n, tmp, need, done, sleep=0, win=3):
        p = self.p
        lp = p.label("poll")
        p(f"s_mov_b32 {sCnt}, {slim}")
        p(f"{lp}:")
        self.poll_load(vaddr, srd, soff, n, tmp)
        p("s_waitcnt vmcnt(0)")
        self.poll_test(n, tmp, need, win)
        p(f"s_cbranch_vccz {done}")
        if sleep:
            p(f"s_sleep {sleep}")
        p(f"s_sub_u32 {sCnt}, {sCnt}, 1")
        p(f"s_cmp_lg_u32 {sCnt}, 0")
        p(f"s_cbranch_scc1 {lp}")
        p(f"s_mov_b32 {slim}, 1")

    def poll(self, vaddr, srd, soff, need, n=1, tmp=14, sleep=0):
        p = self.p
        ld = p.label("polled")
        p(f"s_add_u32 {sNeed}, {sE}, {need}")
        self.spin(vaddr, srd, soff, n, tmp, sNeed, ld, sleep)
        p(f"{ld}:")

    def apoll_end(self, vaddr, srd, soff, need, n=1, tmp=14, win=3):
        p = self.p
        lo, lb = p.label("aspin"), p.label("aback")
        p(f"s_add_u32 {sNeed}, {sE}, {need}")
        self.poll_test(n, tmp, sNeed, win)
        p(f"s_cbranch_vccnz {lo}")
        p(f"{lb}:")
        with self.cap() as c:
            p(f"{lo}:")
            p("s_nop 4")
            self.spin(vaddr, srd, soff, n, tmp, sNeed, lb, 0, win)
            p(f"s_branch {lb}")
        self.tail.extend(c.ins)

    def trread(self, dst_lo, dst_hi, vaddr, off, second=512):
        return [Ins(f"ds_read_b64_tr_b16 {dst_lo}, {vaddr} offset:{off}"),
                Ins(f"ds_read_b64_tr_b16 {dst_hi}, {vaddr} offset:{off + second}")]

    def transpose_block(self, reg, aw, ar):
        return [Ins(f"ds_write_b128 {aw}, {reg(0, 4)}"),
                Ins(f"ds_read_b64_tr_b16 {reg(0, 2)}, {ar}"),
                Ins(f"ds_read_b64_tr_b16 {reg(2, 2)}, {ar} offset:512")]

    def tr_addrs(self, aw, ar):
        p = self.p
        p(f"s_lshl_b32 {sT0}, {sw}, 10")
        p(f"s_add_u32 {sT0}, {sT0}, {L_S + S_TR}")
        p(f"v_add_u32 {aw}, {sT0}, {vL16}")
        p(f"v_add_u32 {ar}, {sT0}, {vTrA}")

    def both_halves(self, s, q, tmp):
        p = self.p
        p(f"v_permlane32_swap_b32 {s}, {q}")
        p(f"v_add_f32 {s}, {s}, {q}")

    def stats_finish(self, t, u, mean, var):
        p = self.p
        p(f"v_mov_b32 {u}, {t}")
        p(f"v_permlane32_swap_b32 {t}, {u}")
        p(f"v_mul_f32 {mean}, 0x3b124925, {t}")
        p(f"v_mul_f32 {var}, 0x3b124925, {u}")
        p(f"v_fma_f32 {var}, -{mean}, {mean}, {var}")
        p(f"v_max_f32 {var}, 0, {var}")
        p(f"v_add_f32 {var}, 0x3727c5ac, {var}")

    def split_words(self, x, w0, w1, t, neg, xside):
        p = self.p
        s = "-" if neg else ""
        p(f"v_cvt_pk_bf16_f32 {w0}, {s}{x}, {s}{x}")
        p(f"v_and_b32 {t}, {sHI}, {w0}")
        p(f"v_sub_f32 {t}, {s}{x}, {t}" if not neg else f"v_sub_f32_e64 {t}, -{x}, {t}")
        if xside:
            p(f"v_and_b32 {w1}, 0xffff, {w0}")
            p(f"v_cvt_pk_bf16_f32 {t}, {t}, {t}")
            p(f"v_and_or_b32 {w0}, {t}, {sHI}, {w1}")
        else:
            p(f"v_cvt_pk_bf16_f32 {w1}, {t}, 0")

    def prologue(self):
        p = self.p
        p("s_cmp_lt_u32 s2, 256")
        p("s_cbranch_scc1 L_start")
        p("s_endpgm")
        p("L_start:")
        p("s_load_dwordx4 s[40:43], s[0:1], 0")
        p("s_load_dwordx2 s[52:53], s[0:1], 64")
        p("s_load_dwordx2 s[44:45], s[0:1], 16")
        p("s_load_dwordx4 s[48:51], s[0:1], 32")
        p("s_load_dwordx2 s[46:47], s[0:1], 48")
        self.stamp("realtime", "s_memrealtime")
        if self.pad:
            p("s_memrealtime s[96:97]")
            p("s_memrealtime s[94:95]")
        p("s_getpc_b64 s[6:7]")
        p("L_pc:")
        p("v_lshrrev_b32 v13, 6, v0")
        p(f"v_and_b32 {vLane}, 63, v0")
        p(f"v_readfirstlane_b32 {sw}, v13")
        p(f"s_and_b32 {sg}, s2, 7")
        p(f"s_lshr_b32 s3, s2, 3")
        p(f"s_lshl_b32 s4, s3, 2")
        p(f"s_add_u32 s4, s4, {sw}")
        p(f"s_lshl_b32 s4, s4, 9")
        p(f"v_lshlrev_b32 v9, 7, {vLane}")
        p("v_add_u32 v13, s4, v9")
        p("v_min_u32 v13, L_fastend-L_pc-4, v13")
        p("s_mov_b64 exec, 0xf")
        p("global_load_dword v10, v13, s[6:7]")
        p("s_mov_b64 exec, -1")
        p(f"s_and_b32 {sh}, s3, 15")
        p(f"s_lshr_b32 {srh}, s3, 4")
        p(f"s_lshl_b32 s2, {sg}, 1")
        p(f"s_add_u32 s2, s2, {srh}")
        p("s_lshl_b32 s3, s2, 2")
        p(f"s_add_u32 s3, s3, {sw}")
        p("s_min_u32 s5, s3, 55")
        p("s_cmp_ge_u32 s5, 28")
        p("s_cselect_b32 s4, 1, 0")
        p("s_cselect_b32 s6, 28, 0")
        p("s_sub_u32 s5, s5, s6")
        p(f"v_lshrrev_b32 v13, 2, {vLane}")
        p(f"v_and_b32 v15, 3, {vLane}")
        p("v_lshlrev_b32 v15, 4, v15")
        p("v_mul_u32_u24 v14, 2688, v13")
        p("v_add_u32 v6, v14, v15")
        p("v_mul_u32_u24 v14, 896, v13")
        p("v_add_u32 v7, v14, v15")
        p("v_mul_u32_u24 v14, 3584, v13")
        p("v_add_u32 v8, v14, v15")
        p(f"s_cmp_ge_u32 {sh}, 7")
        p(f"s_cselect_b32 s6, 1, 0")
        p(f"s_cselect_b32 s7, 7, 0")
        p(f"s_lshl_b32 {srq}, {srh}, 1")
        p(f"s_add_u32 {srq}, {srq}, s6")
        p(f"s_sub_u32 {scb}, {sh}, s7")
        p(f"s_lshl_b32 {stb}, {srh}, 2")
        p(f"s_and_b32 s6, {sw}, 1")
        p(f"s_lshl_b32 s6, s6, 1")
        p(f"s_lshr_b32 s7, {sw}, 1")
        p(f"s_or_b32 s6, s6, s7")
        p(f"s_add_u32 {sxs}, {stb}, s6")
        p(f"s_add_u32 {stb}, {stb}, {sw}")
        p(f"v_lshlrev_b32 {vL16}, 4, {vLane}")
        p(f"v_lshrrev_b32 v13, 3, {vLane}")
        p("v_mul_u32_u24 v14, 896, v13")
        p("v_lshrrev_b32 v13, 1, v13")
        p(f"v_and_b32 v15, 7, {vLane}")
        p("v_xor_b32 v13, v13, v15")
        p("v_lshl_add_u32 v16, v13, 4, v14")
        p("v_xor_b32 v13, 4, v13")
        p("v_lshl_add_u32 v17, v13, 4, v14")
        p(f"s_lshl_b32 {sU[0]}, {sg}, 3")
        p(f"s_add_u32 {sU[0]}, {sU[0]}, {stb}")
        p(f"s_mul_i32 {sU[0]}, {sU[0]}, {32 * 896}")
        p(f"s_mul_i32 {sU[1]}, {sw}, {28 * KB}")
        p(f"s_add_u32 {sU[1]}, {sU[1]}, {L_XST}")
        p(f"s_cmp_ge_u32 {sh}, 14")
        p(f"s_cselect_b32 {sU[2]}, 7, 0")
        p(f"s_sub_u32 {sU[2]}, {scb}, {sU[2]}")
        p(f"s_mov_b32 s10, {2048 * 896}\ns_mov_b32 s11, 0x00020000")
        p(f"s_mov_b32 s14, {448 * 2688}\ns_mov_b32 s15, 0x00020000")
        p("s_waitcnt lgkmcnt(0)")
        self.stamp("start")
        p("s_mov_b32 s12, s42\ns_mov_b32 s13, s43")
        p("s_mov_b32 s8, s40\ns_mov_b32 s9, s41")
        p(f"s_load_dword {sE}, s[52:53], {WS_EPOCH}")
        for j in range(7):
            p(f"s_lshl_b32 {sU[3]}, {sU[2]}, 7")
            p(f"s_add_u32 {sU[3]}, {sU[3]}, {sU[0]}")
            p(f"s_lshl_b32 {sU[4]}, {sU[2]}, 12")
            p(f"s_add_u32 {sU[4]}, {sU[4]}, {sU[1]}")
            for b in range(4):
                p(f"s_add_u32 m0, {sU[4]}, {b * KB}")
                p(f"s_add_u32 {sU[5]}, {sU[3]}, {b * 8 * 896}")
                p(f"buffer_load_dwordx4 v{16 + (b & 1)}, {SX}, {sU[5]} offen lds", "x")
                if 4 * j + b + 1 == self.opt.get("xa", 4):
                    self.prologue2()
            if j < 6:
                p(f"s_add_u32 {sU[2]}, {sU[2]}, 1")
                p(f"s_cmp_eq_u32 {sU[2]}, 7")
                p(f"s_cselect_b32 {sU[2]}, 0, {sU[2]}")

    def prologue2(self):
        p = self.p
        p(f"s_mul_i32 {sHB}, {stb}, {28 * KB}")
        p(f"s_add_u32 {sHB}, {sHB}, {G_O}")
        p(f"s_mul_i32 {sXB}, {sxs}, {28 * KB}")
        p(f"s_add_u32 {sXB}, {sXB}, {G_X}")
        p(f"s_mul_i32 {sSTB}, {stb}, {7 * KB}")
        p(f"s_add_u32 {sSTB}, {sSTB}, {G_ST}")
        p(f"s_mov_b32 {slim}, 40000")
        p(f"v_add_u32 {vS16}, {L_S}, {vL16}")
        p(f"v_and_b32 v13, 3, {vLane}")
        p("v_lshlrev_b32 v13, 3, v13")
        p(f"v_bfe_u32 v14, {vLane}, 4, 1")
        p("v_lshl_add_u32 v13, v14, 5, v13")
        p(f"v_bfe_u32 v14, {vLane}, 2, 2")
        p("v_lshl_add_u32 v13, v14, 6, v13")
        p(f"v_lshrrev_b32 v14, 5, {vLane}")
        p(f"v_lshl_add_u32 {vTrA}, v14, 8, v13")
        p(f"v_add_u32 {vTrB}, {L_WQ}, {vTrA}")
        p("v_lshl_add_u32 v62, v14, 9, v13")
        p(f"v_add_u32 v63, {L_WQ}, v62")
        p(f"v_and_b32 v13, 31, {vLane}")
        p("v_lshrrev_b32 v14, 3, v13")
        p("v_lshlrev_b32 v14, 10, v14")
        p("v_and_b32 v15, 7, v13")
        p("v_lshl_add_u32 v14, v15, 7, v14")
        p(f"v_add_u32 v14, {sU[1]}, v14")
        p("v_bfe_u32 v13, v13, 1, 3")
        p(f"v_lshrrev_b32 v15, 5, {vLane}")
        p("v_xor_b32 v13, v13, v15")
        for q in range(4):
            p(f"v_xor_b32 v15, {2 * q}, v13")
            p(f"v_lshl_add_u32 v{20 + q}, v15, 4, v14")
        p(f"v_lshrrev_b32 v15, 5, {vLane}")
        p("v_xor_b32 v13, v13, v15")
        p("v_lshl_add_u32 v14, v15, 3, v14")
        p(f"s_min_u32 s6, {sh}, 13")
        p("s_lshr_b32 s7, s6, 1")
        p("s_lshl_b32 s7, s7, 12")
        p("v_add_u32 v14, s7, v14")
        p("s_and_b32 s6, s6, 1")
        p("s_lshl_b32 s6, s6, 2")
        p("v_xor_b32 v13, s6, v13")
        for a in range(4):
            p(f"v_xor_b32 v15, {a}, v13")
            p(f"v_lshl_add_u32 v{24 + a}, v15, 4, v14")
        p(f"s_cmp_lt_u32 {sh}, 14")
        p(f"s_cselect_b32 s18, {448 * 448 * 2}, 0")
        p(f"s_cselect_b32 s22, {448 * 1792 * 2}, 0")
        p(f"s_cselect_b32 s26, {448 * 1792 * 2}, 0")
        for base, src, size in ((16, 44, None), (20, 48, None), (24, 50, None), (28, 46, 2048 * 896),
                                (32, 52, WS_BYTES)):
            p(f"s_mov_b32 s{base}, s{src}")
            p(f"s_mov_b32 s{base + 1}, s{src + 1}")
            if size is not None:
                p(f"s_mov_b32 s{base + 2}, {size}")
            p(f"s_mov_b32 s{base + 3}, 0x00020000")
        p(f"s_mul_i32 s6, {sg}, {G_STRIDE}")
        p(f"s_add_u32 s6, s6, {WS_G}")
        p("s_add_u32 s36, s52, s6")
        p("s_addc_u32 s37, s53, 0")
        p(f"s_mov_b32 s38, {G_STRIDE}")
        p("s_mov_b32 s39, 0x00020000")

    def kv_clear(self):
        p = self.p
        p(f"s_lshl_b32 {sT0}, {sh}, 15")
        p(f"s_lshl_b32 {sT1}, s3, 9")
        p(f"s_add_u32 {sT0}, {sT0}, {sT1}")
        p(f"s_add_u32 {sT0}, {sT0}, {WS_KV}")
        p(f"s_add_u32 {sT1}, {sT0}, {KV_L}")
        p("v_mov_b32 v36, -1\nv_mov_b32 v37, -1")
        p(f"v_lshlrev_b32 v11, 3, {vLane}")
        p(f"buffer_store_dwordx2 v[36:37], v11, {SWS}, {sT0} offen sc1", "pb")
        p(f"buffer_store_dwordx2 v[36:37], v11, {SWS}, {sT1} offen sc1", "pb")

    def wqkv_setup(self):
        p = self.p
        p(f"s_mul_i32 s0, {sh}, 56")
        p(f"s_mul_i32 s1, {sw}, {16 * 2688}")
        p("s_add_u32 s0, s0, s1")
        p(f"s_lshl_b32 s1, {sw}, 10")
        p(f"s_mul_i32 {sU[7]}, s2, 37")
        p(f"s_lshr_b32 {sU[7]}, {sU[7]}, 8")
        p(f"s_mul_i32 {sU[7]}, {sU[7]}, 7")
        p(f"s_sub_u32 {sU[6]}, s2, {sU[7]}")

    def wqkv_item(self, m, lbase, tag):
        p = self.p
        with self.cap() as c:
            p(f"s_lshl_b32 {sU[7]}, {sU[6]}, 12")
            p(f"s_add_u32 {sU[7]}, {sU[7]}, s1")
            p(f"s_add_u32 m0, {sU[7]}, {lbase}")
            p(f"s_mul_i32 {sU[7]}, {sU[6]}, {64 * 2688}")
            p(f"s_add_u32 {sU[7]}, {sU[7]}, s0")
            if m:
                p(f"s_add_u32 {sU[7]}, {sU[7]}, {896 * m}")
            p(f"buffer_load_dwordx4 v6, {SQ}, {sU[7]} offen lds", tag)
            p(f"s_add_u32 {sU[6]}, {sU[6]}, 1")
            p(f"s_cmp_eq_u32 {sU[6]}, 7")
            p(f"s_cselect_b32 {sU[6]}, 0, {sU[6]}")
        return c.ins

    def wo_items(self):
        p = self.p
        items = []
        for u in range(7):
            with self.cap() as c:
                if u == 0:
                    p(f"s_lshl_b32 {sU[8]}, {sh}, 6")
                    p(f"s_mul_i32 {sU[7]}, {sw}, {16 * 896}")
                    p(f"s_add_u32 {sU[8]}, {sU[8]}, {sU[7]}")
                p(f"s_add_u32 m0, s1, {L_WO + 4 * u * KB}")
                p(f"s_add_u32 {sU[7]}, {sU[8]}, {64 * u * 896}")
                p(f"buffer_load_dwordx4 v7, {SO}, {sU[7]} offen lds", "wo")
            items.append(c.ins)
        return items

    def consts(self):
        p = self.p
        p(f"s_mov_b32 {sONES}, 0x3f803f80")
        p(f"s_mov_b32 {sLOG2E}, 0x3fb8aa3b")
        p(f"s_mov_b32 {sEPS6}, 0x358637bd")
        p(f"s_mov_b32 {sHI}, 0xffff0000")
        p("s_mov_b32 s52, 0x10000000")
        p("s_mov_b32 s53, 0x10000000")
        p("s_mov_b32 s54, 0")
        p("s_mov_b32 s55, -1")

    def ready(self, base):
        p = self.p
        p(f"s_lshl_b32 {sT2}, {sh}, 4")
        p(f"s_add_u32 {sT2}, {sT2}, s2")
        p(f"s_lshl_b32 {sT2}, {sT2}, 7")
        p(f"s_add_u32 {sT2}, {sT2}, {base}")
        p(f"s_cmp_eq_u32 {sw}, 0")
        p(f"s_cselect_b32 {sT2}, {sT2}, {OOB}")
        p(f"s_add_u32 {sT5}, {sE}, {sfast}")
        p(f"s_add_u32 {sT5}, {sT5}, 1")
        p(f"v_mov_b32 v14, {sT5}")
        p("s_mov_b64 exec, 1")
        p(f"buffer_store_dword v14, {vL16}, {SWS}, {sT2} offen sc1")
        p("s_mov_b64 exec, -1")

    def pack_b_loads(self):
        p = self.p
        p(f"s_mul_i32 {sT0}, s5, {16 * 3584}")
        p(f"s_lshl_b32 {sT1}, {sh}, 8")
        p(f"s_add_u32 {sT0}, {sT0}, {sT1}")
        p(f"s_lshl_b32 {sT1}, s4, 7")
        p(f"s_add_u32 {sT0}, {sT0}, {sT1}")
        p(f"buffer_load_dwordx4 a[40:43], v8, {S1}, {sT0} offen")
        p(f"buffer_load_dwordx4 a[44:47], v8, {S1}, {sT0} offen offset:64")
        p(f"s_mul_i32 {sU[1]}, {sh}, 112")
        p(f"s_mul_i32 {sT1}, s4, 56")
        p(f"s_add_u32 {sU[1]}, {sU[1]}, {sT1}")
        p(f"s_add_u32 {sU[1]}, {sU[1]}, s5")
        p(f"s_lshl_b32 {sU[1]}, {sU[1]}, 10")
        p(f"s_add_u32 {sU[1]}, {sU[1]}, {WS_P1}")
        p(f"s_cmp_lt_u32 {sh}, 14")
        p(f"s_cselect_b32 s22, {WS_BYTES}, 0")
        p("s_mov_b32 s20, s32\ns_mov_b32 s21, s33")
        self.tr_addrs("v4", "v5")

    def pack_c_loads(self):
        p = self.p
        p(f"s_and_b32 {sU[5]}, {srq}, 1")
        p(f"s_lshl_b32 {sU[5]}, {sU[5]}, 6")
        p(f"s_add_u32 {sU[5]}, {sU[5]}, s3")
        p(f"s_mul_i32 {sU[0]}, {sU[5]}, {16 * 896}")
        p(f"s_lshl_b32 {sU[2]}, {scb}, 7")
        p(f"s_add_u32 {sU[0]}, {sU[0]}, {sU[2]}")
        p(f"s_mul_i32 {sU[2]}, {scb}, 112")
        p(f"s_add_u32 {sU[2]}, {sU[2]}, {sU[5]}")
        p(f"s_lshl_b32 {sU[2]}, {sU[2]}, 11")
        p(f"s_add_u32 {sU[2]}, {sU[2]}, {WS_P2}")
        p(f"s_cmp_lt_u32 {sU[5]}, 112")
        p(f"s_cselect_b32 {sU[0]}, {sU[0]}, {OOB}")
        p(f"s_cselect_b32 {sU[2]}, {sU[2]}, {OOB}")
        p(f"buffer_load_dwordx4 a[48:51], v7, {S2}, {sU[0]} offen")
        p(f"buffer_load_dwordx4 a[52:55], v7, {S2}, {sU[0]} offen offset:64")

    def pack_b_items(self):
        items = [self.transpose_block(lambda lo, k, r=r: A(r + lo, k), "v4", "v5") for r in (40, 44)]
        items.append([Ins(f"buffer_store_dwordx4 a[40:43], {vL16}, {SPK}, {sU[1]} offen sc1", "pb"),
                      Ins(f"s_add_u32 {sU[1]}, {sU[1]}, {28 * KB}")])
        items.append([Ins(f"buffer_store_dwordx4 a[44:47], {vL16}, {SPK}, {sU[1]} offen sc1", "pb")])
        return items

    def pack_c_items(self):
        items = [self.transpose_block(lambda lo, k, r=r: A(r + lo, k), "v4", "v5") for r in (48, 52)]
        items.append([Ins(f"buffer_store_dwordx4 a[48:51], {vL16}, {SPK}, {sU[2]} offen sc1", "pb")])
        items.append([Ins(f"buffer_store_dwordx4 a[52:55], {vL16}, {SPK}, {sU[2]} offen offset:1024 sc1", "pb")])
        return items

    def dma_items(self, vaddr, srd, first, count, tag, stm):
        p = self.p
        items = []
        for u in range(count):
            with self.cap() as c:
                if u == 0:
                    p(f"s_mul_i32 {stm}, {sw}, {count * KB}")
                if u % 4 == 0:
                    p(f"s_add_u32 m0, {stm}, {(first + u) * KB}")
                p(f"buffer_load_dwordx4 {vaddr}, {srd}, m0 offen offset:{(u % 4) * KB} sc1 lds", tag)
            items.append(c.ins)
        return items

    def w1_items(self):
        p = self.p
        items = []
        for s in range(28):
            with self.cap() as c:
                if s == 0:
                    p(f"s_lshl_b32 s24, {sh}, 2")
                    p(f"s_add_u32 s24, s24, {sw}")
                    p(f"s_mul_i32 s24, s24, {28 * KB}")
                    p(f"s_add_u32 s24, s24, {WS_P1}")
                elif s % 4 == 0:
                    p(f"s_add_u32 s24, s24, {4 * KB}")
                p(f"buffer_load_dwordx4 {w1reg(s)}, {vL16}, {SPK}, s24 offen offset:{(s % 4) * KB} sc1", "w1")
            items.append(c.ins)
        return items

    def pack_d_loads(self):
        p = self.p
        p(f"s_mul_i32 {sT2}, s5, {16 * 896}")
        p(f"s_lshl_b32 {sT1}, {sh}, 6")
        p(f"s_add_u32 {sT2}, {sT2}, {sT1}")
        p(f"s_mul_i32 {sT1}, {sh}, 28")
        p(f"s_add_u32 {sT1}, {sT1}, s5")
        p(f"s_lshl_b32 {sT1}, {sT1}, 10")
        p(f"s_add_u32 {sU[9]}, {sT1}, {WS_PO}")
        p("s_cmp_eq_u32 s4, 0")
        p(f"s_cselect_b32 {sT2}, {OOB}, {sT2}")
        p(f"s_cselect_b32 {sU[9]}, {OOB}, {sU[9]}")
        p(f"buffer_load_dwordx4 v[32:35], v7, {SO}, {sT2} offen")
        if self.opt.get("mall", 1):
            p(f"s_lshl_b32 {sT0}, {sh}, 6")
            p(f"s_add_u32 {sT0}, {sT0}, s3")
            p(f"s_lshr_b32 {sT1}, {sT0}, 1")
            p(f"s_mul_i32 {sT1}, {sT1}, 2688")
            p(f"s_and_b32 {sT0}, {sT0}, 1")
            p(f"s_mul_i32 {sT0}, {sT0}, 384")
            p(f"s_add_u32 {sT0}, {sT0}, {sT1}")
            p("s_mov_b64 exec, 0xf")
            p(f"buffer_load_dword v10, v9, {SQ}, {sT0} offen", "touch")
            p("s_mov_b64 exec, -1")

    def pack_d_items(self):
        return [[Ins(f"buffer_store_dwordx4 v[32:35], {vL16}, {SPK}, {sU[9]} offen sc1", "pb")]]

    def touch_items(self, base, lines, per=16):
        p = self.p
        with self.cap() as c:
            p(f"s_mul_i32 {sU[7]}, {srh}, {per}")
            p(f"s_add_u32 {sU[7]}, {sU[7]}, {sh}")
            p(f"s_lshl_b32 {sU[7]}, {sU[7]}, 2")
            p(f"s_add_u32 {sU[7]}, {sU[7]}, {sw}")
            p(f"s_mul_i32 {sU[7]}, {sU[7]}, {lines * 128}")
            p(f"s_add_u32 {sU[7]}, {sU[7]}, {base}")
            assert lines < 32
            p(f"s_mov_b64 exec, {(1 << lines) - 1}")
            p(f"buffer_load_dword v10, v9, {SG}, {sU[7]} offen", "touch")
            p("s_mov_b64 exec, -1")
        return [c.ins]

    def startup(self):
        p = self.p
        p(f"s_getreg_b32 {sfast}, hwreg(HW_REG_XCC_ID, 0, 4)")
        self.wqkv_setup()
        self.pack_b_loads()
        self.pack_c_loads()
        self.pack_d_loads()
        nk0 = self.opt.get("nk0", 2)
        for u in range(nk0):
            p.add(self.wqkv_item(1, L_WK, "wk"))
        p.wait_vm("x")
        p("s_waitcnt lgkmcnt(0)")
        self.consts()
        self.stamp("x_landed")
        for s in range(28):
            p(f"ds_read_b128 {V(64 + 4 * s)}, v{20 + (s & 3)} offset:{(s >> 2) * 4096}")
        for a in range(4):
            p(f"ds_read_b64 {A(56 + 2 * a, 2)}, v{24 + a}")
        for r in range(52, 56):
            p(f"v_mov_b32 v{r}, 0")
        p.wait_ds()
        p("s_barrier")
        with self.cap() as c:
            for i in range(112):
                p(f"v_dot2c_f32_bf16 v{52 + (i & 1)}, {sONES}, v{64 + i}")
                p(f"v_dot2c_f32_bf16 v{54 + (i & 1)}, v{64 + i}, v{64 + i}")
            p("v_add_f32 v52, v52, v53")
            p("v_add_f32 v54, v54, v55")
            self.both_halves("v52", "v54", None)
            self.stats_finish("v52", "v53", "v56", "v58")
            p("v_rsq_f32 v58, v58")
            p("v_mul_f32_e64 v56, -v56, v58")
            p("v_mov_b32 v59, v58")
            p("v_mov_b32 v57, v56")
            for i in range(0, 112 if not self.opt.get("noln") else 8, 2):
                t = 16 + 4 * ((i >> 1) & 1)
                for k in range(2):
                    p(f"v_lshlrev_b32 v{t + 2 * k}, 16, v{64 + i + k}")
                    p(f"v_and_b32 v{t + 2 * k + 1}, {sHI}, v{64 + i + k}")
                for k in range(2):
                    p(f"v_pk_fma_f32 {V(t + 2 * k, 2)}, {V(t + 2 * k, 2)}, v[58:59], v[56:57]")
                for k in range(2):
                    p(f"v_cvt_pk_bf16_f32 v{64 + i + k}, v{t + 2 * k}, v{t + 2 * k + 1}")
        main = groups(c.ins, 4)
        n = len(main)
        wk = [self.wqkv_item(1, L_WK, "wk") for u in range(nk0, 7)]
        wv = [self.wqkv_item(2, L_WV, "wv") for u in range(7)]
        gk = n * self.opt.get("gk", 60) // 100
        with self.cap() as c1:
            self.kv_clear()
        packs = [c1.ins] + self.pack_d_items() + self.pack_b_items() + self.pack_c_items()
        with self.cap() as c2:
            p(f"s_mul_i32 {sT0}, {sh}, {28 * KB}")
            p(f"s_add_u32 {sT1}, {sT0}, {WS_PO - L_WO}")
            p(f"v_add_u32 v8, {sT1}, {vL16}")
        p.add(spread(main, [(wk + wv, 0, gk), (packs + [c2.ins], gk + 2, n - 2)]))
        self.stamp("ln_done")
        p.wait_vm(["wk", "wv"])
        p("s_barrier")
        self.stamp("wkv_landed")

    def phi(self, acc, out, tmp, scale=None, pk=None):
        p = self.p
        for r0 in range(0, 16, 2):
            rr = (r0, r0 + 1)
            a = {r: f"v{acc + r}" for r in rr}
            t = {r: f"v{tmp + (r & 3)}" for r in rr}
            a2, t2 = V(acc + r0, 2), V(tmp + (r0 & 3), 2)
            if pk is not None:
                k2 = V(pk, 2)
                if scale is None:
                    p(f"v_pk_add_f32 {a2}, {a2}, {k2} op_sel_hi:[1,0]")
                else:
                    sc, hi = scale(r0)
                    p(f"v_pk_fma_f32 {a2}, {a2}, {sc}, {k2} op_sel_hi:[1,{hi},0]")
                p(f"v_pk_mul_f32 {t2}, {a2}, {k2} op_sel:[0,1] op_sel_hi:[1,1]")
            else:
                for r in rr:
                    if scale is None:
                        p(f"v_add_f32 {a[r]}, {sEPS6}, {a[r]}")
                    else:
                        p(f"v_fma_f32 {a[r]}, {a[r]}, {scale(r)}, {sEPS6}")
                for r in rr:
                    p(f"v_mul_f32 {t[r]}, {sLOG2E}, {a[r]}")
            for r in rr:
                p(f"v_exp_f32 {t[r]}, {t[r]} clamp")
            for r in rr:
                p(f"v_max_f32 {a[r]}, {sEPS6}, {a[r]}")
            if pk is not None:
                p(f"v_pk_add_f32 {a2}, {a2}, {t2}")
            else:
                for r in rr:
                    p(f"v_add_f32 {a[r]}, {a[r]}, {t[r]}")
            p(f"v_cvt_pk_bf16_f32 v{out + (r0 >> 1)}, {a[r0]}, {a[r0 + 1]}")

    def v_pack(self):
        p = self.p
        for r in range(8):
            p(f"v_cvt_pk_bf16_f32 v{32 + r}, v{32 + 2 * r}, v{33 + 2 * r}")
        p(f"s_mov_b64 exec, {sM28}")
        for r in range(8):
            p(f"v_mov_b32 v{32 + r}, {sONES}")
        p("s_mov_b64 exec, -1")

    def kv_addrs(self, layer, a0, a1, a2):
        p = self.p
        p(f"s_lshl_b32 {sT0}, {sw}, 10")
        p(f"v_add_u32 {a0}, {sT0}, {vS16}")
        p(f"s_lshl_b32 {sT0}, {sw}, 12")
        p(f"v_add_u32 {a1}, {sT0}, {vS16}")
        p(f"v_lshlrev_b32 {a2}, 3, {vLane}")
        p(f"s_lshl_b32 {sT0}, {sh}, 15")
        p(f"s_lshl_b32 {sT1}, {sw}, 9")
        p(f"s_add_u32 {sT0}, {sT0}, {sT1}")
        p(f"s_add_u32 s6, {sT0}, {WS_KV + layer * KV_L}")
        p(f"s_lshl_b32 {sT1}, {sg}, 1")
        p(f"s_add_u32 {sT1}, {sT1}, {srh}")
        p(f"s_lshl_b32 {sT1}, {sT1}, 11")
        p(f"s_add_u32 s7, {sT1}, s6")

    def kv_publish(self, kvacc, a0, a1, a2):
        p = self.p
        p(f"{MFMA} {kvacc(0, 16)}, {V(16)}, {V(32)}, 0")
        p(f"{MFMA} {kvacc(0, 16)}, {V(20)}, {V(36)}, {kvacc(0, 16)}")
        for q in range(4):
            p(f"ds_write_b128 {a0}, {kvacc(4 * q, 4)} offset:{S_KVP + q * 4096}")
        p.wait_ds()
        p("s_barrier")
        for u in range(4):
            p(f"ds_read_b128 {V(32 + 4 * u)}, {a1} offset:{S_KVP + u * 1024}")
        for r in (0, 2):
            p(f"v_pk_add_f32 {V(32 + r, 2)}, {V(32 + r, 2)}, {V(36 + r, 2)}")
        for r in (0, 2):
            p(f"v_pk_add_f32 {V(40 + r, 2)}, {V(40 + r, 2)}, {V(44 + r, 2)}")
        for r in (0, 2):
            p(f"v_pk_add_f32 {V(32 + r, 2)}, {V(32 + r, 2)}, {V(40 + r, 2)}")
        p("v_cvt_pk_bf16_f32 v28, v32, v33")
        p("v_cvt_pk_bf16_f32 v29, v34, v35")
        p(f"buffer_store_dwordx2 v[28:29], {a2}, {SWS}, s7 offen sc1", "kvpub")

    def o_addrs(self):
        p = self.p
        p(f"s_mul_i32 {sT0}, {sh}, 7")
        p(f"v_lshrrev_b32 v16, 5, {vLane}")
        p(f"v_add_u32 v16, {sT0}, v16")
        p(f"v_and_b32 v17, 31, {vLane}")
        p("v_lshlrev_b32 v17, 4, v17")
        p("v_and_b32 v18, 1, v16")
        p("v_lshl_add_u32 v17, v18, 9, v17")
        p("v_lshrrev_b32 v16, 1, v16")
        for j in range(4):
            p(f"v_add_u32 v18, {j}, v16")
            p("v_and_b32 v19, 1, v18")
            p("v_lshrrev_b32 v18, 1, v18")
            p("v_lshl_add_u32 v18, v18, 10, v17")
            p(f"v_lshl_add_u32 v{56 + j}, v19, 3, v18")
        p(f"s_lshr_b32 {sT0}, {sw}, 1")
        p(f"s_lshl_b32 {sT0}, {sT0}, 10")
        p(f"s_and_b32 {sT1}, {sw}, 1")
        p(f"s_lshl_b32 {sT1}, {sT1}, 3")
        p(f"s_add_u32 {sT0}, {sT0}, {sT1}")
        p(f"v_add_u32 v60, {sT0}, {vS16}")
        p(f"s_lshl_b32 {sT0}, {stb}, 7")
        p(f"s_lshl_b32 {sT1}, {sh}, 2")
        p(f"s_add_u32 {sT0}, {sT0}, {sT1}")
        p(f"s_add_u32 s3, {sT0}, {G_FO}")

    def gather_items(self, G, a2):
        p = self.p
        items = []
        for u in range(0, 16, 2):
            with self.cap() as c:
                p(f"s_add_u32 {sT5}, {sg}, {u // 2}")
                p(f"s_and_b32 {sT5}, {sT5}, 7")
                p(f"s_lshl_b32 {sT5}, {sT5}, 12")
                p(f"s_add_u32 {sT5}, {sT5}, s6")
                p(f"buffer_load_dwordx2 {V(G + 2 * u, 2)}, {a2}, {SWS}, {sT5} offen sc1")
                p(f"buffer_load_dwordx2 {V(G + 2 * u + 2, 2)}, {a2}, {SWS}, {sT5} offen offset:2048 sc1")
            items.append(c.ins)
        return items

    def kv_finish(self, layer, G, a2):
        p = self.p

        def sums():
            for r in range(16, 21):
                p(f"v_mov_b32 v{r}, 0")
            for u in range(16):
                for k in range(2):
                    p(f"v_dot2c_f32_bf16 v{16 + 2 * k}, {sT3}, v{G + 2 * u + k}")
                    p(f"v_dot2c_f32_bf16 v{17 + 2 * k}, {sT4}, v{G + 2 * u + k}")
                p(f"v_max3_u32 v20, v20, v{G + 2 * u}, v{G + 2 * u + 1}")
            p("v_cmp_eq_u32 vcc, -1, v20")
        p(f"s_mov_b32 {sT3}, 0x3f80")
        p(f"s_mov_b32 {sT4}, 0x3f800000")
        lo, lb, lp = p.label("kvspin"), p.label("kvback"), p.label("kvloop")
        if self.diag:
            p(f"s_mov_b32 s{18 + layer}, 0")
        sums()
        p(f"s_cbranch_vccnz {lo}")
        p(f"{lb}:")
        with self.cap() as c:
            p(f"{lo}:")
            p(f"s_mov_b32 {sCnt}, {slim}")
            p(f"{lp}:")
            if self.diag:
                p(f"s_add_u32 s{18 + layer}, s{18 + layer}, 1")
            for it in self.gather_items(G, a2):
                p.add(it)
            p("s_waitcnt vmcnt(0)")
            sums()
            p(f"s_cbranch_vccz {lb}")
            p(f"s_sub_u32 {sCnt}, {sCnt}, 1")
            p(f"s_cmp_lg_u32 {sCnt}, 0")
            p(f"s_cbranch_scc1 {lp}")
            p(f"s_mov_b32 {slim}, 1")
            p(f"s_branch {lb}")
        self.tail.extend(c.ins)
        self.stamp(f"kv_seen{layer}")
        p("v_cvt_pk_bf16_f32 v20, v16, v17")
        p("v_cvt_pk_bf16_f32 v21, v18, v19")
        p(f"ds_write_b64 v60, v[20:21] offset:{S_KVS}")
        p.wait_vm("wo")
        p.wait_ds()
        p("s_barrier")
        p(f"ds_read_b128 {V(24)}, {vS16} offset:{S_KVS}")
        p(f"ds_read_b128 {V(28)}, {vS16} offset:{S_KVS + 1024}")
        p(f"{MFMA} {V(32, 16)}, {V(24)}, {V(48)}, 0")
        p(f"{MFMA} {V(32, 16)}, {V(28)}, {V(52)}, {V(32, 16)}")
        p("v_mov_b32 v16, v44")
        p("v_mov_b32 v17, v44")
        p("v_permlane32_swap_b32 v16, v17")
        p(f"v_add_f32 v16, {sEPS6}, v17")
        p("v_rcp_f32 v16, v16")
        for r in range(0, 16, 2):
            p(f"v_pk_mul_f32 {V(32 + r, 2)}, {V(32 + r, 2)}, v[16:17] op_sel_hi:[1,0]")
        for r in range(8):
            p(f"v_cvt_pk_bf16_f32 v{20 + r}, v{32 + 2 * r}, v{33 + 2 * r}")
        st = [f"buffer_store_dwordx2 {V(20 + 2 * j, 2)}, v{56 + j}, {SG}, {sHB} offen" for j in range(3)]
        st += ["s_mov_b32 exec_hi, 0", f"buffer_store_dwordx2 {V(26, 2)}, v59, {SG}, {sHB} offen",
               "s_mov_b64 exec, -1"]
        self.publish(st)
        self.flag("s3", 1 + layer)
        self.stamp(f"o_pub{layer}")

    def single_pass(self, acc, frag, nfrag, vaddr, off, second, areg, first, last, transposed, zero):
        rd = lambda s: self.trread(frag(s % nfrag, 0), frag(s % nfrag, 2), vaddr, off + s * KB, second)
        head = []
        for s in range(first, first + nfrag - 1):
            head += rd(s)
        main = []
        for s in range(first, last):
            w, a = frag(s % nfrag, None), areg(s)
            c = 0 if (zero and s == first) else acc
            g = [Ins(f"{MFMA} {acc}, {w}, {a}, {c}" if transposed else f"{MFMA} {acc}, {a}, {w}, {c}")]
            if s + nfrag - 1 < last:
                g += rd(s + nfrag - 1)
            main.append(g)
        return head, main

    def qkv0(self):
        p = self.p
        rd = []
        for s in range(28):
            f = (s % 3) * 8
            rd.append((self.trread(A(f, 2), A(f + 2, 2), "v62", L_WK + s * KB, 256),
                       self.trread(A(f + 4, 2), A(f + 6, 2), "v62", L_WV + s * KB, 256)))
        head = rd[0][0] + rd[0][1] + rd[1][0] + rd[1][1]
        main = []
        for s in range(28):
            f = (s % 3) * 8
            for k in range(2):
                acc = V(16 + 16 * k, 16)
                g = [Ins(f"{MFMA} {acc}, {V(64 + 4 * s)}, {A(f + 4 * k)}, {acc if s else 0}")]
                if s + 2 < 28:
                    g += rd[s + 2][k]
                main.append(g)
        with self.cap() as c:
            self.kv_addrs(0, "v60", "v61", "v11")
            p(f"s_cmp_ge_u32 {sh}, 14")
            p(f"s_cselect_b32 {sT2}, {sh}, {scb}")
            p(f"s_cselect_b32 {sT3}, 0, {7 * 2048}")
            p(f"s_lshl_b32 {sT2}, {sT2}, 11")
            p(f"v_and_b32 v56, 15, {vLane}")
            p(f"v_bfe_u32 v57, {vLane}, 4, 1")
            p(f"v_mul_u32_u24 v58, {sT3}, v57")
            p("v_lshl_add_u32 v58, v56, 7, v58")
            p(f"v_add_u32 v58, {sT2}, v58")
            p(f"s_lshl_b32 {sT2}, {sg}, 8")
            p("v_lshlrev_b32 v56, 11, v56")
            p("v_lshl_add_u32 v56, v57, 7, v56")
            p(f"v_add_u32 v56, {sT2}, v56")
            p(f"v_cndmask_b32 v58, v58, v56, {sMPAD}")
            p(f"s_mov_b32 {sU[3]}, {WS_RB}")
        setup = groups(c.ins[:13]) + [c.ins[13:16]] + groups(c.ins[16:])
        with self.cap() as c1:
            self.poll_load("v58", SWS, sU[3], 1, 59)
        with self.cap() as c2:
            p.wait_vm("pb")
            p("s_barrier")
            self.ready(WS_RB)
        gr = self.opt.get("gr", 4)
        self.touch = {0: [], 1: [], 2: [], 3: [], 4: []}
        self.touch[self.opt.get("to", 2)] += self.touch_items(G_O, 14)
        if self.opt.get("x0sc1", 1):
            self.touch[self.opt.get("tx", 2)] += self.touch_items(G_ST, 4)
        else:
            self.touch[self.opt.get("tx", 2)] += self.touch_items(G_X, 18)
        wq = [self.wqkv_item(0, L_WQ, "wq") for u in range(7)]
        p.add(head)
        p.add(spread(main, [([c2.ins], gr, gr), (wq + self.touch[1], gr + 1, 50), (setup, gr + 2, 50)]))
        self.stamp("kv_gemm0")
        p.add(c1.ins)
        p(f"v_mov_b32 v52, {sEPS6}")
        p(f"v_mov_b32 v53, {sLOG2E}")
        self.phi(16, 16, 48, pk=52)
        self.v_pack()
        p.wait_vm("wq")
        self.kv_publish(lambda lo, k: A(24 + lo, k), "v60", "v61", "v11")
        self.stamp("kv_pub0")
        p("v_mov_b32 v13, v63")
        self.apoll_end("v58", SWS, sU[3], 1, 1, 59, 15)
        p(f"v_cmp_ne_u32 vcc, {sfast}, v59")
        p("s_cmp_eq_u32 vcc_hi, 0")
        self.stamp_flush()
        p("s_cbranch_scc1 L_slow" if self.force_slow else "s_cbranch_scc0 L_slow")

    def take(self, n):
        out, self.bulk = self.bulk[:n], self.bulk[n:]
        return out

    def q0(self):
        p = self.p
        afrag = lambda i, lo: A(4 * i) if lo is None else A(4 * i + lo, 2)
        head, main = self.single_pass(V(48, 16), afrag, 4, "v13", 0, 256, lambda s: V(64 + 4 * s), 0, 28, True, True)
        with self.cap() as c:
            p(f"v_mov_b32 v32, {sEPS6}")
            p(f"v_mov_b32 v33, {sLOG2E}")
            self.phi(48, 48, 36, pk=32)
            p(f"v_cndmask_b32 v54, v54, 0, {sMPAD}")
            p(f"v_cndmask_b32 v55, v55, 0, {sMPAD}")
            self.o_addrs()
        tail = groups(c.ins, 6)
        gg = self.opt.get("gg", 34)
        self.bulk = self.dma_items("v8", SPK, 84, 7, "wo", sU[5]) + self.w1_items() + self.w2_items()
        p.add(head)
        p.add(spread(main + tail, [(self.touch[2] + self.take(self.opt.get("bq", 13)), 0, gg - 1),
                                   (self.gather_items(64, "v11"), gg, gg + 8)]))
        for it in self.touch[3] + self.take(self.opt.get("b1", 8)):
            p.add(it)
        self.stamp("q_done0")

    def make_selector(self):
        p = self.p
        p("v_mov_b32 v15, 0")
        p("s_mov_b32 exec_lo, 0x00100001")
        p("s_mov_b32 exec_hi, 0x00100001")
        p(f"v_mov_b32 v15, {sONES}")
        p("s_mov_b64 exec, -1")
        for r in range(4):
            p(f"v_accvgpr_write_b32 a{32 + r}, v15")

    def colsum_qkv(self):
        p = self.p
        p(f"s_min_u32 {sU[0]}, {sw}, 2")
        p(f"s_mul_i32 {sU[0]}, {sU[0]}, {28 * KB}")
        p(f"v_add_u32 v60, {sU[0]}, {vTrA}")
        rd = lambda s: self.trread(V(32 + 4 * (s % 4), 2), V(34 + 4 * (s % 4), 2), "v60", s * KB)
        p.add(rd(0) + rd(1) + rd(2))
        self.make_selector()
        for s in range(28):
            p(f"{MFMA16} {A(36)}, {A(32)}, {V(32 + 4 * (s % 4))}, {A(36) if s else 0}")
            if s + 3 < 28:
                p.add(rd(s + 3))
        p(f"s_lshl_b32 {sU[0]}, {sw}, 9")
        p(f"v_lshlrev_b32 v60, 3, {vLane}")
        p(f"v_add_u32 v60, {L_S + S_STAT}, v60")
        p(f"v_add_u32 v61, {sU[0]}, v60")
        p("v_accvgpr_read_b32 v40, a36")
        self.split_words("v40", "v42", "v43", "v41", False, False)
        p("ds_write_b64 v61, v[42:43]")

    def colsum_qkv_fetch(self):
        p = self.p
        p(f"v_lshlrev_b32 v13, 3, {vLane}")
        p(f"v_add_u32 v13, {L_S + S_STAT}, v13")
        p(f"ds_read_b64 {V(vCSQ + 2, 2)}, v13")
        p(f"ds_read_b64 {V(vCSQ + 4, 2)}, v13 offset:512")
        p(f"ds_read_b64 {V(vCSQ, 2)}, v13 offset:1024")

    def colsum_w1_items(self):
        p = self.p
        items = [[Ins(f"{MFMA16} {A(36)}, {A(32)}, {w1reg(s)}, {A(36) if s else 0}")] for s in range(28)]
        with self.cap() as c:
            p("v_accvgpr_read_b32 v62, a36")
            self.split_words("v62", f"v{vCS1}", f"v{vCS1 + 1}", "v63", False, False)
        items.append(c.ins)
        return items

    def qkv1(self):
        p = self.p
        p(f"v_min_u32 v13, 27, {vLane}")
        p("v_lshlrev_b32 v13, 2, v13")
        p(f"s_lshl_b32 {sT0}, {stb}, 7")
        p(f"s_add_u32 {sT0}, {sT0}, {G_FX}")
        WF = [152, 156, 160, 164, 168, 172]

        def wf(s, k):
            r = WF[3 * (s % 2) + k]
            if k == 2:
                return self.trread(V(r, 2), V(r + 2, 2), vTrB, s * KB)
            return self.trread(V(r, 2), V(r + 2, 2), vTrA, (L_WK, L_WV)[k] + s * KB)
        p.add(wf(0, 0) + wf(0, 1) + wf(0, 2))
        self.poll("v13", SG, sT0, 2)
        self.stamp("x2_seen")
        RING, NR = 96, 14

        def ld(s):
            q = sub()
            if s % 4 == 0:
                q(f"s_add_u32 s4, {sXB}, {s * KB}")
            q(f"buffer_load_dwordx4 {V(RING + 4 * (s % NR))}, {vL16}, {SG}, s4 offen offset:{(s % 4) * KB} sc1")
            return q.ins
        LEAD = self.opt.get("lead", 6)
        for s in range(LEAD):
            p.add(ld(s))
        stl = [[Ins(f"buffer_load_dwordx4 {V(64 + 4 * u)}, {vL16}, {SG}, {sSTB} offen offset:{u * KB} sc1")]
               for u in range(2)]
        with self.cap() as st:
            for i in range(2, 7):
                p(f"v_add_f32 v{64 + (i & 1)}, v{64 + (i & 1)}, v{64 + i}")
            p("v_add_f32 v64, v64, v65")
            self.stats_finish("v64", "v65", "v66", "v67")
            p("v_rsq_f32 v88, v67")
            self.split_words("v66", "v92", "v93", "v65", True, True)
            p("v_mov_b32 v94, 0")
            p("v_mov_b32 v95, 0")
            p("v_cvt_pk_bf16_f32 v80, v88, v88")
            p(f"v_and_b32 v64, {sHI}, v80")
            p("v_sub_f32 v64, v88, v64")
            p("v_cvt_pk_bf16_f32 v81, v64, v64")
            p(f"v_and_b32 v65, {sHI}, v81")
            p("v_sub_f32 v65, v64, v65")
            p("v_and_b32 v80, 0xffff, v80")
            p(f"v_and_or_b32 v80, v81, {sHI}, v80")
            p("v_cvt_pk_bf16_f32 v81, v65, 0")
            p("v_mov_b32 v82, 0")
            p("v_mov_b32 v83, 0")
            p(f"v_mov_b32 v84, {sONES}")
            p(f"v_cndmask_b32 v84, v84, 0, {sMPAD}")
            p("v_mov_b32 v85, v84")
            p("v_mov_b32 v86, 0")
            p("v_mov_b32 v87, 0")
            p(f"{MFMA} {V(64, 16)}, {V(80)}, {V(84)}, 0")
            self.kv_addrs(1, "v89", "v90", "v91")
            for m, dst in ((1, 80), (2, 84)):
                p(f"v_mov_b32 v{dst}, v{vCSQ + 2 * m}")
                p(f"v_mov_b32 v{dst + 1}, v{vCSQ + 2 * m + 1}")
        main = []
        for s in range(28):
            o = 3 * (s % 2)
            a = V(RING + 4 * (s % NR))
            nk = 3 if s < NR else 2
            nk2 = 3 if s + 1 < NR else 2
            for k in range(nk):
                acc = V(16 + 16 * k, 16)
                c = acc if s else 0
                g = [Ins(f"{MFMA} {acc}, {a}, {V(WF[o + k])}, {c}" if k < 2 else f"{MFMA} {acc}, {V(WF[o + k])}, {a}, {c}")]
                if s + 1 < 28 and k < nk2:
                    g += wf(s + 1, k)
                main.append(g)
        seq = [ld(s) for s in range(LEAD, 14)] + stl + [ld(s) for s in range(14, 28)]
        slots = []
        gpos = 0
        for i, it in enumerate(seq):
            s = i + LEAD - 2
            if s >= 14:
                gpos = max(gpos, 3 * (s - 14) + 2)
            slots.append(([it], gpos, gpos))
            gpos += 2
        p.add(spread(main, slots + [(groups(st.ins), 30, len(main) - 2)]))
        p(f"{MFMA} {V(16, 16)}, {V(92)}, {V(80)}, {V(16, 16)}")
        p(f"{MFMA} {V(32, 16)}, {V(92)}, {V(84)}, {V(32, 16)}")
        self.stamp("kv_gemm1")
        vfrag = lambda i, lo: V(152 + 4 * i) if lo is None else V(152 + 4 * i + lo, 2)
        head, main = self.single_pass(V(48, 16), vfrag, 4, vTrB, 0, 512, lambda s: V(RING + 4 * (s % NR)),
                                      NR, 28, True, False)
        p.add(head)
        p(f"v_mov_b32 v172, {sEPS6}")
        p(f"v_mov_b32 v173, {sLOG2E}")
        p(f"v_mov_b32 v80, v{vCSQ}")
        p(f"v_mov_b32 v81, v{vCSQ + 1}")
        self.phi(16, 16, 168, lambda r: (V(64 + r, 2), 1), pk=172)
        for r in range(0, 16, 2):
            p(f"v_pk_mul_f32 {V(32 + r, 2)}, {V(32 + r, 2)}, {V(64 + r, 2)}")
        self.v_pack()
        self.kv_publish(lambda lo, k: V(64 + lo, k), "v89", "v90", "v91")
        self.stamp("kv_pub1")
        main.append([Ins(f"{MFMA} {V(48, 16)}, {V(80)}, {V(92)}, {V(48, 16)}")])
        with self.cap() as c:
            self.phi(48, 48, 168, lambda r: (V(88, 2), 0), pk=172)
            p(f"v_cndmask_b32 v54, v54, 0, {sMPAD}")
            p(f"v_cndmask_b32 v55, v55, 0, {sMPAD}")
            self.o_addrs()
        tail = groups(c.ins, 6)
        gg = self.opt.get("gg1", 20)
        p.add(spread(main + tail, [(self.gather_items(96, "v91"), gg, gg + 8)]))
        self.stamp("q_done1")

    def wo_phase(self, layer, pre=None, streams=()):
        p = self.p
        RES = 104
        p(f"s_lshl_b32 s5, {sh}, 11")
        p(f"s_add_u32 s5, s5, {sXB}")
        if layer == 1:
            p(f"buffer_load_dwordx4 {V(RES)}, {vL16}, {SG}, s5 offen sc1")
            p(f"buffer_load_dwordx4 {V(RES + 4)}, {vL16}, {SG}, s5 offen offset:1024 sc1")
        else:
            for r in range(8):
                p(f"v_accvgpr_read_b32 v{RES + r}, a{56 + r}")
        p(f"s_lshr_b32 {sT1}, {sh}, 2")
        p(f"s_lshl_b32 {sT1}, {sT1}, 10")
        p(f"s_and_b32 {sT2}, {sh}, 3")
        p(f"s_lshl_b32 {sT2}, {sT2}, 2")
        p(f"s_add_u32 {sT1}, {sT1}, {sT2}")
        p(f"s_add_u32 s6, {sT1}, {sSTB}")
        p(f"s_lshl_b32 {sT0}, {stb}, 7")
        p(f"s_lshl_b32 {sT1}, {sh}, 3")
        p(f"s_add_u32 {sT1}, {sT0}, {sT1}")
        p(f"s_add_u32 s7, {sT1}, {G_FX}")
        p(f"s_add_u32 {sT0}, {sT0}, {G_FO}")
        p(f"v_and_b32 v13, 15, {vLane}")
        p("v_lshlrev_b32 v13, 2, v13")
        rd = [self.trread(V(48 + (s % 3) * 4, 2), V(50 + (s % 3) * 4, 2), vTrB, (L_WO - L_WQ) + s * KB)
              for s in range(28)]
        p.add(rd[0] + rd[1])
        if pre:
            pre()
        self.poll("v13", SG, sT0, 1 + layer)
        self.stamp(f"o_seen{layer}")
        RING = 64
        LEAD = self.opt.get("leadwo", 8)

        def ld(s):
            q = sub()
            if s % 4 == 0:
                q(f"s_add_u32 s4, {sHB}, {s * KB}")
            q(f"buffer_load_dwordx4 {V(RING + 4 * s)}, {vL16}, {SG}, s4 offen offset:{(s % 4) * KB} sc1")
            return q.ins
        for s in range(LEAD):
            p.add(ld(s))
            p(f"v_lshlrev_b32 v{16 + 2 * s}, 16, v{RES + s}" if s < 8 else "; -")
            p(f"v_and_b32 v{17 + 2 * s}, {sHI}, v{RES + s}" if s < 8 else "; -")
        assert LEAD >= 8
        main = []
        for s in range(28):
            g = [Ins(f"{MFMA} {V(16, 16)}, {V(48 + (s % 3) * 4)}, {V(RING + 4 * s)}, {V(16, 16)}")]
            if s + LEAD < 28:
                g += ld(s + LEAD)
            if s + 2 < 28:
                g += rd[s + 2]
            main.append(g)
        p.add(spread(main, list(streams)))
        self.stamp(f"wo_gemm{layer}")
        for r in range(8):
            p(f"v_cvt_pk_bf16_f32 v{32 + r}, v{16 + 2 * r}, v{17 + 2 * r}")
        self.publish([f"buffer_store_dwordx4 {V(32)}, {vL16}, {SG}, s5 offen",
                      f"buffer_store_dwordx4 {V(36)}, {vL16}, {SG}, s5 offen offset:1024"],
                     always_sc1=(layer == 0 and self.opt.get("x0sc1", 1)))
        p("v_pk_mul_f32 v[42:43], v[16:17], v[16:17]")
        for r in range(2, 16, 2):
            p(f"v_pk_fma_f32 v[42:43], {V(16 + r, 2)}, {V(16 + r, 2)}, v[42:43]")
            p(f"v_pk_add_f32 v[16:17], v[16:17], {V(16 + r, 2)}")
        p("v_add_f32 v40, v16, v17")
        p("v_add_f32 v42, v42, v43")
        self.both_halves("v40", "v42", None)
        self.publish([f"buffer_store_dword v40, {vL16}, {SG}, s6 offen"])
        self.flag("s7", 1 + 2 * layer, 2)
        self.stamp(f"x1_pub{layer}")

    def w2_items(self):
        p = self.p
        items = []
        order = list(range(8, 28)) + list(range(8))
        for i, j in enumerate(order):
            for ch in range(2):
                with self.cap() as c:
                    if i == 0 and ch == 0:
                        p(f"s_mul_i32 s25, {scb}, {224 * KB}")
                        p(f"s_lshl_b32 s26, {sw}, 12")
                        p(f"s_add_u32 s25, s25, s26")
                        p(f"s_add_u32 s25, s25, {WS_P2}")
                        p(f"s_and_b32 s26, {srq}, 1")
                        p(f"s_lshl_b32 s26, s26, 14")
                        p(f"s_sub_u32 s27, s25, s26")
                        p(f"s_add_u32 s27, s27, {16 * KB}")
                        p(f"s_add_u32 s25, s25, s26")
                    if j % 2 == 0 and ch == 0:
                        i2 = j >> 1
                        p(f"s_add_u32 s26, {'s25' if i2 < 7 else 's27'}, {(i2 % 7) * 32 * KB}")
                    p(f"buffer_load_dwordx4 {w2reg(j, ch)}, {vL16}, {SPK}, s26 offen offset:{(j & 1) * 2048 + ch * 1024} sc1",
                      "w2")
                items.append(c.ins)
        return items

    def ffn(self, layer, pre=None, extra=None):
        p = self.p
        p(f"v_and_b32 v13, 15, {vLane}")
        p("v_min_u32 v13, 13, v13")
        p("v_lshlrev_b32 v13, 3, v13")
        p(f"v_lshrrev_b32 v14, 4, {vLane}")
        p("v_lshl_add_u32 v107, v14, 7, v13")
        p(f"s_mul_i32 {sT0}, {srh}, {112 * KB}")
        p(f"s_add_u32 {sT0}, {sT0}, {G_X - L_S}")
        p(f"s_and_b32 s4, {sh}, 1")
        p(f"s_mul_i32 s6, s4, {28 * KB}")
        p(f"s_add_u32 {sT0}, {sT0}, s6")
        p(f"s_lshl_b32 s6, s6, 1")
        p(f"v_add_u32 v110, {sT0}, {vL16}")
        p(f"s_lshl_b32 s5, {sw}, 10")
        p(f"s_add_u32 s5, s5, {L_S}")
        p(f"s_lshl_b32 {sT0}, {sh}, 13")
        p(f"s_lshl_b32 {sT1}, {sw}, 11")
        p(f"s_add_u32 s3, {sT0}, {sT1}")
        p(f"s_mul_i32 {sT0}, {srh}, {4 * 112 * KB}")
        p(f"s_add_u32 s3, s3, {sT0}")
        p(f"s_lshl_b32 {sT0}, {srh}, 10")
        p(f"s_lshl_b32 {sT1}, {sw}, 6")
        p(f"s_add_u32 {sT0}, {sT0}, {sT1}")
        p(f"s_lshl_b32 {sT1}, {sh}, 2")
        p(f"s_add_u32 {sT0}, {sT0}, {sT1}")
        p(f"s_add_u32 s2, {sT0}, {G_FH}")
        p(f"s_mul_i32 {sT0}, s4, {2 * 112 * KB}")
        p(f"s_sub_u32 s7, s3, {sT0}")
        p(f"s_add_u32 s3, s3, {sT0}")
        p(f"s_lshl_b32 {sT0}, s4, 9")
        p(f"s_sub_u32 s1, s2, {sT0}")
        p(f"s_add_u32 s2, s2, {sT0}")
        p(f"v_mov_b32 v84, v{vCS1}")
        p(f"v_mov_b32 v85, v{vCS1 + 1}")
        for r in (86, 87, 90, 91):
            p(f"v_mov_b32 v{r}, 0")
        p(f"v_and_b32 v108, 31, {vLane}")
        p("v_lshlrev_b32 v108, 4, v108")
        p(f"v_add_u32 v108, {L_S + S_STAT}, v108")
        p(f"s_and_b32 {sT0}, {sxs}, 3")
        p(f"s_lshl_b32 {sT0}, {sT0}, 9")
        p(f"s_lshl_b32 {sT1}, s4, 9")
        p(f"s_xor_b32 {sT0}, {sT0}, {sT1}")
        p(f"v_add_u32 v109, {sT0}, v108")
        self.ffn2_setup(layer)
        p.wait_ds()
        p("s_barrier")
        if pre:
            pre()
        p(f"s_lshl_b32 {sT0}, {srh}, 9")
        p(f"s_add_u32 {sT0}, {sT0}, {G_FX}")
        self.poll("v107", SG, sT0, 1 + 2 * layer, 2)
        self.stamp(f"x1_seen{layer}")

        Q, P = 10, 2

        def quad(k):
            q = sub()
            if k % Q == 0:
                q("s_mov_b32 m0, s5")
                if k:
                    q(f"v_add_u32 v110, {Q * 4 * KB}, v110")
            else:
                q(f"s_add_u32 m0, m0, {4 * KB}")
            if k in (7, 21):
                q("v_subrev_u32 v110, s6, v110")
            if k == 14:
                q("v_add_u32 v110, s6, v110")
            q(f"buffer_load_dwordx4 v110, {SG}, m0 offen sc1 lds", f"c{k // P}")
            return q.ins
        for k in range(4):
            p.add(quad(k))
        stl = [[Ins(f"buffer_load_dwordx4 {V(112 + 4 * u)}, {vL16}, {SG}, {sSTB} offen offset:{u * KB} sc1")]
               for u in range(4)]
        with self.cap() as st:
            for i in range(2, 14):
                p(f"v_add_f32 v{112 + (i & 1)}, v{112 + (i & 1)}, v{112 + i}")
            p("v_add_f32 v112, v112, v113")
            self.stats_finish("v112", "v113", "v114", "v115")
            self.split_words("v114", "v116", "v117", "v113", True, True)
            p("v_rsq_f32 v118, v115")
            p("v_sqrt_f32 v119, v115")
            p(f"v_mul_f32_e64 v118, -v118, {sLOG2E}")
            p("ds_write_b128 v109, v[116:119]", "stw")
        XF, NX, D = 48, 5, 4
        rdx = lambda n: Ins(f"ds_read_b128 {V(XF + 4 * (n % NX))}, {vS16} offset:{(n % (4 * Q)) * KB}", f"x{n}")

        def boundary(j):
            q = sub()
            q.wait_vm(f"c{j}")
            if j == 3:
                q.wait_ds("stw")
            q("s_barrier")
            return q.ins
        p.add(quad(4))
        p.add(quad(5))
        p.add(boundary(0))
        p.add([rdx(n) for n in range(D)])
        main = []
        pos = {}
        for n in range(112):
            o, s = divmod(n, 28)
            acc = V(16 + 16 * (o & 1), 16)
            g = []
            if n % 2 == 0:
                g.append(Pseudo("wait_ds", f"x{n + 1}"))
            g.append(Ins(f"{MFMA} {acc}, {w1reg(s)}, {V(XF + 4 * (n % NX))}, {acc if s else 0}"))
            m = n + D
            if m < 112:
                if m % 8 == 0:
                    g += boundary(m // 8)
                g.append(rdx(m))
                if m == 24:
                    g += [Ins(f"ds_read_b128 {V(68 + 4 * k)}, v108 offset:{k * 512}") for k in range(4)]
                if m % 4 == 1 and m >= 8:
                    k = m // 4 + 6
                    if k < 28:
                        g += quad(k)
            if s == 24:
                g += [Ins(f"v_mov_b32 v88, v{68 + 4 * o}"), Ins(f"v_mov_b32 v89, v{69 + 4 * o}")]
            pos[n] = len(main)
            main.append(g)
            if s == 27:
                main.append([Ins(f"{MFMA} {acc}, {V(84)}, {V(88)}, {acc}")])

        hsc1 = self.opt.get("h0sc1", 1) if layer == 0 else self.opt.get("h1sc1", 1)

        def epilogue(o):
            tb = ((o & 1) << 1) | (o >> 1)
            acc = 16 + 16 * (o & 1)
            c1, sd = f"v{70 + 4 * o}", f"v{71 + 4 * o}"
            with self.cap() as c:
                for r0 in range(0, 16, 2):
                    rr = (r0, r0 + 1)
                    t = {r: f"v{92 + (r & 3)}" for r in rr}
                    a = {r: f"v{acc + r}" for r in rr}
                    for r in rr:
                        p(f"v_mul_f32 {t[r]}, {a[r]}, {c1}")
                    for r in rr:
                        p(f"v_exp_f32 {t[r]}, {t[r]}")
                    for r in rr:
                        p(f"v_fma_f32 {t[r]}, {t[r]}, {sd}, {sd}")
                    for r in rr:
                        p(f"v_rcp_f32 {t[r]}, {t[r]}")
                    for r in rr:
                        p(f"v_mul_f32 {a[r]}, {a[r]}, {t[r]}")
                    p(f"v_cvt_pk_bf16_f32 v{96 + (r0 >> 1)}, {a[r0]}, {a[r0 + 1]}")
            items = groups(c.ins)
            with self.cap() as c:
                p(f"s_add_u32 {sT0}, {'s7' if o & 1 else 's3'}, {tb * 112 * KB}")
                self.publish([f"buffer_store_dwordx4 {V(96)}, {vL16}, {SG}, {sT0} offen",
                              f"buffer_store_dwordx4 {V(100)}, {vL16}, {SG}, {sT0} offen offset:1024"], f"h{o}",
                             always_sc1=hsc1)
            items.append(c.ins)
            with self.cap() as c:
                p(f"s_add_u32 {sT1}, {'s1' if o & 1 else 's2'}, {tb * 256}")
                self.flag(sT1, 1 + layer, wait=f"h{o}", st=sT2)
            return items, c.ins
        streams = [([quad(6), quad(7)], 0, 3), (stl[:2], 1, 4), (stl[2:], 6, 8), (groups(st.ins), 13, 19)]
        eps = [epilogue(o) for o in range(4)]
        E = self.opt.get("epend", 23)
        F = self.opt.get("fsc1", 18) if hsc1 else self.opt.get("fpl", 6)
        for o in range(3):
            streams.append((eps[o][0], pos[28 * (o + 1)] + 2, pos[28 * (o + 1) + E]))
        for o in range(2):
            g = pos[28 * (o + 2) + F]
            streams.append(([eps[o][1]], g, g))
        self.hl = self.h_loads()
        pa, pb = self.h_poll(0, layer), self.h_poll(1, layer)
        GA = pos[56 + min(F + self.opt.get("fd", 9), 27)]
        LAG = self.opt.get("lag", 7)
        streams.insert(0, ([pa[0]], GA, GA))
        streams.append(([pa[1]], GA + LAG, GA + LAG))
        first = max(GA + LAG + 1, pos[84 + self.opt.get("h0", 0)])
        n0 = min(14, (pos[111] + 1 - first) // 2 + 1)
        streams.append((self.hl[:n0], first, pos[111] + 1))
        self.n0 = n0
        GB = F + self.opt.get("fd", 9)
        if GB + LAG <= 28:
            streams.insert(0, ([pb[0]], pos[84 + GB], pos[84 + GB]))
            streams.append(([pb[1]], pos[84 + GB] + LAG, pos[84 + GB] + LAG))
            self.pb = []
        else:
            self.pb = pb
        if extra:
            streams += extra(pos)
        if self.opt.get("fine"):
            self.stamp(f"f1_first{layer}")
            woven = spread(main, streams)
            k = 0
            for x in woven:
                p.add([x])
                if x.kind == "mfma":
                    k += 1
                    if k % 29 == 0 and k < 116:
                        self.stamp(f"f1_o{k // 29 - 1}_{layer}")
        else:
            p.add(spread(main, streams))
        self.stamp(f"ffn1_mfma{layer}")
        self.ffn2(layer, eps[3][0], eps[2][1], eps[3][1], F)

    def ffn2_setup(self, layer):
        p = self.p
        p(f"s_mul_i32 {sU[3]}, {srq}, {2 * 112 * KB}")
        p(f"s_lshl_b32 {sT3}, {sw}, 11")
        p(f"s_add_u32 {sU[3]}, {sU[3]}, {sT3}")
        p(f"s_lshl_b32 {sU[4]}, {srq}, 9")
        p(f"s_lshl_b32 {sT3}, {sw}, 6")
        p(f"s_add_u32 {sU[4]}, {sU[4]}, {sT3}")
        p(f"s_add_u32 {sU[4]}, {sU[4]}, {G_FH}")
        p(f"v_min_u32 v104, 6, {vLane}")
        p("v_lshlrev_b32 v104, 3, v104")
        p(f"s_and_b32 {sT3}, {srq}, 1")
        p(f"s_lshl_b32 {sT4}, {sT3}, 2")
        p(f"s_add_u32 {sU[4]}, {sU[4]}, {sT4}")
        p(f"s_lshl_b32 {sT4}, {sT3}, 13")
        p(f"s_sub_u32 {sU[8]}, {sU[3]}, {sT4}")
        p(f"s_add_u32 {sU[8]}, {sU[8]}, {8 * KB}")
        p(f"s_add_u32 {sU[3]}, {sU[3]}, {sT4}")
        p(f"s_lshr_b32 {sT3}, {srq}, 1")
        p(f"s_lshl_b32 {sT3}, {sT3}, 2")
        p(f"s_and_b32 {sT4}, {srq}, 1")
        p(f"s_add_u32 {sT3}, {sT3}, {sT4}")
        p(f"s_mul_i32 {sU[5]}, {sT3}, {28 * KB}")
        p(f"s_lshl_b32 {sT3}, {scb}, 12")
        p(f"s_lshl_b32 {sT4}, {sw}, 7")
        p(f"s_add_u32 {sT3}, {sT3}, {sT4}")
        p(f"s_add_u32 {sU[5]}, {sU[5]}, {sT3}")
        p(f"s_add_u32 {sU[5]}, {sU[5]}, {G_X}")
        if layer == 0:
            p(f"s_mul_i32 {sU[6]}, {srq}, {14 * KB}")
            p(f"s_lshr_b32 {sT3}, {scb}, 2")
            p(f"s_lshl_b32 {sT3}, {sT3}, 10")
            p(f"s_add_u32 {sU[6]}, {sU[6]}, {sT3}")
            p(f"s_and_b32 {sT3}, {scb}, 3")
            p(f"s_lshl_b32 {sT3}, {sT3}, 2")
            p(f"s_add_u32 {sT3}, {sT3}, {sT4}")
            p(f"s_add_u32 {sU[6]}, {sU[6]}, {sT3}")
            p(f"s_add_u32 {sU[6]}, {sU[6]}, {G_ST}")
            p(f"s_lshl_b32 {sT3}, {srq}, 8")
            p(f"s_lshl_b32 {sT4}, {scb}, 4")
            p(f"s_add_u32 {sT3}, {sT3}, {sT4}")
            p(f"s_lshl_b32 {sT4}, {sw}, 2")
            p(f"s_add_u32 {sT3}, {sT3}, {sT4}")
            p(f"s_add_u32 {sU[7]}, {sT3}, {G_FX}")
        else:
            p(f"s_lshl_b32 {sT3}, {sg}, 2")
            p(f"s_add_u32 {sT3}, {sT3}, {srq}")
            p(f"s_lshl_b32 {sT3}, {sT3}, 3")
            p(f"s_add_u32 {sT3}, {sT3}, {sw}")
            p(f"s_mul_i32 {sT3}, {sT3}, {8 * 896}")
            p(f"s_lshl_b32 {sT4}, {scb}, 7")
            p(f"s_add_u32 {sU[7]}, {sT3}, {sT4}")
        p(f"s_lshl_b32 {sT3}, {sw}, 13")
        p(f"v_add_u32 v105, {sT3}, {vS16}")
        if layer == 0:
            p(f"v_lshrrev_b32 v14, 5, {vLane}")
            p("v_lshlrev_b32 v14, 7, v14")
            p("v_xor_b32 v105, v105, v14")
            p("v_mov_b32 v106, v105")
        else:
            p("v_xor_b32 v106, 0x80, v105")
        p(f"v_and_b32 v13, 7, {vLane}")
        p("v_lshlrev_b32 v13, 4, v13")
        p(f"s_lshl_b32 {sT3}, {sw}, 7")
        p(f"v_add_u32 v13, {sT3}, v13")
        p(f"v_bfe_u32 v14, {vLane}, 3, 1")
        p("v_lshlrev_b32 v15, 7, v14")
        p("v_xor_b32 v13, v13, v15")
        p(f"v_lshl_add_u32 v13, v14, {9 if layer == 0 else 10}, v13")
        p(f"v_lshrrev_b32 v14, 4, {vLane}")
        p("v_lshl_add_u32 v13, v14, 11, v13")
        p(f"v_add_u32 v111, {L_S}, v13")

    def h_loads(self):
        out = []
        for n in range(56):
            th, j = divmod(n, 28)
            q = sub()
            if j % 2 == 0:
                i = j >> 1
                q(f"s_add_u32 {sU[9]}, {sU[3] if i < 7 else sU[8]}, {th * 112 * KB + (i % 7) * 16 * KB}")
            q(f"buffer_load_dwordx4 {V(112 + 4 * (n % 16))}, {vL16}, {SG}, {sU[9]} offen offset:{(j % 2) * KB} sc1")
            out.append(q.ins)
        return out

    def h_poll(self, grp, layer):
        p = self.p
        st, tmp = (sU[0], sU[1])[grp & 1], (109, 13)[grp & 1]
        with self.cap() as c1:
            if grp & 1:
                p(f"s_xor_b32 {st}, {sU[4]}, 4")
                if grp >> 1:
                    p(f"s_add_u32 {st}, {st}, 256")
            else:
                p(f"s_add_u32 {st}, {sU[4]}, {(grp >> 1) * 256}")
            self.poll_load("v104", SG, st, 1, tmp)
        with self.cap() as c2:
            self.apoll_end("v104", SG, st, 1 + layer, 1, tmp)
        return c1.ins, c2.ins

    def ffn2(self, layer, ep3, flag2, flag3, F):
        p = self.p
        ACC = ((16, 48), (32, 64))
        lds = self.hl
        k0 = min(len(ep3), self.opt.get("k0", 89 if F > 10 else 20))
        LEAD = self.opt.get("leadh", 14)
        pre = lds[self.n0:min(LEAD, 14)]
        if self.pb:
            pre = [self.pb[0]] + pre
        if k0:
            p.add(spread(ep3[:k0], [(pre, 0, max(0, k0 - 4))]))
            ep3 = ep3[k0:]
        else:
            for it in pre:
                p.add(it)
        issued = max(self.n0, min(LEAD, 14))
        RES = (88, 84)
        TL = self.opt.get("tl", 6)

        with self.cap() as su:
            p(f"v_and_b32 v107, 7, {vLane}")
            p(f"v_bfe_u32 v110, {vLane}, 3, 1")
            if layer == 0:
                p(f"v_lshrrev_b32 v108, 4, {vLane}")
                p("v_lshlrev_b32 v108, 9, v108")
                p("v_lshl_add_u32 v108, v107, 4, v108")
                p("v_lshlrev_b32 v107, 4, v107")
                p("v_lshl_add_u32 v107, v110, 9, v107")
            else:
                p("v_mul_u32_u24 v108, 896, v107")
                p("v_lshlrev_b32 v107, 4, v107")
                p("v_lshl_add_u32 v107, v110, 3, v107")
                p(f"v_lshrrev_b32 v110, 3, {vLane}")
                p("v_lshl_add_u32 v108, v110, 4, v108")
            p(f"v_lshrrev_b32 v110, 4, {vLane}")
            p("v_lshl_add_u32 v107, v110, 10, v107")

        def resid(th):
            q = sub()
            q(f"s_add_u32 {sT3}, {sU[5]}, {th * 2 * 28 * KB}")
            if layer == 0:
                q(f"buffer_load_dwordx4 {V(RES[th])}, v107, {SG}, {sT3} offen sc1")
            else:
                q(f"buffer_load_dwordx2 {V(RES[th], 2)}, v107, {SG}, {sT3} offen sc1")
                q(f"buffer_load_dwordx2 {V(RES[th] + 2, 2)}, v107, {SG}, {sT3} offen offset:512 sc1")
            return q.ins

        def mm():
            main = []
            for n in range(56):
                th, j = divmod(n, 28)
                b = V(112 + 4 * (n % 16))
                for ch in range(2):
                    acc = V(ACC[th][ch], 16)
                    main.append([Ins(f"{MFMA} {acc}, {w2reg(j, ch)}, {b}, {acc if j else 0}")])
            tail = main[112 - 2 * TL:]
            return main[:112 - 2 * TL] + tail[0::2] + tail[1::2]

        def reduce(th, woven):
            area = th * 16 * KB
            a0, a1 = ACC[th]
            quad = [a0, a0 + 4, a0 + 8, a0 + 12, a1, a1 + 4, a1 + 8, a1 + 12]
            T = 92
            items = []
            with self.cap() as c:
                for k in range(8):
                    p(f"ds_write_b128 v{105 + (k & 1)}, {V(quad[k])} offset:{area + k * KB}")
                for r in range(4):
                    p(f"v_lshlrev_b32 v{T + 2 * r}, 16, v{RES[th] + r}")
                    p(f"v_and_b32 v{T + 2 * r + 1}, {sHI}, v{RES[th] + r}")
            items += groups(c.ins)
            with self.cap() as c:
                p.wait_ds()
                p("s_barrier")
                for u in range(4):
                    for k in range(2):
                        p(f"ds_read_b128 {V(quad[2 * u + k])}, v111 offset:{area + u * 8 * KB + k * (KB if layer == 0 else 512)}")
            items.append(c.ins)
            with self.cap() as c:
                for u in range(4):
                    for k in range(2):
                        if woven:
                            for r in range(4):
                                p(f"v_add_f32 v{T + 4 * k + r}, v{T + 4 * k + r}, v{quad[2 * u + k] + r}")
                        else:
                            for r in (0, 2):
                                p(f"v_pk_add_f32 {V(T + 4 * k + r, 2)}, {V(T + 4 * k + r, 2)}, {V(quad[2 * u + k] + r, 2)}")
                for r in range(4):
                    p(f"v_cvt_pk_bf16_f32 v{80 + r}, v{T + 2 * r}, v{T + 2 * r + 1}")
            items += groups(c.ins)
            if layer == 1:
                with self.cap() as c:
                    p(f"s_add_u32 {sT3}, {sU[7]}, {th * 32 * 896}")
                    p(f"buffer_store_dwordx4 {V(80)}, v108, {SOUT}, {sT3} offen {'sc1' if self.opt.get('outsc1', 1) else ''}")
                items.append(c.ins)
                return items, []
            with self.cap() as c:
                p(f"s_add_u32 {sT4}, {sU[5]}, {th * 2 * 28 * KB}")
                self.publish([f"buffer_store_dwordx4 {V(80)}, v107, {SG}, {sT4} offen"], f"x{th}")
            items.append(c.ins)
            with self.cap() as c:
                p(f"v_add_f32 v100, v{T}, v{T + 1}")
                p(f"v_mul_f32 v101, v{T}, v{T}")
                p(f"v_fmac_f32 v101, v{T + 1}, v{T + 1}")
                for r in range(2, 8):
                    p(f"v_add_f32 v100, v100, v{T + r}")
                    p(f"v_fmac_f32 v101, v{T + r}, v{T + r}")
                p("v_add_f32_dpp v100, v100, v100 row_ror:8 row_mask:0xf bank_mask:0xf")
                p("v_add_f32_dpp v101, v101, v101 row_ror:8 row_mask:0xf bank_mask:0xf")
                p("v_permlane16_swap_b32 v100, v101")
                p("v_add_f32 v100, v100, v101")
                p("v_mov_b32 v101, v100")
                p("v_permlane32_swap_b32 v100, v101")
                p("v_add_f32 v100, v100, v101")
            items += groups(c.ins)
            with self.cap() as c:
                p(f"s_add_u32 {sT3}, {sU[6]}, {th * 7 * KB}")
                self.publish(["s_mov_b64 exec, 0x00ff00ff", f"buffer_store_dword v100, v108, {SG}, {sT3} offen",
                              "s_mov_b64 exec, -1"], f"x{th}")
            items.append(c.ins)
            with self.cap() as c:
                p(f"s_add_u32 {sT3}, {sU[7]}, {th * 128}")
                self.flag(sT3, 2, wait=f"x{th}", tmp=102, st=sT4)
            return items, c.ins
        E3 = max(4, len(ep3) * self.opt.get("e3", 24) // 89)
        F2 = self.opt.get("f2", max(0, F - 6))
        F3 = self.opt.get("f3", E3 + (24 if F > 10 else 16))
        LAG = self.opt.get("lag2", 14)
        pc, pd = self.h_poll(2, layer), self.h_poll(3, layer)
        seen = {0: -1, 1: self.opt.get("gb2", 6) if self.pb else -1}
        GC = F2 + self.opt.get("fd2", 12)
        seen[2] = GC + LAG
        GD = max(F3 + self.opt.get("fd2", 12), seen[2] + 1)
        seen[3] = GD + LAG
        streams = []
        if self.pb:
            streams.append(([self.pb[1]], seen[1], seen[1]))
        streams += [([pc[0]], GC, GC), ([pc[1]], seen[2], seen[2]), ([pd[0]], GD, GD), ([pd[1]], seen[3], seen[3])]
        g = 0.0
        for n in range(issued, 56):
            g = max(g, 2 * (n - 16) + 1, 2 * (n - LEAD) + 1, seen[n // 14])
            g = min(g, 2 * (n - self.opt.get("minlead", 4)) + 1)
            assert g >= seen[n // 14] and g >= 2 * (n - 16) + 1, (n, g)
            streams.append(([lds[n]], int(g), int(g)))
            g += self.opt.get("pace", 21) / 10
        bar = [Ins("s_barrier")]
        r0, f0 = reduce(0, True)
        r1, f1 = reduce(1, False)
        if TL:
            streams.append((r1[8:16], 112 - TL - 2, 112 - TL + 1))
            streams.append((r1[:4], 112 - TL + 2, 111))
            r1 = r1[4:8] + r1[16:]
        streams += [([bar], 0, 0), (ep3, 1, E3), ([flag2], F2, F2), ([flag3], F3, F3),
                    (groups(su.ins) + [resid(0)], E3 + 1, E3 + 16), ([resid(1)], 56, 56), (r0, 57, 92), ([bar], 96, 96)]
        if f0:
            streams.append(([f0], 102, 102))
        woven = spread(mm(), streams)
        k = 0
        for x in woven:
            p.add([x])
            if x.kind == "mfma":
                k += 1
                if k == 56:
                    self.stamp(f"th0_done{layer}")
        self.stamp(f"th1_done{layer}")
        for it in r1:
            p.add(it)
        p.add(f1)
        self.stamp(f"ffn2_done{layer}")

    def spare0(self):
        p = self.p
        if not self.opt.get("h0sc1", 1):
            p(f"s_and_b32 {sT0}, {sh}, 1")
            p(f"s_lshl_b32 {sT0}, {sT0}, 2")
            p(f"s_add_u32 {sT0}, {sT0}, {sw}")
            p(f"s_mul_i32 {sT0}, {sT0}, {14 * KB}")
            p(f"s_mul_i32 {sT1}, {srh}, {4 * 112 * KB}")
            p(f"s_add_u32 {sT0}, {sT0}, {sT1}")
            p(f"v_lshlrev_b32 v64, 7, {vLane}")
            for tb in (0, 2, 1, 3):
                for off in (0, 6 * KB):
                    p(f"s_add_u32 {sT1}, {sT0}, {G_H + tb * 112 * KB + off}")
                    p(f"buffer_load_dword v65, v64, {SG}, {sT1} offen sc1")
        self.colsum_qkv()
        p.wait_ds()
        p("s_barrier")
        self.colsum_qkv_fetch()
        if self.opt.get("nap", 1):
            p(f"v_min_u32 v16, 13, {vLane}")
            p("v_lshlrev_b32 v16, 2, v16")
            p(f"s_lshl_b32 {sT0}, {srh}, 10")
            p(f"s_add_u32 {sT0}, {sT0}, {G_FH + 3 * 256}")
            self.poll("v16", SG, sT0, 1, sleep=12)
        p("s_waitcnt vmcnt(0) lgkmcnt(0)")

    def spare1(self):
        p = self.p
        wb = self.opt.get("wb", 0)
        if not wb:
            return
        p(f"s_and_b32 {sT0}, {sh}, 1")
        p(f"s_or_b32 {sT0}, {sT0}, {srh}")
        p(f"s_or_b32 {sT0}, {sT0}, {sw}")
        p(f"s_cmp_lg_u32 {sT0}, 0")
        p(f"s_cbranch_scc1 L_fin{self.sfx}")
        if wb == 4:
            p(f"v_and_b32 v13, 15, {vLane}")
            p("v_min_u32 v13, 13, v13")
            p(f"v_bfe_u32 v14, {vLane}, 4, 1")
            p("v_lshl_add_u32 v13, v14, 5, v13")
            p("v_lshlrev_b32 v16, 2, v13")
            p(f"s_mov_b32 {sT0}, {G_FO + 64}")
            self.poll("v16", SG, sT0, 9)
            p("buffer_wbl2 sc1")
            p("s_waitcnt vmcnt(0)")
            return
        p(f"v_and_b32 v13, 15, {vLane}")
        p("v_min_u32 v13, 13, v13")
        p("v_lshlrev_b32 v13, 3, v13")
        p(f"v_lshrrev_b32 v14, 4, {vLane}")
        p("v_lshl_add_u32 v16, v14, 7, v13")
        p(f"s_mov_b32 {sT0}, {G_FX}")
        self.poll("v16", SG, sT0, 3, 2)
        p(f"s_mov_b32 {sT0}, {G_FX + 512}")
        self.poll("v16", SG, sT0, 3, 2)
        p("buffer_wbl2 sc1")
        p("s_waitcnt vmcnt(0)")
        if wb >= 2:
            p(f"v_and_b32 v13, 15, {vLane}")
            p("v_min_u32 v13, 13, v13")
            p("v_lshlrev_b32 v13, 2, v13")
            p(f"v_lshrrev_b32 v14, 4, {vLane}")
            p("v_lshl_add_u32 v16, v14, 6, v13")
            for tb in ((2, 3) if wb == 2 else (0, 2, 1, 3)):
                for half in range(2):
                    p(f"s_mov_b32 {sT0}, {G_FH + (4 * half + tb) * 256}")
                    self.poll("v16", SG, sT0, 2)
                p("buffer_wbl2 sc1")
                p("s_waitcnt vmcnt(0)")

    def finish(self):
        p = self.p
        p(f"s_or_b32 {sT0}, {sg}, {sh}")
        p(f"s_or_b32 {sT0}, {sT0}, {srh}")
        p(f"s_or_b32 {sT0}, {sT0}, {sw}")
        p(f"s_cmp_lg_u32 {sT0}, 0")
        p(f"s_cbranch_scc1 L_fin{self.sfx}")
        p(f"s_add_u32 {sT0}, {sE}, 64")
        p(f"v_mov_b32 v14, {sT0}")
        p("s_mov_b64 exec, 1")
        p(f"buffer_store_dword v14, {vL16}, {SWS}, 0 offen sc1")
        p("s_mov_b64 exec, -1")
        p(f"L_fin{self.sfx}:")
        if self.pad:
            p("s_waitcnt vmcnt(0)")
            if self.opt.get("amp") == "end":
                p("s_memrealtime s[94:95]")
            p("s_waitcnt lgkmcnt(0)")
            p("s_sub_u32 s94, s94, s96")
            p("s_mul_i32 s94, s94, 4")
            p("s_min_u32 s94, s94, 20000")
            p(f"s_add_u32 s94, s94, {self.pad}")
            p(f"L_pad{self.sfx}:")
            p("s_memrealtime s[98:99]")
            p("s_waitcnt lgkmcnt(0)")
            p("s_sub_u32 s98, s98, s96")
            p(f"s_cmp_lt_u32 s98, s94")
            p(f"s_cbranch_scc1 L_pad{self.sfx}")
        if self.diag:
            p("s_waitcnt vmcnt(0)")
            self.stamp("end")
            self.stamp_flush()
            p(f"s_lshl_b32 {sT0}, {srh}, 4")
            p(f"s_add_u32 {sT0}, {sT0}, {sh}")
            p(f"s_lshl_b32 {sT0}, {sT0}, 3")
            p(f"s_add_u32 {sT0}, {sT0}, {sg}")
            p(f"s_lshl_b32 {sT0}, {sT0}, 2")
            p(f"s_add_u32 {sT0}, {sT0}, {sw}")
            p(f"s_lshl_b32 {sT0}, {sT0}, 7")
            p(f"s_add_u32 {sT0}, {sT0}, {WS_DIAG}")
            p("s_mov_b64 exec, 1")
            for i in range(self.nstamp):
                p(f"v_mov_b32 v14, s{STAMP0 + i}")
                p(f"buffer_store_dword v14, {vL16}, {SWS}, {sT0} offen offset:{4 * i}")
            for k in range(2):
                p(f"v_mov_b32 v14, s{18 + k}")
                p(f"buffer_store_dword v14, {vL16}, {SWS}, {sT0} offen offset:{112 + 4 * k}")
            p(f"v_mov_b32 v14, {1 if self.fast else 0}")
            p(f"buffer_store_dword v14, {vL16}, {SWS}, {sT0} offen offset:120")
            p(f"v_mov_b32 v14, {slim}")
            p(f"buffer_store_dword v14, {vL16}, {SWS}, {sT0} offen offset:124")
            p("s_mov_b64 exec, -1")
        p("s_waitcnt vmcnt(0)")
        p("s_endpgm")

    def body(self):
        p = self.p
        x = self.sfx
        self.q0()

        self.kv_finish(0, 64, "v11")
        self.stamp_flush()
        p(f"s_cmp_ge_u32 {sh}, 14")
        p(f"s_cbranch_scc1 L_spare0{x}")
        assert len(self.bulk) <= 84
        b2 = self.touch[4] + self.take(self.opt.get("b2", 8))

        def pre_wo0():
            for it in b2:
                p.add(it)
            self.colsum_qkv()
        n_before = min(28, 28 + 56 - len(self.bulk))
        cs1 = self.colsum_w1_items()
        b3 = self.take(self.opt.get("b3", 10))
        self.wo_phase(0, pre_wo0, [(cs1[:n_before], 0, 26), (b3, 20, 27)])
        b4 = self.take(max(self.opt.get("b4", 0), len(self.bulk) - 56))

        def pre_ffn0():
            self.colsum_qkv_fetch()
            for it in b4:
                p.add(it)
            for it in cs1[n_before:]:
                p.add(it)
            p(f"v_mov_b32 v84, v{vCS1}")
            p(f"v_mov_b32 v85, v{vCS1 + 1}")
            p.wait_ds()
            p("s_barrier")

        def extra0(pos):
            return [(self.take(100), self.opt.get("w2beg", 10), pos[self.opt.get("w2end", 100)])]
        self.ffn(0, pre_ffn0, extra0)
        p(f"L_layer1{x}:")
        p("s_waitcnt lgkmcnt(0)")
        self.qkv1()
        self.kv_finish(1, 96, "v91")
        p(f"s_cmp_ge_u32 {sh}, 14")
        p(f"s_cbranch_scc1 L_spare1{x}")
        self.wo_phase(1)
        self.ffn(1)
        self.finish()
        p(f"L_spare0{x}:")
        p("s_waitcnt vmcnt(0) lgkmcnt(0)")
        self.spare0()
        p(f"s_branch L_layer1{x}")
        p(f"L_spare1{x}:")
        p("s_waitcnt vmcnt(0) lgkmcnt(0)")
        self.spare1()
        p(f"s_branch L_fin{x}")
        p.add(self.tail)
        self.tail = []

    def build(self):
        p = self.p
        self.prologue()
        self.startup()
        self.qkv0()
        self.body()
        p("L_fastend:")
        p("L_slow:")
        p("s_waitcnt vmcnt(0) lgkmcnt(0)")
        p("s_nop 7")
        self.fast = False
        self.sfx = "_s"
        self.body()
        return finalize(p.ins)


HEADER = f"""; Two layers of (LayerNorm, linear attention, output projection, LayerNorm, SiLU FFN) in one persistent launch.
; @launch grid=(256,1,1) block=(256,1,1) lds={LDS_BYTES}
.amdgcn_target "amdgcn-amd-amdhsa--gfx950"
.text
.globl {NAME}_kernel
.p2align 8
.type {NAME}_kernel,@function
{NAME}_kernel:
"""
FOOTER = f"""
.section .rodata,"a"
.p2align 6
.amdhsa_kernel {NAME}_kernel
  .amdhsa_next_free_vgpr 512
  .amdhsa_next_free_sgpr 102
  .amdhsa_accum_offset 256
  .amdhsa_group_segment_fixed_size 0
  .amdhsa_kernarg_size 72
  .amdhsa_user_sgpr_count 2
  .amdhsa_user_sgpr_kernarg_segment_ptr 1
  .amdhsa_system_sgpr_workgroup_id_x 1
.end_amdhsa_kernel
"""


def generate(**kw):
    g = Gen(**kw)
    lines = g.build()
    return HEADER + "\n".join(lines) + FOOTER, g


if __name__ == "__main__":
    out = sys.argv[1] if len(sys.argv) > 1 else f"cdna_kernels/{NAME}.s"
    kw = {}
    for a in sys.argv[2:]:
        k, _, v = a.partition("=")
        kw[k] = (int(v) if v.lstrip('-').isdigit() else v) if v else True
    text, g = generate(**kw)
    open(out, "w").write(text)
    print("wrote", out, len(text), "bytes;", text.count("\n"), "lines")
```

```python
import sys, os
sys.path.insert(0, os.path.dirname(os.path.abspath(__file__)))
from asmlib import *

NAME = "interleave_layers__linear_attn_block__dense_activation_silu__prompt"
KB = 1024

WS_EPOCH = 0
WS_RA = 0x8000
WS_RB = 0x10000
WS_DIAG = 0x20000
WS_KV = 0x80000
KV_L = 0x80000
WS_PQ = 0x180000
WS_PO = WS_PQ + 16 * 28 * KB
WS_P1 = WS_PO + 14 * 28 * KB
WS_P2 = WS_P1 + 14 * 112 * KB
WS_G = 0x680000
assert WS_P2 + 7 * 224 * KB <= WS_G
OOB = 0x40000000
G_STRIDE = 0x160000
G_H = 0
G_O = 8 * 112 * KB
G_X = G_O + 8 * 28 * KB
G_ST = G_X + 8 * 28 * KB
G_FX = G_ST + 8 * 7 * KB
G_FO = G_FX + 1024
G_FH = G_FO + 1024
G_END = G_FH + 2048
assert G_END <= G_STRIDE
WS_BYTES = WS_G + 8 * G_STRIDE

L_WK, L_WV, L_WQ, L_WO, L_S = 0, 28 * KB, 56 * KB, 84 * KB, 112 * KB
L_XST = 48 * KB
S_KVP, S_KVS = 0, 16 * KB
S_CS = 18 * KB
S_STAT, S_TR = 42 * KB, 44 * KB
LDS_BYTES = 160 * KB

SX, SQ, SO, S1, S2, SOUT, SWS, SG = ("s[8:11]", "s[12:15]", "s[16:19]", "s[20:23]", "s[24:27]", "s[28:31]",
                                     "s[32:35]", "s[36:39]")
sE, sg, sh, srh, sw, sfast, srq, scb, stb, sxs, slim = ("s56", "s57", "s58", "s59", "s60", "s61", "s62", "s63",
                                                        "s64", "s65", "s66")
sT0, sT1, sT2, sT3, sT4, sT5 = "s40", "s41", "s42", "s43", "s44", "s45"
sCnt, sNeed = "s46", "s47"
sONES, sLOG2E, sEPS6, sHI = "s48", "s49", "s50", "s51"
sM28 = "s[52:53]"
sMPAD = "s[54:55]"
sHB, sXB, sSTB = "s67", "s68", "s69"
STAMP0 = 80
sU = [f"s{70 + i}" for i in range(10)]
SPK = "s[20:23]"

vLane, vL16, vTrA, vTrB = "v0", "v1", "v2", "v3"
vCS1 = 4
vCSQ = 6
vS16 = "v12"
vT0, vT1, vT2 = "v13", "v14", "v15"


def V(n, k=4):
    return f"v[{n}:{n + k - 1}]" if k > 1 else f"v{n}"


def A(n, k=4):
    return f"a[{n}:{n + k - 1}]" if k > 1 else f"a{n}"


def w1reg(s, lo=0, k=4):
    return A(224 + 4 * s + lo, k) if s < 8 else V(176 + 4 * (s - 8) + lo, k)


def w2reg(j, ch, lo=0, k=4):
    return A(8 * j + 4 * ch + lo, k)


MFMA = "v_mfma_f32_32x32x16_bf16"
MFMA16 = "v_mfma_f32_16x16x32_bf16"


class Capture:
    def __init__(self, g):
        self.g = g

    def __enter__(self):
        self.saved = self.g.p.ins
        self.g.p.ins = []
        self.ins = self.g.p.ins
        return self

    def __exit__(self, *a):
        self.g.p.ins = self.saved


class Gen:
    def __init__(self, diag=False, force_slow=False, pad=0, part=0, **opt):
        self.p = Prog()
        self.diag = diag
        self.force_slow = force_slow
        self.pad = pad
        self.part = part
        self.opt = opt
        self.nstamp = 0
        self.seen = 0
        self.stamp_names = []
        self.pending = False
        self.tail = []
        self.fast = True
        self.sfx = ""

    def cap(self):
        return Capture(self)

    def stamp(self, name, op="s_memrealtime"):
        if self.opt.get("amp") == name and self.fast:
            self.p("s_memrealtime s[94:95]")
        if not self.diag or not self.fast:
            return
        self.seen += 1
        lo = self.opt.get("from", 18 * self.part)
        if self.seen > 2 and not (lo <= self.seen - 3 < lo + 18):
            return
        self.stamp_flush()
        assert STAMP0 + self.nstamp < 100, "too many stamps"
        self.p(f"{op} s[100:101]")
        self.stamp_names.append(name)
        self.nstamp += 1
        self.pending = True

    def stamp_flush(self):
        if self.diag and self.pending:
            self.p(f"s_mov_b32 s{STAMP0 + self.nstamp - 1}, s100")
            self.pending = False

    def publish(self, stores, tag="pub", always_sc1=False):
        for s in stores:
            self.p(s + (" sc1" if s.startswith("buffer_") and (always_sc1 or not self.fast) else ""), tag)

    def flag(self, soff, val, n=1, wait="pub", tmp=14, st=sT5):
        p = self.p
        p(f"s_add_u32 {st}, {sE}, {val}")
        p(f"v_mov_b32 v{tmp}, {st}")
        if n == 2:
            p(f"v_mov_b32 v{tmp + 1}, {st}")
        op = f"buffer_store_dword v{tmp}" if n == 1 else f"buffer_store_dwordx2 v[{tmp}:{tmp + 1}]"
        p.wait_vm(wait)
        self.publish(["s_mov_b64 exec, 1", f"{op}, {vL16}, {SG}, {soff} offen", "s_mov_b64 exec, -1"], "flag")

    def poll_load(self, vaddr, srd, soff, n, tmp):
        if n == 1:
            self.p(f"buffer_load_dword v{tmp}, {vaddr}, {srd}, {soff} offen sc1")
        else:
            self.p(f"buffer_load_dwordx2 v[{tmp}:{tmp + 1}], {vaddr}, {srd}, {soff} offen sc1")

    def poll_test(self, n, tmp, need):
        p = self.p
        p(f"v_subrev_u32 v{tmp}, {need}, v{tmp}")
        if n == 2:
            p(f"v_subrev_u32 v{tmp + 1}, {need}, v{tmp + 1}")
            p(f"v_or_b32 v{tmp}, v{tmp}, v{tmp + 1}")
        p(f"v_cmp_lt_u32 vcc, 31, v{tmp}")

    def spin(self, vaddr, srd, soff, n, tmp, need, done, sleep=0):
        p = self.p
        lp = p.label("poll")
        p(f"s_mov_b32 {sCnt}, {slim}")
        p(f"{lp}:")
        self.poll_load(vaddr, srd, soff, n, tmp)
        p("s_waitcnt vmcnt(0)")
        self.poll_test(n, tmp, need)
        p(f"s_cbranch_vccz {done}")
        if sleep:
            p(f"s_sleep {sleep}")
        p(f"s_sub_u32 {sCnt}, {sCnt}, 1")
        p(f"s_cmp_lg_u32 {sCnt}, 0")
        p(f"s_cbranch_scc1 {lp}")
        p(f"s_mov_b32 {slim}, 1")

    def poll(self, vaddr, srd, soff, need, n=1, tmp=14, sleep=0):
        p = self.p
        ld = p.label("polled")
        p(f"s_add_u32 {sNeed}, {sE}, {need}")
        self.spin(vaddr, srd, soff, n, tmp, sNeed, ld, sleep)
        p(f"{ld}:")

    def apoll_end(self, vaddr, srd, soff, need, n=1, tmp=14):
        p = self.p
        lo, lb = p.label("aspin"), p.label("aback")
        p(f"s_add_u32 {sNeed}, {sE}, {need}")
        self.poll_test(n, tmp, sNeed)
        p(f"s_cbranch_vccnz {lo}")
        p(f"{lb}:")
        with self.cap() as c:
            p(f"{lo}:")
            p("s_nop 4")
            self.spin(vaddr, srd, soff, n, tmp, sNeed, lb)
            p(f"s_branch {lb}")
        self.tail.extend(c.ins)

    def trread(self, dst_lo, dst_hi, vaddr, off, second=512):
        return [Ins(f"ds_read_b64_tr_b16 {dst_lo}, {vaddr} offset:{off}"),
                Ins(f"ds_read_b64_tr_b16 {dst_hi}, {vaddr} offset:{off + second}")]

    def transpose_block(self, reg, aw, ar):
        return [Ins(f"ds_write_b128 {aw}, {reg(0, 4)}"),
                Ins(f"ds_read_b64_tr_b16 {reg(0, 2)}, {ar}"),
                Ins(f"ds_read_b64_tr_b16 {reg(2, 2)}, {ar} offset:512")]

    def tr_addrs(self, aw, ar):
        p = self.p
        p(f"s_lshl_b32 {sT0}, {sw}, 10")
        p(f"s_add_u32 {sT0}, {sT0}, {L_S + S_TR}")
        p(f"v_add_u32 {aw}, {sT0}, {vL16}")
        p(f"v_add_u32 {ar}, {sT0}, {vTrA}")

    def both_halves(self, s, q, tmp):
        p = self.p
        p(f"v_permlane32_swap_b32 {s}, {q}")
        p(f"v_add_f32 {s}, {s}, {q}")

    def stats_finish(self, t, u, mean, var):
        p = self.p
        p(f"v_mov_b32 {u}, {t}")
        p(f"v_permlane32_swap_b32 {t}, {u}")
        p(f"v_mul_f32 {mean}, 0x3b124925, {t}")
        p(f"v_mul_f32 {var}, 0x3b124925, {u}")
        p(f"v_fma_f32 {var}, -{mean}, {mean}, {var}")
        p(f"v_max_f32 {var}, 0, {var}")
        p(f"v_add_f32 {var}, 0x3727c5ac, {var}")

    def split_words(self, x, w0, w1, t, neg, xside):
        p = self.p
        s = "-" if neg else ""
        p(f"v_cvt_pk_bf16_f32 {w0}, {s}{x}, {s}{x}")
        p(f"v_and_b32 {t}, {sHI}, {w0}")
        p(f"v_sub_f32 {t}, {s}{x}, {t}" if not neg else f"v_sub_f32_e64 {t}, -{x}, {t}")
        if xside:
            p(f"v_and_b32 {w1}, 0xffff, {w0}")
            p(f"v_cvt_pk_bf16_f32 {t}, {t}, {t}")
            p(f"v_and_or_b32 {w0}, {t}, {sHI}, {w1}")
        else:
            p(f"v_cvt_pk_bf16_f32 {w1}, {t}, 0")

    def prologue(self):
        p = self.p
        p("s_cmp_lt_u32 s2, 256")
        p("s_cbranch_scc1 L_start")
        p("s_endpgm")
        p("L_start:")
        p("s_load_dwordx4 s[40:43], s[0:1], 0")
        p("s_load_dwordx2 s[52:53], s[0:1], 64")
        p("s_load_dwordx2 s[44:45], s[0:1], 16")
        p("s_load_dwordx4 s[48:51], s[0:1], 32")
        p("s_load_dwordx2 s[46:47], s[0:1], 48")
        self.stamp("realtime", "s_memrealtime")
        if self.pad:
            p("s_memrealtime s[96:97]")
            p("s_memrealtime s[94:95]")
        p("s_getpc_b64 s[6:7]")
        p("L_pc:")
        p("v_lshrrev_b32 v13, 6, v0")
        p(f"v_and_b32 {vLane}, 63, v0")
        p(f"v_readfirstlane_b32 {sw}, v13")
        p(f"s_and_b32 {sg}, s2, 7")
        p(f"s_lshr_b32 s3, s2, 3")
        p(f"s_lshl_b32 s4, s3, 2")
        p(f"s_add_u32 s4, s4, {sw}")
        p(f"s_lshl_b32 s4, s4, 9")
        p(f"v_lshlrev_b32 v9, 7, {vLane}")
        p("v_add_u32 v13, s4, v9")
        p("v_min_u32 v13, L_fastend-L_pc-4, v13")
        p("s_mov_b64 exec, 0xf")
        p("global_load_dword v10, v13, s[6:7]")
        p("s_mov_b64 exec, -1")
        p(f"s_and_b32 {sh}, s3, 15")
        p(f"s_lshr_b32 {srh}, s3, 4")
        p(f"s_lshl_b32 s2, {sg}, 1")
        p(f"s_add_u32 s2, s2, {srh}")
        p("s_lshl_b32 s3, s2, 2")
        p(f"s_add_u32 s3, s3, {sw}")
        p("s_min_u32 s5, s3, 55")
        p("s_cmp_ge_u32 s5, 28")
        p("s_cselect_b32 s4, 1, 0")
        p("s_cselect_b32 s6, 28, 0")
        p("s_sub_u32 s5, s5, s6")
        p(f"v_lshrrev_b32 v13, 2, {vLane}")
        p(f"v_and_b32 v15, 3, {vLane}")
        p("v_lshlrev_b32 v15, 4, v15")
        p("v_mul_u32_u24 v14, 2688, v13")
        p("v_add_u32 v6, v14, v15")
        p("v_mul_u32_u24 v14, 896, v13")
        p("v_add_u32 v7, v14, v15")
        p("v_mul_u32_u24 v14, 3584, v13")
        p("v_add_u32 v8, v14, v15")
        p(f"s_cmp_ge_u32 {sh}, 7")
        p(f"s_cselect_b32 s6, 1, 0")
        p(f"s_cselect_b32 s7, 7, 0")
        p(f"s_lshl_b32 {srq}, {srh}, 1")
        p(f"s_add_u32 {srq}, {srq}, s6")
        p(f"s_sub_u32 {scb}, {sh}, s7")
        p(f"s_lshl_b32 {stb}, {srh}, 2")
        p(f"s_and_b32 s6, {sw}, 1")
        p(f"s_lshl_b32 s6, s6, 1")
        p(f"s_lshr_b32 s7, {sw}, 1")
        p(f"s_or_b32 s6, s6, s7")
        p(f"s_add_u32 {sxs}, {stb}, s6")
        p(f"s_add_u32 {stb}, {stb}, {sw}")
        p(f"v_lshlrev_b32 {vL16}, 4, {vLane}")
        p(f"v_lshrrev_b32 v13, 3, {vLane}")
        p("v_mul_u32_u24 v14, 896, v13")
        p("v_lshrrev_b32 v13, 1, v13")
        p(f"v_and_b32 v15, 7, {vLane}")
        p("v_xor_b32 v13, v13, v15")
        p("v_lshl_add_u32 v16, v13, 4, v14")
        p("v_xor_b32 v13, 4, v13")
        p("v_lshl_add_u32 v17, v13, 4, v14")
        p(f"s_lshl_b32 {sU[0]}, {sg}, 3")
        p(f"s_add_u32 {sU[0]}, {sU[0]}, {stb}")
        p(f"s_mul_i32 {sU[0]}, {sU[0]}, {32 * 896}")
        p(f"s_mul_i32 {sU[1]}, {sw}, {28 * KB}")
        p(f"s_add_u32 {sU[1]}, {sU[1]}, {L_XST}")
        p(f"s_cmp_ge_u32 {sh}, 14")
        p(f"s_cselect_b32 {sU[2]}, 7, 0")
        p(f"s_sub_u32 {sU[2]}, {scb}, {sU[2]}")
        p(f"s_mov_b32 s10, {2048 * 896}\ns_mov_b32 s11, 0x00020000")
        p(f"s_mov_b32 s14, {448 * 2688}\ns_mov_b32 s15, 0x00020000")
        p("s_waitcnt lgkmcnt(0)")
        self.stamp("start")
        p("s_mov_b32 s12, s42\ns_mov_b32 s13, s43")
        p("s_mov_b32 s8, s40\ns_mov_b32 s9, s41")
        p(f"s_load_dword {sE}, s[52:53], {WS_EPOCH}")
        for j in range(7):
            p(f"s_lshl_b32 {sU[3]}, {sU[2]}, 7")
            p(f"s_add_u32 {sU[3]}, {sU[3]}, {sU[0]}")
            p(f"s_lshl_b32 {sU[4]}, {sU[2]}, 12")
            p(f"s_add_u32 {sU[4]}, {sU[4]}, {sU[1]}")
            for b in range(4):
                p(f"s_add_u32 m0, {sU[4]}, {b * KB}")
                p(f"s_add_u32 {sU[5]}, {sU[3]}, {b * 8 * 896}")
                p(f"buffer_load_dwordx4 v{16 + (b & 1)}, {SX}, {sU[5]} offen lds", "x")
                if 4 * j + b + 1 == self.opt.get("xa", 4):
                    self.prologue2()
                if 4 * j + b + 1 == self.opt.get("xs", 8) and self.opt.get("st", 0):
                    self.scalar_touch()
            if j < 6:
                p(f"s_add_u32 {sU[2]}, {sU[2]}, 1")
                p(f"s_cmp_eq_u32 {sU[2]}, 7")
                p(f"s_cselect_b32 {sU[2]}, 0, {sU[2]}")

    def scalar_touch(self):
        p = self.p
        p(f"s_lshl_b32 s6, {srh}, 4")
        p(f"s_add_u32 s6, s6, {sh}")
        p("s_lshl_b32 s6, s6, 2")
        p(f"s_add_u32 s6, s6, {sw}")
        p("s_mul_i32 s6, s6, 7")
        p("s_lshr_b32 s6, s6, 1")
        p("s_min_u32 s6, s6, 444")
        p("s_mul_i32 s6, s6, 2688")
        p("s_add_u32 s6, s42, s6")
        p("s_addc_u32 s7, s43, 0")
        n = self.opt.get("st")
        k = 0
        for c in range(14):
            for r in range(4):
                if k < n:
                    p(f"s_load_dword s55, s[6:7], {r * 2688 + 896 + c * 128}")
                k += 1

    def prologue2(self):
        p = self.p
        p(f"s_mul_i32 {sHB}, {stb}, {28 * KB}")
        p(f"s_add_u32 {sHB}, {sHB}, {G_O}")
        p(f"s_mul_i32 {sXB}, {sxs}, {28 * KB}")
        p(f"s_add_u32 {sXB}, {sXB}, {G_X}")
        p(f"s_mul_i32 {sSTB}, {stb}, {7 * KB}")
        p(f"s_add_u32 {sSTB}, {sSTB}, {G_ST}")
        p(f"s_mov_b32 {slim}, 40000")
        p(f"v_add_u32 {vS16}, {L_S}, {vL16}")
        p(f"v_and_b32 v13, 3, {vLane}")
        p("v_lshlrev_b32 v13, 3, v13")
        p(f"v_bfe_u32 v14, {vLane}, 4, 1")
        p("v_lshl_add_u32 v13, v14, 5, v13")
        p(f"v_bfe_u32 v14, {vLane}, 2, 2")
        p("v_lshl_add_u32 v13, v14, 6, v13")
        p(f"v_lshrrev_b32 v14, 5, {vLane}")
        p(f"v_lshl_add_u32 {vTrA}, v14, 8, v13")
        p(f"v_add_u32 {vTrB}, {L_WQ}, {vTrA}")
        p("v_lshl_add_u32 v62, v14, 9, v13")
        p(f"v_add_u32 v63, {L_WQ}, v62")
        p(f"v_and_b32 v13, 31, {vLane}")
        p("v_lshrrev_b32 v14, 3, v13")
        p("v_lshlrev_b32 v14, 10, v14")
        p("v_and_b32 v15, 7, v13")
        p("v_lshl_add_u32 v14, v15, 7, v14")
        p(f"v_add_u32 v14, {sU[1]}, v14")
        p("v_bfe_u32 v13, v13, 1, 3")
        p(f"v_lshrrev_b32 v15, 5, {vLane}")
        p("v_xor_b32 v13, v13, v15")
        for q in range(4):
            p(f"v_xor_b32 v15, {2 * q}, v13")
            p(f"v_lshl_add_u32 v{20 + q}, v15, 4, v14")
        p(f"v_lshrrev_b32 v15, 5, {vLane}")
        p("v_xor_b32 v13, v13, v15")
        p("v_lshl_add_u32 v14, v15, 3, v14")
        p(f"s_min_u32 s6, {sh}, 13")
        p("s_lshr_b32 s7, s6, 1")
        p("s_lshl_b32 s7, s7, 12")
        p("v_add_u32 v14, s7, v14")
        p("s_and_b32 s6, s6, 1")
        p("s_lshl_b32 s6, s6, 2")
        p("v_xor_b32 v13, s6, v13")
        for a in range(4):
            p(f"v_xor_b32 v15, {a}, v13")
            p(f"v_lshl_add_u32 v{24 + a}, v15, 4, v14")
        p(f"s_cmp_lt_u32 {sh}, 14")
        p(f"s_cselect_b32 s18, {448 * 448 * 2}, 0")
        p(f"s_cselect_b32 s22, {448 * 1792 * 2}, 0")
        p(f"s_cselect_b32 s26, {448 * 1792 * 2}, 0")
        for base, src, size in ((16, 44, None), (20, 48, None), (24, 50, None), (28, 46, 2048 * 896),
                                (32, 52, WS_BYTES)):
            p(f"s_mov_b32 s{base}, s{src}")
            p(f"s_mov_b32 s{base + 1}, s{src + 1}")
            if size is not None:
                p(f"s_mov_b32 s{base + 2}, {size}")
            p(f"s_mov_b32 s{base + 3}, 0x00020000")
        p(f"s_mul_i32 s6, {sg}, {G_STRIDE}")
        p(f"s_add_u32 s6, s6, {WS_G}")
        p("s_add_u32 s36, s52, s6")
        p("s_addc_u32 s37, s53, 0")
        p(f"s_mov_b32 s38, {G_STRIDE}")
        p("s_mov_b32 s39, 0x00020000")

    def kv_clear(self):
        p = self.p
        p(f"s_lshl_b32 {sT0}, {sh}, 15")
        p(f"s_lshl_b32 {sT1}, s3, 9")
        p(f"s_add_u32 {sT0}, {sT0}, {sT1}")
        p(f"s_add_u32 {sT0}, {sT0}, {WS_KV}")
        p(f"s_add_u32 {sT1}, {sT0}, {KV_L}")
        p("v_mov_b32 v36, -1\nv_mov_b32 v37, -1")
        p(f"v_lshlrev_b32 v11, 3, {vLane}")
        p(f"buffer_store_dwordx2 v[36:37], v11, {SWS}, {sT0} offen sc1", "pb")
        p(f"buffer_store_dwordx2 v[36:37], v11, {SWS}, {sT1} offen sc1", "pb")

    def wqkv_setup(self):
        p = self.p
        p(f"s_mul_i32 s0, {sh}, 56")
        p(f"s_mul_i32 s1, {sw}, {16 * 2688}")
        p("s_add_u32 s0, s0, s1")
        p(f"s_lshl_b32 s1, {sw}, 10")
        p(f"s_mul_i32 {sU[7]}, s2, 37")
        p(f"s_lshr_b32 {sU[7]}, {sU[7]}, 8")
        p(f"s_mul_i32 {sU[7]}, {sU[7]}, 7")
        p(f"s_sub_u32 {sU[6]}, s2, {sU[7]}")

    def wqkv_item(self, m, lbase, tag):
        p = self.p
        with self.cap() as c:
            p(f"s_lshl_b32 {sU[7]}, {sU[6]}, 12")
            p(f"s_add_u32 {sU[7]}, {sU[7]}, s1")
            p(f"s_add_u32 m0, {sU[7]}, {lbase}")
            p(f"s_mul_i32 {sU[7]}, {sU[6]}, {64 * 2688}")
            p(f"s_add_u32 {sU[7]}, {sU[7]}, s0")
            if m:
                p(f"s_add_u32 {sU[7]}, {sU[7]}, {896 * m}")
            p(f"buffer_load_dwordx4 v6, {SQ}, {sU[7]} offen lds", tag)
            p(f"s_add_u32 {sU[6]}, {sU[6]}, 1")
            p(f"s_cmp_eq_u32 {sU[6]}, 7")
            p(f"s_cselect_b32 {sU[6]}, 0, {sU[6]}")
        return c.ins

    def wo_items(self):
        p = self.p
        items = []
        for u in range(7):
            with self.cap() as c:
                if u == 0:
                    p(f"s_lshl_b32 {sU[8]}, {sh}, 6")
                    p(f"s_mul_i32 {sU[7]}, {sw}, {16 * 896}")
                    p(f"s_add_u32 {sU[8]}, {sU[8]}, {sU[7]}")
                p(f"s_add_u32 m0, s1, {L_WO + 4 * u * KB}")
                p(f"s_add_u32 {sU[7]}, {sU[8]}, {64 * u * 896}")
                p(f"buffer_load_dwordx4 v7, {SO}, {sU[7]} offen lds", "wo")
            items.append(c.ins)
        return items

    def consts(self):
        p = self.p
        p(f"s_mov_b32 {sONES}, 0x3f803f80")
        p(f"s_mov_b32 {sLOG2E}, 0x3fb8aa3b")
        p(f"s_mov_b32 {sEPS6}, 0x358637bd")
        p(f"s_mov_b32 {sHI}, 0xffff0000")
        p("s_mov_b32 s52, 0x10000000")
        p("s_mov_b32 s53, 0x10000000")
        p("s_mov_b32 s54, 0")
        p("s_mov_b32 s55, -1")

    def ready(self, base):
        p = self.p
        p(f"s_lshl_b32 {sT2}, {sh}, 4")
        p(f"s_add_u32 {sT2}, {sT2}, s2")
        p(f"s_lshl_b32 {sT2}, {sT2}, 7")
        p(f"s_add_u32 {sT2}, {sT2}, {base}")
        p(f"s_cmp_eq_u32 {sw}, 0")
        p(f"s_cselect_b32 {sT2}, {sT2}, {OOB}")
        p(f"s_add_u32 {sT5}, {sE}, {sfast}")
        p(f"s_add_u32 {sT5}, {sT5}, 1")
        p(f"v_mov_b32 v14, {sT5}")
        p("s_mov_b64 exec, 1")
        p(f"buffer_store_dword v14, {vL16}, {SWS}, {sT2} offen sc1")
        p("s_mov_b64 exec, -1")

    def pack_b_loads(self):
        p = self.p
        p(f"s_mul_i32 {sT0}, s5, {16 * 3584}")
        p(f"s_lshl_b32 {sT1}, {sh}, 8")
        p(f"s_add_u32 {sT0}, {sT0}, {sT1}")
        p(f"s_lshl_b32 {sT1}, s4, 7")
        p(f"s_add_u32 {sT0}, {sT0}, {sT1}")
        p(f"buffer_load_dwordx4 a[40:43], v8, {S1}, {sT0} offen")
        p(f"buffer_load_dwordx4 a[44:47], v8, {S1}, {sT0} offen offset:64")
        p(f"s_mul_i32 {sU[1]}, {sh}, 112")
        p(f"s_mul_i32 {sT1}, s4, 56")
        p(f"s_add_u32 {sU[1]}, {sU[1]}, {sT1}")
        p(f"s_add_u32 {sU[1]}, {sU[1]}, s5")
        p(f"s_lshl_b32 {sU[1]}, {sU[1]}, 10")
        p(f"s_add_u32 {sU[1]}, {sU[1]}, {WS_P1}")
        p(f"s_cmp_lt_u32 {sh}, 14")
        p(f"s_cselect_b32 s22, {WS_BYTES}, 0")
        p("s_mov_b32 s20, s32\ns_mov_b32 s21, s33")
        self.tr_addrs("v4", "v5")

    def pack_c_loads(self):
        p = self.p
        p(f"s_and_b32 {sU[5]}, {srq}, 1")
        p(f"s_lshl_b32 {sU[5]}, {sU[5]}, 6")
        p(f"s_add_u32 {sU[5]}, {sU[5]}, s3")
        p(f"s_mul_i32 {sU[0]}, {sU[5]}, {16 * 896}")
        p(f"s_lshl_b32 {sU[2]}, {scb}, 7")
        p(f"s_add_u32 {sU[0]}, {sU[0]}, {sU[2]}")
        p(f"s_mul_i32 {sU[2]}, {scb}, 112")
        p(f"s_add_u32 {sU[2]}, {sU[2]}, {sU[5]}")
        p(f"s_lshl_b32 {sU[2]}, {sU[2]}, 11")
        p(f"s_add_u32 {sU[2]}, {sU[2]}, {WS_P2}")
        p(f"s_cmp_lt_u32 {sU[5]}, 112")
        p(f"s_cselect_b32 {sU[0]}, {sU[0]}, {OOB}")
        p(f"s_cselect_b32 {sU[2]}, {sU[2]}, {OOB}")
        p(f"buffer_load_dwordx4 a[48:51], v7, {S2}, {sU[0]} offen")
        p(f"buffer_load_dwordx4 a[52:55], v7, {S2}, {sU[0]} offen offset:64")

    def pack_b_items(self):
        items = [self.transpose_block(lambda lo, k, r=r: A(r + lo, k), "v4", "v5") for r in (40, 44)]
        items.append([Ins(f"buffer_store_dwordx4 a[40:43], {vL16}, {SPK}, {sU[1]} offen sc1", "pb"),
                      Ins(f"s_add_u32 {sU[1]}, {sU[1]}, {28 * KB}")])
        items.append([Ins(f"buffer_store_dwordx4 a[44:47], {vL16}, {SPK}, {sU[1]} offen sc1", "pb")])
        return items

    def pack_c_items(self):
        items = [self.transpose_block(lambda lo, k, r=r: A(r + lo, k), "v4", "v5") for r in (48, 52)]
        items.append([Ins(f"buffer_store_dwordx4 a[48:51], {vL16}, {SPK}, {sU[2]} offen sc1", "pb")])
        items.append([Ins(f"buffer_store_dwordx4 a[52:55], {vL16}, {SPK}, {sU[2]} offen offset:1024 sc1", "pb")])
        return items

    def dma_items(self, vaddr, srd, first, count, tag, stm):
        p = self.p
        items = []
        for u in range(count):
            with self.cap() as c:
                if u == 0:
                    p(f"s_mul_i32 {stm}, {sw}, {count * KB}")
                if u % 4 == 0:
                    p(f"s_add_u32 m0, {stm}, {(first + u) * KB}")
                p(f"buffer_load_dwordx4 {vaddr}, {srd}, m0 offen offset:{(u % 4) * KB} sc1 lds", tag)
            items.append(c.ins)
        return items

    def w1_items(self):
        p = self.p
        items = []
        for s in range(28):
            with self.cap() as c:
                if s == 0:
                    p(f"s_lshl_b32 s24, {sh}, 2")
                    p(f"s_add_u32 s24, s24, {sw}")
                    p(f"s_mul_i32 s24, s24, {28 * KB}")
                    p(f"s_add_u32 s24, s24, {WS_P1}")
                elif s % 4 == 0:
                    p(f"s_add_u32 s24, s24, {4 * KB}")
                p(f"buffer_load_dwordx4 {w1reg(s)}, {vL16}, {SPK}, s24 offen offset:{(s % 4) * KB} sc1", "w1")
            items.append(c.ins)
        return items

    def pack_d_loads(self):
        p = self.p
        p(f"s_mul_i32 {sT2}, s5, {16 * 896}")
        p(f"s_lshl_b32 {sT1}, {sh}, 6")
        p(f"s_add_u32 {sT2}, {sT2}, {sT1}")
        p(f"s_mul_i32 {sT1}, {sh}, 28")
        p(f"s_add_u32 {sT1}, {sT1}, s5")
        p(f"s_lshl_b32 {sT1}, {sT1}, 10")
        p(f"s_add_u32 {sU[9]}, {sT1}, {WS_PO}")
        p("s_cmp_eq_u32 s4, 0")
        p(f"s_cselect_b32 {sT2}, {OOB}, {sT2}")
        p(f"s_cselect_b32 {sU[9]}, {OOB}, {sU[9]}")
        p(f"buffer_load_dwordx4 v[32:35], v7, {SO}, {sT2} offen")
        if self.opt.get("mall", 1):
            p(f"s_lshl_b32 {sT0}, {sh}, 6")
            p(f"s_add_u32 {sT0}, {sT0}, s3")
            p(f"s_lshr_b32 {sT1}, {sT0}, 1")
            p(f"s_mul_i32 {sT1}, {sT1}, 2688")
            p(f"s_and_b32 {sT0}, {sT0}, 1")
            p(f"s_mul_i32 {sT0}, {sT0}, 384")
            p(f"s_add_u32 {sT0}, {sT0}, {sT1}")
            p("s_mov_b64 exec, 0xf")
            p(f"buffer_load_dword v10, v9, {SQ}, {sT0} offen", "touch")
            p("s_mov_b64 exec, -1")

    def pack_d_items(self):
        return [[Ins(f"buffer_store_dwordx4 v[32:35], {vL16}, {SPK}, {sU[9]} offen sc1", "pb")]]

    def touch_items(self, base, lines, per=16):
        p = self.p
        with self.cap() as c:
            p(f"s_mul_i32 {sU[7]}, {srh}, {per}")
            p(f"s_add_u32 {sU[7]}, {sU[7]}, {sh}")
            p(f"s_lshl_b32 {sU[7]}, {sU[7]}, 2")
            p(f"s_add_u32 {sU[7]}, {sU[7]}, {sw}")
            p(f"s_mul_i32 {sU[7]}, {sU[7]}, {lines * 128}")
            p(f"s_add_u32 {sU[7]}, {sU[7]}, {base}")
            assert lines < 32
            p(f"s_mov_b64 exec, {(1 << lines) - 1}")
            p(f"buffer_load_dword v10, v9, {SG}, {sU[7]} offen", "touch")
            p("s_mov_b64 exec, -1")
        return [c.ins]

    def startup(self):
        p = self.p
        p(f"s_getreg_b32 {sfast}, hwreg(HW_REG_XCC_ID, 0, 4)")
        self.wqkv_setup()
        self.pack_b_loads()
        self.pack_c_loads()
        self.pack_d_loads()
        nk0 = self.opt.get("nk0", 2)
        for u in range(nk0):
            p.add(self.wqkv_item(1, L_WK, "wk"))
        p.wait_vm("x")
        p("s_waitcnt lgkmcnt(0)")
        self.consts()
        self.stamp("x_landed")
        for s in range(28):
            p(f"ds_read_b128 {V(64 + 4 * s)}, v{20 + (s & 3)} offset:{(s >> 2) * 4096}")
        for a in range(4):
            p(f"ds_read_b64 {A(56 + 2 * a, 2)}, v{24 + a}")
        for r in range(52, 56):
            p(f"v_mov_b32 v{r}, 0")
        p.wait_ds()
        p("s_barrier")
        with self.cap() as c:
            for i in range(112):
                p(f"v_dot2c_f32_bf16 v{52 + (i & 1)}, {sONES}, v{64 + i}")
                p(f"v_dot2c_f32_bf16 v{54 + (i & 1)}, v{64 + i}, v{64 + i}")
            p("v_add_f32 v52, v52, v53")
            p("v_add_f32 v54, v54, v55")
            self.both_halves("v52", "v54", None)
            self.stats_finish("v52", "v53", "v56", "v58")
            p("v_rsq_f32 v58, v58")
            p("v_mul_f32_e64 v56, -v56, v58")
            p("v_mov_b32 v59, v58")
            p("v_mov_b32 v57, v56")
            for i in range(0, 112 if not self.opt.get("noln") else 8, 2):
                t = 16 + 4 * ((i >> 1) & 1)
                for k in range(2):
                    p(f"v_lshlrev_b32 v{t + 2 * k}, 16, v{64 + i + k}")
                    p(f"v_and_b32 v{t + 2 * k + 1}, {sHI}, v{64 + i + k}")
                for k in range(2):
                    p(f"v_pk_fma_f32 {V(t + 2 * k, 2)}, {V(t + 2 * k, 2)}, v[58:59], v[56:57]")
                for k in range(2):
                    p(f"v_cvt_pk_bf16_f32 v{64 + i + k}, v{t + 2 * k}, v{t + 2 * k + 1}")
        main = groups(c.ins, 4)
        n = len(main)
        wk = [self.wqkv_item(1, L_WK, "wk") for u in range(nk0, 7)]
        wv = [self.wqkv_item(2, L_WV, "wv") for u in range(7)]
        gk = n * self.opt.get("gk", 60) // 100
        with self.cap() as c1:
            self.kv_clear()
        packs = [c1.ins] + self.pack_d_items() + self.pack_b_items() + self.pack_c_items()
        with self.cap() as c2:
            p(f"s_mul_i32 {sT0}, {sh}, {28 * KB}")
            p(f"s_add_u32 {sT1}, {sT0}, {WS_PO - L_WO}")
            p(f"v_add_u32 v8, {sT1}, {vL16}")
        p.add(spread(main, [(wk + wv, 0, gk), (packs + [c2.ins], gk + 2, n - 2)]))
        self.stamp("ln_done")
        p.wait_vm(["wk", "wv"])
        p("s_barrier")
        self.stamp("wkv_landed")

    def phi(self, acc, out, tmp, scale=None, pk=None):
        p = self.p
        for r0 in range(0, 16, 2):
            rr = (r0, r0 + 1)
            a = {r: f"v{acc + r}" for r in rr}
            t = {r: f"v{tmp + (r & 3)}" for r in rr}
            a2, t2 = V(acc + r0, 2), V(tmp + (r0 & 3), 2)
            if pk is not None:
                k2 = V(pk, 2)
                if scale is None:
                    p(f"v_pk_add_f32 {a2}, {a2}, {k2} op_sel_hi:[1,0]")
                else:
                    sc, hi = scale(r0)
                    p(f"v_pk_fma_f32 {a2}, {a2}, {sc}, {k2} op_sel_hi:[1,{hi},0]")
                p(f"v_pk_mul_f32 {t2}, {a2}, {k2} op_sel:[0,1] op_sel_hi:[1,1]")
            else:
                for r in rr:
                    if scale is None:
                        p(f"v_add_f32 {a[r]}, {sEPS6}, {a[r]}")
                    else:
                        p(f"v_fma_f32 {a[r]}, {a[r]}, {scale(r)}, {sEPS6}")
                for r in rr:
                    p(f"v_mul_f32 {t[r]}, {sLOG2E}, {a[r]}")
            for r in rr:
                p(f"v_exp_f32 {t[r]}, {t[r]} clamp")
            for r in rr:
                p(f"v_max_f32 {a[r]}, {sEPS6}, {a[r]}")
            if pk is not None:
                p(f"v_pk_add_f32 {a2}, {a2}, {t2}")
            else:
                for r in rr:
                    p(f"v_add_f32 {a[r]}, {a[r]}, {t[r]}")
            p(f"v_cvt_pk_bf16_f32 v{out + (r0 >> 1)}, {a[r0]}, {a[r0 + 1]}")

    def v_pack(self):
        p = self.p
        for r in range(8):
            p(f"v_cvt_pk_bf16_f32 v{32 + r}, v{32 + 2 * r}, v{33 + 2 * r}")
        p(f"s_mov_b64 exec, {sM28}")
        for r in range(8):
            p(f"v_mov_b32 v{32 + r}, {sONES}")
        p("s_mov_b64 exec, -1")

    def kv_addrs(self, layer, a0, a1, a2):
        p = self.p
        p(f"s_lshl_b32 {sT0}, {sw}, 10")
        p(f"v_add_u32 {a0}, {sT0}, {vS16}")
        p(f"s_lshl_b32 {sT0}, {sw}, 12")
        p(f"v_add_u32 {a1}, {sT0}, {vS16}")
        p(f"v_lshlrev_b32 {a2}, 3, {vLane}")
        p(f"s_lshl_b32 {sT0}, {sh}, 15")
        p(f"s_lshl_b32 {sT1}, {sw}, 9")
        p(f"s_add_u32 {sT0}, {sT0}, {sT1}")
        p(f"s_add_u32 s6, {sT0}, {WS_KV + layer * KV_L}")
        p(f"s_lshl_b32 {sT1}, {sg}, 1")
        p(f"s_add_u32 {sT1}, {sT1}, {srh}")
        p(f"s_lshl_b32 {sT1}, {sT1}, 11")
        p(f"s_add_u32 s7, {sT1}, s6")

    def kv_publish(self, kvacc, a0, a1, a2):
        p = self.p
        p(f"{MFMA} {kvacc(0, 16)}, {V(16)}, {V(32)}, 0")
        p(f"{MFMA} {kvacc(0, 16)}, {V(20)}, {V(36)}, {kvacc(0, 16)}")
        for q in range(4):
            p(f"ds_write_b128 {a0}, {kvacc(4 * q, 4)} offset:{S_KVP + q * 4096}")
        p.wait_ds()
        p("s_barrier")
        for u in range(4):
            p(f"ds_read_b128 {V(32 + 4 * u)}, {a1} offset:{S_KVP + u * 1024}")
        for r in (0, 2):
            p(f"v_pk_add_f32 {V(32 + r, 2)}, {V(32 + r, 2)}, {V(36 + r, 2)}")
        for r in (0, 2):
            p(f"v_pk_add_f32 {V(40 + r, 2)}, {V(40 + r, 2)}, {V(44 + r, 2)}")
        for r in (0, 2):
            p(f"v_pk_add_f32 {V(32 + r, 2)}, {V(32 + r, 2)}, {V(40 + r, 2)}")
        p("v_cvt_pk_bf16_f32 v28, v32, v33")
        p("v_cvt_pk_bf16_f32 v29, v34, v35")
        p(f"buffer_store_dwordx2 v[28:29], {a2}, {SWS}, s7 offen sc1", "kvpub")

    def o_addrs(self):
        p = self.p
        p(f"s_mul_i32 {sT0}, {sh}, 7")
        p(f"v_lshrrev_b32 v16, 5, {vLane}")
        p(f"v_add_u32 v16, {sT0}, v16")
        p(f"v_and_b32 v17, 31, {vLane}")
        p("v_lshlrev_b32 v17, 4, v17")
        p("v_and_b32 v18, 1, v16")
        p("v_lshl_add_u32 v17, v18, 9, v17")
        p("v_lshrrev_b32 v16, 1, v16")
        for j in range(4):
            p(f"v_add_u32 v18, {j}, v16")
            p("v_and_b32 v19, 1, v18")
            p("v_lshrrev_b32 v18, 1, v18")
            p("v_lshl_add_u32 v18, v18, 10, v17")
            p(f"v_lshl_add_u32 v{56 + j}, v19, 3, v18")
        p(f"s_lshr_b32 {sT0}, {sw}, 1")
        p(f"s_lshl_b32 {sT0}, {sT0}, 10")
        p(f"s_and_b32 {sT1}, {sw}, 1")
        p(f"s_lshl_b32 {sT1}, {sT1}, 3")
        p(f"s_add_u32 {sT0}, {sT0}, {sT1}")
        p(f"v_add_u32 v60, {sT0}, {vS16}")
        p(f"s_lshl_b32 {sT0}, {stb}, 7")
        p(f"s_lshl_b32 {sT1}, {sh}, 2")
        p(f"s_add_u32 {sT0}, {sT0}, {sT1}")
        p(f"s_add_u32 s3, {sT0}, {G_FO}")

    def gather_items(self, G, a2):
        p = self.p
        items = []
        for u in range(0, 16, 2):
            with self.cap() as c:
                p(f"s_add_u32 {sT5}, {sg}, {u // 2}")
                p(f"s_and_b32 {sT5}, {sT5}, 7")
                p(f"s_lshl_b32 {sT5}, {sT5}, 12")
                p(f"s_add_u32 {sT5}, {sT5}, s6")
                p(f"buffer_load_dwordx2 {V(G + 2 * u, 2)}, {a2}, {SWS}, {sT5} offen sc1")
                p(f"buffer_load_dwordx2 {V(G + 2 * u + 2, 2)}, {a2}, {SWS}, {sT5} offen offset:2048 sc1")
            items.append(c.ins)
        return items

    def kv_finish(self, layer, G, a2):
        p = self.p

        def sums():
            for r in range(16, 21):
                p(f"v_mov_b32 v{r}, 0")
            for u in range(16):
                for k in range(2):
                    p(f"v_dot2c_f32_bf16 v{16 + 2 * k}, {sT3}, v{G + 2 * u + k}")
                    p(f"v_dot2c_f32_bf16 v{17 + 2 * k}, {sT4}, v{G + 2 * u + k}")
                p(f"v_max3_u32 v20, v20, v{G + 2 * u}, v{G + 2 * u + 1}")
            p("v_cmp_eq_u32 vcc, -1, v20")
        p(f"s_mov_b32 {sT3}, 0x3f80")
        p(f"s_mov_b32 {sT4}, 0x3f800000")
        lo, lb, lp = p.label("kvspin"), p.label("kvback"), p.label("kvloop")
        if self.diag:
            p(f"s_mov_b32 s{18 + layer}, 0")
        sums()
        p(f"s_cbranch_vccnz {lo}")
        p(f"{lb}:")
        with self.cap() as c:
            p(f"{lo}:")
            p(f"s_mov_b32 {sCnt}, {slim}")
            p(f"{lp}:")
            if self.diag:
                p(f"s_add_u32 s{18 + layer}, s{18 + layer}, 1")
            for it in self.gather_items(G, a2):
                p.add(it)
            p("s_waitcnt vmcnt(0)")
            sums()
            p(f"s_cbranch_vccz {lb}")
            p(f"s_sub_u32 {sCnt}, {sCnt}, 1")
            p(f"s_cmp_lg_u32 {sCnt}, 0")
            p(f"s_cbranch_scc1 {lp}")
            p(f"s_mov_b32 {slim}, 1")
            p(f"s_branch {lb}")
        self.tail.extend(c.ins)
        self.stamp(f"kv_seen{layer}")
        p("v_cvt_pk_bf16_f32 v20, v16, v17")
        p("v_cvt_pk_bf16_f32 v21, v18, v19")
        p(f"ds_write_b64 v60, v[20:21] offset:{S_KVS}")
        p.wait_vm("wo")
        p.wait_ds()
        p("s_barrier")
        p(f"ds_read_b128 {V(24)}, {vS16} offset:{S_KVS}")
        p(f"ds_read_b128 {V(28)}, {vS16} offset:{S_KVS + 1024}")
        p(f"{MFMA} {V(32, 16)}, {V(24)}, {V(48)}, 0")
        p(f"{MFMA} {V(32, 16)}, {V(28)}, {V(52)}, {V(32, 16)}")
        p("v_mov_b32 v16, v44")
        p("v_mov_b32 v17, v44")
        p("v_permlane32_swap_b32 v16, v17")
        p(f"v_add_f32 v16, {sEPS6}, v17")
        p("v_rcp_f32 v16, v16")
        for r in range(0, 16, 2):
            p(f"v_pk_mul_f32 {V(32 + r, 2)}, {V(32 + r, 2)}, v[16:17] op_sel_hi:[1,0]")
        for r in range(8):
            p(f"v_cvt_pk_bf16_f32 v{20 + r}, v{32 + 2 * r}, v{33 + 2 * r}")
        st = [f"buffer_store_dwordx2 {V(20 + 2 * j, 2)}, v{56 + j}, {SG}, {sHB} offen" for j in range(3)]
        st += ["s_mov_b32 exec_hi, 0", f"buffer_store_dwordx2 {V(26, 2)}, v59, {SG}, {sHB} offen",
               "s_mov_b64 exec, -1"]
        self.publish(st)
        self.flag("s3", 1 + layer)
        self.stamp(f"o_pub{layer}")

    def single_pass(self, acc, frag, nfrag, vaddr, off, second, areg, first, last, transposed, zero):
        rd = lambda s: self.trread(frag(s % nfrag, 0), frag(s % nfrag, 2), vaddr, off + s * KB, second)
        head = []
        for s in range(first, first + nfrag - 1):
            head += rd(s)
        main = []
        for s in range(first, last):
            w, a = frag(s % nfrag, None), areg(s)
            c = 0 if (zero and s == first) else acc
            g = [Ins(f"{MFMA} {acc}, {w}, {a}, {c}" if transposed else f"{MFMA} {acc}, {a}, {w}, {c}")]
            if s + nfrag - 1 < last:
                g += rd(s + nfrag - 1)
            main.append(g)
        return head, main

    def qkv0(self):
        p = self.p
        rd = []
        for s in range(28):
            f = (s % 3) * 8
            rd.append((self.trread(A(f, 2), A(f + 2, 2), "v62", L_WK + s * KB, 256),
                       self.trread(A(f + 4, 2), A(f + 6, 2), "v62", L_WV + s * KB, 256)))
        head = rd[0][0] + rd[0][1] + rd[1][0] + rd[1][1]
        main = []
        for s in range(28):
            f = (s % 3) * 8
            for k in range(2):
                acc = V(16 + 16 * k, 16)
                g = [Ins(f"{MFMA} {acc}, {V(64 + 4 * s)}, {A(f + 4 * k)}, {acc if s else 0}")]
                if s + 2 < 28:
                    g += rd[s + 2][k]
                main.append(g)
        with self.cap() as c:
            self.kv_addrs(0, "v60", "v61", "v11")
            p(f"s_cmp_ge_u32 {sh}, 14")
            p(f"s_cselect_b32 {sT2}, {sh}, {scb}")
            p(f"s_cselect_b32 {sT3}, 0, {7 * 2048}")
            p(f"s_lshl_b32 {sT2}, {sT2}, 11")
            p(f"v_and_b32 v56, 15, {vLane}")
            p(f"v_bfe_u32 v57, {vLane}, 4, 1")
            p(f"v_mul_u32_u24 v58, {sT3}, v57")
            p("v_lshl_add_u32 v58, v56, 7, v58")
            p(f"v_add_u32 v58, {sT2}, v58")
            p(f"s_lshl_b32 {sT2}, {sg}, 8")
            p("v_lshlrev_b32 v56, 11, v56")
            p("v_lshl_add_u32 v56, v57, 7, v56")
            p(f"v_add_u32 v56, {sT2}, v56")
            p(f"v_cndmask_b32 v58, v58, v56, {sMPAD}")
            p(f"s_mov_b32 {sU[3]}, {WS_RB}")
        setup = groups(c.ins[:13]) + [c.ins[13:16]] + groups(c.ins[16:])
        with self.cap() as c1:
            self.poll_load("v58", SWS, sU[3], 1, 59)
        with self.cap() as c2:
            p.wait_vm("pb")
            p("s_barrier")
            self.ready(WS_RB)
        gr = self.opt.get("gr", 4)
        self.touch = {0: [], 1: [], 2: [], 3: [], 4: []}
        self.touch[self.opt.get("to", 3)] += self.touch_items(G_O, 14)
        self.touch[self.opt.get("tx", 3)] += self.touch_items(G_X, 18)
        wq = [self.wqkv_item(0, L_WQ, "wq") for u in range(7)]
        p.add(head)
        p.add(spread(main, [([c2.ins], gr, gr), (wq + self.touch[1], gr + 1, 50), (setup, gr + 2, 50)]))
        self.stamp("kv_gemm0")
        p.add(c1.ins)
        p(f"v_mov_b32 v52, {sEPS6}")
        p(f"v_mov_b32 v53, {sLOG2E}")
        self.phi(16, 16, 48, pk=52)
        self.v_pack()
        p.wait_vm("wq")
        self.kv_publish(lambda lo, k: A(24 + lo, k), "v60", "v61", "v11")
        self.stamp("kv_pub0")
        p("v_mov_b32 v13, v63")
        self.apoll_end("v58", SWS, sU[3], 1, 1, 59)
        p(f"v_cmp_ne_u32 vcc, {sfast}, v59")
        p("s_cmp_eq_u32 vcc_hi, 0")
        self.stamp_flush()
        p("s_cbranch_scc1 L_slow" if self.force_slow else "s_cbranch_scc0 L_slow")

    def take(self, n):
        out, self.bulk = self.bulk[:n], self.bulk[n:]
        return out

    def q0(self):
        p = self.p
        afrag = lambda i, lo: A(4 * i) if lo is None else A(4 * i + lo, 2)
        head, main = self.single_pass(V(48, 16), afrag, 4, "v13", 0, 256, lambda s: V(64 + 4 * s), 0, 28, True, True)
        with self.cap() as c:
            p(f"v_mov_b32 v32, {sEPS6}")
            p(f"v_mov_b32 v33, {sLOG2E}")
            self.phi(48, 48, 36, pk=32)
            p(f"v_cndmask_b32 v54, v54, 0, {sMPAD}")
            p(f"v_cndmask_b32 v55, v55, 0, {sMPAD}")
            self.o_addrs()
        tail = groups(c.ins, 6)
        gg = self.opt.get("gg", 34)
        self.bulk = self.dma_items("v8", SPK, 84, 7, "wo", sU[5]) + self.w1_items() + self.w2_items()
        p.add(head)
        p.add(spread(main + tail, [(self.touch[2] + self.take(self.opt.get("bq", 13)), 0, gg - 1),
                                   (self.gather_items(64, "v11"), gg, gg + 8)]))
        for it in self.touch[3] + self.take(self.opt.get("b1", 8)):
            p.add(it)
        self.stamp("q_done0")

    def make_selector(self):
        p = self.p
        p("v_mov_b32 v15, 0")
        p("s_mov_b32 exec_lo, 0x00100001")
        p("s_mov_b32 exec_hi, 0x00100001")
        p(f"v_mov_b32 v15, {sONES}")
        p("s_mov_b64 exec, -1")
        for r in range(4):
            p(f"v_accvgpr_write_b32 a{32 + r}, v15")

    def colsum_qkv(self):
        p = self.p
        p(f"s_min_u32 {sU[0]}, {sw}, 2")
        p(f"s_mul_i32 {sU[0]}, {sU[0]}, {28 * KB}")
        p(f"v_add_u32 v60, {sU[0]}, {vTrA}")
        rd = lambda s: self.trread(V(32 + 4 * (s % 4), 2), V(34 + 4 * (s % 4), 2), "v60", s * KB)
        p.add(rd(0) + rd(1) + rd(2))
        self.make_selector()
        for s in range(28):
            p(f"{MFMA16} {A(36)}, {A(32)}, {V(32 + 4 * (s % 4))}, {A(36) if s else 0}")
            if s + 3 < 28:
                p.add(rd(s + 3))
        p(f"s_lshl_b32 {sU[0]}, {sw}, 9")
        p(f"v_lshlrev_b32 v60, 3, {vLane}")
        p(f"v_add_u32 v60, {L_S + S_STAT}, v60")
        p(f"v_add_u32 v61, {sU[0]}, v60")
        p("v_accvgpr_read_b32 v40, a36")
        self.split_words("v40", "v42", "v43", "v41", False, False)
        p("ds_write_b64 v61, v[42:43]")

    def colsum_qkv_fetch(self):
        p = self.p
        p(f"v_lshlrev_b32 v13, 3, {vLane}")
        p(f"v_add_u32 v13, {L_S + S_STAT}, v13")
        p(f"ds_read_b64 {V(vCSQ + 2, 2)}, v13")
        p(f"ds_read_b64 {V(vCSQ + 4, 2)}, v13 offset:512")
        p(f"ds_read_b64 {V(vCSQ, 2)}, v13 offset:1024")

    def colsum_w1_items(self):
        p = self.p
        items = [[Ins(f"{MFMA16} {A(36)}, {A(32)}, {w1reg(s)}, {A(36) if s else 0}")] for s in range(28)]
        with self.cap() as c:
            p("v_accvgpr_read_b32 v62, a36")
            self.split_words("v62", f"v{vCS1}", f"v{vCS1 + 1}", "v63", False, False)
        items.append(c.ins)
        return items

    def qkv1(self):
        p = self.p
        p(f"v_min_u32 v13, 27, {vLane}")
        p("v_lshlrev_b32 v13, 2, v13")
        p(f"s_lshl_b32 {sT0}, {stb}, 7")
        p(f"s_add_u32 {sT0}, {sT0}, {G_FX}")
        WF = [152, 156, 160, 164, 168, 172]

        def wf(s, k):
            r = WF[3 * (s % 2) + k]
            if k == 2:
                return self.trread(V(r, 2), V(r + 2, 2), vTrB, s * KB)
            return self.trread(V(r, 2), V(r + 2, 2), vTrA, (L_WK, L_WV)[k] + s * KB)
        p.add(wf(0, 0) + wf(0, 1) + wf(0, 2))
        self.poll("v13", SG, sT0, 2)
        self.stamp("x2_seen")
        RING, NR = 96, 14

        def ld(s):
            q = sub()
            if s % 4 == 0:
                q(f"s_add_u32 s4, {sXB}, {s * KB}")
            q(f"buffer_load_dwordx4 {V(RING + 4 * (s % NR))}, {vL16}, {SG}, s4 offen offset:{(s % 4) * KB} sc1")
            return q.ins
        LEAD = self.opt.get("lead", 6)
        for s in range(LEAD):
            p.add(ld(s))
        stl = [[Ins(f"buffer_load_dwordx4 {V(64 + 4 * u)}, {vL16}, {SG}, {sSTB} offen offset:{u * KB} sc1")]
               for u in range(2)]
        with self.cap() as st:
            for i in range(2, 7):
                p(f"v_add_f32 v{64 + (i & 1)}, v{64 + (i & 1)}, v{64 + i}")
            p("v_add_f32 v64, v64, v65")
            self.stats_finish("v64", "v65", "v66", "v67")
            p("v_rsq_f32 v88, v67")
            self.split_words("v66", "v92", "v93", "v65", True, True)
            p("v_mov_b32 v94, 0")
            p("v_mov_b32 v95, 0")
            p("v_cvt_pk_bf16_f32 v80, v88, v88")
            p(f"v_and_b32 v64, {sHI}, v80")
            p("v_sub_f32 v64, v88, v64")
            p("v_cvt_pk_bf16_f32 v81, v64, v64")
            p(f"v_and_b32 v65, {sHI}, v81")
            p("v_sub_f32 v65, v64, v65")
            p("v_and_b32 v80, 0xffff, v80")
            p(f"v_and_or_b32 v80, v81, {sHI}, v80")
            p("v_cvt_pk_bf16_f32 v81, v65, 0")
            p("v_mov_b32 v82, 0")
            p("v_mov_b32 v83, 0")
            p(f"v_mov_b32 v84, {sONES}")
            p(f"v_cndmask_b32 v84, v84, 0, {sMPAD}")
            p("v_mov_b32 v85, v84")
            p("v_mov_b32 v86, 0")
            p("v_mov_b32 v87, 0")
            p(f"{MFMA} {V(64, 16)}, {V(80)}, {V(84)}, 0")
            self.kv_addrs(1, "v89", "v90", "v91")
            for m, dst in ((1, 80), (2, 84)):
                p(f"v_mov_b32 v{dst}, v{vCSQ + 2 * m}")
                p(f"v_mov_b32 v{dst + 1}, v{vCSQ + 2 * m + 1}")
        main = []
        for s in range(28):
            o = 3 * (s % 2)
            a = V(RING + 4 * (s % NR))
            nk = 3 if s < NR else 2
            nk2 = 3 if s + 1 < NR else 2
            for k in range(nk):
                acc = V(16 + 16 * k, 16)
                c = acc if s else 0
                g = [Ins(f"{MFMA} {acc}, {a}, {V(WF[o + k])}, {c}" if k < 2 else f"{MFMA} {acc}, {V(WF[o + k])}, {a}, {c}")]
                if s + 1 < 28 and k < nk2:
                    g += wf(s + 1, k)
                main.append(g)
        seq = [ld(s) for s in range(LEAD, 14)] + stl + [ld(s) for s in range(14, 28)]
        slots = []
        gpos = 0
        for i, it in enumerate(seq):
            s = i + LEAD - 2
            if s >= 14:
                gpos = max(gpos, 3 * (s - 14) + 2)
            slots.append(([it], gpos, gpos))
            gpos += 2
        p.add(spread(main, slots + [(groups(st.ins), 30, len(main) - 2)]))
        p(f"{MFMA} {V(16, 16)}, {V(92)}, {V(80)}, {V(16, 16)}")
        p(f"{MFMA} {V(32, 16)}, {V(92)}, {V(84)}, {V(32, 16)}")
        self.stamp("kv_gemm1")
        vfrag = lambda i, lo: V(152 + 4 * i) if lo is None else V(152 + 4 * i + lo, 2)
        head, main = self.single_pass(V(48, 16), vfrag, 4, vTrB, 0, 512, lambda s: V(RING + 4 * (s % NR)),
                                      NR, 28, True, False)
        p.add(head)
        p(f"v_mov_b32 v172, {sEPS6}")
        p(f"v_mov_b32 v173, {sLOG2E}")
        p(f"v_mov_b32 v80, v{vCSQ}")
        p(f"v_mov_b32 v81, v{vCSQ + 1}")
        self.phi(16, 16, 168, lambda r: (V(64 + r, 2), 1), pk=172)
        for r in range(0, 16, 2):
            p(f"v_pk_mul_f32 {V(32 + r, 2)}, {V(32 + r, 2)}, {V(64 + r, 2)}")
        self.v_pack()
        self.kv_publish(lambda lo, k: V(64 + lo, k), "v89", "v90", "v91")
        self.stamp("kv_pub1")
        main.append([Ins(f"{MFMA} {V(48, 16)}, {V(80)}, {V(92)}, {V(48, 16)}")])
        with self.cap() as c:
            self.phi(48, 48, 168, lambda r: (V(88, 2), 0), pk=172)
            p(f"v_cndmask_b32 v54, v54, 0, {sMPAD}")
            p(f"v_cndmask_b32 v55, v55, 0, {sMPAD}")
            self.o_addrs()
        tail = groups(c.ins, 6)
        gg = self.opt.get("gg1", 12)
        p.add(spread(main + tail, [(self.gather_items(96, "v91"), gg, gg + 8)]))
        self.stamp("q_done1")

    def wo_phase(self, layer, pre=None, streams=()):
        p = self.p
        RES = 104
        p(f"s_lshl_b32 s5, {sh}, 11")
        p(f"s_add_u32 s5, s5, {sXB}")
        if layer == 1:
            p(f"buffer_load_dwordx4 {V(RES)}, {vL16}, {SG}, s5 offen sc1")
            p(f"buffer_load_dwordx4 {V(RES + 4)}, {vL16}, {SG}, s5 offen offset:1024 sc1")
        else:
            for r in range(8):
                p(f"v_accvgpr_read_b32 v{RES + r}, a{56 + r}")
        p(f"s_lshr_b32 {sT1}, {sh}, 2")
        p(f"s_lshl_b32 {sT1}, {sT1}, 10")
        p(f"s_and_b32 {sT2}, {sh}, 3")
        p(f"s_lshl_b32 {sT2}, {sT2}, 2")
        p(f"s_add_u32 {sT1}, {sT1}, {sT2}")
        p(f"s_add_u32 s6, {sT1}, {sSTB}")
        p(f"s_lshl_b32 {sT0}, {stb}, 7")
        p(f"s_lshl_b32 {sT1}, {sh}, 3")
        p(f"s_add_u32 {sT1}, {sT0}, {sT1}")
        p(f"s_add_u32 s7, {sT1}, {G_FX}")
        p(f"s_add_u32 {sT0}, {sT0}, {G_FO}")
        p(f"v_and_b32 v13, 15, {vLane}")
        p("v_lshlrev_b32 v13, 2, v13")
        rd = [self.trread(V(48 + (s % 3) * 4, 2), V(50 + (s % 3) * 4, 2), vTrB, (L_WO - L_WQ) + s * KB)
              for s in range(28)]
        p.add(rd[0] + rd[1])
        if pre:
            pre()
        self.poll("v13", SG, sT0, 1 + layer)
        self.stamp(f"o_seen{layer}")
        RING = 64
        LEAD = self.opt.get("leadwo", 8)

        def ld(s):
            q = sub()
            if s % 4 == 0:
                q(f"s_add_u32 s4, {sHB}, {s * KB}")
            q(f"buffer_load_dwordx4 {V(RING + 4 * s)}, {vL16}, {SG}, s4 offen offset:{(s % 4) * KB} sc1")
            return q.ins
        for s in range(LEAD):
            p.add(ld(s))
            p(f"v_lshlrev_b32 v{16 + 2 * s}, 16, v{RES + s}" if s < 8 else "; -")
            p(f"v_and_b32 v{17 + 2 * s}, {sHI}, v{RES + s}" if s < 8 else "; -")
        assert LEAD >= 8
        main = []
        for s in range(28):
            g = [Ins(f"{MFMA} {V(16, 16)}, {V(48 + (s % 3) * 4)}, {V(RING + 4 * s)}, {V(16, 16)}")]
            if s + LEAD < 28:
                g += ld(s + LEAD)
            if s + 2 < 28:
                g += rd[s + 2]
            main.append(g)
        p.add(spread(main, list(streams)))
        self.stamp(f"wo_gemm{layer}")
        for r in range(8):
            p(f"v_cvt_pk_bf16_f32 v{32 + r}, v{16 + 2 * r}, v{17 + 2 * r}")
        self.publish([f"buffer_store_dwordx4 {V(32)}, {vL16}, {SG}, s5 offen",
                      f"buffer_store_dwordx4 {V(36)}, {vL16}, {SG}, s5 offen offset:1024"])
        p("v_pk_mul_f32 v[42:43], v[16:17], v[16:17]")
        for r in range(2, 16, 2):
            p(f"v_pk_fma_f32 v[42:43], {V(16 + r, 2)}, {V(16 + r, 2)}, v[42:43]")
            p(f"v_pk_add_f32 v[16:17], v[16:17], {V(16 + r, 2)}")
        p("v_add_f32 v40, v16, v17")
        p("v_add_f32 v42, v42, v43")
        self.both_halves("v40", "v42", None)
        self.publish([f"buffer_store_dword v40, {vL16}, {SG}, s6 offen"])
        self.flag("s7", 1 + 2 * layer, 2)
        self.stamp(f"x1_pub{layer}")

    def w2_items(self):
        p = self.p
        items = []
        order = list(range(8, 28)) + list(range(8))
        for i, j in enumerate(order):
            for ch in range(2):
                with self.cap() as c:
                    if i == 0 and ch == 0:
                        p(f"s_mul_i32 s25, {scb}, {224 * KB}")
                        p(f"s_lshl_b32 s26, {sw}, 12")
                        p(f"s_add_u32 s25, s25, s26")
                        p(f"s_add_u32 s25, s25, {WS_P2}")
                    if j % 2 == 0 and ch == 0:
                        p(f"s_add_u32 s26, s25, {(j >> 1) * 16 * KB}")
                    p(f"buffer_load_dwordx4 {w2reg(j, ch)}, {vL16}, {SPK}, s26 offen offset:{(j & 1) * 2048 + ch * 1024} sc1",
                      "w2")
                items.append(c.ins)
        return items

    def ffn(self, layer, pre=None, extra=None):
        p = self.p
        p(f"v_and_b32 v13, 15, {vLane}")
        p("v_min_u32 v13, 13, v13")
        p("v_lshlrev_b32 v13, 3, v13")
        p(f"v_lshrrev_b32 v14, 4, {vLane}")
        p("v_lshl_add_u32 v107, v14, 7, v13")
        p(f"s_mul_i32 {sT0}, {srh}, {112 * KB}")
        p(f"s_add_u32 {sT0}, {sT0}, {G_X - L_S}")
        p(f"v_add_u32 v110, {sT0}, {vL16}")
        p(f"s_lshl_b32 s5, {sw}, 10")
        p(f"s_add_u32 s5, s5, {L_S}")
        p(f"s_lshl_b32 {sT0}, {sh}, 13")
        p(f"s_lshl_b32 {sT1}, {sw}, 11")
        p(f"s_add_u32 s3, {sT0}, {sT1}")
        p(f"s_mul_i32 {sT0}, {srh}, {4 * 112 * KB}")
        p(f"s_add_u32 s3, s3, {sT0}")
        p(f"s_lshl_b32 {sT0}, {srh}, 10")
        p(f"s_lshl_b32 {sT1}, {sw}, 6")
        p(f"s_add_u32 {sT0}, {sT0}, {sT1}")
        p(f"s_lshl_b32 {sT1}, {sh}, 2")
        p(f"s_add_u32 {sT0}, {sT0}, {sT1}")
        p(f"s_add_u32 s2, {sT0}, {G_FH}")
        p(f"v_mov_b32 v84, v{vCS1}")
        p(f"v_mov_b32 v85, v{vCS1 + 1}")
        for r in (86, 87, 90, 91):
            p(f"v_mov_b32 v{r}, 0")
        p(f"v_and_b32 v108, 31, {vLane}")
        p("v_lshlrev_b32 v108, 4, v108")
        p(f"v_add_u32 v108, {L_S + S_STAT}, v108")
        p(f"s_and_b32 {sT0}, {sxs}, 3")
        p(f"s_lshl_b32 {sT0}, {sT0}, 9")
        p(f"v_add_u32 v109, {sT0}, v108")
        self.ffn2_setup(layer)
        p.wait_ds()
        p("s_barrier")
        if pre:
            pre()
        p(f"s_lshl_b32 {sT0}, {srh}, 9")
        p(f"s_add_u32 {sT0}, {sT0}, {G_FX}")
        self.poll("v107", SG, sT0, 1 + 2 * layer, 2)
        self.stamp(f"x1_seen{layer}")

        Q, P = 10, 2

        def quad(k):
            q = sub()
            if k % Q == 0:
                q("s_mov_b32 m0, s5")
                if k:
                    q(f"v_add_u32 v110, {Q * 4 * KB}, v110")
            else:
                q(f"s_add_u32 m0, m0, {4 * KB}")
            q(f"buffer_load_dwordx4 v110, {SG}, m0 offen sc1 lds", f"c{k // P}")
            return q.ins
        for k in range(4):
            p.add(quad(k))
        stl = [[Ins(f"buffer_load_dwordx4 {V(112 + 4 * u)}, {vL16}, {SG}, {sSTB} offen offset:{u * KB} sc1")]
               for u in range(4)]
        with self.cap() as st:
            for i in range(2, 14):
                p(f"v_add_f32 v{112 + (i & 1)}, v{112 + (i & 1)}, v{112 + i}")
            p("v_add_f32 v112, v112, v113")
            self.stats_finish("v112", "v113", "v114", "v115")
            self.split_words("v114", "v116", "v117", "v113", True, True)
            p("v_rsq_f32 v118, v115")
            p("v_sqrt_f32 v119, v115")
            p(f"v_mul_f32_e64 v118, -v118, {sLOG2E}")
            p("ds_write_b128 v109, v[116:119]", "stw")
        XF, NX, D = 48, 5, 4
        rdx = lambda n: Ins(f"ds_read_b128 {V(XF + 4 * (n % NX))}, {vS16} offset:{(n % (4 * Q)) * KB}", f"x{n}")

        def boundary(j):
            q = sub()
            q.wait_vm(f"c{j}")
            if j == 3:
                q.wait_ds("stw")
            q("s_barrier")
            return q.ins
        p.add(quad(4))
        p.add(quad(5))
        p.add(boundary(0))
        p.add([rdx(n) for n in range(D)])
        main = []
        pos = {}
        for n in range(112):
            o, s = divmod(n, 28)
            acc = V(16 + 16 * (o & 1), 16)
            g = []
            if n % 2 == 0:
                g.append(Pseudo("wait_ds", f"x{n + 1}"))
            g.append(Ins(f"{MFMA} {acc}, {w1reg(s)}, {V(XF + 4 * (n % NX))}, {acc if s else 0}"))
            m = n + D
            if m < 112:
                if m % 8 == 0:
                    g += boundary(m // 8)
                g.append(rdx(m))
                if m == 24:
                    g += [Ins(f"ds_read_b128 {V(68 + 4 * k)}, v108 offset:{k * 512}") for k in range(4)]
                if m % 4 == 1 and m >= 8:
                    k = m // 4 + 6
                    if k < 28:
                        g += quad(k)
            if s == 24:
                g += [Ins(f"v_mov_b32 v88, v{68 + 4 * o}"), Ins(f"v_mov_b32 v89, v{69 + 4 * o}")]
            pos[n] = len(main)
            main.append(g)
            if s == 27:
                main.append([Ins(f"{MFMA} {acc}, {V(84)}, {V(88)}, {acc}")])

        hsc1 = self.opt.get("h0sc1", 1) if layer == 0 else self.opt.get("h1sc1", 1)

        def epilogue(o):
            tb = ((o & 1) << 1) | (o >> 1)
            acc = 16 + 16 * (o & 1)
            c1, sd = f"v{70 + 4 * o}", f"v{71 + 4 * o}"
            with self.cap() as c:
                for r0 in range(0, 16, 2):
                    rr = (r0, r0 + 1)
                    t = {r: f"v{92 + (r & 3)}" for r in rr}
                    a = {r: f"v{acc + r}" for r in rr}
                    for r in rr:
                        p(f"v_mul_f32 {t[r]}, {a[r]}, {c1}")
                    for r in rr:
                        p(f"v_exp_f32 {t[r]}, {t[r]}")
                    for r in rr:
                        p(f"v_fma_f32 {t[r]}, {t[r]}, {sd}, {sd}")
                    for r in rr:
                        p(f"v_rcp_f32 {t[r]}, {t[r]}")
                    for r in rr:
                        p(f"v_mul_f32 {a[r]}, {a[r]}, {t[r]}")
                    p(f"v_cvt_pk_bf16_f32 v{96 + (r0 >> 1)}, {a[r0]}, {a[r0 + 1]}")
            items = groups(c.ins)
            with self.cap() as c:
                p(f"s_add_u32 {sT0}, s3, {tb * 112 * KB}")
                self.publish([f"buffer_store_dwordx4 {V(96)}, {vL16}, {SG}, {sT0} offen",
                              f"buffer_store_dwordx4 {V(100)}, {vL16}, {SG}, {sT0} offen offset:1024"], f"h{o}",
                             always_sc1=hsc1)
            items.append(c.ins)
            with self.cap() as c:
                p(f"s_add_u32 {sT1}, s2, {tb * 256}")
                self.flag(sT1, 1 + layer, wait=f"h{o}", st=sT2)
            return items, c.ins
        streams = [([quad(6), quad(7)], 0, 3), (stl[:2], 1, 4), (stl[2:], 6, 8), (groups(st.ins), 13, 19)]
        eps = [epilogue(o) for o in range(4)]
        E = self.opt.get("epend", 23)
        F = self.opt.get("fsc1", 18) if hsc1 else self.opt.get("fpl", 6)
        for o in range(3):
            streams.append((eps[o][0], pos[28 * (o + 1)] + 2, pos[28 * (o + 1) + E]))
        for o in range(2):
            g = pos[28 * (o + 2) + F]
            streams.append(([eps[o][1]], g, g))
        self.hl = self.h_loads()
        G1 = min(F + self.opt.get("fd", 9), 21)
        with self.cap() as c1:
            self.poll_load("v104", SG, sU[4], 1, 109)
        with self.cap() as c2:
            self.apoll_end("v104", SG, sU[4], 1 + layer, 1, 109)
            self.stamp(f"h_seen{layer}")
        streams.insert(0, ([c1.ins], pos[84 + G1], pos[84 + G1]))
        streams.append(([c2.ins], pos[84 + G1 + 5], pos[84 + G1 + 5]))
        n0 = (27 - (G1 + 5)) // 2 + 1
        streams.append((self.hl[:n0], pos[84 + G1 + 6], pos[84 + 27] + 1))
        self.n0 = n0
        if extra:
            streams += extra(pos)
        if self.opt.get("fine"):
            self.stamp(f"f1_first{layer}")
            woven = spread(main, streams)
            k = 0
            for x in woven:
                p.add([x])
                if x.kind == "mfma":
                    k += 1
                    if k % 29 == 0 and k < 116:
                        self.stamp(f"f1_o{k // 29 - 1}_{layer}")
        else:
            p.add(spread(main, streams))
        self.stamp(f"ffn1_mfma{layer}")
        self.ffn2(layer, eps[3][0], eps[2][1], eps[3][1], F)

    def ffn2_setup(self, layer):
        p = self.p
        p(f"s_mul_i32 {sU[3]}, {srq}, {2 * 112 * KB}")
        p(f"s_lshl_b32 {sT3}, {sw}, 11")
        p(f"s_add_u32 {sU[3]}, {sU[3]}, {sT3}")
        p(f"s_lshl_b32 {sU[4]}, {srq}, 9")
        p(f"s_lshl_b32 {sT3}, {sw}, 6")
        p(f"s_add_u32 {sU[4]}, {sU[4]}, {sT3}")
        p(f"s_add_u32 {sU[4]}, {sU[4]}, {G_FH}")
        p(f"v_min_u32 v104, 13, {vLane}")
        p("v_lshlrev_b32 v104, 2, v104")
        p(f"s_lshr_b32 {sT3}, {srq}, 1")
        p(f"s_lshl_b32 {sT3}, {sT3}, 2")
        p(f"s_and_b32 {sT4}, {srq}, 1")
        p(f"s_add_u32 {sT3}, {sT3}, {sT4}")
        p(f"s_mul_i32 {sU[5]}, {sT3}, {28 * KB}")
        p(f"s_lshl_b32 {sT3}, {scb}, 12")
        p(f"s_lshl_b32 {sT4}, {sw}, 7")
        p(f"s_add_u32 {sT3}, {sT3}, {sT4}")
        p(f"s_add_u32 {sU[5]}, {sU[5]}, {sT3}")
        p(f"s_add_u32 {sU[5]}, {sU[5]}, {G_X}")
        if layer == 0:
            p(f"s_mul_i32 {sU[6]}, {srq}, {14 * KB}")
            p(f"s_lshr_b32 {sT3}, {scb}, 2")
            p(f"s_lshl_b32 {sT3}, {sT3}, 10")
            p(f"s_add_u32 {sU[6]}, {sU[6]}, {sT3}")
            p(f"s_and_b32 {sT3}, {scb}, 3")
            p(f"s_lshl_b32 {sT3}, {sT3}, 2")
            p(f"s_add_u32 {sT3}, {sT3}, {sT4}")
            p(f"s_add_u32 {sU[6]}, {sU[6]}, {sT3}")
            p(f"s_add_u32 {sU[6]}, {sU[6]}, {G_ST}")
            p(f"s_lshl_b32 {sT3}, {srq}, 8")
            p(f"s_lshl_b32 {sT4}, {scb}, 4")
            p(f"s_add_u32 {sT3}, {sT3}, {sT4}")
            p(f"s_lshl_b32 {sT4}, {sw}, 2")
            p(f"s_add_u32 {sT3}, {sT3}, {sT4}")
            p(f"s_add_u32 {sU[7]}, {sT3}, {G_FX}")
        else:
            p(f"s_lshl_b32 {sT3}, {sg}, 2")
            p(f"s_add_u32 {sT3}, {sT3}, {srq}")
            p(f"s_lshl_b32 {sT3}, {sT3}, 3")
            p(f"s_add_u32 {sT3}, {sT3}, {sw}")
            p(f"s_mul_i32 {sT3}, {sT3}, {8 * 896}")
            p(f"s_lshl_b32 {sT4}, {scb}, 7")
            p(f"s_add_u32 {sU[7]}, {sT3}, {sT4}")
        p(f"s_lshl_b32 {sT3}, {sw}, 13")
        p(f"v_add_u32 v105, {sT3}, {vS16}")
        if layer == 0:
            p(f"v_lshrrev_b32 v14, 5, {vLane}")
            p("v_lshlrev_b32 v14, 7, v14")
            p("v_xor_b32 v105, v105, v14")
            p("v_mov_b32 v106, v105")
        else:
            p("v_xor_b32 v106, 0x80, v105")
        p(f"v_and_b32 v13, 7, {vLane}")
        p("v_lshlrev_b32 v13, 4, v13")
        p(f"s_lshl_b32 {sT3}, {sw}, 7")
        p(f"v_add_u32 v13, {sT3}, v13")
        p(f"v_bfe_u32 v14, {vLane}, 3, 1")
        p("v_lshlrev_b32 v15, 7, v14")
        p("v_xor_b32 v13, v13, v15")
        p(f"v_lshl_add_u32 v13, v14, {9 if layer == 0 else 10}, v13")
        p(f"v_lshrrev_b32 v14, 4, {vLane}")
        p("v_lshl_add_u32 v13, v14, 11, v13")
        p(f"v_add_u32 v111, {L_S}, v13")

    def h_loads(self):
        out = []
        for n in range(56):
            th, j = divmod(n, 28)
            q = sub()
            if j % 2 == 0:
                q(f"s_add_u32 {sU[9]}, {sU[3]}, {th * 112 * KB + (j >> 1) * 8 * KB}")
            q(f"buffer_load_dwordx4 {V(112 + 4 * (n % 16))}, {vL16}, {SG}, {sU[9]} offen offset:{(j % 2) * KB} sc1")
            out.append(q.ins)
        return out

    def ffn2(self, layer, ep3, flag2, flag3, F):
        p = self.p
        ACC = ((16, 48), (32, 64))
        lds = self.hl
        LEAD = self.opt.get("leadh", 8)
        k0 = min(len(ep3) - 1, 9 * max(0, LEAD - self.n0))
        if k0:
            p.add(spread(ep3[:k0], [(lds[self.n0:LEAD], 0, k0 - 6)]))
            ep3 = ep3[k0:]
        LEAD = max(LEAD, self.n0)
        RES = (88, 84)

        with self.cap() as su:
            p(f"v_and_b32 v107, 7, {vLane}")
            p(f"v_bfe_u32 v110, {vLane}, 3, 1")
            if layer == 0:
                p(f"v_lshrrev_b32 v108, 4, {vLane}")
                p("v_lshlrev_b32 v108, 9, v108")
                p("v_lshl_add_u32 v108, v107, 4, v108")
                p("v_lshlrev_b32 v107, 4, v107")
                p("v_lshl_add_u32 v107, v110, 9, v107")
            else:
                p("v_mul_u32_u24 v108, 896, v107")
                p("v_lshlrev_b32 v107, 4, v107")
                p("v_lshl_add_u32 v107, v110, 3, v107")
                p(f"v_lshrrev_b32 v110, 3, {vLane}")
                p("v_lshl_add_u32 v108, v110, 4, v108")
            p(f"v_lshrrev_b32 v110, 4, {vLane}")
            p("v_lshl_add_u32 v107, v110, 10, v107")

        def resid(th):
            q = sub()
            q(f"s_add_u32 {sT3}, {sU[5]}, {th * 2 * 28 * KB}")
            if layer == 0:
                q(f"buffer_load_dwordx4 {V(RES[th])}, v107, {SG}, {sT3} offen sc1")
            else:
                q(f"buffer_load_dwordx2 {V(RES[th], 2)}, v107, {SG}, {sT3} offen sc1")
                q(f"buffer_load_dwordx2 {V(RES[th] + 2, 2)}, v107, {SG}, {sT3} offen offset:512 sc1")
            return q.ins

        def mm(th):
            main = []
            for j in range(28):
                n = 28 * th + j
                b = V(112 + 4 * (n % 16))
                for ch in range(2):
                    acc = V(ACC[th][ch], 16)
                    g = [Ins(f"{MFMA} {acc}, {w2reg(j, ch)}, {b}, {acc if j else 0}")]
                    if ch == 1:
                        if n + LEAD < 56 and not (th == 0 and 28 <= n + LEAD < 28 + HOLD):
                            g += lds[n + LEAD]
                    main.append(g)
            return main

        def reduce(th, woven):
            area = th * 16 * KB
            a0, a1 = ACC[th]
            quad = [a0, a0 + 4, a0 + 8, a0 + 12, a1, a1 + 4, a1 + 8, a1 + 12]
            T = 92
            items = []
            with self.cap() as c:
                for k in range(8):
                    p(f"ds_write_b128 v{105 + (k & 1)}, {V(quad[k])} offset:{area + k * KB}")
                for r in range(4):
                    p(f"v_lshlrev_b32 v{T + 2 * r}, 16, v{RES[th] + r}")
                    p(f"v_and_b32 v{T + 2 * r + 1}, {sHI}, v{RES[th] + r}")
            items += groups(c.ins)
            with self.cap() as c:
                p.wait_ds()
                p("s_barrier")
                for u in range(4):
                    for k in range(2):
                        p(f"ds_read_b128 {V(quad[2 * u + k])}, v111 offset:{area + u * 8 * KB + k * (KB if layer == 0 else 512)}")
            items.append(c.ins)
            with self.cap() as c:
                for u in range(4):
                    for k in range(2):
                        if woven:
                            for r in range(4):
                                p(f"v_add_f32 v{T + 4 * k + r}, v{T + 4 * k + r}, v{quad[2 * u + k] + r}")
                        else:
                            for r in (0, 2):
                                p(f"v_pk_add_f32 {V(T + 4 * k + r, 2)}, {V(T + 4 * k + r, 2)}, {V(quad[2 * u + k] + r, 2)}")
                for r in range(4):
                    p(f"v_cvt_pk_bf16_f32 v{80 + r}, v{T + 2 * r}, v{T + 2 * r + 1}")
            items += groups(c.ins)
            if layer == 1:
                with self.cap() as c:
                    p(f"s_add_u32 {sT3}, {sU[7]}, {th * 32 * 896}")
                    p(f"buffer_store_dwordx4 {V(80)}, v108, {SOUT}, {sT3} offen {'sc1' if self.opt.get('outsc1', 1) else ''}")
                items.append(c.ins)
                return items, []
            with self.cap() as c:
                p(f"s_add_u32 {sT4}, {sU[5]}, {th * 2 * 28 * KB}")
                self.publish([f"buffer_store_dwordx4 {V(80)}, v107, {SG}, {sT4} offen"], f"x{th}")
            items.append(c.ins)
            with self.cap() as c:
                p(f"v_add_f32 v100, v{T}, v{T + 1}")
                p(f"v_mul_f32 v101, v{T}, v{T}")
                p(f"v_fmac_f32 v101, v{T + 1}, v{T + 1}")
                for r in range(2, 8):
                    p(f"v_add_f32 v100, v100, v{T + r}")
                    p(f"v_fmac_f32 v101, v{T + r}, v{T + r}")
                p("v_add_f32_dpp v100, v100, v100 row_ror:8 row_mask:0xf bank_mask:0xf")
                p("v_add_f32_dpp v101, v101, v101 row_ror:8 row_mask:0xf bank_mask:0xf")
                p("v_permlane16_swap_b32 v100, v101")
                p("v_add_f32 v100, v100, v101")
                p("v_mov_b32 v101, v100")
                p("v_permlane32_swap_b32 v100, v101")
                p("v_add_f32 v100, v100, v101")
            items += groups(c.ins)
            with self.cap() as c:
                p(f"s_add_u32 {sT3}, {sU[6]}, {th * 7 * KB}")
                self.publish(["s_mov_b64 exec, 0x00ff00ff", f"buffer_store_dword v100, v108, {SG}, {sT3} offen",
                              "s_mov_b64 exec, -1"], f"x{th}")
            items.append(c.ins)
            with self.cap() as c:
                p(f"s_add_u32 {sT3}, {sU[7]}, {th * 128}")
                self.flag(sT3, 2, wait=f"x{th}", tmp=102, st=sT4)
            return items, c.ins
        E3 = max(4, len(ep3) * self.opt.get("e3", 20) // 89)
        F3 = E3 + (F + 6 if F > 10 else 12)
        GP = min(max(self.opt.get("gp", 36), F3 + 14), 52)
        GP -= GP % 2
        HOLD = max(0, GP // 2 - (28 - LEAD) + 1)
        with self.cap() as c1:
            p(f"s_add_u32 {sT0}, {sU[4]}, 256")
            self.poll_load("v104", SG, sT0, 1, 109)
        with self.cap() as c2:
            self.apoll_end("v104", SG, sT0, 1 + layer, 1, 109)
            for n in range(28, 28 + HOLD):
                p.add(lds[n])
        bar = [Ins("s_barrier")]
        p.add(spread(mm(0), [([bar], 0, 0), (ep3, 1, E3), ([flag2], min(F + 2, E3 - 1), min(F + 2, E3 - 1)),
                             ([flag3], F3, F3), (groups(su.ins) + [resid(0)], E3 + 1, GP - 8),
                             ([c1.ins], GP - 6, GP - 6), ([c2.ins], GP + 1, GP + 1)]))
        self.stamp(f"th0_done{layer}")
        r0, f0 = reduce(0, True)
        streams = [([resid(1)], 0, 0), (r0, 1, 40), ([bar], 46, 46)]
        if f0:
            streams.append(([f0], 52, 52))
        if layer == 1 and self.opt.get("wb", 0) == 4:
            with self.cap() as c:
                p(f"s_lshl_b32 {sT0}, {srh}, 5")
                p(f"s_add_u32 {sT0}, {sT0}, {sh}")
                p(f"s_lshl_b32 {sT0}, {sT0}, 2")
                p(f"s_add_u32 {sT0}, {sT0}, {G_FO + 64}")
                p(f"s_cmp_eq_u32 {sw}, 0")
                p(f"s_cselect_b32 {sT0}, {sT0}, {OOB}")
                self.flag(sT0, 9, wait="none", tmp=102, st=sT4)
            g = self.opt.get("wbg", 30)
            streams.append(([c.ins], g, g))
        p.add(spread(mm(1), streams))
        self.stamp(f"th1_done{layer}")
        r1, f1 = reduce(1, False)
        for it in r1:
            p.add(it)
        p.add(f1)
        self.stamp(f"ffn2_done{layer}")

    def spare0(self):
        p = self.p
        if not self.opt.get("h0sc1", 1):
            p(f"s_and_b32 {sT0}, {sh}, 1")
            p(f"s_lshl_b32 {sT0}, {sT0}, 2")
            p(f"s_add_u32 {sT0}, {sT0}, {sw}")
            p(f"s_mul_i32 {sT0}, {sT0}, {14 * KB}")
            p(f"s_mul_i32 {sT1}, {srh}, {4 * 112 * KB}")
            p(f"s_add_u32 {sT0}, {sT0}, {sT1}")
            p(f"v_lshlrev_b32 v64, 7, {vLane}")
            for tb in (0, 2, 1, 3):
                for off in (0, 6 * KB):
                    p(f"s_add_u32 {sT1}, {sT0}, {G_H + tb * 112 * KB + off}")
                    p(f"buffer_load_dword v65, v64, {SG}, {sT1} offen sc1")
        self.colsum_qkv()
        p.wait_ds()
        p("s_barrier")
        self.colsum_qkv_fetch()
        if self.opt.get("nap", 1):
            p(f"v_min_u32 v16, 13, {vLane}")
            p("v_lshlrev_b32 v16, 2, v16")
            p(f"s_lshl_b32 {sT0}, {srh}, 10")
            p(f"s_add_u32 {sT0}, {sT0}, {G_FH + 3 * 256}")
            self.poll("v16", SG, sT0, 1, sleep=12)
        p("s_waitcnt vmcnt(0) lgkmcnt(0)")

    def spare1(self):
        p = self.p
        wb = self.opt.get("wb", 0)
        if not wb:
            return
        p(f"s_and_b32 {sT0}, {sh}, 1")
        p(f"s_or_b32 {sT0}, {sT0}, {srh}")
        p(f"s_or_b32 {sT0}, {sT0}, {sw}")
        p(f"s_cmp_lg_u32 {sT0}, 0")
        p(f"s_cbranch_scc1 L_fin{self.sfx}")
        if wb == 4:
            p(f"v_and_b32 v13, 15, {vLane}")
            p("v_min_u32 v13, 13, v13")
            p(f"v_bfe_u32 v14, {vLane}, 4, 1")
            p("v_lshl_add_u32 v13, v14, 5, v13")
            p("v_lshlrev_b32 v16, 2, v13")
            p(f"s_mov_b32 {sT0}, {G_FO + 64}")
            self.poll("v16", SG, sT0, 9)
            p("buffer_wbl2 sc1")
            p("s_waitcnt vmcnt(0)")
            return
        p(f"v_and_b32 v13, 15, {vLane}")
        p("v_min_u32 v13, 13, v13")
        p("v_lshlrev_b32 v13, 3, v13")
        p(f"v_lshrrev_b32 v14, 4, {vLane}")
        p("v_lshl_add_u32 v16, v14, 7, v13")
        p(f"s_mov_b32 {sT0}, {G_FX}")
        self.poll("v16", SG, sT0, 3, 2)
        p(f"s_mov_b32 {sT0}, {G_FX + 512}")
        self.poll("v16", SG, sT0, 3, 2)
        p("buffer_wbl2 sc1")
        p("s_waitcnt vmcnt(0)")
        if wb >= 2:
            p(f"v_and_b32 v13, 15, {vLane}")
            p("v_min_u32 v13, 13, v13")
            p("v_lshlrev_b32 v13, 2, v13")
            p(f"v_lshrrev_b32 v14, 4, {vLane}")
            p("v_lshl_add_u32 v16, v14, 6, v13")
            for tb in ((2, 3) if wb == 2 else (0, 2, 1, 3)):
                for half in range(2):
                    p(f"s_mov_b32 {sT0}, {G_FH + (4 * half + tb) * 256}")
                    self.poll("v16", SG, sT0, 2)
                p("buffer_wbl2 sc1")
                p("s_waitcnt vmcnt(0)")

    def finish(self):
        p = self.p
        p(f"s_or_b32 {sT0}, {sg}, {sh}")
        p(f"s_or_b32 {sT0}, {sT0}, {srh}")
        p(f"s_or_b32 {sT0}, {sT0}, {sw}")
        p(f"s_cmp_lg_u32 {sT0}, 0")
        p(f"s_cbranch_scc1 L_fin{self.sfx}")
        p(f"s_add_u32 {sT0}, {sE}, 64")
        p(f"v_mov_b32 v14, {sT0}")
        p("s_mov_b64 exec, 1")
        p(f"buffer_store_dword v14, {vL16}, {SWS}, 0 offen sc1")
        p("s_mov_b64 exec, -1")
        p(f"L_fin{self.sfx}:")
        if self.pad:
            p("s_waitcnt vmcnt(0)")
            if self.opt.get("amp") == "end":
                p("s_memrealtime s[94:95]")
            p("s_waitcnt lgkmcnt(0)")
            p("s_sub_u32 s94, s94, s96")
            p("s_mul_i32 s94, s94, 4")
            p("s_min_u32 s94, s94, 20000")
            p(f"s_add_u32 s94, s94, {self.pad}")
            p(f"L_pad{self.sfx}:")
            p("s_memrealtime s[98:99]")
            p("s_waitcnt lgkmcnt(0)")
            p("s_sub_u32 s98, s98, s96")
            p(f"s_cmp_lt_u32 s98, s94")
            p(f"s_cbranch_scc1 L_pad{self.sfx}")
        if self.diag:
            p("s_waitcnt vmcnt(0)")
            self.stamp("end")
            self.stamp_flush()
            p(f"s_lshl_b32 {sT0}, {srh}, 4")
            p(f"s_add_u32 {sT0}, {sT0}, {sh}")
            p(f"s_lshl_b32 {sT0}, {sT0}, 3")
            p(f"s_add_u32 {sT0}, {sT0}, {sg}")
            p(f"s_lshl_b32 {sT0}, {sT0}, 2")
            p(f"s_add_u32 {sT0}, {sT0}, {sw}")
            p(f"s_lshl_b32 {sT0}, {sT0}, 7")
            p(f"s_add_u32 {sT0}, {sT0}, {WS_DIAG}")
            p("s_mov_b64 exec, 1")
            for i in range(self.nstamp):
                p(f"v_mov_b32 v14, s{STAMP0 + i}")
                p(f"buffer_store_dword v14, {vL16}, {SWS}, {sT0} offen offset:{4 * i}")
            for k in range(2):
                p(f"v_mov_b32 v14, s{18 + k}")
                p(f"buffer_store_dword v14, {vL16}, {SWS}, {sT0} offen offset:{112 + 4 * k}")
            p(f"v_mov_b32 v14, {1 if self.fast else 0}")
            p(f"buffer_store_dword v14, {vL16}, {SWS}, {sT0} offen offset:120")
            p(f"v_mov_b32 v14, {slim}")
            p(f"buffer_store_dword v14, {vL16}, {SWS}, {sT0} offen offset:124")
            p("s_mov_b64 exec, -1")
        p("s_waitcnt vmcnt(0)")
        p("s_endpgm")

    def body(self):
        p = self.p
        x = self.sfx
        self.q0()

        self.kv_finish(0, 64, "v11")
        self.stamp_flush()
        p(f"s_cmp_ge_u32 {sh}, 14")
        p(f"s_cbranch_scc1 L_spare0{x}")
        assert len(self.bulk) <= 84
        b2 = self.touch[4] + self.take(self.opt.get("b2", 8))

        def pre_wo0():
            for it in b2:
                p.add(it)
            self.colsum_qkv()
        n_before = min(28, 28 + 56 - len(self.bulk))
        cs1 = self.colsum_w1_items()
        b3 = self.take(self.opt.get("b3", 10))
        self.wo_phase(0, pre_wo0, [(cs1[:n_before], 0, 26), (b3, 20, 27)])
        b4 = self.take(max(self.opt.get("b4", 0), len(self.bulk) - 56))

        def pre_ffn0():
            self.colsum_qkv_fetch()
            for it in b4:
                p.add(it)
            for it in cs1[n_before:]:
                p.add(it)
            p(f"v_mov_b32 v84, v{vCS1}")
            p(f"v_mov_b32 v85, v{vCS1 + 1}")
            p.wait_ds()
            p("s_barrier")

        def extra0(pos):
            return [(self.take(100), self.opt.get("w2beg", 10), pos[self.opt.get("w2end", 100)])]
        self.ffn(0, pre_ffn0, extra0)
        p(f"L_layer1{x}:")
        p("s_waitcnt lgkmcnt(0)")
        self.qkv1()
        self.kv_finish(1, 96, "v91")
        p(f"s_cmp_ge_u32 {sh}, 14")
        p(f"s_cbranch_scc1 L_spare1{x}")
        self.wo_phase(1)
        self.ffn(1)
        self.finish()
        p(f"L_spare0{x}:")
        p("s_waitcnt vmcnt(0) lgkmcnt(0)")
        self.spare0()
        p(f"s_branch L_layer1{x}")
        p(f"L_spare1{x}:")
        p("s_waitcnt vmcnt(0) lgkmcnt(0)")
        self.spare1()
        p(f"s_branch L_fin{x}")
        p.add(self.tail)
        self.tail = []

    def build(self):
        p = self.p
        self.prologue()
        self.startup()
        self.qkv0()
        self.body()
        p("L_fastend:")
        p("L_slow:")
        p("s_waitcnt vmcnt(0) lgkmcnt(0)")
        p("s_nop 7")
        self.fast = False
        self.sfx = "_s"
        self.body()
        return finalize(p.ins)


HEADER = f"""; Two layers of (LayerNorm, linear attention, output projection, LayerNorm, SiLU FFN) in one persistent launch.
; @launch grid=(256,1,1) block=(256,1,1) lds={LDS_BYTES}
.amdgcn_target "amdgcn-amd-amdhsa--gfx950"
.text
.globl {NAME}_kernel
.p2align 8
.type {NAME}_kernel,@function
{NAME}_kernel:
"""
FOOTER = f"""
.section .rodata,"a"
.p2align 6
.amdhsa_kernel {NAME}_kernel
  .amdhsa_next_free_vgpr 512
  .amdhsa_next_free_sgpr 102
  .amdhsa_accum_offset 256
  .amdhsa_group_segment_fixed_size 0
  .amdhsa_kernarg_size 72
  .amdhsa_user_sgpr_count 2
  .amdhsa_user_sgpr_kernarg_segment_ptr 1
  .amdhsa_system_sgpr_workgroup_id_x 1
.end_amdhsa_kernel
"""


def generate(**kw):
    g = Gen(**kw)
    lines = g.build()
    return HEADER + "\n".join(lines) + FOOTER, g


if __name__ == "__main__":
    out = sys.argv[1] if len(sys.argv) > 1 else f"cdna_kernels/{NAME}.s"
    kw = {}
    for a in sys.argv[2:]:
        k, _, v = a.partition("=")
        kw[k] = (int(v) if v.lstrip('-').isdigit() else v) if v else True
    text, g = generate(**kw)
    open(out, "w").write(text)
    print("wrote", out, len(text), "bytes;", text.count("\n"), "lines")
```

```python
import re

REG_RE = re.compile(r"^(-|\|)?([vas])(\d+)\|?$")
RNG_RE = re.compile(r"^(-|\|)?([vas])\[(\d+):(\d+)\]\|?$")
TRANS = ("v_exp_f32", "v_log_f32", "v_rcp_f32", "v_rsq_f32", "v_sqrt_f32", "v_sin_f32", "v_cos_f32")


def regs_of(tok):
    tok = tok.strip()
    m = REG_RE.match(tok)
    if m:
        return [m.group(2) + m.group(3)]
    m = RNG_RE.match(tok)
    if m:
        return [m.group(2) + str(i) for i in range(int(m.group(3)), int(m.group(4)) + 1)]
    if tok in ("vcc", "exec", "m0", "scc"):
        return [tok]
    if tok in ("vcc_lo", "vcc_hi"):
        return ["vcc"]
    if tok in ("exec_lo", "exec_hi"):
        return ["exec"]
    return []


def split_ops(s):
    out, depth, cur = [], 0, ""
    for ch in s:
        if ch in "[(":
            depth += 1
        if ch in "])":
            depth -= 1
        if ch == "," and depth == 0:
            out.append(cur.strip())
            cur = ""
        else:
            cur += ch
    if cur.strip():
        out.append(cur.strip())
    return out


class Ins:
    __slots__ = ("text", "op", "kind", "rd", "wr", "tag", "srcc", "ab", "data", "passes", "arg")

    def __init__(self, text, tag=None):
        self.text = text
        self.tag = tag
        self.srcc = set()
        self.ab = set()
        self.data = set()
        self.passes = 0
        self.arg = None
        t = text.strip()
        if t.endswith(":"):
            self.op, self.kind, self.rd, self.wr = t, "label", set(), set()
            return
        if t.startswith(";") or t.startswith("."):
            self.op, self.kind, self.rd, self.wr = t, "comment", set(), set()
            return
        parts = t.split(None, 1)
        op = parts[0]
        self.op = op
        ops = split_ops(parts[1]) if len(parts) > 1 else []
        mods = ""
        if ops:
            last = ops[-1].split(None, 1)
            ops[-1] = last[0]
            mods = last[1] if len(last) > 1 else ""
        R = [regs_of(o) for o in ops]
        flat = lambda xs: set(r for x in xs for r in x)
        rd, wr = set(), set()
        if op.startswith("v_mfma"):
            self.kind = "mfma"
            wr = set(R[0])
            self.ab = set(R[1]) | set(R[2])
            self.srcc = set(R[3])
            rd = self.ab | self.srcc
            self.passes = 8 if "32x32x16" in op else 4
            rd.add("exec")
        elif op in ("buffer_wbl2", "buffer_inv"):
            self.kind = "vstore"
        elif op.startswith("buffer_") or op.startswith("global_"):
            if "load" in op:
                if " lds" in " " + mods:
                    self.kind = "dma"
                    rd = flat(R) | {"m0"}
                else:
                    self.kind = "vload"
                    wr = set(R[0])
                    rd = flat(R[1:])
            elif "store" in op:
                self.kind = "vstore"
                rd = flat(R)
                self.data = set(R[0]) if op.startswith("buffer_") else set(R[1])
            else:
                raise ValueError(text)
            rd.add("exec")
        elif op.startswith("ds_"):
            if "read" in op or "bpermute" in op or "swizzle" in op:
                self.kind = "dsread"
                wr = set(R[0])
                rd = flat(R[1:])
            else:
                self.kind = "dswrite"
                rd = flat(R)
            rd.add("exec")
        elif op.startswith("s_load") or op in ("s_memtime", "s_memrealtime"):
            self.kind = "smem"
            wr = set(R[0])
            rd = flat(R[1:])
        elif op == "s_waitcnt":
            self.kind = "wait"
        elif op == "s_nop":
            self.kind = "nop"
            self.arg = int(ops[0])
        elif op == "s_barrier":
            self.kind = "barrier"
        elif op.startswith("s_cbranch") or op in ("s_branch", "s_endpgm", "s_setpc_b64"):
            self.kind = "branch"
            if "scc" in op:
                rd = {"scc"}
            if "vcc" in op:
                rd = {"vcc"}
            if "exec" in op:
                rd = {"exec"}
        elif op.startswith("s_"):
            self.kind = "salu"
            if op.startswith("s_cmp") or op.startswith("s_bitcmp"):
                rd = flat(R)
                wr = {"scc"}
            elif op in ("s_sleep", "s_setprio"):
                pass
            else:
                wr = set(R[0]) | {"scc"}
                rd = flat(R[1:])
                if op.startswith("s_mov") or op.startswith("s_mul") or op.startswith("s_cselect") or op.startswith("s_getreg") or op.startswith("s_getpc"):
                    wr.discard("scc")
                if op.startswith("s_cselect") or op.startswith("s_addc") or op.startswith("s_subb"):
                    rd.add("scc")
                if "saveexec" in op:
                    wr.add("exec")
                    rd.add("exec")
        elif op.startswith("v_"):
            base = op.replace("_e32", "").replace("_e64", "")
            self.kind = "trans" if base in TRANS else "valu"
            rd.add("exec")
            if op.startswith("v_nop"):
                pass
            elif op.startswith("v_permlane"):
                wr = set(R[0]) | set(R[1])
                rd |= wr
            elif op.startswith("v_cmp"):
                wr = set(R[0])
                rd |= flat(R[1:])
            elif "_co_" in op:
                wr = set(R[0]) | set(R[1])
                rd |= flat(R[2:])
            else:
                wr = set(R[0])
                rd |= flat(R[1:])
                if base.startswith("v_fmac") or base.startswith("v_dot2c") or "dpp" in op or base.startswith("v_writelane"):
                    rd |= set(R[0])
        else:
            raise ValueError("cannot parse: " + text)
        self.rd, self.wr = rd, wr


class Pseudo:
    def __init__(self, what, tag=None):
        self.kind = "pseudo"
        self.what = what
        self.tag = tag
        self.rd = set()
        self.wr = set()
        self.text = f"; {what} {tag}"


class Prog:
    def __init__(self):
        self.ins = []
        self.nlabel = 0

    def __call__(self, text, tag=None):
        for line in text.split("\n"):
            line = line.strip()
            if line:
                self.ins.append(Ins(line, tag))

    def add(self, items):
        self.ins.extend(items)

    def wait_vm(self, tag):
        self.ins.append(Pseudo("wait_vm", tag))

    def wait_ds(self, tag=None):
        self.ins.append(Pseudo("wait_ds", tag))

    def vm_drained(self):
        self.ins.append(Pseudo("vm_drained"))

    def alt_begin(self):
        self.ins.append(Pseudo("alt_begin"))

    def alt_else(self):
        self.ins.append(Pseudo("alt_else"))

    def alt_end(self):
        self.ins.append(Pseudo("alt_end"))

    def label(self, stem):
        self.nlabel += 1
        return f"L_{stem}_{self.nlabel}"


def sub():
    return Prog()


WAIT_RE = re.compile(r"(vmcnt|lgkmcnt)\((\d+)\)")


def insert_waits(ins):
    out = []
    vm = []
    ds = []
    saved = None

    def need(lst, pred):
        last = -1
        for i, e in enumerate(lst):
            if pred(e):
                last = i
        return last

    def emit_wait(vi, di):
        nonlocal vm, ds
        parts = []
        if vi >= 0:
            n = min(len(vm) - 1 - vi, 63)
            parts.append(f"vmcnt({n})")
            vm = vm[len(vm) - n:] if n else []
        if di >= 0:
            if any(e[2] for e in ds):
                n = 0
            else:
                n = min(len(ds) - 1 - di, 15)
            parts.append(f"lgkmcnt({n})")
            ds = ds[len(ds) - n:] if n else []
        if parts:
            out.append(Ins("s_waitcnt " + " ".join(parts)))

    for x in ins:
        if x.kind == "pseudo":
            if x.what == "wait_vm":
                tags = x.tag if isinstance(x.tag, (list, tuple, set)) else [x.tag]
                emit_wait(need(vm, lambda e: x.tag is None or e[1] in tags), -1)
            elif x.what == "wait_ds":
                tags = x.tag if isinstance(x.tag, (list, tuple, set)) else [x.tag]
                emit_wait(-1, need(ds, lambda e: x.tag is None or e[1] in tags))
            elif x.what == "vm_drained":
                vm = []
            elif x.what == "alt_begin":
                saved = ("begin", list(vm), list(ds))
            elif x.what == "alt_else":
                after_a = (list(vm), list(ds))
                vm, ds = list(saved[1]), list(saved[2])
                saved = ("else", after_a)
            elif x.what == "alt_end":
                a_vm, a_ds = saved[1]
                assert len(a_vm) == len(vm) and len(a_ds) == len(ds), "alt arms differ in outstanding ops"
                saved = None
            if x.what.startswith("alt_"):
                out.append(x)
            continue
        if x.kind == "wait":
            for name, n in WAIT_RE.findall(x.text):
                n = int(n)
                if name == "vmcnt":
                    vm = vm[len(vm) - n:] if 0 < n < len(vm) else ([] if n == 0 else vm)
                else:
                    if n == 0:
                        ds = []
                    elif not any(e[2] for e in ds) and n < len(ds):
                        ds = ds[len(ds) - n:]
            out.append(x)
            continue
        touched = x.rd | x.wr
        vi = need(vm, lambda e: e[0] & touched)
        di = need(ds, lambda e: e[0] & touched)
        if x.kind == "dsread" and di >= 0 and not (x.rd & set().union(*[e[0] for e in ds])) and not any(e[2] for e in ds):
            di = -1
        if x.kind == "vload" and vi >= 0 and not (x.rd & set().union(*[e[0] for e in vm])):
            vi = -1
        emit_wait(vi, di)
        out.append(x)
        if x.kind == "vload":
            vm.append((set(x.wr), x.tag))
        elif x.kind in ("vstore", "dma"):
            vm.append((set(), x.tag))
        elif x.kind == "dsread":
            ds.append((set(x.wr), x.tag, False))
        elif x.kind == "dswrite":
            ds.append((set(), x.tag, False))
        elif x.kind == "smem":
            ds.append((set(x.wr), x.tag, True))
    return out


def states(x):
    if x.kind in ("label", "comment", "pseudo"):
        return 0
    if x.kind == "nop":
        return x.arg + 1
    return 1


VALU_KINDS = ("valu", "trans")
MEM_KINDS = ("vload", "vstore", "dma", "dsread", "dswrite")


def required(p, c):
    n = 0
    pv = p.kind in VALU_KINDS
    cv = c.kind in VALU_KINDS
    if pv:
        vw = {r for r in p.wr if r[0] in "va" and r != "vcc"}
        sw = {r for r in p.wr if r[0] == "s" and r != "scc" or r == "vcc"}
        if c.kind == "mfma" and vw & c.rd:
            n = max(n, 2)
        if cv and c.op.startswith("v_permlane") and vw & c.rd:
            n = max(n, 2)
        if cv and "dpp" in c.op and vw & c.rd:
            n = max(n, 2)
        if cv and (c.op.startswith("v_readfirstlane") or c.op.startswith("v_readlane")) and vw & c.rd:
            n = max(n, 1)
        if p.kind == "trans" and cv and c.kind != "trans" and vw & c.rd:
            n = max(n, 1)
        if "sdwa" in p.op and cv and vw & (c.rd | c.wr):
            n = max(n, 1)
        if sw & c.rd:
            if c.kind in ("vload", "vstore", "dma"):
                n = max(n, 5)
            elif cv:
                n = max(n, 4 if (c.op.startswith("v_readlane") or c.op.startswith("v_writelane")) else 2)
            elif c.kind in ("salu", "smem"):
                n = max(n, 1)
        if p.op.startswith("v_dot2") and vw & (c.rd | c.wr) and (cv or c.kind == "mfma" or c.kind in MEM_KINDS):
            same = c.op == p.op
            if not (same and not (vw & (c.rd - c.wr))):
                n = max(n, 3)
        if "exec" in p.wr:
            n = max(n, 5)
    if p.kind == "salu" and "m0" in p.wr and "m0" in c.rd and c.kind == "dma":
        n = max(n, 1)
    if p.kind == "vstore" and len(p.data) >= 3 and p.data & c.wr:
        n = max(n, 2)
    if p.kind == "mfma":
        big = {4: 8, 8: 12}[p.passes]
        if c.kind == "mfma":
            if p.wr & c.ab:
                n = max(n, big)
            if p.wr & c.srcc:
                if not (p.wr == c.srcc and p.passes == c.passes):
                    n = max(n, {4: 6, 8: 10}[p.passes])
            elif p.wr & c.wr:
                n = max(n, {4: 6, 8: 10}[p.passes])
        elif cv or c.kind in MEM_KINDS:
            if p.wr & (c.rd | c.wr):
                n = max(n, big)
            if p.srcc & c.wr:
                n = max(n, {4: 3, 8: 7}[p.passes])
    return n


def insert_nops(ins):
    out = []
    hist = []
    saved = None
    LOOK = 14
    for x in ins:
        if x.kind == "pseudo":
            if x.what == "alt_begin":
                saved = list(hist[-2 * LOOK:])
            elif x.what == "alt_else":
                hist = list(saved)
            continue
        if x.kind in ("label", "comment"):
            out.append(x)
            continue
        dist = 0
        pad = 0
        for p in reversed(hist):
            if dist >= LOOK:
                break
            if p.kind in ("label", "comment", "pseudo"):
                continue
            r = required(p, x)
            if r > dist:
                pad = max(pad, r - dist)
            dist += states(p)
        while pad > 0:
            k = min(pad, 16)
            out.append(Ins(f"s_nop {k - 1}"))
            hist.append(out[-1])
            pad -= k
        out.append(x)
        hist.append(x)
    return out


def finalize(ins):
    ins = insert_waits(ins)
    ins = insert_nops(ins)
    lines = []
    for x in ins:
        if x.kind == "label":
            lines.append(x.text.strip())
        elif x.kind == "pseudo":
            continue
        else:
            lines.append("    " + x.text.strip())
    return lines


def weave(main, fill, per_gap, start=0):
    out = []
    k = 0
    acc = 0.0
    for i, g in enumerate(main):
        out.extend(g)
        if i >= start:
            acc += per_gap
            while acc >= 1.0 - 1e-9 and k < len(fill):
                f = fill[k]
                out.extend(f if isinstance(f, list) else [f])
                k += 1
                acc -= 1.0
    while k < len(fill):
        f = fill[k]
        out.extend(f if isinstance(f, list) else [f])
        k += 1
    return out


def spread(main, streams):
    n = len(main)
    slots = [[] for _ in range(n)]
    for items, a, b in streams:
        b = min(b, n - 1)
        span = b - a + 1
        m = len(items)
        for k, it in enumerate(items):
            g = a + (k * span) // max(m, 1)
            slots[g].append(it)
    out = []
    for i, g in enumerate(main):
        out.extend(g)
        for it in slots[i]:
            out.extend(it if isinstance(it, list) else [it])
    return out


def groups(ins, n=1):
    out, cur, k = [], [], 0
    for x in ins:
        cur.append(x)
        if x.kind not in ("label", "comment", "pseudo"):
            k += 1
            if k == n:
                out.append(cur)
                cur, k = [], 0
    if cur:
        if out:
            out[-1].extend(cur)
        else:
            out.append(cur)
    return out


def cost(x):
    if x.kind in ("label", "comment"):
        return 0
    if x.kind == "pseudo":
        return 4 if x.what.startswith("wait") else 0
    if x.kind in ("mfma", "trans"):
        return 8
    if x.kind in ("vload", "vstore", "dma"):
        return 14
    if x.kind == "nop":
        return 4 * (x.arg + 1)
    if x.kind == "barrier":
        return 10
    if x.kind == "dswrite" and "b128" in x.op:
        return 40
    if x.kind == "valu" and (x.op.startswith("v_fma") or x.op.startswith("v_cvt_pk")):
        return 5
    return 4


def spread2(main, fixed, flex):
    n = len(main)
    slots = [[] for _ in range(n)]
    flat = lambda it: it if isinstance(it, list) else [it]
    for items, a, b in fixed:
        b = min(b, n - 1)
        span = b - a + 1
        for k, it in enumerate(items):
            slots[a + (k * span) // max(len(items), 1)].append(it)
    load = [sum(cost(x) for x in main[i]) + sum(cost(x) for it in slots[i] for x in flat(it)) for i in range(n)]
    for items, a, b in flex:
        b = min(b, n - 1)
        cs = [sum(cost(x) for x in flat(it)) for it in items]
        lo, hi = 0, max(load[a:b + 1]) + sum(cs)
        while lo < hi:
            mid = (lo + hi) // 2
            if sum(max(0, mid - load[g]) for g in range(a, b + 1)) >= sum(cs):
                hi = mid
            else:
                lo = mid + 1
        room = 0.0
        k = 0
        for g in range(a, b + 1):
            room += max(0, lo - load[g])
            while k < len(items) and (room >= cs[k] / 2 or g == b):
                slots[g].append(items[k])
                load[g] += cs[k]
                room -= cs[k]
                k += 1
    out = []
    for i, g in enumerate(main):
        out.extend(g)
        for it in slots[i]:
            out.extend(flat(it))
    return out
```

```python
import sys, os
sys.path.insert(0, os.path.dirname(os.path.abspath(__file__)))
from asmlib import *

NAME = "interleave_layers__linear_attn_block__dense_activation_silu__prompt"
KB = 1024

WS_EPOCH = 0
WS_RA = 0x8000
WS_RB = 0x10000
WS_DIAG = 0x20000
WS_KV = 0x80000
KV_L = 0x80000
WS_PQ = 0x180000
WS_PO = WS_PQ + 16 * 28 * KB
WS_P1 = WS_PO + 14 * 28 * KB
WS_P2 = WS_P1 + 14 * 112 * KB
WS_G = 0x680000
assert WS_P2 + 7 * 224 * KB <= WS_G
OOB = 0x40000000
G_STRIDE = 0x160000
G_H = 0
G_O = 8 * 112 * KB
G_X = G_O + 8 * 28 * KB
G_ST = G_X + 8 * 28 * KB
G_FX = G_ST + 8 * 7 * KB
G_FO = G_FX + 1024
G_FH = G_FO + 1024
G_END = G_FH + 2048
assert G_END <= G_STRIDE
WS_BYTES = WS_G + 8 * G_STRIDE

L_WK, L_WV, L_WQ, L_WO, L_S = 0, 28 * KB, 56 * KB, 84 * KB, 112 * KB
L_XST = 48 * KB
S_KVP, S_KVS = 0, 16 * KB
S_CS = 18 * KB
S_STAT, S_TR = 42 * KB, 44 * KB
LDS_BYTES = 160 * KB

SX, SQ, SO, S1, S2, SOUT, SWS, SG = ("s[8:11]", "s[12:15]", "s[16:19]", "s[20:23]", "s[24:27]", "s[28:31]",
                                     "s[32:35]", "s[36:39]")
sE, sg, sh, srh, sw, sfast, srq, scb, stb, sxs, slim = ("s56", "s57", "s58", "s59", "s60", "s61", "s62", "s63",
                                                        "s64", "s65", "s66")
sT0, sT1, sT2, sT3, sT4, sT5 = "s40", "s41", "s42", "s43", "s44", "s45"
sCnt, sNeed = "s46", "s47"
sONES, sLOG2E, sEPS6, sHI = "s48", "s49", "s50", "s51"
sM28 = "s[52:53]"
sMPAD = "s[54:55]"
sHB, sXB, sSTB = "s67", "s68", "s69"
STAMP0 = 80
sU = [f"s{70 + i}" for i in range(10)]
SPK = "s[20:23]"

vLane, vL16, vTrA, vTrB = "v0", "v1", "v2", "v3"
vCS1 = 4
vCSQ = 6
vS16 = "v12"
vT0, vT1, vT2 = "v13", "v14", "v15"


def V(n, k=4):
    return f"v[{n}:{n + k - 1}]" if k > 1 else f"v{n}"


def A(n, k=4):
    return f"a[{n}:{n + k - 1}]" if k > 1 else f"a{n}"


def w1reg(s, lo=0, k=4):
    return A(224 + 4 * s + lo, k) if s < 8 else V(176 + 4 * (s - 8) + lo, k)


def w2reg(j, ch, lo=0, k=4):
    return A(8 * j + 4 * ch + lo, k)


MFMA = "v_mfma_f32_32x32x16_bf16"
MFMA16 = "v_mfma_f32_16x16x32_bf16"


class Capture:
    def __init__(self, g):
        self.g = g

    def __enter__(self):
        self.saved = self.g.p.ins
        self.g.p.ins = []
        self.ins = self.g.p.ins
        return self

    def __exit__(self, *a):
        self.g.p.ins = self.saved


class Gen:
    def __init__(self, diag=False, force_slow=False, pad=0, part=0, **opt):
        self.p = Prog()
        self.diag = diag
        self.force_slow = force_slow
        self.pad = pad
        self.part = part
        self.opt = opt
        self.nstamp = 0
        self.seen = 0
        self.stamp_names = []
        self.pending = False
        self.tail = []
        self.fast = True
        self.sfx = ""

    def cap(self):
        return Capture(self)

    def stamp(self, name, op="s_memrealtime"):
        if self.opt.get("amp") == name and self.fast:
            self.p("s_memrealtime s[94:95]")
        if not self.diag or not self.fast:
            return
        self.seen += 1
        lo = self.opt.get("from", 18 * self.part)
        if self.seen > 2 and not (lo <= self.seen - 3 < lo + 18):
            return
        self.stamp_flush()
        assert STAMP0 + self.nstamp < 100, "too many stamps"
        if self.opt.get("clk") and self.seen > 1:
            op = "s_memtime"
        self.p(f"{op} s[100:101]")
        self.stamp_names.append(name)
        self.nstamp += 1
        self.pending = True

    def stamp_flush(self):
        if self.diag and self.pending:
            self.p(f"s_mov_b32 s{STAMP0 + self.nstamp - 1}, s100")
            self.pending = False

    def publish(self, stores, tag="pub", always_sc1=False):
        for s in stores:
            self.p(s + (" sc1" if s.startswith("buffer_") and (always_sc1 or not self.fast) else ""), tag)

    def flag(self, soff, val, n=1, wait="pub", tmp=14, st=sT5):
        p = self.p
        p(f"s_add_u32 {st}, {sE}, {val}")
        p(f"v_mov_b32 v{tmp}, {st}")
        if n == 2:
            p(f"v_mov_b32 v{tmp + 1}, {st}")
        op = f"buffer_store_dword v{tmp}" if n == 1 else f"buffer_store_dwordx2 v[{tmp}:{tmp + 1}]"
        p.wait_vm(wait)
        self.publish(["s_mov_b64 exec, 1", f"{op}, {vL16}, {SG}, {soff} offen", "s_mov_b64 exec, -1"], "flag")

    def poll_load(self, vaddr, srd, soff, n, tmp):
        if n == 1:
            self.p(f"buffer_load_dword v{tmp}, {vaddr}, {srd}, {soff} offen sc1")
        else:
            self.p(f"buffer_load_dwordx2 v[{tmp}:{tmp + 1}], {vaddr}, {srd}, {soff} offen sc1")

    def poll_test(self, n, tmp, need, win=3):
        p = self.p
        p(f"v_subrev_u32 v{tmp}, {need}, v{tmp}")
        if n == 2:
            p(f"v_subrev_u32 v{tmp + 1}, {need}, v{tmp + 1}")
            p(f"v_or_b32 v{tmp}, v{tmp}, v{tmp + 1}")
        p(f"v_cmp_lt_u32 vcc, {win}, v{tmp}")

    def spin(self, vaddr, srd, soff, n, tmp, need, done, sleep=0, win=3):
        p = self.p
        lp = p.label("poll")
        p(f"s_mov_b32 {sCnt}, {slim}")
        p(f"{lp}:")
        self.poll_load(vaddr, srd, soff, n, tmp)
        p("s_waitcnt vmcnt(0)")
        self.poll_test(n, tmp, need, win)
        p(f"s_cbranch_vccz {done}")
        if sleep:
            p(f"s_sleep {sleep}")
        p(f"s_sub_u32 {sCnt}, {sCnt}, 1")
        p(f"s_cmp_lg_u32 {sCnt}, 0")
        p(f"s_cbranch_scc1 {lp}")
        p(f"s_mov_b32 {slim}, 1")

    def poll(self, vaddr, srd, soff, need, n=1, tmp=14, sleep=0):
        p = self.p
        ld = p.label("polled")
        p(f"s_add_u32 {sNeed}, {sE}, {need}")
        self.spin(vaddr, srd, soff, n, tmp, sNeed, ld, sleep)
        p(f"{ld}:")

    def apoll_end(self, vaddr, srd, soff, need, n=1, tmp=14, win=3):
        p = self.p
        lo, lb = p.label("aspin"), p.label("aback")
        p(f"s_add_u32 {sNeed}, {sE}, {need}")
        self.poll_test(n, tmp, sNeed, win)
        p(f"s_cbranch_vccnz {lo}")
        p(f"{lb}:")
        with self.cap() as c:
            p(f"{lo}:")
            p("s_nop 4")
            self.spin(vaddr, srd, soff, n, tmp, sNeed, lb, 0, win)
            p(f"s_branch {lb}")
        self.tail.extend(c.ins)

    def trread(self, dst_lo, dst_hi, vaddr, off, second=512):
        return [Ins(f"ds_read_b64_tr_b16 {dst_lo}, {vaddr} offset:{off}"),
                Ins(f"ds_read_b64_tr_b16 {dst_hi}, {vaddr} offset:{off + second}")]

    def transpose_block(self, reg, aw, ar):
        return [Ins(f"ds_write_b128 {aw}, {reg(0, 4)}"),
                Ins(f"ds_read_b64_tr_b16 {reg(0, 2)}, {ar}"),
                Ins(f"ds_read_b64_tr_b16 {reg(2, 2)}, {ar} offset:512")]

    def tr_addrs(self, aw, ar):
        p = self.p
        p(f"s_lshl_b32 {sT0}, {sw}, 10")
        p(f"s_add_u32 {sT0}, {sT0}, {L_S + S_TR}")
        p(f"v_add_u32 {aw}, {sT0}, {vL16}")
        p(f"v_add_u32 {ar}, {sT0}, {vTrA}")

    def both_halves(self, s, q, tmp):
        p = self.p
        p(f"v_permlane32_swap_b32 {s}, {q}")
        p(f"v_add_f32 {s}, {s}, {q}")

    def stats_finish(self, t, u, mean, var):
        p = self.p
        p(f"v_mov_b32 {u}, {t}")
        p(f"v_permlane32_swap_b32 {t}, {u}")
        p(f"v_mul_f32 {mean}, 0x3b124925, {t}")
        p(f"v_mul_f32 {var}, 0x3b124925, {u}")
        p(f"v_fma_f32 {var}, -{mean}, {mean}, {var}")
        p(f"v_max_f32 {var}, 0, {var}")
        p(f"v_add_f32 {var}, 0x3727c5ac, {var}")

    def split_words(self, x, w0, w1, t, neg, xside):
        p = self.p
        s = "-" if neg else ""
        p(f"v_cvt_pk_bf16_f32 {w0}, {s}{x}, {s}{x}")
        p(f"v_and_b32 {t}, {sHI}, {w0}")
        p(f"v_sub_f32 {t}, {s}{x}, {t}" if not neg else f"v_sub_f32_e64 {t}, -{x}, {t}")
        if xside:
            p(f"v_and_b32 {w1}, 0xffff, {w0}")
            p(f"v_cvt_pk_bf16_f32 {t}, {t}, {t}")
            p(f"v_and_or_b32 {w0}, {t}, {sHI}, {w1}")
        else:
            p(f"v_cvt_pk_bf16_f32 {w1}, {t}, 0")

    def prologue(self):
        p = self.p
        p("s_cmp_lt_u32 s2, 256")
        p("s_cbranch_scc1 L_start")
        p("s_endpgm")
        p("L_start:")
        p("s_load_dwordx4 s[40:43], s[0:1], 0")
        p("s_load_dwordx2 s[52:53], s[0:1], 64")
        p("s_load_dwordx2 s[44:45], s[0:1], 16")
        p("s_load_dwordx4 s[48:51], s[0:1], 32")
        p("s_load_dwordx2 s[46:47], s[0:1], 48")
        self.stamp("realtime", "s_memrealtime")
        if self.pad:
            p("s_memrealtime s[96:97]")
            p("s_memrealtime s[94:95]")
        p("s_getpc_b64 s[6:7]")
        p("L_pc:")
        p("v_lshrrev_b32 v13, 6, v0")
        p(f"v_and_b32 {vLane}, 63, v0")
        p(f"v_readfirstlane_b32 {sw}, v13")
        p(f"s_and_b32 {sg}, s2, 7")
        p(f"s_lshr_b32 s3, s2, 3")
        p(f"s_lshl_b32 s4, s3, 2")
        p(f"s_add_u32 s4, s4, {sw}")
        p(f"s_lshl_b32 s4, s4, 9")
        p(f"v_lshlrev_b32 v9, 7, {vLane}")
        p("v_add_u32 v13, s4, v9")
        p("v_min_u32 v13, L_fastend-L_pc-4, v13")
        p("s_mov_b64 exec, 0xf")
        p("global_load_dword v10, v13, s[6:7]")
        p("s_mov_b64 exec, -1")
        p(f"s_and_b32 {sh}, s3, 15")
        p(f"s_lshr_b32 {srh}, s3, 4")
        p(f"s_lshl_b32 s2, {sg}, 1")
        p(f"s_add_u32 s2, s2, {srh}")
        p("s_lshl_b32 s3, s2, 2")
        p(f"s_add_u32 s3, s3, {sw}")
        p("s_min_u32 s5, s3, 55")
        p("s_cmp_ge_u32 s5, 28")
        p("s_cselect_b32 s4, 1, 0")
        p("s_cselect_b32 s6, 28, 0")
        p("s_sub_u32 s5, s5, s6")
        p(f"v_lshrrev_b32 v13, 2, {vLane}")
        p(f"v_and_b32 v15, 3, {vLane}")
        p("v_lshlrev_b32 v15, 4, v15")
        p("v_mul_u32_u24 v14, 2688, v13")
        p("v_add_u32 v6, v14, v15")
        p("v_mul_u32_u24 v14, 896, v13")
        p("v_add_u32 v7, v14, v15")
        p("v_mul_u32_u24 v14, 3584, v13")
        p("v_add_u32 v8, v14, v15")
        p(f"s_cmp_ge_u32 {sh}, 7")
        p(f"s_cselect_b32 s6, 1, 0")
        p(f"s_cselect_b32 s7, 7, 0")
        p(f"s_lshl_b32 {srq}, {srh}, 1")
        p(f"s_add_u32 {srq}, {srq}, s6")
        p(f"s_sub_u32 {scb}, {sh}, s7")
        p(f"s_lshl_b32 {stb}, {srh}, 2")
        p(f"s_and_b32 s6, {sw}, 1")
        p(f"s_lshl_b32 s6, s6, 1")
        p(f"s_lshr_b32 s7, {sw}, 1")
        p(f"s_or_b32 s6, s6, s7")
        p(f"s_add_u32 {sxs}, {stb}, s6")
        p(f"s_add_u32 {stb}, {stb}, {sw}")
        p(f"v_lshlrev_b32 {vL16}, 4, {vLane}")
        p(f"v_lshrrev_b32 v13, 3, {vLane}")
        p("v_mul_u32_u24 v14, 896, v13")
        p("v_lshrrev_b32 v13, 1, v13")
        p(f"v_and_b32 v15, 7, {vLane}")
        p("v_xor_b32 v13, v13, v15")
        p("v_lshl_add_u32 v16, v13, 4, v14")
        p("v_xor_b32 v13, 4, v13")
        p("v_lshl_add_u32 v17, v13, 4, v14")
        p(f"s_lshl_b32 {sU[0]}, {sg}, 3")
        p(f"s_add_u32 {sU[0]}, {sU[0]}, {stb}")
        p(f"s_mul_i32 {sU[0]}, {sU[0]}, {32 * 896}")
        p(f"s_mul_i32 {sU[1]}, {sw}, {28 * KB}")
        p(f"s_add_u32 {sU[1]}, {sU[1]}, {L_XST}")
        p(f"s_cmp_ge_u32 {sh}, 14")
        p(f"s_cselect_b32 {sU[2]}, 7, 0")
        p(f"s_sub_u32 {sU[2]}, {scb}, {sU[2]}")
        p(f"s_mov_b32 s10, {2048 * 896}\ns_mov_b32 s11, 0x00020000")
        p(f"s_mov_b32 s14, {448 * 2688}\ns_mov_b32 s15, 0x00020000")
        p("s_waitcnt lgkmcnt(0)")
        self.stamp("start")
        p("s_mov_b32 s12, s42\ns_mov_b32 s13, s43")
        p("s_mov_b32 s8, s40\ns_mov_b32 s9, s41")
        p(f"s_load_dword {sE}, s[52:53], {WS_EPOCH}")
        for j in range(7):
            p(f"s_lshl_b32 {sU[3]}, {sU[2]}, 7")
            p(f"s_add_u32 {sU[3]}, {sU[3]}, {sU[0]}")
            p(f"s_lshl_b32 {sU[4]}, {sU[2]}, 12")
            p(f"s_add_u32 {sU[4]}, {sU[4]}, {sU[1]}")
            for b in range(4):
                p(f"s_add_u32 m0, {sU[4]}, {b * KB}")
                p(f"s_add_u32 {sU[5]}, {sU[3]}, {b * 8 * 896}")
                p(f"buffer_load_dwordx4 v{16 + (b & 1)}, {SX}, {sU[5]} offen lds", "x")
                if 4 * j + b + 1 == self.opt.get("xa", 4):
                    self.prologue2()
            if j < 6:
                p(f"s_add_u32 {sU[2]}, {sU[2]}, 1")
                p(f"s_cmp_eq_u32 {sU[2]}, 7")
                p(f"s_cselect_b32 {sU[2]}, 0, {sU[2]}")

    def prologue2(self):
        p = self.p
        p(f"s_mul_i32 {sHB}, {stb}, {28 * KB}")
        p(f"s_add_u32 {sHB}, {sHB}, {G_O}")
        p(f"s_mul_i32 {sXB}, {sxs}, {28 * KB}")
        p(f"s_add_u32 {sXB}, {sXB}, {G_X}")
        p(f"s_mul_i32 {sSTB}, {stb}, {7 * KB}")
        p(f"s_add_u32 {sSTB}, {sSTB}, {G_ST}")
        p(f"s_mov_b32 {slim}, 40000")
        p(f"v_add_u32 {vS16}, {L_S}, {vL16}")
        p(f"v_and_b32 v13, 3, {vLane}")
        p("v_lshlrev_b32 v13, 3, v13")
        p(f"v_bfe_u32 v14, {vLane}, 4, 1")
        p("v_lshl_add_u32 v13, v14, 5, v13")
        p(f"v_bfe_u32 v14, {vLane}, 2, 2")
        p("v_lshl_add_u32 v13, v14, 6, v13")
        p(f"v_lshrrev_b32 v14, 5, {vLane}")
        p(f"v_lshl_add_u32 {vTrA}, v14, 8, v13")
        p(f"v_add_u32 {vTrB}, {L_WQ}, {vTrA}")
        p("v_lshl_add_u32 v62, v14, 9, v13")
        p(f"v_add_u32 v63, {L_WQ}, v62")
        p(f"v_and_b32 v13, 31, {vLane}")
        p("v_lshrrev_b32 v14, 3, v13")
        p("v_lshlrev_b32 v14, 10, v14")
        p("v_and_b32 v15, 7, v13")
        p("v_lshl_add_u32 v14, v15, 7, v14")
        p(f"v_add_u32 v14, {sU[1]}, v14")
        p("v_bfe_u32 v13, v13, 1, 3")
        p(f"v_lshrrev_b32 v15, 5, {vLane}")
        p("v_xor_b32 v13, v13, v15")
        for q in range(4):
            p(f"v_xor_b32 v15, {2 * q}, v13")
            p(f"v_lshl_add_u32 v{20 + q}, v15, 4, v14")
        p(f"v_lshrrev_b32 v15, 5, {vLane}")
        p("v_xor_b32 v13, v13, v15")
        p("v_lshl_add_u32 v14, v15, 3, v14")
        p(f"s_min_u32 s6, {sh}, 13")
        p("s_lshr_b32 s7, s6, 1")
        p("s_lshl_b32 s7, s7, 12")
        p("v_add_u32 v14, s7, v14")
        p("s_and_b32 s6, s6, 1")
        p("s_lshl_b32 s6, s6, 2")
        p("v_xor_b32 v13, s6, v13")
        for a in range(4):
            p(f"v_xor_b32 v15, {a}, v13")
            p(f"v_lshl_add_u32 v{24 + a}, v15, 4, v14")
        p(f"s_cmp_lt_u32 {sh}, 14")
        p(f"s_cselect_b32 s18, {448 * 448 * 2}, 0")
        p(f"s_cselect_b32 s22, {448 * 1792 * 2}, 0")
        p(f"s_cselect_b32 s26, {448 * 1792 * 2}, 0")
        for base, src, size in ((16, 44, None), (20, 48, None), (24, 50, None), (28, 46, 2048 * 896),
                                (32, 52, WS_BYTES)):
            p(f"s_mov_b32 s{base}, s{src}")
            p(f"s_mov_b32 s{base + 1}, s{src + 1}")
            if size is not None:
                p(f"s_mov_b32 s{base + 2}, {size}")
            p(f"s_mov_b32 s{base + 3}, 0x00020000")
        p(f"s_mul_i32 s6, {sg}, {G_STRIDE}")
        p(f"s_add_u32 s6, s6, {WS_G}")
        p("s_add_u32 s36, s52, s6")
        p("s_addc_u32 s37, s53, 0")
        p(f"s_mov_b32 s38, {G_STRIDE}")
        p("s_mov_b32 s39, 0x00020000")

    def kv_clear(self):
        p = self.p
        p(f"s_lshl_b32 {sT0}, {sh}, 15")
        p(f"s_lshl_b32 {sT1}, s3, 9")
        p(f"s_add_u32 {sT0}, {sT0}, {sT1}")
        p(f"s_add_u32 {sT0}, {sT0}, {WS_KV}")
        p(f"s_add_u32 {sT1}, {sT0}, {KV_L}")
        p("v_mov_b32 v36, -1\nv_mov_b32 v37, -1")
        p(f"v_lshlrev_b32 v11, 3, {vLane}")
        p(f"buffer_store_dwordx2 v[36:37], v11, {SWS}, {sT0} offen sc1", "pb")
        p(f"buffer_store_dwordx2 v[36:37], v11, {SWS}, {sT1} offen sc1", "pb")

    def wqkv_setup(self):
        p = self.p
        p(f"s_mul_i32 s0, {sh}, 56")
        p(f"s_mul_i32 s1, {sw}, {16 * 2688}")
        p("s_add_u32 s0, s0, s1")
        p(f"s_lshl_b32 s1, {sw}, 10")
        p(f"s_mul_i32 {sU[7]}, s2, 37")
        p(f"s_lshr_b32 {sU[7]}, {sU[7]}, 8")
        p(f"s_mul_i32 {sU[7]}, {sU[7]}, 7")
        p(f"s_sub_u32 {sU[6]}, s2, {sU[7]}")

    def wqkv_item(self, m, lbase, tag):
        p = self.p
        with self.cap() as c:
            p(f"s_lshl_b32 {sU[7]}, {sU[6]}, 12")
            p(f"s_add_u32 {sU[7]}, {sU[7]}, s1")
            p(f"s_add_u32 m0, {sU[7]}, {lbase}")
            p(f"s_mul_i32 {sU[7]}, {sU[6]}, {64 * 2688}")
            p(f"s_add_u32 {sU[7]}, {sU[7]}, s0")
            if m:
                p(f"s_add_u32 {sU[7]}, {sU[7]}, {896 * m}")
            p(f"buffer_load_dwordx4 v6, {SQ}, {sU[7]} offen lds", tag)
            p(f"s_add_u32 {sU[6]}, {sU[6]}, 1")
            p(f"s_cmp_eq_u32 {sU[6]}, 7")
            p(f"s_cselect_b32 {sU[6]}, 0, {sU[6]}")
        return c.ins

    def wo_items(self):
        p = self.p
        items = []
        for u in range(7):
            with self.cap() as c:
                if u == 0:
                    p(f"s_lshl_b32 {sU[8]}, {sh}, 6")
                    p(f"s_mul_i32 {sU[7]}, {sw}, {16 * 896}")
                    p(f"s_add_u32 {sU[8]}, {sU[8]}, {sU[7]}")
                p(f"s_add_u32 m0, s1, {L_WO + 4 * u * KB}")
                p(f"s_add_u32 {sU[7]}, {sU[8]}, {64 * u * 896}")
                p(f"buffer_load_dwordx4 v7, {SO}, {sU[7]} offen lds", "wo")
            items.append(c.ins)
        return items

    def consts(self):
        p = self.p
        p(f"s_mov_b32 {sONES}, 0x3f803f80")
        p(f"s_mov_b32 {sLOG2E}, 0x3fb8aa3b")
        p(f"s_mov_b32 {sEPS6}, 0x358637bd")
        p(f"s_mov_b32 {sHI}, 0xffff0000")
        p("s_mov_b32 s52, 0x10000000")
        p("s_mov_b32 s53, 0x10000000")
        p("s_mov_b32 s54, 0")
        p("s_mov_b32 s55, -1")

    def ready(self, base):
        p = self.p
        p(f"s_lshl_b32 {sT2}, {sh}, 4")
        p(f"s_add_u32 {sT2}, {sT2}, s2")
        p(f"s_lshl_b32 {sT2}, {sT2}, 7")
        p(f"s_add_u32 {sT2}, {sT2}, {base}")
        p(f"s_cmp_eq_u32 {sw}, 0")
        p(f"s_cselect_b32 {sT2}, {sT2}, {OOB}")
        p(f"s_add_u32 {sT5}, {sE}, {sfast}")
        p(f"s_add_u32 {sT5}, {sT5}, 1")
        p(f"v_mov_b32 v14, {sT5}")
        p("s_mov_b64 exec, 1")
        p(f"buffer_store_dword v14, {vL16}, {SWS}, {sT2} offen sc1")
        p("s_mov_b64 exec, -1")

    def pack_b_loads(self):
        p = self.p
        p(f"s_mul_i32 {sT0}, s5, {16 * 3584}")
        p(f"s_lshl_b32 {sT1}, {sh}, 8")
        p(f"s_add_u32 {sT0}, {sT0}, {sT1}")
        p(f"s_lshl_b32 {sT1}, s4, 7")
        p(f"s_add_u32 {sT0}, {sT0}, {sT1}")
        p(f"buffer_load_dwordx4 a[40:43], v8, {S1}, {sT0} offen")
        p(f"buffer_load_dwordx4 a[44:47], v8, {S1}, {sT0} offen offset:64")
        p(f"s_mul_i32 {sU[1]}, {sh}, 112")
        p(f"s_mul_i32 {sT1}, s4, 56")
        p(f"s_add_u32 {sU[1]}, {sU[1]}, {sT1}")
        p(f"s_add_u32 {sU[1]}, {sU[1]}, s5")
        p(f"s_lshl_b32 {sU[1]}, {sU[1]}, 10")
        p(f"s_add_u32 {sU[1]}, {sU[1]}, {WS_P1}")
        p(f"s_cmp_lt_u32 {sh}, 14")
        p(f"s_cselect_b32 s22, {WS_BYTES}, 0")
        p("s_mov_b32 s20, s32\ns_mov_b32 s21, s33")
        self.tr_addrs("v4", "v5")

    def pack_c_loads(self):
        p = self.p
        p(f"s_and_b32 {sU[5]}, {srq}, 1")
        p(f"s_lshl_b32 {sU[5]}, {sU[5]}, 6")
        p(f"s_add_u32 {sU[5]}, {sU[5]}, s3")
        p(f"s_mul_i32 {sU[0]}, {sU[5]}, {16 * 896}")
        p(f"s_lshl_b32 {sU[2]}, {scb}, 7")
        p(f"s_add_u32 {sU[0]}, {sU[0]}, {sU[2]}")
        p(f"s_mul_i32 {sU[2]}, {scb}, 112")
        p(f"s_add_u32 {sU[2]}, {sU[2]}, {sU[5]}")
        p(f"s_lshl_b32 {sU[2]}, {sU[2]}, 11")
        p(f"s_add_u32 {sU[2]}, {sU[2]}, {WS_P2}")
        p(f"s_cmp_lt_u32 {sU[5]}, 112")
        p(f"s_cselect_b32 {sU[0]}, {sU[0]}, {OOB}")
        p(f"s_cselect_b32 {sU[2]}, {sU[2]}, {OOB}")
        p(f"buffer_load_dwordx4 a[48:51], v7, {S2}, {sU[0]} offen")
        p(f"buffer_load_dwordx4 a[52:55], v7, {S2}, {sU[0]} offen offset:64")

    def pack_b_items(self):
        items = [self.transpose_block(lambda lo, k, r=r: A(r + lo, k), "v4", "v5") for r in (40, 44)]
        items.append([Ins(f"buffer_store_dwordx4 a[40:43], {vL16}, {SPK}, {sU[1]} offen sc1", "pb"),
                      Ins(f"s_add_u32 {sU[1]}, {sU[1]}, {28 * KB}")])
        items.append([Ins(f"buffer_store_dwordx4 a[44:47], {vL16}, {SPK}, {sU[1]} offen sc1", "pb")])
        return items

    def pack_c_items(self):
        items = [self.transpose_block(lambda lo, k, r=r: A(r + lo, k), "v4", "v5") for r in (48, 52)]
        items.append([Ins(f"buffer_store_dwordx4 a[48:51], {vL16}, {SPK}, {sU[2]} offen sc1", "pb")])
        items.append([Ins(f"buffer_store_dwordx4 a[52:55], {vL16}, {SPK}, {sU[2]} offen offset:1024 sc1", "pb")])
        return items

    def dma_items(self, vaddr, srd, first, count, tag, stm):
        p = self.p
        items = []
        for u in range(count):
            with self.cap() as c:
                if u == 0:
                    p(f"s_mul_i32 {stm}, {sw}, {count * KB}")
                if u % 4 == 0:
                    p(f"s_add_u32 m0, {stm}, {(first + u) * KB}")
                p(f"buffer_load_dwordx4 {vaddr}, {srd}, m0 offen offset:{(u % 4) * KB} sc1 lds", tag)
            items.append(c.ins)
        return items

    def w1_items(self):
        p = self.p
        items = []
        for s in range(28):
            with self.cap() as c:
                if s == 0:
                    p(f"s_lshl_b32 s24, {sh}, 2")
                    p(f"s_add_u32 s24, s24, {sw}")
                    p(f"s_mul_i32 s24, s24, {28 * KB}")
                    p(f"s_add_u32 s24, s24, {WS_P1}")
                elif s % 4 == 0:
                    p(f"s_add_u32 s24, s24, {4 * KB}")
                p(f"buffer_load_dwordx4 {w1reg(s)}, {vL16}, {SPK}, s24 offen offset:{(s % 4) * KB} sc1", "w1")
            items.append(c.ins)
        return items

    def pack_d_loads(self):
        p = self.p
        p(f"s_mul_i32 {sT2}, s5, {16 * 896}")
        p(f"s_lshl_b32 {sT1}, {sh}, 6")
        p(f"s_add_u32 {sT2}, {sT2}, {sT1}")
        p(f"s_mul_i32 {sT1}, {sh}, 28")
        p(f"s_add_u32 {sT1}, {sT1}, s5")
        p(f"s_lshl_b32 {sT1}, {sT1}, 10")
        p(f"s_add_u32 {sU[9]}, {sT1}, {WS_PO}")
        p("s_cmp_eq_u32 s4, 0")
        p(f"s_cselect_b32 {sT2}, {OOB}, {sT2}")
        p(f"s_cselect_b32 {sU[9]}, {OOB}, {sU[9]}")
        p(f"buffer_load_dwordx4 v[32:35], v7, {SO}, {sT2} offen")
        if self.opt.get("mall", 1):
            p(f"s_lshl_b32 {sT0}, {sh}, 6")
            p(f"s_add_u32 {sT0}, {sT0}, s3")
            p(f"s_lshr_b32 {sT1}, {sT0}, 1")
            p(f"s_mul_i32 {sT1}, {sT1}, 2688")
            p(f"s_and_b32 {sT0}, {sT0}, 1")
            p(f"s_mul_i32 {sT0}, {sT0}, 384")
            p(f"s_add_u32 {sT0}, {sT0}, {sT1}")
            p("s_mov_b64 exec, 0xf")
            p(f"buffer_load_dword v10, v9, {SQ}, {sT0} offen", "touch")
            p("s_mov_b64 exec, -1")

    def pack_d_items(self):
        return [[Ins(f"buffer_store_dwordx4 v[32:35], {vL16}, {SPK}, {sU[9]} offen sc1", "pb")]]

    def touch_items(self, base, lines, per=16):
        p = self.p
        with self.cap() as c:
            p(f"s_mul_i32 {sU[7]}, {srh}, {per}")
            p(f"s_add_u32 {sU[7]}, {sU[7]}, {sh}")
            p(f"s_lshl_b32 {sU[7]}, {sU[7]}, 2")
            p(f"s_add_u32 {sU[7]}, {sU[7]}, {sw}")
            p(f"s_mul_i32 {sU[7]}, {sU[7]}, {lines * 128}")
            p(f"s_add_u32 {sU[7]}, {sU[7]}, {base}")
            assert lines < 32
            p(f"s_mov_b64 exec, {(1 << lines) - 1}")
            p(f"buffer_load_dword v10, v9, {SG}, {sU[7]} offen", "touch")
            p("s_mov_b64 exec, -1")
        return [c.ins]

    def startup(self):
        p = self.p
        p(f"s_getreg_b32 {sfast}, hwreg(HW_REG_XCC_ID, 0, 4)")
        self.wqkv_setup()
        self.pack_b_loads()
        self.pack_c_loads()
        self.pack_d_loads()
        nk0 = self.opt.get("nk0", 2)
        for u in range(nk0):
            p.add(self.wqkv_item(1, L_WK, "wk"))
        p.wait_vm("x")
        p("s_waitcnt lgkmcnt(0)")
        self.consts()
        self.stamp("x_landed")
        for s in range(28):
            p(f"ds_read_b128 {V(64 + 4 * s)}, v{20 + (s & 3)} offset:{(s >> 2) * 4096}")
        for a in range(4):
            p(f"ds_read_b64 {A(56 + 2 * a, 2)}, v{24 + a}")
        for r in range(52, 56):
            p(f"v_mov_b32 v{r}, 0")
        p.wait_ds()
        p("s_barrier")
        with self.cap() as c:
            for i in range(112):
                p(f"v_dot2c_f32_bf16 v{52 + (i & 1)}, {sONES}, v{64 + i}")
                p(f"v_dot2c_f32_bf16 v{54 + (i & 1)}, v{64 + i}, v{64 + i}")
            p("v_add_f32 v52, v52, v53")
            p("v_add_f32 v54, v54, v55")
            self.both_halves("v52", "v54", None)
            self.stats_finish("v52", "v53", "v56", "v58")
            p("v_rsq_f32 v58, v58")
            p("v_mul_f32_e64 v56, -v56, v58")
            p("v_mov_b32 v59, v58")
            p("v_mov_b32 v57, v56")
            for i in range(0, 112 if not self.opt.get("noln") else 8, 2):
                t = 16 + 4 * ((i >> 1) & 1)
                for k in range(2):
                    p(f"v_lshlrev_b32 v{t + 2 * k}, 16, v{64 + i + k}")
                    p(f"v_and_b32 v{t + 2 * k + 1}, {sHI}, v{64 + i + k}")
                for k in range(2):
                    p(f"v_pk_fma_f32 {V(t + 2 * k, 2)}, {V(t + 2 * k, 2)}, v[58:59], v[56:57]")
                for k in range(2):
                    p(f"v_cvt_pk_bf16_f32 v{64 + i + k}, v{t + 2 * k}, v{t + 2 * k + 1}")
        main = groups(c.ins, 4)
        n = len(main)
        wk = [self.wqkv_item(1, L_WK, "wk") for u in range(nk0, 7)]
        wv = [self.wqkv_item(2, L_WV, "wv") for u in range(7)]
        gk = n * self.opt.get("gk", 60) // 100
        with self.cap() as c1:
            self.kv_clear()
        packs = [c1.ins] + self.pack_d_items() + self.pack_b_items() + self.pack_c_items()
        with self.cap() as c2:
            p(f"s_mul_i32 {sT0}, {sh}, {28 * KB}")
            p(f"s_add_u32 {sT1}, {sT0}, {WS_PO - L_WO}")
            p(f"v_add_u32 v8, {sT1}, {vL16}")
        p.add(spread(main, [(wk + wv, 0, gk), (packs + [c2.ins], gk + 2, n - 2)]))
        self.stamp("ln_done")
        p.wait_vm(["wk", "wv"])
        p("s_barrier")
        self.stamp("wkv_landed")

    def phi(self, acc, out, tmp, scale=None, pk=None):
        p = self.p
        for r0 in range(0, 16, 2):
            rr = (r0, r0 + 1)
            a = {r: f"v{acc + r}" for r in rr}
            t = {r: f"v{tmp + (r & 3)}" for r in rr}
            a2, t2 = V(acc + r0, 2), V(tmp + (r0 & 3), 2)
            if pk is not None:
                k2 = V(pk, 2)
                if scale is None:
                    p(f"v_pk_add_f32 {a2}, {a2}, {k2} op_sel_hi:[1,0]")
                else:
                    sc, hi = scale(r0)
                    p(f"v_pk_fma_f32 {a2}, {a2}, {sc}, {k2} op_sel_hi:[1,{hi},0]")
                p(f"v_pk_mul_f32 {t2}, {a2}, {k2} op_sel:[0,1] op_sel_hi:[1,1]")
            else:
                for r in rr:
                    if scale is None:
                        p(f"v_add_f32 {a[r]}, {sEPS6}, {a[r]}")
                    else:
                        p(f"v_fma_f32 {a[r]}, {a[r]}, {scale(r)}, {sEPS6}")
                for r in rr:
                    p(f"v_mul_f32 {t[r]}, {sLOG2E}, {a[r]}")
            for r in rr:
                p(f"v_exp_f32 {t[r]}, {t[r]} clamp")
            for r in rr:
                p(f"v_max_f32 {a[r]}, {sEPS6}, {a[r]}")
            if pk is not None:
                p(f"v_pk_add_f32 {a2}, {a2}, {t2}")
            else:
                for r in rr:
                    p(f"v_add_f32 {a[r]}, {a[r]}, {t[r]}")
            p(f"v_cvt_pk_bf16_f32 v{out + (r0 >> 1)}, {a[r0]}, {a[r0 + 1]}")

    def v_pack(self):
        p = self.p
        for r in range(8):
            p(f"v_cvt_pk_bf16_f32 v{32 + r}, v{32 + 2 * r}, v{33 + 2 * r}")
        p(f"s_mov_b64 exec, {sM28}")
        for r in range(8):
            p(f"v_mov_b32 v{32 + r}, {sONES}")
        p("s_mov_b64 exec, -1")

    def kv_addrs(self, layer, a0, a1, a2):
        p = self.p
        p(f"s_lshl_b32 {sT0}, {sw}, 10")
        p(f"v_add_u32 {a0}, {sT0}, {vS16}")
        p(f"s_lshl_b32 {sT0}, {sw}, 12")
        p(f"v_add_u32 {a1}, {sT0}, {vS16}")
        p(f"v_lshlrev_b32 {a2}, 3, {vLane}")
        p(f"s_lshl_b32 {sT0}, {sh}, 15")
        p(f"s_lshl_b32 {sT1}, {sw}, 9")
        p(f"s_add_u32 {sT0}, {sT0}, {sT1}")
        p(f"s_add_u32 s6, {sT0}, {WS_KV + layer * KV_L}")
        p(f"s_lshl_b32 {sT1}, {sg}, 1")
        p(f"s_add_u32 {sT1}, {sT1}, {srh}")
        p(f"s_lshl_b32 {sT1}, {sT1}, 11")
        p(f"s_add_u32 s7, {sT1}, s6")

    def kv_publish(self, kvacc, a0, a1, a2):
        p = self.p
        p(f"{MFMA} {kvacc(0, 16)}, {V(16)}, {V(32)}, 0")
        p(f"{MFMA} {kvacc(0, 16)}, {V(20)}, {V(36)}, {kvacc(0, 16)}")
        for q in range(4):
            p(f"ds_write_b128 {a0}, {kvacc(4 * q, 4)} offset:{S_KVP + q * 4096}")
        p.wait_ds()
        p("s_barrier")
        for u in range(4):
            p(f"ds_read_b128 {V(32 + 4 * u)}, {a1} offset:{S_KVP + u * 1024}")
        for r in (0, 2):
            p(f"v_pk_add_f32 {V(32 + r, 2)}, {V(32 + r, 2)}, {V(36 + r, 2)}")
        for r in (0, 2):
            p(f"v_pk_add_f32 {V(40 + r, 2)}, {V(40 + r, 2)}, {V(44 + r, 2)}")
        for r in (0, 2):
            p(f"v_pk_add_f32 {V(32 + r, 2)}, {V(32 + r, 2)}, {V(40 + r, 2)}")
        p("v_cvt_pk_bf16_f32 v28, v32, v33")
        p("v_cvt_pk_bf16_f32 v29, v34, v35")
        p(f"buffer_store_dwordx2 v[28:29], {a2}, {SWS}, s7 offen sc1", "kvpub")

    def o_addrs(self):
        p = self.p
        p(f"s_mul_i32 {sT0}, {sh}, 7")
        p(f"v_lshrrev_b32 v16, 5, {vLane}")
        p(f"v_add_u32 v16, {sT0}, v16")
        p(f"v_and_b32 v17, 31, {vLane}")
        p("v_lshlrev_b32 v17, 4, v17")
        p("v_and_b32 v18, 1, v16")
        p("v_lshl_add_u32 v17, v18, 9, v17")
        p("v_lshrrev_b32 v16, 1, v16")
        for j in range(4):
            p(f"v_add_u32 v18, {j}, v16")
            p("v_and_b32 v19, 1, v18")
            p("v_lshrrev_b32 v18, 1, v18")
            p("v_lshl_add_u32 v18, v18, 10, v17")
            p(f"v_lshl_add_u32 v{56 + j}, v19, 3, v18")
        p(f"s_lshr_b32 {sT0}, {sw}, 1")
        p(f"s_lshl_b32 {sT0}, {sT0}, 10")
        p(f"s_and_b32 {sT1}, {sw}, 1")
        p(f"s_lshl_b32 {sT1}, {sT1}, 3")
        p(f"s_add_u32 {sT0}, {sT0}, {sT1}")
        p(f"v_add_u32 v60, {sT0}, {vS16}")
        p(f"s_lshl_b32 {sT0}, {stb}, 7")
        p(f"s_lshl_b32 {sT1}, {sh}, 2")
        p(f"s_add_u32 {sT0}, {sT0}, {sT1}")
        p(f"s_add_u32 s3, {sT0}, {G_FO}")

    def gather_items(self, G, a2):
        p = self.p
        items = []
        for u in range(0, 16, 2):
            with self.cap() as c:
                p(f"s_add_u32 {sT5}, {sg}, {u // 2}")
                p(f"s_and_b32 {sT5}, {sT5}, 7")
                p(f"s_lshl_b32 {sT5}, {sT5}, 12")
                p(f"s_add_u32 {sT5}, {sT5}, s6")
                p(f"buffer_load_dwordx2 {V(G + 2 * u, 2)}, {a2}, {SWS}, {sT5} offen sc1")
                p(f"buffer_load_dwordx2 {V(G + 2 * u + 2, 2)}, {a2}, {SWS}, {sT5} offen offset:2048 sc1")
            items.append(c.ins)
        return items

    def kv_finish(self, layer, G, a2):
        p = self.p

        def sums():
            for r in range(16, 21):
                p(f"v_mov_b32 v{r}, 0")
            for u in range(16):
                for k in range(2):
                    p(f"v_dot2c_f32_bf16 v{16 + 2 * k}, {sT3}, v{G + 2 * u + k}")
                    p(f"v_dot2c_f32_bf16 v{17 + 2 * k}, {sT4}, v{G + 2 * u + k}")
                p(f"v_max3_u32 v20, v20, v{G + 2 * u}, v{G + 2 * u + 1}")
            p("v_cmp_eq_u32 vcc, -1, v20")
        p(f"s_mov_b32 {sT3}, 0x3f80")
        p(f"s_mov_b32 {sT4}, 0x3f800000")
        lo, lb, lp = p.label("kvspin"), p.label("kvback"), p.label("kvloop")
        if self.diag:
            p(f"s_mov_b32 s{18 + layer}, 0")
        sums()
        p(f"s_cbranch_vccnz {lo}")
        p(f"{lb}:")
        with self.cap() as c:
            p(f"{lo}:")
            p(f"s_mov_b32 {sCnt}, {slim}")
            p(f"{lp}:")
            if self.diag:
                p(f"s_add_u32 s{18 + layer}, s{18 + layer}, 1")
            for it in self.gather_items(G, a2):
                p.add(it)
            p("s_waitcnt vmcnt(0)")
            sums()
            p(f"s_cbranch_vccz {lb}")
            p(f"s_sub_u32 {sCnt}, {sCnt}, 1")
            p(f"s_cmp_lg_u32 {sCnt}, 0")
            p(f"s_cbranch_scc1 {lp}")
            p(f"s_mov_b32 {slim}, 1")
            p(f"s_branch {lb}")
        self.tail.extend(c.ins)
        self.stamp(f"kv_seen{layer}")
        p("v_cvt_pk_bf16_f32 v20, v16, v17")
        p("v_cvt_pk_bf16_f32 v21, v18, v19")
        p(f"ds_write_b64 v60, v[20:21] offset:{S_KVS}")
        p.wait_vm("wo")
        p.wait_ds()
        p("s_barrier")
        p(f"ds_read_b128 {V(24)}, {vS16} offset:{S_KVS}")
        p(f"ds_read_b128 {V(28)}, {vS16} offset:{S_KVS + 1024}")
        p(f"{MFMA} {V(32, 16)}, {V(24)}, {V(48)}, 0")
        p(f"{MFMA} {V(32, 16)}, {V(28)}, {V(52)}, {V(32, 16)}")
        p("v_mov_b32 v16, v44")
        p("v_mov_b32 v17, v44")
        p("v_permlane32_swap_b32 v16, v17")
        p(f"v_add_f32 v16, {sEPS6}, v17")
        p("v_rcp_f32 v16, v16")
        for r in range(0, 16, 2):
            p(f"v_pk_mul_f32 {V(32 + r, 2)}, {V(32 + r, 2)}, v[16:17] op_sel_hi:[1,0]")
        for r in range(8):
            p(f"v_cvt_pk_bf16_f32 v{20 + r}, v{32 + 2 * r}, v{33 + 2 * r}")
        st = [f"buffer_store_dwordx2 {V(20 + 2 * j, 2)}, v{56 + j}, {SG}, {sHB} offen" for j in range(3)]
        st += ["s_mov_b32 exec_hi, 0", f"buffer_store_dwordx2 {V(26, 2)}, v59, {SG}, {sHB} offen",
               "s_mov_b64 exec, -1"]
        self.publish(st)
        self.flag("s3", 1 + layer)
        self.stamp(f"o_pub{layer}")

    def single_pass(self, acc, frag, nfrag, vaddr, off, second, areg, first, last, transposed, zero):
        rd = lambda s: self.trread(frag(s % nfrag, 0), frag(s % nfrag, 2), vaddr, off + s * KB, second)
        head = []
        for s in range(first, first + nfrag - 1):
            head += rd(s)
        main = []
        for s in range(first, last):
            w, a = frag(s % nfrag, None), areg(s)
            c = 0 if (zero and s == first) else acc
            g = [Ins(f"{MFMA} {acc}, {w}, {a}, {c}" if transposed else f"{MFMA} {acc}, {a}, {w}, {c}")]
            if s + nfrag - 1 < last:
                g += rd(s + nfrag - 1)
            main.append(g)
        return head, main

    def qkv0(self):
        p = self.p
        rd = []
        for s in range(28):
            f = (s % 3) * 8
            rd.append((self.trread(A(f, 2), A(f + 2, 2), "v62", L_WK + s * KB, 256),
                       self.trread(A(f + 4, 2), A(f + 6, 2), "v62", L_WV + s * KB, 256)))
        head = rd[0][0] + rd[0][1] + rd[1][0] + rd[1][1]
        main = []
        for s in range(28):
            f = (s % 3) * 8
            for k in range(2):
                acc = V(16 + 16 * k, 16)
                g = [Ins(f"{MFMA} {acc}, {V(64 + 4 * s)}, {A(f + 4 * k)}, {acc if s else 0}")]
                if s + 2 < 28:
                    g += rd[s + 2][k]
                main.append(g)
        with self.cap() as c:
            self.kv_addrs(0, "v60", "v61", "v11")
            p(f"s_cmp_ge_u32 {sh}, 14")
            p(f"s_cselect_b32 {sT2}, {sh}, {scb}")
            p(f"s_cselect_b32 {sT3}, 0, {7 * 2048}")
            p(f"s_lshl_b32 {sT2}, {sT2}, 11")
            p(f"v_and_b32 v56, 15, {vLane}")
            p(f"v_bfe_u32 v57, {vLane}, 4, 1")
            p(f"v_mul_u32_u24 v58, {sT3}, v57")
            p("v_lshl_add_u32 v58, v56, 7, v58")
            p(f"v_add_u32 v58, {sT2}, v58")
            p(f"s_lshl_b32 {sT2}, {sg}, 8")
            p("v_lshlrev_b32 v56, 11, v56")
            p("v_lshl_add_u32 v56, v57, 7, v56")
            p(f"v_add_u32 v56, {sT2}, v56")
            p(f"v_cndmask_b32 v58, v58, v56, {sMPAD}")
            p(f"s_mov_b32 {sU[3]}, {WS_RB}")
        setup = groups(c.ins[:13]) + [c.ins[13:16]] + groups(c.ins[16:])
        with self.cap() as c1:
            self.poll_load("v58", SWS, sU[3], 1, 59)
        with self.cap() as c2:
            p.wait_vm("pb")
            p("s_barrier")
            self.ready(WS_RB)
        gr = self.opt.get("gr", 4)
        self.touch = {0: [], 1: [], 2: [], 3: [], 4: []}
        self.touch[self.opt.get("to", 2)] += self.touch_items(G_O, 14)
        if self.opt.get("x0sc1", 1):
            self.touch[self.opt.get("tx", 2)] += self.touch_items(G_ST, 4)
        else:
            self.touch[self.opt.get("tx", 2)] += self.touch_items(G_X, 18)
        wq = [self.wqkv_item(0, L_WQ, "wq") for u in range(7)]
        if self.opt.get("ksplit", 0):
            afrag = lambda i, lo: A(4 * i) if lo is None else A(4 * i + lo, 2)
            bfrag = lambda i, lo: A(16 + 4 * (i % 2)) if lo is None else A(16 + 4 * (i % 2) + lo, 2)
            areg = lambda s: V(64 + 4 * s)
            h1, m1 = self.single_pass(V(16, 16), afrag, 4, "v62", L_WK, 256, areg, 0, 28, False, True)
            h2, m2 = self.single_pass(V(32, 16), afrag, 4, "v62", L_WV, 256, areg, 0, 28, False, True)
            for k in range(3):
                m1[25 + k] = m1[25 + k] + h2[2 * k:2 * k + 2]
            with self.cap() as cp:
                self.phi(16, 16, 48)
            p.add(h1)
            p.add(spread2(m1 + m2, [([c2.ins], gr, gr), (wq + self.touch[1], gr + 1, 50), (setup, gr + 2, 27),
                                    ([c1.ins], 54, 54)], [(groups(cp.ins), 31, 55)]))
            self.stamp("kv_gemm0")
        else:
            p.add(head)
            p.add(spread(main, [([c2.ins], gr, gr), (wq + self.touch[1], gr + 1, 50), (setup, gr + 2, 50)]))
            self.stamp("kv_gemm0")
            p.add(c1.ins)
            p(f"v_mov_b32 v52, {sEPS6}")
            p(f"v_mov_b32 v53, {sLOG2E}")
            self.phi(16, 16, 48, pk=52)
        self.v_pack()
        p.wait_vm("wq")
        self.kv_publish(lambda lo, k: A(24 + lo, k), "v60", "v61", "v11")
        self.stamp("kv_pub0")
        p("v_mov_b32 v13, v63")
        self.rot_offsets()
        self.apoll_end("v58", SWS, sU[3], 1, 1, 59, 15)
        p(f"v_cmp_ne_u32 vcc, {sfast}, v59")
        p("s_cmp_eq_u32 vcc_hi, 0")
        self.stamp_flush()
        p("s_cbranch_scc1 L_slow" if self.force_slow else "s_cbranch_scc0 L_slow")

    def take(self, n):
        out, self.bulk = self.bulk[:n], self.bulk[n:]
        return out

    def q0(self):
        p = self.p
        afrag = lambda i, lo: A(4 * i) if lo is None else A(4 * i + lo, 2)
        head, main = self.single_pass(V(48, 16), afrag, 4, "v13", 0, 256, lambda s: V(64 + 4 * s), 0, 28, True, True)
        with self.cap() as c:
            p(f"v_mov_b32 v32, {sEPS6}")
            p(f"v_mov_b32 v33, {sLOG2E}")
            self.phi(48, 48, 36, pk=32)
            p(f"v_cndmask_b32 v54, v54, 0, {sMPAD}")
            p(f"v_cndmask_b32 v55, v55, 0, {sMPAD}")
            self.o_addrs()
        tail = groups(c.ins, 6)
        gg = self.opt.get("gg", 34)
        self.bulk = self.dma_items("v8", SPK, 84, 7, "wo", sU[5]) + self.w1_items() + self.w2_items()
        p.add(head)
        p.add(spread(main + tail, [(self.touch[2] + self.take(self.opt.get("bq", 13)), 0, gg - 1),
                                   (self.gather_items(64, "v11"), gg, gg + 8)]))
        for it in self.touch[3] + self.take(self.opt.get("b1", 8)):
            p.add(it)
        self.stamp("q_done0")

    def make_selector(self):
        p = self.p
        p("v_mov_b32 v15, 0")
        p("s_mov_b32 exec_lo, 0x00100001")
        p("s_mov_b32 exec_hi, 0x00100001")
        p(f"v_mov_b32 v15, {sONES}")
        p("s_mov_b64 exec, -1")
        for r in range(4):
            p(f"v_accvgpr_write_b32 a{32 + r}, v15")

    def colsum_qkv(self):
        p = self.p
        p(f"s_min_u32 {sU[0]}, {sw}, 2")
        p(f"s_mul_i32 {sU[0]}, {sU[0]}, {28 * KB}")
        p(f"v_add_u32 v60, {sU[0]}, {vTrA}")
        rd = lambda s: self.trread(V(32 + 4 * (s % 4), 2), V(34 + 4 * (s % 4), 2), "v60", s * KB)
        p.add(rd(0) + rd(1) + rd(2))
        self.make_selector()
        for s in range(28):
            p(f"{MFMA16} {A(36)}, {A(32)}, {V(32 + 4 * (s % 4))}, {A(36) if s else 0}")
            if s + 3 < 28:
                p.add(rd(s + 3))
        p(f"s_lshl_b32 {sU[0]}, {sw}, 9")
        p(f"v_lshlrev_b32 v60, 3, {vLane}")
        p(f"v_add_u32 v60, {L_S + S_STAT}, v60")
        p(f"v_add_u32 v61, {sU[0]}, v60")
        p("v_accvgpr_read_b32 v40, a36")
        self.split_words("v40", "v42", "v43", "v41", False, False)
        p("ds_write_b64 v61, v[42:43]")

    def colsum_qkv_fetch(self):
        p = self.p
        p(f"v_lshlrev_b32 v13, 3, {vLane}")
        p(f"v_add_u32 v13, {L_S + S_STAT}, v13")
        p(f"ds_read_b64 {V(vCSQ + 2, 2)}, v13")
        p(f"ds_read_b64 {V(vCSQ + 4, 2)}, v13 offset:512")
        p(f"ds_read_b64 {V(vCSQ, 2)}, v13 offset:1024")

    def colsum_w1_items(self):
        p = self.p
        items = [[Ins(f"{MFMA16} {A(36)}, {A(32)}, {w1reg(s)}, {A(36) if s else 0}")] for s in range(28)]
        with self.cap() as c:
            p("v_accvgpr_read_b32 v62, a36")
            self.split_words("v62", f"v{vCS1}", f"v{vCS1 + 1}", "v63", False, False)
        items.append(c.ins)
        return items

    def qkv1(self):
        p = self.p
        p(f"v_min_u32 v13, 27, {vLane}")
        p("v_lshlrev_b32 v13, 2, v13")
        p(f"s_lshl_b32 {sT0}, {stb}, 7")
        p(f"s_add_u32 {sT0}, {sT0}, {G_FX}")
        WF = [152, 156, 160, 164, 168, 172]

        def wf(s, k):
            r = WF[3 * (s % 2) + k]
            if k == 2:
                return self.trread(V(r, 2), V(r + 2, 2), vTrB, s * KB)
            return self.trread(V(r, 2), V(r + 2, 2), vTrA, (L_WK, L_WV)[k] + s * KB)
        p.add(wf(0, 0) + wf(0, 1) + wf(0, 2))
        self.poll("v13", SG, sT0, 2)
        self.stamp("x2_seen")
        RING, NR = 96, 14

        def ld(s):
            q = sub()
            if s % 4 == 0:
                q(f"s_add_u32 s4, {sXB}, {s * KB}")
            q(f"buffer_load_dwordx4 {V(RING + 4 * (s % NR))}, {vL16}, {SG}, s4 offen offset:{(s % 4) * KB} sc1")
            return q.ins
        LEAD = self.opt.get("lead", 6)
        for s in range(LEAD):
            p.add(ld(s))
        stl = [[Ins(f"buffer_load_dwordx4 {V(64 + 4 * u)}, {vL16}, {SG}, {sSTB} offen offset:{u * KB} sc1")]
               for u in range(2)]
        with self.cap() as st:
            for i in range(2, 7):
                p(f"v_add_f32 v{64 + (i & 1)}, v{64 + (i & 1)}, v{64 + i}")
            p("v_add_f32 v64, v64, v65")
            self.stats_finish("v64", "v65", "v66", "v67")
            p("v_rsq_f32 v88, v67")
            self.split_words("v66", "v92", "v93", "v65", True, True)
            p("v_mov_b32 v94, 0")
            p("v_mov_b32 v95, 0")
            p("v_cvt_pk_bf16_f32 v80, v88, v88")
            p(f"v_and_b32 v64, {sHI}, v80")
            p("v_sub_f32 v64, v88, v64")
            p("v_cvt_pk_bf16_f32 v81, v64, v64")
            p(f"v_and_b32 v65, {sHI}, v81")
            p("v_sub_f32 v65, v64, v65")
            p("v_and_b32 v80, 0xffff, v80")
            p(f"v_and_or_b32 v80, v81, {sHI}, v80")
            p("v_cvt_pk_bf16_f32 v81, v65, 0")
            p("v_mov_b32 v82, 0")
            p("v_mov_b32 v83, 0")
            p(f"v_mov_b32 v84, {sONES}")
            p(f"v_cndmask_b32 v84, v84, 0, {sMPAD}")
            p("v_mov_b32 v85, v84")
            p("v_mov_b32 v86, 0")
            p("v_mov_b32 v87, 0")
            p(f"{MFMA} {V(64, 16)}, {V(80)}, {V(84)}, 0")
            self.kv_addrs(1, "v89", "v90", "v91")
            for m, dst in ((1, 80), (2, 84)):
                p(f"v_mov_b32 v{dst}, v{vCSQ + 2 * m}")
                p(f"v_mov_b32 v{dst + 1}, v{vCSQ + 2 * m + 1}")
        main = []
        for s in range(28):
            o = 3 * (s % 2)
            a = V(RING + 4 * (s % NR))
            nk = 3 if s < NR else 2
            nk2 = 3 if s + 1 < NR else 2
            for k in range(nk):
                acc = V(16 + 16 * k, 16)
                c = acc if s else 0
                g = [Ins(f"{MFMA} {acc}, {a}, {V(WF[o + k])}, {c}" if k < 2 else f"{MFMA} {acc}, {V(WF[o + k])}, {a}, {c}")]
                if s + 1 < 28 and k < nk2:
                    g += wf(s + 1, k)
                main.append(g)
        seq = [ld(s) for s in range(LEAD, 14)] + stl + [ld(s) for s in range(14, 28)]
        slots = []
        gpos = 0
        for i, it in enumerate(seq):
            s = i + LEAD - 2
            if s >= 14:
                gpos = max(gpos, 3 * (s - 14) + 2)
            slots.append(([it], gpos, gpos))
            gpos += 2
        p.add(spread(main, slots + [(groups(st.ins), 30, len(main) - 2)]))
        p(f"{MFMA} {V(16, 16)}, {V(92)}, {V(80)}, {V(16, 16)}")
        p(f"{MFMA} {V(32, 16)}, {V(92)}, {V(84)}, {V(32, 16)}")
        self.stamp("kv_gemm1")
        vfrag = lambda i, lo: V(152 + 4 * i) if lo is None else V(152 + 4 * i + lo, 2)
        head, main = self.single_pass(V(48, 16), vfrag, 4, vTrB, 0, 512, lambda s: V(RING + 4 * (s % NR)),
                                      NR, 28, True, False)
        p.add(head)
        p(f"v_mov_b32 v172, {sEPS6}")
        p(f"v_mov_b32 v173, {sLOG2E}")
        p(f"v_mov_b32 v80, v{vCSQ}")
        p(f"v_mov_b32 v81, v{vCSQ + 1}")
        self.phi(16, 16, 168, lambda r: (V(64 + r, 2), 1), pk=172)
        for r in range(0, 16, 2):
            p(f"v_pk_mul_f32 {V(32 + r, 2)}, {V(32 + r, 2)}, {V(64 + r, 2)}")
        self.v_pack()
        self.kv_publish(lambda lo, k: V(64 + lo, k), "v89", "v90", "v91")
        self.stamp("kv_pub1")
        main.append([Ins(f"{MFMA} {V(48, 16)}, {V(80)}, {V(92)}, {V(48, 16)}")])
        with self.cap() as c:
            self.phi(48, 48, 168, lambda r: (V(88, 2), 0), pk=172)
            p(f"v_cndmask_b32 v54, v54, 0, {sMPAD}")
            p(f"v_cndmask_b32 v55, v55, 0, {sMPAD}")
            self.o_addrs()
        tail = groups(c.ins, 6)
        gg = self.opt.get("gg1", 20)
        p.add(spread(main + tail, [(self.gather_items(96, "v91"), gg, gg + 8)]))
        self.stamp("q_done1")

    def wo_phase(self, layer, pre=None, streams=()):
        p = self.p
        RES = 104
        p(f"s_lshl_b32 s5, {sh}, 11")
        p(f"s_add_u32 s5, s5, {sXB}")
        if layer == 1:
            p(f"buffer_load_dwordx4 {V(RES)}, {vL16}, {SG}, s5 offen sc1")
            p(f"buffer_load_dwordx4 {V(RES + 4)}, {vL16}, {SG}, s5 offen offset:1024 sc1")
        else:
            for r in range(8):
                p(f"v_accvgpr_read_b32 v{RES + r}, a{56 + r}")
        p(f"s_lshr_b32 {sT1}, {sh}, 2")
        p(f"s_lshl_b32 {sT1}, {sT1}, 10")
        p(f"s_and_b32 {sT2}, {sh}, 3")
        p(f"s_lshl_b32 {sT2}, {sT2}, 2")
        p(f"s_add_u32 {sT1}, {sT1}, {sT2}")
        p(f"s_add_u32 s6, {sT1}, {sSTB}")
        p(f"s_lshl_b32 {sT0}, {stb}, 7")
        p(f"s_lshl_b32 {sT1}, {sh}, 3")
        p(f"s_add_u32 {sT1}, {sT0}, {sT1}")
        p(f"s_add_u32 s7, {sT1}, {G_FX}")
        p(f"s_add_u32 {sT0}, {sT0}, {G_FO}")
        p(f"v_and_b32 v13, 15, {vLane}")
        p("v_lshlrev_b32 v13, 2, v13")
        rd = [self.trread(V(48 + (s % 3) * 4, 2), V(50 + (s % 3) * 4, 2), vTrB, (L_WO - L_WQ) + s * KB)
              for s in range(28)]
        p.add(rd[0] + rd[1])
        if pre:
            pre()
        self.poll("v13", SG, sT0, 1 + layer)
        self.stamp(f"o_seen{layer}")
        RING = 64
        LEAD = self.opt.get("leadwo", 8)

        def ld(s):
            q = sub()
            if s % 4 == 0:
                q(f"s_add_u32 s4, {sHB}, {s * KB}")
            q(f"buffer_load_dwordx4 {V(RING + 4 * s)}, {vL16}, {SG}, s4 offen offset:{(s % 4) * KB} sc1")
            return q.ins
        for s in range(LEAD):
            p.add(ld(s))
            p(f"v_lshlrev_b32 v{16 + 2 * s}, 16, v{RES + s}" if s < 8 else "; -")
            p(f"v_and_b32 v{17 + 2 * s}, {sHI}, v{RES + s}" if s < 8 else "; -")
        assert LEAD >= 8
        main = []
        for s in range(28):
            g = [Ins(f"{MFMA} {V(16, 16)}, {V(48 + (s % 3) * 4)}, {V(RING + 4 * s)}, {V(16, 16)}")]
            if s + LEAD < 28:
                g += ld(s + LEAD)
            if s + 2 < 28:
                g += rd[s + 2]
            main.append(g)
        p.add(spread(main, list(streams)))
        self.stamp(f"wo_gemm{layer}")
        for r in range(8):
            p(f"v_cvt_pk_bf16_f32 v{32 + r}, v{16 + 2 * r}, v{17 + 2 * r}")
        self.publish([f"buffer_store_dwordx4 {V(32)}, {vL16}, {SG}, s5 offen",
                      f"buffer_store_dwordx4 {V(36)}, {vL16}, {SG}, s5 offen offset:1024"],
                     always_sc1=(layer == 0 and self.opt.get("x0sc1", 1)))
        p("v_pk_mul_f32 v[42:43], v[16:17], v[16:17]")
        for r in range(2, 16, 2):
            p(f"v_pk_fma_f32 v[42:43], {V(16 + r, 2)}, {V(16 + r, 2)}, v[42:43]")
            p(f"v_pk_add_f32 v[16:17], v[16:17], {V(16 + r, 2)}")
        p("v_add_f32 v40, v16, v17")
        p("v_add_f32 v42, v42, v43")
        self.both_halves("v40", "v42", None)
        self.publish([f"buffer_store_dword v40, {vL16}, {SG}, s6 offen"])
        self.flag("s7", 1 + 2 * layer, 2)
        self.stamp(f"x1_pub{layer}")

    def rot_offsets(self):
        p = self.p
        for i in range(7):
            if self.opt.get("rot", 0):
                p(f"s_add_u32 s{8 + i}, {scb}, {i}")
                p(f"s_cmp_ge_u32 s{8 + i}, 7")
                p(f"s_cselect_b32 s15, 7, 0")
                p(f"s_sub_u32 s{8 + i}, s{8 + i}, s15")
                p(f"s_lshl_b32 s{8 + i}, s{8 + i}, 14")
            else:
                p(f"s_mov_b32 s{8 + i}, {i * 16 * KB}")

    def w2_items(self):
        p = self.p
        items = []
        order = list(range(8, 28)) + list(range(8))
        for i, j in enumerate(order):
            for ch in range(2):
                with self.cap() as c:
                    if i == 0 and ch == 0:
                        p(f"s_mul_i32 s25, {scb}, {224 * KB}")
                        p(f"s_lshl_b32 s26, {sw}, 12")
                        p(f"s_add_u32 s25, s25, s26")
                        p(f"s_add_u32 s25, s25, {WS_P2}")
                        p(f"s_and_b32 s26, {srq}, 1")
                        p(f"s_lshl_b32 s26, s26, 14")
                        p(f"s_sub_u32 s27, s25, s26")
                        p(f"s_add_u32 s27, s27, {16 * KB}")
                        p(f"s_add_u32 s25, s25, s26")
                    if j % 2 == 0 and ch == 0:
                        i2 = j >> 1
                        p(f"s_lshl_b32 s26, s{8 + i2 % 7}, 1")
                        p(f"s_add_u32 s26, s26, {'s25' if i2 < 7 else 's27'}")
                    p(f"buffer_load_dwordx4 {w2reg(j, ch)}, {vL16}, {SPK}, s26 offen offset:{(j & 1) * 2048 + ch * 1024} sc1",
                      "w2")
                items.append(c.ins)
        return items

    def ffn(self, layer, pre=None, extra=None):
        p = self.p
        p(f"v_and_b32 v13, 15, {vLane}")
        p("v_min_u32 v13, 13, v13")
        p("v_lshlrev_b32 v13, 3, v13")
        p(f"v_lshrrev_b32 v14, 4, {vLane}")
        p("v_lshl_add_u32 v107, v14, 7, v13")
        p(f"s_mul_i32 {sT0}, {srh}, {112 * KB}")
        big = layer == 1 and self.opt.get("big", 1)
        LB = 0 if big else L_S
        p(f"s_add_u32 {sT0}, {sT0}, {G_X - LB}")
        p(f"s_and_b32 s4, {sh}, 1")
        p(f"s_mul_i32 s6, s4, {28 * KB}")
        p(f"s_add_u32 {sT0}, {sT0}, s6")
        p(f"s_lshl_b32 s6, s6, 1")
        p(f"v_add_u32 v110, {sT0}, {vL16}")
        p(f"s_lshl_b32 s5, {sw}, 10")
        p(f"s_add_u32 s5, s5, {LB}")
        if big:
            p(f"v_add_u32 {vTrB}, {56 * KB}, {vL16}")
        p(f"s_lshl_b32 {sT0}, {sh}, 13")
        p(f"s_lshl_b32 {sT1}, {sw}, 11")
        p(f"s_add_u32 s3, {sT0}, {sT1}")
        p(f"s_mul_i32 {sT0}, {srh}, {4 * 112 * KB}")
        p(f"s_add_u32 s3, s3, {sT0}")
        p(f"s_lshl_b32 {sT0}, {srh}, 10")
        p(f"s_lshl_b32 {sT1}, {sw}, 6")
        p(f"s_add_u32 {sT0}, {sT0}, {sT1}")
        p(f"s_lshl_b32 {sT1}, {sh}, 2")
        p(f"s_add_u32 {sT0}, {sT0}, {sT1}")
        p(f"s_add_u32 s2, {sT0}, {G_FH}")
        p(f"s_mul_i32 {sT0}, s4, {2 * 112 * KB}")
        p(f"s_sub_u32 s7, s3, {sT0}")
        p(f"s_add_u32 s3, s3, {sT0}")
        p(f"s_lshl_b32 {sT0}, s4, 9")
        p(f"s_sub_u32 s1, s2, {sT0}")
        p(f"s_add_u32 s2, s2, {sT0}")
        p(f"v_mov_b32 v84, v{vCS1}")
        p(f"v_mov_b32 v85, v{vCS1 + 1}")
        for r in (86, 87, 90, 91):
            p(f"v_mov_b32 v{r}, 0")
        p(f"v_and_b32 v108, 31, {vLane}")
        p("v_lshlrev_b32 v108, 4, v108")
        p(f"v_add_u32 v108, {L_S + S_STAT}, v108")
        p(f"s_and_b32 {sT0}, {sxs}, 3")
        p(f"s_lshl_b32 {sT0}, {sT0}, 9")
        p(f"s_lshl_b32 {sT1}, s4, 9")
        p(f"s_xor_b32 {sT0}, {sT0}, {sT1}")
        p(f"v_add_u32 v109, {sT0}, v108")
        self.ffn2_setup(layer)
        p.wait_ds()
        p("s_barrier")
        if pre:
            pre()
        p(f"s_lshl_b32 {sT0}, {srh}, 9")
        p(f"s_add_u32 {sT0}, {sT0}, {G_FX}")
        self.poll("v107", SG, sT0, 1 + 2 * layer, 2)
        self.stamp(f"x1_seen{layer}")

        Q, P = (28, 2) if big else (10, 2)

        def quad(k):
            q = sub()
            if k % Q == 0:
                q("s_mov_b32 m0, s5")
                if k:
                    q(f"v_add_u32 v110, {Q * 4 * KB}, v110")
            else:
                q(f"s_add_u32 m0, m0, {4 * KB}")
            if k in (7, 21):
                q("v_subrev_u32 v110, s6, v110")
            if k == 14:
                q("v_add_u32 v110, s6, v110")
            q(f"buffer_load_dwordx4 v110, {SG}, m0 offen sc1 lds", f"c{k // P}")
            return q.ins
        for k in range(4):
            p.add(quad(k))
        stl = [[Ins(f"buffer_load_dwordx4 {V(112 + 4 * u)}, {vL16}, {SG}, {sSTB} offen offset:{u * KB} sc1")]
               for u in range(4)]
        with self.cap() as st:
            for i in range(2, 14):
                p(f"v_add_f32 v{112 + (i & 1)}, v{112 + (i & 1)}, v{112 + i}")
            p("v_add_f32 v112, v112, v113")
            self.stats_finish("v112", "v113", "v114", "v115")
            self.split_words("v114", "v116", "v117", "v113", True, True)
            p("v_rsq_f32 v118, v115")
            p("v_sqrt_f32 v119, v115")
            p(f"v_mul_f32_e64 v118, -v118, {sLOG2E}")
            p("ds_write_b128 v109, v[116:119]", "stw")
        XF, NX, D = 48, 5, 4
        def rdx(n):
            base, off = (vS16, n % (4 * Q)) if not big else ((vL16, n) if n < 56 else (vTrB, n - 56))
            return Ins(f"ds_read_b128 {V(XF + 4 * (n % NX))}, {base} offset:{off * KB}", f"x{n}")
        BIGB = {1: 1, 2: 2, 3: 4, 5: 7, 8: 10, 11: 13}

        def boundary(j):
            q = sub()
            if big and j:
                if j not in BIGB:
                    return []
                q.wait_vm(f"c{BIGB[j]}")
            else:
                q.wait_vm(f"c{j}")
            if j == 3:
                q.wait_ds("stw")
            q("s_barrier")
            return q.ins
        p.add(quad(4))
        p.add(quad(5))
        p.add(boundary(0))
        p.add([rdx(n) for n in range(D)])
        main = []
        pos = {}
        for n in range(112):
            o, s = divmod(n, 28)
            acc = V(16 + 16 * (o & 1), 16)
            g = []
            if n % 2 == 0:
                g.append(Pseudo("wait_ds", f"x{n + 1}"))
            g.append(Ins(f"{MFMA} {acc}, {w1reg(s)}, {V(XF + 4 * (n % NX))}, {acc if s else 0}"))
            m = n + D
            if m < 112:
                if m % 8 == 0:
                    g += boundary(m // 8)
                qd = quad(m // 4 + 6) if (m % 4 == 1 and m >= 8 and m // 4 + 6 < 28) else []
                if big:
                    kq = 8 + (n - 9) // 2
                    qd = quad(kq) if (n >= 9 and n % 2 == 1 and kq < 28) else []
                g += qd[:-1] + [rdx(m)] + qd[-1:]
                if m == 24:
                    g += [Ins(f"ds_read_b128 {V(68 + 4 * k)}, v108 offset:{k * 512}") for k in range(4)]
            if s == 24:
                g += [Ins(f"v_mov_b32 v88, v{68 + 4 * o}"), Ins(f"v_mov_b32 v89, v{69 + 4 * o}")]
            pos[n] = len(main)
            main.append(g)
            if s == 27:
                main.append([Ins(f"{MFMA} {acc}, {V(84)}, {V(88)}, {acc}")])

        hsc1 = self.opt.get("h0sc1", 1) if layer == 0 else self.opt.get("h1sc1", 1)

        def epilogue(o):
            tb = ((o & 1) << 1) | (o >> 1)
            acc = 16 + 16 * (o & 1)
            c1, sd = f"v{70 + 4 * o}", f"v{71 + 4 * o}"
            pk = o == 3 and hsc1 and self.opt.get("pk3", 1)
            with self.cap() as c:
                for r0 in range(0, 16, 4) if pk else ():
                    cs = V(70 + 4 * o, 2)
                    for k in (0, 2):
                        p(f"v_pk_mul_f32 {V(92 + k, 2)}, {V(acc + r0 + k, 2)}, {cs} op_sel_hi:[1,0]")
                    for k in range(4):
                        p(f"v_exp_f32 v{92 + k}, v{92 + k}")
                    for k in (0, 2):
                        p(f"v_pk_fma_f32 {V(92 + k, 2)}, {V(92 + k, 2)}, {cs}, {cs} op_sel:[0,1,1] op_sel_hi:[1,1,1]")
                    for k in range(4):
                        p(f"v_rcp_f32 v{92 + k}, v{92 + k}")
                    for k in (0, 2):
                        p(f"v_pk_mul_f32 {V(acc + r0 + k, 2)}, {V(acc + r0 + k, 2)}, {V(92 + k, 2)}")
                    for k in (0, 2):
                        p(f"v_cvt_pk_bf16_f32 v{96 + ((r0 + k) >> 1)}, v{acc + r0 + k}, v{acc + r0 + k + 1}")
                for r0 in range(0, 16, 2) if not pk else ():
                    rr = (r0, r0 + 1)
                    t = {r: f"v{92 + (r & 3)}" for r in rr}
                    a = {r: f"v{acc + r}" for r in rr}
                    for r in rr:
                        p(f"v_mul_f32 {t[r]}, {a[r]}, {c1}")
                    for r in rr:
                        p(f"v_exp_f32 {t[r]}, {t[r]}")
                    for r in rr:
                        p(f"v_fma_f32 {t[r]}, {t[r]}, {sd}, {sd}")
                    for r in rr:
                        p(f"v_rcp_f32 {t[r]}, {t[r]}")
                    for r in rr:
                        p(f"v_mul_f32 {a[r]}, {a[r]}, {t[r]}")
                    p(f"v_cvt_pk_bf16_f32 v{96 + (r0 >> 1)}, {a[r0]}, {a[r0 + 1]}")
            items = groups(c.ins)
            with self.cap() as c:
                p(f"s_add_u32 {sT0}, {'s7' if o & 1 else 's3'}, {tb * 112 * KB}")
                nt = {0: "", 1: " nt", 2: " sc0", 3: " sc0 nt"}[self.opt.get("hnt", 0)] if self.fast else ""
                self.publish([f"buffer_store_dwordx4 {V(96)}, {vL16}, {SG}, {sT0} offen{nt}",
                              f"buffer_store_dwordx4 {V(100)}, {vL16}, {SG}, {sT0} offen offset:1024{nt}"], f"h{o}",
                             always_sc1=hsc1)
            items.append(c.ins)
            with self.cap() as c:
                p(f"s_add_u32 {sT1}, {'s1' if o & 1 else 's2'}, {tb * 256}")
                self.flag(sT1, 1 + layer, wait=f"h{o}", st=sT2)
            return items, c.ins
        streams = [([quad(6), quad(7)], 0, 3), (stl[:2], 1, 4), (stl[2:], 6, 8)]
        eps = [epilogue(o) for o in range(4)]
        E = self.opt.get("epend", 27)
        F = self.opt.get("fsc1", 18) if hsc1 else self.opt.get("fpl", 6)
        Es = [E, self.opt.get("e1", E), E]
        Fs = [F, F - (E - Es[1])]
        flex = [(eps[o][0], pos[28 * (o + 1)] + 2, pos[28 * (o + 1) + Es[o]]) for o in range(3)]
        flex.append((groups(st.ins), self.opt.get("gs", 11), 19))
        if not big and hsc1 and self.opt.get("stq", 0):
            for o in range(2):
                n1 = 28 * (o + 1) + E
                while n1 % 8 != 1:
                    n1 -= 1
                flex[o] = (eps[o][0][:-1], pos[28 * (o + 1)] + 2, pos[n1] - 1)
                streams.append(([eps[o][0][-1]], pos[n1], pos[n1]))
        if not self.opt.get("flex", 1):
            streams += flex
            flex = []
        for o in range(2):
            g = pos[28 * (o + 2) + Fs[o]]
            streams.append(([eps[o][1]], g, g))
        self.hl = self.h_loads()
        pa, pb = self.h_poll(0, layer), self.h_poll(1, layer)
        LAG = self.opt.get("lag", 7)
        if self.opt.get("ord", 0):
            for o, pl in ((1, pa), (2, pb)):
                items, a, b = flex[o]
                flex[o] = (items[:-1], a, b - 1)
                streams.append(([pl[0], items[-1]], b, b))
            GA = pos[56 + Es[1]]
            self.pb = [[], pb[1]]
        else:
            GA = pos[56 + F + self.opt.get("fda", 9)]
            streams.insert(0, ([pa[0]], GA, GA))
            self.pb = pb
        streams.append(([pa[1]], GA + LAG, GA + LAG))
        first = max(GA + LAG + 1, pos[84 + self.opt.get("h0", 0)])
        n0 = min(14, (pos[111] - first) // 2 + 1)
        streams.append((self.hl[:n0], first, pos[111] - 1))
        self.n0 = n0
        if extra:
            streams += extra(pos)
        if self.opt.get("fine3") and layer == 1:
            woven = spread2(main, streams, flex)
            k = 0
            for x in woven:
                p.add([x])
                if x.kind == "mfma":
                    k += 1
                    if k >= 58 and (k - 58) % 7 == 0:
                        self.stamp(f"n{k}")
        elif self.opt.get("fine"):
            self.stamp(f"f1_first{layer}")
            woven = spread2(main, streams, flex)
            k = 0
            for x in woven:
                p.add([x])
                if x.kind == "mfma":
                    k += 1
                    if k % 29 == 0 and k < 116:
                        self.stamp(f"f1_o{k // 29 - 1}_{layer}")
        else:
            p.add(spread2(main, streams, flex))
        self.stamp(f"ffn1_mfma{layer}")
        self.ffn2(layer, eps[3][0], eps[2][1], eps[3][1], F)

    def ffn2_setup(self, layer):
        p = self.p
        p(f"s_mul_i32 {sU[3]}, {srq}, {2 * 112 * KB}")
        p(f"s_lshl_b32 {sT3}, {sw}, 11")
        p(f"s_add_u32 {sU[3]}, {sU[3]}, {sT3}")
        p(f"s_lshl_b32 {sU[4]}, {srq}, 9")
        p(f"s_lshl_b32 {sT3}, {sw}, 6")
        p(f"s_add_u32 {sU[4]}, {sU[4]}, {sT3}")
        p(f"s_add_u32 {sU[4]}, {sU[4]}, {G_FH}")
        p(f"v_min_u32 v104, 6, {vLane}")
        p("v_lshlrev_b32 v104, 3, v104")
        p(f"s_and_b32 {sT3}, {srq}, 1")
        p(f"s_lshl_b32 {sT4}, {sT3}, 2")
        p(f"s_add_u32 {sU[4]}, {sU[4]}, {sT4}")
        p(f"s_lshl_b32 {sT4}, {sT3}, 13")
        p(f"s_sub_u32 {sU[8]}, {sU[3]}, {sT4}")
        p(f"s_add_u32 {sU[8]}, {sU[8]}, {8 * KB}")
        p(f"s_add_u32 {sU[3]}, {sU[3]}, {sT4}")
        p(f"s_lshr_b32 {sT3}, {srq}, 1")
        p(f"s_lshl_b32 {sT3}, {sT3}, 2")
        p(f"s_and_b32 {sT4}, {srq}, 1")
        p(f"s_add_u32 {sT3}, {sT3}, {sT4}")
        p(f"s_mul_i32 {sU[5]}, {sT3}, {28 * KB}")
        p(f"s_lshl_b32 {sT3}, {scb}, 12")
        p(f"s_lshl_b32 {sT4}, {sw}, 7")
        p(f"s_add_u32 {sT3}, {sT3}, {sT4}")
        p(f"s_add_u32 {sU[5]}, {sU[5]}, {sT3}")
        p(f"s_add_u32 {sU[5]}, {sU[5]}, {G_X}")
        if layer == 0:
            p(f"s_mul_i32 {sU[6]}, {srq}, {14 * KB}")
            p(f"s_lshr_b32 {sT3}, {scb}, 2")
            p(f"s_lshl_b32 {sT3}, {sT3}, 10")
            p(f"s_add_u32 {sU[6]}, {sU[6]}, {sT3}")
            p(f"s_and_b32 {sT3}, {scb}, 3")
            p(f"s_lshl_b32 {sT3}, {sT3}, 2")
            p(f"s_add_u32 {sT3}, {sT3}, {sT4}")
            p(f"s_add_u32 {sU[6]}, {sU[6]}, {sT3}")
            p(f"s_add_u32 {sU[6]}, {sU[6]}, {G_ST}")
            p(f"s_lshl_b32 {sT3}, {srq}, 8")
            p(f"s_lshl_b32 {sT4}, {scb}, 4")
            p(f"s_add_u32 {sT3}, {sT3}, {sT4}")
            p(f"s_lshl_b32 {sT4}, {sw}, 2")
            p(f"s_add_u32 {sT3}, {sT3}, {sT4}")
            p(f"s_add_u32 {sU[7]}, {sT3}, {G_FX}")
        else:
            p(f"s_lshl_b32 {sT3}, {sg}, 2")
            p(f"s_add_u32 {sT3}, {sT3}, {srq}")
            p(f"s_lshl_b32 {sT3}, {sT3}, 3")
            p(f"s_add_u32 {sT3}, {sT3}, {sw}")
            p(f"s_mul_i32 {sT3}, {sT3}, {8 * 896}")
            p(f"s_lshl_b32 {sT4}, {scb}, 7")
            p(f"s_add_u32 {sU[7]}, {sT3}, {sT4}")
        p(f"s_lshl_b32 {sT3}, {sw}, 13")
        p(f"v_add_u32 v105, {sT3}, {vS16}")
        if layer == 0:
            p(f"v_lshrrev_b32 v14, 5, {vLane}")
            p("v_lshlrev_b32 v14, 7, v14")
            p("v_xor_b32 v105, v105, v14")
            p("v_mov_b32 v106, v105")
        else:
            p("v_xor_b32 v106, 0x80, v105")
        p(f"v_and_b32 v13, 7, {vLane}")
        p("v_lshlrev_b32 v13, 4, v13")
        p(f"s_lshl_b32 {sT3}, {sw}, 7")
        p(f"v_add_u32 v13, {sT3}, v13")
        p(f"v_bfe_u32 v14, {vLane}, 3, 1")
        p("v_lshlrev_b32 v15, 7, v14")
        p("v_xor_b32 v13, v13, v15")
        p(f"v_lshl_add_u32 v13, v14, {9 if layer == 0 else 10}, v13")
        p(f"v_lshrrev_b32 v14, 4, {vLane}")
        p("v_lshl_add_u32 v13, v14, 11, v13")
        p(f"v_add_u32 v111, {L_S}, v13")

    def hreg(self, n):
        if not self.opt.get("xr", 0):
            return 112 + 4 * (n % 16), n - 16
        if n < 16:
            return 112 + 4 * n, -1
        if n < 20:
            return 64 + 4 * (n - 16), -1
        return 112 + 4 * ((n - 4) % 16), (n - 20 if n < 36 else n - 16)

    def h_loads(self):
        out = []
        for n in range(56):
            th, j = divmod(n, 28)
            q = sub()
            i = j >> 1
            if j % 14 == 0:
                q(f"s_add_u32 {sU[9]}, {sU[3] if i < 7 else sU[8]}, {th * 112 * KB}")
                q(f"v_add_u32 v15, {sU[9]}, {vL16}")
            q(f"buffer_load_dwordx4 {V(self.hreg(n)[0])}, v15, {SG}, s{8 + i % 7} offen offset:{(j % 2) * KB} sc1")
            out.append(q.ins)
        return out

    def h_poll(self, grp, layer):
        p = self.p
        st, tmp = (sU[0], sU[1])[grp & 1], (109, 13)[grp & 1]
        with self.cap() as c1:
            if grp & 1:
                p(f"s_xor_b32 {st}, {sU[4]}, 4")
                if grp >> 1:
                    p(f"s_add_u32 {st}, {st}, 256")
            else:
                p(f"s_add_u32 {st}, {sU[4]}, {(grp >> 1) * 256}")
            self.poll_load("v104", SG, st, 1, tmp)
        with self.cap() as c2:
            self.apoll_end("v104", SG, st, 1 + layer, 1, tmp)
        return c1.ins, c2.ins

    def ffn2(self, layer, ep3, flag2, flag3, F):
        p = self.p
        ACC = ((16, 48), (32, 64))
        lds = self.hl
        k0 = min(len(ep3), self.opt.get("k0", 89 if F > 10 else 20))
        LEAD = self.opt.get("leadh", 14)
        early_b = self.opt.get("ord", 0) and k0 > 60
        npre = self.opt.get("npre", 20 if self.opt.get("xr", 0) else 16) if early_b else 14
        pre = lds[self.n0:14]
        if self.pb[0]:
            pre = [self.pb[0]] + pre
        if early_b:
            p.add(spread(ep3[:k0], [(pre, 0, 40), ([self.pb[1]] + lds[14:npre], 44, k0 - 4)]))
            self.pb = []
        elif k0:
            p.add(spread(ep3[:k0], [(pre, 0, max(0, k0 - 4))]))
        else:
            for it in pre:
                p.add(it)
        ep3 = ep3[k0:]
        issued = npre
        RES = (88, 84)
        TL = self.opt.get("tl", 10)

        with self.cap() as su:
            p(f"v_and_b32 v107, 7, {vLane}")
            p(f"v_bfe_u32 v110, {vLane}, 3, 1")
            if layer == 0:
                p(f"v_lshrrev_b32 v108, 4, {vLane}")
                p("v_lshlrev_b32 v108, 9, v108")
                p("v_lshl_add_u32 v108, v107, 4, v108")
                p("v_lshlrev_b32 v107, 4, v107")
                p("v_lshl_add_u32 v107, v110, 9, v107")
            else:
                p("v_mul_u32_u24 v108, 896, v107")
                p("v_lshlrev_b32 v107, 4, v107")
                p("v_lshl_add_u32 v107, v110, 3, v107")
                p(f"v_lshrrev_b32 v110, 3, {vLane}")
                p("v_lshl_add_u32 v108, v110, 4, v108")
            p(f"v_lshrrev_b32 v110, 4, {vLane}")
            p("v_lshl_add_u32 v107, v110, 10, v107")

        def resid(th):
            q = sub()
            q(f"s_add_u32 {sT3}, {sU[5]}, {th * 2 * 28 * KB}")
            if layer == 0:
                q(f"buffer_load_dwordx4 {V(RES[th])}, v107, {SG}, {sT3} offen sc1")
            else:
                q(f"buffer_load_dwordx2 {V(RES[th], 2)}, v107, {SG}, {sT3} offen sc1")
                q(f"buffer_load_dwordx2 {V(RES[th] + 2, 2)}, v107, {SG}, {sT3} offen offset:512 sc1")
            return q.ins

        def mm():
            main = []
            for n in range(56):
                th, j = divmod(n, 28)
                b = V(self.hreg(n)[0])
                for ch in range(2):
                    acc = V(ACC[th][ch], 16)
                    main.append([Ins(f"{MFMA} {acc}, {w2reg(j, ch)}, {b}, {acc if j else 0}")])
            tail = main[112 - 2 * TL:]
            return main[:112 - 2 * TL] + tail[0::2] + tail[1::2]

        def reduce(th, woven):
            area = th * 16 * KB
            a0, a1 = ACC[th]
            quad = [a0, a0 + 4, a0 + 8, a0 + 12, a1, a1 + 4, a1 + 8, a1 + 12]
            T = 92
            items = []
            with self.cap() as c:
                for k in range(8):
                    p(f"ds_write_b128 v{105 + (k & 1)}, {V(quad[k])} offset:{area + k * KB}")
                for r in range(4):
                    p(f"v_lshlrev_b32 v{T + 2 * r}, 16, v{RES[th] + r}")
                    p(f"v_and_b32 v{T + 2 * r + 1}, {sHI}, v{RES[th] + r}")
            items += groups(c.ins)
            with self.cap() as c:
                p.wait_ds()
                p("s_barrier")
                for u in range(4):
                    for k in range(2):
                        p(f"ds_read_b128 {V(quad[2 * u + k])}, v111 offset:{area + u * 8 * KB + k * (KB if layer == 0 else 512)}")
            items += groups(c.ins)
            with self.cap() as c:
                for u in range(4):
                    for k in range(2):
                        if woven:
                            for r in range(4):
                                p(f"v_add_f32 v{T + 4 * k + r}, v{T + 4 * k + r}, v{quad[2 * u + k] + r}")
                        else:
                            for r in (0, 2):
                                p(f"v_pk_add_f32 {V(T + 4 * k + r, 2)}, {V(T + 4 * k + r, 2)}, {V(quad[2 * u + k] + r, 2)}")
                for r in range(4):
                    p(f"v_cvt_pk_bf16_f32 v{80 + r}, v{T + 2 * r}, v{T + 2 * r + 1}")
            items += groups(c.ins)
            if layer == 1:
                with self.cap() as c:
                    p(f"s_add_u32 {sT3}, {sU[7]}, {th * 32 * 896}")
                    p(f"buffer_store_dwordx4 {V(80)}, v108, {SOUT}, {sT3} offen {'sc1' if self.opt.get('outsc1', 1) else ''}")
                items.append(c.ins)
                return items, []
            with self.cap() as c:
                p(f"s_add_u32 {sT4}, {sU[5]}, {th * 2 * 28 * KB}")
                self.publish([f"buffer_store_dwordx4 {V(80)}, v107, {SG}, {sT4} offen"], f"x{th}")
            items.append(c.ins)
            with self.cap() as c:
                p(f"v_add_f32 v100, v{T}, v{T + 1}")
                p(f"v_mul_f32 v101, v{T}, v{T}")
                p(f"v_fmac_f32 v101, v{T + 1}, v{T + 1}")
                for r in range(2, 8):
                    p(f"v_add_f32 v100, v100, v{T + r}")
                    p(f"v_fmac_f32 v101, v{T + r}, v{T + r}")
                p("v_add_f32_dpp v100, v100, v100 row_ror:8 row_mask:0xf bank_mask:0xf")
                p("v_add_f32_dpp v101, v101, v101 row_ror:8 row_mask:0xf bank_mask:0xf")
                p("v_permlane16_swap_b32 v100, v101")
                p("v_add_f32 v100, v100, v101")
                p("v_mov_b32 v101, v100")
                p("v_permlane32_swap_b32 v100, v101")
                p("v_add_f32 v100, v100, v101")
            items += groups(c.ins)
            with self.cap() as c:
                p(f"s_add_u32 {sT3}, {sU[6]}, {th * 7 * KB}")
                self.publish(["s_mov_b64 exec, 0x00ff00ff", f"buffer_store_dword v100, v108, {SG}, {sT3} offen",
                              "s_mov_b64 exec, -1"], f"x{th}")
            items.append(c.ins)
            with self.cap() as c:
                p(f"s_add_u32 {sT3}, {sU[7]}, {th * 128}")
                self.flag(sT3, 2, wait=f"x{th}", tmp=102, st=sT4)
            return items, c.ins
        E3 = max(4, len(ep3) * self.opt.get("e3", 24) // 89)
        F2 = self.opt.get("f2", max(0, F - 6))
        F3 = self.opt.get("f3", E3 + (24 if F > 10 else 16))
        LAG = self.opt.get("lag2", 14)
        pc, pd = self.h_poll(2, layer), self.h_poll(3, layer)
        seen = {0: -1, 1: self.opt.get("gb2", 6) if self.pb else -1}
        GC = F2 + self.opt.get("fd2", 12)
        seen[2] = GC + LAG
        GD = max(F3 + self.opt.get("fd2", 12), seen[2] + 1)
        seen[3] = GD + LAG
        streams = []
        if self.pb:
            streams.append(([self.pb[1]], seen[1], seen[1]))
        streams += [([pc[0]], GC, GC), ([pc[1]], seen[2], seen[2]), ([pd[0]], GD, GD), ([pd[1]], seen[3], seen[3])]
        g = 0.0
        for n in range(issued, 56):
            free = 2 * self.hreg(n)[1] + 1
            g = max(g, free, 2 * (n - LEAD) + 1, seen[n // 14])
            use = 2 * n if n < 56 - TL else 112 - 2 * TL + (n - (56 - TL))
            g = min(g, use - 2 * self.opt.get("minlead", 4) + 1)
            assert g >= seen[n // 14] and g >= free, (n, g)
            streams.append(([lds[n]], int(g), int(g)))
            g += self.opt.get("pace", 21) / 10
        bar = [Ins("s_barrier")]
        r0, f0 = reduce(0, True)
        r1, f1 = reduce(1, False)
        if layer == 1:
            go = max(self.opt.get("go", 106), int(g))
            streams.append(([r0[-1]], go, go))
            r0 = r0[:-1]
        if TL:
            streams.append((r1[8:16], 112 - TL - 4, 112 - TL - 1))
            streams.append((r1[:4], 112 - TL + 2, 111))
            r1 = r1[4:8] + r1[16:]
        streams += [([bar], 0, 0), (ep3, 1, E3), ([flag2], F2, F2), ([flag3], F3, F3),
                    (groups(su.ins) + [resid(0)], E3 + 1, E3 + 16), ([resid(1)], 56, 56), ([bar], 96, 96)]
        if self.opt.get("rflex", 1):
            streams += [(r0[:8], 58, 71), (r0[8:16], 59, 71), (r0[16:25], 73, 80), (r0[25:], 81, 97)]
        else:
            streams.append((r0, 57, 92))
        if f0:
            streams.append(([f0], 108, 108))
        woven = spread(mm(), streams)
        k = 0
        for x in woven:
            p.add([x])
            if x.kind == "mfma":
                k += 1
                if k == 56:
                    self.stamp(f"th0_done{layer}")
                elif self.opt.get("fine2") and layer == 1 and (k == 1 or k % 14 == 0) and k < 112:
                    self.stamp(f"m{k}")
        self.stamp(f"th1_done{layer}")
        for it in r1:
            p.add(it)
        p.add(f1)
        self.stamp(f"ffn2_done{layer}")

    def spare0(self):
        p = self.p
        if not self.opt.get("h0sc1", 1) or self.opt.get("htouch", 0):
            p(f"s_and_b32 {sT0}, {sh}, 1")
            p(f"s_lshl_b32 {sT0}, {sT0}, 2")
            p(f"s_add_u32 {sT0}, {sT0}, {sw}")
            p(f"s_mul_i32 {sT0}, {sT0}, {14 * KB}")
            p(f"s_mul_i32 {sT1}, {srh}, {4 * 112 * KB}")
            p(f"s_add_u32 {sT0}, {sT0}, {sT1}")
            p(f"v_lshlrev_b32 v64, 7, {vLane}")
            for tb in (0, 2, 1, 3):
                for off in (0, 6 * KB):
                    p(f"s_add_u32 {sT1}, {sT0}, {G_H + tb * 112 * KB + off}")
                    p(f"buffer_load_dword v65, v64, {SG}, {sT1} offen sc1")
        self.colsum_qkv()
        p.wait_ds()
        p("s_barrier")
        self.colsum_qkv_fetch()
        w2pre = self.opt.get("w2pre", 1)
        if w2pre:
            if w2pre == 2:
                p(f"v_min_u32 v16, 27, {vLane}")
                p("v_lshlrev_b32 v16, 2, v16")
                p(f"s_lshl_b32 {sT0}, {stb}, 7")
                p(f"s_add_u32 {sT0}, {sT0}, {G_FX}")
                self.poll("v16", SG, sT0, 1, sleep=2)
            p(f"s_and_b32 {sT0}, {sh}, 1")
            p(f"s_lshl_b32 {sT0}, {sT0}, 3")
            p(f"s_add_u32 {sT0}, {sT0}, {stb}")
            p(f"v_lshlrev_b32 v64, 7, {vLane}")
            for t in range(7):
                p(f"s_add_u32 {sT1}, {sT0}, {16 * t}")
                p(f"s_min_u32 {sT1}, {sT1}, 97")
                p(f"s_mul_i32 {sT2}, {sT1}, 147")
                p(f"s_lshr_b32 {sT2}, {sT2}, 10")
                p(f"s_mul_i32 {sT3}, {sT2}, 7")
                p(f"s_sub_u32 {sT1}, {sT1}, {sT3}")
                p(f"s_add_u32 {sT2}, {sT2}, 8")
                p(f"s_cmp_ge_u32 {sT2}, 14")
                p(f"s_cselect_b32 {sT3}, 14, 0")
                p(f"s_sub_u32 {sT2}, {sT2}, {sT3}")
                p(f"s_mul_i32 {sT1}, {sT1}, {224 * KB}")
                p(f"s_lshl_b32 {sT2}, {sT2}, 14")
                p(f"s_add_u32 {sT1}, {sT1}, {sT2}")
                p(f"s_add_u32 {sT1}, {sT1}, {WS_P2}")
                p(f"buffer_load_dword v65, v64, {SWS}, {sT1} offen sc1")
                p(f"s_add_u32 {sT1}, {sT1}, {8 * KB}")
                p(f"buffer_load_dword v65, v64, {SWS}, {sT1} offen sc1")
        if self.opt.get("nap", 1):
            p(f"v_min_u32 v16, 13, {vLane}")
            p("v_lshlrev_b32 v16, 2, v16")
            p(f"s_lshl_b32 {sT0}, {srh}, 10")
            p(f"s_add_u32 {sT0}, {sT0}, {G_FH + 3 * 256}")
            self.poll("v16", SG, sT0, 1, sleep=12)
        p("s_waitcnt vmcnt(0) lgkmcnt(0)")

    def spare1(self):
        p = self.p
        wb = self.opt.get("wb", 0)
        if not wb:
            return
        p(f"s_and_b32 {sT0}, {sh}, 1")
        p(f"s_or_b32 {sT0}, {sT0}, {srh}")
        p(f"s_or_b32 {sT0}, {sT0}, {sw}")
        p(f"s_cmp_lg_u32 {sT0}, 0")
        p(f"s_cbranch_scc1 L_fin{self.sfx}")
        if wb == 4:
            p(f"v_and_b32 v13, 15, {vLane}")
            p("v_min_u32 v13, 13, v13")
            p(f"v_bfe_u32 v14, {vLane}, 4, 1")
            p("v_lshl_add_u32 v13, v14, 5, v13")
            p("v_lshlrev_b32 v16, 2, v13")
            p(f"s_mov_b32 {sT0}, {G_FO + 64}")
            self.poll("v16", SG, sT0, 9)
            p("buffer_wbl2 sc1")
            p("s_waitcnt vmcnt(0)")
            return
        p(f"v_and_b32 v13, 15, {vLane}")
        p("v_min_u32 v13, 13, v13")
        p("v_lshlrev_b32 v13, 3, v13")
        p(f"v_lshrrev_b32 v14, 4, {vLane}")
        p("v_lshl_add_u32 v16, v14, 7, v13")
        p(f"s_mov_b32 {sT0}, {G_FX}")
        self.poll("v16", SG, sT0, 3, 2)
        p(f"s_mov_b32 {sT0}, {G_FX + 512}")
        self.poll("v16", SG, sT0, 3, 2)
        p("buffer_wbl2 sc1")
        p("s_waitcnt vmcnt(0)")
        if wb >= 2:
            p(f"v_and_b32 v13, 15, {vLane}")
            p("v_min_u32 v13, 13, v13")
            p("v_lshlrev_b32 v13, 2, v13")
            p(f"v_lshrrev_b32 v14, 4, {vLane}")
            p("v_lshl_add_u32 v16, v14, 6, v13")
            for tb in ((2, 3) if wb == 2 else (0, 2, 1, 3)):
                for half in range(2):
                    p(f"s_mov_b32 {sT0}, {G_FH + (4 * half + tb) * 256}")
                    self.poll("v16", SG, sT0, 2)
                p("buffer_wbl2 sc1")
                p("s_waitcnt vmcnt(0)")

    def finish(self):
        p = self.p
        p(f"s_or_b32 {sT0}, {sg}, {sh}")
        p(f"s_or_b32 {sT0}, {sT0}, {srh}")
        p(f"s_or_b32 {sT0}, {sT0}, {sw}")
        p(f"s_cmp_lg_u32 {sT0}, 0")
        p(f"s_cbranch_scc1 L_fin{self.sfx}")
        p(f"s_add_u32 {sT0}, {sE}, 64")
        p(f"v_mov_b32 v14, {sT0}")
        p("s_mov_b64 exec, 1")
        p(f"buffer_store_dword v14, {vL16}, {SWS}, 0 offen sc1")
        p("s_mov_b64 exec, -1")
        p(f"L_fin{self.sfx}:")
        if self.pad:
            p("s_waitcnt vmcnt(0)")
            if self.opt.get("amp") == "end":
                p("s_memrealtime s[94:95]")
            p("s_waitcnt lgkmcnt(0)")
            p("s_sub_u32 s94, s94, s96")
            p("s_mul_i32 s94, s94, 4")
            p("s_min_u32 s94, s94, 20000")
            p(f"s_add_u32 s94, s94, {self.pad}")
            p(f"L_pad{self.sfx}:")
            p("s_memrealtime s[98:99]")
            p("s_waitcnt lgkmcnt(0)")
            p("s_sub_u32 s98, s98, s96")
            p(f"s_cmp_lt_u32 s98, s94")
            p(f"s_cbranch_scc1 L_pad{self.sfx}")
        if self.diag:
            p("s_waitcnt vmcnt(0)")
            self.stamp("end")
            self.stamp_flush()
            p(f"s_lshl_b32 {sT0}, {srh}, 4")
            p(f"s_add_u32 {sT0}, {sT0}, {sh}")
            p(f"s_lshl_b32 {sT0}, {sT0}, 3")
            p(f"s_add_u32 {sT0}, {sT0}, {sg}")
            p(f"s_lshl_b32 {sT0}, {sT0}, 2")
            p(f"s_add_u32 {sT0}, {sT0}, {sw}")
            p(f"s_lshl_b32 {sT0}, {sT0}, 7")
            p(f"s_add_u32 {sT0}, {sT0}, {WS_DIAG}")
            p("s_mov_b64 exec, 1")
            for i in range(self.nstamp):
                p(f"v_mov_b32 v14, s{STAMP0 + i}")
                p(f"buffer_store_dword v14, {vL16}, {SWS}, {sT0} offen offset:{4 * i}")
            for k in range(2):
                p(f"v_mov_b32 v14, s{18 + k}")
                p(f"buffer_store_dword v14, {vL16}, {SWS}, {sT0} offen offset:{112 + 4 * k}")
            p(f"v_mov_b32 v14, {1 if self.fast else 0}")
            p(f"buffer_store_dword v14, {vL16}, {SWS}, {sT0} offen offset:120")
            p(f"v_mov_b32 v14, {slim}")
            p(f"buffer_store_dword v14, {vL16}, {SWS}, {sT0} offen offset:124")
            p("s_mov_b64 exec, -1")
        p("s_waitcnt vmcnt(0)")
        p("s_endpgm")

    def body(self):
        p = self.p
        x = self.sfx
        self.q0()

        self.kv_finish(0, 64, "v11")
        self.stamp_flush()
        p(f"s_cmp_ge_u32 {sh}, 14")
        p(f"s_cbranch_scc1 L_spare0{x}")
        assert len(self.bulk) <= 84
        b2 = self.touch[4] + self.take(self.opt.get("b2", 14))

        def pre_wo0():
            for it in b2:
                p.add(it)
            self.colsum_qkv()
        n_before = min(28, 28 + 56 - len(self.bulk))
        cs1 = self.colsum_w1_items()
        b3 = self.take(self.opt.get("b3", 14))
        self.wo_phase(0, pre_wo0, [(cs1[:n_before], 0, 26), (b3, 20, 27)])
        b4 = self.take(max(self.opt.get("b4", 6), len(self.bulk) - 56))

        def pre_ffn0():
            self.colsum_qkv_fetch()
            for it in b4:
                p.add(it)
            for it in cs1[n_before:]:
                p.add(it)
            p(f"v_mov_b32 v84, v{vCS1}")
            p(f"v_mov_b32 v85, v{vCS1 + 1}")
            p.wait_ds()
            p("s_barrier")

        def extra0(pos):
            return [(self.take(100), self.opt.get("w2beg", 0), pos[self.opt.get("w2end", 108)])]
        self.ffn(0, pre_ffn0, extra0)
        p(f"L_layer1{x}:")
        p("s_waitcnt lgkmcnt(0)")
        self.qkv1()
        self.kv_finish(1, 96, "v91")
        p(f"s_cmp_ge_u32 {sh}, 14")
        p(f"s_cbranch_scc1 L_spare1{x}")
        self.wo_phase(1)
        self.ffn(1)
        self.finish()
        p(f"L_spare0{x}:")
        p("s_waitcnt vmcnt(0) lgkmcnt(0)")
        self.spare0()
        p(f"s_branch L_layer1{x}")
        p(f"L_spare1{x}:")
        p("s_waitcnt vmcnt(0) lgkmcnt(0)")
        self.spare1()
        p(f"s_branch L_fin{x}")
        p.add(self.tail)
        self.tail = []

    def build(self):
        p = self.p
        self.prologue()
        self.startup()
        self.qkv0()
        self.body()
        p("L_fastend:")
        p("L_slow:")
        p("s_waitcnt vmcnt(0) lgkmcnt(0)")
        p("s_nop 7")
        self.fast = False
        self.sfx = "_s"
        self.body()
        return finalize(p.ins)


HEADER = f"""; Two layers of (LayerNorm, linear attention, output projection, LayerNorm, SiLU FFN) in one persistent launch.
; @launch grid=(256,1,1) block=(256,1,1) lds={LDS_BYTES}
.amdgcn_target "amdgcn-amd-amdhsa--gfx950"
.text
.globl {NAME}_kernel
.p2align 8
.type {NAME}_kernel,@function
{NAME}_kernel:
"""
FOOTER = f"""
.section .rodata,"a"
.p2align 6
.amdhsa_kernel {NAME}_kernel
  .amdhsa_next_free_vgpr 512
  .amdhsa_next_free_sgpr 102
  .amdhsa_accum_offset 256
  .amdhsa_group_segment_fixed_size 0
  .amdhsa_kernarg_size 72
  .amdhsa_user_sgpr_count 2
  .amdhsa_user_sgpr_kernarg_segment_ptr 1
  .amdhsa_system_sgpr_workgroup_id_x 1
.end_amdhsa_kernel
"""


def generate(**kw):
    g = Gen(**kw)
    lines = g.build()
    return HEADER + "\n".join(lines) + FOOTER, g


if __name__ == "__main__":
    out = sys.argv[1] if len(sys.argv) > 1 else f"cdna_kernels/{NAME}.s"
    kw = {}
    for a in sys.argv[2:]:
        k, _, v = a.partition("=")
        kw[k] = (int(v) if v.lstrip('-').isdigit() else v) if v else True
    text, g = generate(**kw)
    open(out, "w").write(text)
    print("wrote", out, len(text), "bytes;", text.count("\n"), "lines")
```

```python
import sys, os
sys.path.insert(0, os.path.dirname(os.path.abspath(__file__)))
from asmlib import *

NAME = "interleave_layers__linear_attn_block__dense_activation_silu__prompt"
KB = 1024

WS_EPOCH = 0
WS_RA = 0x8000
WS_RB = 0x10000
WS_DIAG = 0x20000
WS_KV = 0x80000
KV_L = 0x80000
WS_PQ = 0x180000
WS_PO = WS_PQ + 16 * 28 * KB
WS_P1 = WS_PO + 14 * 28 * KB
WS_P2 = WS_P1 + 14 * 112 * KB
WS_G = 0x680000
assert WS_P2 + 7 * 224 * KB <= WS_G
OOB = 0x40000000
G_STRIDE = 0x160000
G_H = 0
G_O = 8 * 112 * KB
G_X = G_O + 8 * 28 * KB
G_ST = G_X + 8 * 28 * KB
G_FX = G_ST + 8 * 7 * KB
G_FO = G_FX + 1024
G_FH = G_FO + 1024
G_END = G_FH + 2048
assert G_END <= G_STRIDE
WS_BYTES = WS_G + 8 * G_STRIDE

L_WK, L_WV, L_WQ, L_WO, L_S = 0, 28 * KB, 56 * KB, 84 * KB, 112 * KB
L_XST = 48 * KB
S_KVP, S_KVS = 0, 16 * KB
S_CS = 18 * KB
S_STAT, S_TR = 42 * KB, 44 * KB
LDS_BYTES = 160 * KB

SX, SQ, SO, S1, S2, SOUT, SWS, SG = ("s[8:11]", "s[12:15]", "s[16:19]", "s[20:23]", "s[24:27]", "s[28:31]",
                                     "s[32:35]", "s[36:39]")
sE, sg, sh, srh, sw, sfast, srq, scb, stb, sxs, slim = ("s56", "s57", "s58", "s59", "s60", "s61", "s62", "s63",
                                                        "s64", "s65", "s66")
sT0, sT1, sT2, sT3, sT4, sT5 = "s40", "s41", "s42", "s43", "s44", "s45"
sCnt, sNeed = "s46", "s47"
sONES, sLOG2E, sEPS6, sHI = "s48", "s49", "s50", "s51"
sM28 = "s[52:53]"
sMPAD = "s[54:55]"
sHB, sXB, sSTB = "s67", "s68", "s69"
STAMP0 = 80
sU = [f"s{70 + i}" for i in range(10)]
SPK = "s[20:23]"

vLane, vL16, vTrA, vTrB = "v0", "v1", "v2", "v3"
vCS1 = 4
vCSQ = 6
vS16 = "v12"
vT0, vT1, vT2 = "v13", "v14", "v15"


def V(n, k=4):
    return f"v[{n}:{n + k - 1}]" if k > 1 else f"v{n}"


def A(n, k=4):
    return f"a[{n}:{n + k - 1}]" if k > 1 else f"a{n}"


def w1reg(s, lo=0, k=4):
    return A(224 + 4 * s + lo, k) if s < 8 else V(176 + 4 * (s - 8) + lo, k)


def w2reg(j, ch, lo=0, k=4):
    return A(8 * j + 4 * ch + lo, k)


MFMA = "v_mfma_f32_32x32x16_bf16"
MFMA16 = "v_mfma_f32_16x16x32_bf16"


class Capture:
    def __init__(self, g):
        self.g = g

    def __enter__(self):
        self.saved = self.g.p.ins
        self.g.p.ins = []
        self.ins = self.g.p.ins
        return self

    def __exit__(self, *a):
        self.g.p.ins = self.saved


class Gen:
    def __init__(self, diag=False, force_slow=False, pad=0, part=0, **opt):
        self.p = Prog()
        self.diag = diag
        self.force_slow = force_slow
        self.pad = pad
        self.part = part
        self.opt = opt
        self.nstamp = 0
        self.seen = 0
        self.stamp_names = []
        self.pending = False
        self.tail = []
        self.fast = True
        self.sfx = ""

    def cap(self):
        return Capture(self)

    def stamp(self, name, op="s_memrealtime"):
        if self.opt.get("amp") == name and self.fast:
            self.p("s_memrealtime s[94:95]")
        if not self.diag or not self.fast:
            return
        self.seen += 1
        lo = self.opt.get("from", 18 * self.part)
        if self.seen > 2 and not (lo <= self.seen - 3 < lo + 18):
            return
        self.stamp_flush()
        assert STAMP0 + self.nstamp < 100, "too many stamps"
        if self.opt.get("clk") and self.seen > 1:
            op = "s_memtime"
        self.p(f"{op} s[100:101]")
        self.stamp_names.append(name)
        self.nstamp += 1
        self.pending = True

    def stamp_flush(self):
        if self.diag and self.pending:
            self.p(f"s_mov_b32 s{STAMP0 + self.nstamp - 1}, s100")
            self.pending = False

    def publish(self, stores, tag="pub", always_sc1=False):
        for s in stores:
            self.p(s + (" sc1" if s.startswith("buffer_") and (always_sc1 or not self.fast) else ""), tag)

    def flag(self, soff, val, n=1, wait="pub", tmp=14, st=sT5):
        p = self.p
        p(f"s_add_u32 {st}, {sE}, {val}")
        p(f"v_mov_b32 v{tmp}, {st}")
        if n == 2:
            p(f"v_mov_b32 v{tmp + 1}, {st}")
        op = f"buffer_store_dword v{tmp}" if n == 1 else f"buffer_store_dwordx2 v[{tmp}:{tmp + 1}]"
        p.wait_vm(wait)
        self.publish(["s_mov_b64 exec, 1", f"{op}, {vL16}, {SG}, {soff} offen", "s_mov_b64 exec, -1"], "flag")

    def poll_load(self, vaddr, srd, soff, n, tmp):
        if n == 1:
            self.p(f"buffer_load_dword v{tmp}, {vaddr}, {srd}, {soff} offen sc1")
        else:
            self.p(f"buffer_load_dwordx2 v[{tmp}:{tmp + 1}], {vaddr}, {srd}, {soff} offen sc1")

    def poll_test(self, n, tmp, need, win=3):
        p = self.p
        p(f"v_subrev_u32 v{tmp}, {need}, v{tmp}")
        if n == 2:
            p(f"v_subrev_u32 v{tmp + 1}, {need}, v{tmp + 1}")
            p(f"v_or_b32 v{tmp}, v{tmp}, v{tmp + 1}")
        p(f"v_cmp_lt_u32 vcc, {win}, v{tmp}")

    def spin(self, vaddr, srd, soff, n, tmp, need, done, sleep=0, win=3):
        p = self.p
        lp = p.label("poll")
        p(f"s_mov_b32 {sCnt}, {slim}")
        p(f"{lp}:")
        self.poll_load(vaddr, srd, soff, n, tmp)
        p("s_waitcnt vmcnt(0)")
        self.poll_test(n, tmp, need, win)
        p(f"s_cbranch_vccz {done}")
        sleep = sleep or self.opt.get("slp", 0)
        if sleep:
            p(f"s_sleep {sleep}")
        p(f"s_sub_u32 {sCnt}, {sCnt}, 1")
        p(f"s_cmp_lg_u32 {sCnt}, 0")
        p(f"s_cbranch_scc1 {lp}")
        p(f"s_mov_b32 {slim}, 1")

    def poll(self, vaddr, srd, soff, need, n=1, tmp=14, sleep=0):
        p = self.p
        ld = p.label("polled")
        p(f"s_add_u32 {sNeed}, {sE}, {need}")
        self.spin(vaddr, srd, soff, n, tmp, sNeed, ld, sleep)
        p(f"{ld}:")

    def apoll_end(self, vaddr, srd, soff, need, n=1, tmp=14, win=3):
        p = self.p
        lo, lb = p.label("aspin"), p.label("aback")
        p(f"s_add_u32 {sNeed}, {sE}, {need}")
        self.poll_test(n, tmp, sNeed, win)
        p(f"s_cbranch_vccnz {lo}")
        p(f"{lb}:")
        with self.cap() as c:
            p(f"{lo}:")
            p("s_nop 4")
            self.spin(vaddr, srd, soff, n, tmp, sNeed, lb, 0, win)
            p(f"s_branch {lb}")
        self.tail.extend(c.ins)

    def trread(self, dst_lo, dst_hi, vaddr, off, second=512):
        return [Ins(f"ds_read_b64_tr_b16 {dst_lo}, {vaddr} offset:{off}"),
                Ins(f"ds_read_b64_tr_b16 {dst_hi}, {vaddr} offset:{off + second}")]

    def transpose_block(self, reg, aw, ar):
        return [Ins(f"ds_write_b128 {aw}, {reg(0, 4)}"),
                Ins(f"ds_read_b64_tr_b16 {reg(0, 2)}, {ar}"),
                Ins(f"ds_read_b64_tr_b16 {reg(2, 2)}, {ar} offset:512")]

    def tr_addrs(self, aw, ar):
        p = self.p
        p(f"s_lshl_b32 {sT0}, {sw}, 10")
        p(f"s_add_u32 {sT0}, {sT0}, {L_S + S_TR}")
        p(f"v_add_u32 {aw}, {sT0}, {vL16}")
        p(f"v_add_u32 {ar}, {sT0}, {vTrA}")

    def both_halves(self, s, q, tmp):
        p = self.p
        p(f"v_permlane32_swap_b32 {s}, {q}")
        p(f"v_add_f32 {s}, {s}, {q}")

    def stats_finish(self, t, u, mean, var):
        p = self.p
        p(f"v_mov_b32 {u}, {t}")
        p(f"v_permlane32_swap_b32 {t}, {u}")
        p(f"v_mul_f32 {mean}, 0x3b124925, {t}")
        p(f"v_mul_f32 {var}, 0x3b124925, {u}")
        p(f"v_fma_f32 {var}, -{mean}, {mean}, {var}")
        p(f"v_max_f32 {var}, 0, {var}")
        p(f"v_add_f32 {var}, 0x3727c5ac, {var}")

    def split_words(self, x, w0, w1, t, neg, xside):
        p = self.p
        s = "-" if neg else ""
        p(f"v_cvt_pk_bf16_f32 {w0}, {s}{x}, {s}{x}")
        p(f"v_and_b32 {t}, {sHI}, {w0}")
        p(f"v_sub_f32 {t}, {s}{x}, {t}" if not neg else f"v_sub_f32_e64 {t}, -{x}, {t}")
        if xside:
            p(f"v_and_b32 {w1}, 0xffff, {w0}")
            p(f"v_cvt_pk_bf16_f32 {t}, {t}, {t}")
            p(f"v_and_or_b32 {w0}, {t}, {sHI}, {w1}")
        else:
            p(f"v_cvt_pk_bf16_f32 {w1}, {t}, 0")

    def prologue(self):
        p = self.p
        p("s_cmp_lt_u32 s2, 256")
        p("s_cbranch_scc1 L_start")
        p("s_endpgm")
        p("L_start:")
        p("s_load_dwordx4 s[40:43], s[0:1], 0")
        p("s_load_dwordx2 s[52:53], s[0:1], 64")
        p("s_load_dwordx2 s[44:45], s[0:1], 16")
        p("s_load_dwordx4 s[48:51], s[0:1], 32")
        p("s_load_dwordx2 s[46:47], s[0:1], 48")
        self.stamp("realtime", "s_memrealtime")
        if self.pad:
            p("s_memrealtime s[96:97]")
            p("s_memrealtime s[94:95]")
        p("s_getpc_b64 s[6:7]")
        p("L_pc:")
        p("v_lshrrev_b32 v13, 6, v0")
        p(f"v_and_b32 {vLane}, 63, v0")
        p(f"v_readfirstlane_b32 {sw}, v13")
        p(f"s_and_b32 {sg}, s2, 7")
        p(f"s_lshr_b32 s3, s2, 3")
        p(f"s_lshl_b32 s4, s3, 2")
        p(f"s_add_u32 s4, s4, {sw}")
        p(f"s_lshl_b32 s4, s4, 9")
        p(f"v_lshlrev_b32 v9, 7, {vLane}")
        p("v_add_u32 v13, s4, v9")
        p("v_min_u32 v13, L_fastend-L_pc-4, v13")
        p("s_mov_b64 exec, 0xf")
        p("global_load_dword v10, v13, s[6:7]")
        p("s_mov_b64 exec, -1")
        p(f"s_and_b32 {sh}, s3, 15")
        p(f"s_lshr_b32 {srh}, s3, 4")
        p(f"s_lshl_b32 s2, {sg}, 1")
        p(f"s_add_u32 s2, s2, {srh}")
        p("s_lshl_b32 s3, s2, 2")
        p(f"s_add_u32 s3, s3, {sw}")
        p("s_min_u32 s5, s3, 55")
        p("s_cmp_ge_u32 s5, 28")
        p("s_cselect_b32 s4, 1, 0")
        p("s_cselect_b32 s6, 28, 0")
        p("s_sub_u32 s5, s5, s6")
        p(f"v_lshrrev_b32 v13, 2, {vLane}")
        p(f"v_and_b32 v15, 3, {vLane}")
        p("v_lshlrev_b32 v15, 4, v15")
        p("v_mul_u32_u24 v14, 2688, v13")
        p("v_add_u32 v6, v14, v15")
        p("v_mul_u32_u24 v14, 896, v13")
        p("v_add_u32 v7, v14, v15")
        p("v_mul_u32_u24 v14, 3584, v13")
        p("v_add_u32 v8, v14, v15")
        p(f"s_cmp_ge_u32 {sh}, 7")
        p(f"s_cselect_b32 s6, 1, 0")
        p(f"s_cselect_b32 s7, 7, 0")
        p(f"s_lshl_b32 {srq}, {srh}, 1")
        p(f"s_add_u32 {srq}, {srq}, s6")
        p(f"s_sub_u32 {scb}, {sh}, s7")
        p(f"s_lshl_b32 {stb}, {srh}, 2")
        p(f"s_and_b32 s6, {sw}, 1")
        p(f"s_lshl_b32 s6, s6, 1")
        p(f"s_lshr_b32 s7, {sw}, 1")
        p(f"s_or_b32 s6, s6, s7")
        p(f"s_add_u32 {sxs}, {stb}, s6")
        p(f"s_add_u32 {stb}, {stb}, {sw}")
        p(f"v_lshlrev_b32 {vL16}, 4, {vLane}")
        p(f"v_lshrrev_b32 v13, 3, {vLane}")
        p("v_mul_u32_u24 v14, 896, v13")
        p("v_lshrrev_b32 v13, 1, v13")
        p(f"v_and_b32 v15, 7, {vLane}")
        p("v_xor_b32 v13, v13, v15")
        p("v_lshl_add_u32 v16, v13, 4, v14")
        p("v_xor_b32 v13, 4, v13")
        p("v_lshl_add_u32 v17, v13, 4, v14")
        p(f"s_lshl_b32 {sU[0]}, {sg}, 3")
        p(f"s_add_u32 {sU[0]}, {sU[0]}, {stb}")
        p(f"s_mul_i32 {sU[0]}, {sU[0]}, {32 * 896}")
        p(f"s_mul_i32 {sU[1]}, {sw}, {28 * KB}")
        p(f"s_add_u32 {sU[1]}, {sU[1]}, {L_XST}")
        p(f"s_cmp_ge_u32 {sh}, 14")
        p(f"s_cselect_b32 {sU[2]}, 7, 0")
        p(f"s_sub_u32 {sU[2]}, {scb}, {sU[2]}")
        p(f"s_mov_b32 s10, {2048 * 896}\ns_mov_b32 s11, 0x00020000")
        p(f"s_mov_b32 s14, {448 * 2688}\ns_mov_b32 s15, 0x00020000")
        p("s_waitcnt lgkmcnt(0)")
        self.stamp("start")
        p("s_mov_b32 s12, s42\ns_mov_b32 s13, s43")
        p("s_mov_b32 s8, s40\ns_mov_b32 s9, s41")
        p(f"s_load_dword {sE}, s[52:53], {WS_EPOCH}")
        for j in range(7):
            p(f"s_lshl_b32 {sU[3]}, {sU[2]}, 7")
            p(f"s_add_u32 {sU[3]}, {sU[3]}, {sU[0]}")
            p(f"s_lshl_b32 {sU[4]}, {sU[2]}, 12")
            p(f"s_add_u32 {sU[4]}, {sU[4]}, {sU[1]}")
            for b in range(4):
                p(f"s_add_u32 m0, {sU[4]}, {b * KB}")
                p(f"s_add_u32 {sU[5]}, {sU[3]}, {b * 8 * 896}")
                p(f"buffer_load_dwordx4 v{16 + (b & 1)}, {SX}, {sU[5]} offen lds", "x")
                if 4 * j + b + 1 == self.opt.get("xa", 4):
                    self.prologue2()
            if j < 6:
                p(f"s_add_u32 {sU[2]}, {sU[2]}, 1")
                p(f"s_cmp_eq_u32 {sU[2]}, 7")
                p(f"s_cselect_b32 {sU[2]}, 0, {sU[2]}")

    def prologue2(self):
        p = self.p
        p(f"s_mul_i32 {sHB}, {stb}, {28 * KB}")
        p(f"s_add_u32 {sHB}, {sHB}, {G_O}")
        p(f"s_mul_i32 {sXB}, {sxs}, {28 * KB}")
        p(f"s_add_u32 {sXB}, {sXB}, {G_X}")
        p(f"s_mul_i32 {sSTB}, {stb}, {7 * KB}")
        p(f"s_add_u32 {sSTB}, {sSTB}, {G_ST}")
        p(f"s_mov_b32 {slim}, 40000")
        p(f"v_add_u32 {vS16}, {L_S}, {vL16}")
        p(f"v_and_b32 v13, 3, {vLane}")
        p("v_lshlrev_b32 v13, 3, v13")
        p(f"v_bfe_u32 v14, {vLane}, 4, 1")
        p("v_lshl_add_u32 v13, v14, 5, v13")
        p(f"v_bfe_u32 v14, {vLane}, 2, 2")
        p("v_lshl_add_u32 v13, v14, 6, v13")
        p(f"v_lshrrev_b32 v14, 5, {vLane}")
        p(f"v_lshl_add_u32 {vTrA}, v14, 8, v13")
        p(f"v_add_u32 {vTrB}, {L_WQ}, {vTrA}")
        p("v_lshl_add_u32 v62, v14, 9, v13")
        p(f"v_add_u32 v63, {L_WQ}, v62")
        p(f"v_and_b32 v13, 31, {vLane}")
        p("v_lshrrev_b32 v14, 3, v13")
        p("v_lshlrev_b32 v14, 10, v14")
        p("v_and_b32 v15, 7, v13")
        p("v_lshl_add_u32 v14, v15, 7, v14")
        p(f"v_add_u32 v14, {sU[1]}, v14")
        p("v_bfe_u32 v13, v13, 1, 3")
        p(f"v_lshrrev_b32 v15, 5, {vLane}")
        p("v_xor_b32 v13, v13, v15")
        for q in range(4):
            p(f"v_xor_b32 v15, {2 * q}, v13")
            p(f"v_lshl_add_u32 v{20 + q}, v15, 4, v14")
        p(f"v_lshrrev_b32 v15, 5, {vLane}")
        p("v_xor_b32 v13, v13, v15")
        p("v_lshl_add_u32 v14, v15, 3, v14")
        p(f"s_min_u32 s6, {sh}, 13")
        p("s_lshr_b32 s7, s6, 1")
        p("s_lshl_b32 s7, s7, 12")
        p("v_add_u32 v14, s7, v14")
        p("s_and_b32 s6, s6, 1")
        p("s_lshl_b32 s6, s6, 2")
        p("v_xor_b32 v13, s6, v13")
        for a in range(4):
            p(f"v_xor_b32 v15, {a}, v13")
            p(f"v_lshl_add_u32 v{24 + a}, v15, 4, v14")
        p(f"s_cmp_lt_u32 {sh}, 14")
        p(f"s_cselect_b32 s18, {448 * 448 * 2}, 0")
        p(f"s_cselect_b32 s22, {448 * 1792 * 2}, 0")
        p(f"s_cselect_b32 s26, {448 * 1792 * 2}, 0")
        if self.opt.get("abl"):
            p("s_mov_b32 s6, 0xAA54")
            p(f"s_bitcmp1_b32 s6, {sh}")
            p("s_cselect_b32 s18, 0, s18")
            p("s_cselect_b32 s22, 0, s22")
            p("s_cselect_b32 s26, 0, s26")
        for base, src, size in ((16, 44, None), (20, 48, None), (24, 50, None), (28, 46, 2048 * 896),
                                (32, 52, WS_BYTES)):
            p(f"s_mov_b32 s{base}, s{src}")
            p(f"s_mov_b32 s{base + 1}, s{src + 1}")
            if size is not None:
                p(f"s_mov_b32 s{base + 2}, {size}")
            p(f"s_mov_b32 s{base + 3}, 0x00020000")
        p(f"s_mul_i32 s6, {sg}, {G_STRIDE}")
        p(f"s_add_u32 s6, s6, {WS_G}")
        p("s_add_u32 s36, s52, s6")
        p("s_addc_u32 s37, s53, 0")
        p(f"s_mov_b32 s38, {G_STRIDE}")
        p("s_mov_b32 s39, 0x00020000")

    def kv_clear(self):
        p = self.p
        p(f"s_lshl_b32 {sT0}, {sh}, 15")
        p(f"s_lshl_b32 {sT1}, s3, 9")
        p(f"s_add_u32 {sT0}, {sT0}, {sT1}")
        p(f"s_add_u32 {sT0}, {sT0}, {WS_KV}")
        p(f"s_add_u32 {sT1}, {sT0}, {KV_L}")
        p("v_mov_b32 v36, -1\nv_mov_b32 v37, -1")
        p(f"v_lshlrev_b32 v11, 3, {vLane}")
        p(f"buffer_store_dwordx2 v[36:37], v11, {SWS}, {sT0} offen sc1", "pb")
        p(f"buffer_store_dwordx2 v[36:37], v11, {SWS}, {sT1} offen sc1", "pb")

    def wqkv_setup(self):
        p = self.p
        p(f"s_mul_i32 s0, {sh}, 56")
        p(f"s_mul_i32 s1, {sw}, {16 * 2688}")
        p("s_add_u32 s0, s0, s1")
        p(f"s_lshl_b32 s1, {sw}, 10")
        p(f"s_mul_i32 {sU[7]}, s2, 37")
        p(f"s_lshr_b32 {sU[7]}, {sU[7]}, 8")
        p(f"s_mul_i32 {sU[7]}, {sU[7]}, 7")
        p(f"s_sub_u32 {sU[6]}, s2, {sU[7]}")

    def wqkv_item(self, m, lbase, tag):
        p = self.p
        with self.cap() as c:
            p(f"s_lshl_b32 {sU[7]}, {sU[6]}, 12")
            p(f"s_add_u32 {sU[7]}, {sU[7]}, s1")
            p(f"s_add_u32 m0, {sU[7]}, {lbase}")
            p(f"s_mul_i32 {sU[7]}, {sU[6]}, {64 * 2688}")
            p(f"s_add_u32 {sU[7]}, {sU[7]}, s0")
            if m:
                p(f"s_add_u32 {sU[7]}, {sU[7]}, {896 * m}")
            p(f"buffer_load_dwordx4 v6, {SQ}, {sU[7]} offen lds", tag)
            p(f"s_add_u32 {sU[6]}, {sU[6]}, 1")
            p(f"s_cmp_eq_u32 {sU[6]}, 7")
            p(f"s_cselect_b32 {sU[6]}, 0, {sU[6]}")
        return c.ins

    def wo_items(self):
        p = self.p
        items = []
        for u in range(7):
            with self.cap() as c:
                if u == 0:
                    p(f"s_lshl_b32 {sU[8]}, {sh}, 6")
                    p(f"s_mul_i32 {sU[7]}, {sw}, {16 * 896}")
                    p(f"s_add_u32 {sU[8]}, {sU[8]}, {sU[7]}")
                p(f"s_add_u32 m0, s1, {L_WO + 4 * u * KB}")
                p(f"s_add_u32 {sU[7]}, {sU[8]}, {64 * u * 896}")
                p(f"buffer_load_dwordx4 v7, {SO}, {sU[7]} offen lds", "wo")
            items.append(c.ins)
        return items

    def consts(self):
        p = self.p
        p(f"s_mov_b32 {sONES}, 0x3f803f80")
        p(f"s_mov_b32 {sLOG2E}, 0x3fb8aa3b")
        p(f"s_mov_b32 {sEPS6}, 0x358637bd")
        p(f"s_mov_b32 {sHI}, 0xffff0000")
        p("s_mov_b32 s52, 0x10000000")
        p("s_mov_b32 s53, 0x10000000")
        p("s_mov_b32 s54, 0")
        p("s_mov_b32 s55, -1")

    def ready(self, base):
        p = self.p
        p(f"s_lshl_b32 {sT2}, {sh}, 4")
        p(f"s_add_u32 {sT2}, {sT2}, s2")
        p(f"s_lshl_b32 {sT2}, {sT2}, 7")
        p(f"s_add_u32 {sT2}, {sT2}, {base}")
        p(f"s_cmp_eq_u32 {sw}, 0")
        p(f"s_cselect_b32 {sT2}, {sT2}, {OOB}")
        p(f"s_add_u32 {sT5}, {sE}, {sfast}")
        p(f"s_add_u32 {sT5}, {sT5}, 1")
        p(f"v_mov_b32 v14, {sT5}")
        if self.opt.get("rfull", 1):
            p(f"v_mov_b32 v15, {sT5}")
            p("s_mov_b64 exec, 0xffff")
            p(f"buffer_store_dwordx2 v[14:15], v11, {SWS}, {sT2} offen sc1")
        else:
            p("s_mov_b64 exec, 1")
            p(f"buffer_store_dword v14, {vL16}, {SWS}, {sT2} offen sc1")
        p("s_mov_b64 exec, -1")

    def pack_b_loads(self):
        p = self.p
        p(f"s_mul_i32 {sT0}, s5, {16 * 3584}")
        p(f"s_lshl_b32 {sT1}, {sh}, 8")
        p(f"s_add_u32 {sT0}, {sT0}, {sT1}")
        p(f"s_lshl_b32 {sT1}, s4, 7")
        p(f"s_add_u32 {sT0}, {sT0}, {sT1}")
        p(f"buffer_load_dwordx4 a[40:43], v8, {S1}, {sT0} offen")
        p(f"buffer_load_dwordx4 a[44:47], v8, {S1}, {sT0} offen offset:64")
        p(f"s_mul_i32 {sU[1]}, {sh}, 112")
        p(f"s_mul_i32 {sT1}, s4, 56")
        p(f"s_add_u32 {sU[1]}, {sU[1]}, {sT1}")
        p(f"s_add_u32 {sU[1]}, {sU[1]}, s5")
        p(f"s_lshl_b32 {sU[1]}, {sU[1]}, 10")
        p(f"s_add_u32 {sU[1]}, {sU[1]}, {WS_P1}")
        p(f"s_cmp_lt_u32 {sh}, 14")
        p(f"s_cselect_b32 s22, {WS_BYTES}, 0")
        p("s_mov_b32 s20, s32\ns_mov_b32 s21, s33")
        self.tr_addrs("v4", "v5")

    def pack_c_loads(self):
        p = self.p
        p(f"s_and_b32 {sU[5]}, {srq}, 1")
        p(f"s_lshl_b32 {sU[5]}, {sU[5]}, 6")
        p(f"s_add_u32 {sU[5]}, {sU[5]}, s3")
        p(f"s_mul_i32 {sU[0]}, {sU[5]}, {16 * 896}")
        p(f"s_lshl_b32 {sU[2]}, {scb}, 7")
        p(f"s_add_u32 {sU[0]}, {sU[0]}, {sU[2]}")
        p(f"s_mul_i32 {sU[2]}, {scb}, 112")
        p(f"s_add_u32 {sU[2]}, {sU[2]}, {sU[5]}")
        p(f"s_lshl_b32 {sU[2]}, {sU[2]}, 11")
        p(f"s_add_u32 {sU[2]}, {sU[2]}, {WS_P2}")
        p(f"s_cmp_lt_u32 {sU[5]}, 112")
        p(f"s_cselect_b32 {sU[0]}, {sU[0]}, {OOB}")
        p(f"s_cselect_b32 {sU[2]}, {sU[2]}, {OOB}")
        p(f"buffer_load_dwordx4 a[48:51], v7, {S2}, {sU[0]} offen")
        p(f"buffer_load_dwordx4 a[52:55], v7, {S2}, {sU[0]} offen offset:64")

    def pack_b_items(self):
        items = [self.transpose_block(lambda lo, k, r=r: A(r + lo, k), "v4", "v5") for r in (40, 44)]
        items.append([Ins(f"buffer_store_dwordx4 a[40:43], {vL16}, {SPK}, {sU[1]} offen sc1", "pb"),
                      Ins(f"s_add_u32 {sU[1]}, {sU[1]}, {28 * KB}")])
        items.append([Ins(f"buffer_store_dwordx4 a[44:47], {vL16}, {SPK}, {sU[1]} offen sc1", "pb")])
        return items

    def pack_c_items(self):
        items = [self.transpose_block(lambda lo, k, r=r: A(r + lo, k), "v4", "v5") for r in (48, 52)]
        items.append([Ins(f"buffer_store_dwordx4 a[48:51], {vL16}, {SPK}, {sU[2]} offen sc1", "pb")])
        items.append([Ins(f"buffer_store_dwordx4 a[52:55], {vL16}, {SPK}, {sU[2]} offen offset:1024 sc1", "pb")])
        return items

    def dma_items(self, vaddr, srd, first, count, tag, stm):
        p = self.p
        items = []
        for u in range(count):
            with self.cap() as c:
                if u == 0:
                    p(f"s_mul_i32 {stm}, {sw}, {count * KB}")
                if u % 4 == 0:
                    p(f"s_add_u32 m0, {stm}, {(first + u) * KB}")
                p(f"buffer_load_dwordx4 {vaddr}, {srd}, m0 offen offset:{(u % 4) * KB} sc1 lds", tag)
            items.append(c.ins)
        return items

    def w1_items(self):
        p = self.p
        items = []
        for s in range(28):
            with self.cap() as c:
                if s == 0:
                    p(f"s_lshl_b32 s24, {sh}, 2")
                    p(f"s_add_u32 s24, s24, {sw}")
                    p(f"s_mul_i32 s24, s24, {28 * KB}")
                    p(f"s_add_u32 s24, s24, {WS_P1}")
                elif s % 4 == 0:
                    p(f"s_add_u32 s24, s24, {4 * KB}")
                p(f"buffer_load_dwordx4 {w1reg(s)}, {vL16}, {SPK}, s24 offen offset:{(s % 4) * KB} sc1", "w1")
            items.append(c.ins)
        return items

    def pack_d_loads(self):
        p = self.p
        p(f"s_mul_i32 {sT2}, s5, {16 * 896}")
        p(f"s_lshl_b32 {sT1}, {sh}, 6")
        p(f"s_add_u32 {sT2}, {sT2}, {sT1}")
        p(f"s_mul_i32 {sT1}, {sh}, 28")
        p(f"s_add_u32 {sT1}, {sT1}, s5")
        p(f"s_lshl_b32 {sT1}, {sT1}, 10")
        p(f"s_add_u32 {sU[9]}, {sT1}, {WS_PO}")
        p("s_cmp_eq_u32 s4, 0")
        p(f"s_cselect_b32 {sT2}, {OOB}, {sT2}")
        p(f"s_cselect_b32 {sU[9]}, {OOB}, {sU[9]}")
        p(f"buffer_load_dwordx4 v[32:35], v7, {SO}, {sT2} offen")
        if self.opt.get("mall", 1):
            p(f"s_lshl_b32 {sT0}, {sh}, 6")
            p(f"s_add_u32 {sT0}, {sT0}, s3")
            p(f"s_lshr_b32 {sT1}, {sT0}, 1")
            p(f"s_mul_i32 {sT1}, {sT1}, 2688")
            p(f"s_and_b32 {sT0}, {sT0}, 1")
            p(f"s_mul_i32 {sT0}, {sT0}, 384")
            p(f"s_add_u32 {sT0}, {sT0}, {sT1}")
            p("s_mov_b64 exec, 0xf")
            p(f"buffer_load_dword v10, v9, {SQ}, {sT0} offen", "touch")
            p("s_mov_b64 exec, -1")

    def pack_d_items(self):
        if self.opt.get("abl"):
            return [[Ins("s_mov_b32 s6, 0xAA54"), Ins(f"s_bitcmp1_b32 s6, {sh}"), Ins(f"s_cselect_b32 {sU[9]}, {OOB}, {sU[9]}"),
                     Ins(f"s_cselect_b32 {sU[1]}, {OOB}, {sU[1]}"), Ins(f"s_cselect_b32 {sU[2]}, {OOB}, {sU[2]}"),
                     Ins(f"buffer_store_dwordx4 v[32:35], {vL16}, {SPK}, {sU[9]} offen sc1", "pb")]]
        return [[Ins(f"buffer_store_dwordx4 v[32:35], {vL16}, {SPK}, {sU[9]} offen sc1", "pb")]]

    def touch_items(self, base, lines, per=16):
        p = self.p
        with self.cap() as c:
            p(f"s_mul_i32 {sU[7]}, {srh}, {per}")
            p(f"s_add_u32 {sU[7]}, {sU[7]}, {sh}")
            p(f"s_lshl_b32 {sU[7]}, {sU[7]}, 2")
            p(f"s_add_u32 {sU[7]}, {sU[7]}, {sw}")
            p(f"s_mul_i32 {sU[7]}, {sU[7]}, {lines * 128}")
            p(f"s_add_u32 {sU[7]}, {sU[7]}, {base}")
            assert lines < 32
            p(f"s_mov_b64 exec, {(1 << lines) - 1}")
            p(f"buffer_load_dword v10, v9, {SG}, {sU[7]} offen", "touch")
            p("s_mov_b64 exec, -1")
        return [c.ins]

    def startup(self):
        p = self.p
        p(f"s_getreg_b32 {sfast}, hwreg(HW_REG_XCC_ID, 0, 4)")
        self.wqkv_setup()
        self.pack_b_loads()
        self.pack_c_loads()
        self.pack_d_loads()
        nk0 = self.opt.get("nk0", 2)
        for u in range(nk0):
            p.add(self.wqkv_item(1, L_WK, "wk"))
        p.wait_vm("x")
        p("s_waitcnt lgkmcnt(0)")
        self.consts()
        self.stamp("x_landed")
        for s in range(28):
            p(f"ds_read_b128 {V(64 + 4 * s)}, v{20 + (s & 3)} offset:{(s >> 2) * 4096}")
        for a in range(4):
            p(f"ds_read_b64 {A(56 + 2 * a, 2)}, v{24 + a}")
        for r in range(52, 56):
            p(f"v_mov_b32 v{r}, 0")
        p.wait_ds()
        p("s_barrier")
        with self.cap() as c:
            for i in range(112):
                p(f"v_dot2c_f32_bf16 v{52 + (i & 1)}, {sONES}, v{64 + i}")
                p(f"v_dot2c_f32_bf16 v{54 + (i & 1)}, v{64 + i}, v{64 + i}")
            p("v_add_f32 v52, v52, v53")
            p("v_add_f32 v54, v54, v55")
            self.both_halves("v52", "v54", None)
            self.stats_finish("v52", "v53", "v56", "v58")
            p("v_rsq_f32 v58, v58")
            p("v_mul_f32_e64 v56, -v56, v58")
            p("v_mov_b32 v59, v58")
            p("v_mov_b32 v57, v56")
            for i in range(0, 112 if not self.opt.get("noln") else 8, 2):
                t = 16 + 4 * ((i >> 1) & 1)
                for k in range(2):
                    p(f"v_lshlrev_b32 v{t + 2 * k}, 16, v{64 + i + k}")
                    p(f"v_and_b32 v{t + 2 * k + 1}, {sHI}, v{64 + i + k}")
                for k in range(2):
                    p(f"v_pk_fma_f32 {V(t + 2 * k, 2)}, {V(t + 2 * k, 2)}, v[58:59], v[56:57]")
                for k in range(2):
                    p(f"v_cvt_pk_bf16_f32 v{64 + i + k}, v{t + 2 * k}, v{t + 2 * k + 1}")
        main = groups(c.ins, 4)
        n = len(main)
        wk = [self.wqkv_item(1, L_WK, "wk") for u in range(nk0, 7)]
        wv = [self.wqkv_item(2, L_WV, "wv") for u in range(7)]
        gk = n * self.opt.get("gk", 60) // 100
        with self.cap() as c1:
            self.kv_clear()
        packs = [c1.ins] + self.pack_d_items() + self.pack_b_items() + self.pack_c_items()
        with self.cap() as c2:
            p(f"s_mul_i32 {sT0}, {sh}, {28 * KB}")
            p(f"s_add_u32 {sT1}, {sT0}, {WS_PO - L_WO}")
            p(f"v_add_u32 v8, {sT1}, {vL16}")
        p.add(spread(main, [(wk + wv, 0, gk), (packs + [c2.ins], gk + 2, n - 2)]))
        self.stamp("ln_done")
        p.wait_vm(["wk", "wv"])
        p("s_barrier")
        self.stamp("wkv_landed")

    def phi(self, acc, out, tmp, scale=None, pk=None):
        p = self.p
        for r0 in range(0, 16, 2):
            rr = (r0, r0 + 1)
            a = {r: f"v{acc + r}" for r in rr}
            t = {r: f"v{tmp + (r & 3)}" for r in rr}
            a2, t2 = V(acc + r0, 2), V(tmp + (r0 & 3), 2)
            if pk is not None:
                k2 = V(pk, 2)
                if scale is None:
                    p(f"v_pk_add_f32 {a2}, {a2}, {k2} op_sel_hi:[1,0]")
                else:
                    sc, hi = scale(r0)
                    p(f"v_pk_fma_f32 {a2}, {a2}, {sc}, {k2} op_sel_hi:[1,{hi},0]")
                p(f"v_pk_mul_f32 {t2}, {a2}, {k2} op_sel:[0,1] op_sel_hi:[1,1]")
            else:
                for r in rr:
                    if scale is None:
                        p(f"v_add_f32 {a[r]}, {sEPS6}, {a[r]}")
                    else:
                        p(f"v_fma_f32 {a[r]}, {a[r]}, {scale(r)}, {sEPS6}")
                for r in rr:
                    p(f"v_mul_f32 {t[r]}, {sLOG2E}, {a[r]}")
            for r in rr:
                p(f"v_exp_f32 {t[r]}, {t[r]} clamp")
            for r in rr:
                p(f"v_max_f32 {a[r]}, {sEPS6}, {a[r]}")
            if pk is not None:
                p(f"v_pk_add_f32 {a2}, {a2}, {t2}")
            else:
                for r in rr:
                    p(f"v_add_f32 {a[r]}, {a[r]}, {t[r]}")
            p(f"v_cvt_pk_bf16_f32 v{out + (r0 >> 1)}, {a[r0]}, {a[r0 + 1]}")

    def v_pack(self):
        p = self.p
        for r in range(8):
            p(f"v_cvt_pk_bf16_f32 v{32 + r}, v{32 + 2 * r}, v{33 + 2 * r}")
        p(f"s_mov_b64 exec, {sM28}")
        for r in range(8):
            p(f"v_mov_b32 v{32 + r}, {sONES}")
        p("s_mov_b64 exec, -1")

    def kv_addrs(self, layer, a0, a1, a2):
        p = self.p
        p(f"s_lshl_b32 {sT0}, {sw}, 10")
        p(f"v_add_u32 {a0}, {sT0}, {vS16}")
        p(f"s_lshl_b32 {sT0}, {sw}, 12")
        p(f"v_add_u32 {a1}, {sT0}, {vS16}")
        p(f"v_lshlrev_b32 {a2}, 3, {vLane}")
        p(f"s_lshl_b32 {sT0}, {sh}, 15")
        p(f"s_lshl_b32 {sT1}, {sw}, 9")
        p(f"s_add_u32 {sT0}, {sT0}, {sT1}")
        p(f"s_add_u32 s6, {sT0}, {WS_KV + layer * KV_L}")
        p(f"s_lshl_b32 {sT1}, {sg}, 1")
        p(f"s_add_u32 {sT1}, {sT1}, {srh}")
        p(f"s_lshl_b32 {sT1}, {sT1}, 11")
        p(f"s_add_u32 s7, {sT1}, s6")

    def kv_publish(self, kvacc, a0, a1, a2):
        p = self.p
        p(f"{MFMA} {kvacc(0, 16)}, {V(16)}, {V(32)}, 0")
        p(f"{MFMA} {kvacc(0, 16)}, {V(20)}, {V(36)}, {kvacc(0, 16)}")
        for q in range(4):
            p(f"ds_write_b128 {a0}, {kvacc(4 * q, 4)} offset:{S_KVP + q * 4096}")
        p.wait_ds()
        p("s_barrier")
        for u in range(4):
            p(f"ds_read_b128 {V(32 + 4 * u)}, {a1} offset:{S_KVP + u * 1024}")
        for r in (0, 2):
            p(f"v_pk_add_f32 {V(32 + r, 2)}, {V(32 + r, 2)}, {V(36 + r, 2)}")
        for r in (0, 2):
            p(f"v_pk_add_f32 {V(40 + r, 2)}, {V(40 + r, 2)}, {V(44 + r, 2)}")
        for r in (0, 2):
            p(f"v_pk_add_f32 {V(32 + r, 2)}, {V(32 + r, 2)}, {V(40 + r, 2)}")
        p("v_cvt_pk_bf16_f32 v28, v32, v33")
        p("v_cvt_pk_bf16_f32 v29, v34, v35")
        p(f"buffer_store_dwordx2 v[28:29], {a2}, {SWS}, s7 offen sc1", "kvpub")

    def o_addrs(self):
        p = self.p
        p(f"s_mul_i32 {sT0}, {sh}, 7")
        p(f"v_lshrrev_b32 v16, 5, {vLane}")
        p(f"v_add_u32 v16, {sT0}, v16")
        p(f"v_and_b32 v17, 31, {vLane}")
        p("v_lshlrev_b32 v17, 4, v17")
        p("v_and_b32 v18, 1, v16")
        p("v_lshl_add_u32 v17, v18, 9, v17")
        p("v_lshrrev_b32 v16, 1, v16")
        for j in range(4):
            p(f"v_add_u32 v18, {j}, v16")
            p("v_and_b32 v19, 1, v18")
            p("v_lshrrev_b32 v18, 1, v18")
            p("v_lshl_add_u32 v18, v18, 10, v17")
            p(f"v_lshl_add_u32 v{56 + j}, v19, 3, v18")
        p(f"s_lshr_b32 {sT0}, {sw}, 1")
        p(f"s_lshl_b32 {sT0}, {sT0}, 10")
        p(f"s_and_b32 {sT1}, {sw}, 1")
        p(f"s_lshl_b32 {sT1}, {sT1}, 3")
        p(f"s_add_u32 {sT0}, {sT0}, {sT1}")
        p(f"v_add_u32 v60, {sT0}, {vS16}")
        p(f"s_lshl_b32 {sT0}, {stb}, 7")
        p(f"s_lshl_b32 {sT1}, {sh}, 2")
        p(f"s_add_u32 {sT0}, {sT0}, {sT1}")
        p(f"s_add_u32 s3, {sT0}, {G_FO}")

    def gather_items(self, G, a2):
        p = self.p
        items = []
        for u in range(0, 16, 2):
            with self.cap() as c:
                p(f"s_add_u32 {sT5}, {sg}, {u // 2}")
                p(f"s_and_b32 {sT5}, {sT5}, 7")
                p(f"s_lshl_b32 {sT5}, {sT5}, 12")
                p(f"s_add_u32 {sT5}, {sT5}, s6")
                p(f"buffer_load_dwordx2 {V(G + 2 * u, 2)}, {a2}, {SWS}, {sT5} offen sc1")
                p(f"buffer_load_dwordx2 {V(G + 2 * u + 2, 2)}, {a2}, {SWS}, {sT5} offen offset:2048 sc1")
            items.append(c.ins)
        return items

    def kv_finish(self, layer, G, a2):
        p = self.p

        def sums():
            for r in range(16, 21):
                p(f"v_mov_b32 v{r}, 0")
            for u in range(16):
                for k in range(2):
                    p(f"v_dot2c_f32_bf16 v{16 + 2 * k}, {sT3}, v{G + 2 * u + k}")
                    p(f"v_dot2c_f32_bf16 v{17 + 2 * k}, {sT4}, v{G + 2 * u + k}")
                p(f"v_max3_u32 v20, v20, v{G + 2 * u}, v{G + 2 * u + 1}")
            p("v_cmp_eq_u32 vcc, -1, v20")
        p(f"s_mov_b32 {sT3}, 0x3f80")
        p(f"s_mov_b32 {sT4}, 0x3f800000")
        lo, lb, lp = p.label("kvspin"), p.label("kvback"), p.label("kvloop")
        if self.diag:
            p(f"s_mov_b32 s{18 + layer}, 0")
        sums()
        p(f"s_cbranch_vccnz {lo}")
        p(f"{lb}:")
        with self.cap() as c:
            p(f"{lo}:")
            p(f"s_mov_b32 {sCnt}, {slim}")
            p(f"{lp}:")
            if self.diag:
                p(f"s_add_u32 s{18 + layer}, s{18 + layer}, 1")
            for it in self.gather_items(G, a2):
                p.add(it)
            p("s_waitcnt vmcnt(0)")
            sums()
            p(f"s_cbranch_vccz {lb}")
            p(f"s_sub_u32 {sCnt}, {sCnt}, 1")
            p(f"s_cmp_lg_u32 {sCnt}, 0")
            p(f"s_cbranch_scc1 {lp}")
            p(f"s_mov_b32 {slim}, 1")
            p(f"s_branch {lb}")
        self.tail.extend(c.ins)
        self.stamp(f"kv_seen{layer}")
        p("v_cvt_pk_bf16_f32 v20, v16, v17")
        p("v_cvt_pk_bf16_f32 v21, v18, v19")
        p(f"ds_write_b64 v60, v[20:21] offset:{S_KVS}")
        p.wait_vm("wo")
        p.wait_ds()
        p("s_barrier")
        p(f"ds_read_b128 {V(24)}, {vS16} offset:{S_KVS}")
        p(f"ds_read_b128 {V(28)}, {vS16} offset:{S_KVS + 1024}")
        p(f"{MFMA} {V(32, 16)}, {V(24)}, {V(48)}, 0")
        p(f"{MFMA} {V(32, 16)}, {V(28)}, {V(52)}, {V(32, 16)}")
        p("v_mov_b32 v16, v44")
        p("v_mov_b32 v17, v44")
        p("v_permlane32_swap_b32 v16, v17")
        p(f"v_add_f32 v16, {sEPS6}, v17")
        p("v_rcp_f32 v16, v16")
        for r in range(0, 16, 2):
            p(f"v_pk_mul_f32 {V(32 + r, 2)}, {V(32 + r, 2)}, v[16:17] op_sel_hi:[1,0]")
        for r in range(8):
            p(f"v_cvt_pk_bf16_f32 v{20 + r}, v{32 + 2 * r}, v{33 + 2 * r}")
        st = [f"buffer_store_dwordx2 {V(20 + 2 * j, 2)}, v{56 + j}, {SG}, {sHB} offen" for j in range(3)]
        st += ["s_mov_b32 exec_hi, 0", f"buffer_store_dwordx2 {V(26, 2)}, v59, {SG}, {sHB} offen",
               "s_mov_b64 exec, -1"]
        self.publish(st)
        self.flag("s3", 1 + layer)
        self.stamp(f"o_pub{layer}")

    def single_pass(self, acc, frag, nfrag, vaddr, off, second, areg, first, last, transposed, zero):
        rd = lambda s: self.trread(frag(s % nfrag, 0), frag(s % nfrag, 2), vaddr, off + s * KB, second)
        head = []
        for s in range(first, first + nfrag - 1):
            head += rd(s)
        main = []
        for s in range(first, last):
            w, a = frag(s % nfrag, None), areg(s)
            c = 0 if (zero and s == first) else acc
            g = [Ins(f"{MFMA} {acc}, {w}, {a}, {c}" if transposed else f"{MFMA} {acc}, {a}, {w}, {c}")]
            if s + nfrag - 1 < last:
                g += rd(s + nfrag - 1)
            main.append(g)
        return head, main

    def qkv0(self):
        p = self.p
        rd = []
        for s in range(28):
            f = (s % 3) * 8
            rd.append((self.trread(A(f, 2), A(f + 2, 2), "v62", L_WK + s * KB, 256),
                       self.trread(A(f + 4, 2), A(f + 6, 2), "v62", L_WV + s * KB, 256)))
        head = rd[0][0] + rd[0][1] + rd[1][0] + rd[1][1]
        main = []
        for s in range(28):
            f = (s % 3) * 8
            for k in range(2):
                acc = V(16 + 16 * k, 16)
                g = [Ins(f"{MFMA} {acc}, {V(64 + 4 * s)}, {A(f + 4 * k)}, {acc if s else 0}")]
                if s + 2 < 28:
                    g += rd[s + 2][k]
                main.append(g)
        with self.cap() as c:
            self.kv_addrs(0, "v60", "v61", "v11")
            p(f"s_cmp_ge_u32 {sh}, 14")
            p(f"s_cselect_b32 {sT2}, {sh}, {scb}")
            p(f"s_cselect_b32 {sT3}, 0, {7 * 2048}")
            p(f"s_lshl_b32 {sT2}, {sT2}, 11")
            p(f"v_and_b32 v56, 15, {vLane}")
            p(f"v_bfe_u32 v57, {vLane}, 4, 1")
            p(f"v_mul_u32_u24 v58, {sT3}, v57")
            p("v_lshl_add_u32 v58, v56, 7, v58")
            p(f"v_add_u32 v58, {sT2}, v58")
            p(f"s_lshl_b32 {sT2}, {sg}, 8")
            p("v_lshlrev_b32 v56, 11, v56")
            p("v_lshl_add_u32 v56, v57, 7, v56")
            p(f"v_add_u32 v56, {sT2}, v56")
            p(f"v_cndmask_b32 v58, v58, v56, {sMPAD}")
            p(f"s_mov_b32 {sU[3]}, {WS_RB}")
        setup = groups(c.ins[:13]) + [c.ins[13:16]] + groups(c.ins[16:])
        with self.cap() as c1:
            self.poll_load("v58", SWS, sU[3], 1, 59)
        with self.cap() as c2:
            p.wait_vm("pb")
            p("s_barrier")
            self.ready(WS_RB)
        gr = self.opt.get("gr", 4)
        self.touch = {0: [], 1: [], 2: [], 3: [], 4: []}
        self.touch[self.opt.get("to", 2)] += self.touch_items(G_O, 14)
        if self.opt.get("x0sc1", 1):
            self.touch[self.opt.get("tx", 2)] += self.touch_items(G_ST, 4)
        else:
            self.touch[self.opt.get("tx", 2)] += self.touch_items(G_X, 18)
        wq = [self.wqkv_item(0, L_WQ, "wq") for u in range(7)]
        if self.opt.get("ksplit", 0):
            afrag = lambda i, lo: A(4 * i) if lo is None else A(4 * i + lo, 2)
            bfrag = lambda i, lo: A(16 + 4 * (i % 2)) if lo is None else A(16 + 4 * (i % 2) + lo, 2)
            areg = lambda s: V(64 + 4 * s)
            h1, m1 = self.single_pass(V(16, 16), afrag, 4, "v62", L_WK, 256, areg, 0, 28, False, True)
            h2, m2 = self.single_pass(V(32, 16), afrag, 4, "v62", L_WV, 256, areg, 0, 28, False, True)
            for k in range(3):
                m1[25 + k] = m1[25 + k] + h2[2 * k:2 * k + 2]
            with self.cap() as cp:
                self.phi(16, 16, 48)
            p.add(h1)
            p.add(spread2(m1 + m2, [([c2.ins], gr, gr), (wq + self.touch[1], gr + 1, 50), (setup, gr + 2, 27),
                                    ([c1.ins], 54, 54)], [(groups(cp.ins), 31, 55)]))
            self.stamp("kv_gemm0")
        else:
            p.add(head)
            p.add(spread(main, [([c2.ins], gr, gr), (wq + self.touch[1], gr + 1, 50), (setup, gr + 2, 50)]))
            self.stamp("kv_gemm0")
            p.add(c1.ins)
            p(f"v_mov_b32 v52, {sEPS6}")
            p(f"v_mov_b32 v53, {sLOG2E}")
            self.phi(16, 16, 48, pk=52)
        self.v_pack()
        if not self.opt.get("wqbar", 1):
            p.wait_vm("wq")
        self.kv_publish(lambda lo, k: A(24 + lo, k), "v60", "v61", "v11")
        self.stamp("kv_pub0")
        p("v_mov_b32 v13, v63")
        self.rot_offsets()
        if self.opt.get("wqbar", 1):
            p.wait_vm("wq")
            p("s_barrier")
        self.apoll_end("v58", SWS, sU[3], 1, 1, 59, 15)
        p(f"v_cmp_ne_u32 vcc, {sfast}, v59")
        p("s_cmp_eq_u32 vcc_hi, 0")
        self.stamp_flush()
        p("s_cbranch_scc1 L_slow" if self.force_slow else "s_cbranch_scc0 L_slow")

    def take(self, n):
        out, self.bulk = self.bulk[:n], self.bulk[n:]
        return out

    def q0(self):
        p = self.p
        afrag = lambda i, lo: A(4 * i) if lo is None else A(4 * i + lo, 2)
        head, main = self.single_pass(V(48, 16), afrag, 4, "v13", 0, 256, lambda s: V(64 + 4 * s), 0, 28, True, True)
        with self.cap() as c:
            p(f"v_mov_b32 v32, {sEPS6}")
            p(f"v_mov_b32 v33, {sLOG2E}")
            self.phi(48, 48, 36, pk=32)
            p(f"v_cndmask_b32 v54, v54, 0, {sMPAD}")
            p(f"v_cndmask_b32 v55, v55, 0, {sMPAD}")
            self.o_addrs()
        tail = groups(c.ins, 6)
        gg = self.opt.get("gg", 34)
        self.bulk = self.dma_items("v8", SPK, 84, 7, "wo", sU[5]) + self.w1_items() + self.w2_items()
        p.add(head)
        p.add(spread(main + tail, [(self.touch[2] + self.take(self.opt.get("bq", 13)), 0, gg - 1),
                                   (self.gather_items(64, "v11"), gg, gg + 8)]))
        for it in self.touch[3] + self.take(self.opt.get("b1", 8)):
            p.add(it)
        self.stamp("q_done0")

    def make_selector(self):
        p = self.p
        p("v_mov_b32 v15, 0")
        p("s_mov_b32 exec_lo, 0x00100001")
        p("s_mov_b32 exec_hi, 0x00100001")
        p(f"v_mov_b32 v15, {sONES}")
        p("s_mov_b64 exec, -1")
        for r in range(4):
            p(f"v_accvgpr_write_b32 a{32 + r}, v15")

    def colsum_qkv(self):
        p = self.p
        p(f"s_min_u32 {sU[0]}, {sw}, 2")
        p(f"s_mul_i32 {sU[0]}, {sU[0]}, {28 * KB}")
        p(f"v_add_u32 v60, {sU[0]}, {vTrA}")
        rd = lambda s: self.trread(V(32 + 4 * (s % 4), 2), V(34 + 4 * (s % 4), 2), "v60", s * KB)
        p.add(rd(0) + rd(1) + rd(2))
        self.make_selector()
        for s in range(28):
            p(f"{MFMA16} {A(36)}, {A(32)}, {V(32 + 4 * (s % 4))}, {A(36) if s else 0}")
            if s + 3 < 28:
                p.add(rd(s + 3))
        p(f"s_lshl_b32 {sU[0]}, {sw}, 9")
        p(f"v_lshlrev_b32 v60, 3, {vLane}")
        p(f"v_add_u32 v60, {L_S + S_STAT}, v60")
        p(f"v_add_u32 v61, {sU[0]}, v60")
        p("v_accvgpr_read_b32 v40, a36")
        self.split_words("v40", "v42", "v43", "v41", False, False)
        p("ds_write_b64 v61, v[42:43]")

    def colsum_qkv_fetch(self):
        p = self.p
        p(f"v_lshlrev_b32 v13, 3, {vLane}")
        p(f"v_add_u32 v13, {L_S + S_STAT}, v13")
        p(f"ds_read_b64 {V(vCSQ + 2, 2)}, v13")
        p(f"ds_read_b64 {V(vCSQ + 4, 2)}, v13 offset:512")
        p(f"ds_read_b64 {V(vCSQ, 2)}, v13 offset:1024")

    def colsum_w1_items(self):
        p = self.p
        items = [[Ins(f"{MFMA16} {A(36)}, {A(32)}, {w1reg(s)}, {A(36) if s else 0}")] for s in range(28)]
        with self.cap() as c:
            p("v_accvgpr_read_b32 v62, a36")
            self.split_words("v62", f"v{vCS1}", f"v{vCS1 + 1}", "v63", False, False)
        items.append(c.ins)
        return items

    def qkv1(self):
        p = self.p
        p(f"v_min_u32 v13, 27, {vLane}")
        p("v_lshlrev_b32 v13, 2, v13")
        p(f"s_lshl_b32 {sT0}, {stb}, 7")
        p(f"s_add_u32 {sT0}, {sT0}, {G_FX}")
        WF = [152, 156, 160, 164, 168, 172]

        def wf(s, k):
            r = WF[3 * (s % 2) + k]
            if k == 2:
                return self.trread(V(r, 2), V(r + 2, 2), vTrB, s * KB)
            return self.trread(V(r, 2), V(r + 2, 2), vTrA, (L_WK, L_WV)[k] + s * KB)
        p.add(wf(0, 0) + wf(0, 1) + wf(0, 2))
        self.poll("v13", SG, sT0, 2)
        self.stamp("x2_seen")
        RING, NR = 96, 14

        def ld(s):
            q = sub()
            if s % 4 == 0:
                q(f"s_add_u32 s4, {sXB}, {s * KB}")
            q(f"buffer_load_dwordx4 {V(RING + 4 * (s % NR))}, {vL16}, {SG}, s4 offen offset:{(s % 4) * KB} sc1")
            return q.ins
        LEAD = self.opt.get("lead", 6)
        for s in range(LEAD):
            p.add(ld(s))
        stl = [[Ins(f"buffer_load_dwordx4 {V(64 + 4 * u)}, {vL16}, {SG}, {sSTB} offen offset:{u * KB} sc1")]
               for u in range(2)]
        with self.cap() as st:
            for i in range(2, 7):
                p(f"v_add_f32 v{64 + (i & 1)}, v{64 + (i & 1)}, v{64 + i}")
            p("v_add_f32 v64, v64, v65")
            self.stats_finish("v64", "v65", "v66", "v67")
            p("v_rsq_f32 v88, v67")
            self.split_words("v66", "v92", "v93", "v65", True, True)
            p("v_mov_b32 v94, 0")
            p("v_mov_b32 v95, 0")
            p("v_cvt_pk_bf16_f32 v80, v88, v88")
            p(f"v_and_b32 v64, {sHI}, v80")
            p("v_sub_f32 v64, v88, v64")
            p("v_cvt_pk_bf16_f32 v81, v64, v64")
            p(f"v_and_b32 v65, {sHI}, v81")
            p("v_sub_f32 v65, v64, v65")
            p("v_and_b32 v80, 0xffff, v80")
            p(f"v_and_or_b32 v80, v81, {sHI}, v80")
            p("v_cvt_pk_bf16_f32 v81, v65, 0")
            p("v_mov_b32 v82, 0")
            p("v_mov_b32 v83, 0")
            p(f"v_mov_b32 v84, {sONES}")
            p(f"v_cndmask_b32 v84, v84, 0, {sMPAD}")
            p("v_mov_b32 v85, v84")
            p("v_mov_b32 v86, 0")
            p("v_mov_b32 v87, 0")
            p(f"{MFMA} {V(64, 16)}, {V(80)}, {V(84)}, 0")
            self.kv_addrs(1, "v89", "v90", "v91")
            for m, dst in ((1, 80), (2, 84)):
                p(f"v_mov_b32 v{dst}, v{vCSQ + 2 * m}")
                p(f"v_mov_b32 v{dst + 1}, v{vCSQ + 2 * m + 1}")
        main = []
        for s in range(28):
            o = 3 * (s % 2)
            a = V(RING + 4 * (s % NR))
            nk = 3 if s < NR else 2
            nk2 = 3 if s + 1 < NR else 2
            for k in range(nk):
                acc = V(16 + 16 * k, 16)
                c = acc if s else 0
                g = [Ins(f"{MFMA} {acc}, {a}, {V(WF[o + k])}, {c}" if k < 2 else f"{MFMA} {acc}, {V(WF[o + k])}, {a}, {c}")]
                if s + 1 < 28 and k < nk2:
                    g += wf(s + 1, k)
                main.append(g)
        seq = [ld(s) for s in range(LEAD, 14)] + stl + [ld(s) for s in range(14, 28)]
        slots = []
        gpos = 0
        for i, it in enumerate(seq):
            s = i + LEAD - 2
            if s >= 14:
                gpos = max(gpos, 3 * (s - 14) + 2)
            slots.append(([it], gpos, gpos))
            gpos += 2
        p.add(spread(main, slots + [(groups(st.ins), 30, len(main) - 2)]))
        p(f"{MFMA} {V(16, 16)}, {V(92)}, {V(80)}, {V(16, 16)}")
        p(f"{MFMA} {V(32, 16)}, {V(92)}, {V(84)}, {V(32, 16)}")
        self.stamp("kv_gemm1")
        vfrag = lambda i, lo: V(152 + 4 * i) if lo is None else V(152 + 4 * i + lo, 2)
        head, main = self.single_pass(V(48, 16), vfrag, 4, vTrB, 0, 512, lambda s: V(RING + 4 * (s % NR)),
                                      NR, 28, True, False)
        p.add(head)
        p(f"v_mov_b32 v172, {sEPS6}")
        p(f"v_mov_b32 v173, {sLOG2E}")
        p(f"v_mov_b32 v80, v{vCSQ}")
        p(f"v_mov_b32 v81, v{vCSQ + 1}")
        self.phi(16, 16, 168, lambda r: (V(64 + r, 2), 1), pk=172)
        for r in range(0, 16, 2):
            p(f"v_pk_mul_f32 {V(32 + r, 2)}, {V(32 + r, 2)}, {V(64 + r, 2)}")
        self.v_pack()
        self.kv_publish(lambda lo, k: V(64 + lo, k), "v89", "v90", "v91")
        self.stamp("kv_pub1")
        main.append([Ins(f"{MFMA} {V(48, 16)}, {V(80)}, {V(92)}, {V(48, 16)}")])
        with self.cap() as c:
            self.phi(48, 48, 168, lambda r: (V(88, 2), 0), pk=172)
            p(f"v_cndmask_b32 v54, v54, 0, {sMPAD}")
            p(f"v_cndmask_b32 v55, v55, 0, {sMPAD}")
            self.o_addrs()
        tail = groups(c.ins, 6)
        if not self.opt.get("probe", 0):
            gg = self.opt.get("gg1", 31)
            p.add(spread(main + tail, [(self.gather_items(96, "v91"), gg, gg + 8)]))
            self.stamp("q_done1")
            return
        with self.cap() as c1:
            p(f"v_min_u32 v174, 15, {vLane}")
            p("v_lshlrev_b32 v174, 11, v174")
            p(f"buffer_load_dword v175, v174, {SWS}, s6 offen offset:508 sc1")
        pg, nt = self.opt.get("pg", 10), self.opt.get("pt", 8)
        p.add(spread(main + tail[:nt], [([c1.ins], pg, pg)]))
        lo, lb, lp, ld = p.label("early"), p.label("gathering"), p.label("probe"), p.label("probed")
        p("v_cmp_eq_u32 vcc, -1, v175")
        p(f"s_cbranch_vccnz {lo}")
        p.add(spread(tail[nt:], [(self.gather_items(96, "v91"), 0, 8)]))
        p(f"{lb}:")
        with self.cap() as c:
            p(f"{lo}:")
            p("s_nop 7")
            for it in tail[nt:]:
                p.add(it)
            p(f"s_mov_b32 {sCnt}, {slim}")
            p(f"{lp}:")
            p(f"buffer_load_dword v175, v174, {SWS}, s6 offen offset:508 sc1")
            p("s_waitcnt vmcnt(0)")
            p("v_cmp_eq_u32 vcc, -1, v175")
            p(f"s_cbranch_vccz {ld}")
            p(f"s_sub_u32 {sCnt}, {sCnt}, 1")
            p(f"s_cmp_lg_u32 {sCnt}, 0")
            p(f"s_cbranch_scc1 {lp}")
            p(f"s_mov_b32 {slim}, 1")
            p(f"{ld}:")
            for it in self.gather_items(96, "v91"):
                p.add(it)
            p(f"s_branch {lb}")
        self.tail.extend(c.ins)
        self.stamp("q_done1")

    def wo_phase(self, layer, pre=None, streams=()):
        p = self.p
        RES = 104
        p(f"s_lshl_b32 s5, {sh}, 11")
        p(f"s_add_u32 s5, s5, {sXB}")
        if layer == 1:
            p(f"buffer_load_dwordx4 {V(RES)}, {vL16}, {SG}, s5 offen sc1")
            p(f"buffer_load_dwordx4 {V(RES + 4)}, {vL16}, {SG}, s5 offen offset:1024 sc1")
        else:
            for r in range(8):
                p(f"v_accvgpr_read_b32 v{RES + r}, a{56 + r}")
        p(f"s_lshr_b32 {sT1}, {sh}, 2")
        p(f"s_lshl_b32 {sT1}, {sT1}, 10")
        p(f"s_and_b32 {sT2}, {sh}, 3")
        p(f"s_lshl_b32 {sT2}, {sT2}, 2")
        p(f"s_add_u32 {sT1}, {sT1}, {sT2}")
        p(f"s_add_u32 s6, {sT1}, {sSTB}")
        p(f"s_lshl_b32 {sT0}, {stb}, 7")
        p(f"s_lshl_b32 {sT1}, {sh}, 3")
        p(f"s_add_u32 {sT1}, {sT0}, {sT1}")
        p(f"s_add_u32 s7, {sT1}, {G_FX}")
        p(f"s_add_u32 {sT0}, {sT0}, {G_FO}")
        p(f"v_and_b32 v13, 15, {vLane}")
        p("v_lshlrev_b32 v13, 2, v13")
        rd = [self.trread(V(48 + (s % 3) * 4, 2), V(50 + (s % 3) * 4, 2), vTrB, (L_WO - L_WQ) + s * KB)
              for s in range(28)]
        p.add(rd[0] + rd[1])
        if pre:
            pre()
        self.poll("v13", SG, sT0, 1 + layer)
        self.stamp(f"o_seen{layer}")
        RING = 64
        LEAD = self.opt.get("leadwo", 8)

        def ld(s):
            q = sub()
            if s % 4 == 0:
                q(f"s_add_u32 s4, {sHB}, {s * KB}")
            q(f"buffer_load_dwordx4 {V(RING + 4 * s)}, {vL16}, {SG}, s4 offen offset:{(s % 4) * KB} sc1")
            return q.ins
        for s in range(LEAD):
            p.add(ld(s))
            p(f"v_lshlrev_b32 v{16 + 2 * s}, 16, v{RES + s}" if s < 8 else "; -")
            p(f"v_and_b32 v{17 + 2 * s}, {sHI}, v{RES + s}" if s < 8 else "; -")
        assert LEAD >= 8
        main = []
        for s in range(28):
            g = [Ins(f"{MFMA} {V(16, 16)}, {V(48 + (s % 3) * 4)}, {V(RING + 4 * s)}, {V(16, 16)}")]
            if s + LEAD < 28:
                g += ld(s + LEAD)
            if s + 2 < 28:
                g += rd[s + 2]
            main.append(g)
        streams = list(streams)
        if self.opt.get("wsu", 1):
            with self.cap() as c:
                self.ffn_setup(layer)
            streams.append((groups(c.ins), 13, 26))
        p.add(spread(main, streams))
        self.stamp(f"wo_gemm{layer}")
        for r in range(8):
            p(f"v_cvt_pk_bf16_f32 v{32 + r}, v{16 + 2 * r}, v{17 + 2 * r}")
        self.publish([f"buffer_store_dwordx4 {V(32)}, {vL16}, {SG}, s5 offen",
                      f"buffer_store_dwordx4 {V(36)}, {vL16}, {SG}, s5 offen offset:1024"],
                     always_sc1=(layer == 0 and self.opt.get("x0sc1", 1)))
        p("v_pk_mul_f32 v[42:43], v[16:17], v[16:17]")
        for r in range(2, 16, 2):
            p(f"v_pk_fma_f32 v[42:43], {V(16 + r, 2)}, {V(16 + r, 2)}, v[42:43]")
            p(f"v_pk_add_f32 v[16:17], v[16:17], {V(16 + r, 2)}")
        p("v_add_f32 v40, v16, v17")
        p("v_add_f32 v42, v42, v43")
        self.both_halves("v40", "v42", None)
        self.publish([f"buffer_store_dword v40, {vL16}, {SG}, s6 offen"])
        self.flag("s7", 1 + 2 * layer, 2)
        self.stamp(f"x1_pub{layer}")

    def rot_offsets(self):
        p = self.p
        for i in range(7):
            if self.opt.get("rot", 0):
                p(f"s_add_u32 s{8 + i}, {scb}, {i}")
                p(f"s_cmp_ge_u32 s{8 + i}, 7")
                p(f"s_cselect_b32 s15, 7, 0")
                p(f"s_sub_u32 s{8 + i}, s{8 + i}, s15")
                p(f"s_lshl_b32 s{8 + i}, s{8 + i}, 14")
            else:
                p(f"s_mov_b32 s{8 + i}, {i * 16 * KB}")

    def w2_items(self):
        p = self.p
        items = []
        order = list(range(8, 28)) + list(range(8))
        for i, j in enumerate(order):
            for ch in range(2):
                with self.cap() as c:
                    if i == 0 and ch == 0:
                        p(f"s_mul_i32 s25, {scb}, {224 * KB}")
                        p(f"s_lshl_b32 s26, {sw}, 12")
                        p(f"s_add_u32 s25, s25, s26")
                        p(f"s_add_u32 s25, s25, {WS_P2}")
                        p(f"s_and_b32 s26, {srq}, 1")
                        p(f"s_lshl_b32 s26, s26, 14")
                        p(f"s_sub_u32 s27, s25, s26")
                        p(f"s_add_u32 s27, s27, {16 * KB}")
                        p(f"s_add_u32 s25, s25, s26")
                    if j % 2 == 0 and ch == 0:
                        i2 = j >> 1
                        p(f"s_lshl_b32 s26, s{8 + i2 % 7}, 1")
                        p(f"s_add_u32 s26, s26, {'s25' if i2 < 7 else 's27'}")
                    p(f"buffer_load_dwordx4 {w2reg(j, ch)}, {vL16}, {SPK}, s26 offen offset:{(j & 1) * 2048 + ch * 1024} sc1",
                      "w2")
                items.append(c.ins)
        return items

    def ffn_setup(self, layer):
        p = self.p
        p(f"v_and_b32 v13, 15, {vLane}")
        p("v_min_u32 v13, 13, v13")
        p("v_lshlrev_b32 v13, 3, v13")
        p(f"v_lshrrev_b32 v14, 4, {vLane}")
        p("v_lshl_add_u32 v107, v14, 7, v13")
        p(f"s_mul_i32 {sT0}, {srh}, {112 * KB}")
        big = layer == 1 and self.opt.get("big", 1)
        LB = 0 if big else L_S
        p(f"s_add_u32 {sT0}, {sT0}, {G_X - LB}")
        p(f"s_and_b32 s0, {sh}, 1")
        p(f"s_mul_i32 s16, s0, {28 * KB}")
        p(f"s_add_u32 {sT0}, {sT0}, s16")
        p(f"s_lshl_b32 s16, s16, 1")
        p(f"v_add_u32 v110, {sT0}, {vL16}")
        p(f"s_lshl_b32 s15, {sw}, 10")
        p(f"s_add_u32 s15, s15, {LB}")
        p(f"s_lshl_b32 {sT0}, {sh}, 13")
        p(f"s_lshl_b32 {sT1}, {sw}, 11")
        p(f"s_add_u32 s3, {sT0}, {sT1}")
        p(f"s_mul_i32 {sT0}, {srh}, {4 * 112 * KB}")
        p(f"s_add_u32 s3, s3, {sT0}")
        p(f"s_lshl_b32 {sT0}, {srh}, 10")
        p(f"s_lshl_b32 {sT1}, {sw}, 6")
        p(f"s_add_u32 {sT0}, {sT0}, {sT1}")
        p(f"s_lshl_b32 {sT1}, {sh}, 2")
        p(f"s_add_u32 {sT0}, {sT0}, {sT1}")
        p(f"s_add_u32 s2, {sT0}, {G_FH}")
        p(f"s_mul_i32 {sT0}, s0, {2 * 112 * KB}")
        p(f"s_sub_u32 s17, s3, {sT0}")
        p(f"s_add_u32 s3, s3, {sT0}")
        p(f"s_lshl_b32 {sT0}, s0, 9")
        p(f"s_sub_u32 s1, s2, {sT0}")
        p(f"s_add_u32 s2, s2, {sT0}")
        p(f"v_mov_b32 v84, v{vCS1}")
        p(f"v_mov_b32 v85, v{vCS1 + 1}")
        for r in (86, 87, 90, 91):
            p(f"v_mov_b32 v{r}, 0")
        p(f"v_and_b32 v108, 31, {vLane}")
        p("v_lshlrev_b32 v108, 4, v108")
        p(f"v_add_u32 v108, {L_S + S_STAT}, v108")
        p(f"s_and_b32 {sT0}, {sxs}, 3")
        p(f"s_lshl_b32 {sT0}, {sT0}, 9")
        p(f"s_lshl_b32 {sT1}, s0, 9")
        p(f"s_xor_b32 {sT0}, {sT0}, {sT1}")
        p(f"v_add_u32 v109, {sT0}, v108")
        self.ffn2_setup(layer)

    def ffn(self, layer, pre=None, extra=None):
        p = self.p
        big = layer == 1 and self.opt.get("big", 1)
        if not self.opt.get("wsu", 1):
            self.ffn_setup(layer)
        if big:
            p(f"v_add_u32 {vTrB}, {56 * KB}, {vL16}")
        p.wait_ds()
        p("s_barrier")
        if pre:
            pre()
        p(f"s_lshl_b32 {sT0}, {srh}, 9")
        p(f"s_add_u32 {sT0}, {sT0}, {G_FX}")
        self.poll("v107", SG, sT0, 1 + 2 * layer, 2)
        self.stamp(f"x1_seen{layer}")

        Q, P = (28, 2) if big else (10, 2)

        def quad(k):
            q = sub()
            if k % Q == 0:
                q("s_mov_b32 m0, s15")
                if k:
                    q(f"v_add_u32 v110, {Q * 4 * KB}, v110")
            else:
                q(f"s_add_u32 m0, m0, {4 * KB}")
            if k in (7, 21):
                q("v_subrev_u32 v110, s16, v110")
            if k == 14:
                q("v_add_u32 v110, s16, v110")
            q(f"buffer_load_dwordx4 v110, {SG}, m0 offen sc1 lds", f"c{k // P}")
            return q.ins
        for k in range(4):
            p.add(quad(k))
        stl = [[Ins(f"buffer_load_dwordx4 {V(112 + 4 * u)}, {vL16}, {SG}, {sSTB} offen offset:{u * KB} sc1")]
               for u in range(4)]
        with self.cap() as st:
            for i in range(2, 14):
                p(f"v_add_f32 v{112 + (i & 1)}, v{112 + (i & 1)}, v{112 + i}")
            p("v_add_f32 v112, v112, v113")
            self.stats_finish("v112", "v113", "v114", "v115")
            self.split_words("v114", "v116", "v117", "v113", True, True)
            p("v_rsq_f32 v118, v115")
            p("v_sqrt_f32 v119, v115")
            p(f"v_mul_f32_e64 v118, -v118, {sLOG2E}")
            p("ds_write_b128 v109, v[116:119]", "stw")
        XF, NX, D = 48, 5, 4
        def rdx(n):
            base, off = (vS16, n % (4 * Q)) if not big else ((vL16, n) if n < 56 else (vTrB, n - 56))
            return Ins(f"ds_read_b128 {V(XF + 4 * (n % NX))}, {base} offset:{off * KB}", f"x{n}")
        BIGB = {1: 1, 2: 2, 3: 4, 5: 7, 8: 10, 11: 13}

        def boundary(j):
            q = sub()
            if big and j:
                if j not in BIGB:
                    return []
                q.wait_vm(f"c{BIGB[j]}")
            else:
                q.wait_vm(f"c{j}")
            if j == 3:
                q.wait_ds("stw")
            q("s_barrier")
            return q.ins
        p.add(quad(4))
        p.add(quad(5))
        p.add(boundary(0))
        p.add([rdx(n) for n in range(D)])
        main = []
        pos = {}
        for n in range(112):
            o, s = divmod(n, 28)
            acc = V(16 + 16 * (o & 1), 16)
            g = []
            if n % 2 == 0:
                g.append(Pseudo("wait_ds", f"x{n + 1}"))
            g.append(Ins(f"{MFMA} {acc}, {w1reg(s)}, {V(XF + 4 * (n % NX))}, {acc if s else 0}"))
            m = n + D
            if m < 112:
                if m % 8 == 0:
                    g += boundary(m // 8)
                qd = quad(m // 4 + 6) if (m % 4 == 1 and m >= 8 and m // 4 + 6 < 28) else []
                if big:
                    kq = 8 + (n - 9) // 2
                    qd = quad(kq) if (n >= 9 and n % 2 == 1 and kq < 28) else []
                g += qd[:-1] + [rdx(m)] + qd[-1:]
                if m == 24:
                    g += [Ins(f"ds_read_b128 {V(68 + 4 * k)}, v108 offset:{k * 512}") for k in range(4)]
            if s == 24:
                g += [Ins(f"v_mov_b32 v88, v{68 + 4 * o}"), Ins(f"v_mov_b32 v89, v{69 + 4 * o}")]
            pos[n] = len(main)
            main.append(g)
            if s == 27:
                main.append([Ins(f"{MFMA} {acc}, {V(84)}, {V(88)}, {acc}")])

        hsc1 = self.opt.get("h0sc1", 1) if layer == 0 else self.opt.get("h1sc1", 1)

        def epilogue(o):
            tb = ((o & 1) << 1) | (o >> 1)
            acc = 16 + 16 * (o & 1)
            c1, sd = f"v{70 + 4 * o}", f"v{71 + 4 * o}"
            pk = o == 3 and hsc1 and self.opt.get("pk3", 1)
            with self.cap() as c:
                for r0 in range(0, 16, 4) if pk else ():
                    cs = V(70 + 4 * o, 2)
                    for k in (0, 2):
                        p(f"v_pk_mul_f32 {V(92 + k, 2)}, {V(acc + r0 + k, 2)}, {cs} op_sel_hi:[1,0]")
                    for k in range(4):
                        p(f"v_exp_f32 v{92 + k}, v{92 + k}")
                    for k in (0, 2):
                        p(f"v_pk_fma_f32 {V(92 + k, 2)}, {V(92 + k, 2)}, {cs}, {cs} op_sel:[0,1,1] op_sel_hi:[1,1,1]")
                    for k in range(4):
                        p(f"v_rcp_f32 v{92 + k}, v{92 + k}")
                    for k in (0, 2):
                        p(f"v_pk_mul_f32 {V(acc + r0 + k, 2)}, {V(acc + r0 + k, 2)}, {V(92 + k, 2)}")
                    for k in (0, 2):
                        p(f"v_cvt_pk_bf16_f32 v{96 + ((r0 + k) >> 1)}, v{acc + r0 + k}, v{acc + r0 + k + 1}")
                for r0 in range(0, 16, 2) if not pk else ():
                    rr = (r0, r0 + 1)
                    t = {r: f"v{92 + (r & 3)}" for r in rr}
                    a = {r: f"v{acc + r}" for r in rr}
                    for r in rr:
                        p(f"v_mul_f32 {t[r]}, {a[r]}, {c1}")
                    for r in rr:
                        p(f"v_exp_f32 {t[r]}, {t[r]}")
                    for r in rr:
                        p(f"v_fma_f32 {t[r]}, {t[r]}, {sd}, {sd}")
                    for r in rr:
                        p(f"v_rcp_f32 {t[r]}, {t[r]}")
                    for r in rr:
                        p(f"v_mul_f32 {a[r]}, {a[r]}, {t[r]}")
                    p(f"v_cvt_pk_bf16_f32 v{96 + (r0 >> 1)}, {a[r0]}, {a[r0 + 1]}")
            items = groups(c.ins)
            with self.cap() as c:
                p(f"s_add_u32 {sT0}, {'s17' if o & 1 else 's3'}, {tb * 112 * KB}")
                nt = {0: "", 1: " nt", 2: " sc0", 3: " sc0 nt"}[self.opt.get("hnt", 0)] if self.fast else ""
                self.publish([f"buffer_store_dwordx4 {V(96)}, {vL16}, {SG}, {sT0} offen{nt}",
                              f"buffer_store_dwordx4 {V(100)}, {vL16}, {SG}, {sT0} offen offset:1024{nt}"], f"h{o}",
                             always_sc1=hsc1)
            items.append(c.ins)
            with self.cap() as c:
                p(f"s_add_u32 {sT1}, {'s1' if o & 1 else 's2'}, {tb * 256}")
                self.flag(sT1, 1 + layer, wait=f"h{o}", st=sT2)
            return items, c.ins
        streams = [([quad(6), quad(7)], 0, 3), (stl[:2], 1, 4), (stl[2:], 6, 8)]
        eps = [epilogue(o) for o in range(4)]
        E = self.opt.get("epend", 27)
        F = self.opt.get("fsc1", 18) if hsc1 else self.opt.get("fpl", 6)
        Es = [E, self.opt.get("e1", E), E]
        Fs = [F, F - (E - Es[1])]
        flex = [(eps[o][0], pos[28 * (o + 1)] + 2, pos[28 * (o + 1) + Es[o]]) for o in range(3)]
        flex.append((groups(st.ins), self.opt.get("gs", 11), 19))
        if not big and hsc1 and self.opt.get("stq", 0):
            for o in range(2):
                n1 = 28 * (o + 1) + E
                while n1 % 8 != 1:
                    n1 -= 1
                flex[o] = (eps[o][0][:-1], pos[28 * (o + 1)] + 2, pos[n1] - 1)
                streams.append(([eps[o][0][-1]], pos[n1], pos[n1]))
        if not self.opt.get("flex", 1):
            streams += flex
            flex = []
        for o in range(2):
            g = pos[28 * (o + 2) + Fs[o]]
            streams.append(([eps[o][1]], g, g))
        self.hl = self.h_loads()
        pa, pb = self.h_poll(0, layer), self.h_poll(1, layer)
        LAG = self.opt.get("lag", 7)
        if self.opt.get("ord", 0):
            for o, pl in ((1, pa), (2, pb)):
                items, a, b = flex[o]
                flex[o] = (items[:-1], a, b - 1)
                streams.append(([pl[0], items[-1]], b, b))
            GA = pos[56 + Es[1]]
            self.pb = [[], pb[1]]
        else:
            GA = pos[56 + F + self.opt.get("fda", 9)]
            streams.insert(0, ([pa[0]], GA, GA))
            self.pb = pb
        streams.append(([pa[1]], GA + LAG, GA + LAG))
        first = max(GA + LAG + 1, pos[84 + self.opt.get("h0", 0)])
        n0 = min(14, (pos[111] - first) // 2 + 1)
        streams.append((self.hl[:n0], first, pos[111] - 1))
        self.n0 = n0
        if extra:
            streams += extra(pos)
        if self.opt.get("fine3") and layer == 1:
            woven = spread2(main, streams, flex)
            k = 0
            for x in woven:
                p.add([x])
                if x.kind == "mfma":
                    k += 1
                    if k >= 58 and (k - 58) % 7 == 0:
                        self.stamp(f"n{k}")
        elif self.opt.get("fine"):
            self.stamp(f"f1_first{layer}")
            woven = spread2(main, streams, flex)
            k = 0
            for x in woven:
                p.add([x])
                if x.kind == "mfma":
                    k += 1
                    if k % 29 == 0 and k < 116:
                        self.stamp(f"f1_o{k // 29 - 1}_{layer}")
        else:
            p.add(spread2(main, streams, flex))
        self.stamp(f"ffn1_mfma{layer}")
        self.ffn2(layer, eps[3][0], eps[2][1], eps[3][1], F)

    def ffn2_setup(self, layer):
        p = self.p
        p(f"s_mul_i32 {sU[3]}, {srq}, {2 * 112 * KB}")
        p(f"s_lshl_b32 {sT3}, {sw}, 11")
        p(f"s_add_u32 {sU[3]}, {sU[3]}, {sT3}")
        p(f"s_lshl_b32 {sU[4]}, {srq}, 9")
        p(f"s_lshl_b32 {sT3}, {sw}, 6")
        p(f"s_add_u32 {sU[4]}, {sU[4]}, {sT3}")
        p(f"s_add_u32 {sU[4]}, {sU[4]}, {G_FH}")
        p(f"v_min_u32 v104, 6, {vLane}")
        p("v_lshlrev_b32 v104, 3, v104")
        p(f"s_and_b32 {sT3}, {srq}, 1")
        p(f"s_lshl_b32 {sT4}, {sT3}, 2")
        p(f"s_add_u32 {sU[4]}, {sU[4]}, {sT4}")
        p(f"s_lshl_b32 {sT4}, {sT3}, 13")
        p(f"s_sub_u32 {sU[8]}, {sU[3]}, {sT4}")
        p(f"s_add_u32 {sU[8]}, {sU[8]}, {8 * KB}")
        p(f"s_add_u32 {sU[3]}, {sU[3]}, {sT4}")
        p(f"s_lshr_b32 {sT3}, {srq}, 1")
        p(f"s_lshl_b32 {sT3}, {sT3}, 2")
        p(f"s_and_b32 {sT4}, {srq}, 1")
        p(f"s_add_u32 {sT3}, {sT3}, {sT4}")
        p(f"s_mul_i32 {sU[5]}, {sT3}, {28 * KB}")
        p(f"s_lshl_b32 {sT3}, {scb}, 12")
        p(f"s_lshl_b32 {sT4}, {sw}, 7")
        p(f"s_add_u32 {sT3}, {sT3}, {sT4}")
        p(f"s_add_u32 {sU[5]}, {sU[5]}, {sT3}")
        p(f"s_add_u32 {sU[5]}, {sU[5]}, {G_X}")
        if layer == 0:
            p(f"s_mul_i32 {sU[6]}, {srq}, {14 * KB}")
            p(f"s_lshr_b32 {sT3}, {scb}, 2")
            p(f"s_lshl_b32 {sT3}, {sT3}, 10")
            p(f"s_add_u32 {sU[6]}, {sU[6]}, {sT3}")
            p(f"s_and_b32 {sT3}, {scb}, 3")
            p(f"s_lshl_b32 {sT3}, {sT3}, 2")
            p(f"s_add_u32 {sT3}, {sT3}, {sT4}")
            p(f"s_add_u32 {sU[6]}, {sU[6]}, {sT3}")
            p(f"s_add_u32 {sU[6]}, {sU[6]}, {G_ST}")
            p(f"s_lshl_b32 {sT3}, {srq}, 8")
            p(f"s_lshl_b32 {sT4}, {scb}, 4")
            p(f"s_add_u32 {sT3}, {sT3}, {sT4}")
            p(f"s_lshl_b32 {sT4}, {sw}, 2")
            p(f"s_add_u32 {sT3}, {sT3}, {sT4}")
            p(f"s_add_u32 {sU[7]}, {sT3}, {G_FX}")
        else:
            p(f"s_lshl_b32 {sT3}, {sg}, 2")
            p(f"s_add_u32 {sT3}, {sT3}, {srq}")
            p(f"s_lshl_b32 {sT3}, {sT3}, 3")
            p(f"s_add_u32 {sT3}, {sT3}, {sw}")
            p(f"s_mul_i32 {sT3}, {sT3}, {8 * 896}")
            p(f"s_lshl_b32 {sT4}, {scb}, 7")
            p(f"s_add_u32 {sU[7]}, {sT3}, {sT4}")
        p(f"s_lshl_b32 {sT3}, {sw}, 13")
        p(f"v_add_u32 v105, {sT3}, {vS16}")
        if layer == 0:
            p(f"v_lshrrev_b32 v14, 5, {vLane}")
            p("v_lshlrev_b32 v14, 7, v14")
            p("v_xor_b32 v105, v105, v14")
            p("v_mov_b32 v106, v105")
        else:
            p("v_xor_b32 v106, 0x80, v105")
        p(f"v_and_b32 v13, 7, {vLane}")
        p("v_lshlrev_b32 v13, 4, v13")
        p(f"s_lshl_b32 {sT3}, {sw}, 7")
        p(f"v_add_u32 v13, {sT3}, v13")
        p(f"v_bfe_u32 v14, {vLane}, 3, 1")
        p("v_lshlrev_b32 v15, 7, v14")
        p("v_xor_b32 v13, v13, v15")
        p(f"v_lshl_add_u32 v13, v14, {9 if layer == 0 else 10}, v13")
        p(f"v_lshrrev_b32 v14, 4, {vLane}")
        p("v_lshl_add_u32 v13, v14, 11, v13")
        p(f"v_add_u32 v111, {L_S}, v13")

    def hreg(self, n):
        if not self.opt.get("xr", 0):
            return 112 + 4 * (n % 16), n - 16
        if n < 16:
            return 112 + 4 * n, -1
        if n < 20:
            return 64 + 4 * (n - 16), -1
        return 112 + 4 * ((n - 4) % 16), (n - 20 if n < 36 else n - 16)

    def h_loads(self):
        out = []
        for n in range(56):
            th, j = divmod(n, 28)
            q = sub()
            i = j >> 1
            if j % 14 == 0:
                q(f"s_add_u32 {sU[9]}, {sU[3] if i < 7 else sU[8]}, {th * 112 * KB}")
                q(f"v_add_u32 v15, {sU[9]}, {vL16}")
            q(f"buffer_load_dwordx4 {V(self.hreg(n)[0])}, v15, {SG}, s{8 + i % 7} offen offset:{(j % 2) * KB} sc1")
            out.append(q.ins)
        return out

    def h_poll(self, grp, layer):
        p = self.p
        st, tmp = (sU[0], sU[1])[grp & 1], (109, 13)[grp & 1]
        with self.cap() as c1:
            if grp & 1:
                p(f"s_xor_b32 {st}, {sU[4]}, 4")
                if grp >> 1:
                    p(f"s_add_u32 {st}, {st}, 256")
            else:
                p(f"s_add_u32 {st}, {sU[4]}, {(grp >> 1) * 256}")
            self.poll_load("v104", SG, st, 1, tmp)
        with self.cap() as c2:
            self.apoll_end("v104", SG, st, 1 + layer, 1, tmp)
        return c1.ins, c2.ins

    def ffn2(self, layer, ep3, flag2, flag3, F):
        p = self.p
        ACC = ((16, 48), (32, 64))
        lds = self.hl
        k0 = min(len(ep3), self.opt.get("k0", 89 if F > 10 else 20))
        LEAD = self.opt.get("leadh", 14)
        early_b = self.opt.get("ord", 0) and k0 > 60
        npre = self.opt.get("npre", 20 if self.opt.get("xr", 0) else 16) if early_b else 14
        pre = lds[self.n0:14]
        if self.pb[0]:
            pre = [self.pb[0]] + pre
        if early_b:
            p.add(spread(ep3[:k0], [(pre, 0, 40), ([self.pb[1]] + lds[14:npre], 44, k0 - 4)]))
            self.pb = []
        elif k0:
            p.add(spread(ep3[:k0], [(pre, 0, max(0, k0 - 4))]))
        else:
            for it in pre:
                p.add(it)
        ep3 = ep3[k0:]
        issued = npre
        RES = (88, 84)
        TL = self.opt.get("tl", 10)

        with self.cap() as su:
            p(f"v_and_b32 v107, 7, {vLane}")
            p(f"v_bfe_u32 v110, {vLane}, 3, 1")
            if layer == 0:
                p(f"v_lshrrev_b32 v108, 4, {vLane}")
                p("v_lshlrev_b32 v108, 9, v108")
                p("v_lshl_add_u32 v108, v107, 4, v108")
                p("v_lshlrev_b32 v107, 4, v107")
                p("v_lshl_add_u32 v107, v110, 9, v107")
            else:
                p("v_mul_u32_u24 v108, 896, v107")
                p("v_lshlrev_b32 v107, 4, v107")
                p("v_lshl_add_u32 v107, v110, 3, v107")
                p(f"v_lshrrev_b32 v110, 3, {vLane}")
                p("v_lshl_add_u32 v108, v110, 4, v108")
            p(f"v_lshrrev_b32 v110, 4, {vLane}")
            p("v_lshl_add_u32 v107, v110, 10, v107")

        def resid(th):
            q = sub()
            q(f"s_add_u32 {sT3}, {sU[5]}, {th * 2 * 28 * KB}")
            if layer == 0:
                q(f"buffer_load_dwordx4 {V(RES[th])}, v107, {SG}, {sT3} offen sc1")
            else:
                q(f"buffer_load_dwordx2 {V(RES[th], 2)}, v107, {SG}, {sT3} offen sc1")
                q(f"buffer_load_dwordx2 {V(RES[th] + 2, 2)}, v107, {SG}, {sT3} offen offset:512 sc1")
            return q.ins

        def mm():
            main = []
            for n in range(56):
                th, j = divmod(n, 28)
                b = V(self.hreg(n)[0])
                for ch in range(2):
                    acc = V(ACC[th][ch], 16)
                    main.append([Ins(f"{MFMA} {acc}, {w2reg(j, ch)}, {b}, {acc if j else 0}")])
            tail = main[112 - 2 * TL:]
            return main[:112 - 2 * TL] + tail[0::2] + tail[1::2]

        def reduce(th, woven):
            area = th * 16 * KB
            a0, a1 = ACC[th]
            quad = [a0, a0 + 4, a0 + 8, a0 + 12, a1, a1 + 4, a1 + 8, a1 + 12]
            T = 92
            items = []
            with self.cap() as c:
                for k in range(8):
                    p(f"ds_write_b128 v{105 + (k & 1)}, {V(quad[k])} offset:{area + k * KB}")
                for r in range(4):
                    p(f"v_lshlrev_b32 v{T + 2 * r}, 16, v{RES[th] + r}")
                    p(f"v_and_b32 v{T + 2 * r + 1}, {sHI}, v{RES[th] + r}")
            items += groups(c.ins)
            with self.cap() as c:
                p.wait_ds()
                p("s_barrier")
                for u in range(4):
                    for k in range(2):
                        p(f"ds_read_b128 {V(quad[2 * u + k])}, v111 offset:{area + u * 8 * KB + k * (KB if layer == 0 else 512)}")
            items += groups(c.ins)
            with self.cap() as c:
                for u in range(4):
                    for k in range(2):
                        if woven:
                            for r in range(4):
                                p(f"v_add_f32 v{T + 4 * k + r}, v{T + 4 * k + r}, v{quad[2 * u + k] + r}")
                        else:
                            for r in (0, 2):
                                p(f"v_pk_add_f32 {V(T + 4 * k + r, 2)}, {V(T + 4 * k + r, 2)}, {V(quad[2 * u + k] + r, 2)}")
                for r in range(4):
                    p(f"v_cvt_pk_bf16_f32 v{80 + r}, v{T + 2 * r}, v{T + 2 * r + 1}")
            items += groups(c.ins)
            if layer == 1:
                with self.cap() as c:
                    p(f"s_add_u32 {sT3}, {sU[7]}, {th * 32 * 896}")
                    p(f"buffer_store_dwordx4 {V(80)}, v108, {SOUT}, {sT3} offen {'sc1' if self.opt.get('outsc1', 1) else ''}")
                items.append(c.ins)
                return items, []
            with self.cap() as c:
                p(f"s_add_u32 {sT4}, {sU[5]}, {th * 2 * 28 * KB}")
                self.publish([f"buffer_store_dwordx4 {V(80)}, v107, {SG}, {sT4} offen"], f"x{th}")
            items.append(c.ins)
            with self.cap() as c:
                p(f"v_add_f32 v100, v{T}, v{T + 1}")
                p(f"v_mul_f32 v101, v{T}, v{T}")
                p(f"v_fmac_f32 v101, v{T + 1}, v{T + 1}")
                for r in range(2, 8):
                    p(f"v_add_f32 v100, v100, v{T + r}")
                    p(f"v_fmac_f32 v101, v{T + r}, v{T + r}")
                p("v_add_f32_dpp v100, v100, v100 row_ror:8 row_mask:0xf bank_mask:0xf")
                p("v_add_f32_dpp v101, v101, v101 row_ror:8 row_mask:0xf bank_mask:0xf")
                p("v_permlane16_swap_b32 v100, v101")
                p("v_add_f32 v100, v100, v101")
                p("v_mov_b32 v101, v100")
                p("v_permlane32_swap_b32 v100, v101")
                p("v_add_f32 v100, v100, v101")
            items += groups(c.ins)
            with self.cap() as c:
                p(f"s_add_u32 {sT3}, {sU[6]}, {th * 7 * KB}")
                self.publish(["s_mov_b64 exec, 0x00ff00ff", f"buffer_store_dword v100, v108, {SG}, {sT3} offen",
                              "s_mov_b64 exec, -1"], f"x{th}")
            items.append(c.ins)
            with self.cap() as c:
                p(f"s_add_u32 {sT3}, {sU[7]}, {th * 128}")
                self.flag(sT3, 2, wait=f"x{th}", tmp=102, st=sT4)
            return items, c.ins
        E3 = max(4, len(ep3) * self.opt.get("e3", 24) // 89)
        F2 = self.opt.get("f2", max(0, F - 6))
        F3 = self.opt.get("f3", E3 + (24 if F > 10 else 16))
        LAG = self.opt.get("lag2", 14)
        pc, pd = self.h_poll(2, layer), self.h_poll(3, layer)
        seen = {0: -1, 1: self.opt.get("gb2", 6) if self.pb else -1}
        GC = F2 + self.opt.get("fd2", 12)
        seen[2] = GC + LAG
        GD = max(F3 + self.opt.get("fd2", 12), seen[2] + 1)
        seen[3] = GD + LAG
        streams = []
        if self.pb:
            streams.append(([self.pb[1]], seen[1], seen[1]))
        streams += [([pc[0]], GC, GC), ([pc[1]], seen[2], seen[2]), ([pd[0]], GD, GD), ([pd[1]], seen[3], seen[3])]
        g = 0.0
        for n in range(issued, 56):
            free = 2 * self.hreg(n)[1] + 1
            g = max(g, free, 2 * (n - LEAD) + 1, seen[n // 14])
            use = 2 * n if n < 56 - TL else 112 - 2 * TL + (n - (56 - TL))
            g = min(g, use - 2 * self.opt.get("minlead", 4) + 1)
            assert g >= seen[n // 14] and g >= free, (n, g)
            streams.append(([lds[n]], int(g), int(g)))
            g += self.opt.get("pace", 21) / 10
        bar = [Ins("s_barrier")]
        r0, f0 = reduce(0, True)
        r1, f1 = reduce(1, False)
        if layer == 1:
            go = max(self.opt.get("go", 106), int(g))
            streams.append(([r0[-1]], go, go))
            r0 = r0[:-1]
        if TL:
            streams.append((r1[8:16], 112 - TL - 4, 112 - TL - 1))
            streams.append((r1[:4], 112 - TL + 2, 111))
            r1 = r1[4:8] + r1[16:]
        streams += [([bar], 0, 0), (ep3, 1, E3), ([flag2], F2, F2), ([flag3], F3, F3),
                    (groups(su.ins) + [resid(0)], E3 + 1, E3 + 16), ([resid(1)], 56, 56), ([bar], 96, 96)]
        if self.opt.get("rflex", 1):
            streams += [(r0[:8], 58, 71), (r0[8:16], 59, 71), (r0[16:25], 73, 80), (r0[25:], 81, 97)]
        else:
            streams.append((r0, 57, 92))
        if f0:
            streams.append(([f0], 108, 108))
        woven = spread(mm(), streams)
        k = 0
        for x in woven:
            p.add([x])
            if x.kind == "mfma":
                k += 1
                if k == 56:
                    self.stamp(f"th0_done{layer}")
                elif self.opt.get("fine2") and layer == 1 and (k == 1 or k % 14 == 0) and k < 112:
                    self.stamp(f"m{k}")
        self.stamp(f"th1_done{layer}")
        for it in r1:
            p.add(it)
        p.add(f1)
        self.stamp(f"ffn2_done{layer}")

    def spare0(self):
        p = self.p
        if not self.opt.get("h0sc1", 1) or self.opt.get("htouch", 0):
            p(f"s_and_b32 {sT0}, {sh}, 1")
            p(f"s_lshl_b32 {sT0}, {sT0}, 2")
            p(f"s_add_u32 {sT0}, {sT0}, {sw}")
            p(f"s_mul_i32 {sT0}, {sT0}, {14 * KB}")
            p(f"s_mul_i32 {sT1}, {srh}, {4 * 112 * KB}")
            p(f"s_add_u32 {sT0}, {sT0}, {sT1}")
            p(f"v_lshlrev_b32 v64, 7, {vLane}")
            for tb in (0, 2, 1, 3):
                for off in (0, 6 * KB):
                    p(f"s_add_u32 {sT1}, {sT0}, {G_H + tb * 112 * KB + off}")
                    p(f"buffer_load_dword v65, v64, {SG}, {sT1} offen sc1")
        self.colsum_qkv()
        p.wait_ds()
        p("s_barrier")
        self.colsum_qkv_fetch()
        w2pre = self.opt.get("w2pre", 1)
        if w2pre:
            if w2pre == 2:
                p(f"v_min_u32 v16, 27, {vLane}")
                p("v_lshlrev_b32 v16, 2, v16")
                p(f"s_lshl_b32 {sT0}, {stb}, 7")
                p(f"s_add_u32 {sT0}, {sT0}, {G_FX}")
                self.poll("v16", SG, sT0, 1, sleep=2)
            p(f"s_and_b32 {sT0}, {sh}, 1")
            p(f"s_lshl_b32 {sT0}, {sT0}, 3")
            p(f"s_add_u32 {sT0}, {sT0}, {stb}")
            p(f"v_lshlrev_b32 v64, 7, {vLane}")
            for t in range(7):
                p(f"s_add_u32 {sT1}, {sT0}, {16 * t}")
                p(f"s_min_u32 {sT1}, {sT1}, 97")
                p(f"s_mul_i32 {sT2}, {sT1}, 147")
                p(f"s_lshr_b32 {sT2}, {sT2}, 10")
                p(f"s_mul_i32 {sT3}, {sT2}, 7")
                p(f"s_sub_u32 {sT1}, {sT1}, {sT3}")
                p(f"s_add_u32 {sT2}, {sT2}, 8")
                p(f"s_cmp_ge_u32 {sT2}, 14")
                p(f"s_cselect_b32 {sT3}, 14, 0")
                p(f"s_sub_u32 {sT2}, {sT2}, {sT3}")
                p(f"s_mul_i32 {sT1}, {sT1}, {224 * KB}")
                p(f"s_lshl_b32 {sT2}, {sT2}, 14")
                p(f"s_add_u32 {sT1}, {sT1}, {sT2}")
                p(f"s_add_u32 {sT1}, {sT1}, {WS_P2}")
                p(f"buffer_load_dword v65, v64, {SWS}, {sT1} offen sc1")
                p(f"s_add_u32 {sT1}, {sT1}, {8 * KB}")
                p(f"buffer_load_dword v65, v64, {SWS}, {sT1} offen sc1")
        if self.opt.get("nap", 1):
            p(f"v_min_u32 v16, 13, {vLane}")
            p("v_lshlrev_b32 v16, 2, v16")
            p(f"s_lshl_b32 {sT0}, {srh}, 10")
            p(f"s_add_u32 {sT0}, {sT0}, {G_FH + 3 * 256}")
            self.poll("v16", SG, sT0, 1, sleep=12)
        p("s_waitcnt vmcnt(0) lgkmcnt(0)")

    def spare1(self):
        p = self.p
        wb = self.opt.get("wb", 0)
        if not wb:
            return
        p(f"s_and_b32 {sT0}, {sh}, 1")
        p(f"s_or_b32 {sT0}, {sT0}, {srh}")
        p(f"s_or_b32 {sT0}, {sT0}, {sw}")
        p(f"s_cmp_lg_u32 {sT0}, 0")
        p(f"s_cbranch_scc1 L_fin{self.sfx}")
        if wb == 4:
            p(f"v_and_b32 v13, 15, {vLane}")
            p("v_min_u32 v13, 13, v13")
            p(f"v_bfe_u32 v14, {vLane}, 4, 1")
            p("v_lshl_add_u32 v13, v14, 5, v13")
            p("v_lshlrev_b32 v16, 2, v13")
            p(f"s_mov_b32 {sT0}, {G_FO + 64}")
            self.poll("v16", SG, sT0, 9)
            p("buffer_wbl2 sc1")
            p("s_waitcnt vmcnt(0)")
            return
        p(f"v_and_b32 v13, 15, {vLane}")
        p("v_min_u32 v13, 13, v13")
        p("v_lshlrev_b32 v13, 3, v13")
        p(f"v_lshrrev_b32 v14, 4, {vLane}")
        p("v_lshl_add_u32 v16, v14, 7, v13")
        p(f"s_mov_b32 {sT0}, {G_FX}")
        self.poll("v16", SG, sT0, 3, 2)
        p(f"s_mov_b32 {sT0}, {G_FX + 512}")
        self.poll("v16", SG, sT0, 3, 2)
        p("buffer_wbl2 sc1")
        p("s_waitcnt vmcnt(0)")
        if wb >= 2:
            p(f"v_and_b32 v13, 15, {vLane}")
            p("v_min_u32 v13, 13, v13")
            p("v_lshlrev_b32 v13, 2, v13")
            p(f"v_lshrrev_b32 v14, 4, {vLane}")
            p("v_lshl_add_u32 v16, v14, 6, v13")
            for tb in ((2, 3) if wb == 2 else (0, 2, 1, 3)):
                for half in range(2):
                    p(f"s_mov_b32 {sT0}, {G_FH + (4 * half + tb) * 256}")
                    self.poll("v16", SG, sT0, 2)
                p("buffer_wbl2 sc1")
                p("s_waitcnt vmcnt(0)")

    def finish(self):
        p = self.p
        p(f"s_or_b32 {sT0}, {sg}, {sh}")
        p(f"s_or_b32 {sT0}, {sT0}, {srh}")
        p(f"s_or_b32 {sT0}, {sT0}, {sw}")
        p(f"s_cmp_lg_u32 {sT0}, 0")
        p(f"s_cbranch_scc1 L_fin{self.sfx}")
        p(f"s_add_u32 {sT0}, {sE}, 64")
        p(f"v_mov_b32 v14, {sT0}")
        p("s_mov_b64 exec, 1")
        p(f"buffer_store_dword v14, {vL16}, {SWS}, 0 offen sc1")
        p("s_mov_b64 exec, -1")
        p(f"L_fin{self.sfx}:")
        if self.pad:
            p("s_waitcnt vmcnt(0)")
            if self.opt.get("amp") == "end":
                p("s_memrealtime s[94:95]")
            p("s_waitcnt lgkmcnt(0)")
            p("s_sub_u32 s94, s94, s96")
            p("s_mul_i32 s94, s94, 4")
            p("s_min_u32 s94, s94, 20000")
            p(f"s_add_u32 s94, s94, {self.pad}")
            p(f"L_pad{self.sfx}:")
            p("s_memrealtime s[98:99]")
            p("s_waitcnt lgkmcnt(0)")
            p("s_sub_u32 s98, s98, s96")
            p(f"s_cmp_lt_u32 s98, s94")
            p(f"s_cbranch_scc1 L_pad{self.sfx}")
        if self.diag:
            p("s_waitcnt vmcnt(0)")
            self.stamp("end")
            self.stamp_flush()
            p(f"s_lshl_b32 {sT0}, {srh}, 4")
            p(f"s_add_u32 {sT0}, {sT0}, {sh}")
            p(f"s_lshl_b32 {sT0}, {sT0}, 3")
            p(f"s_add_u32 {sT0}, {sT0}, {sg}")
            p(f"s_lshl_b32 {sT0}, {sT0}, 2")
            p(f"s_add_u32 {sT0}, {sT0}, {sw}")
            p(f"s_lshl_b32 {sT0}, {sT0}, 7")
            p(f"s_add_u32 {sT0}, {sT0}, {WS_DIAG}")
            p("s_mov_b64 exec, 1")
            for i in range(self.nstamp):
                p(f"v_mov_b32 v14, s{STAMP0 + i}")
                p(f"buffer_store_dword v14, {vL16}, {SWS}, {sT0} offen offset:{4 * i}")
            for k in range(2):
                p(f"v_mov_b32 v14, s{18 + k}")
                p(f"buffer_store_dword v14, {vL16}, {SWS}, {sT0} offen offset:{112 + 4 * k}")
            p(f"v_mov_b32 v14, {1 if self.fast else 0}")
            p(f"buffer_store_dword v14, {vL16}, {SWS}, {sT0} offen offset:120")
            p(f"v_mov_b32 v14, {slim}")
            p(f"buffer_store_dword v14, {vL16}, {SWS}, {sT0} offen offset:124")
            p("s_mov_b64 exec, -1")
        p("s_waitcnt vmcnt(0)")
        p("s_endpgm")

    def body(self):
        p = self.p
        x = self.sfx
        self.q0()

        self.kv_finish(0, 64, "v11")
        self.stamp_flush()
        p(f"s_cmp_ge_u32 {sh}, 14")
        p(f"s_cbranch_scc1 L_spare0{x}")
        assert len(self.bulk) <= 84
        b2 = self.touch[4] + self.take(self.opt.get("b2", 14))

        def pre_wo0():
            for it in b2:
                p.add(it)
            self.colsum_qkv()
        n_before = min(28, 28 + 56 - len(self.bulk))
        cs1 = self.colsum_w1_items()
        b3 = self.take(self.opt.get("b3", 14))
        self.wo_phase(0, pre_wo0, [(cs1[:n_before], 0, 26), (b3, 20, 27)])
        b4 = self.take(max(self.opt.get("b4", 6), len(self.bulk) - 56))

        def pre_ffn0():
            self.colsum_qkv_fetch()
            for it in b4:
                p.add(it)
            for it in cs1[n_before:]:
                p.add(it)
            p(f"v_mov_b32 v84, v{vCS1}")
            p(f"v_mov_b32 v85, v{vCS1 + 1}")
            p.wait_ds()
            p("s_barrier")

        def extra0(pos):
            return [(self.take(100), self.opt.get("w2beg", 0), pos[self.opt.get("w2end", 108)])]
        self.ffn(0, pre_ffn0, extra0)
        p(f"L_layer1{x}:")
        p("s_waitcnt lgkmcnt(0)")
        self.qkv1()
        self.kv_finish(1, 96, "v91")
        p(f"s_cmp_ge_u32 {sh}, 14")
        p(f"s_cbranch_scc1 L_spare1{x}")
        self.wo_phase(1)
        self.ffn(1)
        self.finish()
        p(f"L_spare0{x}:")
        p("s_waitcnt vmcnt(0) lgkmcnt(0)")
        self.spare0()
        p(f"s_branch L_layer1{x}")
        p(f"L_spare1{x}:")
        p("s_waitcnt vmcnt(0) lgkmcnt(0)")
        self.spare1()
        p(f"s_branch L_fin{x}")
        p.add(self.tail)
        self.tail = []

    def build(self):
        p = self.p
        self.prologue()
        self.startup()
        self.qkv0()
        self.body()
        p("L_fastend:")
        p("L_slow:")
        p("s_waitcnt vmcnt(0) lgkmcnt(0)")
        p("s_nop 7")
        self.fast = False
        self.sfx = "_s"
        self.body()
        return finalize(p.ins)


HEADER = f"""; Two layers of (LayerNorm, linear attention, output projection, LayerNorm, SiLU FFN) in one persistent launch.
; @launch grid=(256,1,1) block=(256,1,1) lds={LDS_BYTES}
.amdgcn_target "amdgcn-amd-amdhsa--gfx950"
.text
.globl {NAME}_kernel
.p2align 8
.type {NAME}_kernel,@function
{NAME}_kernel:
"""
FOOTER = f"""
.section .rodata,"a"
.p2align 6
.amdhsa_kernel {NAME}_kernel
  .amdhsa_next_free_vgpr 512
  .amdhsa_next_free_sgpr 102
  .amdhsa_accum_offset 256
  .amdhsa_group_segment_fixed_size 0
  .amdhsa_kernarg_size 72
  .amdhsa_user_sgpr_count 2
  .amdhsa_user_sgpr_kernarg_segment_ptr 1
  .amdhsa_system_sgpr_workgroup_id_x 1
.end_amdhsa_kernel
"""


def generate(**kw):
    g = Gen(**kw)
    lines = g.build()
    return HEADER + "\n".join(lines) + FOOTER, g


if __name__ == "__main__":
    out = sys.argv[1] if len(sys.argv) > 1 else f"cdna_kernels/{NAME}.s"
    kw = {}
    for a in sys.argv[2:]:
        k, _, v = a.partition("=")
        kw[k] = (int(v) if v.lstrip('-').isdigit() else v) if v else True
    text, g = generate(**kw)
    open(out, "w").write(text)
    print("wrote", out, len(text), "bytes;", text.count("\n"), "lines")
```

```python
import sys, os
sys.path.insert(0, os.path.dirname(os.path.abspath(__file__)))
from asmlib import *

NAME = "interleave_layers__linear_attn_block__dense_activation_silu__prompt"
KB = 1024

WS_EPOCH = 0
WS_RA = 0x8000
WS_RB = 0x10000
WS_DIAG = 0x20000
WS_KV = 0x80000
KV_L = 0x80000
WS_PQ = 0x180000
WS_PO = WS_PQ + 16 * 28 * KB
WS_P1 = WS_PO + 14 * 28 * KB
WS_P2 = WS_P1 + 14 * 112 * KB
WS_G = 0x680000
assert WS_P2 + 7 * 224 * KB <= WS_G
OOB = 0x40000000
G_STRIDE = 0x160000
G_H = 0
G_O = 8 * 112 * KB
G_X = G_O + 8 * 28 * KB
G_ST = G_X + 8 * 28 * KB
G_FX = G_ST + 8 * 7 * KB
G_FO = G_FX + 1024
G_FH = G_FO + 1024
G_END = G_FH + 2048
assert G_END <= G_STRIDE
WS_BYTES = WS_G + 8 * G_STRIDE

L_WK, L_WV, L_WQ, L_WO, L_S = 0, 28 * KB, 56 * KB, 84 * KB, 112 * KB
L_XST = 48 * KB
S_KVP, S_KVS = 0, 16 * KB
S_CS = 18 * KB
S_STAT, S_TR = 42 * KB, 44 * KB
LDS_BYTES = 160 * KB

SX, SQ, SO, S1, S2, SOUT, SWS, SG = ("s[8:11]", "s[12:15]", "s[16:19]", "s[20:23]", "s[24:27]", "s[28:31]",
                                     "s[32:35]", "s[36:39]")
sE, sg, sh, srh, sw, sfast, srq, scb, stb, sxs, slim = ("s56", "s57", "s58", "s59", "s60", "s61", "s62", "s63",
                                                        "s64", "s65", "s66")
sT0, sT1, sT2, sT3, sT4, sT5 = "s40", "s41", "s42", "s43", "s44", "s45"
sCnt, sNeed = "s46", "s47"
sONES, sLOG2E, sEPS6, sHI = "s48", "s49", "s50", "s51"
sM28 = "s[52:53]"
sMPAD = "s[54:55]"
sHB, sXB, sSTB = "s67", "s68", "s69"
STAMP0 = 80
sU = [f"s{70 + i}" for i in range(10)]
SPK = "s[20:23]"

vLane, vL16, vTrA, vTrB = "v0", "v1", "v2", "v3"
vCS1 = 4
vCSQ = 6
vS16 = "v12"
vT0, vT1, vT2 = "v13", "v14", "v15"


def V(n, k=4):
    return f"v[{n}:{n + k - 1}]" if k > 1 else f"v{n}"


def A(n, k=4):
    return f"a[{n}:{n + k - 1}]" if k > 1 else f"a{n}"


def w1reg(s, lo=0, k=4):
    return A(224 + 4 * s + lo, k) if s < 8 else V(176 + 4 * (s - 8) + lo, k)


def w2reg(j, ch, lo=0, k=4):
    return A(8 * j + 4 * ch + lo, k)


MFMA = "v_mfma_f32_32x32x16_bf16"
MFMA16 = "v_mfma_f32_16x16x32_bf16"


class Capture:
    def __init__(self, g):
        self.g = g

    def __enter__(self):
        self.saved = self.g.p.ins
        self.g.p.ins = []
        self.ins = self.g.p.ins
        return self

    def __exit__(self, *a):
        self.g.p.ins = self.saved


class Gen:
    def __init__(self, diag=False, force_slow=False, pad=0, part=0, **opt):
        self.p = Prog()
        self.diag = diag
        self.force_slow = force_slow
        self.pad = pad
        self.part = part
        self.opt = opt
        self.nstamp = 0
        self.seen = 0
        self.stamp_names = []
        self.pending = False
        self.tail = []
        self.fast = True
        self.sfx = ""

    def cap(self):
        return Capture(self)

    def stamp(self, name, op="s_memrealtime"):
        if self.opt.get("amp") == name and self.fast:
            self.p("s_memrealtime s[94:95]")
        if not self.diag or not self.fast:
            return
        self.seen += 1
        lo = self.opt.get("from", 18 * self.part)
        if self.seen > 2 and not (lo <= self.seen - 3 < lo + 18):
            return
        self.stamp_flush()
        assert STAMP0 + self.nstamp < 100, "too many stamps"
        self.p(f"{op} s[100:101]")
        self.stamp_names.append(name)
        self.nstamp += 1
        self.pending = True

    def stamp_flush(self):
        if self.diag and self.pending:
            self.p(f"s_mov_b32 s{STAMP0 + self.nstamp - 1}, s100")
            self.pending = False

    def publish(self, stores, tag="pub", always_sc1=False):
        for s in stores:
            self.p(s + (" sc1" if s.startswith("buffer_") and (always_sc1 or not self.fast) else ""), tag)

    def flag(self, soff, val, n=1, wait="pub", tmp=14, st=sT5):
        p = self.p
        p(f"s_add_u32 {st}, {sE}, {val}")
        p(f"v_mov_b32 v{tmp}, {st}")
        if n == 2:
            p(f"v_mov_b32 v{tmp + 1}, {st}")
        op = f"buffer_store_dword v{tmp}" if n == 1 else f"buffer_store_dwordx2 v[{tmp}:{tmp + 1}]"
        p.wait_vm(wait)
        self.publish(["s_mov_b64 exec, 1", f"{op}, {vL16}, {SG}, {soff} offen", "s_mov_b64 exec, -1"], "flag")

    def poll_load(self, vaddr, srd, soff, n, tmp):
        if n == 1:
            self.p(f"buffer_load_dword v{tmp}, {vaddr}, {srd}, {soff} offen sc1")
        else:
            self.p(f"buffer_load_dwordx2 v[{tmp}:{tmp + 1}], {vaddr}, {srd}, {soff} offen sc1")

    def poll_test(self, n, tmp, need):
        p = self.p
        p(f"v_subrev_u32 v{tmp}, {need}, v{tmp}")
        if n == 2:
            p(f"v_subrev_u32 v{tmp + 1}, {need}, v{tmp + 1}")
            p(f"v_or_b32 v{tmp}, v{tmp}, v{tmp + 1}")
        p(f"v_cmp_lt_u32 vcc, 31, v{tmp}")

    def spin(self, vaddr, srd, soff, n, tmp, need, done, sleep=0):
        p = self.p
        lp = p.label("poll")
        p(f"s_mov_b32 {sCnt}, {slim}")
        p(f"{lp}:")
        self.poll_load(vaddr, srd, soff, n, tmp)
        p("s_waitcnt vmcnt(0)")
        self.poll_test(n, tmp, need)
        p(f"s_cbranch_vccz {done}")
        if sleep:
            p(f"s_sleep {sleep}")
        p(f"s_sub_u32 {sCnt}, {sCnt}, 1")
        p(f"s_cmp_lg_u32 {sCnt}, 0")
        p(f"s_cbranch_scc1 {lp}")
        p(f"s_mov_b32 {slim}, 1")

    def poll(self, vaddr, srd, soff, need, n=1, tmp=14, sleep=0):
        p = self.p
        ld = p.label("polled")
        p(f"s_add_u32 {sNeed}, {sE}, {need}")
        self.spin(vaddr, srd, soff, n, tmp, sNeed, ld, sleep)
        p(f"{ld}:")

    def apoll_end(self, vaddr, srd, soff, need, n=1, tmp=14):
        p = self.p
        lo, lb = p.label("aspin"), p.label("aback")
        p(f"s_add_u32 {sNeed}, {sE}, {need}")
        self.poll_test(n, tmp, sNeed)
        p(f"s_cbranch_vccnz {lo}")
        p(f"{lb}:")
        with self.cap() as c:
            p(f"{lo}:")
            p("s_nop 4")
            self.spin(vaddr, srd, soff, n, tmp, sNeed, lb)
            p(f"s_branch {lb}")
        self.tail.extend(c.ins)

    def trread(self, dst_lo, dst_hi, vaddr, off, second=512):
        return [Ins(f"ds_read_b64_tr_b16 {dst_lo}, {vaddr} offset:{off}"),
                Ins(f"ds_read_b64_tr_b16 {dst_hi}, {vaddr} offset:{off + second}")]

    def transpose_block(self, reg, aw, ar):
        return [Ins(f"ds_write_b128 {aw}, {reg(0, 4)}"),
                Ins(f"ds_read_b64_tr_b16 {reg(0, 2)}, {ar}"),
                Ins(f"ds_read_b64_tr_b16 {reg(2, 2)}, {ar} offset:512")]

    def tr_addrs(self, aw, ar):
        p = self.p
        p(f"s_lshl_b32 {sT0}, {sw}, 10")
        p(f"s_add_u32 {sT0}, {sT0}, {L_S + S_TR}")
        p(f"v_add_u32 {aw}, {sT0}, {vL16}")
        p(f"v_add_u32 {ar}, {sT0}, {vTrA}")

    def both_halves(self, s, q, tmp):
        p = self.p
        p(f"v_permlane32_swap_b32 {s}, {q}")
        p(f"v_add_f32 {s}, {s}, {q}")

    def stats_finish(self, t, u, mean, var):
        p = self.p
        p(f"v_mov_b32 {u}, {t}")
        p(f"v_permlane32_swap_b32 {t}, {u}")
        p(f"v_mul_f32 {mean}, 0x3b124925, {t}")
        p(f"v_mul_f32 {var}, 0x3b124925, {u}")
        p(f"v_fma_f32 {var}, -{mean}, {mean}, {var}")
        p(f"v_max_f32 {var}, 0, {var}")
        p(f"v_add_f32 {var}, 0x3727c5ac, {var}")

    def split_words(self, x, w0, w1, t, neg, xside):
        p = self.p
        s = "-" if neg else ""
        p(f"v_cvt_pk_bf16_f32 {w0}, {s}{x}, {s}{x}")
        p(f"v_and_b32 {t}, {sHI}, {w0}")
        p(f"v_sub_f32 {t}, {s}{x}, {t}" if not neg else f"v_sub_f32_e64 {t}, -{x}, {t}")
        if xside:
            p(f"v_and_b32 {w1}, 0xffff, {w0}")
            p(f"v_cvt_pk_bf16_f32 {t}, {t}, {t}")
            p(f"v_and_or_b32 {w0}, {t}, {sHI}, {w1}")
        else:
            p(f"v_cvt_pk_bf16_f32 {w1}, {t}, 0")

    def prologue(self):
        p = self.p
        p("s_cmp_lt_u32 s2, 256")
        p("s_cbranch_scc1 L_start")
        p("s_endpgm")
        p("L_start:")
        p("s_load_dwordx4 s[40:43], s[0:1], 0")
        p("s_load_dwordx2 s[52:53], s[0:1], 64")
        p("s_load_dwordx2 s[44:45], s[0:1], 16")
        p("s_load_dwordx4 s[48:51], s[0:1], 32")
        p("s_load_dwordx2 s[46:47], s[0:1], 48")
        self.stamp("realtime", "s_memrealtime")
        if self.pad:
            p("s_memrealtime s[96:97]")
            p("s_memrealtime s[94:95]")
        p("s_getpc_b64 s[6:7]")
        p("L_pc:")
        p("v_lshrrev_b32 v13, 6, v0")
        p(f"v_and_b32 {vLane}, 63, v0")
        p(f"v_readfirstlane_b32 {sw}, v13")
        p(f"s_and_b32 {sg}, s2, 7")
        p(f"s_lshr_b32 s3, s2, 3")
        p(f"s_lshl_b32 s4, s3, 2")
        p(f"s_add_u32 s4, s4, {sw}")
        p(f"s_lshl_b32 s4, s4, 9")
        p(f"v_lshlrev_b32 v9, 7, {vLane}")
        p("v_add_u32 v13, s4, v9")
        p("v_min_u32 v13, L_fastend-L_pc-4, v13")
        p("s_mov_b64 exec, 0xf")
        p("global_load_dword v10, v13, s[6:7]")
        p("s_mov_b64 exec, -1")
        p(f"s_and_b32 {sh}, s3, 15")
        p(f"s_lshr_b32 {srh}, s3, 4")
        p(f"s_lshl_b32 s2, {sg}, 1")
        p(f"s_add_u32 s2, s2, {srh}")
        p("s_lshl_b32 s3, s2, 2")
        p(f"s_add_u32 s3, s3, {sw}")
        p("s_min_u32 s5, s3, 55")
        p("s_cmp_ge_u32 s5, 28")
        p("s_cselect_b32 s4, 1, 0")
        p("s_cselect_b32 s6, 28, 0")
        p("s_sub_u32 s5, s5, s6")
        p(f"v_lshrrev_b32 v13, 2, {vLane}")
        p(f"v_and_b32 v15, 3, {vLane}")
        p("v_lshlrev_b32 v15, 4, v15")
        p("v_mul_u32_u24 v14, 2688, v13")
        p("v_add_u32 v6, v14, v15")
        p("v_mul_u32_u24 v14, 896, v13")
        p("v_add_u32 v7, v14, v15")
        p("v_mul_u32_u24 v14, 3584, v13")
        p("v_add_u32 v8, v14, v15")
        p(f"s_cmp_ge_u32 {sh}, 7")
        p(f"s_cselect_b32 s6, 1, 0")
        p(f"s_cselect_b32 s7, 7, 0")
        p(f"s_lshl_b32 {srq}, {srh}, 1")
        p(f"s_add_u32 {srq}, {srq}, s6")
        p(f"s_sub_u32 {scb}, {sh}, s7")
        p(f"s_lshl_b32 {stb}, {srh}, 2")
        p(f"s_and_b32 s6, {sw}, 1")
        p(f"s_lshl_b32 s6, s6, 1")
        p(f"s_lshr_b32 s7, {sw}, 1")
        p(f"s_or_b32 s6, s6, s7")
        p(f"s_add_u32 {sxs}, {stb}, s6")
        p(f"s_add_u32 {stb}, {stb}, {sw}")
        p(f"v_lshlrev_b32 {vL16}, 4, {vLane}")
        p(f"v_lshrrev_b32 v13, 3, {vLane}")
        p("v_mul_u32_u24 v14, 896, v13")
        p("v_lshrrev_b32 v13, 1, v13")
        p(f"v_and_b32 v15, 7, {vLane}")
        p("v_xor_b32 v13, v13, v15")
        p("v_lshl_add_u32 v16, v13, 4, v14")
        p("v_xor_b32 v13, 4, v13")
        p("v_lshl_add_u32 v17, v13, 4, v14")
        p(f"s_lshl_b32 {sU[0]}, {sg}, 3")
        p(f"s_add_u32 {sU[0]}, {sU[0]}, {stb}")
        p(f"s_mul_i32 {sU[0]}, {sU[0]}, {32 * 896}")
        p(f"s_mul_i32 {sU[1]}, {sw}, {28 * KB}")
        p(f"s_add_u32 {sU[1]}, {sU[1]}, {L_XST}")
        p(f"s_cmp_ge_u32 {sh}, 14")
        p(f"s_cselect_b32 {sU[2]}, 7, 0")
        p(f"s_sub_u32 {sU[2]}, {scb}, {sU[2]}")
        p(f"s_mul_i32 {sU[7]}, s2, 37")
        p(f"s_lshr_b32 {sU[7]}, {sU[7]}, 8")
        p(f"s_mul_i32 {sU[7]}, {sU[7]}, 7")
        p(f"s_sub_u32 {sU[6]}, s2, {sU[7]}")
        p(f"s_sub_i32 {sU[7]}, {sU[2]}, {sU[6]}")
        p(f"s_cmp_lt_i32 {sU[7]}, 0")
        p(f"s_cselect_b32 s6, 7, 0")
        p(f"s_add_i32 {sU[7]}, {sU[7]}, s6")
        p(f"s_mov_b32 s10, {2048 * 896}\ns_mov_b32 s11, 0x00020000")
        p(f"s_mov_b32 s14, {448 * 2688}\ns_mov_b32 s15, 0x00020000")
        p("s_waitcnt lgkmcnt(0)")
        self.stamp("start")
        p("s_mov_b32 s12, s42\ns_mov_b32 s13, s43")
        p("s_mov_b32 s8, s40\ns_mov_b32 s9, s41")
        p(f"s_load_dword {sE}, s[52:53], {WS_EPOCH}")
        for j in range(7):
            p(f"s_lshl_b32 {sU[3]}, {sU[2]}, 7")
            p(f"s_add_u32 {sU[3]}, {sU[3]}, {sU[0]}")
            p(f"s_lshl_b32 {sU[4]}, {sU[7]}, 12")
            p(f"s_add_u32 {sU[4]}, {sU[4]}, {sU[1]}")
            for b in range(4):
                p(f"s_add_u32 m0, {sU[4]}, {b * KB}")
                p(f"s_add_u32 {sU[5]}, {sU[3]}, {b * 8 * 896}")
                p(f"buffer_load_dwordx4 v{16 + (b & 1)}, {SX}, {sU[5]} offen lds", "x")
                if 4 * j + b + 1 == self.opt.get("xa", 4):
                    self.prologue2()
            if j < 6:
                p(f"s_add_u32 {sU[2]}, {sU[2]}, 1")
                p(f"s_cmp_eq_u32 {sU[2]}, 7")
                p(f"s_cselect_b32 {sU[2]}, 0, {sU[2]}")
                p(f"s_add_u32 {sU[7]}, {sU[7]}, 1")
                p(f"s_cmp_eq_u32 {sU[7]}, 7")
                p(f"s_cselect_b32 {sU[7]}, 0, {sU[7]}")

    def prologue2(self):
        p = self.p
        p(f"s_mul_i32 {sHB}, {stb}, {28 * KB}")
        p(f"s_add_u32 {sHB}, {sHB}, {G_O}")
        p(f"s_mul_i32 {sXB}, {sxs}, {28 * KB}")
        p(f"s_add_u32 {sXB}, {sXB}, {G_X}")
        p(f"s_mul_i32 {sSTB}, {stb}, {7 * KB}")
        p(f"s_add_u32 {sSTB}, {sSTB}, {G_ST}")
        p(f"s_mov_b32 {slim}, 40000")
        p(f"v_add_u32 {vS16}, {L_S}, {vL16}")
        p(f"v_and_b32 v13, 3, {vLane}")
        p("v_lshlrev_b32 v13, 3, v13")
        p(f"v_bfe_u32 v14, {vLane}, 4, 1")
        p("v_lshl_add_u32 v13, v14, 5, v13")
        p(f"v_bfe_u32 v14, {vLane}, 2, 2")
        p("v_lshl_add_u32 v13, v14, 6, v13")
        p(f"v_lshrrev_b32 v14, 5, {vLane}")
        p(f"v_lshl_add_u32 {vTrA}, v14, 8, v13")
        p(f"v_add_u32 {vTrB}, {L_WQ}, {vTrA}")
        p("v_lshl_add_u32 v62, v14, 9, v13")
        p(f"v_add_u32 v63, {L_WQ}, v62")
        p(f"v_and_b32 v13, 31, {vLane}")
        p("v_lshrrev_b32 v14, 3, v13")
        p("v_lshlrev_b32 v14, 10, v14")
        p("v_and_b32 v15, 7, v13")
        p("v_lshl_add_u32 v14, v15, 7, v14")
        p(f"v_add_u32 v14, {sU[1]}, v14")
        p("v_bfe_u32 v13, v13, 1, 3")
        p(f"v_lshrrev_b32 v15, 5, {vLane}")
        p("v_xor_b32 v13, v13, v15")
        for q in range(4):
            p(f"v_xor_b32 v15, {2 * q}, v13")
            p(f"v_lshl_add_u32 v{20 + q}, v15, 4, v14")
        p(f"v_lshrrev_b32 v15, 5, {vLane}")
        p("v_xor_b32 v13, v13, v15")
        p("v_lshl_add_u32 v14, v15, 3, v14")
        p(f"s_min_u32 s6, {sh}, 13")
        p("s_lshr_b32 s7, s6, 1")
        p(f"s_sub_i32 s7, s7, {sU[6]}")
        p("s_cmp_lt_i32 s7, 0")
        p(f"s_cselect_b32 {sU[8]}, 7, 0")
        p(f"s_add_i32 s7, s7, {sU[8]}")
        p("s_lshl_b32 s7, s7, 12")
        p("v_add_u32 v14, s7, v14")
        p("s_and_b32 s6, s6, 1")
        p("s_lshl_b32 s6, s6, 2")
        p("v_xor_b32 v13, s6, v13")
        for a in range(4):
            p(f"v_xor_b32 v15, {a}, v13")
            p(f"v_lshl_add_u32 v{24 + a}, v15, 4, v14")
        p(f"s_cmp_lt_u32 {sh}, 14")
        p(f"s_cselect_b32 s18, {448 * 448 * 2}, 0")
        p(f"s_cselect_b32 s22, {448 * 1792 * 2}, 0")
        p(f"s_cselect_b32 s26, {448 * 1792 * 2}, 0")
        for base, src, size in ((16, 44, None), (20, 48, None), (24, 50, None), (28, 46, 2048 * 896),
                                (32, 52, WS_BYTES)):
            p(f"s_mov_b32 s{base}, s{src}")
            p(f"s_mov_b32 s{base + 1}, s{src + 1}")
            if size is not None:
                p(f"s_mov_b32 s{base + 2}, {size}")
            p(f"s_mov_b32 s{base + 3}, 0x00020000")
        p(f"s_mul_i32 s6, {sg}, {G_STRIDE}")
        p(f"s_add_u32 s6, s6, {WS_G}")
        p("s_add_u32 s36, s52, s6")
        p("s_addc_u32 s37, s53, 0")
        p(f"s_mov_b32 s38, {G_STRIDE}")
        p("s_mov_b32 s39, 0x00020000")

    def kv_clear(self):
        p = self.p
        p(f"s_lshl_b32 {sT0}, {sh}, 15")
        p(f"s_lshl_b32 {sT1}, s3, 9")
        p(f"s_add_u32 {sT0}, {sT0}, {sT1}")
        p(f"s_add_u32 {sT0}, {sT0}, {WS_KV}")
        p(f"s_add_u32 {sT1}, {sT0}, {KV_L}")
        p("v_mov_b32 v36, -1\nv_mov_b32 v37, -1")
        p(f"v_lshlrev_b32 v11, 3, {vLane}")
        p(f"buffer_store_dwordx2 v[36:37], v11, {SWS}, {sT0} offen sc1", "pa")
        p(f"buffer_store_dwordx2 v[36:37], v11, {SWS}, {sT1} offen sc1", "pa")

    def wqkv_setup(self):
        p = self.p
        p(f"s_mul_i32 s0, {sh}, 56")
        p(f"s_mul_i32 s1, {sw}, {16 * 2688}")
        p("s_add_u32 s0, s0, s1")
        p(f"s_lshl_b32 s1, {sw}, 10")
        p(f"s_mov_b32 {sU[8]}, {sU[6]}")
        p(f"s_mov_b32 {sU[4]}, {sU[6]}")

    def wqkv_item(self, m, lbase, tag):
        p = self.p
        cnt = sU[8] if m == 2 else sU[6]
        with self.cap() as c:
            p(f"s_lshl_b32 {sU[7]}, {cnt}, 12")
            p(f"s_add_u32 {sU[7]}, {sU[7]}, s1")
            p(f"s_add_u32 m0, {sU[7]}, {lbase}")
            p(f"s_mul_i32 {sU[7]}, {cnt}, {64 * 2688}")
            p(f"s_add_u32 {sU[7]}, {sU[7]}, s0")
            if m:
                p(f"s_add_u32 {sU[7]}, {sU[7]}, {896 * m}")
            p(f"buffer_load_dwordx4 v6, {SQ}, {sU[7]} offen lds", tag)
            p(f"s_add_u32 {cnt}, {cnt}, 1")
            p(f"s_cmp_eq_u32 {cnt}, 7")
            p(f"s_cselect_b32 {cnt}, 0, {cnt}")
        return c.ins

    def group_base(self, dst, base):
        p = self.p
        with self.cap() as c:
            p(f"s_lshl_b32 {sT4}, {sU[4]}, 12")
            p(f"v_add_u32 {dst}, {sT4}, {base}")
            p(f"s_add_u32 {sU[4]}, {sU[4]}, 1")
            p(f"s_cmp_eq_u32 {sU[4]}, 7")
            p(f"s_cselect_b32 {sU[4]}, 0, {sU[4]}")
        return c.ins

    def wo_items(self):
        p = self.p
        items = []
        for u in range(7):
            with self.cap() as c:
                if u == 0:
                    p(f"s_lshl_b32 {sU[9]}, {sh}, 6")
                    p(f"s_mul_i32 {sU[7]}, {sw}, {16 * 896}")
                    p(f"s_add_u32 {sU[9]}, {sU[9]}, {sU[7]}")
                p(f"s_add_u32 m0, s1, {L_WO + 4 * u * KB}")
                p(f"s_add_u32 {sU[7]}, {sU[9]}, {64 * u * 896}")
                p(f"buffer_load_dwordx4 v7, {SO}, {sU[7]} offen lds", "wo")
            items.append(c.ins)
        return items

    def consts(self):
        p = self.p
        p(f"s_mov_b32 {sONES}, 0x3f803f80")
        p(f"s_mov_b32 {sLOG2E}, 0x3fb8aa3b")
        p(f"s_mov_b32 {sEPS6}, 0x358637bd")
        p(f"s_mov_b32 {sHI}, 0xffff0000")
        p("s_mov_b32 s52, 0x10000000")
        p("s_mov_b32 s53, 0x10000000")
        p("s_mov_b32 s54, 0")
        p("s_mov_b32 s55, -1")

    def ready(self, base):
        p = self.p
        p(f"s_lshl_b32 {sT2}, {sh}, 4")
        p(f"s_add_u32 {sT2}, {sT2}, s2")
        p(f"s_lshl_b32 {sT2}, {sT2}, 7")
        p(f"s_add_u32 {sT2}, {sT2}, {base}")
        p(f"s_cmp_eq_u32 {sw}, 0")
        p(f"s_cselect_b32 {sT2}, {sT2}, {OOB}")
        p(f"s_add_u32 {sT5}, {sE}, {sfast}")
        p(f"s_add_u32 {sT5}, {sT5}, 1")
        p(f"v_mov_b32 v14, {sT5}")
        p("s_mov_b64 exec, 1")
        p(f"buffer_store_dword v14, {vL16}, {SWS}, {sT2} offen sc1")
        p("s_mov_b64 exec, -1")

    def pack_b_loads(self):
        p = self.p
        p(f"s_mul_i32 {sT0}, s5, {16 * 3584}")
        p(f"s_lshl_b32 {sT1}, {sh}, 8")
        p(f"s_add_u32 {sT0}, {sT0}, {sT1}")
        p(f"s_lshl_b32 {sT1}, s4, 7")
        p(f"s_add_u32 {sT0}, {sT0}, {sT1}")
        p(f"buffer_load_dwordx4 a[40:43], v8, {S1}, {sT0} offen")
        p(f"buffer_load_dwordx4 a[44:47], v8, {S1}, {sT0} offen offset:64")
        p(f"s_mul_i32 {sU[1]}, {sh}, 112")
        p(f"s_mul_i32 {sT1}, s4, 56")
        p(f"s_add_u32 {sU[1]}, {sU[1]}, {sT1}")
        p(f"s_add_u32 {sU[1]}, {sU[1]}, s5")
        p(f"s_lshl_b32 {sU[1]}, {sU[1]}, 10")
        p(f"s_add_u32 {sU[1]}, {sU[1]}, {WS_P1}")
        p(f"s_cmp_lt_u32 {sh}, 14")
        p(f"s_cselect_b32 s22, {WS_BYTES}, 0")
        p("s_mov_b32 s20, s32\ns_mov_b32 s21, s33")
        self.tr_addrs("v4", "v5")

    def pack_c_loads(self):
        p = self.p
        p(f"s_and_b32 {sU[5]}, {srq}, 1")
        p(f"s_lshl_b32 {sU[5]}, {sU[5]}, 6")
        p(f"s_add_u32 {sU[5]}, {sU[5]}, s3")
        p(f"s_mul_i32 {sU[0]}, {sU[5]}, {16 * 896}")
        p(f"s_lshl_b32 {sU[2]}, {scb}, 7")
        p(f"s_add_u32 {sU[0]}, {sU[0]}, {sU[2]}")
        p(f"s_mul_i32 {sU[2]}, {scb}, 112")
        p(f"s_add_u32 {sU[2]}, {sU[2]}, {sU[5]}")
        p(f"s_lshl_b32 {sU[2]}, {sU[2]}, 11")
        p(f"s_add_u32 {sU[2]}, {sU[2]}, {WS_P2}")
        p(f"s_cmp_lt_u32 {sU[5]}, 112")
        p(f"s_cselect_b32 {sU[0]}, {sU[0]}, {OOB}")
        p(f"s_cselect_b32 {sU[2]}, {sU[2]}, {OOB}")
        p(f"buffer_load_dwordx4 a[48:51], v7, {S2}, {sU[0]} offen")
        p(f"buffer_load_dwordx4 a[52:55], v7, {S2}, {sU[0]} offen offset:64")

    def pack_b_items(self):
        items = [self.transpose_block(lambda lo, k, r=r: A(r + lo, k), "v4", "v5") for r in (40, 44)]
        items.append([Ins(f"buffer_store_dwordx4 a[40:43], {vL16}, {SPK}, {sU[1]} offen sc1", "pb"),
                      Ins(f"s_add_u32 {sU[1]}, {sU[1]}, {28 * KB}")])
        items.append([Ins(f"buffer_store_dwordx4 a[44:47], {vL16}, {SPK}, {sU[1]} offen sc1", "pb")])
        return items

    def pack_c_items(self):
        items = [self.transpose_block(lambda lo, k, r=r: A(r + lo, k), "v4", "v5") for r in (48, 52)]
        items.append([Ins(f"buffer_store_dwordx4 a[48:51], {vL16}, {SPK}, {sU[2]} offen sc1", "pb")])
        items.append([Ins(f"buffer_store_dwordx4 a[52:55], {vL16}, {SPK}, {sU[2]} offen offset:1024 sc1", "pb")])
        return items

    def dma_items(self, vaddr, srd, first, count, tag, stm):
        p = self.p
        items = []
        for u in range(count):
            with self.cap() as c:
                if u == 0:
                    p(f"s_mul_i32 {stm}, {sw}, {count * KB}")
                if u % 4 == 0:
                    p(f"s_add_u32 m0, {stm}, {(first + u) * KB}")
                p(f"buffer_load_dwordx4 {vaddr}, {srd}, m0 offen offset:{(u % 4) * KB} sc1 lds", tag)
            items.append(c.ins)
        return items

    def w1_items(self):
        p = self.p
        items = []
        for s in range(28):
            with self.cap() as c:
                if s == 0:
                    p(f"s_lshl_b32 s24, {sh}, 2")
                    p(f"s_add_u32 s24, s24, {sw}")
                    p(f"s_mul_i32 s24, s24, {28 * KB}")
                    p(f"s_add_u32 s24, s24, {WS_P1}")
                elif s % 4 == 0:
                    p(f"s_add_u32 s24, s24, {4 * KB}")
                p(f"buffer_load_dwordx4 {w1reg(s)}, {vL16}, {SPK}, s24 offen offset:{(s % 4) * KB} sc1", "w1")
            items.append(c.ins)
        return items

    def mall_items(self):
        p = self.p
        with self.cap() as c:
            p(f"s_lshl_b32 {sT0}, {sh}, 6")
            p(f"s_add_u32 {sT0}, {sT0}, s3")
            p(f"s_lshr_b32 {sT1}, {sT0}, 1")
            p(f"s_mul_i32 {sT1}, {sT1}, 2688")
            p(f"s_and_b32 {sT2}, {sT0}, 1")
            p(f"s_mul_i32 {sT2}, {sT2}, 384")
            p(f"s_add_u32 {sT2}, {sT2}, {sT1}")
            p("s_mov_b64 exec, 0xf")
            p(f"buffer_load_dword v10, v9, {SQ}, {sT2} offen", "touch")
            p(f"s_mul_i32 {sT0}, {sT0}, 448")
            p(f"buffer_load_dword v10, v9, {SO}, {sT0} offen", "touch")
            p("s_mov_b64 exec, -1")
        return [c.ins]

    def touch_items(self, base, lines, per=16):
        p = self.p
        with self.cap() as c:
            p(f"s_mul_i32 {sU[7]}, {srh}, {per}")
            p(f"s_add_u32 {sU[7]}, {sU[7]}, {sh}")
            p(f"s_lshl_b32 {sU[7]}, {sU[7]}, 2")
            p(f"s_add_u32 {sU[7]}, {sU[7]}, {sw}")
            p(f"s_mul_i32 {sU[7]}, {sU[7]}, {lines * 128}")
            p(f"s_add_u32 {sU[7]}, {sU[7]}, {base}")
            assert lines < 32
            p(f"s_mov_b64 exec, {(1 << lines) - 1}")
            p(f"buffer_load_dword v10, v9, {SG}, {sU[7]} offen", "touch")
            p("s_mov_b64 exec, -1")
        return [c.ins]

    def startup(self):
        p = self.p
        p(f"s_getreg_b32 {sfast}, hwreg(HW_REG_XCC_ID, 0, 4)")
        self.wqkv_setup()
        for u in range(7):
            p.add(self.wqkv_item(1, L_WK, f"g{u}"))
        p.wait_vm("x")
        p("s_waitcnt lgkmcnt(0)")
        self.consts()
        self.stamp("x_landed")
        for s in range(28):
            p(f"ds_read_b128 {V(64 + 4 * s)}, v{20 + (s & 3)} offset:{(s >> 2) * 4096}")
        for a in range(4):
            p(f"ds_read_b64 {A(56 + 2 * a, 2)}, v{24 + a}")
        for r in range(52, 56):
            p(f"v_mov_b32 v{r}, 0")
        with self.cap() as c:
            for i in range(112):
                p(f"v_dot2c_f32_bf16 v{52 + (i & 1)}, {sONES}, v{64 + i}")
                p(f"v_dot2c_f32_bf16 v{54 + (i & 1)}, v{64 + i}, v{64 + i}")
            p("v_add_f32 v52, v52, v53")
            p("v_add_f32 v54, v54, v55")
            self.both_halves("v52", "v54", None)
            self.stats_finish("v52", "v53", "v56", "v58")
            p("v_rsq_f32 v58, v58")
            p("v_mul_f32_e64 v56, -v56, v58")
            p("v_mov_b32 v59, v58")
            p("v_mov_b32 v57, v56")
            for i in range(0, 112 if not self.opt.get("noln") else 8, 2):
                t = 16 + 4 * ((i >> 1) & 1)
                for k in range(2):
                    p(f"v_lshlrev_b32 v{t + 2 * k}, 16, v{64 + i + k}")
                    p(f"v_and_b32 v{t + 2 * k + 1}, {sHI}, v{64 + i + k}")
                for k in range(2):
                    p(f"v_pk_fma_f32 {V(t + 2 * k, 2)}, {V(t + 2 * k, 2)}, v[58:59], v[56:57]")
                for k in range(2):
                    p(f"v_cvt_pk_bf16_f32 v{64 + i + k}, v{t + 2 * k}, v{t + 2 * k + 1}")
        main = groups(c.ins, 4)
        n = len(main)
        seq = [self.wqkv_item(2, L_WV, f"g{u}") for u in range(7)]
        with self.cap() as c1:
            self.kv_clear()
        with self.cap() as cb:
            p.wait_ds()
            p("s_barrier")
        gk = n * self.opt.get("gk", 40) // 100
        late = [c1.ins] + (self.mall_items() if self.opt.get("mall", 1) else [])
        self.raws = []
        for f in (self.pack_b_loads, self.pack_c_loads):
            with self.cap() as c:
                f()
            self.raws.append(c.ins)
        if self.opt.get("rawln", 0):
            late += self.raws
            self.raws = []
        p.add(spread(main, [([cb.ins], 1, 1), (seq, 2, gk), (late, gk + 4, n - 2)]))
        self.stamp("ln_done")

    def phi(self, acc, out, tmp, scale=None, pk=None):
        p = self.p
        for r0 in range(0, 16, 2):
            rr = (r0, r0 + 1)
            a = {r: f"v{acc + r}" for r in rr}
            t = {r: f"v{tmp + (r & 3)}" for r in rr}
            a2, t2 = V(acc + r0, 2), V(tmp + (r0 & 3), 2)
            if pk is not None:
                k2 = V(pk, 2)
                if scale is None:
                    p(f"v_pk_add_f32 {a2}, {a2}, {k2} op_sel_hi:[1,0]")
                else:
                    sc, hi = scale(r0)
                    p(f"v_pk_fma_f32 {a2}, {a2}, {sc}, {k2} op_sel_hi:[1,{hi},0]")
                p(f"v_pk_mul_f32 {t2}, {a2}, {k2} op_sel:[0,1] op_sel_hi:[1,1]")
            else:
                for r in rr:
                    if scale is None:
                        p(f"v_add_f32 {a[r]}, {sEPS6}, {a[r]}")
                    else:
                        p(f"v_fma_f32 {a[r]}, {a[r]}, {scale(r)}, {sEPS6}")
                for r in rr:
                    p(f"v_mul_f32 {t[r]}, {sLOG2E}, {a[r]}")
            for r in rr:
                p(f"v_exp_f32 {t[r]}, {t[r]} clamp")
            for r in rr:
                p(f"v_max_f32 {a[r]}, {sEPS6}, {a[r]}")
            if pk is not None:
                p(f"v_pk_add_f32 {a2}, {a2}, {t2}")
            else:
                for r in rr:
                    p(f"v_add_f32 {a[r]}, {a[r]}, {t[r]}")
            p(f"v_cvt_pk_bf16_f32 v{out + (r0 >> 1)}, {a[r0]}, {a[r0 + 1]}")

    def v_pack(self):
        p = self.p
        for r in range(8):
            p(f"v_cvt_pk_bf16_f32 v{32 + r}, v{32 + 2 * r}, v{33 + 2 * r}")
        p(f"s_mov_b64 exec, {sM28}")
        for r in range(8):
            p(f"v_mov_b32 v{32 + r}, {sONES}")
        p("s_mov_b64 exec, -1")

    def kv_addrs(self, layer, a0, a1, a2):
        p = self.p
        p(f"s_lshl_b32 {sT0}, {sw}, 10")
        p(f"v_add_u32 {a0}, {sT0}, {vS16}")
        p(f"s_lshl_b32 {sT0}, {sw}, 12")
        p(f"v_add_u32 {a1}, {sT0}, {vS16}")
        p(f"v_lshlrev_b32 {a2}, 3, {vLane}")
        p(f"s_lshl_b32 {sT0}, {sh}, 15")
        p(f"s_lshl_b32 {sT1}, {sw}, 9")
        p(f"s_add_u32 {sT0}, {sT0}, {sT1}")
        p(f"s_add_u32 s6, {sT0}, {WS_KV + layer * KV_L}")
        p(f"s_lshl_b32 {sT1}, {sg}, 1")
        p(f"s_add_u32 {sT1}, {sT1}, {srh}")
        p(f"s_lshl_b32 {sT1}, {sT1}, 11")
        p(f"s_add_u32 s7, {sT1}, s6")

    def kv_publish(self, kvacc, a0, a1, a2):
        p = self.p
        p(f"{MFMA} {kvacc(0, 16)}, {V(16)}, {V(32)}, 0")
        p(f"{MFMA} {kvacc(0, 16)}, {V(20)}, {V(36)}, {kvacc(0, 16)}")
        for q in range(4):
            p(f"ds_write_b128 {a0}, {kvacc(4 * q, 4)} offset:{S_KVP + q * 4096}")
        p.wait_ds()
        p("s_barrier")
        for u in range(4):
            p(f"ds_read_b128 {V(32 + 4 * u)}, {a1} offset:{S_KVP + u * 1024}")
        for r in (0, 2):
            p(f"v_pk_add_f32 {V(32 + r, 2)}, {V(32 + r, 2)}, {V(36 + r, 2)}")
        for r in (0, 2):
            p(f"v_pk_add_f32 {V(40 + r, 2)}, {V(40 + r, 2)}, {V(44 + r, 2)}")
        for r in (0, 2):
            p(f"v_pk_add_f32 {V(32 + r, 2)}, {V(32 + r, 2)}, {V(40 + r, 2)}")
        p("v_cvt_pk_bf16_f32 v28, v32, v33")
        p("v_cvt_pk_bf16_f32 v29, v34, v35")
        p(f"buffer_store_dwordx2 v[28:29], {a2}, {SWS}, s7 offen sc1", "kvpub")

    def o_addrs(self):
        p = self.p
        p(f"s_mul_i32 {sT0}, {sh}, 7")
        p(f"v_lshrrev_b32 v16, 5, {vLane}")
        p(f"v_add_u32 v16, {sT0}, v16")
        p(f"v_and_b32 v17, 31, {vLane}")
        p("v_lshlrev_b32 v17, 4, v17")
        p("v_and_b32 v18, 1, v16")
        p("v_lshl_add_u32 v17, v18, 9, v17")
        p("v_lshrrev_b32 v16, 1, v16")
        for j in range(4):
            p(f"v_add_u32 v18, {j}, v16")
            p("v_and_b32 v19, 1, v18")
            p("v_lshrrev_b32 v18, 1, v18")
            p("v_lshl_add_u32 v18, v18, 10, v17")
            p(f"v_lshl_add_u32 v{56 + j}, v19, 3, v18")
        p(f"s_lshr_b32 {sT0}, {sw}, 1")
        p(f"s_lshl_b32 {sT0}, {sT0}, 10")
        p(f"s_and_b32 {sT1}, {sw}, 1")
        p(f"s_lshl_b32 {sT1}, {sT1}, 3")
        p(f"s_add_u32 {sT0}, {sT0}, {sT1}")
        p(f"v_add_u32 v60, {sT0}, {vS16}")
        p(f"s_lshl_b32 {sT0}, {stb}, 7")
        p(f"s_lshl_b32 {sT1}, {sh}, 2")
        p(f"s_add_u32 {sT0}, {sT0}, {sT1}")
        p(f"s_add_u32 s3, {sT0}, {G_FO}")

    def gather_items(self, G, a2):
        p = self.p
        items = []
        for u in range(0, 16, 2):
            with self.cap() as c:
                p(f"s_add_u32 {sT5}, {sg}, {u // 2}")
                p(f"s_and_b32 {sT5}, {sT5}, 7")
                p(f"s_lshl_b32 {sT5}, {sT5}, 12")
                p(f"s_add_u32 {sT5}, {sT5}, s6")
                p(f"buffer_load_dwordx2 {V(G + 2 * u, 2)}, {a2}, {SWS}, {sT5} offen sc1")
                p(f"buffer_load_dwordx2 {V(G + 2 * u + 2, 2)}, {a2}, {SWS}, {sT5} offen offset:2048 sc1")
            items.append(c.ins)
        return items

    def kv_finish(self, layer, G, a2):
        p = self.p

        def sums():
            for r in range(16, 21):
                p(f"v_mov_b32 v{r}, 0")
            for u in range(16):
                for k in range(2):
                    p(f"v_dot2c_f32_bf16 v{16 + 2 * k}, {sT3}, v{G + 2 * u + k}")
                    p(f"v_dot2c_f32_bf16 v{17 + 2 * k}, {sT4}, v{G + 2 * u + k}")
                p(f"v_max3_u32 v20, v20, v{G + 2 * u}, v{G + 2 * u + 1}")
            p("v_cmp_eq_u32 vcc, -1, v20")
        p(f"s_mov_b32 {sT3}, 0x3f80")
        p(f"s_mov_b32 {sT4}, 0x3f800000")
        lo, lb, lp = p.label("kvspin"), p.label("kvback"), p.label("kvloop")
        if self.diag:
            p(f"s_mov_b32 s{18 + layer}, 0")
        sums()
        p(f"s_cbranch_vccnz {lo}")
        p(f"{lb}:")
        with self.cap() as c:
            p(f"{lo}:")
            p(f"s_mov_b32 {sCnt}, {slim}")
            p(f"{lp}:")
            if self.diag:
                p(f"s_add_u32 s{18 + layer}, s{18 + layer}, 1")
            for it in self.gather_items(G, a2):
                p.add(it)
            p("s_waitcnt vmcnt(0)")
            sums()
            p(f"s_cbranch_vccz {lb}")
            p(f"s_sub_u32 {sCnt}, {sCnt}, 1")
            p(f"s_cmp_lg_u32 {sCnt}, 0")
            p(f"s_cbranch_scc1 {lp}")
            p(f"s_mov_b32 {slim}, 1")
            p(f"s_branch {lb}")
        self.tail.extend(c.ins)
        self.stamp(f"kv_seen{layer}")
        p("v_cvt_pk_bf16_f32 v20, v16, v17")
        p("v_cvt_pk_bf16_f32 v21, v18, v19")
        p(f"ds_write_b64 v60, v[20:21] offset:{S_KVS}")
        p.wait_vm("wo")
        p.wait_ds()
        p("s_barrier")
        p(f"ds_read_b128 {V(24)}, {vS16} offset:{S_KVS}")
        p(f"ds_read_b128 {V(28)}, {vS16} offset:{S_KVS + 1024}")
        p(f"{MFMA} {V(32, 16)}, {V(24)}, {V(48)}, 0")
        p(f"{MFMA} {V(32, 16)}, {V(28)}, {V(52)}, {V(32, 16)}")
        p("v_mov_b32 v16, v44")
        p("v_mov_b32 v17, v44")
        p("v_permlane32_swap_b32 v16, v17")
        p(f"v_add_f32 v16, {sEPS6}, v17")
        p("v_rcp_f32 v16, v16")
        for r in range(0, 16, 2):
            p(f"v_pk_mul_f32 {V(32 + r, 2)}, {V(32 + r, 2)}, v[16:17] op_sel_hi:[1,0]")
        for r in range(8):
            p(f"v_cvt_pk_bf16_f32 v{20 + r}, v{32 + 2 * r}, v{33 + 2 * r}")
        st = [f"buffer_store_dwordx2 {V(20 + 2 * j, 2)}, v{56 + j}, {SG}, {sHB} offen" for j in range(3)]
        st += ["s_mov_b32 exec_hi, 0", f"buffer_store_dwordx2 {V(26, 2)}, v59, {SG}, {sHB} offen",
               "s_mov_b64 exec, -1"]
        self.publish(st)
        self.flag("s3", 1 + layer)
        if layer == 0:
            self.ready(WS_RB)
        self.stamp(f"o_pub{layer}")

    def single_pass(self, acc, frag, nfrag, vaddr, off, second, areg, first, last, transposed, zero):
        rd = lambda s: self.trread(frag(s % nfrag, 0), frag(s % nfrag, 2), vaddr, off + s * KB, second)
        head = []
        for s in range(first, first + nfrag - 1):
            head += rd(s)
        main = []
        for s in range(first, last):
            w, a = frag(s % nfrag, None), areg(s)
            c = 0 if (zero and s == first) else acc
            g = [Ins(f"{MFMA} {acc}, {w}, {a}, {c}" if transposed else f"{MFMA} {acc}, {a}, {w}, {c}")]
            if s + nfrag - 1 < last:
                g += rd(s + nfrag - 1)
            main.append(g)
        return head, main

    def qkv0(self):
        p = self.p
        rd = []
        for s in range(28):
            f = (s % 3) * 8
            va = f"v{54 + ((s >> 2) & 1)}"
            pre = []
            if s % 4 == 0:
                pre = self.group_base(va, "v62") + [Pseudo("wait_vm", f"g{s >> 2}"), Ins("s_barrier")]
            rd.append((pre + self.trread(A(f, 2), A(f + 2, 2), va, L_WK + (s & 3) * KB, 256),
                       self.trread(A(f + 4, 2), A(f + 6, 2), va, L_WV + (s & 3) * KB, 256)))
        head = rd[0][0] + rd[0][1] + rd[1][0] + rd[1][1]
        main = []
        for s in range(28):
            f = (s % 3) * 8
            for k in range(2):
                acc = V(16 + 16 * k, 16)
                g = [Ins(f"{MFMA} {acc}, {V(64 + 4 * s)}, {A(f + 4 * k)}, {acc if s else 0}")]
                if s + 2 < 28:
                    g += rd[s + 2][k]
                main.append(g)
        with self.cap() as c:
            self.kv_addrs(0, "v60", "v61", "v11")
            p(f"s_lshl_b32 {sT2}, {sh}, 11")
            p(f"v_and_b32 v56, 15, {vLane}")
            p(f"v_bfe_u32 v57, {vLane}, 4, 1")
            p("v_lshlrev_b32 v58, 7, v56")
            p(f"v_add_u32 v58, {sT2}, v58")
            p(f"s_lshl_b32 {sT2}, {sg}, 8")
            p("v_lshlrev_b32 v56, 11, v56")
            p("v_lshl_add_u32 v56, v57, 7, v56")
            p(f"v_add_u32 v56, {sT2}, v56")
            p(f"v_cndmask_b32 v58, v58, v56, {sMPAD}")
            p(f"s_mov_b32 {sU[3]}, {WS_RA}")
        setup = [c.ins[:13], c.ins[13:]]
        with self.cap() as c1:
            self.poll_load("v58", SWS, sU[3], 1, 59)
        with self.cap() as c2:
            p.wait_vm("pa")
            p("s_barrier")
            self.ready(WS_RA)
        gr = self.opt.get("gr", 6)
        self.touch = {0: [], 1: [], 2: [], 3: [], 4: []}
        self.touch[self.opt.get("to", 3)] += self.touch_items(G_O, 14)
        self.touch[self.opt.get("tx", 3)] += self.touch_items(G_X, 18)
        wq = [self.wqkv_item(0, L_WQ, "wq") for u in range(7)]
        wo = self.wo_items()
        no = self.opt.get("no", 0)
        self.wo = wo[no:]
        items = (self.raws + wq) if self.opt.get("rawfirst", 0) else (wq + self.raws)
        p.add(head)
        self.stamp("kv_start0")
        p.add(spread(main, [([c2.ins], gr, gr), (items + wo[:no] + self.touch[1], gr + 1, 52), (setup, 1, gr - 1)]))
        self.stamp("kv_gemm0")
        p.add(c1.ins)
        p(f"v_mov_b32 v52, {sEPS6}")
        p(f"v_mov_b32 v53, {sLOG2E}")
        self.phi(16, 16, 48, pk=52)
        self.v_pack()
        p.wait_vm("wq")
        self.kv_publish(lambda lo, k: A(24 + lo, k), "v60", "v61", "v11")
        self.stamp("kv_pub0")
        p("v_mov_b32 v13, v63")
        afrag = lambda i, lo: A(4 * i) if lo is None else A(4 * i + lo, 2)

        def rd(s):
            va = f"v{14 + ((s >> 2) & 1)}"
            pre = self.group_base(va, "v13") if s % 4 == 0 else []
            return pre + self.trread(afrag(s % 4, 0), afrag(s % 4, 2), va, (s & 3) * KB, 256)
        head = rd(0) + rd(1) + rd(2)
        main = []
        for s in range(28):
            g = [Ins(f"{MFMA} {V(48, 16)}, {afrag(s % 4, None)}, {V(64 + 4 * s)}, {V(48, 16) if s else 0}")]
            if s + 3 < 28:
                g += rd(s + 3)
            main.append(g)
        p.add(head)
        self.qmain = main
        self.apoll_end("v58", SWS, sU[3], 1, 1, 59)
        p(f"v_cmp_ne_u32 vcc, {sfast}, v59")
        p("s_cmp_eq_u32 vcc_hi, 0")
        self.stamp("rb_seen")
        self.stamp_flush()
        p("s_cbranch_scc1 L_slow" if self.force_slow else "s_cbranch_scc0 L_slow")

    def take(self, n):
        out, self.bulk = self.bulk[:n], self.bulk[n:]
        return out

    def q0(self):
        p = self.p
        main = [list(g) for g in self.qmain]
        with self.cap() as c:
            p(f"v_mov_b32 v32, {sEPS6}")
            p(f"v_mov_b32 v33, {sLOG2E}")
            self.phi(48, 48, 36, pk=32)
            p(f"v_cndmask_b32 v54, v54, 0, {sMPAD}")
            p(f"v_cndmask_b32 v55, v55, 0, {sMPAD}")
            self.o_addrs()
        tail = groups(c.ins, 6)
        gg = self.opt.get("gg", 14)
        self.bulk = self.w1_items() + self.w2_items()
        packs = self.pack_b_items() + self.pack_c_items()
        nw = self.opt.get("nw", 0)
        p.add(spread(main + tail, [(packs + self.wo[:nw] + self.touch[2], 0, gg - 1),
                                   (self.gather_items(64, "v11"), gg, gg + 8),
                                   (self.wo[nw:], gg + 9, len(main) + len(tail) - 1)]))
        for it in self.touch[3]:
            p.add(it)
        self.stamp("q_done0")

    def make_selector(self):
        p = self.p
        p("v_mov_b32 v15, 0")
        p("s_mov_b32 exec_lo, 0x00100001")
        p("s_mov_b32 exec_hi, 0x00100001")
        p(f"v_mov_b32 v15, {sONES}")
        p("s_mov_b64 exec, -1")
        for r in range(4):
            p(f"v_accvgpr_write_b32 a{32 + r}, v15")

    def colsum_qkv(self):
        p = self.p
        p(f"s_min_u32 {sU[0]}, {sw}, 2")
        p(f"s_mul_i32 {sU[0]}, {sU[0]}, {28 * KB}")
        p(f"v_add_u32 v60, {sU[0]}, {vTrA}")
        rd = lambda s: self.trread(V(32 + 4 * (s % 4), 2), V(34 + 4 * (s % 4), 2), "v60", s * KB)
        p.add(rd(0) + rd(1) + rd(2))
        self.make_selector()
        for s in range(28):
            p(f"{MFMA16} {A(36)}, {A(32)}, {V(32 + 4 * (s % 4))}, {A(36) if s else 0}")
            if s + 3 < 28:
                p.add(rd(s + 3))
        p(f"s_lshl_b32 {sU[0]}, {sw}, 9")
        p(f"v_lshlrev_b32 v60, 3, {vLane}")
        p(f"v_add_u32 v60, {L_S + S_STAT}, v60")
        p(f"v_add_u32 v61, {sU[0]}, v60")
        p("v_accvgpr_read_b32 v40, a36")
        self.split_words("v40", "v42", "v43", "v41", False, False)
        p("ds_write_b64 v61, v[42:43]")

    def colsum_qkv_fetch(self):
        p = self.p
        p(f"v_lshlrev_b32 v13, 3, {vLane}")
        p(f"v_add_u32 v13, {L_S + S_STAT}, v13")
        p(f"ds_read_b64 {V(vCSQ + 2, 2)}, v13")
        p(f"ds_read_b64 {V(vCSQ + 4, 2)}, v13 offset:512")
        p(f"ds_read_b64 {V(vCSQ, 2)}, v13 offset:1024")

    def colsum_w1_items(self):
        p = self.p
        items = [[Ins(f"{MFMA16} {A(36)}, {A(32)}, {w1reg(s)}, {A(36) if s else 0}")] for s in range(28)]
        with self.cap() as c:
            p("v_accvgpr_read_b32 v13, a36")
            self.split_words("v13", f"v{vCS1}", f"v{vCS1 + 1}", "v15", False, False)
        items.append(c.ins)
        return items

    def qkv1(self):
        p = self.p
        p(f"v_min_u32 v13, 27, {vLane}")
        p("v_lshlrev_b32 v13, 2, v13")
        p(f"s_lshl_b32 {sT0}, {stb}, 7")
        p(f"s_add_u32 {sT0}, {sT0}, {G_FX}")
        WF = [152, 156, 160, 164, 168, 172]

        def wf(s, k):
            r = WF[3 * (s % 2) + k]
            if k == 2:
                return self.trread(V(r, 2), V(r + 2, 2), vTrB, s * KB)
            return self.trread(V(r, 2), V(r + 2, 2), vTrA, (L_WK, L_WV)[k] + s * KB)
        p.add(wf(0, 0) + wf(0, 1) + wf(0, 2))
        self.poll("v13", SG, sT0, 2)
        self.stamp("x2_seen")
        RING, NR = 96, 14

        def ld(s):
            q = sub()
            if s % 4 == 0:
                q(f"s_add_u32 s4, {sXB}, {s * KB}")
            q(f"buffer_load_dwordx4 {V(RING + 4 * (s % NR))}, {vL16}, {SG}, s4 offen offset:{(s % 4) * KB} sc1")
            return q.ins
        LEAD = self.opt.get("lead", 6)
        for s in range(LEAD):
            p.add(ld(s))
        stl = [[Ins(f"buffer_load_dwordx4 {V(64 + 4 * u)}, {vL16}, {SG}, {sSTB} offen offset:{u * KB} sc1")]
               for u in range(2)]
        with self.cap() as st:
            for i in range(2, 7):
                p(f"v_add_f32 v{64 + (i & 1)}, v{64 + (i & 1)}, v{64 + i}")
            p("v_add_f32 v64, v64, v65")
            self.stats_finish("v64", "v65", "v66", "v67")
            p("v_rsq_f32 v88, v67")
            self.split_words("v66", "v92", "v93", "v65", True, True)
            p("v_mov_b32 v94, 0")
            p("v_mov_b32 v95, 0")
            p("v_cvt_pk_bf16_f32 v80, v88, v88")
            p(f"v_and_b32 v64, {sHI}, v80")
            p("v_sub_f32 v64, v88, v64")
            p("v_cvt_pk_bf16_f32 v81, v64, v64")
            p(f"v_and_b32 v65, {sHI}, v81")
            p("v_sub_f32 v65, v64, v65")
            p("v_and_b32 v80, 0xffff, v80")
            p(f"v_and_or_b32 v80, v81, {sHI}, v80")
            p("v_cvt_pk_bf16_f32 v81, v65, 0")
            p("v_mov_b32 v82, 0")
            p("v_mov_b32 v83, 0")
            p(f"v_mov_b32 v84, {sONES}")
            p(f"v_cndmask_b32 v84, v84, 0, {sMPAD}")
            p("v_mov_b32 v85, v84")
            p("v_mov_b32 v86, 0")
            p("v_mov_b32 v87, 0")
            p(f"{MFMA} {V(64, 16)}, {V(80)}, {V(84)}, 0")
            self.kv_addrs(1, "v89", "v90", "v91")
            for m, dst in ((1, 80), (2, 84)):
                p(f"v_mov_b32 v{dst}, v{vCSQ + 2 * m}")
                p(f"v_mov_b32 v{dst + 1}, v{vCSQ + 2 * m + 1}")
        main = []
        for s in range(28):
            o = 3 * (s % 2)
            a = V(RING + 4 * (s % NR))
            nk = 3 if s < NR else 2
            nk2 = 3 if s + 1 < NR else 2
            for k in range(nk):
                acc = V(16 + 16 * k, 16)
                c = acc if s else 0
                g = [Ins(f"{MFMA} {acc}, {a}, {V(WF[o + k])}, {c}" if k < 2 else f"{MFMA} {acc}, {V(WF[o + k])}, {a}, {c}")]
                if s + 1 < 28 and k < nk2:
                    g += wf(s + 1, k)
                main.append(g)
        seq = [ld(s) for s in range(LEAD, 14)] + stl + [ld(s) for s in range(14, 28)]
        slots = []
        gpos = 0
        for i, it in enumerate(seq):
            s = i + LEAD - 2
            if s >= 14:
                gpos = max(gpos, 3 * (s - 14) + 2)
            slots.append(([it], gpos, gpos))
            gpos += 2
        p.add(spread(main, slots + [(groups(st.ins), 30, len(main) - 2)]))
        p(f"{MFMA} {V(16, 16)}, {V(92)}, {V(80)}, {V(16, 16)}")
        p(f"{MFMA} {V(32, 16)}, {V(92)}, {V(84)}, {V(32, 16)}")
        self.stamp("kv_gemm1")
        vfrag = lambda i, lo: V(152 + 4 * i) if lo is None else V(152 + 4 * i + lo, 2)
        head, main = self.single_pass(V(48, 16), vfrag, 4, vTrB, 0, 512, lambda s: V(RING + 4 * (s % NR)),
                                      NR, 28, True, False)
        p.add(head)
        p(f"v_mov_b32 v172, {sEPS6}")
        p(f"v_mov_b32 v173, {sLOG2E}")
        p(f"v_mov_b32 v80, v{vCSQ}")
        p(f"v_mov_b32 v81, v{vCSQ + 1}")
        self.phi(16, 16, 168, lambda r: (V(64 + r, 2), 1), pk=172)
        for r in range(0, 16, 2):
            p(f"v_pk_mul_f32 {V(32 + r, 2)}, {V(32 + r, 2)}, {V(64 + r, 2)}")
        self.v_pack()
        self.kv_publish(lambda lo, k: V(64 + lo, k), "v89", "v90", "v91")
        self.stamp("kv_pub1")
        main.append([Ins(f"{MFMA} {V(48, 16)}, {V(80)}, {V(92)}, {V(48, 16)}")])
        with self.cap() as c:
            self.phi(48, 48, 168, lambda r: (V(88, 2), 0), pk=172)
            p(f"v_cndmask_b32 v54, v54, 0, {sMPAD}")
            p(f"v_cndmask_b32 v55, v55, 0, {sMPAD}")
            self.o_addrs()
        tail = groups(c.ins, 6)
        gg = self.opt.get("gg1", 12)
        p.add(spread(main + tail, [(self.gather_items(96, "v91"), gg, gg + 8)]))
        self.stamp("q_done1")

    def wo_phase(self, layer, pre=None, streams=()):
        p = self.p
        RES = 104
        p(f"s_lshl_b32 s5, {sh}, 11")
        p(f"s_add_u32 s5, s5, {sXB}")
        if layer == 1:
            p(f"buffer_load_dwordx4 {V(RES)}, {vL16}, {SG}, s5 offen sc1")
            p(f"buffer_load_dwordx4 {V(RES + 4)}, {vL16}, {SG}, s5 offen offset:1024 sc1")
        else:
            for r in range(8):
                p(f"v_accvgpr_read_b32 v{RES + r}, a{56 + r}")
        p(f"s_lshr_b32 {sT1}, {sh}, 2")
        p(f"s_lshl_b32 {sT1}, {sT1}, 10")
        p(f"s_and_b32 {sT2}, {sh}, 3")
        p(f"s_lshl_b32 {sT2}, {sT2}, 2")
        p(f"s_add_u32 {sT1}, {sT1}, {sT2}")
        p(f"s_add_u32 s6, {sT1}, {sSTB}")
        p(f"s_lshl_b32 {sT0}, {stb}, 7")
        p(f"s_lshl_b32 {sT1}, {sh}, 3")
        p(f"s_add_u32 {sT1}, {sT0}, {sT1}")
        p(f"s_add_u32 s7, {sT1}, {G_FX}")
        p(f"s_add_u32 {sT0}, {sT0}, {G_FO}")
        p(f"v_and_b32 v13, 15, {vLane}")
        p("v_lshlrev_b32 v13, 2, v13")
        rd = [self.trread(V(48 + (s % 3) * 4, 2), V(50 + (s % 3) * 4, 2), vTrB, (L_WO - L_WQ) + s * KB)
              for s in range(28)]
        p.add(rd[0] + rd[1])
        if pre:
            pre()
        self.poll("v13", SG, sT0, 1 + layer)
        self.stamp(f"o_seen{layer}")
        RING = 64
        LEAD = self.opt.get("leadwo", 8)

        def ld(s):
            q = sub()
            if s % 4 == 0:
                q(f"s_add_u32 s4, {sHB}, {s * KB}")
            q(f"buffer_load_dwordx4 {V(RING + 4 * s)}, {vL16}, {SG}, s4 offen offset:{(s % 4) * KB} sc1")
            return q.ins
        for s in range(LEAD):
            p.add(ld(s))
            p(f"v_lshlrev_b32 v{16 + 2 * s}, 16, v{RES + s}" if s < 8 else "; -")
            p(f"v_and_b32 v{17 + 2 * s}, {sHI}, v{RES + s}" if s < 8 else "; -")
        assert LEAD >= 8
        main = []
        for s in range(28):
            g = [Ins(f"{MFMA} {V(16, 16)}, {V(48 + (s % 3) * 4)}, {V(RING + 4 * s)}, {V(16, 16)}")]
            if s + LEAD < 28:
                g += ld(s + LEAD)
            if s + 2 < 28:
                g += rd[s + 2]
            main.append(g)
        p.add(spread(main, list(streams)))
        self.stamp(f"wo_gemm{layer}")
        for r in range(8):
            p(f"v_cvt_pk_bf16_f32 v{32 + r}, v{16 + 2 * r}, v{17 + 2 * r}")
        self.publish([f"buffer_store_dwordx4 {V(32)}, {vL16}, {SG}, s5 offen",
                      f"buffer_store_dwordx4 {V(36)}, {vL16}, {SG}, s5 offen offset:1024"])
        p("v_pk_mul_f32 v[42:43], v[16:17], v[16:17]")
        for r in range(2, 16, 2):
            p(f"v_pk_fma_f32 v[42:43], {V(16 + r, 2)}, {V(16 + r, 2)}, v[42:43]")
            p(f"v_pk_add_f32 v[16:17], v[16:17], {V(16 + r, 2)}")
        p("v_add_f32 v40, v16, v17")
        p("v_add_f32 v42, v42, v43")
        self.both_halves("v40", "v42", None)
        self.publish([f"buffer_store_dword v40, {vL16}, {SG}, s6 offen"])
        self.flag("s7", 1 + 2 * layer, 2)
        self.stamp(f"x1_pub{layer}")

    def w2_items(self):
        p = self.p
        items = []
        order = list(range(8, 28)) + list(range(8))
        for i, j in enumerate(order):
            for ch in range(2):
                with self.cap() as c:
                    if i == 0 and ch == 0:
                        p(f"s_mul_i32 s25, {scb}, {224 * KB}")
                        p(f"s_lshl_b32 s26, {sw}, 12")
                        p(f"s_add_u32 s25, s25, s26")
                        p(f"s_add_u32 s25, s25, {WS_P2}")
                    if j % 2 == 0 and ch == 0:
                        p(f"s_add_u32 s26, s25, {(j >> 1) * 16 * KB}")
                    p(f"buffer_load_dwordx4 {w2reg(j, ch)}, {vL16}, {SPK}, s26 offen offset:{(j & 1) * 2048 + ch * 1024} sc1",
                      "w2")
                items.append(c.ins)
        return items

    def ffn(self, layer, pre=None, extra=None):
        p = self.p
        p(f"v_and_b32 v13, 15, {vLane}")
        p("v_min_u32 v13, 13, v13")
        p("v_lshlrev_b32 v13, 3, v13")
        p(f"v_lshrrev_b32 v14, 4, {vLane}")
        p("v_lshl_add_u32 v107, v14, 7, v13")
        p(f"s_mul_i32 {sT0}, {srh}, {112 * KB}")
        p(f"s_add_u32 {sT0}, {sT0}, {G_X - L_S}")
        p(f"v_add_u32 v110, {sT0}, {vL16}")
        p(f"s_lshl_b32 s5, {sw}, 10")
        p(f"s_add_u32 s5, s5, {L_S}")
        p(f"s_lshl_b32 {sT0}, {sh}, 13")
        p(f"s_lshl_b32 {sT1}, {sw}, 11")
        p(f"s_add_u32 s3, {sT0}, {sT1}")
        p(f"s_mul_i32 {sT0}, {srh}, {4 * 112 * KB}")
        p(f"s_add_u32 s3, s3, {sT0}")
        p(f"s_lshl_b32 {sT0}, {srh}, 10")
        p(f"s_lshl_b32 {sT1}, {sw}, 6")
        p(f"s_add_u32 {sT0}, {sT0}, {sT1}")
        p(f"s_lshl_b32 {sT1}, {sh}, 2")
        p(f"s_add_u32 {sT0}, {sT0}, {sT1}")
        p(f"s_add_u32 s2, {sT0}, {G_FH}")
        p(f"v_mov_b32 v84, v{vCS1}")
        p(f"v_mov_b32 v85, v{vCS1 + 1}")
        for r in (86, 87, 90, 91):
            p(f"v_mov_b32 v{r}, 0")
        p(f"v_and_b32 v108, 31, {vLane}")
        p("v_lshlrev_b32 v108, 4, v108")
        p(f"v_add_u32 v108, {L_S + S_STAT}, v108")
        p(f"s_and_b32 {sT0}, {sxs}, 3")
        p(f"s_lshl_b32 {sT0}, {sT0}, 9")
        p(f"v_add_u32 v109, {sT0}, v108")
        self.ffn2_setup(layer)
        p.wait_ds()
        p("s_barrier")
        if pre:
            pre()
        p(f"s_lshl_b32 {sT0}, {srh}, 9")
        p(f"s_add_u32 {sT0}, {sT0}, {G_FX}")
        self.poll("v107", SG, sT0, 1 + 2 * layer, 2)
        self.stamp(f"x1_seen{layer}")

        Q, P = 10, 2

        def quad(k):
            q = sub()
            if k % Q == 0:
                q("s_mov_b32 m0, s5")
                if k:
                    q(f"v_add_u32 v110, {Q * 4 * KB}, v110")
            else:
                q(f"s_add_u32 m0, m0, {4 * KB}")
            q(f"buffer_load_dwordx4 v110, {SG}, m0 offen sc1 lds", f"c{k // P}")
            return q.ins
        for k in range(4):
            p.add(quad(k))
        stl = [[Ins(f"buffer_load_dwordx4 {V(112 + 4 * u)}, {vL16}, {SG}, {sSTB} offen offset:{u * KB} sc1")]
               for u in range(4)]
        with self.cap() as st:
            for i in range(2, 14):
                p(f"v_add_f32 v{112 + (i & 1)}, v{112 + (i & 1)}, v{112 + i}")
            p("v_add_f32 v112, v112, v113")
            self.stats_finish("v112", "v113", "v114", "v115")
            self.split_words("v114", "v116", "v117", "v113", True, True)
            p("v_rsq_f32 v118, v115")
            p("v_sqrt_f32 v119, v115")
            p(f"v_mul_f32_e64 v118, -v118, {sLOG2E}")
            p("ds_write_b128 v109, v[116:119]", "stw")
        XF, NX, D = 48, 5, 4
        rdx = lambda n: Ins(f"ds_read_b128 {V(XF + 4 * (n % NX))}, {vS16} offset:{(n % (4 * Q)) * KB}", f"x{n}")

        def boundary(j):
            q = sub()
            q.wait_vm(f"c{j}")
            if j == 3:
                q.wait_ds("stw")
            q("s_barrier")
            return q.ins
        p.add(quad(4))
        p.add(quad(5))
        p.add(boundary(0))
        p.add([rdx(n) for n in range(D)])
        main = []
        pos = {}
        for n in range(112):
            o, s = divmod(n, 28)
            acc = V(16 + 16 * (o & 1), 16)
            g = []
            if n % 2 == 0:
                g.append(Pseudo("wait_ds", f"x{n + 1}"))
            g.append(Ins(f"{MFMA} {acc}, {w1reg(s)}, {V(XF + 4 * (n % NX))}, {acc if s else 0}"))
            m = n + D
            if m < 112:
                if m % 8 == 0:
                    g += boundary(m // 8)
                g.append(rdx(m))
                if m == 24:
                    g += [Ins(f"ds_read_b128 {V(68 + 4 * k)}, v108 offset:{k * 512}") for k in range(4)]
                if m % 4 == 1 and m >= 8:
                    k = m // 4 + 6
                    if k < 28:
                        g += quad(k)
            if s == 24:
                g += [Ins(f"v_mov_b32 v88, v{68 + 4 * o}"), Ins(f"v_mov_b32 v89, v{69 + 4 * o}")]
            pos[n] = len(main)
            main.append(g)
            if s == 27:
                main.append([Ins(f"{MFMA} {acc}, {V(84)}, {V(88)}, {acc}")])

        hsc1 = self.opt.get("h0sc1", 1) if layer == 0 else self.opt.get("h1sc1", 1)

        def epilogue(o):
            tb = ((o & 1) << 1) | (o >> 1)
            acc = 16 + 16 * (o & 1)
            c1, sd = f"v{70 + 4 * o}", f"v{71 + 4 * o}"
            with self.cap() as c:
                for r0 in range(0, 16, 2):
                    rr = (r0, r0 + 1)
                    t = {r: f"v{92 + (r & 3)}" for r in rr}
                    a = {r: f"v{acc + r}" for r in rr}
                    for r in rr:
                        p(f"v_mul_f32 {t[r]}, {a[r]}, {c1}")
                    for r in rr:
                        p(f"v_exp_f32 {t[r]}, {t[r]}")
                    for r in rr:
                        p(f"v_fma_f32 {t[r]}, {t[r]}, {sd}, {sd}")
                    for r in rr:
                        p(f"v_rcp_f32 {t[r]}, {t[r]}")
                    for r in rr:
                        p(f"v_mul_f32 {a[r]}, {a[r]}, {t[r]}")
                    p(f"v_cvt_pk_bf16_f32 v{96 + (r0 >> 1)}, {a[r0]}, {a[r0 + 1]}")
            items = groups(c.ins)
            with self.cap() as c:
                p(f"s_add_u32 {sT0}, s3, {tb * 112 * KB}")
                self.publish([f"buffer_store_dwordx4 {V(96)}, {vL16}, {SG}, {sT0} offen",
                              f"buffer_store_dwordx4 {V(100)}, {vL16}, {SG}, {sT0} offen offset:1024"], f"h{o}",
                             always_sc1=hsc1)
            items.append(c.ins)
            with self.cap() as c:
                p(f"s_add_u32 {sT1}, s2, {tb * 256}")
                self.flag(sT1, 1 + layer, wait=f"h{o}", st=sT2)
            return items, c.ins
        streams = [([quad(6), quad(7)], 0, 3), (stl[:2], 1, 4), (stl[2:], 6, 8), (groups(st.ins), 13, 19)]
        eps = [epilogue(o) for o in range(4)]
        E = self.opt.get("epend", 23)
        F = self.opt.get("fsc1", 18) if hsc1 else self.opt.get("fpl", 6)
        for o in range(3):
            streams.append((eps[o][0], pos[28 * (o + 1)] + 2, pos[28 * (o + 1) + E]))
        for o in range(2):
            g = pos[28 * (o + 2) + F]
            streams.append(([eps[o][1]], g, g))
        self.hl = self.h_loads()
        G1 = min(F + self.opt.get("fd", 9), 21)
        with self.cap() as c1:
            self.poll_load("v104", SG, sU[4], 1, 109)
        with self.cap() as c2:
            self.apoll_end("v104", SG, sU[4], 1 + layer, 1, 109)
            self.stamp(f"h_seen{layer}")
        streams.insert(0, ([c1.ins], pos[84 + G1], pos[84 + G1]))
        streams.append(([c2.ins], pos[84 + G1 + 5], pos[84 + G1 + 5]))
        n0 = (27 - (G1 + 5)) // 2 + 1
        streams.append((self.hl[:n0], pos[84 + G1 + 6], pos[84 + 27] + 1))
        self.n0 = n0
        if extra:
            streams += extra(pos)
        if self.opt.get("fine"):
            self.stamp(f"f1_first{layer}")
            woven = spread(main, streams)
            k = 0
            for x in woven:
                p.add([x])
                if x.kind == "mfma":
                    k += 1
                    if k % 29 == 0 and k < 116:
                        self.stamp(f"f1_o{k // 29 - 1}_{layer}")
        else:
            p.add(spread(main, streams))
        self.stamp(f"ffn1_mfma{layer}")
        self.ffn2(layer, eps[3][0], eps[2][1], eps[3][1], F)

    def ffn2_setup(self, layer):
        p = self.p
        p(f"s_mul_i32 {sU[3]}, {srq}, {2 * 112 * KB}")
        p(f"s_lshl_b32 {sT3}, {sw}, 11")
        p(f"s_add_u32 {sU[3]}, {sU[3]}, {sT3}")
        p(f"s_lshl_b32 {sU[4]}, {srq}, 9")
        p(f"s_lshl_b32 {sT3}, {sw}, 6")
        p(f"s_add_u32 {sU[4]}, {sU[4]}, {sT3}")
        p(f"s_add_u32 {sU[4]}, {sU[4]}, {G_FH}")
        p(f"v_min_u32 v104, 13, {vLane}")
        p("v_lshlrev_b32 v104, 2, v104")
        p(f"s_lshr_b32 {sT3}, {srq}, 1")
        p(f"s_lshl_b32 {sT3}, {sT3}, 2")
        p(f"s_and_b32 {sT4}, {srq}, 1")
        p(f"s_add_u32 {sT3}, {sT3}, {sT4}")
        p(f"s_mul_i32 {sU[5]}, {sT3}, {28 * KB}")
        p(f"s_lshl_b32 {sT3}, {scb}, 12")
        p(f"s_lshl_b32 {sT4}, {sw}, 7")
        p(f"s_add_u32 {sT3}, {sT3}, {sT4}")
        p(f"s_add_u32 {sU[5]}, {sU[5]}, {sT3}")
        p(f"s_add_u32 {sU[5]}, {sU[5]}, {G_X}")
        if layer == 0:
            p(f"s_mul_i32 {sU[6]}, {srq}, {14 * KB}")
            p(f"s_lshr_b32 {sT3}, {scb}, 2")
            p(f"s_lshl_b32 {sT3}, {sT3}, 10")
            p(f"s_add_u32 {sU[6]}, {sU[6]}, {sT3}")
            p(f"s_and_b32 {sT3}, {scb}, 3")
            p(f"s_lshl_b32 {sT3}, {sT3}, 2")
            p(f"s_add_u32 {sT3}, {sT3}, {sT4}")
            p(f"s_add_u32 {sU[6]}, {sU[6]}, {sT3}")
            p(f"s_add_u32 {sU[6]}, {sU[6]}, {G_ST}")
            p(f"s_lshl_b32 {sT3}, {srq}, 8")
            p(f"s_lshl_b32 {sT4}, {scb}, 4")
            p(f"s_add_u32 {sT3}, {sT3}, {sT4}")
            p(f"s_lshl_b32 {sT4}, {sw}, 2")
            p(f"s_add_u32 {sT3}, {sT3}, {sT4}")
            p(f"s_add_u32 {sU[7]}, {sT3}, {G_FX}")
        else:
            p(f"s_lshl_b32 {sT3}, {sg}, 2")
            p(f"s_add_u32 {sT3}, {sT3}, {srq}")
            p(f"s_lshl_b32 {sT3}, {sT3}, 3")
            p(f"s_add_u32 {sT3}, {sT3}, {sw}")
            p(f"s_mul_i32 {sT3}, {sT3}, {8 * 896}")
            p(f"s_lshl_b32 {sT4}, {scb}, 7")
            p(f"s_add_u32 {sU[7]}, {sT3}, {sT4}")
        p(f"s_lshl_b32 {sT3}, {sw}, 13")
        p(f"v_add_u32 v105, {sT3}, {vS16}")
        if layer == 0:
            p(f"v_lshrrev_b32 v14, 5, {vLane}")
            p("v_lshlrev_b32 v14, 7, v14")
            p("v_xor_b32 v105, v105, v14")
            p("v_mov_b32 v106, v105")
        else:
            p("v_xor_b32 v106, 0x80, v105")
        p(f"v_and_b32 v13, 7, {vLane}")
        p("v_lshlrev_b32 v13, 4, v13")
        p(f"s_lshl_b32 {sT3}, {sw}, 7")
        p(f"v_add_u32 v13, {sT3}, v13")
        p(f"v_bfe_u32 v14, {vLane}, 3, 1")
        p("v_lshlrev_b32 v15, 7, v14")
        p("v_xor_b32 v13, v13, v15")
        p(f"v_lshl_add_u32 v13, v14, {9 if layer == 0 else 10}, v13")
        p(f"v_lshrrev_b32 v14, 4, {vLane}")
        p("v_lshl_add_u32 v13, v14, 11, v13")
        p(f"v_add_u32 v111, {L_S}, v13")

    def h_loads(self):
        out = []
        for n in range(56):
            th, j = divmod(n, 28)
            q = sub()
            if j % 2 == 0:
                q(f"s_add_u32 {sU[9]}, {sU[3]}, {th * 112 * KB + (j >> 1) * 8 * KB}")
            q(f"buffer_load_dwordx4 {V(112 + 4 * (n % 16))}, {vL16}, {SG}, {sU[9]} offen offset:{(j % 2) * KB} sc1")
            out.append(q.ins)
        return out

    def ffn2(self, layer, ep3, flag2, flag3, F):
        p = self.p
        ACC = ((16, 48), (32, 64))
        lds = self.hl
        LEAD = self.opt.get("leadh", 8)
        k0 = min(len(ep3) - 1, 9 * max(0, LEAD - self.n0))
        if k0:
            p.add(spread(ep3[:k0], [(lds[self.n0:LEAD], 0, k0 - 6)]))
            ep3 = ep3[k0:]
        LEAD = max(LEAD, self.n0)
        RES = (88, 84)

        with self.cap() as su:
            p(f"v_and_b32 v107, 7, {vLane}")
            p(f"v_bfe_u32 v110, {vLane}, 3, 1")
            if layer == 0:
                p(f"v_lshrrev_b32 v108, 4, {vLane}")
                p("v_lshlrev_b32 v108, 9, v108")
                p("v_lshl_add_u32 v108, v107, 4, v108")
                p("v_lshlrev_b32 v107, 4, v107")
                p("v_lshl_add_u32 v107, v110, 9, v107")
            else:
                p("v_mul_u32_u24 v108, 896, v107")
                p("v_lshlrev_b32 v107, 4, v107")
                p("v_lshl_add_u32 v107, v110, 3, v107")
                p(f"v_lshrrev_b32 v110, 3, {vLane}")
                p("v_lshl_add_u32 v108, v110, 4, v108")
            p(f"v_lshrrev_b32 v110, 4, {vLane}")
            p("v_lshl_add_u32 v107, v110, 10, v107")

        def resid(th):
            q = sub()
            q(f"s_add_u32 {sT3}, {sU[5]}, {th * 2 * 28 * KB}")
            if layer == 0:
                q(f"buffer_load_dwordx4 {V(RES[th])}, v107, {SG}, {sT3} offen sc1")
            else:
                q(f"buffer_load_dwordx2 {V(RES[th], 2)}, v107, {SG}, {sT3} offen sc1")
                q(f"buffer_load_dwordx2 {V(RES[th] + 2, 2)}, v107, {SG}, {sT3} offen offset:512 sc1")
            return q.ins

        def mm(th):
            main = []
            for j in range(28):
                n = 28 * th + j
                b = V(112 + 4 * (n % 16))
                for ch in range(2):
                    acc = V(ACC[th][ch], 16)
                    g = [Ins(f"{MFMA} {acc}, {w2reg(j, ch)}, {b}, {acc if j else 0}")]
                    if ch == 1:
                        if n + LEAD < 56 and not (th == 0 and 28 <= n + LEAD < 28 + HOLD):
                            g += lds[n + LEAD]
                    main.append(g)
            return main

        def reduce(th, woven):
            area = th * 16 * KB
            a0, a1 = ACC[th]
            quad = [a0, a0 + 4, a0 + 8, a0 + 12, a1, a1 + 4, a1 + 8, a1 + 12]
            T = 92
            items = []
            with self.cap() as c:
                for k in range(8):
                    p(f"ds_write_b128 v{105 + (k & 1)}, {V(quad[k])} offset:{area + k * KB}")
                for r in range(4):
                    p(f"v_lshlrev_b32 v{T + 2 * r}, 16, v{RES[th] + r}")
                    p(f"v_and_b32 v{T + 2 * r + 1}, {sHI}, v{RES[th] + r}")
            items += groups(c.ins)
            with self.cap() as c:
                p.wait_ds()
                p("s_barrier")
                for u in range(4):
                    for k in range(2):
                        p(f"ds_read_b128 {V(quad[2 * u + k])}, v111 offset:{area + u * 8 * KB + k * (KB if layer == 0 else 512)}")
            items.append(c.ins)
            with self.cap() as c:
                for u in range(4):
                    for k in range(2):
                        if woven:
                            for r in range(4):
                                p(f"v_add_f32 v{T + 4 * k + r}, v{T + 4 * k + r}, v{quad[2 * u + k] + r}")
                        else:
                            for r in (0, 2):
                                p(f"v_pk_add_f32 {V(T + 4 * k + r, 2)}, {V(T + 4 * k + r, 2)}, {V(quad[2 * u + k] + r, 2)}")
                for r in range(4):
                    p(f"v_cvt_pk_bf16_f32 v{80 + r}, v{T + 2 * r}, v{T + 2 * r + 1}")
            items += groups(c.ins)
            if layer == 1:
                with self.cap() as c:
                    p(f"s_add_u32 {sT3}, {sU[7]}, {th * 32 * 896}")
                    p(f"buffer_store_dwordx4 {V(80)}, v108, {SOUT}, {sT3} offen {'sc1' if self.opt.get('outsc1', 1) else ''}")
                items.append(c.ins)
                return items, []
            with self.cap() as c:
                p(f"s_add_u32 {sT4}, {sU[5]}, {th * 2 * 28 * KB}")
                self.publish([f"buffer_store_dwordx4 {V(80)}, v107, {SG}, {sT4} offen"], f"x{th}")
            items.append(c.ins)
            with self.cap() as c:
                p(f"v_add_f32 v100, v{T}, v{T + 1}")
                p(f"v_mul_f32 v101, v{T}, v{T}")
                p(f"v_fmac_f32 v101, v{T + 1}, v{T + 1}")
                for r in range(2, 8):
                    p(f"v_add_f32 v100, v100, v{T + r}")
                    p(f"v_fmac_f32 v101, v{T + r}, v{T + r}")
                p("v_add_f32_dpp v100, v100, v100 row_ror:8 row_mask:0xf bank_mask:0xf")
                p("v_add_f32_dpp v101, v101, v101 row_ror:8 row_mask:0xf bank_mask:0xf")
                p("v_permlane16_swap_b32 v100, v101")
                p("v_add_f32 v100, v100, v101")
                p("v_mov_b32 v101, v100")
                p("v_permlane32_swap_b32 v100, v101")
                p("v_add_f32 v100, v100, v101")
            items += groups(c.ins)
            with self.cap() as c:
                p(f"s_add_u32 {sT3}, {sU[6]}, {th * 7 * KB}")
                self.publish(["s_mov_b64 exec, 0x00ff00ff", f"buffer_store_dword v100, v108, {SG}, {sT3} offen",
                              "s_mov_b64 exec, -1"], f"x{th}")
            items.append(c.ins)
            with self.cap() as c:
                p(f"s_add_u32 {sT3}, {sU[7]}, {th * 128}")
                self.flag(sT3, 2, wait=f"x{th}", tmp=102, st=sT4)
            return items, c.ins
        E3 = max(4, len(ep3) * self.opt.get("e3", 20) // 89)
        F3 = E3 + (F + 6 if F > 10 else 12)
        GP = min(max(self.opt.get("gp", 36), F3 + 14), 52)
        GP -= GP % 2
        HOLD = max(0, GP // 2 - (28 - LEAD) + 1)
        with self.cap() as c1:
            p(f"s_add_u32 {sT0}, {sU[4]}, 256")
            self.poll_load("v104", SG, sT0, 1, 109)
        with self.cap() as c2:
            self.apoll_end("v104", SG, sT0, 1 + layer, 1, 109)
            for n in range(28, 28 + HOLD):
                p.add(lds[n])
        bar = [Ins("s_barrier")]
        p.add(spread(mm(0), [([bar], 0, 0), (ep3, 1, E3), ([flag2], min(F + 2, E3 - 1), min(F + 2, E3 - 1)),
                             ([flag3], F3, F3), (groups(su.ins) + [resid(0)], E3 + 1, GP - 8),
                             ([c1.ins], GP - 6, GP - 6), ([c2.ins], GP + 1, GP + 1)]))
        self.stamp(f"th0_done{layer}")
        r0, f0 = reduce(0, True)
        streams = [([resid(1)], 0, 0), (r0, 1, 40), ([bar], 46, 46)]
        if f0:
            streams.append(([f0], 52, 52))
        if layer == 1 and self.opt.get("wb", 0) == 4:
            with self.cap() as c:
                p(f"s_lshl_b32 {sT0}, {srh}, 5")
                p(f"s_add_u32 {sT0}, {sT0}, {sh}")
                p(f"s_lshl_b32 {sT0}, {sT0}, 2")
                p(f"s_add_u32 {sT0}, {sT0}, {G_FO + 64}")
                p(f"s_cmp_eq_u32 {sw}, 0")
                p(f"s_cselect_b32 {sT0}, {sT0}, {OOB}")
                self.flag(sT0, 9, wait="none", tmp=102, st=sT4)
            g = self.opt.get("wbg", 30)
            streams.append(([c.ins], g, g))
        p.add(spread(mm(1), streams))
        self.stamp(f"th1_done{layer}")
        r1, f1 = reduce(1, False)
        for it in r1:
            p.add(it)
        p.add(f1)
        self.stamp(f"ffn2_done{layer}")

    def spare0(self):
        p = self.p
        if not self.opt.get("h0sc1", 1):
            p(f"s_and_b32 {sT0}, {sh}, 1")
            p(f"s_lshl_b32 {sT0}, {sT0}, 2")
            p(f"s_add_u32 {sT0}, {sT0}, {sw}")
            p(f"s_mul_i32 {sT0}, {sT0}, {14 * KB}")
            p(f"s_mul_i32 {sT1}, {srh}, {4 * 112 * KB}")
            p(f"s_add_u32 {sT0}, {sT0}, {sT1}")
            p(f"v_lshlrev_b32 v64, 7, {vLane}")
            for tb in (0, 2, 1, 3):
                for off in (0, 6 * KB):
                    p(f"s_add_u32 {sT1}, {sT0}, {G_H + tb * 112 * KB + off}")
                    p(f"buffer_load_dword v65, v64, {SG}, {sT1} offen sc1")
        self.colsum_qkv()
        p.wait_ds()
        p("s_barrier")
        self.colsum_qkv_fetch()
        if self.opt.get("nap", 1):
            p(f"v_min_u32 v16, 13, {vLane}")
            p("v_lshlrev_b32 v16, 2, v16")
            p(f"s_lshl_b32 {sT0}, {srh}, 10")
            p(f"s_add_u32 {sT0}, {sT0}, {G_FH + 3 * 256}")
            self.poll("v16", SG, sT0, 1, sleep=12)
        p("s_waitcnt vmcnt(0) lgkmcnt(0)")

    def spare1(self):
        p = self.p
        wb = self.opt.get("wb", 0)
        if not wb:
            return
        p(f"s_and_b32 {sT0}, {sh}, 1")
        p(f"s_or_b32 {sT0}, {sT0}, {srh}")
        p(f"s_or_b32 {sT0}, {sT0}, {sw}")
        p(f"s_cmp_lg_u32 {sT0}, 0")
        p(f"s_cbranch_scc1 L_fin{self.sfx}")
        if wb == 4:
            p(f"v_and_b32 v13, 15, {vLane}")
            p("v_min_u32 v13, 13, v13")
            p(f"v_bfe_u32 v14, {vLane}, 4, 1")
            p("v_lshl_add_u32 v13, v14, 5, v13")
            p("v_lshlrev_b32 v16, 2, v13")
            p(f"s_mov_b32 {sT0}, {G_FO + 64}")
            self.poll("v16", SG, sT0, 9)
            p("buffer_wbl2 sc1")
            p("s_waitcnt vmcnt(0)")
            return
        p(f"v_and_b32 v13, 15, {vLane}")
        p("v_min_u32 v13, 13, v13")
        p("v_lshlrev_b32 v13, 3, v13")
        p(f"v_lshrrev_b32 v14, 4, {vLane}")
        p("v_lshl_add_u32 v16, v14, 7, v13")
        p(f"s_mov_b32 {sT0}, {G_FX}")
        self.poll("v16", SG, sT0, 3, 2)
        p(f"s_mov_b32 {sT0}, {G_FX + 512}")
        self.poll("v16", SG, sT0, 3, 2)
        p("buffer_wbl2 sc1")
        p("s_waitcnt vmcnt(0)")
        if wb >= 2:
            p(f"v_and_b32 v13, 15, {vLane}")
            p("v_min_u32 v13, 13, v13")
            p("v_lshlrev_b32 v13, 2, v13")
            p(f"v_lshrrev_b32 v14, 4, {vLane}")
            p("v_lshl_add_u32 v16, v14, 6, v13")
            for tb in ((2, 3) if wb == 2 else (0, 2, 1, 3)):
                for half in range(2):
                    p(f"s_mov_b32 {sT0}, {G_FH + (4 * half + tb) * 256}")
                    self.poll("v16", SG, sT0, 2)
                p("buffer_wbl2 sc1")
                p("s_waitcnt vmcnt(0)")

    def finish(self):
        p = self.p
        p(f"s_or_b32 {sT0}, {sg}, {sh}")
        p(f"s_or_b32 {sT0}, {sT0}, {srh}")
        p(f"s_or_b32 {sT0}, {sT0}, {sw}")
        p(f"s_cmp_lg_u32 {sT0}, 0")
        p(f"s_cbranch_scc1 L_fin{self.sfx}")
        p(f"s_add_u32 {sT0}, {sE}, 64")
        p(f"v_mov_b32 v14, {sT0}")
        p("s_mov_b64 exec, 1")
        p(f"buffer_store_dword v14, {vL16}, {SWS}, 0 offen sc1")
        p("s_mov_b64 exec, -1")
        p(f"L_fin{self.sfx}:")
        if self.pad:
            p("s_waitcnt vmcnt(0)")
            if self.opt.get("amp") == "end":
                p("s_memrealtime s[94:95]")
            p("s_waitcnt lgkmcnt(0)")
            p("s_sub_u32 s94, s94, s96")
            p("s_mul_i32 s94, s94, 4")
            p("s_min_u32 s94, s94, 20000")
            p(f"s_add_u32 s94, s94, {self.pad}")
            p(f"L_pad{self.sfx}:")
            p("s_memrealtime s[98:99]")
            p("s_waitcnt lgkmcnt(0)")
            p("s_sub_u32 s98, s98, s96")
            p(f"s_cmp_lt_u32 s98, s94")
            p(f"s_cbranch_scc1 L_pad{self.sfx}")
        if self.diag:
            p("s_waitcnt vmcnt(0)")
            self.stamp("end")
            self.stamp_flush()
            p(f"s_lshl_b32 {sT0}, {srh}, 4")
            p(f"s_add_u32 {sT0}, {sT0}, {sh}")
            p(f"s_lshl_b32 {sT0}, {sT0}, 3")
            p(f"s_add_u32 {sT0}, {sT0}, {sg}")
            p(f"s_lshl_b32 {sT0}, {sT0}, 2")
            p(f"s_add_u32 {sT0}, {sT0}, {sw}")
            p(f"s_lshl_b32 {sT0}, {sT0}, 7")
            p(f"s_add_u32 {sT0}, {sT0}, {WS_DIAG}")
            p("s_mov_b64 exec, 1")
            for i in range(self.nstamp):
                p(f"v_mov_b32 v14, s{STAMP0 + i}")
                p(f"buffer_store_dword v14, {vL16}, {SWS}, {sT0} offen offset:{4 * i}")
            for k in range(2):
                p(f"v_mov_b32 v14, s{18 + k}")
                p(f"buffer_store_dword v14, {vL16}, {SWS}, {sT0} offen offset:{112 + 4 * k}")
            p(f"v_mov_b32 v14, {1 if self.fast else 0}")
            p(f"buffer_store_dword v14, {vL16}, {SWS}, {sT0} offen offset:120")
            p(f"v_mov_b32 v14, {slim}")
            p(f"buffer_store_dword v14, {vL16}, {SWS}, {sT0} offen offset:124")
            p("s_mov_b64 exec, -1")
        p("s_waitcnt vmcnt(0)")
        p("s_endpgm")

    def body(self):
        p = self.p
        x = self.sfx
        self.q0()

        self.kv_finish(0, 64, "v11")
        self.stamp_flush()
        p(f"s_cmp_ge_u32 {sh}, 14")
        p(f"s_cbranch_scc1 L_spare0{x}")
        def pre_wo0():
            for it in self.touch[4]:
                p.add(it)
            p(f"s_lshl_b32 {sU[3]}, {scb}, 11")
            p(f"s_add_u32 {sU[3]}, {sU[3]}, {WS_RB}")
            p(f"v_and_b32 v62, 15, {vLane}")
            p(f"v_bfe_u32 v63, {vLane}, 4, 1")
            p(f"v_mul_u32_u24 v63, {7 * 2048}, v63")
            p("v_lshl_add_u32 v62, v62, 7, v63")
            self.colsum_qkv()
        with self.cap() as c1:
            self.poll_load("v62", SWS, sU[3], 1, 63)
        with self.cap() as c2:
            self.apoll_end("v62", SWS, sU[3], 1, 1, 63)
            self.stamp("rb2_seen")
        gc = self.opt.get("gc", 10)
        b3 = self.take(self.opt.get("b3", 12))
        self.wo_phase(0, pre_wo0, [([c1.ins], gc - 8, gc - 8), ([c2.ins], gc, gc), (b3, gc + 1, 27)])
        b4 = self.take(self.opt.get("b4", 8))
        n_before = len(b3) + len(b4)
        cs1 = self.colsum_w1_items()
        ncs = self.opt.get("ncs", len(b3))

        def pre_ffn0():
            self.colsum_qkv_fetch()
            for it in b4:
                p.add(it)
            for it in cs1[:ncs]:
                p.add(it)
            p.wait_ds()
            p("s_barrier")

        def extra0(pos):
            rest1 = self.take(max(0, 28 - n_before))
            with self.cap() as c:
                p(f"v_mov_b32 v84, v{vCS1}")
                p(f"v_mov_b32 v85, v{vCS1 + 1}")
            out = [(rest1, 0, max(0, len(rest1) - 1))]
            out += [([cs1[s]], max(s, 1), max(s, 1)) for s in range(ncs, 28)]
            out.append(([cs1[28] + c.ins], 27, 27))
            out.append((self.take(100), 30, pos[self.opt.get("w2end", 104)]))
            return out
        self.ffn(0, pre_ffn0, extra0)
        p(f"L_layer1{x}:")
        p("s_waitcnt lgkmcnt(0)")
        self.qkv1()
        self.kv_finish(1, 96, "v91")
        p(f"s_cmp_ge_u32 {sh}, 14")
        p(f"s_cbranch_scc1 L_spare1{x}")
        self.wo_phase(1)
        self.ffn(1)
        self.finish()
        p(f"L_spare0{x}:")
        p("s_waitcnt vmcnt(0) lgkmcnt(0)")
        self.spare0()
        p(f"s_branch L_layer1{x}")
        p(f"L_spare1{x}:")
        p("s_waitcnt vmcnt(0) lgkmcnt(0)")
        self.spare1()
        p(f"s_branch L_fin{x}")
        p.add(self.tail)
        self.tail = []

    def build(self):
        p = self.p
        self.prologue()
        self.startup()
        self.qkv0()
        self.body()
        p("L_fastend:")
        p("L_slow:")
        p("s_waitcnt vmcnt(0) lgkmcnt(0)")
        p("s_nop 7")
        p("s_nop 7")
        self.fast = False
        self.sfx = "_s"
        self.body()
        return finalize(p.ins)


HEADER = f"""; Two layers of (LayerNorm, linear attention, output projection, LayerNorm, SiLU FFN) in one persistent launch.
; @launch grid=(256,1,1) block=(256,1,1) lds={LDS_BYTES}
.amdgcn_target "amdgcn-amd-amdhsa--gfx950"
.text
.globl {NAME}_kernel
.p2align 8
.type {NAME}_kernel,@function
{NAME}_kernel:
"""
FOOTER = f"""
.section .rodata,"a"
.p2align 6
.amdhsa_kernel {NAME}_kernel
  .amdhsa_next_free_vgpr 512
  .amdhsa_next_free_sgpr 102
  .amdhsa_accum_offset 256
  .amdhsa_group_segment_fixed_size 0
  .amdhsa_kernarg_size 72
  .amdhsa_user_sgpr_count 2
  .amdhsa_user_sgpr_kernarg_segment_ptr 1
  .amdhsa_system_sgpr_workgroup_id_x 1
.end_amdhsa_kernel
"""


def generate(**kw):
    g = Gen(**kw)
    lines = g.build()
    return HEADER + "\n".join(lines) + FOOTER, g


if __name__ == "__main__":
    out = sys.argv[1] if len(sys.argv) > 1 else f"cdna_kernels/{NAME}.s"
    kw = {}
    for a in sys.argv[2:]:
        k, _, v = a.partition("=")
        kw[k] = (int(v) if v.lstrip('-').isdigit() else v) if v else True
    text, g = generate(**kw)
    open(out, "w").write(text)
    print("wrote", out, len(text), "bytes;", text.count("\n"), "lines")
```

```python
import re

REG_RE = re.compile(r"^(-|\|)?([vas])(\d+)\|?$")
RNG_RE = re.compile(r"^(-|\|)?([vas])\[(\d+):(\d+)\]\|?$")
TRANS = ("v_exp_f32", "v_log_f32", "v_rcp_f32", "v_rsq_f32", "v_sqrt_f32", "v_sin_f32", "v_cos_f32")


def regs_of(tok):
    tok = tok.strip()
    m = REG_RE.match(tok)
    if m:
        return [m.group(2) + m.group(3)]
    m = RNG_RE.match(tok)
    if m:
        return [m.group(2) + str(i) for i in range(int(m.group(3)), int(m.group(4)) + 1)]
    if tok in ("vcc", "exec", "m0", "scc"):
        return [tok]
    if tok in ("vcc_lo", "vcc_hi"):
        return ["vcc"]
    if tok in ("exec_lo", "exec_hi"):
        return ["exec"]
    return []


def split_ops(s):
    out, depth, cur = [], 0, ""
    for ch in s:
        if ch in "[(":
            depth += 1
        if ch in "])":
            depth -= 1
        if ch == "," and depth == 0:
            out.append(cur.strip())
            cur = ""
        else:
            cur += ch
    if cur.strip():
        out.append(cur.strip())
    return out


class Ins:
    __slots__ = ("text", "op", "kind", "rd", "wr", "tag", "srcc", "ab", "data", "passes", "arg")

    def __init__(self, text, tag=None):
        self.text = text
        self.tag = tag
        self.srcc = set()
        self.ab = set()
        self.data = set()
        self.passes = 0
        self.arg = None
        t = text.strip()
        if t.endswith(":"):
            self.op, self.kind, self.rd, self.wr = t, "label", set(), set()
            return
        if t.startswith(";") or t.startswith("."):
            self.op, self.kind, self.rd, self.wr = t, "comment", set(), set()
            return
        parts = t.split(None, 1)
        op = parts[0]
        self.op = op
        ops = split_ops(parts[1]) if len(parts) > 1 else []
        mods = ""
        if ops:
            last = ops[-1].split(None, 1)
            ops[-1] = last[0]
            mods = last[1] if len(last) > 1 else ""
        R = [regs_of(o) for o in ops]
        flat = lambda xs: set(r for x in xs for r in x)
        rd, wr = set(), set()
        if op.startswith("v_mfma"):
            self.kind = "mfma"
            wr = set(R[0])
            self.ab = set(R[1]) | set(R[2])
            self.srcc = set(R[3])
            rd = self.ab | self.srcc
            self.passes = 8 if "32x32x16" in op else 4
            rd.add("exec")
        elif op in ("buffer_wbl2", "buffer_inv"):
            self.kind = "vstore"
        elif op.startswith("buffer_") or op.startswith("global_"):
            if "load" in op:
                if " lds" in " " + mods:
                    self.kind = "dma"
                    rd = flat(R) | {"m0"}
                else:
                    self.kind = "vload"
                    wr = set(R[0])
                    rd = flat(R[1:])
            elif "store" in op:
                self.kind = "vstore"
                rd = flat(R)
                self.data = set(R[0]) if op.startswith("buffer_") else set(R[1])
            else:
                raise ValueError(text)
            rd.add("exec")
        elif op.startswith("ds_"):
            if "read" in op or "bpermute" in op or "swizzle" in op:
                self.kind = "dsread"
                wr = set(R[0])
                rd = flat(R[1:])
            else:
                self.kind = "dswrite"
                rd = flat(R)
            rd.add("exec")
        elif op.startswith("s_load") or op in ("s_memtime", "s_memrealtime"):
            self.kind = "smem"
            wr = set(R[0])
            rd = flat(R[1:])
        elif op == "s_waitcnt":
            self.kind = "wait"
        elif op == "s_nop":
            self.kind = "nop"
            self.arg = int(ops[0])
        elif op == "s_barrier":
            self.kind = "barrier"
        elif op.startswith("s_cbranch") or op in ("s_branch", "s_endpgm", "s_setpc_b64"):
            self.kind = "branch"
            if "scc" in op:
                rd = {"scc"}
            if "vcc" in op:
                rd = {"vcc"}
            if "exec" in op:
                rd = {"exec"}
        elif op.startswith("s_"):
            self.kind = "salu"
            if op.startswith("s_cmp") or op.startswith("s_bitcmp"):
                rd = flat(R)
                wr = {"scc"}
            elif op in ("s_sleep", "s_setprio"):
                pass
            else:
                wr = set(R[0]) | {"scc"}
                rd = flat(R[1:])
                if op.startswith("s_mov") or op.startswith("s_mul") or op.startswith("s_cselect") or op.startswith("s_getreg") or op.startswith("s_getpc"):
                    wr.discard("scc")
                if op.startswith("s_cselect") or op.startswith("s_addc") or op.startswith("s_subb"):
                    rd.add("scc")
                if "saveexec" in op:
                    wr.add("exec")
                    rd.add("exec")
        elif op.startswith("v_"):
            base = op.replace("_e32", "").replace("_e64", "")
            self.kind = "trans" if base in TRANS else "valu"
            rd.add("exec")
            if op.startswith("v_nop"):
                pass
            elif op.startswith("v_permlane"):
                wr = set(R[0]) | set(R[1])
                rd |= wr
            elif op.startswith("v_cmp"):
                wr = set(R[0])
                rd |= flat(R[1:])
            elif "_co_" in op:
                wr = set(R[0]) | set(R[1])
                rd |= flat(R[2:])
            else:
                wr = set(R[0])
                rd |= flat(R[1:])
                if base.startswith("v_fmac") or base.startswith("v_dot2c") or "dpp" in op or base.startswith("v_writelane"):
                    rd |= set(R[0])
        else:
            raise ValueError("cannot parse: " + text)
        self.rd, self.wr = rd, wr


class Pseudo:
    def __init__(self, what, tag=None):
        self.kind = "pseudo"
        self.what = what
        self.tag = tag
        self.rd = set()
        self.wr = set()
        self.text = f"; {what} {tag}"


class Prog:
    def __init__(self):
        self.ins = []
        self.nlabel = 0

    def __call__(self, text, tag=None):
        for line in text.split("\n"):
            line = line.strip()
            if line:
                self.ins.append(Ins(line, tag))

    def add(self, items):
        self.ins.extend(items)

    def wait_vm(self, tag):
        self.ins.append(Pseudo("wait_vm", tag))

    def wait_ds(self, tag=None):
        self.ins.append(Pseudo("wait_ds", tag))

    def vm_drained(self):
        self.ins.append(Pseudo("vm_drained"))

    def alt_begin(self):
        self.ins.append(Pseudo("alt_begin"))

    def alt_else(self):
        self.ins.append(Pseudo("alt_else"))

    def alt_end(self):
        self.ins.append(Pseudo("alt_end"))

    def label(self, stem):
        self.nlabel += 1
        return f"L_{stem}_{self.nlabel}"


def sub():
    return Prog()


WAIT_RE = re.compile(r"(vmcnt|lgkmcnt)\((\d+)\)")


def insert_waits(ins):
    out = []
    vm = []
    ds = []
    saved = None

    def need(lst, pred):
        last = -1
        for i, e in enumerate(lst):
            if pred(e):
                last = i
        return last

    def emit_wait(vi, di):
        nonlocal vm, ds
        parts = []
        if vi >= 0:
            n = min(len(vm) - 1 - vi, 63)
            parts.append(f"vmcnt({n})")
            vm = vm[len(vm) - n:] if n else []
        if di >= 0:
            if any(e[2] for e in ds):
                n = 0
            else:
                n = min(len(ds) - 1 - di, 15)
            parts.append(f"lgkmcnt({n})")
            ds = ds[len(ds) - n:] if n else []
        if parts:
            out.append(Ins("s_waitcnt " + " ".join(parts)))

    for x in ins:
        if x.kind == "pseudo":
            if x.what == "wait_vm":
                tags = x.tag if isinstance(x.tag, (list, tuple, set)) else [x.tag]
                emit_wait(need(vm, lambda e: x.tag is None or e[1] in tags), -1)
            elif x.what == "wait_ds":
                tags = x.tag if isinstance(x.tag, (list, tuple, set)) else [x.tag]
                emit_wait(-1, need(ds, lambda e: x.tag is None or e[1] in tags))
            elif x.what == "vm_drained":
                vm = []
            elif x.what == "alt_begin":
                saved = ("begin", list(vm), list(ds))
            elif x.what == "alt_else":
                after_a = (list(vm), list(ds))
                vm, ds = list(saved[1]), list(saved[2])
                saved = ("else", after_a)
            elif x.what == "alt_end":
                a_vm, a_ds = saved[1]
                assert len(a_vm) == len(vm) and len(a_ds) == len(ds), "alt arms differ in outstanding ops"
                saved = None
            if x.what.startswith("alt_"):
                out.append(x)
            continue
        if x.kind == "wait":
            for name, n in WAIT_RE.findall(x.text):
                n = int(n)
                if name == "vmcnt":
                    vm = vm[len(vm) - n:] if 0 < n < len(vm) else ([] if n == 0 else vm)
                else:
                    if n == 0:
                        ds = []
                    elif not any(e[2] for e in ds) and n < len(ds):
                        ds = ds[len(ds) - n:]
            out.append(x)
            continue
        touched = x.rd | x.wr
        vi = need(vm, lambda e: e[0] & touched)
        di = need(ds, lambda e: e[0] & touched)
        if x.kind == "dsread" and di >= 0 and not (x.rd & set().union(*[e[0] for e in ds])) and not any(e[2] for e in ds):
            di = -1
        if x.kind == "vload" and vi >= 0 and not (x.rd & set().union(*[e[0] for e in vm])):
            vi = -1
        emit_wait(vi, di)
        out.append(x)
        if x.kind == "vload":
            vm.append((set(x.wr), x.tag))
        elif x.kind in ("vstore", "dma"):
            vm.append((set(), x.tag))
        elif x.kind == "dsread":
            ds.append((set(x.wr), x.tag, False))
        elif x.kind == "dswrite":
            ds.append((set(), x.tag, False))
        elif x.kind == "smem":
            ds.append((set(x.wr), x.tag, True))
    return out


def states(x):
    if x.kind in ("label", "comment", "pseudo"):
        return 0
    if x.kind == "nop":
        return x.arg + 1
    return 1


VALU_KINDS = ("valu", "trans")
MEM_KINDS = ("vload", "vstore", "dma", "dsread", "dswrite")


def required(p, c):
    n = 0
    pv = p.kind in VALU_KINDS
    cv = c.kind in VALU_KINDS
    if pv:
        vw = {r for r in p.wr if r[0] in "va" and r != "vcc"}
        sw = {r for r in p.wr if r[0] == "s" and r != "scc" or r == "vcc"}
        if c.kind == "mfma" and vw & c.rd:
            n = max(n, 2)
        if cv and c.op.startswith("v_permlane") and vw & c.rd:
            n = max(n, 2)
        if cv and "dpp" in c.op and vw & c.rd:
            n = max(n, 2)
        if cv and (c.op.startswith("v_readfirstlane") or c.op.startswith("v_readlane")) and vw & c.rd:
            n = max(n, 1)
        if p.kind == "trans" and cv and c.kind != "trans" and vw & c.rd:
            n = max(n, 1)
        if "sdwa" in p.op and cv and vw & (c.rd | c.wr):
            n = max(n, 1)
        if sw & c.rd:
            if c.kind in ("vload", "vstore", "dma"):
                n = max(n, 5)
            elif cv:
                n = max(n, 4 if (c.op.startswith("v_readlane") or c.op.startswith("v_writelane")) else 2)
            elif c.kind in ("salu", "smem"):
                n = max(n, 1)
        if p.op.startswith("v_dot2") and vw & (c.rd | c.wr) and (cv or c.kind == "mfma" or c.kind in MEM_KINDS):
            same = c.op == p.op
            if not (same and not (vw & (c.rd - c.wr))):
                n = max(n, 3)
        if "exec" in p.wr:
            n = max(n, 5)
    if p.kind == "salu" and "m0" in p.wr and "m0" in c.rd and c.kind == "dma":
        n = max(n, 1)
    if p.kind == "vstore" and len(p.data) >= 3 and p.data & c.wr:
        n = max(n, 2)
    if p.kind == "mfma":
        big = {4: 8, 8: 12}[p.passes]
        if c.kind == "mfma":
            if p.wr & c.ab:
                n = max(n, big)
            if p.wr & c.srcc:
                if not (p.wr == c.srcc and p.passes == c.passes):
                    n = max(n, {4: 6, 8: 10}[p.passes])
            elif p.wr & c.wr:
                n = max(n, {4: 6, 8: 10}[p.passes])
        elif cv or c.kind in MEM_KINDS:
            if p.wr & (c.rd | c.wr):
                n = max(n, big)
            if p.srcc & c.wr:
                n = max(n, {4: 3, 8: 7}[p.passes])
    return n


def insert_nops(ins):
    out = []
    hist = []
    saved = None
    LOOK = 14
    for x in ins:
        if x.kind == "pseudo":
            if x.what == "alt_begin":
                saved = list(hist[-2 * LOOK:])
            elif x.what == "alt_else":
                hist = list(saved)
            continue
        if x.kind in ("label", "comment"):
            out.append(x)
            continue
        dist = 0
        pad = 0
        for p in reversed(hist):
            if dist >= LOOK:
                break
            if p.kind in ("label", "comment", "pseudo"):
                continue
            r = required(p, x)
            if r > dist:
                pad = max(pad, r - dist)
            dist += states(p)
        while pad > 0:
            k = min(pad, 16)
            out.append(Ins(f"s_nop {k - 1}"))
            hist.append(out[-1])
            pad -= k
        out.append(x)
        hist.append(x)
    return out


def finalize(ins):
    ins = insert_waits(ins)
    ins = insert_nops(ins)
    lines = []
    for x in ins:
        if x.kind == "label":
            lines.append(x.text.strip())
        elif x.kind == "pseudo":
            continue
        else:
            lines.append("    " + x.text.strip())
    return lines


def weave(main, fill, per_gap, start=0):
    out = []
    k = 0
    acc = 0.0
    for i, g in enumerate(main):
        out.extend(g)
        if i >= start:
            acc += per_gap
            while acc >= 1.0 - 1e-9 and k < len(fill):
                f = fill[k]
                out.extend(f if isinstance(f, list) else [f])
                k += 1
                acc -= 1.0
    while k < len(fill):
        f = fill[k]
        out.extend(f if isinstance(f, list) else [f])
        k += 1
    return out


def spread(main, streams):
    n = len(main)
    slots = [[] for _ in range(n)]
    for items, a, b in streams:
        b = min(b, n - 1)
        span = b - a + 1
        m = len(items)
        for k, it in enumerate(items):
            g = a + (k * span) // max(m, 1)
            slots[g].append(it)
    out = []
    for i, g in enumerate(main):
        out.extend(g)
        for it in slots[i]:
            out.extend(it if isinstance(it, list) else [it])
    return out


def groups(ins, n=1):
    out, cur, k = [], [], 0
    for x in ins:
        cur.append(x)
        if x.kind not in ("label", "comment", "pseudo"):
            k += 1
            if k == n:
                out.append(cur)
                cur, k = [], 0
    if cur:
        if out:
            out[-1].extend(cur)
        else:
            out.append(cur)
    return out


def cost(x):
    if x.kind in ("label", "comment"):
        return 0
    if x.kind == "pseudo":
        return 4 if x.what.startswith("wait") else 0
    if x.kind in ("mfma", "trans"):
        return 8
    if x.kind in ("vload", "vstore", "dma"):
        return 14
    if x.kind == "nop":
        return 4 * (x.arg + 1)
    if x.kind == "barrier":
        return 10
    if x.kind == "dswrite" and "b128" in x.op:
        return 40
    if x.kind == "valu" and (x.op.startswith("v_fma") or x.op.startswith("v_cvt_pk")):
        return 5
    return 4


def spread2(main, fixed, flex):
    n = len(main)
    slots = [[] for _ in range(n)]
    flat = lambda it: it if isinstance(it, list) else [it]
    for items, a, b in fixed:
        b = min(b, n - 1)
        span = b - a + 1
        for k, it in enumerate(items):
            slots[a + (k * span) // max(len(items), 1)].append(it)
    load = [sum(cost(x) for x in main[i]) + sum(cost(x) for it in slots[i] for x in flat(it)) for i in range(n)]
    for items, a, b in flex:
        b = min(b, n - 1)
        cs = [sum(cost(x) for x in flat(it)) for it in items]
        lo, hi = 0, max(load[a:b + 1]) + sum(cs)
        while lo < hi:
            mid = (lo + hi) // 2
            if sum(max(0, mid - load[g]) for g in range(a, b + 1)) >= sum(cs):
                hi = mid
            else:
                lo = mid + 1
        room = 0.0
        k = 0
        for g in range(a, b + 1):
            room += max(0, lo - load[g])
            while k < len(items) and (room >= cs[k] / 2 or g == b):
                slots[g].append(items[k])
                load[g] += cs[k]
                room -= cs[k]
                k += 1
    out = []
    for i, g in enumerate(main):
        out.extend(g)
        for it in slots[i]:
            out.extend(flat(it))
    return out


def spread_groups(main, streams):
    n = len(main)
    slots = [list(g) for g in main]
    for items, a, b in streams:
        b = min(b, n - 1)
        span = b - a + 1
        for k, it in enumerate(items):
            slots[a + (k * span) // max(len(items), 1)].extend(it if isinstance(it, list) else [it])
    return slots
```

```python
import sys, os
sys.path.insert(0, os.path.dirname(os.path.abspath(__file__)))
from asmlib import *

NAME = "interleave_layers__linear_attn_block__dense_activation_silu__prompt"
KB = 1024

WS_EPOCH = 0
WS_RA = 0x8000
WS_RB = 0x10000
WS_DIAG = 0x20000
WS_KV = 0x80000
KV_L = 0x80000
WS_PQ = 0x180000
WS_PO = WS_PQ + 16 * 28 * KB
WS_P1 = WS_PO + 14 * 28 * KB
WS_P2 = WS_P1 + 14 * 112 * KB
WS_G = 0x680000
assert WS_P2 + 7 * 224 * KB <= WS_G
OOB = 0x40000000
G_STRIDE = 0x160000
G_H = 0
G_O = 8 * 112 * KB
G_X = G_O + 8 * 28 * KB
G_ST = G_X + 8 * 28 * KB
G_FX = G_ST + 8 * 7 * KB
G_FO = G_FX + 1024
G_FH = G_FO + 1024
G_END = G_FH + 2048
assert G_END <= G_STRIDE
WS_BYTES = WS_G + 8 * G_STRIDE

L_WK, L_WV, L_WQ, L_WO, L_S = 0, 28 * KB, 56 * KB, 84 * KB, 112 * KB
L_XST = 48 * KB
S_KVP, S_KVS = 0, 16 * KB
S_CS = 18 * KB
S_STAT, S_TR = 42 * KB, 44 * KB
LDS_BYTES = 160 * KB

SX, SQ, SO, S1, S2, SOUT, SWS, SG = ("s[8:11]", "s[12:15]", "s[16:19]", "s[20:23]", "s[24:27]", "s[28:31]",
                                     "s[32:35]", "s[36:39]")
sE, sg, sh, srh, sw, sfast, srq, scb, stb, sxs, slim = ("s56", "s57", "s58", "s59", "s60", "s61", "s62", "s63",
                                                        "s64", "s65", "s66")
sT0, sT1, sT2, sT3, sT4, sT5 = "s40", "s41", "s42", "s43", "s44", "s45"
sCnt, sNeed = "s46", "s47"
sONES, sLOG2E, sEPS6, sHI = "s48", "s49", "s50", "s51"
sM28 = "s[52:53]"
sMPAD = "s[54:55]"
sHB, sXB, sSTB = "s67", "s68", "s69"
STAMP0 = 80
sU = [f"s{70 + i}" for i in range(10)]
SPK = "s[20:23]"

vLane, vL16, vTrA, vTrB = "v0", "v1", "v2", "v3"
vCS1 = 4
vCSQ = 6
vS16 = "v12"
vT0, vT1, vT2 = "v13", "v14", "v15"


def V(n, k=4):
    return f"v[{n}:{n + k - 1}]" if k > 1 else f"v{n}"


def A(n, k=4):
    return f"a[{n}:{n + k - 1}]" if k > 1 else f"a{n}"


def w1reg(s, lo=0, k=4):
    return A(224 + 4 * s + lo, k) if s < 8 else V(176 + 4 * (s - 8) + lo, k)


def w2reg(j, ch, lo=0, k=4):
    return A(8 * j + 4 * ch + lo, k)


MFMA = "v_mfma_f32_32x32x16_bf16"
MFMA16 = "v_mfma_f32_16x16x32_bf16"


class Capture:
    def __init__(self, g):
        self.g = g

    def __enter__(self):
        self.saved = self.g.p.ins
        self.g.p.ins = []
        self.ins = self.g.p.ins
        return self

    def __exit__(self, *a):
        self.g.p.ins = self.saved


class Gen:
    def __init__(self, diag=False, force_slow=False, pad=0, part=0, **opt):
        self.p = Prog()
        self.diag = diag
        self.force_slow = force_slow
        self.pad = pad
        self.part = part
        self.opt = opt
        self.nstamp = 0
        self.seen = 0
        self.stamp_names = []
        self.pending = False
        self.tail = []
        self.fast = True
        self.sfx = ""

    def cap(self):
        return Capture(self)

    def stamp(self, name, op="s_memrealtime"):
        if self.opt.get("amp") == name and self.fast:
            self.p("s_memrealtime s[94:95]")
        if not self.diag or not self.fast:
            return
        self.seen += 1
        lo = self.opt.get("from", 18 * self.part)
        if self.seen > 2 and not (lo <= self.seen - 3 < lo + 18):
            return
        self.stamp_flush()
        assert STAMP0 + self.nstamp < 100, "too many stamps"
        if self.opt.get("clk") and self.seen > 1:
            op = "s_memtime"
        self.p(f"{op} s[100:101]")
        self.stamp_names.append(name)
        self.nstamp += 1
        self.pending = True

    def stamp_flush(self):
        if self.diag and self.pending:
            self.p(f"s_mov_b32 s{STAMP0 + self.nstamp - 1}, s100")
            self.pending = False

    def publish(self, stores, tag="pub", always_sc1=False):
        for s in stores:
            self.p(s + (" sc1" if s.startswith("buffer_") and (always_sc1 or not self.fast) else ""), tag)

    def flag(self, soff, val, n=1, wait="pub", tmp=14, st=sT5):
        p = self.p
        p(f"s_add_u32 {st}, {sE}, {val}")
        p(f"v_mov_b32 v{tmp}, {st}")
        if n == 2:
            p(f"v_mov_b32 v{tmp + 1}, {st}")
        op = f"buffer_store_dword v{tmp}" if n == 1 else f"buffer_store_dwordx2 v[{tmp}:{tmp + 1}]"
        p.wait_vm(wait)
        self.publish(["s_mov_b64 exec, 1", f"{op}, {vL16}, {SG}, {soff} offen", "s_mov_b64 exec, -1"], "flag")

    def poll_load(self, vaddr, srd, soff, n, tmp):
        if n == 1:
            self.p(f"buffer_load_dword v{tmp}, {vaddr}, {srd}, {soff} offen sc1")
        else:
            self.p(f"buffer_load_dwordx2 v[{tmp}:{tmp + 1}], {vaddr}, {srd}, {soff} offen sc1")

    def poll_test(self, n, tmp, need, win=3):
        p = self.p
        p(f"v_subrev_u32 v{tmp}, {need}, v{tmp}")
        if n == 2:
            p(f"v_subrev_u32 v{tmp + 1}, {need}, v{tmp + 1}")
            p(f"v_or_b32 v{tmp}, v{tmp}, v{tmp + 1}")
        p(f"v_cmp_lt_u32 vcc, {win}, v{tmp}")

    def spin(self, vaddr, srd, soff, n, tmp, need, done, sleep=0, win=3):
        p = self.p
        lp = p.label("poll")
        p(f"s_mov_b32 {sCnt}, {slim}")
        p(f"{lp}:")
        self.poll_load(vaddr, srd, soff, n, tmp)
        p("s_waitcnt vmcnt(0)")
        self.poll_test(n, tmp, need, win)
        p(f"s_cbranch_vccz {done}")
        sleep = sleep or self.opt.get("slp", 0)
        if sleep:
            p(f"s_sleep {sleep}")
        p(f"s_sub_u32 {sCnt}, {sCnt}, 1")
        p(f"s_cmp_lg_u32 {sCnt}, 0")
        p(f"s_cbranch_scc1 {lp}")
        p(f"s_mov_b32 {slim}, 1")

    def poll(self, vaddr, srd, soff, need, n=1, tmp=14, sleep=0):
        p = self.p
        ld = p.label("polled")
        p(f"s_add_u32 {sNeed}, {sE}, {need}")
        self.spin(vaddr, srd, soff, n, tmp, sNeed, ld, sleep)
        p(f"{ld}:")

    def apoll_end(self, vaddr, srd, soff, need, n=1, tmp=14, win=3):
        p = self.p
        lo, lb = p.label("aspin"), p.label("aback")
        p(f"s_add_u32 {sNeed}, {sE}, {need}")
        self.poll_test(n, tmp, sNeed, win)
        p(f"s_cbranch_vccnz {lo}")
        p(f"{lb}:")
        with self.cap() as c:
            p(f"{lo}:")
            p("s_nop 4")
            self.spin(vaddr, srd, soff, n, tmp, sNeed, lb, 0, win)
            p(f"s_branch {lb}")
        self.tail.extend(c.ins)

    def trread(self, dst_lo, dst_hi, vaddr, off, second=512):
        return [Ins(f"ds_read_b64_tr_b16 {dst_lo}, {vaddr} offset:{off}"),
                Ins(f"ds_read_b64_tr_b16 {dst_hi}, {vaddr} offset:{off + second}")]

    def transpose_block(self, reg, aw, ar):
        return [Ins(f"ds_write_b128 {aw}, {reg(0, 4)}"),
                Ins(f"ds_read_b64_tr_b16 {reg(0, 2)}, {ar}"),
                Ins(f"ds_read_b64_tr_b16 {reg(2, 2)}, {ar} offset:512")]

    def tr_addrs(self, aw, ar):
        p = self.p
        p(f"s_lshl_b32 {sT0}, {sw}, 10")
        p(f"s_add_u32 {sT0}, {sT0}, {L_S + S_TR}")
        p(f"v_add_u32 {aw}, {sT0}, {vL16}")
        p(f"v_add_u32 {ar}, {sT0}, {vTrA}")

    def both_halves(self, s, q, tmp):
        p = self.p
        p(f"v_permlane32_swap_b32 {s}, {q}")
        p(f"v_add_f32 {s}, {s}, {q}")

    def stats_finish(self, t, u, mean, var):
        p = self.p
        p(f"v_mov_b32 {u}, {t}")
        p(f"v_permlane32_swap_b32 {t}, {u}")
        p(f"v_mul_f32 {mean}, 0x3b124925, {t}")
        p(f"v_mul_f32 {var}, 0x3b124925, {u}")
        p(f"v_fma_f32 {var}, -{mean}, {mean}, {var}")
        p(f"v_max_f32 {var}, 0, {var}")
        p(f"v_add_f32 {var}, 0x3727c5ac, {var}")

    def split_words(self, x, w0, w1, t, neg, xside):
        p = self.p
        s = "-" if neg else ""
        p(f"v_cvt_pk_bf16_f32 {w0}, {s}{x}, {s}{x}")
        p(f"v_and_b32 {t}, {sHI}, {w0}")
        p(f"v_sub_f32 {t}, {s}{x}, {t}" if not neg else f"v_sub_f32_e64 {t}, -{x}, {t}")
        if xside:
            p(f"v_and_b32 {w1}, 0xffff, {w0}")
            p(f"v_cvt_pk_bf16_f32 {t}, {t}, {t}")
            p(f"v_and_or_b32 {w0}, {t}, {sHI}, {w1}")
        else:
            p(f"v_cvt_pk_bf16_f32 {w1}, {t}, 0")

    def prologue(self):
        p = self.p
        p("s_cmp_lt_u32 s2, 256")
        p("s_cbranch_scc1 L_start")
        p("s_endpgm")
        p("L_start:")
        p("s_load_dwordx4 s[40:43], s[0:1], 0")
        p("s_load_dwordx2 s[52:53], s[0:1], 64")
        p("s_load_dwordx2 s[44:45], s[0:1], 16")
        p("s_load_dwordx4 s[48:51], s[0:1], 32")
        p("s_load_dwordx2 s[46:47], s[0:1], 48")
        self.stamp("realtime", "s_memrealtime")
        if self.pad:
            p("s_memrealtime s[96:97]")
            p("s_memrealtime s[94:95]")
        p("s_getpc_b64 s[6:7]")
        p("L_pc:")
        p("v_lshrrev_b32 v13, 6, v0")
        p(f"v_and_b32 {vLane}, 63, v0")
        p(f"v_readfirstlane_b32 {sw}, v13")
        p(f"s_and_b32 {sg}, s2, 7")
        p(f"s_lshr_b32 s3, s2, 3")
        p(f"s_lshl_b32 s4, s3, 2")
        p(f"s_add_u32 s4, s4, {sw}")
        p(f"s_lshl_b32 s4, s4, 9")
        p(f"v_lshlrev_b32 v9, 7, {vLane}")
        p("v_add_u32 v13, s4, v9")
        p("v_min_u32 v13, L_fastend-L_pc-4, v13")
        p("s_mov_b64 exec, 0xf")
        p("global_load_dword v10, v13, s[6:7]")
        p("s_mov_b64 exec, -1")
        p(f"s_and_b32 {sh}, s3, 15")
        p(f"s_lshr_b32 {srh}, s3, 4")
        p(f"s_lshl_b32 s2, {sg}, 1")
        p(f"s_add_u32 s2, s2, {srh}")
        p("s_lshl_b32 s3, s2, 2")
        p(f"s_add_u32 s3, s3, {sw}")
        p("s_min_u32 s5, s3, 55")
        p("s_cmp_ge_u32 s5, 28")
        p("s_cselect_b32 s4, 1, 0")
        p("s_cselect_b32 s6, 28, 0")
        p("s_sub_u32 s5, s5, s6")
        p(f"v_lshrrev_b32 v13, 2, {vLane}")
        p(f"v_and_b32 v15, 3, {vLane}")
        p("v_lshlrev_b32 v15, 4, v15")
        p("v_mul_u32_u24 v14, 2688, v13")
        p("v_add_u32 v6, v14, v15")
        p("v_mul_u32_u24 v14, 896, v13")
        p("v_add_u32 v7, v14, v15")
        p("v_mul_u32_u24 v14, 3584, v13")
        p("v_add_u32 v8, v14, v15")
        p(f"s_cmp_ge_u32 {sh}, 7")
        p(f"s_cselect_b32 s6, 1, 0")
        p(f"s_cselect_b32 s7, 7, 0")
        p(f"s_lshl_b32 {srq}, {srh}, 1")
        p(f"s_add_u32 {srq}, {srq}, s6")
        p(f"s_sub_u32 {scb}, {sh}, s7")
        p(f"s_lshl_b32 {stb}, {srh}, 2")
        p(f"s_and_b32 s6, {sw}, 1")
        p(f"s_lshl_b32 s6, s6, 1")
        p(f"s_lshr_b32 s7, {sw}, 1")
        p(f"s_or_b32 s6, s6, s7")
        p(f"s_add_u32 {sxs}, {stb}, s6")
        p(f"s_add_u32 {stb}, {stb}, {sw}")
        p(f"v_lshlrev_b32 {vL16}, 4, {vLane}")
        p(f"v_lshrrev_b32 v13, 3, {vLane}")
        p("v_mul_u32_u24 v14, 896, v13")
        p("v_lshrrev_b32 v13, 1, v13")
        p(f"v_and_b32 v15, 7, {vLane}")
        p("v_xor_b32 v13, v13, v15")
        p("v_lshl_add_u32 v16, v13, 4, v14")
        p("v_xor_b32 v13, 4, v13")
        p("v_lshl_add_u32 v17, v13, 4, v14")
        p(f"s_lshl_b32 {sU[0]}, {sg}, 3")
        p(f"s_add_u32 {sU[0]}, {sU[0]}, {stb}")
        p(f"s_mul_i32 {sU[0]}, {sU[0]}, {32 * 896}")
        p(f"s_mul_i32 {sU[1]}, {sw}, {28 * KB}")
        p(f"s_add_u32 {sU[1]}, {sU[1]}, {L_XST}")
        p(f"s_cmp_ge_u32 {sh}, 14")
        p(f"s_cselect_b32 {sU[2]}, 7, 0")
        p(f"s_sub_u32 {sU[2]}, {scb}, {sU[2]}")
        p(f"s_mul_i32 {sU[7]}, s2, 37")
        p(f"s_lshr_b32 {sU[7]}, {sU[7]}, 8")
        p(f"s_mul_i32 {sU[7]}, {sU[7]}, 7")
        p(f"s_sub_u32 {sU[6]}, s2, {sU[7]}")
        p(f"s_sub_i32 {sU[7]}, {sU[2]}, {sU[6]}")
        p(f"s_cmp_lt_i32 {sU[7]}, 0")
        p(f"s_cselect_b32 s6, 7, 0")
        p(f"s_add_i32 {sU[7]}, {sU[7]}, s6")
        p(f"s_mov_b32 s10, {2048 * 896}\ns_mov_b32 s11, 0x00020000")
        p(f"s_mov_b32 s14, {448 * 2688}\ns_mov_b32 s15, 0x00020000")
        p("s_waitcnt lgkmcnt(0)")
        self.stamp("start")
        p("s_mov_b32 s12, s42\ns_mov_b32 s13, s43")
        p("s_mov_b32 s8, s40\ns_mov_b32 s9, s41")
        p(f"s_load_dword {sE}, s[52:53], {WS_EPOCH}")
        for j in range(7):
            p(f"s_lshl_b32 {sU[3]}, {sU[2]}, 7")
            p(f"s_add_u32 {sU[3]}, {sU[3]}, {sU[0]}")
            p(f"s_lshl_b32 {sU[4]}, {sU[7]}, 12")
            p(f"s_add_u32 {sU[4]}, {sU[4]}, {sU[1]}")
            for b in range(4):
                p(f"s_add_u32 m0, {sU[4]}, {b * KB}")
                p(f"s_add_u32 {sU[5]}, {sU[3]}, {b * 8 * 896}")
                p(f"buffer_load_dwordx4 v{16 + (b & 1)}, {SX}, {sU[5]} offen lds", "x")
                if 4 * j + b + 1 == self.opt.get("xa", 4):
                    self.prologue2()
            if j < 6:
                p(f"s_add_u32 {sU[2]}, {sU[2]}, 1")
                p(f"s_cmp_eq_u32 {sU[2]}, 7")
                p(f"s_cselect_b32 {sU[2]}, 0, {sU[2]}")
                p(f"s_add_u32 {sU[7]}, {sU[7]}, 1")
                p(f"s_cmp_eq_u32 {sU[7]}, 7")
                p(f"s_cselect_b32 {sU[7]}, 0, {sU[7]}")

    def prologue2(self):
        p = self.p
        p(f"s_mul_i32 {sHB}, {stb}, {28 * KB}")
        p(f"s_add_u32 {sHB}, {sHB}, {G_O}")
        p(f"s_mul_i32 {sXB}, {sxs}, {28 * KB}")
        p(f"s_add_u32 {sXB}, {sXB}, {G_X}")
        p(f"s_mul_i32 {sSTB}, {stb}, {7 * KB}")
        p(f"s_add_u32 {sSTB}, {sSTB}, {G_ST}")
        p(f"s_mov_b32 {slim}, 40000")
        p(f"v_add_u32 {vS16}, {L_S}, {vL16}")
        p(f"v_and_b32 v13, 3, {vLane}")
        p("v_lshlrev_b32 v13, 3, v13")
        p(f"v_bfe_u32 v14, {vLane}, 4, 1")
        p("v_lshl_add_u32 v13, v14, 5, v13")
        p(f"v_bfe_u32 v14, {vLane}, 2, 2")
        p("v_lshl_add_u32 v13, v14, 6, v13")
        p(f"v_lshrrev_b32 v14, 5, {vLane}")
        p(f"v_lshl_add_u32 {vTrA}, v14, 8, v13")
        p(f"v_add_u32 {vTrB}, {L_WQ}, {vTrA}")
        p("v_lshl_add_u32 v62, v14, 9, v13")
        p(f"v_add_u32 v63, {L_WQ}, v62")
        p(f"v_and_b32 v13, 31, {vLane}")
        p("v_lshrrev_b32 v14, 3, v13")
        p("v_lshlrev_b32 v14, 10, v14")
        p("v_and_b32 v15, 7, v13")
        p("v_lshl_add_u32 v14, v15, 7, v14")
        p(f"v_add_u32 v14, {sU[1]}, v14")
        p("v_bfe_u32 v13, v13, 1, 3")
        p(f"v_lshrrev_b32 v15, 5, {vLane}")
        p("v_xor_b32 v13, v13, v15")
        for q in range(4):
            p(f"v_xor_b32 v15, {2 * q}, v13")
            p(f"v_lshl_add_u32 v{20 + q}, v15, 4, v14")
        p(f"v_lshrrev_b32 v15, 5, {vLane}")
        p("v_xor_b32 v13, v13, v15")
        p("v_lshl_add_u32 v14, v15, 3, v14")
        p(f"s_min_u32 s6, {sh}, 13")
        p("s_lshr_b32 s7, s6, 1")
        p(f"s_sub_i32 s7, s7, {sU[6]}")
        p("s_cmp_lt_i32 s7, 0")
        p(f"s_cselect_b32 {sU[8]}, 7, 0")
        p(f"s_add_i32 s7, s7, {sU[8]}")
        p("s_lshl_b32 s7, s7, 12")
        p("v_add_u32 v14, s7, v14")
        p("s_and_b32 s6, s6, 1")
        p("s_lshl_b32 s6, s6, 2")
        p("v_xor_b32 v13, s6, v13")
        for a in range(4):
            p(f"v_xor_b32 v15, {a}, v13")
            p(f"v_lshl_add_u32 v{24 + a}, v15, 4, v14")
        p(f"s_cmp_lt_u32 {sh}, 14")
        p(f"s_cselect_b32 s18, {448 * 448 * 2}, 0")
        p(f"s_cselect_b32 s22, {448 * 1792 * 2}, 0")
        p(f"s_cselect_b32 s26, {448 * 1792 * 2}, 0")
        for base, src, size in ((16, 44, None), (20, 48, None), (24, 50, None), (28, 46, 2048 * 896),
                                (32, 52, WS_BYTES)):
            p(f"s_mov_b32 s{base}, s{src}")
            p(f"s_mov_b32 s{base + 1}, s{src + 1}")
            if size is not None:
                p(f"s_mov_b32 s{base + 2}, {size}")
            p(f"s_mov_b32 s{base + 3}, 0x00020000")
        p(f"s_mul_i32 s6, {sg}, {G_STRIDE}")
        p(f"s_add_u32 s6, s6, {WS_G}")
        p("s_add_u32 s36, s52, s6")
        p("s_addc_u32 s37, s53, 0")
        p(f"s_mov_b32 s38, {G_STRIDE}")
        p("s_mov_b32 s39, 0x00020000")

    def kv_clear(self):
        p = self.p
        p(f"s_lshl_b32 {sT0}, {sh}, 15")
        p(f"s_lshl_b32 {sT1}, s3, 9")
        p(f"s_add_u32 {sT0}, {sT0}, {sT1}")
        p(f"s_add_u32 {sT0}, {sT0}, {WS_KV}")
        p(f"s_add_u32 {sT1}, {sT0}, {KV_L}")
        p("v_mov_b32 v36, -1\nv_mov_b32 v37, -1")
        p(f"v_lshlrev_b32 v11, 3, {vLane}")
        p(f"buffer_store_dwordx2 v[36:37], v11, {SWS}, {sT0} offen sc1", "pb")
        p(f"buffer_store_dwordx2 v[36:37], v11, {SWS}, {sT1} offen sc1", "pb")

    def wqkv_setup(self):
        p = self.p
        p(f"s_mul_i32 s0, {sh}, 56")
        p(f"s_mul_i32 s1, {sw}, {16 * 2688}")
        p("s_add_u32 s0, s0, s1")
        p(f"s_lshl_b32 s1, {sw}, 10")
        p(f"s_mov_b32 {sU[8]}, {sU[6]}")
        p(f"s_mov_b32 {sU[4]}, {sU[6]}")

    def wqkv_item(self, m, lbase, tag):
        p = self.p
        cnt = sU[8] if m == 2 else sU[6]
        with self.cap() as c:
            p(f"s_lshl_b32 {sU[7]}, {cnt}, 12")
            p(f"s_add_u32 {sU[7]}, {sU[7]}, s1")
            p(f"s_add_u32 m0, {sU[7]}, {lbase}")
            p(f"s_mul_i32 {sU[7]}, {cnt}, {64 * 2688}")
            p(f"s_add_u32 {sU[7]}, {sU[7]}, s0")
            if m:
                p(f"s_add_u32 {sU[7]}, {sU[7]}, {896 * m}")
            p(f"buffer_load_dwordx4 v6, {SQ}, {sU[7]} offen lds", tag)
            p(f"s_add_u32 {cnt}, {cnt}, 1")
            p(f"s_cmp_eq_u32 {cnt}, 7")
            p(f"s_cselect_b32 {cnt}, 0, {cnt}")
        return c.ins

    def group_base(self, dst, base):
        p = self.p
        with self.cap() as c:
            p(f"s_lshl_b32 {sT4}, {sU[4]}, 12")
            p(f"v_add_u32 {dst}, {sT4}, {base}")
            p(f"s_add_u32 {sU[4]}, {sU[4]}, 1")
            p(f"s_cmp_eq_u32 {sU[4]}, 7")
            p(f"s_cselect_b32 {sU[4]}, 0, {sU[4]}")
        return c.ins

    def consts(self):
        p = self.p
        p(f"s_mov_b32 {sONES}, 0x3f803f80")
        p(f"s_mov_b32 {sLOG2E}, 0x3fb8aa3b")
        p(f"s_mov_b32 {sEPS6}, 0x358637bd")
        p(f"s_mov_b32 {sHI}, 0xffff0000")
        p("s_mov_b32 s52, 0x10000000")
        p("s_mov_b32 s53, 0x10000000")
        p("s_mov_b32 s54, 0")
        p("s_mov_b32 s55, -1")

    def ready(self, base):
        p = self.p
        p(f"s_lshl_b32 {sT2}, {sh}, 4")
        p(f"s_add_u32 {sT2}, {sT2}, s2")
        p(f"s_lshl_b32 {sT2}, {sT2}, 7")
        p(f"s_add_u32 {sT2}, {sT2}, {base}")
        p(f"s_cmp_eq_u32 {sw}, 0")
        p(f"s_cselect_b32 {sT2}, {sT2}, {OOB}")
        p(f"s_add_u32 {sT5}, {sE}, {sfast}")
        p(f"s_add_u32 {sT5}, {sT5}, 1")
        p(f"v_mov_b32 v14, {sT5}")
        p("s_mov_b64 exec, 1")
        p(f"buffer_store_dword v14, {vL16}, {SWS}, {sT2} offen sc1")
        p("s_mov_b64 exec, -1")

    def pack_b_loads(self):
        p = self.p
        p(f"s_mul_i32 {sT0}, s5, {16 * 3584}")
        p(f"s_lshl_b32 {sT1}, {sh}, 8")
        p(f"s_add_u32 {sT0}, {sT0}, {sT1}")
        p(f"s_lshl_b32 {sT1}, s4, 7")
        p(f"s_add_u32 {sT0}, {sT0}, {sT1}")
        p(f"buffer_load_dwordx4 a[40:43], v8, {S1}, {sT0} offen")
        p(f"buffer_load_dwordx4 a[44:47], v8, {S1}, {sT0} offen offset:64")
        p(f"s_mul_i32 {sU[1]}, {sh}, 112")
        p(f"s_mul_i32 {sT1}, s4, 56")
        p(f"s_add_u32 {sU[1]}, {sU[1]}, {sT1}")
        p(f"s_add_u32 {sU[1]}, {sU[1]}, s5")
        p(f"s_lshl_b32 {sU[1]}, {sU[1]}, 10")
        p(f"s_add_u32 {sU[1]}, {sU[1]}, {WS_P1}")
        p(f"s_cmp_lt_u32 {sh}, 14")
        p(f"s_cselect_b32 s22, {WS_BYTES}, 0")
        p("s_mov_b32 s20, s32\ns_mov_b32 s21, s33")
        self.tr_addrs("v4", "v5")

    def pack_c_loads(self):
        p = self.p
        p(f"s_and_b32 {sU[5]}, {srq}, 1")
        p(f"s_lshl_b32 {sU[5]}, {sU[5]}, 6")
        p(f"s_add_u32 {sU[5]}, {sU[5]}, s3")
        p(f"s_mul_i32 {sU[0]}, {sU[5]}, {16 * 896}")
        p(f"s_lshl_b32 {sU[2]}, {scb}, 7")
        p(f"s_add_u32 {sU[0]}, {sU[0]}, {sU[2]}")
        p(f"s_mul_i32 {sU[2]}, {scb}, 112")
        p(f"s_add_u32 {sU[2]}, {sU[2]}, {sU[5]}")
        p(f"s_lshl_b32 {sU[2]}, {sU[2]}, 11")
        p(f"s_add_u32 {sU[2]}, {sU[2]}, {WS_P2}")
        p(f"s_cmp_lt_u32 {sU[5]}, 112")
        p(f"s_cselect_b32 {sU[0]}, {sU[0]}, {OOB}")
        p(f"s_cselect_b32 {sU[2]}, {sU[2]}, {OOB}")
        p(f"buffer_load_dwordx4 a[48:51], v7, {S2}, {sU[0]} offen")
        p(f"buffer_load_dwordx4 a[52:55], v7, {S2}, {sU[0]} offen offset:64")

    def pack_b_items(self):
        items = [self.transpose_block(lambda lo, k, r=r: A(r + lo, k), "v4", "v5") for r in (40, 44)]
        items.append([Ins(f"buffer_store_dwordx4 a[40:43], {vL16}, {SPK}, {sU[1]} offen sc1", "pb"),
                      Ins(f"s_add_u32 {sU[1]}, {sU[1]}, {28 * KB}")])
        items.append([Ins(f"buffer_store_dwordx4 a[44:47], {vL16}, {SPK}, {sU[1]} offen sc1", "pb")])
        return items

    def pack_c_items(self):
        items = [self.transpose_block(lambda lo, k, r=r: A(r + lo, k), "v4", "v5") for r in (48, 52)]
        items.append([Ins(f"buffer_store_dwordx4 a[48:51], {vL16}, {SPK}, {sU[2]} offen sc1", "pb")])
        items.append([Ins(f"buffer_store_dwordx4 a[52:55], {vL16}, {SPK}, {sU[2]} offen offset:1024 sc1", "pb")])
        return items

    def dma_items(self, vaddr, srd, first, count, tag, stm):
        p = self.p
        items = []
        for u in range(count):
            with self.cap() as c:
                if u == 0:
                    p(f"s_mul_i32 {stm}, {sw}, {count * KB}")
                if u % 4 == 0:
                    p(f"s_add_u32 m0, {stm}, {(first + u) * KB}")
                p(f"buffer_load_dwordx4 {vaddr}, {srd}, m0 offen offset:{(u % 4) * KB} sc1 lds", tag)
            items.append(c.ins)
        return items

    def w1_items(self):
        p = self.p
        items = []
        for s in range(28):
            with self.cap() as c:
                if s == 0:
                    p(f"s_lshl_b32 s24, {sh}, 2")
                    p(f"s_add_u32 s24, s24, {sw}")
                    p(f"s_mul_i32 s24, s24, {28 * KB}")
                    p(f"s_add_u32 s24, s24, {WS_P1}")
                elif s % 4 == 0:
                    p(f"s_add_u32 s24, s24, {4 * KB}")
                p(f"buffer_load_dwordx4 {w1reg(s)}, {vL16}, {SPK}, s24 offen offset:{(s % 4) * KB} sc1", "w1")
            items.append(c.ins)
        return items

    def pack_d_loads(self):
        p = self.p
        p(f"s_mul_i32 {sT2}, s5, {16 * 896}")
        p(f"s_lshl_b32 {sT1}, {sh}, 6")
        p(f"s_add_u32 {sT2}, {sT2}, {sT1}")
        p(f"s_mul_i32 {sT1}, {sh}, 28")
        p(f"s_add_u32 {sT1}, {sT1}, s5")
        p(f"s_lshl_b32 {sT1}, {sT1}, 10")
        p(f"s_add_u32 {sU[9]}, {sT1}, {WS_PO}")
        p("s_cmp_eq_u32 s4, 0")
        p(f"s_cselect_b32 {sT2}, {OOB}, {sT2}")
        p(f"s_cselect_b32 {sU[9]}, {OOB}, {sU[9]}")
        p(f"buffer_load_dwordx4 v[32:35], v7, {SO}, {sT2} offen")
        if self.opt.get("mall", 1):
            p(f"s_lshl_b32 {sT0}, {sh}, 6")
            p(f"s_add_u32 {sT0}, {sT0}, s3")
            p(f"s_lshr_b32 {sT1}, {sT0}, 1")
            p(f"s_mul_i32 {sT1}, {sT1}, 2688")
            p(f"s_and_b32 {sT0}, {sT0}, 1")
            p(f"s_mul_i32 {sT0}, {sT0}, 384")
            p(f"s_add_u32 {sT0}, {sT0}, {sT1}")
            p("s_mov_b64 exec, 0xf")
            p(f"buffer_load_dword v10, v9, {SQ}, {sT0} offen", "touch")
            p("s_mov_b64 exec, -1")

    def pack_d_items(self):
        return [[Ins(f"buffer_store_dwordx4 v[32:35], {vL16}, {SPK}, {sU[9]} offen sc1", "pb")]]

    def touch_items(self, base, lines, per=16):
        p = self.p
        with self.cap() as c:
            p(f"s_mul_i32 {sU[7]}, {srh}, {per}")
            p(f"s_add_u32 {sU[7]}, {sU[7]}, {sh}")
            p(f"s_lshl_b32 {sU[7]}, {sU[7]}, 2")
            p(f"s_add_u32 {sU[7]}, {sU[7]}, {sw}")
            p(f"s_mul_i32 {sU[7]}, {sU[7]}, {lines * 128}")
            p(f"s_add_u32 {sU[7]}, {sU[7]}, {base}")
            assert lines < 32
            p(f"s_mov_b64 exec, {(1 << lines) - 1}")
            p(f"buffer_load_dword v10, v9, {SG}, {sU[7]} offen", "touch")
            p("s_mov_b64 exec, -1")
        return [c.ins]

    def startup(self):
        p = self.p
        p(f"s_getreg_b32 {sfast}, hwreg(HW_REG_XCC_ID, 0, 4)")
        self.wqkv_setup()
        self.pack_b_loads()
        self.pack_c_loads()
        self.pack_d_loads()
        nk0 = self.opt.get("nk0", 4)
        for u in range(nk0):
            p.add(self.wqkv_item(1, L_WK, f"g{u}"))
        p.wait_vm("x")
        p("s_waitcnt lgkmcnt(0)")
        self.consts()
        self.stamp("x_landed")
        for s in range(28):
            p(f"ds_read_b128 {V(64 + 4 * s)}, v{20 + (s & 3)} offset:{(s >> 2) * 4096}")
        for a in range(4):
            p(f"ds_read_b64 {A(56 + 2 * a, 2)}, v{24 + a}")
        for r in range(52, 56):
            p(f"v_mov_b32 v{r}, 0")
        with self.cap() as c:
            for i in range(112):
                p(f"v_dot2c_f32_bf16 v{52 + (i & 1)}, {sONES}, v{64 + i}")
                p(f"v_dot2c_f32_bf16 v{54 + (i & 1)}, v{64 + i}, v{64 + i}")
            p("v_add_f32 v52, v52, v53")
            p("v_add_f32 v54, v54, v55")
            self.both_halves("v52", "v54", None)
            self.stats_finish("v52", "v53", "v56", "v58")
            p("v_rsq_f32 v58, v58")
            p("v_mul_f32_e64 v56, -v56, v58")
            p("v_mov_b32 v59, v58")
            p("v_mov_b32 v57, v56")
            for i in range(0, 112 if not self.opt.get("noln") else 8, 2):
                t = 16 + 4 * ((i >> 1) & 1)
                for k in range(2):
                    p(f"v_lshlrev_b32 v{t + 2 * k}, 16, v{64 + i + k}")
                    p(f"v_and_b32 v{t + 2 * k + 1}, {sHI}, v{64 + i + k}")
                for k in range(2):
                    p(f"v_pk_fma_f32 {V(t + 2 * k, 2)}, {V(t + 2 * k, 2)}, v[58:59], v[56:57]")
                for k in range(2):
                    p(f"v_cvt_pk_bf16_f32 v{64 + i + k}, v{t + 2 * k}, v{t + 2 * k + 1}")
        main = groups(c.ins, 4)
        n = len(main)
        seq = []
        for u in range(7):
            if u >= nk0:
                seq.append(self.wqkv_item(1, L_WK, f"g{u}"))
            seq.append(self.wqkv_item(2, L_WV, f"g{u}"))
        nl = self.opt.get("nl", 6)
        self.kvrest = seq[nl:]
        with self.cap() as c1:
            self.kv_clear()
        packs = [c1.ins] + self.pack_d_items() + self.pack_b_items() + self.pack_c_items()
        with self.cap() as c2:
            p(f"s_mul_i32 {sT0}, {sh}, {28 * KB}")
            p(f"s_add_u32 {sT1}, {sT0}, {WS_PO - L_WO}")
            p(f"v_add_u32 v8, {sT1}, {vL16}")
        g0, g1 = n * self.opt.get("g0", 25) // 100, n * self.opt.get("g1", 55) // 100
        gb = n * self.opt.get("gb", 1) // 100
        with self.cap() as cb:
            p.wait_ds()
            p("s_barrier")
        p.add(spread(main, [([cb.ins], gb, gb), (seq[:nl], gb + 1, n * self.opt.get("gk", 98) // 100),
                            (packs + [c2.ins], max(g0, gb + 1), g1)]))
        self.stamp("ln_done")

    def phi(self, acc, out, tmp, scale=None, pk=None):
        p = self.p
        for r0 in range(0, 16, 2):
            rr = (r0, r0 + 1)
            a = {r: f"v{acc + r}" for r in rr}
            t = {r: f"v{tmp + (r & 3)}" for r in rr}
            a2, t2 = V(acc + r0, 2), V(tmp + (r0 & 3), 2)
            if pk is not None:
                k2 = V(pk, 2)
                if scale is None:
                    p(f"v_pk_add_f32 {a2}, {a2}, {k2} op_sel_hi:[1,0]")
                else:
                    sc, hi = scale(r0)
                    p(f"v_pk_fma_f32 {a2}, {a2}, {sc}, {k2} op_sel_hi:[1,{hi},0]")
                p(f"v_pk_mul_f32 {t2}, {a2}, {k2} op_sel:[0,1] op_sel_hi:[1,1]")
            else:
                for r in rr:
                    if scale is None:
                        p(f"v_add_f32 {a[r]}, {sEPS6}, {a[r]}")
                    else:
                        p(f"v_fma_f32 {a[r]}, {a[r]}, {scale(r)}, {sEPS6}")
                for r in rr:
                    p(f"v_mul_f32 {t[r]}, {sLOG2E}, {a[r]}")
            for r in rr:
                p(f"v_exp_f32 {t[r]}, {t[r]} clamp")
            for r in rr:
                p(f"v_max_f32 {a[r]}, {sEPS6}, {a[r]}")
            if pk is not None:
                p(f"v_pk_add_f32 {a2}, {a2}, {t2}")
            else:
                for r in rr:
                    p(f"v_add_f32 {a[r]}, {a[r]}, {t[r]}")
            p(f"v_cvt_pk_bf16_f32 v{out + (r0 >> 1)}, {a[r0]}, {a[r0 + 1]}")

    def v_pack(self):
        p = self.p
        for r in range(8):
            p(f"v_cvt_pk_bf16_f32 v{32 + r}, v{32 + 2 * r}, v{33 + 2 * r}")
        p(f"s_mov_b64 exec, {sM28}")
        for r in range(8):
            p(f"v_mov_b32 v{32 + r}, {sONES}")
        p("s_mov_b64 exec, -1")

    def kv_addrs(self, layer, a0, a1, a2):
        p = self.p
        p(f"s_lshl_b32 {sT0}, {sw}, 10")
        p(f"v_add_u32 {a0}, {sT0}, {vS16}")
        p(f"s_lshl_b32 {sT0}, {sw}, 12")
        p(f"v_add_u32 {a1}, {sT0}, {vS16}")
        p(f"v_lshlrev_b32 {a2}, 3, {vLane}")
        p(f"s_lshl_b32 {sT0}, {sh}, 15")
        p(f"s_lshl_b32 {sT1}, {sw}, 9")
        p(f"s_add_u32 {sT0}, {sT0}, {sT1}")
        p(f"s_add_u32 s6, {sT0}, {WS_KV + layer * KV_L}")
        p(f"s_lshl_b32 {sT1}, {sg}, 1")
        p(f"s_add_u32 {sT1}, {sT1}, {srh}")
        p(f"s_lshl_b32 {sT1}, {sT1}, 11")
        p(f"s_add_u32 s7, {sT1}, s6")

    def kv_publish(self, kvacc, a0, a1, a2):
        p = self.p
        p(f"{MFMA} {kvacc(0, 16)}, {V(16)}, {V(32)}, 0")
        p(f"{MFMA} {kvacc(0, 16)}, {V(20)}, {V(36)}, {kvacc(0, 16)}")
        for q in range(4):
            p(f"ds_write_b128 {a0}, {kvacc(4 * q, 4)} offset:{S_KVP + q * 4096}")
        p.wait_ds()
        p("s_barrier")
        for u in range(4):
            p(f"ds_read_b128 {V(32 + 4 * u)}, {a1} offset:{S_KVP + u * 1024}")
        for r in (0, 2):
            p(f"v_pk_add_f32 {V(32 + r, 2)}, {V(32 + r, 2)}, {V(36 + r, 2)}")
        for r in (0, 2):
            p(f"v_pk_add_f32 {V(40 + r, 2)}, {V(40 + r, 2)}, {V(44 + r, 2)}")
        for r in (0, 2):
            p(f"v_pk_add_f32 {V(32 + r, 2)}, {V(32 + r, 2)}, {V(40 + r, 2)}")
        p("v_cvt_pk_bf16_f32 v28, v32, v33")
        p("v_cvt_pk_bf16_f32 v29, v34, v35")
        p(f"buffer_store_dwordx2 v[28:29], {a2}, {SWS}, s7 offen sc1", "kvpub")

    def o_addrs(self):
        p = self.p
        p(f"s_mul_i32 {sT0}, {sh}, 7")
        p(f"v_lshrrev_b32 v16, 5, {vLane}")
        p(f"v_add_u32 v16, {sT0}, v16")
        p(f"v_and_b32 v17, 31, {vLane}")
        p("v_lshlrev_b32 v17, 4, v17")
        p("v_and_b32 v18, 1, v16")
        p("v_lshl_add_u32 v17, v18, 9, v17")
        p("v_lshrrev_b32 v16, 1, v16")
        for j in range(4):
            p(f"v_add_u32 v18, {j}, v16")
            p("v_and_b32 v19, 1, v18")
            p("v_lshrrev_b32 v18, 1, v18")
            p("v_lshl_add_u32 v18, v18, 10, v17")
            p(f"v_lshl_add_u32 v{56 + j}, v19, 3, v18")
        p(f"s_lshr_b32 {sT0}, {sw}, 1")
        p(f"s_lshl_b32 {sT0}, {sT0}, 10")
        p(f"s_and_b32 {sT1}, {sw}, 1")
        p(f"s_lshl_b32 {sT1}, {sT1}, 3")
        p(f"s_add_u32 {sT0}, {sT0}, {sT1}")
        p(f"v_add_u32 v60, {sT0}, {vS16}")
        p(f"s_lshl_b32 {sT0}, {stb}, 7")
        p(f"s_lshl_b32 {sT1}, {sh}, 2")
        p(f"s_add_u32 {sT0}, {sT0}, {sT1}")
        p(f"s_add_u32 s3, {sT0}, {G_FO}")

    def gather_items(self, G, a2):
        p = self.p
        items = []
        for u in range(0, 16, 2):
            with self.cap() as c:
                p(f"s_add_u32 {sT5}, {sg}, {u // 2}")
                p(f"s_and_b32 {sT5}, {sT5}, 7")
                p(f"s_lshl_b32 {sT5}, {sT5}, 12")
                p(f"s_add_u32 {sT5}, {sT5}, s6")
                p(f"buffer_load_dwordx2 {V(G + 2 * u, 2)}, {a2}, {SWS}, {sT5} offen sc1")
                p(f"buffer_load_dwordx2 {V(G + 2 * u + 2, 2)}, {a2}, {SWS}, {sT5} offen offset:2048 sc1")
            items.append(c.ins)
        return items

    def kv_finish(self, layer, G, a2):
        p = self.p

        def sums():
            for r in range(16, 21):
                p(f"v_mov_b32 v{r}, 0")
            for u in range(16):
                for k in range(2):
                    p(f"v_dot2c_f32_bf16 v{16 + 2 * k}, {sT3}, v{G + 2 * u + k}")
                    p(f"v_dot2c_f32_bf16 v{17 + 2 * k}, {sT4}, v{G + 2 * u + k}")
                p(f"v_max3_u32 v20, v20, v{G + 2 * u}, v{G + 2 * u + 1}")
            p("v_cmp_eq_u32 vcc, -1, v20")
        p(f"s_mov_b32 {sT3}, 0x3f80")
        p(f"s_mov_b32 {sT4}, 0x3f800000")
        lo, lb, lp = p.label("kvspin"), p.label("kvback"), p.label("kvloop")
        if self.diag:
            p(f"s_mov_b32 s{18 + layer}, 0")
        sums()
        p(f"s_cbranch_vccnz {lo}")
        p(f"{lb}:")
        with self.cap() as c:
            p(f"{lo}:")
            p(f"s_mov_b32 {sCnt}, {slim}")
            p(f"{lp}:")
            if self.diag:
                p(f"s_add_u32 s{18 + layer}, s{18 + layer}, 1")
            for it in self.gather_items(G, a2):
                p.add(it)
            p("s_waitcnt vmcnt(0)")
            sums()
            p(f"s_cbranch_vccz {lb}")
            p(f"s_sub_u32 {sCnt}, {sCnt}, 1")
            p(f"s_cmp_lg_u32 {sCnt}, 0")
            p(f"s_cbranch_scc1 {lp}")
            p(f"s_mov_b32 {slim}, 1")
            p(f"s_branch {lb}")
        self.tail.extend(c.ins)
        self.stamp(f"kv_seen{layer}")
        p("v_cvt_pk_bf16_f32 v20, v16, v17")
        p("v_cvt_pk_bf16_f32 v21, v18, v19")
        p(f"ds_write_b64 v60, v[20:21] offset:{S_KVS}")
        p.wait_vm("wo")
        p.wait_ds()
        p("s_barrier")
        p(f"ds_read_b128 {V(24)}, {vS16} offset:{S_KVS}")
        p(f"ds_read_b128 {V(28)}, {vS16} offset:{S_KVS + 1024}")
        p(f"{MFMA} {V(32, 16)}, {V(24)}, {V(48)}, 0")
        p(f"{MFMA} {V(32, 16)}, {V(28)}, {V(52)}, {V(32, 16)}")
        p("v_mov_b32 v16, v44")
        p("v_mov_b32 v17, v44")
        p("v_permlane32_swap_b32 v16, v17")
        p(f"v_add_f32 v16, {sEPS6}, v17")
        p("v_rcp_f32 v16, v16")
        for r in range(0, 16, 2):
            p(f"v_pk_mul_f32 {V(32 + r, 2)}, {V(32 + r, 2)}, v[16:17] op_sel_hi:[1,0]")
        for r in range(8):
            p(f"v_cvt_pk_bf16_f32 v{20 + r}, v{32 + 2 * r}, v{33 + 2 * r}")
        st = [f"buffer_store_dwordx2 {V(20 + 2 * j, 2)}, v{56 + j}, {SG}, {sHB} offen" for j in range(3)]
        st += ["s_mov_b32 exec_hi, 0", f"buffer_store_dwordx2 {V(26, 2)}, v59, {SG}, {sHB} offen",
               "s_mov_b64 exec, -1"]
        self.publish(st)
        self.flag("s3", 1 + layer)
        self.stamp(f"o_pub{layer}")

    def single_pass(self, acc, frag, nfrag, vaddr, off, second, areg, first, last, transposed, zero):
        rd = lambda s: self.trread(frag(s % nfrag, 0), frag(s % nfrag, 2), vaddr, off + s * KB, second)
        head = []
        for s in range(first, first + nfrag - 1):
            head += rd(s)
        main = []
        for s in range(first, last):
            w, a = frag(s % nfrag, None), areg(s)
            c = 0 if (zero and s == first) else acc
            g = [Ins(f"{MFMA} {acc}, {w}, {a}, {c}" if transposed else f"{MFMA} {acc}, {a}, {w}, {c}")]
            if s + nfrag - 1 < last:
                g += rd(s + nfrag - 1)
            main.append(g)
        return head, main

    def qkv0(self):
        p = self.p
        rd = []
        for s in range(28):
            f = (s % 3) * 8
            va = f"v{54 + ((s >> 2) & 1)}"
            pre = []
            if s % 4 == 0:
                pre = self.group_base(va, "v62") + [Pseudo("wait_vm", f"g{s >> 2}"), Ins("s_barrier")]
            rd.append((pre + self.trread(A(f, 2), A(f + 2, 2), va, L_WK + (s & 3) * KB, 256),
                       self.trread(A(f + 4, 2), A(f + 6, 2), va, L_WV + (s & 3) * KB, 256)))
        head = rd[0][0] + rd[0][1] + rd[1][0] + rd[1][1]
        main = []
        for s in range(28):
            f = (s % 3) * 8
            for k in range(2):
                acc = V(16 + 16 * k, 16)
                g = [Ins(f"{MFMA} {acc}, {V(64 + 4 * s)}, {A(f + 4 * k)}, {acc if s else 0}")]
                if s + 2 < 28:
                    g += rd[s + 2][k]
                main.append(g)
        with self.cap() as c:
            self.kv_addrs(0, "v60", "v61", "v11")
            p(f"s_cmp_ge_u32 {sh}, 14")
            p(f"s_cselect_b32 {sT2}, {sh}, {scb}")
            p(f"s_cselect_b32 {sT3}, 0, {7 * 2048}")
            p(f"s_lshl_b32 {sT2}, {sT2}, 11")
            p(f"v_and_b32 v56, 15, {vLane}")
            p(f"v_bfe_u32 v57, {vLane}, 4, 1")
            p(f"v_mul_u32_u24 v58, {sT3}, v57")
            p("v_lshl_add_u32 v58, v56, 7, v58")
            p(f"v_add_u32 v58, {sT2}, v58")
            p(f"s_lshl_b32 {sT2}, {sg}, 8")
            p("v_lshlrev_b32 v56, 11, v56")
            p("v_lshl_add_u32 v56, v57, 7, v56")
            p(f"v_add_u32 v56, {sT2}, v56")
            p(f"v_cndmask_b32 v58, v58, v56, {sMPAD}")
            p(f"s_mov_b32 {sU[3]}, {WS_RB}")
        setup = groups(c.ins[:13]) + [c.ins[13:16]] + groups(c.ins[16:])
        with self.cap() as c1:
            self.poll_load("v58", SWS, sU[3], 1, 59)
        with self.cap() as c2:
            p.wait_vm("pb")
            p("s_barrier")
            self.ready(WS_RB)
        gr = self.opt.get("gr", 8)
        self.touch = {0: [], 1: [], 2: [], 3: [], 4: []}
        self.touch[self.opt.get("to", 2)] += self.touch_items(G_O, 14)
        if self.opt.get("x0sc1", 0):
            self.touch[self.opt.get("tx", 2)] += self.touch_items(G_ST, 4)
        else:
            self.touch[self.opt.get("tx", 2)] += self.touch_items(G_X, 18)
        wq = [self.wqkv_item(0, L_WQ, "wq") for u in range(7)]
        gv = self.opt.get("gv", 5) * len(self.kvrest)
        gc = self.opt.get("gc", 56)
        early = gc < 56
        gw = self.opt.get("gw", 52)
        streams = [(self.kvrest, 0, gv), ([c2.ins], gr, gr), (wq + self.touch[1], max(gr, gv) + 1, gw),
                   (setup, gr + 2, gc - 14 if early else 50)]
        if early:
            streams.append(([c1.ins], gc - 12, gc - 12))
        slots = spread_groups(main, streams)
        p.add(head)
        for g in slots[:gc]:
            p.add(g)
        self.kvslots = slots[gc:]
        self.pollb = c1.ins
        if early:
            self.decide()
        else:
            self.kv0_rest()
            self.decide()

    def decide(self):
        p = self.p
        self.apoll_end("v58", SWS, sU[3], 1, 1, 59, 15)
        p(f"v_cmp_ne_u32 vcc, {sfast}, v59")
        p("s_cmp_eq_u32 vcc_hi, 0")
        self.stamp_flush()
        p("s_cbranch_scc1 L_slow" if self.force_slow else "s_cbranch_scc0 L_slow")

    def kv0_rest(self):
        p = self.p
        early = self.opt.get("gc", 56) < 56
        if early:
            self.stamp("rb_seen")
            self.bulk = self.w1_items()
            p.add(spread(self.kvslots, [(self.take(self.opt.get("bk", 8)), 0, len(self.kvslots) - 1)]))
        self.stamp("kv_gemm0")
        if not early:
            p.add(self.pollb)
        with self.cap() as c:
            p(f"v_mov_b32 v52, {sEPS6}")
            p(f"v_mov_b32 v53, {sLOG2E}")
            self.phi(16, 16, 48, pk=52)
        ep = groups(c.ins, 4)
        p.add(spread(ep, [(self.take(self.opt.get("be", 4)) if early else [], 0, len(ep) - 1)]))
        self.v_pack()
        self.kv_publish(lambda lo, k: A(24 + lo, k), "v60", "v61", "v11")
        self.stamp("kv_pub0")
        p("v_mov_b32 v13, v63")
        self.rot_offsets()
        p.wait_vm("wq")
        p("s_barrier")

    def take(self, n):
        out, self.bulk = self.bulk[:n], self.bulk[n:]
        return out

    def q0(self):
        p = self.p
        afrag = lambda i, lo: A(4 * i) if lo is None else A(4 * i + lo, 2)

        def rd(s):
            va = f"v{14 + ((s >> 2) & 1)}"
            pre = self.group_base(va, "v13") if s % 4 == 0 else []
            return pre + self.trread(afrag(s % 4, 0), afrag(s % 4, 2), va, (s & 3) * KB, 256)
        head = rd(0) + rd(1) + rd(2)
        main = []
        for s in range(28):
            g = [Ins(f"{MFMA} {V(48, 16)}, {afrag(s % 4, None)}, {V(64 + 4 * s)}, {V(48, 16) if s else 0}")]
            if s + 3 < 28:
                g += rd(s + 3)
            main.append(g)
        with self.cap() as c:
            p(f"v_mov_b32 v32, {sEPS6}")
            p(f"v_mov_b32 v33, {sLOG2E}")
            self.phi(48, 48, 36, pk=32)
            p(f"v_cndmask_b32 v54, v54, 0, {sMPAD}")
            p(f"v_cndmask_b32 v55, v55, 0, {sMPAD}")
            self.o_addrs()
        tail = groups(c.ins, 6)
        gg = self.opt.get("gg", 34)
        if self.opt.get("gc", 56) < 56:
            self.bulk = self.dma_items("v8", SPK, 84, 7, "wo", sU[5]) + self.bulk + self.w2_items()
        else:
            self.bulk = self.dma_items("v8", SPK, 84, 7, "wo", sU[5]) + self.w1_items() + self.w2_items()
        p.add(head)
        p.add(spread(main + tail, [(self.touch[2] + self.take(self.opt.get("bq", 13)), 0, gg - 1),
                                   (self.gather_items(64, "v11"), gg, gg + 8)]))
        for it in self.touch[3] + self.take(self.opt.get("b1", 8)):
            p.add(it)
        self.stamp("q_done0")

    def make_selector(self):
        p = self.p
        p("v_mov_b32 v15, 0")
        p("s_mov_b32 exec_lo, 0x00100001")
        p("s_mov_b32 exec_hi, 0x00100001")
        p(f"v_mov_b32 v15, {sONES}")
        p("s_mov_b64 exec, -1")
        for r in range(4):
            p(f"v_accvgpr_write_b32 a{32 + r}, v15")

    def colsum_qkv(self):
        p = self.p
        p(f"s_min_u32 {sU[0]}, {sw}, 2")
        p(f"s_mul_i32 {sU[0]}, {sU[0]}, {28 * KB}")
        p(f"v_add_u32 v60, {sU[0]}, {vTrA}")
        rd = lambda s: self.trread(V(32 + 4 * (s % 4), 2), V(34 + 4 * (s % 4), 2), "v60", s * KB)
        p.add(rd(0) + rd(1) + rd(2))
        self.make_selector()
        for s in range(28):
            p(f"{MFMA16} {A(36)}, {A(32)}, {V(32 + 4 * (s % 4))}, {A(36) if s else 0}")
            if s + 3 < 28:
                p.add(rd(s + 3))
        p(f"s_lshl_b32 {sU[0]}, {sw}, 9")
        p(f"v_lshlrev_b32 v60, 3, {vLane}")
        p(f"v_add_u32 v60, {L_S + S_STAT}, v60")
        p(f"v_add_u32 v61, {sU[0]}, v60")
        p("v_accvgpr_read_b32 v40, a36")
        self.split_words("v40", "v42", "v43", "v41", False, False)
        p("ds_write_b64 v61, v[42:43]")

    def colsum_qkv_fetch(self):
        p = self.p
        p(f"v_lshlrev_b32 v13, 3, {vLane}")
        p(f"v_add_u32 v13, {L_S + S_STAT}, v13")
        p(f"ds_read_b64 {V(vCSQ + 2, 2)}, v13")
        p(f"ds_read_b64 {V(vCSQ + 4, 2)}, v13 offset:512")
        p(f"ds_read_b64 {V(vCSQ, 2)}, v13 offset:1024")

    def colsum_w1_items(self):
        p = self.p
        items = [[Ins(f"{MFMA16} {A(36)}, {A(32)}, {w1reg(s)}, {A(36) if s else 0}")] for s in range(28)]
        with self.cap() as c:
            p("v_accvgpr_read_b32 v62, a36")
            self.split_words("v62", f"v{vCS1}", f"v{vCS1 + 1}", "v63", False, False)
        items.append(c.ins)
        return items

    def qkv1(self):
        p = self.p
        p(f"v_min_u32 v13, 27, {vLane}")
        p("v_lshlrev_b32 v13, 2, v13")
        p(f"s_lshl_b32 {sT0}, {stb}, 7")
        p(f"s_add_u32 {sT0}, {sT0}, {G_FX}")
        WF = [152, 156, 160, 164, 168, 172]

        def wf(s, k):
            r = WF[3 * (s % 2) + k]
            if k == 2:
                return self.trread(V(r, 2), V(r + 2, 2), vTrB, s * KB)
            return self.trread(V(r, 2), V(r + 2, 2), vTrA, (L_WK, L_WV)[k] + s * KB)
        p.add(wf(0, 0) + wf(0, 1) + wf(0, 2))
        self.poll("v13", SG, sT0, 2)
        self.stamp("x2_seen")
        RING, NR = 96, 14

        def ld(s):
            q = sub()
            if s % 4 == 0:
                q(f"s_add_u32 s4, {sXB}, {s * KB}")
            q(f"buffer_load_dwordx4 {V(RING + 4 * (s % NR))}, {vL16}, {SG}, s4 offen offset:{(s % 4) * KB} sc1")
            return q.ins
        LEAD = self.opt.get("lead", 6)
        for s in range(LEAD):
            p.add(ld(s))
        stl = [[Ins(f"buffer_load_dwordx4 {V(64 + 4 * u)}, {vL16}, {SG}, {sSTB} offen offset:{u * KB} sc1")]
               for u in range(2)]
        with self.cap() as st:
            for i in range(2, 7):
                p(f"v_add_f32 v{64 + (i & 1)}, v{64 + (i & 1)}, v{64 + i}")
            p("v_add_f32 v64, v64, v65")
            self.stats_finish("v64", "v65", "v66", "v67")
            p("v_rsq_f32 v88, v67")
            self.split_words("v66", "v92", "v93", "v65", True, True)
            p("v_mov_b32 v94, 0")
            p("v_mov_b32 v95, 0")
            p("v_cvt_pk_bf16_f32 v80, v88, v88")
            p(f"v_and_b32 v64, {sHI}, v80")
            p("v_sub_f32 v64, v88, v64")
            p("v_cvt_pk_bf16_f32 v81, v64, v64")
            p(f"v_and_b32 v65, {sHI}, v81")
            p("v_sub_f32 v65, v64, v65")
            p("v_and_b32 v80, 0xffff, v80")
            p(f"v_and_or_b32 v80, v81, {sHI}, v80")
            p("v_cvt_pk_bf16_f32 v81, v65, 0")
            p("v_mov_b32 v82, 0")
            p("v_mov_b32 v83, 0")
            p(f"v_mov_b32 v84, {sONES}")
            p(f"v_cndmask_b32 v84, v84, 0, {sMPAD}")
            p("v_mov_b32 v85, v84")
            p("v_mov_b32 v86, 0")
            p("v_mov_b32 v87, 0")
            p(f"{MFMA} {V(64, 16)}, {V(80)}, {V(84)}, 0")
            self.kv_addrs(1, "v89", "v90", "v91")
            for m, dst in ((1, 80), (2, 84)):
                p(f"v_mov_b32 v{dst}, v{vCSQ + 2 * m}")
                p(f"v_mov_b32 v{dst + 1}, v{vCSQ + 2 * m + 1}")
        main = []
        for s in range(28):
            o = 3 * (s % 2)
            a = V(RING + 4 * (s % NR))
            nk = 3 if s < NR else 2
            nk2 = 3 if s + 1 < NR else 2
            for k in range(nk):
                acc = V(16 + 16 * k, 16)
                c = acc if s else 0
                g = [Ins(f"{MFMA} {acc}, {a}, {V(WF[o + k])}, {c}" if k < 2 else f"{MFMA} {acc}, {V(WF[o + k])}, {a}, {c}")]
                if s + 1 < 28 and k < nk2:
                    g += wf(s + 1, k)
                main.append(g)
        seq = [ld(s) for s in range(LEAD, 14)] + stl + [ld(s) for s in range(14, 28)]
        slots = []
        gpos = 0
        for i, it in enumerate(seq):
            s = i + LEAD - 2
            if s >= 14:
                gpos = max(gpos, 3 * (s - 14) + 2)
            slots.append(([it], gpos, gpos))
            gpos += 2
        p.add(spread(main, slots + [(groups(st.ins), 30, len(main) - 2)]))
        p(f"{MFMA} {V(16, 16)}, {V(92)}, {V(80)}, {V(16, 16)}")
        p(f"{MFMA} {V(32, 16)}, {V(92)}, {V(84)}, {V(32, 16)}")
        self.stamp("kv_gemm1")
        vfrag = lambda i, lo: V(152 + 4 * i) if lo is None else V(152 + 4 * i + lo, 2)
        head, main = self.single_pass(V(48, 16), vfrag, 4, vTrB, 0, 512, lambda s: V(RING + 4 * (s % NR)),
                                      NR, 28, True, False)
        p.add(head)
        p(f"v_mov_b32 v172, {sEPS6}")
        p(f"v_mov_b32 v173, {sLOG2E}")
        p(f"v_mov_b32 v80, v{vCSQ}")
        p(f"v_mov_b32 v81, v{vCSQ + 1}")
        self.phi(16, 16, 168, lambda r: (V(64 + r, 2), 1), pk=172)
        for r in range(0, 16, 2):
            p(f"v_pk_mul_f32 {V(32 + r, 2)}, {V(32 + r, 2)}, {V(64 + r, 2)}")
        self.v_pack()
        self.kv_publish(lambda lo, k: V(64 + lo, k), "v89", "v90", "v91")
        self.stamp("kv_pub1")
        main.append([Ins(f"{MFMA} {V(48, 16)}, {V(80)}, {V(92)}, {V(48, 16)}")])
        with self.cap() as c:
            self.phi(48, 48, 168, lambda r: (V(88, 2), 0), pk=172)
            p(f"v_cndmask_b32 v54, v54, 0, {sMPAD}")
            p(f"v_cndmask_b32 v55, v55, 0, {sMPAD}")
            self.o_addrs()
        tail = groups(c.ins, 6)
        if not self.opt.get("probe", 0):
            gg = self.opt.get("gg1", 31)
            p.add(spread(main + tail, [(self.gather_items(96, "v91"), gg, gg + 8)]))
            self.stamp("q_done1")
            return
        with self.cap() as c1:
            p(f"v_min_u32 v174, 15, {vLane}")
            p("v_lshlrev_b32 v174, 11, v174")
            p(f"buffer_load_dword v175, v174, {SWS}, s6 offen offset:508 sc1")
        pg, nt = self.opt.get("pg", 10), self.opt.get("pt", 8)
        p.add(spread(main + tail[:nt], [([c1.ins], pg, pg)]))
        lo, lb, lp, ld = p.label("early"), p.label("gathering"), p.label("probe"), p.label("probed")
        p("v_cmp_eq_u32 vcc, -1, v175")
        p(f"s_cbranch_vccnz {lo}")
        p.add(spread(tail[nt:], [(self.gather_items(96, "v91"), 0, 8)]))
        p(f"{lb}:")
        with self.cap() as c:
            p(f"{lo}:")
            p("s_nop 7")
            for it in tail[nt:]:
                p.add(it)
            p(f"s_mov_b32 {sCnt}, {slim}")
            p(f"{lp}:")
            p(f"buffer_load_dword v175, v174, {SWS}, s6 offen offset:508 sc1")
            p("s_waitcnt vmcnt(0)")
            p("v_cmp_eq_u32 vcc, -1, v175")
            p(f"s_cbranch_vccz {ld}")
            p(f"s_sub_u32 {sCnt}, {sCnt}, 1")
            p(f"s_cmp_lg_u32 {sCnt}, 0")
            p(f"s_cbranch_scc1 {lp}")
            p(f"s_mov_b32 {slim}, 1")
            p(f"{ld}:")
            for it in self.gather_items(96, "v91"):
                p.add(it)
            p(f"s_branch {lb}")
        self.tail.extend(c.ins)
        self.stamp("q_done1")

    def wo_phase(self, layer, pre=None, streams=()):
        p = self.p
        RES = 104
        p(f"s_lshl_b32 s5, {sh}, 11")
        p(f"s_add_u32 s5, s5, {sXB}")
        if layer == 1:
            p(f"buffer_load_dwordx4 {V(RES)}, {vL16}, {SG}, s5 offen sc1")
            p(f"buffer_load_dwordx4 {V(RES + 4)}, {vL16}, {SG}, s5 offen offset:1024 sc1")
        else:
            for r in range(8):
                p(f"v_accvgpr_read_b32 v{RES + r}, a{56 + r}")
        p(f"s_lshr_b32 {sT1}, {sh}, 2")
        p(f"s_lshl_b32 {sT1}, {sT1}, 10")
        p(f"s_and_b32 {sT2}, {sh}, 3")
        p(f"s_lshl_b32 {sT2}, {sT2}, 2")
        p(f"s_add_u32 {sT1}, {sT1}, {sT2}")
        p(f"s_add_u32 s6, {sT1}, {sSTB}")
        p(f"s_lshl_b32 {sT0}, {stb}, 7")
        p(f"s_lshl_b32 {sT1}, {sh}, 3")
        p(f"s_add_u32 {sT1}, {sT0}, {sT1}")
        p(f"s_add_u32 s7, {sT1}, {G_FX}")
        p(f"s_add_u32 {sT0}, {sT0}, {G_FO}")
        p(f"v_and_b32 v13, 15, {vLane}")
        p("v_lshlrev_b32 v13, 2, v13")
        rd = [self.trread(V(48 + (s % 3) * 4, 2), V(50 + (s % 3) * 4, 2), vTrB, (L_WO - L_WQ) + s * KB)
              for s in range(28)]
        p.add(rd[0] + rd[1])
        if pre:
            pre()
        self.poll("v13", SG, sT0, 1 + layer)
        self.stamp(f"o_seen{layer}")
        RING = 64
        LEAD = self.opt.get("leadwo", 8)

        def ld(s):
            q = sub()
            if s % 4 == 0:
                q(f"s_add_u32 s4, {sHB}, {s * KB}")
            q(f"buffer_load_dwordx4 {V(RING + 4 * s)}, {vL16}, {SG}, s4 offen offset:{(s % 4) * KB} sc1")
            return q.ins
        for s in range(LEAD):
            p.add(ld(s))
            p(f"v_lshlrev_b32 v{16 + 2 * s}, 16, v{RES + s}" if s < 8 else "; -")
            p(f"v_and_b32 v{17 + 2 * s}, {sHI}, v{RES + s}" if s < 8 else "; -")
        assert LEAD >= 8
        main = []
        for s in range(28):
            g = [Ins(f"{MFMA} {V(16, 16)}, {V(48 + (s % 3) * 4)}, {V(RING + 4 * s)}, {V(16, 16)}")]
            if s + LEAD < 28:
                g += ld(s + LEAD)
            if s + 2 < 28:
                g += rd[s + 2]
            main.append(g)
        streams = list(streams)
        if self.opt.get("wsu", 1):
            with self.cap() as c:
                self.ffn_setup(layer)
            streams.append((groups(c.ins), 13, 26))
        p.add(spread(main, streams))
        self.stamp(f"wo_gemm{layer}")
        for r in range(8):
            p(f"v_cvt_pk_bf16_f32 v{32 + r}, v{16 + 2 * r}, v{17 + 2 * r}")
        self.publish([f"buffer_store_dwordx4 {V(32)}, {vL16}, {SG}, s5 offen",
                      f"buffer_store_dwordx4 {V(36)}, {vL16}, {SG}, s5 offen offset:1024"],
                     always_sc1=(layer == 0 and self.opt.get("x0sc1", 0)))
        p("v_pk_mul_f32 v[42:43], v[16:17], v[16:17]")
        for r in range(2, 16, 2):
            p(f"v_pk_fma_f32 v[42:43], {V(16 + r, 2)}, {V(16 + r, 2)}, v[42:43]")
            p(f"v_pk_add_f32 v[16:17], v[16:17], {V(16 + r, 2)}")
        p("v_add_f32 v40, v16, v17")
        p("v_add_f32 v42, v42, v43")
        self.both_halves("v40", "v42", None)
        self.publish([f"buffer_store_dword v40, {vL16}, {SG}, s6 offen"])
        self.flag("s7", 1 + 2 * layer, 2)
        self.stamp(f"x1_pub{layer}")

    def rot_offsets(self):
        p = self.p
        for i in range(7):
            if self.opt.get("rot", 0):
                p(f"s_add_u32 s{8 + i}, {scb}, {i}")
                p(f"s_cmp_ge_u32 s{8 + i}, 7")
                p(f"s_cselect_b32 s15, 7, 0")
                p(f"s_sub_u32 s{8 + i}, s{8 + i}, s15")
                p(f"s_lshl_b32 s{8 + i}, s{8 + i}, 14")
            else:
                p(f"s_mov_b32 s{8 + i}, {i * 16 * KB}")

    def w2_items(self):
        p = self.p
        items = []
        order = list(range(8, 28)) + list(range(8))
        for i, j in enumerate(order):
            for ch in range(2):
                with self.cap() as c:
                    if i == 0 and ch == 0:
                        p(f"s_mul_i32 s25, {scb}, {224 * KB}")
                        p(f"s_lshl_b32 s26, {sw}, 12")
                        p(f"s_add_u32 s25, s25, s26")
                        p(f"s_add_u32 s25, s25, {WS_P2}")
                        p(f"s_and_b32 s26, {srq}, 1")
                        p(f"s_lshl_b32 s26, s26, 14")
                        p(f"s_sub_u32 s27, s25, s26")
                        p(f"s_add_u32 s27, s27, {16 * KB}")
                        p(f"s_add_u32 s25, s25, s26")
                    if j % 2 == 0 and ch == 0:
                        i2 = j >> 1
                        p(f"s_lshl_b32 s26, s{8 + i2 % 7}, 1")
                        p(f"s_add_u32 s26, s26, {'s25' if i2 < 7 else 's27'}")
                    p(f"buffer_load_dwordx4 {w2reg(j, ch)}, {vL16}, {SPK}, s26 offen offset:{(j & 1) * 2048 + ch * 1024} sc1",
                      "w2")
                items.append(c.ins)
        return items

    def ffn_setup(self, layer):
        p = self.p
        p(f"v_and_b32 v13, 15, {vLane}")
        p("v_min_u32 v13, 13, v13")
        p("v_lshlrev_b32 v13, 3, v13")
        p(f"v_lshrrev_b32 v14, 4, {vLane}")
        p("v_lshl_add_u32 v107, v14, 7, v13")
        p(f"s_mul_i32 {sT0}, {srh}, {112 * KB}")
        big = layer == 1 and self.opt.get("big", 1)
        LB = 0 if big else L_S
        p(f"s_add_u32 {sT0}, {sT0}, {G_X - LB}")
        p(f"s_and_b32 s0, {sh}, 1")
        p(f"s_mul_i32 s16, s0, {28 * KB}")
        p(f"s_add_u32 {sT0}, {sT0}, s16")
        p(f"s_lshl_b32 s16, s16, 1")
        p(f"v_add_u32 v110, {sT0}, {vL16}")
        p(f"s_lshl_b32 s15, {sw}, 10")
        p(f"s_add_u32 s15, s15, {LB}")
        p(f"s_lshl_b32 {sT0}, {sh}, 13")
        p(f"s_lshl_b32 {sT1}, {sw}, 11")
        p(f"s_add_u32 s3, {sT0}, {sT1}")
        p(f"s_mul_i32 {sT0}, {srh}, {4 * 112 * KB}")
        p(f"s_add_u32 s3, s3, {sT0}")
        p(f"s_lshl_b32 {sT0}, {srh}, 10")
        p(f"s_lshl_b32 {sT1}, {sw}, 6")
        p(f"s_add_u32 {sT0}, {sT0}, {sT1}")
        p(f"s_lshl_b32 {sT1}, {sh}, 2")
        p(f"s_add_u32 {sT0}, {sT0}, {sT1}")
        p(f"s_add_u32 s2, {sT0}, {G_FH}")
        p(f"s_mul_i32 {sT0}, s0, {2 * 112 * KB}")
        p(f"s_sub_u32 s17, s3, {sT0}")
        p(f"s_add_u32 s3, s3, {sT0}")
        p(f"s_lshl_b32 {sT0}, s0, 9")
        p(f"s_sub_u32 s1, s2, {sT0}")
        p(f"s_add_u32 s2, s2, {sT0}")
        p(f"v_mov_b32 v84, v{vCS1}")
        p(f"v_mov_b32 v85, v{vCS1 + 1}")
        for r in (86, 87, 90, 91):
            p(f"v_mov_b32 v{r}, 0")
        p(f"v_and_b32 v108, 31, {vLane}")
        p("v_lshlrev_b32 v108, 4, v108")
        p(f"v_add_u32 v108, {L_S + S_STAT}, v108")
        p(f"s_and_b32 {sT0}, {sxs}, 3")
        p(f"s_lshl_b32 {sT0}, {sT0}, 9")
        p(f"s_lshl_b32 {sT1}, s0, 9")
        p(f"s_xor_b32 {sT0}, {sT0}, {sT1}")
        p(f"v_add_u32 v109, {sT0}, v108")
        self.ffn2_setup(layer)

    def ffn(self, layer, pre=None, extra=None):
        p = self.p
        big = layer == 1 and self.opt.get("big", 1)
        if not self.opt.get("wsu", 1):
            self.ffn_setup(layer)
        if big:
            p(f"v_add_u32 {vTrB}, {56 * KB}, {vL16}")
        p.wait_ds()
        p("s_barrier")
        if pre:
            pre()
        p(f"s_lshl_b32 {sT0}, {srh}, 9")
        p(f"s_add_u32 {sT0}, {sT0}, {G_FX}")
        self.poll("v107", SG, sT0, 1 + 2 * layer, 2)
        self.stamp(f"x1_seen{layer}")

        Q, P = (28, 2) if big else (10, 2)

        def quad(k):
            q = sub()
            if k % Q == 0:
                q("s_mov_b32 m0, s15")
                if k:
                    q(f"v_add_u32 v110, {Q * 4 * KB}, v110")
            else:
                q(f"s_add_u32 m0, m0, {4 * KB}")
            if k in (7, 21):
                q("v_subrev_u32 v110, s16, v110")
            if k == 14:
                q("v_add_u32 v110, s16, v110")
            q(f"buffer_load_dwordx4 v110, {SG}, m0 offen sc1 lds", f"c{k // P}")
            return q.ins
        for k in range(4):
            p.add(quad(k))
        stl = [[Ins(f"buffer_load_dwordx4 {V(112 + 4 * u)}, {vL16}, {SG}, {sSTB} offen offset:{u * KB} sc1")]
               for u in range(4)]
        with self.cap() as st:
            for i in range(2, 14):
                p(f"v_add_f32 v{112 + (i & 1)}, v{112 + (i & 1)}, v{112 + i}")
            p("v_add_f32 v112, v112, v113")
            self.stats_finish("v112", "v113", "v114", "v115")
            self.split_words("v114", "v116", "v117", "v113", True, True)
            p("v_rsq_f32 v118, v115")
            p("v_sqrt_f32 v119, v115")
            p(f"v_mul_f32_e64 v118, -v118, {sLOG2E}")
            p("ds_write_b128 v109, v[116:119]", "stw")
        XF, NX, D = 48, 5, 4
        def rdx(n):
            base, off = (vS16, n % (4 * Q)) if not big else ((vL16, n) if n < 56 else (vTrB, n - 56))
            return Ins(f"ds_read_b128 {V(XF + 4 * (n % NX))}, {base} offset:{off * KB}", f"x{n}")
        BIGB = {1: 1, 2: 2, 3: 4, 5: 7, 8: 10, 11: 13}

        def boundary(j):
            q = sub()
            if big and j:
                if j not in BIGB:
                    return []
                q.wait_vm(f"c{BIGB[j]}")
            else:
                q.wait_vm(f"c{j}")
            if j == 3:
                q.wait_ds("stw")
            q("s_barrier")
            return q.ins
        p.add(quad(4))
        p.add(quad(5))
        p.add(boundary(0))
        p.add([rdx(n) for n in range(D)])
        main = []
        pos = {}
        for n in range(112):
            o, s = divmod(n, 28)
            acc = V(16 + 16 * (o & 1), 16)
            g = []
            if n % 2 == 0:
                g.append(Pseudo("wait_ds", f"x{n + 1}"))
            g.append(Ins(f"{MFMA} {acc}, {w1reg(s)}, {V(XF + 4 * (n % NX))}, {acc if s else 0}"))
            m = n + D
            if m < 112:
                if m % 8 == 0:
                    g += boundary(m // 8)
                qd = quad(m // 4 + 6) if (m % 4 == 1 and m >= 8 and m // 4 + 6 < 28) else []
                if big:
                    kq = 8 + (n - 9) // 2
                    qd = quad(kq) if (n >= 9 and n % 2 == 1 and kq < 28) else []
                g += qd[:-1] + [rdx(m)] + qd[-1:]
                if m == 24:
                    g += [Ins(f"ds_read_b128 {V(68 + 4 * k)}, v108 offset:{k * 512}") for k in range(4)]
            if s == 24:
                g += [Ins(f"v_mov_b32 v88, v{68 + 4 * o}"), Ins(f"v_mov_b32 v89, v{69 + 4 * o}")]
            pos[n] = len(main)
            main.append(g)
            if s == 27:
                main.append([Ins(f"{MFMA} {acc}, {V(84)}, {V(88)}, {acc}")])

        hsc1 = self.opt.get("h0sc1", 1) if layer == 0 else self.opt.get("h1sc1", 1)

        def epilogue(o):
            tb = ((o & 1) << 1) | (o >> 1)
            acc = 16 + 16 * (o & 1)
            c1, sd = f"v{70 + 4 * o}", f"v{71 + 4 * o}"
            pk = o == 3 and hsc1 and self.opt.get("pk3", 1)
            with self.cap() as c:
                for r0 in range(0, 16, 4) if pk else ():
                    cs = V(70 + 4 * o, 2)
                    for k in (0, 2):
                        p(f"v_pk_mul_f32 {V(92 + k, 2)}, {V(acc + r0 + k, 2)}, {cs} op_sel_hi:[1,0]")
                    for k in range(4):
                        p(f"v_exp_f32 v{92 + k}, v{92 + k}")
                    for k in (0, 2):
                        p(f"v_pk_fma_f32 {V(92 + k, 2)}, {V(92 + k, 2)}, {cs}, {cs} op_sel:[0,1,1] op_sel_hi:[1,1,1]")
                    for k in range(4):
                        p(f"v_rcp_f32 v{92 + k}, v{92 + k}")
                    for k in (0, 2):
                        p(f"v_pk_mul_f32 {V(acc + r0 + k, 2)}, {V(acc + r0 + k, 2)}, {V(92 + k, 2)}")
                    for k in (0, 2):
                        p(f"v_cvt_pk_bf16_f32 v{96 + ((r0 + k) >> 1)}, v{acc + r0 + k}, v{acc + r0 + k + 1}")
                for r0 in range(0, 16, 2) if not pk else ():
                    rr = (r0, r0 + 1)
                    t = {r: f"v{92 + (r & 3)}" for r in rr}
                    a = {r: f"v{acc + r}" for r in rr}
                    for r in rr:
                        p(f"v_mul_f32 {t[r]}, {a[r]}, {c1}")
                    for r in rr:
                        p(f"v_exp_f32 {t[r]}, {t[r]}")
                    for r in rr:
                        p(f"v_fma_f32 {t[r]}, {t[r]}, {sd}, {sd}")
                    for r in rr:
                        p(f"v_rcp_f32 {t[r]}, {t[r]}")
                    for r in rr:
                        p(f"v_mul_f32 {a[r]}, {a[r]}, {t[r]}")
                    p(f"v_cvt_pk_bf16_f32 v{96 + (r0 >> 1)}, {a[r0]}, {a[r0 + 1]}")
            items = groups(c.ins)
            with self.cap() as c:
                p(f"s_add_u32 {sT0}, {'s17' if o & 1 else 's3'}, {tb * 112 * KB}")
                nt = {0: "", 1: " nt", 2: " sc0", 3: " sc0 nt"}[self.opt.get("hnt", 0)] if self.fast else ""
                self.publish([f"buffer_store_dwordx4 {V(96)}, {vL16}, {SG}, {sT0} offen{nt}",
                              f"buffer_store_dwordx4 {V(100)}, {vL16}, {SG}, {sT0} offen offset:1024{nt}"], f"h{o}",
                             always_sc1=hsc1)
            items.append(c.ins)
            with self.cap() as c:
                p(f"s_add_u32 {sT1}, {'s1' if o & 1 else 's2'}, {tb * 256}")
                self.flag(sT1, 1 + layer, wait=f"h{o}", st=sT2)
            return items, c.ins
        streams = [([quad(6), quad(7)], 0, 3), (stl[:2], 1, 4), (stl[2:], 6, 8)]
        eps = [epilogue(o) for o in range(4)]
        E = self.opt.get("epend", 27)
        F = self.opt.get("fsc1", 18) if hsc1 else self.opt.get("fpl", 6)
        Es = [E, self.opt.get("e1", E), E]
        Fs = [F, F - (E - Es[1])]
        flex = [(eps[o][0], pos[28 * (o + 1)] + 2, pos[28 * (o + 1) + Es[o]]) for o in range(3)]
        flex.append((groups(st.ins), self.opt.get("gs", 11), 19))
        if not big and hsc1 and self.opt.get("stq", 0):
            for o in range(2):
                n1 = 28 * (o + 1) + E
                while n1 % 8 != 1:
                    n1 -= 1
                flex[o] = (eps[o][0][:-1], pos[28 * (o + 1)] + 2, pos[n1] - 1)
                streams.append(([eps[o][0][-1]], pos[n1], pos[n1]))
        if not self.opt.get("flex", 1):
            streams += flex
            flex = []
        for o in range(2):
            g = pos[28 * (o + 2) + Fs[o]]
            streams.append(([eps[o][1]], g, g))
        self.hl = self.h_loads()
        pa, pb = self.h_poll(0, layer), self.h_poll(1, layer)
        LAG = self.opt.get("lag", 7)
        if self.opt.get("ord", 0):
            for o, pl in ((1, pa), (2, pb)):
                items, a, b = flex[o]
                flex[o] = (items[:-1], a, b - 1)
                streams.append(([pl[0], items[-1]], b, b))
            GA = pos[56 + Es[1]]
            self.pb = [[], pb[1]]
        else:
            GA = pos[56 + F + self.opt.get("fda", 9)]
            streams.insert(0, ([pa[0]], GA, GA))
            self.pb = pb
        streams.append(([pa[1]], GA + LAG, GA + LAG))
        first = max(GA + LAG + 1, pos[84 + self.opt.get("h0", 0)])
        n0 = min(14, (pos[111] - first) // 2 + 1)
        streams.append((self.hl[:n0], first, pos[111] - 1))
        self.n0 = n0
        if extra:
            streams += extra(pos)
        if self.opt.get("fine3") and layer == 1:
            woven = spread2(main, streams, flex)
            k = 0
            for x in woven:
                p.add([x])
                if x.kind == "mfma":
                    k += 1
                    if k >= 58 and (k - 58) % 7 == 0:
                        self.stamp(f"n{k}")
        elif self.opt.get("fine"):
            self.stamp(f"f1_first{layer}")
            woven = spread2(main, streams, flex)
            k = 0
            for x in woven:
                p.add([x])
                if x.kind == "mfma":
                    k += 1
                    if k % 29 == 0 and k < 116:
                        self.stamp(f"f1_o{k // 29 - 1}_{layer}")
        else:
            p.add(spread2(main, streams, flex))
        self.stamp(f"ffn1_mfma{layer}")
        self.ffn2(layer, eps[3][0], eps[2][1], eps[3][1], F)

    def ffn2_setup(self, layer):
        p = self.p
        p(f"s_mul_i32 {sU[3]}, {srq}, {2 * 112 * KB}")
        p(f"s_lshl_b32 {sT3}, {sw}, 11")
        p(f"s_add_u32 {sU[3]}, {sU[3]}, {sT3}")
        p(f"s_lshl_b32 {sU[4]}, {srq}, 9")
        p(f"s_lshl_b32 {sT3}, {sw}, 6")
        p(f"s_add_u32 {sU[4]}, {sU[4]}, {sT3}")
        p(f"s_add_u32 {sU[4]}, {sU[4]}, {G_FH}")
        p(f"v_min_u32 v104, 6, {vLane}")
        p("v_lshlrev_b32 v104, 3, v104")
        p(f"s_and_b32 {sT3}, {srq}, 1")
        p(f"s_lshl_b32 {sT4}, {sT3}, 2")
        p(f"s_add_u32 {sU[4]}, {sU[4]}, {sT4}")
        p(f"s_lshl_b32 {sT4}, {sT3}, 13")
        p(f"s_sub_u32 {sU[8]}, {sU[3]}, {sT4}")
        p(f"s_add_u32 {sU[8]}, {sU[8]}, {8 * KB}")
        p(f"s_add_u32 {sU[3]}, {sU[3]}, {sT4}")
        p(f"s_lshr_b32 {sT3}, {srq}, 1")
        p(f"s_lshl_b32 {sT3}, {sT3}, 2")
        p(f"s_and_b32 {sT4}, {srq}, 1")
        p(f"s_add_u32 {sT3}, {sT3}, {sT4}")
        p(f"s_mul_i32 {sU[5]}, {sT3}, {28 * KB}")
        p(f"s_lshl_b32 {sT3}, {scb}, 12")
        p(f"s_lshl_b32 {sT4}, {sw}, 7")
        p(f"s_add_u32 {sT3}, {sT3}, {sT4}")
        p(f"s_add_u32 {sU[5]}, {sU[5]}, {sT3}")
        p(f"s_add_u32 {sU[5]}, {sU[5]}, {G_X}")
        if layer == 0:
            p(f"s_mul_i32 {sU[6]}, {srq}, {14 * KB}")
            p(f"s_lshr_b32 {sT3}, {scb}, 2")
            p(f"s_lshl_b32 {sT3}, {sT3}, 10")
            p(f"s_add_u32 {sU[6]}, {sU[6]}, {sT3}")
            p(f"s_and_b32 {sT3}, {scb}, 3")
            p(f"s_lshl_b32 {sT3}, {sT3}, 2")
            p(f"s_add_u32 {sT3}, {sT3}, {sT4}")
            p(f"s_add_u32 {sU[6]}, {sU[6]}, {sT3}")
            p(f"s_add_u32 {sU[6]}, {sU[6]}, {G_ST}")
            p(f"s_lshl_b32 {sT3}, {srq}, 8")
            p(f"s_lshl_b32 {sT4}, {scb}, 4")
            p(f"s_add_u32 {sT3}, {sT3}, {sT4}")
            p(f"s_lshl_b32 {sT4}, {sw}, 2")
            p(f"s_add_u32 {sT3}, {sT3}, {sT4}")
            p(f"s_add_u32 {sU[7]}, {sT3}, {G_FX}")
        else:
            p(f"s_lshl_b32 {sT3}, {sg}, 2")
            p(f"s_add_u32 {sT3}, {sT3}, {srq}")
            p(f"s_lshl_b32 {sT3}, {sT3}, 3")
            p(f"s_add_u32 {sT3}, {sT3}, {sw}")
            p(f"s_mul_i32 {sT3}, {sT3}, {8 * 896}")
            p(f"s_lshl_b32 {sT4}, {scb}, 7")
            p(f"s_add_u32 {sU[7]}, {sT3}, {sT4}")
        p(f"s_lshl_b32 {sT3}, {sw}, 13")
        p(f"v_add_u32 v105, {sT3}, {vS16}")
        if layer == 0:
            p(f"v_lshrrev_b32 v14, 5, {vLane}")
            p("v_lshlrev_b32 v14, 7, v14")
            p("v_xor_b32 v105, v105, v14")
            p("v_mov_b32 v106, v105")
        else:
            p("v_xor_b32 v106, 0x80, v105")
        p(f"v_and_b32 v13, 7, {vLane}")
        p("v_lshlrev_b32 v13, 4, v13")
        p(f"s_lshl_b32 {sT3}, {sw}, 7")
        p(f"v_add_u32 v13, {sT3}, v13")
        p(f"v_bfe_u32 v14, {vLane}, 3, 1")
        p("v_lshlrev_b32 v15, 7, v14")
        p("v_xor_b32 v13, v13, v15")
        p(f"v_lshl_add_u32 v13, v14, {9 if layer == 0 else 10}, v13")
        p(f"v_lshrrev_b32 v14, 4, {vLane}")
        p("v_lshl_add_u32 v13, v14, 11, v13")
        p(f"v_add_u32 v111, {L_S}, v13")

    def hreg(self, n):
        if not self.opt.get("xr", 0):
            return 112 + 4 * (n % 16), n - 16
        if n < 16:
            return 112 + 4 * n, -1
        if n < 20:
            return 64 + 4 * (n - 16), -1
        return 112 + 4 * ((n - 4) % 16), (n - 20 if n < 36 else n - 16)

    def h_loads(self):
        out = []
        for n in range(56):
            th, j = divmod(n, 28)
            q = sub()
            i = j >> 1
            if j % 14 == 0:
                q(f"s_add_u32 {sU[9]}, {sU[3] if i < 7 else sU[8]}, {th * 112 * KB}")
                q(f"v_add_u32 v15, {sU[9]}, {vL16}")
            q(f"buffer_load_dwordx4 {V(self.hreg(n)[0])}, v15, {SG}, s{8 + i % 7} offen offset:{(j % 2) * KB} sc1")
            out.append(q.ins)
        return out

    def h_poll(self, grp, layer):
        p = self.p
        st, tmp = (sU[0], sU[1])[grp & 1], (109, 13)[grp & 1]
        with self.cap() as c1:
            if grp & 1:
                p(f"s_xor_b32 {st}, {sU[4]}, 4")
                if grp >> 1:
                    p(f"s_add_u32 {st}, {st}, 256")
            else:
                p(f"s_add_u32 {st}, {sU[4]}, {(grp >> 1) * 256}")
            self.poll_load("v104", SG, st, 1, tmp)
        with self.cap() as c2:
            self.apoll_end("v104", SG, st, 1 + layer, 1, tmp)
        return c1.ins, c2.ins

    def ffn2(self, layer, ep3, flag2, flag3, F):
        p = self.p
        ACC = ((16, 48), (32, 64))
        lds = self.hl
        k0 = min(len(ep3), self.opt.get("k0", 89 if F > 10 else 20))
        LEAD = self.opt.get("leadh", 14)
        early_b = self.opt.get("ord", 0) and k0 > 60
        npre = self.opt.get("npre", 20 if self.opt.get("xr", 0) else 16) if early_b else 14
        pre = lds[self.n0:14]
        if self.pb[0]:
            pre = [self.pb[0]] + pre
        if early_b:
            p.add(spread(ep3[:k0], [(pre, 0, 40), ([self.pb[1]] + lds[14:npre], 44, k0 - 4)]))
            self.pb = []
        elif k0:
            p.add(spread(ep3[:k0], [(pre, 0, max(0, k0 - 4))]))
        else:
            for it in pre:
                p.add(it)
        ep3 = ep3[k0:]
        issued = npre
        RES = (88, 84)
        TL = self.opt.get("tl", 10)

        with self.cap() as su:
            p(f"v_and_b32 v107, 7, {vLane}")
            p(f"v_bfe_u32 v110, {vLane}, 3, 1")
            if layer == 0:
                p(f"v_lshrrev_b32 v108, 4, {vLane}")
                p("v_lshlrev_b32 v108, 9, v108")
                p("v_lshl_add_u32 v108, v107, 4, v108")
                p("v_lshlrev_b32 v107, 4, v107")
                p("v_lshl_add_u32 v107, v110, 9, v107")
            else:
                p("v_mul_u32_u24 v108, 896, v107")
                p("v_lshlrev_b32 v107, 4, v107")
                p("v_lshl_add_u32 v107, v110, 3, v107")
                p(f"v_lshrrev_b32 v110, 3, {vLane}")
                p("v_lshl_add_u32 v108, v110, 4, v108")
            p(f"v_lshrrev_b32 v110, 4, {vLane}")
            p("v_lshl_add_u32 v107, v110, 10, v107")

        def resid(th):
            q = sub()
            q(f"s_add_u32 {sT3}, {sU[5]}, {th * 2 * 28 * KB}")
            if layer == 0:
                q(f"buffer_load_dwordx4 {V(RES[th])}, v107, {SG}, {sT3} offen sc1")
            else:
                q(f"buffer_load_dwordx2 {V(RES[th], 2)}, v107, {SG}, {sT3} offen sc1")
                q(f"buffer_load_dwordx2 {V(RES[th] + 2, 2)}, v107, {SG}, {sT3} offen offset:512 sc1")
            return q.ins

        def mm():
            main = []
            for n in range(56):
                th, j = divmod(n, 28)
                b = V(self.hreg(n)[0])
                for ch in range(2):
                    acc = V(ACC[th][ch], 16)
                    main.append([Ins(f"{MFMA} {acc}, {w2reg(j, ch)}, {b}, {acc if j else 0}")])
            tail = main[112 - 2 * TL:]
            return main[:112 - 2 * TL] + tail[0::2] + tail[1::2]

        def reduce(th, woven):
            area = th * 16 * KB
            a0, a1 = ACC[th]
            quad = [a0, a0 + 4, a0 + 8, a0 + 12, a1, a1 + 4, a1 + 8, a1 + 12]
            T = 92
            items = []
            with self.cap() as c:
                for k in range(8):
                    p(f"ds_write_b128 v{105 + (k & 1)}, {V(quad[k])} offset:{area + k * KB}")
                for r in range(4):
                    p(f"v_lshlrev_b32 v{T + 2 * r}, 16, v{RES[th] + r}")
                    p(f"v_and_b32 v{T + 2 * r + 1}, {sHI}, v{RES[th] + r}")
            items += groups(c.ins)
            with self.cap() as c:
                p.wait_ds()
                p("s_barrier")
                for u in range(4):
                    for k in range(2):
                        p(f"ds_read_b128 {V(quad[2 * u + k])}, v111 offset:{area + u * 8 * KB + k * (KB if layer == 0 else 512)}")
            items += groups(c.ins)
            with self.cap() as c:
                for u in range(4):
                    for k in range(2):
                        if woven:
                            for r in range(4):
                                p(f"v_add_f32 v{T + 4 * k + r}, v{T + 4 * k + r}, v{quad[2 * u + k] + r}")
                        else:
                            for r in (0, 2):
                                p(f"v_pk_add_f32 {V(T + 4 * k + r, 2)}, {V(T + 4 * k + r, 2)}, {V(quad[2 * u + k] + r, 2)}")
                for r in range(4):
                    p(f"v_cvt_pk_bf16_f32 v{80 + r}, v{T + 2 * r}, v{T + 2 * r + 1}")
            items += groups(c.ins)
            if layer == 1:
                with self.cap() as c:
                    p(f"s_add_u32 {sT3}, {sU[7]}, {th * 32 * 896}")
                    p(f"buffer_store_dwordx4 {V(80)}, v108, {SOUT}, {sT3} offen {'sc1' if self.opt.get('outsc1', 1) else ''}")
                items.append(c.ins)
                return items, []
            with self.cap() as c:
                p(f"s_add_u32 {sT4}, {sU[5]}, {th * 2 * 28 * KB}")
                self.publish([f"buffer_store_dwordx4 {V(80)}, v107, {SG}, {sT4} offen"], f"x{th}")
            items.append(c.ins)
            with self.cap() as c:
                p(f"v_add_f32 v100, v{T}, v{T + 1}")
                p(f"v_mul_f32 v101, v{T}, v{T}")
                p(f"v_fmac_f32 v101, v{T + 1}, v{T + 1}")
                for r in range(2, 8):
                    p(f"v_add_f32 v100, v100, v{T + r}")
                    p(f"v_fmac_f32 v101, v{T + r}, v{T + r}")
                p("v_add_f32_dpp v100, v100, v100 row_ror:8 row_mask:0xf bank_mask:0xf")
                p("v_add_f32_dpp v101, v101, v101 row_ror:8 row_mask:0xf bank_mask:0xf")
                p("v_permlane16_swap_b32 v100, v101")
                p("v_add_f32 v100, v100, v101")
                p("v_mov_b32 v101, v100")
                p("v_permlane32_swap_b32 v100, v101")
                p("v_add_f32 v100, v100, v101")
            items += groups(c.ins)
            with self.cap() as c:
                p(f"s_add_u32 {sT3}, {sU[6]}, {th * 7 * KB}")
                self.publish(["s_mov_b64 exec, 0x00ff00ff", f"buffer_store_dword v100, v108, {SG}, {sT3} offen",
                              "s_mov_b64 exec, -1"], f"x{th}")
            items.append(c.ins)
            with self.cap() as c:
                p(f"s_add_u32 {sT3}, {sU[7]}, {th * 128}")
                self.flag(sT3, 2, wait=f"x{th}", tmp=102, st=sT4)
            return items, c.ins
        E3 = max(4, len(ep3) * self.opt.get("e3", 24) // 89)
        F2 = self.opt.get("f2", max(0, F - 6))
        F3 = self.opt.get("f3", E3 + (24 if F > 10 else 16))
        LAG = self.opt.get("lag2", 14)
        pc, pd = self.h_poll(2, layer), self.h_poll(3, layer)
        seen = {0: -1, 1: self.opt.get("gb2", 6) if self.pb else -1}
        GC = F2 + self.opt.get("fd2", 12)
        seen[2] = GC + LAG
        GD = max(F3 + self.opt.get("fd2", 12), seen[2] + 1)
        seen[3] = GD + LAG
        streams = []
        if self.pb:
            streams.append(([self.pb[1]], seen[1], seen[1]))
        streams += [([pc[0]], GC, GC), ([pc[1]], seen[2], seen[2]), ([pd[0]], GD, GD), ([pd[1]], seen[3], seen[3])]
        g = 0.0
        for n in range(issued, 56):
            free = 2 * self.hreg(n)[1] + 1
            g = max(g, free, 2 * (n - LEAD) + 1, seen[n // 14])
            use = 2 * n if n < 56 - TL else 112 - 2 * TL + (n - (56 - TL))
            g = min(g, use - 2 * self.opt.get("minlead", 4) + 1)
            assert g >= seen[n // 14] and g >= free, (n, g)
            streams.append(([lds[n]], int(g), int(g)))
            g += self.opt.get("pace", 21) / 10
        bar = [Ins("s_barrier")]
        r0, f0 = reduce(0, True)
        r1, f1 = reduce(1, False)
        if layer == 1:
            go = max(self.opt.get("go", 106), int(g))
            streams.append(([r0[-1]], go, go))
            r0 = r0[:-1]
        if TL:
            streams.append((r1[8:16], 112 - TL - 4, 112 - TL - 1))
            streams.append((r1[:4], 112 - TL + 2, 111))
            r1 = r1[4:8] + r1[16:]
        streams += [([bar], 0, 0), (ep3, 1, E3), ([flag2], F2, F2), ([flag3], F3, F3),
                    (groups(su.ins) + [resid(0)], E3 + 1, E3 + 16), ([resid(1)], 56, 56), ([bar], 96, 96)]
        if self.opt.get("rflex", 1):
            streams += [(r0[:8], 58, 71), (r0[8:16], 59, 71), (r0[16:25], 73, 80), (r0[25:], 81, 97)]
        else:
            streams.append((r0, 57, 92))
        if f0:
            streams.append(([f0], 108, 108))
        woven = spread(mm(), streams)
        k = 0
        for x in woven:
            p.add([x])
            if x.kind == "mfma":
                k += 1
                if k == 56:
                    self.stamp(f"th0_done{layer}")
                elif self.opt.get("fine2") and layer == 1 and (k == 1 or k % 14 == 0) and k < 112:
                    self.stamp(f"m{k}")
        self.stamp(f"th1_done{layer}")
        for it in r1:
            p.add(it)
        p.add(f1)
        self.stamp(f"ffn2_done{layer}")

    def spare0(self):
        p = self.p
        if not self.opt.get("h0sc1", 1) or self.opt.get("htouch", 0):
            p(f"s_and_b32 {sT0}, {sh}, 1")
            p(f"s_lshl_b32 {sT0}, {sT0}, 2")
            p(f"s_add_u32 {sT0}, {sT0}, {sw}")
            p(f"s_mul_i32 {sT0}, {sT0}, {14 * KB}")
            p(f"s_mul_i32 {sT1}, {srh}, {4 * 112 * KB}")
            p(f"s_add_u32 {sT0}, {sT0}, {sT1}")
            p(f"v_lshlrev_b32 v64, 7, {vLane}")
            for tb in (0, 2, 1, 3):
                for off in (0, 6 * KB):
                    p(f"s_add_u32 {sT1}, {sT0}, {G_H + tb * 112 * KB + off}")
                    p(f"buffer_load_dword v65, v64, {SG}, {sT1} offen sc1")
        self.colsum_qkv()
        p.wait_ds()
        p("s_barrier")
        self.colsum_qkv_fetch()
        w2pre = self.opt.get("w2pre", 1)
        if w2pre:
            if w2pre == 2:
                p(f"v_min_u32 v16, 27, {vLane}")
                p("v_lshlrev_b32 v16, 2, v16")
                p(f"s_lshl_b32 {sT0}, {stb}, 7")
                p(f"s_add_u32 {sT0}, {sT0}, {G_FX}")
                self.poll("v16", SG, sT0, 1, sleep=2)
            p(f"s_and_b32 {sT0}, {sh}, 1")
            p(f"s_lshl_b32 {sT0}, {sT0}, 3")
            p(f"s_add_u32 {sT0}, {sT0}, {stb}")
            p(f"v_lshlrev_b32 v64, 7, {vLane}")
            for t in range(7):
                p(f"s_add_u32 {sT1}, {sT0}, {16 * t}")
                p(f"s_min_u32 {sT1}, {sT1}, 97")
                p(f"s_mul_i32 {sT2}, {sT1}, 147")
                p(f"s_lshr_b32 {sT2}, {sT2}, 10")
                p(f"s_mul_i32 {sT3}, {sT2}, 7")
                p(f"s_sub_u32 {sT1}, {sT1}, {sT3}")
                p(f"s_add_u32 {sT2}, {sT2}, 8")
                p(f"s_cmp_ge_u32 {sT2}, 14")
                p(f"s_cselect_b32 {sT3}, 14, 0")
                p(f"s_sub_u32 {sT2}, {sT2}, {sT3}")
                p(f"s_mul_i32 {sT1}, {sT1}, {224 * KB}")
                p(f"s_lshl_b32 {sT2}, {sT2}, 14")
                p(f"s_add_u32 {sT1}, {sT1}, {sT2}")
                p(f"s_add_u32 {sT1}, {sT1}, {WS_P2}")
                p(f"buffer_load_dword v65, v64, {SWS}, {sT1} offen sc1")
                p(f"s_add_u32 {sT1}, {sT1}, {8 * KB}")
                p(f"buffer_load_dword v65, v64, {SWS}, {sT1} offen sc1")
        if self.opt.get("nap", 1):
            p(f"v_min_u32 v16, 13, {vLane}")
            p("v_lshlrev_b32 v16, 2, v16")
            p(f"s_lshl_b32 {sT0}, {srh}, 10")
            p(f"s_add_u32 {sT0}, {sT0}, {G_FH + 3 * 256}")
            self.poll("v16", SG, sT0, 1, sleep=12)
        p("s_waitcnt vmcnt(0) lgkmcnt(0)")

    def spare1(self):
        p = self.p
        wb = self.opt.get("wb", 0)
        if not wb:
            return
        p(f"s_and_b32 {sT0}, {sh}, 1")
        p(f"s_or_b32 {sT0}, {sT0}, {srh}")
        p(f"s_or_b32 {sT0}, {sT0}, {sw}")
        p(f"s_cmp_lg_u32 {sT0}, 0")
        p(f"s_cbranch_scc1 L_fin{self.sfx}")
        if wb == 4:
            p(f"v_and_b32 v13, 15, {vLane}")
            p("v_min_u32 v13, 13, v13")
            p(f"v_bfe_u32 v14, {vLane}, 4, 1")
            p("v_lshl_add_u32 v13, v14, 5, v13")
            p("v_lshlrev_b32 v16, 2, v13")
            p(f"s_mov_b32 {sT0}, {G_FO + 64}")
            self.poll("v16", SG, sT0, 9)
            p("buffer_wbl2 sc1")
            p("s_waitcnt vmcnt(0)")
            return
        p(f"v_and_b32 v13, 15, {vLane}")
        p("v_min_u32 v13, 13, v13")
        p("v_lshlrev_b32 v13, 3, v13")
        p(f"v_lshrrev_b32 v14, 4, {vLane}")
        p("v_lshl_add_u32 v16, v14, 7, v13")
        p(f"s_mov_b32 {sT0}, {G_FX}")
        self.poll("v16", SG, sT0, 3, 2)
        p(f"s_mov_b32 {sT0}, {G_FX + 512}")
        self.poll("v16", SG, sT0, 3, 2)
        p("buffer_wbl2 sc1")
        p("s_waitcnt vmcnt(0)")
        if wb >= 2:
            p(f"v_and_b32 v13, 15, {vLane}")
            p("v_min_u32 v13, 13, v13")
            p("v_lshlrev_b32 v13, 2, v13")
            p(f"v_lshrrev_b32 v14, 4, {vLane}")
            p("v_lshl_add_u32 v16, v14, 6, v13")
            for tb in ((2, 3) if wb == 2 else (0, 2, 1, 3)):
                for half in range(2):
                    p(f"s_mov_b32 {sT0}, {G_FH + (4 * half + tb) * 256}")
                    self.poll("v16", SG, sT0, 2)
                p("buffer_wbl2 sc1")
                p("s_waitcnt vmcnt(0)")

    def finish(self):
        p = self.p
        p(f"s_or_b32 {sT0}, {sg}, {sh}")
        p(f"s_or_b32 {sT0}, {sT0}, {srh}")
        p(f"s_or_b32 {sT0}, {sT0}, {sw}")
        p(f"s_cmp_lg_u32 {sT0}, 0")
        p(f"s_cbranch_scc1 L_fin{self.sfx}")
        p(f"s_add_u32 {sT0}, {sE}, 64")
        p(f"v_mov_b32 v14, {sT0}")
        p("s_mov_b64 exec, 1")
        p(f"buffer_store_dword v14, {vL16}, {SWS}, 0 offen sc1")
        p("s_mov_b64 exec, -1")
        p(f"L_fin{self.sfx}:")
        if self.pad:
            p("s_waitcnt vmcnt(0)")
            if self.opt.get("amp") == "end":
                p("s_memrealtime s[94:95]")
            p("s_waitcnt lgkmcnt(0)")
            p("s_sub_u32 s94, s94, s96")
            p("s_mul_i32 s94, s94, 4")
            p("s_min_u32 s94, s94, 20000")
            p(f"s_add_u32 s94, s94, {self.pad}")
            p(f"L_pad{self.sfx}:")
            p("s_memrealtime s[98:99]")
            p("s_waitcnt lgkmcnt(0)")
            p("s_sub_u32 s98, s98, s96")
            p(f"s_cmp_lt_u32 s98, s94")
            p(f"s_cbranch_scc1 L_pad{self.sfx}")
        if self.diag:
            p("s_waitcnt vmcnt(0)")
            self.stamp("end")
            self.stamp_flush()
            p(f"s_lshl_b32 {sT0}, {srh}, 4")
            p(f"s_add_u32 {sT0}, {sT0}, {sh}")
            p(f"s_lshl_b32 {sT0}, {sT0}, 3")
            p(f"s_add_u32 {sT0}, {sT0}, {sg}")
            p(f"s_lshl_b32 {sT0}, {sT0}, 2")
            p(f"s_add_u32 {sT0}, {sT0}, {sw}")
            p(f"s_lshl_b32 {sT0}, {sT0}, 7")
            p(f"s_add_u32 {sT0}, {sT0}, {WS_DIAG}")
            p("s_mov_b64 exec, 1")
            for i in range(self.nstamp):
                p(f"v_mov_b32 v14, s{STAMP0 + i}")
                p(f"buffer_store_dword v14, {vL16}, {SWS}, {sT0} offen offset:{4 * i}")
            for k in range(2):
                p(f"v_mov_b32 v14, s{18 + k}")
                p(f"buffer_store_dword v14, {vL16}, {SWS}, {sT0} offen offset:{112 + 4 * k}")
            p(f"v_mov_b32 v14, {1 if self.fast else 0}")
            p(f"buffer_store_dword v14, {vL16}, {SWS}, {sT0} offen offset:120")
            p(f"v_mov_b32 v14, {slim}")
            p(f"buffer_store_dword v14, {vL16}, {SWS}, {sT0} offen offset:124")
            p("s_mov_b64 exec, -1")
        p("s_waitcnt vmcnt(0)")
        p("s_endpgm")

    def body(self):
        p = self.p
        x = self.sfx
        if self.opt.get("gc", 56) < 56:
            self.kv0_rest()
        self.q0()

        self.kv_finish(0, 64, "v11")
        self.stamp_flush()
        p(f"s_cmp_ge_u32 {sh}, 14")
        p(f"s_cbranch_scc1 L_spare0{x}")
        assert len(self.bulk) <= 84
        b2 = self.touch[4] + self.take(self.opt.get("b2", 8))

        def pre_wo0():
            for it in b2:
                p.add(it)
            self.colsum_qkv()
        n_before = min(28, 28 + 56 - len(self.bulk))
        cs1 = self.colsum_w1_items()
        b3 = self.take(self.opt.get("b3", 10))
        self.wo_phase(0, pre_wo0, [(cs1[:n_before], 0, 26), (b3, 20, 27)])
        b4 = self.take(max(self.opt.get("b4", 0), len(self.bulk) - 56))

        def pre_ffn0():
            self.colsum_qkv_fetch()
            for it in b4:
                p.add(it)
            for it in cs1[n_before:]:
                p.add(it)
            p(f"v_mov_b32 v84, v{vCS1}")
            p(f"v_mov_b32 v85, v{vCS1 + 1}")
            p.wait_ds()
            p("s_barrier")

        def extra0(pos):
            return [(self.take(100), self.opt.get("w2beg", 0), pos[self.opt.get("w2end", 108)])]
        self.ffn(0, pre_ffn0, extra0)
        p(f"L_layer1{x}:")
        p("s_waitcnt lgkmcnt(0)")
        self.qkv1()
        self.kv_finish(1, 96, "v91")
        p(f"s_cmp_ge_u32 {sh}, 14")
        p(f"s_cbranch_scc1 L_spare1{x}")
        self.wo_phase(1)
        self.ffn(1)
        self.finish()
        p(f"L_spare0{x}:")
        p("s_waitcnt vmcnt(0) lgkmcnt(0)")
        self.spare0()
        p(f"s_branch L_layer1{x}")
        p(f"L_spare1{x}:")
        p("s_waitcnt vmcnt(0) lgkmcnt(0)")
        self.spare1()
        p(f"s_branch L_fin{x}")
        p.add(self.tail)
        self.tail = []

    def build(self):
        p = self.p
        self.prologue()
        self.startup()
        self.qkv0()
        self.body()
        p("L_fastend:")
        p("L_slow:")
        p("s_waitcnt vmcnt(0) lgkmcnt(0)")
        p("s_nop 7")
        self.fast = False
        self.sfx = "_s"
        self.body()
        return finalize(p.ins)


HEADER = f"""; Two layers of (LayerNorm, linear attention, output projection, LayerNorm, SiLU FFN) in one persistent launch.
; @launch grid=(256,1,1) block=(256,1,1) lds={LDS_BYTES}
.amdgcn_target "amdgcn-amd-amdhsa--gfx950"
.text
.globl {NAME}_kernel
.p2align 8
.type {NAME}_kernel,@function
{NAME}_kernel:
"""
FOOTER = f"""
.section .rodata,"a"
.p2align 6
.amdhsa_kernel {NAME}_kernel
  .amdhsa_next_free_vgpr 512
  .amdhsa_next_free_sgpr 102
  .amdhsa_accum_offset 256
  .amdhsa_group_segment_fixed_size 0
  .amdhsa_kernarg_size 72
  .amdhsa_user_sgpr_count 2
  .amdhsa_user_sgpr_kernarg_segment_ptr 1
  .amdhsa_system_sgpr_workgroup_id_x 1
.end_amdhsa_kernel
"""


def generate(**kw):
    g = Gen(**kw)
    lines = g.build()
    return HEADER + "\n".join(lines) + FOOTER, g


if __name__ == "__main__":
    out = sys.argv[1] if len(sys.argv) > 1 else f"cdna_kernels/{NAME}.s"
    kw = {}
    for a in sys.argv[2:]:
        k, _, v = a.partition("=")
        kw[k] = (int(v) if v.lstrip('-').isdigit() else v) if v else True
    text, g = generate(**kw)
    open(out, "w").write(text)
    print("wrote", out, len(text), "bytes;", text.count("\n"), "lines")
```

```python
import sys, os
sys.path.insert(0, os.path.dirname(os.path.abspath(__file__)))
from asmlib import *

NAME = "interleave_layers__linear_attn_block__dense_activation_silu__prompt"
KB = 1024

WS_EPOCH = 0
WS_RA = 0x8000
WS_RB = 0x10000
WS_DIAG = 0x20000
WS_KV = 0x80000
KV_L = 0x80000
WS_PQ = 0x180000
WS_PO = WS_PQ + 16 * 28 * KB
WS_P1 = WS_PO + 14 * 28 * KB
WS_P2 = WS_P1 + 14 * 112 * KB
WS_G = 0x680000
assert WS_P2 + 7 * 224 * KB <= WS_G
OOB = 0x40000000
G_STRIDE = 0x160000
G_H = 0
G_O = 8 * 112 * KB
G_X = G_O + 8 * 28 * KB
G_ST = G_X + 8 * 28 * KB
G_FX = G_ST + 8 * 7 * KB
G_FO = G_FX + 1024
G_FH = G_FO + 1024
G_END = G_FH + 2048
assert G_END <= G_STRIDE
WS_BYTES = WS_G + 8 * G_STRIDE

L_WK, L_WV, L_WQ, L_WO, L_S = 0, 28 * KB, 56 * KB, 84 * KB, 112 * KB
L_XST = 48 * KB
S_KVP, S_KVS = 0, 16 * KB
S_CS = 18 * KB
S_STAT, S_TR = 42 * KB, 44 * KB
LDS_BYTES = 160 * KB

SX, SQ, SO, S1, S2, SOUT, SWS, SG = ("s[8:11]", "s[12:15]", "s[16:19]", "s[20:23]", "s[24:27]", "s[28:31]",
                                     "s[32:35]", "s[36:39]")
sE, sg, sh, srh, sw, sfast, srq, scb, stb, sxs, slim = ("s56", "s57", "s58", "s59", "s60", "s61", "s62", "s63",
                                                        "s64", "s65", "s66")
sT0, sT1, sT2, sT3, sT4, sT5 = "s40", "s41", "s42", "s43", "s44", "s45"
sCnt, sNeed = "s46", "s47"
sONES, sLOG2E, sEPS6, sHI = "s48", "s49", "s50", "s51"
sM28 = "s[52:53]"
sMPAD = "s[54:55]"
sHB, sXB, sSTB = "s67", "s68", "s69"
STAMP0 = 80
sU = [f"s{70 + i}" for i in range(10)]
SPK = "s[20:23]"

vLane, vL16, vTrA, vTrB = "v0", "v1", "v2", "v3"
vCS1 = 4
vCSQ = 6
vS16 = "v12"
vT0, vT1, vT2 = "v13", "v14", "v15"


def V(n, k=4):
    return f"v[{n}:{n + k - 1}]" if k > 1 else f"v{n}"


def A(n, k=4):
    return f"a[{n}:{n + k - 1}]" if k > 1 else f"a{n}"


def w1reg(s, lo=0, k=4):
    return A(224 + 4 * s + lo, k) if s < 8 else V(176 + 4 * (s - 8) + lo, k)


def w2reg(j, ch, lo=0, k=4):
    return A(8 * j + 4 * ch + lo, k)


MFMA = "v_mfma_f32_32x32x16_bf16"
MFMA16 = "v_mfma_f32_16x16x32_bf16"


class Capture:
    def __init__(self, g):
        self.g = g

    def __enter__(self):
        self.saved = self.g.p.ins
        self.g.p.ins = []
        self.ins = self.g.p.ins
        return self

    def __exit__(self, *a):
        self.g.p.ins = self.saved


class Gen:
    def __init__(self, diag=False, force_slow=False, pad=0, part=0, **opt):
        self.p = Prog()
        self.diag = diag
        self.force_slow = force_slow
        self.pad = pad
        self.part = part
        self.opt = opt
        self.nstamp = 0
        self.seen = 0
        self.stamp_names = []
        self.pending = False
        self.tail = []
        self.fast = True
        self.sfx = ""

    def cap(self):
        return Capture(self)

    def stamp(self, name, op="s_memrealtime"):
        if self.opt.get("amp") == name and self.fast:
            self.p("s_memrealtime s[94:95]")
        if not self.diag or not self.fast:
            return
        self.seen += 1
        lo = self.opt.get("from", 18 * self.part)
        if self.seen > 2 and not (lo <= self.seen - 3 < lo + 18):
            return
        self.stamp_flush()
        assert STAMP0 + self.nstamp < 100, "too many stamps"
        if self.opt.get("clk") and self.seen > 1:
            op = "s_memtime"
        self.p(f"{op} s[100:101]")
        self.stamp_names.append(name)
        self.nstamp += 1
        self.pending = True

    def stamp_flush(self):
        if self.diag and self.pending:
            self.p(f"s_mov_b32 s{STAMP0 + self.nstamp - 1}, s100")
            self.pending = False

    def publish(self, stores, tag="pub", always_sc1=False):
        for s in stores:
            self.p(s + (" sc1" if s.startswith("buffer_") and (always_sc1 or not self.fast) else ""), tag)

    def flag(self, soff, val, n=1, wait="pub", tmp=14, st=sT5):
        p = self.p
        p(f"s_add_u32 {st}, {sE}, {val}")
        p(f"v_mov_b32 v{tmp}, {st}")
        if n == 2:
            p(f"v_mov_b32 v{tmp + 1}, {st}")
        op = f"buffer_store_dword v{tmp}" if n == 1 else f"buffer_store_dwordx2 v[{tmp}:{tmp + 1}]"
        p.wait_vm(wait)
        self.publish(["s_mov_b64 exec, 1", f"{op}, {vL16}, {SG}, {soff} offen", "s_mov_b64 exec, -1"], "flag")

    def poll_load(self, vaddr, srd, soff, n, tmp):
        if n == 1:
            self.p(f"buffer_load_dword v{tmp}, {vaddr}, {srd}, {soff} offen sc1")
        else:
            self.p(f"buffer_load_dwordx2 v[{tmp}:{tmp + 1}], {vaddr}, {srd}, {soff} offen sc1")

    def poll_test(self, n, tmp, need, win=3):
        p = self.p
        p(f"v_subrev_u32 v{tmp}, {need}, v{tmp}")
        if n == 2:
            p(f"v_subrev_u32 v{tmp + 1}, {need}, v{tmp + 1}")
            p(f"v_or_b32 v{tmp}, v{tmp}, v{tmp + 1}")
        p(f"v_cmp_lt_u32 vcc, {win}, v{tmp}")

    def spin(self, vaddr, srd, soff, n, tmp, need, done, sleep=0, win=3):
        p = self.p
        lp = p.label("poll")
        p(f"s_mov_b32 {sCnt}, {slim}")
        p(f"{lp}:")
        self.poll_load(vaddr, srd, soff, n, tmp)
        p("s_waitcnt vmcnt(0)")
        self.poll_test(n, tmp, need, win)
        p(f"s_cbranch_vccz {done}")
        sleep = sleep or self.opt.get("slp", 0)
        if sleep:
            p(f"s_sleep {sleep}")
        p(f"s_sub_u32 {sCnt}, {sCnt}, 1")
        p(f"s_cmp_lg_u32 {sCnt}, 0")
        p(f"s_cbranch_scc1 {lp}")
        p(f"s_mov_b32 {slim}, 1")

    def poll(self, vaddr, srd, soff, need, n=1, tmp=14, sleep=0):
        p = self.p
        ld = p.label("polled")
        p(f"s_add_u32 {sNeed}, {sE}, {need}")
        self.spin(vaddr, srd, soff, n, tmp, sNeed, ld, sleep)
        p(f"{ld}:")

    def apoll_end(self, vaddr, srd, soff, need, n=1, tmp=14, win=3):
        p = self.p
        lo, lb = p.label("aspin"), p.label("aback")
        p(f"s_add_u32 {sNeed}, {sE}, {need}")
        self.poll_test(n, tmp, sNeed, win)
        p(f"s_cbranch_vccnz {lo}")
        p(f"{lb}:")
        with self.cap() as c:
            p(f"{lo}:")
            p("s_nop 4")
            self.spin(vaddr, srd, soff, n, tmp, sNeed, lb, 0, win)
            p(f"s_branch {lb}")
        self.tail.extend(c.ins)

    def trread(self, dst_lo, dst_hi, vaddr, off, second=512):
        return [Ins(f"ds_read_b64_tr_b16 {dst_lo}, {vaddr} offset:{off}"),
                Ins(f"ds_read_b64_tr_b16 {dst_hi}, {vaddr} offset:{off + second}")]

    def transpose_block(self, reg, aw, ar):
        return [Ins(f"ds_write_b128 {aw}, {reg(0, 4)}"),
                Ins(f"ds_read_b64_tr_b16 {reg(0, 2)}, {ar}"),
                Ins(f"ds_read_b64_tr_b16 {reg(2, 2)}, {ar} offset:512")]

    def tr_addrs(self, aw, ar):
        p = self.p
        p(f"s_lshl_b32 {sT0}, {sw}, 10")
        p(f"s_add_u32 {sT0}, {sT0}, {L_S + S_TR}")
        p(f"v_add_u32 {aw}, {sT0}, {vL16}")
        p(f"v_add_u32 {ar}, {sT0}, {vTrA}")

    def both_halves(self, s, q, tmp):
        p = self.p
        p(f"v_permlane32_swap_b32 {s}, {q}")
        p(f"v_add_f32 {s}, {s}, {q}")

    def stats_finish(self, t, u, mean, var):
        p = self.p
        p(f"v_mov_b32 {u}, {t}")
        p(f"v_permlane32_swap_b32 {t}, {u}")
        p(f"v_mul_f32 {mean}, 0x3b124925, {t}")
        p(f"v_mul_f32 {var}, 0x3b124925, {u}")
        p(f"v_fma_f32 {var}, -{mean}, {mean}, {var}")
        p(f"v_max_f32 {var}, 0, {var}")
        p(f"v_add_f32 {var}, 0x3727c5ac, {var}")

    def split_words(self, x, w0, w1, t, neg, xside):
        p = self.p
        s = "-" if neg else ""
        p(f"v_cvt_pk_bf16_f32 {w0}, {s}{x}, {s}{x}")
        p(f"v_and_b32 {t}, {sHI}, {w0}")
        p(f"v_sub_f32 {t}, {s}{x}, {t}" if not neg else f"v_sub_f32_e64 {t}, -{x}, {t}")
        if xside:
            p(f"v_and_b32 {w1}, 0xffff, {w0}")
            p(f"v_cvt_pk_bf16_f32 {t}, {t}, {t}")
            p(f"v_and_or_b32 {w0}, {t}, {sHI}, {w1}")
        else:
            p(f"v_cvt_pk_bf16_f32 {w1}, {t}, 0")

    def prologue(self):
        p = self.p
        p("s_cmp_lt_u32 s2, 256")
        p("s_cbranch_scc1 L_start")
        p("s_endpgm")
        p("L_start:")
        p("s_load_dwordx4 s[40:43], s[0:1], 0")
        p("s_load_dwordx2 s[52:53], s[0:1], 64")
        p("s_load_dwordx2 s[44:45], s[0:1], 16")
        p("s_load_dwordx4 s[48:51], s[0:1], 32")
        p("s_load_dwordx2 s[46:47], s[0:1], 48")
        self.stamp("realtime", "s_memrealtime")
        if self.pad:
            p("s_memrealtime s[96:97]")
            p("s_memrealtime s[94:95]")
        p("s_getpc_b64 s[6:7]")
        p("L_pc:")
        p("v_lshrrev_b32 v13, 6, v0")
        p(f"v_and_b32 {vLane}, 63, v0")
        p(f"v_readfirstlane_b32 {sw}, v13")
        p(f"s_and_b32 {sg}, s2, 7")
        p(f"s_lshr_b32 s3, s2, 3")
        p(f"s_lshl_b32 s4, s3, 2")
        p(f"s_add_u32 s4, s4, {sw}")
        p(f"s_lshl_b32 s4, s4, 9")
        p(f"v_lshlrev_b32 v9, 7, {vLane}")
        p("v_add_u32 v13, s4, v9")
        p("v_min_u32 v13, L_fastend-L_pc-4, v13")
        p("s_mov_b64 exec, 0xf")
        p("global_load_dword v10, v13, s[6:7]")
        p("s_mov_b64 exec, -1")
        p(f"s_and_b32 {sh}, s3, 15")
        p(f"s_lshr_b32 {srh}, s3, 4")
        p(f"s_lshl_b32 s2, {sg}, 1")
        p(f"s_add_u32 s2, s2, {srh}")
        p("s_lshl_b32 s3, s2, 2")
        p(f"s_add_u32 s3, s3, {sw}")
        p("s_min_u32 s5, s3, 55")
        p("s_cmp_ge_u32 s5, 28")
        p("s_cselect_b32 s4, 1, 0")
        p("s_cselect_b32 s6, 28, 0")
        p("s_sub_u32 s5, s5, s6")
        p(f"v_lshrrev_b32 v13, 2, {vLane}")
        p(f"v_and_b32 v15, 3, {vLane}")
        p("v_lshlrev_b32 v15, 4, v15")
        p("v_mul_u32_u24 v14, 2688, v13")
        p("v_add_u32 v6, v14, v15")
        p("v_mul_u32_u24 v14, 896, v13")
        p("v_add_u32 v7, v14, v15")
        p("v_mul_u32_u24 v14, 3584, v13")
        p("v_add_u32 v8, v14, v15")
        p(f"s_cmp_ge_u32 {sh}, 7")
        p(f"s_cselect_b32 s6, 1, 0")
        p(f"s_cselect_b32 s7, 7, 0")
        p(f"s_lshl_b32 {srq}, {srh}, 1")
        p(f"s_add_u32 {srq}, {srq}, s6")
        p(f"s_sub_u32 {scb}, {sh}, s7")
        p(f"s_lshl_b32 {stb}, {srh}, 2")
        p(f"s_and_b32 s6, {sw}, 1")
        p(f"s_lshl_b32 s6, s6, 1")
        p(f"s_lshr_b32 s7, {sw}, 1")
        p(f"s_or_b32 s6, s6, s7")
        p(f"s_add_u32 {sxs}, {stb}, s6")
        p(f"s_add_u32 {stb}, {stb}, {sw}")
        p(f"v_lshlrev_b32 {vL16}, 4, {vLane}")
        p(f"v_lshrrev_b32 v13, 3, {vLane}")
        p("v_mul_u32_u24 v14, 896, v13")
        p("v_lshrrev_b32 v13, 1, v13")
        p(f"v_and_b32 v15, 7, {vLane}")
        p("v_xor_b32 v13, v13, v15")
        p("v_lshl_add_u32 v16, v13, 4, v14")
        p("v_xor_b32 v13, 4, v13")
        p("v_lshl_add_u32 v17, v13, 4, v14")
        p(f"s_lshl_b32 {sU[0]}, {sg}, 3")
        p(f"s_add_u32 {sU[0]}, {sU[0]}, {stb}")
        p(f"s_mul_i32 {sU[0]}, {sU[0]}, {32 * 896}")
        p(f"s_mul_i32 {sU[1]}, {sw}, {28 * KB}")
        p(f"s_add_u32 {sU[1]}, {sU[1]}, {L_XST}")
        p(f"s_cmp_ge_u32 {sh}, 14")
        p(f"s_cselect_b32 {sU[2]}, 7, 0")
        p(f"s_sub_u32 {sU[2]}, {scb}, {sU[2]}")
        p(f"s_mul_i32 {sU[7]}, s2, 37")
        p(f"s_lshr_b32 {sU[7]}, {sU[7]}, 8")
        p(f"s_mul_i32 {sU[7]}, {sU[7]}, 7")
        p(f"s_sub_u32 {sU[6]}, s2, {sU[7]}")
        p(f"s_sub_i32 {sU[7]}, {sU[2]}, {sU[6]}")
        p(f"s_cmp_lt_i32 {sU[7]}, 0")
        p(f"s_cselect_b32 s6, 7, 0")
        p(f"s_add_i32 {sU[7]}, {sU[7]}, s6")
        p(f"s_mov_b32 s10, {2048 * 896}\ns_mov_b32 s11, 0x00020000")
        p(f"s_mov_b32 s14, {448 * 2688}\ns_mov_b32 s15, 0x00020000")
        p("s_waitcnt lgkmcnt(0)")
        self.stamp("start")
        p("s_mov_b32 s12, s42\ns_mov_b32 s13, s43")
        p("s_mov_b32 s8, s40\ns_mov_b32 s9, s41")
        p(f"s_load_dword {sE}, s[52:53], {WS_EPOCH}")
        for j in range(7):
            p(f"s_lshl_b32 {sU[3]}, {sU[2]}, 7")
            p(f"s_add_u32 {sU[3]}, {sU[3]}, {sU[0]}")
            p(f"s_lshl_b32 {sU[4]}, {sU[7]}, 12")
            p(f"s_add_u32 {sU[4]}, {sU[4]}, {sU[1]}")
            for b in range(4):
                p(f"s_add_u32 m0, {sU[4]}, {b * KB}")
                p(f"s_add_u32 {sU[5]}, {sU[3]}, {b * 8 * 896}")
                p(f"buffer_load_dwordx4 v{16 + (b & 1)}, {SX}, {sU[5]} offen lds", "x")
                if 4 * j + b + 1 == self.opt.get("xa", 4):
                    self.prologue2()
            if j < 6:
                p(f"s_add_u32 {sU[2]}, {sU[2]}, 1")
                p(f"s_cmp_eq_u32 {sU[2]}, 7")
                p(f"s_cselect_b32 {sU[2]}, 0, {sU[2]}")
                p(f"s_add_u32 {sU[7]}, {sU[7]}, 1")
                p(f"s_cmp_eq_u32 {sU[7]}, 7")
                p(f"s_cselect_b32 {sU[7]}, 0, {sU[7]}")

    def prologue2(self):
        p = self.p
        p(f"s_mul_i32 {sHB}, {stb}, {28 * KB}")
        p(f"s_add_u32 {sHB}, {sHB}, {G_O}")
        p(f"s_mul_i32 {sXB}, {sxs}, {28 * KB}")
        p(f"s_add_u32 {sXB}, {sXB}, {G_X}")
        p(f"s_mul_i32 {sSTB}, {stb}, {7 * KB}")
        p(f"s_add_u32 {sSTB}, {sSTB}, {G_ST}")
        p(f"s_mov_b32 {slim}, 40000")
        p(f"v_add_u32 {vS16}, {L_S}, {vL16}")
        p(f"v_and_b32 v13, 3, {vLane}")
        p("v_lshlrev_b32 v13, 3, v13")
        p(f"v_bfe_u32 v14, {vLane}, 4, 1")
        p("v_lshl_add_u32 v13, v14, 5, v13")
        p(f"v_bfe_u32 v14, {vLane}, 2, 2")
        p("v_lshl_add_u32 v13, v14, 6, v13")
        p(f"v_lshrrev_b32 v14, 5, {vLane}")
        p(f"v_lshl_add_u32 {vTrA}, v14, 8, v13")
        p(f"v_add_u32 {vTrB}, {L_WQ}, {vTrA}")
        p("v_lshl_add_u32 v62, v14, 9, v13")
        p(f"v_add_u32 v63, {L_WQ}, v62")
        p(f"v_and_b32 v13, 31, {vLane}")
        p("v_lshrrev_b32 v14, 3, v13")
        p("v_lshlrev_b32 v14, 10, v14")
        p("v_and_b32 v15, 7, v13")
        p("v_lshl_add_u32 v14, v15, 7, v14")
        p(f"v_add_u32 v14, {sU[1]}, v14")
        p("v_bfe_u32 v13, v13, 1, 3")
        p(f"v_lshrrev_b32 v15, 5, {vLane}")
        p("v_xor_b32 v13, v13, v15")
        for q in range(4):
            p(f"v_xor_b32 v15, {2 * q}, v13")
            p(f"v_lshl_add_u32 v{20 + q}, v15, 4, v14")
        p(f"v_lshrrev_b32 v15, 5, {vLane}")
        p("v_xor_b32 v13, v13, v15")
        p("v_lshl_add_u32 v14, v15, 3, v14")
        p(f"s_min_u32 s6, {sh}, 13")
        p("s_lshr_b32 s7, s6, 1")
        p(f"s_sub_i32 s7, s7, {sU[6]}")
        p("s_cmp_lt_i32 s7, 0")
        p(f"s_cselect_b32 {sU[8]}, 7, 0")
        p(f"s_add_i32 s7, s7, {sU[8]}")
        p("s_lshl_b32 s7, s7, 12")
        p("v_add_u32 v14, s7, v14")
        p("s_and_b32 s6, s6, 1")
        p("s_lshl_b32 s6, s6, 2")
        p("v_xor_b32 v13, s6, v13")
        for a in range(4):
            p(f"v_xor_b32 v15, {a}, v13")
            p(f"v_lshl_add_u32 v{24 + a}, v15, 4, v14")
        p(f"s_cmp_lt_u32 {sh}, 14")
        p(f"s_cselect_b32 s18, {448 * 448 * 2}, 0")
        p(f"s_cselect_b32 s22, {448 * 1792 * 2}, 0")
        p(f"s_cselect_b32 s26, {448 * 1792 * 2}, 0")
        for base, src, size in ((16, 44, None), (20, 48, None), (24, 50, None), (28, 46, 2048 * 896),
                                (32, 52, WS_BYTES)):
            p(f"s_mov_b32 s{base}, s{src}")
            p(f"s_mov_b32 s{base + 1}, s{src + 1}")
            if size is not None:
                p(f"s_mov_b32 s{base + 2}, {size}")
            p(f"s_mov_b32 s{base + 3}, 0x00020000")
        p(f"s_mul_i32 s6, {sg}, {G_STRIDE}")
        p(f"s_add_u32 s6, s6, {WS_G}")
        p("s_add_u32 s36, s52, s6")
        p("s_addc_u32 s37, s53, 0")
        p(f"s_mov_b32 s38, {G_STRIDE}")
        p("s_mov_b32 s39, 0x00020000")

    def kv_clear(self):
        p = self.p
        p(f"s_lshl_b32 {sT0}, {sh}, 15")
        p(f"s_lshl_b32 {sT1}, s3, 9")
        p(f"s_add_u32 {sT0}, {sT0}, {sT1}")
        p(f"s_add_u32 {sT0}, {sT0}, {WS_KV}")
        p(f"s_add_u32 {sT1}, {sT0}, {KV_L}")
        p("v_mov_b32 v36, -1\nv_mov_b32 v37, -1")
        p(f"v_lshlrev_b32 v11, 3, {vLane}")
        p(f"buffer_store_dwordx2 v[36:37], v11, {SWS}, {sT0} offen sc1", "pb")
        p(f"buffer_store_dwordx2 v[36:37], v11, {SWS}, {sT1} offen sc1", "pb")

    def wqkv_setup(self):
        p = self.p
        p(f"s_mul_i32 s0, {sh}, 56")
        p(f"s_mul_i32 s1, {sw}, {16 * 2688}")
        p("s_add_u32 s0, s0, s1")
        p(f"s_lshl_b32 s1, {sw}, 10")
        p(f"s_mov_b32 {sU[8]}, {sU[6]}")
        p(f"s_mov_b32 {sU[4]}, {sU[6]}")

    def wqkv_item(self, m, lbase, tag):
        p = self.p
        cnt = sU[8] if m == 2 else sU[6]
        with self.cap() as c:
            p(f"s_lshl_b32 {sU[7]}, {cnt}, 12")
            p(f"s_add_u32 {sU[7]}, {sU[7]}, s1")
            p(f"s_add_u32 m0, {sU[7]}, {lbase}")
            p(f"s_mul_i32 {sU[7]}, {cnt}, {64 * 2688}")
            p(f"s_add_u32 {sU[7]}, {sU[7]}, s0")
            if m:
                p(f"s_add_u32 {sU[7]}, {sU[7]}, {896 * m}")
            p(f"buffer_load_dwordx4 v6, {SQ}, {sU[7]} offen lds", tag)
            p(f"s_add_u32 {cnt}, {cnt}, 1")
            p(f"s_cmp_eq_u32 {cnt}, 7")
            p(f"s_cselect_b32 {cnt}, 0, {cnt}")
        return c.ins

    def group_base(self, dst, base):
        p = self.p
        with self.cap() as c:
            p(f"s_lshl_b32 {sT4}, {sU[4]}, 12")
            p(f"v_add_u32 {dst}, {sT4}, {base}")
            p(f"s_add_u32 {sU[4]}, {sU[4]}, 1")
            p(f"s_cmp_eq_u32 {sU[4]}, 7")
            p(f"s_cselect_b32 {sU[4]}, 0, {sU[4]}")
        return c.ins

    def consts(self):
        p = self.p
        p(f"s_mov_b32 {sONES}, 0x3f803f80")
        p(f"s_mov_b32 {sLOG2E}, 0x3fb8aa3b")
        p(f"s_mov_b32 {sEPS6}, 0x358637bd")
        p(f"s_mov_b32 {sHI}, 0xffff0000")
        p("s_mov_b32 s52, 0x10000000")
        p("s_mov_b32 s53, 0x10000000")
        p("s_mov_b32 s54, 0")
        p("s_mov_b32 s55, -1")

    def ready(self, base):
        p = self.p
        p(f"s_lshl_b32 {sT2}, {sh}, 4")
        p(f"s_add_u32 {sT2}, {sT2}, s2")
        p(f"s_lshl_b32 {sT2}, {sT2}, 7")
        p(f"s_add_u32 {sT2}, {sT2}, {base}")
        p(f"s_cmp_eq_u32 {sw}, 0")
        p(f"s_cselect_b32 {sT2}, {sT2}, {OOB}")
        p(f"s_add_u32 {sT5}, {sE}, {sfast}")
        p(f"s_add_u32 {sT5}, {sT5}, 1")
        p(f"v_mov_b32 v14, {sT5}")
        p("s_mov_b64 exec, 1")
        p(f"buffer_store_dword v14, {vL16}, {SWS}, {sT2} offen sc1")
        p("s_mov_b64 exec, -1")

    def pack_b_loads(self):
        p = self.p
        p(f"s_mul_i32 {sT0}, s5, {16 * 3584}")
        p(f"s_lshl_b32 {sT1}, {sh}, 8")
        p(f"s_add_u32 {sT0}, {sT0}, {sT1}")
        p(f"s_lshl_b32 {sT1}, s4, 7")
        p(f"s_add_u32 {sT0}, {sT0}, {sT1}")
        p(f"buffer_load_dwordx4 a[40:43], v8, {S1}, {sT0} offen")
        p(f"buffer_load_dwordx4 a[44:47], v8, {S1}, {sT0} offen offset:64")
        p(f"s_mul_i32 {sU[1]}, {sh}, 112")
        p(f"s_mul_i32 {sT1}, s4, 56")
        p(f"s_add_u32 {sU[1]}, {sU[1]}, {sT1}")
        p(f"s_add_u32 {sU[1]}, {sU[1]}, s5")
        p(f"s_lshl_b32 {sU[1]}, {sU[1]}, 10")
        p(f"s_add_u32 {sU[1]}, {sU[1]}, {WS_P1}")
        p(f"s_cmp_lt_u32 {sh}, 14")
        p(f"s_cselect_b32 s22, {WS_BYTES}, 0")
        p("s_mov_b32 s20, s32\ns_mov_b32 s21, s33")
        self.tr_addrs("v4", "v5")

    def pack_c_loads(self):
        p = self.p
        p(f"s_and_b32 {sU[5]}, {srq}, 1")
        p(f"s_lshl_b32 {sU[5]}, {sU[5]}, 6")
        p(f"s_add_u32 {sU[5]}, {sU[5]}, s3")
        p(f"s_mul_i32 {sU[0]}, {sU[5]}, {16 * 896}")
        p(f"s_lshl_b32 {sU[2]}, {scb}, 7")
        p(f"s_add_u32 {sU[0]}, {sU[0]}, {sU[2]}")
        p(f"s_mul_i32 {sU[2]}, {scb}, 112")
        p(f"s_add_u32 {sU[2]}, {sU[2]}, {sU[5]}")
        p(f"s_lshl_b32 {sU[2]}, {sU[2]}, 11")
        p(f"s_add_u32 {sU[2]}, {sU[2]}, {WS_P2}")
        p(f"s_cmp_lt_u32 {sU[5]}, 112")
        p(f"s_cselect_b32 {sU[0]}, {sU[0]}, {OOB}")
        p(f"s_cselect_b32 {sU[2]}, {sU[2]}, {OOB}")
        p(f"buffer_load_dwordx4 a[48:51], v7, {S2}, {sU[0]} offen")
        p(f"buffer_load_dwordx4 a[52:55], v7, {S2}, {sU[0]} offen offset:64")

    def pack_b_items(self):
        items = [self.transpose_block(lambda lo, k, r=r: A(r + lo, k), "v4", "v5") for r in (40, 44)]
        items.append([Ins(f"buffer_store_dwordx4 a[40:43], {vL16}, {SPK}, {sU[1]} offen sc1", "pb"),
                      Ins(f"s_add_u32 {sU[1]}, {sU[1]}, {28 * KB}")])
        items.append([Ins(f"buffer_store_dwordx4 a[44:47], {vL16}, {SPK}, {sU[1]} offen sc1", "pb")])
        return items

    def pack_c_items(self):
        items = [self.transpose_block(lambda lo, k, r=r: A(r + lo, k), "v4", "v5") for r in (48, 52)]
        items.append([Ins(f"buffer_store_dwordx4 a[48:51], {vL16}, {SPK}, {sU[2]} offen sc1", "pb")])
        items.append([Ins(f"buffer_store_dwordx4 a[52:55], {vL16}, {SPK}, {sU[2]} offen offset:1024 sc1", "pb")])
        return items

    def dma_items(self, vaddr, srd, first, count, tag, stm):
        p = self.p
        items = []
        for u in range(count):
            with self.cap() as c:
                if u == 0:
                    p(f"s_mul_i32 {stm}, {sw}, {count * KB}")
                if u % 4 == 0:
                    p(f"s_add_u32 m0, {stm}, {(first + u) * KB}")
                p(f"buffer_load_dwordx4 {vaddr}, {srd}, m0 offen offset:{(u % 4) * KB} sc1 lds", tag)
            items.append(c.ins)
        return items

    def w1_items(self):
        p = self.p
        items = []
        for s in range(28):
            with self.cap() as c:
                if s == 0:
                    p(f"s_lshl_b32 s24, {sh}, 2")
                    p(f"s_add_u32 s24, s24, {sw}")
                    p(f"s_mul_i32 s24, s24, {28 * KB}")
                    p(f"s_add_u32 s24, s24, {WS_P1}")
                elif s % 4 == 0:
                    p(f"s_add_u32 s24, s24, {4 * KB}")
                p(f"buffer_load_dwordx4 {w1reg(s)}, {vL16}, {SPK}, s24 offen offset:{(s % 4) * KB} sc1", "w1")
            items.append(c.ins)
        return items

    def pack_d_loads(self):
        p = self.p
        p(f"s_mul_i32 {sT2}, s5, {16 * 896}")
        p(f"s_lshl_b32 {sT1}, {sh}, 6")
        p(f"s_add_u32 {sT2}, {sT2}, {sT1}")
        p(f"s_mul_i32 {sT1}, {sh}, 28")
        p(f"s_add_u32 {sT1}, {sT1}, s5")
        p(f"s_lshl_b32 {sT1}, {sT1}, 10")
        p(f"s_add_u32 {sU[9]}, {sT1}, {WS_PO}")
        p("s_cmp_eq_u32 s4, 0")
        p(f"s_cselect_b32 {sT2}, {OOB}, {sT2}")
        p(f"s_cselect_b32 {sU[9]}, {OOB}, {sU[9]}")
        p(f"buffer_load_dwordx4 v[32:35], v7, {SO}, {sT2} offen")
        if self.opt.get("mall", 1):
            p(f"s_lshl_b32 {sT0}, {sh}, 6")
            p(f"s_add_u32 {sT0}, {sT0}, s3")
            p(f"s_lshr_b32 {sT1}, {sT0}, 1")
            p(f"s_mul_i32 {sT1}, {sT1}, 2688")
            p(f"s_and_b32 {sT0}, {sT0}, 1")
            p(f"s_mul_i32 {sT0}, {sT0}, 384")
            p(f"s_add_u32 {sT0}, {sT0}, {sT1}")
            p("s_mov_b64 exec, 0xf")
            p(f"buffer_load_dword v10, v9, {SQ}, {sT0} offen", "touch")
            p("s_mov_b64 exec, -1")

    def pack_d_items(self):
        return [[Ins(f"buffer_store_dwordx4 v[32:35], {vL16}, {SPK}, {sU[9]} offen sc1", "pb")]]

    def touch_items(self, base, lines, per=16):
        p = self.p
        with self.cap() as c:
            p(f"s_mul_i32 {sU[7]}, {srh}, {per}")
            p(f"s_add_u32 {sU[7]}, {sU[7]}, {sh}")
            p(f"s_lshl_b32 {sU[7]}, {sU[7]}, 2")
            p(f"s_add_u32 {sU[7]}, {sU[7]}, {sw}")
            p(f"s_mul_i32 {sU[7]}, {sU[7]}, {lines * 128}")
            p(f"s_add_u32 {sU[7]}, {sU[7]}, {base}")
            assert lines < 32
            p(f"s_mov_b64 exec, {(1 << lines) - 1}")
            p(f"buffer_load_dword v10, v9, {SG}, {sU[7]} offen", "touch")
            p("s_mov_b64 exec, -1")
        return [c.ins]

    def startup(self):
        p = self.p
        p(f"s_getreg_b32 {sfast}, hwreg(HW_REG_XCC_ID, 0, 4)")
        self.wqkv_setup()
        self.pack_b_loads()
        self.pack_c_loads()
        self.pack_d_loads()
        nk0 = self.opt.get("nk0", 4)
        for u in range(nk0):
            p.add(self.wqkv_item(1, L_WK, f"g{u}"))
        p.wait_vm("x")
        p("s_waitcnt lgkmcnt(0)")
        self.consts()
        self.stamp("x_landed")
        for s in range(28):
            p(f"ds_read_b128 {V(64 + 4 * s)}, v{20 + (s & 3)} offset:{(s >> 2) * 4096}")
        for a in range(4):
            p(f"ds_read_b64 {A(56 + 2 * a, 2)}, v{24 + a}")
        for r in range(52, 56):
            p(f"v_mov_b32 v{r}, 0")
        with self.cap() as c:
            for i in range(112):
                p(f"v_dot2c_f32_bf16 v{52 + (i & 1)}, {sONES}, v{64 + i}")
                p(f"v_dot2c_f32_bf16 v{54 + (i & 1)}, v{64 + i}, v{64 + i}")
            p("v_add_f32 v52, v52, v53")
            p("v_add_f32 v54, v54, v55")
            self.both_halves("v52", "v54", None)
            self.stats_finish("v52", "v53", "v56", "v58")
            p("v_rsq_f32 v58, v58")
            p("v_mul_f32_e64 v56, -v56, v58")
            p("v_mov_b32 v59, v58")
            p("v_mov_b32 v57, v56")
            for i in range(0, 112 if not self.opt.get("noln") else 8, 2):
                t = 16 + 4 * ((i >> 1) & 1)
                for k in range(2):
                    p(f"v_lshlrev_b32 v{t + 2 * k}, 16, v{64 + i + k}")
                    p(f"v_and_b32 v{t + 2 * k + 1}, {sHI}, v{64 + i + k}")
                for k in range(2):
                    p(f"v_pk_fma_f32 {V(t + 2 * k, 2)}, {V(t + 2 * k, 2)}, v[58:59], v[56:57]")
                for k in range(2):
                    p(f"v_cvt_pk_bf16_f32 v{64 + i + k}, v{t + 2 * k}, v{t + 2 * k + 1}")
        main = groups(c.ins, 4)
        n = len(main)
        seq = []
        for u in range(7):
            if u >= nk0:
                seq.append(self.wqkv_item(1, L_WK, f"g{u}"))
            seq.append(self.wqkv_item(2, L_WV, f"g{u}"))
        nl = self.opt.get("nl", 6)
        self.kvrest = seq[nl:]
        with self.cap() as c1:
            self.kv_clear()
        packs = [c1.ins] + self.pack_d_items() + self.pack_b_items() + self.pack_c_items()
        with self.cap() as c2:
            p(f"s_mul_i32 {sT0}, {sh}, {28 * KB}")
            p(f"s_add_u32 {sT1}, {sT0}, {WS_PO - L_WO}")
            p(f"v_add_u32 v8, {sT1}, {vL16}")
        g0, g1 = n * self.opt.get("g0", 25) // 100, n * self.opt.get("g1", 55) // 100
        gb = n * self.opt.get("gb", 1) // 100
        with self.cap() as cb:
            p.wait_ds()
            p("s_barrier")
        p.add(spread(main, [([cb.ins], gb, gb), (seq[:nl], gb + 1, n * self.opt.get("gk", 98) // 100),
                            (packs + [c2.ins], max(g0, gb + 1), g1)]))
        self.stamp("ln_done")

    def phi(self, acc, out, tmp, scale=None, pk=None):
        p = self.p
        for r0 in range(0, 16, 2):
            rr = (r0, r0 + 1)
            a = {r: f"v{acc + r}" for r in rr}
            t = {r: f"v{tmp + (r & 3)}" for r in rr}
            a2, t2 = V(acc + r0, 2), V(tmp + (r0 & 3), 2)
            if pk is not None:
                k2 = V(pk, 2)
                if scale is None:
                    p(f"v_pk_add_f32 {a2}, {a2}, {k2} op_sel_hi:[1,0]")
                else:
                    sc, hi = scale(r0)
                    p(f"v_pk_fma_f32 {a2}, {a2}, {sc}, {k2} op_sel_hi:[1,{hi},0]")
                p(f"v_pk_mul_f32 {t2}, {a2}, {k2} op_sel:[0,1] op_sel_hi:[1,1]")
            else:
                for r in rr:
                    if scale is None:
                        p(f"v_add_f32 {a[r]}, {sEPS6}, {a[r]}")
                    else:
                        p(f"v_fma_f32 {a[r]}, {a[r]}, {scale(r)}, {sEPS6}")
                for r in rr:
                    p(f"v_mul_f32 {t[r]}, {sLOG2E}, {a[r]}")
            for r in rr:
                p(f"v_exp_f32 {t[r]}, {t[r]} clamp")
            for r in rr:
                p(f"v_max_f32 {a[r]}, {sEPS6}, {a[r]}")
            if pk is not None:
                p(f"v_pk_add_f32 {a2}, {a2}, {t2}")
            else:
                for r in rr:
                    p(f"v_add_f32 {a[r]}, {a[r]}, {t[r]}")
            p(f"v_cvt_pk_bf16_f32 v{out + (r0 >> 1)}, {a[r0]}, {a[r0 + 1]}")

    def v_pack(self):
        p = self.p
        for r in range(8):
            p(f"v_cvt_pk_bf16_f32 v{32 + r}, v{32 + 2 * r}, v{33 + 2 * r}")
        p(f"s_mov_b64 exec, {sM28}")
        for r in range(8):
            p(f"v_mov_b32 v{32 + r}, {sONES}")
        p("s_mov_b64 exec, -1")

    def kv_addrs(self, layer, a0, a1, a2):
        p = self.p
        p(f"s_lshl_b32 {sT0}, {sw}, 10")
        p(f"v_add_u32 {a0}, {sT0}, {vS16}")
        p(f"s_lshl_b32 {sT0}, {sw}, 12")
        p(f"v_add_u32 {a1}, {sT0}, {vS16}")
        p(f"v_lshlrev_b32 {a2}, 3, {vLane}")
        p(f"s_lshl_b32 {sT0}, {sh}, 15")
        p(f"s_lshl_b32 {sT1}, {sw}, 9")
        p(f"s_add_u32 {sT0}, {sT0}, {sT1}")
        p(f"s_add_u32 s6, {sT0}, {WS_KV + layer * KV_L}")
        p(f"s_lshl_b32 {sT1}, {sg}, 1")
        p(f"s_add_u32 {sT1}, {sT1}, {srh}")
        p(f"s_lshl_b32 {sT1}, {sT1}, 11")
        p(f"s_add_u32 s7, {sT1}, s6")

    def kv_publish(self, kvacc, a0, a1, a2):
        p = self.p
        p(f"{MFMA} {kvacc(0, 16)}, {V(16)}, {V(32)}, 0")
        p(f"{MFMA} {kvacc(0, 16)}, {V(20)}, {V(36)}, {kvacc(0, 16)}")
        for q in range(4):
            p(f"ds_write_b128 {a0}, {kvacc(4 * q, 4)} offset:{S_KVP + q * 4096}")
        p.wait_ds()
        p("s_barrier")
        for u in range(4):
            p(f"ds_read_b128 {V(32 + 4 * u)}, {a1} offset:{S_KVP + u * 1024}")
        for r in (0, 2):
            p(f"v_pk_add_f32 {V(32 + r, 2)}, {V(32 + r, 2)}, {V(36 + r, 2)}")
        for r in (0, 2):
            p(f"v_pk_add_f32 {V(40 + r, 2)}, {V(40 + r, 2)}, {V(44 + r, 2)}")
        for r in (0, 2):
            p(f"v_pk_add_f32 {V(32 + r, 2)}, {V(32 + r, 2)}, {V(40 + r, 2)}")
        p("v_cvt_pk_bf16_f32 v28, v32, v33")
        p("v_cvt_pk_bf16_f32 v29, v34, v35")
        p(f"buffer_store_dwordx2 v[28:29], {a2}, {SWS}, s7 offen sc1", "kvpub")

    def o_addrs(self):
        p = self.p
        p(f"s_mul_i32 {sT0}, {sh}, 7")
        p(f"v_lshrrev_b32 v16, 5, {vLane}")
        p(f"v_add_u32 v16, {sT0}, v16")
        p(f"v_and_b32 v17, 31, {vLane}")
        p("v_lshlrev_b32 v17, 4, v17")
        p("v_and_b32 v18, 1, v16")
        p("v_lshl_add_u32 v17, v18, 9, v17")
        p("v_lshrrev_b32 v16, 1, v16")
        for j in range(4):
            p(f"v_add_u32 v18, {j}, v16")
            p("v_and_b32 v19, 1, v18")
            p("v_lshrrev_b32 v18, 1, v18")
            p("v_lshl_add_u32 v18, v18, 10, v17")
            p(f"v_lshl_add_u32 v{56 + j}, v19, 3, v18")
        p(f"s_lshr_b32 {sT0}, {sw}, 1")
        p(f"s_lshl_b32 {sT0}, {sT0}, 10")
        p(f"s_and_b32 {sT1}, {sw}, 1")
        p(f"s_lshl_b32 {sT1}, {sT1}, 3")
        p(f"s_add_u32 {sT0}, {sT0}, {sT1}")
        p(f"v_add_u32 v60, {sT0}, {vS16}")
        p(f"s_lshl_b32 {sT0}, {stb}, 7")
        p(f"s_lshl_b32 {sT1}, {sh}, 2")
        p(f"s_add_u32 {sT0}, {sT0}, {sT1}")
        p(f"s_add_u32 s3, {sT0}, {G_FO}")

    def gather_items(self, G, a2):
        p = self.p
        items = []
        for u in range(0, 16, 2):
            with self.cap() as c:
                p(f"s_add_u32 {sT5}, {sg}, {u // 2}")
                p(f"s_and_b32 {sT5}, {sT5}, 7")
                p(f"s_lshl_b32 {sT5}, {sT5}, 12")
                p(f"s_add_u32 {sT5}, {sT5}, s6")
                p(f"buffer_load_dwordx2 {V(G + 2 * u, 2)}, {a2}, {SWS}, {sT5} offen sc1")
                p(f"buffer_load_dwordx2 {V(G + 2 * u + 2, 2)}, {a2}, {SWS}, {sT5} offen offset:2048 sc1")
            items.append(c.ins)
        return items

    def kv_finish(self, layer, G, a2):
        p = self.p

        def sums():
            for r in range(16, 21):
                p(f"v_mov_b32 v{r}, 0")
            for u in range(16):
                for k in range(2):
                    p(f"v_dot2c_f32_bf16 v{16 + 2 * k}, {sT3}, v{G + 2 * u + k}")
                    p(f"v_dot2c_f32_bf16 v{17 + 2 * k}, {sT4}, v{G + 2 * u + k}")
                p(f"v_max3_u32 v20, v20, v{G + 2 * u}, v{G + 2 * u + 1}")
            p("v_cmp_eq_u32 vcc, -1, v20")
        p(f"s_mov_b32 {sT3}, 0x3f80")
        p(f"s_mov_b32 {sT4}, 0x3f800000")
        lo, lb, lp = p.label("kvspin"), p.label("kvback"), p.label("kvloop")
        if self.diag:
            p(f"s_mov_b32 s{18 + layer}, 0")
        sums()
        p(f"s_cbranch_vccnz {lo}")
        p(f"{lb}:")
        with self.cap() as c:
            p(f"{lo}:")
            p(f"s_mov_b32 {sCnt}, {slim}")
            p(f"{lp}:")
            if self.diag:
                p(f"s_add_u32 s{18 + layer}, s{18 + layer}, 1")
            for it in self.gather_items(G, a2):
                p.add(it)
            p("s_waitcnt vmcnt(0)")
            sums()
            p(f"s_cbranch_vccz {lb}")
            p(f"s_sub_u32 {sCnt}, {sCnt}, 1")
            p(f"s_cmp_lg_u32 {sCnt}, 0")
            p(f"s_cbranch_scc1 {lp}")
            p(f"s_mov_b32 {slim}, 1")
            p(f"s_branch {lb}")
        self.tail.extend(c.ins)
        self.stamp(f"kv_seen{layer}")
        p("v_cvt_pk_bf16_f32 v20, v16, v17")
        p("v_cvt_pk_bf16_f32 v21, v18, v19")
        p(f"ds_write_b64 v60, v[20:21] offset:{S_KVS}")
        p.wait_vm("wo")
        p.wait_ds()
        p("s_barrier")
        p(f"ds_read_b128 {V(24)}, {vS16} offset:{S_KVS}")
        p(f"ds_read_b128 {V(28)}, {vS16} offset:{S_KVS + 1024}")
        p(f"{MFMA} {V(32, 16)}, {V(24)}, {V(48)}, 0")
        p(f"{MFMA} {V(32, 16)}, {V(28)}, {V(52)}, {V(32, 16)}")
        p("v_mov_b32 v16, v44")
        p("v_mov_b32 v17, v44")
        p("v_permlane32_swap_b32 v16, v17")
        p(f"v_add_f32 v16, {sEPS6}, v17")
        p("v_rcp_f32 v16, v16")
        for r in range(0, 16, 2):
            p(f"v_pk_mul_f32 {V(32 + r, 2)}, {V(32 + r, 2)}, v[16:17] op_sel_hi:[1,0]")
        for r in range(8):
            p(f"v_cvt_pk_bf16_f32 v{20 + r}, v{32 + 2 * r}, v{33 + 2 * r}")
        st = [f"buffer_store_dwordx2 {V(20 + 2 * j, 2)}, v{56 + j}, {SG}, {sHB} offen" for j in range(3)]
        st += ["s_mov_b32 exec_hi, 0", f"buffer_store_dwordx2 {V(26, 2)}, v59, {SG}, {sHB} offen",
               "s_mov_b64 exec, -1"]
        self.publish(st)
        self.flag("s3", 1 + layer)
        self.stamp(f"o_pub{layer}")

    def single_pass(self, acc, frag, nfrag, vaddr, off, second, areg, first, last, transposed, zero):
        rd = lambda s: self.trread(frag(s % nfrag, 0), frag(s % nfrag, 2), vaddr, off + s * KB, second)
        head = []
        for s in range(first, first + nfrag - 1):
            head += rd(s)
        main = []
        for s in range(first, last):
            w, a = frag(s % nfrag, None), areg(s)
            c = 0 if (zero and s == first) else acc
            g = [Ins(f"{MFMA} {acc}, {w}, {a}, {c}" if transposed else f"{MFMA} {acc}, {a}, {w}, {c}")]
            if s + nfrag - 1 < last:
                g += rd(s + nfrag - 1)
            main.append(g)
        return head, main

    def qkv0(self):
        p = self.p
        rd = []
        for s in range(28):
            f = (s % 3) * 8
            va = f"v{54 + ((s >> 2) & 1)}"
            pre = []
            if s % 4 == 0:
                pre = self.group_base(va, "v62") + [Pseudo("wait_vm", f"g{s >> 2}"), Ins("s_barrier")]
            rd.append((pre + self.trread(A(f, 2), A(f + 2, 2), va, L_WK + (s & 3) * KB, 256),
                       self.trread(A(f + 4, 2), A(f + 6, 2), va, L_WV + (s & 3) * KB, 256)))
        head = rd[0][0] + rd[0][1] + rd[1][0] + rd[1][1]
        main = []
        for s in range(28):
            f = (s % 3) * 8
            for k in range(2):
                acc = V(16 + 16 * k, 16)
                g = [Ins(f"{MFMA} {acc}, {V(64 + 4 * s)}, {A(f + 4 * k)}, {acc if s else 0}")]
                if s + 2 < 28:
                    g += rd[s + 2][k]
                main.append(g)
        with self.cap() as c:
            self.kv_addrs(0, "v60", "v61", "v11")
            p(f"s_cmp_ge_u32 {sh}, 14")
            p(f"s_cselect_b32 {sT2}, {sh}, {scb}")
            p(f"s_cselect_b32 {sT3}, 0, {7 * 2048}")
            p(f"s_lshl_b32 {sT2}, {sT2}, 11")
            p(f"v_and_b32 v56, 15, {vLane}")
            p(f"v_bfe_u32 v57, {vLane}, 4, 1")
            p(f"v_mul_u32_u24 v58, {sT3}, v57")
            p("v_lshl_add_u32 v58, v56, 7, v58")
            p(f"v_add_u32 v58, {sT2}, v58")
            p(f"s_lshl_b32 {sT2}, {sg}, 8")
            p("v_lshlrev_b32 v56, 11, v56")
            p("v_lshl_add_u32 v56, v57, 7, v56")
            p(f"v_add_u32 v56, {sT2}, v56")
            p(f"v_cndmask_b32 v58, v58, v56, {sMPAD}")
            p(f"s_mov_b32 {sU[3]}, {WS_RB}")
        setup = groups(c.ins[:13]) + [c.ins[13:16]] + groups(c.ins[16:])
        with self.cap() as c1:
            self.poll_load("v58", SWS, sU[3], 1, 59)
        with self.cap() as c2:
            p.wait_vm("pb")
            p("s_barrier")
            self.ready(WS_RB)
        gr = self.opt.get("gr", 8)
        self.touch = {0: [], 1: [], 2: [], 3: [], 4: []}
        self.touch[self.opt.get("to", 2)] += self.touch_items(G_O, 14)
        if self.opt.get("x0sc1", 0):
            self.touch[self.opt.get("tx", 2)] += self.touch_items(G_ST, 4)
        else:
            self.touch[self.opt.get("tx", 2)] += self.touch_items(G_X, 18)
        wq = [self.wqkv_item(0, L_WQ, "wq") for u in range(7)]
        gv = self.opt.get("gv", 5) * len(self.kvrest)
        gc = self.opt.get("gc", 56)
        early = gc < 56
        gw = self.opt.get("gw", 52)
        streams = [(self.kvrest, 0, gv), ([c2.ins], gr, gr), (wq + self.touch[1], max(gr, gv) + 1, gw),
                   (setup, gr + 2, gc - 14 if early else 50)]
        if early:
            streams.append(([c1.ins], gc - 12, gc - 12))
        slots = spread_groups(main, streams)
        p.add(head)
        for g in slots[:gc]:
            p.add(g)
        self.kvslots = slots[gc:]
        self.pollb = c1.ins
        if early:
            self.decide()
        else:
            self.kv0_rest()
            self.decide()

    def decide(self):
        p = self.p
        self.apoll_end("v58", SWS, sU[3], 1, 1, 59, 15)
        p(f"v_cmp_ne_u32 vcc, {sfast}, v59")
        p("s_cmp_eq_u32 vcc_hi, 0")
        self.stamp_flush()
        p("s_cbranch_scc1 L_slow" if self.force_slow else "s_cbranch_scc0 L_slow")

    def kv0_rest(self):
        p = self.p
        early = self.opt.get("gc", 56) < 56
        if early:
            self.stamp("rb_seen")
            self.bulk = self.w1_items()
            p.add(spread(self.kvslots, [(self.take(self.opt.get("bk", 8)), 0, len(self.kvslots) - 1)]))
        self.stamp("kv_gemm0")
        if not early:
            p.add(self.pollb)
        with self.cap() as c:
            p(f"v_mov_b32 v52, {sEPS6}")
            p(f"v_mov_b32 v53, {sLOG2E}")
            self.phi(16, 16, 48, pk=52)
        ep = groups(c.ins, 4)
        p.add(spread(ep, [(self.take(self.opt.get("be", 4)) if early else [], 0, len(ep) - 1)]))
        self.v_pack()
        self.kv_publish(lambda lo, k: A(24 + lo, k), "v60", "v61", "v11")
        self.stamp("kv_pub0")
        p("v_mov_b32 v13, v63")
        self.rot_offsets()
        p.wait_vm("wq")
        p("s_barrier")

    def take(self, n):
        out, self.bulk = self.bulk[:n], self.bulk[n:]
        return out

    def q0(self):
        p = self.p
        afrag = lambda i, lo: A(4 * i) if lo is None else A(4 * i + lo, 2)

        def rd(s):
            va = f"v{14 + ((s >> 2) & 1)}"
            pre = self.group_base(va, "v13") if s % 4 == 0 else []
            return pre + self.trread(afrag(s % 4, 0), afrag(s % 4, 2), va, (s & 3) * KB, 256)
        head = rd(0) + rd(1) + rd(2)
        main = []
        for s in range(28):
            g = [Ins(f"{MFMA} {V(48, 16)}, {afrag(s % 4, None)}, {V(64 + 4 * s)}, {V(48, 16) if s else 0}")]
            if s + 3 < 28:
                g += rd(s + 3)
            main.append(g)
        with self.cap() as c:
            p(f"v_mov_b32 v32, {sEPS6}")
            p(f"v_mov_b32 v33, {sLOG2E}")
            self.phi(48, 48, 36, pk=32)
            p(f"v_cndmask_b32 v54, v54, 0, {sMPAD}")
            p(f"v_cndmask_b32 v55, v55, 0, {sMPAD}")
            self.o_addrs()
        tail = groups(c.ins, 6)
        gg = self.opt.get("gg", 34)
        if self.opt.get("gc", 56) < 56:
            self.bulk = self.dma_items("v8", SPK, 84, 7, "wo", sU[5]) + self.bulk + self.w2_items()
        else:
            self.bulk = self.dma_items("v8", SPK, 84, 7, "wo", sU[5]) + self.w1_items() + self.w2_items()
        p.add(head)
        p.add(spread(main + tail, [(self.touch[2] + self.take(self.opt.get("bq", 13)), 0, gg - 1),
                                   (self.gather_items(64, "v11"), gg, gg + 8)]))
        for it in self.touch[3] + self.take(self.opt.get("b1", 8)):
            p.add(it)
        self.stamp("q_done0")

    def make_selector(self):
        p = self.p
        p("v_mov_b32 v15, 0")
        p("s_mov_b32 exec_lo, 0x00100001")
        p("s_mov_b32 exec_hi, 0x00100001")
        p(f"v_mov_b32 v15, {sONES}")
        p("s_mov_b64 exec, -1")
        for r in range(4):
            p(f"v_accvgpr_write_b32 a{32 + r}, v15")

    def colsum_qkv(self):
        p = self.p
        p(f"s_min_u32 {sU[0]}, {sw}, 2")
        p(f"s_mul_i32 {sU[0]}, {sU[0]}, {28 * KB}")
        p(f"v_add_u32 v60, {sU[0]}, {vTrA}")
        rd = lambda s: self.trread(V(32 + 4 * (s % 4), 2), V(34 + 4 * (s % 4), 2), "v60", s * KB)
        p.add(rd(0) + rd(1) + rd(2))
        self.make_selector()
        for s in range(28):
            p(f"{MFMA16} {A(36)}, {A(32)}, {V(32 + 4 * (s % 4))}, {A(36) if s else 0}")
            if s + 3 < 28:
                p.add(rd(s + 3))
        p(f"s_lshl_b32 {sU[0]}, {sw}, 9")
        p(f"v_lshlrev_b32 v60, 3, {vLane}")
        p(f"v_add_u32 v60, {L_S + S_STAT}, v60")
        p(f"v_add_u32 v61, {sU[0]}, v60")
        p("v_accvgpr_read_b32 v40, a36")
        self.split_words("v40", "v42", "v43", "v41", False, False)
        p("ds_write_b64 v61, v[42:43]")

    def colsum_qkv_fetch(self):
        p = self.p
        p(f"v_lshlrev_b32 v13, 3, {vLane}")
        p(f"v_add_u32 v13, {L_S + S_STAT}, v13")
        p(f"ds_read_b64 {V(vCSQ + 2, 2)}, v13")
        p(f"ds_read_b64 {V(vCSQ + 4, 2)}, v13 offset:512")
        p(f"ds_read_b64 {V(vCSQ, 2)}, v13 offset:1024")

    def colsum_w1_items(self):
        p = self.p
        items = [[Ins(f"{MFMA16} {A(36)}, {A(32)}, {w1reg(s)}, {A(36) if s else 0}")] for s in range(28)]
        with self.cap() as c:
            p("v_accvgpr_read_b32 v62, a36")
            self.split_words("v62", f"v{vCS1}", f"v{vCS1 + 1}", "v63", False, False)
        items.append(c.ins)
        return items

    def qkv1(self):
        p = self.p
        p(f"v_min_u32 v13, 27, {vLane}")
        p("v_lshlrev_b32 v13, 2, v13")
        p(f"s_lshl_b32 {sT0}, {stb}, 7")
        p(f"s_add_u32 {sT0}, {sT0}, {G_FX}")
        WF = [152, 156, 160, 164, 168, 172]

        def wf(s, k):
            r = WF[3 * (s % 2) + k]
            if k == 2:
                return self.trread(V(r, 2), V(r + 2, 2), vTrB, s * KB)
            return self.trread(V(r, 2), V(r + 2, 2), vTrA, (L_WK, L_WV)[k] + s * KB)
        p.add(wf(0, 0) + wf(0, 1) + wf(0, 2))
        self.poll("v13", SG, sT0, 2)
        self.stamp("x2_seen")
        RING, NR = 96, 14

        def ld(s):
            q = sub()
            if s % 4 == 0:
                q(f"s_add_u32 s4, {sXB}, {s * KB}")
            q(f"buffer_load_dwordx4 {V(RING + 4 * (s % NR))}, {vL16}, {SG}, s4 offen offset:{(s % 4) * KB} sc1")
            return q.ins
        LEAD = self.opt.get("lead", 6)
        for s in range(LEAD):
            p.add(ld(s))
        stl = [[Ins(f"buffer_load_dwordx4 {V(64 + 4 * u)}, {vL16}, {SG}, {sSTB} offen offset:{u * KB} sc1")]
               for u in range(2)]
        with self.cap() as st:
            for i in range(2, 7):
                p(f"v_add_f32 v{64 + (i & 1)}, v{64 + (i & 1)}, v{64 + i}")
            p("v_add_f32 v64, v64, v65")
            self.stats_finish("v64", "v65", "v66", "v67")
            p("v_rsq_f32 v88, v67")
            self.split_words("v66", "v92", "v93", "v65", True, True)
            p("v_mov_b32 v94, 0")
            p("v_mov_b32 v95, 0")
            p("v_cvt_pk_bf16_f32 v80, v88, v88")
            p(f"v_and_b32 v64, {sHI}, v80")
            p("v_sub_f32 v64, v88, v64")
            p("v_cvt_pk_bf16_f32 v81, v64, v64")
            p(f"v_and_b32 v65, {sHI}, v81")
            p("v_sub_f32 v65, v64, v65")
            p("v_and_b32 v80, 0xffff, v80")
            p(f"v_and_or_b32 v80, v81, {sHI}, v80")
            p("v_cvt_pk_bf16_f32 v81, v65, 0")
            p("v_mov_b32 v82, 0")
            p("v_mov_b32 v83, 0")
            p(f"v_mov_b32 v84, {sONES}")
            p(f"v_cndmask_b32 v84, v84, 0, {sMPAD}")
            p("v_mov_b32 v85, v84")
            p("v_mov_b32 v86, 0")
            p("v_mov_b32 v87, 0")
            p(f"{MFMA} {V(64, 16)}, {V(80)}, {V(84)}, 0")
            self.kv_addrs(1, "v89", "v90", "v91")
            for m, dst in ((1, 80), (2, 84)):
                p(f"v_mov_b32 v{dst}, v{vCSQ + 2 * m}")
                p(f"v_mov_b32 v{dst + 1}, v{vCSQ + 2 * m + 1}")
        main = []
        for s in range(28):
            o = 3 * (s % 2)
            a = V(RING + 4 * (s % NR))
            nk = 3 if s < NR else 2
            nk2 = 3 if s + 1 < NR else 2
            for k in range(nk):
                acc = V(16 + 16 * k, 16)
                c = acc if s else 0
                g = [Ins(f"{MFMA} {acc}, {a}, {V(WF[o + k])}, {c}" if k < 2 else f"{MFMA} {acc}, {V(WF[o + k])}, {a}, {c}")]
                if s + 1 < 28 and k < nk2:
                    g += wf(s + 1, k)
                main.append(g)
        seq = [ld(s) for s in range(LEAD, 14)] + stl + [ld(s) for s in range(14, 28)]
        slots = []
        gpos = 0
        for i, it in enumerate(seq):
            s = i + LEAD - 2
            if s >= 14:
                gpos = max(gpos, 3 * (s - 14) + 2)
            slots.append(([it], gpos, gpos))
            gpos += 2
        p.add(spread(main, slots + [(groups(st.ins), 30, len(main) - 2)]))
        p(f"{MFMA} {V(16, 16)}, {V(92)}, {V(80)}, {V(16, 16)}")
        p(f"{MFMA} {V(32, 16)}, {V(92)}, {V(84)}, {V(32, 16)}")
        self.stamp("kv_gemm1")
        vfrag = lambda i, lo: V(152 + 4 * i) if lo is None else V(152 + 4 * i + lo, 2)
        head, main = self.single_pass(V(48, 16), vfrag, 4, vTrB, 0, 512, lambda s: V(RING + 4 * (s % NR)),
                                      NR, 28, True, False)
        p.add(head)
        p(f"v_mov_b32 v172, {sEPS6}")
        p(f"v_mov_b32 v173, {sLOG2E}")
        p(f"v_mov_b32 v80, v{vCSQ}")
        p(f"v_mov_b32 v81, v{vCSQ + 1}")
        self.phi(16, 16, 168, lambda r: (V(64 + r, 2), 1), pk=172)
        for r in range(0, 16, 2):
            p(f"v_pk_mul_f32 {V(32 + r, 2)}, {V(32 + r, 2)}, {V(64 + r, 2)}")
        self.v_pack()
        self.kv_publish(lambda lo, k: V(64 + lo, k), "v89", "v90", "v91")
        self.stamp("kv_pub1")
        main.append([Ins(f"{MFMA} {V(48, 16)}, {V(80)}, {V(92)}, {V(48, 16)}")])
        with self.cap() as c:
            self.phi(48, 48, 168, lambda r: (V(88, 2), 0), pk=172)
            p(f"v_cndmask_b32 v54, v54, 0, {sMPAD}")
            p(f"v_cndmask_b32 v55, v55, 0, {sMPAD}")
            self.o_addrs()
        tail = groups(c.ins, 6)
        if not self.opt.get("probe", 0):
            gg = self.opt.get("gg1", 31)
            p.add(spread(main + tail, [(self.gather_items(96, "v91"), gg, gg + 8)]))
            self.stamp("q_done1")
            return
        with self.cap() as c1:
            p(f"v_min_u32 v174, 15, {vLane}")
            p("v_lshlrev_b32 v174, 11, v174")
            p(f"buffer_load_dword v175, v174, {SWS}, s6 offen offset:508 sc1")
        pg, nt = self.opt.get("pg", 10), self.opt.get("pt", 8)
        p.add(spread(main + tail[:nt], [([c1.ins], pg, pg)]))
        lo, lb, lp, ld = p.label("early"), p.label("gathering"), p.label("probe"), p.label("probed")
        p("v_cmp_eq_u32 vcc, -1, v175")
        p(f"s_cbranch_vccnz {lo}")
        p.add(spread(tail[nt:], [(self.gather_items(96, "v91"), 0, 8)]))
        p(f"{lb}:")
        with self.cap() as c:
            p(f"{lo}:")
            p("s_nop 7")
            for it in tail[nt:]:
                p.add(it)
            p(f"s_mov_b32 {sCnt}, {slim}")
            p(f"{lp}:")
            p(f"buffer_load_dword v175, v174, {SWS}, s6 offen offset:508 sc1")
            p("s_waitcnt vmcnt(0)")
            p("v_cmp_eq_u32 vcc, -1, v175")
            p(f"s_cbranch_vccz {ld}")
            p(f"s_sub_u32 {sCnt}, {sCnt}, 1")
            p(f"s_cmp_lg_u32 {sCnt}, 0")
            p(f"s_cbranch_scc1 {lp}")
            p(f"s_mov_b32 {slim}, 1")
            p(f"{ld}:")
            for it in self.gather_items(96, "v91"):
                p.add(it)
            p(f"s_branch {lb}")
        self.tail.extend(c.ins)
        self.stamp("q_done1")

    def wo_phase(self, layer, pre=None, streams=()):
        p = self.p
        RES = 104
        p(f"s_lshl_b32 s5, {sh}, 11")
        p(f"s_add_u32 s5, s5, {sXB}")
        if layer == 1:
            p(f"buffer_load_dwordx4 {V(RES)}, {vL16}, {SG}, s5 offen sc1")
            p(f"buffer_load_dwordx4 {V(RES + 4)}, {vL16}, {SG}, s5 offen offset:1024 sc1")
        else:
            for r in range(8):
                p(f"v_accvgpr_read_b32 v{RES + r}, a{56 + r}")
        p(f"s_lshr_b32 {sT1}, {sh}, 2")
        p(f"s_lshl_b32 {sT1}, {sT1}, 10")
        p(f"s_and_b32 {sT2}, {sh}, 3")
        p(f"s_lshl_b32 {sT2}, {sT2}, 2")
        p(f"s_add_u32 {sT1}, {sT1}, {sT2}")
        p(f"s_add_u32 s6, {sT1}, {sSTB}")
        p(f"s_lshl_b32 {sT0}, {stb}, 7")
        p(f"s_lshl_b32 {sT1}, {sh}, 3")
        p(f"s_add_u32 {sT1}, {sT0}, {sT1}")
        p(f"s_add_u32 s7, {sT1}, {G_FX}")
        p(f"s_add_u32 {sT0}, {sT0}, {G_FO}")
        p(f"v_and_b32 v13, 15, {vLane}")
        p("v_lshlrev_b32 v13, 2, v13")
        rd = [self.trread(V(48 + (s % 3) * 4, 2), V(50 + (s % 3) * 4, 2), vTrB, (L_WO - L_WQ) + s * KB)
              for s in range(28)]
        p.add(rd[0] + rd[1])
        if pre:
            pre()
        self.poll("v13", SG, sT0, 1 + layer)
        self.stamp(f"o_seen{layer}")
        RING = 64
        LEAD = self.opt.get("leadwo", 8)

        def ld(s):
            q = sub()
            if s % 4 == 0:
                q(f"s_add_u32 s4, {sHB}, {s * KB}")
            q(f"buffer_load_dwordx4 {V(RING + 4 * s)}, {vL16}, {SG}, s4 offen offset:{(s % 4) * KB} sc1")
            return q.ins
        for s in range(LEAD):
            p.add(ld(s))
            p(f"v_lshlrev_b32 v{16 + 2 * s}, 16, v{RES + s}" if s < 8 else "; -")
            p(f"v_and_b32 v{17 + 2 * s}, {sHI}, v{RES + s}" if s < 8 else "; -")
        assert LEAD >= 8
        main = []
        for s in range(28):
            g = [Ins(f"{MFMA} {V(16, 16)}, {V(48 + (s % 3) * 4)}, {V(RING + 4 * s)}, {V(16, 16)}")]
            if s + LEAD < 28:
                g += ld(s + LEAD)
            if s + 2 < 28:
                g += rd[s + 2]
            main.append(g)
        streams = list(streams)
        if self.opt.get("wsu", 1):
            with self.cap() as c:
                self.ffn_setup(layer)
            streams.append((groups(c.ins), 13, 26))
        p.add(spread(main, streams))
        self.stamp(f"wo_gemm{layer}")
        for r in range(8):
            p(f"v_cvt_pk_bf16_f32 v{32 + r}, v{16 + 2 * r}, v{17 + 2 * r}")
        self.publish([f"buffer_store_dwordx4 {V(32)}, {vL16}, {SG}, s5 offen",
                      f"buffer_store_dwordx4 {V(36)}, {vL16}, {SG}, s5 offen offset:1024"],
                     always_sc1=(layer == 0 and self.opt.get("x0sc1", 0)))
        p("v_pk_mul_f32 v[42:43], v[16:17], v[16:17]")
        for r in range(2, 16, 2):
            p(f"v_pk_fma_f32 v[42:43], {V(16 + r, 2)}, {V(16 + r, 2)}, v[42:43]")
            p(f"v_pk_add_f32 v[16:17], v[16:17], {V(16 + r, 2)}")
        p("v_add_f32 v40, v16, v17")
        p("v_add_f32 v42, v42, v43")
        self.both_halves("v40", "v42", None)
        self.publish([f"buffer_store_dword v40, {vL16}, {SG}, s6 offen"])
        self.flag("s7", 1 + 2 * layer, 2)
        self.stamp(f"x1_pub{layer}")

    def rot_offsets(self):
        p = self.p
        for i in range(7):
            if self.opt.get("rot", 0):
                p(f"s_add_u32 s{8 + i}, {scb}, {i}")
                p(f"s_cmp_ge_u32 s{8 + i}, 7")
                p(f"s_cselect_b32 s15, 7, 0")
                p(f"s_sub_u32 s{8 + i}, s{8 + i}, s15")
                p(f"s_lshl_b32 s{8 + i}, s{8 + i}, 14")
            else:
                p(f"s_mov_b32 s{8 + i}, {i * 16 * KB}")

    def w2_items(self):
        p = self.p
        items = []
        order = list(range(8, 28)) + list(range(8))
        for i, j in enumerate(order):
            for ch in range(2):
                with self.cap() as c:
                    if i == 0 and ch == 0:
                        p(f"s_mul_i32 s25, {scb}, {224 * KB}")
                        p(f"s_lshl_b32 s26, {sw}, 12")
                        p(f"s_add_u32 s25, s25, s26")
                        p(f"s_add_u32 s25, s25, {WS_P2}")
                        p(f"s_and_b32 s26, {srq}, 1")
                        p(f"s_lshl_b32 s26, s26, 14")
                        p(f"s_sub_u32 s27, s25, s26")
                        p(f"s_add_u32 s27, s27, {16 * KB}")
                        p(f"s_add_u32 s25, s25, s26")
                    if j % 2 == 0 and ch == 0:
                        i2 = j >> 1
                        p(f"s_lshl_b32 s26, s{8 + i2 % 7}, 1")
                        p(f"s_add_u32 s26, s26, {'s25' if i2 < 7 else 's27'}")
                    p(f"buffer_load_dwordx4 {w2reg(j, ch)}, {vL16}, {SPK}, s26 offen offset:{(j & 1) * 2048 + ch * 1024} sc1",
                      "w2")
                items.append(c.ins)
        return items

    def ffn_setup(self, layer):
        p = self.p
        p(f"v_and_b32 v13, 15, {vLane}")
        p("v_min_u32 v13, 13, v13")
        p("v_lshlrev_b32 v13, 3, v13")
        p(f"v_lshrrev_b32 v14, 4, {vLane}")
        p("v_lshl_add_u32 v107, v14, 7, v13")
        p(f"s_mul_i32 {sT0}, {srh}, {112 * KB}")
        big = layer == 1 and self.opt.get("big", 1)
        LB = 0 if big else L_S
        p(f"s_add_u32 {sT0}, {sT0}, {G_X - LB}")
        p(f"s_and_b32 s0, {sh}, 1")
        p(f"s_mul_i32 s16, s0, {28 * KB}")
        p(f"s_add_u32 {sT0}, {sT0}, s16")
        p(f"s_lshl_b32 s16, s16, 1")
        p(f"v_add_u32 v110, {sT0}, {vL16}")
        p(f"s_lshl_b32 s15, {sw}, 10")
        p(f"s_add_u32 s15, s15, {LB}")
        p(f"s_lshl_b32 {sT0}, {sh}, 13")
        p(f"s_lshl_b32 {sT1}, {sw}, 11")
        p(f"s_add_u32 s3, {sT0}, {sT1}")
        p(f"s_mul_i32 {sT0}, {srh}, {4 * 112 * KB}")
        p(f"s_add_u32 s3, s3, {sT0}")
        p(f"s_lshl_b32 {sT0}, {srh}, 10")
        p(f"s_lshl_b32 {sT1}, {sw}, 6")
        p(f"s_add_u32 {sT0}, {sT0}, {sT1}")
        p(f"s_lshl_b32 {sT1}, {sh}, 2")
        p(f"s_add_u32 {sT0}, {sT0}, {sT1}")
        p(f"s_add_u32 s2, {sT0}, {G_FH}")
        p(f"s_mul_i32 {sT0}, s0, {2 * 112 * KB}")
        p(f"s_sub_u32 s17, s3, {sT0}")
        p(f"s_add_u32 s3, s3, {sT0}")
        p(f"s_lshl_b32 {sT0}, s0, 9")
        p(f"s_sub_u32 s1, s2, {sT0}")
        p(f"s_add_u32 s2, s2, {sT0}")
        p(f"v_mov_b32 v84, v{vCS1}")
        p(f"v_mov_b32 v85, v{vCS1 + 1}")
        for r in (86, 87, 90, 91):
            p(f"v_mov_b32 v{r}, 0")
        p(f"v_and_b32 v108, 31, {vLane}")
        p("v_lshlrev_b32 v108, 4, v108")
        p(f"v_add_u32 v108, {L_S + S_STAT}, v108")
        p(f"s_and_b32 {sT0}, {sxs}, 3")
        p(f"s_lshl_b32 {sT0}, {sT0}, 9")
        p(f"s_lshl_b32 {sT1}, s0, 9")
        p(f"s_xor_b32 {sT0}, {sT0}, {sT1}")
        p(f"v_add_u32 v109, {sT0}, v108")
        self.ffn2_setup(layer)

    def ffn(self, layer, pre=None, extra=None):
        p = self.p
        big = layer == 1 and self.opt.get("big", 1)
        if not self.opt.get("wsu", 1):
            self.ffn_setup(layer)
        if big:
            p(f"v_add_u32 {vTrB}, {56 * KB}, {vL16}")
        p.wait_ds()
        p("s_barrier")
        if pre:
            pre()
        p(f"s_lshl_b32 {sT0}, {srh}, 9")
        p(f"s_add_u32 {sT0}, {sT0}, {G_FX}")
        self.poll("v107", SG, sT0, 1 + 2 * layer, 2)
        self.stamp(f"x1_seen{layer}")

        Q, P = (28, 2) if big else (10, 2)

        def quad(k):
            q = sub()
            if k % Q == 0:
                q("s_mov_b32 m0, s15")
                if k:
                    q(f"v_add_u32 v110, {Q * 4 * KB}, v110")
            else:
                q(f"s_add_u32 m0, m0, {4 * KB}")
            if k in (7, 21):
                q("v_subrev_u32 v110, s16, v110")
            if k == 14:
                q("v_add_u32 v110, s16, v110")
            q(f"buffer_load_dwordx4 v110, {SG}, m0 offen sc1 lds", f"c{k // P}")
            return q.ins
        for k in range(4):
            p.add(quad(k))
        stl = [[Ins(f"buffer_load_dwordx4 {V(112 + 4 * u)}, {vL16}, {SG}, {sSTB} offen offset:{u * KB} sc1")]
               for u in range(4)]
        with self.cap() as st:
            for i in range(2, 14):
                p(f"v_add_f32 v{112 + (i & 1)}, v{112 + (i & 1)}, v{112 + i}")
            p("v_add_f32 v112, v112, v113")
            self.stats_finish("v112", "v113", "v114", "v115")
            self.split_words("v114", "v116", "v117", "v113", True, True)
            p("v_rsq_f32 v118, v115")
            p("v_sqrt_f32 v119, v115")
            p(f"v_mul_f32_e64 v118, -v118, {sLOG2E}")
            p("ds_write_b128 v109, v[116:119]", "stw")
        XF, NX, D = 48, 5, 4
        def rdx(n):
            base, off = (vS16, n % (4 * Q)) if not big else ((vL16, n) if n < 56 else (vTrB, n - 56))
            return Ins(f"ds_read_b128 {V(XF + 4 * (n % NX))}, {base} offset:{off * KB}", f"x{n}")
        BIGB = {1: 1, 2: 2, 3: 4, 5: 7, 8: 10, 11: 13}

        def boundary(j):
            q = sub()
            if big and j:
                if j not in BIGB:
                    return []
                q.wait_vm(f"c{BIGB[j]}")
            else:
                q.wait_vm(f"c{j}")
            if j == 3:
                q.wait_ds("stw")
            q("s_barrier")
            return q.ins
        p.add(quad(4))
        p.add(quad(5))
        p.add(boundary(0))
        p.add([rdx(n) for n in range(D)])
        main = []
        pos = {}
        for n in range(112):
            o, s = divmod(n, 28)
            acc = V(16 + 16 * (o & 1), 16)
            g = []
            if n % 2 == 0:
                g.append(Pseudo("wait_ds", f"x{n + 1}"))
            g.append(Ins(f"{MFMA} {acc}, {w1reg(s)}, {V(XF + 4 * (n % NX))}, {acc if s else 0}"))
            m = n + D
            if m < 112:
                if m % 8 == 0:
                    g += boundary(m // 8)
                qd = quad(m // 4 + 6) if (m % 4 == 1 and m >= 8 and m // 4 + 6 < 28) else []
                if big:
                    kq = 8 + (n - 9) // 2
                    qd = quad(kq) if (n >= 9 and n % 2 == 1 and kq < 28) else []
                g += qd[:-1] + [rdx(m)] + qd[-1:]
                if m == 24:
                    g += [Ins(f"ds_read_b128 {V(68 + 4 * k)}, v108 offset:{k * 512}") for k in range(4)]
            if s == 24:
                g += [Ins(f"v_mov_b32 v88, v{68 + 4 * o}"), Ins(f"v_mov_b32 v89, v{69 + 4 * o}")]
            pos[n] = len(main)
            main.append(g)
            if s == 27:
                main.append([Ins(f"{MFMA} {acc}, {V(84)}, {V(88)}, {acc}")])

        hsc1 = self.opt.get("h0sc1", 1) if layer == 0 else self.opt.get("h1sc1", 1)

        def epilogue(o):
            tb = ((o & 1) << 1) | (o >> 1)
            acc = 16 + 16 * (o & 1)
            c1, sd = f"v{70 + 4 * o}", f"v{71 + 4 * o}"
            pk = o == 3 and hsc1 and self.opt.get("pk3", 1)
            with self.cap() as c:
                for r0 in range(0, 16, 4) if pk else ():
                    cs = V(70 + 4 * o, 2)
                    for k in (0, 2):
                        p(f"v_pk_mul_f32 {V(92 + k, 2)}, {V(acc + r0 + k, 2)}, {cs} op_sel_hi:[1,0]")
                    for k in range(4):
                        p(f"v_exp_f32 v{92 + k}, v{92 + k}")
                    for k in (0, 2):
                        p(f"v_pk_fma_f32 {V(92 + k, 2)}, {V(92 + k, 2)}, {cs}, {cs} op_sel:[0,1,1] op_sel_hi:[1,1,1]")
                    for k in range(4):
                        p(f"v_rcp_f32 v{92 + k}, v{92 + k}")
                    for k in (0, 2):
                        p(f"v_pk_mul_f32 {V(acc + r0 + k, 2)}, {V(acc + r0 + k, 2)}, {V(92 + k, 2)}")
                    for k in (0, 2):
                        p(f"v_cvt_pk_bf16_f32 v{96 + ((r0 + k) >> 1)}, v{acc + r0 + k}, v{acc + r0 + k + 1}")
                for r0 in range(0, 16, 2) if not pk else ():
                    rr = (r0, r0 + 1)
                    t = {r: f"v{92 + (r & 3)}" for r in rr}
                    a = {r: f"v{acc + r}" for r in rr}
                    for r in rr:
                        p(f"v_mul_f32 {t[r]}, {a[r]}, {c1}")
                    for r in rr:
                        p(f"v_exp_f32 {t[r]}, {t[r]}")
                    for r in rr:
                        p(f"v_fma_f32 {t[r]}, {t[r]}, {sd}, {sd}")
                    for r in rr:
                        p(f"v_rcp_f32 {t[r]}, {t[r]}")
                    for r in rr:
                        p(f"v_mul_f32 {a[r]}, {a[r]}, {t[r]}")
                    p(f"v_cvt_pk_bf16_f32 v{96 + (r0 >> 1)}, {a[r0]}, {a[r0 + 1]}")
            items = groups(c.ins)
            with self.cap() as c:
                p(f"s_add_u32 {sT0}, {'s17' if o & 1 else 's3'}, {tb * 112 * KB}")
                nt = {0: "", 1: " nt", 2: " sc0", 3: " sc0 nt"}[self.opt.get("hnt", 0)] if self.fast else ""
                self.publish([f"buffer_store_dwordx4 {V(96)}, {vL16}, {SG}, {sT0} offen{nt}",
                              f"buffer_store_dwordx4 {V(100)}, {vL16}, {SG}, {sT0} offen offset:1024{nt}"], f"h{o}",
                             always_sc1=hsc1)
            items.append(c.ins)
            with self.cap() as c:
                p(f"s_add_u32 {sT1}, {'s1' if o & 1 else 's2'}, {tb * 256}")
                self.flag(sT1, 1 + layer, wait=f"h{o}", st=sT2)
            return items, c.ins
        streams = [([quad(6), quad(7)], 0, 3), (stl[:2], 1, 4), (stl[2:], 6, 8)]
        eps = [epilogue(o) for o in range(4)]
        E = self.opt.get("epend", 27)
        F = self.opt.get("fsc1", 14) if hsc1 else self.opt.get("fpl", 6)
        Es = [E, self.opt.get("e1", E), E]
        Fs = [F, F - (E - Es[1])]
        flex = [(eps[o][0], pos[28 * (o + 1)] + 2, pos[28 * (o + 1) + Es[o]]) for o in range(3)]
        flex.append((groups(st.ins), self.opt.get("gs", 11), 19))
        if not big and hsc1 and self.opt.get("stq", 0):
            for o in range(2):
                n1 = 28 * (o + 1) + E
                while n1 % 8 != 1:
                    n1 -= 1
                flex[o] = (eps[o][0][:-1], pos[28 * (o + 1)] + 2, pos[n1] - 1)
                streams.append(([eps[o][0][-1]], pos[n1], pos[n1]))
        if not self.opt.get("flex", 1):
            streams += flex
            flex = []
        for o in range(2):
            g = pos[28 * (o + 2) + Fs[o]]
            streams.append(([eps[o][1]], g, g))
        self.hl = self.h_loads()
        pa, pb = self.h_poll(0, layer), self.h_poll(1, layer)
        LAG = self.opt.get("lag", 7)
        if self.opt.get("ord", 0):
            for o, pl in ((1, pa), (2, pb)):
                items, a, b = flex[o]
                flex[o] = (items[:-1], a, b - 1)
                streams.append(([pl[0], items[-1]], b, b))
            GA = pos[56 + Es[1]]
            self.pb = [[], pb[1]]
        else:
            GA = pos[56 + F + self.opt.get("fda", 12)]
            streams.insert(0, ([pa[0]], GA, GA))
            self.pb = pb
        streams.append(([pa[1]], GA + LAG, GA + LAG))
        first = max(GA + LAG + 1, pos[84 + self.opt.get("h0", 0)])
        n0 = min(14, (pos[111] - first) // 2 + 1)
        streams.append((self.hl[:n0], first, pos[111] - 1))
        self.n0 = n0
        if extra:
            streams += extra(pos)
        if self.opt.get("fine3") and layer == 1:
            woven = spread2(main, streams, flex)
            k = 0
            for x in woven:
                p.add([x])
                if x.kind == "mfma":
                    k += 1
                    if k >= 58 and (k - 58) % 7 == 0:
                        self.stamp(f"n{k}")
        elif self.opt.get("fine"):
            self.stamp(f"f1_first{layer}")
            woven = spread2(main, streams, flex)
            k = 0
            for x in woven:
                p.add([x])
                if x.kind == "mfma":
                    k += 1
                    if k % 29 == 0 and k < 116:
                        self.stamp(f"f1_o{k // 29 - 1}_{layer}")
        else:
            p.add(spread2(main, streams, flex))
        self.stamp(f"ffn1_mfma{layer}")
        self.ffn2(layer, eps[3][0], eps[2][1], eps[3][1], F)

    def ffn2_setup(self, layer):
        p = self.p
        p(f"s_mul_i32 {sU[3]}, {srq}, {2 * 112 * KB}")
        p(f"s_lshl_b32 {sT3}, {sw}, 11")
        p(f"s_add_u32 {sU[3]}, {sU[3]}, {sT3}")
        p(f"s_lshl_b32 {sU[4]}, {srq}, 9")
        p(f"s_lshl_b32 {sT3}, {sw}, 6")
        p(f"s_add_u32 {sU[4]}, {sU[4]}, {sT3}")
        p(f"s_add_u32 {sU[4]}, {sU[4]}, {G_FH}")
        p(f"v_min_u32 v104, 6, {vLane}")
        p("v_lshlrev_b32 v104, 3, v104")
        p(f"s_and_b32 {sT3}, {srq}, 1")
        p(f"s_lshl_b32 {sT4}, {sT3}, 2")
        p(f"s_add_u32 {sU[4]}, {sU[4]}, {sT4}")
        p(f"s_lshl_b32 {sT4}, {sT3}, 13")
        p(f"s_sub_u32 {sU[8]}, {sU[3]}, {sT4}")
        p(f"s_add_u32 {sU[8]}, {sU[8]}, {8 * KB}")
        p(f"s_add_u32 {sU[3]}, {sU[3]}, {sT4}")
        p(f"s_lshr_b32 {sT3}, {srq}, 1")
        p(f"s_lshl_b32 {sT3}, {sT3}, 2")
        p(f"s_and_b32 {sT4}, {srq}, 1")
        p(f"s_add_u32 {sT3}, {sT3}, {sT4}")
        p(f"s_mul_i32 {sU[5]}, {sT3}, {28 * KB}")
        p(f"s_lshl_b32 {sT3}, {scb}, 12")
        p(f"s_lshl_b32 {sT4}, {sw}, 7")
        p(f"s_add_u32 {sT3}, {sT3}, {sT4}")
        p(f"s_add_u32 {sU[5]}, {sU[5]}, {sT3}")
        p(f"s_add_u32 {sU[5]}, {sU[5]}, {G_X}")
        if layer == 0:
            p(f"s_mul_i32 {sU[6]}, {srq}, {14 * KB}")
            p(f"s_lshr_b32 {sT3}, {scb}, 2")
            p(f"s_lshl_b32 {sT3}, {sT3}, 10")
            p(f"s_add_u32 {sU[6]}, {sU[6]}, {sT3}")
            p(f"s_and_b32 {sT3}, {scb}, 3")
            p(f"s_lshl_b32 {sT3}, {sT3}, 2")
            p(f"s_add_u32 {sT3}, {sT3}, {sT4}")
            p(f"s_add_u32 {sU[6]}, {sU[6]}, {sT3}")
            p(f"s_add_u32 {sU[6]}, {sU[6]}, {G_ST}")
            p(f"s_lshl_b32 {sT3}, {srq}, 8")
            p(f"s_lshl_b32 {sT4}, {scb}, 4")
            p(f"s_add_u32 {sT3}, {sT3}, {sT4}")
            p(f"s_lshl_b32 {sT4}, {sw}, 2")
            p(f"s_add_u32 {sT3}, {sT3}, {sT4}")
            p(f"s_add_u32 {sU[7]}, {sT3}, {G_FX}")
        else:
            p(f"s_lshl_b32 {sT3}, {sg}, 2")
            p(f"s_add_u32 {sT3}, {sT3}, {srq}")
            p(f"s_lshl_b32 {sT3}, {sT3}, 3")
            p(f"s_add_u32 {sT3}, {sT3}, {sw}")
            p(f"s_mul_i32 {sT3}, {sT3}, {8 * 896}")
            p(f"s_lshl_b32 {sT4}, {scb}, 7")
            p(f"s_add_u32 {sU[7]}, {sT3}, {sT4}")
        p(f"s_lshl_b32 {sT3}, {sw}, 13")
        p(f"v_add_u32 v105, {sT3}, {vS16}")
        if layer == 0:
            p(f"v_lshrrev_b32 v14, 5, {vLane}")
            p("v_lshlrev_b32 v14, 7, v14")
            p("v_xor_b32 v105, v105, v14")
            p("v_mov_b32 v106, v105")
        else:
            p("v_xor_b32 v106, 0x80, v105")
        p(f"v_and_b32 v13, 7, {vLane}")
        p("v_lshlrev_b32 v13, 4, v13")
        p(f"s_lshl_b32 {sT3}, {sw}, 7")
        p(f"v_add_u32 v13, {sT3}, v13")
        p(f"v_bfe_u32 v14, {vLane}, 3, 1")
        p("v_lshlrev_b32 v15, 7, v14")
        p("v_xor_b32 v13, v13, v15")
        p(f"v_lshl_add_u32 v13, v14, {9 if layer == 0 else 10}, v13")
        p(f"v_lshrrev_b32 v14, 4, {vLane}")
        p("v_lshl_add_u32 v13, v14, 11, v13")
        p(f"v_add_u32 v111, {L_S}, v13")

    def hreg(self, n):
        if not self.opt.get("xr", 0):
            return 112 + 4 * (n % 16), n - 16
        if n < 16:
            return 112 + 4 * n, -1
        if n < 20:
            return 64 + 4 * (n - 16), -1
        return 112 + 4 * ((n - 4) % 16), (n - 20 if n < 36 else n - 16)

    def h_loads(self):
        out = []
        for n in range(56):
            th, j = divmod(n, 28)
            q = sub()
            i = j >> 1
            if j % 14 == 0:
                q(f"s_add_u32 {sU[9]}, {sU[3] if i < 7 else sU[8]}, {th * 112 * KB}")
                q(f"v_add_u32 v15, {sU[9]}, {vL16}")
            q(f"buffer_load_dwordx4 {V(self.hreg(n)[0])}, v15, {SG}, s{8 + i % 7} offen offset:{(j % 2) * KB} sc1")
            out.append(q.ins)
        return out

    def h_poll(self, grp, layer):
        p = self.p
        st, tmp = (sU[0], sU[1])[grp & 1], (109, 13)[grp & 1]
        with self.cap() as c1:
            if grp & 1:
                p(f"s_xor_b32 {st}, {sU[4]}, 4")
                if grp >> 1:
                    p(f"s_add_u32 {st}, {st}, 256")
            else:
                p(f"s_add_u32 {st}, {sU[4]}, {(grp >> 1) * 256}")
            self.poll_load("v104", SG, st, 1, tmp)
        with self.cap() as c2:
            self.apoll_end("v104", SG, st, 1 + layer, 1, tmp)
        return c1.ins, c2.ins

    def ffn2(self, layer, ep3, flag2, flag3, F):
        p = self.p
        ACC = ((16, 48), (32, 64))
        lds = self.hl
        k0 = min(len(ep3), self.opt.get("k0", 89 if F > 10 else 20))
        LEAD = self.opt.get("leadh", 14)
        early_b = self.opt.get("ord", 0) and k0 > 60
        npre = self.opt.get("npre", 20 if self.opt.get("xr", 0) else 16) if early_b else 14
        pre = lds[self.n0:14]
        if self.pb[0]:
            pre = [self.pb[0]] + pre
        if early_b:
            p.add(spread(ep3[:k0], [(pre, 0, 40), ([self.pb[1]] + lds[14:npre], 44, k0 - 4)]))
            self.pb = []
        elif k0:
            p.add(spread(ep3[:k0], [(pre, 0, max(0, k0 - 4))]))
        else:
            for it in pre:
                p.add(it)
        ep3 = ep3[k0:]
        issued = npre
        RES = (88, 84)
        TL = self.opt.get("tl", 10)

        with self.cap() as su:
            p(f"v_and_b32 v107, 7, {vLane}")
            p(f"v_bfe_u32 v110, {vLane}, 3, 1")
            if layer == 0:
                p(f"v_lshrrev_b32 v108, 4, {vLane}")
                p("v_lshlrev_b32 v108, 9, v108")
                p("v_lshl_add_u32 v108, v107, 4, v108")
                p("v_lshlrev_b32 v107, 4, v107")
                p("v_lshl_add_u32 v107, v110, 9, v107")
            else:
                p("v_mul_u32_u24 v108, 896, v107")
                p("v_lshlrev_b32 v107, 4, v107")
                p("v_lshl_add_u32 v107, v110, 3, v107")
                p(f"v_lshrrev_b32 v110, 3, {vLane}")
                p("v_lshl_add_u32 v108, v110, 4, v108")
            p(f"v_lshrrev_b32 v110, 4, {vLane}")
            p("v_lshl_add_u32 v107, v110, 10, v107")

        def resid(th):
            q = sub()
            q(f"s_add_u32 {sT3}, {sU[5]}, {th * 2 * 28 * KB}")
            if layer == 0:
                q(f"buffer_load_dwordx4 {V(RES[th])}, v107, {SG}, {sT3} offen sc1")
            else:
                q(f"buffer_load_dwordx2 {V(RES[th], 2)}, v107, {SG}, {sT3} offen sc1")
                q(f"buffer_load_dwordx2 {V(RES[th] + 2, 2)}, v107, {SG}, {sT3} offen offset:512 sc1")
            return q.ins

        def mm():
            main = []
            for n in range(56):
                th, j = divmod(n, 28)
                b = V(self.hreg(n)[0])
                for ch in range(2):
                    acc = V(ACC[th][ch], 16)
                    main.append([Ins(f"{MFMA} {acc}, {w2reg(j, ch)}, {b}, {acc if j else 0}")])
            tail = main[112 - 2 * TL:]
            return main[:112 - 2 * TL] + tail[0::2] + tail[1::2]

        def reduce(th, woven):
            area = th * 16 * KB
            a0, a1 = ACC[th]
            quad = [a0, a0 + 4, a0 + 8, a0 + 12, a1, a1 + 4, a1 + 8, a1 + 12]
            T = 92
            items = []
            with self.cap() as c:
                for k in range(8):
                    p(f"ds_write_b128 v{105 + (k & 1)}, {V(quad[k])} offset:{area + k * KB}")
                for r in range(4):
                    p(f"v_lshlrev_b32 v{T + 2 * r}, 16, v{RES[th] + r}")
                    p(f"v_and_b32 v{T + 2 * r + 1}, {sHI}, v{RES[th] + r}")
            items += groups(c.ins)
            with self.cap() as c:
                p.wait_ds()
                p("s_barrier")
                for u in range(4):
                    for k in range(2):
                        p(f"ds_read_b128 {V(quad[2 * u + k])}, v111 offset:{area + u * 8 * KB + k * (KB if layer == 0 else 512)}")
            items += groups(c.ins)
            with self.cap() as c:
                for u in range(4):
                    for k in range(2):
                        if woven:
                            for r in range(4):
                                p(f"v_add_f32 v{T + 4 * k + r}, v{T + 4 * k + r}, v{quad[2 * u + k] + r}")
                        else:
                            for r in (0, 2):
                                p(f"v_pk_add_f32 {V(T + 4 * k + r, 2)}, {V(T + 4 * k + r, 2)}, {V(quad[2 * u + k] + r, 2)}")
                for r in range(4):
                    p(f"v_cvt_pk_bf16_f32 v{80 + r}, v{T + 2 * r}, v{T + 2 * r + 1}")
            items += groups(c.ins)
            if layer == 1:
                with self.cap() as c:
                    p(f"s_add_u32 {sT3}, {sU[7]}, {th * 32 * 896}")
                    p(f"buffer_store_dwordx4 {V(80)}, v108, {SOUT}, {sT3} offen {'sc1' if self.opt.get('outsc1', 1) else ''}")
                items.append(c.ins)
                return items, []
            with self.cap() as c:
                p(f"s_add_u32 {sT4}, {sU[5]}, {th * 2 * 28 * KB}")
                self.publish([f"buffer_store_dwordx4 {V(80)}, v107, {SG}, {sT4} offen"], f"x{th}")
            items.append(c.ins)
            with self.cap() as c:
                p(f"v_add_f32 v100, v{T}, v{T + 1}")
                p(f"v_mul_f32 v101, v{T}, v{T}")
                p(f"v_fmac_f32 v101, v{T + 1}, v{T + 1}")
                for r in range(2, 8):
                    p(f"v_add_f32 v100, v100, v{T + r}")
                    p(f"v_fmac_f32 v101, v{T + r}, v{T + r}")
                p("v_add_f32_dpp v100, v100, v100 row_ror:8 row_mask:0xf bank_mask:0xf")
                p("v_add_f32_dpp v101, v101, v101 row_ror:8 row_mask:0xf bank_mask:0xf")
                p("v_permlane16_swap_b32 v100, v101")
                p("v_add_f32 v100, v100, v101")
                p("v_mov_b32 v101, v100")
                p("v_permlane32_swap_b32 v100, v101")
                p("v_add_f32 v100, v100, v101")
            items += groups(c.ins)
            with self.cap() as c:
                p(f"s_add_u32 {sT3}, {sU[6]}, {th * 7 * KB}")
                self.publish(["s_mov_b64 exec, 0x00ff00ff", f"buffer_store_dword v100, v108, {SG}, {sT3} offen",
                              "s_mov_b64 exec, -1"], f"x{th}")
            items.append(c.ins)
            with self.cap() as c:
                p(f"s_add_u32 {sT3}, {sU[7]}, {th * 128}")
                self.flag(sT3, 2, wait=f"x{th}", tmp=102, st=sT4)
            return items, c.ins
        E3 = max(4, len(ep3) * self.opt.get("e3", 24) // 89)
        F2 = self.opt.get("f2", 4 if F > 10 else max(0, F - 6))
        F3 = self.opt.get("f3", E3 + (20 if F > 10 else 16))
        LAG = self.opt.get("lag2", 14)
        pc, pd = self.h_poll(2, layer), self.h_poll(3, layer)
        seen = {0: -1, 1: self.opt.get("gb2", 6) if self.pb else -1}
        GC = F2 + self.opt.get("fd2", 18)
        seen[2] = GC + LAG
        GD = max(F3 + self.opt.get("fd2", 18), seen[2] + 1)
        seen[3] = GD + LAG
        streams = []
        if self.pb:
            streams.append(([self.pb[1]], seen[1], seen[1]))
        streams += [([pc[0]], GC, GC), ([pc[1]], seen[2], seen[2]), ([pd[0]], GD, GD), ([pd[1]], seen[3], seen[3])]
        g = 0.0
        for n in range(issued, 56):
            free = 2 * self.hreg(n)[1] + 1
            g = max(g, free, 2 * (n - LEAD) + 1, seen[n // 14])
            use = 2 * n if n < 56 - TL else 112 - 2 * TL + (n - (56 - TL))
            g = min(g, use - 2 * self.opt.get("minlead", 4) + 1)
            assert g >= seen[n // 14] and g >= free, (n, g)
            streams.append(([lds[n]], int(g), int(g)))
            g += self.opt.get("pace", 21) / 10
        bar = [Ins("s_barrier")]
        r0, f0 = reduce(0, True)
        r1, f1 = reduce(1, False)
        if layer == 1:
            go = max(self.opt.get("go", 106), int(g))
            streams.append(([r0[-1]], go, go))
            r0 = r0[:-1]
        if TL:
            streams.append((r1[8:16], 112 - TL - 4, 112 - TL - 1))
            streams.append((r1[:4], 112 - TL + 2, 111))
            r1 = r1[4:8] + r1[16:]
        streams += [([bar], 0, 0), (ep3, 1, E3), ([flag2], F2, F2), ([flag3], F3, F3),
                    (groups(su.ins) + [resid(0)], E3 + 1, E3 + 16), ([resid(1)], 56, 56), ([bar], 96, 96)]
        if self.opt.get("rflex", 1):
            streams += [(r0[:8], 58, 71), (r0[8:16], 59, 71), (r0[16:25], 73, 80), (r0[25:], 81, 97)]
        else:
            streams.append((r0, 57, 92))
        if f0:
            streams.append(([f0], 108, 108))
        woven = spread(mm(), streams)
        k = 0
        for x in woven:
            p.add([x])
            if x.kind == "mfma":
                k += 1
                if k == 56:
                    self.stamp(f"th0_done{layer}")
                elif self.opt.get("fine2") and layer == 1 and (k == 1 or k % 14 == 0) and k < 112:
                    self.stamp(f"m{k}")
        self.stamp(f"th1_done{layer}")
        for it in r1:
            p.add(it)
        p.add(f1)
        self.stamp(f"ffn2_done{layer}")

    def spare0(self):
        p = self.p
        if not self.opt.get("h0sc1", 1) or self.opt.get("htouch", 0):
            p(f"s_and_b32 {sT0}, {sh}, 1")
            p(f"s_lshl_b32 {sT0}, {sT0}, 2")
            p(f"s_add_u32 {sT0}, {sT0}, {sw}")
            p(f"s_mul_i32 {sT0}, {sT0}, {14 * KB}")
            p(f"s_mul_i32 {sT1}, {srh}, {4 * 112 * KB}")
            p(f"s_add_u32 {sT0}, {sT0}, {sT1}")
            p(f"v_lshlrev_b32 v64, 7, {vLane}")
            for tb in (0, 2, 1, 3):
                for off in (0, 6 * KB):
                    p(f"s_add_u32 {sT1}, {sT0}, {G_H + tb * 112 * KB + off}")
                    p(f"buffer_load_dword v65, v64, {SG}, {sT1} offen sc1")
        self.colsum_qkv()
        p.wait_ds()
        p("s_barrier")
        self.colsum_qkv_fetch()
        w2pre = self.opt.get("w2pre", 1)
        if w2pre:
            if w2pre == 2:
                p(f"v_min_u32 v16, 27, {vLane}")
                p("v_lshlrev_b32 v16, 2, v16")
                p(f"s_lshl_b32 {sT0}, {stb}, 7")
                p(f"s_add_u32 {sT0}, {sT0}, {G_FX}")
                self.poll("v16", SG, sT0, 1, sleep=2)
            p(f"s_and_b32 {sT0}, {sh}, 1")
            p(f"s_lshl_b32 {sT0}, {sT0}, 3")
            p(f"s_add_u32 {sT0}, {sT0}, {stb}")
            p(f"v_lshlrev_b32 v64, 7, {vLane}")
            for t in range(7):
                p(f"s_add_u32 {sT1}, {sT0}, {16 * t}")
                p(f"s_min_u32 {sT1}, {sT1}, 97")
                p(f"s_mul_i32 {sT2}, {sT1}, 147")
                p(f"s_lshr_b32 {sT2}, {sT2}, 10")
                p(f"s_mul_i32 {sT3}, {sT2}, 7")
                p(f"s_sub_u32 {sT1}, {sT1}, {sT3}")
                p(f"s_add_u32 {sT2}, {sT2}, 8")
                p(f"s_cmp_ge_u32 {sT2}, 14")
                p(f"s_cselect_b32 {sT3}, 14, 0")
                p(f"s_sub_u32 {sT2}, {sT2}, {sT3}")
                p(f"s_mul_i32 {sT1}, {sT1}, {224 * KB}")
                p(f"s_lshl_b32 {sT2}, {sT2}, 14")
                p(f"s_add_u32 {sT1}, {sT1}, {sT2}")
                p(f"s_add_u32 {sT1}, {sT1}, {WS_P2}")
                p(f"buffer_load_dword v65, v64, {SWS}, {sT1} offen sc1")
                p(f"s_add_u32 {sT1}, {sT1}, {8 * KB}")
                p(f"buffer_load_dword v65, v64, {SWS}, {sT1} offen sc1")
        if self.opt.get("nap", 1):
            p(f"v_min_u32 v16, 13, {vLane}")
            p("v_lshlrev_b32 v16, 2, v16")
            p(f"s_lshl_b32 {sT0}, {srh}, 10")
            p(f"s_add_u32 {sT0}, {sT0}, {G_FH + 3 * 256}")
            self.poll("v16", SG, sT0, 1, sleep=12)
        p("s_waitcnt vmcnt(0) lgkmcnt(0)")

    def spare1(self):
        p = self.p
        wb = self.opt.get("wb", 0)
        if not wb:
            return
        p(f"s_and_b32 {sT0}, {sh}, 1")
        p(f"s_or_b32 {sT0}, {sT0}, {srh}")
        p(f"s_or_b32 {sT0}, {sT0}, {sw}")
        p(f"s_cmp_lg_u32 {sT0}, 0")
        p(f"s_cbranch_scc1 L_fin{self.sfx}")
        if wb == 4:
            p(f"v_and_b32 v13, 15, {vLane}")
            p("v_min_u32 v13, 13, v13")
            p(f"v_bfe_u32 v14, {vLane}, 4, 1")
            p("v_lshl_add_u32 v13, v14, 5, v13")
            p("v_lshlrev_b32 v16, 2, v13")
            p(f"s_mov_b32 {sT0}, {G_FO + 64}")
            self.poll("v16", SG, sT0, 9)
            p("buffer_wbl2 sc1")
            p("s_waitcnt vmcnt(0)")
            return
        p(f"v_and_b32 v13, 15, {vLane}")
        p("v_min_u32 v13, 13, v13")
        p("v_lshlrev_b32 v13, 3, v13")
        p(f"v_lshrrev_b32 v14, 4, {vLane}")
        p("v_lshl_add_u32 v16, v14, 7, v13")
        p(f"s_mov_b32 {sT0}, {G_FX}")
        self.poll("v16", SG, sT0, 3, 2)
        p(f"s_mov_b32 {sT0}, {G_FX + 512}")
        self.poll("v16", SG, sT0, 3, 2)
        p("buffer_wbl2 sc1")
        p("s_waitcnt vmcnt(0)")
        if wb >= 2:
            p(f"v_and_b32 v13, 15, {vLane}")
            p("v_min_u32 v13, 13, v13")
            p("v_lshlrev_b32 v13, 2, v13")
            p(f"v_lshrrev_b32 v14, 4, {vLane}")
            p("v_lshl_add_u32 v16, v14, 6, v13")
            for tb in ((2, 3) if wb == 2 else (0, 2, 1, 3)):
                for half in range(2):
                    p(f"s_mov_b32 {sT0}, {G_FH + (4 * half + tb) * 256}")
                    self.poll("v16", SG, sT0, 2)
                p("buffer_wbl2 sc1")
                p("s_waitcnt vmcnt(0)")

    def finish(self):
        p = self.p
        p(f"s_or_b32 {sT0}, {sg}, {sh}")
        p(f"s_or_b32 {sT0}, {sT0}, {srh}")
        p(f"s_or_b32 {sT0}, {sT0}, {sw}")
        p(f"s_cmp_lg_u32 {sT0}, 0")
        p(f"s_cbranch_scc1 L_fin{self.sfx}")
        p(f"s_add_u32 {sT0}, {sE}, 64")
        p(f"v_mov_b32 v14, {sT0}")
        p("s_mov_b64 exec, 1")
        p(f"buffer_store_dword v14, {vL16}, {SWS}, 0 offen sc1")
        p("s_mov_b64 exec, -1")
        p(f"L_fin{self.sfx}:")
        if self.pad:
            p("s_waitcnt vmcnt(0)")
            if self.opt.get("amp") == "end":
                p("s_memrealtime s[94:95]")
            p("s_waitcnt lgkmcnt(0)")
            p("s_sub_u32 s94, s94, s96")
            p("s_mul_i32 s94, s94, 4")
            p("s_min_u32 s94, s94, 20000")
            p(f"s_add_u32 s94, s94, {self.pad}")
            p(f"L_pad{self.sfx}:")
            p("s_memrealtime s[98:99]")
            p("s_waitcnt lgkmcnt(0)")
            p("s_sub_u32 s98, s98, s96")
            p(f"s_cmp_lt_u32 s98, s94")
            p(f"s_cbranch_scc1 L_pad{self.sfx}")
        if self.diag:
            p("s_waitcnt vmcnt(0)")
            self.stamp("end")
            self.stamp_flush()
            p(f"s_lshl_b32 {sT0}, {srh}, 4")
            p(f"s_add_u32 {sT0}, {sT0}, {sh}")
            p(f"s_lshl_b32 {sT0}, {sT0}, 3")
            p(f"s_add_u32 {sT0}, {sT0}, {sg}")
            p(f"s_lshl_b32 {sT0}, {sT0}, 2")
            p(f"s_add_u32 {sT0}, {sT0}, {sw}")
            p(f"s_lshl_b32 {sT0}, {sT0}, 7")
            p(f"s_add_u32 {sT0}, {sT0}, {WS_DIAG}")
            p("s_mov_b64 exec, 1")
            for i in range(self.nstamp):
                p(f"v_mov_b32 v14, s{STAMP0 + i}")
                p(f"buffer_store_dword v14, {vL16}, {SWS}, {sT0} offen offset:{4 * i}")
            for k in range(2):
                p(f"v_mov_b32 v14, s{18 + k}")
                p(f"buffer_store_dword v14, {vL16}, {SWS}, {sT0} offen offset:{112 + 4 * k}")
            p(f"v_mov_b32 v14, {1 if self.fast else 0}")
            p(f"buffer_store_dword v14, {vL16}, {SWS}, {sT0} offen offset:120")
            p(f"v_mov_b32 v14, {slim}")
            p(f"buffer_store_dword v14, {vL16}, {SWS}, {sT0} offen offset:124")
            p("s_mov_b64 exec, -1")
        p("s_waitcnt vmcnt(0)")
        p("s_endpgm")

    def body(self):
        p = self.p
        x = self.sfx
        if self.opt.get("gc", 56) < 56:
            self.kv0_rest()
        self.q0()

        self.kv_finish(0, 64, "v11")
        self.stamp_flush()
        p(f"s_cmp_ge_u32 {sh}, 14")
        p(f"s_cbranch_scc1 L_spare0{x}")
        assert len(self.bulk) <= 84
        b2 = self.touch[4] + self.take(self.opt.get("b2", 8))

        def pre_wo0():
            for it in b2:
                p.add(it)
            self.colsum_qkv()
        n_before = min(28, 28 + 56 - len(self.bulk))
        cs1 = self.colsum_w1_items()
        b3 = self.take(self.opt.get("b3", 10))
        self.wo_phase(0, pre_wo0, [(cs1[:n_before], 0, 26), (b3, 20, 27)])
        b4 = self.take(max(self.opt.get("b4", 0), len(self.bulk) - 56))

        def pre_ffn0():
            self.colsum_qkv_fetch()
            for it in b4:
                p.add(it)
            for it in cs1[n_before:]:
                p.add(it)
            p(f"v_mov_b32 v84, v{vCS1}")
            p(f"v_mov_b32 v85, v{vCS1 + 1}")
            p.wait_ds()
            p("s_barrier")

        def extra0(pos):
            return [(self.take(100), self.opt.get("w2beg", 0), pos[self.opt.get("w2end", 108)])]
        self.ffn(0, pre_ffn0, extra0)
        p(f"L_layer1{x}:")
        p("s_waitcnt lgkmcnt(0)")
        self.qkv1()
        self.kv_finish(1, 96, "v91")
        p(f"s_cmp_ge_u32 {sh}, 14")
        p(f"s_cbranch_scc1 L_spare1{x}")
        self.wo_phase(1)
        self.ffn(1)
        self.finish()
        p(f"L_spare0{x}:")
        p("s_waitcnt vmcnt(0) lgkmcnt(0)")
        self.spare0()
        p(f"s_branch L_layer1{x}")
        p(f"L_spare1{x}:")
        p("s_waitcnt vmcnt(0) lgkmcnt(0)")
        self.spare1()
        p(f"s_branch L_fin{x}")
        p.add(self.tail)
        self.tail = []

    def build(self):
        p = self.p
        self.prologue()
        self.startup()
        self.qkv0()
        self.body()
        p("L_fastend:")
        p("L_slow:")
        p("s_waitcnt vmcnt(0) lgkmcnt(0)")
        p("s_nop 7")
        self.fast = False
        self.sfx = "_s"
        self.body()
        return finalize(p.ins)


HEADER = f"""; Two layers of (LayerNorm, linear attention, output projection, LayerNorm, SiLU FFN) in one persistent launch.
; @launch grid=(256,1,1) block=(256,1,1) lds={LDS_BYTES}
.amdgcn_target "amdgcn-amd-amdhsa--gfx950"
.text
.globl {NAME}_kernel
.p2align 8
.type {NAME}_kernel,@function
{NAME}_kernel:
"""
FOOTER = f"""
.section .rodata,"a"
.p2align 6
.amdhsa_kernel {NAME}_kernel
  .amdhsa_next_free_vgpr 512
  .amdhsa_next_free_sgpr 102
  .amdhsa_accum_offset 256
  .amdhsa_group_segment_fixed_size 0
  .amdhsa_kernarg_size 72
  .amdhsa_user_sgpr_count 2
  .amdhsa_user_sgpr_kernarg_segment_ptr 1
  .amdhsa_system_sgpr_workgroup_id_x 1
.end_amdhsa_kernel
"""


def generate(**kw):
    g = Gen(**kw)
    lines = g.build()
    return HEADER + "\n".join(lines) + FOOTER, g


if __name__ == "__main__":
    out = sys.argv[1] if len(sys.argv) > 1 else f"cdna_kernels/{NAME}.s"
    kw = {}
    for a in sys.argv[2:]:
        k, _, v = a.partition("=")
        kw[k] = (int(v) if v.lstrip('-').isdigit() else v) if v else True
    text, g = generate(**kw)
    open(out, "w").write(text)
    print("wrote", out, len(text), "bytes;", text.count("\n"), "lines")
```

```python
import sys, os
sys.path.insert(0, os.path.dirname(os.path.abspath(__file__)))
from asmlib import *

NAME = "interleave_layers__linear_attn_block__dense_activation_silu__prompt"
KB = 1024

WS_EPOCH = 0
WS_RA = 0x8000
WS_RB = 0x10000
WS_DIAG = 0x20000
WS_KV = 0x80000
KV_L = 0x80000
WS_PQ = 0x180000
WS_PO = WS_PQ + 16 * 28 * KB
WS_P1 = WS_PO + 14 * 28 * KB
WS_P2 = WS_P1 + 14 * 112 * KB
WS_G = 0x680000
assert WS_P2 + 7 * 224 * KB <= WS_G
OOB = 0x40000000
G_STRIDE = 0x160000
G_H = 0
G_O = 8 * 112 * KB
G_X = G_O + 8 * 28 * KB
G_ST = G_X + 8 * 28 * KB
G_FX = G_ST + 8 * 7 * KB
G_FO = G_FX + 1024
G_FH = G_FO + 1024
G_END = G_FH + 2048
assert G_END <= G_STRIDE
WS_BYTES = WS_G + 8 * G_STRIDE

L_WK, L_WV, L_WQ, L_WO, L_S = 0, 28 * KB, 56 * KB, 84 * KB, 112 * KB
L_XST = 48 * KB
S_KVP, S_KVS = 0, 16 * KB
S_CS = 18 * KB
S_STAT, S_TR = 42 * KB, 44 * KB
LDS_BYTES = 160 * KB

SX, SQ, SO, S1, S2, SOUT, SWS, SG = ("s[8:11]", "s[12:15]", "s[16:19]", "s[20:23]", "s[24:27]", "s[28:31]",
                                     "s[32:35]", "s[36:39]")
sE, sg, sh, srh, sw, sfast, srq, scb, stb, sxs, slim = ("s56", "s57", "s58", "s59", "s60", "s61", "s62", "s63",
                                                        "s64", "s65", "s66")
sT0, sT1, sT2, sT3, sT4, sT5 = "s40", "s41", "s42", "s43", "s44", "s45"
sCnt, sNeed = "s46", "s47"
sONES, sLOG2E, sEPS6, sHI = "s48", "s49", "s50", "s51"
sM28 = "s[52:53]"
sMPAD = "s[54:55]"
sHB, sXB, sSTB = "s67", "s68", "s69"
STAMP0 = 80
sU = [f"s{70 + i}" for i in range(10)]
SPK = "s[20:23]"

vLane, vL16, vTrA, vTrB = "v0", "v1", "v2", "v3"
vCS1 = 4
vCSQ = 6
vS16 = "v12"
vT0, vT1, vT2 = "v13", "v14", "v15"


def V(n, k=4):
    return f"v[{n}:{n + k - 1}]" if k > 1 else f"v{n}"


def A(n, k=4):
    return f"a[{n}:{n + k - 1}]" if k > 1 else f"a{n}"


def w1reg(s, lo=0, k=4):
    return A(224 + 4 * s + lo, k) if s < 8 else V(176 + 4 * (s - 8) + lo, k)


def w2reg(j, ch, lo=0, k=4):
    return A(8 * j + 4 * ch + lo, k)


MFMA = "v_mfma_f32_32x32x16_bf16"
MFMA16 = "v_mfma_f32_16x16x32_bf16"


class Capture:
    def __init__(self, g):
        self.g = g

    def __enter__(self):
        self.saved = self.g.p.ins
        self.g.p.ins = []
        self.ins = self.g.p.ins
        return self

    def __exit__(self, *a):
        self.g.p.ins = self.saved


class Gen:
    def __init__(self, diag=False, force_slow=False, pad=0, part=0, **opt):
        self.p = Prog()
        self.diag = diag
        self.force_slow = force_slow
        self.pad = pad
        self.part = part
        self.opt = opt
        self.nstamp = 0
        self.seen = 0
        self.stamp_names = []
        self.pending = False
        self.tail = []
        self.fast = True
        self.sfx = ""

    def cap(self):
        return Capture(self)

    def stamp(self, name, op="s_memrealtime"):
        if self.opt.get("amp") == name and self.fast:
            self.p("s_memrealtime s[94:95]")
        if not self.diag or not self.fast:
            return
        self.seen += 1
        lo = self.opt.get("from", 18 * self.part)
        if self.seen > 2 and not (lo <= self.seen - 3 < lo + 18):
            return
        self.stamp_flush()
        assert STAMP0 + self.nstamp < 100, "too many stamps"
        if self.opt.get("clk") and self.seen > 1:
            op = "s_memtime"
        self.p(f"{op} s[100:101]")
        self.stamp_names.append(name)
        self.nstamp += 1
        self.pending = True

    def stamp_flush(self):
        if self.diag and self.pending:
            self.p(f"s_mov_b32 s{STAMP0 + self.nstamp - 1}, s100")
            self.pending = False

    def publish(self, stores, tag="pub", always_sc1=False):
        for s in stores:
            self.p(s + (" sc1" if s.startswith("buffer_") and (always_sc1 or not self.fast) else ""), tag)

    def flag(self, soff, val, n=1, wait="pub", tmp=14, st=sT5):
        p = self.p
        p(f"s_add_u32 {st}, {sE}, {val}")
        p(f"v_mov_b32 v{tmp}, {st}")
        if n == 2:
            p(f"v_mov_b32 v{tmp + 1}, {st}")
        op = f"buffer_store_dword v{tmp}" if n == 1 else f"buffer_store_dwordx2 v[{tmp}:{tmp + 1}]"
        p.wait_vm(wait)
        self.publish(["s_mov_b64 exec, 1", f"{op}, {vL16}, {SG}, {soff} offen", "s_mov_b64 exec, -1"], "flag")

    def poll_load(self, vaddr, srd, soff, n, tmp):
        if n == 1:
            self.p(f"buffer_load_dword v{tmp}, {vaddr}, {srd}, {soff} offen sc1")
        else:
            self.p(f"buffer_load_dwordx2 v[{tmp}:{tmp + 1}], {vaddr}, {srd}, {soff} offen sc1")

    def poll_test(self, n, tmp, need, win=3):
        p = self.p
        p(f"v_subrev_u32 v{tmp}, {need}, v{tmp}")
        if n == 2:
            p(f"v_subrev_u32 v{tmp + 1}, {need}, v{tmp + 1}")
            p(f"v_or_b32 v{tmp}, v{tmp}, v{tmp + 1}")
        p(f"v_cmp_lt_u32 vcc, {win}, v{tmp}")

    def spin(self, vaddr, srd, soff, n, tmp, need, done, sleep=0, win=3):
        p = self.p
        lp = p.label("poll")
        p(f"s_mov_b32 {sCnt}, {slim}")
        p(f"{lp}:")
        self.poll_load(vaddr, srd, soff, n, tmp)
        p("s_waitcnt vmcnt(0)")
        self.poll_test(n, tmp, need, win)
        p(f"s_cbranch_vccz {done}")
        sleep = sleep or self.opt.get("slp", 0)
        if sleep:
            p(f"s_sleep {sleep}")
        p(f"s_sub_u32 {sCnt}, {sCnt}, 1")
        p(f"s_cmp_lg_u32 {sCnt}, 0")
        p(f"s_cbranch_scc1 {lp}")
        p(f"s_mov_b32 {slim}, 1")

    def poll(self, vaddr, srd, soff, need, n=1, tmp=14, sleep=0):
        p = self.p
        ld = p.label("polled")
        p(f"s_add_u32 {sNeed}, {sE}, {need}")
        self.spin(vaddr, srd, soff, n, tmp, sNeed, ld, sleep)
        p(f"{ld}:")

    def apoll_end(self, vaddr, srd, soff, need, n=1, tmp=14, win=3):
        p = self.p
        lo, lb = p.label("aspin"), p.label("aback")
        p(f"s_add_u32 {sNeed}, {sE}, {need}")
        self.poll_test(n, tmp, sNeed, win)
        p(f"s_cbranch_vccnz {lo}")
        p(f"{lb}:")
        with self.cap() as c:
            p(f"{lo}:")
            p("s_nop 4")
            self.spin(vaddr, srd, soff, n, tmp, sNeed, lb, 0, win)
            p(f"s_branch {lb}")
        self.tail.extend(c.ins)

    def trread(self, dst_lo, dst_hi, vaddr, off, second=512):
        return [Ins(f"ds_read_b64_tr_b16 {dst_lo}, {vaddr} offset:{off}"),
                Ins(f"ds_read_b64_tr_b16 {dst_hi}, {vaddr} offset:{off + second}")]

    def transpose_block(self, reg, aw, ar):
        return [Ins(f"ds_write_b128 {aw}, {reg(0, 4)}"),
                Ins(f"ds_read_b64_tr_b16 {reg(0, 2)}, {ar}"),
                Ins(f"ds_read_b64_tr_b16 {reg(2, 2)}, {ar} offset:512")]

    def tr_addrs(self, aw, ar):
        p = self.p
        p(f"s_lshl_b32 {sT0}, {sw}, 10")
        p(f"s_add_u32 {sT0}, {sT0}, {L_S + S_TR}")
        p(f"v_add_u32 {aw}, {sT0}, {vL16}")
        p(f"v_add_u32 {ar}, {sT0}, {vTrA}")

    def both_halves(self, s, q, tmp):
        p = self.p
        p(f"v_permlane32_swap_b32 {s}, {q}")
        p(f"v_add_f32 {s}, {s}, {q}")

    def stats_finish(self, t, u, mean, var):
        p = self.p
        p(f"v_mov_b32 {u}, {t}")
        p(f"v_permlane32_swap_b32 {t}, {u}")
        p(f"v_mul_f32 {mean}, 0x3b124925, {t}")
        p(f"v_mul_f32 {var}, 0x3b124925, {u}")
        p(f"v_fma_f32 {var}, -{mean}, {mean}, {var}")
        p(f"v_max_f32 {var}, 0, {var}")
        p(f"v_add_f32 {var}, 0x3727c5ac, {var}")

    def split_words(self, x, w0, w1, t, neg, xside):
        p = self.p
        s = "-" if neg else ""
        p(f"v_cvt_pk_bf16_f32 {w0}, {s}{x}, {s}{x}")
        p(f"v_and_b32 {t}, {sHI}, {w0}")
        p(f"v_sub_f32 {t}, {s}{x}, {t}" if not neg else f"v_sub_f32_e64 {t}, -{x}, {t}")
        if xside:
            p(f"v_and_b32 {w1}, 0xffff, {w0}")
            p(f"v_cvt_pk_bf16_f32 {t}, {t}, {t}")
            p(f"v_and_or_b32 {w0}, {t}, {sHI}, {w1}")
        else:
            p(f"v_cvt_pk_bf16_f32 {w1}, {t}, 0")

    def prologue(self):
        p = self.p
        p("s_cmp_lt_u32 s2, 256")
        p("s_cbranch_scc1 L_start")
        p("s_endpgm")
        p("L_start:")
        p("s_load_dwordx4 s[40:43], s[0:1], 0")
        p("s_load_dwordx2 s[52:53], s[0:1], 64")
        p("s_load_dwordx2 s[44:45], s[0:1], 16")
        p("s_load_dwordx4 s[48:51], s[0:1], 32")
        p("s_load_dwordx2 s[46:47], s[0:1], 48")
        self.stamp("realtime", "s_memrealtime")
        if self.pad:
            p("s_memrealtime s[96:97]")
            p("s_memrealtime s[94:95]")
        p("s_getpc_b64 s[6:7]")
        p("L_pc:")
        p("v_lshrrev_b32 v13, 6, v0")
        p(f"v_and_b32 {vLane}, 63, v0")
        p(f"v_readfirstlane_b32 {sw}, v13")
        p(f"s_and_b32 {sg}, s2, 7")
        p(f"s_lshr_b32 s3, s2, 3")
        p(f"s_lshl_b32 s4, s3, 2")
        p(f"s_add_u32 s4, s4, {sw}")
        p(f"s_lshl_b32 s4, s4, 9")
        p(f"v_lshlrev_b32 v9, 7, {vLane}")
        p("v_add_u32 v13, s4, v9")
        p("v_min_u32 v13, L_fastend-L_pc-4, v13")
        p("s_mov_b64 exec, 0xf")
        p("global_load_dword v10, v13, s[6:7]")
        p("s_mov_b64 exec, -1")
        p(f"s_and_b32 {sh}, s3, 15")
        p(f"s_lshr_b32 {srh}, s3, 4")
        p(f"s_lshl_b32 s2, {sg}, 1")
        p(f"s_add_u32 s2, s2, {srh}")
        p("s_lshl_b32 s3, s2, 2")
        p(f"s_add_u32 s3, s3, {sw}")
        p("s_min_u32 s5, s3, 55")
        p("s_cmp_ge_u32 s5, 28")
        p("s_cselect_b32 s4, 1, 0")
        p("s_cselect_b32 s6, 28, 0")
        p("s_sub_u32 s5, s5, s6")
        p(f"v_lshrrev_b32 v13, 2, {vLane}")
        p(f"v_and_b32 v15, 3, {vLane}")
        p("v_lshlrev_b32 v15, 4, v15")
        p("v_mul_u32_u24 v14, 2688, v13")
        p("v_add_u32 v6, v14, v15")
        p("v_mul_u32_u24 v14, 896, v13")
        p("v_add_u32 v7, v14, v15")
        p("v_mul_u32_u24 v14, 3584, v13")
        p("v_add_u32 v8, v14, v15")
        p(f"s_cmp_ge_u32 {sh}, 7")
        p(f"s_cselect_b32 s6, 1, 0")
        p(f"s_cselect_b32 s7, 7, 0")
        p(f"s_lshl_b32 {srq}, {srh}, 1")
        p(f"s_add_u32 {srq}, {srq}, s6")
        p(f"s_sub_u32 {scb}, {sh}, s7")
        p(f"s_lshl_b32 {stb}, {srh}, 2")
        p(f"s_and_b32 s6, {sw}, 1")
        p(f"s_lshl_b32 s6, s6, 1")
        p(f"s_lshr_b32 s7, {sw}, 1")
        p(f"s_or_b32 s6, s6, s7")
        p(f"s_add_u32 {sxs}, {stb}, s6")
        p(f"s_add_u32 {stb}, {stb}, {sw}")
        p(f"v_lshlrev_b32 {vL16}, 4, {vLane}")
        p(f"v_lshrrev_b32 v13, 3, {vLane}")
        p("v_mul_u32_u24 v14, 896, v13")
        p("v_lshrrev_b32 v13, 1, v13")
        p(f"v_and_b32 v15, 7, {vLane}")
        p("v_xor_b32 v13, v13, v15")
        p("v_lshl_add_u32 v16, v13, 4, v14")
        p("v_xor_b32 v13, 4, v13")
        p("v_lshl_add_u32 v17, v13, 4, v14")
        p(f"s_lshl_b32 {sU[0]}, {sg}, 3")
        p(f"s_add_u32 {sU[0]}, {sU[0]}, {stb}")
        p(f"s_mul_i32 {sU[0]}, {sU[0]}, {32 * 896}")
        p(f"s_mul_i32 {sU[1]}, {sw}, {28 * KB}")
        p(f"s_add_u32 {sU[1]}, {sU[1]}, {L_XST}")
        p(f"s_cmp_ge_u32 {sh}, 14")
        p(f"s_cselect_b32 {sU[2]}, 7, 0")
        p(f"s_sub_u32 {sU[2]}, {scb}, {sU[2]}")
        p(f"s_mul_i32 {sU[7]}, s2, 37")
        p(f"s_lshr_b32 {sU[7]}, {sU[7]}, 8")
        p(f"s_mul_i32 {sU[7]}, {sU[7]}, 7")
        p(f"s_sub_u32 {sU[6]}, s2, {sU[7]}")
        p(f"s_sub_i32 {sU[7]}, {sU[2]}, {sU[6]}")
        p(f"s_cmp_lt_i32 {sU[7]}, 0")
        p(f"s_cselect_b32 s6, 7, 0")
        p(f"s_add_i32 {sU[7]}, {sU[7]}, s6")
        p(f"s_mov_b32 s10, {2048 * 896}\ns_mov_b32 s11, 0x00020000")
        p(f"s_mov_b32 s14, {448 * 2688}\ns_mov_b32 s15, 0x00020000")
        p("s_waitcnt lgkmcnt(0)")
        self.stamp("start")
        p("s_mov_b32 s12, s42\ns_mov_b32 s13, s43")
        p("s_mov_b32 s8, s40\ns_mov_b32 s9, s41")
        p(f"s_load_dword {sE}, s[52:53], {WS_EPOCH}")
        for j in range(7):
            p(f"s_lshl_b32 {sU[3]}, {sU[2]}, 7")
            p(f"s_add_u32 {sU[3]}, {sU[3]}, {sU[0]}")
            p(f"s_lshl_b32 {sU[4]}, {sU[7]}, 12")
            p(f"s_add_u32 {sU[4]}, {sU[4]}, {sU[1]}")
            for b in range(4):
                p(f"s_add_u32 m0, {sU[4]}, {b * KB}")
                p(f"s_add_u32 {sU[5]}, {sU[3]}, {b * 8 * 896}")
                p(f"buffer_load_dwordx4 v{16 + (b & 1)}, {SX}, {sU[5]} offen lds", "x")
                if 4 * j + b + 1 == self.opt.get("xa", 4):
                    self.prologue2()
            if j < 6:
                p(f"s_add_u32 {sU[2]}, {sU[2]}, 1")
                p(f"s_cmp_eq_u32 {sU[2]}, 7")
                p(f"s_cselect_b32 {sU[2]}, 0, {sU[2]}")
                p(f"s_add_u32 {sU[7]}, {sU[7]}, 1")
                p(f"s_cmp_eq_u32 {sU[7]}, 7")
                p(f"s_cselect_b32 {sU[7]}, 0, {sU[7]}")

    def prologue2(self):
        p = self.p
        p(f"s_mul_i32 {sHB}, {stb}, {28 * KB}")
        p(f"s_add_u32 {sHB}, {sHB}, {G_O}")
        p(f"s_mul_i32 {sXB}, {sxs}, {28 * KB}")
        p(f"s_add_u32 {sXB}, {sXB}, {G_X}")
        p(f"s_mul_i32 {sSTB}, {stb}, {7 * KB}")
        p(f"s_add_u32 {sSTB}, {sSTB}, {G_ST}")
        p(f"s_mov_b32 {slim}, 40000")
        p(f"v_add_u32 {vS16}, {L_S}, {vL16}")
        p(f"v_and_b32 v13, 3, {vLane}")
        p("v_lshlrev_b32 v13, 3, v13")
        p(f"v_bfe_u32 v14, {vLane}, 4, 1")
        p("v_lshl_add_u32 v13, v14, 5, v13")
        p(f"v_bfe_u32 v14, {vLane}, 2, 2")
        p("v_lshl_add_u32 v13, v14, 6, v13")
        p(f"v_lshrrev_b32 v14, 5, {vLane}")
        p(f"v_lshl_add_u32 {vTrA}, v14, 8, v13")
        p(f"v_add_u32 {vTrB}, {L_WQ}, {vTrA}")
        p("v_lshl_add_u32 v62, v14, 9, v13")
        p(f"v_add_u32 v63, {L_WQ}, v62")
        p(f"v_and_b32 v13, 31, {vLane}")
        p("v_lshrrev_b32 v14, 3, v13")
        p("v_lshlrev_b32 v14, 10, v14")
        p("v_and_b32 v15, 7, v13")
        p("v_lshl_add_u32 v14, v15, 7, v14")
        p(f"v_add_u32 v14, {sU[1]}, v14")
        p("v_bfe_u32 v13, v13, 1, 3")
        p(f"v_lshrrev_b32 v15, 5, {vLane}")
        p("v_xor_b32 v13, v13, v15")
        for q in range(4):
            p(f"v_xor_b32 v15, {2 * q}, v13")
            p(f"v_lshl_add_u32 v{20 + q}, v15, 4, v14")
        p(f"v_lshrrev_b32 v15, 5, {vLane}")
        p("v_xor_b32 v13, v13, v15")
        p("v_lshl_add_u32 v14, v15, 3, v14")
        p(f"s_min_u32 s6, {sh}, 13")
        p("s_lshr_b32 s7, s6, 1")
        p(f"s_sub_i32 s7, s7, {sU[6]}")
        p("s_cmp_lt_i32 s7, 0")
        p(f"s_cselect_b32 {sU[8]}, 7, 0")
        p(f"s_add_i32 s7, s7, {sU[8]}")
        p("s_lshl_b32 s7, s7, 12")
        p("v_add_u32 v14, s7, v14")
        p("s_and_b32 s6, s6, 1")
        p("s_lshl_b32 s6, s6, 2")
        p("v_xor_b32 v13, s6, v13")
        for a in range(4):
            p(f"v_xor_b32 v15, {a}, v13")
            p(f"v_lshl_add_u32 v{24 + a}, v15, 4, v14")
        p(f"s_cmp_lt_u32 {sh}, 14")
        p(f"s_cselect_b32 s18, {448 * 448 * 2}, 0")
        p(f"s_cselect_b32 s22, {448 * 1792 * 2}, 0")
        p(f"s_cselect_b32 s26, {448 * 1792 * 2}, 0")
        for base, src, size in ((16, 44, None), (20, 48, None), (24, 50, None), (28, 46, 2048 * 896),
                                (32, 52, WS_BYTES)):
            p(f"s_mov_b32 s{base}, s{src}")
            p(f"s_mov_b32 s{base + 1}, s{src + 1}")
            if size is not None:
                p(f"s_mov_b32 s{base + 2}, {size}")
            p(f"s_mov_b32 s{base + 3}, 0x00020000")
        p(f"s_mul_i32 s6, {sg}, {G_STRIDE}")
        p(f"s_add_u32 s6, s6, {WS_G}")
        p("s_add_u32 s36, s52, s6")
        p("s_addc_u32 s37, s53, 0")
        p(f"s_mov_b32 s38, {G_STRIDE}")
        p("s_mov_b32 s39, 0x00020000")

    def kv_clear(self):
        p = self.p
        p(f"s_lshl_b32 {sT0}, {sh}, 15")
        p(f"s_lshl_b32 {sT1}, s3, 9")
        p(f"s_add_u32 {sT0}, {sT0}, {sT1}")
        p(f"s_add_u32 {sT0}, {sT0}, {WS_KV}")
        p(f"s_add_u32 {sT1}, {sT0}, {KV_L}")
        p("v_mov_b32 v36, -1\nv_mov_b32 v37, -1")
        p(f"v_lshlrev_b32 v11, 3, {vLane}")
        p(f"buffer_store_dwordx2 v[36:37], v11, {SWS}, {sT0} offen sc1", "pb")
        p(f"buffer_store_dwordx2 v[36:37], v11, {SWS}, {sT1} offen sc1", "pb")

    def wqkv_setup(self):
        p = self.p
        p(f"s_mul_i32 s0, {sh}, 56")
        p(f"s_mul_i32 s1, {sw}, {16 * 2688}")
        p("s_add_u32 s0, s0, s1")
        p(f"s_lshl_b32 s1, {sw}, 10")
        p(f"s_mov_b32 {sU[8]}, {sU[6]}")
        p(f"s_mov_b32 {sU[4]}, {sU[6]}")

    def wqkv_item(self, m, lbase, tag):
        p = self.p
        cnt = sU[8] if m == 2 else sU[6]
        with self.cap() as c:
            p(f"s_lshl_b32 {sU[7]}, {cnt}, 12")
            p(f"s_add_u32 {sU[7]}, {sU[7]}, s1")
            p(f"s_add_u32 m0, {sU[7]}, {lbase}")
            p(f"s_mul_i32 {sU[7]}, {cnt}, {64 * 2688}")
            p(f"s_add_u32 {sU[7]}, {sU[7]}, s0")
            if m:
                p(f"s_add_u32 {sU[7]}, {sU[7]}, {896 * m}")
            p(f"buffer_load_dwordx4 v6, {SQ}, {sU[7]} offen lds", tag)
            p(f"s_add_u32 {cnt}, {cnt}, 1")
            p(f"s_cmp_eq_u32 {cnt}, 7")
            p(f"s_cselect_b32 {cnt}, 0, {cnt}")
        return c.ins

    def group_base(self, dst, base):
        p = self.p
        with self.cap() as c:
            p(f"s_lshl_b32 {sT4}, {sU[4]}, 12")
            p(f"v_add_u32 {dst}, {sT4}, {base}")
            p(f"s_add_u32 {sU[4]}, {sU[4]}, 1")
            p(f"s_cmp_eq_u32 {sU[4]}, 7")
            p(f"s_cselect_b32 {sU[4]}, 0, {sU[4]}")
        return c.ins

    def consts(self):
        p = self.p
        p(f"s_mov_b32 {sONES}, 0x3f803f80")
        p(f"s_mov_b32 {sLOG2E}, 0x3fb8aa3b")
        p(f"s_mov_b32 {sEPS6}, 0x358637bd")
        p(f"s_mov_b32 {sHI}, 0xffff0000")
        p("s_mov_b32 s52, 0x10000000")
        p("s_mov_b32 s53, 0x10000000")
        p("s_mov_b32 s54, 0")
        p("s_mov_b32 s55, -1")

    def ready(self, base):
        p = self.p
        p(f"s_lshl_b32 {sT2}, {sh}, 4")
        p(f"s_add_u32 {sT2}, {sT2}, s2")
        p(f"s_lshl_b32 {sT2}, {sT2}, 7")
        p(f"s_add_u32 {sT2}, {sT2}, {base}")
        p(f"s_cmp_eq_u32 {sw}, 0")
        p(f"s_cselect_b32 {sT2}, {sT2}, {OOB}")
        p(f"s_add_u32 {sT5}, {sE}, {sfast}")
        p(f"s_add_u32 {sT5}, {sT5}, 1")
        p(f"v_mov_b32 v14, {sT5}")
        p("s_mov_b64 exec, 1")
        p(f"buffer_store_dword v14, {vL16}, {SWS}, {sT2} offen sc1")
        p("s_mov_b64 exec, -1")

    def pack_b_loads(self):
        p = self.p
        p(f"s_mul_i32 {sT0}, s5, {16 * 3584}")
        p(f"s_lshl_b32 {sT1}, {sh}, 8")
        p(f"s_add_u32 {sT0}, {sT0}, {sT1}")
        p(f"s_lshl_b32 {sT1}, s4, 7")
        p(f"s_add_u32 {sT0}, {sT0}, {sT1}")
        p(f"buffer_load_dwordx4 a[40:43], v8, {S1}, {sT0} offen")
        p(f"buffer_load_dwordx4 a[44:47], v8, {S1}, {sT0} offen offset:64")
        p(f"s_mul_i32 {sU[1]}, {sh}, 112")
        p(f"s_mul_i32 {sT1}, s4, 56")
        p(f"s_add_u32 {sU[1]}, {sU[1]}, {sT1}")
        p(f"s_add_u32 {sU[1]}, {sU[1]}, s5")
        p(f"s_lshl_b32 {sU[1]}, {sU[1]}, 10")
        p(f"s_add_u32 {sU[1]}, {sU[1]}, {WS_P1}")
        p(f"s_cmp_lt_u32 {sh}, 14")
        p(f"s_cselect_b32 s22, {WS_BYTES}, 0")
        p("s_mov_b32 s20, s32\ns_mov_b32 s21, s33")
        self.tr_addrs("v4", "v5")

    def pack_c_loads(self):
        p = self.p
        p(f"s_and_b32 {sU[5]}, {srq}, 1")
        p(f"s_lshl_b32 {sU[5]}, {sU[5]}, 6")
        p(f"s_add_u32 {sU[5]}, {sU[5]}, s3")
        p(f"s_mul_i32 {sU[0]}, {sU[5]}, {16 * 896}")
        p(f"s_lshl_b32 {sU[2]}, {scb}, 7")
        p(f"s_add_u32 {sU[0]}, {sU[0]}, {sU[2]}")
        p(f"s_mul_i32 {sU[2]}, {scb}, 112")
        p(f"s_add_u32 {sU[2]}, {sU[2]}, {sU[5]}")
        p(f"s_lshl_b32 {sU[2]}, {sU[2]}, 11")
        p(f"s_add_u32 {sU[2]}, {sU[2]}, {WS_P2}")
        p(f"s_cmp_lt_u32 {sU[5]}, 112")
        p(f"s_cselect_b32 {sU[0]}, {sU[0]}, {OOB}")
        p(f"s_cselect_b32 {sU[2]}, {sU[2]}, {OOB}")
        p(f"buffer_load_dwordx4 a[48:51], v7, {S2}, {sU[0]} offen")
        p(f"buffer_load_dwordx4 a[52:55], v7, {S2}, {sU[0]} offen offset:64")

    def pack_b_items(self):
        items = [self.transpose_block(lambda lo, k, r=r: A(r + lo, k), "v4", "v5") for r in (40, 44)]
        items.append([Ins(f"buffer_store_dwordx4 a[40:43], {vL16}, {SPK}, {sU[1]} offen sc1", "pb"),
                      Ins(f"s_add_u32 {sU[1]}, {sU[1]}, {28 * KB}")])
        items.append([Ins(f"buffer_store_dwordx4 a[44:47], {vL16}, {SPK}, {sU[1]} offen sc1", "pb")])
        return items

    def pack_c_items(self):
        items = [self.transpose_block(lambda lo, k, r=r: A(r + lo, k), "v4", "v5") for r in (48, 52)]
        items.append([Ins(f"buffer_store_dwordx4 a[48:51], {vL16}, {SPK}, {sU[2]} offen sc1", "pb")])
        items.append([Ins(f"buffer_store_dwordx4 a[52:55], {vL16}, {SPK}, {sU[2]} offen offset:1024 sc1", "pb")])
        return items

    def dma_items(self, vaddr, srd, first, count, tag, stm):
        p = self.p
        items = []
        for u in range(count):
            with self.cap() as c:
                if u == 0:
                    p(f"s_mul_i32 {stm}, {sw}, {count * KB}")
                if u % 4 == 0:
                    p(f"s_add_u32 m0, {stm}, {(first + u) * KB}")
                p(f"buffer_load_dwordx4 {vaddr}, {srd}, m0 offen offset:{(u % 4) * KB} sc1 lds", tag)
            items.append(c.ins)
        return items

    def w1_items(self):
        p = self.p
        items = []
        for s in range(28):
            with self.cap() as c:
                if s == 0:
                    p(f"s_lshl_b32 s24, {sh}, 2")
                    p(f"s_add_u32 s24, s24, {sw}")
                    p(f"s_mul_i32 s24, s24, {28 * KB}")
                    p(f"s_add_u32 s24, s24, {WS_P1}")
                elif s % 4 == 0:
                    p(f"s_add_u32 s24, s24, {4 * KB}")
                p(f"buffer_load_dwordx4 {w1reg(s)}, {vL16}, {SPK}, s24 offen offset:{(s % 4) * KB} sc1", "w1")
            items.append(c.ins)
        return items

    def pack_d_loads(self):
        p = self.p
        p(f"s_mul_i32 {sT2}, s5, {16 * 896}")
        p(f"s_lshl_b32 {sT1}, {sh}, 6")
        p(f"s_add_u32 {sT2}, {sT2}, {sT1}")
        p(f"s_mul_i32 {sT1}, {sh}, 28")
        p(f"s_add_u32 {sT1}, {sT1}, s5")
        p(f"s_lshl_b32 {sT1}, {sT1}, 10")
        p(f"s_add_u32 {sU[9]}, {sT1}, {WS_PO}")
        p("s_cmp_eq_u32 s4, 0")
        p(f"s_cselect_b32 {sT2}, {OOB}, {sT2}")
        p(f"s_cselect_b32 {sU[9]}, {OOB}, {sU[9]}")
        p(f"buffer_load_dwordx4 v[32:35], v7, {SO}, {sT2} offen")
        if self.opt.get("mall", 1):
            p(f"s_lshl_b32 {sT0}, {sh}, 6")
            p(f"s_add_u32 {sT0}, {sT0}, s3")
            p(f"s_lshr_b32 {sT1}, {sT0}, 1")
            p(f"s_mul_i32 {sT1}, {sT1}, 2688")
            p(f"s_and_b32 {sT0}, {sT0}, 1")
            p(f"s_mul_i32 {sT0}, {sT0}, 384")
            p(f"s_add_u32 {sT0}, {sT0}, {sT1}")
            p("s_mov_b64 exec, 0xf")
            p(f"buffer_load_dword v10, v9, {SQ}, {sT0} offen", "touch")
            p("s_mov_b64 exec, -1")

    def pack_d_items(self):
        return [[Ins(f"buffer_store_dwordx4 v[32:35], {vL16}, {SPK}, {sU[9]} offen sc1", "pb")]]

    def touch_items(self, base, lines, per=16):
        p = self.p
        with self.cap() as c:
            p(f"s_mul_i32 {sU[7]}, {srh}, {per}")
            p(f"s_add_u32 {sU[7]}, {sU[7]}, {sh}")
            p(f"s_lshl_b32 {sU[7]}, {sU[7]}, 2")
            p(f"s_add_u32 {sU[7]}, {sU[7]}, {sw}")
            p(f"s_mul_i32 {sU[7]}, {sU[7]}, {lines * 128}")
            p(f"s_add_u32 {sU[7]}, {sU[7]}, {base}")
            assert lines < 32
            p(f"s_mov_b64 exec, {(1 << lines) - 1}")
            p(f"buffer_load_dword v10, v9, {SG}, {sU[7]} offen", "touch")
            p("s_mov_b64 exec, -1")
        return [c.ins]

    def startup(self):
        p = self.p
        p(f"s_getreg_b32 {sfast}, hwreg(HW_REG_XCC_ID, 0, 4)")
        self.wqkv_setup()
        self.pack_b_loads()
        self.pack_c_loads()
        self.pack_d_loads()
        nk0 = self.opt.get("nk0", 2)
        for u in range(nk0):
            p.add(self.wqkv_item(1, L_WK, f"g{u}"))
        p.wait_vm("x")
        p("s_waitcnt lgkmcnt(0)")
        self.consts()
        self.stamp("x_landed")
        for s in range(28):
            p(f"ds_read_b128 {V(64 + 4 * s)}, v{20 + (s & 3)} offset:{(s >> 2) * 4096}")
        for a in range(4):
            p(f"ds_read_b64 {A(56 + 2 * a, 2)}, v{24 + a}")
        for r in range(52, 56):
            p(f"v_mov_b32 v{r}, 0")
        with self.cap() as c:
            for i in range(112):
                p(f"v_dot2c_f32_bf16 v{52 + (i & 1)}, {sONES}, v{64 + i}")
                p(f"v_dot2c_f32_bf16 v{54 + (i & 1)}, v{64 + i}, v{64 + i}")
            p("v_add_f32 v52, v52, v53")
            p("v_add_f32 v54, v54, v55")
            self.both_halves("v52", "v54", None)
            self.stats_finish("v52", "v53", "v56", "v58")
            p("v_rsq_f32 v58, v58")
            p("v_mul_f32_e64 v56, -v56, v58")
            p("v_mov_b32 v59, v58")
            p("v_mov_b32 v57, v56")
            for i in range(0, 112 if not self.opt.get("noln") else 8, 2):
                t = 16 + 4 * ((i >> 1) & 1)
                for k in range(2):
                    p(f"v_lshlrev_b32 v{t + 2 * k}, 16, v{64 + i + k}")
                    p(f"v_and_b32 v{t + 2 * k + 1}, {sHI}, v{64 + i + k}")
                for k in range(2):
                    p(f"v_pk_fma_f32 {V(t + 2 * k, 2)}, {V(t + 2 * k, 2)}, v[58:59], v[56:57]")
                for k in range(2):
                    p(f"v_cvt_pk_bf16_f32 v{64 + i + k}, v{t + 2 * k}, v{t + 2 * k + 1}")
        main = groups(c.ins, 4)
        n = len(main)
        seq = []
        for u in range(7):
            if u >= nk0:
                seq.append(self.wqkv_item(1, L_WK, f"g{u}"))
            seq.append(self.wqkv_item(2, L_WV, f"g{u}"))
        nl = self.opt.get("nl", 8)
        self.kvrest = seq[nl:]
        with self.cap() as c1:
            self.kv_clear()
        packs = [c1.ins] + self.pack_d_items() + self.pack_b_items() + self.pack_c_items()
        with self.cap() as c2:
            p(f"s_mul_i32 {sT0}, {sh}, {28 * KB}")
            p(f"s_add_u32 {sT1}, {sT0}, {WS_PO - L_WO}")
            p(f"v_add_u32 v8, {sT1}, {vL16}")
        g0, g1 = n * self.opt.get("g0", 40) // 100, n * self.opt.get("g1", 70) // 100
        gb = n * self.opt.get("gb", 1) // 100
        with self.cap() as cb:
            p.wait_ds()
            p("s_barrier")
        p.add(spread(main, [([cb.ins], gb, gb), (seq[:nl], gb + 1, n * self.opt.get("gk", 98) // 100),
                            (packs + [c2.ins], max(g0, gb + 1), g1)]))
        self.stamp("ln_done")

    def phi(self, acc, out, tmp, scale=None, pk=None):
        p = self.p
        for r0 in range(0, 16, 2):
            rr = (r0, r0 + 1)
            a = {r: f"v{acc + r}" for r in rr}
            t = {r: f"v{tmp + (r & 3)}" for r in rr}
            a2, t2 = V(acc + r0, 2), V(tmp + (r0 & 3), 2)
            if pk is not None:
                k2 = V(pk, 2)
                if scale is None:
                    p(f"v_pk_add_f32 {a2}, {a2}, {k2} op_sel_hi:[1,0]")
                else:
                    sc, hi = scale(r0)
                    p(f"v_pk_fma_f32 {a2}, {a2}, {sc}, {k2} op_sel_hi:[1,{hi},0]")
                p(f"v_pk_mul_f32 {t2}, {a2}, {k2} op_sel:[0,1] op_sel_hi:[1,1]")
            else:
                for r in rr:
                    if scale is None:
                        p(f"v_add_f32 {a[r]}, {sEPS6}, {a[r]}")
                    else:
                        p(f"v_fma_f32 {a[r]}, {a[r]}, {scale(r)}, {sEPS6}")
                for r in rr:
                    p(f"v_mul_f32 {t[r]}, {sLOG2E}, {a[r]}")
            for r in rr:
                p(f"v_exp_f32 {t[r]}, {t[r]} clamp")
            for r in rr:
                p(f"v_max_f32 {a[r]}, {sEPS6}, {a[r]}")
            if pk is not None:
                p(f"v_pk_add_f32 {a2}, {a2}, {t2}")
            else:
                for r in rr:
                    p(f"v_add_f32 {a[r]}, {a[r]}, {t[r]}")
            p(f"v_cvt_pk_bf16_f32 v{out + (r0 >> 1)}, {a[r0]}, {a[r0 + 1]}")

    def v_pack(self):
        p = self.p
        for r in range(8):
            p(f"v_cvt_pk_bf16_f32 v{32 + r}, v{32 + 2 * r}, v{33 + 2 * r}")
        p(f"s_mov_b64 exec, {sM28}")
        for r in range(8):
            p(f"v_mov_b32 v{32 + r}, {sONES}")
        p("s_mov_b64 exec, -1")

    def kv_addrs(self, layer, a0, a1, a2):
        p = self.p
        p(f"s_lshl_b32 {sT0}, {sw}, 10")
        p(f"v_add_u32 {a0}, {sT0}, {vS16}")
        p(f"s_lshl_b32 {sT0}, {sw}, 12")
        p(f"v_add_u32 {a1}, {sT0}, {vS16}")
        p(f"v_lshlrev_b32 {a2}, 3, {vLane}")
        p(f"s_lshl_b32 {sT0}, {sh}, 15")
        p(f"s_lshl_b32 {sT1}, {sw}, 9")
        p(f"s_add_u32 {sT0}, {sT0}, {sT1}")
        p(f"s_add_u32 s6, {sT0}, {WS_KV + layer * KV_L}")
        p(f"s_lshl_b32 {sT1}, {sg}, 1")
        p(f"s_add_u32 {sT1}, {sT1}, {srh}")
        p(f"s_lshl_b32 {sT1}, {sT1}, 11")
        p(f"s_add_u32 s7, {sT1}, s6")

    def kv_publish(self, kvacc, a0, a1, a2):
        p = self.p
        p(f"{MFMA} {kvacc(0, 16)}, {V(16)}, {V(32)}, 0")
        p(f"{MFMA} {kvacc(0, 16)}, {V(20)}, {V(36)}, {kvacc(0, 16)}")
        for q in range(4):
            p(f"ds_write_b128 {a0}, {kvacc(4 * q, 4)} offset:{S_KVP + q * 4096}")
        p.wait_ds()
        p("s_barrier")
        for u in range(4):
            p(f"ds_read_b128 {V(32 + 4 * u)}, {a1} offset:{S_KVP + u * 1024}")
        for r in (0, 2):
            p(f"v_pk_add_f32 {V(32 + r, 2)}, {V(32 + r, 2)}, {V(36 + r, 2)}")
        for r in (0, 2):
            p(f"v_pk_add_f32 {V(40 + r, 2)}, {V(40 + r, 2)}, {V(44 + r, 2)}")
        for r in (0, 2):
            p(f"v_pk_add_f32 {V(32 + r, 2)}, {V(32 + r, 2)}, {V(40 + r, 2)}")
        p("v_cvt_pk_bf16_f32 v28, v32, v33")
        p("v_cvt_pk_bf16_f32 v29, v34, v35")
        p(f"buffer_store_dwordx2 v[28:29], {a2}, {SWS}, s7 offen sc1", "kvpub")

    def o_addrs(self):
        p = self.p
        p(f"s_mul_i32 {sT0}, {sh}, 7")
        p(f"v_lshrrev_b32 v16, 5, {vLane}")
        p(f"v_add_u32 v16, {sT0}, v16")
        p(f"v_and_b32 v17, 31, {vLane}")
        p("v_lshlrev_b32 v17, 4, v17")
        p("v_and_b32 v18, 1, v16")
        p("v_lshl_add_u32 v17, v18, 9, v17")
        p("v_lshrrev_b32 v16, 1, v16")
        for j in range(4):
            p(f"v_add_u32 v18, {j}, v16")
            p("v_and_b32 v19, 1, v18")
            p("v_lshrrev_b32 v18, 1, v18")
            p("v_lshl_add_u32 v18, v18, 10, v17")
            p(f"v_lshl_add_u32 v{56 + j}, v19, 3, v18")
        p(f"s_lshr_b32 {sT0}, {sw}, 1")
        p(f"s_lshl_b32 {sT0}, {sT0}, 10")
        p(f"s_and_b32 {sT1}, {sw}, 1")
        p(f"s_lshl_b32 {sT1}, {sT1}, 3")
        p(f"s_add_u32 {sT0}, {sT0}, {sT1}")
        p(f"v_add_u32 v60, {sT0}, {vS16}")
        p(f"s_lshl_b32 {sT0}, {stb}, 7")
        p(f"s_lshl_b32 {sT1}, {sh}, 2")
        p(f"s_add_u32 {sT0}, {sT0}, {sT1}")
        p(f"s_add_u32 s3, {sT0}, {G_FO}")

    def gather_items(self, G, a2):
        p = self.p
        items = []
        for u in range(0, 16, 2):
            with self.cap() as c:
                p(f"s_add_u32 {sT5}, {sg}, {u // 2}")
                p(f"s_and_b32 {sT5}, {sT5}, 7")
                p(f"s_lshl_b32 {sT5}, {sT5}, 12")
                p(f"s_add_u32 {sT5}, {sT5}, s6")
                p(f"buffer_load_dwordx2 {V(G + 2 * u, 2)}, {a2}, {SWS}, {sT5} offen sc1")
                p(f"buffer_load_dwordx2 {V(G + 2 * u + 2, 2)}, {a2}, {SWS}, {sT5} offen offset:2048 sc1")
            items.append(c.ins)
        return items

    def kv_finish(self, layer, G, a2):
        p = self.p

        def sums():
            for r in range(16, 21):
                p(f"v_mov_b32 v{r}, 0")
            for u in range(16):
                for k in range(2):
                    p(f"v_dot2c_f32_bf16 v{16 + 2 * k}, {sT3}, v{G + 2 * u + k}")
                    p(f"v_dot2c_f32_bf16 v{17 + 2 * k}, {sT4}, v{G + 2 * u + k}")
                p(f"v_max3_u32 v20, v20, v{G + 2 * u}, v{G + 2 * u + 1}")
            p("v_cmp_eq_u32 vcc, -1, v20")
        p(f"s_mov_b32 {sT3}, 0x3f80")
        p(f"s_mov_b32 {sT4}, 0x3f800000")
        lo, lb, lp = p.label("kvspin"), p.label("kvback"), p.label("kvloop")
        if self.diag:
            p(f"s_mov_b32 s{18 + layer}, 0")
        sums()
        p(f"s_cbranch_vccnz {lo}")
        p(f"{lb}:")
        with self.cap() as c:
            p(f"{lo}:")
            p(f"s_mov_b32 {sCnt}, {slim}")
            p(f"{lp}:")
            if self.diag:
                p(f"s_add_u32 s{18 + layer}, s{18 + layer}, 1")
            for it in self.gather_items(G, a2):
                p.add(it)
            p("s_waitcnt vmcnt(0)")
            sums()
            p(f"s_cbranch_vccz {lb}")
            p(f"s_sub_u32 {sCnt}, {sCnt}, 1")
            p(f"s_cmp_lg_u32 {sCnt}, 0")
            p(f"s_cbranch_scc1 {lp}")
            p(f"s_mov_b32 {slim}, 1")
            p(f"s_branch {lb}")
        self.tail.extend(c.ins)
        self.stamp(f"kv_seen{layer}")
        p("v_cvt_pk_bf16_f32 v20, v16, v17")
        p("v_cvt_pk_bf16_f32 v21, v18, v19")
        p(f"ds_write_b64 v60, v[20:21] offset:{S_KVS}")
        p.wait_vm("wo")
        p.wait_ds()
        p("s_barrier")
        p(f"ds_read_b128 {V(24)}, {vS16} offset:{S_KVS}")
        p(f"ds_read_b128 {V(28)}, {vS16} offset:{S_KVS + 1024}")
        p(f"{MFMA} {V(32, 16)}, {V(24)}, {V(48)}, 0")
        p(f"{MFMA} {V(32, 16)}, {V(28)}, {V(52)}, {V(32, 16)}")
        p("v_mov_b32 v16, v44")
        p("v_mov_b32 v17, v44")
        p("v_permlane32_swap_b32 v16, v17")
        p(f"v_add_f32 v16, {sEPS6}, v17")
        p("v_rcp_f32 v16, v16")
        for r in range(0, 16, 2):
            p(f"v_pk_mul_f32 {V(32 + r, 2)}, {V(32 + r, 2)}, v[16:17] op_sel_hi:[1,0]")
        for r in range(8):
            p(f"v_cvt_pk_bf16_f32 v{20 + r}, v{32 + 2 * r}, v{33 + 2 * r}")
        st = [f"buffer_store_dwordx2 {V(20 + 2 * j, 2)}, v{56 + j}, {SG}, {sHB} offen" for j in range(3)]
        st += ["s_mov_b32 exec_hi, 0", f"buffer_store_dwordx2 {V(26, 2)}, v59, {SG}, {sHB} offen",
               "s_mov_b64 exec, -1"]
        self.publish(st)
        self.flag("s3", 1 + layer)
        self.stamp(f"o_pub{layer}")

    def single_pass(self, acc, frag, nfrag, vaddr, off, second, areg, first, last, transposed, zero):
        rd = lambda s: self.trread(frag(s % nfrag, 0), frag(s % nfrag, 2), vaddr, off + s * KB, second)
        head = []
        for s in range(first, first + nfrag - 1):
            head += rd(s)
        main = []
        for s in range(first, last):
            w, a = frag(s % nfrag, None), areg(s)
            c = 0 if (zero and s == first) else acc
            g = [Ins(f"{MFMA} {acc}, {w}, {a}, {c}" if transposed else f"{MFMA} {acc}, {a}, {w}, {c}")]
            if s + nfrag - 1 < last:
                g += rd(s + nfrag - 1)
            main.append(g)
        return head, main

    def qkv0(self):
        p = self.p
        rd = []
        for s in range(28):
            f = (s % 3) * 8
            va = f"v{54 + ((s >> 2) & 1)}"
            pre = []
            if s % 4 == 0:
                pre = self.group_base(va, "v62") + [Pseudo("wait_vm", f"g{s >> 2}"), Ins("s_barrier")]
            rd.append((pre + self.trread(A(f, 2), A(f + 2, 2), va, L_WK + (s & 3) * KB, 256),
                       self.trread(A(f + 4, 2), A(f + 6, 2), va, L_WV + (s & 3) * KB, 256)))
        head = rd[0][0] + rd[0][1] + rd[1][0] + rd[1][1]
        main = []
        for s in range(28):
            f = (s % 3) * 8
            for k in range(2):
                acc = V(16 + 16 * k, 16)
                g = [Ins(f"{MFMA} {acc}, {V(64 + 4 * s)}, {A(f + 4 * k)}, {acc if s else 0}")]
                if s + 2 < 28:
                    g += rd[s + 2][k]
                main.append(g)
        with self.cap() as c:
            self.kv_addrs(0, "v60", "v61", "v11")
            p(f"s_cmp_ge_u32 {sh}, 14")
            p(f"s_cselect_b32 {sT2}, {sh}, {scb}")
            p(f"s_cselect_b32 {sT3}, 0, {7 * 2048}")
            p(f"s_lshl_b32 {sT2}, {sT2}, 11")
            p(f"v_and_b32 v56, 15, {vLane}")
            p(f"v_bfe_u32 v57, {vLane}, 4, 1")
            p(f"v_mul_u32_u24 v58, {sT3}, v57")
            p("v_lshl_add_u32 v58, v56, 7, v58")
            p(f"v_add_u32 v58, {sT2}, v58")
            p(f"s_lshl_b32 {sT2}, {sg}, 8")
            p("v_lshlrev_b32 v56, 11, v56")
            p("v_lshl_add_u32 v56, v57, 7, v56")
            p(f"v_add_u32 v56, {sT2}, v56")
            p(f"v_cndmask_b32 v58, v58, v56, {sMPAD}")
            p(f"s_mov_b32 {sU[3]}, {WS_RB}")
        setup = groups(c.ins[:13]) + [c.ins[13:16]] + groups(c.ins[16:])
        with self.cap() as c1:
            self.poll_load("v58", SWS, sU[3], 1, 59)
        with self.cap() as c2:
            p.wait_vm("pb")
            p("s_barrier")
            self.ready(WS_RB)
        gr = self.opt.get("gr", 8)
        self.touch = {0: [], 1: [], 2: [], 3: [], 4: []}
        self.touch[self.opt.get("to", 2)] += self.touch_items(G_O, 14)
        if self.opt.get("x0sc1", 0):
            self.touch[self.opt.get("tx", 2)] += self.touch_items(G_ST, 4)
        else:
            self.touch[self.opt.get("tx", 2)] += self.touch_items(G_X, 18)
        wq = [self.wqkv_item(0, L_WQ, "wq") for u in range(7)]
        gv = self.opt.get("gv", 5) * len(self.kvrest)
        gc = self.opt.get("gc", 56)
        early = gc < 56
        gw = self.opt.get("gw", 52)
        streams = [(self.kvrest, 0, gv), ([c2.ins], gr, gr), (wq + self.touch[1], max(gr, gv) + 1, gw),
                   (setup, gr + 2, gc - 14 if early else 50)]
        if early:
            streams.append(([c1.ins], gc - 12, gc - 12))
        slots = spread_groups(main, streams)
        p.add(head)
        for g in slots[:gc]:
            p.add(g)
        self.kvslots = slots[gc:]
        self.pollb = c1.ins
        if early:
            self.decide()
        else:
            self.kv0_rest()
            self.decide()

    def decide(self):
        p = self.p
        self.apoll_end("v58", SWS, sU[3], 1, 1, 59, 15)
        p(f"v_cmp_ne_u32 vcc, {sfast}, v59")
        p("s_cmp_eq_u32 vcc_hi, 0")
        self.stamp_flush()
        p("s_cbranch_scc1 L_slow" if self.force_slow else "s_cbranch_scc0 L_slow")

    def kv0_rest(self):
        p = self.p
        early = self.opt.get("gc", 56) < 56
        if early:
            self.stamp("rb_seen")
            self.bulk = self.w1_items()
            p.add(spread(self.kvslots, [(self.take(self.opt.get("bk", 8)), 0, len(self.kvslots) - 1)]))
        self.stamp("kv_gemm0")
        if not early:
            p.add(self.pollb)
        with self.cap() as c:
            p(f"v_mov_b32 v52, {sEPS6}")
            p(f"v_mov_b32 v53, {sLOG2E}")
            self.phi(16, 16, 48, pk=52)
        ep = groups(c.ins, 4)
        p.add(spread(ep, [(self.take(self.opt.get("be", 4)) if early else [], 0, len(ep) - 1)]))
        self.v_pack()
        self.kv_publish(lambda lo, k: A(24 + lo, k), "v60", "v61", "v11")
        self.stamp("kv_pub0")
        p("v_mov_b32 v13, v63")
        self.rot_offsets()
        p.wait_vm("wq")
        p("s_barrier")

    def take(self, n):
        out, self.bulk = self.bulk[:n], self.bulk[n:]
        return out

    def q0(self):
        p = self.p
        afrag = lambda i, lo: A(4 * i) if lo is None else A(4 * i + lo, 2)

        def rd(s):
            va = f"v{14 + ((s >> 2) & 1)}"
            pre = self.group_base(va, "v13") if s % 4 == 0 else []
            return pre + self.trread(afrag(s % 4, 0), afrag(s % 4, 2), va, (s & 3) * KB, 256)
        head = rd(0) + rd(1) + rd(2)
        main = []
        for s in range(28):
            g = [Ins(f"{MFMA} {V(48, 16)}, {afrag(s % 4, None)}, {V(64 + 4 * s)}, {V(48, 16) if s else 0}")]
            if s + 3 < 28:
                g += rd(s + 3)
            main.append(g)
        with self.cap() as c:
            p(f"v_mov_b32 v32, {sEPS6}")
            p(f"v_mov_b32 v33, {sLOG2E}")
            self.phi(48, 48, 36, pk=32)
            p(f"v_cndmask_b32 v54, v54, 0, {sMPAD}")
            p(f"v_cndmask_b32 v55, v55, 0, {sMPAD}")
            self.o_addrs()
        tail = groups(c.ins, 6)
        gg = self.opt.get("gg", 34)
        if self.opt.get("gc", 56) < 56:
            self.bulk = self.dma_items("v8", SPK, 84, 7, "wo", sU[5]) + self.bulk + self.w2_items()
        else:
            self.bulk = self.dma_items("v8", SPK, 84, 7, "wo", sU[5]) + self.w1_items() + self.w2_items()
        p.add(head)
        p.add(spread(main + tail, [(self.touch[2] + self.take(self.opt.get("bq", 13)), 0, gg - 1),
                                   (self.gather_items(64, "v11"), gg, gg + 8)]))
        for it in self.touch[3] + self.take(self.opt.get("b1", 8)):
            p.add(it)
        self.stamp("q_done0")

    def make_selector(self):
        p = self.p
        p("v_mov_b32 v15, 0")
        p("s_mov_b32 exec_lo, 0x00100001")
        p("s_mov_b32 exec_hi, 0x00100001")
        p(f"v_mov_b32 v15, {sONES}")
        p("s_mov_b64 exec, -1")
        for r in range(4):
            p(f"v_accvgpr_write_b32 a{32 + r}, v15")

    def colsum_qkv(self):
        p = self.p
        p(f"s_min_u32 {sU[0]}, {sw}, 2")
        p(f"s_mul_i32 {sU[0]}, {sU[0]}, {28 * KB}")
        p(f"v_add_u32 v60, {sU[0]}, {vTrA}")
        rd = lambda s: self.trread(V(32 + 4 * (s % 4), 2), V(34 + 4 * (s % 4), 2), "v60", s * KB)
        p.add(rd(0) + rd(1) + rd(2))
        self.make_selector()
        for s in range(28):
            p(f"{MFMA16} {A(36)}, {A(32)}, {V(32 + 4 * (s % 4))}, {A(36) if s else 0}")
            if s + 3 < 28:
                p.add(rd(s + 3))
        p(f"s_lshl_b32 {sU[0]}, {sw}, 9")
        p(f"v_lshlrev_b32 v60, 3, {vLane}")
        p(f"v_add_u32 v60, {L_S + S_STAT}, v60")
        p(f"v_add_u32 v61, {sU[0]}, v60")
        p("v_accvgpr_read_b32 v40, a36")
        self.split_words("v40", "v42", "v43", "v41", False, False)
        p("ds_write_b64 v61, v[42:43]")

    def colsum_qkv_fetch(self):
        p = self.p
        p(f"v_lshlrev_b32 v13, 3, {vLane}")
        p(f"v_add_u32 v13, {L_S + S_STAT}, v13")
        p(f"ds_read_b64 {V(vCSQ + 2, 2)}, v13")
        p(f"ds_read_b64 {V(vCSQ + 4, 2)}, v13 offset:512")
        p(f"ds_read_b64 {V(vCSQ, 2)}, v13 offset:1024")

    def colsum_w1_items(self):
        p = self.p
        items = [[Ins(f"{MFMA16} {A(36)}, {A(32)}, {w1reg(s)}, {A(36) if s else 0}")] for s in range(28)]
        with self.cap() as c:
            p("v_accvgpr_read_b32 v62, a36")
            self.split_words("v62", f"v{vCS1}", f"v{vCS1 + 1}", "v63", False, False)
        items.append(c.ins)
        return items

    def qkv1(self):
        p = self.p
        p(f"v_min_u32 v13, 27, {vLane}")
        p("v_lshlrev_b32 v13, 2, v13")
        p(f"s_lshl_b32 {sT0}, {stb}, 7")
        p(f"s_add_u32 {sT0}, {sT0}, {G_FX}")
        WF = [152, 156, 160, 164, 168, 172]

        def wf(s, k):
            r = WF[3 * (s % 2) + k]
            if k == 2:
                return self.trread(V(r, 2), V(r + 2, 2), vTrB, s * KB)
            return self.trread(V(r, 2), V(r + 2, 2), vTrA, (L_WK, L_WV)[k] + s * KB)
        p.add(wf(0, 0) + wf(0, 1) + wf(0, 2))
        self.poll("v13", SG, sT0, 2)
        self.stamp("x2_seen")
        RING, NR = 96, 14

        def ld(s):
            q = sub()
            if s % 4 == 0:
                q(f"s_add_u32 s4, {sXB}, {s * KB}")
            q(f"buffer_load_dwordx4 {V(RING + 4 * (s % NR))}, {vL16}, {SG}, s4 offen offset:{(s % 4) * KB} sc1")
            return q.ins
        LEAD = self.opt.get("lead", 6)
        for s in range(LEAD):
            p.add(ld(s))
        stl = [[Ins(f"buffer_load_dwordx4 {V(64 + 4 * u)}, {vL16}, {SG}, {sSTB} offen offset:{u * KB} sc1")]
               for u in range(2)]
        with self.cap() as st:
            for i in range(2, 7):
                p(f"v_add_f32 v{64 + (i & 1)}, v{64 + (i & 1)}, v{64 + i}")
            p("v_add_f32 v64, v64, v65")
            self.stats_finish("v64", "v65", "v66", "v67")
            p("v_rsq_f32 v88, v67")
            self.split_words("v66", "v92", "v93", "v65", True, True)
            p("v_mov_b32 v94, 0")
            p("v_mov_b32 v95, 0")
            p("v_cvt_pk_bf16_f32 v80, v88, v88")
            p(f"v_and_b32 v64, {sHI}, v80")
            p("v_sub_f32 v64, v88, v64")
            p("v_cvt_pk_bf16_f32 v81, v64, v64")
            p(f"v_and_b32 v65, {sHI}, v81")
            p("v_sub_f32 v65, v64, v65")
            p("v_and_b32 v80, 0xffff, v80")
            p(f"v_and_or_b32 v80, v81, {sHI}, v80")
            p("v_cvt_pk_bf16_f32 v81, v65, 0")
            p("v_mov_b32 v82, 0")
            p("v_mov_b32 v83, 0")
            p(f"v_mov_b32 v84, {sONES}")
            p(f"v_cndmask_b32 v84, v84, 0, {sMPAD}")
            p("v_mov_b32 v85, v84")
            p("v_mov_b32 v86, 0")
            p("v_mov_b32 v87, 0")
            p(f"{MFMA} {V(64, 16)}, {V(80)}, {V(84)}, 0")
            self.kv_addrs(1, "v89", "v90", "v91")
            for m, dst in ((1, 80), (2, 84)):
                p(f"v_mov_b32 v{dst}, v{vCSQ + 2 * m}")
                p(f"v_mov_b32 v{dst + 1}, v{vCSQ + 2 * m + 1}")
        main = []
        for s in range(28):
            o = 3 * (s % 2)
            a = V(RING + 4 * (s % NR))
            nk = 3 if s < NR else 2
            nk2 = 3 if s + 1 < NR else 2
            for k in range(nk):
                acc = V(16 + 16 * k, 16)
                c = acc if s else 0
                g = [Ins(f"{MFMA} {acc}, {a}, {V(WF[o + k])}, {c}" if k < 2 else f"{MFMA} {acc}, {V(WF[o + k])}, {a}, {c}")]
                if s + 1 < 28 and k < nk2:
                    g += wf(s + 1, k)
                main.append(g)
        seq = [ld(s) for s in range(LEAD, 14)] + stl + [ld(s) for s in range(14, 28)]
        slots = []
        gpos = 0
        for i, it in enumerate(seq):
            s = i + LEAD - 2
            if s >= 14:
                gpos = max(gpos, 3 * (s - 14) + 2)
            slots.append(([it], gpos, gpos))
            gpos += 2
        p.add(spread(main, slots + [(groups(st.ins), 30, len(main) - 2)]))
        p(f"{MFMA} {V(16, 16)}, {V(92)}, {V(80)}, {V(16, 16)}")
        p(f"{MFMA} {V(32, 16)}, {V(92)}, {V(84)}, {V(32, 16)}")
        self.stamp("kv_gemm1")
        vfrag = lambda i, lo: V(152 + 4 * i) if lo is None else V(152 + 4 * i + lo, 2)
        head, main = self.single_pass(V(48, 16), vfrag, 4, vTrB, 0, 512, lambda s: V(RING + 4 * (s % NR)),
                                      NR, 28, True, False)
        p.add(head)
        p(f"v_mov_b32 v172, {sEPS6}")
        p(f"v_mov_b32 v173, {sLOG2E}")
        p(f"v_mov_b32 v80, v{vCSQ}")
        p(f"v_mov_b32 v81, v{vCSQ + 1}")
        self.phi(16, 16, 168, lambda r: (V(64 + r, 2), 1), pk=172)
        for r in range(0, 16, 2):
            p(f"v_pk_mul_f32 {V(32 + r, 2)}, {V(32 + r, 2)}, {V(64 + r, 2)}")
        self.v_pack()
        self.kv_publish(lambda lo, k: V(64 + lo, k), "v89", "v90", "v91")
        self.stamp("kv_pub1")
        main.append([Ins(f"{MFMA} {V(48, 16)}, {V(80)}, {V(92)}, {V(48, 16)}")])
        with self.cap() as c:
            self.phi(48, 48, 168, lambda r: (V(88, 2), 0), pk=172)
            p(f"v_cndmask_b32 v54, v54, 0, {sMPAD}")
            p(f"v_cndmask_b32 v55, v55, 0, {sMPAD}")
            self.o_addrs()
        tail = groups(c.ins, 6)
        if not self.opt.get("probe", 0):
            gg = self.opt.get("gg1", 31)
            p.add(spread(main + tail, [(self.gather_items(96, "v91"), gg, gg + 8)]))
            self.stamp("q_done1")
            return
        with self.cap() as c1:
            p(f"v_min_u32 v174, 15, {vLane}")
            p("v_lshlrev_b32 v174, 11, v174")
            p(f"buffer_load_dword v175, v174, {SWS}, s6 offen offset:508 sc1")
        pg, nt = self.opt.get("pg", 10), self.opt.get("pt", 8)
        p.add(spread(main + tail[:nt], [([c1.ins], pg, pg)]))
        lo, lb, lp, ld = p.label("early"), p.label("gathering"), p.label("probe"), p.label("probed")
        p("v_cmp_eq_u32 vcc, -1, v175")
        p(f"s_cbranch_vccnz {lo}")
        p.add(spread(tail[nt:], [(self.gather_items(96, "v91"), 0, 8)]))
        p(f"{lb}:")
        with self.cap() as c:
            p(f"{lo}:")
            p("s_nop 7")
            for it in tail[nt:]:
                p.add(it)
            p(f"s_mov_b32 {sCnt}, {slim}")
            p(f"{lp}:")
            p(f"buffer_load_dword v175, v174, {SWS}, s6 offen offset:508 sc1")
            p("s_waitcnt vmcnt(0)")
            p("v_cmp_eq_u32 vcc, -1, v175")
            p(f"s_cbranch_vccz {ld}")
            p(f"s_sub_u32 {sCnt}, {sCnt}, 1")
            p(f"s_cmp_lg_u32 {sCnt}, 0")
            p(f"s_cbranch_scc1 {lp}")
            p(f"s_mov_b32 {slim}, 1")
            p(f"{ld}:")
            for it in self.gather_items(96, "v91"):
                p.add(it)
            p(f"s_branch {lb}")
        self.tail.extend(c.ins)
        self.stamp("q_done1")

    def wo_phase(self, layer, pre=None, streams=()):
        p = self.p
        RES = 104
        p(f"s_lshl_b32 s5, {sh}, 11")
        p(f"s_add_u32 s5, s5, {sXB}")
        if layer == 1:
            p(f"buffer_load_dwordx4 {V(RES)}, {vL16}, {SG}, s5 offen sc1")
            p(f"buffer_load_dwordx4 {V(RES + 4)}, {vL16}, {SG}, s5 offen offset:1024 sc1")
        else:
            for r in range(8):
                p(f"v_accvgpr_read_b32 v{RES + r}, a{56 + r}")
        p(f"s_lshr_b32 {sT1}, {sh}, 2")
        p(f"s_lshl_b32 {sT1}, {sT1}, 10")
        p(f"s_and_b32 {sT2}, {sh}, 3")
        p(f"s_lshl_b32 {sT2}, {sT2}, 2")
        p(f"s_add_u32 {sT1}, {sT1}, {sT2}")
        p(f"s_add_u32 s6, {sT1}, {sSTB}")
        p(f"s_lshl_b32 {sT0}, {stb}, 7")
        p(f"s_lshl_b32 {sT1}, {sh}, 3")
        p(f"s_add_u32 {sT1}, {sT0}, {sT1}")
        p(f"s_add_u32 s7, {sT1}, {G_FX}")
        p(f"s_add_u32 {sT0}, {sT0}, {G_FO}")
        p(f"v_and_b32 v13, 15, {vLane}")
        p("v_lshlrev_b32 v13, 2, v13")
        rd = [self.trread(V(48 + (s % 3) * 4, 2), V(50 + (s % 3) * 4, 2), vTrB, (L_WO - L_WQ) + s * KB)
              for s in range(28)]
        p.add(rd[0] + rd[1])
        if pre:
            pre()
        self.poll("v13", SG, sT0, 1 + layer)
        self.stamp(f"o_seen{layer}")
        RING = 64
        LEAD = self.opt.get("leadwo", 8)

        def ld(s):
            q = sub()
            if s % 4 == 0:
                q(f"s_add_u32 s4, {sHB}, {s * KB}")
            q(f"buffer_load_dwordx4 {V(RING + 4 * s)}, {vL16}, {SG}, s4 offen offset:{(s % 4) * KB} sc1")
            return q.ins
        for s in range(LEAD):
            p.add(ld(s))
            p(f"v_lshlrev_b32 v{16 + 2 * s}, 16, v{RES + s}" if s < 8 else "; -")
            p(f"v_and_b32 v{17 + 2 * s}, {sHI}, v{RES + s}" if s < 8 else "; -")
        assert LEAD >= 8
        main = []
        for s in range(28):
            g = [Ins(f"{MFMA} {V(16, 16)}, {V(48 + (s % 3) * 4)}, {V(RING + 4 * s)}, {V(16, 16)}")]
            if s + LEAD < 28:
                g += ld(s + LEAD)
            if s + 2 < 28:
                g += rd[s + 2]
            main.append(g)
        streams = list(streams)
        if self.opt.get("wsu", 1):
            with self.cap() as c:
                self.ffn_setup(layer)
            streams.append((groups(c.ins), 13, 26))
        p.add(spread(main, streams))
        self.stamp(f"wo_gemm{layer}")
        for r in range(8):
            p(f"v_cvt_pk_bf16_f32 v{32 + r}, v{16 + 2 * r}, v{17 + 2 * r}")
        self.publish([f"buffer_store_dwordx4 {V(32)}, {vL16}, {SG}, s5 offen",
                      f"buffer_store_dwordx4 {V(36)}, {vL16}, {SG}, s5 offen offset:1024"],
                     always_sc1=(layer == 0 and self.opt.get("x0sc1", 0)))
        p("v_pk_mul_f32 v[42:43], v[16:17], v[16:17]")
        for r in range(2, 16, 2):
            p(f"v_pk_fma_f32 v[42:43], {V(16 + r, 2)}, {V(16 + r, 2)}, v[42:43]")
            p(f"v_pk_add_f32 v[16:17], v[16:17], {V(16 + r, 2)}")
        p("v_add_f32 v40, v16, v17")
        p("v_add_f32 v42, v42, v43")
        self.both_halves("v40", "v42", None)
        self.publish([f"buffer_store_dword v40, {vL16}, {SG}, s6 offen"])
        self.flag("s7", 1 + 2 * layer, 2)
        self.stamp(f"x1_pub{layer}")

    def rot_offsets(self):
        p = self.p
        for i in range(7):
            if self.opt.get("rot", 0):
                p(f"s_add_u32 s{8 + i}, {scb}, {i}")
                p(f"s_cmp_ge_u32 s{8 + i}, 7")
                p(f"s_cselect_b32 s15, 7, 0")
                p(f"s_sub_u32 s{8 + i}, s{8 + i}, s15")
                p(f"s_lshl_b32 s{8 + i}, s{8 + i}, 14")
            else:
                p(f"s_mov_b32 s{8 + i}, {i * 16 * KB}")

    def w2_items(self):
        p = self.p
        items = []
        order = list(range(8, 28)) + list(range(8))
        for i, j in enumerate(order):
            for ch in range(2):
                with self.cap() as c:
                    if i == 0 and ch == 0:
                        p(f"s_mul_i32 s25, {scb}, {224 * KB}")
                        p(f"s_lshl_b32 s26, {sw}, 12")
                        p(f"s_add_u32 s25, s25, s26")
                        p(f"s_add_u32 s25, s25, {WS_P2}")
                        p(f"s_and_b32 s26, {srq}, 1")
                        p(f"s_lshl_b32 s26, s26, 14")
                        p(f"s_sub_u32 s27, s25, s26")
                        p(f"s_add_u32 s27, s27, {16 * KB}")
                        p(f"s_add_u32 s25, s25, s26")
                    if j % 2 == 0 and ch == 0:
                        i2 = j >> 1
                        p(f"s_lshl_b32 s26, s{8 + i2 % 7}, 1")
                        p(f"s_add_u32 s26, s26, {'s25' if i2 < 7 else 's27'}")
                    p(f"buffer_load_dwordx4 {w2reg(j, ch)}, {vL16}, {SPK}, s26 offen offset:{(j & 1) * 2048 + ch * 1024} sc1",
                      "w2")
                items.append(c.ins)
        return items

    def ffn_setup(self, layer):
        p = self.p
        p(f"v_and_b32 v13, 15, {vLane}")
        p("v_min_u32 v13, 13, v13")
        p("v_lshlrev_b32 v13, 3, v13")
        p(f"v_lshrrev_b32 v14, 4, {vLane}")
        p("v_lshl_add_u32 v107, v14, 7, v13")
        p(f"s_mul_i32 {sT0}, {srh}, {112 * KB}")
        big = layer == 1 and self.opt.get("big", 1)
        LB = 0 if big else L_S
        p(f"s_add_u32 {sT0}, {sT0}, {G_X - LB}")
        p(f"s_and_b32 s0, {sh}, 1")
        p(f"s_mul_i32 s16, s0, {28 * KB}")
        p(f"s_add_u32 {sT0}, {sT0}, s16")
        p(f"s_lshl_b32 s16, s16, 1")
        p(f"v_add_u32 v110, {sT0}, {vL16}")
        p(f"s_lshl_b32 s15, {sw}, 10")
        p(f"s_add_u32 s15, s15, {LB}")
        p(f"s_lshl_b32 {sT0}, {sh}, 13")
        p(f"s_lshl_b32 {sT1}, {sw}, 11")
        p(f"s_add_u32 s3, {sT0}, {sT1}")
        p(f"s_mul_i32 {sT0}, {srh}, {4 * 112 * KB}")
        p(f"s_add_u32 s3, s3, {sT0}")
        p(f"s_lshl_b32 {sT0}, {srh}, 10")
        p(f"s_lshl_b32 {sT1}, {sw}, 6")
        p(f"s_add_u32 {sT0}, {sT0}, {sT1}")
        p(f"s_lshl_b32 {sT1}, {sh}, 2")
        p(f"s_add_u32 {sT0}, {sT0}, {sT1}")
        p(f"s_add_u32 s2, {sT0}, {G_FH}")
        p(f"s_mul_i32 {sT0}, s0, {2 * 112 * KB}")
        p(f"s_sub_u32 s17, s3, {sT0}")
        p(f"s_add_u32 s3, s3, {sT0}")
        p(f"s_lshl_b32 {sT0}, s0, 9")
        p(f"s_sub_u32 s1, s2, {sT0}")
        p(f"s_add_u32 s2, s2, {sT0}")
        p(f"v_mov_b32 v84, v{vCS1}")
        p(f"v_mov_b32 v85, v{vCS1 + 1}")
        for r in (86, 87, 90, 91):
            p(f"v_mov_b32 v{r}, 0")
        p(f"v_and_b32 v108, 31, {vLane}")
        p("v_lshlrev_b32 v108, 4, v108")
        p(f"v_add_u32 v108, {L_S + S_STAT}, v108")
        p(f"s_and_b32 {sT0}, {sxs}, 3")
        p(f"s_lshl_b32 {sT0}, {sT0}, 9")
        p(f"s_lshl_b32 {sT1}, s0, 9")
        p(f"s_xor_b32 {sT0}, {sT0}, {sT1}")
        p(f"v_add_u32 v109, {sT0}, v108")
        self.ffn2_setup(layer)

    def ffn(self, layer, pre=None, extra=None):
        p = self.p
        big = layer == 1 and self.opt.get("big", 1)
        if not self.opt.get("wsu", 1):
            self.ffn_setup(layer)
        if big:
            p(f"v_add_u32 {vTrB}, {56 * KB}, {vL16}")
        p.wait_ds()
        p("s_barrier")
        if pre:
            pre()
        p(f"s_lshl_b32 {sT0}, {srh}, 9")
        p(f"s_add_u32 {sT0}, {sT0}, {G_FX}")
        self.poll("v107", SG, sT0, 1 + 2 * layer, 2)
        self.stamp(f"x1_seen{layer}")

        Q, P = (28, 2) if big else (10, 2)

        def quad(k):
            q = sub()
            if k % Q == 0:
                q("s_mov_b32 m0, s15")
                if k:
                    q(f"v_add_u32 v110, {Q * 4 * KB}, v110")
            else:
                q(f"s_add_u32 m0, m0, {4 * KB}")
            if k in (7, 21):
                q("v_subrev_u32 v110, s16, v110")
            if k == 14:
                q("v_add_u32 v110, s16, v110")
            q(f"buffer_load_dwordx4 v110, {SG}, m0 offen sc1 lds", f"c{k // P}")
            return q.ins
        for k in range(4):
            p.add(quad(k))
        stl = [[Ins(f"buffer_load_dwordx4 {V(112 + 4 * u)}, {vL16}, {SG}, {sSTB} offen offset:{u * KB} sc1")]
               for u in range(4)]
        with self.cap() as st:
            for i in range(2, 14):
                p(f"v_add_f32 v{112 + (i & 1)}, v{112 + (i & 1)}, v{112 + i}")
            p("v_add_f32 v112, v112, v113")
            self.stats_finish("v112", "v113", "v114", "v115")
            self.split_words("v114", "v116", "v117", "v113", True, True)
            p("v_rsq_f32 v118, v115")
            p("v_sqrt_f32 v119, v115")
            p(f"v_mul_f32_e64 v118, -v118, {sLOG2E}")
            p("ds_write_b128 v109, v[116:119]", "stw")
        XF, NX, D = 48, 5, 4
        def rdx(n):
            base, off = (vS16, n % (4 * Q)) if not big else ((vL16, n) if n < 56 else (vTrB, n - 56))
            return Ins(f"ds_read_b128 {V(XF + 4 * (n % NX))}, {base} offset:{off * KB}", f"x{n}")
        BIGB = {1: 1, 2: 2, 3: 4, 5: 7, 8: 10, 11: 13}

        def boundary(j):
            q = sub()
            if big and j:
                if j not in BIGB:
                    return []
                q.wait_vm(f"c{BIGB[j]}")
            else:
                q.wait_vm(f"c{j}")
            if j == 3:
                q.wait_ds("stw")
            q("s_barrier")
            return q.ins
        p.add(quad(4))
        p.add(quad(5))
        p.add(boundary(0))
        p.add([rdx(n) for n in range(D)])
        main = []
        pos = {}
        for n in range(112):
            o, s = divmod(n, 28)
            acc = V(16 + 16 * (o & 1), 16)
            g = []
            if n % 2 == 0:
                g.append(Pseudo("wait_ds", f"x{n + 1}"))
            g.append(Ins(f"{MFMA} {acc}, {w1reg(s)}, {V(XF + 4 * (n % NX))}, {acc if s else 0}"))
            m = n + D
            if m < 112:
                if m % 8 == 0:
                    g += boundary(m // 8)
                qd = quad(m // 4 + 6) if (m % 4 == 1 and m >= 8 and m // 4 + 6 < 28) else []
                if big:
                    kq = 8 + (n - 9) // 2
                    qd = quad(kq) if (n >= 9 and n % 2 == 1 and kq < 28) else []
                g += qd[:-1] + [rdx(m)] + qd[-1:]
                if m == 24:
                    g += [Ins(f"ds_read_b128 {V(68 + 4 * k)}, v108 offset:{k * 512}") for k in range(4)]
            if s == 24:
                g += [Ins(f"v_mov_b32 v88, v{68 + 4 * o}"), Ins(f"v_mov_b32 v89, v{69 + 4 * o}")]
            pos[n] = len(main)
            main.append(g)
            if s == 27:
                main.append([Ins(f"{MFMA} {acc}, {V(84)}, {V(88)}, {acc}")])

        hsc1 = self.opt.get("h0sc1", 1) if layer == 0 else self.opt.get("h1sc1", 1)

        def epilogue(o):
            tb = ((o & 1) << 1) | (o >> 1)
            acc = 16 + 16 * (o & 1)
            c1, sd = f"v{70 + 4 * o}", f"v{71 + 4 * o}"
            pk = o == 3 and hsc1 and self.opt.get("pk3", 1)
            with self.cap() as c:
                for r0 in range(0, 16, 4) if pk else ():
                    cs = V(70 + 4 * o, 2)
                    for k in (0, 2):
                        p(f"v_pk_mul_f32 {V(92 + k, 2)}, {V(acc + r0 + k, 2)}, {cs} op_sel_hi:[1,0]")
                    for k in range(4):
                        p(f"v_exp_f32 v{92 + k}, v{92 + k}")
                    for k in (0, 2):
                        p(f"v_pk_fma_f32 {V(92 + k, 2)}, {V(92 + k, 2)}, {cs}, {cs} op_sel:[0,1,1] op_sel_hi:[1,1,1]")
                    for k in range(4):
                        p(f"v_rcp_f32 v{92 + k}, v{92 + k}")
                    for k in (0, 2):
                        p(f"v_pk_mul_f32 {V(acc + r0 + k, 2)}, {V(acc + r0 + k, 2)}, {V(92 + k, 2)}")
                    for k in (0, 2):
                        p(f"v_cvt_pk_bf16_f32 v{96 + ((r0 + k) >> 1)}, v{acc + r0 + k}, v{acc + r0 + k + 1}")
                for r0 in range(0, 16, 2) if not pk else ():
                    rr = (r0, r0 + 1)
                    t = {r: f"v{92 + (r & 3)}" for r in rr}
                    a = {r: f"v{acc + r}" for r in rr}
                    for r in rr:
                        p(f"v_mul_f32 {t[r]}, {a[r]}, {c1}")
                    for r in rr:
                        p(f"v_exp_f32 {t[r]}, {t[r]}")
                    for r in rr:
                        p(f"v_fma_f32 {t[r]}, {t[r]}, {sd}, {sd}")
                    for r in rr:
                        p(f"v_rcp_f32 {t[r]}, {t[r]}")
                    for r in rr:
                        p(f"v_mul_f32 {a[r]}, {a[r]}, {t[r]}")
                    p(f"v_cvt_pk_bf16_f32 v{96 + (r0 >> 1)}, {a[r0]}, {a[r0 + 1]}")
            items = groups(c.ins)
            with self.cap() as c:
                p(f"s_add_u32 {sT0}, {'s17' if o & 1 else 's3'}, {tb * 112 * KB}")
                nt = {0: "", 1: " nt", 2: " sc0", 3: " sc0 nt"}[self.opt.get("hnt", 0)] if self.fast else ""
                self.publish([f"buffer_store_dwordx4 {V(96)}, {vL16}, {SG}, {sT0} offen{nt}",
                              f"buffer_store_dwordx4 {V(100)}, {vL16}, {SG}, {sT0} offen offset:1024{nt}"], f"h{o}",
                             always_sc1=hsc1)
            items.append(c.ins)
            with self.cap() as c:
                p(f"s_add_u32 {sT1}, {'s1' if o & 1 else 's2'}, {tb * 256}")
                self.flag(sT1, 1 + layer, wait=f"h{o}", st=sT2)
            return items, c.ins
        streams = [([quad(6), quad(7)], 0, 3), (stl[:2], 1, 4), (stl[2:], 6, 8)]
        eps = [epilogue(o) for o in range(4)]
        E = self.opt.get("epend", 27)
        F = self.opt.get("fsc1", 14) if hsc1 else self.opt.get("fpl", 6)
        Es = [E, self.opt.get("e1", E), E]
        Fs = [F, F - (E - Es[1])]
        flex = [(eps[o][0], pos[28 * (o + 1)] + 2, pos[28 * (o + 1) + Es[o]]) for o in range(3)]
        flex.append((groups(st.ins), self.opt.get("gs", 11), 19))
        if not big and hsc1 and self.opt.get("stq", 0):
            for o in range(2):
                n1 = 28 * (o + 1) + E
                while n1 % 8 != 1:
                    n1 -= 1
                flex[o] = (eps[o][0][:-1], pos[28 * (o + 1)] + 2, pos[n1] - 1)
                streams.append(([eps[o][0][-1]], pos[n1], pos[n1]))
        if not self.opt.get("flex", 1):
            streams += flex
            flex = []
        for o in range(2):
            g = pos[28 * (o + 2) + Fs[o]]
            streams.append(([eps[o][1]], g, g))
        self.hl = self.h_loads()
        pa, pb = self.h_poll(0, layer), self.h_poll(1, layer)
        LAG = self.opt.get("lag", 7)
        if self.opt.get("ord", 0):
            for o, pl in ((1, pa), (2, pb)):
                items, a, b = flex[o]
                flex[o] = (items[:-1], a, b - 1)
                streams.append(([pl[0], items[-1]], b, b))
            GA = pos[56 + Es[1]]
            self.pb = [[], pb[1]]
        else:
            GA = pos[56 + F + self.opt.get("fda", 12)]
            streams.insert(0, ([pa[0]], GA, GA))
            self.pb = pb
        streams.append(([pa[1]], GA + LAG, GA + LAG))
        first = max(GA + LAG + 1, pos[84 + self.opt.get("h0", 0)])
        n0 = min(14, (pos[111] - first) // 2 + 1)
        streams.append((self.hl[:n0], first, pos[111] - 1))
        self.n0 = n0
        if extra:
            streams += extra(pos)
        if self.opt.get("fine3") and layer == 1:
            woven = spread2(main, streams, flex)
            k = 0
            for x in woven:
                p.add([x])
                if x.kind == "mfma":
                    k += 1
                    if k >= 58 and (k - 58) % 7 == 0:
                        self.stamp(f"n{k}")
        elif self.opt.get("fine"):
            self.stamp(f"f1_first{layer}")
            woven = spread2(main, streams, flex)
            k = 0
            for x in woven:
                p.add([x])
                if x.kind == "mfma":
                    k += 1
                    if k % 29 == 0 and k < 116:
                        self.stamp(f"f1_o{k // 29 - 1}_{layer}")
        else:
            p.add(spread2(main, streams, flex))
        self.stamp(f"ffn1_mfma{layer}")
        self.ffn2(layer, eps[3][0], eps[2][1], eps[3][1], F)

    def ffn2_setup(self, layer):
        p = self.p
        p(f"s_mul_i32 {sU[3]}, {srq}, {2 * 112 * KB}")
        p(f"s_lshl_b32 {sT3}, {sw}, 11")
        p(f"s_add_u32 {sU[3]}, {sU[3]}, {sT3}")
        p(f"s_lshl_b32 {sU[4]}, {srq}, 9")
        p(f"s_lshl_b32 {sT3}, {sw}, 6")
        p(f"s_add_u32 {sU[4]}, {sU[4]}, {sT3}")
        p(f"s_add_u32 {sU[4]}, {sU[4]}, {G_FH}")
        p(f"v_min_u32 v104, 6, {vLane}")
        p("v_lshlrev_b32 v104, 3, v104")
        p(f"s_and_b32 {sT3}, {srq}, 1")
        p(f"s_lshl_b32 {sT4}, {sT3}, 2")
        p(f"s_add_u32 {sU[4]}, {sU[4]}, {sT4}")
        p(f"s_lshl_b32 {sT4}, {sT3}, 13")
        p(f"s_sub_u32 {sU[8]}, {sU[3]}, {sT4}")
        p(f"s_add_u32 {sU[8]}, {sU[8]}, {8 * KB}")
        p(f"s_add_u32 {sU[3]}, {sU[3]}, {sT4}")
        p(f"s_lshr_b32 {sT3}, {srq}, 1")
        p(f"s_lshl_b32 {sT3}, {sT3}, 2")
        p(f"s_and_b32 {sT4}, {srq}, 1")
        p(f"s_add_u32 {sT3}, {sT3}, {sT4}")
        p(f"s_mul_i32 {sU[5]}, {sT3}, {28 * KB}")
        p(f"s_lshl_b32 {sT3}, {scb}, 12")
        p(f"s_lshl_b32 {sT4}, {sw}, 7")
        p(f"s_add_u32 {sT3}, {sT3}, {sT4}")
        p(f"s_add_u32 {sU[5]}, {sU[5]}, {sT3}")
        p(f"s_add_u32 {sU[5]}, {sU[5]}, {G_X}")
        if layer == 0:
            p(f"s_mul_i32 {sU[6]}, {srq}, {14 * KB}")
            p(f"s_lshr_b32 {sT3}, {scb}, 2")
            p(f"s_lshl_b32 {sT3}, {sT3}, 10")
            p(f"s_add_u32 {sU[6]}, {sU[6]}, {sT3}")
            p(f"s_and_b32 {sT3}, {scb}, 3")
            p(f"s_lshl_b32 {sT3}, {sT3}, 2")
            p(f"s_add_u32 {sT3}, {sT3}, {sT4}")
            p(f"s_add_u32 {sU[6]}, {sU[6]}, {sT3}")
            p(f"s_add_u32 {sU[6]}, {sU[6]}, {G_ST}")
            p(f"s_lshl_b32 {sT3}, {srq}, 8")
            p(f"s_lshl_b32 {sT4}, {scb}, 4")
            p(f"s_add_u32 {sT3}, {sT3}, {sT4}")
            p(f"s_lshl_b32 {sT4}, {sw}, 2")
            p(f"s_add_u32 {sT3}, {sT3}, {sT4}")
            p(f"s_add_u32 {sU[7]}, {sT3}, {G_FX}")
        else:
            p(f"s_lshl_b32 {sT3}, {sg}, 2")
            p(f"s_add_u32 {sT3}, {sT3}, {srq}")
            p(f"s_lshl_b32 {sT3}, {sT3}, 3")
            p(f"s_add_u32 {sT3}, {sT3}, {sw}")
            p(f"s_mul_i32 {sT3}, {sT3}, {8 * 896}")
            p(f"s_lshl_b32 {sT4}, {scb}, 7")
            p(f"s_add_u32 {sU[7]}, {sT3}, {sT4}")
        p(f"s_lshl_b32 {sT3}, {sw}, 13")
        p(f"v_add_u32 v105, {sT3}, {vS16}")
        if layer == 0:
            p(f"v_lshrrev_b32 v14, 5, {vLane}")
            p("v_lshlrev_b32 v14, 7, v14")
            p("v_xor_b32 v105, v105, v14")
            p("v_mov_b32 v106, v105")
        else:
            p("v_xor_b32 v106, 0x80, v105")
        p(f"v_and_b32 v13, 7, {vLane}")
        p("v_lshlrev_b32 v13, 4, v13")
        p(f"s_lshl_b32 {sT3}, {sw}, 7")
        p(f"v_add_u32 v13, {sT3}, v13")
        p(f"v_bfe_u32 v14, {vLane}, 3, 1")
        p("v_lshlrev_b32 v15, 7, v14")
        p("v_xor_b32 v13, v13, v15")
        p(f"v_lshl_add_u32 v13, v14, {9 if layer == 0 else 10}, v13")
        p(f"v_lshrrev_b32 v14, 4, {vLane}")
        p("v_lshl_add_u32 v13, v14, 11, v13")
        p(f"v_add_u32 v111, {L_S}, v13")

    def hreg(self, n):
        if not self.opt.get("xr", 0):
            return 112 + 4 * (n % 16), n - 16
        if n < 16:
            return 112 + 4 * n, -1
        if n < 20:
            return 64 + 4 * (n - 16), -1
        return 112 + 4 * ((n - 4) % 16), (n - 20 if n < 36 else n - 16)

    def h_loads(self):
        out = []
        for n in range(56):
            th, j = divmod(n, 28)
            q = sub()
            i = j >> 1
            if j % 14 == 0:
                q(f"s_add_u32 {sU[9]}, {sU[3] if i < 7 else sU[8]}, {th * 112 * KB}")
                q(f"v_add_u32 v15, {sU[9]}, {vL16}")
            q(f"buffer_load_dwordx4 {V(self.hreg(n)[0])}, v15, {SG}, s{8 + i % 7} offen offset:{(j % 2) * KB} sc1")
            out.append(q.ins)
        return out

    def h_poll(self, grp, layer):
        p = self.p
        st, tmp = (sU[0], sU[1])[grp & 1], (109, 13)[grp & 1]
        with self.cap() as c1:
            if grp & 1:
                p(f"s_xor_b32 {st}, {sU[4]}, 4")
                if grp >> 1:
                    p(f"s_add_u32 {st}, {st}, 256")
            else:
                p(f"s_add_u32 {st}, {sU[4]}, {(grp >> 1) * 256}")
            self.poll_load("v104", SG, st, 1, tmp)
        with self.cap() as c2:
            self.apoll_end("v104", SG, st, 1 + layer, 1, tmp)
        return c1.ins, c2.ins

    def ffn2(self, layer, ep3, flag2, flag3, F):
        p = self.p
        ACC = ((16, 48), (32, 64))
        lds = self.hl
        k0 = min(len(ep3), self.opt.get("k0", 89 if F > 10 else 20))
        LEAD = self.opt.get("leadh", 14)
        early_b = self.opt.get("ord", 0) and k0 > 60
        npre = self.opt.get("npre", 20 if self.opt.get("xr", 0) else 16) if early_b else 14
        pre = lds[self.n0:14]
        if self.pb[0]:
            pre = [self.pb[0]] + pre
        if early_b:
            p.add(spread(ep3[:k0], [(pre, 0, 40), ([self.pb[1]] + lds[14:npre], 44, k0 - 4)]))
            self.pb = []
        elif k0:
            p.add(spread(ep3[:k0], [(pre, 0, max(0, k0 - 4))]))
        else:
            for it in pre:
                p.add(it)
        ep3 = ep3[k0:]
        issued = npre
        RES = (88, 84)
        TL = self.opt.get("tl", 10)

        with self.cap() as su:
            p(f"v_and_b32 v107, 7, {vLane}")
            p(f"v_bfe_u32 v110, {vLane}, 3, 1")
            if layer == 0:
                p(f"v_lshrrev_b32 v108, 4, {vLane}")
                p("v_lshlrev_b32 v108, 9, v108")
                p("v_lshl_add_u32 v108, v107, 4, v108")
                p("v_lshlrev_b32 v107, 4, v107")
                p("v_lshl_add_u32 v107, v110, 9, v107")
            else:
                p("v_mul_u32_u24 v108, 896, v107")
                p("v_lshlrev_b32 v107, 4, v107")
                p("v_lshl_add_u32 v107, v110, 3, v107")
                p(f"v_lshrrev_b32 v110, 3, {vLane}")
                p("v_lshl_add_u32 v108, v110, 4, v108")
            p(f"v_lshrrev_b32 v110, 4, {vLane}")
            p("v_lshl_add_u32 v107, v110, 10, v107")

        def resid(th):
            q = sub()
            q(f"s_add_u32 {sT3}, {sU[5]}, {th * 2 * 28 * KB}")
            if layer == 0:
                q(f"buffer_load_dwordx4 {V(RES[th])}, v107, {SG}, {sT3} offen sc1")
            else:
                q(f"buffer_load_dwordx2 {V(RES[th], 2)}, v107, {SG}, {sT3} offen sc1")
                q(f"buffer_load_dwordx2 {V(RES[th] + 2, 2)}, v107, {SG}, {sT3} offen offset:512 sc1")
            return q.ins

        def mm():
            main = []
            for n in range(56):
                th, j = divmod(n, 28)
                b = V(self.hreg(n)[0])
                for ch in range(2):
                    acc = V(ACC[th][ch], 16)
                    main.append([Ins(f"{MFMA} {acc}, {w2reg(j, ch)}, {b}, {acc if j else 0}")])
            tail = main[112 - 2 * TL:]
            return main[:112 - 2 * TL] + tail[0::2] + tail[1::2]

        def reduce(th, woven):
            area = th * 16 * KB
            a0, a1 = ACC[th]
            quad = [a0, a0 + 4, a0 + 8, a0 + 12, a1, a1 + 4, a1 + 8, a1 + 12]
            T = 92
            items = []
            with self.cap() as c:
                for k in range(8):
                    p(f"ds_write_b128 v{105 + (k & 1)}, {V(quad[k])} offset:{area + k * KB}")
                for r in range(4):
                    p(f"v_lshlrev_b32 v{T + 2 * r}, 16, v{RES[th] + r}")
                    p(f"v_and_b32 v{T + 2 * r + 1}, {sHI}, v{RES[th] + r}")
            items += groups(c.ins)
            with self.cap() as c:
                p.wait_ds()
                p("s_barrier")
                for u in range(4):
                    for k in range(2):
                        p(f"ds_read_b128 {V(quad[2 * u + k])}, v111 offset:{area + u * 8 * KB + k * (KB if layer == 0 else 512)}")
            items += groups(c.ins)
            with self.cap() as c:
                for u in range(4):
                    for k in range(2):
                        if woven:
                            for r in range(4):
                                p(f"v_add_f32 v{T + 4 * k + r}, v{T + 4 * k + r}, v{quad[2 * u + k] + r}")
                        else:
                            for r in (0, 2):
                                p(f"v_pk_add_f32 {V(T + 4 * k + r, 2)}, {V(T + 4 * k + r, 2)}, {V(quad[2 * u + k] + r, 2)}")
                for r in range(4):
                    p(f"v_cvt_pk_bf16_f32 v{80 + r}, v{T + 2 * r}, v{T + 2 * r + 1}")
            items += groups(c.ins)
            if layer == 1:
                with self.cap() as c:
                    p(f"s_add_u32 {sT3}, {sU[7]}, {th * 32 * 896}")
                    p(f"buffer_store_dwordx4 {V(80)}, v108, {SOUT}, {sT3} offen {'sc1' if self.opt.get('outsc1', 1) else ''}")
                items.append(c.ins)
                return items, []
            with self.cap() as c:
                p(f"s_add_u32 {sT4}, {sU[5]}, {th * 2 * 28 * KB}")
                self.publish([f"buffer_store_dwordx4 {V(80)}, v107, {SG}, {sT4} offen"], f"x{th}")
            items.append(c.ins)
            with self.cap() as c:
                p(f"v_add_f32 v100, v{T}, v{T + 1}")
                p(f"v_mul_f32 v101, v{T}, v{T}")
                p(f"v_fmac_f32 v101, v{T + 1}, v{T + 1}")
                for r in range(2, 8):
                    p(f"v_add_f32 v100, v100, v{T + r}")
                    p(f"v_fmac_f32 v101, v{T + r}, v{T + r}")
                p("v_add_f32_dpp v100, v100, v100 row_ror:8 row_mask:0xf bank_mask:0xf")
                p("v_add_f32_dpp v101, v101, v101 row_ror:8 row_mask:0xf bank_mask:0xf")
                p("v_permlane16_swap_b32 v100, v101")
                p("v_add_f32 v100, v100, v101")
                p("v_mov_b32 v101, v100")
                p("v_permlane32_swap_b32 v100, v101")
                p("v_add_f32 v100, v100, v101")
            items += groups(c.ins)
            with self.cap() as c:
                p(f"s_add_u32 {sT3}, {sU[6]}, {th * 7 * KB}")
                self.publish(["s_mov_b64 exec, 0x00ff00ff", f"buffer_store_dword v100, v108, {SG}, {sT3} offen",
                              "s_mov_b64 exec, -1"], f"x{th}")
            items.append(c.ins)
            with self.cap() as c:
                p(f"s_add_u32 {sT3}, {sU[7]}, {th * 128}")
                self.flag(sT3, 2, wait=f"x{th}", tmp=102, st=sT4)
            return items, c.ins
        E3 = max(4, len(ep3) * self.opt.get("e3", 24) // 89)
        F2 = self.opt.get("f2", 4 if F > 10 else max(0, F - 6))
        F3 = self.opt.get("f3", E3 + (20 if F > 10 else 16))
        LAG = self.opt.get("lag2", 14)
        pc, pd = self.h_poll(2, layer), self.h_poll(3, layer)
        seen = {0: -1, 1: self.opt.get("gb2", 6) if self.pb else -1}
        GC = F2 + self.opt.get("fd2", 18)
        seen[2] = GC + LAG
        GD = max(F3 + self.opt.get("fd2", 18), seen[2] + 1)
        seen[3] = GD + LAG
        streams = []
        if self.pb:
            streams.append(([self.pb[1]], seen[1], seen[1]))
        streams += [([pc[0]], GC, GC), ([pc[1]], seen[2], seen[2]), ([pd[0]], GD, GD), ([pd[1]], seen[3], seen[3])]
        g = 0.0
        for n in range(issued, 56):
            free = 2 * self.hreg(n)[1] + 1
            g = max(g, free, 2 * (n - LEAD) + 1, seen[n // 14])
            use = 2 * n if n < 56 - TL else 112 - 2 * TL + (n - (56 - TL))
            g = min(g, use - 2 * self.opt.get("minlead", 4) + 1)
            assert g >= seen[n // 14] and g >= free, (n, g)
            streams.append(([lds[n]], int(g), int(g)))
            g += self.opt.get("pace", 21) / 10
        bar = [Ins("s_barrier")]
        r0, f0 = reduce(0, True)
        r1, f1 = reduce(1, False)
        if layer == 1:
            go = max(self.opt.get("go", 106), int(g))
            streams.append(([r0[-1]], go, go))
            r0 = r0[:-1]
        if TL:
            streams.append((r1[8:16], 112 - TL - 4, 112 - TL - 1))
            streams.append((r1[:4], 112 - TL + 2, 111))
            r1 = r1[4:8] + r1[16:]
        streams += [([bar], 0, 0), (ep3, 1, E3), ([flag2], F2, F2), ([flag3], F3, F3),
                    (groups(su.ins) + [resid(0)], E3 + 1, E3 + 16), ([resid(1)], 56, 56), ([bar], 96, 96)]
        if self.opt.get("rflex", 1):
            streams += [(r0[:8], 58, 71), (r0[8:16], 59, 71), (r0[16:25], 73, 80), (r0[25:], 81, 97)]
        else:
            streams.append((r0, 57, 92))
        if f0:
            streams.append(([f0], 108, 108))
        woven = spread(mm(), streams)
        k = 0
        for x in woven:
            p.add([x])
            if x.kind == "mfma":
                k += 1
                if k == 56:
                    self.stamp(f"th0_done{layer}")
                elif self.opt.get("fine2") and layer == 1 and (k == 1 or k % 14 == 0) and k < 112:
                    self.stamp(f"m{k}")
        self.stamp(f"th1_done{layer}")
        for it in r1:
            p.add(it)
        p.add(f1)
        self.stamp(f"ffn2_done{layer}")

    def spare0(self):
        p = self.p
        if not self.opt.get("h0sc1", 1) or self.opt.get("htouch", 0):
            p(f"s_and_b32 {sT0}, {sh}, 1")
            p(f"s_lshl_b32 {sT0}, {sT0}, 2")
            p(f"s_add_u32 {sT0}, {sT0}, {sw}")
            p(f"s_mul_i32 {sT0}, {sT0}, {14 * KB}")
            p(f"s_mul_i32 {sT1}, {srh}, {4 * 112 * KB}")
            p(f"s_add_u32 {sT0}, {sT0}, {sT1}")
            p(f"v_lshlrev_b32 v64, 7, {vLane}")
            for tb in (0, 2, 1, 3):
                for off in (0, 6 * KB):
                    p(f"s_add_u32 {sT1}, {sT0}, {G_H + tb * 112 * KB + off}")
                    p(f"buffer_load_dword v65, v64, {SG}, {sT1} offen sc1")
        self.colsum_qkv()
        p.wait_ds()
        p("s_barrier")
        self.colsum_qkv_fetch()
        w2pre = self.opt.get("w2pre", 1)
        if w2pre:
            if w2pre == 2:
                p(f"v_min_u32 v16, 27, {vLane}")
                p("v_lshlrev_b32 v16, 2, v16")
                p(f"s_lshl_b32 {sT0}, {stb}, 7")
                p(f"s_add_u32 {sT0}, {sT0}, {G_FX}")
                self.poll("v16", SG, sT0, 1, sleep=2)
            p(f"s_and_b32 {sT0}, {sh}, 1")
            p(f"s_lshl_b32 {sT0}, {sT0}, 3")
            p(f"s_add_u32 {sT0}, {sT0}, {stb}")
            p(f"v_lshlrev_b32 v64, 7, {vLane}")
            for t in range(7):
                p(f"s_add_u32 {sT1}, {sT0}, {16 * t}")
                p(f"s_min_u32 {sT1}, {sT1}, 97")
                p(f"s_mul_i32 {sT2}, {sT1}, 147")
                p(f"s_lshr_b32 {sT2}, {sT2}, 10")
                p(f"s_mul_i32 {sT3}, {sT2}, 7")
                p(f"s_sub_u32 {sT1}, {sT1}, {sT3}")
                p(f"s_add_u32 {sT2}, {sT2}, 8")
                p(f"s_cmp_ge_u32 {sT2}, 14")
                p(f"s_cselect_b32 {sT3}, 14, 0")
                p(f"s_sub_u32 {sT2}, {sT2}, {sT3}")
                p(f"s_mul_i32 {sT1}, {sT1}, {224 * KB}")
                p(f"s_lshl_b32 {sT2}, {sT2}, 14")
                p(f"s_add_u32 {sT1}, {sT1}, {sT2}")
                p(f"s_add_u32 {sT1}, {sT1}, {WS_P2}")
                p(f"buffer_load_dword v65, v64, {SWS}, {sT1} offen sc1")
                p(f"s_add_u32 {sT1}, {sT1}, {8 * KB}")
                p(f"buffer_load_dword v65, v64, {SWS}, {sT1} offen sc1")
        if self.opt.get("nap", 0):
            p(f"v_min_u32 v16, 13, {vLane}")
            p("v_lshlrev_b32 v16, 2, v16")
            p(f"s_lshl_b32 {sT0}, {srh}, 10")
            p(f"s_add_u32 {sT0}, {sT0}, {G_FH + 3 * 256}")
            self.poll("v16", SG, sT0, 1, sleep=12)
        p("s_waitcnt vmcnt(0) lgkmcnt(0)")

    def spare1(self):
        p = self.p
        wb = self.opt.get("wb", 0)
        if not wb:
            return
        p(f"s_and_b32 {sT0}, {sh}, 1")
        p(f"s_or_b32 {sT0}, {sT0}, {srh}")
        p(f"s_or_b32 {sT0}, {sT0}, {sw}")
        p(f"s_cmp_lg_u32 {sT0}, 0")
        p(f"s_cbranch_scc1 L_fin{self.sfx}")
        if wb == 4:
            p(f"v_and_b32 v13, 15, {vLane}")
            p("v_min_u32 v13, 13, v13")
            p(f"v_bfe_u32 v14, {vLane}, 4, 1")
            p("v_lshl_add_u32 v13, v14, 5, v13")
            p("v_lshlrev_b32 v16, 2, v13")
            p(f"s_mov_b32 {sT0}, {G_FO + 64}")
            self.poll("v16", SG, sT0, 9)
            p("buffer_wbl2 sc1")
            p("s_waitcnt vmcnt(0)")
            return
        p(f"v_and_b32 v13, 15, {vLane}")
        p("v_min_u32 v13, 13, v13")
        p("v_lshlrev_b32 v13, 3, v13")
        p(f"v_lshrrev_b32 v14, 4, {vLane}")
        p("v_lshl_add_u32 v16, v14, 7, v13")
        p(f"s_mov_b32 {sT0}, {G_FX}")
        self.poll("v16", SG, sT0, 3, 2)
        p(f"s_mov_b32 {sT0}, {G_FX + 512}")
        self.poll("v16", SG, sT0, 3, 2)
        p("buffer_wbl2 sc1")
        p("s_waitcnt vmcnt(0)")
        if wb >= 2:
            p(f"v_and_b32 v13, 15, {vLane}")
            p("v_min_u32 v13, 13, v13")
            p("v_lshlrev_b32 v13, 2, v13")
            p(f"v_lshrrev_b32 v14, 4, {vLane}")
            p("v_lshl_add_u32 v16, v14, 6, v13")
            for tb in ((2, 3) if wb == 2 else (0, 2, 1, 3)):
                for half in range(2):
                    p(f"s_mov_b32 {sT0}, {G_FH + (4 * half + tb) * 256}")
                    self.poll("v16", SG, sT0, 2)
                p("buffer_wbl2 sc1")
                p("s_waitcnt vmcnt(0)")

    def finish(self):
        p = self.p
        p(f"s_or_b32 {sT0}, {sg}, {sh}")
        p(f"s_or_b32 {sT0}, {sT0}, {srh}")
        p(f"s_or_b32 {sT0}, {sT0}, {sw}")
        p(f"s_cmp_lg_u32 {sT0}, 0")
        p(f"s_cbranch_scc1 L_fin{self.sfx}")
        p(f"s_add_u32 {sT0}, {sE}, 64")
        p(f"v_mov_b32 v14, {sT0}")
        p("s_mov_b64 exec, 1")
        p(f"buffer_store_dword v14, {vL16}, {SWS}, 0 offen sc1")
        p("s_mov_b64 exec, -1")
        p(f"L_fin{self.sfx}:")
        if self.pad:
            p("s_waitcnt vmcnt(0)")
            if self.opt.get("amp") == "end":
                p("s_memrealtime s[94:95]")
            p("s_waitcnt lgkmcnt(0)")
            p("s_sub_u32 s94, s94, s96")
            p("s_mul_i32 s94, s94, 4")
            p("s_min_u32 s94, s94, 20000")
            p(f"s_add_u32 s94, s94, {self.pad}")
            p(f"L_pad{self.sfx}:")
            p("s_memrealtime s[98:99]")
            p("s_waitcnt lgkmcnt(0)")
            p("s_sub_u32 s98, s98, s96")
            p(f"s_cmp_lt_u32 s98, s94")
            p(f"s_cbranch_scc1 L_pad{self.sfx}")
        if self.diag:
            p("s_waitcnt vmcnt(0)")
            self.stamp("end")
            self.stamp_flush()
            p(f"s_lshl_b32 {sT0}, {srh}, 4")
            p(f"s_add_u32 {sT0}, {sT0}, {sh}")
            p(f"s_lshl_b32 {sT0}, {sT0}, 3")
            p(f"s_add_u32 {sT0}, {sT0}, {sg}")
            p(f"s_lshl_b32 {sT0}, {sT0}, 2")
            p(f"s_add_u32 {sT0}, {sT0}, {sw}")
            p(f"s_lshl_b32 {sT0}, {sT0}, 7")
            p(f"s_add_u32 {sT0}, {sT0}, {WS_DIAG}")
            p("s_mov_b64 exec, 1")
            for i in range(self.nstamp):
                p(f"v_mov_b32 v14, s{STAMP0 + i}")
                p(f"buffer_store_dword v14, {vL16}, {SWS}, {sT0} offen offset:{4 * i}")
            for k in range(2):
                p(f"v_mov_b32 v14, s{18 + k}")
                p(f"buffer_store_dword v14, {vL16}, {SWS}, {sT0} offen offset:{112 + 4 * k}")
            p(f"v_mov_b32 v14, {1 if self.fast else 0}")
            p(f"buffer_store_dword v14, {vL16}, {SWS}, {sT0} offen offset:120")
            p(f"v_mov_b32 v14, {slim}")
            p(f"buffer_store_dword v14, {vL16}, {SWS}, {sT0} offen offset:124")
            p("s_mov_b64 exec, -1")
        p("s_waitcnt vmcnt(0)")
        p("s_endpgm")

    def body(self):
        p = self.p
        x = self.sfx
        if self.opt.get("gc", 56) < 56:
            self.kv0_rest()
        self.q0()
        self.kv_finish(0, 64, "v11")
        self.stamp_flush()
        p(f"s_cmp_ge_u32 {sh}, 14")
        p(f"s_cbranch_scc1 L_spare0{x}")
        assert len(self.bulk) <= 84
        b2 = self.touch[4] + self.take(self.opt.get("b2", 8))

        def pre_wo0():
            for it in b2:
                p.add(it)
            self.colsum_qkv()
        n_before = min(28, 28 + 56 - len(self.bulk))
        cs1 = self.colsum_w1_items()
        b3 = self.take(self.opt.get("b3", 10))
        self.wo_phase(0, pre_wo0, [(cs1[:n_before], 0, 26), (b3, 20, 27)])
        b4 = self.take(max(self.opt.get("b4", 0), len(self.bulk) - 56))

        def pre_ffn0():
            self.colsum_qkv_fetch()
            for it in b4:
                p.add(it)
            for it in cs1[n_before:]:
                p.add(it)
            p(f"v_mov_b32 v84, v{vCS1}")
            p(f"v_mov_b32 v85, v{vCS1 + 1}")
            p.wait_ds()
            p("s_barrier")

        def extra0(pos):
            return [(self.take(100), self.opt.get("w2beg", 0), pos[self.opt.get("w2end", 108)])]
        self.ffn(0, pre_ffn0, extra0)
        p(f"L_layer1{x}:")
        p("s_waitcnt lgkmcnt(0)")
        self.qkv1()
        self.kv_finish(1, 96, "v91")
        p(f"s_cmp_ge_u32 {sh}, 14")
        p(f"s_cbranch_scc1 L_spare1{x}")
        self.wo_phase(1)
        self.ffn(1)
        self.finish()
        p(f"L_spare0{x}:")
        p("s_waitcnt vmcnt(0) lgkmcnt(0)")
        self.spare0()
        p(f"s_branch L_layer1{x}")
        p(f"L_spare1{x}:")
        p("s_waitcnt vmcnt(0) lgkmcnt(0)")
        self.spare1()
        p(f"s_branch L_fin{x}")
        p.add(self.tail)
        self.tail = []

    def build(self):
        p = self.p
        self.prologue()
        self.startup()
        self.qkv0()
        self.body()
        p("L_fastend:")
        p("L_slow:")
        p("s_waitcnt vmcnt(0) lgkmcnt(0)")
        p("s_nop 7")
        self.fast = False
        self.sfx = "_s"
        self.body()
        return finalize(p.ins)


HEADER = f"""; Two layers of (LayerNorm, linear attention, output projection, LayerNorm, SiLU FFN) in ONE persistent launch.
;
; LayerNorm: exact in front of the first GEMM; later folded into the GEMMs (mean as an extra K step against the
; @launch grid=(256,1,1) block=(256,1,1) lds={LDS_BYTES}
.amdgcn_target "amdgcn-amd-amdhsa--gfx950"
.text
.globl {NAME}_kernel
.p2align 8
.type {NAME}_kernel,@function
{NAME}_kernel:
"""
FOOTER = f"""
.section .rodata,"a"
.p2align 6
.amdhsa_kernel {NAME}_kernel
  .amdhsa_next_free_vgpr 512
  .amdhsa_next_free_sgpr 102
  .amdhsa_accum_offset 256
  .amdhsa_group_segment_fixed_size 0
  .amdhsa_kernarg_size 72
  .amdhsa_user_sgpr_count 2
  .amdhsa_user_sgpr_kernarg_segment_ptr 1
  .amdhsa_system_sgpr_workgroup_id_x 1
.end_amdhsa_kernel
"""


def generate(**kw):
    g = Gen(**kw)
    lines = g.build()
    return HEADER + "\n".join(lines) + FOOTER, g


if __name__ == "__main__":
    out = sys.argv[1] if len(sys.argv) > 1 else f"cdna_kernels/{NAME}.s"
    kw = {}
    for a in sys.argv[2:]:
        k, _, v = a.partition("=")
        kw[k] = (int(v) if v.lstrip('-').isdigit() else v) if v else True
    text, g = generate(**kw)
    open(out, "w").write(text)
    print("wrote", out, len(text), "bytes;", text.count("\n"), "lines")
```

```python
import sys, os
sys.path.insert(0, os.path.dirname(os.path.abspath(__file__)))
from asmlib import *

NAME = "interleave_layers__linear_attn_block__dense_activation_silu__prompt"
KB = 1024

WS_EPOCH = 0
WS_RA = 0x8000
WS_RB = 0x10000
WS_DIAG = 0x20000
WS_KV = 0x80000
KV_L = 0x80000
WS_PQ = 0x180000
WS_PO = WS_PQ + 16 * 28 * KB
WS_P1 = WS_PO + 14 * 28 * KB
WS_P2 = WS_P1 + 14 * 112 * KB
WS_G = 0x680000
assert WS_P2 + 7 * 224 * KB <= WS_G
OOB = 0x40000000
G_STRIDE = 0x160000
G_H = 0
G_O = 8 * 112 * KB
G_X = G_O + 8 * 28 * KB
G_ST = G_X + 8 * 28 * KB
G_FX = G_ST + 8 * 7 * KB
G_FO = G_FX + 1024
G_FH = G_FO + 1024
G_END = G_FH + 2048
assert G_END <= G_STRIDE
WS_BYTES = WS_G + 8 * G_STRIDE

L_WK, L_WV, L_WQ, L_WO, L_S = 0, 28 * KB, 56 * KB, 84 * KB, 112 * KB
L_XST = 48 * KB
S_KVP, S_KVS = 0, 16 * KB
S_CS = 18 * KB
S_STAT, S_TR = 42 * KB, 44 * KB
LDS_BYTES = 160 * KB

SX, SQ, SO, S1, S2, SOUT, SWS, SG = ("s[8:11]", "s[12:15]", "s[16:19]", "s[20:23]", "s[24:27]", "s[28:31]",
                                     "s[32:35]", "s[36:39]")
sE, sg, sh, srh, sw, sfast, srq, scb, stb, sxs, slim = ("s56", "s57", "s58", "s59", "s60", "s61", "s62", "s63",
                                                        "s64", "s65", "s66")
sT0, sT1, sT2, sT3, sT4, sT5 = "s40", "s41", "s42", "s43", "s44", "s45"
sCnt, sNeed = "s46", "s47"
sONES, sLOG2E, sEPS6, sHI = "s48", "s49", "s50", "s51"
sM28 = "s[52:53]"
sMPAD = "s[54:55]"
sHB, sXB, sSTB = "s67", "s68", "s69"
STAMP0 = 80
sU = [f"s{70 + i}" for i in range(10)]
SPK = "s[20:23]"

vLane, vL16, vTrA, vTrB = "v0", "v1", "v2", "v3"
vCS1 = 4
vCSQ = 6
vS16 = "v12"
vT0, vT1, vT2 = "v13", "v14", "v15"


def V(n, k=4):
    return f"v[{n}:{n + k - 1}]" if k > 1 else f"v{n}"


def A(n, k=4):
    return f"a[{n}:{n + k - 1}]" if k > 1 else f"a{n}"


def w1reg(s, lo=0, k=4):
    return A(224 + 4 * s + lo, k) if s < 8 else V(176 + 4 * (s - 8) + lo, k)


def w2reg(j, ch, lo=0, k=4):
    return A(8 * j + 4 * ch + lo, k)


MFMA = "v_mfma_f32_32x32x16_bf16"
MFMA16 = "v_mfma_f32_16x16x32_bf16"


class Capture:
    def __init__(self, g):
        self.g = g

    def __enter__(self):
        self.saved = self.g.p.ins
        self.g.p.ins = []
        self.ins = self.g.p.ins
        return self

    def __exit__(self, *a):
        self.g.p.ins = self.saved


class Gen:
    def __init__(self, diag=False, force_slow=False, pad=0, part=0, **opt):
        self.p = Prog()
        self.diag = diag
        self.force_slow = force_slow
        self.pad = pad
        self.part = part
        self.opt = opt
        self.nstamp = 0
        self.seen = 0
        self.stamp_names = []
        self.pending = False
        self.tail = []
        self.fast = True
        self.sfx = ""

    def cap(self):
        return Capture(self)

    def stamp(self, name, op="s_memrealtime"):
        if self.opt.get("amp") == name and self.fast:
            self.p("s_memrealtime s[94:95]")
        if not self.diag or not self.fast:
            return
        self.seen += 1
        lo = self.opt.get("from", 18 * self.part)
        if self.seen > 2 and not (lo <= self.seen - 3 < lo + 18):
            return
        self.stamp_flush()
        assert STAMP0 + self.nstamp < 100, "too many stamps"
        if self.opt.get("clk") and self.seen > 1:
            op = "s_memtime"
        self.p(f"{op} s[100:101]")
        self.stamp_names.append(name)
        self.nstamp += 1
        self.pending = True

    def stamp_flush(self):
        if self.diag and self.pending:
            self.p(f"s_mov_b32 s{STAMP0 + self.nstamp - 1}, s100")
            self.pending = False

    def publish(self, stores, tag="pub", always_sc1=False):
        for s in stores:
            self.p(s + (" sc1" if s.startswith("buffer_") and (always_sc1 or not self.fast) else ""), tag)

    def flag(self, soff, val, n=1, wait="pub", tmp=14, st=sT5):
        p = self.p
        p(f"s_add_u32 {st}, {sE}, {val}")
        p(f"v_mov_b32 v{tmp}, {st}")
        if n == 2:
            p(f"v_mov_b32 v{tmp + 1}, {st}")
        op = f"buffer_store_dword v{tmp}" if n == 1 else f"buffer_store_dwordx2 v[{tmp}:{tmp + 1}]"
        p.wait_vm(wait)
        self.publish(["s_mov_b64 exec, 1", f"{op}, {vL16}, {SG}, {soff} offen", "s_mov_b64 exec, -1"], "flag")

    def poll_load(self, vaddr, srd, soff, n, tmp):
        if n == 1:
            self.p(f"buffer_load_dword v{tmp}, {vaddr}, {srd}, {soff} offen sc1")
        else:
            self.p(f"buffer_load_dwordx2 v[{tmp}:{tmp + 1}], {vaddr}, {srd}, {soff} offen sc1")

    def poll_test(self, n, tmp, need, win=3):
        p = self.p
        p(f"v_subrev_u32 v{tmp}, {need}, v{tmp}")
        if n == 2:
            p(f"v_subrev_u32 v{tmp + 1}, {need}, v{tmp + 1}")
            p(f"v_or_b32 v{tmp}, v{tmp}, v{tmp + 1}")
        p(f"v_cmp_lt_u32 vcc, {win}, v{tmp}")

    def spin(self, vaddr, srd, soff, n, tmp, need, done, sleep=0, win=3):
        p = self.p
        lp = p.label("poll")
        p(f"s_mov_b32 {sCnt}, {slim}")
        p(f"{lp}:")
        self.poll_load(vaddr, srd, soff, n, tmp)
        p("s_waitcnt vmcnt(0)")
        self.poll_test(n, tmp, need, win)
        p(f"s_cbranch_vccz {done}")
        sleep = sleep or self.opt.get("slp", 0)
        if sleep:
            p(f"s_sleep {sleep}")
        p(f"s_sub_u32 {sCnt}, {sCnt}, 1")
        p(f"s_cmp_lg_u32 {sCnt}, 0")
        p(f"s_cbranch_scc1 {lp}")
        p(f"s_mov_b32 {slim}, 1")

    def poll(self, vaddr, srd, soff, need, n=1, tmp=14, sleep=0):
        p = self.p
        ld = p.label("polled")
        p(f"s_add_u32 {sNeed}, {sE}, {need}")
        self.spin(vaddr, srd, soff, n, tmp, sNeed, ld, sleep)
        p(f"{ld}:")

    def apoll_end(self, vaddr, srd, soff, need, n=1, tmp=14, win=3):
        p = self.p
        lo, lb = p.label("aspin"), p.label("aback")
        p(f"s_add_u32 {sNeed}, {sE}, {need}")
        self.poll_test(n, tmp, sNeed, win)
        p(f"s_cbranch_vccnz {lo}")
        p(f"{lb}:")
        with self.cap() as c:
            p(f"{lo}:")
            p("s_nop 4")
            self.spin(vaddr, srd, soff, n, tmp, sNeed, lb, 0, win)
            p(f"s_branch {lb}")
        self.tail.extend(c.ins)

    def trread(self, dst_lo, dst_hi, vaddr, off, second=512):
        return [Ins(f"ds_read_b64_tr_b16 {dst_lo}, {vaddr} offset:{off}"),
                Ins(f"ds_read_b64_tr_b16 {dst_hi}, {vaddr} offset:{off + second}")]

    def transpose_block(self, reg, aw, ar):
        return [Ins(f"ds_write_b128 {aw}, {reg(0, 4)}"),
                Ins(f"ds_read_b64_tr_b16 {reg(0, 2)}, {ar}"),
                Ins(f"ds_read_b64_tr_b16 {reg(2, 2)}, {ar} offset:512")]

    def tr_addrs(self, aw, ar):
        p = self.p
        p(f"s_lshl_b32 {sT0}, {sw}, 10")
        p(f"s_add_u32 {sT0}, {sT0}, {L_S + S_TR}")
        p(f"v_add_u32 {aw}, {sT0}, {vL16}")
        p(f"v_add_u32 {ar}, {sT0}, {vTrA}")

    def both_halves(self, s, q, tmp):
        p = self.p
        p(f"v_permlane32_swap_b32 {s}, {q}")
        p(f"v_add_f32 {s}, {s}, {q}")

    def stats_finish(self, t, u, mean, var):
        p = self.p
        p(f"v_mov_b32 {u}, {t}")
        p(f"v_permlane32_swap_b32 {t}, {u}")
        p(f"v_mul_f32 {mean}, 0x3b124925, {t}")
        p(f"v_mul_f32 {var}, 0x3b124925, {u}")
        p(f"v_fma_f32 {var}, -{mean}, {mean}, {var}")
        p(f"v_max_f32 {var}, 0, {var}")
        p(f"v_add_f32 {var}, 0x3727c5ac, {var}")

    def split_words(self, x, w0, w1, t, neg, xside):
        p = self.p
        s = "-" if neg else ""
        p(f"v_cvt_pk_bf16_f32 {w0}, {s}{x}, {s}{x}")
        p(f"v_and_b32 {t}, {sHI}, {w0}")
        p(f"v_sub_f32 {t}, {s}{x}, {t}" if not neg else f"v_sub_f32_e64 {t}, -{x}, {t}")
        if xside:
            p(f"v_and_b32 {w1}, 0xffff, {w0}")
            p(f"v_cvt_pk_bf16_f32 {t}, {t}, {t}")
            p(f"v_and_or_b32 {w0}, {t}, {sHI}, {w1}")
        else:
            p(f"v_cvt_pk_bf16_f32 {w1}, {t}, 0")

    def prologue(self):
        p = self.p
        p("s_cmp_lt_u32 s2, 256")
        p("s_cbranch_scc1 L_start")
        p("s_endpgm")
        p("L_start:")
        p("s_load_dwordx4 s[40:43], s[0:1], 0")
        p("s_load_dwordx2 s[52:53], s[0:1], 64")
        p("s_load_dwordx2 s[44:45], s[0:1], 16")
        p("s_load_dwordx4 s[48:51], s[0:1], 32")
        p("s_load_dwordx2 s[46:47], s[0:1], 48")
        self.stamp("realtime", "s_memrealtime")
        if self.pad:
            p("s_memrealtime s[96:97]")
            p("s_memrealtime s[94:95]")
        p("s_getpc_b64 s[6:7]")
        p("L_pc:")
        p("v_lshrrev_b32 v13, 6, v0")
        p(f"v_and_b32 {vLane}, 63, v0")
        p(f"v_readfirstlane_b32 {sw}, v13")
        p(f"s_and_b32 {sg}, s2, 7")
        p(f"s_lshr_b32 s3, s2, 3")
        p(f"s_lshl_b32 s4, s3, 2")
        p(f"s_add_u32 s4, s4, {sw}")
        p(f"s_lshl_b32 s4, s4, 9")
        p(f"v_lshlrev_b32 v9, 7, {vLane}")
        p("v_add_u32 v13, s4, v9")
        p("v_min_u32 v13, L_fastend-L_pc-4, v13")
        p("s_mov_b64 exec, 0xf")
        p("global_load_dword v10, v13, s[6:7]")
        p("s_mov_b64 exec, -1")
        if self.opt.get("remap", 1):
            order = [15, 2, 4, 6, 9, 11, 13, 3, 5, 10, 12, 1, 8, 0, 7, 14]
            tab = sum(hh << (4 * k) for k, hh in enumerate(order))
            p(f"s_mov_b32 s4, {tab & 0xffffffff:#x}")
            p(f"s_mov_b32 s5, {tab >> 32:#x}")
            p(f"s_and_b32 {srh}, s3, 1")
            p(f"s_lshr_b32 {sh}, s3, 1")
            p(f"s_lshl_b32 {sh}, {sh}, 2")
            p(f"s_lshr_b64 s[4:5], s[4:5], {sh}")
            p(f"s_and_b32 {sh}, s4, 15")
        else:
            p(f"s_and_b32 {sh}, s3, 15")
            p(f"s_lshr_b32 {srh}, s3, 4")
        p(f"s_lshl_b32 s2, {sg}, 1")
        p(f"s_add_u32 s2, s2, {srh}")
        p("s_lshl_b32 s3, s2, 2")
        p(f"s_add_u32 s3, s3, {sw}")
        p("s_min_u32 s5, s3, 55")
        p("s_cmp_ge_u32 s5, 28")
        p("s_cselect_b32 s4, 1, 0")
        p("s_cselect_b32 s6, 28, 0")
        p("s_sub_u32 s5, s5, s6")
        p(f"v_lshrrev_b32 v13, 2, {vLane}")
        p(f"v_and_b32 v15, 3, {vLane}")
        p("v_lshlrev_b32 v15, 4, v15")
        p("v_mul_u32_u24 v14, 2688, v13")
        p("v_add_u32 v6, v14, v15")
        p("v_mul_u32_u24 v14, 896, v13")
        p("v_add_u32 v7, v14, v15")
        p("v_mul_u32_u24 v14, 3584, v13")
        p("v_add_u32 v8, v14, v15")
        p(f"s_cmp_ge_u32 {sh}, 7")
        p(f"s_cselect_b32 s6, 1, 0")
        p(f"s_cselect_b32 s7, 7, 0")
        p(f"s_lshl_b32 {srq}, {srh}, 1")
        p(f"s_add_u32 {srq}, {srq}, s6")
        p(f"s_sub_u32 {scb}, {sh}, s7")
        p(f"s_lshl_b32 {stb}, {srh}, 2")
        p(f"s_and_b32 s6, {sw}, 1")
        p(f"s_lshl_b32 s6, s6, 1")
        p(f"s_lshr_b32 s7, {sw}, 1")
        p(f"s_or_b32 s6, s6, s7")
        p(f"s_add_u32 {sxs}, {stb}, s6")
        p(f"s_add_u32 {stb}, {stb}, {sw}")
        p(f"v_lshlrev_b32 {vL16}, 4, {vLane}")
        p(f"v_lshrrev_b32 v13, 3, {vLane}")
        p("v_mul_u32_u24 v14, 896, v13")
        p("v_lshrrev_b32 v13, 1, v13")
        p(f"v_and_b32 v15, 7, {vLane}")
        p("v_xor_b32 v13, v13, v15")
        p("v_lshl_add_u32 v16, v13, 4, v14")
        p("v_xor_b32 v13, 4, v13")
        p("v_lshl_add_u32 v17, v13, 4, v14")
        p(f"s_lshl_b32 {sU[0]}, {sg}, 3")
        p(f"s_add_u32 {sU[0]}, {sU[0]}, {stb}")
        p(f"s_mul_i32 {sU[0]}, {sU[0]}, {32 * 896}")
        p(f"s_mul_i32 {sU[1]}, {sw}, {28 * KB}")
        p(f"s_add_u32 {sU[1]}, {sU[1]}, {L_XST}")
        p(f"s_cmp_ge_u32 {sh}, 14")
        p(f"s_cselect_b32 {sU[2]}, 7, 0")
        p(f"s_sub_u32 {sU[2]}, {scb}, {sU[2]}")
        p(f"s_mul_i32 {sU[7]}, s2, 37")
        p(f"s_lshr_b32 {sU[7]}, {sU[7]}, 8")
        p(f"s_mul_i32 {sU[7]}, {sU[7]}, 7")
        p(f"s_sub_u32 {sU[6]}, s2, {sU[7]}")
        p(f"s_sub_i32 {sU[7]}, {sU[2]}, {sU[6]}")
        p(f"s_cmp_lt_i32 {sU[7]}, 0")
        p(f"s_cselect_b32 s6, 7, 0")
        p(f"s_add_i32 {sU[7]}, {sU[7]}, s6")
        p(f"s_mov_b32 s10, {2048 * 896}\ns_mov_b32 s11, 0x00020000")
        p(f"s_mov_b32 s14, {448 * 2688}\ns_mov_b32 s15, 0x00020000")
        p("s_waitcnt lgkmcnt(0)")
        self.stamp("start")
        p("s_mov_b32 s12, s42\ns_mov_b32 s13, s43")
        p("s_mov_b32 s8, s40\ns_mov_b32 s9, s41")
        p(f"s_load_dword {sE}, s[52:53], {WS_EPOCH}")
        for j in range(7):
            p(f"s_lshl_b32 {sU[3]}, {sU[2]}, 7")
            p(f"s_add_u32 {sU[3]}, {sU[3]}, {sU[0]}")
            p(f"s_lshl_b32 {sU[4]}, {sU[7]}, 12")
            p(f"s_add_u32 {sU[4]}, {sU[4]}, {sU[1]}")
            for b in range(4):
                p(f"s_add_u32 m0, {sU[4]}, {b * KB}")
                p(f"s_add_u32 {sU[5]}, {sU[3]}, {b * 8 * 896}")
                p(f"buffer_load_dwordx4 v{16 + (b & 1)}, {SX}, {sU[5]} offen lds", "x")
                if 4 * j + b + 1 == self.opt.get("xa", 4):
                    self.prologue2()
            if j < 6:
                p(f"s_add_u32 {sU[2]}, {sU[2]}, 1")
                p(f"s_cmp_eq_u32 {sU[2]}, 7")
                p(f"s_cselect_b32 {sU[2]}, 0, {sU[2]}")
                p(f"s_add_u32 {sU[7]}, {sU[7]}, 1")
                p(f"s_cmp_eq_u32 {sU[7]}, 7")
                p(f"s_cselect_b32 {sU[7]}, 0, {sU[7]}")

    def prologue2(self):
        p = self.p
        p(f"s_mul_i32 {sHB}, {stb}, {28 * KB}")
        p(f"s_add_u32 {sHB}, {sHB}, {G_O}")
        p(f"s_mul_i32 {sXB}, {sxs}, {28 * KB}")
        p(f"s_add_u32 {sXB}, {sXB}, {G_X}")
        p(f"s_mul_i32 {sSTB}, {stb}, {7 * KB}")
        p(f"s_add_u32 {sSTB}, {sSTB}, {G_ST}")
        p(f"s_mov_b32 {slim}, 40000")
        p(f"v_add_u32 {vS16}, {L_S}, {vL16}")
        p(f"v_and_b32 v13, 3, {vLane}")
        p("v_lshlrev_b32 v13, 3, v13")
        p(f"v_bfe_u32 v14, {vLane}, 4, 1")
        p("v_lshl_add_u32 v13, v14, 5, v13")
        p(f"v_bfe_u32 v14, {vLane}, 2, 2")
        p("v_lshl_add_u32 v13, v14, 6, v13")
        p(f"v_lshrrev_b32 v14, 5, {vLane}")
        p(f"v_lshl_add_u32 {vTrA}, v14, 8, v13")
        p(f"v_add_u32 {vTrB}, {L_WQ}, {vTrA}")
        p("v_lshl_add_u32 v62, v14, 9, v13")
        p(f"v_add_u32 v63, {L_WQ}, v62")
        p(f"v_and_b32 v13, 31, {vLane}")
        p("v_lshrrev_b32 v14, 3, v13")
        p("v_lshlrev_b32 v14, 10, v14")
        p("v_and_b32 v15, 7, v13")
        p("v_lshl_add_u32 v14, v15, 7, v14")
        p(f"v_add_u32 v14, {sU[1]}, v14")
        p("v_bfe_u32 v13, v13, 1, 3")
        p(f"v_lshrrev_b32 v15, 5, {vLane}")
        p("v_xor_b32 v13, v13, v15")
        for q in range(4):
            p(f"v_xor_b32 v15, {2 * q}, v13")
            p(f"v_lshl_add_u32 v{20 + q}, v15, 4, v14")
        p(f"v_lshrrev_b32 v15, 5, {vLane}")
        p("v_xor_b32 v13, v13, v15")
        p("v_lshl_add_u32 v14, v15, 3, v14")
        p(f"s_min_u32 s6, {sh}, 13")
        p("s_lshr_b32 s7, s6, 1")
        p(f"s_sub_i32 s7, s7, {sU[6]}")
        p("s_cmp_lt_i32 s7, 0")
        p(f"s_cselect_b32 {sU[8]}, 7, 0")
        p(f"s_add_i32 s7, s7, {sU[8]}")
        p("s_lshl_b32 s7, s7, 12")
        p("v_add_u32 v14, s7, v14")
        p("s_and_b32 s6, s6, 1")
        p("s_lshl_b32 s6, s6, 2")
        p("v_xor_b32 v13, s6, v13")
        for a in range(4):
            p(f"v_xor_b32 v15, {a}, v13")
            p(f"v_lshl_add_u32 v{24 + a}, v15, 4, v14")
        p(f"s_cmp_lt_u32 {sh}, 14")
        p(f"s_cselect_b32 s18, {448 * 448 * 2}, 0")
        p(f"s_cselect_b32 s22, {448 * 1792 * 2}, 0")
        p(f"s_cselect_b32 s26, {448 * 1792 * 2}, 0")
        for base, src, size in ((16, 44, None), (20, 48, None), (24, 50, None), (28, 46, 2048 * 896),
                                (32, 52, WS_BYTES)):
            p(f"s_mov_b32 s{base}, s{src}")
            p(f"s_mov_b32 s{base + 1}, s{src + 1}")
            if size is not None:
                p(f"s_mov_b32 s{base + 2}, {size}")
            p(f"s_mov_b32 s{base + 3}, 0x00020000")
        p(f"s_mul_i32 s6, {sg}, {G_STRIDE}")
        p(f"s_add_u32 s6, s6, {WS_G}")
        p("s_add_u32 s36, s52, s6")
        p("s_addc_u32 s37, s53, 0")
        p(f"s_mov_b32 s38, {G_STRIDE}")
        p("s_mov_b32 s39, 0x00020000")

    def kv_clear(self):
        p = self.p
        p(f"s_lshl_b32 {sT0}, {sh}, 15")
        p(f"s_lshl_b32 {sT1}, s3, 9")
        p(f"s_add_u32 {sT0}, {sT0}, {sT1}")
        p(f"s_add_u32 {sT0}, {sT0}, {WS_KV}")
        p(f"s_add_u32 {sT1}, {sT0}, {KV_L}")
        p("v_mov_b32 v36, -1\nv_mov_b32 v37, -1")
        p(f"v_lshlrev_b32 v11, 3, {vLane}")
        p(f"buffer_store_dwordx2 v[36:37], v11, {SWS}, {sT0} offen sc1", "pb")
        p(f"buffer_store_dwordx2 v[36:37], v11, {SWS}, {sT1} offen sc1", "pb")

    def wqkv_setup(self):
        p = self.p
        p(f"s_mul_i32 s0, {sh}, 56")
        p(f"s_mul_i32 s1, {sw}, {16 * 2688}")
        p("s_add_u32 s0, s0, s1")
        p(f"s_lshl_b32 s1, {sw}, 10")
        p(f"s_mov_b32 {sU[8]}, {sU[6]}")
        p(f"s_mov_b32 {sU[4]}, {sU[6]}")

    def wqkv_item(self, m, lbase, tag):
        p = self.p
        cnt = sU[8] if m == 2 else sU[6]
        with self.cap() as c:
            p(f"s_lshl_b32 {sU[7]}, {cnt}, 12")
            p(f"s_add_u32 {sU[7]}, {sU[7]}, s1")
            p(f"s_add_u32 m0, {sU[7]}, {lbase}")
            p(f"s_mul_i32 {sU[7]}, {cnt}, {64 * 2688}")
            p(f"s_add_u32 {sU[7]}, {sU[7]}, s0")
            if m:
                p(f"s_add_u32 {sU[7]}, {sU[7]}, {896 * m}")
            p(f"buffer_load_dwordx4 v6, {SQ}, {sU[7]} offen lds", tag)
            p(f"s_add_u32 {cnt}, {cnt}, 1")
            p(f"s_cmp_eq_u32 {cnt}, 7")
            p(f"s_cselect_b32 {cnt}, 0, {cnt}")
        return c.ins

    def group_base(self, dst, base):
        p = self.p
        with self.cap() as c:
            p(f"s_lshl_b32 {sT4}, {sU[4]}, 12")
            p(f"v_add_u32 {dst}, {sT4}, {base}")
            p(f"s_add_u32 {sU[4]}, {sU[4]}, 1")
            p(f"s_cmp_eq_u32 {sU[4]}, 7")
            p(f"s_cselect_b32 {sU[4]}, 0, {sU[4]}")
        return c.ins

    def consts(self):
        p = self.p
        p(f"s_mov_b32 {sONES}, 0x3f803f80")
        p(f"s_mov_b32 {sLOG2E}, 0x3fb8aa3b")
        p(f"s_mov_b32 {sEPS6}, 0x358637bd")
        p(f"s_mov_b32 {sHI}, 0xffff0000")
        p("s_mov_b32 s52, 0x10000000")
        p("s_mov_b32 s53, 0x10000000")
        p("s_mov_b32 s54, 0")
        p("s_mov_b32 s55, -1")

    def ready(self, base):
        p = self.p
        p(f"s_lshl_b32 {sT2}, {sh}, 4")
        p(f"s_add_u32 {sT2}, {sT2}, s2")
        p(f"s_lshl_b32 {sT2}, {sT2}, 7")
        p(f"s_add_u32 {sT2}, {sT2}, {base}")
        p(f"s_cmp_eq_u32 {sw}, 0")
        p(f"s_cselect_b32 {sT2}, {sT2}, {OOB}")
        p(f"s_add_u32 {sT5}, {sE}, {sfast}")
        p(f"s_add_u32 {sT5}, {sT5}, 1")
        p(f"v_mov_b32 v14, {sT5}")
        p("s_mov_b64 exec, 1")
        p(f"buffer_store_dword v14, {vL16}, {SWS}, {sT2} offen sc1")
        p("s_mov_b64 exec, -1")

    def pack_b_loads(self):
        p = self.p
        p(f"s_mul_i32 {sT0}, s5, {16 * 3584}")
        p(f"s_lshl_b32 {sT1}, {sh}, 8")
        p(f"s_add_u32 {sT0}, {sT0}, {sT1}")
        p(f"s_lshl_b32 {sT1}, s4, 7")
        p(f"s_add_u32 {sT0}, {sT0}, {sT1}")
        p(f"buffer_load_dwordx4 a[40:43], v8, {S1}, {sT0} offen")
        p(f"buffer_load_dwordx4 a[44:47], v8, {S1}, {sT0} offen offset:64")
        p(f"s_mul_i32 {sU[1]}, {sh}, 112")
        p(f"s_mul_i32 {sT1}, s4, 56")
        p(f"s_add_u32 {sU[1]}, {sU[1]}, {sT1}")
        p(f"s_add_u32 {sU[1]}, {sU[1]}, s5")
        p(f"s_lshl_b32 {sU[1]}, {sU[1]}, 10")
        p(f"s_add_u32 {sU[1]}, {sU[1]}, {WS_P1}")
        p(f"s_cmp_lt_u32 {sh}, 14")
        p(f"s_cselect_b32 s22, {WS_BYTES}, 0")
        p("s_mov_b32 s20, s32\ns_mov_b32 s21, s33")
        self.tr_addrs("v4", "v5")

    def pack_c_loads(self):
        p = self.p
        p(f"s_and_b32 {sU[5]}, {srq}, 1")
        p(f"s_lshl_b32 {sU[5]}, {sU[5]}, 6")
        p(f"s_add_u32 {sU[5]}, {sU[5]}, s3")
        p(f"s_mul_i32 {sU[0]}, {sU[5]}, {16 * 896}")
        p(f"s_lshl_b32 {sU[2]}, {scb}, 7")
        p(f"s_add_u32 {sU[0]}, {sU[0]}, {sU[2]}")
        p(f"s_mul_i32 {sU[2]}, {scb}, 112")
        p(f"s_add_u32 {sU[2]}, {sU[2]}, {sU[5]}")
        p(f"s_lshl_b32 {sU[2]}, {sU[2]}, 11")
        p(f"s_add_u32 {sU[2]}, {sU[2]}, {WS_P2}")
        p(f"s_cmp_lt_u32 {sU[5]}, 112")
        p(f"s_cselect_b32 {sU[0]}, {sU[0]}, {OOB}")
        p(f"s_cselect_b32 {sU[2]}, {sU[2]}, {OOB}")
        p(f"buffer_load_dwordx4 a[48:51], v7, {S2}, {sU[0]} offen")
        p(f"buffer_load_dwordx4 a[52:55], v7, {S2}, {sU[0]} offen offset:64")

    def pack_b_items(self):
        items = [self.transpose_block(lambda lo, k, r=r: A(r + lo, k), "v4", "v5") for r in (40, 44)]
        items.append([Ins(f"buffer_store_dwordx4 a[40:43], {vL16}, {SPK}, {sU[1]} offen sc1", "pb"),
                      Ins(f"s_add_u32 {sU[1]}, {sU[1]}, {28 * KB}")])
        items.append([Ins(f"buffer_store_dwordx4 a[44:47], {vL16}, {SPK}, {sU[1]} offen sc1", "pb")])
        return items

    def pack_c_items(self):
        items = [self.transpose_block(lambda lo, k, r=r: A(r + lo, k), "v4", "v5") for r in (48, 52)]
        items.append([Ins(f"buffer_store_dwordx4 a[48:51], {vL16}, {SPK}, {sU[2]} offen sc1", "pb")])
        items.append([Ins(f"buffer_store_dwordx4 a[52:55], {vL16}, {SPK}, {sU[2]} offen offset:1024 sc1", "pb")])
        return items

    def dma_items(self, vaddr, srd, first, count, tag, stm):
        p = self.p
        items = []
        for u in range(count):
            with self.cap() as c:
                if u == 0:
                    p(f"s_mul_i32 {stm}, {sw}, {count * KB}")
                if u % 4 == 0:
                    p(f"s_add_u32 m0, {stm}, {(first + u) * KB}")
                p(f"buffer_load_dwordx4 {vaddr}, {srd}, m0 offen offset:{(u % 4) * KB} sc1 lds", tag)
            items.append(c.ins)
        return items

    def w1_items(self):
        p = self.p
        items = []
        for s in range(28):
            with self.cap() as c:
                if s == 0:
                    p(f"s_lshl_b32 s24, {sh}, 2")
                    p(f"s_add_u32 s24, s24, {sw}")
                    p(f"s_mul_i32 s24, s24, {28 * KB}")
                    p(f"s_add_u32 s24, s24, {WS_P1}")
                elif s % 4 == 0:
                    p(f"s_add_u32 s24, s24, {4 * KB}")
                p(f"buffer_load_dwordx4 {w1reg(s)}, {vL16}, {SPK}, s24 offen offset:{(s % 4) * KB} sc1", "w1")
            items.append(c.ins)
        return items

    def pack_d_loads(self):
        p = self.p
        p(f"s_mul_i32 {sT2}, s5, {16 * 896}")
        p(f"s_lshl_b32 {sT1}, {sh}, 6")
        p(f"s_add_u32 {sT2}, {sT2}, {sT1}")
        p(f"s_mul_i32 {sT1}, {sh}, 28")
        p(f"s_add_u32 {sT1}, {sT1}, s5")
        p(f"s_lshl_b32 {sT1}, {sT1}, 10")
        p(f"s_add_u32 {sU[9]}, {sT1}, {WS_PO}")
        p("s_cmp_eq_u32 s4, 0")
        p(f"s_cselect_b32 {sT2}, {OOB}, {sT2}")
        p(f"s_cselect_b32 {sU[9]}, {OOB}, {sU[9]}")
        p(f"buffer_load_dwordx4 v[32:35], v7, {SO}, {sT2} offen")
        if self.opt.get("mall", 1):
            p(f"s_lshl_b32 {sT0}, {sh}, 6")
            p(f"s_add_u32 {sT0}, {sT0}, s3")
            p(f"s_lshr_b32 {sT1}, {sT0}, 1")
            p(f"s_mul_i32 {sT1}, {sT1}, 2688")
            p(f"s_and_b32 {sT0}, {sT0}, 1")
            p(f"s_mul_i32 {sT0}, {sT0}, 384")
            p(f"s_add_u32 {sT0}, {sT0}, {sT1}")
            p("s_mov_b64 exec, 0xf")
            p(f"buffer_load_dword v10, v9, {SQ}, {sT0} offen", "touch")
            p("s_mov_b64 exec, -1")

    def pack_d_items(self):
        return [[Ins(f"buffer_store_dwordx4 v[32:35], {vL16}, {SPK}, {sU[9]} offen sc1", "pb")]]

    def touch_items(self, base, lines, per=16):
        p = self.p
        with self.cap() as c:
            p(f"s_mul_i32 {sU[7]}, {srh}, {per}")
            p(f"s_add_u32 {sU[7]}, {sU[7]}, {sh}")
            p(f"s_lshl_b32 {sU[7]}, {sU[7]}, 2")
            p(f"s_add_u32 {sU[7]}, {sU[7]}, {sw}")
            p(f"s_mul_i32 {sU[7]}, {sU[7]}, {lines * 128}")
            p(f"s_add_u32 {sU[7]}, {sU[7]}, {base}")
            assert lines < 32
            p(f"s_mov_b64 exec, {(1 << lines) - 1}")
            p(f"buffer_load_dword v10, v9, {SG}, {sU[7]} offen", "touch")
            p("s_mov_b64 exec, -1")
        return [c.ins]

    def startup(self):
        p = self.p
        p(f"s_getreg_b32 {sfast}, hwreg(HW_REG_XCC_ID, 0, 4)")
        self.wqkv_setup()
        self.pack_b_loads()
        self.pack_c_loads()
        self.pack_d_loads()
        nk0 = self.opt.get("nk0", 2)
        for u in range(nk0):
            p.add(self.wqkv_item(1, L_WK, f"g{u}"))
        p.wait_vm("x")
        p("s_waitcnt lgkmcnt(0)")
        self.consts()
        self.stamp("x_landed")
        for s in range(28):
            p(f"ds_read_b128 {V(64 + 4 * s)}, v{20 + (s & 3)} offset:{(s >> 2) * 4096}")
        for a in range(4):
            p(f"ds_read_b64 {A(56 + 2 * a, 2)}, v{24 + a}")
        for r in range(52, 56):
            p(f"v_mov_b32 v{r}, 0")
        with self.cap() as c:
            for i in range(112):
                p(f"v_dot2c_f32_bf16 v{52 + (i & 1)}, {sONES}, v{64 + i}")
                p(f"v_dot2c_f32_bf16 v{54 + (i & 1)}, v{64 + i}, v{64 + i}")
            p("v_add_f32 v52, v52, v53")
            p("v_add_f32 v54, v54, v55")
            self.both_halves("v52", "v54", None)
            self.stats_finish("v52", "v53", "v56", "v58")
            p("v_rsq_f32 v58, v58")
            p("v_mul_f32_e64 v56, -v56, v58")
            p("v_mov_b32 v59, v58")
            p("v_mov_b32 v57, v56")
            for i in range(0, 112 if not self.opt.get("noln") else 8, 2):
                t = 16 + 4 * ((i >> 1) & 1)
                for k in range(2):
                    p(f"v_lshlrev_b32 v{t + 2 * k}, 16, v{64 + i + k}")
                    p(f"v_and_b32 v{t + 2 * k + 1}, {sHI}, v{64 + i + k}")
                for k in range(2):
                    p(f"v_pk_fma_f32 {V(t + 2 * k, 2)}, {V(t + 2 * k, 2)}, v[58:59], v[56:57]")
                for k in range(2):
                    p(f"v_cvt_pk_bf16_f32 v{64 + i + k}, v{t + 2 * k}, v{t + 2 * k + 1}")
        main = groups(c.ins, 4)
        n = len(main)
        seq = []
        for u in range(7):
            if u >= nk0:
                seq.append(self.wqkv_item(1, L_WK, f"g{u}"))
            seq.append(self.wqkv_item(2, L_WV, f"g{u}"))
        nl = self.opt.get("nl", 8)
        self.kvrest = seq[nl:]
        with self.cap() as c1:
            self.kv_clear()
        packs = [c1.ins] + self.pack_d_items() + self.pack_b_items() + self.pack_c_items()
        with self.cap() as c2:
            p(f"s_mul_i32 {sT0}, {sh}, {28 * KB}")
            p(f"s_add_u32 {sT1}, {sT0}, {WS_PO - L_WO}")
            p(f"v_add_u32 v8, {sT1}, {vL16}")
        g0, g1 = n * self.opt.get("g0", 40) // 100, n * self.opt.get("g1", 70) // 100
        gb = n * self.opt.get("gb", 1) // 100
        with self.cap() as cb:
            p.wait_ds()
            p("s_barrier")
        p.add(spread(main, [([cb.ins], gb, gb), (seq[:nl], gb + 1, n * self.opt.get("gk", 98) // 100),
                            (packs + [c2.ins], max(g0, gb + 1), g1)]))
        self.stamp("ln_done")

    def phi(self, acc, out, tmp, scale=None, pk=None):
        p = self.p
        for r0 in range(0, 16, 2):
            rr = (r0, r0 + 1)
            a = {r: f"v{acc + r}" for r in rr}
            t = {r: f"v{tmp + (r & 3)}" for r in rr}
            a2, t2 = V(acc + r0, 2), V(tmp + (r0 & 3), 2)
            if pk is not None:
                k2 = V(pk, 2)
                if scale is None:
                    p(f"v_pk_add_f32 {a2}, {a2}, {k2} op_sel_hi:[1,0]")
                else:
                    sc, hi = scale(r0)
                    p(f"v_pk_fma_f32 {a2}, {a2}, {sc}, {k2} op_sel_hi:[1,{hi},0]")
                p(f"v_pk_mul_f32 {t2}, {a2}, {k2} op_sel:[0,1] op_sel_hi:[1,1]")
            else:
                for r in rr:
                    if scale is None:
                        p(f"v_add_f32 {a[r]}, {sEPS6}, {a[r]}")
                    else:
                        p(f"v_fma_f32 {a[r]}, {a[r]}, {scale(r)}, {sEPS6}")
                for r in rr:
                    p(f"v_mul_f32 {t[r]}, {sLOG2E}, {a[r]}")
            for r in rr:
                p(f"v_exp_f32 {t[r]}, {t[r]} clamp")
            for r in rr:
                p(f"v_max_f32 {a[r]}, {sEPS6}, {a[r]}")
            if pk is not None:
                p(f"v_pk_add_f32 {a2}, {a2}, {t2}")
            else:
                for r in rr:
                    p(f"v_add_f32 {a[r]}, {a[r]}, {t[r]}")
            p(f"v_cvt_pk_bf16_f32 v{out + (r0 >> 1)}, {a[r0]}, {a[r0 + 1]}")

    def v_pack(self):
        p = self.p
        for r in range(8):
            p(f"v_cvt_pk_bf16_f32 v{32 + r}, v{32 + 2 * r}, v{33 + 2 * r}")
        p(f"s_mov_b64 exec, {sM28}")
        for r in range(8):
            p(f"v_mov_b32 v{32 + r}, {sONES}")
        p("s_mov_b64 exec, -1")

    def kv_addrs(self, layer, a0, a1, a2):
        p = self.p
        p(f"s_lshl_b32 {sT0}, {sw}, 10")
        p(f"v_add_u32 {a0}, {sT0}, {vS16}")
        p(f"s_lshl_b32 {sT0}, {sw}, 12")
        p(f"v_add_u32 {a1}, {sT0}, {vS16}")
        p(f"v_lshlrev_b32 {a2}, 3, {vLane}")
        p(f"s_lshl_b32 {sT0}, {sh}, 15")
        p(f"s_lshl_b32 {sT1}, {sw}, 9")
        p(f"s_add_u32 {sT0}, {sT0}, {sT1}")
        p(f"s_add_u32 s6, {sT0}, {WS_KV + layer * KV_L}")
        p(f"s_lshl_b32 {sT1}, {sg}, 1")
        p(f"s_add_u32 {sT1}, {sT1}, {srh}")
        p(f"s_lshl_b32 {sT1}, {sT1}, 11")
        p(f"s_add_u32 s7, {sT1}, s6")

    def kv_publish(self, kvacc, a0, a1, a2):
        p = self.p
        p(f"{MFMA} {kvacc(0, 16)}, {V(16)}, {V(32)}, 0")
        p(f"{MFMA} {kvacc(0, 16)}, {V(20)}, {V(36)}, {kvacc(0, 16)}")
        for q in range(4):
            p(f"ds_write_b128 {a0}, {kvacc(4 * q, 4)} offset:{S_KVP + q * 4096}")
        p.wait_ds()
        p("s_barrier")
        for u in range(4):
            p(f"ds_read_b128 {V(32 + 4 * u)}, {a1} offset:{S_KVP + u * 1024}")
        for r in (0, 2):
            p(f"v_pk_add_f32 {V(32 + r, 2)}, {V(32 + r, 2)}, {V(36 + r, 2)}")
        for r in (0, 2):
            p(f"v_pk_add_f32 {V(40 + r, 2)}, {V(40 + r, 2)}, {V(44 + r, 2)}")
        for r in (0, 2):
            p(f"v_pk_add_f32 {V(32 + r, 2)}, {V(32 + r, 2)}, {V(40 + r, 2)}")
        p("v_cvt_pk_bf16_f32 v28, v32, v33")
        p("v_cvt_pk_bf16_f32 v29, v34, v35")
        p(f"buffer_store_dwordx2 v[28:29], {a2}, {SWS}, s7 offen sc1", "kvpub")

    def o_addrs(self):
        p = self.p
        p(f"s_mul_i32 {sT0}, {sh}, 7")
        p(f"v_lshrrev_b32 v16, 5, {vLane}")
        p(f"v_add_u32 v16, {sT0}, v16")
        p(f"v_and_b32 v17, 31, {vLane}")
        p("v_lshlrev_b32 v17, 4, v17")
        p("v_and_b32 v18, 1, v16")
        p("v_lshl_add_u32 v17, v18, 9, v17")
        p("v_lshrrev_b32 v16, 1, v16")
        for j in range(4):
            p(f"v_add_u32 v18, {j}, v16")
            p("v_and_b32 v19, 1, v18")
            p("v_lshrrev_b32 v18, 1, v18")
            p("v_lshl_add_u32 v18, v18, 10, v17")
            p(f"v_lshl_add_u32 v{56 + j}, v19, 3, v18")
        p(f"s_lshr_b32 {sT0}, {sw}, 1")
        p(f"s_lshl_b32 {sT0}, {sT0}, 10")
        p(f"s_and_b32 {sT1}, {sw}, 1")
        p(f"s_lshl_b32 {sT1}, {sT1}, 3")
        p(f"s_add_u32 {sT0}, {sT0}, {sT1}")
        p(f"v_add_u32 v60, {sT0}, {vS16}")
        p(f"s_lshl_b32 {sT0}, {stb}, 7")
        p(f"s_lshl_b32 {sT1}, {sh}, 2")
        p(f"s_add_u32 {sT0}, {sT0}, {sT1}")
        p(f"s_add_u32 s3, {sT0}, {G_FO}")

    def gather_items(self, G, a2):
        p = self.p
        items = []
        for u in range(0, 16, 2):
            with self.cap() as c:
                p(f"s_add_u32 {sT5}, {sg}, {u // 2}")
                p(f"s_and_b32 {sT5}, {sT5}, 7")
                p(f"s_lshl_b32 {sT5}, {sT5}, 12")
                p(f"s_add_u32 {sT5}, {sT5}, s6")
                p(f"buffer_load_dwordx2 {V(G + 2 * u, 2)}, {a2}, {SWS}, {sT5} offen sc1")
                p(f"buffer_load_dwordx2 {V(G + 2 * u + 2, 2)}, {a2}, {SWS}, {sT5} offen offset:2048 sc1")
            items.append(c.ins)
        return items

    def kv_finish(self, layer, G, a2):
        p = self.p

        def sums():
            for r in range(16, 21):
                p(f"v_mov_b32 v{r}, 0")
            for u in range(16):
                for k in range(2):
                    p(f"v_dot2c_f32_bf16 v{16 + 2 * k}, {sT3}, v{G + 2 * u + k}")
                    p(f"v_dot2c_f32_bf16 v{17 + 2 * k}, {sT4}, v{G + 2 * u + k}")
                p(f"v_max3_u32 v20, v20, v{G + 2 * u}, v{G + 2 * u + 1}")
            p("v_cmp_eq_u32 vcc, -1, v20")
        p(f"s_mov_b32 {sT3}, 0x3f80")
        p(f"s_mov_b32 {sT4}, 0x3f800000")
        lo, lb, lp = p.label("kvspin"), p.label("kvback"), p.label("kvloop")
        if self.diag:
            p(f"s_mov_b32 s{18 + layer}, 0")
        sums()
        p(f"s_cbranch_vccnz {lo}")
        p(f"{lb}:")
        with self.cap() as c:
            p(f"{lo}:")
            p(f"s_mov_b32 {sCnt}, {slim}")
            p(f"{lp}:")
            if self.diag:
                p(f"s_add_u32 s{18 + layer}, s{18 + layer}, 1")
            for it in self.gather_items(G, a2):
                p.add(it)
            p("s_waitcnt vmcnt(0)")
            sums()
            p(f"s_cbranch_vccz {lb}")
            p(f"s_sub_u32 {sCnt}, {sCnt}, 1")
            p(f"s_cmp_lg_u32 {sCnt}, 0")
            p(f"s_cbranch_scc1 {lp}")
            p(f"s_mov_b32 {slim}, 1")
            p(f"s_branch {lb}")
        self.tail.extend(c.ins)
        self.stamp(f"kv_seen{layer}")
        p("v_cvt_pk_bf16_f32 v20, v16, v17")
        p("v_cvt_pk_bf16_f32 v21, v18, v19")
        p(f"ds_write_b64 v60, v[20:21] offset:{S_KVS}")
        p.wait_vm("wo")
        p.wait_ds()
        p("s_barrier")
        p(f"ds_read_b128 {V(24)}, {vS16} offset:{S_KVS}")
        p(f"ds_read_b128 {V(28)}, {vS16} offset:{S_KVS + 1024}")
        p(f"{MFMA} {V(32, 16)}, {V(24)}, {V(48)}, 0")
        p(f"{MFMA} {V(32, 16)}, {V(28)}, {V(52)}, {V(32, 16)}")
        p("v_mov_b32 v16, v44")
        p("v_mov_b32 v17, v44")
        p("v_permlane32_swap_b32 v16, v17")
        p(f"v_add_f32 v16, {sEPS6}, v17")
        p("v_rcp_f32 v16, v16")
        for r in range(0, 16, 2):
            p(f"v_pk_mul_f32 {V(32 + r, 2)}, {V(32 + r, 2)}, v[16:17] op_sel_hi:[1,0]")
        for r in range(8):
            p(f"v_cvt_pk_bf16_f32 v{20 + r}, v{32 + 2 * r}, v{33 + 2 * r}")
        st = [f"buffer_store_dwordx2 {V(20 + 2 * j, 2)}, v{56 + j}, {SG}, {sHB} offen" for j in range(3)]
        st += ["s_mov_b32 exec_hi, 0", f"buffer_store_dwordx2 {V(26, 2)}, v59, {SG}, {sHB} offen",
               "s_mov_b64 exec, -1"]
        self.publish(st)
        self.flag("s3", 1 + layer)
        self.stamp(f"o_pub{layer}")

    def single_pass(self, acc, frag, nfrag, vaddr, off, second, areg, first, last, transposed, zero):
        rd = lambda s: self.trread(frag(s % nfrag, 0), frag(s % nfrag, 2), vaddr, off + s * KB, second)
        head = []
        for s in range(first, first + nfrag - 1):
            head += rd(s)
        main = []
        for s in range(first, last):
            w, a = frag(s % nfrag, None), areg(s)
            c = 0 if (zero and s == first) else acc
            g = [Ins(f"{MFMA} {acc}, {w}, {a}, {c}" if transposed else f"{MFMA} {acc}, {a}, {w}, {c}")]
            if s + nfrag - 1 < last:
                g += rd(s + nfrag - 1)
            main.append(g)
        return head, main

    def qkv0(self):
        p = self.p
        rd = []
        for s in range(28):
            f = (s % 3) * 8
            va = f"v{54 + ((s >> 2) & 1)}"
            pre = []
            if s % 4 == 0:
                pre = self.group_base(va, "v62") + [Pseudo("wait_vm", f"g{s >> 2}"), Ins("s_barrier")]
            rd.append((pre + self.trread(A(f, 2), A(f + 2, 2), va, L_WK + (s & 3) * KB, 256),
                       self.trread(A(f + 4, 2), A(f + 6, 2), va, L_WV + (s & 3) * KB, 256)))
        head = rd[0][0] + rd[0][1] + rd[1][0] + rd[1][1]
        main = []
        for s in range(28):
            f = (s % 3) * 8
            for k in range(2):
                acc = V(16 + 16 * k, 16)
                g = [Ins(f"{MFMA} {acc}, {V(64 + 4 * s)}, {A(f + 4 * k)}, {acc if s else 0}")]
                if s + 2 < 28:
                    g += rd[s + 2][k]
                main.append(g)
        with self.cap() as c:
            self.kv_addrs(0, "v60", "v61", "v11")
            p(f"s_cmp_ge_u32 {sh}, 14")
            p(f"s_cselect_b32 {sT2}, {sh}, {scb}")
            p(f"s_cselect_b32 {sT3}, 0, {7 * 2048}")
            p(f"s_lshl_b32 {sT2}, {sT2}, 11")
            p(f"v_and_b32 v56, 15, {vLane}")
            p(f"v_bfe_u32 v57, {vLane}, 4, 1")
            p(f"v_mul_u32_u24 v58, {sT3}, v57")
            p("v_lshl_add_u32 v58, v56, 7, v58")
            p(f"v_add_u32 v58, {sT2}, v58")
            p(f"s_lshl_b32 {sT2}, {sg}, 8")
            p("v_lshlrev_b32 v56, 11, v56")
            p("v_lshl_add_u32 v56, v57, 7, v56")
            p(f"v_add_u32 v56, {sT2}, v56")
            p(f"v_cndmask_b32 v58, v58, v56, {sMPAD}")
            p(f"s_mov_b32 {sU[3]}, {WS_RB}")
        setup = groups(c.ins[:13]) + [c.ins[13:16]] + groups(c.ins[16:])
        with self.cap() as c1:
            self.poll_load("v58", SWS, sU[3], 1, 59)
        with self.cap() as c2:
            p.wait_vm("pb")
            p("s_barrier")
            self.ready(WS_RB)
        gr = self.opt.get("gr", 8)
        self.touch = {0: [], 1: [], 2: [], 3: [], 4: []}
        self.touch[self.opt.get("to", 2)] += self.touch_items(G_O, 14)
        if self.opt.get("x0sc1", 0):
            self.touch[self.opt.get("tx", 2)] += self.touch_items(G_ST, 4)
        else:
            self.touch[self.opt.get("tx", 2)] += self.touch_items(G_X, 18)
        wq = [self.wqkv_item(0, L_WQ, "wq") for u in range(7)]
        gv = self.opt.get("gv", 5) * len(self.kvrest)
        gc = self.opt.get("gc", 56)
        early = gc < 56
        gw = self.opt.get("gw", 52)
        streams = [(self.kvrest, 0, gv), ([c2.ins], gr, gr), (wq + self.touch[1], max(gr, gv) + 1, gw),
                   (setup, gr + 2, gc - 14 if early else 50)]
        if early:
            streams.append(([c1.ins], gc - 12, gc - 12))
        slots = spread_groups(main, streams)
        p.add(head)
        for g in slots[:gc]:
            p.add(g)
        self.kvslots = slots[gc:]
        self.pollb = c1.ins
        if early:
            self.decide()
        else:
            self.kv0_rest()
            self.decide()

    def decide(self):
        p = self.p
        self.apoll_end("v58", SWS, sU[3], 1, 1, 59, 15)
        p(f"v_cmp_ne_u32 vcc, {sfast}, v59")
        p("s_cmp_eq_u32 vcc_hi, 0")
        self.stamp_flush()
        p("s_cbranch_scc1 L_slow" if self.force_slow else "s_cbranch_scc0 L_slow")

    def kv0_rest(self):
        p = self.p
        early = self.opt.get("gc", 56) < 56
        if early:
            self.stamp("rb_seen")
            self.bulk = self.w1_items()
            p.add(spread(self.kvslots, [(self.take(self.opt.get("bk", 8)), 0, len(self.kvslots) - 1)]))
        self.stamp("kv_gemm0")
        if not early:
            p.add(self.pollb)
        with self.cap() as c:
            p(f"v_mov_b32 v52, {sEPS6}")
            p(f"v_mov_b32 v53, {sLOG2E}")
            self.phi(16, 16, 48, pk=52)
        ep = groups(c.ins, 4)
        p.add(spread(ep, [(self.take(self.opt.get("be", 4)) if early else [], 0, len(ep) - 1)]))
        self.v_pack()
        self.kv_publish(lambda lo, k: A(24 + lo, k), "v60", "v61", "v11")
        self.stamp("kv_pub0")
        p("v_mov_b32 v13, v63")
        self.rot_offsets()
        p.wait_vm("wq")
        p("s_barrier")

    def take(self, n):
        out, self.bulk = self.bulk[:n], self.bulk[n:]
        return out

    def q0(self):
        p = self.p
        afrag = lambda i, lo: A(4 * i) if lo is None else A(4 * i + lo, 2)

        def rd(s):
            va = f"v{14 + ((s >> 2) & 1)}"
            pre = self.group_base(va, "v13") if s % 4 == 0 else []
            return pre + self.trread(afrag(s % 4, 0), afrag(s % 4, 2), va, (s & 3) * KB, 256)
        head = rd(0) + rd(1) + rd(2)
        main = []
        for s in range(28):
            g = [Ins(f"{MFMA} {V(48, 16)}, {afrag(s % 4, None)}, {V(64 + 4 * s)}, {V(48, 16) if s else 0}")]
            if s + 3 < 28:
                g += rd(s + 3)
            main.append(g)
        with self.cap() as c:
            p(f"v_mov_b32 v32, {sEPS6}")
            p(f"v_mov_b32 v33, {sLOG2E}")
            self.phi(48, 48, 36, pk=32)
            p(f"v_cndmask_b32 v54, v54, 0, {sMPAD}")
            p(f"v_cndmask_b32 v55, v55, 0, {sMPAD}")
            self.o_addrs()
        tail = groups(c.ins, 6)
        gg = self.opt.get("gg", 34)
        if self.opt.get("gc", 56) < 56:
            self.bulk = self.dma_items("v8", SPK, 84, 7, "wo", sU[5]) + self.bulk + self.w2_items()
        else:
            self.bulk = self.dma_items("v8", SPK, 84, 7, "wo", sU[5]) + self.w1_items() + self.w2_items()
        p.add(head)
        p.add(spread(main + tail, [(self.touch[2] + self.take(self.opt.get("bq", 13)), 0, gg - 1),
                                   (self.gather_items(64, "v11"), gg, gg + 8)]))
        for it in self.touch[3] + self.take(self.opt.get("b1", 8)):
            p.add(it)
        self.stamp("q_done0")

    def make_selector(self):
        p = self.p
        p("v_mov_b32 v15, 0")
        p("s_mov_b32 exec_lo, 0x00100001")
        p("s_mov_b32 exec_hi, 0x00100001")
        p(f"v_mov_b32 v15, {sONES}")
        p("s_mov_b64 exec, -1")
        for r in range(4):
            p(f"v_accvgpr_write_b32 a{32 + r}, v15")

    def colsum_qkv(self):
        p = self.p
        p(f"s_min_u32 {sU[0]}, {sw}, 2")
        p(f"s_mul_i32 {sU[0]}, {sU[0]}, {28 * KB}")
        p(f"v_add_u32 v60, {sU[0]}, {vTrA}")
        rd = lambda s: self.trread(V(32 + 4 * (s % 4), 2), V(34 + 4 * (s % 4), 2), "v60", s * KB)
        p.add(rd(0) + rd(1) + rd(2))
        self.make_selector()
        for s in range(28):
            p(f"{MFMA16} {A(36)}, {A(32)}, {V(32 + 4 * (s % 4))}, {A(36) if s else 0}")
            if s + 3 < 28:
                p.add(rd(s + 3))
        p(f"s_lshl_b32 {sU[0]}, {sw}, 9")
        p(f"v_lshlrev_b32 v60, 3, {vLane}")
        p(f"v_add_u32 v60, {L_S + S_STAT}, v60")
        p(f"v_add_u32 v61, {sU[0]}, v60")
        p("v_accvgpr_read_b32 v40, a36")
        self.split_words("v40", "v42", "v43", "v41", False, False)
        p("ds_write_b64 v61, v[42:43]")

    def colsum_qkv_fetch(self):
        p = self.p
        p(f"v_lshlrev_b32 v13, 3, {vLane}")
        p(f"v_add_u32 v13, {L_S + S_STAT}, v13")
        p(f"ds_read_b64 {V(vCSQ + 2, 2)}, v13")
        p(f"ds_read_b64 {V(vCSQ + 4, 2)}, v13 offset:512")
        p(f"ds_read_b64 {V(vCSQ, 2)}, v13 offset:1024")

    def colsum_w1_items(self):
        p = self.p
        items = [[Ins(f"{MFMA16} {A(36)}, {A(32)}, {w1reg(s)}, {A(36) if s else 0}")] for s in range(28)]
        with self.cap() as c:
            p("v_accvgpr_read_b32 v62, a36")
            self.split_words("v62", f"v{vCS1}", f"v{vCS1 + 1}", "v63", False, False)
        items.append(c.ins)
        return items

    def qkv1(self):
        p = self.p
        p(f"v_min_u32 v13, 27, {vLane}")
        p("v_lshlrev_b32 v13, 2, v13")
        p(f"s_lshl_b32 {sT0}, {stb}, 7")
        p(f"s_add_u32 {sT0}, {sT0}, {G_FX}")
        WF = [152, 156, 160, 164, 168, 172]

        def wf(s, k):
            r = WF[3 * (s % 2) + k]
            if k == 2:
                return self.trread(V(r, 2), V(r + 2, 2), vTrB, s * KB)
            return self.trread(V(r, 2), V(r + 2, 2), vTrA, (L_WK, L_WV)[k] + s * KB)
        p.add(wf(0, 0) + wf(0, 1) + wf(0, 2))
        self.poll("v13", SG, sT0, 2)
        self.stamp("x2_seen")
        RING, NR = 96, 14

        def ld(s):
            q = sub()
            if s % 4 == 0:
                q(f"s_add_u32 s4, {sXB}, {s * KB}")
            q(f"buffer_load_dwordx4 {V(RING + 4 * (s % NR))}, {vL16}, {SG}, s4 offen offset:{(s % 4) * KB} sc1")
            return q.ins
        LEAD = self.opt.get("lead", 6)
        for s in range(LEAD):
            p.add(ld(s))
        stl = [[Ins(f"buffer_load_dwordx4 {V(64 + 4 * u)}, {vL16}, {SG}, {sSTB} offen offset:{u * KB} sc1")]
               for u in range(2)]
        with self.cap() as st:
            for i in range(2, 7):
                p(f"v_add_f32 v{64 + (i & 1)}, v{64 + (i & 1)}, v{64 + i}")
            p("v_add_f32 v64, v64, v65")
            self.stats_finish("v64", "v65", "v66", "v67")
            p("v_rsq_f32 v88, v67")
            self.split_words("v66", "v92", "v93", "v65", True, True)
            p("v_mov_b32 v94, 0")
            p("v_mov_b32 v95, 0")
            p("v_cvt_pk_bf16_f32 v80, v88, v88")
            p(f"v_and_b32 v64, {sHI}, v80")
            p("v_sub_f32 v64, v88, v64")
            p("v_cvt_pk_bf16_f32 v81, v64, v64")
            p(f"v_and_b32 v65, {sHI}, v81")
            p("v_sub_f32 v65, v64, v65")
            p("v_and_b32 v80, 0xffff, v80")
            p(f"v_and_or_b32 v80, v81, {sHI}, v80")
            p("v_cvt_pk_bf16_f32 v81, v65, 0")
            p("v_mov_b32 v82, 0")
            p("v_mov_b32 v83, 0")
            p(f"v_mov_b32 v84, {sONES}")
            p(f"v_cndmask_b32 v84, v84, 0, {sMPAD}")
            p("v_mov_b32 v85, v84")
            p("v_mov_b32 v86, 0")
            p("v_mov_b32 v87, 0")
            p(f"{MFMA} {V(64, 16)}, {V(80)}, {V(84)}, 0")
            self.kv_addrs(1, "v89", "v90", "v91")
            for m, dst in ((1, 80), (2, 84)):
                p(f"v_mov_b32 v{dst}, v{vCSQ + 2 * m}")
                p(f"v_mov_b32 v{dst + 1}, v{vCSQ + 2 * m + 1}")
        main = []
        for s in range(28):
            o = 3 * (s % 2)
            a = V(RING + 4 * (s % NR))
            nk = 3 if s < NR else 2
            nk2 = 3 if s + 1 < NR else 2
            for k in range(nk):
                acc = V(16 + 16 * k, 16)
                c = acc if s else 0
                g = [Ins(f"{MFMA} {acc}, {a}, {V(WF[o + k])}, {c}" if k < 2 else f"{MFMA} {acc}, {V(WF[o + k])}, {a}, {c}")]
                if s + 1 < 28 and k < nk2:
                    g += wf(s + 1, k)
                main.append(g)
        seq = [ld(s) for s in range(LEAD, 14)] + stl + [ld(s) for s in range(14, 28)]
        slots = []
        gpos = 0
        for i, it in enumerate(seq):
            s = i + LEAD - 2
            if s >= 14:
                gpos = max(gpos, 3 * (s - 14) + 2)
            slots.append(([it], gpos, gpos))
            gpos += 2
        p.add(spread(main, slots + [(groups(st.ins), 30, len(main) - 2)]))
        p(f"{MFMA} {V(16, 16)}, {V(92)}, {V(80)}, {V(16, 16)}")
        p(f"{MFMA} {V(32, 16)}, {V(92)}, {V(84)}, {V(32, 16)}")
        self.stamp("kv_gemm1")
        vfrag = lambda i, lo: V(152 + 4 * i) if lo is None else V(152 + 4 * i + lo, 2)
        head, main = self.single_pass(V(48, 16), vfrag, 4, vTrB, 0, 512, lambda s: V(RING + 4 * (s % NR)),
                                      NR, 28, True, False)
        p.add(head)
        p(f"v_mov_b32 v172, {sEPS6}")
        p(f"v_mov_b32 v173, {sLOG2E}")
        p(f"v_mov_b32 v80, v{vCSQ}")
        p(f"v_mov_b32 v81, v{vCSQ + 1}")
        self.phi(16, 16, 168, lambda r: (V(64 + r, 2), 1), pk=172)
        for r in range(0, 16, 2):
            p(f"v_pk_mul_f32 {V(32 + r, 2)}, {V(32 + r, 2)}, {V(64 + r, 2)}")
        self.v_pack()
        self.kv_publish(lambda lo, k: V(64 + lo, k), "v89", "v90", "v91")
        self.stamp("kv_pub1")
        main.append([Ins(f"{MFMA} {V(48, 16)}, {V(80)}, {V(92)}, {V(48, 16)}")])
        with self.cap() as c:
            self.phi(48, 48, 168, lambda r: (V(88, 2), 0), pk=172)
            p(f"v_cndmask_b32 v54, v54, 0, {sMPAD}")
            p(f"v_cndmask_b32 v55, v55, 0, {sMPAD}")
            self.o_addrs()
        tail = groups(c.ins, 6)
        if not self.opt.get("probe", 0):
            gg = self.opt.get("gg1", 31)
            p.add(spread(main + tail, [(self.gather_items(96, "v91"), gg, gg + 8)]))
            self.stamp("q_done1")
            return
        with self.cap() as c1:
            p(f"v_min_u32 v174, 15, {vLane}")
            p("v_lshlrev_b32 v174, 11, v174")
            p(f"buffer_load_dword v175, v174, {SWS}, s6 offen offset:508 sc1")
        pg, nt = self.opt.get("pg", 10), self.opt.get("pt", 8)
        p.add(spread(main + tail[:nt], [([c1.ins], pg, pg)]))
        lo, lb, lp, ld = p.label("early"), p.label("gathering"), p.label("probe"), p.label("probed")
        p("v_cmp_eq_u32 vcc, -1, v175")
        p(f"s_cbranch_vccnz {lo}")
        p.add(spread(tail[nt:], [(self.gather_items(96, "v91"), 0, 8)]))
        p(f"{lb}:")
        with self.cap() as c:
            p(f"{lo}:")
            p("s_nop 7")
            for it in tail[nt:]:
                p.add(it)
            p(f"s_mov_b32 {sCnt}, {slim}")
            p(f"{lp}:")
            p(f"buffer_load_dword v175, v174, {SWS}, s6 offen offset:508 sc1")
            p("s_waitcnt vmcnt(0)")
            p("v_cmp_eq_u32 vcc, -1, v175")
            p(f"s_cbranch_vccz {ld}")
            p(f"s_sub_u32 {sCnt}, {sCnt}, 1")
            p(f"s_cmp_lg_u32 {sCnt}, 0")
            p(f"s_cbranch_scc1 {lp}")
            p(f"s_mov_b32 {slim}, 1")
            p(f"{ld}:")
            for it in self.gather_items(96, "v91"):
                p.add(it)
            p(f"s_branch {lb}")
        self.tail.extend(c.ins)
        self.stamp("q_done1")

    def wo_phase(self, layer, pre=None, streams=()):
        p = self.p
        RES = 104
        p(f"s_lshl_b32 s5, {sh}, 11")
        p(f"s_add_u32 s5, s5, {sXB}")
        if layer == 1:
            p(f"buffer_load_dwordx4 {V(RES)}, {vL16}, {SG}, s5 offen sc1")
            p(f"buffer_load_dwordx4 {V(RES + 4)}, {vL16}, {SG}, s5 offen offset:1024 sc1")
        else:
            for r in range(8):
                p(f"v_accvgpr_read_b32 v{RES + r}, a{56 + r}")
        p(f"s_lshr_b32 {sT1}, {sh}, 2")
        p(f"s_lshl_b32 {sT1}, {sT1}, 10")
        p(f"s_and_b32 {sT2}, {sh}, 3")
        p(f"s_lshl_b32 {sT2}, {sT2}, 2")
        p(f"s_add_u32 {sT1}, {sT1}, {sT2}")
        p(f"s_add_u32 s6, {sT1}, {sSTB}")
        p(f"s_lshl_b32 {sT0}, {stb}, 7")
        p(f"s_lshl_b32 {sT1}, {sh}, 3")
        p(f"s_add_u32 {sT1}, {sT0}, {sT1}")
        p(f"s_add_u32 s7, {sT1}, {G_FX}")
        p(f"s_add_u32 {sT0}, {sT0}, {G_FO}")
        p(f"v_and_b32 v13, 15, {vLane}")
        p("v_lshlrev_b32 v13, 2, v13")
        rd = [self.trread(V(48 + (s % 3) * 4, 2), V(50 + (s % 3) * 4, 2), vTrB, (L_WO - L_WQ) + s * KB)
              for s in range(28)]
        p.add(rd[0] + rd[1])
        if pre:
            pre()
        self.poll("v13", SG, sT0, 1 + layer)
        self.stamp(f"o_seen{layer}")
        RING = 64
        LEAD = self.opt.get("leadwo", 8)

        def ld(s):
            q = sub()
            if s % 4 == 0:
                q(f"s_add_u32 s4, {sHB}, {s * KB}")
            q(f"buffer_load_dwordx4 {V(RING + 4 * s)}, {vL16}, {SG}, s4 offen offset:{(s % 4) * KB} sc1")
            return q.ins
        for s in range(LEAD):
            p.add(ld(s))
            p(f"v_lshlrev_b32 v{16 + 2 * s}, 16, v{RES + s}" if s < 8 else "; -")
            p(f"v_and_b32 v{17 + 2 * s}, {sHI}, v{RES + s}" if s < 8 else "; -")
        assert LEAD >= 8
        main = []
        for s in range(28):
            g = [Ins(f"{MFMA} {V(16, 16)}, {V(48 + (s % 3) * 4)}, {V(RING + 4 * s)}, {V(16, 16)}")]
            if s + LEAD < 28:
                g += ld(s + LEAD)
            if s + 2 < 28:
                g += rd[s + 2]
            main.append(g)
        streams = list(streams)
        if self.opt.get("wsu", 1):
            with self.cap() as c:
                self.ffn_setup(layer)
            streams.append((groups(c.ins), 13, 26))
        p.add(spread(main, streams))
        self.stamp(f"wo_gemm{layer}")
        for r in range(8):
            p(f"v_cvt_pk_bf16_f32 v{32 + r}, v{16 + 2 * r}, v{17 + 2 * r}")
        self.publish([f"buffer_store_dwordx4 {V(32)}, {vL16}, {SG}, s5 offen",
                      f"buffer_store_dwordx4 {V(36)}, {vL16}, {SG}, s5 offen offset:1024"],
                     always_sc1=(layer == 0 and self.opt.get("x0sc1", 0)))
        p("v_pk_mul_f32 v[42:43], v[16:17], v[16:17]")
        for r in range(2, 16, 2):
            p(f"v_pk_fma_f32 v[42:43], {V(16 + r, 2)}, {V(16 + r, 2)}, v[42:43]")
            p(f"v_pk_add_f32 v[16:17], v[16:17], {V(16 + r, 2)}")
        p("v_add_f32 v40, v16, v17")
        p("v_add_f32 v42, v42, v43")
        self.both_halves("v40", "v42", None)
        self.publish([f"buffer_store_dword v40, {vL16}, {SG}, s6 offen"])
        self.flag("s7", 1 + 2 * layer, 2)
        self.stamp(f"x1_pub{layer}")

    def rot_offsets(self):
        p = self.p
        for i in range(7):
            if self.opt.get("rot", 0):
                p(f"s_add_u32 s{8 + i}, {scb}, {i}")
                p(f"s_cmp_ge_u32 s{8 + i}, 7")
                p(f"s_cselect_b32 s15, 7, 0")
                p(f"s_sub_u32 s{8 + i}, s{8 + i}, s15")
                p(f"s_lshl_b32 s{8 + i}, s{8 + i}, 14")
            else:
                p(f"s_mov_b32 s{8 + i}, {i * 16 * KB}")

    def w2_items(self):
        p = self.p
        items = []
        order = list(range(8, 28)) + list(range(8))
        for i, j in enumerate(order):
            for ch in range(2):
                with self.cap() as c:
                    if i == 0 and ch == 0:
                        p(f"s_mul_i32 s25, {scb}, {224 * KB}")
                        p(f"s_lshl_b32 s26, {sw}, 12")
                        p(f"s_add_u32 s25, s25, s26")
                        p(f"s_add_u32 s25, s25, {WS_P2}")
                        p(f"s_and_b32 s26, {srq}, 1")
                        p(f"s_lshl_b32 s26, s26, 14")
                        p(f"s_sub_u32 s27, s25, s26")
                        p(f"s_add_u32 s27, s27, {16 * KB}")
                        p(f"s_add_u32 s25, s25, s26")
                    if j % 2 == 0 and ch == 0:
                        i2 = j >> 1
                        p(f"s_lshl_b32 s26, s{8 + i2 % 7}, 1")
                        p(f"s_add_u32 s26, s26, {'s25' if i2 < 7 else 's27'}")
                    p(f"buffer_load_dwordx4 {w2reg(j, ch)}, {vL16}, {SPK}, s26 offen offset:{(j & 1) * 2048 + ch * 1024} sc1",
                      "w2")
                items.append(c.ins)
        return items

    def ffn_setup(self, layer):
        p = self.p
        p(f"v_and_b32 v13, 15, {vLane}")
        p("v_min_u32 v13, 13, v13")
        p("v_lshlrev_b32 v13, 3, v13")
        p(f"v_lshrrev_b32 v14, 4, {vLane}")
        p("v_lshl_add_u32 v107, v14, 7, v13")
        p(f"s_mul_i32 {sT0}, {srh}, {112 * KB}")
        big = layer == 1 and self.opt.get("big", 1)
        LB = 0 if big else L_S
        p(f"s_add_u32 {sT0}, {sT0}, {G_X - LB}")
        p(f"s_and_b32 s0, {sh}, 1")
        p(f"s_mul_i32 s16, s0, {28 * KB}")
        p(f"s_add_u32 {sT0}, {sT0}, s16")
        p(f"s_lshl_b32 s16, s16, 1")
        p(f"v_add_u32 v110, {sT0}, {vL16}")
        p(f"s_lshl_b32 s15, {sw}, 10")
        p(f"s_add_u32 s15, s15, {LB}")
        p(f"s_lshl_b32 {sT0}, {sh}, 13")
        p(f"s_lshl_b32 {sT1}, {sw}, 11")
        p(f"s_add_u32 s3, {sT0}, {sT1}")
        p(f"s_mul_i32 {sT0}, {srh}, {4 * 112 * KB}")
        p(f"s_add_u32 s3, s3, {sT0}")
        p(f"s_lshl_b32 {sT0}, {srh}, 10")
        p(f"s_lshl_b32 {sT1}, {sw}, 6")
        p(f"s_add_u32 {sT0}, {sT0}, {sT1}")
        p(f"s_lshl_b32 {sT1}, {sh}, 2")
        p(f"s_add_u32 {sT0}, {sT0}, {sT1}")
        p(f"s_add_u32 s2, {sT0}, {G_FH}")
        p(f"s_mul_i32 {sT0}, s0, {2 * 112 * KB}")
        p(f"s_sub_u32 s17, s3, {sT0}")
        p(f"s_add_u32 s3, s3, {sT0}")
        p(f"s_lshl_b32 {sT0}, s0, 9")
        p(f"s_sub_u32 s1, s2, {sT0}")
        p(f"s_add_u32 s2, s2, {sT0}")
        p(f"v_mov_b32 v84, v{vCS1}")
        p(f"v_mov_b32 v85, v{vCS1 + 1}")
        for r in (86, 87, 90, 91):
            p(f"v_mov_b32 v{r}, 0")
        p(f"v_and_b32 v108, 31, {vLane}")
        p("v_lshlrev_b32 v108, 4, v108")
        p(f"v_add_u32 v108, {L_S + S_STAT}, v108")
        p(f"s_and_b32 {sT0}, {sxs}, 3")
        p(f"s_lshl_b32 {sT0}, {sT0}, 9")
        p(f"s_lshl_b32 {sT1}, s0, 9")
        p(f"s_xor_b32 {sT0}, {sT0}, {sT1}")
        p(f"v_add_u32 v109, {sT0}, v108")
        self.ffn2_setup(layer)

    def ffn(self, layer, pre=None, extra=None):
        p = self.p
        big = layer == 1 and self.opt.get("big", 1)
        if not self.opt.get("wsu", 1):
            self.ffn_setup(layer)
        if big:
            p(f"v_add_u32 {vTrB}, {56 * KB}, {vL16}")
        p.wait_ds()
        p("s_barrier")
        if pre:
            pre()
        p(f"s_lshl_b32 {sT0}, {srh}, 9")
        p(f"s_add_u32 {sT0}, {sT0}, {G_FX}")
        self.poll("v107", SG, sT0, 1 + 2 * layer, 2)
        self.stamp(f"x1_seen{layer}")

        Q, P = (28, 2) if big else (10, 2)

        def quad(k):
            q = sub()
            if k % Q == 0:
                q("s_mov_b32 m0, s15")
                if k:
                    q(f"v_add_u32 v110, {Q * 4 * KB}, v110")
            else:
                q(f"s_add_u32 m0, m0, {4 * KB}")
            if k in (7, 21):
                q("v_subrev_u32 v110, s16, v110")
            if k == 14:
                q("v_add_u32 v110, s16, v110")
            q(f"buffer_load_dwordx4 v110, {SG}, m0 offen sc1 lds", f"c{k // P}")
            return q.ins
        for k in range(4):
            p.add(quad(k))
        stl = [[Ins(f"buffer_load_dwordx4 {V(112 + 4 * u)}, {vL16}, {SG}, {sSTB} offen offset:{u * KB} sc1")]
               for u in range(4)]
        with self.cap() as st:
            for i in range(2, 14):
                p(f"v_add_f32 v{112 + (i & 1)}, v{112 + (i & 1)}, v{112 + i}")
            p("v_add_f32 v112, v112, v113")
            self.stats_finish("v112", "v113", "v114", "v115")
            self.split_words("v114", "v116", "v117", "v113", True, True)
            p("v_rsq_f32 v118, v115")
            p("v_sqrt_f32 v119, v115")
            p(f"v_mul_f32_e64 v118, -v118, {sLOG2E}")
            p("ds_write_b128 v109, v[116:119]", "stw")
        XF, NX, D = 48, 5, 4
        def rdx(n):
            base, off = (vS16, n % (4 * Q)) if not big else ((vL16, n) if n < 56 else (vTrB, n - 56))
            return Ins(f"ds_read_b128 {V(XF + 4 * (n % NX))}, {base} offset:{off * KB}", f"x{n}")
        BIGB = {1: 1, 2: 2, 3: 4, 5: 7, 8: 10, 11: 13}

        def boundary(j):
            q = sub()
            if big and j:
                if j not in BIGB:
                    return []
                q.wait_vm(f"c{BIGB[j]}")
            else:
                q.wait_vm(f"c{j}")
            if j == 3:
                q.wait_ds("stw")
            q("s_barrier")
            return q.ins
        p.add(quad(4))
        p.add(quad(5))
        p.add(boundary(0))
        p.add([rdx(n) for n in range(D)])
        main = []
        pos = {}
        for n in range(112):
            o, s = divmod(n, 28)
            acc = V(16 + 16 * (o & 1), 16)
            g = []
            if n % 2 == 0:
                g.append(Pseudo("wait_ds", f"x{n + 1}"))
            g.append(Ins(f"{MFMA} {acc}, {w1reg(s)}, {V(XF + 4 * (n % NX))}, {acc if s else 0}"))
            m = n + D
            if m < 112:
                if m % 8 == 0:
                    g += boundary(m // 8)
                qd = quad(m // 4 + 6) if (m % 4 == 1 and m >= 8 and m // 4 + 6 < 28) else []
                if big:
                    kq = 8 + (n - 9) // 2
                    qd = quad(kq) if (n >= 9 and n % 2 == 1 and kq < 28) else []
                g += qd[:-1] + [rdx(m)] + qd[-1:]
                if m == 24:
                    g += [Ins(f"ds_read_b128 {V(68 + 4 * k)}, v108 offset:{k * 512}") for k in range(4)]
            if s == 24:
                g += [Ins(f"v_mov_b32 v88, v{68 + 4 * o}"), Ins(f"v_mov_b32 v89, v{69 + 4 * o}")]
            pos[n] = len(main)
            main.append(g)
            if s == 27:
                main.append([Ins(f"{MFMA} {acc}, {V(84)}, {V(88)}, {acc}")])

        hsc1 = self.opt.get("h0sc1", 1) if layer == 0 else self.opt.get("h1sc1", 1)

        def epilogue(o):
            tb = ((o & 1) << 1) | (o >> 1)
            acc = 16 + 16 * (o & 1)
            c1, sd = f"v{70 + 4 * o}", f"v{71 + 4 * o}"
            pk = o == 3 and hsc1 and self.opt.get("pk3", 1)
            with self.cap() as c:
                for r0 in range(0, 16, 4) if pk else ():
                    cs = V(70 + 4 * o, 2)
                    for k in (0, 2):
                        p(f"v_pk_mul_f32 {V(92 + k, 2)}, {V(acc + r0 + k, 2)}, {cs} op_sel_hi:[1,0]")
                    for k in range(4):
                        p(f"v_exp_f32 v{92 + k}, v{92 + k}")
                    for k in (0, 2):
                        p(f"v_pk_fma_f32 {V(92 + k, 2)}, {V(92 + k, 2)}, {cs}, {cs} op_sel:[0,1,1] op_sel_hi:[1,1,1]")
                    for k in range(4):
                        p(f"v_rcp_f32 v{92 + k}, v{92 + k}")
                    for k in (0, 2):
                        p(f"v_pk_mul_f32 {V(acc + r0 + k, 2)}, {V(acc + r0 + k, 2)}, {V(92 + k, 2)}")
                    for k in (0, 2):
                        p(f"v_cvt_pk_bf16_f32 v{96 + ((r0 + k) >> 1)}, v{acc + r0 + k}, v{acc + r0 + k + 1}")
                for r0 in range(0, 16, 2) if not pk else ():
                    rr = (r0, r0 + 1)
                    t = {r: f"v{92 + (r & 3)}" for r in rr}
                    a = {r: f"v{acc + r}" for r in rr}
                    for r in rr:
                        p(f"v_mul_f32 {t[r]}, {a[r]}, {c1}")
                    for r in rr:
                        p(f"v_exp_f32 {t[r]}, {t[r]}")
                    for r in rr:
                        p(f"v_fma_f32 {t[r]}, {t[r]}, {sd}, {sd}")
                    for r in rr:
                        p(f"v_rcp_f32 {t[r]}, {t[r]}")
                    for r in rr:
                        p(f"v_mul_f32 {a[r]}, {a[r]}, {t[r]}")
                    p(f"v_cvt_pk_bf16_f32 v{96 + (r0 >> 1)}, {a[r0]}, {a[r0 + 1]}")
            items = groups(c.ins)
            with self.cap() as c:
                p(f"s_add_u32 {sT0}, {'s17' if o & 1 else 's3'}, {tb * 112 * KB}")
                nt = {0: "", 1: " nt", 2: " sc0", 3: " sc0 nt"}[self.opt.get("hnt", 0)] if self.fast else ""
                self.publish([f"buffer_store_dwordx4 {V(96)}, {vL16}, {SG}, {sT0} offen{nt}",
                              f"buffer_store_dwordx4 {V(100)}, {vL16}, {SG}, {sT0} offen offset:1024{nt}"], f"h{o}",
                             always_sc1=hsc1)
            items.append(c.ins)
            with self.cap() as c:
                p(f"s_add_u32 {sT1}, {'s1' if o & 1 else 's2'}, {tb * 256}")
                self.flag(sT1, 1 + layer, wait=f"h{o}", st=sT2)
            return items, c.ins
        streams = [([quad(6), quad(7)], 0, 3), (stl[:2], 1, 4), (stl[2:], 6, 8)]
        eps = [epilogue(o) for o in range(4)]
        E = self.opt.get("epend", 27)
        F = self.opt.get("fsc1", 14) if hsc1 else self.opt.get("fpl", 6)
        Es = [E, self.opt.get("e1", E), E]
        Fs = [F, F - (E - Es[1])]
        flex = [(eps[o][0], pos[28 * (o + 1)] + 2, pos[28 * (o + 1) + Es[o]]) for o in range(3)]
        flex.append((groups(st.ins), self.opt.get("gs", 11), 19))
        if not big and hsc1 and self.opt.get("stq", 0):
            for o in range(2):
                n1 = 28 * (o + 1) + E
                while n1 % 8 != 1:
                    n1 -= 1
                flex[o] = (eps[o][0][:-1], pos[28 * (o + 1)] + 2, pos[n1] - 1)
                streams.append(([eps[o][0][-1]], pos[n1], pos[n1]))
        if not self.opt.get("flex", 1):
            streams += flex
            flex = []
        for o in range(2):
            g = pos[28 * (o + 2) + Fs[o]]
            streams.append(([eps[o][1]], g, g))
        self.hl = self.h_loads()
        pa, pb = self.h_poll(0, layer), self.h_poll(1, layer)
        LAG = self.opt.get("lag", 7)
        if self.opt.get("ord", 0):
            for o, pl in ((1, pa), (2, pb)):
                items, a, b = flex[o]
                flex[o] = (items[:-1], a, b - 1)
                streams.append(([pl[0], items[-1]], b, b))
            GA = pos[56 + Es[1]]
            self.pb = [[], pb[1]]
        else:
            GA = pos[56 + F + self.opt.get("fda", 12)]
            streams.insert(0, ([pa[0]], GA, GA))
            self.pb = pb
        streams.append(([pa[1]], GA + LAG, GA + LAG))
        first = max(GA + LAG + 1, pos[84 + self.opt.get("h0", 0)])
        n0 = min(14, (pos[111] - first) // 2 + 1)
        streams.append((self.hl[:n0], first, pos[111] - 1))
        self.n0 = n0
        if extra:
            streams += extra(pos)
        if self.opt.get("fine3") and layer == 1:
            woven = spread2(main, streams, flex)
            k = 0
            for x in woven:
                p.add([x])
                if x.kind == "mfma":
                    k += 1
                    if k >= 58 and (k - 58) % 7 == 0:
                        self.stamp(f"n{k}")
        elif self.opt.get("fine"):
            self.stamp(f"f1_first{layer}")
            woven = spread2(main, streams, flex)
            k = 0
            for x in woven:
                p.add([x])
                if x.kind == "mfma":
                    k += 1
                    if k % 29 == 0 and k < 116:
                        self.stamp(f"f1_o{k // 29 - 1}_{layer}")
        else:
            p.add(spread2(main, streams, flex))
        self.stamp(f"ffn1_mfma{layer}")
        self.ffn2(layer, eps[3][0], eps[2][1], eps[3][1], F)

    def ffn2_setup(self, layer):
        p = self.p
        p(f"s_mul_i32 {sU[3]}, {srq}, {2 * 112 * KB}")
        p(f"s_lshl_b32 {sT3}, {sw}, 11")
        p(f"s_add_u32 {sU[3]}, {sU[3]}, {sT3}")
        p(f"s_lshl_b32 {sU[4]}, {srq}, 9")
        p(f"s_lshl_b32 {sT3}, {sw}, 6")
        p(f"s_add_u32 {sU[4]}, {sU[4]}, {sT3}")
        p(f"s_add_u32 {sU[4]}, {sU[4]}, {G_FH}")
        p(f"v_min_u32 v104, 6, {vLane}")
        p("v_lshlrev_b32 v104, 3, v104")
        p(f"s_and_b32 {sT3}, {srq}, 1")
        p(f"s_lshl_b32 {sT4}, {sT3}, 2")
        p(f"s_add_u32 {sU[4]}, {sU[4]}, {sT4}")
        p(f"s_lshl_b32 {sT4}, {sT3}, 13")
        p(f"s_sub_u32 {sU[8]}, {sU[3]}, {sT4}")
        p(f"s_add_u32 {sU[8]}, {sU[8]}, {8 * KB}")
        p(f"s_add_u32 {sU[3]}, {sU[3]}, {sT4}")
        p(f"s_lshr_b32 {sT3}, {srq}, 1")
        p(f"s_lshl_b32 {sT3}, {sT3}, 2")
        p(f"s_and_b32 {sT4}, {srq}, 1")
        p(f"s_add_u32 {sT3}, {sT3}, {sT4}")
        p(f"s_mul_i32 {sU[5]}, {sT3}, {28 * KB}")
        p(f"s_lshl_b32 {sT3}, {scb}, 12")
        p(f"s_lshl_b32 {sT4}, {sw}, 7")
        p(f"s_add_u32 {sT3}, {sT3}, {sT4}")
        p(f"s_add_u32 {sU[5]}, {sU[5]}, {sT3}")
        p(f"s_add_u32 {sU[5]}, {sU[5]}, {G_X}")
        if layer == 0:
            p(f"s_mul_i32 {sU[6]}, {srq}, {14 * KB}")
            p(f"s_lshr_b32 {sT3}, {scb}, 2")
            p(f"s_lshl_b32 {sT3}, {sT3}, 10")
            p(f"s_add_u32 {sU[6]}, {sU[6]}, {sT3}")
            p(f"s_and_b32 {sT3}, {scb}, 3")
            p(f"s_lshl_b32 {sT3}, {sT3}, 2")
            p(f"s_add_u32 {sT3}, {sT3}, {sT4}")
            p(f"s_add_u32 {sU[6]}, {sU[6]}, {sT3}")
            p(f"s_add_u32 {sU[6]}, {sU[6]}, {G_ST}")
            p(f"s_lshl_b32 {sT3}, {srq}, 8")
            p(f"s_lshl_b32 {sT4}, {scb}, 4")
            p(f"s_add_u32 {sT3}, {sT3}, {sT4}")
            p(f"s_lshl_b32 {sT4}, {sw}, 2")
            p(f"s_add_u32 {sT3}, {sT3}, {sT4}")
            p(f"s_add_u32 {sU[7]}, {sT3}, {G_FX}")
        else:
            p(f"s_lshl_b32 {sT3}, {sg}, 2")
            p(f"s_add_u32 {sT3}, {sT3}, {srq}")
            p(f"s_lshl_b32 {sT3}, {sT3}, 3")
            p(f"s_add_u32 {sT3}, {sT3}, {sw}")
            p(f"s_mul_i32 {sT3}, {sT3}, {8 * 896}")
            p(f"s_lshl_b32 {sT4}, {scb}, 7")
            p(f"s_add_u32 {sU[7]}, {sT3}, {sT4}")
        p(f"s_lshl_b32 {sT3}, {sw}, 13")
        p(f"v_add_u32 v105, {sT3}, {vS16}")
        if layer == 0:
            p(f"v_lshrrev_b32 v14, 5, {vLane}")
            p("v_lshlrev_b32 v14, 7, v14")
            p("v_xor_b32 v105, v105, v14")
            p("v_mov_b32 v106, v105")
        else:
            p("v_xor_b32 v106, 0x80, v105")
        p(f"v_and_b32 v13, 7, {vLane}")
        p("v_lshlrev_b32 v13, 4, v13")
        p(f"s_lshl_b32 {sT3}, {sw}, 7")
        p(f"v_add_u32 v13, {sT3}, v13")
        p(f"v_bfe_u32 v14, {vLane}, 3, 1")
        p("v_lshlrev_b32 v15, 7, v14")
        p("v_xor_b32 v13, v13, v15")
        p(f"v_lshl_add_u32 v13, v14, {9 if layer == 0 else 10}, v13")
        p(f"v_lshrrev_b32 v14, 4, {vLane}")
        p("v_lshl_add_u32 v13, v14, 11, v13")
        p(f"v_add_u32 v111, {L_S}, v13")

    def hreg(self, n):
        if not self.opt.get("xr", 0):
            return 112 + 4 * (n % 16), n - 16
        if n < 16:
            return 112 + 4 * n, -1
        if n < 20:
            return 64 + 4 * (n - 16), -1
        return 112 + 4 * ((n - 4) % 16), (n - 20 if n < 36 else n - 16)

    def h_loads(self):
        out = []
        for n in range(56):
            th, j = divmod(n, 28)
            q = sub()
            i = j >> 1
            if j % 14 == 0:
                q(f"s_add_u32 {sU[9]}, {sU[3] if i < 7 else sU[8]}, {th * 112 * KB}")
                q(f"v_add_u32 v15, {sU[9]}, {vL16}")
            q(f"buffer_load_dwordx4 {V(self.hreg(n)[0])}, v15, {SG}, s{8 + i % 7} offen offset:{(j % 2) * KB} sc1")
            out.append(q.ins)
        return out

    def h_poll(self, grp, layer):
        p = self.p
        st, tmp = (sU[0], sU[1])[grp & 1], (109, 13)[grp & 1]
        with self.cap() as c1:
            if grp & 1:
                p(f"s_xor_b32 {st}, {sU[4]}, 4")
                if grp >> 1:
                    p(f"s_add_u32 {st}, {st}, 256")
            else:
                p(f"s_add_u32 {st}, {sU[4]}, {(grp >> 1) * 256}")
            self.poll_load("v104", SG, st, 1, tmp)
        with self.cap() as c2:
            self.apoll_end("v104", SG, st, 1 + layer, 1, tmp)
        return c1.ins, c2.ins

    def ffn2(self, layer, ep3, flag2, flag3, F):
        p = self.p
        ACC = ((16, 48), (32, 64))
        lds = self.hl
        k0 = min(len(ep3), self.opt.get("k0", 89 if F > 10 else 20))
        LEAD = self.opt.get("leadh", 14)
        early_b = self.opt.get("ord", 0) and k0 > 60
        npre = self.opt.get("npre", 20 if self.opt.get("xr", 0) else 16) if early_b else 14
        pre = lds[self.n0:14]
        if self.pb[0]:
            pre = [self.pb[0]] + pre
        if early_b:
            p.add(spread(ep3[:k0], [(pre, 0, 40), ([self.pb[1]] + lds[14:npre], 44, k0 - 4)]))
            self.pb = []
        elif k0:
            p.add(spread(ep3[:k0], [(pre, 0, max(0, k0 - 4))]))
        else:
            for it in pre:
                p.add(it)
        ep3 = ep3[k0:]
        issued = npre
        RES = (88, 84)
        TL = self.opt.get("tl", 10)

        with self.cap() as su:
            p(f"v_and_b32 v107, 7, {vLane}")
            p(f"v_bfe_u32 v110, {vLane}, 3, 1")
            if layer == 0:
                p(f"v_lshrrev_b32 v108, 4, {vLane}")
                p("v_lshlrev_b32 v108, 9, v108")
                p("v_lshl_add_u32 v108, v107, 4, v108")
                p("v_lshlrev_b32 v107, 4, v107")
                p("v_lshl_add_u32 v107, v110, 9, v107")
            else:
                p("v_mul_u32_u24 v108, 896, v107")
                p("v_lshlrev_b32 v107, 4, v107")
                p("v_lshl_add_u32 v107, v110, 3, v107")
                p(f"v_lshrrev_b32 v110, 3, {vLane}")
                p("v_lshl_add_u32 v108, v110, 4, v108")
            p(f"v_lshrrev_b32 v110, 4, {vLane}")
            p("v_lshl_add_u32 v107, v110, 10, v107")

        def resid(th):
            q = sub()
            q(f"s_add_u32 {sT3}, {sU[5]}, {th * 2 * 28 * KB}")
            if layer == 0:
                q(f"buffer_load_dwordx4 {V(RES[th])}, v107, {SG}, {sT3} offen sc1")
            else:
                q(f"buffer_load_dwordx2 {V(RES[th], 2)}, v107, {SG}, {sT3} offen sc1")
                q(f"buffer_load_dwordx2 {V(RES[th] + 2, 2)}, v107, {SG}, {sT3} offen offset:512 sc1")
            return q.ins

        def mm():
            main = []
            for n in range(56):
                th, j = divmod(n, 28)
                b = V(self.hreg(n)[0])
                for ch in range(2):
                    acc = V(ACC[th][ch], 16)
                    main.append([Ins(f"{MFMA} {acc}, {w2reg(j, ch)}, {b}, {acc if j else 0}")])
            tail = main[112 - 2 * TL:]
            return main[:112 - 2 * TL] + tail[0::2] + tail[1::2]

        def reduce(th, woven):
            area = th * 16 * KB
            a0, a1 = ACC[th]
            quad = [a0, a0 + 4, a0 + 8, a0 + 12, a1, a1 + 4, a1 + 8, a1 + 12]
            T = 92
            items = []
            with self.cap() as c:
                for k in range(8):
                    p(f"ds_write_b128 v{105 + (k & 1)}, {V(quad[k])} offset:{area + k * KB}")
                for r in range(4):
                    p(f"v_lshlrev_b32 v{T + 2 * r}, 16, v{RES[th] + r}")
                    p(f"v_and_b32 v{T + 2 * r + 1}, {sHI}, v{RES[th] + r}")
            items += groups(c.ins)
            with self.cap() as c:
                p.wait_ds()
                p("s_barrier")
                for u in range(4):
                    for k in range(2):
                        p(f"ds_read_b128 {V(quad[2 * u + k])}, v111 offset:{area + u * 8 * KB + k * (KB if layer == 0 else 512)}")
            items += groups(c.ins)
            with self.cap() as c:
                for u in range(4):
                    for k in range(2):
                        if woven:
                            for r in range(4):
                                p(f"v_add_f32 v{T + 4 * k + r}, v{T + 4 * k + r}, v{quad[2 * u + k] + r}")
                        else:
                            for r in (0, 2):
                                p(f"v_pk_add_f32 {V(T + 4 * k + r, 2)}, {V(T + 4 * k + r, 2)}, {V(quad[2 * u + k] + r, 2)}")
                for r in range(4):
                    p(f"v_cvt_pk_bf16_f32 v{80 + r}, v{T + 2 * r}, v{T + 2 * r + 1}")
            items += groups(c.ins)
            if layer == 1:
                with self.cap() as c:
                    p(f"s_add_u32 {sT3}, {sU[7]}, {th * 32 * 896}")
                    p(f"buffer_store_dwordx4 {V(80)}, v108, {SOUT}, {sT3} offen {'sc1' if self.opt.get('outsc1', 1) else ''}")
                items.append(c.ins)
                return items, []
            with self.cap() as c:
                p(f"s_add_u32 {sT4}, {sU[5]}, {th * 2 * 28 * KB}")
                self.publish([f"buffer_store_dwordx4 {V(80)}, v107, {SG}, {sT4} offen"], f"x{th}")
            items.append(c.ins)
            with self.cap() as c:
                p(f"v_add_f32 v100, v{T}, v{T + 1}")
                p(f"v_mul_f32 v101, v{T}, v{T}")
                p(f"v_fmac_f32 v101, v{T + 1}, v{T + 1}")
                for r in range(2, 8):
                    p(f"v_add_f32 v100, v100, v{T + r}")
                    p(f"v_fmac_f32 v101, v{T + r}, v{T + r}")
                p("v_add_f32_dpp v100, v100, v100 row_ror:8 row_mask:0xf bank_mask:0xf")
                p("v_add_f32_dpp v101, v101, v101 row_ror:8 row_mask:0xf bank_mask:0xf")
                p("v_permlane16_swap_b32 v100, v101")
                p("v_add_f32 v100, v100, v101")
                p("v_mov_b32 v101, v100")
                p("v_permlane32_swap_b32 v100, v101")
                p("v_add_f32 v100, v100, v101")
            items += groups(c.ins)
            with self.cap() as c:
                p(f"s_add_u32 {sT3}, {sU[6]}, {th * 7 * KB}")
                self.publish(["s_mov_b64 exec, 0x00ff00ff", f"buffer_store_dword v100, v108, {SG}, {sT3} offen",
                              "s_mov_b64 exec, -1"], f"x{th}")
            items.append(c.ins)
            with self.cap() as c:
                p(f"s_add_u32 {sT3}, {sU[7]}, {th * 128}")
                self.flag(sT3, 2, wait=f"x{th}", tmp=102, st=sT4)
            return items, c.ins
        E3 = max(4, len(ep3) * self.opt.get("e3", 24) // 89)
        F2 = self.opt.get("f2", 4 if F > 10 else max(0, F - 6))
        F3 = self.opt.get("f3", E3 + (20 if F > 10 else 16))
        LAG = self.opt.get("lag2", 14)
        pc, pd = self.h_poll(2, layer), self.h_poll(3, layer)
        seen = {0: -1, 1: self.opt.get("gb2", 6) if self.pb else -1}
        GC = F2 + self.opt.get("fd2", 18)
        seen[2] = GC + LAG
        GD = max(F3 + self.opt.get("fd2", 18), seen[2] + 1)
        seen[3] = GD + LAG
        streams = []
        if self.pb:
            streams.append(([self.pb[1]], seen[1], seen[1]))
        streams += [([pc[0]], GC, GC), ([pc[1]], seen[2], seen[2]), ([pd[0]], GD, GD), ([pd[1]], seen[3], seen[3])]
        g = 0.0
        for n in range(issued, 56):
            free = 2 * self.hreg(n)[1] + 1
            g = max(g, free, 2 * (n - LEAD) + 1, seen[n // 14])
            use = 2 * n if n < 56 - TL else 112 - 2 * TL + (n - (56 - TL))
            g = min(g, use - 2 * self.opt.get("minlead", 4) + 1)
            assert g >= seen[n // 14] and g >= free, (n, g)
            streams.append(([lds[n]], int(g), int(g)))
            g += self.opt.get("pace", 21) / 10
        bar = [Ins("s_barrier")]
        r0, f0 = reduce(0, True)
        r1, f1 = reduce(1, False)
        if layer == 1:
            go = max(self.opt.get("go", 106), int(g))
            streams.append(([r0[-1]], go, go))
            r0 = r0[:-1]
        if TL:
            streams.append((r1[8:16], 112 - TL - 4, 112 - TL - 1))
            streams.append((r1[:4], 112 - TL + 2, 111))
            r1 = r1[4:8] + r1[16:]
        streams += [([bar], 0, 0), (ep3, 1, E3), ([flag2], F2, F2), ([flag3], F3, F3),
                    (groups(su.ins) + [resid(0)], E3 + 1, E3 + 16), ([resid(1)], 56, 56), ([bar], 96, 96)]
        if self.opt.get("rflex", 1):
            streams += [(r0[:8], 58, 71), (r0[8:16], 59, 71), (r0[16:25], 73, 80), (r0[25:], 81, 97)]
        else:
            streams.append((r0, 57, 92))
        if f0:
            streams.append(([f0], 108, 108))
        woven = spread(mm(), streams)
        k = 0
        for x in woven:
            p.add([x])
            if x.kind == "mfma":
                k += 1
                if k == 56:
                    self.stamp(f"th0_done{layer}")
                elif self.opt.get("fine2") and layer == 1 and (k == 1 or k % 14 == 0) and k < 112:
                    self.stamp(f"m{k}")
        self.stamp(f"th1_done{layer}")
        for it in r1:
            p.add(it)
        p.add(f1)
        self.stamp(f"ffn2_done{layer}")

    def spare0(self):
        p = self.p
        if not self.opt.get("h0sc1", 1) or self.opt.get("htouch", 0):
            p(f"s_and_b32 {sT0}, {sh}, 1")
            p(f"s_lshl_b32 {sT0}, {sT0}, 2")
            p(f"s_add_u32 {sT0}, {sT0}, {sw}")
            p(f"s_mul_i32 {sT0}, {sT0}, {14 * KB}")
            p(f"s_mul_i32 {sT1}, {srh}, {4 * 112 * KB}")
            p(f"s_add_u32 {sT0}, {sT0}, {sT1}")
            p(f"v_lshlrev_b32 v64, 7, {vLane}")
            for tb in (0, 2, 1, 3):
                for off in (0, 6 * KB):
                    p(f"s_add_u32 {sT1}, {sT0}, {G_H + tb * 112 * KB + off}")
                    p(f"buffer_load_dword v65, v64, {SG}, {sT1} offen sc1")
        self.colsum_qkv()
        p.wait_ds()
        p("s_barrier")
        self.colsum_qkv_fetch()
        w2pre = self.opt.get("w2pre", 1)
        if w2pre:
            if w2pre == 2:
                p(f"v_min_u32 v16, 27, {vLane}")
                p("v_lshlrev_b32 v16, 2, v16")
                p(f"s_lshl_b32 {sT0}, {stb}, 7")
                p(f"s_add_u32 {sT0}, {sT0}, {G_FX}")
                self.poll("v16", SG, sT0, 1, sleep=2)
            p(f"s_and_b32 {sT0}, {sh}, 1")
            p(f"s_lshl_b32 {sT0}, {sT0}, 3")
            p(f"s_add_u32 {sT0}, {sT0}, {stb}")
            p(f"v_lshlrev_b32 v64, 7, {vLane}")
            for t in range(7):
                p(f"s_add_u32 {sT1}, {sT0}, {16 * t}")
                p(f"s_min_u32 {sT1}, {sT1}, 97")
                p(f"s_mul_i32 {sT2}, {sT1}, 147")
                p(f"s_lshr_b32 {sT2}, {sT2}, 10")
                p(f"s_mul_i32 {sT3}, {sT2}, 7")
                p(f"s_sub_u32 {sT1}, {sT1}, {sT3}")
                p(f"s_add_u32 {sT2}, {sT2}, 8")
                p(f"s_cmp_ge_u32 {sT2}, 14")
                p(f"s_cselect_b32 {sT3}, 14, 0")
                p(f"s_sub_u32 {sT2}, {sT2}, {sT3}")
                p(f"s_mul_i32 {sT1}, {sT1}, {224 * KB}")
                p(f"s_lshl_b32 {sT2}, {sT2}, 14")
                p(f"s_add_u32 {sT1}, {sT1}, {sT2}")
                p(f"s_add_u32 {sT1}, {sT1}, {WS_P2}")
                p(f"buffer_load_dword v65, v64, {SWS}, {sT1} offen sc1")
                p(f"s_add_u32 {sT1}, {sT1}, {8 * KB}")
                p(f"buffer_load_dword v65, v64, {SWS}, {sT1} offen sc1")
        if self.opt.get("nap", 0):
            p(f"v_min_u32 v16, 13, {vLane}")
            p("v_lshlrev_b32 v16, 2, v16")
            p(f"s_lshl_b32 {sT0}, {srh}, 10")
            p(f"s_add_u32 {sT0}, {sT0}, {G_FH + 3 * 256}")
            self.poll("v16", SG, sT0, 1, sleep=12)
        p("s_waitcnt vmcnt(0) lgkmcnt(0)")

    def spare1(self):
        p = self.p
        wb = self.opt.get("wb", 0)
        if not wb:
            return
        p(f"s_and_b32 {sT0}, {sh}, 1")
        p(f"s_or_b32 {sT0}, {sT0}, {srh}")
        p(f"s_or_b32 {sT0}, {sT0}, {sw}")
        p(f"s_cmp_lg_u32 {sT0}, 0")
        p(f"s_cbranch_scc1 L_fin{self.sfx}")
        if wb == 4:
            p(f"v_and_b32 v13, 15, {vLane}")
            p("v_min_u32 v13, 13, v13")
            p(f"v_bfe_u32 v14, {vLane}, 4, 1")
            p("v_lshl_add_u32 v13, v14, 5, v13")
            p("v_lshlrev_b32 v16, 2, v13")
            p(f"s_mov_b32 {sT0}, {G_FO + 64}")
            self.poll("v16", SG, sT0, 9)
            p("buffer_wbl2 sc1")
            p("s_waitcnt vmcnt(0)")
            return
        p(f"v_and_b32 v13, 15, {vLane}")
        p("v_min_u32 v13, 13, v13")
        p("v_lshlrev_b32 v13, 3, v13")
        p(f"v_lshrrev_b32 v14, 4, {vLane}")
        p("v_lshl_add_u32 v16, v14, 7, v13")
        p(f"s_mov_b32 {sT0}, {G_FX}")
        self.poll("v16", SG, sT0, 3, 2)
        p(f"s_mov_b32 {sT0}, {G_FX + 512}")
        self.poll("v16", SG, sT0, 3, 2)
        p("buffer_wbl2 sc1")
        p("s_waitcnt vmcnt(0)")
        if wb >= 2:
            p(f"v_and_b32 v13, 15, {vLane}")
            p("v_min_u32 v13, 13, v13")
            p("v_lshlrev_b32 v13, 2, v13")
            p(f"v_lshrrev_b32 v14, 4, {vLane}")
            p("v_lshl_add_u32 v16, v14, 6, v13")
            for tb in ((2, 3) if wb == 2 else (0, 2, 1, 3)):
                for half in range(2):
                    p(f"s_mov_b32 {sT0}, {G_FH + (4 * half + tb) * 256}")
                    self.poll("v16", SG, sT0, 2)
                p("buffer_wbl2 sc1")
                p("s_waitcnt vmcnt(0)")

    def finish(self):
        p = self.p
        p(f"s_or_b32 {sT0}, {sg}, {sh}")
        p(f"s_or_b32 {sT0}, {sT0}, {srh}")
        p(f"s_or_b32 {sT0}, {sT0}, {sw}")
        p(f"s_cmp_lg_u32 {sT0}, 0")
        p(f"s_cbranch_scc1 L_fin{self.sfx}")
        p(f"s_add_u32 {sT0}, {sE}, 64")
        p(f"v_mov_b32 v14, {sT0}")
        p("s_mov_b64 exec, 1")
        p(f"buffer_store_dword v14, {vL16}, {SWS}, 0 offen sc1")
        p("s_mov_b64 exec, -1")
        p(f"L_fin{self.sfx}:")
        if self.pad:
            p("s_waitcnt vmcnt(0)")
            if self.opt.get("amp") == "end":
                p("s_memrealtime s[94:95]")
            p("s_waitcnt lgkmcnt(0)")
            p("s_sub_u32 s94, s94, s96")
            p("s_mul_i32 s94, s94, 4")
            p("s_min_u32 s94, s94, 20000")
            p(f"s_add_u32 s94, s94, {self.pad}")
            p(f"L_pad{self.sfx}:")
            p("s_memrealtime s[98:99]")
            p("s_waitcnt lgkmcnt(0)")
            p("s_sub_u32 s98, s98, s96")
            p(f"s_cmp_lt_u32 s98, s94")
            p(f"s_cbranch_scc1 L_pad{self.sfx}")
        if self.diag:
            p("s_waitcnt vmcnt(0)")
            self.stamp("end")
            self.stamp_flush()
            p(f"s_lshl_b32 {sT0}, {srh}, 4")
            p(f"s_add_u32 {sT0}, {sT0}, {sh}")
            p(f"s_lshl_b32 {sT0}, {sT0}, 3")
            p(f"s_add_u32 {sT0}, {sT0}, {sg}")
            p(f"s_lshl_b32 {sT0}, {sT0}, 2")
            p(f"s_add_u32 {sT0}, {sT0}, {sw}")
            p(f"s_lshl_b32 {sT0}, {sT0}, 7")
            p(f"s_add_u32 {sT0}, {sT0}, {WS_DIAG}")
            p("s_mov_b64 exec, 1")
            for i in range(self.nstamp):
                p(f"v_mov_b32 v14, s{STAMP0 + i}")
                p(f"buffer_store_dword v14, {vL16}, {SWS}, {sT0} offen offset:{4 * i}")
            for k in range(2):
                p(f"v_mov_b32 v14, s{18 + k}")
                p(f"buffer_store_dword v14, {vL16}, {SWS}, {sT0} offen offset:{112 + 4 * k}")
            p(f"v_mov_b32 v14, {1 if self.fast else 0}")
            p(f"buffer_store_dword v14, {vL16}, {SWS}, {sT0} offen offset:120")
            p(f"v_mov_b32 v14, {slim}")
            p(f"buffer_store_dword v14, {vL16}, {SWS}, {sT0} offen offset:124")
            p("s_mov_b64 exec, -1")
        p("s_waitcnt vmcnt(0)")
        p("s_endpgm")

    def body(self):
        p = self.p
        x = self.sfx
        if self.opt.get("gc", 56) < 56:
            self.kv0_rest()
        self.q0()
        self.kv_finish(0, 64, "v11")
        self.stamp_flush()
        p(f"s_cmp_ge_u32 {sh}, 14")
        p(f"s_cbranch_scc1 L_spare0{x}")
        assert len(self.bulk) <= 84
        b2 = self.touch[4] + self.take(self.opt.get("b2", 8))

        def pre_wo0():
            for it in b2:
                p.add(it)
            self.colsum_qkv()
        n_before = min(28, 28 + 56 - len(self.bulk))
        cs1 = self.colsum_w1_items()
        b3 = self.take(self.opt.get("b3", 10))
        self.wo_phase(0, pre_wo0, [(cs1[:n_before], 0, 26), (b3, 20, 27)])
        b4 = self.take(max(self.opt.get("b4", 0), len(self.bulk) - 56))

        def pre_ffn0():
            self.colsum_qkv_fetch()
            for it in b4:
                p.add(it)
            for it in cs1[n_before:]:
                p.add(it)
            p(f"v_mov_b32 v84, v{vCS1}")
            p(f"v_mov_b32 v85, v{vCS1 + 1}")
            p.wait_ds()
            p("s_barrier")

        def extra0(pos):
            return [(self.take(100), self.opt.get("w2beg", 0), pos[self.opt.get("w2end", 108)])]
        self.ffn(0, pre_ffn0, extra0)
        p(f"L_layer1{x}:")
        p("s_waitcnt lgkmcnt(0)")
        self.qkv1()
        self.kv_finish(1, 96, "v91")
        p(f"s_cmp_ge_u32 {sh}, 14")
        p(f"s_cbranch_scc1 L_spare1{x}")
        self.wo_phase(1)
        self.ffn(1)
        self.finish()
        p(f"L_spare0{x}:")
        p("s_waitcnt vmcnt(0) lgkmcnt(0)")
        self.spare0()
        p(f"s_branch L_layer1{x}")
        p(f"L_spare1{x}:")
        p("s_waitcnt vmcnt(0) lgkmcnt(0)")
        self.spare1()
        p(f"s_branch L_fin{x}")
        p.add(self.tail)
        self.tail = []

    def build(self):
        p = self.p
        self.prologue()
        self.startup()
        self.qkv0()
        self.body()
        p("L_fastend:")
        p("L_slow:")
        p("s_waitcnt vmcnt(0) lgkmcnt(0)")
        p("s_nop 7")
        self.fast = False
        self.sfx = "_s"
        self.body()
        return finalize(p.ins)


HEADER = f"""; Two layers of (LayerNorm, linear attention, output projection, LayerNorm, SiLU FFN) in ONE persistent launch.
;
; LayerNorm: exact in front of the first GEMM; later folded into the GEMMs (mean as an extra K step against the
; @launch grid=(256,1,1) block=(256,1,1) lds={LDS_BYTES}
.amdgcn_target "amdgcn-amd-amdhsa--gfx950"
.text
.globl {NAME}_kernel
.p2align 8
.type {NAME}_kernel,@function
{NAME}_kernel:
"""
FOOTER = f"""
.section .rodata,"a"
.p2align 6
.amdhsa_kernel {NAME}_kernel
  .amdhsa_next_free_vgpr 512
  .amdhsa_next_free_sgpr 102
  .amdhsa_accum_offset 256
  .amdhsa_group_segment_fixed_size 0
  .amdhsa_kernarg_size 72
  .amdhsa_user_sgpr_count 2
  .amdhsa_user_sgpr_kernarg_segment_ptr 1
  .amdhsa_system_sgpr_workgroup_id_x 1
.end_amdhsa_kernel
"""


def generate(**kw):
    g = Gen(**kw)
    lines = g.build()
    return HEADER + "\n".join(lines) + FOOTER, g


if __name__ == "__main__":
    out = sys.argv[1] if len(sys.argv) > 1 else f"cdna_kernels/{NAME}.s"
    kw = {}
    for a in sys.argv[2:]:
        k, _, v = a.partition("=")
        kw[k] = (int(v) if v.lstrip('-').isdigit() else v) if v else True
    text, g = generate(**kw)
    open(out, "w").write(text)
    print("wrote", out, len(text), "bytes;", text.count("\n"), "lines")
```

```python
import sys, os
sys.path.insert(0, os.path.dirname(os.path.abspath(__file__)))
from asmlib import *

NAME = "interleave_layers__linear_attn_block__dense_activation_silu__prompt"
KB = 1024

WS_EPOCH = 0
WS_RA = 0x8000
WS_RB = 0x10000
WS_DIAG = 0x20000
WS_KV = 0x80000
KV_L = 0x80000
WS_PQ = 0x180000
WS_PO = WS_PQ + 16 * 28 * KB
WS_P1 = WS_PO + 14 * 28 * KB
WS_P2 = WS_P1 + 14 * 112 * KB
WS_G = 0x680000
assert WS_P2 + 7 * 224 * KB <= WS_G
OOB = 0x40000000
G_STRIDE = 0x160000
G_H = 0
G_O = 8 * 112 * KB
G_X = G_O + 8 * 28 * KB
G_ST = G_X + 8 * 28 * KB
G_FX = G_ST + 8 * 7 * KB
G_FO = G_FX + 1024
G_FH = G_FO + 1024
G_END = G_FH + 2048
assert G_END <= G_STRIDE
WS_BYTES = WS_G + 8 * G_STRIDE

L_WK, L_WV, L_WQ, L_WO, L_S = 0, 28 * KB, 56 * KB, 84 * KB, 112 * KB
L_XST = 48 * KB
S_KVP, S_KVS = 0, 16 * KB
S_CS = 18 * KB
S_STAT, S_TR = 44 * KB, 44 * KB
LDS_BYTES = 160 * KB

SX, SQ, SO, S1, S2, SOUT, SWS, SG = ("s[8:11]", "s[12:15]", "s[16:19]", "s[20:23]", "s[24:27]", "s[28:31]",
                                     "s[32:35]", "s[36:39]")
sE, sg, sh, srh, sw, sfast, srq, scb, stb, sxs, slim = ("s56", "s57", "s58", "s59", "s60", "s61", "s62", "s63",
                                                        "s64", "s65", "s66")
sT0, sT1, sT2, sT3, sT4, sT5 = "s40", "s41", "s42", "s43", "s44", "s45"
sCnt, sNeed = "s46", "s47"
sONES, sLOG2E, sEPS6, sHI = "s48", "s49", "s50", "s51"
sM28 = "s[52:53]"
sMPAD = "s[54:55]"
sHB, sXB, sSTB = "s67", "s68", "s69"
STAMP0 = 80
sU = [f"s{70 + i}" for i in range(10)]
SPK = "s[20:23]"

vLane, vL16, vTrA, vTrB = "v0", "v1", "v2", "v3"
vCS1 = 4
vCSQ = 6
vS16 = "v12"
vT0, vT1, vT2 = "v13", "v14", "v15"


def V(n, k=4):
    return f"v[{n}:{n + k - 1}]" if k > 1 else f"v{n}"


def A(n, k=4):
    return f"a[{n}:{n + k - 1}]" if k > 1 else f"a{n}"


def w1reg(s, lo=0, k=4):
    return A(224 + 4 * s + lo, k) if s < 8 else V(176 + 4 * (s - 8) + lo, k)


def w2reg(j, ch, lo=0, k=4):
    return A(8 * j + 4 * ch + lo, k)


MFMA = "v_mfma_f32_32x32x16_bf16"
MFMA16 = "v_mfma_f32_16x16x32_bf16"


class Capture:
    def __init__(self, g):
        self.g = g

    def __enter__(self):
        self.saved = self.g.p.ins
        self.g.p.ins = []
        self.ins = self.g.p.ins
        return self

    def __exit__(self, *a):
        self.g.p.ins = self.saved


class Gen:
    def __init__(self, diag=False, force_slow=False, pad=0, part=0, **opt):
        self.p = Prog()
        self.diag = diag
        self.force_slow = force_slow
        self.pad = pad
        self.part = part
        self.opt = opt
        self.nstamp = 0
        self.seen = 0
        self.stamp_names = []
        self.pending = False
        self.tail = []
        self.fast = True
        self.sfx = ""

    def cap(self):
        return Capture(self)

    def stamp(self, name, op="s_memrealtime"):
        if self.opt.get("amp") == name and self.fast:
            self.p("s_memrealtime s[94:95]")
        if not self.diag or not self.fast:
            return
        self.seen += 1
        lo = self.opt.get("from", 18 * self.part)
        if self.seen > 2 and not (lo <= self.seen - 3 < lo + 18):
            return
        self.stamp_flush()
        assert STAMP0 + self.nstamp < 100, "too many stamps"
        if self.opt.get("clk") and self.seen > 1:
            op = "s_memtime"
        self.p(f"{op} s[100:101]")
        self.stamp_names.append(name)
        self.nstamp += 1
        self.pending = True

    def stamp_flush(self):
        if self.diag and self.pending:
            self.p(f"s_mov_b32 s{STAMP0 + self.nstamp - 1}, s100")
            self.pending = False

    def publish(self, stores, tag="pub", always_sc1=False):
        for s in stores:
            self.p(s + (" sc1" if s.startswith("buffer_") and (always_sc1 or not self.fast) else ""), tag)

    def flag(self, soff, val, n=1, wait="pub", tmp=14, st=sT5):
        p = self.p
        p(f"s_add_u32 {st}, {sE}, {val}")
        p(f"v_mov_b32 v{tmp}, {st}")
        if n == 2:
            p(f"v_mov_b32 v{tmp + 1}, {st}")
        op = f"buffer_store_dword v{tmp}" if n == 1 else f"buffer_store_dwordx2 v[{tmp}:{tmp + 1}]"
        p.wait_vm(wait)
        self.publish(["s_mov_b64 exec, 1", f"{op}, {vL16}, {SG}, {soff} offen", "s_mov_b64 exec, -1"], "flag")

    def poll_load(self, vaddr, srd, soff, n, tmp):
        if n == 1:
            self.p(f"buffer_load_dword v{tmp}, {vaddr}, {srd}, {soff} offen sc1")
        else:
            self.p(f"buffer_load_dwordx2 v[{tmp}:{tmp + 1}], {vaddr}, {srd}, {soff} offen sc1")

    def poll_test(self, n, tmp, need, win=3):
        p = self.p
        p(f"v_subrev_u32 v{tmp}, {need}, v{tmp}")
        if n == 2:
            p(f"v_subrev_u32 v{tmp + 1}, {need}, v{tmp + 1}")
            p(f"v_or_b32 v{tmp}, v{tmp}, v{tmp + 1}")
        p(f"v_cmp_lt_u32 vcc, {win}, v{tmp}")

    def spin(self, vaddr, srd, soff, n, tmp, need, done, sleep=0, win=3):
        p = self.p
        lp = p.label("poll")
        p(f"s_mov_b32 {sCnt}, {slim}")
        p(f"{lp}:")
        self.poll_load(vaddr, srd, soff, n, tmp)
        p("s_waitcnt vmcnt(0)")
        self.poll_test(n, tmp, need, win)
        p(f"s_cbranch_vccz {done}")
        sleep = sleep or self.opt.get("slp", 0)
        if sleep:
            p(f"s_sleep {sleep}")
        p(f"s_sub_u32 {sCnt}, {sCnt}, 1")
        p(f"s_cmp_lg_u32 {sCnt}, 0")
        p(f"s_cbranch_scc1 {lp}")
        p(f"s_mov_b32 {slim}, 1")

    def poll(self, vaddr, srd, soff, need, n=1, tmp=14, sleep=0):
        p = self.p
        ld = p.label("polled")
        p(f"s_add_u32 {sNeed}, {sE}, {need}")
        self.spin(vaddr, srd, soff, n, tmp, sNeed, ld, sleep)
        p(f"{ld}:")

    def apoll_end(self, vaddr, srd, soff, need, n=1, tmp=14, win=3):
        p = self.p
        lo, lb = p.label("aspin"), p.label("aback")
        p(f"s_add_u32 {sNeed}, {sE}, {need}")
        self.poll_test(n, tmp, sNeed, win)
        p(f"s_cbranch_vccnz {lo}")
        p(f"{lb}:")
        with self.cap() as c:
            p(f"{lo}:")
            p("s_nop 4")
            self.spin(vaddr, srd, soff, n, tmp, sNeed, lb, 0, win)
            p(f"s_branch {lb}")
        self.tail.extend(c.ins)

    def trread(self, dst_lo, dst_hi, vaddr, off, second=512):
        return [Ins(f"ds_read_b64_tr_b16 {dst_lo}, {vaddr} offset:{off}"),
                Ins(f"ds_read_b64_tr_b16 {dst_hi}, {vaddr} offset:{off + second}")]

    def transpose_block(self, reg, aw, ar):
        return [Ins(f"ds_write_b128 {aw}, {reg(0, 4)}"),
                Ins(f"ds_read_b64_tr_b16 {reg(0, 2)}, {ar}"),
                Ins(f"ds_read_b64_tr_b16 {reg(2, 2)}, {ar} offset:512")]

    def tr_addrs(self, aw, ar):
        p = self.p
        p(f"s_lshl_b32 {sT0}, {sw}, 10")
        p(f"s_add_u32 {sT0}, {sT0}, {L_S + S_TR}")
        p(f"v_add_u32 {aw}, {sT0}, {vL16}")
        p(f"v_add_u32 {ar}, {sT0}, {vTrA}")

    def both_halves(self, s, q, tmp):
        p = self.p
        p(f"v_permlane32_swap_b32 {s}, {q}")
        p(f"v_add_f32 {s}, {s}, {q}")

    def stats_finish(self, t, u, mean, var):
        p = self.p
        p(f"v_mov_b32 {u}, {t}")
        p(f"v_permlane32_swap_b32 {t}, {u}")
        p(f"v_mul_f32 {mean}, 0x3b124925, {t}")
        p(f"v_mul_f32 {var}, 0x3b124925, {u}")
        p(f"v_fma_f32 {var}, -{mean}, {mean}, {var}")
        p(f"v_max_f32 {var}, 0, {var}")
        p(f"v_add_f32 {var}, 0x3727c5ac, {var}")

    def split_words(self, x, w0, w1, t, neg, xside):
        p = self.p
        s = "-" if neg else ""
        p(f"v_cvt_pk_bf16_f32 {w0}, {s}{x}, {s}{x}")
        p(f"v_and_b32 {t}, {sHI}, {w0}")
        p(f"v_sub_f32 {t}, {s}{x}, {t}" if not neg else f"v_sub_f32_e64 {t}, -{x}, {t}")
        if xside:
            p(f"v_and_b32 {w1}, 0xffff, {w0}")
            p(f"v_cvt_pk_bf16_f32 {t}, {t}, {t}")
            p(f"v_and_or_b32 {w0}, {t}, {sHI}, {w1}")
        else:
            p(f"v_cvt_pk_bf16_f32 {w1}, {t}, 0")

    def prologue(self):
        p = self.p
        p("s_cmp_lt_u32 s2, 256")
        p("s_cbranch_scc1 L_start")
        p("s_endpgm")
        p("L_start:")
        p("s_load_dwordx4 s[40:43], s[0:1], 0")
        p("s_load_dwordx2 s[52:53], s[0:1], 64")
        p("s_load_dwordx2 s[44:45], s[0:1], 16")
        p("s_load_dwordx4 s[48:51], s[0:1], 32")
        p("s_load_dwordx2 s[46:47], s[0:1], 48")
        self.stamp("realtime", "s_memrealtime")
        if self.pad:
            p("s_memrealtime s[96:97]")
            p("s_memrealtime s[94:95]")
        p("s_getpc_b64 s[6:7]")
        p("L_pc:")
        p("v_lshrrev_b32 v13, 6, v0")
        p(f"v_and_b32 {vLane}, 63, v0")
        p(f"v_readfirstlane_b32 {sw}, v13")
        p(f"s_and_b32 {sg}, s2, 7")
        p(f"s_lshr_b32 s3, s2, 3")
        p(f"s_lshl_b32 s4, s3, 2")
        p(f"s_add_u32 s4, s4, {sw}")
        p(f"s_lshl_b32 s4, s4, 9")
        p(f"v_lshlrev_b32 v9, 7, {vLane}")
        p("v_add_u32 v13, s4, v9")
        p("v_min_u32 v13, L_fastend-L_pc-4, v13")
        p("s_mov_b64 exec, 0xf")
        p("global_load_dword v10, v13, s[6:7]")
        p("s_mov_b64 exec, -1")
        if self.opt.get("remap", 0):
            order = [15, 2, 4, 6, 9, 11, 13, 3, 5, 10, 12, 1, 8, 0, 7, 14]
            tab = sum(hh << (4 * k) for k, hh in enumerate(order))
            p(f"s_mov_b32 s4, {tab & 0xffffffff:#x}")
            p(f"s_mov_b32 s5, {tab >> 32:#x}")
            p(f"s_and_b32 {srh}, s3, 1")
            p(f"s_lshr_b32 {sh}, s3, 1")
            p(f"s_lshl_b32 {sh}, {sh}, 2")
            p(f"s_lshr_b64 s[4:5], s[4:5], {sh}")
            p(f"s_and_b32 {sh}, s4, 15")
        else:
            p(f"s_and_b32 {sh}, s3, 15")
            p(f"s_lshr_b32 {srh}, s3, 4")
        p(f"s_lshl_b32 s2, {sg}, 1")
        p(f"s_add_u32 s2, s2, {srh}")
        p("s_lshl_b32 s3, s2, 2")
        p(f"s_add_u32 s3, s3, {sw}")
        p("s_min_u32 s5, s3, 55")
        p("s_cmp_ge_u32 s5, 28")
        p("s_cselect_b32 s4, 1, 0")
        p("s_cselect_b32 s6, 28, 0")
        p("s_sub_u32 s5, s5, s6")
        p(f"v_lshrrev_b32 v13, 2, {vLane}")
        p(f"v_and_b32 v15, 3, {vLane}")
        p("v_lshlrev_b32 v15, 4, v15")
        p("v_mul_u32_u24 v14, 2688, v13")
        p("v_add_u32 v6, v14, v15")
        p("v_mul_u32_u24 v14, 896, v13")
        p("v_add_u32 v7, v14, v15")
        p("v_mul_u32_u24 v14, 3584, v13")
        p("v_add_u32 v8, v14, v15")
        p(f"s_cmp_ge_u32 {sh}, 7")
        p(f"s_cselect_b32 s6, 1, 0")
        p(f"s_cselect_b32 s7, 7, 0")
        p(f"s_lshl_b32 {srq}, {srh}, 1")
        p(f"s_add_u32 {srq}, {srq}, s6")
        p(f"s_sub_u32 {scb}, {sh}, s7")
        p(f"s_lshl_b32 {stb}, {srh}, 2")
        p(f"s_and_b32 s6, {sw}, 1")
        p(f"s_lshl_b32 s6, s6, 1")
        p(f"s_lshr_b32 s7, {sw}, 1")
        p(f"s_or_b32 s6, s6, s7")
        p(f"s_add_u32 {sxs}, {stb}, s6")
        p(f"s_add_u32 {stb}, {stb}, {sw}")
        p(f"v_lshlrev_b32 {vL16}, 4, {vLane}")
        p(f"v_lshrrev_b32 v13, 3, {vLane}")
        p("v_mul_u32_u24 v14, 896, v13")
        p("v_lshrrev_b32 v13, 1, v13")
        p(f"v_and_b32 v15, 7, {vLane}")
        p("v_xor_b32 v13, v13, v15")
        p("v_lshl_add_u32 v16, v13, 4, v14")
        p("v_xor_b32 v13, 4, v13")
        p("v_lshl_add_u32 v17, v13, 4, v14")
        p(f"s_lshl_b32 {sU[0]}, {sg}, 3")
        p(f"s_add_u32 {sU[0]}, {sU[0]}, {stb}")
        p(f"s_mul_i32 {sU[0]}, {sU[0]}, {32 * 896}")
        p(f"s_mul_i32 {sU[1]}, {sw}, {28 * KB}")
        p(f"s_add_u32 {sU[1]}, {sU[1]}, {L_XST}")
        p(f"s_cmp_ge_u32 {sh}, 14")
        p(f"s_cselect_b32 {sU[2]}, 7, 0")
        p(f"s_sub_u32 {sU[2]}, {scb}, {sU[2]}")
        p(f"s_mul_i32 {sU[7]}, s2, 37")
        p(f"s_lshr_b32 {sU[7]}, {sU[7]}, 8")
        p(f"s_mul_i32 {sU[7]}, {sU[7]}, 7")
        p(f"s_sub_u32 {sU[6]}, s2, {sU[7]}")
        p(f"s_sub_i32 {sU[7]}, {sU[2]}, {sU[6]}")
        p(f"s_cmp_lt_i32 {sU[7]}, 0")
        p(f"s_cselect_b32 s6, 7, 0")
        p(f"s_add_i32 {sU[7]}, {sU[7]}, s6")
        p(f"s_mov_b32 s10, {2048 * 896}\ns_mov_b32 s11, 0x00020000")
        p(f"s_mov_b32 s14, {448 * 2688}\ns_mov_b32 s15, 0x00020000")
        p("s_waitcnt lgkmcnt(0)")
        self.stamp("start")
        p("s_mov_b32 s12, s42\ns_mov_b32 s13, s43")
        p("s_mov_b32 s8, s40\ns_mov_b32 s9, s41")
        p(f"s_load_dword {sE}, s[52:53], {WS_EPOCH}")
        for j in range(7):
            p(f"s_lshl_b32 {sU[3]}, {sU[2]}, 7")
            p(f"s_add_u32 {sU[3]}, {sU[3]}, {sU[0]}")
            p(f"s_lshl_b32 {sU[4]}, {sU[7]}, 12")
            p(f"s_add_u32 {sU[4]}, {sU[4]}, {sU[1]}")
            for b in range(4):
                p(f"s_add_u32 m0, {sU[4]}, {b * KB}")
                p(f"s_add_u32 {sU[5]}, {sU[3]}, {b * 8 * 896}")
                p(f"buffer_load_dwordx4 v{16 + (b & 1)}, {SX}, {sU[5]} offen lds", "x")
                if 4 * j + b + 1 == self.opt.get("xa", 4):
                    self.prologue2()
            if j < 6:
                p(f"s_add_u32 {sU[2]}, {sU[2]}, 1")
                p(f"s_cmp_eq_u32 {sU[2]}, 7")
                p(f"s_cselect_b32 {sU[2]}, 0, {sU[2]}")
                p(f"s_add_u32 {sU[7]}, {sU[7]}, 1")
                p(f"s_cmp_eq_u32 {sU[7]}, 7")
                p(f"s_cselect_b32 {sU[7]}, 0, {sU[7]}")

    def prologue2(self):
        p = self.p
        p(f"s_mul_i32 {sHB}, {stb}, {28 * KB}")
        p(f"s_add_u32 {sHB}, {sHB}, {G_O}")
        p(f"s_mul_i32 {sXB}, {sxs}, {28 * KB}")
        p(f"s_add_u32 {sXB}, {sXB}, {G_X}")
        p(f"s_mul_i32 {sSTB}, {stb}, {7 * KB}")
        p(f"s_add_u32 {sSTB}, {sSTB}, {G_ST}")
        p(f"s_mov_b32 {slim}, 40000")
        p(f"v_add_u32 {vS16}, {L_S}, {vL16}")
        p(f"v_and_b32 v13, 3, {vLane}")
        p("v_lshlrev_b32 v13, 3, v13")
        p(f"v_bfe_u32 v14, {vLane}, 4, 1")
        p("v_lshl_add_u32 v13, v14, 5, v13")
        p(f"v_bfe_u32 v14, {vLane}, 2, 2")
        p("v_lshl_add_u32 v13, v14, 6, v13")
        p(f"v_lshrrev_b32 v14, 5, {vLane}")
        p(f"v_lshl_add_u32 {vTrA}, v14, 8, v13")
        p(f"v_add_u32 {vTrB}, {L_WQ}, {vTrA}")
        p("v_lshl_add_u32 v62, v14, 9, v13")
        p(f"v_add_u32 v63, {L_WQ}, v62")
        p(f"v_and_b32 v13, 31, {vLane}")
        p("v_lshrrev_b32 v14, 3, v13")
        p("v_lshlrev_b32 v14, 10, v14")
        p("v_and_b32 v15, 7, v13")
        p("v_lshl_add_u32 v14, v15, 7, v14")
        p(f"v_add_u32 v14, {sU[1]}, v14")
        p("v_bfe_u32 v13, v13, 1, 3")
        p(f"v_lshrrev_b32 v15, 5, {vLane}")
        p("v_xor_b32 v13, v13, v15")
        for q in range(4):
            p(f"v_xor_b32 v15, {2 * q}, v13")
            p(f"v_lshl_add_u32 v{20 + q}, v15, 4, v14")
        p(f"v_lshrrev_b32 v15, 5, {vLane}")
        p("v_xor_b32 v13, v13, v15")
        p("v_lshl_add_u32 v14, v15, 3, v14")
        p(f"s_min_u32 s6, {sh}, 13")
        p("s_lshr_b32 s7, s6, 1")
        p(f"s_sub_i32 s7, s7, {sU[6]}")
        p("s_cmp_lt_i32 s7, 0")
        p(f"s_cselect_b32 {sU[8]}, 7, 0")
        p(f"s_add_i32 s7, s7, {sU[8]}")
        p("s_lshl_b32 s7, s7, 12")
        p("v_add_u32 v14, s7, v14")
        p("s_and_b32 s6, s6, 1")
        p("s_lshl_b32 s6, s6, 2")
        p("v_xor_b32 v13, s6, v13")
        for a in range(4):
            p(f"v_xor_b32 v15, {a}, v13")
            p(f"v_lshl_add_u32 v{24 + a}, v15, 4, v14")
        p(f"s_cmp_lt_u32 {sh}, 14")
        p(f"s_cselect_b32 s18, {448 * 448 * 2}, 0")
        p(f"s_cselect_b32 s22, {448 * 1792 * 2}, 0")
        p(f"s_cselect_b32 s26, {448 * 1792 * 2}, 0")
        for base, src, size in ((16, 44, None), (20, 48, None), (24, 50, None), (28, 46, 2048 * 896),
                                (32, 52, WS_BYTES)):
            p(f"s_mov_b32 s{base}, s{src}")
            p(f"s_mov_b32 s{base + 1}, s{src + 1}")
            if size is not None:
                p(f"s_mov_b32 s{base + 2}, {size}")
            p(f"s_mov_b32 s{base + 3}, 0x00020000")
        p(f"s_mul_i32 s6, {sg}, {G_STRIDE}")
        p(f"s_add_u32 s6, s6, {WS_G}")
        p("s_add_u32 s36, s52, s6")
        p("s_addc_u32 s37, s53, 0")
        p(f"s_mov_b32 s38, {G_STRIDE}")
        p("s_mov_b32 s39, 0x00020000")

    def kv_clear(self):
        p = self.p
        p(f"s_lshl_b32 {sT0}, {sh}, 15")
        p(f"s_lshl_b32 {sT1}, s3, 9")
        p(f"s_add_u32 {sT0}, {sT0}, {sT1}")
        p(f"s_add_u32 {sT0}, {sT0}, {WS_KV}")
        p(f"s_add_u32 {sT1}, {sT0}, {KV_L}")
        p("v_mov_b32 v36, -1\nv_mov_b32 v37, -1")
        p(f"v_lshlrev_b32 v11, 3, {vLane}")
        p(f"buffer_store_dwordx2 v[36:37], v11, {SWS}, {sT0} offen sc1", "pb")
        p(f"buffer_store_dwordx2 v[36:37], v11, {SWS}, {sT1} offen sc1", "pb")

    def wqkv_setup(self):
        p = self.p
        p(f"s_mul_i32 s0, {sh}, 56")
        p(f"s_mul_i32 s1, {sw}, {16 * 2688}")
        p("s_add_u32 s0, s0, s1")
        p(f"s_lshl_b32 s1, {sw}, 10")
        p(f"s_mov_b32 {sU[8]}, {sU[6]}")
        p(f"s_mov_b32 {sU[4]}, {sU[6]}")

    def wqkv_item(self, m, lbase, tag):
        p = self.p
        cnt = sU[8] if m == 2 else sU[6]
        with self.cap() as c:
            p(f"s_lshl_b32 {sU[7]}, {cnt}, 12")
            p(f"s_add_u32 {sU[7]}, {sU[7]}, s1")
            p(f"s_add_u32 m0, {sU[7]}, {lbase}")
            p(f"s_mul_i32 {sU[7]}, {cnt}, {64 * 2688}")
            p(f"s_add_u32 {sU[7]}, {sU[7]}, s0")
            if m:
                p(f"s_add_u32 {sU[7]}, {sU[7]}, {896 * m}")
            p(f"buffer_load_dwordx4 v6, {SQ}, {sU[7]} offen lds", tag)
            p(f"s_add_u32 {cnt}, {cnt}, 1")
            p(f"s_cmp_eq_u32 {cnt}, 7")
            p(f"s_cselect_b32 {cnt}, 0, {cnt}")
        return c.ins

    def group_base(self, dst, base):
        p = self.p
        with self.cap() as c:
            p(f"s_lshl_b32 {sT4}, {sU[4]}, 12")
            p(f"v_add_u32 {dst}, {sT4}, {base}")
            p(f"s_add_u32 {sU[4]}, {sU[4]}, 1")
            p(f"s_cmp_eq_u32 {sU[4]}, 7")
            p(f"s_cselect_b32 {sU[4]}, 0, {sU[4]}")
        return c.ins

    def consts(self):
        p = self.p
        p(f"s_mov_b32 {sONES}, 0x3f803f80")
        p(f"s_mov_b32 {sLOG2E}, 0x3fb8aa3b")
        p(f"s_mov_b32 {sEPS6}, 0x358637bd")
        p(f"s_mov_b32 {sHI}, 0xffff0000")
        p("s_mov_b32 s52, 0x10000000")
        p("s_mov_b32 s53, 0x10000000")
        p("s_mov_b32 s54, 0")
        p("s_mov_b32 s55, -1")

    def ready(self, base):
        p = self.p
        p(f"s_lshl_b32 {sT2}, {sh}, 4")
        p(f"s_add_u32 {sT2}, {sT2}, s2")
        p(f"s_lshl_b32 {sT2}, {sT2}, 7")
        p(f"s_add_u32 {sT2}, {sT2}, {base}")
        p(f"s_cmp_eq_u32 {sw}, 0")
        p(f"s_cselect_b32 {sT2}, {sT2}, {OOB}")
        p(f"s_add_u32 {sT5}, {sE}, {sfast}")
        p(f"s_add_u32 {sT5}, {sT5}, 1")
        p(f"v_mov_b32 v14, {sT5}")
        p("s_mov_b64 exec, 1")
        p(f"buffer_store_dword v14, {vL16}, {SWS}, {sT2} offen sc1")
        p("s_mov_b64 exec, -1")

    def pack_b_loads(self):
        p = self.p
        p(f"s_mul_i32 {sT0}, s5, {16 * 3584}")
        p(f"s_lshl_b32 {sT1}, {sh}, 8")
        p(f"s_add_u32 {sT0}, {sT0}, {sT1}")
        p(f"s_lshl_b32 {sT1}, s4, 7")
        p(f"s_add_u32 {sT0}, {sT0}, {sT1}")
        p(f"buffer_load_dwordx4 a[40:43], v8, {S1}, {sT0} offen")
        p(f"buffer_load_dwordx4 a[44:47], v8, {S1}, {sT0} offen offset:64")
        p(f"s_mul_i32 {sU[1]}, {sh}, 112")
        p(f"s_mul_i32 {sT1}, s4, 56")
        p(f"s_add_u32 {sU[1]}, {sU[1]}, {sT1}")
        p(f"s_add_u32 {sU[1]}, {sU[1]}, s5")
        p(f"s_lshl_b32 {sU[1]}, {sU[1]}, 10")
        p(f"s_add_u32 {sU[1]}, {sU[1]}, {WS_P1}")
        p(f"s_cmp_lt_u32 {sh}, 14")
        p(f"s_cselect_b32 s22, {WS_BYTES}, 0")
        p("s_mov_b32 s20, s32\ns_mov_b32 s21, s33")
        self.tr_addrs("v4", "v5")

    def pack_c_loads(self):
        p = self.p
        p(f"s_and_b32 {sU[5]}, {srq}, 1")
        p(f"s_lshl_b32 {sU[5]}, {sU[5]}, 6")
        p(f"s_add_u32 {sU[5]}, {sU[5]}, s3")
        p(f"s_mul_i32 {sU[0]}, {sU[5]}, {16 * 896}")
        p(f"s_lshl_b32 {sU[2]}, {scb}, 7")
        p(f"s_add_u32 {sU[0]}, {sU[0]}, {sU[2]}")
        p(f"s_mul_i32 {sU[2]}, {scb}, 112")
        p(f"s_add_u32 {sU[2]}, {sU[2]}, {sU[5]}")
        p(f"s_lshl_b32 {sU[2]}, {sU[2]}, 11")
        p(f"s_add_u32 {sU[2]}, {sU[2]}, {WS_P2}")
        p(f"s_cmp_lt_u32 {sU[5]}, 112")
        p(f"s_cselect_b32 {sU[0]}, {sU[0]}, {OOB}")
        p(f"s_cselect_b32 {sU[2]}, {sU[2]}, {OOB}")
        p(f"buffer_load_dwordx4 a[48:51], v7, {S2}, {sU[0]} offen")
        p(f"buffer_load_dwordx4 a[52:55], v7, {S2}, {sU[0]} offen offset:64")

    def pack_b_items(self):
        items = [self.transpose_block(lambda lo, k, r=r: A(r + lo, k), "v4", "v5") for r in (40, 44)]
        items.append([Ins(f"buffer_store_dwordx4 a[40:43], {vL16}, {SPK}, {sU[1]} offen sc1", "pb"),
                      Ins(f"s_add_u32 {sU[1]}, {sU[1]}, {28 * KB}")])
        items.append([Ins(f"buffer_store_dwordx4 a[44:47], {vL16}, {SPK}, {sU[1]} offen sc1", "pb")])
        return items

    def pack_c_items(self):
        items = [self.transpose_block(lambda lo, k, r=r: A(r + lo, k), "v4", "v5") for r in (48, 52)]
        items.append([Ins(f"buffer_store_dwordx4 a[48:51], {vL16}, {SPK}, {sU[2]} offen sc1", "pb")])
        items.append([Ins(f"buffer_store_dwordx4 a[52:55], {vL16}, {SPK}, {sU[2]} offen offset:1024 sc1", "pb")])
        return items

    def dma_items(self, vaddr, srd, first, count, tag, stm):
        p = self.p
        items = []
        for u in range(count):
            with self.cap() as c:
                if u == 0:
                    p(f"s_mul_i32 {stm}, {sw}, {count * KB}")
                if u % 4 == 0:
                    p(f"s_add_u32 m0, {stm}, {(first + u) * KB}")
                p(f"buffer_load_dwordx4 {vaddr}, {srd}, m0 offen offset:{(u % 4) * KB} sc1 lds", tag)
            items.append(c.ins)
        return items

    def w1_items(self):
        p = self.p
        items = []
        for s in range(28):
            with self.cap() as c:
                if s == 0:
                    p(f"s_lshl_b32 s24, {sh}, 2")
                    p(f"s_add_u32 s24, s24, {sw}")
                    p(f"s_mul_i32 s24, s24, {28 * KB}")
                    p(f"s_add_u32 s24, s24, {WS_P1}")
                elif s % 4 == 0:
                    p(f"s_add_u32 s24, s24, {4 * KB}")
                p(f"buffer_load_dwordx4 {w1reg(s)}, {vL16}, {SPK}, s24 offen offset:{(s % 4) * KB} sc1", "w1")
            items.append(c.ins)
        return items

    def pack_d_loads(self):
        p = self.p
        p(f"s_mul_i32 {sT2}, s5, {16 * 896}")
        p(f"s_lshl_b32 {sT1}, {sh}, 6")
        p(f"s_add_u32 {sT2}, {sT2}, {sT1}")
        p(f"s_mul_i32 {sT1}, {sh}, 28")
        p(f"s_add_u32 {sT1}, {sT1}, s5")
        p(f"s_lshl_b32 {sT1}, {sT1}, 10")
        p(f"s_add_u32 {sU[9]}, {sT1}, {WS_PO}")
        p("s_cmp_eq_u32 s4, 0")
        p(f"s_cselect_b32 {sT2}, {OOB}, {sT2}")
        p(f"s_cselect_b32 {sU[9]}, {OOB}, {sU[9]}")
        p(f"buffer_load_dwordx4 v[32:35], v7, {SO}, {sT2} offen")
        if self.opt.get("mall", 1):
            p(f"s_lshl_b32 {sT0}, {sh}, 6")
            p(f"s_add_u32 {sT0}, {sT0}, s3")
            p(f"s_lshr_b32 {sT1}, {sT0}, 1")
            p(f"s_mul_i32 {sT1}, {sT1}, 2688")
            p(f"s_and_b32 {sT0}, {sT0}, 1")
            p(f"s_mul_i32 {sT0}, {sT0}, 384")
            p(f"s_add_u32 {sT0}, {sT0}, {sT1}")
            p("s_mov_b64 exec, 0xf")
            p(f"buffer_load_dword v10, v9, {SQ}, {sT0} offen", "touch")
            p("s_mov_b64 exec, -1")

    def pack_d_items(self):
        return [[Ins(f"buffer_store_dwordx4 v[32:35], {vL16}, {SPK}, {sU[9]} offen sc1", "pb")]]

    def touch_items(self, base, lines, per=16):
        p = self.p
        with self.cap() as c:
            p(f"s_mul_i32 {sU[7]}, {srh}, {per}")
            p(f"s_add_u32 {sU[7]}, {sU[7]}, {sh}")
            p(f"s_lshl_b32 {sU[7]}, {sU[7]}, 2")
            p(f"s_add_u32 {sU[7]}, {sU[7]}, {sw}")
            p(f"s_mul_i32 {sU[7]}, {sU[7]}, {lines * 128}")
            p(f"s_add_u32 {sU[7]}, {sU[7]}, {base}")
            assert lines < 32
            p(f"s_mov_b64 exec, {(1 << lines) - 1}")
            p(f"buffer_load_dword v10, v9, {SG}, {sU[7]} offen", "touch")
            p("s_mov_b64 exec, -1")
        return [c.ins]

    def startup(self):
        p = self.p
        p(f"s_getreg_b32 {sfast}, hwreg(HW_REG_XCC_ID, 0, 4)")
        self.wqkv_setup()
        self.pack_b_loads()
        self.pack_c_loads()
        self.pack_d_loads()
        nk0 = self.opt.get("nk0", 2)
        for u in range(nk0):
            p.add(self.wqkv_item(1, L_WK, f"g{u}"))
        p.wait_vm("x")
        p("s_waitcnt lgkmcnt(0)")
        self.consts()
        self.stamp("x_landed")
        for s in range(28):
            p(f"ds_read_b128 {V(64 + 4 * s)}, v{20 + (s & 3)} offset:{(s >> 2) * 4096}")
        for a in range(4):
            p(f"ds_read_b64 {A(56 + 2 * a, 2)}, v{24 + a}")
        for r in range(52, 56):
            p(f"v_mov_b32 v{r}, 0")
        with self.cap() as c:
            for i in range(112):
                p(f"v_dot2c_f32_bf16 v{52 + (i & 1)}, {sONES}, v{64 + i}")
                p(f"v_dot2c_f32_bf16 v{54 + (i & 1)}, v{64 + i}, v{64 + i}")
            p("v_add_f32 v52, v52, v53")
            p("v_add_f32 v54, v54, v55")
            self.both_halves("v52", "v54", None)
            self.stats_finish("v52", "v53", "v56", "v58")
            p("v_rsq_f32 v58, v58")
            p("v_mul_f32_e64 v56, -v56, v58")
            p("v_mov_b32 v59, v58")
            p("v_mov_b32 v57, v56")
            for i in range(0, 112 if not self.opt.get("noln") else 8, 2):
                t = 16 + 4 * ((i >> 1) & 1)
                for k in range(2):
                    p(f"v_lshlrev_b32 v{t + 2 * k}, 16, v{64 + i + k}")
                    p(f"v_and_b32 v{t + 2 * k + 1}, {sHI}, v{64 + i + k}")
                for k in range(2):
                    p(f"v_pk_fma_f32 {V(t + 2 * k, 2)}, {V(t + 2 * k, 2)}, v[58:59], v[56:57]")
                for k in range(2):
                    p(f"v_cvt_pk_bf16_f32 v{64 + i + k}, v{t + 2 * k}, v{t + 2 * k + 1}")
        main = groups(c.ins, 4)
        n = len(main)
        seq = []
        for u in range(7):
            if u >= nk0:
                seq.append(self.wqkv_item(1, L_WK, f"g{u}"))
            seq.append(self.wqkv_item(2, L_WV, f"g{u}"))
        nl = self.opt.get("nl", 8)
        self.kvrest = seq[nl:]
        with self.cap() as c1:
            self.kv_clear()
        packs = [c1.ins] + self.pack_d_items() + self.pack_b_items() + self.pack_c_items()
        with self.cap() as c2:
            p(f"s_mul_i32 {sT0}, {sh}, {28 * KB}")
            p(f"s_add_u32 {sT1}, {sT0}, {WS_PO - L_WO}")
            p(f"v_add_u32 v8, {sT1}, {vL16}")
        g0, g1 = n * self.opt.get("g0", 40) // 100, n * self.opt.get("g1", 70) // 100
        gb = n * self.opt.get("gb", 1) // 100
        with self.cap() as cb:
            p.wait_ds()
            p("s_barrier")
        p.add(spread(main, [([cb.ins], gb, gb), (seq[:nl], gb + 1, n * self.opt.get("gk", 98) // 100),
                            (packs + [c2.ins], max(g0, gb + 1), g1)]))
        self.stamp("ln_done")

    def phi(self, acc, out, tmp, scale=None, pk=None):
        p = self.p
        for r0 in range(0, 16, 2):
            rr = (r0, r0 + 1)
            a = {r: f"v{acc + r}" for r in rr}
            t = {r: f"v{tmp + (r & 3)}" for r in rr}
            a2, t2 = V(acc + r0, 2), V(tmp + (r0 & 3), 2)
            if pk is not None:
                k2 = V(pk, 2)
                if scale is None:
                    p(f"v_pk_add_f32 {a2}, {a2}, {k2} op_sel_hi:[1,0]")
                else:
                    sc, hi = scale(r0)
                    p(f"v_pk_fma_f32 {a2}, {a2}, {sc}, {k2} op_sel_hi:[1,{hi},0]")
                p(f"v_pk_mul_f32 {t2}, {a2}, {k2} op_sel:[0,1] op_sel_hi:[1,1]")
            else:
                for r in rr:
                    if scale is None:
                        p(f"v_add_f32 {a[r]}, {sEPS6}, {a[r]}")
                    else:
                        p(f"v_fma_f32 {a[r]}, {a[r]}, {scale(r)}, {sEPS6}")
                for r in rr:
                    p(f"v_mul_f32 {t[r]}, {sLOG2E}, {a[r]}")
            for r in rr:
                p(f"v_exp_f32 {t[r]}, {t[r]} clamp")
            for r in rr:
                p(f"v_max_f32 {a[r]}, {sEPS6}, {a[r]}")
            if pk is not None:
                p(f"v_pk_add_f32 {a2}, {a2}, {t2}")
            else:
                for r in rr:
                    p(f"v_add_f32 {a[r]}, {a[r]}, {t[r]}")
            p(f"v_cvt_pk_bf16_f32 v{out + (r0 >> 1)}, {a[r0]}, {a[r0 + 1]}")

    def v_pack(self):
        p = self.p
        for r in range(8):
            p(f"v_cvt_pk_bf16_f32 v{32 + r}, v{32 + 2 * r}, v{33 + 2 * r}")
        p(f"s_mov_b64 exec, {sM28}")
        for r in range(8):
            p(f"v_mov_b32 v{32 + r}, {sONES}")
        p("s_mov_b64 exec, -1")

    def kv_addrs(self, layer, a0, a1, a2):
        p = self.p
        p(f"s_lshl_b32 {sT0}, {sw}, 10")
        p(f"v_add_u32 {a0}, {sT0}, {vS16}")
        p(f"s_lshl_b32 {sT0}, {sw}, 12")
        p(f"v_add_u32 {a1}, {sT0}, {vS16}")
        p(f"v_lshlrev_b32 {a2}, 3, {vLane}")
        p(f"s_lshl_b32 {sT0}, {sh}, 15")
        p(f"s_lshl_b32 {sT1}, {sw}, 9")
        p(f"s_add_u32 {sT0}, {sT0}, {sT1}")
        p(f"s_add_u32 s6, {sT0}, {WS_KV + layer * KV_L}")
        p(f"s_lshl_b32 {sT1}, {sg}, 1")
        p(f"s_add_u32 {sT1}, {sT1}, {srh}")
        p(f"s_lshl_b32 {sT1}, {sT1}, 11")
        p(f"s_add_u32 s7, {sT1}, s6")

    def kv_publish(self, kvacc, a0, a1, a2):
        p = self.p
        p(f"{MFMA} {kvacc(0, 16)}, {V(16)}, {V(32)}, 0")
        p(f"{MFMA} {kvacc(0, 16)}, {V(20)}, {V(36)}, {kvacc(0, 16)}")
        for q in range(4):
            p(f"ds_write_b128 {a0}, {kvacc(4 * q, 4)} offset:{S_KVP + q * 4096}")
        p.wait_ds()
        p("s_barrier")
        for u in range(4):
            p(f"ds_read_b128 {V(32 + 4 * u)}, {a1} offset:{S_KVP + u * 1024}")
        for r in (0, 2):
            p(f"v_pk_add_f32 {V(32 + r, 2)}, {V(32 + r, 2)}, {V(36 + r, 2)}")
        for r in (0, 2):
            p(f"v_pk_add_f32 {V(40 + r, 2)}, {V(40 + r, 2)}, {V(44 + r, 2)}")
        for r in (0, 2):
            p(f"v_pk_add_f32 {V(32 + r, 2)}, {V(32 + r, 2)}, {V(40 + r, 2)}")
        p("v_cvt_pk_bf16_f32 v28, v32, v33")
        p("v_cvt_pk_bf16_f32 v29, v34, v35")
        p(f"buffer_store_dwordx2 v[28:29], {a2}, {SWS}, s7 offen sc1", "kvpub")

    def o_addrs(self):
        p = self.p
        p(f"s_mul_i32 {sT0}, {sh}, 7")
        p(f"v_lshrrev_b32 v16, 5, {vLane}")
        p(f"v_add_u32 v16, {sT0}, v16")
        p(f"v_and_b32 v17, 31, {vLane}")
        p("v_lshlrev_b32 v17, 4, v17")
        p("v_and_b32 v18, 1, v16")
        p("v_lshl_add_u32 v17, v18, 9, v17")
        p("v_lshrrev_b32 v16, 1, v16")
        for j in range(4):
            p(f"v_add_u32 v18, {j}, v16")
            p("v_and_b32 v19, 1, v18")
            p("v_lshrrev_b32 v18, 1, v18")
            p("v_lshl_add_u32 v18, v18, 10, v17")
            p(f"v_lshl_add_u32 v{56 + j}, v19, 3, v18")
        p(f"s_lshr_b32 {sT0}, {sw}, 1")
        p(f"s_lshl_b32 {sT0}, {sT0}, 10")
        p(f"s_and_b32 {sT1}, {sw}, 1")
        p(f"s_lshl_b32 {sT1}, {sT1}, 3")
        p(f"s_add_u32 {sT0}, {sT0}, {sT1}")
        p(f"v_add_u32 v60, {sT0}, {vS16}")
        p(f"s_lshl_b32 {sT0}, {stb}, 7")
        p(f"s_lshl_b32 {sT1}, {sh}, 2")
        p(f"s_add_u32 {sT0}, {sT0}, {sT1}")
        p(f"s_add_u32 s3, {sT0}, {G_FO}")

    def gather_items(self, G, a2):
        p = self.p
        items = []
        for u in range(0, 16, 2):
            with self.cap() as c:
                p(f"s_add_u32 {sT5}, {sg}, {u // 2}")
                p(f"s_and_b32 {sT5}, {sT5}, 7")
                p(f"s_lshl_b32 {sT5}, {sT5}, 12")
                p(f"s_add_u32 {sT5}, {sT5}, s6")
                p(f"buffer_load_dwordx2 {V(G + 2 * u, 2)}, {a2}, {SWS}, {sT5} offen sc1")
                p(f"buffer_load_dwordx2 {V(G + 2 * u + 2, 2)}, {a2}, {SWS}, {sT5} offen offset:2048 sc1")
            items.append(c.ins)
        return items

    def kv_finish(self, layer, G, a2):
        p = self.p

        def sums():
            for r in range(16, 21):
                p(f"v_mov_b32 v{r}, 0")
            for u in range(16):
                for k in range(2):
                    p(f"v_dot2c_f32_bf16 v{16 + 2 * k}, {sT3}, v{G + 2 * u + k}")
                    p(f"v_dot2c_f32_bf16 v{17 + 2 * k}, {sT4}, v{G + 2 * u + k}")
                p(f"v_max3_u32 v20, v20, v{G + 2 * u}, v{G + 2 * u + 1}")
            p("v_cmp_eq_u32 vcc, -1, v20")
        p(f"s_mov_b32 {sT3}, 0x3f80")
        p(f"s_mov_b32 {sT4}, 0x3f800000")
        lo, lb, lp = p.label("kvspin"), p.label("kvback"), p.label("kvloop")
        if self.diag:
            p(f"s_mov_b32 s{18 + layer}, 0")
        sums()
        p(f"s_cbranch_vccnz {lo}")
        p(f"{lb}:")
        with self.cap() as c:
            p(f"{lo}:")
            p(f"s_mov_b32 {sCnt}, {slim}")
            p(f"{lp}:")
            if self.diag:
                p(f"s_add_u32 s{18 + layer}, s{18 + layer}, 1")
            for it in self.gather_items(G, a2):
                p.add(it)
            p("s_waitcnt vmcnt(0)")
            sums()
            p(f"s_cbranch_vccz {lb}")
            p(f"s_sub_u32 {sCnt}, {sCnt}, 1")
            p(f"s_cmp_lg_u32 {sCnt}, 0")
            p(f"s_cbranch_scc1 {lp}")
            p(f"s_mov_b32 {slim}, 1")
            p(f"s_branch {lb}")
        self.tail.extend(c.ins)
        self.stamp(f"kv_seen{layer}")
        p("v_cvt_pk_bf16_f32 v20, v16, v17")
        p("v_cvt_pk_bf16_f32 v21, v18, v19")
        p(f"ds_write_b64 v60, v[20:21] offset:{S_KVS}")
        p.wait_vm("wo")
        p.wait_ds()
        p("s_barrier")
        p(f"ds_read_b128 {V(24)}, {vS16} offset:{S_KVS}")
        p(f"ds_read_b128 {V(28)}, {vS16} offset:{S_KVS + 1024}")
        p(f"{MFMA} {V(32, 16)}, {V(24)}, {V(48)}, 0")
        p(f"{MFMA} {V(32, 16)}, {V(28)}, {V(52)}, {V(32, 16)}")
        p("v_mov_b32 v16, v44")
        p("v_mov_b32 v17, v44")
        p("v_permlane32_swap_b32 v16, v17")
        p(f"v_add_f32 v16, {sEPS6}, v17")
        p("v_rcp_f32 v16, v16")
        for r in range(0, 16, 2):
            p(f"v_pk_mul_f32 {V(32 + r, 2)}, {V(32 + r, 2)}, v[16:17] op_sel_hi:[1,0]")
        for r in range(8):
            p(f"v_cvt_pk_bf16_f32 v{20 + r}, v{32 + 2 * r}, v{33 + 2 * r}")
        st = [f"buffer_store_dwordx2 {V(20 + 2 * j, 2)}, v{56 + j}, {SG}, {sHB} offen" for j in range(3)]
        st += ["s_mov_b32 exec_hi, 0", f"buffer_store_dwordx2 {V(26, 2)}, v59, {SG}, {sHB} offen",
               "s_mov_b64 exec, -1"]
        self.publish(st)
        self.flag("s3", 1 + layer)
        self.stamp(f"o_pub{layer}")

    def single_pass(self, acc, frag, nfrag, vaddr, off, second, areg, first, last, transposed, zero):
        rd = lambda s: self.trread(frag(s % nfrag, 0), frag(s % nfrag, 2), vaddr, off + s * KB, second)
        head = []
        for s in range(first, first + nfrag - 1):
            head += rd(s)
        main = []
        for s in range(first, last):
            w, a = frag(s % nfrag, None), areg(s)
            c = 0 if (zero and s == first) else acc
            g = [Ins(f"{MFMA} {acc}, {w}, {a}, {c}" if transposed else f"{MFMA} {acc}, {a}, {w}, {c}")]
            if s + nfrag - 1 < last:
                g += rd(s + nfrag - 1)
            main.append(g)
        return head, main

    def qkv0(self):
        p = self.p
        rd = []
        for s in range(28):
            f = (s % 3) * 8
            va = f"v{54 + ((s >> 2) & 1)}"
            pre = []
            if s % 4 == 0:
                pre = self.group_base(va, "v62") + [Pseudo("wait_vm", f"g{s >> 2}"), Ins("s_barrier")]
            rd.append((pre + self.trread(A(f, 2), A(f + 2, 2), va, L_WK + (s & 3) * KB, 256),
                       self.trread(A(f + 4, 2), A(f + 6, 2), va, L_WV + (s & 3) * KB, 256)))
        head = rd[0][0] + rd[0][1] + rd[1][0] + rd[1][1]
        main = []
        for s in range(28):
            f = (s % 3) * 8
            for k in range(2):
                acc = V(16 + 16 * k, 16)
                g = [Ins(f"{MFMA} {acc}, {V(64 + 4 * s)}, {A(f + 4 * k)}, {acc if s else 0}")]
                if s + 2 < 28:
                    g += rd[s + 2][k]
                main.append(g)
        with self.cap() as c:
            self.kv_addrs(0, "v60", "v61", "v11")
            p(f"s_cmp_ge_u32 {sh}, 14")
            p(f"s_cselect_b32 {sT2}, {sh}, {scb}")
            p(f"s_cselect_b32 {sT3}, 0, {7 * 2048}")
            p(f"s_lshl_b32 {sT2}, {sT2}, 11")
            p(f"v_and_b32 v56, 15, {vLane}")
            p(f"v_bfe_u32 v57, {vLane}, 4, 1")
            p(f"v_mul_u32_u24 v58, {sT3}, v57")
            p("v_lshl_add_u32 v58, v56, 7, v58")
            p(f"v_add_u32 v58, {sT2}, v58")
            p(f"s_lshl_b32 {sT2}, {sg}, 8")
            p("v_lshlrev_b32 v56, 11, v56")
            p("v_lshl_add_u32 v56, v57, 7, v56")
            p(f"v_add_u32 v56, {sT2}, v56")
            p(f"v_cndmask_b32 v58, v58, v56, {sMPAD}")
            p(f"s_mov_b32 {sU[3]}, {WS_RB}")
        setup = groups(c.ins[:13]) + [c.ins[13:16]] + groups(c.ins[16:])
        with self.cap() as c1:
            self.poll_load("v58", SWS, sU[3], 1, 59)
        with self.cap() as c2:
            p.wait_vm("pb")
            p("s_barrier")
            self.ready(WS_RB)
        gr = self.opt.get("gr", 8)
        self.touch = {0: [], 1: [], 2: [], 3: [], 4: []}
        self.touch[self.opt.get("to", 2)] += self.touch_items(G_O, 14)
        if self.opt.get("x0sc1", 0):
            self.touch[self.opt.get("tx", 2)] += self.touch_items(G_ST, 4)
        else:
            self.touch[self.opt.get("tx", 2)] += self.touch_items(G_X, 18)
        wq = [self.wqkv_item(0, L_WQ, "wq") for u in range(7)]
        gv = self.opt.get("gv", 5) * len(self.kvrest)
        gc = self.opt.get("gc", 56)
        early = gc < 56
        gw = self.opt.get("gw", 52)
        streams = [(self.kvrest, 0, gv), ([c2.ins], gr, gr), (wq + self.touch[1], max(gr, gv) + 1, gw),
                   (setup, gr + 2, gc - 14 if early else 50)]
        if early:
            streams.append(([c1.ins], gc - 12, gc - 12))
        slots = spread_groups(main, streams)
        p.add(head)
        for g in slots[:gc]:
            p.add(g)
        self.kvslots = slots[gc:]
        self.pollb = c1.ins
        if early:
            self.decide()
        else:
            self.kv0_rest()
            self.decide()

    def decide(self):
        p = self.p
        self.apoll_end("v58", SWS, sU[3], 1, 1, 59, 15)
        p(f"v_cmp_ne_u32 vcc, {sfast}, v59")
        p("s_cmp_eq_u32 vcc_hi, 0")
        self.stamp_flush()
        p("s_cbranch_scc1 L_slow" if self.force_slow else "s_cbranch_scc0 L_slow")

    def kv0_rest(self):
        p = self.p
        early = self.opt.get("gc", 56) < 56
        if early:
            self.stamp("rb_seen")
            self.bulk = self.w1_items()
            p.add(spread(self.kvslots, [(self.take(self.opt.get("bk", 8)), 0, len(self.kvslots) - 1)]))
        self.stamp("kv_gemm0")
        if not early:
            p.add(self.pollb)
        with self.cap() as c:
            p(f"v_mov_b32 v52, {sEPS6}")
            p(f"v_mov_b32 v53, {sLOG2E}")
            self.phi(16, 16, 48, pk=52)
        ep = groups(c.ins, 4)
        p.add(spread(ep, [(self.take(self.opt.get("be", 4)) if early else [], 0, len(ep) - 1)]))
        self.v_pack()
        self.kv_publish(lambda lo, k: A(24 + lo, k), "v60", "v61", "v11")
        self.stamp("kv_pub0")
        p("v_mov_b32 v13, v63")
        self.rot_offsets()
        p.wait_vm("wq")
        p("s_barrier")

    def take(self, n):
        out, self.bulk = self.bulk[:n], self.bulk[n:]
        return out

    def q0(self):
        p = self.p
        afrag = lambda i, lo: A(4 * i) if lo is None else A(4 * i + lo, 2)

        def rd(s):
            va = f"v{14 + ((s >> 2) & 1)}"
            pre = self.group_base(va, "v13") if s % 4 == 0 else []
            return pre + self.trread(afrag(s % 4, 0), afrag(s % 4, 2), va, (s & 3) * KB, 256)
        head = rd(0) + rd(1) + rd(2)
        main = []
        for s in range(28):
            g = [Ins(f"{MFMA} {V(48, 16)}, {afrag(s % 4, None)}, {V(64 + 4 * s)}, {V(48, 16) if s else 0}")]
            if s + 3 < 28:
                g += rd(s + 3)
            main.append(g)
        with self.cap() as c:
            p(f"v_mov_b32 v32, {sEPS6}")
            p(f"v_mov_b32 v33, {sLOG2E}")
            self.phi(48, 48, 36, pk=32)
            p(f"v_cndmask_b32 v54, v54, 0, {sMPAD}")
            p(f"v_cndmask_b32 v55, v55, 0, {sMPAD}")
            self.o_addrs()
        tail = groups(c.ins, 6)
        gg = self.opt.get("gg", 34)
        if self.opt.get("gc", 56) < 56:
            self.bulk = self.dma_items("v8", SPK, 84, 7, "wo", sU[5]) + self.bulk + self.w2_items()
        else:
            self.bulk = self.dma_items("v8", SPK, 84, 7, "wo", sU[5]) + self.w1_items() + self.w2_items()
        p.add(head)
        p.add(spread(main + tail, [(self.touch[2] + self.take(self.opt.get("bq", 13)), 0, gg - 1),
                                   (self.gather_items(64, "v11"), gg, gg + 8)]))
        for it in self.touch[3] + self.take(self.opt.get("b1", 8)):
            p.add(it)
        self.stamp("q_done0")

    def make_selector(self):
        p = self.p
        p("v_mov_b32 v15, 0")
        p("s_mov_b32 exec_lo, 0x00100001")
        p("s_mov_b32 exec_hi, 0x00100001")
        p(f"v_mov_b32 v15, {sONES}")
        p("s_mov_b64 exec, -1")
        for r in range(4):
            p(f"v_accvgpr_write_b32 a{32 + r}, v15")

    def colsum_qkv(self):
        p = self.p
        p(f"s_min_u32 {sU[0]}, {sw}, 2")
        p(f"s_mul_i32 {sU[0]}, {sU[0]}, {28 * KB}")
        p(f"v_add_u32 v60, {sU[0]}, {vTrA}")
        rd = lambda s: self.trread(V(32 + 4 * (s % 4), 2), V(34 + 4 * (s % 4), 2), "v60", s * KB)
        p.add(rd(0) + rd(1) + rd(2))
        self.make_selector()
        for s in range(28):
            p(f"{MFMA16} {A(36)}, {A(32)}, {V(32 + 4 * (s % 4))}, {A(36) if s else 0}")
            if s + 3 < 28:
                p.add(rd(s + 3))
        p(f"s_lshl_b32 {sU[0]}, {sw}, 9")
        p(f"v_lshlrev_b32 v60, 3, {vLane}")
        p(f"v_add_u32 v60, {L_S + S_STAT}, v60")
        p(f"v_add_u32 v61, {sU[0]}, v60")
        p("v_accvgpr_read_b32 v40, a36")
        self.split_words("v40", "v42", "v43", "v41", False, False)
        p("ds_write_b64 v61, v[42:43]")

    def colsum_qkv_fetch(self):
        p = self.p
        p(f"v_lshlrev_b32 v13, 3, {vLane}")
        p(f"v_add_u32 v13, {L_S + S_STAT}, v13")
        p(f"ds_read_b64 {V(vCSQ + 2, 2)}, v13")
        p(f"ds_read_b64 {V(vCSQ + 4, 2)}, v13 offset:512")
        p(f"ds_read_b64 {V(vCSQ, 2)}, v13 offset:1024")

    def colsum_w1_items(self):
        p = self.p
        items = [[Ins(f"{MFMA16} {A(36)}, {A(32)}, {w1reg(s)}, {A(36) if s else 0}")] for s in range(28)]
        with self.cap() as c:
            p("v_accvgpr_read_b32 v62, a36")
            self.split_words("v62", f"v{vCS1}", f"v{vCS1 + 1}", "v63", False, False)
        items.append(c.ins)
        return items

    def qkv1(self):
        p = self.p
        p(f"v_min_u32 v13, 27, {vLane}")
        p("v_lshlrev_b32 v13, 2, v13")
        p(f"s_lshl_b32 {sT0}, {stb}, 7")
        p(f"s_add_u32 {sT0}, {sT0}, {G_FX}")
        WF = [152, 156, 160, 164, 168, 172]

        def wf(s, k):
            r = WF[3 * (s % 2) + k]
            if k == 2:
                return self.trread(V(r, 2), V(r + 2, 2), vTrB, s * KB)
            return self.trread(V(r, 2), V(r + 2, 2), vTrA, (L_WK, L_WV)[k] + s * KB)
        p.add(wf(0, 0) + wf(0, 1) + wf(0, 2))
        self.poll("v13", SG, sT0, 2)
        self.stamp("x2_seen")
        RING, NR = 96, 14

        def ld(s):
            q = sub()
            if s % 4 == 0:
                q(f"s_add_u32 s4, {sXB}, {s * KB}")
            q(f"buffer_load_dwordx4 {V(RING + 4 * (s % NR))}, {vL16}, {SG}, s4 offen offset:{(s % 4) * KB} sc1")
            return q.ins
        LEAD = self.opt.get("lead", 6)
        for s in range(LEAD):
            p.add(ld(s))
        stl = [[Ins(f"buffer_load_dwordx4 {V(64 + 4 * u)}, {vL16}, {SG}, {sSTB} offen offset:{u * KB} sc1")]
               for u in range(2)]
        with self.cap() as st:
            for i in range(2, 7):
                p(f"v_add_f32 v{64 + (i & 1)}, v{64 + (i & 1)}, v{64 + i}")
            p("v_add_f32 v64, v64, v65")
            self.stats_finish("v64", "v65", "v66", "v67")
            p("v_rsq_f32 v88, v67")
            self.split_words("v66", "v92", "v93", "v65", True, True)
            p("v_mov_b32 v94, 0")
            p("v_mov_b32 v95, 0")
            p("v_cvt_pk_bf16_f32 v80, v88, v88")
            p(f"v_and_b32 v64, {sHI}, v80")
            p("v_sub_f32 v64, v88, v64")
            p("v_cvt_pk_bf16_f32 v81, v64, v64")
            p(f"v_and_b32 v65, {sHI}, v81")
            p("v_sub_f32 v65, v64, v65")
            p("v_and_b32 v80, 0xffff, v80")
            p(f"v_and_or_b32 v80, v81, {sHI}, v80")
            p("v_cvt_pk_bf16_f32 v81, v65, 0")
            p("v_mov_b32 v82, 0")
            p("v_mov_b32 v83, 0")
            p(f"v_mov_b32 v84, {sONES}")
            p(f"v_cndmask_b32 v84, v84, 0, {sMPAD}")
            p("v_mov_b32 v85, v84")
            p("v_mov_b32 v86, 0")
            p("v_mov_b32 v87, 0")
            p(f"{MFMA} {V(64, 16)}, {V(80)}, {V(84)}, 0")
            self.kv_addrs(1, "v89", "v90", "v91")
            for m, dst in ((1, 80), (2, 84)):
                p(f"v_mov_b32 v{dst}, v{vCSQ + 2 * m}")
                p(f"v_mov_b32 v{dst + 1}, v{vCSQ + 2 * m + 1}")
        main = []
        for s in range(28):
            o = 3 * (s % 2)
            a = V(RING + 4 * (s % NR))
            nk = 3 if s < NR else 2
            nk2 = 3 if s + 1 < NR else 2
            for k in range(nk):
                acc = V(16 + 16 * k, 16)
                c = acc if s else 0
                g = [Ins(f"{MFMA} {acc}, {a}, {V(WF[o + k])}, {c}" if k < 2 else f"{MFMA} {acc}, {V(WF[o + k])}, {a}, {c}")]
                if s + 1 < 28 and k < nk2:
                    g += wf(s + 1, k)
                main.append(g)
        seq = [ld(s) for s in range(LEAD, 14)] + stl + [ld(s) for s in range(14, 28)]
        slots = []
        gpos = 0
        for i, it in enumerate(seq):
            s = i + LEAD - 2
            if s >= 14:
                gpos = max(gpos, 3 * (s - 14) + 2)
            slots.append(([it], gpos, gpos))
            gpos += 2
        p.add(spread(main, slots + [(groups(st.ins), 30, len(main) - 2)]))
        p(f"{MFMA} {V(16, 16)}, {V(92)}, {V(80)}, {V(16, 16)}")
        p(f"{MFMA} {V(32, 16)}, {V(92)}, {V(84)}, {V(32, 16)}")
        self.stamp("kv_gemm1")
        vfrag = lambda i, lo: V(152 + 4 * i) if lo is None else V(152 + 4 * i + lo, 2)
        head, main = self.single_pass(V(48, 16), vfrag, 4, vTrB, 0, 512, lambda s: V(RING + 4 * (s % NR)),
                                      NR, 28, True, False)
        p.add(head)
        p(f"v_mov_b32 v172, {sEPS6}")
        p(f"v_mov_b32 v173, {sLOG2E}")
        p(f"v_mov_b32 v80, v{vCSQ}")
        p(f"v_mov_b32 v81, v{vCSQ + 1}")
        self.phi(16, 16, 168, lambda r: (V(64 + r, 2), 1), pk=172)
        for r in range(0, 16, 2):
            p(f"v_pk_mul_f32 {V(32 + r, 2)}, {V(32 + r, 2)}, {V(64 + r, 2)}")
        self.v_pack()
        self.kv_publish(lambda lo, k: V(64 + lo, k), "v89", "v90", "v91")
        self.stamp("kv_pub1")
        main.append([Ins(f"{MFMA} {V(48, 16)}, {V(80)}, {V(92)}, {V(48, 16)}")])
        with self.cap() as c:
            self.phi(48, 48, 168, lambda r: (V(88, 2), 0), pk=172)
            p(f"v_cndmask_b32 v54, v54, 0, {sMPAD}")
            p(f"v_cndmask_b32 v55, v55, 0, {sMPAD}")
            self.o_addrs()
        tail = groups(c.ins, 6)
        if not self.opt.get("probe", 0):
            gg = self.opt.get("gg1", 31)
            streams = [(self.gather_items(96, "v91"), gg, gg + 8)]
            if self.opt.get("mid", 0):
                with self.cap() as c:
                    p(f"s_mul_i32 {sT2}, {sh}, {28 * KB}")
                    p(f"s_add_u32 {sT2}, {sT2}, {WS_PO - L_WO}")
                    p(f"v_add_u32 v174, {sT2}, {vL16}")
                gw = self.opt.get("gw1", 0)
                streams.append(([c.ins] + self.dma_items("v174", SPK, 84, 7, "wo", sU[5]), gw, gw + 14))
            p.add(spread(main + tail, streams))
            self.stamp("q_done1")
            return
        with self.cap() as c1:
            p(f"v_min_u32 v174, 15, {vLane}")
            p("v_lshlrev_b32 v174, 11, v174")
            p(f"buffer_load_dword v175, v174, {SWS}, s6 offen offset:508 sc1")
        pg, nt = self.opt.get("pg", 10), self.opt.get("pt", 8)
        p.add(spread(main + tail[:nt], [([c1.ins], pg, pg)]))
        lo, lb, lp, ld = p.label("early"), p.label("gathering"), p.label("probe"), p.label("probed")
        p("v_cmp_eq_u32 vcc, -1, v175")
        p(f"s_cbranch_vccnz {lo}")
        p.add(spread(tail[nt:], [(self.gather_items(96, "v91"), 0, 8)]))
        p(f"{lb}:")
        with self.cap() as c:
            p(f"{lo}:")
            p("s_nop 7")
            for it in tail[nt:]:
                p.add(it)
            p(f"s_mov_b32 {sCnt}, {slim}")
            p(f"{lp}:")
            p(f"buffer_load_dword v175, v174, {SWS}, s6 offen offset:508 sc1")
            p("s_waitcnt vmcnt(0)")
            p("v_cmp_eq_u32 vcc, -1, v175")
            p(f"s_cbranch_vccz {ld}")
            p(f"s_sub_u32 {sCnt}, {sCnt}, 1")
            p(f"s_cmp_lg_u32 {sCnt}, 0")
            p(f"s_cbranch_scc1 {lp}")
            p(f"s_mov_b32 {slim}, 1")
            p(f"{ld}:")
            for it in self.gather_items(96, "v91"):
                p.add(it)
            p(f"s_branch {lb}")
        self.tail.extend(c.ins)
        self.stamp("q_done1")

    def wo_phase(self, layer, pre=None, streams=()):
        p = self.p
        RES = 104
        p(f"s_lshl_b32 s5, {sh}, 11")
        p(f"s_add_u32 s5, s5, {sXB}")
        if layer == 1:
            p(f"buffer_load_dwordx4 {V(RES)}, {vL16}, {SG}, s5 offen sc1")
            p(f"buffer_load_dwordx4 {V(RES + 4)}, {vL16}, {SG}, s5 offen offset:1024 sc1")
        else:
            for r in range(8):
                p(f"v_accvgpr_read_b32 v{RES + r}, a{56 + r}")
        p(f"s_lshr_b32 {sT1}, {sh}, 2")
        p(f"s_lshl_b32 {sT1}, {sT1}, 10")
        p(f"s_and_b32 {sT2}, {sh}, 3")
        p(f"s_lshl_b32 {sT2}, {sT2}, 2")
        p(f"s_add_u32 {sT1}, {sT1}, {sT2}")
        p(f"s_add_u32 s6, {sT1}, {sSTB}")
        p(f"s_lshl_b32 {sT0}, {stb}, 7")
        p(f"s_lshl_b32 {sT1}, {sh}, 3")
        p(f"s_add_u32 {sT1}, {sT0}, {sT1}")
        p(f"s_add_u32 s7, {sT1}, {G_FX}")
        p(f"s_add_u32 {sT0}, {sT0}, {G_FO}")
        p(f"v_and_b32 v13, 15, {vLane}")
        p("v_lshlrev_b32 v13, 2, v13")
        rd = [self.trread(V(48 + (s % 3) * 4, 2), V(50 + (s % 3) * 4, 2), vTrB, (L_WO - L_WQ) + s * KB)
              for s in range(28)]
        p.add(rd[0] + rd[1])
        if pre:
            pre()
        self.poll("v13", SG, sT0, 1 + layer)
        self.stamp(f"o_seen{layer}")
        RING = 64
        LEAD = self.opt.get("leadwo", 8)

        def ld(s):
            q = sub()
            if s % 4 == 0:
                q(f"s_add_u32 s4, {sHB}, {s * KB}")
            q(f"buffer_load_dwordx4 {V(RING + 4 * s)}, {vL16}, {SG}, s4 offen offset:{(s % 4) * KB} sc1")
            return q.ins
        for s in range(LEAD):
            p.add(ld(s))
            p(f"v_lshlrev_b32 v{16 + 2 * s}, 16, v{RES + s}" if s < 8 else "; -")
            p(f"v_and_b32 v{17 + 2 * s}, {sHI}, v{RES + s}" if s < 8 else "; -")
        assert LEAD >= 8
        main = []
        for s in range(28):
            g = [Ins(f"{MFMA} {V(16, 16)}, {V(48 + (s % 3) * 4)}, {V(RING + 4 * s)}, {V(16, 16)}")]
            if s + LEAD < 28:
                g += ld(s + LEAD)
            if s + 2 < 28:
                g += rd[s + 2]
            main.append(g)
        streams = list(streams)
        if self.opt.get("wsu", 1):
            with self.cap() as c:
                self.ffn_setup(layer)
            streams.append((groups(c.ins), 13, 26))
        p.add(spread(main, streams))
        self.stamp(f"wo_gemm{layer}")
        for r in range(8):
            p(f"v_cvt_pk_bf16_f32 v{32 + r}, v{16 + 2 * r}, v{17 + 2 * r}")
        self.publish([f"buffer_store_dwordx4 {V(32)}, {vL16}, {SG}, s5 offen",
                      f"buffer_store_dwordx4 {V(36)}, {vL16}, {SG}, s5 offen offset:1024"],
                     always_sc1=(layer == 0 and self.opt.get("x0sc1", 0)))
        p("v_pk_mul_f32 v[42:43], v[16:17], v[16:17]")
        for r in range(2, 16, 2):
            p(f"v_pk_fma_f32 v[42:43], {V(16 + r, 2)}, {V(16 + r, 2)}, v[42:43]")
            p(f"v_pk_add_f32 v[16:17], v[16:17], {V(16 + r, 2)}")
        p("v_add_f32 v40, v16, v17")
        p("v_add_f32 v42, v42, v43")
        self.both_halves("v40", "v42", None)
        self.publish([f"buffer_store_dword v40, {vL16}, {SG}, s6 offen"])
        self.flag("s7", 1 + 2 * layer, 2)
        self.stamp(f"x1_pub{layer}")

    def rot_offsets(self):
        p = self.p
        for i in range(7):
            if self.opt.get("rot", 0):
                p(f"s_add_u32 s{8 + i}, {scb}, {i}")
                p(f"s_cmp_ge_u32 s{8 + i}, 7")
                p(f"s_cselect_b32 s15, 7, 0")
                p(f"s_sub_u32 s{8 + i}, s{8 + i}, s15")
                p(f"s_lshl_b32 s{8 + i}, s{8 + i}, 14")
            else:
                p(f"s_mov_b32 s{8 + i}, {i * 16 * KB}")

    def w2_items(self):
        p = self.p
        items = []
        order = list(range(8, 28)) + list(range(8))
        for i, j in enumerate(order):
            for ch in range(2):
                with self.cap() as c:
                    if i == 0 and ch == 0:
                        p(f"s_mul_i32 s25, {scb}, {224 * KB}")
                        p(f"s_lshl_b32 s26, {sw}, 12")
                        p(f"s_add_u32 s25, s25, s26")
                        p(f"s_add_u32 s25, s25, {WS_P2}")
                        p(f"s_and_b32 s26, {srq}, 1")
                        p(f"s_lshl_b32 s26, s26, 14")
                        p(f"s_sub_u32 s27, s25, s26")
                        p(f"s_add_u32 s27, s27, {16 * KB}")
                        p(f"s_add_u32 s25, s25, s26")
                    if j % 2 == 0 and ch == 0:
                        i2 = j >> 1
                        p(f"s_lshl_b32 s26, s{8 + i2 % 7}, 1")
                        p(f"s_add_u32 s26, s26, {'s25' if i2 < 7 else 's27'}")
                    p(f"buffer_load_dwordx4 {w2reg(j, ch)}, {vL16}, {SPK}, s26 offen offset:{(j & 1) * 2048 + ch * 1024} sc1",
                      "w2")
                items.append(c.ins)
        return items

    def ffn_setup(self, layer):
        p = self.p
        p(f"v_and_b32 v13, 15, {vLane}")
        p("v_min_u32 v13, 13, v13")
        p("v_lshlrev_b32 v13, 3, v13")
        p(f"v_lshrrev_b32 v14, 4, {vLane}")
        p("v_lshl_add_u32 v107, v14, 7, v13")
        p(f"s_mul_i32 {sT0}, {srh}, {112 * KB}")
        big = layer == 1 and self.opt.get("big", 1)
        LB = 0 if big else (L_WO if self.opt.get("mid", 0) else L_S)
        p(f"s_add_u32 {sT0}, {sT0}, {G_X - LB}")
        p(f"s_and_b32 s0, {sh}, 1")
        p(f"s_mul_i32 s16, s0, {28 * KB}")
        p(f"s_add_u32 {sT0}, {sT0}, s16")
        p(f"s_lshl_b32 s16, s16, 1")
        p(f"v_add_u32 v110, {sT0}, {vL16}")
        p(f"s_lshl_b32 s15, {sw}, 10")
        p(f"s_add_u32 s15, s15, {LB}")
        p(f"s_lshl_b32 {sT0}, {sh}, 13")
        p(f"s_lshl_b32 {sT1}, {sw}, 11")
        p(f"s_add_u32 s3, {sT0}, {sT1}")
        p(f"s_mul_i32 {sT0}, {srh}, {4 * 112 * KB}")
        p(f"s_add_u32 s3, s3, {sT0}")
        p(f"s_lshl_b32 {sT0}, {srh}, 10")
        p(f"s_lshl_b32 {sT1}, {sw}, 6")
        p(f"s_add_u32 {sT0}, {sT0}, {sT1}")
        p(f"s_lshl_b32 {sT1}, {sh}, 2")
        p(f"s_add_u32 {sT0}, {sT0}, {sT1}")
        p(f"s_add_u32 s2, {sT0}, {G_FH}")
        p(f"s_mul_i32 {sT0}, s0, {2 * 112 * KB}")
        p(f"s_sub_u32 s17, s3, {sT0}")
        p(f"s_add_u32 s3, s3, {sT0}")
        p(f"s_lshl_b32 {sT0}, s0, 9")
        p(f"s_sub_u32 s1, s2, {sT0}")
        p(f"s_add_u32 s2, s2, {sT0}")
        p(f"v_mov_b32 v84, v{vCS1}")
        p(f"v_mov_b32 v85, v{vCS1 + 1}")
        for r in (86, 87, 90, 91):
            p(f"v_mov_b32 v{r}, 0")
        p(f"v_and_b32 v108, 31, {vLane}")
        p("v_lshlrev_b32 v108, 4, v108")
        p(f"v_add_u32 v108, {L_S + S_STAT}, v108")
        p(f"s_and_b32 {sT0}, {sxs}, 3")
        p(f"s_lshl_b32 {sT0}, {sT0}, 9")
        p(f"s_lshl_b32 {sT1}, s0, 9")
        p(f"s_xor_b32 {sT0}, {sT0}, {sT1}")
        p(f"v_add_u32 v109, {sT0}, v108")
        self.ffn2_setup(layer)

    def ffn(self, layer, pre=None, extra=None):
        p = self.p
        big = layer == 1 and self.opt.get("big", 1)
        if not self.opt.get("wsu", 1):
            self.ffn_setup(layer)
        if big:
            p(f"v_add_u32 {vTrB}, {56 * KB}, {vL16}")
        p.wait_ds()
        p("s_barrier")
        if pre:
            pre()
        p(f"s_lshl_b32 {sT0}, {srh}, 9")
        p(f"s_add_u32 {sT0}, {sT0}, {G_FX}")
        self.poll("v107", SG, sT0, 1 + 2 * layer, 2)
        self.stamp(f"x1_seen{layer}")

        mid = not big and self.opt.get("mid", 0)
        Q, P = (28, 2) if big else ((18, 2) if mid else (self.opt.get("ring", 10), 2))
        if mid:
            p(f"v_add_u32 v107, {L_WO}, {vL16}")

        def quad(k):
            q = sub()
            if k % Q == 0:
                q("s_mov_b32 m0, s15")
                if k:
                    q(f"v_add_u32 v110, {Q * 4 * KB}, v110")
            else:
                q(f"s_add_u32 m0, m0, {4 * KB}")
            if k in (7, 21):
                q("v_subrev_u32 v110, s16, v110")
            if k == 14:
                q("v_add_u32 v110, s16, v110")
            q(f"buffer_load_dwordx4 v110, {SG}, m0 offen sc1 lds", f"c{k // P}")
            return q.ins
        for k in range(4):
            p.add(quad(k))
        stl = [[Ins(f"buffer_load_dwordx4 {V(112 + 4 * u)}, {vL16}, {SG}, {sSTB} offen offset:{u * KB} sc1")]
               for u in range(4)]
        with self.cap() as st:
            for i in range(2, 14):
                p(f"v_add_f32 v{112 + (i & 1)}, v{112 + (i & 1)}, v{112 + i}")
            p("v_add_f32 v112, v112, v113")
            self.stats_finish("v112", "v113", "v114", "v115")
            self.split_words("v114", "v116", "v117", "v113", True, True)
            p("v_rsq_f32 v118, v115")
            p("v_sqrt_f32 v119, v115")
            p(f"v_mul_f32_e64 v118, -v118, {sLOG2E}")
            p("ds_write_b128 v109, v[116:119]", "stw")
        XF, NX, D = 48, 5, 4
        def rdx(n):
            base, off = (vS16, n % (4 * Q)) if not big else ((vL16, n) if n < 56 else (vTrB, n - 56))
            if mid:
                base, off = ("v107", n % 72) if n % 72 < 28 else (vS16, n % 72 - 28)
            return Ins(f"ds_read_b128 {V(XF + 4 * (n % NX))}, {base} offset:{off * KB}", f"x{n}")
        BIGB = {1: 1, 2: 2, 3: 4, 5: 7, 8: 10, 11: 13}
        if mid:
            BIGB = {1: 1, 2: 2, 3: 3, 4: 4, 5: 5, 6: 7, 8: 10, 11: 13}

        def boundary(j):
            q = sub()
            if (big or mid) and j:
                if j not in BIGB:
                    return []
                q.wait_vm(f"c{BIGB[j]}")
            else:
                q.wait_vm(f"c{j}")
            if j == 3:
                q.wait_ds("stw")
            q("s_barrier")
            return q.ins
        p.add(quad(4))
        p.add(quad(5))
        p.add(boundary(0))
        p.add([rdx(n) for n in range(D)])
        main = []
        pos = {}
        for n in range(112):
            o, s = divmod(n, 28)
            acc = V(16 + 16 * (o & 1), 16)
            g = []
            if n % 2 == 0:
                g.append(Pseudo("wait_ds", f"x{n + 1}"))
            g.append(Ins(f"{MFMA} {acc}, {w1reg(s)}, {V(XF + 4 * (n % NX))}, {acc if s else 0}"))
            m = n + D
            if m < 112:
                if m % 8 == 0:
                    g += boundary(m // 8)
                q2 = self.opt.get("q2", 5)
                q1 = self.opt.get("q1", 1)
                kq = 2 * (m // 8) + 6 + (Q - 10) + (1 if m % 8 == q2 else 0)
                qd = quad(kq) if (m % 8 in (q1, q2) and m >= 8 and kq < 28) else []
                if big or mid:
                    kq = 8 + (n - 9) // 2
                    qd = quad(kq) if (n >= 9 and n % 2 == 1 and kq < 28) else []
                g += qd[:-1] + [rdx(m)] + qd[-1:]
                if m == 24:
                    g += [Ins(f"ds_read_b128 {V(68 + 4 * k)}, v108 offset:{k * 512}") for k in range(4)]
            if s == 24:
                g += [Ins(f"v_mov_b32 v88, v{68 + 4 * o}"), Ins(f"v_mov_b32 v89, v{69 + 4 * o}")]
            pos[n] = len(main)
            main.append(g)
            if s == 27:
                main.append([Ins(f"{MFMA} {acc}, {V(84)}, {V(88)}, {acc}")])

        hsc1 = self.opt.get("h0sc1", 1) if layer == 0 else self.opt.get("h1sc1", 1)

        def epilogue(o):
            tb = ((o & 1) << 1) | (o >> 1)
            acc = 16 + 16 * (o & 1)
            c1, sd = f"v{70 + 4 * o}", f"v{71 + 4 * o}"
            pk = o == 3 and hsc1 and self.opt.get("pk3", 1)
            with self.cap() as c:
                for r0 in range(0, 16, 4) if pk else ():
                    cs = V(70 + 4 * o, 2)
                    for k in (0, 2):
                        p(f"v_pk_mul_f32 {V(92 + k, 2)}, {V(acc + r0 + k, 2)}, {cs} op_sel_hi:[1,0]")
                    for k in range(4):
                        p(f"v_exp_f32 v{92 + k}, v{92 + k}")
                    for k in (0, 2):
                        p(f"v_pk_fma_f32 {V(92 + k, 2)}, {V(92 + k, 2)}, {cs}, {cs} op_sel:[0,1,1] op_sel_hi:[1,1,1]")
                    for k in range(4):
                        p(f"v_rcp_f32 v{92 + k}, v{92 + k}")
                    for k in (0, 2):
                        p(f"v_pk_mul_f32 {V(acc + r0 + k, 2)}, {V(acc + r0 + k, 2)}, {V(92 + k, 2)}")
                    for k in (0, 2):
                        p(f"v_cvt_pk_bf16_f32 v{96 + ((r0 + k) >> 1)}, v{acc + r0 + k}, v{acc + r0 + k + 1}")
                for r0 in range(0, 16, 2) if not pk else ():
                    rr = (r0, r0 + 1)
                    t = {r: f"v{92 + (r & 3)}" for r in rr}
                    a = {r: f"v{acc + r}" for r in rr}
                    for r in rr:
                        p(f"v_mul_f32 {t[r]}, {a[r]}, {c1}")
                    for r in rr:
                        p(f"v_exp_f32 {t[r]}, {t[r]}")
                    for r in rr:
                        p(f"v_fma_f32 {t[r]}, {t[r]}, {sd}, {sd}")
                    for r in rr:
                        p(f"v_rcp_f32 {t[r]}, {t[r]}")
                    for r in rr:
                        p(f"v_mul_f32 {a[r]}, {a[r]}, {t[r]}")
                    p(f"v_cvt_pk_bf16_f32 v{96 + (r0 >> 1)}, {a[r0]}, {a[r0 + 1]}")
            items = groups(c.ins)
            with self.cap() as c:
                p(f"s_add_u32 {sT0}, {'s17' if o & 1 else 's3'}, {tb * 112 * KB}")
                nt = {0: "", 1: " nt", 2: " sc0", 3: " sc0 nt"}[self.opt.get("hnt", 0)] if self.fast else ""
                self.publish([f"buffer_store_dwordx4 {V(96)}, {vL16}, {SG}, {sT0} offen{nt}",
                              f"buffer_store_dwordx4 {V(100)}, {vL16}, {SG}, {sT0} offen offset:1024{nt}"], f"h{o}",
                             always_sc1=hsc1)
            items.append(c.ins)
            with self.cap() as c:
                p(f"s_add_u32 {sT1}, {'s1' if o & 1 else 's2'}, {tb * 256}")
                self.flag(sT1, 1 + layer, wait=f"h{o}", st=sT2)
            return items, c.ins
        streams = [([quad(6), quad(7)] + ([quad(8)] if Q == 11 else []), 0, 3), (stl[:2], 1, 4), (stl[2:], 6, 8)]
        eps = [epilogue(o) for o in range(4)]
        E = self.opt.get("epend", 27)
        F = self.opt.get("fsc1", 14) if hsc1 else self.opt.get("fpl", 6)
        Es = [E, self.opt.get("e1", E), E]
        Fs = [F, F - (E - Es[1])]
        flex = [(eps[o][0], pos[28 * (o + 1)] + 2, pos[28 * (o + 1) + Es[o]]) for o in range(3)]
        flex.append((groups(st.ins), self.opt.get("gs", 11), 19))
        if not big and hsc1 and self.opt.get("stq", 0):
            for o in range(2):
                n1 = 28 * (o + 1) + E
                while n1 % 8 != 1:
                    n1 -= 1
                flex[o] = (eps[o][0][:-1], pos[28 * (o + 1)] + 2, pos[n1] - 1)
                streams.append(([eps[o][0][-1]], pos[n1], pos[n1]))
        if not self.opt.get("flex", 1):
            streams += flex
            flex = []
        for o in range(2):
            g = pos[28 * (o + 2) + Fs[o]]
            streams.append(([eps[o][1]], g, g))
        self.hl = self.h_loads()
        pa, pb = self.h_poll(0, layer), self.h_poll(1, layer)
        LAG = self.opt.get("lag", 7)
        if self.opt.get("ord", 0):
            for o, pl in ((1, pa), (2, pb)):
                items, a, b = flex[o]
                flex[o] = (items[:-1], a, b - 1)
                streams.append(([pl[0], items[-1]], b, b))
            GA = pos[56 + Es[1]]
            self.pb = [[], pb[1]]
        else:
            GA = pos[56 + F + self.opt.get("fda", 12)]
            streams.insert(0, ([pa[0]], GA, GA))
            self.pb = pb
        streams.append(([pa[1]], GA + LAG, GA + LAG))
        first = max(GA + LAG + 1, pos[84 + self.opt.get("h0", 0)])
        n0 = min(14, (pos[111] - first) // 2 + 1)
        streams.append((self.hl[:n0], first, pos[111] - 1))
        self.n0 = n0
        if extra:
            streams += extra(pos)
        if self.opt.get("fine3") and layer == 1:
            woven = spread2(main, streams, flex)
            k = 0
            for x in woven:
                p.add([x])
                if x.kind == "mfma":
                    k += 1
                    if k >= 58 and (k - 58) % 7 == 0:
                        self.stamp(f"n{k}")
        elif self.opt.get("fine"):
            self.stamp(f"f1_first{layer}")
            woven = spread2(main, streams, flex)
            k = 0
            for x in woven:
                p.add([x])
                if x.kind == "mfma":
                    k += 1
                    if k % 29 == 0 and k < 116:
                        self.stamp(f"f1_o{k // 29 - 1}_{layer}")
        else:
            p.add(spread2(main, streams, flex))
        self.stamp(f"ffn1_mfma{layer}")
        self.ffn2(layer, eps[3][0], eps[2][1], eps[3][1], F)

    def ffn2_setup(self, layer):
        p = self.p
        p(f"s_mul_i32 {sU[3]}, {srq}, {2 * 112 * KB}")
        p(f"s_lshl_b32 {sT3}, {sw}, 11")
        p(f"s_add_u32 {sU[3]}, {sU[3]}, {sT3}")
        p(f"s_lshl_b32 {sU[4]}, {srq}, 9")
        p(f"s_lshl_b32 {sT3}, {sw}, 6")
        p(f"s_add_u32 {sU[4]}, {sU[4]}, {sT3}")
        p(f"s_add_u32 {sU[4]}, {sU[4]}, {G_FH}")
        p(f"v_min_u32 v104, 6, {vLane}")
        p("v_lshlrev_b32 v104, 3, v104")
        p(f"s_and_b32 {sT3}, {srq}, 1")
        p(f"s_lshl_b32 {sT4}, {sT3}, 2")
        p(f"s_add_u32 {sU[4]}, {sU[4]}, {sT4}")
        p(f"s_lshl_b32 {sT4}, {sT3}, 13")
        p(f"s_sub_u32 {sU[8]}, {sU[3]}, {sT4}")
        p(f"s_add_u32 {sU[8]}, {sU[8]}, {8 * KB}")
        p(f"s_add_u32 {sU[3]}, {sU[3]}, {sT4}")
        p(f"s_lshr_b32 {sT3}, {srq}, 1")
        p(f"s_lshl_b32 {sT3}, {sT3}, 2")
        p(f"s_and_b32 {sT4}, {srq}, 1")
        p(f"s_add_u32 {sT3}, {sT3}, {sT4}")
        p(f"s_mul_i32 {sU[5]}, {sT3}, {28 * KB}")
        p(f"s_lshl_b32 {sT3}, {scb}, 12")
        p(f"s_lshl_b32 {sT4}, {sw}, 7")
        p(f"s_add_u32 {sT3}, {sT3}, {sT4}")
        p(f"s_add_u32 {sU[5]}, {sU[5]}, {sT3}")
        p(f"s_add_u32 {sU[5]}, {sU[5]}, {G_X}")
        if layer == 0:
            p(f"s_mul_i32 {sU[6]}, {srq}, {14 * KB}")
            p(f"s_lshr_b32 {sT3}, {scb}, 2")
            p(f"s_lshl_b32 {sT3}, {sT3}, 10")
            p(f"s_add_u32 {sU[6]}, {sU[6]}, {sT3}")
            p(f"s_and_b32 {sT3}, {scb}, 3")
            p(f"s_lshl_b32 {sT3}, {sT3}, 2")
            p(f"s_add_u32 {sT3}, {sT3}, {sT4}")
            p(f"s_add_u32 {sU[6]}, {sU[6]}, {sT3}")
            p(f"s_add_u32 {sU[6]}, {sU[6]}, {G_ST}")
            p(f"s_lshl_b32 {sT3}, {srq}, 8")
            p(f"s_lshl_b32 {sT4}, {scb}, 4")
            p(f"s_add_u32 {sT3}, {sT3}, {sT4}")
            p(f"s_lshl_b32 {sT4}, {sw}, 2")
            p(f"s_add_u32 {sT3}, {sT3}, {sT4}")
            p(f"s_add_u32 {sU[7]}, {sT3}, {G_FX}")
        else:
            p(f"s_lshl_b32 {sT3}, {sg}, 2")
            p(f"s_add_u32 {sT3}, {sT3}, {srq}")
            p(f"s_lshl_b32 {sT3}, {sT3}, 3")
            p(f"s_add_u32 {sT3}, {sT3}, {sw}")
            p(f"s_mul_i32 {sT3}, {sT3}, {8 * 896}")
            p(f"s_lshl_b32 {sT4}, {scb}, 7")
            p(f"s_add_u32 {sU[7]}, {sT3}, {sT4}")
        p(f"s_lshl_b32 {sT3}, {sw}, 13")
        p(f"v_add_u32 v105, {sT3}, {vS16}")
        if layer == 0:
            p(f"v_lshrrev_b32 v14, 5, {vLane}")
            p("v_lshlrev_b32 v14, 7, v14")
            p("v_xor_b32 v105, v105, v14")
            p("v_mov_b32 v106, v105")
        else:
            p("v_xor_b32 v106, 0x80, v105")
        p(f"v_and_b32 v13, 7, {vLane}")
        p("v_lshlrev_b32 v13, 4, v13")
        p(f"s_lshl_b32 {sT3}, {sw}, 7")
        p(f"v_add_u32 v13, {sT3}, v13")
        p(f"v_bfe_u32 v14, {vLane}, 3, 1")
        p("v_lshlrev_b32 v15, 7, v14")
        p("v_xor_b32 v13, v13, v15")
        p(f"v_lshl_add_u32 v13, v14, {9 if layer == 0 else 10}, v13")
        p(f"v_lshrrev_b32 v14, 4, {vLane}")
        p("v_lshl_add_u32 v13, v14, 11, v13")
        p(f"v_add_u32 v111, {L_S}, v13")

    def hreg(self, n):
        if not self.opt.get("xr", 0):
            return 112 + 4 * (n % 16), n - 16
        if n < 16:
            return 112 + 4 * n, -1
        if n < 20:
            return 64 + 4 * (n - 16), -1
        return 112 + 4 * ((n - 4) % 16), (n - 20 if n < 36 else n - 16)

    def h_loads(self):
        out = []
        for n in range(56):
            th, j = divmod(n, 28)
            q = sub()
            i = j >> 1
            if j % 14 == 0:
                q(f"s_add_u32 {sU[9]}, {sU[3] if i < 7 else sU[8]}, {th * 112 * KB}")
                q(f"v_add_u32 v15, {sU[9]}, {vL16}")
            q(f"buffer_load_dwordx4 {V(self.hreg(n)[0])}, v15, {SG}, s{8 + i % 7} offen offset:{(j % 2) * KB} sc1")
            out.append(q.ins)
        return out

    def h_poll(self, grp, layer):
        p = self.p
        st, tmp = (sU[0], sU[1])[grp & 1], (109, 13)[grp & 1]
        with self.cap() as c1:
            if grp & 1:
                p(f"s_xor_b32 {st}, {sU[4]}, 4")
                if grp >> 1:
                    p(f"s_add_u32 {st}, {st}, 256")
            else:
                p(f"s_add_u32 {st}, {sU[4]}, {(grp >> 1) * 256}")
            self.poll_load("v104", SG, st, 1, tmp)
        with self.cap() as c2:
            self.apoll_end("v104", SG, st, 1 + layer, 1, tmp)
        return c1.ins, c2.ins

    def ffn2(self, layer, ep3, flag2, flag3, F):
        p = self.p
        ACC = ((16, 48), (32, 64))
        lds = self.hl
        k0 = min(len(ep3), self.opt.get("k0", 89 if F > 10 else 20))
        LEAD = self.opt.get("leadh", 14)
        early_b = self.opt.get("ord", 0) and k0 > 60
        npre = self.opt.get("npre", 20 if self.opt.get("xr", 0) else 16) if early_b else 14
        pre = lds[self.n0:14]
        if self.pb[0]:
            pre = [self.pb[0]] + pre
        if early_b:
            p.add(spread(ep3[:k0], [(pre, 0, 40), ([self.pb[1]] + lds[14:npre], 44, k0 - 4)]))
            self.pb = []
        elif k0:
            p.add(spread(ep3[:k0], [(pre, 0, max(0, k0 - 4))]))
        else:
            for it in pre:
                p.add(it)
        ep3 = ep3[k0:]
        issued = npre
        RES = (88, 84)
        TL = self.opt.get("tl", 10)

        with self.cap() as su:
            p(f"v_and_b32 v107, 7, {vLane}")
            p(f"v_bfe_u32 v110, {vLane}, 3, 1")
            if layer == 0:
                p(f"v_lshrrev_b32 v108, 4, {vLane}")
                p("v_lshlrev_b32 v108, 9, v108")
                p("v_lshl_add_u32 v108, v107, 4, v108")
                p("v_lshlrev_b32 v107, 4, v107")
                p("v_lshl_add_u32 v107, v110, 9, v107")
            else:
                p("v_mul_u32_u24 v108, 896, v107")
                p("v_lshlrev_b32 v107, 4, v107")
                p("v_lshl_add_u32 v107, v110, 3, v107")
                p(f"v_lshrrev_b32 v110, 3, {vLane}")
                p("v_lshl_add_u32 v108, v110, 4, v108")
            p(f"v_lshrrev_b32 v110, 4, {vLane}")
            p("v_lshl_add_u32 v107, v110, 10, v107")

        def resid(th):
            q = sub()
            q(f"s_add_u32 {sT3}, {sU[5]}, {th * 2 * 28 * KB}")
            if layer == 0:
                q(f"buffer_load_dwordx4 {V(RES[th])}, v107, {SG}, {sT3} offen sc1")
            else:
                q(f"buffer_load_dwordx2 {V(RES[th], 2)}, v107, {SG}, {sT3} offen sc1")
                q(f"buffer_load_dwordx2 {V(RES[th] + 2, 2)}, v107, {SG}, {sT3} offen offset:512 sc1")
            return q.ins

        def mm():
            main = []
            for n in range(56):
                th, j = divmod(n, 28)
                b = V(self.hreg(n)[0])
                for ch in range(2):
                    acc = V(ACC[th][ch], 16)
                    main.append([Ins(f"{MFMA} {acc}, {w2reg(j, ch)}, {b}, {acc if j else 0}")])
            tail = main[112 - 2 * TL:]
            return main[:112 - 2 * TL] + tail[0::2] + tail[1::2]

        def reduce(th, woven):
            area = th * 16 * KB
            a0, a1 = ACC[th]
            quad = [a0, a0 + 4, a0 + 8, a0 + 12, a1, a1 + 4, a1 + 8, a1 + 12]
            T = 92
            items = []
            with self.cap() as c:
                for k in range(8):
                    p(f"ds_write_b128 v{105 + (k & 1)}, {V(quad[k])} offset:{area + k * KB}")
                for r in range(4):
                    p(f"v_lshlrev_b32 v{T + 2 * r}, 16, v{RES[th] + r}")
                    p(f"v_and_b32 v{T + 2 * r + 1}, {sHI}, v{RES[th] + r}")
            items += groups(c.ins)
            with self.cap() as c:
                p.wait_ds()
                p("s_barrier")
                for u in range(4):
                    for k in range(2):
                        p(f"ds_read_b128 {V(quad[2 * u + k])}, v111 offset:{area + u * 8 * KB + k * (KB if layer == 0 else 512)}")
            items += groups(c.ins)
            with self.cap() as c:
                for u in range(4):
                    for k in range(2):
                        if woven:
                            for r in range(4):
                                p(f"v_add_f32 v{T + 4 * k + r}, v{T + 4 * k + r}, v{quad[2 * u + k] + r}")
                        else:
                            for r in (0, 2):
                                p(f"v_pk_add_f32 {V(T + 4 * k + r, 2)}, {V(T + 4 * k + r, 2)}, {V(quad[2 * u + k] + r, 2)}")
                for r in range(4):
                    p(f"v_cvt_pk_bf16_f32 v{80 + r}, v{T + 2 * r}, v{T + 2 * r + 1}")
            items += groups(c.ins)
            if layer == 1:
                with self.cap() as c:
                    p(f"s_add_u32 {sT3}, {sU[7]}, {th * 32 * 896}")
                    p(f"buffer_store_dwordx4 {V(80)}, v108, {SOUT}, {sT3} offen {'sc1' if self.opt.get('outsc1', 1) else ''}")
                items.append(c.ins)
                return items, []
            with self.cap() as c:
                p(f"s_add_u32 {sT4}, {sU[5]}, {th * 2 * 28 * KB}")
                self.publish([f"buffer_store_dwordx4 {V(80)}, v107, {SG}, {sT4} offen"], f"x{th}")
            items.append(c.ins)
            with self.cap() as c:
                p(f"v_add_f32 v100, v{T}, v{T + 1}")
                p(f"v_mul_f32 v101, v{T}, v{T}")
                p(f"v_fmac_f32 v101, v{T + 1}, v{T + 1}")
                for r in range(2, 8):
                    p(f"v_add_f32 v100, v100, v{T + r}")
                    p(f"v_fmac_f32 v101, v{T + r}, v{T + r}")
                p("v_add_f32_dpp v100, v100, v100 row_ror:8 row_mask:0xf bank_mask:0xf")
                p("v_add_f32_dpp v101, v101, v101 row_ror:8 row_mask:0xf bank_mask:0xf")
                p("v_permlane16_swap_b32 v100, v101")
                p("v_add_f32 v100, v100, v101")
                p("v_mov_b32 v101, v100")
                p("v_permlane32_swap_b32 v100, v101")
                p("v_add_f32 v100, v100, v101")
            items += groups(c.ins)
            with self.cap() as c:
                p(f"s_add_u32 {sT3}, {sU[6]}, {th * 7 * KB}")
                self.publish(["s_mov_b64 exec, 0x00ff00ff", f"buffer_store_dword v100, v108, {SG}, {sT3} offen",
                              "s_mov_b64 exec, -1"], f"x{th}")
            items.append(c.ins)
            with self.cap() as c:
                p(f"s_add_u32 {sT3}, {sU[7]}, {th * 128}")
                self.flag(sT3, 2, wait=f"x{th}", tmp=102, st=sT4)
            return items, c.ins
        E3 = max(4, len(ep3) * self.opt.get("e3", 24) // 89)
        F2 = self.opt.get("f2", 4 if F > 10 else max(0, F - 6))
        F3 = self.opt.get("f3", E3 + (20 if F > 10 else 16))
        LAG = self.opt.get("lag2", 14)
        pc, pd = self.h_poll(2, layer), self.h_poll(3, layer)
        seen = {0: -1, 1: self.opt.get("gb2", 6) if self.pb else -1}
        GC = F2 + self.opt.get("fd2", 18)
        seen[2] = GC + LAG
        GD = max(F3 + self.opt.get("fd2", 18), seen[2] + 1)
        seen[3] = GD + LAG
        streams = []
        if self.pb:
            streams.append(([self.pb[1]], seen[1], seen[1]))
        streams += [([pc[0]], GC, GC), ([pc[1]], seen[2], seen[2]), ([pd[0]], GD, GD), ([pd[1]], seen[3], seen[3])]
        g = 0.0
        for n in range(issued, 56):
            free = 2 * self.hreg(n)[1] + 1
            g = max(g, free, 2 * (n - LEAD) + 1, seen[n // 14])
            use = 2 * n if n < 56 - TL else 112 - 2 * TL + (n - (56 - TL))
            g = min(g, use - 2 * self.opt.get("minlead", 4) + 1)
            assert g >= seen[n // 14] and g >= free, (n, g)
            streams.append(([lds[n]], int(g), int(g)))
            g += self.opt.get("pace", 21) / 10
        bar = [Ins("s_barrier")]
        r0, f0 = reduce(0, True)
        r1, f1 = reduce(1, False)
        if layer == 1:
            go = max(self.opt.get("go", 106), int(g))
            streams.append(([r0[-1]], go, go))
            r0 = r0[:-1]
        if TL:
            streams.append((r1[8:16], 112 - TL - 4, 112 - TL - 1))
            streams.append((r1[:4], 112 - TL + 2, 111))
            r1 = r1[4:8] + r1[16:]
        streams += [([bar], 0, 0), (ep3, 1, E3), ([flag2], F2, F2), ([flag3], F3, F3),
                    (groups(su.ins) + [resid(0)], E3 + 1, E3 + 16), ([resid(1)], 56, 56), ([bar], 96, 96)]
        if self.opt.get("rflex", 1):
            streams += [(r0[:8], 58, 71), (r0[8:16], 59, 71), (r0[16:25], 73, 80), (r0[25:], 81, 97)]
        else:
            streams.append((r0, 57, 92))
        if f0:
            streams.append(([f0], 108, 108))
        woven = spread(mm(), streams)
        k = 0
        for x in woven:
            p.add([x])
            if x.kind == "mfma":
                k += 1
                if k == 56:
                    self.stamp(f"th0_done{layer}")
                elif self.opt.get("fine2") and layer == 1 and (k == 1 or k % 14 == 0) and k < 112:
                    self.stamp(f"m{k}")
        self.stamp(f"th1_done{layer}")
        for it in r1:
            p.add(it)
        p.add(f1)
        self.stamp(f"ffn2_done{layer}")

    def spare0(self):
        p = self.p
        if not self.opt.get("h0sc1", 1) or self.opt.get("htouch", 0):
            p(f"s_and_b32 {sT0}, {sh}, 1")
            p(f"s_lshl_b32 {sT0}, {sT0}, 2")
            p(f"s_add_u32 {sT0}, {sT0}, {sw}")
            p(f"s_mul_i32 {sT0}, {sT0}, {14 * KB}")
            p(f"s_mul_i32 {sT1}, {srh}, {4 * 112 * KB}")
            p(f"s_add_u32 {sT0}, {sT0}, {sT1}")
            p(f"v_lshlrev_b32 v64, 7, {vLane}")
            for tb in (0, 2, 1, 3):
                for off in (0, 6 * KB):
                    p(f"s_add_u32 {sT1}, {sT0}, {G_H + tb * 112 * KB + off}")
                    p(f"buffer_load_dword v65, v64, {SG}, {sT1} offen sc1")
        self.colsum_qkv()
        p.wait_ds()
        p("s_barrier")
        self.colsum_qkv_fetch()
        w2pre = self.opt.get("w2pre", 1)
        if w2pre:
            if w2pre == 2:
                p(f"v_min_u32 v16, 27, {vLane}")
                p("v_lshlrev_b32 v16, 2, v16")
                p(f"s_lshl_b32 {sT0}, {stb}, 7")
                p(f"s_add_u32 {sT0}, {sT0}, {G_FX}")
                self.poll("v16", SG, sT0, 1, sleep=2)
            p(f"s_and_b32 {sT0}, {sh}, 1")
            p(f"s_lshl_b32 {sT0}, {sT0}, 3")
            p(f"s_add_u32 {sT0}, {sT0}, {stb}")
            p(f"v_lshlrev_b32 v64, 7, {vLane}")
            for t in range(7):
                p(f"s_add_u32 {sT1}, {sT0}, {16 * t}")
                p(f"s_min_u32 {sT1}, {sT1}, 97")
                p(f"s_mul_i32 {sT2}, {sT1}, 147")
                p(f"s_lshr_b32 {sT2}, {sT2}, 10")
                p(f"s_mul_i32 {sT3}, {sT2}, 7")
                p(f"s_sub_u32 {sT1}, {sT1}, {sT3}")
                p(f"s_add_u32 {sT2}, {sT2}, 8")
                p(f"s_cmp_ge_u32 {sT2}, 14")
                p(f"s_cselect_b32 {sT3}, 14, 0")
                p(f"s_sub_u32 {sT2}, {sT2}, {sT3}")
                p(f"s_mul_i32 {sT1}, {sT1}, {224 * KB}")
                p(f"s_lshl_b32 {sT2}, {sT2}, 14")
                p(f"s_add_u32 {sT1}, {sT1}, {sT2}")
                p(f"s_add_u32 {sT1}, {sT1}, {WS_P2}")
                p(f"buffer_load_dword v65, v64, {SWS}, {sT1} offen sc1")
                p(f"s_add_u32 {sT1}, {sT1}, {8 * KB}")
                p(f"buffer_load_dword v65, v64, {SWS}, {sT1} offen sc1")
        if self.opt.get("nap", 0):
            p(f"v_min_u32 v16, 13, {vLane}")
            p("v_lshlrev_b32 v16, 2, v16")
            p(f"s_lshl_b32 {sT0}, {srh}, 10")
            p(f"s_add_u32 {sT0}, {sT0}, {G_FH + 3 * 256}")
            self.poll("v16", SG, sT0, 1, sleep=12)
        p("s_waitcnt vmcnt(0) lgkmcnt(0)")

    def spare1(self):
        p = self.p
        wb = self.opt.get("wb", 0)
        if not wb:
            return
        p(f"s_and_b32 {sT0}, {sh}, 1")
        p(f"s_or_b32 {sT0}, {sT0}, {srh}")
        p(f"s_or_b32 {sT0}, {sT0}, {sw}")
        p(f"s_cmp_lg_u32 {sT0}, 0")
        p(f"s_cbranch_scc1 L_fin{self.sfx}")
        if wb == 4:
            p(f"v_and_b32 v13, 15, {vLane}")
            p("v_min_u32 v13, 13, v13")
            p(f"v_bfe_u32 v14, {vLane}, 4, 1")
            p("v_lshl_add_u32 v13, v14, 5, v13")
            p("v_lshlrev_b32 v16, 2, v13")
            p(f"s_mov_b32 {sT0}, {G_FO + 64}")
            self.poll("v16", SG, sT0, 9)
            p("buffer_wbl2 sc1")
            p("s_waitcnt vmcnt(0)")
            return
        p(f"v_and_b32 v13, 15, {vLane}")
        p("v_min_u32 v13, 13, v13")
        p("v_lshlrev_b32 v13, 3, v13")
        p(f"v_lshrrev_b32 v14, 4, {vLane}")
        p("v_lshl_add_u32 v16, v14, 7, v13")
        p(f"s_mov_b32 {sT0}, {G_FX}")
        self.poll("v16", SG, sT0, 3, 2)
        p(f"s_mov_b32 {sT0}, {G_FX + 512}")
        self.poll("v16", SG, sT0, 3, 2)
        p("buffer_wbl2 sc1")
        p("s_waitcnt vmcnt(0)")
        if wb >= 2:
            p(f"v_and_b32 v13, 15, {vLane}")
            p("v_min_u32 v13, 13, v13")
            p("v_lshlrev_b32 v13, 2, v13")
            p(f"v_lshrrev_b32 v14, 4, {vLane}")
            p("v_lshl_add_u32 v16, v14, 6, v13")
            for tb in ((2, 3) if wb == 2 else (0, 2, 1, 3)):
                for half in range(2):
                    p(f"s_mov_b32 {sT0}, {G_FH + (4 * half + tb) * 256}")
                    self.poll("v16", SG, sT0, 2)
                p("buffer_wbl2 sc1")
                p("s_waitcnt vmcnt(0)")

    def finish(self):
        p = self.p
        p(f"s_or_b32 {sT0}, {sg}, {sh}")
        p(f"s_or_b32 {sT0}, {sT0}, {srh}")
        p(f"s_or_b32 {sT0}, {sT0}, {sw}")
        p(f"s_cmp_lg_u32 {sT0}, 0")
        p(f"s_cbranch_scc1 L_fin{self.sfx}")
        p(f"s_add_u32 {sT0}, {sE}, 64")
        p(f"v_mov_b32 v14, {sT0}")
        p("s_mov_b64 exec, 1")
        p(f"buffer_store_dword v14, {vL16}, {SWS}, 0 offen sc1")
        p("s_mov_b64 exec, -1")
        p(f"L_fin{self.sfx}:")
        if self.pad:
            p("s_waitcnt vmcnt(0)")
            if self.opt.get("amp") == "end":
                p("s_memrealtime s[94:95]")
            p("s_waitcnt lgkmcnt(0)")
            p("s_sub_u32 s94, s94, s96")
            p("s_mul_i32 s94, s94, 4")
            p("s_min_u32 s94, s94, 20000")
            p(f"s_add_u32 s94, s94, {self.pad}")
            p(f"L_pad{self.sfx}:")
            p("s_memrealtime s[98:99]")
            p("s_waitcnt lgkmcnt(0)")
            p("s_sub_u32 s98, s98, s96")
            p(f"s_cmp_lt_u32 s98, s94")
            p(f"s_cbranch_scc1 L_pad{self.sfx}")
        if self.diag:
            p("s_waitcnt vmcnt(0)")
            self.stamp("end")
            self.stamp_flush()
            p(f"s_lshl_b32 {sT0}, {srh}, 4")
            p(f"s_add_u32 {sT0}, {sT0}, {sh}")
            p(f"s_lshl_b32 {sT0}, {sT0}, 3")
            p(f"s_add_u32 {sT0}, {sT0}, {sg}")
            p(f"s_lshl_b32 {sT0}, {sT0}, 2")
            p(f"s_add_u32 {sT0}, {sT0}, {sw}")
            p(f"s_lshl_b32 {sT0}, {sT0}, 7")
            p(f"s_add_u32 {sT0}, {sT0}, {WS_DIAG}")
            p("s_mov_b64 exec, 1")
            for i in range(self.nstamp):
                p(f"v_mov_b32 v14, s{STAMP0 + i}")
                p(f"buffer_store_dword v14, {vL16}, {SWS}, {sT0} offen offset:{4 * i}")
            for k in range(2):
                p(f"v_mov_b32 v14, s{18 + k}")
                p(f"buffer_store_dword v14, {vL16}, {SWS}, {sT0} offen offset:{112 + 4 * k}")
            p(f"v_mov_b32 v14, {1 if self.fast else 0}")
            p(f"buffer_store_dword v14, {vL16}, {SWS}, {sT0} offen offset:120")
            p(f"v_mov_b32 v14, {slim}")
            p(f"buffer_store_dword v14, {vL16}, {SWS}, {sT0} offen offset:124")
            p("s_mov_b64 exec, -1")
        p("s_waitcnt vmcnt(0)")
        p("s_endpgm")

    def body(self):
        p = self.p
        x = self.sfx
        if self.opt.get("gc", 56) < 56:
            self.kv0_rest()
        self.q0()
        self.kv_finish(0, 64, "v11")
        self.stamp_flush()
        p(f"s_cmp_ge_u32 {sh}, 14")
        p(f"s_cbranch_scc1 L_spare0{x}")
        assert len(self.bulk) <= 84
        b2 = self.touch[4] + self.take(self.opt.get("b2", 8))

        def pre_wo0():
            for it in b2:
                p.add(it)
            self.colsum_qkv()
        n_before = min(28, 28 + 56 - len(self.bulk))
        cs1 = self.colsum_w1_items()
        b3 = self.take(self.opt.get("b3", 10))
        self.wo_phase(0, pre_wo0, [(cs1[:n_before], 0, 26), (b3, 20, 27)])
        b4 = self.take(max(self.opt.get("b4", 0), len(self.bulk) - 56))

        def pre_ffn0():
            self.colsum_qkv_fetch()
            for it in b4:
                p.add(it)
            for it in cs1[n_before:]:
                p.add(it)
            p(f"v_mov_b32 v84, v{vCS1}")
            p(f"v_mov_b32 v85, v{vCS1 + 1}")
            p.wait_ds()
            p("s_barrier")

        def extra0(pos):
            return [(self.take(100), self.opt.get("w2beg", 0), pos[self.opt.get("w2end", 108)])]
        self.ffn(0, pre_ffn0, extra0)
        p(f"L_layer1{x}:")
        p("s_waitcnt lgkmcnt(0)")
        self.qkv1()
        self.kv_finish(1, 96, "v91")
        p(f"s_cmp_ge_u32 {sh}, 14")
        p(f"s_cbranch_scc1 L_spare1{x}")
        self.wo_phase(1)
        self.ffn(1)
        self.finish()
        p(f"L_spare0{x}:")
        p("s_waitcnt vmcnt(0) lgkmcnt(0)")
        self.spare0()
        p(f"s_branch L_layer1{x}")
        p(f"L_spare1{x}:")
        p("s_waitcnt vmcnt(0) lgkmcnt(0)")
        self.spare1()
        p(f"s_branch L_fin{x}")
        p.add(self.tail)
        self.tail = []

    def build(self):
        p = self.p
        self.prologue()
        self.startup()
        self.qkv0()
        self.body()
        p("L_fastend:")
        p("L_slow:")
        p("s_waitcnt vmcnt(0) lgkmcnt(0)")
        p("s_nop 7")
        self.fast = False
        self.sfx = "_s"
        self.body()
        return finalize(p.ins)


HEADER = f"""; Two layers of (LayerNorm, linear attention, output projection, LayerNorm, SiLU FFN) in ONE persistent launch.
;
; LayerNorm: exact in front of the first GEMM; later folded into the GEMMs (mean as an extra K step against the
; @launch grid=(256,1,1) block=(256,1,1) lds={LDS_BYTES}
.amdgcn_target "amdgcn-amd-amdhsa--gfx950"
.text
.globl {NAME}_kernel
.p2align 8
.type {NAME}_kernel,@function
{NAME}_kernel:
"""
FOOTER = f"""
.section .rodata,"a"
.p2align 6
.amdhsa_kernel {NAME}_kernel
  .amdhsa_next_free_vgpr 512
  .amdhsa_next_free_sgpr 102
  .amdhsa_accum_offset 256
  .amdhsa_group_segment_fixed_size 0
  .amdhsa_kernarg_size 72
  .amdhsa_user_sgpr_count 2
  .amdhsa_user_sgpr_kernarg_segment_ptr 1
  .amdhsa_system_sgpr_workgroup_id_x 1
.end_amdhsa_kernel
"""


def generate(**kw):
    g = Gen(**kw)
    lines = g.build()
    return HEADER + "\n".join(lines) + FOOTER, g


if __name__ == "__main__":
    out = sys.argv[1] if len(sys.argv) > 1 else f"cdna_kernels/{NAME}.s"
    kw = {}
    for a in sys.argv[2:]:
        k, _, v = a.partition("=")
        kw[k] = (int(v) if v.lstrip('-').isdigit() else v) if v else True
    text, g = generate(**kw)
    open(out, "w").write(text)
    print("wrote", out, len(text), "bytes;", text.count("\n"), "lines")
```
